```python
import torch

def _softmax(x, axis=-1):
    return torch.softmax(x, dim=axis)

def _gelu(x):
    return torch.nn.functional.gelu(x, approximate='tanh')

def _silu(x):
    return torch.nn.functional.silu(x)

def _sigmoid(x):
    return torch.sigmoid(x)

def _layernorm(x, axis=-1, eps=1e-05):
    m = x.mean(dim=axis, keepdim=True)
    v = x.var(dim=axis, keepdim=True, unbiased=False)
    return (x - m) / torch.sqrt(v + eps)

def _scatter_add(tgt, idx, src, axis=0):
    return tgt.clone().index_add_(axis, idx, src)

def _segment_sum(src, seg, n):
    out = torch.zeros((n,) + src.shape[1:], dtype=src.dtype)
    return out.index_add_(0, seg, src)

def _pad(x, pw):
    flat = tuple((v for pair in reversed(pw) for v in pair))
    return torch.nn.functional.pad(x, flat)
kernel_name = 'adaLN_cond__sliding_block_cached__glu_gated_reglu__decode'

def setup_inputs():

    _w = lambda a: (lambda t: t.to(torch.bfloat16) if t.is_floating_point() else t)(torch.as_tensor(a))

    def _A_setup():
        B, Sq, D = (2, 1, 512)
        Hq, Hkv, Sk, Dh = (32, 8, 8192, 128)
        assert Hq % Hkv == 0, (Hq, Hkv)
        return {'x': _w((lambda *s: torch.randn(*s, dtype=torch.bfloat16) * 0.1)(B, Sq, D)), 'k_cache': _w((lambda *s: torch.randn(*s, dtype=torch.bfloat16) * 0.8)(B, Hkv, Sk, Dh)), 'v_cache': _w((lambda *s: torch.randn(*s, dtype=torch.bfloat16) * 3.2)(B, Hkv, Sk, Dh)), 'wq': _w((lambda *s: torch.randn(*s, dtype=torch.bfloat16) * 0.8)(D, Hq * Dh) * D ** (-0.5)), 'wo': _w((lambda *s: torch.randn(*s, dtype=torch.bfloat16) * 3.2)(Hq * Dh, D) * (Hq * Dh) ** (-0.5))}
    _A_in = _A_setup()

    def _B_setup():
        B, S, D, F = (2, 1, 512, 1792)
        return {'x': _w((lambda *s: torch.randn(*s, dtype=torch.bfloat16) * 0.1)(B, S, D)), 'W_gate': _w((lambda *s: torch.randn(*s, dtype=torch.bfloat16) * 3.2)(D, F) * (2.0 / D) ** 0.5), 'W_up': _w((lambda *s: torch.randn(*s, dtype=torch.bfloat16) * 3.2)(D, F) * (2.0 / D) ** 0.5), 'W_down': _w((lambda *s: torch.randn(*s, dtype=torch.bfloat16) * 3.2)(F, D) * (1.0 / F) ** 0.5)}
    _B_in = _B_setup()
    return {'A_x': _A_in['x'], 'A_k_cache': _A_in['k_cache'], 'A_v_cache': _A_in['v_cache'], 'A_wq': _A_in['wq'], 'A_wo': _A_in['wo'], 'B_x': _B_in['x'], 'B_W_gate': _B_in['W_gate'], 'B_W_up': _B_in['W_up'], 'B_W_down': _B_in['W_down'], 'c': _w((lambda *s: torch.randn(*s, dtype=torch.bfloat16) * 0.1)(2, 512) * 8.0), 'w_mod': _w((lambda *s: torch.randn(*s, dtype=torch.bfloat16) * 0.1)(512, 6 * 512) * 512 ** (-0.5) * 8.0)}

def reference(A_x, A_k_cache, A_v_cache, A_wq, A_wo, B_x, B_W_gate, B_W_up, B_W_down, c, w_mod):

    def _A_ref(x, k_cache, v_cache, wq, wo):
        B, Sq, D = x.shape
        Hq, Dh = (32, 128)
        Hkv, Sk = (k_cache.shape[1], k_cache.shape[2])
        W = min(4096, max(256, Sk // 4))
        rep = Hq // Hkv
        q = (lambda x, *d: x.permute(*d))((x @ wq).reshape(B, Sq, Hq, Dh), 0, 2, 1, 3)
        k = (lambda x, n, axis: torch.repeat_interleave(x, n, dim=axis))(k_cache[:, :, Sk - W:, :], rep, axis=1)
        v = (lambda x, n, axis: torch.repeat_interleave(x, n, dim=axis))(v_cache[:, :, Sk - W:, :], rep, axis=1)
        scores = torch.einsum('bhqd,bhkd->bhqk', q, k) * Dh ** (-0.5)
        p = _softmax(scores, axis=-1)
        o = torch.einsum('bhqk,bhkd->bhqd', p, v)
        return (lambda x, *d: x.permute(*d))(o, 0, 2, 1, 3).reshape(B, Sq, Hq * Dh) @ wo

    def _B_ref(x, W_gate, W_up, W_down):
        gate = torch.einsum('bsd,df->bsf', x, W_gate)
        up = torch.einsum('bsd,df->bsf', x, W_up)
        gate = gate * (lambda x, dt: x.to(dt))(gate > 0, gate.dtype)
        h = gate * up
        return torch.einsum('bsf,fd->bsd', h, W_down)
    x = A_x
    mod = (_silu(c) @ w_mod).reshape(c.shape[0], 6, 1, -1)
    sa, ca, ga, sb, cb, gb = (mod[:, 0].clone(), mod[:, 1].clone(), mod[:, 2].clone(), mod[:, 3].clone(), mod[:, 4].clone(), mod[:, 5].clone())
    h = _layernorm(x, axis=-1) * (1 + ca) + sa
    x = x + ga * _A_ref(h, A_k_cache, A_v_cache, A_wq, A_wo)
    h = _layernorm(x, axis=-1) * (1 + cb) + sb
    x = x + gb * _B_ref(h, B_W_gate, B_W_up, B_W_down)
    return x
```

```python
import re

TRANS = ("v_exp_f32", "v_log_f32", "v_rcp_f32", "v_rsq_f32", "v_sqrt_f32", "v_sin_f32", "v_cos_f32")

def _regs(tok):
    tok = tok.strip()
    tok = re.sub(r"^-", "", tok)
    m = re.match(r"^abs\((.*)\)$", tok)
    if m: tok = m.group(1)
    m = re.match(r"^\|(.*)\|$", tok)
    if m: tok = m.group(1)
    m = re.match(r"^([vsa])(\d+)$", tok)
    if m: return {(m.group(1), int(m.group(2)))}
    m = re.match(r"^([vsa])\[(\d+):(\d+)\]$", tok)
    if m: return {(m.group(1), i) for i in range(int(m.group(2)), int(m.group(3)) + 1)}
    if tok in ("vcc", "vcc_lo", "vcc_hi"): return {("vcc", 0)}
    if tok == "m0": return {("m0", 0)}
    if tok in ("exec", "exec_lo", "exec_hi"): return {("exec", 0)}
    return set()

class Ins:
    def __init__(self, text):
        self.text = text
        t = text.split(";")[0].strip()
        self.is_label = t.endswith(":")
        self.is_dir = t.startswith(".")
        self.op = "" if (self.is_label or self.is_dir or not t) else t.split()[0]
        rest = t[len(self.op):].strip() if self.op else ""
        ops = [o.strip() for o in rest.split(",")] if rest else []
        mods = ""
        if ops:
            parts = ops[-1].split()
            ops[-1] = parts[0] if parts else ""
            mods = " ".join(parts[1:])
        self.ops, self.mods = ops, mods
        op = self.op
        self.mfma = op.startswith("v_mfma")
        self.valu = op.startswith("v_") and not self.mfma
        self.salu = op.startswith("s_")
        self.ds = op.startswith("ds_")
        self.vmem = op.startswith(("buffer_", "global_"))
        self.trans = op.replace("_e32", "").replace("_e64", "") in TRANS
        self.dpp = "_dpp" in op or "row_" in mods or "quad_perm" in mods
        self.perml = op.startswith("v_permlane")
        self.rfl = op.startswith(("v_readfirstlane", "v_readlane"))
        self.ldsdma = self.vmem and (" lds" in (" " + mods) or "load_lds" in op)
        R = [_regs(o) for o in ops]
        w, r = set(), set()
        if self.mfma:
            w = R[0]; self.A, self.B, self.C = R[1], R[2], R[3]; r = R[1] | R[2] | R[3]
        elif self.valu:
            if self.perml:
                w = R[0] | R[1]; r = R[0] | R[1]
            elif op.startswith("v_cmp"):
                w = R[0]; r = set().union(*R[1:])
            elif op.startswith(("v_add_co", "v_sub_co", "v_addc_co", "v_subb_co")):
                w = R[0] | R[1]; r = set().union(*R[2:])
            else:
                w = R[0]; r = set().union(*R[1:]) if len(R) > 1 else set()
                if op.startswith(("v_fmac", "v_fmamk", "v_fmaak", "v_dot2c", "v_pk_fmac")) or self.dpp:
                    r |= R[0]
                if op.startswith("v_cndmask") and len(ops) == 3: r |= {("vcc", 0)}
        elif self.ds:
            if op.startswith(("ds_read", "ds_bpermute", "ds_permute", "ds_swizzle")) or "_rtn" in op:
                w = R[0]; r = set().union(*R[1:])
            else:
                r = set().union(*R)
        elif self.vmem:
            if "load" in op and not self.ldsdma:
                w = R[0]; r = set().union(*R[1:])
            else:
                r = set().union(*R)
            self.store_wide = ("store" in op) and (op.endswith("x4") or op.endswith("x3"))
            if "store" in op:
                self.data = R[0] if op.startswith("buffer_") else R[1]
        elif self.salu:
            if op.startswith(("s_cmp", "s_cbranch", "s_branch", "s_waitcnt", "s_nop", "s_barrier", "s_endpgm", "s_sleep", "s_setprio")):
                r = set().union(*R) if R else set()
            else:
                w = R[0] if R else set(); r = set().union(*R[1:]) if len(R) > 1 else set()
                if "saveexec" in op: w |= {("exec", 0)}
        self.w, self.r = w, r
    def states(self):
        if self.is_label or self.is_dir or not self.op: return 0
        if self.op == "s_nop": return int(self.ops[0], 0) + 1
        return 1

def need(p, c):
    n = 0
    vw = {x for x in p.w if x[0] in "va"}
    sw = {x for x in p.w if x[0] in ("s", "vcc")}
    if p.valu:
        if c.mfma and vw & c.r: n = max(n, 2)
        if p.trans and c.valu and not c.trans and vw & c.r: n = max(n, 1)
        if p.trans and c.valu and c.trans and vw & c.r: n = max(n, 1)
        if (c.dpp or c.perml) and vw & c.r: n = max(n, 2)
        if c.rfl and vw & c.r: n = max(n, 1)
        if (c.valu or c.mfma) and sw & c.r: n = max(n, 2)
        if c.rfl and sw & c.r: n = max(n, 4)
        if c.vmem and sw & c.r: n = max(n, 5)
        if ("exec", 0) in p.w: n = max(n, 5)
    if p.mfma:
        passes = 8 if "32x32" in p.op else 4
        big = {4: 8, 8: 12}[passes]; ovl = {4: 6, 8: 10}[passes]; war = {4: 3, 8: 7}[passes]
        if c.mfma:
            if p.w & (c.A | c.B): n = max(n, big)
            if p.w & c.C and not (p.w == c.C and ("32x32" in c.op) == ("32x32" in p.op)): n = max(n, ovl)
            if p.w & c.w and not (p.w == c.C): n = max(n, big)
        else:
            if p.w & (c.r | c.w): n = max(n, big)
            if c.valu and p.C & c.w: n = max(n, war)
    if p.salu and ("m0", 0) in p.w and c.ldsdma: n = max(n, 1)
    if p.vmem and getattr(p, "store_wide", False) and p.data & c.w: n = max(n, 2)
    return n

class Asm:
    def __init__(self):
        self.L = []
    def __call__(self, s):
        for line in s.split("\n"):
            line = line.strip()
            if line: self.L.append(line)
    def label(self, name): self.L.append(name + ":")
    def finish(self):
        out, hist = [], []
        for line in self.L:
            ins = Ins(line)
            if ins.op:
                req = 0; dist = 0
                for p in reversed(hist):
                    k = need(p, ins)
                    if k > dist: req = max(req, k - dist)
                    dist += p.states()
                    if dist >= 16: break
                if req > 0:
                    nop = Ins(f"s_nop {req-1}")
                    out.append("    " + nop.text); hist.append(nop)
                hist.append(ins)
                if ins.op in ("s_branch", "s_endpgm"): hist = []
                out.append("    " + line)
            else:
                out.append(line)
        return "\n".join(out)
```

```python
import sys, struct
from asmlib import Asm

NAME = "adaLN_cond__sliding_block_cached__glu_gated_reglu__decode"
KNAME = NAME + "_kernel"

def f32(x): return "0x%08x" % struct.unpack("<I", struct.pack("<f", x))[0]

EPOCH = 0x0
RDY = 0x1000
HA = 0x2000
HM = 0x6000
HD = 0x8000
HB = 0x10000
HC = 0x20000
HL = 0x40000
HF = 0x50000
STAMP = 0x100000
WS_SIZE = 0x200000
KB, VB, MR, SC, QB = 0, 65536, 131072, 147456, 149760
FLAGS = 151040
LDS_BYTES = 151552
F_Q, F_VI, F_ATT, F_N, F_Q2, F_W = 0, 4, 8, 12, 16, 20
W1, WQ, RW = 0, 8192, 40960
DWN = RW + 65536
S1, NV, RED = 139264, 139904, 140288
AROW, PART, STAT, HH = WQ, WQ + 9216, WQ + 9216 + 8192, WQ + 9216 + 8192 + 128

LOG2E = 1.4426950408889634
CSC = (128 ** -0.5) * LOG2E
SPIN = 20000

class Gen:
    def __init__(self, diag=False, wflag="nt", opts=None):
        self.a = Asm()
        self.diag = diag
        self.wf = wflag
        self.o = opts or {}
        self.nlab = 0
    def lab(self, p="L"):
        self.nlab += 1
        return f"{p}{self.nlab}"
    def stamp(self, k):
        if self.diag: self.a(f"s_memrealtime s[{64+2*k}:{65+2*k}]")
    def dump_stamps(self):
        if not self.diag: return
        a = self.a
        a("s_waitcnt lgkmcnt(0)")
        a("s_mov_b64 exec, 1")
        a("s_mul_i32 s60, s2, 5")
        a("s_add_u32 s60, s60, s3")
        a("s_lshl_b32 s60, s60, 6")
        a(f"s_add_u32 s60, s60, {STAMP}")
        a("v_mov_b32 v1, 0")
        for q in range(4):
            for i in range(4):
                a(f"v_mov_b32 v{4+i}, s{64+2*(4*q+i)}")
            a(f"buffer_store_dwordx4 v[4:7], v1, s[40:43], s60 offen offset:{16*q}")
            a("s_nop 1")
    def end(self):
        self.dump_stamps()
        self.a("s_endpgm")
    def srd(self, d, p, size):
        a = self.a
        a(f"s_mov_b64 s[{d}:{d+1}], s[{p}:{p+1}]")
        a(f"s_mov_b32 s{d+2}, {size}")
        a(f"s_mov_b32 s{d+3}, 0x20000")
    def tag(self):
        self.a("s_mul_i32 s14, s14, 0x9E3779B1")
        self.a("s_add_u32 s14, s14, 0x7F4A7C15")
    def lds_inc(self, off, vaddr, vtmp, ret=None):
        a = self.a
        a("s_mov_b64 exec, 1")
        a(f"v_mov_b32 v{vtmp}, 1")
        if ret is None:
            a(f"ds_add_u32 v{vaddr}, v{vtmp} offset:{off}")
            a("s_mov_b64 exec, -1")
        else:
            a(f"ds_add_rtn_u32 v{vtmp}, v{vaddr}, v{vtmp} offset:{off}")
            a("s_waitcnt lgkmcnt(0)")
            a(f"v_readfirstlane_b32 s{ret}, v{vtmp}")
            a("s_mov_b64 exec, -1")
    def lds_wait(self, off, val, vaddr, vtmp, extra=None):
        a = self.a
        L = self.lab("Lw"); D = self.lab("Lwd")
        a(f"s_mov_b32 s12, {SPIN*20}")
        a.label(L)
        a(f"ds_read_b32 v{vtmp}, v{vaddr} offset:{off}")
        if extra: extra()
        a("s_waitcnt lgkmcnt(0)")
        a(f"v_readfirstlane_b32 s13, v{vtmp}")
        a("s_sub_u32 s12, s12, 1")
        a(f"s_cbranch_scc1 {D}")
        a(f"s_cmp_lt_u32 s13, {val}")
        a(f"s_cbranch_scc1 {L}")
        a.label(D)
    def poll(self, loads, checks):
        a = self.a
        L = self.lab("Lp"); D = self.lab("Lpd")
        n = len(loads)
        a(f"s_mov_b32 s12, {SPIN}")
        a.label(L)
        for l in loads: a(l)
        for i, (op, opd, r) in enumerate(checks):
            a(f"s_waitcnt vmcnt({n-1-i})")
            if i == 0:
                a(f"{op} s[10:11], {opd}, v{r}")
            else:
                a(f"{op} vcc, {opd}, v{r}")
                a("s_or_b64 s[10:11], s[10:11], vcc")
        a("s_sub_u32 s12, s12, 1")
        a(f"s_cbranch_scc1 {D}")
        a("s_cmp_lg_u64 s[10:11], 0")
        a(f"s_cbranch_scc1 {L}")
        a.label(D)
    POISON = ("v_cmp_eq_u32", "-1")
    TAGBAD = ("v_cmp_ne_u32", "s14")
    def silu(self, regs, tmp):
        a = self.a
        for i, r in enumerate(regs): a(f"v_mul_f32 v{tmp+i}, {f32(-LOG2E)}, v{r}")
        for i, r in enumerate(regs): a(f"v_exp_f32 v{tmp+i}, v{tmp+i}")
        for i, r in enumerate(regs): a(f"v_add_f32 v{tmp+i}, 1.0, v{tmp+i}")
        for i, r in enumerate(regs): a(f"v_rcp_f32 v{tmp+i}, v{tmp+i}")
        for i, r in enumerate(regs): a(f"v_mul_f32 v{r}, v{r}, v{tmp+i}")
    def unpack(self, src, dst, n):
        for i in range(n):
            self.a(f"v_lshlrev_b32 v{dst+2*i}, 16, v{src+i}")
            self.a(f"v_and_b32 v{dst+2*i+1}, 0xffff0000, v{src+i}")
    def rnd(self, r):
        self.a(f"v_cvt_pk_bf16_f32 v{r}, v{r}, v{r}")
        self.a(f"v_and_b32 v{r}, 0xffff0000, v{r}")
    def red32(self, r, t):
        a = self.a
        for m in ("quad_perm:[1,0,3,2]", "quad_perm:[2,3,0,1]", "row_half_mirror", "row_mirror"):
            a(f"v_add_f32_dpp v{r}, v{r}, v{r} {m} row_mask:0xf bank_mask:0xf")
        a(f"v_mov_b32 v{t}, v{r}")
        a(f"v_permlane16_swap_b32 v{r}, v{t}")
        a(f"v_add_f32 v{r}, v{r}, v{t}")
    def rdy_check(self, vb):
        a = self.a
        a(f"v_lshlrev_b32 v{vb}, 4, v0")
        a(f"s_mov_b32 s15, {RDY}")
        self.poll([f"buffer_load_dwordx4 v[{vb+4+4*i}:{vb+7+4*i}], v{vb}, s[40:43], s15 offen offset:{1024*i} sc1" for i in range(4)],
                  [(*self.TAGBAD, vb + 4 + 4 * i) for i in range(4)])
    def rdy_publish(self, vb):
        a = self.a
        for i in range(4): a(f"v_mov_b32 v{vb+i}, s14")
        a(f"v_mov_b32 v{vb+4}, 0")
        a("s_lshl_b32 s15, s2, 4")
        a(f"s_add_u32 s15, s15, {RDY}")
        a("s_mov_b64 exec, 1")
        a(f"buffer_store_dwordx4 v[{vb}:{vb+3}], v{vb+4}, s[40:43], s15 offen sc1")
        a("s_mov_b64 exec, -1")
    def code_prefetch(self, vt):
        a = self.a
        L = self.lab("Lpc")
        a("s_getpc_b64 s[56:57]")
        a.label(L)
        a(f"s_sub_u32 s56, s56, {L}-{KNAME}")
        a("s_subb_u32 s57, s57, 0")
        a("s_lshl_b32 s15, s5, 9")
        a(f"v_lshl_add_u32 v{vt}, v0, 7, s15")
        a(f"v_min_u32 v{vt}, Lcode_end-{KNAME}-4, v{vt}")
        a("s_mov_b64 exec, 15")
        a(f"global_load_dword v{vt+1}, v{vt}, s[56:57]")
        a("s_mov_b64 exec, -1")

    def prologue(self):
        a = self.a
        a("s_cmp_ge_u32 s2, 256")
        a("s_cbranch_scc1 Lexit")
        a("s_load_dwordx16 s[16:31], s[0:1], 0")
        a("s_load_dwordx8 s[32:39], s[0:1], 64")
        a("s_load_dwordx2 s[40:41], s[0:1], 104")
        if self.diag:
            for k in range(1, 16): a(f"s_mov_b32 s{64+2*k}, 0")
        self.stamp(0)
        a("v_lshrrev_b32 v1, 6, v0")
        a("v_and_b32 v0, 63, v0")
        a("s_and_b32 s4, s2, 7")
        a("v_readfirstlane_b32 s3, v1")
        a("s_lshr_b32 s5, s2, 3")
        a(f"s_mov_b32 s42, {WS_SIZE}")
        a("s_mov_b32 s43, 0x20000")
        a(f"v_mov_b32 v21, {FLAGS}")
        a("s_cmp_ge_u32 s5, 16")
        a("s_cbranch_scc1 LE")
        a("s_cmp_eq_u32 s3, 4")
        a("s_cbranch_scc1 LTH")

    def tw_early(self):
        a, wf = self.a, self.wf
        a("s_and_b32 s6, s5, 8")
        a("s_add_u32 s6, s6, s4")
        a("s_lshl_b32 s6, s6, 21")
        a("s_and_b32 s7, s5, 7")
        a("s_lshl_b32 s7, s7, 16")
        a("s_add_u32 s6, s6, s7")
        a("s_lshl_b32 s7, s3, 14")
        a("s_add_u32 s6, s6, s7")
        a(f"s_add_u32 s6, s6, {6144*256}")
        a("v_lshrrev_b32 v1, 4, v0")
        a("v_and_b32 v8, 15, v0")
        a("v_xor_b32 v2, v8, v1")
        a("v_lshlrev_b32 v2, 4, v2")
        a("v_lshl_add_u32 v2, v1, 8, v2")
        a("v_xor_b32 v3, 64, v2")
        a("v_xor_b32 v4, 0x80, v2")
        a("v_xor_b32 v5, 0xc0, v2")
        a("v_lshlrev_b32 v6, 1, v1")
        a("v_xor_b32 v6, v8, v6")
        a("v_lshlrev_b32 v6, 4, v6")
        a("v_lshl_add_u32 v6, v1, 8, v6")
        a("v_xor_b32 v7, 0x80, v6")
        a("s_mov_b32 m0, s7")
        a("s_mov_b32 s8, s6")
        a("s_add_u32 s9, s6, 16384")
        a("s_waitcnt lgkmcnt(0)")
        self.srd(44, 18, 0x2000000)
        self.srd(48, 20, 0x2000000)
        a("s_barrier")
        a.label("LTWk")
        for i in range(4):
            a(f"buffer_load_dwordx4 v{2+i}, s[44:47], s8 offen offset:{1024*i} {wf} lds")
        a("s_add_u32 m0, m0, 4096")
        a("s_add_u32 s8, s8, 4096")
        a("s_cmp_lt_u32 s8, s9")
        a("s_cbranch_scc1 LTWk")
        a(f"s_add_u32 m0, s7, {VB}")
        a("s_mov_b32 s8, s6")
        a.label("LTWv")
        for i in range(4):
            a(f"buffer_load_dwordx4 v{6+(i&1)}, s[48:51], s8 offen offset:{1024*i} {wf} lds")
        a("s_add_u32 m0, m0, 4096")
        a("s_add_u32 s8, s8, 4096")
        a("s_cmp_lt_u32 s8, s9")
        a("s_cbranch_scc1 LTWv")
        a("s_branch LTW2")

    def e_early(self):
        a, wf = self.a, self.wf
        a.label("LE")
        a("s_sub_u32 s5, s5, 16")
        a("s_cmp_eq_u32 s3, 4")
        a("s_cbranch_scc0 LEW")
        a("s_lshr_b32 s6, s5, 2")
        a("s_and_b32 s7, s5, 3")
        a(f"s_mul_i32 s8, s6, {128*6144}")
        a("s_lshl_b32 s9, s4, 7")
        a("s_add_u32 s8, s8, s9")
        a("s_lshl_b32 s9, s7, 5")
        a("s_add_u32 s8, s8, s9")
        a("v_lshrrev_b32 v1, 1, v0")
        a("v_mul_u32_u24 v1, 6144, v1")
        a("v_and_b32 v2, 1, v0")
        a("v_lshl_add_u32 v1, v2, 4, v1")
        a("v_lshrrev_b32 v2, 5, v0")
        a("v_and_b32 v3, 31, v0")
        a("v_lshlrev_b32 v4, 3, v3")
        a("v_lshl_add_u32 v4, v2, 10, v4")
        a("s_lshl_b32 s9, s6, 8")
        a("v_mov_b32 v5, 0")
        a("v_lshl_add_u32 v6, v0, 2, v21")
        a("ds_write_b32 v6, v5")
        a(f"s_mov_b32 m0, {W1}")
        a("s_waitcnt lgkmcnt(0)")
        self.srd(44, 36, 512 * 6144)
        self.srd(48, 34, 2048)
        a("buffer_load_dwordx2 v[8:9], v4, s[48:51], s9 offen")
        a("s_load_dword s14, s[40:41], 0")
        a.label("LE1")
        a(f"buffer_load_dwordx4 v1, s[44:47], s8 offen {wf} lds")
        a(f"buffer_load_dwordx4 v1, s[44:47], s8 offen offset:1024 {wf} lds")
        a("s_add_u32 m0, m0, 2048")
        a(f"s_add_u32 s8, s8, {32*6144}")
        a(f"s_cmp_lt_u32 m0, {W1+8192}")
        a("s_cbranch_scc1 LE1")
        a("s_barrier")
        a("s_branch LEH2")
        a.label("LEW")
        a("s_lshr_b32 s6, s5, 3")
        a("s_and_b32 s7, s5, 7")
        a("s_lshl_b32 s8, s6, 2")
        a("s_add_u32 s8, s8, s3")
        a("s_lshl_b32 s9, s8, 19")
        a("s_lshl_b32 s15, s4, 10")
        a("s_add_u32 s9, s9, s15")
        a("s_lshl_b32 s15, s7, 7")
        a("s_add_u32 s9, s9, s15")
        a("v_lshrrev_b32 v1, 3, v0")
        a("v_and_b32 v2, 6, v1")
        a("v_and_b32 v3, 7, v0")
        a("v_xor_b32 v2, v2, v3")
        a("v_lshlrev_b32 v22, 4, v2")
        a("v_lshl_add_u32 v2, v1, 13, v22")
        a("s_lshl_b32 s15, s3, 13")
        a(f"s_add_u32 m0, s15, {WQ}")
        a(f"s_add_u32 s13, s15, {WQ+8192}")
        a("s_waitcnt lgkmcnt(0)")
        self.srd(44, 22, 512 * 8192)
        a("s_load_dword s14, s[40:41], 0")
        a("s_cmp_gt_u32 s3, 1")
        a("s_cbranch_scc1 LEWb")
        a("s_cmp_eq_u32 s3, 0")
        a("s_cbranch_scc0 LEW1")
        self.srd(48, 16, 2048)
        a("v_lshlrev_b32 v3, 5, v0")
        a("buffer_load_dwordx4 v[24:27], v3, s[48:51], 0 offen")
        a("buffer_load_dwordx4 v[28:31], v3, s[48:51], 0 offen offset:16")
        a.label("LEWb")
        a("s_barrier")
        a.label("LEWq")
        a(f"buffer_load_dwordx4 v2, s[44:47], s9 offen {wf} lds")
        a("s_add_u32 m0, m0, 1024")
        a("s_add_u32 s9, s9, 65536")
        a("s_cmp_lt_u32 m0, s13")
        a("s_cbranch_scc1 LEWq")
        a("s_branch LEW2")

    def e_wave1_poison(self):
        a = self.a
        a.label("LEW1")
        for i in range(4): a(f"v_mov_b32 v{24+i}, -1")
        a("v_lshrrev_b32 v3, 4, v0")
        a("v_and_b32 v4, 15, v0")
        a("v_lshlrev_b32 v4, 4, v4")
        a("v_lshl_add_u32 v5, v3, 12, v4")
        a("s_lshl_b32 s15, s4, 13")
        a("s_lshl_b32 s52, s6, 11")
        a("s_add_u32 s15, s15, s52")
        a("s_lshl_b32 s52, s7, 8")
        a("s_add_u32 s15, s15, s52")
        a(f"s_add_u32 s15, s15, {HB}")
        a("s_mov_b32 exec_hi, 0")
        a("buffer_store_dwordx4 v[24:27], v5, s[40:43], s15 offen sc1")
        a("s_cmp_ge_u32 s5, 8")
        a("s_cbranch_scc1 LEW1g")
        a("v_lshl_add_u32 v5, v3, 11, v4")
        a("s_lshl_b32 s15, s4, 12")
        a("s_lshl_b32 s52, s5, 8")
        a("s_add_u32 s15, s15, s52")
        a(f"s_add_u32 s15, s15, {HD}")
        a("buffer_store_dwordx4 v[24:27], v5, s[40:43], s15 offen sc1")
        a("s_mov_b64 exec, -1")
        a("s_branch LEW1e")
        a.label("LEW1g")
        a("s_mov_b64 exec, -1")
        self.g_index()
        a("s_cbranch_scc1 LEW1e")
        a("v_lshrrev_b32 v3, 3, v0")
        a("v_and_b32 v4, 7, v0")
        a("v_lshlrev_b32 v4, 4, v4")
        a("v_lshl_add_u32 v5, v3, 13, v4")
        a("s_lshl_b32 s15, s53, 7")
        a(f"s_add_u32 s15, s15, {HF}")
        for i in range(4):
            a("buffer_store_dwordx4 v[24:27], v5, s[40:43], s15 offen sc1")
            if i < 3: a("s_add_u32 s15, s15, 65536")
        a.label("LEW1e")
        a("s_add_u32 s5, s5, 16")
        self.code_prefetch(3)
        a("s_sub_u32 s5, s5, 16")
        a("s_branch LEWb")

    def g_index(self):
        a = self.a
        a("s_lshr_b32 s53, s4, 1")
        a("s_mul_i32 s53, s53, 14")
        a("s_and_b32 s52, s4, 1")
        a("s_lshl_b32 s54, s52, 3")
        a("s_add_u32 s53, s53, s54")
        a("s_add_u32 s53, s53, s5")
        a("s_sub_u32 s53, s53, 8")
        a("s_lshl_b32 s52, s52, 1")
        a("s_sub_u32 s52, 16, s52")
        a("s_cmp_ge_u32 s5, s52")

    def t_helper(self):
        a, wf = self.a, self.wf
        a.label("LTH")
        a("v_mov_b32 v5, 0")
        a("v_lshl_add_u32 v6, v0, 2, v21")
        a("ds_write_b32 v6, v5")
        a("s_lshl_b32 s6, s4, 4")
        a("s_add_u32 s6, s6, s5")
        for i in range(4): a(f"v_mov_b32 v{24+i}, -1")
        a("v_lshlrev_b32 v2, 4, v0")
        a("v_lshlrev_b32 v3, 5, v0")
        a("s_lshl_b32 s7, s6, 10")
        a(f"s_add_u32 s7, s7, {HC}")
        a("s_lshl_b32 s8, s6, 7")
        a(f"s_add_u32 s8, s8, {HL}")
        a("s_lshl_b32 s9, s6, 6")
        a(f"s_add_u32 s9, s9, {HM}")
        a("s_waitcnt lgkmcnt(0)")
        a("s_load_dword s14, s[40:41], 0")
        a("buffer_store_dwordx4 v[24:27], v2, s[40:43], s7 offen sc1")
        a("s_mov_b64 exec, 15")
        a("buffer_store_dwordx4 v[24:27], v2, s[40:43], s8 offen sc1")
        a("buffer_store_dwordx4 v[24:27], v2, s[40:43], s9 offen sc1")
        a("s_mov_b64 exec, -1")
        self.srd(48, 34, 2048)
        a("buffer_load_dwordx4 v[28:31], v3, s[48:51], 0 offen")
        a("buffer_load_dwordx4 v[32:35], v3, s[48:51], 0 offen offset:16")
        a("s_barrier")
        self.code_prefetch(4)
        self.srd(44, 36, 512 * 6144)
        a("s_waitcnt vmcnt(0) lgkmcnt(0)")
        self.tag()
        self.rdy_publish(8)
        self.stamp(1)
        self.unpack(28, 40, 8)
        self.silu(list(range(40, 56)), 56)
        for i in range(8): a(f"v_cvt_pk_bf16_f32 v{28+i}, v{40+2*i}, v{41+2*i}")
        a("v_lshrrev_b32 v4, 5, v0")
        a("v_mul_u32_u24 v4, 1040, v4")
        a("v_bfe_u32 v5, v0, 1, 4")
        a("v_lshl_add_u32 v4, v5, 6, v4")
        a("v_and_b32 v5, 1, v0")
        a("v_lshl_add_u32 v4, v5, 3, v4")
        a(f"v_add_u32 v4, {SC}, v4")
        for q in range(4): a(f"ds_write_b64 v4, v[{28+2*q}:{29+2*q}] offset:{16*q}")
        a("v_mul_u32_u24 v4, 1040, v5")
        a("v_lshrrev_b32 v6, 4, v0")
        a("v_lshl_add_u32 v4, v6, 4, v4")
        a(f"v_add_u32 v4, {SC}, v4")
        a("s_waitcnt lgkmcnt(0)")
        for i in range(16): a(f"ds_read_b128 v[{128+4*i}:{131+4*i}], v4 offset:{64*i}")
        self.rdy_check(40)
        self.stamp(2)
        a("s_lshl_b32 s15, s4, 13")
        a("s_and_b32 s13, s5, 8")
        a("s_lshl_b32 s13, s13, 9")
        a("s_add_u32 s15, s15, s13")
        a(f"s_add_u32 s15, s15, {HB}")
        a("v_lshrrev_b32 v4, 5, v0")
        a("v_mul_u32_u24 v4, 272, v4")
        a("v_and_b32 v5, 31, v0")
        a("v_lshl_add_u32 v4, v5, 3, v4")
        a(f"v_add_u32 v4, {QB}, v4")
        a("v_mov_b32 v7, 1")
        self.poll([f"buffer_load_dwordx4 v[{40+4*i}:{43+4*i}], v2, s[40:43], s15 offen offset:{1024*i} sc1" for i in range(4)],
                  [(*self.POISON, 40 + 4 * i) for i in range(4)])
        for i in range(8): a(f"v_add_f32 v{40+i}, v{40+i}, v{48+i}")
        for i in range(4): a(f"v_cvt_pk_bf16_f32 v{56+i}, v{40+2*i}, v{41+2*i}")
        a("ds_write_b64 v4, v[56:57]")
        a("ds_write_b64 v4, v[58:59] offset:544")
        a(f"ds_write_b32 v21, v7 offset:{F_Q}")
        self.stamp(3)
        a("v_lshrrev_b32 v1, 1, v0")
        a("v_mul_u32_u24 v1, 6144, v1")
        a("v_and_b32 v5, 1, v0")
        a("v_lshl_add_u32 v1, v5, 4, v1")
        a("s_lshl_b32 s7, s6, 5")
        a("s_add_u32 s7, s7, 2048")
        a("s_and_b32 s8, s5, 3")
        a("s_lshl_b32 s8, s8, 2")
        a("s_mov_b32 s52, 16")
        self.lds_wait(F_VI, 4, 21, 6)
        a.label("LTHm")
        a(f"s_mul_i32 s13, s8, {32*6144}")
        a("s_add_u32 s13, s13, s7")
        a("s_lshl_b32 s15, s8, 10")
        a(f"s_add_u32 m0, s15, {MR}")
        a("s_add_u32 s8, s8, 1")
        a(f"buffer_load_dwordx4 v1, s[44:47], s13 offen {wf} lds")
        a("s_and_b32 s8, s8, 15")
        a("s_sub_u32 s52, s52, 1")
        a("s_cmp_lg_u32 s52, 0")
        a("s_cbranch_scc1 LTHm")
        a("v_lshlrev_b32 v4, 3, v0")
        a(f"v_add_u32 v4, {MR}, v4")
        a("v_and_b32 v5, 15, v0")
        a("v_lshlrev_b32 v5, 5, v5")
        a("v_lshrrev_b32 v6, 4, v0")
        a("v_lshl_add_u32 v5, v6, 3, v5")
        a("s_waitcnt vmcnt(0)")
        self.stamp(4)
        for i in range(16):
            a(f"ds_read_b64_tr_b16 v[{64+4*i}:{65+4*i}], v4 offset:{1024*i}")
            a(f"ds_read_b64_tr_b16 v[{66+4*i}:{67+4*i}], v4 offset:{1024*i+512}")
        a("s_waitcnt lgkmcnt(0)")
        for i in range(16):
            d = 40 + 4 * (i & 1)
            c = f"v[{d}:{d+3}]" if i >= 2 else "0"
            a(f"v_mfma_f32_16x16x32_bf16 v[{d}:{d+3}], v[{64+4*i}:{67+4*i}], v[{128+4*i}:{131+4*i}], {c}")
        for i in range(4): a(f"v_add_f32 v{40+i}, v{40+i}, v{44+i}")
        a("v_cvt_pk_bf16_f32 v48, v40, v41")
        a("v_cvt_pk_bf16_f32 v49, v42, v43")
        a("s_mov_b32 exec_lo, 0x00030003")
        a("s_mov_b32 exec_hi, 0x00030003")
        a("buffer_store_dwordx2 v[48:49], v5, s[40:43], s9 offen sc1")
        self.stamp(5)
        self.end()

    def tw_main(self):
        a = self.a
        a.label("LTW2")
        a("s_load_dword s14, s[40:41], 0")
        self.lds_inc(F_VI, 21, 1)
        self.stamp(1)
        a("v_and_b32 v1, 15, v0")
        a("v_lshrrev_b32 v2, 4, v0")
        a("v_xor_b32 v3, v1, v2")
        a("v_lshlrev_b32 v3, 4, v3")
        a("v_lshl_add_u32 v3, v1, 8, v3")
        a("v_add_u32 v8, s7, v3")
        a("v_xor_b32 v9, 64, v8")
        a("v_xor_b32 v10, 0x80, v8")
        a("v_xor_b32 v11, 0xc0, v8")
        a("v_lshrrev_b32 v3, 2, v0")
        a("v_and_b32 v4, 7, v3")
        a("v_lshlrev_b32 v4, 5, v4")
        a("v_lshl_add_u32 v4, v3, 8, v4")
        a("v_and_b32 v5, 3, v0")
        a("v_lshl_add_u32 v4, v5, 3, v4")
        a(f"s_add_u32 s8, s7, {VB}")
        a("v_add_u32 v12, s8, v4")
        for dt in range(1, 8): a(f"v_xor_b32 v{12+dt}, {32*dt}, v12")
        a("v_mul_u32_u24 v20, 272, v5")
        a("v_lshl_add_u32 v20, v2, 4, v20")
        a(f"v_add_u32 v20, {QB}, v20")
        a("v_mul_u32_u24 v22, 528, v5")
        a("v_lshl_add_u32 v22, v2, 4, v22")
        a("v_add_u32 v22, s7, v22")
        a("v_lshl_add_u32 v23, v5, 3, s7")
        a(f"s_mov_b32 s9, {f32(CSC)}")
        a("s_waitcnt vmcnt(16)")
        self.stamp(2)
        for t in range(4):
            for ks in range(4):
                r = 64 + 16 * t + 4 * ks
                a(f"ds_read_b128 v[{r}:{r+3}], v{8+ks} offset:{4096*t}")
        def qreads():
            for ks in range(4): a(f"ds_read_b128 v[{24+4*ks}:{27+4*ks}], v20 offset:{64*ks}")
        self.lds_wait(F_Q, 1, 21, 1, qreads)
        self.stamp(3)
        for ks in range(4):
            for t in range(4):
                r = 64 + 16 * t + 4 * ks
                d = 40 + 4 * t
                c = f"v[{d}:{d+3}]" if ks else "0"
                a(f"v_mfma_f32_16x16x32_bf16 v[{d}:{d+3}], v[{r}:{r+3}], v[{24+4*ks}:{27+4*ks}], {c}")
        def vreads(blk):
            for dt in range(8):
                r = 128 + 32 * blk + 4 * dt
                a(f"ds_read_b64_tr_b16 v[{r}:{r+1}], v{12+dt} offset:{8192*blk}")
                a(f"ds_read_b64_tr_b16 v[{r+2}:{r+3}], v{12+dt} offset:{8192*blk+4096}")
        a("s_waitcnt vmcnt(8)")
        vreads(0)
        a("v_max3_f32 v224, v40, v41, v42")
        a("v_max3_f32 v225, v43, v44, v45")
        a("v_max3_f32 v226, v46, v47, v48")
        a("v_max3_f32 v227, v49, v50, v51")
        a("v_max3_f32 v228, v52, v53, v54")
        a("v_max3_f32 v224, v224, v225, v226")
        a("v_max3_f32 v227, v227, v228, v55")
        a("v_max_f32 v224, v224, v227")
        a("v_mov_b32 v225, v224")
        a("v_permlane16_swap_b32 v224, v225")
        a("v_max_f32 v224, v224, v225")
        a("v_mov_b32 v225, v224")
        a("v_permlane32_swap_b32 v224, v225")
        a("v_max_f32 v224, v224, v225")
        a(f"v_mul_f32 v230, {f32(-CSC)}, v224")
        for i in range(16): a(f"v_fma_f32 v{40+i}, v{40+i}, s9, v230")
        for i in range(16): a(f"v_exp_f32 v{40+i}, v{40+i}")
        for i in range(8): a(f"v_cvt_pk_bf16_f32 v{56+i}, v{40+2*i}, v{41+2*i}")
        a("s_waitcnt vmcnt(0)")
        self.stamp(4)
        vreads(1)
        a("s_waitcnt lgkmcnt(15)")
        for dt in range(8):
            r = 128 + 4 * dt
            a(f"v_mfma_f32_16x16x32_bf16 v[{192+4*dt}:{195+4*dt}], v[{r}:{r+3}], v[56:59], 0")
        for i in range(8): a(f"v_add_f32 v{40+i}, v{40+i}, v{48+i}")
        for i in range(4): a(f"v_add_f32 v{40+i}, v{40+i}, v{44+i}")
        a("v_add_f32 v40, v40, v42")
        a("v_add_f32 v41, v41, v43")
        a("v_add_f32 v231, v40, v41")
        a("s_waitcnt lgkmcnt(0)")
        for dt in range(8):
            r = 160 + 4 * dt
            a(f"v_mfma_f32_16x16x32_bf16 v[{192+4*dt}:{195+4*dt}], v[{r}:{r+3}], v[60:63], v[{192+4*dt}:{195+4*dt}]")
        a("v_mov_b32 v225, v231")
        a("v_permlane16_swap_b32 v231, v225")
        a("v_add_f32 v231, v231, v225")
        a("v_mov_b32 v225, v231")
        a("v_permlane32_swap_b32 v231, v225")
        a("v_add_f32 v231, v231, v225")
        a("s_mov_b32 exec_lo, 0x000f000f")
        a("s_mov_b32 exec_hi, 0x000f000f")
        a("ds_write_b64 v23, v[230:231] offset:2304")
        for dt in range(8): a(f"ds_write_b128 v22, v[{192+4*dt}:{195+4*dt}] offset:{64*dt}")
        a("s_waitcnt lgkmcnt(0)")
        self.lds_inc(F_ATT, 21, 1, ret=13)
        a("s_cmp_eq_u32 s13, 3")
        a("s_cbranch_scc0 LTWr")
        a("v_lshrrev_b32 v2, 4, v0")
        a("v_mul_u32_u24 v3, 528, v2")
        a("v_bfe_u32 v4, v0, 2, 2")
        a("v_lshl_add_u32 v3, v4, 7, v3")
        a("v_and_b32 v4, 3, v0")
        a("v_lshl_add_u32 v3, v4, 4, v3")
        a("v_lshlrev_b32 v4, 3, v2")
        for w in range(4): a(f"ds_read_b64 v[{24+2*w}:{25+2*w}], v4 offset:{16384*w+2304}")
        for w in range(4):
            a(f"ds_read_b128 v[{64+8*w}:{67+8*w}], v3 offset:{16384*w}")
            a(f"ds_read_b128 v[{68+8*w}:{71+8*w}], v3 offset:{16384*w+64}")
        a("s_lshl_b32 s6, s4, 4")
        a("s_add_u32 s6, s6, s5")
        a("s_lshl_b32 s8, s6, 10")
        a(f"s_add_u32 s8, s8, {HC}")
        a("s_lshl_b32 s9, s6, 7")
        a(f"s_add_u32 s9, s9, {HL}")
        a("v_lshlrev_b32 v5, 4, v0")
        a("v_lshlrev_b32 v6, 2, v2")
        a("s_waitcnt lgkmcnt(8)")
        a("v_min3_f32 v32, v24, v26, v28")
        a("v_min_f32 v32, v32, v30")
        for w in range(4): a(f"v_sub_f32 v{24+2*w}, v32, v{24+2*w}")
        for w in range(4): a(f"v_exp_f32 v{24+2*w}, v{24+2*w}")
        a("v_mul_f32 v33, v24, v25")
        for w in range(1, 4): a(f"v_fmac_f32 v33, v{24+2*w}, v{25+2*w}")
        a("v_rcp_f32 v34, v33")
        a("v_log_f32 v35, v33")
        for w in range(4): a(f"v_mul_f32 v{24+2*w}, v{24+2*w}, v34")
        a("v_sub_f32 v35, v35, v32")
        a("s_waitcnt lgkmcnt(0)")
        for i in range(8): a(f"v_mul_f32 v{64+i}, v24, v{64+i}")
        for w in range(1, 4):
            for i in range(8): a(f"v_fmac_f32 v{64+i}, v{24+2*w}, v{64+8*w+i}")
        for i in range(4): a(f"v_cvt_pk_bf16_f32 v{36+i}, v{64+2*i}, v{65+2*i}")
        a("buffer_store_dwordx4 v[36:39], v5, s[40:43], s8 offen sc1")
        a("s_mov_b32 exec_lo, 0x00010001")
        a("s_mov_b32 exec_hi, 0x00010001")
        a("buffer_store_dword v35, v6, s[40:43], s9 offen sc1")
        a("s_mov_b64 exec, -1")
        self.stamp(5)
        a.label("LTWr")
        a("s_cmp_lt_u32 s5, 4")
        a("s_cbranch_scc0 LTWe")
        a("s_cmp_eq_u32 s3, 1")
        a("s_cbranch_scc0 LTWe")
        a("s_lshl_b32 s6, s4, 2")
        a("s_add_u32 s6, s6, s5")
        self.srd(44, 16, 2048)
        self.srd(48, 38, 2048)
        a("v_bfe_u32 v2, v0, 2, 1")
        a("v_and_b32 v3, 3, v0")
        a("v_lshlrev_b32 v4, 3, v3")
        a("v_lshl_add_u32 v5, v2, 10, v4")
        a("v_lshl_add_u32 v6, v2, 5, v4")
        a("v_lshlrev_b32 v7, 1, v5")
        a("v_lshrrev_b32 v8, 3, v0")
        a("v_lshl_add_u32 v7, v8, 12, v7")
        a("v_lshlrev_b32 v9, 4, v0")
        a("s_lshl_b32 s7, s6, 5")
        a("s_lshl_b32 s8, s6, 6")
        a(f"s_add_u32 s9, s8, {HD}")
        a(f"s_add_u32 s52, s8, {HM}")
        a(f"s_add_u32 s53, s8, {HM+96*64}")
        a("s_lshl_b32 s54, s6, 13")
        a(f"s_add_u32 s54, s54, {HF}")
        a("s_add_u32 s55, s54, 4096")
        a("buffer_load_dwordx2 v[10:11], v5, s[44:47], s7 offen")
        self.poll(["buffer_load_dwordx4 v[24:27], v7, s[40:43], s9 offen sc1",
                   "buffer_load_dwordx2 v[12:13], v6, s[40:43], s52 offen sc1",
                   "buffer_load_dwordx2 v[14:15], v6, s[40:43], s53 offen sc1"],
                  [(*self.POISON, 24), (*self.POISON, 12), (*self.POISON, 14)])
        self.stamp(6)
        def red8(r):
            for i in range(4): a(f"v_add_f32_dpp v{r+i}, v{r+i}, v{r+i} row_ror:8 row_mask:0xf bank_mask:0xf")
            for sw in ("16", "32"):
                for i in range(4): a(f"v_mov_b32 v{60+i}, v{r+i}")
                for i in range(4): a(f"v_permlane{sw}_swap_b32 v{r+i}, v{60+i}")
                for i in range(4): a(f"v_add_f32 v{r+i}, v{r+i}, v{60+i}")
        red8(24)
        self.unpack(10, 28, 2)
        self.unpack(12, 32, 2)
        self.unpack(14, 36, 2)
        for i in range(4): self.rnd(24 + i)
        for i in range(4): a(f"v_mul_f32 v{24+i}, v{24+i}, v{32+i}")
        for i in range(4): self.rnd(24 + i)
        for i in range(4): a(f"v_add_f32 v{28+i}, v{28+i}, v{24+i}")
        for i in range(4): self.rnd(28 + i)
        self.poll([f"buffer_load_dwordx4 v[{64+4*i}:{67+4*i}], v9, s[40:43], s{54+(i>>2)} offen offset:{1024*(i&3)} sc1" for i in range(7)],
                  [(*self.POISON, 64 + 4 * i) for i in range(7)])
        self.stamp(7)
        for i in range(4):
            a(f"v_add_f32 v{64+i}, v{64+i}, v{68+i}")
            a(f"v_add_f32 v{72+i}, v{72+i}, v{76+i}")
            a(f"v_add_f32 v{80+i}, v{80+i}, v{84+i}")
        for i in range(4):
            a(f"v_add_f32 v{64+i}, v{64+i}, v{72+i}")
            a(f"v_add_f32 v{80+i}, v{80+i}, v{88+i}")
        for i in range(4): a(f"v_add_f32 v{64+i}, v{64+i}, v{80+i}")
        red8(64)
        for i in range(4): self.rnd(64 + i)
        for i in range(4): a(f"v_mul_f32 v{64+i}, v{64+i}, v{36+i}")
        for i in range(4): self.rnd(64 + i)
        for i in range(4): a(f"v_add_f32 v{64+i}, v{64+i}, v{28+i}")
        a("v_cvt_pk_bf16_f32 v10, v64, v65")
        a("v_cvt_pk_bf16_f32 v11, v66, v67")
        a("s_mov_b64 exec, 0xff")
        a("buffer_store_dwordx2 v[10:11], v5, s[48:51], s7 offen")
        self.stamp(8)
        a("s_cmp_eq_u32 s6, 0")
        a("s_cbranch_scc0 LTWe")
        self.tag()
        a("s_mov_b64 exec, 1")
        a("v_mov_b32 v12, s14")
        a("v_mov_b32 v13, 0")
        a(f"buffer_store_dword v12, v13, s[40:43], 0 offen offset:{EPOCH} sc1")
        a.label("LTWe")
        self.end()

    def eh_main(self):
        a = self.a
        a.label("LEH2")
        a("v_mul_u32_u24 v5, 272, v2")
        a("v_lshrrev_b32 v6, 3, v3")
        a("v_lshl_add_u32 v5, v6, 6, v5")
        a("v_and_b32 v6, 3, v3")
        a("v_lshl_add_u32 v5, v6, 4, v5")
        a("v_bfe_u32 v6, v3, 2, 1")
        a("v_lshl_add_u32 v5, v6, 3, v5")
        a(f"v_add_u32 v5, {S1}, v5")
        a("v_and_b32 v10, 1, v0")
        a("v_lshrrev_b32 v11, 4, v0")
        a("v_mul_u32_u24 v6, 272, v10")
        a("v_lshl_add_u32 v6, v11, 4, v6")
        a(f"v_add_u32 v6, {S1}, v6")
        a("v_lshlrev_b32 v7, 6, v10")
        a("v_lshl_add_u32 v7, v11, 4, v7")
        a(f"v_add_u32 v7, {NV}, v7")
        a("v_lshlrev_b32 v12, 3, v0")
        a("v_lshlrev_b32 v13, 4, v10")
        a("v_lshl_add_u32 v13, v11, 5, v13")
        a("s_lshl_b32 s8, s4, 2")
        a("s_add_u32 s8, s8, s7")
        a("s_lshl_b32 s8, s8, 2")
        a("s_add_u32 s8, s8, s6")
        a("s_lshl_b32 s8, s8, 7")
        a(f"s_add_u32 s8, s8, {HA}")
        a("s_cmp_eq_u32 s6, 0")
        a("s_cselect_b32 s9, 1.0, 0")
        for i in range(4): a(f"v_mov_b32 v{44+i}, s9")
        a("s_waitcnt vmcnt(8)")
        self.unpack(8, 16, 2)
        self.silu([16, 17, 18, 19], 24)
        a("v_cvt_pk_bf16_f32 v8, v16, v17")
        a("v_cvt_pk_bf16_f32 v9, v18, v19")
        a("ds_write_b64 v5, v[8:9]")
        a("s_waitcnt lgkmcnt(0)")
        self.tag()
        for i in range(4): a(f"ds_read_b128 v[{128+4*i}:{131+4*i}], v6 offset:{64*i}")
        a("v_mov_b32 v50, s14")
        a("v_mov_b32 v51, s14")
        self.stamp(1)
        for i in range(4):
            a(f"s_waitcnt vmcnt({6-2*i})")
            for seg in range(2):
                r = 64 + 8 * i + 4 * seg
                a(f"ds_read_b64_tr_b16 v[{r}:{r+1}], v12 offset:{W1+2048*i+1024*seg}")
                a(f"ds_read_b64_tr_b16 v[{r+2}:{r+3}], v12 offset:{W1+2048*i+1024*seg+512}")
        self.stamp(2)
        def nread(): a("ds_read_b128 v[52:55], v7")
        self.lds_wait(F_N, 1, 21, 1, nread)
        for i in range(4):
            for seg in range(2):
                r = 64 + 8 * i + 4 * seg
                d = 40 + 4 * seg
                c = "0" if (i == 0 and seg == 0) else f"v[{d}:{d+3}]"
                a(f"v_mfma_f32_16x16x32_bf16 v[{d}:{d+3}], v[{r}:{r+3}], v[{128+4*i}:{131+4*i}], {c}")
        for i in range(4): a(f"v_fmac_f32 v{40+i}, v{52+i}, v{44+i}")
        a("v_cvt_pk_bf16_f32 v48, v40, v41")
        a("v_cvt_pk_bf16_f32 v49, v42, v43")
        a("s_mov_b32 exec_lo, 0x00030003")
        a("s_mov_b32 exec_hi, 0x00030003")
        a("buffer_store_dwordx4 v[48:51], v13, s[40:43], s8 offen sc1")
        a("s_mov_b64 exec, -1")
        self.stamp(3)
        self.rdy_check(56)
        self.stamp(4)
        self.end()

    def ew_main(self):
        a, wf = self.a, self.wf
        a.label("LEW2")
        a("s_waitcnt lgkmcnt(0)")
        self.tag()
        a("s_cmp_gt_u32 s3, 1")
        a("s_cbranch_scc1 LEW3")
        a("s_cmp_eq_u32 s3, 0")
        a("s_cbranch_scc1 LEWln")
        a("s_waitcnt vmcnt(8)")
        self.rdy_publish(24)
        a("s_branch LEW3")
        a.label("LEWln")
        a("s_waitcnt vmcnt(8)")
        self.unpack(24, 32, 8)
        for i in range(8): a(f"v_add_f32 v{48+i}, v{32+i}, v{40+i}")
        for i in range(4): a(f"v_add_f32 v{48+i}, v{48+i}, v{52+i}")
        a("v_add_f32 v48, v48, v50")
        a("v_add_f32 v49, v49, v51")
        a("v_add_f32 v48, v48, v49")
        self.red32(48, 49)
        a(f"v_mul_f32 v48, {f32(1/512)}, v48")
        for i in range(16): a(f"v_sub_f32 v{64+i}, v{32+i}, v48")
        a("v_mul_f32 v50, v64, v64")
        a("v_mul_f32 v51, v65, v65")
        for i in range(1, 8):
            a(f"v_fmac_f32 v50, v{64+2*i}, v{64+2*i}")
            a(f"v_fmac_f32 v51, v{65+2*i}, v{65+2*i}")
        a("v_add_f32 v50, v50, v51")
        self.red32(50, 49)
        a(f"v_mul_f32 v50, {f32(1/512)}, v50")
        self.rnd(48)
        self.rnd(50)
        a(f"v_add_f32 v50, {f32(1e-5)}, v50")
        self.rnd(50)
        a("v_sqrt_f32 v50, v50")
        self.rnd(50)
        a("v_rcp_f32 v50, v50")
        for i in range(16): a(f"v_sub_f32 v{64+i}, v{32+i}, v48")
        for i in range(16): a(f"v_mul_f32 v{64+i}, v{64+i}, v50")
        a("s_lshl_b32 s15, s4, 2")
        a("s_and_b32 s13, s5, 3")
        a("s_add_u32 s15, s15, s13")
        a("s_lshl_b32 s15, 1, s15")
        a("v_lshrrev_b32 v3, 5, v0")
        a("v_lshlrev_b32 v3, 6, v3")
        a(f"v_add_u32 v3, {NV}, v3")
        a("v_mov_b32 v4, 1")
        a("s_mov_b32 exec_lo, s15")
        a("s_mov_b32 exec_hi, s15")
        for q in range(4): a(f"ds_write_b128 v3, v[{64+4*q}:{67+4*q}] offset:{16*q}")
        a(f"ds_write_b32 v21, v4 offset:{F_N}")
        a("s_mov_b64 exec, -1")
        a.label("LEW3")
        self.stamp(1)
        a("v_lshrrev_b32 v3, 2, v0")
        a("v_bfe_u32 v4, v0, 3, 2")
        a("v_lshlrev_b32 v4, 5, v4")
        a("v_lshl_add_u32 v4, v3, 7, v4")
        a("v_and_b32 v5, 3, v0")
        a("v_lshl_add_u32 v23, v5, 3, v4")
        a("s_lshl_b32 s15, s3, 13")
        a(f"s_add_u32 s15, s15, {WQ}")
        a("v_add_u32 v8, s15, v23")
        for t in range(1, 4): a(f"v_xor_b32 v{8+t}, {32*t}, v8")
        a("v_bfe_u32 v3, v0, 3, 1")
        a("v_lshlrev_b32 v3, 9, v3")
        a("v_lshl_add_u32 v3, v5, 7, v3")
        a("v_lshrrev_b32 v4, 4, v0")
        a("v_lshl_add_u32 v3, v4, 5, v3")
        a("v_bfe_u32 v4, v0, 2, 1")
        a("v_lshl_add_u32 v12, v4, 4, v3")
        a("s_lshl_b32 s9, s8, 11")
        a(f"s_add_u32 s9, s9, {HA}")
        a("v_lshrrev_b32 v3, 4, v0")
        a("v_and_b32 v4, 15, v0")
        a("v_lshlrev_b32 v13, 8, v3")
        a("v_lshl_add_u32 v14, v4, 4, v13")
        a("v_lshl_add_u32 v13, v4, 2, v13")
        a("s_lshl_b32 s15, s3, 9")
        a(f"s_add_u32 s15, s15, {RED}")
        a("v_add_u32 v13, s15, v13")
        a(f"v_add_u32 v14, {RED}, v14")
        a("v_lshlrev_b32 v15, 4, v4")
        a("v_lshl_add_u32 v15, v3, 12, v15")
        a("s_lshl_b32 s15, s4, 13")
        a("s_lshl_b32 s52, s6, 11")
        a("s_add_u32 s15, s15, s52")
        a("s_lshl_b32 s52, s7, 8")
        a("s_add_u32 s15, s15, s52")
        a(f"s_add_u32 s55, s15, {HB}")
        a("s_waitcnt vmcnt(0)")
        self.stamp(2)
        for ks in range(2):
            for t in range(4):
                r = 64 + 16 * ks + 4 * t
                a(f"ds_read_b64_tr_b16 v[{r}:{r+1}], v{8+t} offset:{4096*ks}")
                a(f"ds_read_b64_tr_b16 v[{r+2}:{r+3}], v{8+t} offset:{4096*ks+2048}")
        self.poll([f"buffer_load_dwordx4 v[{24+4*ks}:{27+4*ks}], v12, s[40:43], s9 offen offset:{1024*ks} sc1" for ks in range(2)],
                  [(*self.TAGBAD, 26 + 4 * ks) for ks in range(2)])
        self.stamp(3)
        for ks in range(2):
            a(f"v_mov_b32_dpp v{26+4*ks}, v{24+4*ks} row_ror:8 row_mask:0xf bank_mask:0xf")
            a(f"v_mov_b32_dpp v{27+4*ks}, v{25+4*ks} row_ror:8 row_mask:0xf bank_mask:0xf")
        a("s_waitcnt lgkmcnt(0)")
        for ks in range(2):
            for t in range(4):
                r = 64 + 16 * ks + 4 * t
                d = 40 + 4 * t
                c = f"v[{d}:{d+3}]" if ks else "0"
                a(f"v_mfma_f32_16x16x32_bf16 v[{d}:{d+3}], v[{24+4*ks}:{27+4*ks}], v[{r}:{r+3}], {c}")
        for t in range(4):
            a(f"v_add_f32 v{40+4*t}, v{40+4*t}, v{41+4*t}")
            a(f"v_add_f32 v{42+4*t}, v{42+4*t}, v{43+4*t}")
        for t in range(4): a(f"v_add_f32 v{40+4*t}, v{40+4*t}, v{42+4*t}")
        a("s_mov_b32 exec_hi, 0")
        for t in range(4): a(f"ds_write_b32 v13, v{40+4*t} offset:{64*t}")
        a("s_waitcnt lgkmcnt(0)")
        self.lds_inc(F_Q2, 21, 1, ret=13)
        a("s_cmp_eq_u32 s13, 3")
        a("s_cbranch_scc0 LEW4")
        a("s_mov_b32 exec_hi, 0")
        for w in range(4): a(f"ds_read_b128 v[{24+4*w}:{27+4*w}], v14 offset:{512*w}")
        a("s_waitcnt lgkmcnt(0)")
        for i in range(4):
            a(f"v_add_f32 v{24+i}, v{24+i}, v{28+i}")
            a(f"v_add_f32 v{32+i}, v{32+i}, v{36+i}")
        for i in range(4): a(f"v_add_f32 v{24+i}, v{24+i}, v{32+i}")
        a("buffer_store_dwordx4 v[24:27], v15, s[40:43], s55 offen sc1")
        a("s_mov_b64 exec, -1")
        self.stamp(4)
        a.label("LEW4")
        a("s_barrier")
        self.stamp(5)
        a("s_cmp_ge_u32 s5, 8")
        a("s_cbranch_scc1 LG")
        self.w_role()
        self.g_role()

    def w_role(self):
        a, wf = self.a, self.wf
        self.srd(44, 24, 4096 * 1024)
        a("v_lshrrev_b32 v1, 3, v0")
        a("v_lshl_add_u32 v2, v1, 10, v22")
        a("s_lshl_b32 s9, s4, 19")
        a("s_lshl_b32 s15, s3, 17")
        a("s_add_u32 s9, s9, s15")
        a("s_lshl_b32 s15, s5, 7")
        a("s_add_u32 s9, s9, s15")
        a("s_lshl_b32 s15, s3, 14")
        a(f"s_add_u32 m0, s15, {RW}")
        a(f"s_add_u32 s13, s15, {RW+16384}")
        a.label("LWd")
        a(f"buffer_load_dwordx4 v2, s[44:47], s9 offen {wf} lds")
        a("s_add_u32 m0, m0, 1024")
        a("s_add_u32 s9, s9, 8192")
        a("s_cmp_lt_u32 m0, s13")
        a("s_cbranch_scc1 LWd")
        a(f"s_add_u32 s15, s15, {RW}")
        a("v_add_u32 v8, s15, v23")
        for t in range(1, 4): a(f"v_xor_b32 v{8+t}, {32*t}, v8")
        a("v_and_b32 v3, 15, v0")
        a("v_lshrrev_b32 v4, 4, v0")
        a("v_lshlrev_b32 v12, 10, v3")
        a("v_lshl_add_u32 v12, v4, 4, v12")
        a("s_lshl_b32 s9, s4, 14")
        a("s_lshl_b32 s15, s3, 8")
        a("s_add_u32 s9, s9, s15")
        a(f"s_add_u32 s9, s9, {HC}")
        a("v_lshlrev_b32 v13, 9, v4")
        a("v_xor_b32 v14, 0x200, v13")
        a("s_lshl_b32 s8, s4, 11")
        a("s_lshl_b32 s15, s3, 2")
        a("s_add_u32 s8, s8, s15")
        a(f"s_add_u32 s8, s8, {HL}")
        a("v_lshlrev_b32 v15, 8, v4")
        a("v_lshl_add_u32 v15, v3, 2, v15")
        a("s_lshl_b32 s15, s3, 10")
        a(f"s_add_u32 s15, s15, {RED}")
        a("v_add_u32 v15, s15, v15")
        a("v_lshlrev_b32 v17, 4, v3")
        a("v_lshl_add_u32 v16, v4, 9, v17")
        a(f"v_add_u32 v16, {RED}, v16")
        a("v_lshl_add_u32 v17, v4, 11, v17")
        a("s_lshl_b32 s55, s4, 12")
        a("s_lshl_b32 s15, s5, 8")
        a("s_add_u32 s55, s55, s15")
        a(f"s_add_u32 s55, s55, {HD}")
        a("s_waitcnt vmcnt(0)")
        self.stamp(6)
        for ks in range(4):
            for t in range(4):
                r = 64 + 16 * ks + 4 * t
                a(f"ds_read_b64_tr_b16 v[{r}:{r+1}], v{8+t} offset:{4096*ks}")
                a(f"ds_read_b64_tr_b16 v[{r+2}:{r+3}], v{8+t} offset:{4096*ks+2048}")
        loads = [f"buffer_load_dwordx4 v[{24+4*ks}:{27+4*ks}], v12, s[40:43], s9 offen offset:{64*ks} sc1" for ks in range(4)]
        checks = [(*self.POISON, 24 + 4 * ks) for ks in range(4)]
        for i in range(8):
            loads.append(f"buffer_load_dword v{128+i}, v{13+(i>>2)}, s[40:43], s8 offen offset:{128*(i&3)} sc1")
            checks.append((*self.POISON, 128 + i))
        self.poll(loads, checks)
        self.stamp(7)
        a("s_waitcnt lgkmcnt(0)")
        for ks in range(4):
            for t in range(4):
                r = 64 + 16 * ks + 4 * t
                d = 40 + 4 * t
                c = f"v[{d}:{d+3}]" if ks else "0"
                a(f"v_mfma_f32_16x16x32_bf16 v[{d}:{d+3}], v[{24+4*ks}:{27+4*ks}], v[{r}:{r+3}], {c}")
        a("v_max3_f32 v136, v128, v129, v130")
        a("v_max3_f32 v137, v131, v132, v133")
        a("v_max3_f32 v136, v136, v134, v135")
        a("v_max_f32 v136, v136, v137")
        for i in range(8): a(f"v_sub_f32 v{128+i}, v{128+i}, v136")
        for i in range(8): a(f"v_exp_f32 v{128+i}, v{128+i}")
        for i in range(4): a(f"v_add_f32 v{132+i}, v{132+i}, v{128+i}")
        a("v_add_f32 v132, v132, v133")
        a("v_add_f32 v134, v134, v135")
        a("v_add_f32 v132, v132, v134")
        a("v_rcp_f32 v132, v132")
        for i in range(4): a(f"v_mul_f32 v{128+i}, v{128+i}, v132")
        for t in range(4): a(f"v_mul_f32 v{40+4*t}, v{40+4*t}, v128")
        for r in range(1, 4):
            for t in range(4): a(f"v_fmac_f32 v{40+4*t}, v{40+4*t+r}, v{128+r}")
        for t in range(4): a(f"ds_write_b32 v15, v{40+4*t} offset:{64*t}")
        a("s_waitcnt lgkmcnt(0)")
        self.lds_inc(F_W, 21, 1, ret=13)
        a("s_cmp_eq_u32 s13, 3")
        a("s_cbranch_scc0 LWe")
        a("s_mov_b32 exec_hi, 0")
        for i in range(8): a(f"ds_read_b128 v[{64+4*i}:{67+4*i}], v16 offset:{1024*(i>>1)+256*(i&1)}")
        a("s_waitcnt lgkmcnt(0)")
        for i in range(4):
            for k in range(4): a(f"v_add_f32 v{64+8*k+i}, v{64+8*k+i}, v{68+8*k+i}")
        for i in range(4):
            a(f"v_add_f32 v{64+i}, v{64+i}, v{72+i}")
            a(f"v_add_f32 v{80+i}, v{80+i}, v{88+i}")
        for i in range(4): a(f"v_add_f32 v{64+i}, v{64+i}, v{80+i}")
        a("buffer_store_dwordx4 v[64:67], v17, s[40:43], s55 offen sc1")
        self.stamp(8)
        a.label("LWe")
        self.end()

    def g_role(self):
        a, wf = self.a, self.wf
        a.label("LG")
        self.g_index()
        a("s_cbranch_scc1 LGe")
        a("s_and_b32 s52, s53, 1")
        a("s_cmp_eq_u32 s52, 0")
        a("s_cselect_b64 s[44:45], s[28:29], s[30:31]")
        a("s_cselect_b64 s[48:49], s[30:31], s[28:29]")
        a(f"s_mov_b32 s46, {512*3584}")
        a("s_mov_b32 s47, 0x20000")
        a(f"s_mov_b32 s50, {512*3584}")
        a("s_mov_b32 s51, 0x20000")
        a("s_lshl_b32 s52, s52, 13")
        a("v_lshrrev_b32 v1, 2, v0")
        a("v_bfe_u32 v2, v0, 4, 1")
        a("v_lshlrev_b32 v2, 1, v2")
        a("v_and_b32 v3, 3, v0")
        a("v_xor_b32 v2, v2, v3")
        a("v_mul_u32_u24 v4, 3584, v1")
        a("v_lshl_add_u32 v2, v2, 4, v4")
        a(f"s_mul_i32 s8, s3, {128*3584}")
        a("s_lshl_b32 s15, s53, 6")
        a("s_add_u32 s8, s8, s15")
        a("s_lshl_b32 s7, s3, 14")
        a(f"s_add_u32 s7, s7, {RW}")
        for m in range(2):
            a("s_add_u32 m0, s7, s52")
            a("s_add_u32 s13, m0, 8192")
            a("s_mov_b32 s9, s8")
            a.label(f"LGd{m}")
            a(f"buffer_load_dwordx4 v2, s[{44+4*m}:{47+4*m}], s9 offen {wf} lds")
            a("s_add_u32 m0, m0, 1024")
            a(f"s_add_u32 s9, s9, {16*3584}")
            a("s_cmp_lt_u32 m0, s13")
            a(f"s_cbranch_scc1 LGd{m}")
            if m == 0: a("s_xor_b32 s52, s52, 8192")
        self.srd(44, 32, 1792 * 1024)
        a("v_lshrrev_b32 v4, 4, v0")
        a("v_and_b32 v5, 15, v0")
        a("v_lshlrev_b32 v6, 1, v4")
        a("v_xor_b32 v6, v5, v6")
        a("v_lshlrev_b32 v6, 4, v6")
        a("v_lshl_add_u32 v6, v4, 10, v6")
        a("v_xor_b32 v7, 0x80, v6")
        a("s_lshl_b32 s9, s53, 15")
        a("s_lshl_b32 s15, s3, 8")
        a("s_add_u32 s9, s9, s15")
        a("s_lshl_b32 s6, s3, 13")
        a(f"s_add_u32 s6, s6, {DWN}")
        a("s_mov_b32 m0, s6")
        a("s_add_u32 s13, s6, 8192")
        a.label("LGd2")
        for i in range(2):
            a(f"buffer_load_dwordx4 v{6+i}, s[44:47], s9 offen {wf} lds")
            a("s_add_u32 m0, m0, 1024")
            a("s_add_u32 s9, s9, 4096")
        a("s_cmp_lt_u32 m0, s13")
        a("s_cbranch_scc1 LGd2")
        self.srd(48, 16, 2048)
        a("v_lshrrev_b32 v4, 5, v0")
        a("v_and_b32 v5, 31, v0")
        a("v_lshlrev_b32 v18, 3, v5")
        a("v_lshl_add_u32 v18, v4, 10, v18")
        a("buffer_load_dwordx2 v[24:25], v18, s[48:51], s15 offen")
        a("v_lshlrev_b32 v18, 1, v18")
        a("v_lshrrev_b32 v19, 2, v5")
        a("v_lshlrev_b32 v19, 6, v19")
        a("v_lshl_add_u32 v19, v4, 5, v19")
        a("v_lshl_add_u32 v19, v3, 3, v19")
        a("s_lshl_b32 s15, s3, 9")
        for k in range(8): a(f"s_add_u32 s{16+k}, s15, {HD+4096*k}")
        a(f"s_add_u32 s24, s15, {HM}")
        a(f"s_add_u32 s25, s15, {HM+4096}")
        a("v_bfe_u32 v8, v0, 4, 1")
        a("v_lshlrev_b32 v8, 5, v8")
        a("v_lshl_add_u32 v8, v1, 6, v8")
        a("v_lshl_add_u32 v8, v3, 3, v8")
        a("v_add_u32 v8, s7, v8")
        a("v_xor_b32 v9, 32, v8")
        a("v_and_b32 v10, 7, v1")
        a("v_lshlrev_b32 v10, 5, v10")
        a("v_lshl_add_u32 v10, v1, 8, v10")
        a("v_lshl_add_u32 v10, v3, 3, v10")
        a("v_add_u32 v10, s6, v10")
        for dt in range(1, 8): a(f"v_xor_b32 v{10+dt}, {32*dt}, v10")
        a("v_mul_u32_u24 v20, 1088, v4")
        a("v_lshrrev_b32 v6, 3, v5")
        a("v_lshl_add_u32 v20, v6, 6, v20")
        a("v_lshl_add_u32 v20, v3, 4, v20")
        a("v_bfe_u32 v6, v0, 2, 1")
        a("v_lshl_add_u32 v20, v6, 3, v20")
        a("s_mul_i32 s15, s3, 2304")
        a(f"s_add_u32 s15, s15, {AROW}")
        a("v_add_u32 v20, s15, v20")
        a("v_and_b32 v22, 7, v0")
        a("v_mul_u32_u24 v22, 272, v22")
        a("v_lshrrev_b32 v7, 4, v0")
        a("v_lshl_add_u32 v22, v7, 4, v22")
        a("v_add_u32 v22, s15, v22")
        a("s_lshl_b32 s15, s3, 11")
        a(f"s_add_u32 s15, s15, {PART}")
        a("v_lshl_add_u32 v23, v0, 4, s15")
        a("v_bfe_u32 v2, v0, 4, 1")
        a("v_lshlrev_b32 v2, 9, v2")
        a("v_lshl_add_u32 v2, v4, 8, v2")
        a("v_and_b32 v6, 15, v0")
        a("v_lshl_add_u32 v2, v6, 4, v2")
        a(f"v_add_u32 v2, {PART}, v2")
        a("v_lshlrev_b32 v224, 5, v4")
        a(f"v_add_u32 v224, {STAT}, v224")
        a("s_lshl_b32 s15, s3, 3")
        a("v_add_u32 v225, s15, v224")
        a("v_lshlrev_b32 v226, 6, v4")
        a("v_bfe_u32 v6, v0, 2, 2")
        a("v_lshl_add_u32 v226, v6, 4, v226")
        a("v_bfe_u32 v6, v0, 4, 1")
        a("v_lshl_add_u32 v226, v6, 3, v226")
        a("v_lshl_add_u32 v226, v3, 1, v226")
        a("s_lshl_b32 s15, s3, 7")
        a(f"s_add_u32 s15, s15, {HH}")
        a("v_add_u32 v226, s15, v226")
        a("v_and_b32 v6, 1, v0")
        a("v_lshlrev_b32 v227, 6, v6")
        a("v_lshl_add_u32 v227, v7, 4, v227")
        a("v_mov_b32 v228, v227")
        a("v_add_u32 v227, s15, v227")
        a("s_lshl_b32 s26, s3, 16")
        a("s_lshl_b32 s15, s53, 7")
        a("s_add_u32 s26, s26, s15")
        a(f"s_add_u32 s26, s26, {HF}")
        a("s_waitcnt vmcnt(0)")
        self.stamp(6)
        for m in range(2):
            for ks in range(4):
                for t in range(2):
                    r = 64 + 32 * m + 8 * ks + 4 * t
                    a(f"ds_read_b64_tr_b16 v[{r}:{r+1}], v{8+t} offset:{8192*m+2048*ks}")
                    a(f"ds_read_b64_tr_b16 v[{r+2}:{r+3}], v{8+t} offset:{8192*m+2048*ks+1024}")
        for dt in range(8):
            r = 128 + 4 * dt
            a(f"ds_read_b64_tr_b16 v[{r}:{r+1}], v{10+dt}")
            a(f"ds_read_b64_tr_b16 v[{r+2}:{r+3}], v{10+dt} offset:4096")
        self.unpack(24, 28, 2)
        loads = [f"buffer_load_dwordx4 v[{160+4*k}:{163+4*k}], v18, s[40:43], s{16+k} offen sc1" for k in range(8)]
        checks = [(*self.POISON, 160 + 4 * k) for k in range(8)]
        loads += ["buffer_load_dwordx2 v[32:33], v19, s[40:43], s24 offen sc1",
                  "buffer_load_dwordx2 v[34:35], v19, s[40:43], s24 offen offset:2048 sc1",
                  "buffer_load_dwordx2 v[36:37], v19, s[40:43], s25 offen sc1"]
        checks += [(*self.POISON, 32), (*self.POISON, 34), (*self.POISON, 36)]
        self.poll(loads, checks)
        self.stamp(7)
        for i in range(4):
            for k in range(4): a(f"v_add_f32 v{160+8*k+i}, v{160+8*k+i}, v{164+8*k+i}")
        for i in range(4):
            a(f"v_add_f32 v{160+i}, v{160+i}, v{168+i}")
            a(f"v_add_f32 v{176+i}, v{176+i}, v{184+i}")
        for i in range(4): a(f"v_add_f32 v{160+i}, v{160+i}, v{176+i}")
        a("ds_write_b64 v20, v[34:35] offset:544")
        self.unpack(32, 164, 2)
        self.unpack(36, 168, 2)
        for i in range(4): self.rnd(160 + i)
        for i in range(4): a(f"v_mul_f32 v{160+i}, v{160+i}, v{164+i}")
        for i in range(4): a(f"v_add_f32 v{168+i}, 1.0, v{168+i}")
        for i in range(4): self.rnd(160 + i)
        a("v_cvt_pk_bf16_f32 v36, v168, v169")
        a("v_cvt_pk_bf16_f32 v37, v170, v171")
        for i in range(4): a(f"v_add_f32 v{28+i}, v{28+i}, v{160+i}")
        a("ds_write_b64 v20, v[36:37] offset:272")
        self.unpack(36, 168, 2)
        for i in range(4): self.rnd(28 + i)
        for i in range(4): a(f"v_mul_f32 v{160+i}, v{28+i}, v{168+i}")
        a("v_cvt_pk_bf16_f32 v32, v160, v161")
        a("v_cvt_pk_bf16_f32 v33, v162, v163")
        a("ds_write_b64 v20, v[32:33]")
        a("s_waitcnt lgkmcnt(0)")
        for ks in range(4): a(f"ds_read_b128 v[{172+4*ks}:{175+4*ks}], v22 offset:{64*ks}")
        a("v_add_f32 v190, v28, v29")
        a("v_add_f32 v191, v30, v31")
        a("v_add_f32 v190, v190, v191")
        self.red32(190, 192)
        a("s_waitcnt lgkmcnt(0)")
        def mf(ks):
            for m in range(2):
                for t in range(2):
                    r = 64 + 32 * m + 8 * ks + 4 * t
                    d = 40 + 8 * m + 4 * t
                    c = f"v[{d}:{d+3}]" if ks else "0"
                    a(f"v_mfma_f32_16x16x32_bf16 v[{d}:{d+3}], v[{172+4*ks}:{175+4*ks}], v[{r}:{r+3}], {c}")
        mf(0)
        a(f"v_mul_f32 v190, {f32(1/128)}, v190")
        for i in range(4): a(f"v_sub_f32 v{28+i}, v{28+i}, v190")
        mf(1)
        a("v_mul_f32 v191, v28, v28")
        for i in range(1, 4): a(f"v_fmac_f32 v191, v{28+i}, v{28+i}")
        mf(2)
        mf(3)
        self.red32(191, 192)
        a("ds_write_b64 v225, v[190:191]")
        a("s_mov_b32 exec_hi, 0")
        for q in range(4): a(f"ds_write_b128 v23, v[{40+4*q}:{43+4*q}] offset:{512*q}")
        a("s_mov_b64 exec, -1")
        a("s_waitcnt lgkmcnt(0)")
        a("s_barrier")
        self.stamp(8)
        a("ds_read_b128 v[24:27], v224")
        a("ds_read_b128 v[28:31], v224 offset:16")
        for w in range(4):
            for m in range(2):
                r = 64 + 8 * w + 4 * m
                a(f"ds_read_b128 v[{r}:{r+3}], v2 offset:{2048*w+1024*m}")
        a("s_waitcnt lgkmcnt(8)")
        a("v_add_f32 v32, v24, v26")
        a("v_add_f32 v33, v28, v30")
        a("v_add_f32 v32, v32, v33")
        a("v_mul_f32 v32, 0.25, v32")
        a("v_add_f32 v34, v25, v27")
        a("v_add_f32 v35, v29, v31")
        for i in range(4): a(f"v_sub_f32 v{24+2*i}, v{24+2*i}, v32")
        a("v_add_f32 v34, v34, v35")
        a("v_mul_f32 v33, v24, v24")
        for i in range(1, 4): a(f"v_fmac_f32 v33, v{24+2*i}, v{24+2*i}")
        a(f"v_mul_f32 v34, {f32(1/512)}, v34")
        a("v_fmac_f32 v34, 0.25, v33")
        self.rnd(32)
        self.rnd(34)
        a(f"v_add_f32 v34, {f32(1e-5)}, v34")
        self.rnd(34)
        a("v_sqrt_f32 v34, v34")
        self.rnd(34)
        a("v_rcp_f32 v34, v34")
        a("s_waitcnt lgkmcnt(0)")
        for m in range(2):
            for i in range(3):
                a(f"v_add_f32 v{64+4*m+i}, v{64+4*m+i}, v{72+4*m+i}")
                a(f"v_add_f32 v{80+4*m+i}, v{80+4*m+i}, v{88+4*m+i}")
        for m in range(2):
            for i in range(3): a(f"v_add_f32 v{64+4*m+i}, v{64+4*m+i}, v{80+4*m+i}")
        for m in range(2): a(f"v_fma_f32 v{64+4*m}, -v32, v{65+4*m}, v{64+4*m}")
        for m in range(2): a(f"v_fma_f32 v{64+4*m}, v{64+4*m}, v34, v{66+4*m}")
        self.rnd(64)
        self.rnd(68)
        a("v_max_f32 v64, 0, v64")
        a("v_mul_f32 v64, v64, v68")
        a("v_cvt_pk_bf16_f32 v64, v64, v64")
        a("ds_write_b16 v226, v64")
        a("s_waitcnt lgkmcnt(0)")
        a("ds_read_b128 v[24:27], v227")
        a("s_waitcnt lgkmcnt(0)")
        for dt in range(8):
            a(f"v_mfma_f32_16x16x32_bf16 v[{160+4*dt}:{163+4*dt}], v[{128+4*dt}:{131+4*dt}], v[24:27], 0")
        a("s_mov_b32 exec_lo, 0x00030003")
        a("s_mov_b32 exec_hi, 0x00030003")
        for dt in range(8):
            a(f"buffer_store_dwordx4 v[{160+4*dt}:{163+4*dt}], v228, s[40:43], s26 offen sc1")
            if dt < 7: a("s_add_u32 s26, s26, 8192")
        self.stamp(9)
        a.label("LGe")
        self.end()

    def build(self):
        self.prologue()
        self.tw_early()
        self.e_early()
        self.t_helper()
        self.e_wave1_poison()
        self.eh_main()
        self.ew_main()
        self.tw_main()
        self.a.label("Lexit")
        self.a("s_endpgm")
        self.a.label("Lcode_end")
        body = self.a.finish()
        head = open("cdna_kernels/" + NAME + ".s.ref").read().split("; Override launch geometry")[0]
        return head + f"""; Generated by gen/gen_kernel.py (hand-written generator): one persistent launch, 256 workgroups x 5 waves.
; @launch grid=(256,1,1) block=(320,1,1) lds={LDS_BYTES}
.amdgcn_target "amdgcn-amd-amdhsa--gfx950"
.text
.globl {KNAME}
.p2align 8
.type {KNAME},@function
{KNAME}:
{body}
.section .rodata,"a"
.p2align 6
.amdhsa_kernel {KNAME}
  .amdhsa_next_free_vgpr 240
  .amdhsa_next_free_sgpr 102
  .amdhsa_accum_offset 240
  .amdhsa_group_segment_fixed_size 0
  .amdhsa_kernarg_size 112
  .amdhsa_user_sgpr_count 2
  .amdhsa_user_sgpr_kernarg_segment_ptr 1
  .amdhsa_system_sgpr_workgroup_id_x 1
.end_amdhsa_kernel
"""

if __name__ == "__main__":
    import argparse
    ap = argparse.ArgumentParser()
    ap.add_argument("-o", default="cdna_kernels/" + NAME + ".s")
    ap.add_argument("--diag", action="store_true")
    ap.add_argument("--wflag", default="nt")
    args = ap.parse_args()
    open(args.o, "w").write(Gen(args.diag, args.wflag).build())
    print("wrote", args.o)
```

```python
from build import build
import json, sys
def gen(segw, segg, thr_n, thr_k, tdelay, gmap):
    L = []
    A = L.append
    A("    s_memrealtime s[20:21]")
    A("    s_load_dwordx8 s[4:11], s[0:1], 0")
    A("    s_load_dwordx2 s[12:13], s[0:1], 32")
    A("    v_lshrrev_b32 v1, 6, v0")
    A("    v_and_b32 v0, 63, v0")
    A("    s_and_b32 s30, s2, 7")
    A("    v_readfirstlane_b32 s3, v1")
    A("    s_lshr_b32 s31, s2, 3")
    A("    s_mov_b32 s14, 0x100000")
    A("    s_mov_b32 s15, 0x00020000")
    A("    s_mov_b32 s42, 0x2000000")
    A("    s_mov_b32 s43, 0x00020000")
    A("    s_lshl_b32 s33, s3, 15")
    A("    s_mov_b32 m0, s33")
    A("    s_cmp_ge_u32 s31, 16")
    A("    s_cbranch_scc1 LE")
    A("    s_and_b32 s34, s31, 8")
    A("    s_add_u32 s34, s34, s30")
    A("    s_lshl_b32 s34, s34, 21")
    A("    s_and_b32 s35, s31, 7")
    A("    s_lshl_b32 s35, s35, 16")
    A("    s_add_u32 s34, s34, s35")
    A("    s_lshl_b32 s35, s3, 14")
    A("    s_add_u32 s34, s34, s35")
    A(f"    s_add_u32 s34, s34, {6144*256}")
    A("    v_lshlrev_b32 v2, 4, v0")
    A("    s_waitcnt lgkmcnt(0)")
    if tdelay:
        A(f"    s_add_u32 s36, s20, {tdelay}")
        A("Ltd:")
        A("    s_memrealtime s[22:23]")
        A("    s_waitcnt lgkmcnt(0)")
        A("    s_sub_u32 s37, s22, s36")
        A("    s_cmp_lt_i32 s37, 0")
        A("    s_cbranch_scc1 Ltd")
    n = 0
    for m in range(2):
        A(f"    s_mov_b64 s[40:41], s[{4+2*m}:{5+2*m}]")
        A("    s_mov_b32 s35, s34")
        for i in range(16):
            A(f"    buffer_load_dwordx4 v2, s[40:43], s35 offen nt lds")
            A("    s_add_u32 m0, m0, 1024")
            A("    s_add_u32 s35, s35, 1024")
            n += 1
            if n <= thr_n and n > thr_k: A(f"    s_waitcnt vmcnt({thr_k})")
    A("    s_branch Lfin")
    A("LE:")
    A("    s_sub_u32 s31, s31, 16")
    A("    s_cmp_ge_u32 s31, 8")
    A("    s_cbranch_scc1 LG")
    lpr = segw // 16; rpi = 64 // lpr if lpr <= 64 else 1
    ncg = 1024 // segw
    rows = 65536 // segw
    sh = lpr.bit_length() - 1
    A(f"    v_lshrrev_b32 v3, {sh}, v0")
    A(f"    v_and_b32 v4, {lpr-1}, v0")
    A("    v_lshlrev_b32 v3, 13, v3")
    A("    v_lshl_add_u32 v2, v4, 4, v3")
    A(f"    s_and_b32 s34, s31, {ncg-1}")
    A(f"    s_mul_i32 s34, s34, {segw}")
    A(f"    s_lshr_b32 s35, s31, {ncg.bit_length()-1}")
    A(f"    s_mul_i32 s35, s35, {rows*8192}")
    A("    s_add_u32 s34, s34, s35")
    A("    s_lshl_b32 s35, s30, 10")
    A("    s_add_u32 s34, s34, s35")
    A(f"    s_mul_i32 s35, s3, {rows//4*8192}")
    A("    s_add_u32 s34, s34, s35")
    A("    s_waitcnt lgkmcnt(0)")
    A("    s_mov_b64 s[40:41], s[8:9]")
    for i in range(16):
        A(f"    buffer_load_dwordx4 v2, s[40:43], s34 offen nt lds")
        A("    s_add_u32 m0, m0, 1024")
        A(f"    s_add_u32 s34, s34, {rpi*8192}")
    A("    s_branch Lfin")
    A("LG:")
    lpr = segg // 16; rpi = 64 // lpr
    ncg = 1024 // segg
    rows = 8192 // segg
    sh = lpr.bit_length() - 1
    A("    s_sub_u32 s31, s31, 8")
    if gmap == 0:
        A("    s_lshl_b32 s36, s30, 3")
        A("    s_add_u32 s36, s36, s31")
        kch = 64 // ncg
        A(f"    s_lshr_b32 s34, s36, {kch.bit_length()-1}")
        A(f"    s_and_b32 s35, s36, {kch-1}")
    else:
        A("    s_lshl_b32 s36, s30, 3")
        A("    s_add_u32 s36, s36, s31")
        A(f"    s_and_b32 s34, s36, {ncg-1}")
        A(f"    s_lshr_b32 s35, s36, {ncg.bit_length()-1}")
    A(f"    s_mul_i32 s34, s34, {segg}")
    A(f"    s_mul_i32 s35, s35, {rows*6144}")
    A("    s_add_u32 s34, s34, s35")
    A(f"    v_lshrrev_b32 v3, {sh}, v0")
    A(f"    v_and_b32 v4, {lpr-1}, v0")
    A("    v_mul_u32_u24 v3, 6144, v3")
    A("    v_lshl_add_u32 v2, v4, 4, v3")
    A("    s_waitcnt lgkmcnt(0)")
    A("    s_mov_b64 s[40:41], s[10:11]")
    A("    s_cmp_eq_u32 s3, 0")
    A("    s_cbranch_scc0 Lfin")
    for i in range(8):
        A(f"    buffer_load_dwordx4 v2, s[40:43], s34 offen nt lds")
        A(f"    buffer_load_dwordx4 v2, s[40:43], s34 offen offset:1024 nt lds")
        A("    s_add_u32 m0, m0, 2048")
        A(f"    s_add_u32 s34, s34, {rpi*6144}")
    A("Lfin:")
    A("    s_memrealtime s[22:23]")
    A("    s_waitcnt vmcnt(0)")
    A("    s_memrealtime s[24:25]")
    A("    s_waitcnt lgkmcnt(0)")
    A("    v_mov_b32 v4, s20")
    A("    v_mov_b32 v5, s22")
    A("    v_mov_b32 v6, s24")
    A("    v_mov_b32 v7, 0")
    A("    s_lshl_b32 s16, s2, 2")
    A("    s_add_u32 s16, s16, s3")
    A("    s_lshl_b32 s16, s16, 4")
    A("    v_mov_b32 v3, 0")
    A("    s_mov_b64 exec, 1")
    A("    buffer_store_dwordx4 v[4:7], v3, s[12:15], s16 offen")
    A("    s_waitcnt vmcnt(0)")
    return "\n".join(L)
cfgs = []
def add(segw, segg, thr_n=0, thr_k=0, tdelay=0, gmap=0):
    name = f"mx_w{segw}_g{segg}_thr{thr_n}_{thr_k}_td{tdelay}_m{gmap}"
    build(gen(segw, segg, thr_n, thr_k, tdelay, gmap), "k_kernel", 5, name, vgpr=32)
    cfgs.append(name)
for segw, segg in [(128,64),(256,128),(512,256),(1024,512),(1024,64),(128,512)]:
    add(segw, segg)
add(128, 64, gmap=1); add(1024, 128, gmap=1); add(1024, 256, gmap=1)
for segw, segg in [(128,64),(1024,256)]:
    add(segw, segg, tdelay=1000)
    add(segw, segg, tdelay=60)
    add(segw, segg, tdelay=100)
    add(segw, segg, 8, 2)
    add(segw, segg, 8, 3)
    add(segw, segg, 12, 3)
    add(segw, segg, 12, 4)
    add(segw, segg, 32, 5)
json.dump(cfgs, open("mix_cfgs.json", "w"))
```

```python
import sys, struct
from asmlib import Asm

NAME = "adaLN_cond__sliding_block_cached__glu_gated_reglu__decode"
KNAME = NAME + "_kernel"

def f32(x): return "0x%08x" % struct.unpack("<I", struct.pack("<f", x))[0]

EPOCH = 0x0
HA = 0x2000
HB = 0x6000
PBASE = 0x10000
HM = 0x10000
HD = 0x12000
HL = 0x1A000
HC = 0x1E000
HF = 0x3E000
HFS = 7168
PEND = 0x76000
STAMP = 0x100000
WS_SIZE = 0x200000
FLAGS = 151040
LDS_BYTES = 151552
F_Q, F_VI, F_ATT, F_N, F_Q2, F_W = 0, 4, 8, 12, 16, 20
KB, VB, QB = 0, 65536, 149760
WQ, WO, RED = 0, 65536, 131072
W1, MR, GU, DWN, SC, NV = 0, 16384, 49152, 114688, 147456, 149760
STAT = W1
PART_O, AROW_O, HH_O = 0, 4096, 8192

LOG2E = 1.4426950408889634
CSC = (128 ** -0.5) * LOG2E
SPIN = 20000

class Gen:
    def __init__(self, diag=False, wflag="nt", opts=None):
        self.a = Asm()
        self.diag = diag
        self.wf = wflag
        self.o = opts or {}
        self.nlab = 0
    def lab(self, p="L"):
        self.nlab += 1
        return f"{p}{self.nlab}"
    def stamp(self, k):
        if self.diag: self.a(f"s_memrealtime s[{64+2*k}:{65+2*k}]")
    def dump_stamps(self):
        if not self.diag: return
        a = self.a
        a("s_waitcnt lgkmcnt(0)")
        a("s_mov_b64 exec, 1")
        a("s_mul_i32 s60, s2, 5")
        a("s_add_u32 s60, s60, s3")
        a("s_lshl_b32 s60, s60, 6")
        a(f"s_add_u32 s60, s60, {STAMP}")
        a("v_mov_b32 v1, 0")
        for q in range(4):
            for i in range(4):
                a(f"v_mov_b32 v{4+i}, s{64+2*(4*q+i)}")
            a(f"buffer_store_dwordx4 v[4:7], v1, s[40:43], s60 offen offset:{16*q}")
            a("s_nop 1")
    def end(self):
        self.dump_stamps()
        self.a("s_endpgm")
    def srd(self, d, p, size):
        a = self.a
        a(f"s_mov_b64 s[{d}:{d+1}], s[{p}:{p+1}]")
        a(f"s_mov_b32 s{d+2}, {size}")
        a(f"s_mov_b32 s{d+3}, 0x20000")
    def tag(self):
        self.a("s_mul_i32 s14, s14, 0x9E3779B1")
        self.a("s_add_u32 s14, s14, 0x7F4A7C15")
    def lds_inc(self, off, vaddr, vtmp, ret=None):
        a = self.a
        a("s_mov_b64 exec, 1")
        a(f"v_mov_b32 v{vtmp}, 1")
        if ret is None:
            a(f"ds_add_u32 v{vaddr}, v{vtmp} offset:{off}")
            a("s_mov_b64 exec, -1")
        else:
            a(f"ds_add_rtn_u32 v{vtmp}, v{vaddr}, v{vtmp} offset:{off}")
            a("s_waitcnt lgkmcnt(0)")
            a(f"v_readfirstlane_b32 s{ret}, v{vtmp}")
            a("s_mov_b64 exec, -1")
    def lds_wait(self, off, val, vaddr, vtmp, extra=None):
        a = self.a
        L = self.lab("Lw"); D = self.lab("Lwd")
        a(f"s_mov_b32 s12, {SPIN*20}")
        a.label(L)
        a(f"ds_read_b32 v{vtmp}, v{vaddr} offset:{off}")
        if extra: extra()
        a("s_waitcnt lgkmcnt(0)")
        a(f"v_readfirstlane_b32 s13, v{vtmp}")
        a("s_sub_u32 s12, s12, 1")
        a(f"s_cbranch_scc1 {D}")
        a(f"s_cmp_lt_u32 s13, {val}")
        a(f"s_cbranch_scc1 {L}")
        a.label(D)
    def poll(self, loads, checks, sleep=None):
        a = self.a
        if sleep is None: sleep = self.o.get("sleep", 0)
        L = self.lab("Lp"); D = self.lab("Lpd")
        n = len(loads)
        a(f"s_mov_b32 s12, {SPIN}")
        a.label(L)
        for l in loads: a(l)
        for i, (op, opd, r) in enumerate(checks):
            a(f"s_waitcnt vmcnt({n-1-i})")
            if i == 0:
                a(f"{op} s[10:11], {opd}, v{r}")
            else:
                a(f"{op} vcc, {opd}, v{r}")
                a("s_or_b64 s[10:11], s[10:11], vcc")
        a("s_sub_u32 s12, s12, 1")
        a(f"s_cbranch_scc1 {D}")
        a("s_cmp_lg_u64 s[10:11], 0")
        if sleep:
            a(f"s_cbranch_scc0 {D}")
            a(f"s_sleep {sleep}")
            a(f"s_branch {L}")
        else:
            a(f"s_cbranch_scc1 {L}")
        a.label(D)
    POISON = ("v_cmp_eq_u32", "-1")
    TAGBAD = ("v_cmp_ne_u32", "s14")
    def silu(self, regs, tmp):
        a = self.a
        for i, r in enumerate(regs): a(f"v_mul_f32 v{tmp+i}, {f32(-LOG2E)}, v{r}")
        for i, r in enumerate(regs): a(f"v_exp_f32 v{tmp+i}, v{tmp+i}")
        for i, r in enumerate(regs): a(f"v_add_f32 v{tmp+i}, 1.0, v{tmp+i}")
        for i, r in enumerate(regs): a(f"v_rcp_f32 v{tmp+i}, v{tmp+i}")
        for i, r in enumerate(regs): a(f"v_mul_f32 v{r}, v{r}, v{tmp+i}")
    def unpack(self, src, dst, n):
        for i in range(n):
            self.a(f"v_lshlrev_b32 v{dst+2*i}, 16, v{src+i}")
            self.a(f"v_and_b32 v{dst+2*i+1}, 0xffff0000, v{src+i}")
    def rnd(self, r):
        self.a(f"v_cvt_pk_bf16_f32 v{r}, v{r}, v{r}")
        self.a(f"v_and_b32 v{r}, 0xffff0000, v{r}")
    def red32(self, r, t):
        a = self.a
        for m in ("quad_perm:[1,0,3,2]", "quad_perm:[2,3,0,1]", "row_half_mirror", "row_mirror"):
            a(f"v_add_f32_dpp v{r}, v{r}, v{r} {m} row_mask:0xf bank_mask:0xf")
        a(f"v_mov_b32 v{t}, v{r}")
        a(f"v_permlane16_swap_b32 v{r}, v{t}")
        a(f"v_add_f32 v{r}, v{r}, v{t}")
    def prologue(self):
        a = self.a
        a("s_cmp_ge_u32 s2, 256")
        a("s_cbranch_scc1 Lexit")
        a("s_load_dwordx16 s[16:31], s[0:1], 0")
        a("s_load_dwordx8 s[32:39], s[0:1], 64")
        a("s_load_dwordx2 s[40:41], s[0:1], 104")
        if self.diag:
            for k in range(1, 16): a(f"s_mov_b32 s{64+2*k}, 0")
        self.stamp(0)
        if self.o.get("padto"): a("s_memrealtime s[96:97]")
        a("s_getpc_b64 s[56:57]")
        a.label("Lpc0")
        a("s_lshr_b32 s5, s2, 3")
        a("v_lshrrev_b32 v1, 6, v0")
        a("s_mul_i32 s6, s5, 640")
        a("v_lshl_add_u32 v2, v1, 7, s6")
        a("v_min_u32 v2, Lcode_end-Lpc0-4, v2")
        a("global_load_dword v239, v2, s[56:57]")
        a("v_and_b32 v0, 63, v0")
        a("s_and_b32 s4, s2, 7")
        a("v_readfirstlane_b32 s3, v1")
        a(f"s_mov_b32 s42, {WS_SIZE}")
        a("s_mov_b32 s43, 0x20000")
        a(f"v_mov_b32 v21, {FLAGS}")
        a("s_cmp_ge_u32 s5, 16")
        a("s_cbranch_scc1 LE")
        a("s_cmp_eq_u32 s3, 4")
        a("s_cbranch_scc1 LTH")

    def tw_early(self):
        a, wf = self.a, self.wf
        a("s_and_b32 s6, s5, 8")
        a("s_add_u32 s6, s6, s4")
        a("s_lshl_b32 s6, s6, 21")
        a("s_and_b32 s7, s5, 7")
        a("s_lshl_b32 s7, s7, 16")
        a("s_add_u32 s6, s6, s7")
        a("s_lshl_b32 s7, s3, 14")
        a("s_add_u32 s6, s6, s7")
        a(f"s_add_u32 s6, s6, {6144*256}")
        a("v_lshrrev_b32 v1, 4, v0")
        a("v_and_b32 v8, 15, v0")
        a("v_xor_b32 v2, v8, v1")
        a("v_lshlrev_b32 v2, 4, v2")
        a("v_lshl_add_u32 v2, v1, 8, v2")
        a("v_xor_b32 v3, 64, v2")
        a("v_xor_b32 v4, 0x80, v2")
        a("v_xor_b32 v5, 0xc0, v2")
        a("v_lshlrev_b32 v6, 1, v1")
        a("v_xor_b32 v6, v8, v6")
        a("v_lshlrev_b32 v6, 4, v6")
        a("v_lshl_add_u32 v6, v1, 8, v6")
        a("v_xor_b32 v7, 0x80, v6")
        if self.o.get("noswz"):
            for i in range(6): a(f"v_lshlrev_b32 v{2+i}, 4, v0")
        if self.o.get("kvlin"):
            a("s_lshl_b32 s6, s5, 3")
            a("s_add_u32 s6, s6, s4")
            a("s_lshl_b32 s6, s6, 16")
            a("s_add_u32 s6, s6, s7")
        a("s_mov_b32 m0, s7")
        a("s_mov_b32 s8, s6")
        a("s_add_u32 s9, s6, 16384")
        a("s_waitcnt lgkmcnt(0)")
        self.srd(44, 18, 0x2000000)
        self.srd(48, 20, 0x2000000)
        a("s_barrier")
        if self.o.get("t_delay"): self.lds_wait(F_Q, 1, 21, 1)
        a.label("LTWk")
        for i in range(4):
            a(f"buffer_load_dwordx4 v{2+i}, s[44:47], s8 offen offset:{1024*i} {wf} lds")
        a("s_add_u32 m0, m0, 4096")
        a("s_add_u32 s8, s8, 4096")
        a("s_cmp_lt_u32 s8, s9")
        a("s_cbranch_scc1 LTWk")
        a(f"s_add_u32 m0, s7, {VB}")
        a("s_mov_b32 s8, s6")
        a.label("LTWv")
        for i in range(4):
            a(f"buffer_load_dwordx4 v{6+(i&1)}, s[48:51], s8 offen offset:{1024*i} {wf} lds")
        a("s_add_u32 m0, m0, 4096")
        a("s_add_u32 s8, s8, 4096")
        a("s_cmp_lt_u32 s8, s9")
        a("s_cbranch_scc1 LTWv")
        a("s_branch LTW2")

    def zero_flags(self):
        a = self.a
        a("v_mov_b32 v5, 0")
        a("v_lshl_add_u32 v6, v0, 2, v21")
        a("ds_write_b32 v6, v5")

    def e_early(self):
        a, wf = self.a, self.wf
        a.label("LE")
        if self.o.get("only_kv"): a("s_endpgm")
        a("s_sub_u32 s5, s5, 16")
        a("s_cmp_ge_u32 s5, 8")
        a("s_cbranch_scc1 LG0")
        a("s_cmp_eq_u32 s3, 4")
        a("s_cbranch_scc1 LWH")
        a("s_lshl_b32 s9, s3, 20")
        a("s_lshl_b32 s15, s4, 10")
        a("s_add_u32 s9, s9, s15")
        a("s_lshl_b32 s15, s5, 7")
        a("s_add_u32 s9, s9, s15")
        a("v_lshrrev_b32 v1, 3, v0")
        a("v_and_b32 v2, 6, v1")
        a("v_and_b32 v3, 7, v0")
        a("v_xor_b32 v2, v2, v3")
        a("v_lshlrev_b32 v22, 4, v2")
        a("v_lshl_add_u32 v2, v1, 13, v22")
        a("s_lshl_b32 s7, s3, 14")
        a("s_mov_b32 m0, s7")
        a("s_add_u32 s13, s7, 16384")
        a("s_waitcnt lgkmcnt(0)")
        self.srd(44, 22, 512 * 8192)
        a("s_load_dword s14, s[40:41], 0")
        a.label("LWq")
        a(f"buffer_load_dwordx4 v2, s[44:47], s9 offen {wf} lds")
        a("s_add_u32 m0, m0, 1024")
        a("s_add_u32 s9, s9, 65536")
        a("s_cmp_lt_u32 m0, s13")
        a("s_cbranch_scc1 LWq")
        a("s_barrier")
        a("s_branch LW2")
        a.label("LWH")
        self.zero_flags()
        a("s_waitcnt lgkmcnt(0)")
        a("s_barrier")
        a("s_endpgm")
        a.label("LG0")
        a("s_lshl_b32 s6, s4, 3")
        a("s_add_u32 s6, s6, s5")
        a("s_sub_u32 s6, s6, 8")
        a("s_cmp_eq_u32 s3, 4")
        a("s_cbranch_scc1 LGH")
        for i in range(4): a(f"v_mov_b32 v{32+i}, -1")
        a("v_lshlrev_b32 v2, 4, v0")
        a("v_lshlrev_b32 v3, 5, v0")
        a("s_lshl_b32 s8, s3, 6")
        a("s_add_u32 s8, s8, s6")
        a("s_lshl_b32 s8, s8, 10")
        a(f"s_add_u32 s8, s8, {PBASE}")
        a("s_add_u32 s9, s8, 0x40000")
        a("s_waitcnt lgkmcnt(0)")
        self.srd(44, 40, PEND)
        self.srd(48, 16, 2048)
        a("buffer_store_dwordx4 v[32:35], v2, s[44:47], s8 offen sc1")
        a("buffer_store_dwordx4 v[32:35], v2, s[44:47], s9 offen sc1")
        a("s_load_dword s14, s[40:41], 0")
        a("s_cmp_eq_u32 s3, 0")
        a("s_cbranch_scc0 LG2")
        a("buffer_load_dwordx4 v[24:27], v3, s[48:51], 0 offen")
        a("buffer_load_dwordx4 v[28:31], v3, s[48:51], 0 offen offset:16")
        a("s_barrier")
        a("s_branch LGln")
        a.label("LG2")
        a("s_barrier")
        a("s_branch LG2b")
        a.label("LGH")
        a("s_bfe_u32 s7, s5, 0x20001")
        a("s_and_b32 s52, s5, 1")
        a(f"s_mul_i32 s8, s7, {128*6144}")
        a("s_lshl_b32 s9, s4, 7")
        a("s_add_u32 s8, s8, s9")
        a("s_lshl_b32 s9, s52, 6")
        a("s_add_u32 s8, s8, s9")
        a("v_lshrrev_b32 v1, 2, v0")
        a("v_bfe_u32 v2, v0, 4, 1")
        a("v_lshlrev_b32 v2, 1, v2")
        a("v_and_b32 v3, 3, v0")
        a("v_xor_b32 v2, v2, v3")
        a("v_mul_u32_u24 v4, 6144, v1")
        a("v_lshl_add_u32 v2, v2, 4, v4")
        a("v_lshlrev_b32 v4, 5, v0")
        self.zero_flags()
        a(f"s_mov_b32 m0, {W1}")
        a("s_waitcnt lgkmcnt(0)")
        self.srd(44, 36, 512 * 6144)
        self.srd(48, 34, 2048)
        a("s_load_dword s14, s[40:41], 0")
        a("s_barrier")
        a("buffer_load_dwordx4 v[28:31], v4, s[48:51], 0 offen")
        a("buffer_load_dwordx4 v[32:35], v4, s[48:51], 0 offen offset:16")
        a.label("LGH1")
        a(f"buffer_load_dwordx4 v2, s[44:47], s8 offen {wf} lds")
        a(f"buffer_load_dwordx4 v2, s[44:47], s8 offen offset:1024 {wf} lds")
        a("s_add_u32 m0, m0, 2048")
        a(f"s_add_u32 s8, s8, {16*6144}")
        a(f"s_cmp_lt_u32 m0, {W1+16384}")
        a("s_cbranch_scc1 LGH1")
        a("s_branch LGH2")

    def g_index(self):
        a = self.a
        a("s_lshr_b32 s53, s4, 1")
        a("s_mul_i32 s53, s53, 14")
        a("s_and_b32 s52, s4, 1")
        a("s_lshl_b32 s54, s52, 3")
        a("s_add_u32 s53, s53, s54")
        a("s_add_u32 s53, s53, s5")
        a("s_sub_u32 s53, s53, 8")
        a("s_lshl_b32 s52, s52, 1")
        a("s_sub_u32 s52, 16, s52")
        a("s_cmp_ge_u32 s5, s52")

    def t_helper(self):
        a = self.a
        a.label("LTH")
        self.zero_flags()
        a("v_lshlrev_b32 v2, 4, v0")
        a("s_lshl_b32 s15, s4, 12")
        a("s_and_b32 s13, s5, 8")
        a("s_lshl_b32 s13, s13, 8")
        a("s_add_u32 s15, s15, s13")
        a(f"s_add_u32 s15, s15, {HB}")
        a("s_waitcnt lgkmcnt(0)")
        a("s_load_dword s14, s[40:41], 0")
        a("s_barrier")
        if self.o.get("only_kv"): a("s_endpgm")
        a("v_lshrrev_b32 v4, 5, v0")
        a("v_mul_u32_u24 v4, 272, v4")
        a("v_and_b32 v5, 31, v0")
        a("v_lshl_add_u32 v4, v5, 3, v4")
        a(f"v_add_u32 v4, {QB}, v4")
        a("v_mov_b32 v7, 1")
        a("s_waitcnt lgkmcnt(0)")
        self.tag()
        self.stamp(1)
        self.poll([f"buffer_load_dwordx4 v[{40+4*i}:{43+4*i}], v2, s[40:43], s15 offen offset:{1024*i} sc1" for i in range(2)],
                  [(*self.TAGBAD, 42 + 4 * i) for i in range(2)], sleep=self.o.get("qsleep", 2))
        a("ds_write_b64 v4, v[40:41]")
        a("ds_write_b64 v4, v[44:45] offset:544")
        a(f"ds_write_b32 v21, v7 offset:{F_Q}")
        self.stamp(3)
        self.end()

    def tw_main(self):
        a = self.a
        a.label("LTW2")
        a("s_load_dword s14, s[40:41], 0")
        self.stamp(1)
        if self.o.get("kv_stamp"):
            a("s_waitcnt vmcnt(0)")
            self.stamp(9)
            if self.o.get("only_kv"): a("s_branch LTWe")
        a("v_and_b32 v1, 15, v0")
        a("v_lshrrev_b32 v2, 4, v0")
        a("v_xor_b32 v3, v1, v2")
        a("v_lshlrev_b32 v3, 4, v3")
        a("v_lshl_add_u32 v3, v1, 8, v3")
        a("v_add_u32 v8, s7, v3")
        a("v_xor_b32 v9, 64, v8")
        a("v_xor_b32 v10, 0x80, v8")
        a("v_xor_b32 v11, 0xc0, v8")
        a("v_lshrrev_b32 v3, 2, v0")
        a("v_and_b32 v4, 7, v3")
        a("v_lshlrev_b32 v4, 5, v4")
        a("v_lshl_add_u32 v4, v3, 8, v4")
        a("v_and_b32 v5, 3, v0")
        a("v_lshl_add_u32 v4, v5, 3, v4")
        a(f"s_add_u32 s8, s7, {VB}")
        a("v_add_u32 v12, s8, v4")
        for dt in range(1, 8): a(f"v_xor_b32 v{12+dt}, {32*dt}, v12")
        a("v_mul_u32_u24 v20, 272, v5")
        a("v_lshl_add_u32 v20, v2, 4, v20")
        a(f"v_add_u32 v20, {QB}, v20")
        a("v_mul_u32_u24 v22, 528, v5")
        a("v_lshl_add_u32 v22, v2, 4, v22")
        a("v_add_u32 v22, s7, v22")
        a("v_lshl_add_u32 v23, v5, 3, s7")
        a(f"s_mov_b32 s9, {f32(CSC)}")
        a("s_waitcnt vmcnt(16)")
        self.stamp(2)
        for t in range(4):
            for ks in range(4):
                r = 64 + 16 * t + 4 * ks
                a(f"ds_read_b128 v[{r}:{r+3}], v{8+ks} offset:{4096*t}")
        def qreads():
            for ks in range(4): a(f"ds_read_b128 v[{24+4*ks}:{27+4*ks}], v20 offset:{64*ks}")
        self.lds_wait(F_Q, 1, 21, 1, qreads)
        self.stamp(3)
        for ks in range(4):
            for t in range(4):
                r = 64 + 16 * t + 4 * ks
                d = 40 + 4 * t
                c = f"v[{d}:{d+3}]" if ks else "0"
                a(f"v_mfma_f32_16x16x32_bf16 v[{d}:{d+3}], v[{r}:{r+3}], v[{24+4*ks}:{27+4*ks}], {c}")
        def vreads(blk):
            for dt in range(8):
                r = 128 + 32 * blk + 4 * dt
                a(f"ds_read_b64_tr_b16 v[{r}:{r+1}], v{12+dt} offset:{8192*blk}")
                a(f"ds_read_b64_tr_b16 v[{r+2}:{r+3}], v{12+dt} offset:{8192*blk+4096}")
        a("s_waitcnt vmcnt(8)")
        vreads(0)
        a("v_max3_f32 v224, v40, v41, v42")
        a("v_max3_f32 v225, v43, v44, v45")
        a("v_max3_f32 v226, v46, v47, v48")
        a("v_max3_f32 v227, v49, v50, v51")
        a("v_max3_f32 v228, v52, v53, v54")
        a("v_max3_f32 v224, v224, v225, v226")
        a("v_max3_f32 v227, v227, v228, v55")
        a("v_max_f32 v224, v224, v227")
        a("v_mov_b32 v225, v224")
        a("v_permlane16_swap_b32 v224, v225")
        a("v_max_f32 v224, v224, v225")
        a("v_mov_b32 v225, v224")
        a("v_permlane32_swap_b32 v224, v225")
        a("v_max_f32 v224, v224, v225")
        a(f"v_mul_f32 v230, {f32(-CSC)}, v224")
        for i in range(16): a(f"v_fma_f32 v{40+i}, v{40+i}, s9, v230")
        for i in range(16): a(f"v_exp_f32 v{40+i}, v{40+i}")
        for i in range(8): a(f"v_cvt_pk_bf16_f32 v{56+i}, v{40+2*i}, v{41+2*i}")
        a("s_waitcnt vmcnt(0)")
        self.stamp(4)
        vreads(1)
        a("s_waitcnt lgkmcnt(15)")
        for dt in range(8):
            r = 128 + 4 * dt
            a(f"v_mfma_f32_16x16x32_bf16 v[{192+4*dt}:{195+4*dt}], v[{r}:{r+3}], v[56:59], 0")
        for i in range(8): a(f"v_add_f32 v{40+i}, v{40+i}, v{48+i}")
        for i in range(4): a(f"v_add_f32 v{40+i}, v{40+i}, v{44+i}")
        a("v_add_f32 v40, v40, v42")
        a("v_add_f32 v41, v41, v43")
        a("v_add_f32 v231, v40, v41")
        a("s_waitcnt lgkmcnt(0)")
        for dt in range(8):
            r = 160 + 4 * dt
            a(f"v_mfma_f32_16x16x32_bf16 v[{192+4*dt}:{195+4*dt}], v[{r}:{r+3}], v[60:63], v[{192+4*dt}:{195+4*dt}]")
        a("v_mov_b32 v225, v231")
        a("v_permlane16_swap_b32 v231, v225")
        a("v_add_f32 v231, v231, v225")
        a("v_mov_b32 v225, v231")
        a("v_permlane32_swap_b32 v231, v225")
        a("v_add_f32 v231, v231, v225")
        a("s_mov_b32 exec_lo, 0x000f000f")
        a("s_mov_b32 exec_hi, 0x000f000f")
        a("ds_write_b64 v23, v[230:231] offset:2304")
        for dt in range(8): a(f"ds_write_b128 v22, v[{192+4*dt}:{195+4*dt}] offset:{64*dt}")
        a("s_waitcnt lgkmcnt(0)")
        self.lds_inc(F_ATT, 21, 1, ret=13)
        a("s_cmp_eq_u32 s13, 3")
        a("s_cbranch_scc0 LTWr")
        a("v_lshrrev_b32 v2, 4, v0")
        a("v_mul_u32_u24 v3, 528, v2")
        a("v_bfe_u32 v4, v0, 2, 2")
        a("v_lshl_add_u32 v3, v4, 7, v3")
        a("v_and_b32 v4, 3, v0")
        a("v_lshl_add_u32 v3, v4, 4, v3")
        a("v_lshlrev_b32 v4, 3, v2")
        for w in range(4): a(f"ds_read_b64 v[{24+2*w}:{25+2*w}], v4 offset:{16384*w+2304}")
        for w in range(4):
            a(f"ds_read_b128 v[{64+8*w}:{67+8*w}], v3 offset:{16384*w}")
            a(f"ds_read_b128 v[{68+8*w}:{71+8*w}], v3 offset:{16384*w+64}")
        a("s_lshl_b32 s6, s4, 4")
        a("s_add_u32 s6, s6, s5")
        a("s_lshl_b32 s8, s6, 10")
        a(f"s_add_u32 s8, s8, {HC}")
        a("s_lshl_b32 s9, s6, 7")
        a(f"s_add_u32 s9, s9, {HL}")
        a("v_lshlrev_b32 v5, 4, v0")
        a("v_lshlrev_b32 v6, 2, v2")
        a("s_waitcnt lgkmcnt(8)")
        a("v_min3_f32 v32, v24, v26, v28")
        a("v_min_f32 v32, v32, v30")
        for w in range(4): a(f"v_sub_f32 v{24+2*w}, v32, v{24+2*w}")
        for w in range(4): a(f"v_exp_f32 v{24+2*w}, v{24+2*w}")
        a("v_mul_f32 v33, v24, v25")
        for w in range(1, 4): a(f"v_fmac_f32 v33, v{24+2*w}, v{25+2*w}")
        a("v_rcp_f32 v34, v33")
        a("v_log_f32 v35, v33")
        for w in range(4): a(f"v_mul_f32 v{24+2*w}, v{24+2*w}, v34")
        a("v_sub_f32 v35, v35, v32")
        a("s_waitcnt lgkmcnt(0)")
        for i in range(8): a(f"v_mul_f32 v{64+i}, v24, v{64+i}")
        for w in range(1, 4):
            for i in range(8): a(f"v_fmac_f32 v{64+i}, v{24+2*w}, v{64+8*w+i}")
        for i in range(4): a(f"v_cvt_pk_bf16_f32 v{36+i}, v{64+2*i}, v{65+2*i}")
        a("buffer_store_dwordx4 v[36:39], v5, s[40:43], s8 offen sc1")
        a("s_mov_b32 exec_lo, 0x00010001")
        a("s_mov_b32 exec_hi, 0x00010001")
        a("buffer_store_dword v35, v6, s[40:43], s9 offen sc1")
        a("s_mov_b64 exec, -1")
        self.stamp(5)
        a.label("LTWr")
        a("s_cmp_lt_u32 s5, 4")
        a("s_cbranch_scc0 LTWe")
        a("s_cmp_eq_u32 s3, 1")
        a("s_cbranch_scc0 LTWe")
        a("s_lshl_b32 s6, s4, 2")
        a("s_add_u32 s6, s6, s5")
        self.srd(44, 16, 2048)
        self.srd(48, 38, 2048)
        a("v_bfe_u32 v2, v0, 2, 1")
        a("v_and_b32 v3, 3, v0")
        a("v_lshlrev_b32 v4, 3, v3")
        a("v_lshl_add_u32 v5, v2, 10, v4")
        a("v_lshl_add_u32 v6, v2, 5, v4")
        a("v_lshlrev_b32 v7, 1, v5")
        a("v_lshrrev_b32 v8, 3, v0")
        a("v_lshl_add_u32 v7, v8, 12, v7")
        a("v_lshlrev_b32 v9, 4, v0")
        a("s_lshl_b32 s7, s6, 5")
        a("s_lshl_b32 s8, s6, 6")
        a(f"s_add_u32 s9, s8, {HD}")
        a(f"s_add_u32 s52, s8, {HM}")
        a(f"s_add_u32 s53, s8, {HM+96*64}")
        a(f"s_mul_i32 s54, s6, {HFS}")
        a(f"s_add_u32 s54, s54, {HF}")
        a("s_add_u32 s55, s54, 4096")
        a("buffer_load_dwordx2 v[10:11], v5, s[44:47], s7 offen")
        self.poll(["buffer_load_dwordx4 v[24:27], v7, s[40:43], s9 offen sc1",
                   "buffer_load_dwordx2 v[12:13], v6, s[40:43], s52 offen sc1",
                   "buffer_load_dwordx2 v[14:15], v6, s[40:43], s53 offen sc1"],
                  [(*self.POISON, 24), (*self.POISON, 12), (*self.POISON, 14)])
        self.stamp(6)
        def red8(r):
            for i in range(4): a(f"v_add_f32_dpp v{r+i}, v{r+i}, v{r+i} row_ror:8 row_mask:0xf bank_mask:0xf")
            for sw in ("16", "32"):
                for i in range(4): a(f"v_mov_b32 v{60+i}, v{r+i}")
                for i in range(4): a(f"v_permlane{sw}_swap_b32 v{r+i}, v{60+i}")
                for i in range(4): a(f"v_add_f32 v{r+i}, v{r+i}, v{60+i}")
        red8(24)
        self.unpack(10, 28, 2)
        self.unpack(12, 32, 2)
        self.unpack(14, 36, 2)
        for i in range(4): self.rnd(24 + i)
        for i in range(4): a(f"v_mul_f32 v{24+i}, v{24+i}, v{32+i}")
        for i in range(4): self.rnd(24 + i)
        for i in range(4): a(f"v_add_f32 v{28+i}, v{28+i}, v{24+i}")
        for i in range(4): self.rnd(28 + i)
        self.poll([f"buffer_load_dwordx4 v[{64+4*i}:{67+4*i}], v9, s[40:43], s{54+(i>>2)} offen offset:{1024*(i&3)} sc1" for i in range(7)],
                  [(*self.POISON, 64 + 4 * i) for i in range(7)])
        self.stamp(7)
        for i in range(4):
            a(f"v_add_f32 v{64+i}, v{64+i}, v{68+i}")
            a(f"v_add_f32 v{72+i}, v{72+i}, v{76+i}")
            a(f"v_add_f32 v{80+i}, v{80+i}, v{84+i}")
        for i in range(4):
            a(f"v_add_f32 v{64+i}, v{64+i}, v{72+i}")
            a(f"v_add_f32 v{80+i}, v{80+i}, v{88+i}")
        for i in range(4): a(f"v_add_f32 v{64+i}, v{64+i}, v{80+i}")
        red8(64)
        for i in range(4): self.rnd(64 + i)
        for i in range(4): a(f"v_mul_f32 v{64+i}, v{64+i}, v{36+i}")
        for i in range(4): self.rnd(64 + i)
        for i in range(4): a(f"v_add_f32 v{64+i}, v{64+i}, v{28+i}")
        a("v_cvt_pk_bf16_f32 v10, v64, v65")
        a("v_cvt_pk_bf16_f32 v11, v66, v67")
        a("s_mov_b64 exec, 0xff")
        a("buffer_store_dwordx2 v[10:11], v5, s[48:51], s7 offen")
        self.stamp(8)
        a("s_cmp_eq_u32 s6, 0")
        a("s_cbranch_scc0 LTWe")
        self.tag()
        a("s_mov_b64 exec, 1")
        a("v_mov_b32 v12, s14")
        a("v_mov_b32 v13, 0")
        a(f"buffer_store_dword v12, v13, s[40:43], 0 offen offset:{EPOCH} sc1")
        if self.o.get("padto"):
            a.label("Lpad")
            a("s_memrealtime s[98:99]")
            a("s_waitcnt lgkmcnt(0)")
            a("s_sub_u32 s98, s98, s96")
            a(f"s_cmp_lt_u32 s98, {self.o['padto']}")
            a("s_cbranch_scc1 Lpad")
        a.label("LTWe")
        self.end()

    def gh_main(self):
        a, wf = self.a, self.wf
        a.label("LGH2")
        a("v_lshrrev_b32 v4, 5, v0")
        a("v_mul_u32_u24 v5, 1040, v4")
        a("v_bfe_u32 v10, v0, 1, 4")
        a("v_lshl_add_u32 v5, v10, 6, v5")
        a("v_and_b32 v10, 1, v0")
        a("v_lshl_add_u32 v5, v10, 3, v5")
        a(f"v_add_u32 v5, {SC}, v5")
        a("v_lshrrev_b32 v11, 4, v0")
        a("v_mul_u32_u24 v6, 1040, v10")
        a("v_lshl_add_u32 v6, v11, 4, v6")
        a(f"v_add_u32 v6, {SC}, v6")
        a("s_lshl_b32 s9, s7, 8")
        a("v_add_u32 v12, s9, v6")
        a("v_lshlrev_b32 v7, 7, v10")
        a("v_lshl_add_u32 v7, v11, 4, v7")
        a(f"v_add_u32 v7, {NV}, v7")
        a("v_bfe_u32 v8, v0, 4, 1")
        a("v_lshlrev_b32 v8, 5, v8")
        a("v_lshl_add_u32 v8, v1, 6, v8")
        a("v_lshl_add_u32 v8, v3, 3, v8")
        a("v_xor_b32 v9, 32, v8")
        a("v_lshlrev_b32 v13, 4, v10")
        a("v_lshl_add_u32 v13, v11, 5, v13")
        a("v_lshlrev_b32 v14, 5, v10")
        a("v_lshl_add_u32 v14, v11, 3, v14")
        a("s_lshl_b32 s8, s4, 11")
        a("s_lshl_b32 s9, s52, 10")
        a("s_add_u32 s8, s8, s9")
        a("s_lshl_b32 s9, s7, 7")
        a("s_add_u32 s8, s8, s9")
        a(f"s_add_u32 s8, s8, {HA}")
        a("s_cmp_eq_u32 s7, 0")
        a("s_cselect_b32 s9, 1.0, 0")
        for i in range(8): a(f"v_mov_b32 v{48+i}, s9")
        a("s_waitcnt vmcnt(16)")
        self.unpack(28, 192, 8)
        self.silu(list(range(192, 208)), 208)
        for i in range(8): a(f"v_cvt_pk_bf16_f32 v{28+i}, v{192+2*i}, v{193+2*i}")
        for q in range(4): a(f"ds_write_b64 v5, v[{28+2*q}:{29+2*q}] offset:{16*q}")
        a("s_waitcnt lgkmcnt(0)")
        self.tag()
        for i in range(4): a(f"ds_read_b128 v[{128+4*i}:{131+4*i}], v12 offset:{64*i}")
        for i in (58, 59, 62, 63): a(f"v_mov_b32 v{i}, s14")
        self.stamp(1)
        for ks in range(4):
            a(f"s_waitcnt vmcnt({12-4*ks})")
            for seg in range(2):
                for t in range(2):
                    r = 64 + 16 * ks + 8 * seg + 4 * t
                    a(f"ds_read_b64_tr_b16 v[{r}:{r+1}], v{8+t} offset:{W1+4096*ks+1024*seg}")
                    a(f"ds_read_b64_tr_b16 v[{r+2}:{r+3}], v{8+t} offset:{W1+4096*ks+2048+1024*seg}")
            if ks:
                a("s_waitcnt lgkmcnt(8)")
                self.s1_mfma(ks - 1)
        self.stamp(2)
        def nread():
            a("ds_read_b128 v[24:27], v7")
            a("ds_read_b128 v[28:31], v7 offset:64")
        self.lds_wait(F_N, 4, 21, 15, nread)
        self.s1_mfma(3)
        for i in range(8): a(f"v_fmac_f32 v{40+i}, v{24+i}, v{48+i}")
        for t in range(2):
            a(f"v_cvt_pk_bf16_f32 v{56+4*t}, v{40+4*t}, v{41+4*t}")
            a(f"v_cvt_pk_bf16_f32 v{57+4*t}, v{42+4*t}, v{43+4*t}")
        a("s_mov_b32 exec_lo, 0x00030003")
        a("s_mov_b32 exec_hi, 0x00030003")
        a("buffer_store_dwordx4 v[56:59], v13, s[40:43], s8 offen sc1")
        a("buffer_store_dwordx4 v[60:63], v13, s[40:43], s8 offen offset:512 sc1")
        a("s_mov_b64 exec, -1")
        self.stamp(3)
        a("s_lshl_b32 s7, s6, 6")
        a("s_add_u32 s7, s7, 2048")
        a("s_and_b32 s8, s6, 1")
        a("s_lshl_b32 s8, s8, 4")
        a("s_mov_b32 s52, 32")
        a.label("LGHm")
        a(f"s_mul_i32 s13, s8, {16*6144}")
        a("s_add_u32 s13, s13, s7")
        a("s_lshl_b32 s15, s8, 10")
        a(f"s_add_u32 m0, s15, {MR}")
        a("s_add_u32 s8, s8, 1")
        a(f"buffer_load_dwordx4 v2, s[44:47], s13 offen {wf} lds")
        a("s_and_b32 s8, s8, 31")
        a("s_sub_u32 s52, s52, 1")
        a("s_cmp_lg_u32 s52, 0")
        a("s_cbranch_scc1 LGHm")
        a("v_mov_b32 v15, 1")
        a(f"ds_write_b32 v21, v15 offset:{F_VI}")
        self.stamp(4)
        for i in range(16): a(f"ds_read_b128 v[{128+4*i}:{131+4*i}], v6 offset:{64*i}")
        a("s_lshl_b32 s9, s6, 7")
        a(f"s_add_u32 s9, s9, {HM}")
        a("s_waitcnt vmcnt(0)")
        self.stamp(5)
        for half in range(2):
            for k in range(8):
                ks = 8 * half + k
                for t in range(2):
                    r = 64 + 8 * k + 4 * t
                    a(f"ds_read_b64_tr_b16 v[{r}:{r+1}], v{8+t} offset:{MR+2048*ks}")
                    a(f"ds_read_b64_tr_b16 v[{r+2}:{r+3}], v{8+t} offset:{MR+2048*ks+1024}")
            a("s_waitcnt lgkmcnt(0)")
            for k in range(8):
                ks = 8 * half + k
                for t in range(2):
                    r = 64 + 8 * k + 4 * t
                    d = 40 + 4 * t
                    c = f"v[{d}:{d+3}]" if ks else "0"
                    a(f"v_mfma_f32_16x16x32_bf16 v[{d}:{d+3}], v[{r}:{r+3}], v[{128+4*ks}:{131+4*ks}], {c}")
        for t in range(2):
            a(f"v_cvt_pk_bf16_f32 v{48+2*t}, v{40+4*t}, v{41+4*t}")
            a(f"v_cvt_pk_bf16_f32 v{49+2*t}, v{42+4*t}, v{43+4*t}")
        a("s_mov_b32 exec_lo, 0x00030003")
        a("s_mov_b32 exec_hi, 0x00030003")
        a("buffer_store_dwordx2 v[48:49], v14, s[40:43], s9 offen sc1")
        a("buffer_store_dwordx2 v[50:51], v14, s[40:43], s9 offen offset:64 sc1")
        self.stamp(6)
        self.end()

    def s1_mfma(self, ks):
        for seg in range(2):
            for t in range(2):
                r = 64 + 16 * ks + 8 * seg + 4 * t
                d = 40 + 8 * seg + 4 * t
                c = "0" if (ks == 0 and seg == 0) else f"v[{d}:{d+3}]"
                self.a(f"v_mfma_f32_16x16x32_bf16 v[{d}:{d+3}], v[{r}:{r+3}], v[{128+4*ks}:{131+4*ks}], {c}")

    def gw_pre(self):
        a = self.a
        a.label("LG2b")
        a("s_waitcnt vmcnt(0)")
        self.lds_inc(F_N, 21, 1)
        a("s_branch LG3")
        a.label("LGln")
        a("s_waitcnt vmcnt(0)")
        self.unpack(24, 32, 8)
        for i in range(8): a(f"v_add_f32 v{48+i}, v{32+i}, v{40+i}")
        for i in range(4): a(f"v_add_f32 v{48+i}, v{48+i}, v{52+i}")
        a("v_add_f32 v48, v48, v50")
        a("v_add_f32 v49, v49, v51")
        a("v_add_f32 v48, v48, v49")
        self.red32(48, 49)
        a(f"v_mul_f32 v48, {f32(1/512)}, v48")
        for i in range(16): a(f"v_sub_f32 v{64+i}, v{32+i}, v48")
        a("v_mul_f32 v50, v64, v64")
        a("v_mul_f32 v51, v65, v65")
        for i in range(1, 8):
            a(f"v_fmac_f32 v50, v{64+2*i}, v{64+2*i}")
            a(f"v_fmac_f32 v51, v{65+2*i}, v{65+2*i}")
        a("v_add_f32 v50, v50, v51")
        self.red32(50, 49)
        a(f"v_mul_f32 v50, {f32(1/512)}, v50")
        self.rnd(48)
        self.rnd(50)
        a(f"v_add_f32 v50, {f32(1e-5)}, v50")
        self.rnd(50)
        a("v_sqrt_f32 v50, v50")
        self.rnd(50)
        a("v_rcp_f32 v50, v50")
        for i in range(16): a(f"v_sub_f32 v{64+i}, v{32+i}, v48")
        for i in range(16): a(f"v_mul_f32 v{64+i}, v{64+i}, v50")
        a("s_lshl_b32 s15, s4, 2")
        a("s_and_b32 s13, s5, 1")
        a("s_lshl_b32 s13, s13, 1")
        a("s_add_u32 s15, s15, s13")
        a("s_lshl_b32 s15, 3, s15")
        a("v_lshrrev_b32 v3, 5, v0")
        a("v_lshlrev_b32 v3, 7, v3")
        a("v_and_b32 v4, 1, v0")
        a("v_lshl_add_u32 v3, v4, 6, v3")
        a(f"v_add_u32 v3, {NV}, v3")
        a("s_mov_b32 exec_lo, s15")
        a("s_mov_b32 exec_hi, s15")
        for q in range(4): a(f"ds_write_b128 v3, v[{64+4*q}:{67+4*q}] offset:{16*q}")
        self.lds_inc(F_N, 21, 1)
        a.label("LG3")
        self.stamp(1)

    def ww_main(self):
        a, wf = self.a, self.wf
        a.label("LW2")
        self.stamp(1)
        a("v_lshrrev_b32 v3, 2, v0")
        a("v_bfe_u32 v4, v0, 3, 2")
        a("v_lshlrev_b32 v4, 5, v4")
        a("v_lshl_add_u32 v4, v3, 7, v4")
        a("v_and_b32 v5, 3, v0")
        a("v_lshl_add_u32 v23, v5, 3, v4")
        a("v_add_u32 v8, s7, v23")
        for t in range(1, 4): a(f"v_xor_b32 v{8+t}, {32*t}, v8")
        a("v_bfe_u32 v3, v0, 3, 1")
        a("v_lshlrev_b32 v3, 9, v3")
        a("v_lshl_add_u32 v3, v5, 7, v3")
        a("v_lshrrev_b32 v4, 4, v0")
        a("v_lshl_add_u32 v3, v4, 5, v3")
        a("v_bfe_u32 v4, v0, 2, 1")
        a("v_lshl_add_u32 v12, v4, 4, v3")
        a("s_lshl_b32 s9, s3, 12")
        a(f"s_add_u32 s9, s9, {HA}")
        a("v_lshrrev_b32 v3, 4, v0")
        a("v_and_b32 v4, 15, v0")
        a("v_lshlrev_b32 v13, 8, v3")
        a("v_lshl_add_u32 v14, v4, 4, v13")
        a("v_lshl_add_u32 v13, v4, 2, v13")
        a("s_lshl_b32 s15, s3, 9")
        a(f"s_add_u32 s15, s15, {RED}")
        a("v_add_u32 v13, s15, v13")
        a(f"v_add_u32 v14, {RED}, v14")
        a("v_lshlrev_b32 v15, 4, v4")
        a("v_lshl_add_u32 v15, v3, 11, v15")
        a("s_lshl_b32 s15, s4, 12")
        a("s_lshl_b32 s52, s5, 8")
        a("s_add_u32 s15, s15, s52")
        a(f"s_add_u32 s55, s15, {HB}")
        a("s_waitcnt vmcnt(0) lgkmcnt(0)")
        self.tag()
        self.stamp(2)
        for ks in range(4):
            for t in range(4):
                r = 64 + 16 * ks + 4 * t
                a(f"ds_read_b64_tr_b16 v[{r}:{r+1}], v{8+t} offset:{4096*ks}")
                a(f"ds_read_b64_tr_b16 v[{r+2}:{r+3}], v{8+t} offset:{4096*ks+2048}")
        a("v_mov_b32 v58, s14")
        a("v_mov_b32 v59, s14")
        self.poll([f"buffer_load_dwordx4 v[{24+4*ks}:{27+4*ks}], v12, s[40:43], s9 offen offset:{1024*ks} sc1" for ks in range(4)],
                  [(*self.TAGBAD, 26 + 4 * ks) for ks in range(4)])
        self.stamp(3)
        for ks in range(4):
            a(f"v_mov_b32_dpp v{26+4*ks}, v{24+4*ks} row_ror:8 row_mask:0xf bank_mask:0xf")
            a(f"v_mov_b32_dpp v{27+4*ks}, v{25+4*ks} row_ror:8 row_mask:0xf bank_mask:0xf")
        a("s_waitcnt lgkmcnt(0)")
        for ks in range(4):
            for t in range(4):
                r = 64 + 16 * ks + 4 * t
                d = 40 + 4 * t
                c = f"v[{d}:{d+3}]" if ks else "0"
                a(f"v_mfma_f32_16x16x32_bf16 v[{d}:{d+3}], v[{24+4*ks}:{27+4*ks}], v[{r}:{r+3}], {c}")
        for t in range(4):
            a(f"v_add_f32 v{40+4*t}, v{40+4*t}, v{41+4*t}")
            a(f"v_add_f32 v{42+4*t}, v{42+4*t}, v{43+4*t}")
        for t in range(4): a(f"v_add_f32 v{40+4*t}, v{40+4*t}, v{42+4*t}")
        a("s_mov_b32 exec_hi, 0")
        for t in range(4): a(f"ds_write_b32 v13, v{40+4*t} offset:{64*t}")
        a("s_waitcnt lgkmcnt(0)")
        self.lds_inc(F_Q2, 21, 1, ret=13)
        a("s_cmp_eq_u32 s13, 3")
        a("s_cbranch_scc0 LW4")
        a("s_mov_b32 exec_hi, 0")
        for w in range(4): a(f"ds_read_b128 v[{24+4*w}:{27+4*w}], v14 offset:{512*w}")
        a("s_waitcnt lgkmcnt(0)")
        for i in range(4):
            a(f"v_add_f32 v{24+i}, v{24+i}, v{28+i}")
            a(f"v_add_f32 v{32+i}, v{32+i}, v{36+i}")
        for i in range(4): a(f"v_add_f32 v{24+i}, v{24+i}, v{32+i}")
        a("v_cvt_pk_bf16_f32 v56, v24, v25")
        a("v_cvt_pk_bf16_f32 v57, v26, v27")
        a("buffer_store_dwordx4 v[56:59], v15, s[40:43], s55 offen sc1")
        a("s_mov_b64 exec, -1")
        self.stamp(4)
        a.label("LW4")
        a("s_barrier")
        self.stamp(5)
        self.w_role()

    def w_role(self):
        a, wf = self.a, self.wf
        self.srd(44, 24, 4096 * 1024)
        a("v_lshrrev_b32 v1, 3, v0")
        a("v_lshl_add_u32 v2, v1, 10, v22")
        a("s_lshl_b32 s9, s4, 19")
        a("s_lshl_b32 s15, s3, 17")
        a("s_add_u32 s9, s9, s15")
        a("s_lshl_b32 s15, s5, 7")
        a("s_add_u32 s9, s9, s15")
        a("s_lshl_b32 s15, s3, 14")
        a(f"s_add_u32 m0, s15, {WO}")
        a(f"s_add_u32 s13, s15, {WO+16384}")
        a.label("LWd")
        a(f"buffer_load_dwordx4 v2, s[44:47], s9 offen {wf} lds")
        a("s_add_u32 m0, m0, 1024")
        a("s_add_u32 s9, s9, 8192")
        a("s_cmp_lt_u32 m0, s13")
        a("s_cbranch_scc1 LWd")
        a(f"s_add_u32 s15, s15, {WO}")
        a("v_add_u32 v8, s15, v23")
        for t in range(1, 4): a(f"v_xor_b32 v{8+t}, {32*t}, v8")
        a("v_and_b32 v3, 15, v0")
        a("v_lshrrev_b32 v4, 4, v0")
        a("v_lshlrev_b32 v12, 10, v3")
        a("v_lshl_add_u32 v12, v4, 4, v12")
        a("s_lshl_b32 s9, s4, 14")
        a("s_lshl_b32 s15, s3, 8")
        a("s_add_u32 s9, s9, s15")
        a(f"s_add_u32 s9, s9, {HC}")
        a("v_lshlrev_b32 v13, 9, v4")
        a("v_xor_b32 v14, 0x200, v13")
        a("s_lshl_b32 s8, s4, 11")
        a("s_lshl_b32 s15, s3, 2")
        a("s_add_u32 s8, s8, s15")
        a(f"s_add_u32 s8, s8, {HL}")
        a("v_lshlrev_b32 v15, 8, v4")
        a("v_lshl_add_u32 v15, v3, 2, v15")
        a("s_lshl_b32 s15, s3, 10")
        a(f"s_add_u32 s15, s15, {RED}")
        a("v_add_u32 v15, s15, v15")
        a("v_lshlrev_b32 v17, 4, v3")
        a("v_lshl_add_u32 v16, v4, 9, v17")
        a(f"v_add_u32 v16, {RED}, v16")
        a("v_lshl_add_u32 v17, v4, 11, v17")
        a("s_lshl_b32 s55, s4, 12")
        a("s_lshl_b32 s15, s5, 8")
        a("s_add_u32 s55, s55, s15")
        a(f"s_add_u32 s55, s55, {HD}")
        a("s_waitcnt vmcnt(0)")
        self.stamp(6)
        for ks in range(4):
            for t in range(4):
                r = 64 + 16 * ks + 4 * t
                a(f"ds_read_b64_tr_b16 v[{r}:{r+1}], v{8+t} offset:{4096*ks}")
                a(f"ds_read_b64_tr_b16 v[{r+2}:{r+3}], v{8+t} offset:{4096*ks+2048}")
        loads = [f"buffer_load_dwordx4 v[{24+4*ks}:{27+4*ks}], v12, s[40:43], s9 offen offset:{64*ks} sc1" for ks in range(4)]
        checks = [(*self.POISON, 24 + 4 * ks) for ks in range(4)]
        for i in range(8):
            loads.append(f"buffer_load_dword v{128+i}, v{13+(i>>2)}, s[40:43], s8 offen offset:{128*(i&3)} sc1")
            checks.append((*self.POISON, 128 + i))
        self.poll(loads, checks)
        self.stamp(7)
        a("s_waitcnt lgkmcnt(0)")
        for ks in range(4):
            for t in range(4):
                r = 64 + 16 * ks + 4 * t
                d = 40 + 4 * t
                c = f"v[{d}:{d+3}]" if ks else "0"
                a(f"v_mfma_f32_16x16x32_bf16 v[{d}:{d+3}], v[{24+4*ks}:{27+4*ks}], v[{r}:{r+3}], {c}")
        a("v_max3_f32 v136, v128, v129, v130")
        a("v_max3_f32 v137, v131, v132, v133")
        a("v_max3_f32 v136, v136, v134, v135")
        a("v_max_f32 v136, v136, v137")
        for i in range(8): a(f"v_sub_f32 v{128+i}, v{128+i}, v136")
        for i in range(8): a(f"v_exp_f32 v{128+i}, v{128+i}")
        for i in range(4): a(f"v_add_f32 v{132+i}, v{132+i}, v{128+i}")
        a("v_add_f32 v132, v132, v133")
        a("v_add_f32 v134, v134, v135")
        a("v_add_f32 v132, v132, v134")
        a("v_rcp_f32 v132, v132")
        for i in range(4): a(f"v_mul_f32 v{128+i}, v{128+i}, v132")
        for t in range(4): a(f"v_mul_f32 v{40+4*t}, v{40+4*t}, v128")
        for r in range(1, 4):
            for t in range(4): a(f"v_fmac_f32 v{40+4*t}, v{40+4*t+r}, v{128+r}")
        for t in range(4): a(f"ds_write_b32 v15, v{40+4*t} offset:{64*t}")
        a("s_waitcnt lgkmcnt(0)")
        self.lds_inc(F_W, 21, 1, ret=13)
        a("s_cmp_eq_u32 s13, 3")
        a("s_cbranch_scc0 LWe")
        a("s_mov_b32 exec_hi, 0")
        for i in range(8): a(f"ds_read_b128 v[{64+4*i}:{67+4*i}], v16 offset:{1024*(i>>1)+256*(i&1)}")
        a("s_waitcnt lgkmcnt(0)")
        for i in range(4):
            for k in range(4): a(f"v_add_f32 v{64+8*k+i}, v{64+8*k+i}, v{68+8*k+i}")
        for i in range(4):
            a(f"v_add_f32 v{64+i}, v{64+i}, v{72+i}")
            a(f"v_add_f32 v{80+i}, v{80+i}, v{88+i}")
        for i in range(4): a(f"v_add_f32 v{64+i}, v{64+i}, v{80+i}")
        a("buffer_store_dwordx4 v[64:67], v17, s[40:43], s55 offen sc1")
        self.stamp(8)
        a.label("LWe")
        self.end()

    def g_role(self):
        a, wf = self.a, self.wf
        self.g_index()
        a("s_cbranch_scc1 LGe")
        a("s_and_b32 s52, s53, 1")
        a("s_cmp_eq_u32 s52, 0")
        a("s_cselect_b64 s[44:45], s[28:29], s[30:31]")
        a("s_cselect_b64 s[48:49], s[30:31], s[28:29]")
        a(f"s_mov_b32 s46, {512*3584}")
        a("s_mov_b32 s47, 0x20000")
        a(f"s_mov_b32 s50, {512*3584}")
        a("s_mov_b32 s51, 0x20000")
        a("s_lshl_b32 s52, s52, 13")
        a("v_lshrrev_b32 v1, 2, v0")
        a("v_bfe_u32 v2, v0, 4, 1")
        a("v_lshlrev_b32 v2, 1, v2")
        a("v_and_b32 v3, 3, v0")
        a("v_xor_b32 v2, v2, v3")
        a("v_mul_u32_u24 v4, 3584, v1")
        a("v_lshl_add_u32 v2, v2, 4, v4")
        a(f"s_mul_i32 s8, s3, {128*3584}")
        a("s_lshl_b32 s15, s53, 6")
        a("s_add_u32 s8, s8, s15")
        a("s_lshl_b32 s7, s3, 14")
        a(f"s_add_u32 s7, s7, {GU}")
        a("v_lshrrev_b32 v229, 3, v0")
        a("v_lshlrev_b32 v229, 11, v229")
        a("v_and_b32 v4, 1, v0")
        a("v_lshl_add_u32 v229, v4, 10, v229")
        a("v_bfe_u32 v4, v0, 1, 2")
        a("v_lshl_add_u32 v229, v4, 7, v229")
        a(f"s_mov_b32 s27, {HA}")
        self.lds_wait(F_VI, 1, 21, 4)
        self.tag()
        self.stamp(5)
        for m in range(2):
            a("s_add_u32 m0, s7, s52")
            a("s_add_u32 s13, m0, 8192")
            a("s_mov_b32 s9, s8")
            a.label(f"LGd{m}")
            a(f"buffer_load_dwordx4 v2, s[{44+4*m}:{47+4*m}], s9 offen {wf} lds")
            a("s_add_u32 m0, m0, 1024")
            a(f"s_add_u32 s9, s9, {16*3584}")
            a("s_cmp_lt_u32 m0, s13")
            a(f"s_cbranch_scc1 LGd{m}")
            if m == 0: a("s_xor_b32 s52, s52, 8192")
        a("buffer_load_dword v230, v229, s[40:43], s27 offen offset:8 sc1")
        self.srd(44, 32, 1792 * 1024)
        a("v_lshrrev_b32 v4, 4, v0")
        a("v_and_b32 v5, 15, v0")
        a("v_lshlrev_b32 v6, 1, v4")
        a("v_xor_b32 v6, v5, v6")
        a("v_lshlrev_b32 v6, 4, v6")
        a("v_lshl_add_u32 v6, v4, 10, v6")
        a("v_xor_b32 v7, 0x80, v6")
        a("s_lshl_b32 s9, s53, 15")
        a("s_lshl_b32 s15, s3, 8")
        a("s_add_u32 s9, s9, s15")
        a("s_lshl_b32 s6, s3, 13")
        a(f"s_add_u32 s6, s6, {DWN}")
        a("s_mov_b32 m0, s6")
        a("s_add_u32 s13, s6, 8192")
        a.label("LGd2")
        for i in range(2):
            a(f"buffer_load_dwordx4 v{6+i}, s[44:47], s9 offen {wf} lds")
            a("s_add_u32 m0, m0, 1024")
            a("s_add_u32 s9, s9, 4096")
        a("s_cmp_lt_u32 m0, s13")
        a("s_cbranch_scc1 LGd2")
        self.srd(48, 16, 2048)
        a("v_lshrrev_b32 v4, 5, v0")
        a("v_and_b32 v5, 31, v0")
        a("v_lshlrev_b32 v18, 3, v5")
        a("v_lshl_add_u32 v18, v4, 10, v18")
        a("buffer_load_dwordx2 v[24:25], v18, s[48:51], s15 offen")
        a("v_lshlrev_b32 v18, 1, v18")
        a("v_lshrrev_b32 v19, 2, v5")
        a("v_lshlrev_b32 v19, 6, v19")
        a("v_lshl_add_u32 v19, v4, 5, v19")
        a("v_lshl_add_u32 v19, v3, 3, v19")
        a("s_lshl_b32 s15, s3, 9")
        for k in range(8): a(f"s_add_u32 s{16+k}, s15, {HD+4096*k}")
        a(f"s_add_u32 s24, s15, {HM}")
        a(f"s_add_u32 s25, s15, {HM+4096}")
        a("v_bfe_u32 v8, v0, 4, 1")
        a("v_lshlrev_b32 v8, 5, v8")
        a("v_lshl_add_u32 v8, v1, 6, v8")
        a("v_lshl_add_u32 v8, v3, 3, v8")
        a("v_add_u32 v8, s7, v8")
        a("v_xor_b32 v9, 32, v8")
        a("v_and_b32 v10, 7, v1")
        a("v_lshlrev_b32 v10, 5, v10")
        a("v_lshl_add_u32 v10, v1, 8, v10")
        a("v_lshl_add_u32 v10, v3, 3, v10")
        a("v_add_u32 v10, s6, v10")
        for dt in range(1, 8): a(f"v_xor_b32 v{10+dt}, {32*dt}, v10")
        a("v_mul_u32_u24 v20, 1088, v4")
        a("v_lshrrev_b32 v6, 3, v5")
        a("v_lshl_add_u32 v20, v6, 6, v20")
        a("v_lshl_add_u32 v20, v3, 4, v20")
        a("v_bfe_u32 v6, v0, 2, 1")
        a("v_lshl_add_u32 v20, v6, 3, v20")
        a(f"s_add_u32 s15, s7, {AROW_O}")
        a("v_add_u32 v20, s15, v20")
        a("v_and_b32 v22, 7, v0")
        a("v_mul_u32_u24 v22, 272, v22")
        a("v_lshrrev_b32 v7, 4, v0")
        a("v_lshl_add_u32 v22, v7, 4, v22")
        a("v_add_u32 v22, s15, v22")
        a("v_lshl_add_u32 v23, v0, 4, s7")
        a("v_bfe_u32 v2, v0, 4, 1")
        a("v_lshlrev_b32 v2, 9, v2")
        a("v_lshl_add_u32 v2, v4, 8, v2")
        a("v_and_b32 v6, 15, v0")
        a("v_lshl_add_u32 v2, v6, 4, v2")
        a(f"v_add_u32 v2, {GU}, v2")
        a("v_lshlrev_b32 v224, 5, v4")
        a(f"v_add_u32 v224, {STAT}, v224")
        a("s_lshl_b32 s15, s3, 3")
        a("v_add_u32 v225, s15, v224")
        a("v_lshlrev_b32 v226, 6, v4")
        a("v_bfe_u32 v6, v0, 2, 2")
        a("v_lshl_add_u32 v226, v6, 4, v226")
        a("v_bfe_u32 v6, v0, 4, 1")
        a("v_lshl_add_u32 v226, v6, 3, v226")
        a("v_lshl_add_u32 v226, v3, 1, v226")
        a(f"s_add_u32 s15, s7, {HH_O}")
        a("v_add_u32 v226, s15, v226")
        a("v_and_b32 v6, 1, v0")
        a("v_lshlrev_b32 v227, 6, v6")
        a("v_lshl_add_u32 v227, v7, 4, v227")
        a("v_mov_b32 v228, v227")
        a("v_add_u32 v227, s15, v227")
        a(f"s_mul_i32 s26, s3, {8*HFS}")
        a("s_lshl_b32 s15, s53, 7")
        a("s_add_u32 s26, s26, s15")
        a(f"s_add_u32 s26, s26, {HF}")
        a("s_waitcnt vmcnt(0)")
        self.stamp(6)
        for m in range(2):
            for ks in range(4):
                for t in range(2):
                    r = 64 + 32 * m + 8 * ks + 4 * t
                    a(f"ds_read_b64_tr_b16 v[{r}:{r+1}], v{8+t} offset:{8192*m+2048*ks}")
                    a(f"ds_read_b64_tr_b16 v[{r+2}:{r+3}], v{8+t} offset:{8192*m+2048*ks+1024}")
        for dt in range(8):
            r = 128 + 4 * dt
            a(f"ds_read_b64_tr_b16 v[{r}:{r+1}], v{10+dt}")
            a(f"ds_read_b64_tr_b16 v[{r+2}:{r+3}], v{10+dt} offset:4096")
        self.unpack(24, 28, 2)
        a("v_cmp_ne_u32 vcc, s14, v230")
        a("s_cbranch_vccz LGok")
        self.poll(["buffer_load_dword v230, v229, s[40:43], s27 offen offset:8 sc1"], [(*self.TAGBAD, 230)])
        a.label("LGok")
        a("s_waitcnt lgkmcnt(0)")
        loads = [f"buffer_load_dwordx4 v[{160+4*k}:{163+4*k}], v18, s[40:43], s{16+k} offen sc1" for k in range(8)]
        checks = [(*self.POISON, 160 + 4 * k) for k in range(8)]
        loads += ["buffer_load_dwordx2 v[32:33], v19, s[40:43], s24 offen sc1",
                  "buffer_load_dwordx2 v[34:35], v19, s[40:43], s24 offen offset:2048 sc1",
                  "buffer_load_dwordx2 v[36:37], v19, s[40:43], s25 offen sc1"]
        checks += [(*self.POISON, 32), (*self.POISON, 34), (*self.POISON, 36)]
        self.poll(loads, checks)
        self.stamp(7)
        for i in range(4):
            for k in range(4): a(f"v_add_f32 v{160+8*k+i}, v{160+8*k+i}, v{164+8*k+i}")
        for i in range(4):
            a(f"v_add_f32 v{160+i}, v{160+i}, v{168+i}")
            a(f"v_add_f32 v{176+i}, v{176+i}, v{184+i}")
        for i in range(4): a(f"v_add_f32 v{160+i}, v{160+i}, v{176+i}")
        a("ds_write_b64 v20, v[34:35] offset:544")
        self.unpack(32, 164, 2)
        self.unpack(36, 168, 2)
        for i in range(4): self.rnd(160 + i)
        for i in range(4): a(f"v_mul_f32 v{160+i}, v{160+i}, v{164+i}")
        for i in range(4): a(f"v_add_f32 v{168+i}, 1.0, v{168+i}")
        for i in range(4): self.rnd(160 + i)
        a("v_cvt_pk_bf16_f32 v36, v168, v169")
        a("v_cvt_pk_bf16_f32 v37, v170, v171")
        for i in range(4): a(f"v_add_f32 v{28+i}, v{28+i}, v{160+i}")
        a("ds_write_b64 v20, v[36:37] offset:272")
        self.unpack(36, 168, 2)
        for i in range(4): self.rnd(28 + i)
        for i in range(4): a(f"v_mul_f32 v{160+i}, v{28+i}, v{168+i}")
        a("v_cvt_pk_bf16_f32 v32, v160, v161")
        a("v_cvt_pk_bf16_f32 v33, v162, v163")
        a("ds_write_b64 v20, v[32:33]")
        a("s_waitcnt lgkmcnt(0)")
        for ks in range(4): a(f"ds_read_b128 v[{172+4*ks}:{175+4*ks}], v22 offset:{64*ks}")
        a("v_add_f32 v190, v28, v29")
        a("v_add_f32 v191, v30, v31")
        a("v_add_f32 v190, v190, v191")
        self.red32(190, 192)
        a("s_waitcnt lgkmcnt(0)")
        def mf(ks):
            for m in range(2):
                for t in range(2):
                    r = 64 + 32 * m + 8 * ks + 4 * t
                    d = 40 + 8 * m + 4 * t
                    c = f"v[{d}:{d+3}]" if ks else "0"
                    a(f"v_mfma_f32_16x16x32_bf16 v[{d}:{d+3}], v[{172+4*ks}:{175+4*ks}], v[{r}:{r+3}], {c}")
        mf(0)
        a(f"v_mul_f32 v190, {f32(1/128)}, v190")
        for i in range(4): a(f"v_sub_f32 v{28+i}, v{28+i}, v190")
        mf(1)
        a("v_mul_f32 v191, v28, v28")
        for i in range(1, 4): a(f"v_fmac_f32 v191, v{28+i}, v{28+i}")
        mf(2)
        mf(3)
        self.red32(191, 192)
        a("ds_write_b64 v225, v[190:191]")
        a("s_mov_b32 exec_hi, 0")
        for q in range(4): a(f"ds_write_b128 v23, v[{40+4*q}:{43+4*q}] offset:{512*q}")
        a("s_mov_b64 exec, -1")
        a("s_waitcnt lgkmcnt(0)")
        a("s_barrier")
        self.stamp(8)
        a("ds_read_b128 v[24:27], v224")
        a("ds_read_b128 v[28:31], v224 offset:16")
        for w in range(4):
            for m in range(2):
                r = 64 + 8 * w + 4 * m
                a(f"ds_read_b128 v[{r}:{r+3}], v2 offset:{16384*w+1024*m}")
        a("s_waitcnt lgkmcnt(8)")
        a("v_add_f32 v32, v24, v26")
        a("v_add_f32 v33, v28, v30")
        a("v_add_f32 v32, v32, v33")
        a("v_mul_f32 v32, 0.25, v32")
        a("v_add_f32 v34, v25, v27")
        a("v_add_f32 v35, v29, v31")
        for i in range(4): a(f"v_sub_f32 v{24+2*i}, v{24+2*i}, v32")
        a("v_add_f32 v34, v34, v35")
        a("v_mul_f32 v33, v24, v24")
        for i in range(1, 4): a(f"v_fmac_f32 v33, v{24+2*i}, v{24+2*i}")
        a(f"v_mul_f32 v34, {f32(1/512)}, v34")
        a("v_fmac_f32 v34, 0.25, v33")
        self.rnd(32)
        self.rnd(34)
        a(f"v_add_f32 v34, {f32(1e-5)}, v34")
        self.rnd(34)
        a("v_sqrt_f32 v34, v34")
        self.rnd(34)
        a("v_rcp_f32 v34, v34")
        a("s_waitcnt lgkmcnt(0)")
        for m in range(2):
            for i in range(3):
                a(f"v_add_f32 v{64+4*m+i}, v{64+4*m+i}, v{72+4*m+i}")
                a(f"v_add_f32 v{80+4*m+i}, v{80+4*m+i}, v{88+4*m+i}")
        for m in range(2):
            for i in range(3): a(f"v_add_f32 v{64+4*m+i}, v{64+4*m+i}, v{80+4*m+i}")
        for m in range(2): a(f"v_fma_f32 v{64+4*m}, -v32, v{65+4*m}, v{64+4*m}")
        for m in range(2): a(f"v_fma_f32 v{64+4*m}, v{64+4*m}, v34, v{66+4*m}")
        self.rnd(64)
        self.rnd(68)
        a("v_max_f32 v64, 0, v64")
        a("v_mul_f32 v64, v64, v68")
        a("v_cvt_pk_bf16_f32 v64, v64, v64")
        a("ds_write_b16 v226, v64")
        a("s_waitcnt lgkmcnt(0)")
        a("ds_read_b128 v[24:27], v227")
        a("s_waitcnt lgkmcnt(0)")
        for dt in range(8):
            a(f"v_mfma_f32_16x16x32_bf16 v[{160+4*dt}:{163+4*dt}], v[{128+4*dt}:{131+4*dt}], v[24:27], 0")
        a("s_mov_b32 exec_lo, 0x00030003")
        a("s_mov_b32 exec_hi, 0x00030003")
        for dt in range(8):
            a(f"buffer_store_dwordx4 v[{160+4*dt}:{163+4*dt}], v228, s[40:43], s26 offen sc1")
            if dt < 7: a(f"s_add_u32 s26, s26, {HFS}")
        self.stamp(9)
        a.label("LGe")
        self.end()

    def build(self):
        self.prologue()
        self.tw_early()
        self.e_early()
        self.t_helper()
        self.gh_main()
        self.gw_pre()
        self.g_role()
        self.ww_main()
        self.tw_main()
        self.a.label("Lexit")
        self.a("s_endpgm")
        self.a.label("Lcode_end")
        body = self.a.finish()
        head = open("cdna_kernels/" + NAME + ".s.ref").read().split("; Override launch geometry")[0]
        return head + f"""; Generated by gen/gen_kernel.py (hand-written generator): one persistent launch, 256 workgroups x 5 waves.
; @launch grid=(256,1,1) block=(320,1,1) lds={LDS_BYTES}
.amdgcn_target "amdgcn-amd-amdhsa--gfx950"
.text
.globl {KNAME}
.p2align 8
.type {KNAME},@function
{KNAME}:
{body}
.section .rodata,"a"
.p2align 6
.amdhsa_kernel {KNAME}
  .amdhsa_next_free_vgpr 240
  .amdhsa_next_free_sgpr 102
  .amdhsa_accum_offset 240
  .amdhsa_group_segment_fixed_size 0
  .amdhsa_kernarg_size 112
  .amdhsa_user_sgpr_count 2
  .amdhsa_user_sgpr_kernarg_segment_ptr 1
  .amdhsa_system_sgpr_workgroup_id_x 1
.end_amdhsa_kernel
"""

if __name__ == "__main__":
    import argparse
    ap = argparse.ArgumentParser()
    ap.add_argument("-o", default="cdna_kernels/" + NAME + ".s")
    ap.add_argument("--diag", action="store_true")
    ap.add_argument("--wflag", default="nt")
    ap.add_argument("--opt", action="append", default=[])
    args = ap.parse_args()
    opts = {}
    for o in args.opt:
        k, _, v = o.partition("=")
        opts[k] = int(v) if v else 1
    open(args.o, "w").write(Gen(args.diag, args.wflag, opts).build())
    print("wrote", args.o)
```

```python
import sys, struct
from asmlib import Asm

NAME = "adaLN_cond__sliding_block_cached__glu_gated_reglu__decode"
KNAME = NAME + "_kernel"

def f32(x): return "0x%08x" % struct.unpack("<I", struct.pack("<f", x))[0]

EPOCH = 0x0
HA = 0x2000
HB = 0x6000
PBASE = 0x10000
HM = 0x10000
HD = 0x12000
HL = 0x1A000
HC = 0x1E000
HF = 0x3E000
HFS = 7168
PEND = 0x76000
STAMP = 0x100000
WS_SIZE = 0x200000
FLAGS = 151040
LDS_BYTES = 151552
F_Q, F_VI, F_ATT, F_N, F_Q2, F_W = 0, 4, 8, 12, 16, 20
KB, VB, QB = 0, 65536, 149760
WQ, WO, RED = 0, 65536, 131072
W1, MR, GU, DWN, SC, NV = 0, 16384, 49152, 114688, 147456, 149760
STAT = W1
PART_O, AROW_O, HH_O = 0, 4096, 8192

LOG2E = 1.4426950408889634
CSC = (128 ** -0.5) * LOG2E
SPIN = 20000

class Gen:
    def __init__(self, diag=False, wflag="nt", opts=None):
        self.a = Asm()
        self.diag = diag
        self.wf = wflag
        self.o = opts or {}
        self.nlab = 0
    def lab(self, p="L"):
        self.nlab += 1
        return f"{p}{self.nlab}"
    def stamp(self, k):
        if self.diag or self.o.get("amp") == k: self.a(f"s_memrealtime s[{64+2*k}:{65+2*k}]")
    def dump_stamps(self):
        if not self.diag: return
        a = self.a
        a("s_waitcnt lgkmcnt(0)")
        a("s_mov_b64 exec, 1")
        a("s_mul_i32 s60, s2, 5")
        a("s_add_u32 s60, s60, s3")
        a("s_lshl_b32 s60, s60, 6")
        a(f"s_add_u32 s60, s60, {STAMP}")
        a("v_mov_b32 v1, 0")
        for q in range(4):
            for i in range(4):
                a(f"v_mov_b32 v{4+i}, s{64+2*(4*q+i)}")
            a(f"buffer_store_dwordx4 v[4:7], v1, s[40:43], s60 offen offset:{16*q}")
            a("s_nop 1")
    def end(self):
        self.dump_stamps()
        self.a("s_endpgm")
    def srd(self, d, p, size):
        a = self.a
        a(f"s_mov_b64 s[{d}:{d+1}], s[{p}:{p+1}]")
        a(f"s_mov_b32 s{d+2}, {size}")
        a(f"s_mov_b32 s{d+3}, 0x20000")
    def tag(self):
        self.a("s_mul_i32 s14, s14, 0x9E3779B1")
        self.a("s_add_u32 s14, s14, 0x7F4A7C15")
    def lds_inc(self, off, vaddr, vtmp, ret=None):
        a = self.a
        a("s_mov_b64 exec, 1")
        a(f"v_mov_b32 v{vtmp}, 1")
        if ret is None:
            a(f"ds_add_u32 v{vaddr}, v{vtmp} offset:{off}")
            a("s_mov_b64 exec, -1")
        else:
            a(f"ds_add_rtn_u32 v{vtmp}, v{vaddr}, v{vtmp} offset:{off}")
            a("s_waitcnt lgkmcnt(0)")
            a(f"v_readfirstlane_b32 s{ret}, v{vtmp}")
            a("s_mov_b64 exec, -1")
    def lds_wait(self, off, val, vaddr, vtmp, extra=None):
        a = self.a
        L = self.lab("Lw"); D = self.lab("Lwd")
        a(f"s_mov_b32 s12, {SPIN*20}")
        a.label(L)
        a(f"ds_read_b32 v{vtmp}, v{vaddr} offset:{off}")
        if extra: extra()
        a("s_waitcnt lgkmcnt(0)")
        a(f"v_readfirstlane_b32 s13, v{vtmp}")
        a("s_sub_u32 s12, s12, 1")
        a(f"s_cbranch_scc1 {D}")
        a(f"s_cmp_lt_u32 s13, {val}")
        a(f"s_cbranch_scc1 {L}")
        a.label(D)
    def poll(self, loads, checks, sleep=None):
        a = self.a
        if sleep is None: sleep = self.o.get("sleep", 0)
        L = self.lab("Lp"); D = self.lab("Lpd")
        n = len(loads)
        a(f"s_mov_b32 s12, {SPIN}")
        a.label(L)
        for l in loads: a(l)
        for i, (op, opd, r) in enumerate(checks):
            a(f"s_waitcnt vmcnt({n-1-i})")
            if i == 0:
                a(f"{op} s[10:11], {opd}, v{r}")
            else:
                a(f"{op} vcc, {opd}, v{r}")
                a("s_or_b64 s[10:11], s[10:11], vcc")
        a("s_sub_u32 s12, s12, 1")
        a(f"s_cbranch_scc1 {D}")
        a("s_cmp_lg_u64 s[10:11], 0")
        if sleep:
            a(f"s_cbranch_scc0 {D}")
            a(f"s_sleep {sleep}")
            a(f"s_branch {L}")
        else:
            a(f"s_cbranch_scc1 {L}")
        a.label(D)
    POISON = ("v_cmp_eq_u32", "-1")
    TAGBAD = ("v_cmp_ne_u32", "s14")
    def silu(self, regs, tmp):
        a = self.a
        for i, r in enumerate(regs): a(f"v_mul_f32 v{tmp+i}, {f32(-LOG2E)}, v{r}")
        for i, r in enumerate(regs): a(f"v_exp_f32 v{tmp+i}, v{tmp+i}")
        for i, r in enumerate(regs): a(f"v_add_f32 v{tmp+i}, 1.0, v{tmp+i}")
        for i, r in enumerate(regs): a(f"v_rcp_f32 v{tmp+i}, v{tmp+i}")
        for i, r in enumerate(regs): a(f"v_mul_f32 v{r}, v{r}, v{tmp+i}")
    def unpack(self, src, dst, n):
        for i in range(n):
            self.a(f"v_lshlrev_b32 v{dst+2*i}, 16, v{src+i}")
            self.a(f"v_and_b32 v{dst+2*i+1}, 0xffff0000, v{src+i}")
    def rnd(self, r):
        self.a(f"v_cvt_pk_bf16_f32 v{r}, v{r}, v{r}")
        self.a(f"v_and_b32 v{r}, 0xffff0000, v{r}")
    def red32(self, r, t):
        a = self.a
        for m in ("quad_perm:[1,0,3,2]", "quad_perm:[2,3,0,1]", "row_half_mirror", "row_mirror"):
            a(f"v_add_f32_dpp v{r}, v{r}, v{r} {m} row_mask:0xf bank_mask:0xf")
        a(f"v_mov_b32 v{t}, v{r}")
        a(f"v_permlane16_swap_b32 v{r}, v{t}")
        a(f"v_add_f32 v{r}, v{r}, v{t}")
    def prologue(self):
        a = self.a
        a("s_cmp_ge_u32 s2, 256")
        a("s_cbranch_scc1 Lexit")
        a("s_load_dwordx16 s[16:31], s[0:1], 0")
        a("s_load_dwordx8 s[32:39], s[0:1], 64")
        a("s_load_dwordx2 s[40:41], s[0:1], 104")
        if self.diag:
            for k in range(1, 16): a(f"s_mov_b32 s{64+2*k}, 0")
        self.stamp(0)
        if self.o.get("padto"): a("s_memrealtime s[96:97]")
        a("s_getpc_b64 s[56:57]")
        a.label("Lpc0")
        a("s_lshr_b32 s5, s2, 3")
        a("v_lshrrev_b32 v1, 6, v0")
        a("s_mul_i32 s6, s5, 640")
        a("v_lshl_add_u32 v2, v1, 7, s6")
        a("v_min_u32 v2, Lcode_end-Lpc0-4, v2")
        a("global_load_dword v239, v2, s[56:57]")
        a("v_and_b32 v0, 63, v0")
        a("s_and_b32 s4, s2, 7")
        a("v_readfirstlane_b32 s3, v1")
        a(f"s_mov_b32 s42, {WS_SIZE}")
        a("s_mov_b32 s43, 0x20000")
        a(f"v_mov_b32 v21, {FLAGS}")
        a("s_cmp_ge_u32 s5, 16")
        a("s_cbranch_scc1 LE")
        a("s_cmp_eq_u32 s3, 4")
        a("s_cbranch_scc1 LTH")

    def tw_early(self):
        a, wf = self.a, self.wf
        a("s_and_b32 s6, s5, 8")
        a("s_add_u32 s6, s6, s4")
        a("s_lshl_b32 s6, s6, 21")
        a("s_and_b32 s7, s5, 7")
        a("s_lshl_b32 s7, s7, 16")
        a("s_add_u32 s6, s6, s7")
        a("s_lshl_b32 s7, s3, 14")
        a("s_add_u32 s6, s6, s7")
        a(f"s_add_u32 s6, s6, {6144*256}")
        a("v_lshrrev_b32 v1, 4, v0")
        a("v_and_b32 v8, 15, v0")
        a("v_xor_b32 v2, v8, v1")
        a("v_lshlrev_b32 v2, 4, v2")
        a("v_lshl_add_u32 v2, v1, 8, v2")
        a("v_xor_b32 v3, 64, v2")
        a("v_xor_b32 v4, 0x80, v2")
        a("v_xor_b32 v5, 0xc0, v2")
        a("v_lshlrev_b32 v6, 1, v1")
        a("v_xor_b32 v6, v8, v6")
        a("v_lshlrev_b32 v6, 4, v6")
        a("v_lshl_add_u32 v6, v1, 8, v6")
        a("v_xor_b32 v7, 0x80, v6")
        if self.o.get("noswz"):
            for i in range(6): a(f"v_lshlrev_b32 v{2+i}, 4, v0")
        if self.o.get("kvlin"):
            a("s_lshl_b32 s6, s5, 3")
            a("s_add_u32 s6, s6, s4")
            a("s_lshl_b32 s6, s6, 16")
            a("s_add_u32 s6, s6, s7")
        a("s_mov_b32 m0, s7")
        a("s_mov_b32 s8, s6")
        a("s_add_u32 s9, s6, 16384")
        a("s_waitcnt lgkmcnt(0)")
        self.srd(44, 18, 0x2000000)
        self.srd(48, 20, 0x2000000)
        a("s_barrier")
        if self.o.get("t_delay"): self.lds_wait(F_Q, 1, 21, 1)
        a.label("LTWk")
        for i in range(4):
            a(f"buffer_load_dwordx4 v{2+i}, s[44:47], s8 offen offset:{1024*i} {wf} lds")
        a("s_add_u32 m0, m0, 4096")
        a("s_add_u32 s8, s8, 4096")
        a("s_cmp_lt_u32 s8, s9")
        a("s_cbranch_scc1 LTWk")
        a(f"s_add_u32 m0, s7, {VB}")
        a("s_mov_b32 s8, s6")
        a.label("LTWv")
        for i in range(4):
            a(f"buffer_load_dwordx4 v{6+(i&1)}, s[48:51], s8 offen offset:{1024*i} {wf} lds")
        a("s_add_u32 m0, m0, 4096")
        a("s_add_u32 s8, s8, 4096")
        a("s_cmp_lt_u32 s8, s9")
        a("s_cbranch_scc1 LTWv")
        a("s_branch LTW2")

    def zero_flags(self):
        a = self.a
        a("v_mov_b32 v5, 0")
        a("v_lshl_add_u32 v6, v0, 2, v21")
        a("ds_write_b32 v6, v5")

    def e_early(self):
        a, wf = self.a, self.wf
        a.label("LE")
        if self.o.get("only_kv"): a("s_endpgm")
        a("s_sub_u32 s5, s5, 16")
        a("s_cmp_ge_u32 s5, 8")
        a("s_cbranch_scc1 LG0")
        a("s_cmp_eq_u32 s3, 4")
        a("s_cbranch_scc1 LWH")
        a("s_lshl_b32 s9, s3, 20")
        a("s_lshl_b32 s15, s4, 10")
        a("s_add_u32 s9, s9, s15")
        a("s_lshl_b32 s15, s5, 7")
        a("s_add_u32 s9, s9, s15")
        a("v_lshrrev_b32 v1, 3, v0")
        a("v_and_b32 v2, 6, v1")
        a("v_and_b32 v3, 7, v0")
        a("v_xor_b32 v2, v2, v3")
        a("v_lshlrev_b32 v22, 4, v2")
        a("v_lshl_add_u32 v2, v1, 13, v22")
        a("s_lshl_b32 s7, s3, 14")
        a("s_mov_b32 m0, s7")
        a("s_add_u32 s13, s7, 16384")
        a("s_waitcnt lgkmcnt(0)")
        self.srd(44, 22, 512 * 8192)
        a("s_load_dword s14, s[40:41], 0")
        a.label("LWq")
        a(f"buffer_load_dwordx4 v2, s[44:47], s9 offen {wf} lds")
        a("s_add_u32 m0, m0, 1024")
        a("s_add_u32 s9, s9, 65536")
        a("s_cmp_lt_u32 m0, s13")
        a("s_cbranch_scc1 LWq")
        a("s_barrier")
        a("s_branch LW2")
        a.label("LWH")
        self.zero_flags()
        a("s_waitcnt lgkmcnt(0)")
        a("s_barrier")
        a("s_endpgm")
        a.label("LG0")
        a("s_lshl_b32 s6, s4, 3")
        a("s_add_u32 s6, s6, s5")
        a("s_sub_u32 s6, s6, 8")
        a("s_cmp_eq_u32 s3, 4")
        a("s_cbranch_scc1 LGH")
        for i in range(4): a(f"v_mov_b32 v{32+i}, -1")
        a("v_lshlrev_b32 v2, 4, v0")
        a("v_lshlrev_b32 v3, 5, v0")
        a("s_lshl_b32 s8, s3, 6")
        a("s_add_u32 s8, s8, s6")
        a("s_lshl_b32 s8, s8, 10")
        a(f"s_add_u32 s8, s8, {PBASE}")
        a("s_add_u32 s9, s8, 0x40000")
        a("s_waitcnt lgkmcnt(0)")
        self.srd(44, 40, PEND)
        self.srd(48, 16, 2048)
        a("buffer_store_dwordx4 v[32:35], v2, s[44:47], s8 offen sc1")
        a("buffer_store_dwordx4 v[32:35], v2, s[44:47], s9 offen sc1")
        a("s_load_dword s14, s[40:41], 0")
        a("s_cmp_eq_u32 s3, 0")
        a("s_cbranch_scc0 LG2")
        a("buffer_load_dwordx4 v[24:27], v3, s[48:51], 0 offen")
        a("buffer_load_dwordx4 v[28:31], v3, s[48:51], 0 offen offset:16")
        a("s_barrier")
        a("s_branch LGln")
        a.label("LG2")
        a("s_barrier")
        a("s_branch LG2b")
        a.label("LGH")
        a("s_bfe_u32 s7, s5, 0x20001")
        a("s_and_b32 s52, s5, 1")
        a(f"s_mul_i32 s8, s7, {128*6144}")
        a("s_lshl_b32 s9, s4, 7")
        a("s_add_u32 s8, s8, s9")
        a("s_lshl_b32 s9, s52, 6")
        a("s_add_u32 s8, s8, s9")
        a("v_lshrrev_b32 v1, 2, v0")
        a("v_bfe_u32 v2, v0, 4, 1")
        a("v_lshlrev_b32 v2, 1, v2")
        a("v_and_b32 v3, 3, v0")
        a("v_xor_b32 v2, v2, v3")
        a("v_mul_u32_u24 v4, 6144, v1")
        a("v_lshl_add_u32 v2, v2, 4, v4")
        a("v_lshlrev_b32 v4, 5, v0")
        self.zero_flags()
        a(f"s_mov_b32 m0, {W1}")
        a("s_waitcnt lgkmcnt(0)")
        self.srd(44, 36, 512 * 6144)
        self.srd(48, 34, 2048)
        a("s_load_dword s14, s[40:41], 0")
        a("s_barrier")
        a("buffer_load_dwordx4 v[28:31], v4, s[48:51], 0 offen")
        a("buffer_load_dwordx4 v[32:35], v4, s[48:51], 0 offen offset:16")
        a.label("LGH1")
        a(f"buffer_load_dwordx4 v2, s[44:47], s8 offen {wf} lds")
        a(f"buffer_load_dwordx4 v2, s[44:47], s8 offen offset:1024 {wf} lds")
        a("s_add_u32 m0, m0, 2048")
        a(f"s_add_u32 s8, s8, {16*6144}")
        a(f"s_cmp_lt_u32 m0, {W1+16384}")
        a("s_cbranch_scc1 LGH1")
        a("s_branch LGH2")

    def g_index(self):
        a = self.a
        a("s_lshr_b32 s53, s4, 1")
        a("s_mul_i32 s53, s53, 14")
        a("s_and_b32 s52, s4, 1")
        a("s_lshl_b32 s54, s52, 3")
        a("s_add_u32 s53, s53, s54")
        a("s_add_u32 s53, s53, s5")
        a("s_sub_u32 s53, s53, 8")
        a("s_lshl_b32 s52, s52, 1")
        a("s_sub_u32 s52, 16, s52")
        a("s_cmp_ge_u32 s5, s52")

    def t_helper(self):
        a = self.a
        a.label("LTH")
        self.zero_flags()
        a("v_lshlrev_b32 v2, 4, v0")
        a("s_lshl_b32 s15, s4, 12")
        a("s_and_b32 s13, s5, 8")
        a("s_lshl_b32 s13, s13, 8")
        a("s_add_u32 s15, s15, s13")
        a(f"s_add_u32 s15, s15, {HB}")
        a("s_waitcnt lgkmcnt(0)")
        a("s_load_dword s14, s[40:41], 0")
        a("s_barrier")
        if self.o.get("only_kv"): a("s_endpgm")
        a("v_lshrrev_b32 v4, 5, v0")
        a("v_mul_u32_u24 v4, 272, v4")
        a("v_and_b32 v5, 31, v0")
        a("v_lshl_add_u32 v4, v5, 3, v4")
        a(f"v_add_u32 v4, {QB}, v4")
        a("v_mov_b32 v7, 1")
        a("s_waitcnt lgkmcnt(0)")
        self.tag()
        self.stamp(1)
        self.poll([f"buffer_load_dwordx4 v[{40+4*i}:{43+4*i}], v2, s[40:43], s15 offen offset:{1024*i} sc1" for i in range(2)],
                  [(*self.TAGBAD, 42 + 4 * i) for i in range(2)], sleep=self.o.get("qsleep", 2))
        a("ds_write_b64 v4, v[40:41]")
        a("ds_write_b64 v4, v[44:45] offset:544")
        a(f"ds_write_b32 v21, v7 offset:{F_Q}")
        self.stamp(3)
        self.end()

    def tw_main(self):
        a = self.a
        a.label("LTW2")
        a("s_load_dword s14, s[40:41], 0")
        self.stamp(1)
        if self.o.get("kv_stamp"):
            a("s_waitcnt vmcnt(0)")
            self.stamp(9)
            if self.o.get("only_kv"): a("s_branch LTWe")
        a("v_and_b32 v1, 15, v0")
        a("v_lshrrev_b32 v2, 4, v0")
        a("v_xor_b32 v3, v1, v2")
        a("v_lshlrev_b32 v3, 4, v3")
        a("v_lshl_add_u32 v3, v1, 8, v3")
        a("v_add_u32 v8, s7, v3")
        a("v_xor_b32 v9, 64, v8")
        a("v_xor_b32 v10, 0x80, v8")
        a("v_xor_b32 v11, 0xc0, v8")
        a("v_lshrrev_b32 v3, 2, v0")
        a("v_and_b32 v4, 7, v3")
        a("v_lshlrev_b32 v4, 5, v4")
        a("v_lshl_add_u32 v4, v3, 8, v4")
        a("v_and_b32 v5, 3, v0")
        a("v_lshl_add_u32 v4, v5, 3, v4")
        a(f"s_add_u32 s8, s7, {VB}")
        a("v_add_u32 v12, s8, v4")
        for dt in range(1, 8): a(f"v_xor_b32 v{12+dt}, {32*dt}, v12")
        a("v_mul_u32_u24 v20, 272, v5")
        a("v_lshl_add_u32 v20, v2, 4, v20")
        a(f"v_add_u32 v20, {QB}, v20")
        a("v_mul_u32_u24 v22, 528, v5")
        a("v_lshl_add_u32 v22, v2, 4, v22")
        a("v_add_u32 v22, s7, v22")
        a("v_lshl_add_u32 v23, v5, 3, s7")
        a(f"s_mov_b32 s9, {f32(CSC)}")
        a("s_waitcnt vmcnt(16)")
        self.stamp(2)
        for t in range(4):
            for ks in range(4):
                r = 64 + 16 * t + 4 * ks
                a(f"ds_read_b128 v[{r}:{r+3}], v{8+ks} offset:{4096*t}")
        def qreads():
            for ks in range(4): a(f"ds_read_b128 v[{24+4*ks}:{27+4*ks}], v20 offset:{64*ks}")
        self.lds_wait(F_Q, 1, 21, 1, qreads)
        self.stamp(3)
        for ks in range(4):
            for t in range(4):
                r = 64 + 16 * t + 4 * ks
                d = 40 + 4 * t
                c = f"v[{d}:{d+3}]" if ks else "0"
                a(f"v_mfma_f32_16x16x32_bf16 v[{d}:{d+3}], v[{r}:{r+3}], v[{24+4*ks}:{27+4*ks}], {c}")
        def vreads(blk):
            for dt in range(8):
                r = 128 + 32 * blk + 4 * dt
                a(f"ds_read_b64_tr_b16 v[{r}:{r+1}], v{12+dt} offset:{8192*blk}")
                a(f"ds_read_b64_tr_b16 v[{r+2}:{r+3}], v{12+dt} offset:{8192*blk+4096}")
        a("s_waitcnt vmcnt(8)")
        vreads(0)
        a("v_max3_f32 v224, v40, v41, v42")
        a("v_max3_f32 v225, v43, v44, v45")
        a("v_max3_f32 v226, v46, v47, v48")
        a("v_max3_f32 v227, v49, v50, v51")
        a("v_max3_f32 v228, v52, v53, v54")
        a("v_max3_f32 v224, v224, v225, v226")
        a("v_max3_f32 v227, v227, v228, v55")
        a("v_max_f32 v224, v224, v227")
        a("v_mov_b32 v225, v224")
        a("v_permlane16_swap_b32 v224, v225")
        a("v_max_f32 v224, v224, v225")
        a("v_mov_b32 v225, v224")
        a("v_permlane32_swap_b32 v224, v225")
        a("v_max_f32 v224, v224, v225")
        a(f"v_mul_f32 v230, {f32(-CSC)}, v224")
        for i in range(16): a(f"v_fma_f32 v{40+i}, v{40+i}, s9, v230")
        for i in range(16): a(f"v_exp_f32 v{40+i}, v{40+i}")
        for i in range(8): a(f"v_cvt_pk_bf16_f32 v{56+i}, v{40+2*i}, v{41+2*i}")
        a("s_waitcnt vmcnt(0)")
        self.stamp(4)
        vreads(1)
        a("s_waitcnt lgkmcnt(15)")
        for dt in range(8):
            r = 128 + 4 * dt
            a(f"v_mfma_f32_16x16x32_bf16 v[{192+4*dt}:{195+4*dt}], v[{r}:{r+3}], v[56:59], 0")
        for i in range(8): a(f"v_add_f32 v{40+i}, v{40+i}, v{48+i}")
        for i in range(4): a(f"v_add_f32 v{40+i}, v{40+i}, v{44+i}")
        a("v_add_f32 v40, v40, v42")
        a("v_add_f32 v41, v41, v43")
        a("v_add_f32 v231, v40, v41")
        a("s_waitcnt lgkmcnt(0)")
        for dt in range(8):
            r = 160 + 4 * dt
            a(f"v_mfma_f32_16x16x32_bf16 v[{192+4*dt}:{195+4*dt}], v[{r}:{r+3}], v[60:63], v[{192+4*dt}:{195+4*dt}]")
        a("v_mov_b32 v225, v231")
        a("v_permlane16_swap_b32 v231, v225")
        a("v_add_f32 v231, v231, v225")
        a("v_mov_b32 v225, v231")
        a("v_permlane32_swap_b32 v231, v225")
        a("v_add_f32 v231, v231, v225")
        a("s_mov_b32 exec_lo, 0x000f000f")
        a("s_mov_b32 exec_hi, 0x000f000f")
        a("ds_write_b64 v23, v[230:231] offset:2304")
        for dt in range(8): a(f"ds_write_b128 v22, v[{192+4*dt}:{195+4*dt}] offset:{64*dt}")
        a("s_waitcnt lgkmcnt(0)")
        self.lds_inc(F_ATT, 21, 1, ret=13)
        a("s_cmp_eq_u32 s13, 3")
        a("s_cbranch_scc0 LTWr")
        a("v_lshrrev_b32 v2, 4, v0")
        a("v_mul_u32_u24 v3, 528, v2")
        a("v_bfe_u32 v4, v0, 2, 2")
        a("v_lshl_add_u32 v3, v4, 7, v3")
        a("v_and_b32 v4, 3, v0")
        a("v_lshl_add_u32 v3, v4, 4, v3")
        a("v_lshlrev_b32 v4, 3, v2")
        for w in range(4): a(f"ds_read_b64 v[{24+2*w}:{25+2*w}], v4 offset:{16384*w+2304}")
        for w in range(4):
            a(f"ds_read_b128 v[{64+8*w}:{67+8*w}], v3 offset:{16384*w}")
            a(f"ds_read_b128 v[{68+8*w}:{71+8*w}], v3 offset:{16384*w+64}")
        a("s_lshl_b32 s6, s4, 4")
        a("s_add_u32 s6, s6, s5")
        a("s_lshl_b32 s8, s6, 10")
        a(f"s_add_u32 s8, s8, {HC}")
        a("s_lshl_b32 s9, s6, 7")
        a(f"s_add_u32 s9, s9, {HL}")
        a("v_lshlrev_b32 v5, 4, v0")
        a("v_lshlrev_b32 v6, 2, v2")
        a("s_waitcnt lgkmcnt(8)")
        a("v_min3_f32 v32, v24, v26, v28")
        a("v_min_f32 v32, v32, v30")
        for w in range(4): a(f"v_sub_f32 v{24+2*w}, v32, v{24+2*w}")
        for w in range(4): a(f"v_exp_f32 v{24+2*w}, v{24+2*w}")
        a("v_mul_f32 v33, v24, v25")
        for w in range(1, 4): a(f"v_fmac_f32 v33, v{24+2*w}, v{25+2*w}")
        a("v_rcp_f32 v34, v33")
        a("v_log_f32 v35, v33")
        for w in range(4): a(f"v_mul_f32 v{24+2*w}, v{24+2*w}, v34")
        a("v_sub_f32 v35, v35, v32")
        a("s_waitcnt lgkmcnt(0)")
        for i in range(8): a(f"v_mul_f32 v{64+i}, v24, v{64+i}")
        for w in range(1, 4):
            for i in range(8): a(f"v_fmac_f32 v{64+i}, v{24+2*w}, v{64+8*w+i}")
        for i in range(4): a(f"v_cvt_pk_bf16_f32 v{36+i}, v{64+2*i}, v{65+2*i}")
        a("buffer_store_dwordx4 v[36:39], v5, s[40:43], s8 offen sc1")
        a("s_mov_b32 exec_lo, 0x00010001")
        a("s_mov_b32 exec_hi, 0x00010001")
        a("buffer_store_dword v35, v6, s[40:43], s9 offen sc1")
        a("s_mov_b64 exec, -1")
        self.stamp(5)
        a.label("LTWr")
        a("s_cmp_lt_u32 s5, 4")
        a("s_cbranch_scc0 LTWe")
        a("s_cmp_eq_u32 s3, 1")
        a("s_cbranch_scc0 LTWe")
        a("s_lshl_b32 s6, s4, 2")
        a("s_add_u32 s6, s6, s5")
        self.srd(44, 16, 2048)
        self.srd(48, 38, 2048)
        a("v_bfe_u32 v2, v0, 2, 1")
        a("v_and_b32 v3, 3, v0")
        a("v_lshlrev_b32 v4, 3, v3")
        a("v_lshl_add_u32 v5, v2, 10, v4")
        a("v_lshl_add_u32 v6, v2, 5, v4")
        a("v_lshlrev_b32 v7, 1, v5")
        a("v_lshrrev_b32 v8, 3, v0")
        a("v_lshl_add_u32 v7, v8, 12, v7")
        a("v_lshlrev_b32 v9, 4, v0")
        a("s_lshl_b32 s7, s6, 5")
        a("s_lshl_b32 s8, s6, 6")
        a(f"s_add_u32 s9, s8, {HD}")
        a(f"s_add_u32 s52, s8, {HM}")
        a(f"s_add_u32 s53, s8, {HM+96*64}")
        a(f"s_mul_i32 s54, s6, {HFS}")
        a(f"s_add_u32 s54, s54, {HF}")
        a("s_add_u32 s55, s54, 4096")
        a("buffer_load_dwordx2 v[10:11], v5, s[44:47], s7 offen")
        self.poll(["buffer_load_dwordx4 v[24:27], v7, s[40:43], s9 offen sc1",
                   "buffer_load_dwordx2 v[12:13], v6, s[40:43], s52 offen sc1",
                   "buffer_load_dwordx2 v[14:15], v6, s[40:43], s53 offen sc1"],
                  [(*self.POISON, 24), (*self.POISON, 12), (*self.POISON, 14)])
        self.stamp(6)
        def red8(r):
            for i in range(4): a(f"v_add_f32_dpp v{r+i}, v{r+i}, v{r+i} row_ror:8 row_mask:0xf bank_mask:0xf")
            for sw in ("16", "32"):
                for i in range(4): a(f"v_mov_b32 v{60+i}, v{r+i}")
                for i in range(4): a(f"v_permlane{sw}_swap_b32 v{r+i}, v{60+i}")
                for i in range(4): a(f"v_add_f32 v{r+i}, v{r+i}, v{60+i}")
        red8(24)
        self.unpack(10, 28, 2)
        self.unpack(12, 32, 2)
        self.unpack(14, 36, 2)
        for i in range(4): self.rnd(24 + i)
        for i in range(4): a(f"v_mul_f32 v{24+i}, v{24+i}, v{32+i}")
        for i in range(4): self.rnd(24 + i)
        for i in range(4): a(f"v_add_f32 v{28+i}, v{28+i}, v{24+i}")
        for i in range(4): self.rnd(28 + i)
        self.poll([f"buffer_load_dwordx4 v[{64+4*i}:{67+4*i}], v9, s[40:43], s{54+(i>>2)} offen offset:{1024*(i&3)} sc1" for i in range(7)],
                  [(*self.POISON, 64 + 4 * i) for i in range(7)])
        self.stamp(7)
        for i in range(4):
            a(f"v_add_f32 v{64+i}, v{64+i}, v{68+i}")
            a(f"v_add_f32 v{72+i}, v{72+i}, v{76+i}")
            a(f"v_add_f32 v{80+i}, v{80+i}, v{84+i}")
        for i in range(4):
            a(f"v_add_f32 v{64+i}, v{64+i}, v{72+i}")
            a(f"v_add_f32 v{80+i}, v{80+i}, v{88+i}")
        for i in range(4): a(f"v_add_f32 v{64+i}, v{64+i}, v{80+i}")
        red8(64)
        for i in range(4): self.rnd(64 + i)
        for i in range(4): a(f"v_mul_f32 v{64+i}, v{64+i}, v{36+i}")
        for i in range(4): self.rnd(64 + i)
        for i in range(4): a(f"v_add_f32 v{64+i}, v{64+i}, v{28+i}")
        a("v_cvt_pk_bf16_f32 v10, v64, v65")
        a("v_cvt_pk_bf16_f32 v11, v66, v67")
        a("s_mov_b64 exec, 0xff")
        a("buffer_store_dwordx2 v[10:11], v5, s[48:51], s7 offen")
        self.stamp(8)
        a("s_cmp_eq_u32 s6, 0")
        a("s_cbranch_scc0 LTWe")
        self.tag()
        a("s_mov_b64 exec, 1")
        a("v_mov_b32 v12, s14")
        a("v_mov_b32 v13, 0")
        a(f"buffer_store_dword v12, v13, s[40:43], 0 offen offset:{EPOCH} sc1")
        if self.o.get("padto"):
            a(f"s_mov_b32 s100, {self.o['padto']}")
            if self.o.get("amp"):
                a("s_waitcnt lgkmcnt(0)")
                a(f"s_sub_u32 s98, s{64+2*self.o['amp']}, s96")
                a("s_mul_i32 s98, s98, 10")
                a("s_add_u32 s100, s100, s98")
            a.label("Lpad")
            a("s_memrealtime s[98:99]")
            a("s_waitcnt lgkmcnt(0)")
            a("s_sub_u32 s98, s98, s96")
            a("s_cmp_lt_u32 s98, s100")
            a("s_cbranch_scc1 Lpad")
        a.label("LTWe")
        self.end()

    def gh_main(self):
        a, wf = self.a, self.wf
        a.label("LGH2")
        a("v_lshrrev_b32 v4, 5, v0")
        a("v_mul_u32_u24 v5, 1040, v4")
        a("v_bfe_u32 v10, v0, 1, 4")
        a("v_lshl_add_u32 v5, v10, 6, v5")
        a("v_and_b32 v10, 1, v0")
        a("v_lshl_add_u32 v5, v10, 3, v5")
        a(f"v_add_u32 v5, {SC}, v5")
        a("v_lshrrev_b32 v11, 4, v0")
        a("v_mul_u32_u24 v6, 1040, v10")
        a("v_lshl_add_u32 v6, v11, 4, v6")
        a(f"v_add_u32 v6, {SC}, v6")
        a("s_lshl_b32 s9, s7, 8")
        a("v_add_u32 v12, s9, v6")
        a("v_lshlrev_b32 v7, 7, v10")
        a("v_lshl_add_u32 v7, v11, 4, v7")
        a(f"v_add_u32 v7, {NV}, v7")
        a("v_bfe_u32 v8, v0, 4, 1")
        a("v_lshlrev_b32 v8, 5, v8")
        a("v_lshl_add_u32 v8, v1, 6, v8")
        a("v_lshl_add_u32 v8, v3, 3, v8")
        a("v_xor_b32 v9, 32, v8")
        a("v_lshlrev_b32 v13, 4, v10")
        a("v_lshl_add_u32 v13, v11, 5, v13")
        a("v_lshlrev_b32 v14, 5, v10")
        a("v_lshl_add_u32 v14, v11, 3, v14")
        a("s_lshl_b32 s8, s4, 11")
        a("s_lshl_b32 s9, s52, 10")
        a("s_add_u32 s8, s8, s9")
        a("s_lshl_b32 s9, s7, 7")
        a("s_add_u32 s8, s8, s9")
        a(f"s_add_u32 s8, s8, {HA}")
        a("s_cmp_eq_u32 s7, 0")
        a("s_cselect_b32 s9, 1.0, 0")
        for i in range(8): a(f"v_mov_b32 v{48+i}, s9")
        a("s_waitcnt vmcnt(16)")
        self.unpack(28, 192, 8)
        self.silu(list(range(192, 208)), 208)
        for i in range(8): a(f"v_cvt_pk_bf16_f32 v{28+i}, v{192+2*i}, v{193+2*i}")
        for q in range(4): a(f"ds_write_b64 v5, v[{28+2*q}:{29+2*q}] offset:{16*q}")
        a("s_waitcnt lgkmcnt(0)")
        self.tag()
        for i in range(4): a(f"ds_read_b128 v[{128+4*i}:{131+4*i}], v12 offset:{64*i}")
        for i in (58, 59, 62, 63): a(f"v_mov_b32 v{i}, s14")
        self.stamp(1)
        for ks in range(4):
            a(f"s_waitcnt vmcnt({12-4*ks})")
            for seg in range(2):
                for t in range(2):
                    r = 64 + 16 * ks + 8 * seg + 4 * t
                    a(f"ds_read_b64_tr_b16 v[{r}:{r+1}], v{8+t} offset:{W1+4096*ks+1024*seg}")
                    a(f"ds_read_b64_tr_b16 v[{r+2}:{r+3}], v{8+t} offset:{W1+4096*ks+2048+1024*seg}")
            if ks:
                a("s_waitcnt lgkmcnt(8)")
                self.s1_mfma(ks - 1)
        self.stamp(2)
        def nread():
            a("ds_read_b128 v[24:27], v7")
            a("ds_read_b128 v[28:31], v7 offset:64")
        self.lds_wait(F_N, 4, 21, 15, nread)
        self.s1_mfma(3)
        for i in range(8): a(f"v_fmac_f32 v{40+i}, v{24+i}, v{48+i}")
        for t in range(2):
            a(f"v_cvt_pk_bf16_f32 v{56+4*t}, v{40+4*t}, v{41+4*t}")
            a(f"v_cvt_pk_bf16_f32 v{57+4*t}, v{42+4*t}, v{43+4*t}")
        a("s_mov_b32 exec_lo, 0x00030003")
        a("s_mov_b32 exec_hi, 0x00030003")
        a("buffer_store_dwordx4 v[56:59], v13, s[40:43], s8 offen sc1")
        a("buffer_store_dwordx4 v[60:63], v13, s[40:43], s8 offen offset:512 sc1")
        a("s_mov_b64 exec, -1")
        self.stamp(3)
        a("s_lshl_b32 s7, s6, 6")
        a("s_add_u32 s7, s7, 2048")
        a("s_and_b32 s8, s6, 1")
        a("s_lshl_b32 s8, s8, 4")
        a("s_mov_b32 s52, 32")
        a.label("LGHm")
        a(f"s_mul_i32 s13, s8, {16*6144}")
        a("s_add_u32 s13, s13, s7")
        a("s_lshl_b32 s15, s8, 10")
        a(f"s_add_u32 m0, s15, {MR}")
        a("s_add_u32 s8, s8, 1")
        a(f"buffer_load_dwordx4 v2, s[44:47], s13 offen {wf} lds")
        a("s_and_b32 s8, s8, 31")
        a("s_sub_u32 s52, s52, 1")
        a("s_cmp_lg_u32 s52, 0")
        a("s_cbranch_scc1 LGHm")
        a("v_mov_b32 v15, 1")
        a(f"ds_write_b32 v21, v15 offset:{F_VI}")
        self.stamp(4)
        for i in range(16): a(f"ds_read_b128 v[{128+4*i}:{131+4*i}], v6 offset:{64*i}")
        a("s_lshl_b32 s9, s6, 7")
        a(f"s_add_u32 s9, s9, {HM}")
        a("s_waitcnt vmcnt(0)")
        self.stamp(5)
        for half in range(2):
            for k in range(8):
                ks = 8 * half + k
                for t in range(2):
                    r = 64 + 8 * k + 4 * t
                    a(f"ds_read_b64_tr_b16 v[{r}:{r+1}], v{8+t} offset:{MR+2048*ks}")
                    a(f"ds_read_b64_tr_b16 v[{r+2}:{r+3}], v{8+t} offset:{MR+2048*ks+1024}")
            a("s_waitcnt lgkmcnt(0)")
            for k in range(8):
                ks = 8 * half + k
                for t in range(2):
                    r = 64 + 8 * k + 4 * t
                    d = 40 + 4 * t
                    c = f"v[{d}:{d+3}]" if ks else "0"
                    a(f"v_mfma_f32_16x16x32_bf16 v[{d}:{d+3}], v[{r}:{r+3}], v[{128+4*ks}:{131+4*ks}], {c}")
        for t in range(2):
            a(f"v_cvt_pk_bf16_f32 v{48+2*t}, v{40+4*t}, v{41+4*t}")
            a(f"v_cvt_pk_bf16_f32 v{49+2*t}, v{42+4*t}, v{43+4*t}")
        a("s_mov_b32 exec_lo, 0x00030003")
        a("s_mov_b32 exec_hi, 0x00030003")
        a("buffer_store_dwordx2 v[48:49], v14, s[40:43], s9 offen sc1")
        a("buffer_store_dwordx2 v[50:51], v14, s[40:43], s9 offen offset:64 sc1")
        self.stamp(6)
        self.end()

    def s1_mfma(self, ks):
        for seg in range(2):
            for t in range(2):
                r = 64 + 16 * ks + 8 * seg + 4 * t
                d = 40 + 8 * seg + 4 * t
                c = "0" if (ks == 0 and seg == 0) else f"v[{d}:{d+3}]"
                self.a(f"v_mfma_f32_16x16x32_bf16 v[{d}:{d+3}], v[{r}:{r+3}], v[{128+4*ks}:{131+4*ks}], {c}")

    def gw_pre(self):
        a = self.a
        a.label("LG2b")
        a("s_waitcnt vmcnt(0)")
        self.lds_inc(F_N, 21, 1)
        a("s_branch LG3")
        a.label("LGln")
        a("s_waitcnt vmcnt(0)")
        self.unpack(24, 32, 8)
        for i in range(8): a(f"v_add_f32 v{48+i}, v{32+i}, v{40+i}")
        for i in range(4): a(f"v_add_f32 v{48+i}, v{48+i}, v{52+i}")
        a("v_add_f32 v48, v48, v50")
        a("v_add_f32 v49, v49, v51")
        a("v_add_f32 v48, v48, v49")
        self.red32(48, 49)
        a(f"v_mul_f32 v48, {f32(1/512)}, v48")
        for i in range(16): a(f"v_sub_f32 v{64+i}, v{32+i}, v48")
        a("v_mul_f32 v50, v64, v64")
        a("v_mul_f32 v51, v65, v65")
        for i in range(1, 8):
            a(f"v_fmac_f32 v50, v{64+2*i}, v{64+2*i}")
            a(f"v_fmac_f32 v51, v{65+2*i}, v{65+2*i}")
        a("v_add_f32 v50, v50, v51")
        self.red32(50, 49)
        a(f"v_mul_f32 v50, {f32(1/512)}, v50")
        self.rnd(48)
        self.rnd(50)
        a(f"v_add_f32 v50, {f32(1e-5)}, v50")
        self.rnd(50)
        a("v_sqrt_f32 v50, v50")
        self.rnd(50)
        a("v_rcp_f32 v50, v50")
        for i in range(16): a(f"v_sub_f32 v{64+i}, v{32+i}, v48")
        for i in range(16): a(f"v_mul_f32 v{64+i}, v{64+i}, v50")
        a("s_lshl_b32 s15, s4, 2")
        a("s_and_b32 s13, s5, 1")
        a("s_lshl_b32 s13, s13, 1")
        a("s_add_u32 s15, s15, s13")
        a("s_lshl_b32 s15, 3, s15")
        a("v_lshrrev_b32 v3, 5, v0")
        a("v_lshlrev_b32 v3, 7, v3")
        a("v_and_b32 v4, 1, v0")
        a("v_lshl_add_u32 v3, v4, 6, v3")
        a(f"v_add_u32 v3, {NV}, v3")
        a("s_mov_b32 exec_lo, s15")
        a("s_mov_b32 exec_hi, s15")
        for q in range(4): a(f"ds_write_b128 v3, v[{64+4*q}:{67+4*q}] offset:{16*q}")
        self.lds_inc(F_N, 21, 1)
        a.label("LG3")
        self.stamp(1)

    def ww_main(self):
        a, wf = self.a, self.wf
        a.label("LW2")
        self.stamp(1)
        a("v_lshrrev_b32 v3, 2, v0")
        a("v_bfe_u32 v4, v0, 3, 2")
        a("v_lshlrev_b32 v4, 5, v4")
        a("v_lshl_add_u32 v4, v3, 7, v4")
        a("v_and_b32 v5, 3, v0")
        a("v_lshl_add_u32 v23, v5, 3, v4")
        a("v_add_u32 v8, s7, v23")
        for t in range(1, 4): a(f"v_xor_b32 v{8+t}, {32*t}, v8")
        a("v_bfe_u32 v3, v0, 3, 1")
        a("v_lshlrev_b32 v3, 9, v3")
        a("v_lshl_add_u32 v3, v5, 7, v3")
        a("v_lshrrev_b32 v4, 4, v0")
        a("v_lshl_add_u32 v3, v4, 5, v3")
        a("v_bfe_u32 v4, v0, 2, 1")
        a("v_lshl_add_u32 v12, v4, 4, v3")
        a("s_lshl_b32 s9, s3, 12")
        a(f"s_add_u32 s9, s9, {HA}")
        a("v_lshrrev_b32 v3, 4, v0")
        a("v_and_b32 v4, 15, v0")
        a("v_lshlrev_b32 v13, 8, v3")
        a("v_lshl_add_u32 v14, v4, 4, v13")
        a("v_lshl_add_u32 v13, v4, 2, v13")
        a("s_lshl_b32 s15, s3, 9")
        a(f"s_add_u32 s15, s15, {RED}")
        a("v_add_u32 v13, s15, v13")
        a(f"v_add_u32 v14, {RED}, v14")
        a("v_lshlrev_b32 v15, 4, v4")
        a("v_lshl_add_u32 v15, v3, 11, v15")
        a("s_lshl_b32 s15, s4, 12")
        a("s_lshl_b32 s52, s5, 8")
        a("s_add_u32 s15, s15, s52")
        a(f"s_add_u32 s55, s15, {HB}")
        a("s_waitcnt vmcnt(0) lgkmcnt(0)")
        self.tag()
        self.stamp(2)
        for ks in range(4):
            for t in range(4):
                r = 64 + 16 * ks + 4 * t
                a(f"ds_read_b64_tr_b16 v[{r}:{r+1}], v{8+t} offset:{4096*ks}")
                a(f"ds_read_b64_tr_b16 v[{r+2}:{r+3}], v{8+t} offset:{4096*ks+2048}")
        a("v_mov_b32 v58, s14")
        a("v_mov_b32 v59, s14")
        self.poll([f"buffer_load_dwordx4 v[{24+4*ks}:{27+4*ks}], v12, s[40:43], s9 offen offset:{1024*ks} sc1" for ks in range(4)],
                  [(*self.TAGBAD, 26 + 4 * ks) for ks in range(4)])
        self.stamp(3)
        for ks in range(4):
            a(f"v_mov_b32_dpp v{26+4*ks}, v{24+4*ks} row_ror:8 row_mask:0xf bank_mask:0xf")
            a(f"v_mov_b32_dpp v{27+4*ks}, v{25+4*ks} row_ror:8 row_mask:0xf bank_mask:0xf")
        a("s_waitcnt lgkmcnt(0)")
        for ks in range(4):
            for t in range(4):
                r = 64 + 16 * ks + 4 * t
                d = 40 + 4 * t
                c = f"v[{d}:{d+3}]" if ks else "0"
                a(f"v_mfma_f32_16x16x32_bf16 v[{d}:{d+3}], v[{24+4*ks}:{27+4*ks}], v[{r}:{r+3}], {c}")
        for t in range(4):
            a(f"v_add_f32 v{40+4*t}, v{40+4*t}, v{41+4*t}")
            a(f"v_add_f32 v{42+4*t}, v{42+4*t}, v{43+4*t}")
        for t in range(4): a(f"v_add_f32 v{40+4*t}, v{40+4*t}, v{42+4*t}")
        a("s_mov_b32 exec_hi, 0")
        for t in range(4): a(f"ds_write_b32 v13, v{40+4*t} offset:{64*t}")
        a("s_waitcnt lgkmcnt(0)")
        self.lds_inc(F_Q2, 21, 1, ret=13)
        a("s_cmp_eq_u32 s13, 3")
        a("s_cbranch_scc0 LW4")
        a("s_mov_b32 exec_hi, 0")
        for w in range(4): a(f"ds_read_b128 v[{24+4*w}:{27+4*w}], v14 offset:{512*w}")
        a("s_waitcnt lgkmcnt(0)")
        for i in range(4):
            a(f"v_add_f32 v{24+i}, v{24+i}, v{28+i}")
            a(f"v_add_f32 v{32+i}, v{32+i}, v{36+i}")
        for i in range(4): a(f"v_add_f32 v{24+i}, v{24+i}, v{32+i}")
        a("v_cvt_pk_bf16_f32 v56, v24, v25")
        a("v_cvt_pk_bf16_f32 v57, v26, v27")
        a("buffer_store_dwordx4 v[56:59], v15, s[40:43], s55 offen sc1")
        a("s_mov_b64 exec, -1")
        self.stamp(4)
        a.label("LW4")
        a("s_barrier")
        self.stamp(5)
        self.w_role()

    def w_role(self):
        a, wf = self.a, self.wf
        self.srd(44, 24, 4096 * 1024)
        a("v_lshrrev_b32 v1, 3, v0")
        a("v_lshl_add_u32 v2, v1, 10, v22")
        a("s_lshl_b32 s9, s4, 19")
        a("s_lshl_b32 s15, s3, 17")
        a("s_add_u32 s9, s9, s15")
        a("s_lshl_b32 s15, s5, 7")
        a("s_add_u32 s9, s9, s15")
        a("s_lshl_b32 s15, s3, 14")
        a(f"s_add_u32 m0, s15, {WO}")
        a(f"s_add_u32 s13, s15, {WO+16384}")
        a.label("LWd")
        a(f"buffer_load_dwordx4 v2, s[44:47], s9 offen {wf} lds")
        a("s_add_u32 m0, m0, 1024")
        a("s_add_u32 s9, s9, 8192")
        a("s_cmp_lt_u32 m0, s13")
        a("s_cbranch_scc1 LWd")
        a(f"s_add_u32 s15, s15, {WO}")
        a("v_add_u32 v8, s15, v23")
        for t in range(1, 4): a(f"v_xor_b32 v{8+t}, {32*t}, v8")
        a("v_and_b32 v3, 15, v0")
        a("v_lshrrev_b32 v4, 4, v0")
        a("v_lshlrev_b32 v12, 10, v3")
        a("v_lshl_add_u32 v12, v4, 4, v12")
        a("s_lshl_b32 s9, s4, 14")
        a("s_lshl_b32 s15, s3, 8")
        a("s_add_u32 s9, s9, s15")
        a(f"s_add_u32 s9, s9, {HC}")
        a("v_lshlrev_b32 v13, 9, v4")
        a("v_xor_b32 v14, 0x200, v13")
        a("s_lshl_b32 s8, s4, 11")
        a("s_lshl_b32 s15, s3, 2")
        a("s_add_u32 s8, s8, s15")
        a(f"s_add_u32 s8, s8, {HL}")
        a("v_lshlrev_b32 v15, 8, v4")
        a("v_lshl_add_u32 v15, v3, 2, v15")
        a("s_lshl_b32 s15, s3, 10")
        a(f"s_add_u32 s15, s15, {RED}")
        a("v_add_u32 v15, s15, v15")
        a("v_lshlrev_b32 v17, 4, v3")
        a("v_lshl_add_u32 v16, v4, 9, v17")
        a(f"v_add_u32 v16, {RED}, v16")
        a("v_lshl_add_u32 v17, v4, 11, v17")
        a("s_lshl_b32 s55, s4, 12")
        a("s_lshl_b32 s15, s5, 8")
        a("s_add_u32 s55, s55, s15")
        a(f"s_add_u32 s55, s55, {HD}")
        a("s_waitcnt vmcnt(0)")
        self.stamp(6)
        for ks in range(4):
            for t in range(4):
                r = 64 + 16 * ks + 4 * t
                a(f"ds_read_b64_tr_b16 v[{r}:{r+1}], v{8+t} offset:{4096*ks}")
                a(f"ds_read_b64_tr_b16 v[{r+2}:{r+3}], v{8+t} offset:{4096*ks+2048}")
        loads = [f"buffer_load_dwordx4 v[{24+4*ks}:{27+4*ks}], v12, s[40:43], s9 offen offset:{64*ks} sc1" for ks in range(4)]
        checks = [(*self.POISON, 24 + 4 * ks) for ks in range(4)]
        for i in range(8):
            loads.append(f"buffer_load_dword v{128+i}, v{13+(i>>2)}, s[40:43], s8 offen offset:{128*(i&3)} sc1")
            checks.append((*self.POISON, 128 + i))
        self.poll(loads, checks)
        self.stamp(7)
        a("s_waitcnt lgkmcnt(0)")
        for ks in range(4):
            for t in range(4):
                r = 64 + 16 * ks + 4 * t
                d = 40 + 4 * t
                c = f"v[{d}:{d+3}]" if ks else "0"
                a(f"v_mfma_f32_16x16x32_bf16 v[{d}:{d+3}], v[{24+4*ks}:{27+4*ks}], v[{r}:{r+3}], {c}")
        a("v_max3_f32 v136, v128, v129, v130")
        a("v_max3_f32 v137, v131, v132, v133")
        a("v_max3_f32 v136, v136, v134, v135")
        a("v_max_f32 v136, v136, v137")
        for i in range(8): a(f"v_sub_f32 v{128+i}, v{128+i}, v136")
        for i in range(8): a(f"v_exp_f32 v{128+i}, v{128+i}")
        for i in range(4): a(f"v_add_f32 v{132+i}, v{132+i}, v{128+i}")
        a("v_add_f32 v132, v132, v133")
        a("v_add_f32 v134, v134, v135")
        a("v_add_f32 v132, v132, v134")
        a("v_rcp_f32 v132, v132")
        for i in range(4): a(f"v_mul_f32 v{128+i}, v{128+i}, v132")
        for t in range(4): a(f"v_mul_f32 v{40+4*t}, v{40+4*t}, v128")
        for r in range(1, 4):
            for t in range(4): a(f"v_fmac_f32 v{40+4*t}, v{40+4*t+r}, v{128+r}")
        for t in range(4): a(f"ds_write_b32 v15, v{40+4*t} offset:{64*t}")
        a("s_waitcnt lgkmcnt(0)")
        self.lds_inc(F_W, 21, 1, ret=13)
        a("s_cmp_eq_u32 s13, 3")
        a("s_cbranch_scc0 LWe")
        a("s_mov_b32 exec_hi, 0")
        for i in range(8): a(f"ds_read_b128 v[{64+4*i}:{67+4*i}], v16 offset:{1024*(i>>1)+256*(i&1)}")
        a("s_waitcnt lgkmcnt(0)")
        for i in range(4):
            for k in range(4): a(f"v_add_f32 v{64+8*k+i}, v{64+8*k+i}, v{68+8*k+i}")
        for i in range(4):
            a(f"v_add_f32 v{64+i}, v{64+i}, v{72+i}")
            a(f"v_add_f32 v{80+i}, v{80+i}, v{88+i}")
        for i in range(4): a(f"v_add_f32 v{64+i}, v{64+i}, v{80+i}")
        a("buffer_store_dwordx4 v[64:67], v17, s[40:43], s55 offen sc1")
        self.stamp(8)
        a.label("LWe")
        self.end()

    def g_role(self):
        a, wf = self.a, self.wf
        self.g_index()
        a("s_cbranch_scc1 LGe")
        a("s_and_b32 s52, s53, 1")
        a("s_cmp_eq_u32 s52, 0")
        a("s_cselect_b64 s[44:45], s[28:29], s[30:31]")
        a("s_cselect_b64 s[48:49], s[30:31], s[28:29]")
        a(f"s_mov_b32 s46, {512*3584}")
        a("s_mov_b32 s47, 0x20000")
        a(f"s_mov_b32 s50, {512*3584}")
        a("s_mov_b32 s51, 0x20000")
        a("s_lshl_b32 s52, s52, 13")
        a("v_lshrrev_b32 v1, 2, v0")
        a("v_bfe_u32 v2, v0, 4, 1")
        a("v_lshlrev_b32 v2, 1, v2")
        a("v_and_b32 v3, 3, v0")
        a("v_xor_b32 v2, v2, v3")
        a("v_mul_u32_u24 v4, 3584, v1")
        a("v_lshl_add_u32 v2, v2, 4, v4")
        a(f"s_mul_i32 s8, s3, {128*3584}")
        a("s_lshl_b32 s15, s53, 6")
        a("s_add_u32 s8, s8, s15")
        a("s_lshl_b32 s7, s3, 14")
        a(f"s_add_u32 s7, s7, {GU}")
        a("v_lshrrev_b32 v229, 3, v0")
        a("v_lshlrev_b32 v229, 11, v229")
        a("v_and_b32 v4, 1, v0")
        a("v_lshl_add_u32 v229, v4, 10, v229")
        a("v_bfe_u32 v4, v0, 1, 2")
        a("v_lshl_add_u32 v229, v4, 7, v229")
        a(f"s_mov_b32 s27, {HA}")
        self.lds_wait(F_VI, 1, 21, 4)
        self.tag()
        self.stamp(5)
        for m in range(2):
            a("s_add_u32 m0, s7, s52")
            a("s_add_u32 s13, m0, 8192")
            a("s_mov_b32 s9, s8")
            a.label(f"LGd{m}")
            a(f"buffer_load_dwordx4 v2, s[{44+4*m}:{47+4*m}], s9 offen {wf} lds")
            a("s_add_u32 m0, m0, 1024")
            a(f"s_add_u32 s9, s9, {16*3584}")
            a("s_cmp_lt_u32 m0, s13")
            a(f"s_cbranch_scc1 LGd{m}")
            if m == 0: a("s_xor_b32 s52, s52, 8192")
        a("buffer_load_dword v230, v229, s[40:43], s27 offen offset:8 sc1")
        self.srd(44, 32, 1792 * 1024)
        a("v_lshrrev_b32 v4, 4, v0")
        a("v_and_b32 v5, 15, v0")
        a("v_lshlrev_b32 v6, 1, v4")
        a("v_xor_b32 v6, v5, v6")
        a("v_lshlrev_b32 v6, 4, v6")
        a("v_lshl_add_u32 v6, v4, 10, v6")
        a("v_xor_b32 v7, 0x80, v6")
        a("s_lshl_b32 s9, s53, 15")
        a("s_lshl_b32 s15, s3, 8")
        a("s_add_u32 s9, s9, s15")
        a("s_lshl_b32 s6, s3, 13")
        a(f"s_add_u32 s6, s6, {DWN}")
        a("s_mov_b32 m0, s6")
        a("s_add_u32 s13, s6, 8192")
        a.label("LGd2")
        for i in range(2):
            a(f"buffer_load_dwordx4 v{6+i}, s[44:47], s9 offen {wf} lds")
            a("s_add_u32 m0, m0, 1024")
            a("s_add_u32 s9, s9, 4096")
        a("s_cmp_lt_u32 m0, s13")
        a("s_cbranch_scc1 LGd2")
        self.srd(48, 16, 2048)
        a("v_lshrrev_b32 v4, 5, v0")
        a("v_and_b32 v5, 31, v0")
        a("v_lshlrev_b32 v18, 3, v5")
        a("v_lshl_add_u32 v18, v4, 10, v18")
        a("buffer_load_dwordx2 v[24:25], v18, s[48:51], s15 offen")
        a("v_lshlrev_b32 v18, 1, v18")
        a("v_lshrrev_b32 v19, 2, v5")
        a("v_lshlrev_b32 v19, 6, v19")
        a("v_lshl_add_u32 v19, v4, 5, v19")
        a("v_lshl_add_u32 v19, v3, 3, v19")
        a("s_lshl_b32 s15, s3, 9")
        for k in range(8): a(f"s_add_u32 s{16+k}, s15, {HD+4096*k}")
        a(f"s_add_u32 s24, s15, {HM}")
        a(f"s_add_u32 s25, s15, {HM+4096}")
        a("v_bfe_u32 v8, v0, 4, 1")
        a("v_lshlrev_b32 v8, 5, v8")
        a("v_lshl_add_u32 v8, v1, 6, v8")
        a("v_lshl_add_u32 v8, v3, 3, v8")
        a("v_add_u32 v8, s7, v8")
        a("v_xor_b32 v9, 32, v8")
        a("v_and_b32 v10, 7, v1")
        a("v_lshlrev_b32 v10, 5, v10")
        a("v_lshl_add_u32 v10, v1, 8, v10")
        a("v_lshl_add_u32 v10, v3, 3, v10")
        a("v_add_u32 v10, s6, v10")
        for dt in range(1, 8): a(f"v_xor_b32 v{10+dt}, {32*dt}, v10")
        a("v_mul_u32_u24 v20, 1088, v4")
        a("v_lshrrev_b32 v6, 3, v5")
        a("v_lshl_add_u32 v20, v6, 6, v20")
        a("v_lshl_add_u32 v20, v3, 4, v20")
        a("v_bfe_u32 v6, v0, 2, 1")
        a("v_lshl_add_u32 v20, v6, 3, v20")
        a(f"s_add_u32 s15, s7, {AROW_O}")
        a("v_add_u32 v20, s15, v20")
        a("v_and_b32 v22, 7, v0")
        a("v_mul_u32_u24 v22, 272, v22")
        a("v_lshrrev_b32 v7, 4, v0")
        a("v_lshl_add_u32 v22, v7, 4, v22")
        a("v_add_u32 v22, s15, v22")
        a("v_lshl_add_u32 v23, v0, 4, s7")
        a("v_bfe_u32 v2, v0, 4, 1")
        a("v_lshlrev_b32 v2, 9, v2")
        a("v_lshl_add_u32 v2, v4, 8, v2")
        a("v_and_b32 v6, 15, v0")
        a("v_lshl_add_u32 v2, v6, 4, v2")
        a(f"v_add_u32 v2, {GU}, v2")
        a("v_lshlrev_b32 v224, 5, v4")
        a(f"v_add_u32 v224, {STAT}, v224")
        a("s_lshl_b32 s15, s3, 3")
        a("v_add_u32 v225, s15, v224")
        a("v_lshlrev_b32 v226, 6, v4")
        a("v_bfe_u32 v6, v0, 2, 2")
        a("v_lshl_add_u32 v226, v6, 4, v226")
        a("v_bfe_u32 v6, v0, 4, 1")
        a("v_lshl_add_u32 v226, v6, 3, v226")
        a("v_lshl_add_u32 v226, v3, 1, v226")
        a(f"s_add_u32 s15, s7, {HH_O}")
        a("v_add_u32 v226, s15, v226")
        a("v_and_b32 v6, 1, v0")
        a("v_lshlrev_b32 v227, 6, v6")
        a("v_lshl_add_u32 v227, v7, 4, v227")
        a("v_mov_b32 v228, v227")
        a("v_add_u32 v227, s15, v227")
        a(f"s_mul_i32 s26, s3, {8*HFS}")
        a("s_lshl_b32 s15, s53, 7")
        a("s_add_u32 s26, s26, s15")
        a(f"s_add_u32 s26, s26, {HF}")
        a("s_waitcnt vmcnt(0)")
        self.stamp(6)
        for m in range(2):
            for ks in range(4):
                for t in range(2):
                    r = 64 + 32 * m + 8 * ks + 4 * t
                    a(f"ds_read_b64_tr_b16 v[{r}:{r+1}], v{8+t} offset:{8192*m+2048*ks}")
                    a(f"ds_read_b64_tr_b16 v[{r+2}:{r+3}], v{8+t} offset:{8192*m+2048*ks+1024}")
        for dt in range(8):
            r = 128 + 4 * dt
            a(f"ds_read_b64_tr_b16 v[{r}:{r+1}], v{10+dt}")
            a(f"ds_read_b64_tr_b16 v[{r+2}:{r+3}], v{10+dt} offset:4096")
        self.unpack(24, 28, 2)
        a("v_cmp_ne_u32 vcc, s14, v230")
        a("s_cbranch_vccz LGok")
        self.poll(["buffer_load_dword v230, v229, s[40:43], s27 offen offset:8 sc1"], [(*self.TAGBAD, 230)])
        a.label("LGok")
        a("s_waitcnt lgkmcnt(0)")
        loads = [f"buffer_load_dwordx4 v[{160+4*k}:{163+4*k}], v18, s[40:43], s{16+k} offen sc1" for k in range(8)]
        checks = [(*self.POISON, 160 + 4 * k) for k in range(8)]
        loads += ["buffer_load_dwordx2 v[32:33], v19, s[40:43], s24 offen sc1",
                  "buffer_load_dwordx2 v[34:35], v19, s[40:43], s24 offen offset:2048 sc1",
                  "buffer_load_dwordx2 v[36:37], v19, s[40:43], s25 offen sc1"]
        checks += [(*self.POISON, 32), (*self.POISON, 34), (*self.POISON, 36)]
        self.poll(loads, checks)
        self.stamp(7)
        for i in range(4):
            for k in range(4): a(f"v_add_f32 v{160+8*k+i}, v{160+8*k+i}, v{164+8*k+i}")
        for i in range(4):
            a(f"v_add_f32 v{160+i}, v{160+i}, v{168+i}")
            a(f"v_add_f32 v{176+i}, v{176+i}, v{184+i}")
        for i in range(4): a(f"v_add_f32 v{160+i}, v{160+i}, v{176+i}")
        a("ds_write_b64 v20, v[34:35] offset:544")
        self.unpack(32, 164, 2)
        self.unpack(36, 168, 2)
        for i in range(4): self.rnd(160 + i)
        for i in range(4): a(f"v_mul_f32 v{160+i}, v{160+i}, v{164+i}")
        for i in range(4): a(f"v_add_f32 v{168+i}, 1.0, v{168+i}")
        for i in range(4): self.rnd(160 + i)
        a("v_cvt_pk_bf16_f32 v36, v168, v169")
        a("v_cvt_pk_bf16_f32 v37, v170, v171")
        for i in range(4): a(f"v_add_f32 v{28+i}, v{28+i}, v{160+i}")
        a("ds_write_b64 v20, v[36:37] offset:272")
        self.unpack(36, 168, 2)
        for i in range(4): self.rnd(28 + i)
        for i in range(4): a(f"v_mul_f32 v{160+i}, v{28+i}, v{168+i}")
        a("v_cvt_pk_bf16_f32 v32, v160, v161")
        a("v_cvt_pk_bf16_f32 v33, v162, v163")
        a("ds_write_b64 v20, v[32:33]")
        a("s_waitcnt lgkmcnt(0)")
        for ks in range(4): a(f"ds_read_b128 v[{172+4*ks}:{175+4*ks}], v22 offset:{64*ks}")
        a("v_add_f32 v190, v28, v29")
        a("v_add_f32 v191, v30, v31")
        a("v_add_f32 v190, v190, v191")
        self.red32(190, 192)
        a("s_waitcnt lgkmcnt(0)")
        def mf(ks):
            for m in range(2):
                for t in range(2):
                    r = 64 + 32 * m + 8 * ks + 4 * t
                    d = 40 + 8 * m + 4 * t
                    c = f"v[{d}:{d+3}]" if ks else "0"
                    a(f"v_mfma_f32_16x16x32_bf16 v[{d}:{d+3}], v[{172+4*ks}:{175+4*ks}], v[{r}:{r+3}], {c}")
        mf(0)
        a(f"v_mul_f32 v190, {f32(1/128)}, v190")
        for i in range(4): a(f"v_sub_f32 v{28+i}, v{28+i}, v190")
        mf(1)
        a("v_mul_f32 v191, v28, v28")
        for i in range(1, 4): a(f"v_fmac_f32 v191, v{28+i}, v{28+i}")
        mf(2)
        mf(3)
        self.red32(191, 192)
        a("ds_write_b64 v225, v[190:191]")
        a("s_mov_b32 exec_hi, 0")
        for q in range(4): a(f"ds_write_b128 v23, v[{40+4*q}:{43+4*q}] offset:{512*q}")
        a("s_mov_b64 exec, -1")
        a("s_waitcnt lgkmcnt(0)")
        a("s_barrier")
        self.stamp(8)
        a("ds_read_b128 v[24:27], v224")
        a("ds_read_b128 v[28:31], v224 offset:16")
        for w in range(4):
            for m in range(2):
                r = 64 + 8 * w + 4 * m
                a(f"ds_read_b128 v[{r}:{r+3}], v2 offset:{16384*w+1024*m}")
        a("s_waitcnt lgkmcnt(8)")
        a("v_add_f32 v32, v24, v26")
        a("v_add_f32 v33, v28, v30")
        a("v_add_f32 v32, v32, v33")
        a("v_mul_f32 v32, 0.25, v32")
        a("v_add_f32 v34, v25, v27")
        a("v_add_f32 v35, v29, v31")
        for i in range(4): a(f"v_sub_f32 v{24+2*i}, v{24+2*i}, v32")
        a("v_add_f32 v34, v34, v35")
        a("v_mul_f32 v33, v24, v24")
        for i in range(1, 4): a(f"v_fmac_f32 v33, v{24+2*i}, v{24+2*i}")
        a(f"v_mul_f32 v34, {f32(1/512)}, v34")
        a("v_fmac_f32 v34, 0.25, v33")
        self.rnd(32)
        self.rnd(34)
        a(f"v_add_f32 v34, {f32(1e-5)}, v34")
        self.rnd(34)
        a("v_sqrt_f32 v34, v34")
        self.rnd(34)
        a("v_rcp_f32 v34, v34")
        a("s_waitcnt lgkmcnt(0)")
        for m in range(2):
            for i in range(3):
                a(f"v_add_f32 v{64+4*m+i}, v{64+4*m+i}, v{72+4*m+i}")
                a(f"v_add_f32 v{80+4*m+i}, v{80+4*m+i}, v{88+4*m+i}")
        for m in range(2):
            for i in range(3): a(f"v_add_f32 v{64+4*m+i}, v{64+4*m+i}, v{80+4*m+i}")
        for m in range(2): a(f"v_fma_f32 v{64+4*m}, -v32, v{65+4*m}, v{64+4*m}")
        for m in range(2): a(f"v_fma_f32 v{64+4*m}, v{64+4*m}, v34, v{66+4*m}")
        self.rnd(64)
        self.rnd(68)
        a("v_max_f32 v64, 0, v64")
        a("v_mul_f32 v64, v64, v68")
        a("v_cvt_pk_bf16_f32 v64, v64, v64")
        a("ds_write_b16 v226, v64")
        a("s_waitcnt lgkmcnt(0)")
        a("ds_read_b128 v[24:27], v227")
        a("s_waitcnt lgkmcnt(0)")
        for dt in range(8):
            a(f"v_mfma_f32_16x16x32_bf16 v[{160+4*dt}:{163+4*dt}], v[{128+4*dt}:{131+4*dt}], v[24:27], 0")
        a("s_mov_b32 exec_lo, 0x00030003")
        a("s_mov_b32 exec_hi, 0x00030003")
        for dt in range(8):
            a(f"buffer_store_dwordx4 v[{160+4*dt}:{163+4*dt}], v228, s[40:43], s26 offen sc1")
            if dt < 7: a(f"s_add_u32 s26, s26, {HFS}")
        self.stamp(9)
        a.label("LGe")
        self.end()

    def build(self):
        self.prologue()
        self.tw_early()
        self.e_early()
        self.t_helper()
        self.gh_main()
        self.gw_pre()
        self.g_role()
        self.ww_main()
        self.tw_main()
        self.a.label("Lexit")
        self.a("s_endpgm")
        self.a.label("Lcode_end")
        body = self.a.finish()
        head = open("cdna_kernels/" + NAME + ".s.ref").read().split("; Override launch geometry")[0]
        return head + f"""; Generated by gen/gen_kernel.py (hand-written generator): one persistent launch, 256 workgroups x 5 waves.
; @launch grid=(256,1,1) block=(320,1,1) lds={LDS_BYTES}
.amdgcn_target "amdgcn-amd-amdhsa--gfx950"
.text
.globl {KNAME}
.p2align 8
.type {KNAME},@function
{KNAME}:
{body}
.section .rodata,"a"
.p2align 6
.amdhsa_kernel {KNAME}
  .amdhsa_next_free_vgpr 240
  .amdhsa_next_free_sgpr 102
  .amdhsa_accum_offset 240
  .amdhsa_group_segment_fixed_size 0
  .amdhsa_kernarg_size 112
  .amdhsa_user_sgpr_count 2
  .amdhsa_user_sgpr_kernarg_segment_ptr 1
  .amdhsa_system_sgpr_workgroup_id_x 1
.end_amdhsa_kernel
"""

if __name__ == "__main__":
    import argparse
    ap = argparse.ArgumentParser()
    ap.add_argument("-o", default="cdna_kernels/" + NAME + ".s")
    ap.add_argument("--diag", action="store_true")
    ap.add_argument("--wflag", default="nt")
    ap.add_argument("--opt", action="append", default=[])
    args = ap.parse_args()
    opts = {}
    for o in args.opt:
        k, _, v = o.partition("=")
        opts[k] = int(v) if v else 1
    open(args.o, "w").write(Gen(args.diag, args.wflag, opts).build())
    print("wrote", args.o)
```

```python
import re

TRANS = ("v_exp_f32", "v_log_f32", "v_rcp_f32", "v_rsq_f32", "v_sqrt_f32", "v_sin_f32", "v_cos_f32")

def _regs(tok):
    tok = tok.strip()
    tok = re.sub(r"^-", "", tok)
    m = re.match(r"^abs\((.*)\)$", tok)
    if m: tok = m.group(1)
    m = re.match(r"^\|(.*)\|$", tok)
    if m: tok = m.group(1)
    m = re.match(r"^([vsa])(\d+)$", tok)
    if m: return {(m.group(1), int(m.group(2)))}
    m = re.match(r"^([vsa])\[(\d+):(\d+)\]$", tok)
    if m: return {(m.group(1), i) for i in range(int(m.group(2)), int(m.group(3)) + 1)}
    if tok in ("vcc", "vcc_lo", "vcc_hi"): return {("vcc", 0)}
    if tok == "m0": return {("m0", 0)}
    if tok in ("exec", "exec_lo", "exec_hi"): return {("exec", 0)}
    return set()

class Ins:
    def __init__(self, text):
        self.text = text
        t = text.split(";")[0].strip()
        self.is_label = t.endswith(":")
        self.is_dir = t.startswith(".")
        self.op = "" if (self.is_label or self.is_dir or not t) else t.split()[0]
        rest = t[len(self.op):].strip() if self.op else ""
        rest = re.sub(r"\[[^\]]*\]", lambda m: m.group(0).replace(",", "_"), rest)
        ops = [o.strip() for o in rest.split(",")] if rest else []
        mods = ""
        if ops:
            parts = ops[-1].split()
            ops[-1] = parts[0] if parts else ""
            mods = " ".join(parts[1:])
        self.ops, self.mods = ops, mods
        op = self.op
        self.mfma = op.startswith("v_mfma")
        self.valu = op.startswith("v_") and not self.mfma
        self.salu = op.startswith("s_")
        self.ds = op.startswith("ds_")
        self.vmem = op.startswith(("buffer_", "global_"))
        self.trans = op.replace("_e32", "").replace("_e64", "") in TRANS
        self.dpp = "_dpp" in op or "row_" in mods or "quad_perm" in mods
        self.perml = op.startswith("v_permlane")
        self.rfl = op.startswith(("v_readfirstlane", "v_readlane"))
        self.ldsdma = self.vmem and (" lds" in (" " + mods) or "load_lds" in op)
        R = [_regs(o) for o in ops]
        w, r = set(), set()
        if self.mfma:
            w = R[0]; self.A, self.B, self.C = R[1], R[2], R[3]; r = R[1] | R[2] | R[3]
        elif self.valu:
            if self.perml:
                w = R[0] | R[1]; r = R[0] | R[1]
            elif op.startswith("v_cmp"):
                w = R[0]; r = set().union(*R[1:])
            elif op.startswith(("v_add_co", "v_sub_co", "v_addc_co", "v_subb_co")):
                w = R[0] | R[1]; r = set().union(*R[2:])
            else:
                w = R[0]; r = set().union(*R[1:]) if len(R) > 1 else set()
                if op.startswith(("v_fmac", "v_fmamk", "v_fmaak", "v_dot2c", "v_pk_fmac")) or self.dpp:
                    r |= R[0]
                if op.startswith("v_cndmask") and len(ops) == 3: r |= {("vcc", 0)}
        elif self.ds:
            if op.startswith(("ds_read", "ds_bpermute", "ds_permute", "ds_swizzle")) or "_rtn" in op:
                w = R[0]; r = set().union(*R[1:])
            else:
                r = set().union(*R)
        elif self.vmem:
            if "load" in op and not self.ldsdma:
                w = R[0]; r = set().union(*R[1:])
            else:
                r = set().union(*R)
            self.store_wide = ("store" in op) and (op.endswith("x4") or op.endswith("x3"))
            if "store" in op:
                self.data = R[0] if op.startswith("buffer_") else R[1]
        elif self.salu:
            if op.startswith(("s_cmp", "s_cbranch", "s_branch", "s_waitcnt", "s_nop", "s_barrier", "s_endpgm", "s_sleep", "s_setprio")):
                r = set().union(*R) if R else set()
            else:
                w = R[0] if R else set(); r = set().union(*R[1:]) if len(R) > 1 else set()
                if "saveexec" in op: w |= {("exec", 0)}
        self.w, self.r = w, r
    def states(self):
        if self.is_label or self.is_dir or not self.op: return 0
        if self.op == "s_nop": return int(self.ops[0], 0) + 1
        return 1

def need(p, c):
    n = 0
    vw = {x for x in p.w if x[0] in "va"}
    sw = {x for x in p.w if x[0] in ("s", "vcc")}
    if p.valu:
        if c.mfma and vw & c.r: n = max(n, 2)
        if p.trans and c.valu and not c.trans and vw & c.r: n = max(n, 1)
        if p.trans and c.valu and c.trans and vw & c.r: n = max(n, 1)
        if (c.dpp or c.perml) and vw & c.r: n = max(n, 2)
        if c.rfl and vw & c.r: n = max(n, 1)
        if (c.valu or c.mfma) and sw & c.r: n = max(n, 2)
        if c.rfl and sw & c.r: n = max(n, 4)
        if c.vmem and sw & c.r: n = max(n, 5)
        if ("exec", 0) in p.w: n = max(n, 5)
        if p.op.startswith("v_dot") and vw & (c.r | c.w):
            same_c = c.op == p.op and len(c.ops) == 4 and not (vw & (_regs(c.ops[1]) | _regs(c.ops[2])))
            if not same_c: n = max(n, 3)
    if p.mfma:
        passes = 8 if "32x32" in p.op else 4
        big = {4: 8, 8: 12}[passes]; ovl = {4: 6, 8: 10}[passes]; war = {4: 3, 8: 7}[passes]
        if c.mfma:
            if p.w & (c.A | c.B): n = max(n, big)
            if p.w & c.C and not (p.w == c.C and ("32x32" in c.op) == ("32x32" in p.op)): n = max(n, ovl)
            if p.w & c.w and not (p.w == c.C): n = max(n, big)
        else:
            if p.w & (c.r | c.w): n = max(n, big)
            if c.valu and p.C & c.w: n = max(n, war)
    if p.salu and ("m0", 0) in p.w and c.ldsdma: n = max(n, 1)
    if p.vmem and getattr(p, "store_wide", False) and p.data & c.w: n = max(n, 2)
    return n

class Asm:
    def __init__(self):
        self.L = []
    def __call__(self, s):
        for line in s.split("\n"):
            line = line.strip()
            if line: self.L.append(line)
    def label(self, name): self.L.append(name + ":")
    def finish(self):
        out, hist = [], []
        for line in self.L:
            ins = Ins(line)
            if ins.op:
                req = 0; dist = 0
                for p in reversed(hist):
                    k = need(p, ins)
                    if k > dist: req = max(req, k - dist)
                    dist += p.states()
                    if dist >= 16: break
                if req > 0:
                    nop = Ins(f"s_nop {req-1}")
                    out.append("    " + nop.text); hist.append(nop)
                hist.append(ins)
                if ins.op in ("s_branch", "s_endpgm"): hist = []
                out.append("    " + line)
            else:
                out.append(line)
        return "\n".join(out)
```

```python
import sys, struct
from asmlib import Asm

NAME = "adaLN_cond__sliding_block_cached__glu_gated_reglu__decode"
KNAME = NAME + "_kernel"

def f32(x): return "0x%08x" % struct.unpack("<I", struct.pack("<f", x))[0]

EPOCH = 0x0
RDY = 0x1000
HM = 0x4000
HA = 0x8000
HB = 0x10000
HD = 0x20000
HL = HD + 0x8000
HC = HL + 0x4000
LOC = 0x24000
HF = HC + 0x20000 + LOC
HFS = 7168
HP = 0xD0000
STAMP = 0x100000
WS_SIZE = 0x200000
LDS_BYTES = 151552
KB, VB, MRW, PB, MX, LS, QB, SCT = 0, 65536, 131072, 147456, 149504, 149568, 149760, 150848
WQ, WO, GA, RED = 0, 65536, 131072, 147456
W1, GU, DWN, SC, LNS = 0, 16384, 81920, 147456, 147776
REC, CSR, STAT = W1, W1 + 4096, W1 + 8192
AROW_O = 4096

LOG2E = 1.4426950408889634
CSC = (128 ** -0.5) * LOG2E
SPIN = 20000
MFMA = "v_mfma_f32_16x16x32_bf16"

class Gen:
    POISON = ("v_cmp_eq_u32", "-1")
    TAGBAD = ("v_cmp_ne_u32", "s14")

    def __init__(self, diag=False, wflag="nt", opts=None):
        self.a = Asm()
        self.diag = diag
        self.wf = wflag
        self.o = opts or {}
        self.nlab = 0
    def lab(self, p="L"):
        self.nlab += 1
        return f"{p}{self.nlab}"
    def stamp(self, k):
        if self.diag or self.o.get("amp") == k: self.a(f"s_memrealtime s[{64+2*k}:{65+2*k}]")
    def dump_max(self):
        a = self.a
        a("s_load_dwordx2 s[44:45], s[0:1], 96")
        a("s_mov_b32 s46, 256")
        a("s_mov_b32 s47, 0x20000")
        a("s_mov_b64 exec, 1")
        a("v_mov_b32 v1, 0")
        a("s_waitcnt lgkmcnt(0)")
        def put(slot, reg):
            a(f"v_mov_b32 v4, {reg}")
            a(f"buffer_atomic_umax v4, v1, s[44:47], 0 offen offset:{4*slot} sc1")
        a("s_not_b32 s60, s64")
        put(0, "s60"); put(1, "s64")
        a("s_lshr_b32 s5, s2, 3")
        a("s_cmp_ge_u32 s5, 24")
        a("s_cbranch_scc1 LdG")
        a("s_cmp_ge_u32 s5, 16")
        a("s_cbranch_scc1 LdW")
        for slot, k in ((6, 3), (7, 9), (8, 5), (15, 8)): put(slot, f"s{64+2*k}")
        a("s_endpgm")
        a.label("LdW")
        for slot, k in ((3, 2), (4, 3), (5, 4), (9, 6), (10, 7), (11, 8)): put(slot, f"s{64+2*k}")
        a("s_endpgm")
        a.label("LdG")
        for slot, k in ((2, 3), (12, 6), (13, 7), (14, 9)): put(slot, f"s{64+2*k}")
    def dump_stamps(self):
        if not self.diag: return
        if self.o.get("dmax"): return self.dump_max()
        a = self.a
        a("s_waitcnt lgkmcnt(0)")
        a("s_mov_b64 exec, 1")
        a("s_mul_i32 s60, s2, 5")
        a("s_add_u32 s60, s60, s3")
        a("s_lshl_b32 s60, s60, 6")
        a(f"s_add_u32 s60, s60, {STAMP}")
        a("v_mov_b32 v1, 0")
        for q in range(3):
            for i in range(4):
                a(f"v_mov_b32 v{4+i}, s{64+2*(4*q+i)}")
            a(f"buffer_store_dwordx4 v[4:7], v1, s[40:43], s60 offen offset:{16*q}")
            a("s_nop 1")
    def end(self, helper=False):
        self.a("s_branch Ldump" if self.diag and (not helper or self.o.get("hdump")) else "s_endpgm")
    def delay(self, key):
        n = self.o.get(key, 0)
        if not n: return
        a = self.a
        L = self.lab("Ld")
        a.label(L)
        a("s_memrealtime s[98:99]")
        a("s_waitcnt lgkmcnt(0)")
        a("s_sub_u32 s98, s98, s64")
        a(f"s_cmp_lt_u32 s98, {n}")
        a(f"s_cbranch_scc1 {L}")
    def guard(self, n, fall=True):
        L = self.lab("Lg")
        if fall: self.a(f"s_branch {L}")
        self.a(f".p2align 12, , {n}")
        self.a.label(L)
    def srd(self, d, p, size):
        a = self.a
        a(f"s_mov_b64 s[{d}:{d+1}], s[{p}:{p+1}]")
        a(f"s_mov_b32 s{d+2}, {size}")
        a(f"s_mov_b32 s{d+3}, 0x20000")
    def tag(self):
        self.a("s_mul_i32 s14, s14, 0x9E3779B1")
        self.a("s_add_u32 s14, s14, 0x7F4A7C15")
    def exec16(self, m):
        self.a(f"s_mov_b32 exec_lo, {(m << 16 | m):#x}")
        self.a(f"s_mov_b32 exec_hi, {(m << 16 | m):#x}")
    def poll(self, loads, checks, sleep=0, after=None):
        a = self.a
        L = self.lab("Lp"); D = self.lab("Lpd")
        n = len(loads)
        a(f"s_mov_b32 s12, {SPIN}")
        a.label(L)
        for l in loads: a(l)
        for i, (op, opd, r) in enumerate(checks):
            a(f"s_waitcnt vmcnt({n-1-i})")
            if i == 0:
                a(f"{op} s[10:11], {opd}, v{r}")
            else:
                a(f"{op} vcc, {opd}, v{r}")
                a("s_or_b64 s[10:11], s[10:11], vcc")
            if after: after(i)
        a("s_cmp_eq_u64 s[10:11], 0")
        a(f"s_cbranch_scc1 {D}")
        if sleep: a(f"s_sleep {sleep}")
        a("s_sub_u32 s12, s12, 1")
        a(f"s_cbranch_scc0 {L}")
        a.label(D)
    def spin(self, body, sleep=0, alt=None):
        a = self.a
        L = self.lab("Lp"); D = self.lab("Lpd")
        n = SPIN
        if alt:
            sregs, delta, every = alt
            for i, r in enumerate(sregs):
                a(f"s_mov_b32 s{96+2*i}, s{r}")
                a(f"s_add_u32 s{97+2*i}, s{r}, {delta}")
                a(f"s_mov_b32 s{r}, s{97+2*i}")
            n = SPIN * 4 | (every - 1)
        a(f"s_mov_b32 s12, {n}")
        a.label(L)
        body()
        a("s_cmp_eq_u64 s[10:11], 0")
        a(f"s_cbranch_scc1 {D}")
        if sleep: a(f"s_sleep {sleep}")
        if alt:
            a(f"s_and_b32 s13, s12, {every-1}")
            for i, r in enumerate(sregs): a(f"s_cselect_b32 s{r}, s{97+2*i}, s{96+2*i}")
        a("s_sub_u32 s12, s12, 1")
        a(f"s_cbranch_scc0 {L}")
        a.label(D)
    def sum_poll(self, loads, base, acc):
        a = self.a
        n = len(loads)
        def body():
            for l in loads: a(l)
            for i in range(1, n):
                a(f"s_waitcnt vmcnt({n-1-i})")
                src = base if i == 1 else acc
                for k in range(2): a(f"v_pk_add_f32 v[{acc+2*k}:{acc+1+2*k}], v[{src+2*k}:{src+1+2*k}], v[{base+4*i+2*k}:{base+1+4*i+2*k}]")
            a(f"v_cmp_u_f32 s[10:11], v{acc}, v{acc+1}")
            a(f"v_cmp_u_f32 vcc, v{acc+2}, v{acc+3}")
            a("s_or_b64 s[10:11], s[10:11], vcc")
        self.spin(body)
    def silu(self, regs, tmp):
        a = self.a
        for i, r in enumerate(regs): a(f"v_mul_f32 v{tmp+i}, {f32(-LOG2E)}, v{r}")
        for i, r in enumerate(regs): a(f"v_exp_f32 v{tmp+i}, v{tmp+i}")
        for i, r in enumerate(regs): a(f"v_add_f32 v{tmp+i}, 1.0, v{tmp+i}")
        for i, r in enumerate(regs): a(f"v_rcp_f32 v{tmp+i}, v{tmp+i}")
        for i, r in enumerate(regs): a(f"v_mul_f32 v{r}, v{r}, v{tmp+i}")
    def unpack(self, src, dst, n):
        for i in range(n):
            self.a(f"v_lshlrev_b32 v{dst+2*i}, 16, v{src+i}")
            self.a(f"v_and_b32 v{dst+2*i+1}, 0xffff0000, v{src+i}")
    def row_sum(self, r):
        for m in ("quad_perm:[1,0,3,2]", "quad_perm:[2,3,0,1]", "row_half_mirror", "row_mirror"):
            self.a(f"v_add_f32_dpp v{r}, v{r}, v{r} {m} row_mask:0xf bank_mask:0xf")
    def silu_frag(self, base):
        a = self.a
        a("v_bfe_u32 v10, v0, 4, 1")
        a("v_mul_u32_u24 v5, 144, v10")
        a("v_bfe_u32 v4, v0, 3, 1")
        a("v_lshl_add_u32 v5, v4, 6, v5")
        a("v_and_b32 v4, 3, v0")
        a("v_lshl_add_u32 v5, v4, 4, v5")
        a("v_bfe_u32 v4, v0, 2, 1")
        a("v_lshl_add_u32 v5, v4, 3, v5")
        a(f"v_add_u32 v5, {base}, v5")
    def silu_run(self):
        a = self.a
        self.unpack(28, 16, 2)
        self.silu([16, 17, 18, 19], 24)
        a("v_cvt_pk_bf16_f32 v28, v16, v17")
        a("v_cvt_pk_bf16_f32 v29, v18, v19")
        a("ds_write_b64 v5, v[28:29]")
    def c_voff(self, d):
        a = self.a
        a(f"v_bfe_u32 v{d}, v0, 4, 1")
        a(f"v_lshlrev_b32 v{d}, 10, v{d}")
        a("v_and_b32 v11, 15, v0")
        a(f"v_lshl_add_u32 v{d}, v11, 3, v{d}")
    def mfma(self, d, A, B, first):
        c = "0" if first else f"v[{d}:{d+3}]"
        self.a(f"{MFMA} v[{d}:{d+3}], v[{A}:{A+3}], v[{B}:{B+3}], {c}")
    def tr(self, r, va, off, second):
        self.a(f"ds_read_b64_tr_b16 v[{r}:{r+1}], v{va} offset:{off}")
        self.a(f"ds_read_b64_tr_b16 v[{r+2}:{r+3}], v{va} offset:{off+second}")
    def voff256(self, d, stride_sh, t0, t1):
        a = self.a
        a(f"v_lshrrev_b32 v{t0}, 4, v0")
        a(f"v_and_b32 v{t1}, 15, v0")
        a(f"v_lshlrev_b32 v{d}, 1, v{t0}")
        a(f"v_xor_b32 v{d}, v{t1}, v{d}")
        a(f"v_lshlrev_b32 v{d}, 4, v{d}")
        a(f"v_lshl_add_u32 v{d}, v{t0}, {stride_sh}, v{d}")
        a(f"v_xor_b32 v{d+1}, 0x80, v{d}")
    def voff128(self, d, stride, t0, t1):
        a = self.a
        a(f"v_lshrrev_b32 v{t0}, 3, v0")
        a(f"v_and_b32 v{d}, 6, v{t0}")
        a(f"v_and_b32 v{t1}, 7, v0")
        a(f"v_xor_b32 v{d}, v{d}, v{t1}")
        a(f"v_mul_u32_u24 v{t0}, {stride}, v{t0}")
        a(f"v_lshl_add_u32 v{d}, v{d}, 4, v{t0}")
    def traddr256(self, d, n, base, t0, t1, first=None):
        a = self.a
        a(f"v_lshrrev_b32 v{t0}, 2, v0")
        a(f"v_and_b32 v{d}, 7, v{t0}")
        a(f"v_lshlrev_b32 v{d}, 5, v{d}")
        a(f"v_lshl_add_u32 v{d}, v{t0}, 8, v{d}")
        a(f"v_and_b32 v{t1}, 3, v0")
        a(f"v_lshl_add_u32 v{d}, v{t1}, 3, v{d}")
        if first: a(f"v_xor_b32 v{d}, {first}, v{d}")
        a(f"v_add_u32 v{d}, {base}, v{d}")
        for i in range(1, n): a(f"v_xor_b32 v{d+i}, {32*i}, v{d}")
    def traddr128(self, d, base, t0, t1, grp_sh=10, n=4):
        a = self.a
        a(f"v_bfe_u32 v{t0}, v0, 2, 3")
        a(f"v_bfe_u32 v{d}, v0, 3, 2")
        a(f"v_lshlrev_b32 v{d}, 5, v{d}")
        a(f"v_lshl_add_u32 v{d}, v{t0}, 7, v{d}")
        a(f"v_lshrrev_b32 v{t0}, 5, v0")
        a(f"v_lshl_add_u32 v{d}, v{t0}, {grp_sh}, v{d}")
        a(f"v_and_b32 v{t1}, 3, v0")
        a(f"v_lshl_add_u32 v{d}, v{t1}, 3, v{d}")
        if base is not None: a(f"v_add_u32 v{d}, {base}, v{d}")
        for i in range(1, n): a(f"v_xor_b32 v{d+i}, {32*i}, v{d}")

    def prologue(self):
        a = self.a
        a("s_cmp_ge_u32 s2, 256")
        a("s_cbranch_scc1 Lexit")
        a("s_load_dwordx16 s[16:31], s[0:1], 0")
        a("s_load_dwordx8 s[32:39], s[0:1], 64")
        a("s_load_dwordx2 s[40:41], s[0:1], 104")
        if self.diag:
            for k in range(1, 12): a(f"s_mov_b32 s{64+2*k}, 0")
        self.stamp(0)
        if self.o.get("padto"): a("s_memrealtime s[96:97]")
        a("s_getpc_b64 s[56:57]")
        a.label("Lpc0")
        a("s_lshr_b32 s5, s2, 3")
        a("v_lshrrev_b32 v1, 6, v0")
        a("s_mul_i32 s6, s5, 640")
        a("v_lshl_add_u32 v2, v1, 7, s6")
        a("v_min_u32 v2, Lcode_end-Lpc0-4, v2")
        a("global_load_dword v239, v2, s[56:57]")
        a("v_and_b32 v0, 63, v0")
        a("s_and_b32 s4, s2, 7")
        a("v_readfirstlane_b32 s3, v1")
        a(f"s_mov_b32 s42, {WS_SIZE}")
        a("s_mov_b32 s43, 0x20000")
        a("s_mov_b32 s47, 0x20000")
        a("s_mov_b32 s51, 0x20000")
        a("s_lshl_b32 s7, s3, 14")
        a("s_cmp_ge_u32 s5, 24")
        a("s_cbranch_scc1 LG0")
        a("s_cmp_eq_u32 s3, 4")
        a("s_cbranch_scc1 LH0")
        self.voff256(6, 8, 1, 8)
        a("s_mov_b32 m0, s7")
        a("s_cmp_ge_u32 s5, 16")
        a("s_cbranch_scc1 LW0")

    def tw_early(self):
        a, wf = self.a, self.wf
        a("s_and_b32 s6, s5, 8")
        a("s_add_u32 s6, s6, s4")
        a("s_lshl_b32 s6, s6, 21")
        a("s_and_b32 s8, s5, 7")
        a("s_lshl_b32 s8, s8, 16")
        a("s_add_u32 s6, s6, s8")
        a("s_add_u32 s6, s6, s7")
        a(f"s_add_u32 s6, s6, {6144*256}")
        a("v_xor_b32 v2, v8, v1")
        a("v_lshlrev_b32 v2, 4, v2")
        a("v_lshl_add_u32 v2, v1, 8, v2")
        a("v_xor_b32 v3, 64, v2")
        a("v_xor_b32 v4, 0x80, v2")
        a("v_xor_b32 v5, 0xc0, v2")
        a("s_mov_b32 s8, s6")
        a("s_add_u32 s9, s6, 16384")
        a("s_mov_b32 s46, 0x2000000")
        a("s_mov_b32 s50, 0x2000000")
        thr = self.o.get("thr", 0)
        thk = self.o.get("thk", 2)
        if thr: a(f"s_add_u32 s10, s6, {4096*thr}")
        a("s_waitcnt lgkmcnt(0)")
        a("s_mov_b64 s[44:45], s[18:19]")
        a("s_mov_b64 s[48:49], s[20:21]")
        self.delay("tdel")
        if thr:
            a.label("LTWt")
            for i in range(4):
                a(f"buffer_load_dwordx4 v{2+i}, s[44:47], s8 offen offset:{1024*i} {wf} lds")
                a(f"s_waitcnt vmcnt({thk})")
            a("s_add_u32 m0, m0, 4096")
            a("s_add_u32 s8, s8, 4096")
            a("s_cmp_lt_u32 s8, s10")
            a("s_cbranch_scc1 LTWt")
        cap = self.o.get("cap", 7)
        if thr < 4:
            a.label("LTWk")
            for i in range(4):
                a(f"buffer_load_dwordx4 v{2+i}, s[44:47], s8 offen offset:{1024*i} {wf} lds")
                if cap: a(f"s_waitcnt vmcnt({cap})")
            a("s_add_u32 m0, m0, 4096")
            a("s_add_u32 s8, s8, 4096")
            a("s_cmp_lt_u32 s8, s9")
            a("s_cbranch_scc1 LTWk")
        a("s_branch LTW1")

    def tw_issue(self):
        a, wf = self.a, self.wf
        cap = self.o.get("cap", 7)
        a.label("LTHp")
        a("s_branch LTH")
        a.label("LTW1")
        a(f"s_add_u32 m0, s7, {VB}")
        a("s_mov_b32 s8, s6")
        a.label("LTWv")
        for i in range(4):
            a(f"buffer_load_dwordx4 v{6+(i&1)}, s[48:51], s8 offen offset:{1024*i} {wf} lds")
            if cap: a(f"s_waitcnt vmcnt({cap})")
        a("s_add_u32 m0, m0, 4096")
        a("s_add_u32 s8, s8, 4096")
        a("s_cmp_lt_u32 s8, s9")
        a("s_cbranch_scc1 LTWv")

    def ww_early(self):
        a, wf = self.a, self.wf
        a.label("LW0")
        a("s_and_b32 s8, s5, 4")
        a("s_add_u32 s8, s8, s3")
        a("s_lshl_b32 s9, s8, 19")
        a("s_lshl_b32 s15, s4, 10")
        a("s_add_u32 s9, s9, s15")
        a("s_and_b32 s6, s5, 3")
        a("s_lshl_b32 s15, s6, 8")
        a("s_add_u32 s9, s9, s15")
        a("v_mul_u32_u24 v2, 0x1f00, v1")
        a("v_add_u32 v6, v6, v2")
        a("v_add_u32 v7, v7, v2")
        a("s_add_u32 s13, s7, 16384")
        a(f"s_mov_b32 s46, {512*8192}")
        a("s_waitcnt lgkmcnt(0)")
        a("s_mov_b64 s[44:45], s[22:23]")
        self.delay("wdel")
        a("s_load_dword s14, s[40:41], 0")
        a.label("LWq")
        for i in range(2):
            a(f"buffer_load_dwordx4 v{6+i}, s[44:47], s9 offen {wf} lds")
            a("s_add_u32 m0, m0, 1024")
            a("s_add_u32 s9, s9, 32768")
        a("s_cmp_lt_u32 m0, s13")
        a("s_cbranch_scc1 LWq")
        a("s_branch LW2")
        a.label("LH0")
        a("s_cmp_ge_u32 s5, 16")
        a("s_cbranch_scc0 LTHp")
        a("s_branch LWHp")

    def g_early(self):
        a, wf = self.a, self.wf
        a.label("LG0")
        a("s_sub_u32 s5, s5, 24")
        a("s_mov_b32 s50, 2048")
        a("s_cmp_eq_u32 s3, 4")
        a("s_cbranch_scc0 LGW")
        self.c_voff(4)
        a("s_lshl_b32 s9, s5, 7")
        a("s_waitcnt lgkmcnt(0)")
        a("s_mov_b64 s[48:49], s[34:35]")
        a("buffer_load_dwordx2 v[28:29], v4, s[48:51], s9 offen")
        a("s_load_dword s14, s[40:41], 0")
        self.silu_frag(SC)
        a("s_waitcnt vmcnt(0)")
        self.silu_run()
        a("s_waitcnt lgkmcnt(0)")
        a("s_barrier")
        a("s_barrier")
        a("s_branch LGH2")
        a.label("LGW")
        a("v_lshlrev_b32 v6, 4, v0")
        self.voff128(2, 6144, 1, 3)
        a("s_lshl_b32 s9, s5, 2")
        a("s_add_u32 s9, s9, s3")
        a(f"s_mul_i32 s9, s9, {16*6144}")
        a("s_lshl_b32 s6, s4, 7")
        a("s_add_u32 s9, s9, s6")
        a("s_lshl_b32 s13, s3, 5")
        a("s_add_u32 s6, s6, s13")
        a("v_and_b32 v12, 1, v0")
        a("v_and_b32 v13, 48, v0")
        a("v_lshrrev_b32 v4, 1, v13")
        a("v_lshl_add_u32 v4, v12, 10, v4")
        a("s_lshr_b32 m0, s7, 2")
        a(f"s_mov_b32 s54, {512*6144}")
        a("s_mov_b32 s55, 0x20000")
        a("s_waitcnt lgkmcnt(0)")
        a("s_mov_b64 s[48:49], s[16:17]")
        a("s_mov_b64 s[52:53], s[36:37]")
        a("buffer_load_dwordx4 v[24:27], v6, s[48:51], 0 offen")
        a("buffer_load_dwordx4 v[28:31], v6, s[48:51], 0 offen offset:1024")
        a("buffer_load_dwordx2 v[20:21], v4, s[48:51], s6 offen")
        for i in range(2):
            a(f"buffer_load_dwordx4 v2, s[52:55], s9 offen {wf} lds")
            a(f"buffer_load_dwordx4 v2, s[52:55], s9 offen offset:1024 {wf} lds")
            if i == 0:
                a("s_add_u32 m0, m0, 2048")
                a(f"s_add_u32 s9, s9, {8*6144}")
        a("s_load_dword s14, s[40:41], 0")
        self.traddr128(8, None, 1, 3, grp_sh=11, n=1)
        a("v_xor_b32 v8, s13, v8")
        a("v_mul_u32_u24 v6, 144, v12")
        a("v_add_u32 v6, v6, v13")
        a(f"v_add_u32 v6, {SC}, v6")
        a("v_lshlrev_b32 v7, 4, v12")
        a("v_lshl_add_u32 v13, v13, 1, v7")
        a("s_lshl_b32 s8, s4, 12")
        a("s_lshl_b32 s9, s3, 10")
        a("s_add_u32 s8, s8, s9")
        a("s_lshl_b32 s9, s5, 7")
        a("s_add_u32 s8, s8, s9")
        a(f"s_add_u32 s8, s8, {HA}")
        a("s_cmp_eq_u32 s5, 0")
        a("s_cselect_b32 s9, 1.0, 0")
        for i in range(4): a(f"v_mov_b32 v{44+i}, s9")
        a("s_mov_b32 s9, 0x3f803f80")
        a("v_lshlrev_b32 v7, 7, v12")
        a("s_waitcnt vmcnt(4)")
        self.stamp(11)
        for b in range(2):
            a(f"v_dot2_f32_bf16 v{48+b}, v{24+4*b}, s9, 0")
            a(f"v_dot2_f32_bf16 v{50+b}, v{24+4*b}, v{24+4*b}, 0")
        for i in range(1, 4):
            for b in range(2):
                a(f"v_dot2_f32_bf16 v{48+b}, v{24+4*b+i}, s9, v{48+b}")
                a(f"v_dot2_f32_bf16 v{50+b}, v{24+4*b+i}, v{24+4*b+i}, v{50+b}")
        a("v_permlane32_swap_b32 v48, v49")
        a("v_permlane32_swap_b32 v50, v51")
        a("v_add_f32 v48, v48, v49")
        a("v_add_f32 v50, v50, v51")
        a("v_permlane16_swap_b32 v48, v50")
        a("v_add_f32 v48, v48, v50")
        self.row_sum(48)
        a("ds_bpermute_b32 v50, v7, v48")
        a("ds_bpermute_b32 v51, v7, v48 offset:64")
        a(f"v_mov_b32 v52, {f32(1e-5)}")
        a("s_waitcnt lgkmcnt(0)")
        self.tag()
        a(f"v_mul_f32 v50, {f32(1/512)}, v50")
        a(f"v_fmamk_f32 v51, v51, {f32(1/512)}, v52")
        a("v_fma_f32 v51, -v50, v50, v51")
        a("v_rsq_f32 v51, v51")
        self.unpack(20, 16, 2)
        for i in range(4): a(f"v_sub_f32 v{16+i}, v{16+i}, v50")
        for i in range(4): a(f"v_mul_f32 v{16+i}, v{16+i}, v51")
        a("v_mov_b32 v58, s14")
        a("v_mov_b32 v59, s14")
        self.stamp(1)
        a("s_waitcnt vmcnt(0)")
        a("s_barrier")
        self.stamp(2)
        for ks in range(2):
            a(f"ds_read_b128 v[{32+4*ks}:{35+4*ks}], v6 offset:{64*ks}")
            for seg in range(2): self.tr(64 + 8 * ks + 4 * seg, 8, W1 + 8192 * ks + 1024 * seg, 4096)
        a("s_waitcnt lgkmcnt(5)")
        self.mfma(40, 64, 32, True)
        self.mfma(44, 68, 32, False)
        a("s_waitcnt lgkmcnt(0)")
        self.mfma(40, 72, 36, False)
        self.mfma(44, 76, 36, False)
        self.exec16(3)
        for k in range(2): a(f"v_pk_fma_f32 v[{40+2*k}:{41+2*k}], v[{16+2*k}:{17+2*k}], v[{44+2*k}:{45+2*k}], v[{40+2*k}:{41+2*k}]")
        a("v_cvt_pk_bf16_f32 v56, v40, v41")
        a("v_cvt_pk_bf16_f32 v57, v42, v43")
        a("buffer_store_dwordx4 v[56:59], v13, s[40:43], s8 offen sc1")
        a("s_mov_b64 exec, -1")
        self.stamp(3)
        a("s_barrier")

    def rdy_publish(self, vb, jreg):
        a = self.a
        for i in range(4): a(f"v_mov_b32 v{vb+i}, s14")
        a(f"v_mov_b32 v{vb+4}, 0")
        a("s_lshl_b32 s15, s4, 5")
        a(f"s_add_u32 s15, s15, {jreg}")
        a("s_lshl_b32 s15, s15, 4")
        a(f"s_add_u32 s15, s15, {RDY}")
        a("s_mov_b64 exec, 1")
        a(f"buffer_store_dwordx4 v[{vb}:{vb+3}], v{vb+4}, s[40:43], s15 offen sc1")
        a("s_mov_b64 exec, -1")
    def rdy_load(self):
        self.a("buffer_load_dword v230, v229, s[40:43], s27 offen sc1")
    def rdy_check(self):
        a = self.a
        L = self.lab("Lok")
        a("v_cmp_ne_u32 vcc, s14, v230")
        a(f"s_cbranch_vccz {L}")
        self.poll(["buffer_load_dword v230, v229, s[40:43], s27 offen sc1"], [(*self.TAGBAD, 230)], sleep=2)
        a.label(L)

    def g_index(self):
        a = self.a
        a("s_lshr_b32 s53, s4, 1")
        a("s_mul_i32 s53, s53, 14")
        a("s_and_b32 s52, s4, 1")
        a("s_lshl_b32 s54, s52, 3")
        a("s_add_u32 s53, s53, s54")
        a("s_add_u32 s53, s53, s5")
        a("s_lshl_b32 s52, s52, 1")
        a("s_sub_u32 s52, 8, s52")
        a("s_cmp_ge_u32 s5, s52")

    def t_helper(self):
        a, wf = self.a, self.wf
        a.label("LTH")
        a("s_setprio 3")
        self.voff256(6, 8, 1, 8)
        a(f"v_mul_u32_u24 v2, {6144-256}, v1")
        a("v_add_u32 v6, v6, v2")
        a("v_add_u32 v7, v7, v2")
        self.c_voff(4)
        a("s_and_b32 s6, s5, 7")
        a("s_lshl_b32 s9, s6, 7")
        a(f"s_mul_i32 s8, s6, {64*6144}")
        a("s_lshl_b32 s52, s4, 1")
        a("s_lshr_b32 s13, s5, 3")
        a("s_add_u32 s52, s52, s13")
        a("s_lshl_b32 s13, s52, 8")
        a("s_add_u32 s8, s8, s13")
        a("s_add_u32 s8, s8, 2048")
        a(f"s_mov_b32 m0, {MRW}")
        a(f"s_mov_b32 s46, {512*6144}")
        a("s_mov_b32 s50, 2048")
        a("s_waitcnt lgkmcnt(0)")
        a("s_mov_b64 s[44:45], s[36:37]")
        a("s_mov_b64 s[48:49], s[34:35]")
        self.delay("hdel")
        a("s_load_dword s14, s[40:41], 0")
        a("buffer_load_dwordx2 v[28:29], v4, s[48:51], s9 offen")
        a.label("LTHm")
        for i in range(2):
            a(f"buffer_load_dwordx4 v{6+i}, s[44:47], s8 offen {wf} lds")
            a("s_add_u32 m0, m0, 1024")
            a(f"s_add_u32 s8, s8, {4*6144}")
        a(f"s_cmp_lt_u32 m0, {MRW+16384}")
        a("s_cbranch_scc1 LTHm")
        for i in range(4): a(f"v_mov_b32 v{40+i}, -1")
        a("v_lshlrev_b32 v2, 4, v0")
        a("s_lshl_b32 s6, s4, 4")
        a("s_add_u32 s6, s6, s5")
        a("s_lshl_b32 s54, s6, 10")
        a(f"s_add_u32 s54, s54, {HC}")
        a("s_lshl_b32 s55, s6, 7")
        a(f"s_add_u32 s55, s55, {HL}")
        a("buffer_store_dwordx4 v[40:43], v2, s[40:43], s54 offen sc1")
        a(f"s_add_u32 s54, s54, {LOC}")
        a("buffer_store_dwordx4 v[40:43], v2, s[40:43], s54 offen sc1")
        a("s_mov_b64 exec, 0xff")
        a("buffer_store_dwordx4 v[40:43], v2, s[40:43], s55 offen sc1")
        a(f"s_add_u32 s55, s55, {LOC}")
        a("buffer_store_dwordx4 v[40:43], v2, s[40:43], s55 offen sc1")
        a("s_mov_b64 exec, -1")
        self.silu_frag(SCT)
        a("v_and_b32 v12, 1, v0")
        a("v_and_b32 v13, 48, v0")
        a("v_mul_u32_u24 v6, 144, v12")
        a("v_add_u32 v6, v6, v13")
        a(f"v_add_u32 v6, {SCT}, v6")
        a("v_lshlrev_b32 v7, 4, v12")
        a("v_lshl_add_u32 v7, v13, 1, v7")
        self.traddr256(8, 8, MRW, 3, 4)
        a("s_lshl_b32 s8, s52, 13")
        a("s_add_u32 s8, s8, s9")
        a(f"s_add_u32 s8, s8, {HP}")
        a("s_add_u32 s9, s8, 4096")
        a("s_lshl_b32 s15, s52, 12")
        a(f"s_add_u32 s53, s15, {HB}")
        a("v_lshrrev_b32 v4, 5, v0")
        a("v_mul_u32_u24 v4, 272, v4")
        a("v_and_b32 v3, 31, v0")
        a("v_lshl_add_u32 v4, v3, 3, v4")
        a(f"v_add_u32 v4, {QB}, v4")
        a("s_waitcnt vmcnt(20)")
        self.silu_run()
        for ks in range(2): a(f"ds_read_b128 v[{32+4*ks}:{35+4*ks}], v6 offset:{64*ks}")
        a("s_waitcnt vmcnt(0) lgkmcnt(0)")
        self.tag()
        self.rdy_publish(44, "s5")
        a("buffer_load_dwordx4 v[232:235], v2, s[40:43], s54 offen sc1")
        a("s_mov_b64 exec, 1")
        a("buffer_load_dword v236, v2, s[40:43], s55 offen sc1")
        a("s_mov_b64 exec, -1")
        self.stamp(1)
        for ks in range(2):
            for t in range(8): self.tr(64 + 32 * ks + 4 * t, 8 + t, 8192 * ks, 4096)
        a("s_waitcnt lgkmcnt(0)")
        for ks in range(2):
            for t in range(8): self.mfma(128 + 4 * t, 64 + 32 * ks + 4 * t, 32 + 4 * ks, ks == 0)
        for t in range(8):
            a(f"v_cvt_pk_bf16_f32 v{128+4*t}, v{128+4*t}, v{129+4*t}")
            a(f"v_cvt_pk_bf16_f32 v{129+4*t}, v{130+4*t}, v{131+4*t}")
            a(f"v_mov_b32 v{130+4*t}, s14")
        self.exec16(3)
        for t in range(8): a(f"buffer_store_dwordx4 v[{128+4*t}:{131+4*t}], v7, s[40:43], s{8+(t>>2)} offen offset:{1024*(t&3)} sc1")
        a("s_mov_b64 exec, -1")
        self.stamp(2)
        self.poll([f"buffer_load_dwordx4 v[{40+4*i}:{43+4*i}], v2, s[40:43], s53 offen offset:{1024*i} sc1" for i in range(4)],
                  [(*self.TAGBAD, 42 + 4 * i) for i in range(4)], sleep=self.o.get("qsleep", 0),
                  after=lambda i: self.unpack(40 + 4 * i, 64 + 4 * i, 2))
        for i in range(4): a(f"v_pk_add_f32 v[{64+2*i}:{65+2*i}], v[{64+2*i}:{65+2*i}], v[{72+2*i}:{73+2*i}]")
        for i in range(4): a(f"v_cvt_pk_bf16_f32 v{56+i}, v{64+2*i}, v{65+2*i}")
        a("ds_write_b64 v4, v[56:57]")
        a("ds_write_b64 v4, v[58:59] offset:544")
        a("s_waitcnt lgkmcnt(0)")
        self.stamp(3)
        a("s_barrier")
        self.end(True)

    def tw_main(self):
        a = self.a
        self.stamp(1)
        a("s_load_dword s14, s[40:41], 0")
        if self.o.get("kv_stamp"):
            a("s_waitcnt vmcnt(0)")
            self.stamp(9)
        a("v_xor_b32 v3, v8, v1")
        a("v_lshlrev_b32 v3, 4, v3")
        a("v_lshl_add_u32 v3, v8, 8, v3")
        a("v_add_u32 v8, s7, v3")
        a("v_xor_b32 v9, 64, v8")
        a("v_xor_b32 v10, 0x80, v8")
        a("v_xor_b32 v11, 0xc0, v8")
        a("s_waitcnt vmcnt(16)")
        for t in range(4):
            for ks in range(4):
                r = 64 + 16 * t + 4 * ks
                a(f"ds_read_b128 v[{r}:{r+3}], v{8+ks} offset:{4096*t}")
        a("s_lshl_b32 s8, s3, 6")
        self.traddr256(12, 2, VB, 3, 5, first="s8")
        a("v_mul_u32_u24 v20, 272, v5")
        a("v_lshl_add_u32 v20, v1, 4, v20")
        a(f"v_add_u32 v20, {QB}, v20")
        a("v_lshlrev_b32 v14, 6, v5")
        a("v_lshl_add_u32 v14, v1, 4, v14")
        a(f"v_add_u32 v14, {PB}, v14")
        a("s_lshl_b32 s9, s3, 9")
        a("v_add_u32 v15, s9, v14")
        a("v_lshlrev_b32 v16, 4, v5")
        a(f"v_add_u32 v16, {MX}, v16")
        a("s_lshl_b32 s9, s3, 2")
        a("v_add_u32 v17, s9, v16")
        a("v_lshlrev_b32 v18, 8, v5")
        a("v_lshl_add_u32 v18, v1, 4, v18")
        a("v_lshlrev_b32 v19, 2, v5")
        a("s_lshl_b32 s6, s4, 4")
        a("s_add_u32 s6, s6, s5")
        a("s_lshl_b32 s9, s6, 10")
        a("s_add_u32 s8, s8, s9")
        a(f"s_add_u32 s8, s8, {HC}")
        a("s_lshl_b32 s52, s6, 7")
        a(f"s_add_u32 s52, s52, {HL}")
        a(f"s_add_u32 s53, s8, {LOC}")
        a(f"s_add_u32 s54, s52, {LOC}")
        a(f"s_mov_b32 s10, {f32(CSC)}")
        self.stamp(2)
        a("s_barrier")
        for ks in range(4): a(f"ds_read_b128 v[{24+4*ks}:{27+4*ks}], v20 offset:{64*ks}")
        self.stamp(3)
        a("s_waitcnt lgkmcnt(0)")
        for ks in range(4):
            for t in range(4): self.mfma(40 + 4 * t, 64 + 16 * t + 4 * ks, 24 + 4 * ks, ks == 0)
        a("v_max3_f32 v224, v40, v41, v42")
        a("v_max3_f32 v225, v43, v44, v45")
        a("v_max3_f32 v226, v46, v47, v48")
        a("v_max3_f32 v227, v49, v50, v51")
        a("v_max3_f32 v228, v52, v53, v54")
        a("v_max3_f32 v224, v224, v225, v226")
        a("v_max3_f32 v227, v227, v228, v55")
        a("v_max_f32 v224, v224, v227")
        def xrow(op, r):
            a(f"v_mov_b32 v225, v{r}")
            a(f"v_permlane16_swap_b32 v{r}, v225")
            a(f"{op} v{r}, v{r}, v225")
            a(f"v_mov_b32 v225, v{r}")
            a(f"v_permlane32_swap_b32 v{r}, v225")
            a(f"{op} v{r}, v{r}, v225")
        xrow("v_max_f32", 224)
        a("ds_write_b32 v17, v224")
        a("s_waitcnt lgkmcnt(0)")
        a("s_barrier")
        a("ds_read_b128 v[224:227], v16")
        a("s_waitcnt lgkmcnt(0)")
        a("v_max3_f32 v224, v224, v225, v226")
        a("v_max_f32 v224, v224, v227")
        a(f"v_mul_f32 v230, {f32(-CSC)}, v224")
        for i in range(8): a(f"v_pk_fma_f32 v[{40+2*i}:{41+2*i}], v[{40+2*i}:{41+2*i}], s[10:11], v[230:231] op_sel_hi:[1,0,0]")
        for i in range(16): a(f"v_exp_f32 v{40+i}, v{40+i}")
        for i in range(8): a(f"v_cvt_pk_bf16_f32 v{56+i}, v{40+2*i}, v{41+2*i}")
        self.exec16(15)
        a("ds_write_b128 v15, v[56:59]")
        a("ds_write_b128 v15, v[60:63] offset:256")
        a("s_mov_b64 exec, -1")
        for i in range(4): a(f"v_pk_add_f32 v[{40+2*i}:{41+2*i}], v[{40+2*i}:{41+2*i}], v[{48+2*i}:{49+2*i}]")
        for i in range(2): a(f"v_pk_add_f32 v[{40+2*i}:{41+2*i}], v[{40+2*i}:{41+2*i}], v[{44+2*i}:{45+2*i}]")
        a("v_pk_add_f32 v[40:41], v[40:41], v[42:43]")
        a("v_add_f32 v231, v40, v41")
        xrow("v_add_f32", 231)
        a(f"ds_write_b32 v17, v231 offset:{LS-MX}")
        a("s_waitcnt vmcnt(8) lgkmcnt(0)")
        a("s_barrier")
        self.stamp(4)
        a(f"ds_read_b128 v[24:27], v16 offset:{LS-MX}")
        for k in range(8): a(f"ds_read_b128 v[{64+4*k}:{67+4*k}], v14 offset:{256*k}")
        def vr(k):
            for t in range(2): self.tr(128 + 8 * k + 4 * t, 12 + t, 8192 * k, 4096)
        def pv(k, first=False):
            for t in range(2): self.mfma(192 + 4 * t, 128 + 8 * k + 4 * t, 64 + 4 * k, first)
        for k in (0, 2, 4, 6): vr(k)
        a("s_waitcnt lgkmcnt(12)")
        pv(0, True)
        a("v_pk_add_f32 v[24:25], v[24:25], v[26:27]")
        a("v_add_f32 v24, v24, v25")
        a("s_waitcnt lgkmcnt(8)")
        pv(2)
        a("v_rcp_f32 v34, v24")
        a("v_log_f32 v35, v24")
        a("s_waitcnt lgkmcnt(4)")
        pv(4)
        a("v_sub_f32 v35, v35, v230")
        a("s_waitcnt lgkmcnt(0)")
        pv(6)
        a("s_waitcnt vmcnt(0)")
        a("s_barrier")
        self.stamp(9 if not self.o.get("kv_stamp") else 10)
        for k in (1, 3, 5, 7): vr(k)
        a("s_cmp_eq_u32 s3, 0")
        a("s_cbranch_scc0 LTWl")
        a("s_mov_b64 exec, 15")
        if self.o.get("loc", 1): a("buffer_store_dword v35, v19, s[40:43], s54 offen")
        a("buffer_store_dword v35, v19, s[40:43], s52 offen sc1")
        a("s_mov_b64 exec, -1")
        a.label("LTWl")
        for i, k in enumerate((1, 3, 5, 7)):
            a(f"s_waitcnt lgkmcnt({12-4*i})")
            pv(k)
        self.exec16(15)
        for i in range(4): a(f"v_pk_mul_f32 v[{192+2*i}:{193+2*i}], v[{192+2*i}:{193+2*i}], v[34:35] op_sel_hi:[1,0]")
        for i in range(4): a(f"v_cvt_pk_bf16_f32 v{36+i}, v{192+2*i}, v{193+2*i}")
        if self.o.get("loc", 1): a("buffer_store_dwordx4 v[36:39], v18, s[40:43], s53 offen")
        a("buffer_store_dwordx4 v[36:39], v18, s[40:43], s8 offen sc1")
        a("s_mov_b64 exec, -1")
        self.stamp(5)
        a("s_cmp_lt_u32 s5, 4")
        a("s_cbranch_scc0 LTWe")
        a("s_cmp_eq_u32 s3, 1")
        a("s_cbranch_scc0 LTWe")
        a("s_lshl_b32 s6, s4, 2")
        a("s_add_u32 s6, s6, s5")
        self.srd(44, 16, 2048)
        self.srd(48, 38, 2048)
        a("v_bfe_u32 v2, v0, 2, 1")
        a("v_and_b32 v3, 3, v0")
        a("v_lshlrev_b32 v4, 3, v3")
        a("v_lshl_add_u32 v5, v2, 10, v4")
        a("v_lshlrev_b32 v6, 1, v5")
        a("v_lshrrev_b32 v8, 3, v0")
        a("v_lshl_add_u32 v7, v8, 12, v6")
        a("v_lshlrev_b32 v9, 4, v0")
        a("s_lshl_b32 s7, s6, 5")
        a("s_lshl_b32 s8, s6, 6")
        a(f"s_add_u32 s9, s8, {HD}")
        a(f"s_add_u32 s52, s8, {HM}")
        a(f"s_add_u32 s53, s8, {HM+3*4096}")
        a(f"s_mul_i32 s54, s6, {HFS}")
        a(f"s_add_u32 s54, s54, {HF}")
        a("s_add_u32 s55, s54, 4096")
        a("buffer_load_dwordx2 v[10:11], v5, s[44:47], s7 offen")
        self.tag()
        a(f"s_mov_b32 s27, {RDY}")
        self.poll([f"buffer_load_dword v{40+i}, v9, s[40:43], s27 offen offset:{1024*i} sc1" for i in range(4)]
                  + ["buffer_load_dwordx4 v[12:15], v6, s[40:43], s52 offen sc1", "buffer_load_dwordx4 v[16:19], v6, s[40:43], s53 offen sc1"],
                  [(*self.TAGBAD, 40 + i) for i in range(4)] + [(*self.TAGBAD, 14), (*self.TAGBAD, 18)], sleep=2)
        self.poll(["buffer_load_dwordx4 v[24:27], v7, s[40:43], s9 offen sc1"], [(*self.POISON, 24)], sleep=2)
        self.stamp(6)
        red8 = self.red8
        red8(24)
        self.unpack(10, 28, 2)
        self.unpack(12, 32, 2)
        self.unpack(16, 36, 2)
        for i in range(4): a(f"v_fmac_f32 v{28+i}, v{24+i}, v{32+i}")
        self.sum_poll([f"buffer_load_dwordx4 v[{64+4*i}:{67+4*i}], v9, s[40:43], s{54+(i>>2)} offen offset:{1024*(i&3)} sc1" for i in range(7)], 64, 56)
        self.stamp(7)
        red8(56)
        for i in range(4): a(f"v_fmac_f32 v{28+i}, v{56+i}, v{36+i}")
        a("v_cvt_pk_bf16_f32 v10, v28, v29")
        a("v_cvt_pk_bf16_f32 v11, v30, v31")
        a("s_mov_b64 exec, 0xff")
        a("buffer_store_dwordx2 v[10:11], v5, s[48:51], s7 offen")
        self.stamp(8)
        a("s_cmp_eq_u32 s6, 0")
        a("s_cbranch_scc0 LTWe")
        a("s_mov_b64 exec, 1")
        a("v_mov_b32 v12, s14")
        a("v_mov_b32 v13, 0")
        a(f"buffer_store_dword v12, v13, s[40:43], 0 offen offset:{EPOCH} sc1")
        if self.o.get("padto"):
            a(f"s_mov_b32 s100, {self.o['padto']}")
            if self.o.get("amp"):
                a("s_waitcnt lgkmcnt(0)")
                a(f"s_sub_u32 s98, s{64+2*self.o['amp']}, s96")
                a("s_mul_i32 s98, s98, 10")
                a("s_add_u32 s100, s100, s98")
            a.label("Lpad")
            a("s_memrealtime s[98:99]")
            a("s_waitcnt lgkmcnt(0)")
            a("s_sub_u32 s98, s98, s96")
            a("s_cmp_lt_u32 s98, s100")
            a("s_cbranch_scc1 Lpad")
        a.label("LTWe")
        self.end()

    def ww_main(self):
        a, wf = self.a, self.wf
        a.label("LWHp")
        a("s_branch LWH2")
        a.label("LW2")
        self.stamp(1)
        self.traddr256(8, 8, "s7", 3, 5)
        a("s_lshr_b32 s58, s7, 2")
        a(f"s_add_u32 s58, s58, {GA}")
        a("v_and_b32 v3, 7, v0")
        a("v_lshlrev_b32 v3, 7, v3")
        a("v_lshl_add_u32 v3, v1, 5, v3")
        a("v_bfe_u32 v4, v0, 3, 1")
        a("v_lshl_add_u32 v16, v4, 4, v3")
        a("v_add_u32 v16, s58, v16")
        a("v_add_u32 v20, 2048, v16")
        a("v_add_u32 v22, 8, v16")
        a("v_lshlrev_b32 v21, 4, v0")
        a("s_lshl_b32 s9, s8, 12")
        a(f"s_add_u32 s9, s9, {HA}")
        a("v_lshrrev_b32 v3, 5, v0")
        a("v_and_b32 v4, 31, v0")
        a("v_lshlrev_b32 v17, 9, v3")
        a("v_lshl_add_u32 v17, v4, 2, v17")
        a("s_lshl_b32 s15, s3, 10")
        a(f"s_add_u32 s15, s15, {RED}")
        a("v_add_u32 v17, s15, v17")
        a(f"v_add_u32 v18, {RED}, v21")
        a("v_lshlrev_b32 v19, 4, v4")
        a("v_lshl_add_u32 v19, v3, 12, v19")
        a("s_lshl_b32 s15, s4, 13")
        a("s_and_b32 s52, s5, 7")
        a("s_lshl_b32 s52, s52, 9")
        a("s_add_u32 s15, s15, s52")
        a(f"s_add_u32 s55, s15, {HB}")
        self.voff128(2, 1024, 3, 4)
        a("s_lshl_b32 s53, s4, 19")
        a("s_lshl_b32 s15, s3, 17")
        a("s_add_u32 s53, s53, s15")
        a("s_lshr_b32 s15, s52, 2")
        a("s_add_u32 s53, s53, s15")
        a(f"s_add_u32 s59, s7, {WO+16384}")
        a("s_mov_b64 s[48:49], s[24:25]")
        a(f"s_mov_b32 s50, {4096*1024}")
        a("s_mov_b32 m0, s58")
        def agather():
            for t in range(4): a(f"buffer_load_dwordx4 v21, s[40:43], s9 offen offset:{1024*t} sc1 lds")
        agather()
        a("s_waitcnt vmcnt(4) lgkmcnt(0)")
        self.tag()
        self.stamp(2)
        for ks in range(2):
            for t in range(8): self.tr(64 + 32 * ks + 4 * t, 8 + t, 8192 * ks, 4096)
        a("v_mov_b32 v58, s14")
        a("v_mov_b32 v59, s14")
        a(f"s_mov_b32 s12, {SPIN}")
        a("s_branch LWa1")
        a.label("LWa0")
        agather()
        a.label("LWa1")
        a("s_waitcnt vmcnt(0)")
        a("ds_read2st64_b32 v[32:33], v22 offset0:0 offset1:4")
        a("ds_read2st64_b32 v[34:35], v22 offset0:8 offset1:12")
        a("ds_read2_b64 v[24:27], v16 offset0:0 offset1:128")
        a("ds_read2_b64 v[28:31], v20 offset0:0 offset1:128")
        a("s_waitcnt lgkmcnt(2)")
        for i in range(4): a(f"v_xor_b32 v{32+i}, s14, v{32+i}")
        a("v_or3_b32 v32, v32, v33, v34")
        a("v_or_b32 v32, v32, v35")
        a("v_cmp_ne_u32 vcc, 0, v32")
        a("s_waitcnt lgkmcnt(0)")
        a("s_cbranch_vccz LWa2")
        a("s_sub_u32 s12, s12, 1")
        a("s_cbranch_scc0 LWa0")
        a.label("LWa2")
        self.stamp(3)
        for ks in range(2):
            for t in range(8): self.mfma(128 + 4 * t, 24 + 4 * ks, 64 + 32 * ks + 4 * t, ks == 0)
        for t in range(8): a(f"v_pk_add_f32 v[{128+4*t}:{129+4*t}], v[{128+4*t}:{129+4*t}], v[{130+4*t}:{131+4*t}]")
        for t in range(8): a(f"v_add_f32 v{128+4*t}, v{128+4*t}, v{129+4*t}")
        for k in range(4): a(f"v_permlane16_swap_b32 v{128+8*k}, v{132+8*k}")
        for k in range(4): a(f"v_add_f32 v{128+8*k}, v{128+8*k}, v{132+8*k}")
        for k in range(4): a(f"ds_write_b32 v17, v{128+8*k} offset:{128*k}")
        a("s_waitcnt lgkmcnt(0)")
        a("s_barrier")
        a("s_cmp_eq_u32 s3, 0")
        a("s_cbranch_scc0 LW4")
        def red4(stride):
            for w in range(4): a(f"ds_read_b128 v[{24+4*w}:{27+4*w}], v18 offset:{stride*w}")
            a("s_waitcnt lgkmcnt(2)")
            for k in range(2): a(f"v_pk_add_f32 v[{24+2*k}:{25+2*k}], v[{24+2*k}:{25+2*k}], v[{28+2*k}:{29+2*k}]")
            a("s_waitcnt lgkmcnt(0)")
            for k in range(2): a(f"v_pk_add_f32 v[{32+2*k}:{33+2*k}], v[{32+2*k}:{33+2*k}], v[{36+2*k}:{37+2*k}]")
            for k in range(2): a(f"v_pk_add_f32 v[{24+2*k}:{25+2*k}], v[{24+2*k}:{25+2*k}], v[{32+2*k}:{33+2*k}]")
        red4(1024)
        a("v_cvt_pk_bf16_f32 v56, v24, v25")
        a("v_cvt_pk_bf16_f32 v57, v26, v27")
        a("buffer_store_dwordx4 v[56:59], v19, s[40:43], s55 offen sc1")
        self.stamp(4)
        a.label("LW4")
        a(f"s_add_u32 m0, s7, {WO}")
        a("s_barrier")
        a("v_and_b32 v3, 15, v0")
        a("v_lshlrev_b32 v13, 7, v3")
        a("s_lshl_b32 s9, s4, 14")
        a(f"s_add_u32 s9, s9, {HC}")
        a("s_lshl_b32 s8, s4, 11")
        a(f"s_add_u32 s8, s8, {HL}")
        a.label("LWd")
        a(f"buffer_load_dwordx4 v2, s[48:51], s53 offen {wf} lds")
        a("s_add_u32 m0, m0, 1024")
        a("s_add_u32 s53, s53, 8192")
        if self.o.get("wothr", 0): a(f"s_waitcnt vmcnt({self.o['wothr']})")
        a("s_cmp_lt_u32 m0, s59")
        a("s_cbranch_scc1 LWd")
        self.stamp(5)
        a("v_lshlrev_b32 v229, 4, v3")
        a("s_lshl_b32 s27, s4, 9")
        a(f"s_add_u32 s27, s27, {RDY}")
        self.rdy_load()
        a("s_lshl_b32 s15, s3, 8")
        a("s_add_u32 s9, s9, s15")
        a("s_lshl_b32 s15, s3, 2")
        a("s_add_u32 s8, s8, s15")
        a(f"s_add_u32 s15, s7, {WO}")
        self.traddr128(8, "s15", 3, 4)
        a("v_and_b32 v3, 15, v0")
        a("v_xor_b32 v12, v3, v1")
        a("v_lshlrev_b32 v12, 4, v12")
        a("v_lshl_add_u32 v4, v1, 10, v12")
        for i in range(1, 4):
            a(f"v_xor_b32 v{4+i}, {64*i}, v4")
            a(f"v_add_u32 v{4+i}, {3072*i}, v{4+i}")
        a("v_lshl_add_u32 v20, v3, 8, v12")
        a("v_add_u32 v20, s58, v20")
        for i in range(1, 4): a(f"v_xor_b32 v{20+i}, {64*i}, v20")
        a("v_lshlrev_b32 v14, 4, v1")
        a("v_lshrrev_b32 v12, 5, v0")
        a("v_lshlrev_b32 v15, 8, v12")
        a("v_and_b32 v12, 31, v0")
        a("v_lshl_add_u32 v15, v12, 2, v15")
        a("s_lshl_b32 s15, s3, 9")
        a(f"s_add_u32 s15, s15, {RED}")
        a("v_add_u32 v15, s15, v15")
        a("v_lshlrev_b32 v17, 4, v3")
        a("v_lshl_add_u32 v17, v1, 11, v17")
        a("s_lshl_b32 s55, s4, 12")
        a("s_lshr_b32 s15, s52, 1")
        a("s_add_u32 s55, s55, s15")
        a(f"s_add_u32 s55, s55, {HD}")
        a("s_mov_b32 m0, s58")
        a("v_mov_b32 v128, 0")
        a("s_waitcnt vmcnt(0)")
        self.stamp(6)
        for ks in range(4):
            for t in range(4): self.tr(64 + 16 * ks + 4 * t, 8 + t, 4096 * ks, 2048)
        self.rdy_check()
        def cbody():
            a("s_mov_b64 exec, 0xffff")
            a("buffer_load_dword v128, v13, s[40:43], s8 offen sc1")
            a("s_mov_b64 exec, -1")
            for i in range(4): a(f"buffer_load_dwordx4 v{4+i}, s[40:43], s9 offen offset:{1024*i} sc1 lds")
            a("s_waitcnt vmcnt(0)")
            for ks in range(4): a(f"ds_read_b128 v[{24+4*ks}:{27+4*ks}], v{20+ks}")
            a("s_waitcnt lgkmcnt(0)")
            a("v_max3_u32 v129, v24, v28, v128")
            a("v_max3_u32 v129, v129, v32, v36")
            a("v_cmp_eq_u32 s[10:11], -1, v129")
        self.stamp(9)
        self.spin(cbody, alt=([8, 9], LOC, self.o.get("every", 16)) if self.o.get("loc", 1) else None)
        self.stamp(7)
        D8 = ("quad_perm:[1,0,3,2]", "quad_perm:[2,3,0,1]", "row_half_mirror")
        def mf(ks):
            for t in range(4): self.mfma(40 + 4 * t, 24 + 4 * ks, 64 + 16 * ks + 4 * t, ks == 0)
        mf(0)
        a("v_mov_b32 v129, v128")
        for m in D8: a(f"v_max_f32_dpp v129, v129, v129 {m} row_mask:0xf bank_mask:0xf")
        a("v_sub_f32 v128, v128, v129")
        a("v_exp_f32 v128, v128")
        mf(1)
        a("v_mov_b32 v129, v128")
        for m in D8: a(f"v_add_f32_dpp v129, v129, v129 {m} row_mask:0xf bank_mask:0xf")
        a("v_rcp_f32 v129, v129")
        a("v_mul_f32 v128, v128, v129")
        for r in range(4): a(f"ds_bpermute_b32 v{130+r}, v14, v128 offset:{4*r}")
        mf(2)
        mf(3)
        a("s_waitcnt lgkmcnt(0)")
        for t in range(4): a(f"v_pk_mul_f32 v[{40+4*t}:{41+4*t}], v[{40+4*t}:{41+4*t}], v[130:131]")
        for t in range(4): a(f"v_pk_fma_f32 v[{40+4*t}:{41+4*t}], v[{42+4*t}:{43+4*t}], v[132:133], v[{40+4*t}:{41+4*t}]")
        for t in range(4): a(f"v_add_f32 v{40+4*t}, v{40+4*t}, v{41+4*t}")
        for k in range(2): a(f"v_permlane16_swap_b32 v{40+8*k}, v{44+8*k}")
        for k in range(2): a(f"v_add_f32 v{40+8*k}, v{40+8*k}, v{44+8*k}")
        for k in range(2): a(f"ds_write_b32 v15, v{40+8*k} offset:{128*k}")
        a("s_waitcnt lgkmcnt(0)")
        a("s_barrier")
        a("s_cmp_eq_u32 s3, 0")
        a("s_cbranch_scc0 LWe")
        a("s_mov_b32 exec_hi, 0")
        red4(512)
        a("buffer_store_dwordx4 v[24:27], v17, s[40:43], s55 offen sc1")
        self.stamp(8)
        a.label("LWe")
        self.end()

    def g_role(self):
        a, wf = self.a, self.wf
        self.g_index()
        a("s_cbranch_scc1 LM")
        a("s_and_b32 s52, s53, 1")
        a("s_cmp_eq_u32 s52, 0")
        a("s_cselect_b64 s[44:45], s[28:29], s[30:31]")
        a("s_cselect_b64 s[48:49], s[30:31], s[28:29]")
        a(f"s_mov_b32 s46, {512*3584}")
        a(f"s_mov_b32 s50, {512*3584}")
        a("s_lshl_b32 s52, s52, 13")
        a("v_lshrrev_b32 v1, 2, v0")
        a("v_bfe_u32 v2, v0, 4, 1")
        a("v_lshlrev_b32 v2, 1, v2")
        a("v_and_b32 v3, 3, v0")
        a("v_xor_b32 v2, v2, v3")
        a("v_mul_u32_u24 v4, 3584, v1")
        a("v_lshl_add_u32 v2, v2, 4, v4")
        a(f"s_mul_i32 s8, s3, {128*3584}")
        a("s_lshl_b32 s15, s53, 6")
        a("s_add_u32 s8, s8, s15")
        a(f"s_add_u32 s7, s7, {GU}")
        self.delay("fdel")
        self.stamp(5)
        for m in range(2):
            a("s_add_u32 m0, s7, s52")
            a("s_add_u32 s13, m0, 8192")
            a("s_mov_b32 s9, s8")
            a.label(f"LGd{m}")
            a(f"buffer_load_dwordx4 v2, s[{44+4*m}:{47+4*m}], s9 offen {wf} lds")
            a("s_add_u32 m0, m0, 1024")
            a(f"s_add_u32 s9, s9, {16*3584}")
            a("s_cmp_lt_u32 m0, s13")
            a(f"s_cbranch_scc1 LGd{m}")
            if m == 0: a("s_xor_b32 s52, s52, 8192")
        self.voff256(6, 10, 4, 5)
        a("s_mov_b64 s[44:45], s[32:33]")
        a(f"s_mov_b32 s46, {1792*1024}")
        a("s_lshl_b32 s9, s53, 15")
        a("s_lshl_b32 s15, s3, 8")
        a("s_add_u32 s9, s9, s15")
        a("s_lshl_b32 s6, s3, 13")
        a(f"s_add_u32 s6, s6, {DWN}")
        a("s_mov_b32 m0, s6")
        a("s_add_u32 s13, s6, 8192")
        a.label("LGd2")
        for i in range(2):
            a(f"buffer_load_dwordx4 v{6+i}, s[44:47], s9 offen {wf} lds")
            a("s_add_u32 m0, m0, 1024")
            a("s_add_u32 s9, s9, 4096")
        a("s_cmp_lt_u32 m0, s13")
        a("s_cbranch_scc1 LGd2")
        a("s_mov_b64 s[48:49], s[16:17]")
        a("s_mov_b32 s50, 2048")
        a("v_lshrrev_b32 v4, 5, v0")
        a("v_and_b32 v5, 31, v0")
        a("v_lshlrev_b32 v19, 3, v5")
        a("v_lshl_add_u32 v19, v4, 10, v19")
        a("buffer_load_dwordx2 v[24:25], v19, s[48:51], s15 offen")
        a("v_lshrrev_b32 v229, 3, v0")
        a("v_lshlrev_b32 v229, 9, v229")
        a("v_and_b32 v6, 7, v0")
        a("v_lshl_add_u32 v229, v6, 4, v229")
        a(f"s_mov_b32 s27, {RDY+256}")
        self.rdy_load()
        a("v_lshlrev_b32 v18, 1, v19")
        a("s_lshl_b32 s15, s3, 9")
        for k in range(3): a(f"s_add_u32 s{28+k}, s15, {HM+4096*k}")
        for k in range(8): a(f"s_add_u32 s{16+k}, s15, {HD+4096*k}")
        a("v_bfe_u32 v8, v0, 4, 1")
        a("v_lshlrev_b32 v8, 5, v8")
        a("v_lshl_add_u32 v8, v1, 6, v8")
        a("v_lshl_add_u32 v8, v3, 3, v8")
        a("v_add_u32 v8, s7, v8")
        a("v_xor_b32 v9, 32, v8")
        self.traddr256(10, 8, "s6", 6, 7)
        a("v_mul_u32_u24 v20, 816, v4")
        a("v_lshrrev_b32 v6, 3, v5")
        a("v_lshl_add_u32 v20, v6, 6, v20")
        a("v_lshl_add_u32 v20, v3, 4, v20")
        a("v_bfe_u32 v6, v0, 2, 1")
        a("v_lshl_add_u32 v20, v6, 3, v20")
        a(f"s_add_u32 s15, s7, {AROW_O}")
        a("v_add_u32 v20, s15, v20")
        a("v_mul_u32_u24 v22, 816, v6")
        a("v_and_b32 v7, 48, v0")
        a("v_add3_u32 v22, v22, v7, s15")
        a("s_mov_b32 s59, 272")
        a("v_and_b32 v21, 1, v0")
        a("v_mul_u32_u24 v21, 272, v21")
        a("v_add3_u32 v21, v21, v22, s59")
        a("v_lshl_add_u32 v227, v6, 6, v7")
        a(f"v_mul_u32_u24 v228, {HFS}, v4")
        a("v_lshl_add_u32 v228, v5, 2, v228")
        a("v_lshlrev_b32 v2, 4, v0")
        a("s_lshl_b32 s15, s3, 10")
        a("v_add_u32 v23, s15, v2")
        a("v_lshlrev_b32 v224, 3, v0")
        a("s_lshl_b32 s15, s3, 9")
        a("v_add_u32 v225, s15, v224")
        a("s_lshl_b32 s15, s3, 2")
        a("v_add_u32 v226, s15, v7")
        a("v_and_b32 v231, 16, v0")
        a("v_lshlrev_b32 v231, 1, v231")
        a(f"s_mul_i32 s26, s3, {8*HFS}")
        a("s_lshl_b32 s15, s53, 7")
        a("s_add_u32 s26, s26, s15")
        a(f"s_add_u32 s26, s26, {HF}")
        a(f"v_mov_b32 v232, {f32(1e-5)}")
        a("s_waitcnt vmcnt(0)")
        self.stamp(6)
        for m in range(2):
            for ks in range(4):
                for t in range(2): self.tr(64 + 32 * m + 8 * ks + 4 * t, 8 + t, 8192 * m + 2048 * ks, 1024)
        for dt in range(8): self.tr(128 + 4 * dt, 10 + dt, 0, 4096)
        self.unpack(24, 28, 2)
        self.rdy_check()
        self.poll([f"buffer_load_dwordx4 v[{160+4*k}:{163+4*k}], v18, s[40:43], s{28+k} offen sc1" for k in range(3)],
                  [(*self.TAGBAD, 162 + 4 * k) for k in range(3)], sleep=1)
        self.stamp(4)
        a("s_waitcnt lgkmcnt(0)")
        a("ds_write_b64 v20, v[164:165] offset:544")
        self.unpack(168, 196, 2)
        for i in range(4): a(f"v_add_f32 v{196+i}, 1.0, v{196+i}")
        a("v_cvt_pk_bf16_f32 v36, v196, v197")
        a("v_cvt_pk_bf16_f32 v37, v198, v199")
        a("ds_write_b64 v20, v[36:37] offset:272")
        for ks in range(4): a(f"ds_read_b128 v[{172+4*ks}:{175+4*ks}], v21 offset:{64*ks}")
        self.unpack(160, 192, 2)
        self.unpack(36, 196, 2)
        for i in range(4): a(f"v_mul_f32 v{200+i}, v{28+i}, v{196+i}")
        for i in range(4): a(f"v_mul_f32 v{196+i}, v{192+i}, v{196+i}")
        def mf(ks):
            for m in range(2):
                for t in range(2): self.mfma(40 + 8 * m + 4 * t, 172 + 4 * ks, 64 + 32 * m + 8 * ks + 4 * t, ks == 0)
        a("s_waitcnt lgkmcnt(0)")
        for ks in range(4): mf(ks)
        for m in range(2):
            for r in range(2): a(f"v_permlane32_swap_b32 v{40+8*m+r}, v{44+8*m+r}")
        a("v_mov_b32 v42, v48")
        a("v_mov_b32 v43, v49")
        a(f"ds_write_b128 v23, v[40:43] offset:{CSR}")
        a("s_waitcnt lgkmcnt(0)")
        a("s_barrier")
        for w in range(4): a(f"ds_read_b128 v[{208+4*w}:{211+4*w}], v2 offset:{CSR+1024*w}")
        a("s_waitcnt lgkmcnt(0)")
        for k in range(2):
            a(f"v_pk_add_f32 v[{208+2*k}:{209+2*k}], v[{208+2*k}:{209+2*k}], v[{212+2*k}:{213+2*k}]")
            a(f"v_pk_add_f32 v[{216+2*k}:{217+2*k}], v[{216+2*k}:{217+2*k}], v[{220+2*k}:{221+2*k}]")
        for k in range(2): a(f"v_pk_add_f32 v[{208+2*k}:{209+2*k}], v[{208+2*k}:{209+2*k}], v[{216+2*k}:{217+2*k}]")
        self.stamp(10)
        self.guard(1000)
        self.sum_poll([f"buffer_load_dwordx4 v[{160+4*k}:{163+4*k}], v18, s[40:43], s{16+k} offen sc1" for k in range(8)], 160, 56)
        self.stamp(7)
        for k in range(2): a(f"v_pk_fma_f32 v[{200+2*k}:{201+2*k}], v[{56+2*k}:{57+2*k}], v[{196+2*k}:{197+2*k}], v[{200+2*k}:{201+2*k}]")
        a("v_cvt_pk_bf16_f32 v32, v200, v201")
        a("v_cvt_pk_bf16_f32 v33, v202, v203")
        a("ds_write_b64 v20, v[32:33]")
        for ks in range(4): a(f"ds_read_b128 v[{172+4*ks}:{175+4*ks}], v22 offset:{64*ks}")
        for k in range(2): a(f"v_pk_fma_f32 v[{28+2*k}:{29+2*k}], v[{56+2*k}:{57+2*k}], v[{192+2*k}:{193+2*k}], v[{28+2*k}:{29+2*k}]")
        a("v_pk_add_f32 v[190:191], v[28:29], v[30:31]")
        a("v_pk_mul_f32 v[28:29], v[28:29], v[28:29]")
        a("v_pk_fma_f32 v[28:29], v[30:31], v[30:31], v[28:29]")
        a("v_add_f32 v190, v190, v191")
        a("v_add_f32 v191, v28, v29")
        a("v_permlane16_swap_b32 v190, v191")
        a("s_waitcnt lgkmcnt(3)")
        mf(0)
        a("v_add_f32 v190, v190, v191")
        a("s_waitcnt lgkmcnt(2)")
        mf(1)
        self.row_sum(190)
        a("s_waitcnt lgkmcnt(0)")
        mf(2)
        a(f"ds_write_b32 v226, v190 offset:{STAT}")
        mf(3)
        a("v_permlane32_swap_b32 v40, v44")
        a("v_permlane32_swap_b32 v48, v52")
        a("v_mov_b32 v41, v48")
        a(f"ds_write_b64 v225, v[40:41] offset:{REC}")
        a("s_waitcnt lgkmcnt(0)")
        a("s_barrier")
        self.stamp(8)
        a(f"ds_read_b128 v[24:27], v231 offset:{STAT}")
        a(f"ds_read_b128 v[28:31], v231 offset:{STAT+16}")
        for w in range(4): a(f"ds_read_b64 v[{64+2*w}:{65+2*w}], v224 offset:{REC+512*w}")
        a("s_waitcnt lgkmcnt(4)")
        a("v_pk_add_f32 v[24:25], v[24:25], v[26:27]")
        a("v_pk_add_f32 v[28:29], v[28:29], v[30:31]")
        a("v_add_f32 v24, v24, v25")
        a("v_add_f32 v28, v28, v29")
        a(f"v_mul_f32 v24, {f32(1/512)}, v24")
        a(f"v_fmamk_f32 v28, v28, {f32(1/512)}, v232")
        a("v_fma_f32 v28, -v24, v24, v28")
        a("v_rsq_f32 v28, v28")
        a("s_waitcnt lgkmcnt(0)")
        a("v_pk_add_f32 v[64:65], v[64:65], v[66:67]")
        a("v_pk_add_f32 v[68:69], v[68:69], v[70:71]")
        a("v_pk_add_f32 v[64:65], v[64:65], v[68:69]")
        a("v_fma_f32 v64, -v24, v208, v64")
        a("v_fma_f32 v65, -v24, v210, v65")
        a("v_fma_f32 v64, v64, v28, v209")
        a("v_fma_f32 v65, v65, v28, v211")
        a("v_max_f32 v64, 0, v64")
        a("v_mul_f32 v64, v64, v65")
        a("v_mov_b32_dpp v65, v64 quad_perm:[1,0,3,2] row_mask:0xf bank_mask:0xf")
        a("v_cvt_pk_bf16_f32 v64, v64, v65")
        for i, off in enumerate((0, 8, 128, 136)): a(f"ds_bpermute_b32 v{24+i}, v227, v64 offset:{off}")
        a("s_waitcnt lgkmcnt(0)")
        for dt in range(8): self.mfma(160 + 4 * dt, 24, 128 + 4 * dt, True)
        for k in range(4):
            a(f"v_permlane32_swap_b32 v{160+8*k}, v{164+8*k}")
            a(f"buffer_store_dword v{160+8*k}, v228, s[40:43], s26 offen sc1")
            if k < 3: a(f"s_add_u32 s26, s26, {2*HFS}")
        self.stamp(9)
        self.end()

    def small_helpers(self):
        a = self.a
        a.label("LGH2")
        a("s_setprio 3")
        self.tag()
        for i in range(4): a(f"v_mov_b32 v{32+i}, -1")
        self.g_index()
        a("s_cbranch_scc1 LGH3")
        a("v_lshrrev_b32 v3, 3, v0")
        a(f"v_mul_u32_u24 v3, {HFS}, v3")
        a("v_and_b32 v4, 7, v0")
        a("v_lshl_add_u32 v3, v4, 4, v3")
        a("s_lshl_b32 s15, s53, 7")
        a(f"s_add_u32 s15, s15, {HF}")
        for i in range(4):
            a("buffer_store_dwordx4 v[32:35], v3, s[40:43], s15 offen sc1")
            if i < 3: a(f"s_add_u32 s15, s15, {8*HFS}")
        a("s_waitcnt vmcnt(0)")
        a.label("LGH3")
        a("s_add_u32 s5, s5, 24")
        self.rdy_publish(8, "s5")
        a("s_endpgm")
        a.label("LWH2")
        a("s_setprio 3")
        for i in range(4): a(f"v_mov_b32 v{32+i}, -1")
        a("v_bfe_u32 v3, v0, 4, 1")
        a("v_lshlrev_b32 v3, 11, v3")
        a("v_and_b32 v4, 15, v0")
        a("v_lshl_add_u32 v3, v4, 4, v3")
        a("s_lshl_b32 s15, s4, 12")
        a("s_and_b32 s6, s5, 7")
        a("s_lshl_b32 s6, s6, 8")
        a("s_add_u32 s15, s15, s6")
        a(f"s_add_u32 s15, s15, {HD}")
        a("s_waitcnt lgkmcnt(0)")
        a("s_load_dword s14, s[40:41], 0")
        a("s_mov_b32 exec_hi, 0")
        a("buffer_store_dwordx4 v[32:35], v3, s[40:43], s15 offen sc1")
        a("s_waitcnt vmcnt(0) lgkmcnt(0)")
        self.tag()
        self.rdy_publish(8, "s5")
        a("s_endpgm")

    def m_role(self):
        a = self.a
        a.label("LM")
        a("s_and_b32 s6, s4, 6")
        a("s_add_u32 s6, s6, s5")
        a("s_sub_u32 s6, s6, 6")
        a("s_lshl_b32 s6, s6, 2")
        a("s_add_u32 s6, s6, s3")
        a("s_lshl_b32 s8, s6, 12")
        a(f"s_add_u32 s8, s8, {HP}")
        a("s_lshr_b32 s9, s6, 3")
        a("s_lshl_b32 s9, s9, 12")
        a("s_and_b32 s6, s6, 7")
        a("s_lshl_b32 s6, s6, 8")
        a("s_add_u32 s9, s9, s6")
        a(f"s_add_u32 s9, s9, {HM}")
        a("v_lshlrev_b32 v2, 4, v0")
        a("v_and_b32 v3, 1, v0")
        a("v_lshlrev_b32 v3, 11, v3")
        a("v_bfe_u32 v4, v0, 1, 2")
        a("v_lshl_add_u32 v3, v4, 4, v3")
        self.poll([f"buffer_load_dwordx4 v[{40+4*t}:{43+4*t}], v2, s[40:43], s8 offen offset:{1024*t} sc1" for t in range(4)],
                  [(*self.TAGBAD, 42 + 4 * t) for t in range(4)], sleep=2)
        self.stamp(6)
        for t in range(4): self.unpack(40 + 4 * t, 64 + 4 * t, 2)
        for t in range(4): self.red8(64 + 4 * t)
        for t in range(4):
            a(f"v_cvt_pk_bf16_f32 v{40+4*t}, v{64+4*t}, v{65+4*t}")
            a(f"v_cvt_pk_bf16_f32 v{41+4*t}, v{66+4*t}, v{67+4*t}")
            a(f"v_mov_b32 v{42+4*t}, s14")
        a("s_mov_b64 exec, 0xff")
        for t in range(4): a(f"buffer_store_dwordx4 v[{40+4*t}:{43+4*t}], v3, s[40:43], s9 offen offset:{64*t} sc1")
        self.stamp(7)
        self.end()

    def red8(self, r):
        a = self.a
        for i in range(4): a(f"v_add_f32_dpp v{r+i}, v{r+i}, v{r+i} row_ror:8 row_mask:0xf bank_mask:0xf")
        for sw in ("16", "32"):
            for i in range(4): a(f"v_mov_b32 v{60+i}, v{r+i}")
            for i in range(4): a(f"v_permlane{sw}_swap_b32 v{r+i}, v{60+i}")
            for i in range(4): a(f"v_add_f32 v{r+i}, v{r+i}, v{60+i}")

    def build(self):
        self.prologue()
        self.tw_early()
        self.ww_early()
        self.g_early()
        self.g_role()
        self.guard(2800, fall=False)
        self.ww_main()
        self.guard(2900, fall=False)
        self.tw_issue()
        self.tw_main()
        self.t_helper()
        self.m_role()
        self.small_helpers()
        if self.diag:
            self.a.label("Ldump")
            self.dump_stamps()
        self.a.label("Lexit")
        self.a("s_endpgm")
        self.a.label("Lcode_end")
        body = self.a.finish()
        head = open("cdna_kernels/" + NAME + ".s.ref").read().split("; Override launch geometry")[0]
        return head + f"""; Generated by gen/gen_kernel.py (hand-written generator): one persistent launch, 256 workgroups x 5 waves.
; @launch grid=(256,1,1) block=(320,1,1) lds={LDS_BYTES}
.amdgcn_target "amdgcn-amd-amdhsa--gfx950"
.text
.globl {KNAME}
.p2align 12
.type {KNAME},@function
{KNAME}:
{body}
.section .rodata,"a"
.p2align 6
.amdhsa_kernel {KNAME}
  .amdhsa_next_free_vgpr 240
  .amdhsa_next_free_sgpr 102
  .amdhsa_accum_offset 240
  .amdhsa_group_segment_fixed_size 0
  .amdhsa_kernarg_size 112
  .amdhsa_user_sgpr_count 2
  .amdhsa_user_sgpr_kernarg_segment_ptr 1
  .amdhsa_system_sgpr_workgroup_id_x 1
.end_amdhsa_kernel
"""

if __name__ == "__main__":
    import argparse
    ap = argparse.ArgumentParser()
    ap.add_argument("-o", default="cdna_kernels/" + NAME + ".s")
    ap.add_argument("--diag", action="store_true")
    ap.add_argument("--wflag", default="nt")
    ap.add_argument("--opt", action="append", default=[])
    args = ap.parse_args()
    opts = {}
    for o in args.opt:
        k, _, v = o.partition("=")
        opts[k] = int(v) if v else 1
    open(args.o, "w").write(Gen(args.diag, args.wflag, opts).build())
    print("wrote", args.o)
```

```python
import sys, struct
from asmlib import Asm

NAME = "adaLN_cond__sliding_block_cached__glu_gated_reglu__decode"
KNAME = NAME + "_kernel"

def f32(x): return "0x%08x" % struct.unpack("<I", struct.pack("<f", x))[0]

EPOCH = 0x0
RDY = 0x1000
HM = 0x4000
HA = 0x8000
HB = 0x10000
HD = 0x20000
HL = HD + 0x8000
HC = HL + 0x4000
LOC = 0x24000
HF = HC + 0x20000 + LOC
HFS = 7168
HP = 0xD0000
STAMP = 0x100000
WS_SIZE = 0x200000
LDS_BYTES = 151552
KB, VB, MRW, PB, MX, LS, QB, SCT = 0, 65536, 131072, 147456, 149504, 149568, 149760, 150848
WQ, WO, GA, RED = 0, 65536, 131072, 147456
W1, GU, DWN, SC, LNS = 0, 16384, 81920, 147456, 147776
REC, CSR, STAT = W1, W1 + 4096, W1 + 8192
AROW_O = 4096

LOG2E = 1.4426950408889634
CSC = (128 ** -0.5) * LOG2E
SPIN = 20000
import os
if os.environ.get('SPIN'): SPIN = int(os.environ['SPIN'])
MFMA = "v_mfma_f32_16x16x32_bf16"

class Gen:
    POISON = ("v_cmp_eq_u32", "-1")
    TAGBAD = ("v_cmp_ne_u32", "s14")

    def __init__(self, diag=False, wflag="nt", opts=None):
        self.a = Asm()
        self.diag = diag
        self.wf = wflag
        self.o = opts or {}
        self.nlab = 0
    def lab(self, p="L"):
        self.nlab += 1
        return f"{p}{self.nlab}"
    def stamp(self, k):
        if self.diag or self.o.get("amp") == k: self.a(f"s_memrealtime s[{64+2*k}:{65+2*k}]")
    def dump_max(self):
        a = self.a
        a("s_load_dwordx2 s[44:45], s[0:1], 96")
        a("s_mov_b32 s46, 256")
        a("s_mov_b32 s47, 0x20000")
        a("s_mov_b64 exec, 1")
        a("v_mov_b32 v1, 0")
        a("s_waitcnt lgkmcnt(0)")
        def put(slot, reg):
            a(f"v_mov_b32 v4, {reg}")
            a(f"buffer_atomic_umax v4, v1, s[44:47], 0 offen offset:{4*slot} sc1")
        a("s_not_b32 s60, s64")
        put(0, "s60"); put(1, "s64")
        a("s_lshr_b32 s5, s2, 3")
        a("s_cmp_ge_u32 s5, 24")
        a("s_cbranch_scc1 LdG")
        a("s_cmp_ge_u32 s5, 16")
        a("s_cbranch_scc1 LdW")
        for slot, k in ((6, 3), (7, 9), (8, 5), (15, 8)): put(slot, f"s{64+2*k}")
        a("s_endpgm")
        a.label("LdW")
        for slot, k in ((3, 2), (4, 3), (5, 4), (9, 6), (10, 7), (11, 8)): put(slot, f"s{64+2*k}")
        a("s_endpgm")
        a.label("LdG")
        for slot, k in ((2, 3), (12, 6), (13, 7), (14, 9)): put(slot, f"s{64+2*k}")
    def dump_stamps(self):
        if not self.diag: return
        if self.o.get("dmax"): return self.dump_max()
        a = self.a
        a("s_waitcnt lgkmcnt(0)")
        a("s_mov_b64 exec, 1")
        a("s_mul_i32 s60, s2, 5")
        a("s_add_u32 s60, s60, s3")
        a("s_lshl_b32 s60, s60, 6")
        a(f"s_add_u32 s60, s60, {STAMP}")
        a("v_mov_b32 v1, 0")
        for q in range(3):
            for i in range(4):
                a(f"v_mov_b32 v{4+i}, s{64+2*(4*q+i)}")
            a(f"buffer_store_dwordx4 v[4:7], v1, s[40:43], s60 offen offset:{16*q}")
            a("s_nop 1")
    def end(self, helper=False):
        self.a("s_branch Ldump" if self.diag and (not helper or self.o.get("hdump")) else "s_endpgm")
    def delay(self, key):
        n = self.o.get(key, 0)
        if not n: return
        a = self.a
        L = self.lab("Ld")
        a.label(L)
        a("s_memrealtime s[98:99]")
        a("s_waitcnt lgkmcnt(0)")
        a("s_sub_u32 s98, s98, s64")
        a(f"s_cmp_lt_u32 s98, {n}")
        a(f"s_cbranch_scc1 {L}")
    def guard(self, n, fall=True):
        L = self.lab("Lg")
        if fall: self.a(f"s_branch {L}")
        self.a(f".p2align 12, , {n}")
        self.a.label(L)
    def srd(self, d, p, size):
        a = self.a
        a(f"s_mov_b64 s[{d}:{d+1}], s[{p}:{p+1}]")
        a(f"s_mov_b32 s{d+2}, {size}")
        a(f"s_mov_b32 s{d+3}, 0x20000")
    def tag(self):
        self.a("s_mul_i32 s14, s14, 0x9E3779B1")
        self.a("s_add_u32 s14, s14, 0x7F4A7C15")
    def exec16(self, m):
        self.a(f"s_mov_b32 exec_lo, {(m << 16 | m):#x}")
        self.a(f"s_mov_b32 exec_hi, {(m << 16 | m):#x}")
    def poll(self, loads, checks, sleep=0, after=None):
        a = self.a
        L = self.lab("Lp"); D = self.lab("Lpd")
        n = len(loads)
        a(f"s_mov_b32 s12, {SPIN}")
        a.label(L)
        for l in loads: a(l)
        for i, (op, opd, r) in enumerate(checks):
            a(f"s_waitcnt vmcnt({n-1-i})")
            if i == 0:
                a(f"{op} s[10:11], {opd}, v{r}")
            else:
                a(f"{op} vcc, {opd}, v{r}")
                a("s_or_b64 s[10:11], s[10:11], vcc")
            if after: after(i)
        a("s_cmp_eq_u64 s[10:11], 0")
        a(f"s_cbranch_scc1 {D}")
        if sleep: a(f"s_sleep {sleep}")
        a("s_sub_u32 s12, s12, 1")
        a(f"s_cbranch_scc0 {L}")
        a.label(D)
    def spin(self, body, sleep=0, alt=None):
        a = self.a
        L = self.lab("Lp"); D = self.lab("Lpd")
        n = SPIN
        if alt:
            sregs, delta, every = alt
            for i, r in enumerate(sregs):
                a(f"s_mov_b32 s{96+2*i}, s{r}")
                a(f"s_add_u32 s{97+2*i}, s{r}, {delta}")
                a(f"s_mov_b32 s{r}, s{97+2*i}")
            n = SPIN * 4 | (every - 1)
        a(f"s_mov_b32 s12, {n}")
        a.label(L)
        body()
        a("s_cmp_eq_u64 s[10:11], 0")
        a(f"s_cbranch_scc1 {D}")
        if sleep: a(f"s_sleep {sleep}")
        if alt:
            a(f"s_and_b32 s13, s12, {every-1}")
            for i, r in enumerate(sregs): a(f"s_cselect_b32 s{r}, s{97+2*i}, s{96+2*i}")
        a("s_sub_u32 s12, s12, 1")
        a(f"s_cbranch_scc0 {L}")
        a.label(D)
    def ssent(self, soff, offs, cnt=13):
        a = self.a
        L = self.lab("Ls"); D = self.lab("Lsd")
        a(f"s_mov_b32 s{cnt}, {SPIN}")
        a.label(L)
        for k, o in enumerate(offs): a(f"s_load_dword s{88+k}, s[40:41], s{soff} offset:{o} glc")
        a("s_waitcnt lgkmcnt(0)")
        for k in range(len(offs)): a(f"s_xor_b32 s{88+k}, s{88+k}, s14")
        for k in range(1, len(offs)): a(f"s_or_b32 s88, s88, s{88+k}")
        a(f"s_cbranch_scc0 {D}")
        a(f"s_sub_u32 s{cnt}, s{cnt}, 1")
        a(f"s_cbranch_scc0 {L}")
        a.label(D)
    def sum_poll(self, loads, base, acc):
        a = self.a
        n = len(loads)
        def body():
            for l in loads: a(l)
            for i in range(1, n):
                a(f"s_waitcnt vmcnt({n-1-i})")
                src = base if i == 1 else acc
                for k in range(2): a(f"v_pk_add_f32 v[{acc+2*k}:{acc+1+2*k}], v[{src+2*k}:{src+1+2*k}], v[{base+4*i+2*k}:{base+1+4*i+2*k}]")
            a(f"v_cmp_u_f32 s[10:11], v{acc}, v{acc+1}")
            a(f"v_cmp_u_f32 vcc, v{acc+2}, v{acc+3}")
            a("s_or_b64 s[10:11], s[10:11], vcc")
        self.spin(body)
    def silu(self, regs, tmp):
        a = self.a
        for i, r in enumerate(regs): a(f"v_mul_f32 v{tmp+i}, {f32(-LOG2E)}, v{r}")
        for i, r in enumerate(regs): a(f"v_exp_f32 v{tmp+i}, v{tmp+i}")
        for i, r in enumerate(regs): a(f"v_add_f32 v{tmp+i}, 1.0, v{tmp+i}")
        for i, r in enumerate(regs): a(f"v_rcp_f32 v{tmp+i}, v{tmp+i}")
        for i, r in enumerate(regs): a(f"v_mul_f32 v{r}, v{r}, v{tmp+i}")
    def unpack(self, src, dst, n):
        for i in range(n):
            self.a(f"v_lshlrev_b32 v{dst+2*i}, 16, v{src+i}")
            self.a(f"v_and_b32 v{dst+2*i+1}, 0xffff0000, v{src+i}")
    def row_sum(self, r):
        for m in ("quad_perm:[1,0,3,2]", "quad_perm:[2,3,0,1]", "row_half_mirror", "row_mirror"):
            self.a(f"v_add_f32_dpp v{r}, v{r}, v{r} {m} row_mask:0xf bank_mask:0xf")
    def silu_frag(self, base):
        a = self.a
        a("v_bfe_u32 v10, v0, 4, 1")
        a("v_mul_u32_u24 v5, 144, v10")
        a("v_bfe_u32 v4, v0, 3, 1")
        a("v_lshl_add_u32 v5, v4, 6, v5")
        a("v_and_b32 v4, 3, v0")
        a("v_lshl_add_u32 v5, v4, 4, v5")
        a("v_bfe_u32 v4, v0, 2, 1")
        a("v_lshl_add_u32 v5, v4, 3, v5")
        a(f"v_add_u32 v5, {base}, v5")
    def silu_run(self):
        a = self.a
        self.unpack(28, 16, 2)
        self.silu([16, 17, 18, 19], 24)
        a("v_cvt_pk_bf16_f32 v28, v16, v17")
        a("v_cvt_pk_bf16_f32 v29, v18, v19")
        a("ds_write_b64 v5, v[28:29]")
    def c_voff(self, d):
        a = self.a
        a(f"v_bfe_u32 v{d}, v0, 4, 1")
        a(f"v_lshlrev_b32 v{d}, 10, v{d}")
        a("v_and_b32 v11, 15, v0")
        a(f"v_lshl_add_u32 v{d}, v11, 3, v{d}")
    def mfma(self, d, A, B, first):
        c = "0" if first else f"v[{d}:{d+3}]"
        self.a(f"{MFMA} v[{d}:{d+3}], v[{A}:{A+3}], v[{B}:{B+3}], {c}")
    def tr(self, r, va, off, second):
        self.a(f"ds_read_b64_tr_b16 v[{r}:{r+1}], v{va} offset:{off}")
        self.a(f"ds_read_b64_tr_b16 v[{r+2}:{r+3}], v{va} offset:{off+second}")
    def voff256(self, d, stride_sh, t0, t1):
        a = self.a
        a(f"v_lshrrev_b32 v{t0}, 4, v0")
        a(f"v_and_b32 v{t1}, 15, v0")
        a(f"v_lshlrev_b32 v{d}, 1, v{t0}")
        a(f"v_xor_b32 v{d}, v{t1}, v{d}")
        a(f"v_lshlrev_b32 v{d}, 4, v{d}")
        a(f"v_lshl_add_u32 v{d}, v{t0}, {stride_sh}, v{d}")
        a(f"v_xor_b32 v{d+1}, 0x80, v{d}")
    def voff128(self, d, stride, t0, t1):
        a = self.a
        a(f"v_lshrrev_b32 v{t0}, 3, v0")
        a(f"v_and_b32 v{d}, 6, v{t0}")
        a(f"v_and_b32 v{t1}, 7, v0")
        a(f"v_xor_b32 v{d}, v{d}, v{t1}")
        a(f"v_mul_u32_u24 v{t0}, {stride}, v{t0}")
        a(f"v_lshl_add_u32 v{d}, v{d}, 4, v{t0}")
    def traddr256(self, d, n, base, t0, t1, first=None):
        a = self.a
        a(f"v_lshrrev_b32 v{t0}, 2, v0")
        a(f"v_and_b32 v{d}, 7, v{t0}")
        a(f"v_lshlrev_b32 v{d}, 5, v{d}")
        a(f"v_lshl_add_u32 v{d}, v{t0}, 8, v{d}")
        a(f"v_and_b32 v{t1}, 3, v0")
        a(f"v_lshl_add_u32 v{d}, v{t1}, 3, v{d}")
        if first: a(f"v_xor_b32 v{d}, {first}, v{d}")
        a(f"v_add_u32 v{d}, {base}, v{d}")
        for i in range(1, n): a(f"v_xor_b32 v{d+i}, {32*i}, v{d}")
    def traddr128(self, d, base, t0, t1, grp_sh=10, n=4):
        a = self.a
        a(f"v_bfe_u32 v{t0}, v0, 2, 3")
        a(f"v_bfe_u32 v{d}, v0, 3, 2")
        a(f"v_lshlrev_b32 v{d}, 5, v{d}")
        a(f"v_lshl_add_u32 v{d}, v{t0}, 7, v{d}")
        a(f"v_lshrrev_b32 v{t0}, 5, v0")
        a(f"v_lshl_add_u32 v{d}, v{t0}, {grp_sh}, v{d}")
        a(f"v_and_b32 v{t1}, 3, v0")
        a(f"v_lshl_add_u32 v{d}, v{t1}, 3, v{d}")
        if base is not None: a(f"v_add_u32 v{d}, {base}, v{d}")
        for i in range(1, n): a(f"v_xor_b32 v{d+i}, {32*i}, v{d}")

    def prologue(self):
        a = self.a
        a("s_cmp_ge_u32 s2, 256")
        a("s_cbranch_scc1 Lexit")
        a("s_load_dwordx16 s[16:31], s[0:1], 0")
        a("s_load_dwordx8 s[32:39], s[0:1], 64")
        a("s_load_dwordx2 s[40:41], s[0:1], 104")
        if self.diag:
            for k in range(1, 12): a(f"s_mov_b32 s{64+2*k}, 0")
        self.stamp(0)
        if self.o.get("padto"): a("s_memrealtime s[96:97]")
        a("s_getpc_b64 s[56:57]")
        a.label("Lpc0")
        a("s_lshr_b32 s5, s2, 3")
        a("v_lshrrev_b32 v1, 6, v0")
        a("s_mul_i32 s6, s5, 640")
        a("v_lshl_add_u32 v2, v1, 7, s6")
        a("v_min_u32 v2, Lcode_end-Lpc0-4, v2")
        a("global_load_dword v239, v2, s[56:57]")
        a("v_and_b32 v0, 63, v0")
        a("s_and_b32 s4, s2, 7")
        a("v_readfirstlane_b32 s3, v1")
        a(f"s_mov_b32 s42, {WS_SIZE}")
        a("s_mov_b32 s43, 0x20000")
        a("s_mov_b32 s47, 0x20000")
        a("s_mov_b32 s51, 0x20000")
        a("s_lshl_b32 s7, s3, 14")
        a("s_cmp_ge_u32 s5, 24")
        a("s_cbranch_scc1 LG0")
        a("s_cmp_eq_u32 s3, 4")
        a("s_cbranch_scc1 LH0")
        self.voff256(6, 8, 1, 8)
        a("s_mov_b32 m0, s7")
        a("s_cmp_ge_u32 s5, 16")
        a("s_cbranch_scc0 LT0")

    def tw_early(self):
        a, wf = self.a, self.wf
        a.label("LT0")
        a("s_and_b32 s6, s5, 8")
        a("s_add_u32 s6, s6, s4")
        a("s_lshl_b32 s6, s6, 21")
        a("s_and_b32 s8, s5, 7")
        a("s_lshl_b32 s8, s8, 16")
        a("s_add_u32 s6, s6, s8")
        a("s_add_u32 s6, s6, s7")
        a(f"s_add_u32 s6, s6, {6144*256}")
        a("v_xor_b32 v2, v8, v1")
        a("v_lshlrev_b32 v2, 4, v2")
        a("v_lshl_add_u32 v2, v1, 8, v2")
        a("v_xor_b32 v3, 64, v2")
        a("v_xor_b32 v4, 0x80, v2")
        a("v_xor_b32 v5, 0xc0, v2")
        a("s_mov_b32 s8, s6")
        a("s_add_u32 s9, s6, 16384")
        a("s_mov_b32 s46, 0x2000000")
        a("s_mov_b32 s50, 0x2000000")
        thr = self.o.get("thr", 0)
        thk = self.o.get("thk", 2)
        if thr: a(f"s_add_u32 s10, s6, {4096*thr}")
        a(f"v_mul_u32_u24 v12, {6144-256}, v1")
        a("v_add_u32 v13, v7, v12")
        a("v_add_u32 v12, v6, v12")
        a("s_and_b32 s13, s5, 7")
        a("s_lshl_b32 s13, s13, 2")
        a("s_add_u32 s13, s13, s3")
        a(f"s_mul_i32 s13, s13, {16*6144}")
        a("s_lshl_b32 s15, s4, 9")
        a("s_add_u32 s13, s13, s15")
        a("s_and_b32 s15, s5, 8")
        a("s_lshl_b32 s15, s15, 5")
        a("s_add_u32 s13, s13, s15")
        a("s_add_u32 s13, s13, 2048")
        a("s_lshr_b32 s15, s7, 2")
        a(f"s_add_u32 m0, s15, {MRW}")
        a(f"s_mov_b32 s54, {512*6144}")
        a("s_mov_b32 s55, 0x20000")
        a("s_waitcnt lgkmcnt(0)")
        a("s_mov_b64 s[52:53], s[36:37]")
        for i in range(4):
            a(f"buffer_load_dwordx4 v{12+(i&1)}, s[52:55], s13 offen {wf} lds")
            if i < 3:
                a("s_add_u32 m0, m0, 1024")
                a(f"s_add_u32 s13, s13, {4*6144}")
        a("s_mov_b64 s[44:45], s[18:19]")
        a("s_mov_b64 s[48:49], s[20:21]")
        a("s_mov_b32 m0, s7")
        pre = self.o.get("pre", 2)
        if pre == 1:
            for i in range(4): a(f"buffer_load_dwordx4 v{2+i}, s[44:47], s8 offen offset:{1024*i} {wf} lds")
            a("s_add_u32 m0, m0, 4096")
            a("s_add_u32 s8, s8, 4096")
        if pre < 2:
            a(f"s_waitcnt vmcnt({4 if pre else 0})")
            a("s_barrier")
            self.stamp(10)
        if thr:
            a.label("LTWt")
            for i in range(4):
                a(f"buffer_load_dwordx4 v{2+i}, s[44:47], s8 offen offset:{1024*i} {wf} lds")
                a(f"s_waitcnt vmcnt({thk})")
            a("s_add_u32 m0, m0, 4096")
            a("s_add_u32 s8, s8, 4096")
            a("s_cmp_lt_u32 s8, s10")
            a("s_cbranch_scc1 LTWt")
        cap = self.o.get("cap", 7)
        if thr < 4:
            a.label("LTWk")
            for i in range(4):
                a(f"buffer_load_dwordx4 v{2+i}, s[44:47], s8 offen offset:{1024*i} {wf} lds")
                if cap: a(f"s_waitcnt vmcnt({cap})")
            a("s_add_u32 m0, m0, 4096")
            a("s_add_u32 s8, s8, 4096")
            a("s_cmp_lt_u32 s8, s9")
            a("s_cbranch_scc1 LTWk")
        if pre == 2:
            a("s_waitcnt vmcnt(16)")
            a("s_barrier")
            self.stamp(10)

    def tw_issue(self):
        a, wf = self.a, self.wf
        cap = self.o.get("vcap", 8)
        a("s_lshl_b32 s55, s4, 13")
        a("s_and_b32 s13, s5, 8")
        a("s_lshl_b32 s13, s13, 9")
        a("s_add_u32 s55, s55, s13")
        a("s_lshl_b32 s13, s3, 9")
        a("s_add_u32 s55, s55, s13")
        a(f"s_add_u32 s55, s55, {HB}")
        a("v_lshrrev_b32 v22, 5, v0")
        a("v_and_b32 v23, 31, v0")
        a("v_lshlrev_b32 v21, 4, v23")
        a("v_lshl_add_u32 v21, v22, 11, v21")
        a(f"s_add_u32 m0, s7, {VB}")
        a("s_mov_b32 s8, s6")
        qpos = self.o.get("qpos", 3)
        for g in range(4):
            if g == qpos: a("buffer_load_dwordx4 v[28:31], v21, s[40:43], s55 offen sc1")
            for i in range(4):
                a(f"buffer_load_dwordx4 v{6+(i&1)}, s[48:51], s8 offen offset:{1024*i} {wf} lds")
                if cap: a(f"s_waitcnt vmcnt({cap})")
            if g < 3:
                a("s_add_u32 m0, m0, 4096")
                a("s_add_u32 s8, s8, 4096")
        a("buffer_load_dwordx4 v[32:35], v21, s[40:43], s55 offen sc1")

    def ww_early(self):
        a, wf = self.a, self.wf
        a.label("LW0")
        if self.o.get("now"): a("s_endpgm")
        a("s_and_b32 s8, s5, 4")
        a("s_add_u32 s8, s8, s3")
        a("s_lshl_b32 s9, s8, 19")
        a("s_lshl_b32 s15, s4, 10")
        a("s_add_u32 s9, s9, s15")
        a("s_and_b32 s6, s5, 3")
        a("s_lshl_b32 s15, s6, 8")
        a("s_add_u32 s9, s9, s15")
        a("v_mul_u32_u24 v2, 0x1f00, v1")
        a("v_add_u32 v6, v6, v2")
        a("v_add_u32 v7, v7, v2")
        a("s_add_u32 s13, s7, 16384")
        a(f"s_mov_b32 s46, {512*8192}")
        a("s_waitcnt lgkmcnt(0)")
        a("s_mov_b64 s[44:45], s[22:23]")
        self.delay("wdel")
        a("s_load_dword s14, s[40:41], 0")
        a.label("LWq")
        for i in range(2):
            a(f"buffer_load_dwordx4 v{6+i}, s[44:47], s9 offen {wf} lds")
            a("s_add_u32 m0, m0, 1024")
            a("s_add_u32 s9, s9, 32768")
        a("s_cmp_lt_u32 m0, s13")
        a("s_cbranch_scc1 LWq")
        a("s_branch LW2")
        a.label("LH0")
        a("s_cmp_ge_u32 s5, 16")
        a("s_cbranch_scc0 LTH")
        a("s_branch LWHp")

    def g_early(self):
        a, wf = self.a, self.wf
        a.label("LG0")
        if self.o.get("nog"): a("s_endpgm")
        a("s_sub_u32 s5, s5, 24")
        a("s_mov_b32 s50, 2048")
        a("s_cmp_eq_u32 s3, 4")
        a("s_cbranch_scc0 LGW")
        self.c_voff(4)
        a("s_lshl_b32 s9, s5, 7")
        a("s_waitcnt lgkmcnt(0)")
        a("s_mov_b64 s[48:49], s[34:35]")
        a("buffer_load_dwordx2 v[28:29], v4, s[48:51], s9 offen")
        a("s_load_dword s14, s[40:41], 0")
        self.silu_frag(SC)
        a("s_waitcnt vmcnt(0)")
        self.silu_run()
        a("s_waitcnt lgkmcnt(0)")
        a("s_barrier")
        a("s_barrier")
        a("s_branch LGH2")
        a.label("LGW")
        a("v_lshlrev_b32 v6, 4, v0")
        self.voff128(2, 6144, 1, 3)
        a("s_lshl_b32 s9, s5, 2")
        a("s_add_u32 s9, s9, s3")
        a(f"s_mul_i32 s9, s9, {16*6144}")
        a("s_lshl_b32 s6, s4, 7")
        a("s_add_u32 s9, s9, s6")
        a("s_lshl_b32 s13, s3, 5")
        a("s_add_u32 s6, s6, s13")
        a("v_and_b32 v12, 1, v0")
        a("v_and_b32 v13, 48, v0")
        a("v_lshrrev_b32 v4, 1, v13")
        a("v_lshl_add_u32 v4, v12, 10, v4")
        a("s_lshr_b32 m0, s7, 2")
        a(f"s_mov_b32 s54, {512*6144}")
        a("s_mov_b32 s55, 0x20000")
        a("s_waitcnt lgkmcnt(0)")
        a("s_mov_b64 s[48:49], s[16:17]")
        a("s_mov_b64 s[52:53], s[36:37]")
        a("buffer_load_dwordx4 v[24:27], v6, s[48:51], 0 offen")
        a("buffer_load_dwordx4 v[28:31], v6, s[48:51], 0 offen offset:1024")
        a("buffer_load_dwordx2 v[20:21], v4, s[48:51], s6 offen")
        for i in range(2):
            a(f"buffer_load_dwordx4 v2, s[52:55], s9 offen {wf} lds")
            a(f"buffer_load_dwordx4 v2, s[52:55], s9 offen offset:1024 {wf} lds")
            if i == 0:
                a("s_add_u32 m0, m0, 2048")
                a(f"s_add_u32 s9, s9, {8*6144}")
        a("s_load_dword s14, s[40:41], 0")
        self.traddr128(8, None, 1, 3, grp_sh=11, n=1)
        a("v_xor_b32 v8, s13, v8")
        a("v_mul_u32_u24 v6, 144, v12")
        a("v_add_u32 v6, v6, v13")
        a(f"v_add_u32 v6, {SC}, v6")
        a("v_lshlrev_b32 v7, 4, v12")
        a("v_lshl_add_u32 v13, v13, 1, v7")
        a("s_lshl_b32 s8, s4, 12")
        a("s_lshl_b32 s9, s3, 10")
        a("s_add_u32 s8, s8, s9")
        a("s_lshl_b32 s9, s5, 7")
        a("s_add_u32 s8, s8, s9")
        a(f"s_add_u32 s8, s8, {HA}")
        a("s_cmp_eq_u32 s5, 0")
        a("s_cselect_b32 s9, 1.0, 0")
        for i in range(4): a(f"v_mov_b32 v{44+i}, s9")
        a("s_mov_b32 s9, 0x3f803f80")
        a("v_lshlrev_b32 v7, 7, v12")
        a("s_waitcnt vmcnt(4)")
        self.stamp(11)
        for b in range(2):
            a(f"v_dot2_f32_bf16 v{48+b}, v{24+4*b}, s9, 0")
            a(f"v_dot2_f32_bf16 v{50+b}, v{24+4*b}, v{24+4*b}, 0")
        for i in range(1, 4):
            for b in range(2):
                a(f"v_dot2_f32_bf16 v{48+b}, v{24+4*b+i}, s9, v{48+b}")
                a(f"v_dot2_f32_bf16 v{50+b}, v{24+4*b+i}, v{24+4*b+i}, v{50+b}")
        a("v_permlane32_swap_b32 v48, v49")
        a("v_permlane32_swap_b32 v50, v51")
        a("v_add_f32 v48, v48, v49")
        a("v_add_f32 v50, v50, v51")
        a("v_permlane16_swap_b32 v48, v50")
        a("v_add_f32 v48, v48, v50")
        self.row_sum(48)
        a("ds_bpermute_b32 v50, v7, v48")
        a("ds_bpermute_b32 v51, v7, v48 offset:64")
        a(f"v_mov_b32 v52, {f32(1e-5)}")
        a("s_waitcnt lgkmcnt(0)")
        self.tag()
        a(f"v_mul_f32 v50, {f32(1/512)}, v50")
        a(f"v_fmamk_f32 v51, v51, {f32(1/512)}, v52")
        a("v_fma_f32 v51, -v50, v50, v51")
        a("v_rsq_f32 v51, v51")
        self.unpack(20, 16, 2)
        for i in range(4): a(f"v_sub_f32 v{16+i}, v{16+i}, v50")
        for i in range(4): a(f"v_mul_f32 v{16+i}, v{16+i}, v51")
        a("v_mov_b32 v58, s14")
        a("v_mov_b32 v59, s14")
        self.stamp(1)
        a("s_waitcnt vmcnt(0)")
        a("s_barrier")
        self.stamp(2)
        for ks in range(2):
            a(f"ds_read_b128 v[{32+4*ks}:{35+4*ks}], v6 offset:{64*ks}")
            for seg in range(2): self.tr(64 + 8 * ks + 4 * seg, 8, W1 + 8192 * ks + 1024 * seg, 4096)
        a("s_waitcnt lgkmcnt(5)")
        self.mfma(40, 64, 32, True)
        self.mfma(44, 68, 32, False)
        a("s_waitcnt lgkmcnt(0)")
        self.mfma(40, 72, 36, False)
        self.mfma(44, 76, 36, False)
        self.exec16(3)
        for k in range(2): a(f"v_pk_fma_f32 v[{40+2*k}:{41+2*k}], v[{16+2*k}:{17+2*k}], v[{44+2*k}:{45+2*k}], v[{40+2*k}:{41+2*k}]")
        a("v_cvt_pk_bf16_f32 v56, v40, v41")
        a("v_cvt_pk_bf16_f32 v57, v42, v43")
        a("buffer_store_dwordx4 v[56:59], v13, s[40:43], s8 offen sc1")
        a("s_mov_b64 exec, -1")
        self.stamp(3)
        a("s_barrier")

    def rdy_publish(self, vb, jreg):
        a = self.a
        for i in range(4): a(f"v_mov_b32 v{vb+i}, s14")
        a(f"v_mov_b32 v{vb+4}, 0")
        a("s_lshl_b32 s15, s4, 5")
        a(f"s_add_u32 s15, s15, {jreg}")
        a("s_lshl_b32 s15, s15, 4")
        a(f"s_add_u32 s15, s15, {RDY}")
        a("s_mov_b64 exec, 1")
        a(f"buffer_store_dwordx4 v[{vb}:{vb+3}], v{vb+4}, s[40:43], s15 offen sc1")
        a("s_mov_b64 exec, -1")
    def rdy_load(self):
        self.a("buffer_load_dword v230, v229, s[40:43], s27 offen sc1")
    def rdy_check(self):
        a = self.a
        L = self.lab("Lok")
        a("v_cmp_ne_u32 vcc, s14, v230")
        a(f"s_cbranch_vccz {L}")
        self.poll(["buffer_load_dword v230, v229, s[40:43], s27 offen sc1"], [(*self.TAGBAD, 230)], sleep=2)
        a.label(L)

    def g_index(self):
        a = self.a
        a("s_lshr_b32 s53, s4, 1")
        a("s_mul_i32 s53, s53, 14")
        a("s_and_b32 s52, s4, 1")
        a("s_lshl_b32 s54, s52, 3")
        a("s_add_u32 s53, s53, s54")
        a("s_add_u32 s53, s53, s5")
        a("s_lshl_b32 s52, s52, 1")
        a("s_sub_u32 s52, 8, s52")
        a("s_cmp_ge_u32 s5, s52")

    def t_helper(self):
        a, wf = self.a, self.wf
        a.label("LTH")
        if self.o.get("nohelp"): a("s_endpgm")
        a("s_setprio 3")
        self.c_voff(4)
        a("s_and_b32 s6, s5, 7")
        a("s_lshl_b32 s9, s6, 7")
        a("s_lshl_b32 s52, s4, 1")
        a("s_lshr_b32 s13, s5, 3")
        a("s_add_u32 s52, s52, s13")
        a("s_mov_b32 s50, 2048")
        a("s_waitcnt lgkmcnt(0)")
        a("s_mov_b64 s[48:49], s[34:35]")
        a("s_load_dword s14, s[40:41], 0")
        a("buffer_load_dwordx2 v[28:29], v4, s[48:51], s9 offen")
        for i in range(4): a(f"v_mov_b32 v{40+i}, -1")
        a("v_lshlrev_b32 v2, 4, v0")
        a("s_lshl_b32 s6, s4, 4")
        a("s_add_u32 s6, s6, s5")
        a("s_lshl_b32 s54, s6, 10")
        a(f"s_add_u32 s54, s54, {HC}")
        a("s_lshl_b32 s55, s6, 7")
        a(f"s_add_u32 s55, s55, {HL}")
        a("buffer_store_dwordx4 v[40:43], v2, s[40:43], s54 offen sc1")
        a(f"s_add_u32 s54, s54, {LOC}")
        a("buffer_store_dwordx4 v[40:43], v2, s[40:43], s54 offen sc1")
        a("s_mov_b64 exec, 0xff")
        a("buffer_store_dwordx4 v[40:43], v2, s[40:43], s55 offen sc1")
        a(f"s_add_u32 s55, s55, {LOC}")
        a("buffer_store_dwordx4 v[40:43], v2, s[40:43], s55 offen sc1")
        a("s_mov_b64 exec, -1")
        a("s_barrier")
        self.silu_frag(SCT)
        a("v_and_b32 v12, 1, v0")
        a("v_and_b32 v13, 48, v0")
        a("v_mul_u32_u24 v6, 144, v12")
        a("v_add_u32 v6, v6, v13")
        a(f"v_add_u32 v6, {SCT}, v6")
        a("v_lshlrev_b32 v7, 4, v12")
        a("v_lshl_add_u32 v7, v13, 1, v7")
        self.traddr256(8, 8, MRW, 3, 4)
        a("s_lshl_b32 s8, s52, 13")
        a("s_add_u32 s8, s8, s9")
        a(f"s_add_u32 s8, s8, {HP}")
        a("s_add_u32 s9, s8, 4096")
        a("s_waitcnt vmcnt(4)")
        self.silu_run()
        for ks in range(2): a(f"ds_read_b128 v[{32+4*ks}:{35+4*ks}], v6 offset:{64*ks}")
        a("s_waitcnt vmcnt(0) lgkmcnt(0)")
        self.tag()
        self.rdy_publish(44, "s5")
        a("buffer_load_dwordx4 v[232:235], v2, s[40:43], s54 offen sc1")
        a("s_mov_b64 exec, 1")
        a("buffer_load_dword v236, v2, s[40:43], s55 offen sc1")
        a("s_mov_b64 exec, -1")
        self.stamp(1)
        for ks in range(2):
            for t in range(8): self.tr(64 + 32 * ks + 4 * t, 8 + t, 8192 * ks, 4096)
        a("s_waitcnt lgkmcnt(0)")
        for ks in range(2):
            for t in range(8): self.mfma(128 + 4 * t, 64 + 32 * ks + 4 * t, 32 + 4 * ks, ks == 0)
        for t in range(8):
            a(f"v_cvt_pk_bf16_f32 v{128+4*t}, v{128+4*t}, v{129+4*t}")
            a(f"v_cvt_pk_bf16_f32 v{129+4*t}, v{130+4*t}, v{131+4*t}")
            a(f"v_mov_b32 v{130+4*t}, s14")
        self.exec16(3)
        for t in range(0 if self.o.get("nohp") else 8): a(f"buffer_store_dwordx4 v[{128+4*t}:{131+4*t}], v7, s[40:43], s{8+(t>>2)} offen offset:{1024*(t&3)} sc1")
        a("s_mov_b64 exec, -1")
        self.stamp(2)
        self.end(True)

    def tw_main(self):
        a = self.a
        self.stamp(1)
        a("s_load_dword s14, s[40:41], 0")
        a("v_lshlrev_b32 v23, 3, v23")
        a("v_lshl_add_u32 v22, v22, 2, v23")
        a("s_mul_i32 s13, s3, 272")
        a(f"s_add_u32 s13, s13, {QB}")
        a("v_add_u32 v22, s13, v22")
        a("v_xor_b32 v3, v8, v1")
        a("v_lshlrev_b32 v3, 4, v3")
        a("v_lshl_add_u32 v3, v8, 8, v3")
        a("v_add_u32 v8, s7, v3")
        a("v_xor_b32 v9, 64, v8")
        a("v_xor_b32 v10, 0x80, v8")
        a("v_xor_b32 v11, 0xc0, v8")
        a("s_waitcnt vmcnt(18)")
        for t in range(4):
            for ks in range(4):
                r = 64 + 16 * t + 4 * ks
                a(f"ds_read_b128 v[{r}:{r+3}], v{8+ks} offset:{4096*t}")
        a("s_lshl_b32 s8, s3, 6")
        self.traddr256(12, 2, VB, 3, 5, first="s8")
        a("v_mul_u32_u24 v20, 272, v5")
        a("v_lshl_add_u32 v20, v1, 4, v20")
        a(f"v_add_u32 v20, {QB}, v20")
        a("v_lshlrev_b32 v14, 6, v5")
        a("v_lshl_add_u32 v14, v1, 4, v14")
        a(f"v_add_u32 v14, {PB}, v14")
        a("s_lshl_b32 s9, s3, 9")
        a("v_add_u32 v15, s9, v14")
        a("v_lshlrev_b32 v16, 4, v5")
        a(f"v_add_u32 v16, {MX}, v16")
        a("s_lshl_b32 s9, s3, 2")
        a("v_add_u32 v17, s9, v16")
        a("v_lshlrev_b32 v18, 8, v5")
        a("v_lshl_add_u32 v18, v1, 4, v18")
        a("v_lshlrev_b32 v19, 2, v5")
        a("s_lshl_b32 s6, s4, 4")
        a("s_add_u32 s6, s6, s5")
        a("s_lshl_b32 s9, s6, 10")
        a("s_add_u32 s8, s8, s9")
        a(f"s_add_u32 s8, s8, {HC}")
        a("s_lshl_b32 s52, s6, 7")
        a(f"s_add_u32 s52, s52, {HL}")
        a(f"s_add_u32 s53, s8, {LOC}")
        a(f"s_add_u32 s54, s52, {LOC}")
        a(f"s_mov_b32 s10, {f32(CSC)}")
        a("s_lshl_b64 s[58:59], 1, s3")
        for i in range(4): a(f"v_mov_b32 v{232+i}, 0x3f803f80")
        def vr(k):
            for t in range(2): self.tr(128 + 8 * k + 4 * t, 12 + t, 8192 * k, 4096)
        def xrow(op, r):
            a(f"v_mov_b32 v225, v{r}")
            a(f"v_permlane16_swap_b32 v{r}, v225")
            a(f"{op} v{r}, v{r}, v225")
            a(f"v_mov_b32 v225, v{r}")
            a(f"v_permlane32_swap_b32 v{r}, v225")
            a(f"{op} v{r}, v{r}, v225")
        a("s_waitcnt lgkmcnt(0)")
        self.tag()
        a(f"s_mov_b32 s12, {SPIN}")
        a(f"s_waitcnt vmcnt({17-4*self.o.get('qpos', 3)})")
        self.stamp(2)
        a("v_cmp_ne_u32 vcc, s14, v30")
        self.unpack(28, 24, 2)
        a("s_cbranch_vccz LTq2")
        a("s_branch LTq1")
        a.label("LTq0")
        a("buffer_load_dwordx4 v[32:35], v21, s[40:43], s55 offen sc1")
        a.label("LTq1")
        a("s_waitcnt vmcnt(0)")
        a("v_cmp_ne_u32 vcc, s14, v34")
        self.unpack(32, 24, 2)
        a("s_cbranch_vccz LTq2")
        a("s_sub_u32 s12, s12, 1")
        a("s_cbranch_scc0 LTq0")
        a.label("LTq2")
        a("s_nop 0")
        a("v_permlane32_swap_b32 v24, v26")
        a("v_permlane32_swap_b32 v25, v27")
        a("v_pk_add_f32 v[24:25], v[24:25], v[26:27]")
        a("v_cvt_pk_bf16_f32 v24, v24, v25")
        a("ds_write_b32 v22, v24")
        a("s_waitcnt lgkmcnt(0)")
        a("s_barrier")
        for ks in range(4): a(f"ds_read_b128 v[{208+4*ks}:{211+4*ks}], v20 offset:{64*ks}")
        self.stamp(3)
        a("s_waitcnt lgkmcnt(0)")
        for ks in range(4):
            for t in range(4): self.mfma(40 + 4 * t, 64 + 16 * t + 4 * ks, 208 + 4 * ks, ks == 0)
        a("v_max3_f32 v224, v40, v41, v42")
        a("v_max3_f32 v225, v43, v44, v45")
        a("v_max3_f32 v226, v46, v47, v48")
        a("v_max3_f32 v227, v49, v50, v51")
        a("v_max3_f32 v228, v52, v53, v54")
        a("v_max3_f32 v224, v224, v225, v226")
        a("v_max3_f32 v227, v227, v228, v55")
        a("v_max_f32 v224, v224, v227")
        xrow("v_max_f32", 224)
        a("ds_write_b32 v17, v224")
        a("s_waitcnt lgkmcnt(0)")
        a("s_barrier")
        a("ds_read_b128 v[224:227], v16")
        a("s_waitcnt lgkmcnt(0)")
        a("v_max3_f32 v224, v224, v225, v226")
        a("v_max_f32 v224, v224, v227")
        a(f"v_mul_f32 v230, {f32(-CSC)}, v224")
        for i in range(8): a(f"v_pk_fma_f32 v[{40+2*i}:{41+2*i}], v[{40+2*i}:{41+2*i}], s[10:11], v[230:231] op_sel_hi:[1,0,0]")
        for i in range(16): a(f"v_exp_f32 v{40+i}, v{40+i}")
        for i in range(8): a(f"v_cvt_pk_bf16_f32 v{56+i}, v{40+2*i}, v{41+2*i}")
        self.exec16(15)
        a("ds_write_b128 v15, v[56:59]")
        a("ds_write_b128 v15, v[60:63] offset:256")
        a("s_mov_b64 exec, -1")
        a("s_waitcnt vmcnt(9) lgkmcnt(0)")
        a("s_barrier")
        self.stamp(4)
        for k in range(8): a(f"ds_read_b128 v[{64+4*k}:{67+4*k}], v14 offset:{256*k}")
        def pv(k, first=False):
            for t in range(2): self.mfma(192 + 4 * t, 128 + 8 * k + 4 * t, 64 + 4 * k, first)
        for k in (0, 2, 4, 6): vr(k)
        a("s_waitcnt lgkmcnt(15)")
        for k in range(8): self.mfma(96, 232, 64 + 4 * k, k == 0)
        for i, k in enumerate((0, 2, 4, 6)):
            a(f"s_waitcnt lgkmcnt({12-4*i})")
            pv(k, i == 0)
        a("v_rcp_f32 v36, v96")
        a("v_log_f32 v37, v96")
        a("s_waitcnt vmcnt(1)")
        a("s_barrier")
        self.stamp(9)
        for k in (1, 3, 5, 7): vr(k)
        a("v_sub_f32 v37, v37, v230")
        a("s_mov_b64 exec, s[58:59]")
        if self.o.get("loc", 1): a("buffer_store_dword v37, v19, s[40:43], s54 offen")
        a("buffer_store_dword v37, v19, s[40:43], s52 offen sc1")
        a("s_mov_b64 exec, -1")
        for i, k in enumerate((1, 3, 5, 7)):
            a(f"s_waitcnt lgkmcnt({12-4*i})")
            pv(k)
        self.exec16(15)
        for i in range(4): a(f"v_pk_mul_f32 v[{192+2*i}:{193+2*i}], v[{192+2*i}:{193+2*i}], v[36:37] op_sel_hi:[1,0]")
        for i in range(4): a(f"v_cvt_pk_bf16_f32 v{200+i}, v{192+2*i}, v{193+2*i}")
        if self.o.get("loc", 1): a("buffer_store_dwordx4 v[200:203], v18, s[40:43], s53 offen")
        a("buffer_store_dwordx4 v[200:203], v18, s[40:43], s8 offen sc1")
        a("s_mov_b64 exec, -1")
        self.stamp(5)
        if self.o.get("nored"): self.end()
        a("s_cmp_lt_u32 s5, 4")
        a("s_cbranch_scc0 LTWe")
        a("s_cmp_eq_u32 s3, 1")
        a("s_cbranch_scc0 LTWe")
        a("s_lshl_b32 s6, s4, 2")
        a("s_add_u32 s6, s6, s5")
        self.srd(44, 16, 2048)
        self.srd(48, 38, 2048)
        a("v_bfe_u32 v2, v0, 2, 1")
        a("v_and_b32 v3, 3, v0")
        a("v_lshlrev_b32 v4, 3, v3")
        a("v_lshl_add_u32 v5, v2, 10, v4")
        a("v_lshlrev_b32 v6, 1, v5")
        a("v_lshrrev_b32 v8, 3, v0")
        a("v_lshl_add_u32 v7, v8, 12, v6")
        a("v_lshlrev_b32 v9, 4, v0")
        a("s_lshl_b32 s7, s6, 5")
        a("s_lshl_b32 s8, s6, 6")
        a(f"s_add_u32 s9, s8, {HD}")
        a(f"s_add_u32 s52, s8, {HM}")
        a(f"s_add_u32 s53, s8, {HM+3*4096}")
        a(f"s_mul_i32 s54, s6, {HFS}")
        a(f"s_add_u32 s54, s54, {HF}")
        a("s_add_u32 s55, s54, 4096")
        a("buffer_load_dwordx2 v[10:11], v5, s[44:47], s7 offen")
        a(f"s_mov_b32 s27, {RDY}")
        self.poll([f"buffer_load_dword v{40+i}, v9, s[40:43], s27 offen offset:{1024*i} sc1" for i in range(4)]
                  + ["buffer_load_dwordx4 v[12:15], v6, s[40:43], s52 offen sc1", "buffer_load_dwordx4 v[16:19], v6, s[40:43], s53 offen sc1"],
                  [(*self.TAGBAD, 40 + i) for i in range(4)] + [(*self.TAGBAD, 14), (*self.TAGBAD, 18)], sleep=2)
        self.poll(["buffer_load_dwordx4 v[24:27], v7, s[40:43], s9 offen sc1"], [(*self.POISON, 24)], sleep=2)
        self.stamp(6)
        a("s_cmp_eq_u32 s6, 0")
        a("s_cbranch_scc0 LTWn")
        a("s_mov_b64 exec, 1")
        a("v_mov_b32 v20, s14")
        a("v_mov_b32 v21, 0")
        a(f"buffer_store_dword v20, v21, s[40:43], 0 offen offset:{EPOCH} sc1")
        a("s_mov_b64 exec, -1")
        a.label("LTWn")
        red8 = self.red8
        red8(24)
        self.unpack(10, 28, 2)
        self.unpack(12, 32, 2)
        self.unpack(16, 36, 2)
        for i in range(4): a(f"v_fmac_f32 v{28+i}, v{24+i}, v{32+i}")
        self.sum_poll([f"buffer_load_dwordx4 v[{64+4*i}:{67+4*i}], v9, s[40:43], s{54+(i>>2)} offen offset:{1024*(i&3)} sc1" for i in range(7)], 64, 56)
        self.stamp(7)
        red8(56)
        for i in range(4): a(f"v_fmac_f32 v{28+i}, v{56+i}, v{36+i}")
        a("v_cvt_pk_bf16_f32 v10, v28, v29")
        a("v_cvt_pk_bf16_f32 v11, v30, v31")
        a("s_mov_b64 exec, 0xff")
        a("buffer_store_dwordx2 v[10:11], v5, s[48:51], s7 offen " + ["", "sc1", "nt", "sc0 sc1"][self.o.get("oflag", 0)])
        self.stamp(8)
        if self.o.get("padto"):
            a("s_cmp_eq_u32 s6, 0")
            a("s_cbranch_scc0 LTWe")
        if self.o.get("padto"):
            a(f"s_mov_b32 s100, {self.o['padto']}")
            if self.o.get("amp"):
                a("s_waitcnt lgkmcnt(0)")
                a(f"s_sub_u32 s98, s{64+2*self.o['amp']}, s96")
                a("s_mul_i32 s98, s98, 10")
                a("s_add_u32 s100, s100, s98")
            a.label("Lpad")
            a("s_memrealtime s[98:99]")
            a("s_waitcnt lgkmcnt(0)")
            a("s_sub_u32 s98, s98, s96")
            a("s_cmp_lt_u32 s98, s100")
            a("s_cbranch_scc1 Lpad")
        a.label("LTWe")
        self.end()

    def ww_main(self):
        a, wf = self.a, self.wf
        a.label("LWHp")
        a("s_branch LWH2")
        a.label("LW2")
        self.stamp(1)
        self.traddr256(8, 8, "s7", 3, 5)
        a("s_lshr_b32 s58, s7, 2")
        a(f"s_add_u32 s58, s58, {GA}")
        a("v_and_b32 v3, 7, v0")
        a("v_lshlrev_b32 v3, 7, v3")
        a("v_lshl_add_u32 v3, v1, 5, v3")
        a("v_bfe_u32 v4, v0, 3, 1")
        a("v_lshl_add_u32 v16, v4, 4, v3")
        a("v_add_u32 v16, s58, v16")
        a("v_add_u32 v20, 2048, v16")
        a("v_add_u32 v22, 8, v16")
        a("v_lshlrev_b32 v21, 4, v0")
        a("s_lshl_b32 s9, s8, 12")
        a(f"s_add_u32 s9, s9, {HA}")
        a("v_lshrrev_b32 v3, 5, v0")
        a("v_and_b32 v4, 31, v0")
        a("v_lshlrev_b32 v17, 9, v3")
        a("v_lshl_add_u32 v17, v4, 2, v17")
        a("s_lshl_b32 s15, s3, 10")
        a(f"s_add_u32 s15, s15, {RED}")
        a("v_add_u32 v17, s15, v17")
        a(f"v_add_u32 v18, {RED}, v21")
        a("v_lshlrev_b32 v19, 4, v4")
        a("v_lshl_add_u32 v19, v3, 12, v19")
        a("s_lshl_b32 s15, s4, 13")
        a("s_and_b32 s52, s5, 7")
        a("s_lshl_b32 s52, s52, 9")
        a("s_add_u32 s15, s15, s52")
        a(f"s_add_u32 s55, s15, {HB}")
        self.voff128(2, 1024, 3, 4)
        a("s_lshl_b32 s53, s4, 19")
        a("s_lshl_b32 s15, s3, 17")
        a("s_add_u32 s53, s53, s15")
        a("s_lshr_b32 s15, s52, 2")
        a("s_add_u32 s53, s53, s15")
        a(f"s_add_u32 s59, s7, {WO+16384}")
        a("s_mov_b64 s[48:49], s[24:25]")
        a(f"s_mov_b32 s50, {4096*1024}")
        a("s_mov_b32 m0, s58")
        def agather():
            for t in range(4): a(f"buffer_load_dwordx4 v21, s[40:43], s9 offen offset:{1024*t} sc1 lds")
        agather()
        a("s_waitcnt vmcnt(4) lgkmcnt(0)")
        self.tag()
        self.stamp(2)
        for ks in range(2):
            for t in range(8): self.tr(64 + 32 * ks + 4 * t, 8 + t, 8192 * ks, 4096)
        a("v_mov_b32 v58, s14")
        a("v_mov_b32 v59, s14")
        a(f"s_mov_b32 s12, {SPIN if not self.o.get('asent', 0) else 8}")
        a("s_branch LWa1")
        a.label("LWa0")
        if self.o.get("asent", 0): self.ssent(9, [3072 + 128 * k + 8 for k in range(8)])
        agather()
        a.label("LWa1")
        a("s_waitcnt vmcnt(0)")
        a("ds_read2st64_b32 v[32:33], v22 offset0:0 offset1:4")
        a("ds_read2st64_b32 v[34:35], v22 offset0:8 offset1:12")
        a("ds_read2_b64 v[24:27], v16 offset0:0 offset1:128")
        a("ds_read2_b64 v[28:31], v20 offset0:0 offset1:128")
        a("s_waitcnt lgkmcnt(2)")
        for i in range(4): a(f"v_xor_b32 v{32+i}, s14, v{32+i}")
        a("v_or3_b32 v32, v32, v33, v34")
        a("v_or_b32 v32, v32, v35")
        a("v_cmp_ne_u32 vcc, 0, v32")
        a("s_waitcnt lgkmcnt(0)")
        a("s_cbranch_vccz LWa2")
        a("s_sub_u32 s12, s12, 1")
        a("s_cbranch_scc0 LWa0")
        a.label("LWa2")
        self.stamp(3)
        for ks in range(2):
            for t in range(8): self.mfma(128 + 4 * t, 24 + 4 * ks, 64 + 32 * ks + 4 * t, ks == 0)
        for t in range(8): a(f"v_pk_add_f32 v[{128+4*t}:{129+4*t}], v[{128+4*t}:{129+4*t}], v[{130+4*t}:{131+4*t}]")
        for t in range(8): a(f"v_add_f32 v{128+4*t}, v{128+4*t}, v{129+4*t}")
        for k in range(4): a(f"v_permlane16_swap_b32 v{128+8*k}, v{132+8*k}")
        for k in range(4): a(f"v_add_f32 v{128+8*k}, v{128+8*k}, v{132+8*k}")
        for k in range(4): a(f"ds_write_b32 v17, v{128+8*k} offset:{128*k}")
        a("s_waitcnt lgkmcnt(0)")
        a("s_barrier")
        a("s_cmp_eq_u32 s3, 0")
        a("s_cbranch_scc0 LW4")
        def red4(stride):
            for w in range(4): a(f"ds_read_b128 v[{24+4*w}:{27+4*w}], v18 offset:{stride*w}")
            a("s_waitcnt lgkmcnt(2)")
            for k in range(2): a(f"v_pk_add_f32 v[{24+2*k}:{25+2*k}], v[{24+2*k}:{25+2*k}], v[{28+2*k}:{29+2*k}]")
            a("s_waitcnt lgkmcnt(0)")
            for k in range(2): a(f"v_pk_add_f32 v[{32+2*k}:{33+2*k}], v[{32+2*k}:{33+2*k}], v[{36+2*k}:{37+2*k}]")
            for k in range(2): a(f"v_pk_add_f32 v[{24+2*k}:{25+2*k}], v[{24+2*k}:{25+2*k}], v[{32+2*k}:{33+2*k}]")
        red4(1024)
        a("v_cvt_pk_bf16_f32 v56, v24, v25")
        a("v_cvt_pk_bf16_f32 v57, v26, v27")
        a("buffer_store_dwordx4 v[56:59], v19, s[40:43], s55 offen sc1")
        self.stamp(4)
        a.label("LW4")
        a(f"s_add_u32 m0, s7, {WO}")
        a("s_barrier")
        if self.o.get("nowo"): self.end()
        a("v_and_b32 v3, 15, v0")
        a("v_lshlrev_b32 v13, 7, v3")
        a("s_lshl_b32 s9, s4, 14")
        a(f"s_add_u32 s9, s9, {HC}")
        a("s_lshl_b32 s8, s4, 11")
        a(f"s_add_u32 s8, s8, {HL}")
        a.label("LWd")
        a(f"buffer_load_dwordx4 v2, s[48:51], s53 offen {wf} lds")
        a("s_add_u32 m0, m0, 1024")
        a("s_add_u32 s53, s53, 8192")
        if self.o.get("wothr", 0): a(f"s_waitcnt vmcnt({self.o['wothr']})")
        a("s_cmp_lt_u32 m0, s59")
        a("s_cbranch_scc1 LWd")
        self.stamp(5)
        a("v_lshlrev_b32 v229, 4, v3")
        a("s_lshl_b32 s27, s4, 9")
        a(f"s_add_u32 s27, s27, {RDY}")
        self.rdy_load()
        a("s_lshl_b32 s15, s3, 8")
        a("s_add_u32 s9, s9, s15")
        a("s_lshl_b32 s15, s3, 2")
        a("s_add_u32 s8, s8, s15")
        a(f"s_add_u32 s15, s7, {WO}")
        self.traddr128(8, "s15", 3, 4)
        a("v_and_b32 v3, 15, v0")
        a("v_xor_b32 v12, v3, v1")
        a("v_lshlrev_b32 v12, 4, v12")
        a("v_lshl_add_u32 v4, v1, 10, v12")
        for i in range(1, 4):
            a(f"v_xor_b32 v{4+i}, {64*i}, v4")
            a(f"v_add_u32 v{4+i}, {3072*i}, v{4+i}")
        a("v_lshl_add_u32 v20, v3, 8, v12")
        a("v_add_u32 v20, s58, v20")
        for i in range(1, 4): a(f"v_xor_b32 v{20+i}, {64*i}, v20")
        a("v_lshlrev_b32 v14, 4, v1")
        a("v_lshrrev_b32 v12, 5, v0")
        a("v_lshlrev_b32 v15, 8, v12")
        a("v_and_b32 v12, 31, v0")
        a("v_lshl_add_u32 v15, v12, 2, v15")
        a("s_lshl_b32 s15, s3, 9")
        a(f"s_add_u32 s15, s15, {RED}")
        a("v_add_u32 v15, s15, v15")
        a("v_lshlrev_b32 v17, 4, v3")
        a("v_lshl_add_u32 v17, v1, 11, v17")
        a("s_lshl_b32 s55, s4, 12")
        a("s_lshr_b32 s15, s52, 1")
        a("s_add_u32 s55, s55, s15")
        a(f"s_add_u32 s55, s55, {HD}")
        a("s_mov_b32 m0, s58")
        a("v_mov_b32 v128, 0")
        a("s_waitcnt vmcnt(0)")
        self.stamp(6)
        for ks in range(4):
            for t in range(4): self.tr(64 + 16 * ks + 4 * t, 8 + t, 4096 * ks, 2048)
        self.rdy_check()
        def cbody():
            a("s_mov_b64 exec, 0xffff")
            a("buffer_load_dword v128, v13, s[40:43], s8 offen sc1")
            a("s_mov_b64 exec, -1")
            for i in range(4): a(f"buffer_load_dwordx4 v{4+i}, s[40:43], s9 offen offset:{1024*i} sc1 lds")
            a("s_waitcnt vmcnt(0)")
            for ks in range(4): a(f"ds_read_b128 v[{24+4*ks}:{27+4*ks}], v{20+ks}")
            a("s_waitcnt lgkmcnt(0)")
            a("v_max3_u32 v129, v24, v28, v128")
            a("v_max3_u32 v129, v129, v32, v36")
            a("v_cmp_eq_u32 s[10:11], -1, v129")
        self.stamp(9)
        self.spin(cbody, alt=([8, 9], LOC, self.o.get("every", 16)) if self.o.get("loc", 1) else None)
        self.stamp(7)
        D8 = ("quad_perm:[1,0,3,2]", "quad_perm:[2,3,0,1]", "row_half_mirror")
        def mf(ks):
            for t in range(4): self.mfma(40 + 4 * t, 24 + 4 * ks, 64 + 16 * ks + 4 * t, ks == 0)
        mf(0)
        a("v_mov_b32 v129, v128")
        for m in D8: a(f"v_max_f32_dpp v129, v129, v129 {m} row_mask:0xf bank_mask:0xf")
        a("v_sub_f32 v128, v128, v129")
        a("v_exp_f32 v128, v128")
        mf(1)
        a("v_mov_b32 v129, v128")
        for m in D8: a(f"v_add_f32_dpp v129, v129, v129 {m} row_mask:0xf bank_mask:0xf")
        a("v_rcp_f32 v129, v129")
        a("v_mul_f32 v128, v128, v129")
        for r in range(4): a(f"ds_bpermute_b32 v{130+r}, v14, v128 offset:{4*r}")
        mf(2)
        mf(3)
        a("s_waitcnt lgkmcnt(0)")
        for t in range(4): a(f"v_pk_mul_f32 v[{40+4*t}:{41+4*t}], v[{40+4*t}:{41+4*t}], v[130:131]")
        for t in range(4): a(f"v_pk_fma_f32 v[{40+4*t}:{41+4*t}], v[{42+4*t}:{43+4*t}], v[132:133], v[{40+4*t}:{41+4*t}]")
        for t in range(4): a(f"v_add_f32 v{40+4*t}, v{40+4*t}, v{41+4*t}")
        for k in range(2): a(f"v_permlane16_swap_b32 v{40+8*k}, v{44+8*k}")
        for k in range(2): a(f"v_add_f32 v{40+8*k}, v{40+8*k}, v{44+8*k}")
        for k in range(2): a(f"ds_write_b32 v15, v{40+8*k} offset:{128*k}")
        a("s_waitcnt lgkmcnt(0)")
        a("s_barrier")
        a("s_cmp_eq_u32 s3, 0")
        a("s_cbranch_scc0 LWe")
        a("s_mov_b32 exec_hi, 0")
        red4(512)
        a("buffer_store_dwordx4 v[24:27], v17, s[40:43], s55 offen sc1")
        self.stamp(8)
        a.label("LWe")
        self.end()

    def g_role(self):
        a, wf = self.a, self.wf
        self.g_index()
        a("s_cbranch_scc1 LM")
        a("s_and_b32 s52, s53, 1")
        a("s_cmp_eq_u32 s52, 0")
        a("s_cselect_b64 s[44:45], s[28:29], s[30:31]")
        a("s_cselect_b64 s[48:49], s[30:31], s[28:29]")
        a(f"s_mov_b32 s46, {512*3584}")
        a(f"s_mov_b32 s50, {512*3584}")
        a("s_lshl_b32 s52, s52, 13")
        a("v_lshrrev_b32 v1, 2, v0")
        a("v_bfe_u32 v2, v0, 4, 1")
        a("v_lshlrev_b32 v2, 1, v2")
        a("v_and_b32 v3, 3, v0")
        a("v_xor_b32 v2, v2, v3")
        a("v_mul_u32_u24 v4, 3584, v1")
        a("v_lshl_add_u32 v2, v2, 4, v4")
        a(f"s_mul_i32 s8, s3, {128*3584}")
        a("s_lshl_b32 s15, s53, 6")
        a("s_add_u32 s8, s8, s15")
        a(f"s_add_u32 s7, s7, {GU}")
        self.delay("fdel")
        if self.o.get("noffn"): self.end()
        self.stamp(5)
        for m in range(2):
            a("s_add_u32 m0, s7, s52")
            a("s_add_u32 s13, m0, 8192")
            a("s_mov_b32 s9, s8")
            a.label(f"LGd{m}")
            a(f"buffer_load_dwordx4 v2, s[{44+4*m}:{47+4*m}], s9 offen {wf} lds")
            a("s_add_u32 m0, m0, 1024")
            a(f"s_add_u32 s9, s9, {16*3584}")
            a("s_cmp_lt_u32 m0, s13")
            a(f"s_cbranch_scc1 LGd{m}")
            if m == 0: a("s_xor_b32 s52, s52, 8192")
        self.voff256(6, 10, 4, 5)
        a("s_mov_b64 s[44:45], s[32:33]")
        a(f"s_mov_b32 s46, {1792*1024}")
        a("s_lshl_b32 s9, s53, 15")
        a("s_lshl_b32 s15, s3, 8")
        a("s_add_u32 s9, s9, s15")
        a("s_lshl_b32 s6, s3, 13")
        a(f"s_add_u32 s6, s6, {DWN}")
        a("s_mov_b32 m0, s6")
        a("s_add_u32 s13, s6, 8192")
        a.label("LGd2")
        for i in range(2):
            a(f"buffer_load_dwordx4 v{6+i}, s[44:47], s9 offen {wf} lds")
            a("s_add_u32 m0, m0, 1024")
            a("s_add_u32 s9, s9, 4096")
        a("s_cmp_lt_u32 m0, s13")
        a("s_cbranch_scc1 LGd2")
        a("s_mov_b64 s[48:49], s[16:17]")
        a("s_mov_b32 s50, 2048")
        a("v_lshrrev_b32 v4, 5, v0")
        a("v_and_b32 v5, 31, v0")
        a("v_lshlrev_b32 v19, 3, v5")
        a("v_lshl_add_u32 v19, v4, 10, v19")
        a("buffer_load_dwordx2 v[24:25], v19, s[48:51], s15 offen")
        a("v_lshrrev_b32 v229, 3, v0")
        a("v_lshlrev_b32 v229, 9, v229")
        a("v_and_b32 v6, 7, v0")
        a("v_lshl_add_u32 v229, v6, 4, v229")
        a(f"s_mov_b32 s27, {RDY+256}")
        self.rdy_load()
        a("v_lshlrev_b32 v18, 1, v19")
        a("s_lshl_b32 s15, s3, 9")
        for k in range(3): a(f"s_add_u32 s{28+k}, s15, {HM+4096*k}")
        for k in range(8): a(f"s_add_u32 s{16+k}, s15, {HD+4096*k}")
        a("v_bfe_u32 v8, v0, 4, 1")
        a("v_lshlrev_b32 v8, 5, v8")
        a("v_lshl_add_u32 v8, v1, 6, v8")
        a("v_lshl_add_u32 v8, v3, 3, v8")
        a("v_add_u32 v8, s7, v8")
        a("v_xor_b32 v9, 32, v8")
        self.traddr256(10, 8, "s6", 6, 7)
        a("v_mul_u32_u24 v20, 816, v4")
        a("v_lshrrev_b32 v6, 3, v5")
        a("v_lshl_add_u32 v20, v6, 6, v20")
        a("v_lshl_add_u32 v20, v3, 4, v20")
        a("v_bfe_u32 v6, v0, 2, 1")
        a("v_lshl_add_u32 v20, v6, 3, v20")
        a(f"s_add_u32 s15, s7, {AROW_O}")
        a("v_add_u32 v20, s15, v20")
        a("v_mul_u32_u24 v22, 816, v6")
        a("v_and_b32 v7, 48, v0")
        a("v_add3_u32 v22, v22, v7, s15")
        a("s_mov_b32 s59, 272")
        a("v_and_b32 v21, 1, v0")
        a("v_mul_u32_u24 v21, 272, v21")
        a("v_add3_u32 v21, v21, v22, s59")
        a("v_lshl_add_u32 v227, v6, 6, v7")
        a(f"v_mul_u32_u24 v228, {HFS}, v4")
        a("v_lshl_add_u32 v228, v5, 2, v228")
        a("v_lshlrev_b32 v2, 4, v0")
        a("s_lshl_b32 s15, s3, 10")
        a("v_add_u32 v23, s15, v2")
        a("v_lshlrev_b32 v224, 3, v0")
        a("s_lshl_b32 s15, s3, 9")
        a("v_add_u32 v225, s15, v224")
        a("s_lshl_b32 s15, s3, 2")
        a("v_add_u32 v226, s15, v7")
        a("v_and_b32 v231, 16, v0")
        a("v_lshlrev_b32 v231, 1, v231")
        a(f"s_mul_i32 s26, s3, {8*HFS}")
        a("s_lshl_b32 s15, s53, 7")
        a("s_add_u32 s26, s26, s15")
        a(f"s_add_u32 s26, s26, {HF}")
        a(f"v_mov_b32 v232, {f32(1e-5)}")
        a("s_waitcnt vmcnt(0)")
        self.stamp(6)
        for m in range(2):
            for ks in range(4):
                for t in range(2): self.tr(64 + 32 * m + 8 * ks + 4 * t, 8 + t, 8192 * m + 2048 * ks, 1024)
        for dt in range(8): self.tr(128 + 4 * dt, 10 + dt, 0, 4096)
        self.unpack(24, 28, 2)
        self.rdy_check()
        self.poll([f"buffer_load_dwordx4 v[{160+4*k}:{163+4*k}], v18, s[40:43], s{28+k} offen sc1" for k in range(3)],
                  [(*self.TAGBAD, 162 + 4 * k) for k in range(3)], sleep=1)
        self.stamp(4)
        a("s_waitcnt lgkmcnt(0)")
        a("ds_write_b64 v20, v[164:165] offset:544")
        self.unpack(168, 196, 2)
        for i in range(4): a(f"v_add_f32 v{196+i}, 1.0, v{196+i}")
        a("v_cvt_pk_bf16_f32 v36, v196, v197")
        a("v_cvt_pk_bf16_f32 v37, v198, v199")
        a("ds_write_b64 v20, v[36:37] offset:272")
        for ks in range(4): a(f"ds_read_b128 v[{172+4*ks}:{175+4*ks}], v21 offset:{64*ks}")
        self.unpack(160, 192, 2)
        self.unpack(36, 196, 2)
        for i in range(4): a(f"v_mul_f32 v{200+i}, v{28+i}, v{196+i}")
        for i in range(4): a(f"v_mul_f32 v{196+i}, v{192+i}, v{196+i}")
        def mf(ks):
            for m in range(2):
                for t in range(2): self.mfma(40 + 8 * m + 4 * t, 172 + 4 * ks, 64 + 32 * m + 8 * ks + 4 * t, ks == 0)
        a("s_waitcnt lgkmcnt(0)")
        for ks in range(4): mf(ks)
        for m in range(2):
            for r in range(2): a(f"v_permlane32_swap_b32 v{40+8*m+r}, v{44+8*m+r}")
        a("v_mov_b32 v42, v48")
        a("v_mov_b32 v43, v49")
        a(f"ds_write_b128 v23, v[40:43] offset:{CSR}")
        a("s_waitcnt lgkmcnt(0)")
        a("s_barrier")
        for w in range(4): a(f"ds_read_b128 v[{208+4*w}:{211+4*w}], v2 offset:{CSR+1024*w}")
        a("s_waitcnt lgkmcnt(0)")
        for k in range(2):
            a(f"v_pk_add_f32 v[{208+2*k}:{209+2*k}], v[{208+2*k}:{209+2*k}], v[{212+2*k}:{213+2*k}]")
            a(f"v_pk_add_f32 v[{216+2*k}:{217+2*k}], v[{216+2*k}:{217+2*k}], v[{220+2*k}:{221+2*k}]")
        for k in range(2): a(f"v_pk_add_f32 v[{208+2*k}:{209+2*k}], v[{208+2*k}:{209+2*k}], v[{216+2*k}:{217+2*k}]")
        self.stamp(10)
        self.guard(1000)
        self.sum_poll([f"buffer_load_dwordx4 v[{160+4*k}:{163+4*k}], v18, s[40:43], s{16+k} offen sc1" for k in range(8)], 160, 56)
        self.stamp(7)
        for k in range(2): a(f"v_pk_fma_f32 v[{200+2*k}:{201+2*k}], v[{56+2*k}:{57+2*k}], v[{196+2*k}:{197+2*k}], v[{200+2*k}:{201+2*k}]")
        a("v_cvt_pk_bf16_f32 v32, v200, v201")
        a("v_cvt_pk_bf16_f32 v33, v202, v203")
        a("ds_write_b64 v20, v[32:33]")
        for ks in range(4): a(f"ds_read_b128 v[{172+4*ks}:{175+4*ks}], v22 offset:{64*ks}")
        for k in range(2): a(f"v_pk_fma_f32 v[{28+2*k}:{29+2*k}], v[{56+2*k}:{57+2*k}], v[{192+2*k}:{193+2*k}], v[{28+2*k}:{29+2*k}]")
        a("v_pk_add_f32 v[190:191], v[28:29], v[30:31]")
        a("v_pk_mul_f32 v[28:29], v[28:29], v[28:29]")
        a("v_pk_fma_f32 v[28:29], v[30:31], v[30:31], v[28:29]")
        a("v_add_f32 v190, v190, v191")
        a("v_add_f32 v191, v28, v29")
        a("v_permlane16_swap_b32 v190, v191")
        a("s_waitcnt lgkmcnt(3)")
        mf(0)
        a("v_add_f32 v190, v190, v191")
        a("s_waitcnt lgkmcnt(2)")
        mf(1)
        self.row_sum(190)
        a("s_waitcnt lgkmcnt(0)")
        mf(2)
        a(f"ds_write_b32 v226, v190 offset:{STAT}")
        mf(3)
        a("v_permlane32_swap_b32 v40, v44")
        a("v_permlane32_swap_b32 v48, v52")
        a("v_mov_b32 v41, v48")
        a(f"ds_write_b64 v225, v[40:41] offset:{REC}")
        a("s_waitcnt lgkmcnt(0)")
        a("s_barrier")
        self.stamp(8)
        a(f"ds_read_b128 v[24:27], v231 offset:{STAT}")
        a(f"ds_read_b128 v[28:31], v231 offset:{STAT+16}")
        for w in range(4): a(f"ds_read_b64 v[{64+2*w}:{65+2*w}], v224 offset:{REC+512*w}")
        a("s_waitcnt lgkmcnt(4)")
        a("v_pk_add_f32 v[24:25], v[24:25], v[26:27]")
        a("v_pk_add_f32 v[28:29], v[28:29], v[30:31]")
        a("v_add_f32 v24, v24, v25")
        a("v_add_f32 v28, v28, v29")
        a(f"v_mul_f32 v24, {f32(1/512)}, v24")
        a(f"v_fmamk_f32 v28, v28, {f32(1/512)}, v232")
        a("v_fma_f32 v28, -v24, v24, v28")
        a("v_rsq_f32 v28, v28")
        a("s_waitcnt lgkmcnt(0)")
        a("v_pk_add_f32 v[64:65], v[64:65], v[66:67]")
        a("v_pk_add_f32 v[68:69], v[68:69], v[70:71]")
        a("v_pk_add_f32 v[64:65], v[64:65], v[68:69]")
        a("v_fma_f32 v64, -v24, v208, v64")
        a("v_fma_f32 v65, -v24, v210, v65")
        a("v_fma_f32 v64, v64, v28, v209")
        a("v_fma_f32 v65, v65, v28, v211")
        a("v_max_f32 v64, 0, v64")
        a("v_mul_f32 v64, v64, v65")
        a("v_mov_b32_dpp v65, v64 quad_perm:[1,0,3,2] row_mask:0xf bank_mask:0xf")
        a("v_cvt_pk_bf16_f32 v64, v64, v65")
        for i, off in enumerate((0, 8, 128, 136)): a(f"ds_bpermute_b32 v{24+i}, v227, v64 offset:{off}")
        a("s_waitcnt lgkmcnt(0)")
        for dt in range(8): self.mfma(160 + 4 * dt, 24, 128 + 4 * dt, True)
        for k in range(4):
            a(f"v_permlane32_swap_b32 v{160+8*k}, v{164+8*k}")
            a(f"buffer_store_dword v{160+8*k}, v228, s[40:43], s26 offen sc1")
            if k < 3: a(f"s_add_u32 s26, s26, {2*HFS}")
        self.stamp(9)
        self.end()

    def small_helpers(self):
        a = self.a
        a.label("LGH2")
        a("s_setprio 3")
        self.tag()
        for i in range(4): a(f"v_mov_b32 v{32+i}, -1")
        self.g_index()
        a("s_cbranch_scc1 LGH3")
        a("v_lshrrev_b32 v3, 3, v0")
        a(f"v_mul_u32_u24 v3, {HFS}, v3")
        a("v_and_b32 v4, 7, v0")
        a("v_lshl_add_u32 v3, v4, 4, v3")
        a("s_lshl_b32 s15, s53, 7")
        a(f"s_add_u32 s15, s15, {HF}")
        for i in range(4):
            a("buffer_store_dwordx4 v[32:35], v3, s[40:43], s15 offen sc1")
            if i < 3: a(f"s_add_u32 s15, s15, {8*HFS}")
        a("s_waitcnt vmcnt(0)")
        a.label("LGH3")
        a("s_add_u32 s5, s5, 24")
        self.rdy_publish(8, "s5")
        a("s_endpgm")
        a.label("LWH2")
        a("s_setprio 3")
        for i in range(4): a(f"v_mov_b32 v{32+i}, -1")
        a("v_bfe_u32 v3, v0, 4, 1")
        a("v_lshlrev_b32 v3, 11, v3")
        a("v_and_b32 v4, 15, v0")
        a("v_lshl_add_u32 v3, v4, 4, v3")
        a("s_lshl_b32 s15, s4, 12")
        a("s_and_b32 s6, s5, 7")
        a("s_lshl_b32 s6, s6, 8")
        a("s_add_u32 s15, s15, s6")
        a(f"s_add_u32 s15, s15, {HD}")
        a("s_waitcnt lgkmcnt(0)")
        a("s_load_dword s14, s[40:41], 0")
        a("s_mov_b32 exec_hi, 0")
        a("buffer_store_dwordx4 v[32:35], v3, s[40:43], s15 offen sc1")
        a("s_waitcnt vmcnt(0) lgkmcnt(0)")
        self.tag()
        self.rdy_publish(8, "s5")
        a("s_endpgm")

    def m_role(self):
        a = self.a
        a.label("LM")
        if self.o.get("nom"): self.end()
        a("s_and_b32 s6, s4, 6")
        a("s_add_u32 s6, s6, s5")
        a("s_sub_u32 s6, s6, 6")
        a("s_lshl_b32 s6, s6, 2")
        a("s_add_u32 s6, s6, s3")
        a("s_lshl_b32 s8, s6, 12")
        a(f"s_add_u32 s8, s8, {HP}")
        a("s_lshr_b32 s9, s6, 3")
        a("s_lshl_b32 s9, s9, 12")
        a("s_and_b32 s6, s6, 7")
        a("s_lshl_b32 s6, s6, 8")
        a("s_add_u32 s9, s9, s6")
        a(f"s_add_u32 s9, s9, {HM}")
        a("v_lshlrev_b32 v2, 4, v0")
        a("v_and_b32 v3, 1, v0")
        a("v_lshlrev_b32 v3, 11, v3")
        a("v_bfe_u32 v4, v0, 1, 2")
        a("v_lshl_add_u32 v3, v4, 4, v3")
        self.poll([f"buffer_load_dwordx4 v[{40+4*t}:{43+4*t}], v2, s[40:43], s8 offen offset:{1024*t} sc1" for t in range(4)],
                  [(*self.TAGBAD, 42 + 4 * t) for t in range(4)], sleep=2)
        self.stamp(6)
        for t in range(4): self.unpack(40 + 4 * t, 64 + 4 * t, 2)
        for t in range(4): self.red8(64 + 4 * t)
        for t in range(4):
            a(f"v_cvt_pk_bf16_f32 v{40+4*t}, v{64+4*t}, v{65+4*t}")
            a(f"v_cvt_pk_bf16_f32 v{41+4*t}, v{66+4*t}, v{67+4*t}")
            a(f"v_mov_b32 v{42+4*t}, s14")
        a("s_mov_b64 exec, 0xff")
        for t in range(4): a(f"buffer_store_dwordx4 v[{40+4*t}:{43+4*t}], v3, s[40:43], s9 offen offset:{64*t} sc1")
        self.stamp(7)
        self.end()

    def red8(self, r):
        a = self.a
        for i in range(4): a(f"v_add_f32_dpp v{r+i}, v{r+i}, v{r+i} row_ror:8 row_mask:0xf bank_mask:0xf")
        for sw in ("16", "32"):
            for i in range(4): a(f"v_mov_b32 v{60+i}, v{r+i}")
            for i in range(4): a(f"v_permlane{sw}_swap_b32 v{r+i}, v{60+i}")
            for i in range(4): a(f"v_add_f32 v{r+i}, v{r+i}, v{60+i}")

    def build(self):
        self.prologue()
        self.ww_early()
        self.g_early()
        self.g_role()
        self.guard(2800, fall=False)
        self.ww_main()
        self.guard(3300, fall=False)
        self.tw_early()
        self.tw_issue()
        self.tw_main()
        self.guard(1700, fall=False)
        self.t_helper()
        self.m_role()
        self.small_helpers()
        if self.diag:
            self.a.label("Ldump")
            self.dump_stamps()
        self.a.label("Lexit")
        self.a("s_endpgm")
        self.a.label("Lcode_end")
        body = self.a.finish()
        head = open("cdna_kernels/" + NAME + ".s.ref").read().split("; Override launch geometry")[0]
        return head + f"""; Generated by gen/gen_kernel.py (hand-written generator): one persistent launch, 256 workgroups x 5 waves.
; @launch grid=(256,1,1) block=(320,1,1) lds={LDS_BYTES}
.amdgcn_target "amdgcn-amd-amdhsa--gfx950"
.text
.globl {KNAME}
.p2align 12
.type {KNAME},@function
{KNAME}:
{body}
.section .rodata,"a"
.p2align 6
.amdhsa_kernel {KNAME}
  .amdhsa_next_free_vgpr 240
  .amdhsa_next_free_sgpr 102
  .amdhsa_accum_offset 240
  .amdhsa_group_segment_fixed_size 0
  .amdhsa_kernarg_size 112
  .amdhsa_user_sgpr_count 2
  .amdhsa_user_sgpr_kernarg_segment_ptr 1
  .amdhsa_system_sgpr_workgroup_id_x 1
.end_amdhsa_kernel
"""

if __name__ == "__main__":
    import argparse
    ap = argparse.ArgumentParser()
    ap.add_argument("-o", default="cdna_kernels/" + NAME + ".s")
    ap.add_argument("--diag", action="store_true")
    ap.add_argument("--wflag", default="nt")
    ap.add_argument("--opt", action="append", default=[])
    args = ap.parse_args()
    opts = {}
    for o in args.opt:
        k, _, v = o.partition("=")
        opts[k] = int(v) if v else 1
    open(args.o, "w").write(Gen(args.diag, args.wflag, opts).build())
    print("wrote", args.o)
```

```python
import sys, struct
from asmlib import Asm

NAME = "adaLN_cond__sliding_block_cached__glu_gated_reglu__decode"
KNAME = NAME + "_kernel"

def f32(x): return "0x%08x" % struct.unpack("<I", struct.pack("<f", x))[0]

EPOCH = 0x0
RDY = 0x1000
HM = 0x4000
HA = 0x8000
ALOC = 0x8000
HB = 0x140000
HD = 0x20000
HL = HD + 0x8000
HC = HL + 0x4000
LOC = 0x24000
HF = HC + 0x20000 + LOC
HFS = 7168
HP = 0xD0000
STAMP = 0x100000
WS_SIZE = 0x200000
LDS_BYTES = 151552
KB, VB, MRW, PB, MX, LS, QB, SCT = 0, 65536, 131072, 147456, 149504, 149568, 149760, 150848
WQ, WO, GA, RED = 0, 65536, 131072, 147456
W1, GU, DWN, MRG, SC = 0, 16384, 81920, 114688, 147456
REC, CSR, STAT = W1, W1 + 4096, W1 + 8192
AROW_O = 4096

LOG2E = 1.4426950408889634
CSC = (128 ** -0.5) * LOG2E
SPIN = 20000
import os
if os.environ.get('SPIN'): SPIN = int(os.environ['SPIN'])
MFMA = "v_mfma_f32_16x16x32_bf16"

class Gen:
    POISON = ("v_cmp_eq_u32", "-1")
    TAGBAD = ("v_cmp_ne_u32", "s14")

    def __init__(self, diag=False, wflag="nt", opts=None):
        self.a = Asm()
        self.diag = diag
        self.wf = wflag
        self.o = opts or {}
        self.nlab = 0
    def lab(self, p="L"):
        self.nlab += 1
        return f"{p}{self.nlab}"
    def stamp(self, k):
        if self.diag or self.o.get("amp") == k: self.a(f"s_memrealtime s[{64+2*k}:{65+2*k}]")
    def dump_max(self):
        a = self.a
        a("s_load_dwordx2 s[44:45], s[0:1], 96")
        a("s_mov_b32 s46, 256")
        a("s_mov_b32 s47, 0x20000")
        a("s_mov_b64 exec, 1")
        a("v_mov_b32 v1, 0")
        a("s_waitcnt lgkmcnt(0)")
        def put(slot, reg):
            a(f"v_mov_b32 v4, {reg}")
            a(f"buffer_atomic_umax v4, v1, s[44:47], 0 offen offset:{4*slot} sc1")
        a("s_not_b32 s60, s64")
        put(0, "s60"); put(1, "s64")
        a("s_lshr_b32 s5, s2, 3")
        a("s_cmp_ge_u32 s5, 24")
        a("s_cbranch_scc1 LdG")
        a("s_cmp_ge_u32 s5, 16")
        a("s_cbranch_scc1 LdW")
        for slot, k in ((6, 3), (7, 9), (8, 5), (15, 8)): put(slot, f"s{64+2*k}")
        a("s_endpgm")
        a.label("LdW")
        for slot, k in ((3, 2), (4, 3), (5, 4), (9, 6), (10, 7), (11, 8)): put(slot, f"s{64+2*k}")
        a("s_endpgm")
        a.label("LdG")
        for slot, k in ((2, 3), (12, 6), (13, 7), (14, 9)): put(slot, f"s{64+2*k}")
    def dump_stamps(self):
        if not self.diag: return
        if self.o.get("dmax"): return self.dump_max()
        a = self.a
        a("s_waitcnt lgkmcnt(0)")
        a("s_mov_b64 exec, 1")
        a("s_mul_i32 s60, s2, 5")
        a("s_add_u32 s60, s60, s3")
        a("s_lshl_b32 s60, s60, 6")
        a(f"s_add_u32 s60, s60, {STAMP}")
        a("v_mov_b32 v1, 0")
        for q in range(3):
            for i in range(4):
                a(f"v_mov_b32 v{4+i}, s{64+2*(4*q+i)}")
            a(f"buffer_store_dwordx4 v[4:7], v1, s[40:43], s60 offen offset:{16*q}")
            a("s_nop 1")
    def end(self, helper=False):
        self.a("s_branch Ldump" if self.diag and (not helper or self.o.get("hdump")) else "s_endpgm")
    def delay(self, key):
        n = self.o.get(key, 0)
        if not n: return
        a = self.a
        L = self.lab("Ld")
        a.label(L)
        a("s_memrealtime s[98:99]")
        a("s_waitcnt lgkmcnt(0)")
        a("s_sub_u32 s98, s98, s64")
        a(f"s_cmp_lt_u32 s98, {n}")
        a(f"s_cbranch_scc1 {L}")
    def guard(self, n, fall=True):
        L = self.lab("Lg")
        if fall: self.a(f"s_branch {L}")
        self.a(f".p2align 12, , {n}")
        self.a.label(L)
    def srd(self, d, p, size):
        a = self.a
        a(f"s_mov_b64 s[{d}:{d+1}], s[{p}:{p+1}]")
        a(f"s_mov_b32 s{d+2}, {size}")
        a(f"s_mov_b32 s{d+3}, 0x20000")
    def tag(self):
        self.a("s_mul_i32 s14, s14, 0x9E3779B1")
        self.a("s_add_u32 s14, s14, 0x7F4A7C15")
    def exec16(self, m):
        self.a(f"s_mov_b32 exec_lo, {(m << 16 | m):#x}")
        self.a(f"s_mov_b32 exec_hi, {(m << 16 | m):#x}")
    def poll(self, loads, checks, sleep=0, after=None):
        a = self.a
        L = self.lab("Lp"); D = self.lab("Lpd")
        n = len(loads)
        a(f"s_mov_b32 s12, {SPIN}")
        a.label(L)
        for l in loads: a(l)
        for i, (op, opd, r) in enumerate(checks):
            a(f"s_waitcnt vmcnt({n-1-i})")
            if i == 0:
                a(f"{op} s[10:11], {opd}, v{r}")
            else:
                a(f"{op} vcc, {opd}, v{r}")
                a("s_or_b64 s[10:11], s[10:11], vcc")
            if after: after(i)
        a("s_cmp_eq_u64 s[10:11], 0")
        a(f"s_cbranch_scc1 {D}")
        if sleep: a(f"s_sleep {sleep}")
        a("s_sub_u32 s12, s12, 1")
        a(f"s_cbranch_scc0 {L}")
        a.label(D)
    def spin(self, body, sleep=0, alt=None):
        a = self.a
        L = self.lab("Lp"); D = self.lab("Lpd")
        n = SPIN
        if alt:
            sregs, delta, every = alt
            for i, r in enumerate(sregs):
                a(f"s_mov_b32 s{96+2*i}, s{r}")
                a(f"s_add_u32 s{97+2*i}, s{r}, {delta}")
                a(f"s_mov_b32 s{r}, s{97+2*i}")
            n = SPIN * 4 | (every - 1)
        a(f"s_mov_b32 s12, {n}")
        a.label(L)
        body()
        a("s_cmp_eq_u64 s[10:11], 0")
        a(f"s_cbranch_scc1 {D}")
        if sleep: a(f"s_sleep {sleep}")
        if alt:
            a(f"s_and_b32 s13, s12, {every-1}")
            for i, r in enumerate(sregs): a(f"s_cselect_b32 s{r}, s{97+2*i}, s{96+2*i}")
        a("s_sub_u32 s12, s12, 1")
        a(f"s_cbranch_scc0 {L}")
        a.label(D)
    def ssent(self, soff, offs, cnt=13):
        a = self.a
        L = self.lab("Ls"); D = self.lab("Lsd")
        a(f"s_mov_b32 s{cnt}, {SPIN}")
        a.label(L)
        for k, o in enumerate(offs): a(f"s_load_dword s{88+k}, s[40:41], s{soff} offset:{o} glc")
        a("s_waitcnt lgkmcnt(0)")
        for k in range(len(offs)): a(f"s_xor_b32 s{88+k}, s{88+k}, s14")
        for k in range(1, len(offs)): a(f"s_or_b32 s88, s88, s{88+k}")
        a(f"s_cbranch_scc0 {D}")
        a(f"s_sub_u32 s{cnt}, s{cnt}, 1")
        a(f"s_cbranch_scc0 {L}")
        a.label(D)
    def sum_poll(self, loads, base, acc):
        a = self.a
        n = len(loads)
        def body():
            for l in loads: a(l)
            for i in range(1, n):
                a(f"s_waitcnt vmcnt({n-1-i})")
                src = base if i == 1 else acc
                for k in range(2): a(f"v_pk_add_f32 v[{acc+2*k}:{acc+1+2*k}], v[{src+2*k}:{src+1+2*k}], v[{base+4*i+2*k}:{base+1+4*i+2*k}]")
            a(f"v_cmp_u_f32 s[10:11], v{acc}, v{acc+1}")
            a(f"v_cmp_u_f32 vcc, v{acc+2}, v{acc+3}")
            a("s_or_b64 s[10:11], s[10:11], vcc")
        self.spin(body)
    def silu(self, regs, tmp):
        a = self.a
        for i, r in enumerate(regs): a(f"v_mul_f32 v{tmp+i}, {f32(-LOG2E)}, v{r}")
        for i, r in enumerate(regs): a(f"v_exp_f32 v{tmp+i}, v{tmp+i}")
        for i, r in enumerate(regs): a(f"v_add_f32 v{tmp+i}, 1.0, v{tmp+i}")
        for i, r in enumerate(regs): a(f"v_rcp_f32 v{tmp+i}, v{tmp+i}")
        for i, r in enumerate(regs): a(f"v_mul_f32 v{r}, v{r}, v{tmp+i}")
    def unpack(self, src, dst, n):
        for i in range(n):
            self.a(f"v_lshlrev_b32 v{dst+2*i}, 16, v{src+i}")
            self.a(f"v_and_b32 v{dst+2*i+1}, 0xffff0000, v{src+i}")
    def row_sum(self, r):
        for m in ("quad_perm:[1,0,3,2]", "quad_perm:[2,3,0,1]", "row_half_mirror", "row_mirror"):
            self.a(f"v_add_f32_dpp v{r}, v{r}, v{r} {m} row_mask:0xf bank_mask:0xf")
    def silu_frag(self, base):
        a = self.a
        a("v_bfe_u32 v10, v0, 4, 1")
        a("v_mul_u32_u24 v5, 144, v10")
        a("v_bfe_u32 v4, v0, 3, 1")
        a("v_lshl_add_u32 v5, v4, 6, v5")
        a("v_and_b32 v4, 3, v0")
        a("v_lshl_add_u32 v5, v4, 4, v5")
        a("v_bfe_u32 v4, v0, 2, 1")
        a("v_lshl_add_u32 v5, v4, 3, v5")
        a(f"v_add_u32 v5, {base}, v5")
    def silu_run(self):
        a = self.a
        self.unpack(28, 16, 2)
        self.silu([16, 17, 18, 19], 24)
        a("v_cvt_pk_bf16_f32 v28, v16, v17")
        a("v_cvt_pk_bf16_f32 v29, v18, v19")
        a("ds_write_b64 v5, v[28:29]")
    def c_voff(self, d):
        a = self.a
        a(f"v_bfe_u32 v{d}, v0, 4, 1")
        a(f"v_lshlrev_b32 v{d}, 10, v{d}")
        a("v_and_b32 v11, 15, v0")
        a(f"v_lshl_add_u32 v{d}, v11, 3, v{d}")
    def mfma(self, d, A, B, first):
        c = "0" if first else f"v[{d}:{d+3}]"
        self.a(f"{MFMA} v[{d}:{d+3}], v[{A}:{A+3}], v[{B}:{B+3}], {c}")
    def tr(self, r, va, off, second):
        self.a(f"ds_read_b64_tr_b16 v[{r}:{r+1}], v{va} offset:{off}")
        self.a(f"ds_read_b64_tr_b16 v[{r+2}:{r+3}], v{va} offset:{off+second}")
    def voff256(self, d, stride_sh, t0, t1):
        a = self.a
        a(f"v_lshrrev_b32 v{t0}, 4, v0")
        a(f"v_and_b32 v{t1}, 15, v0")
        a(f"v_lshlrev_b32 v{d}, 1, v{t0}")
        a(f"v_xor_b32 v{d}, v{t1}, v{d}")
        a(f"v_lshlrev_b32 v{d}, 4, v{d}")
        a(f"v_lshl_add_u32 v{d}, v{t0}, {stride_sh}, v{d}")
        a(f"v_xor_b32 v{d+1}, 0x80, v{d}")
    def voff128(self, d, stride, t0, t1):
        a = self.a
        a(f"v_lshrrev_b32 v{t0}, 3, v0")
        a(f"v_and_b32 v{d}, 6, v{t0}")
        a(f"v_and_b32 v{t1}, 7, v0")
        a(f"v_xor_b32 v{d}, v{d}, v{t1}")
        a(f"v_mul_u32_u24 v{t0}, {stride}, v{t0}")
        a(f"v_lshl_add_u32 v{d}, v{d}, 4, v{t0}")
    def traddr256(self, d, n, base, t0, t1, first=None):
        a = self.a
        a(f"v_lshrrev_b32 v{t0}, 2, v0")
        a(f"v_and_b32 v{d}, 7, v{t0}")
        a(f"v_lshlrev_b32 v{d}, 5, v{d}")
        a(f"v_lshl_add_u32 v{d}, v{t0}, 8, v{d}")
        a(f"v_and_b32 v{t1}, 3, v0")
        a(f"v_lshl_add_u32 v{d}, v{t1}, 3, v{d}")
        if first: a(f"v_xor_b32 v{d}, {first}, v{d}")
        a(f"v_add_u32 v{d}, {base}, v{d}")
        for i in range(1, n): a(f"v_xor_b32 v{d+i}, {32*i}, v{d}")
    def traddr128(self, d, base, t0, t1, grp_sh=10, n=4):
        a = self.a
        a(f"v_bfe_u32 v{t0}, v0, 2, 3")
        a(f"v_bfe_u32 v{d}, v0, 3, 2")
        a(f"v_lshlrev_b32 v{d}, 5, v{d}")
        a(f"v_lshl_add_u32 v{d}, v{t0}, 7, v{d}")
        a(f"v_lshrrev_b32 v{t0}, 5, v0")
        a(f"v_lshl_add_u32 v{d}, v{t0}, {grp_sh}, v{d}")
        a(f"v_and_b32 v{t1}, 3, v0")
        a(f"v_lshl_add_u32 v{d}, v{t1}, 3, v{d}")
        if base is not None: a(f"v_add_u32 v{d}, {base}, v{d}")
        for i in range(1, n): a(f"v_xor_b32 v{d+i}, {32*i}, v{d}")

    def prologue(self):
        a = self.a
        a("s_cmp_ge_u32 s2, 256")
        a("s_cbranch_scc1 Lexit")
        a("s_load_dwordx16 s[16:31], s[0:1], 0")
        a("s_load_dwordx8 s[32:39], s[0:1], 64")
        a("s_load_dwordx2 s[40:41], s[0:1], 104")
        if self.diag:
            for k in range(1, 12): a(f"s_mov_b32 s{64+2*k}, 0")
        self.stamp(0)
        if self.o.get("padto"): a("s_memrealtime s[96:97]")
        a("s_getpc_b64 s[56:57]")
        a.label("Lpc0")
        a("s_lshr_b32 s5, s2, 3")
        a("v_lshrrev_b32 v1, 6, v0")
        a("s_mul_i32 s6, s5, 640")
        a("v_lshl_add_u32 v2, v1, 7, s6")
        a("v_min_u32 v2, Lcode_end-Lpc0-4, v2")
        a("global_load_dword v239, v2, s[56:57]")
        a("v_and_b32 v0, 63, v0")
        a("s_and_b32 s4, s2, 7")
        a("v_readfirstlane_b32 s3, v1")
        a(f"s_mov_b32 s42, {WS_SIZE}")
        a("s_mov_b32 s43, 0x20000")
        a("s_mov_b32 s47, 0x20000")
        a("s_mov_b32 s51, 0x20000")
        a("s_lshl_b32 s7, s3, 14")
        a("s_cmp_ge_u32 s5, 24")
        a("s_cbranch_scc1 LG0")
        a("s_cmp_eq_u32 s3, 4")
        a("s_cbranch_scc1 LH0")
        self.voff256(6, 8, 1, 8)
        a("s_mov_b32 m0, s7")
        a("s_cmp_ge_u32 s5, 16")
        a("s_cbranch_scc0 LT0")

    def tw_early(self):
        a, wf = self.a, self.wf
        a.label("LT0")
        a("s_and_b32 s6, s5, 8")
        a("s_add_u32 s6, s6, s4")
        a("s_lshl_b32 s6, s6, 21")
        a("s_and_b32 s8, s5, 7")
        a("s_lshl_b32 s8, s8, 16")
        a("s_add_u32 s6, s6, s8")
        a("s_add_u32 s6, s6, s7")
        a(f"s_add_u32 s6, s6, {6144*256}")
        a("v_xor_b32 v2, v8, v1")
        a("v_lshlrev_b32 v2, 4, v2")
        a("v_lshl_add_u32 v2, v1, 8, v2")
        a("v_xor_b32 v3, 64, v2")
        a("v_xor_b32 v4, 0x80, v2")
        a("v_xor_b32 v5, 0xc0, v2")
        a("s_mov_b32 s8, s6")
        a("s_add_u32 s9, s6, 16384")
        a("s_mov_b32 s46, 0x2000000")
        a("s_mov_b32 s50, 0x2000000")
        thr = self.o.get("thr", 0)
        thk = self.o.get("thk", 2)
        if thr: a(f"s_add_u32 s10, s6, {4096*thr}")
        a("s_waitcnt lgkmcnt(0)")
        a("s_mov_b64 s[44:45], s[18:19]")
        a("s_mov_b64 s[48:49], s[20:21]")
        a("s_load_dword s14, s[40:41], 0")
        if thr:
            a.label("LTWt")
            for i in range(4):
                a(f"buffer_load_dwordx4 v{2+i}, s[44:47], s8 offen offset:{1024*i} {wf} lds")
                a(f"s_waitcnt vmcnt({thk})")
            a("s_add_u32 m0, m0, 4096")
            a("s_add_u32 s8, s8, 4096")
            a("s_cmp_lt_u32 s8, s10")
            a("s_cbranch_scc1 LTWt")
        cap = self.o.get("cap", 7)
        if thr < 4:
            a.label("LTWk")
            for i in range(4):
                a(f"buffer_load_dwordx4 v{2+i}, s[44:47], s8 offen offset:{1024*i} {wf} lds")
                if cap: a(f"s_waitcnt vmcnt({cap})")
            a("s_add_u32 m0, m0, 4096")
            a("s_add_u32 s8, s8, 4096")
            a("s_cmp_lt_u32 s8, s9")
            a("s_cbranch_scc1 LTWk")
        self.stamp(10)
        if self.o.get("tnear"): a("s_branch LTW1")

    def tw_issue(self):
        a, wf = self.a, self.wf
        cap = self.o.get("vcap", 8)
        if self.o.get("tnear"):
            a.label("LTHp")
            a("s_branch LTH")
            a.label("LTW1")
        a("s_lshl_b32 s55, s4, 15")
        a("s_and_b32 s13, s5, 8")
        a("s_lshl_b32 s13, s13, 11")
        a("s_add_u32 s55, s55, s13")
        a("s_lshl_b32 s13, s3, 12")
        a("s_add_u32 s55, s55, s13")
        a(f"s_add_u32 s55, s55, {HB}")
        a("v_lshlrev_b32 v21, 4, v0")
        a(f"s_add_u32 m0, s7, {VB}")
        a("s_mov_b32 s8, s6")
        probe = self.o.get("probe", 0)
        a(f"v_mov_b32 v23, {LS}")
        a("s_mov_b32 s62, 0")
        a("s_waitcnt lgkmcnt(0)")
        self.tag()
        for g in range(4):
            if probe and g:
                L = self.lab("LTp")
                a("s_waitcnt lgkmcnt(0)")
                a("v_readfirstlane_b32 s13, v22")
                a("s_cmp_lg_u32 s62, 0")
                a(f"s_cbranch_scc1 {L}")
                a("s_cmp_lg_u32 s13, s14")
                a(f"s_cbranch_scc1 {L}")
                self.qfetch()
                a(f"s_mov_b32 s62, {5-g}")
                a.label(L)
            for i in range(4):
                if probe and g < 3 and i == 3: a("ds_read_b32 v22, v23")
                a(f"buffer_load_dwordx4 v{6+(i&1)}, s[48:51], s8 offen offset:{1024*i} {wf} lds")
                if cap: a(f"s_waitcnt vmcnt({cap})")
            if g < 3:
                a("s_add_u32 m0, m0, 4096")
                a("s_add_u32 s8, s8, 4096")
        a("s_cmp_lg_u32 s62, 0")
        a("s_cbranch_scc1 LTf")
        self.qfetch()
        a("s_mov_b32 s62, 1")
        a.label("LTf")

    def qfetch(self):
        for i in range(4): self.a(f"buffer_load_dwordx4 v[{192+4*i}:{195+4*i}], v21, s[40:43], s55 offen offset:{1024*i} sc1")

    def ww_early(self):
        a, wf = self.a, self.wf
        a.label("LW0")
        if self.o.get("now"): a("s_endpgm")
        a("s_lshl_b32 s9, s4, 19")
        a("s_and_b32 s52, s5, 7")
        a("s_lshl_b32 s15, s52, 10")
        a("s_add_u32 s9, s9, s15")
        a("s_lshl_b32 s15, s3, 8")
        a("s_add_u32 s9, s9, s15")
        a("v_mul_u32_u24 v2, 0x1f00, v1")
        a("v_add_u32 v6, v6, v2")
        a("v_add_u32 v7, v7, v2")
        a("s_add_u32 s13, s7, 16384")
        a(f"s_mov_b32 s46, {512*8192}")
        a("s_waitcnt lgkmcnt(0)")
        a("s_mov_b64 s[44:45], s[22:23]")
        self.delay("wdel")
        a("s_load_dword s14, s[40:41], 0")
        a.label("LWq")
        for i in range(2):
            a(f"buffer_load_dwordx4 v{6+i}, s[44:47], s9 offen {wf} lds")
            a("s_add_u32 m0, m0, 1024")
            a("s_add_u32 s9, s9, 32768")
        if self.o.get("qcap", 8): a(f"s_waitcnt vmcnt({self.o.get('qcap', 8)})")
        a("s_cmp_lt_u32 m0, s13")
        a("s_cbranch_scc1 LWq")
        a("s_branch LW2")
        a.label("LH0")
        a("s_cmp_ge_u32 s5, 16")
        a("s_cbranch_scc0 " + ("LTHp" if self.o.get("tnear") else "LTH"))
        a("s_branch LWHp")

    def g_early(self):
        a, wf = self.a, self.wf
        a.label("LG0")
        if self.o.get("nog"): a("s_endpgm")
        a("s_sub_u32 s5, s5, 24")
        if self.o.get("chs", 0):
            a("s_mov_b32 s60, s5")
            a("s_mov_b32 s61, s4")
        else:
            a("s_mov_b32 s60, s4")
            a("s_mov_b32 s61, s5")
        a("s_mov_b32 s50, 2048")
        a("s_cmp_eq_u32 s3, 4")
        a("s_cbranch_scc0 LGW")
        self.c_voff(4)
        a("s_lshl_b32 s9, s61, 7")
        a("s_waitcnt lgkmcnt(0)")
        a("s_mov_b64 s[48:49], s[34:35]")
        a("buffer_load_dwordx2 v[28:29], v4, s[48:51], s9 offen")
        a("s_load_dword s14, s[40:41], 0")
        if self.o.get("mr0", 0): a("s_barrier")
        self.silu_frag(SC)
        a("s_waitcnt vmcnt(0)")
        self.silu_run()
        a("s_waitcnt lgkmcnt(0)")
        a("s_barrier")
        a("s_barrier")
        a("s_branch LGH2")
        a.label("LGW")
        a("v_lshlrev_b32 v6, 4, v0")
        self.voff128(2, 6144, 1, 3)
        a("s_lshl_b32 s9, s61, 2")
        a("s_add_u32 s9, s9, s3")
        a(f"s_mul_i32 s9, s9, {16*6144}")
        a("s_lshl_b32 s6, s60, 7")
        a("s_add_u32 s9, s9, s6")
        a("s_lshl_b32 s13, s3, 5")
        a("s_add_u32 s6, s6, s13")
        a("v_and_b32 v12, 1, v0")
        a("v_and_b32 v13, 48, v0")
        a("v_lshrrev_b32 v4, 1, v13")
        a("v_lshl_add_u32 v4, v12, 10, v4")
        a("s_lshr_b32 m0, s7, 2")
        a(f"s_mov_b32 s54, {512*6144}")
        a("s_mov_b32 s55, 0x20000")
        a("s_lshl_b32 s8, s60, 12")
        a("s_lshl_b32 s15, s3, 10")
        a("s_add_u32 s8, s8, s15")
        a("s_lshl_b32 s15, s61, 7")
        a("s_add_u32 s8, s8, s15")
        a(f"s_add_u32 s8, s8, {HA}")
        a(f"s_add_u32 s62, s8, {ALOC}")
        a("s_waitcnt lgkmcnt(0)")
        a("s_mov_b64 s[48:49], s[16:17]")
        a("s_mov_b64 s[52:53], s[36:37]")
        a("buffer_load_dwordx4 v[24:27], v6, s[48:51], 0 offen")
        a("buffer_load_dwordx4 v[28:31], v6, s[48:51], 0 offen offset:1024")
        self.exec16(3)
        a("buffer_load_dwordx2 v[20:21], v4, s[48:51], s6 offen")
        a("s_mov_b64 exec, -1")
        for i in range(2):
            a(f"buffer_load_dwordx4 v2, s[52:55], s9 offen {wf} lds")
            a(f"buffer_load_dwordx4 v2, s[52:55], s9 offen offset:1024 {wf} lds")
            if i == 0:
                a("s_add_u32 m0, m0, 2048")
                a(f"s_add_u32 s9, s9, {8*6144}")
        a("s_mov_b64 exec, 1")
        a("buffer_load_dword v238, v6, s[40:43], s62 offen sc1")
        a("s_mov_b64 exec, -1")
        a("s_load_dword s14, s[40:41], 0")
        mr0 = 8 if self.o.get("mr0", 0) else 0
        if mr0:
            a("s_barrier")
            self.mr_issue()
        self.traddr128(8, None, 1, 3, grp_sh=11, n=1)
        a("v_xor_b32 v8, s13, v8")
        a("v_mul_u32_u24 v6, 144, v12")
        a("v_add_u32 v6, v6, v13")
        a(f"v_add_u32 v6, {SC}, v6")
        a("v_lshlrev_b32 v7, 4, v12")
        a("v_lshl_add_u32 v13, v13, 1, v7")
        a("s_cmp_eq_u32 s61, 0")
        a("s_cselect_b32 s9, 1.0, 0")
        for i in range(4): a(f"v_mov_b32 v{44+i}, s9")
        a("s_mov_b32 s9, 0x3f803f80")
        a("v_lshlrev_b32 v7, 7, v12")
        a(f"s_waitcnt vmcnt({5+mr0})")
        for b in range(2):
            a(f"v_dot2_f32_bf16 v{48+b}, v{24+4*b}, s9, 0")
            a(f"v_dot2_f32_bf16 v{50+b}, v{24+4*b}, v{24+4*b}, 0")
        for i in range(1, 4):
            for b in range(2):
                a(f"v_dot2_f32_bf16 v{48+b}, v{24+4*b+i}, s9, v{48+b}")
                a(f"v_dot2_f32_bf16 v{50+b}, v{24+4*b+i}, v{24+4*b+i}, v{50+b}")
        a("v_permlane32_swap_b32 v48, v49")
        a("v_permlane32_swap_b32 v50, v51")
        a("v_add_f32 v48, v48, v49")
        a("v_add_f32 v50, v50, v51")
        a("v_permlane16_swap_b32 v48, v50")
        a("v_add_f32 v48, v48, v50")
        self.row_sum(48)
        a("ds_bpermute_b32 v50, v7, v48")
        a("ds_bpermute_b32 v51, v7, v48 offset:64")
        a(f"v_mov_b32 v52, {f32(1e-5)}")
        a("s_waitcnt lgkmcnt(0)")
        self.tag()
        a(f"v_mul_f32 v50, {f32(1/512)}, v50")
        a(f"v_fmamk_f32 v51, v51, {f32(1/512)}, v52")
        a("v_fma_f32 v51, -v50, v50, v51")
        a("v_rsq_f32 v51, v51")
        self.unpack(20, 16, 2)
        for i in range(4): a(f"v_sub_f32 v{16+i}, v{16+i}, v50")
        for i in range(4): a(f"v_mul_f32 v{16+i}, v{16+i}, v51")
        a("v_mov_b32 v58, s14")
        a("v_mov_b32 v59, s14")
        a(f"s_waitcnt vmcnt({1+mr0})")
        a("s_barrier")
        self.stamp(1)
        for ks in range(2):
            a(f"ds_read_b128 v[{32+4*ks}:{35+4*ks}], v6 offset:{64*ks}")
            for seg in range(2): self.tr(64 + 8 * ks + 4 * seg, 8, W1 + 8192 * ks + 1024 * seg, 4096)
        a("s_waitcnt lgkmcnt(5)")
        self.mfma(40, 64, 32, True)
        self.mfma(44, 68, 32, False)
        a("s_waitcnt lgkmcnt(0)")
        self.mfma(40, 72, 36, False)
        self.mfma(44, 76, 36, False)
        self.exec16(3)
        for k in range(2): a(f"v_pk_fma_f32 v[{40+2*k}:{41+2*k}], v[{16+2*k}:{17+2*k}], v[{44+2*k}:{45+2*k}], v[{40+2*k}:{41+2*k}]")
        a("v_cvt_pk_bf16_f32 v56, v40, v41")
        a("v_cvt_pk_bf16_f32 v57, v42, v43")
        a("buffer_store_dwordx4 v[56:59], v13, s[40:43], s62 offen")
        a("buffer_store_dwordx4 v[56:59], v13, s[40:43], s8 offen sc1")
        a("s_mov_b64 exec, -1")
        self.stamp(3)
        a("s_barrier")

    def mr_issue(self):
        a, wf = self.a, self.wf
        a(f"s_mul_i32 s9, s61, {64*6144}")
        a("s_lshl_b32 s15, s60, 9")
        a("s_add_u32 s9, s9, s15")
        a("s_lshl_b32 s15, s3, 7")
        a("s_add_u32 s9, s9, s15")
        a("s_add_u32 s9, s9, 2048")
        a("s_lshr_b32 s63, s7, 1")
        a(f"s_add_u32 s63, s63, {MRG}")
        a("s_mov_b32 m0, s63")
        a("s_add_u32 s15, s63, 8192")
        a.label("LGm")
        a(f"buffer_load_dwordx4 v2, s[52:55], s9 offen {wf} lds")
        a("s_add_u32 m0, m0, 1024")
        a(f"s_add_u32 s9, s9, {8*6144}")
        a("s_cmp_lt_u32 m0, s15")
        a("s_cbranch_scc1 LGm")
    def rdy_publish(self, vb, jreg):
        a = self.a
        for i in range(4): a(f"v_mov_b32 v{vb+i}, s14")
        a(f"v_mov_b32 v{vb+4}, 0")
        a("s_lshl_b32 s15, s4, 5")
        a(f"s_add_u32 s15, s15, {jreg}")
        a("s_lshl_b32 s15, s15, 4")
        a(f"s_add_u32 s15, s15, {RDY}")
        a("s_mov_b64 exec, 1")
        a(f"buffer_store_dwordx4 v[{vb}:{vb+3}], v{vb+4}, s[40:43], s15 offen sc1")
        a("s_mov_b64 exec, -1")
    def rdy_load(self):
        self.a("buffer_load_dword v237, v229, s[40:43], s27 offen sc1")
    def rdy_check(self):
        a = self.a
        L = self.lab("Lok")
        a("v_cmp_ne_u32 vcc, s14, v237")
        a(f"s_cbranch_vccz {L}")
        self.poll(["buffer_load_dword v237, v229, s[40:43], s27 offen sc1"], [(*self.TAGBAD, 237)], sleep=2)
        a.label(L)

    def g_index(self):
        a = self.a
        a("s_lshr_b32 s53, s4, 1")
        a("s_mul_i32 s53, s53, 14")
        a("s_and_b32 s52, s4, 1")
        a("s_lshl_b32 s54, s52, 3")
        a("s_add_u32 s53, s53, s54")
        a("s_add_u32 s53, s53, s5")
        a("s_lshl_b32 s52, s52, 1")
        a("s_sub_u32 s52, 8, s52")
        a("s_cmp_ge_u32 s5, s52")

    def tw_main(self):
        a = self.a
        self.stamp(1)
        a("v_lshrrev_b32 v22, 5, v0")
        a("v_and_b32 v23, 31, v0")
        a("v_lshlrev_b32 v23, 1, v23")
        a("v_lshl_add_u32 v22, v22, 7, v23")
        a("s_mul_i32 s13, s3, 272")
        a(f"s_add_u32 s13, s13, {QB}")
        a("v_add_u32 v22, s13, v22")
        a("v_xor_b32 v3, v8, v1")
        a("v_lshlrev_b32 v3, 4, v3")
        a("v_lshl_add_u32 v3, v8, 8, v3")
        a("v_add_u32 v8, s7, v3")
        a("v_xor_b32 v9, 64, v8")
        a("v_xor_b32 v10, 0x80, v8")
        a("v_xor_b32 v11, 0xc0, v8")
        a("s_waitcnt vmcnt(20)")
        for t in range(4):
            for ks in range(4):
                r = 64 + 16 * t + 4 * ks
                a(f"ds_read_b128 v[{r}:{r+3}], v{8+ks} offset:{4096*t}")
        a("s_lshl_b32 s8, s3, 6")
        self.traddr256(12, 2, VB, 3, 5, first="s8")
        a("v_mul_u32_u24 v20, 272, v5")
        a("v_lshl_add_u32 v20, v1, 4, v20")
        a(f"v_add_u32 v20, {QB}, v20")
        a("v_lshlrev_b32 v14, 6, v5")
        a("v_lshl_add_u32 v14, v1, 4, v14")
        a(f"v_add_u32 v14, {PB}, v14")
        a("s_lshl_b32 s9, s3, 9")
        a("v_add_u32 v15, s9, v14")
        a("v_lshlrev_b32 v16, 4, v5")
        a(f"v_add_u32 v16, {MX}, v16")
        a("s_lshl_b32 s9, s3, 2")
        a("v_add_u32 v17, s9, v16")
        a("v_lshlrev_b32 v18, 8, v5")
        a("v_lshl_add_u32 v18, v1, 4, v18")
        a("v_lshlrev_b32 v19, 2, v5")
        a("s_lshl_b32 s6, s4, 4")
        a("s_add_u32 s6, s6, s5")
        a("s_lshl_b32 s9, s6, 10")
        a("s_add_u32 s8, s8, s9")
        a(f"s_add_u32 s8, s8, {HC}")
        a("s_lshl_b32 s52, s6, 7")
        a(f"s_add_u32 s52, s52, {HL}")
        a(f"s_add_u32 s53, s8, {LOC}")
        a(f"s_add_u32 s54, s52, {LOC}")
        a(f"s_mov_b32 s10, {f32(CSC)}")
        a("s_lshl_b64 s[58:59], 1, s3")
        for i in range(4): a(f"v_mov_b32 v{232+i}, 0x3f803f80")
        def vr(k):
            for t in range(2): self.tr(128 + 8 * k + 4 * t, 12 + t, 8192 * k, 4096)
        def xrow(op, r):
            a(f"v_mov_b32 v225, v{r}")
            a(f"v_permlane16_swap_b32 v{r}, v225")
            a(f"{op} v{r}, v{r}, v225")
            a(f"v_mov_b32 v225, v{r}")
            a(f"v_permlane32_swap_b32 v{r}, v225")
            a(f"{op} v{r}, v{r}, v225")
        a(f"s_mov_b32 s12, {SPIN}")
        for n in (3, 2, 1):
            a(f"s_waitcnt vmcnt({4*n})")
            a(f"s_cmp_gt_u32 s62, {n}")
            a("s_cbranch_scc1 LTq1")
        a("s_branch LTq3")
        a.label("LTq0")
        self.qfetch()
        a.label("LTq3")
        a("s_waitcnt vmcnt(0)")
        a.label("LTq1")
        self.stamp(2)
        for i in range(4): a(f"v_xor_b32 v{195+4*i}, s14, v{194+4*i}")
        a("v_or3_b32 v195, v195, v199, v203")
        a("v_or_b32 v195, v195, v207")
        a("v_cmp_ne_u32 vcc, 0, v195")
        a("s_cbranch_vccz LTq2")
        a("s_sub_u32 s12, s12, 1")
        a("s_cbranch_scc0 LTq0")
        a.label("LTq2")
        for i in range(4): self.unpack(192 + 4 * i, 24 + 4 * i, 2)
        for k in range(2):
            a(f"v_pk_add_f32 v[{24+2*k}:{25+2*k}], v[{24+2*k}:{25+2*k}], v[{28+2*k}:{29+2*k}]")
            a(f"v_pk_add_f32 v[{32+2*k}:{33+2*k}], v[{32+2*k}:{33+2*k}], v[{36+2*k}:{37+2*k}]")
        for k in range(2): a(f"v_pk_add_f32 v[{24+2*k}:{25+2*k}], v[{24+2*k}:{25+2*k}], v[{32+2*k}:{33+2*k}]")
        a("v_permlane32_swap_b32 v24, v26")
        a("v_permlane32_swap_b32 v25, v27")
        a("v_pk_add_f32 v[24:25], v[24:25], v[26:27]")
        a("v_cvt_pk_bf16_f32 v24, v24, v25")
        a("ds_write_b16 v22, v24")
        a("ds_write_b16_d16_hi v22, v24 offset:64")
        a("s_waitcnt lgkmcnt(0)")
        a("s_barrier")
        for ks in range(4): a(f"ds_read_b128 v[{208+4*ks}:{211+4*ks}], v20 offset:{64*ks}")
        self.stamp(3)
        a("s_waitcnt lgkmcnt(0)")
        for ks in range(4):
            for t in range(4): self.mfma(40 + 4 * t, 64 + 16 * t + 4 * ks, 208 + 4 * ks, ks == 0)
        a("v_max3_f32 v224, v40, v41, v42")
        a("v_max3_f32 v225, v43, v44, v45")
        a("v_max3_f32 v226, v46, v47, v48")
        a("v_max3_f32 v227, v49, v50, v51")
        a("v_max3_f32 v228, v52, v53, v54")
        a("v_max3_f32 v224, v224, v225, v226")
        a("v_max3_f32 v227, v227, v228, v55")
        a("v_max_f32 v224, v224, v227")
        xrow("v_max_f32", 224)
        a("ds_write_b32 v17, v224")
        a("s_waitcnt lgkmcnt(0)")
        a("s_barrier")
        a("ds_read_b128 v[224:227], v16")
        a("s_waitcnt lgkmcnt(0)")
        a("v_max3_f32 v224, v224, v225, v226")
        a("v_max_f32 v224, v224, v227")
        a(f"v_mul_f32 v230, {f32(-CSC)}, v224")
        for i in range(8): a(f"v_pk_fma_f32 v[{40+2*i}:{41+2*i}], v[{40+2*i}:{41+2*i}], s[10:11], v[230:231] op_sel_hi:[1,0,0]")
        for i in range(16): a(f"v_exp_f32 v{40+i}, v{40+i}")
        for i in range(8): a(f"v_cvt_pk_bf16_f32 v{56+i}, v{40+2*i}, v{41+2*i}")
        self.exec16(15)
        a("ds_write_b128 v15, v[56:59]")
        a("ds_write_b128 v15, v[60:63] offset:256")
        a("s_mov_b64 exec, -1")
        a("s_waitcnt vmcnt(8) lgkmcnt(0)")
        a("s_barrier")
        self.stamp(4)
        for k in range(8): a(f"ds_read_b128 v[{64+4*k}:{67+4*k}], v14 offset:{256*k}")
        def pv(k, first=False):
            for t in range(2): self.mfma(192 + 4 * t, 128 + 8 * k + 4 * t, 64 + 4 * k, first)
        for k in (0, 2, 4, 6): vr(k)
        a("s_waitcnt lgkmcnt(15)")
        for k in range(8): self.mfma(96, 232, 64 + 4 * k, k == 0)
        for i, k in enumerate((0, 2, 4, 6)):
            a(f"s_waitcnt lgkmcnt({12-4*i})")
            pv(k, i == 0)
        a("v_rcp_f32 v36, v96")
        a("v_log_f32 v37, v96")
        a("s_waitcnt vmcnt(0)")
        a("s_barrier")
        self.stamp(9)
        for k in (1, 3, 5, 7): vr(k)
        a("v_sub_f32 v37, v37, v230")
        a("s_mov_b64 exec, s[58:59]")
        if self.o.get("loc", 1): a("buffer_store_dword v37, v19, s[40:43], s54 offen")
        a("buffer_store_dword v37, v19, s[40:43], s52 offen sc1")
        a("s_mov_b64 exec, -1")
        for i, k in enumerate((1, 3, 5, 7)):
            a(f"s_waitcnt lgkmcnt({12-4*i})")
            pv(k)
        self.exec16(15)
        for i in range(4): a(f"v_pk_mul_f32 v[{192+2*i}:{193+2*i}], v[{192+2*i}:{193+2*i}], v[36:37] op_sel_hi:[1,0]")
        for i in range(4): a(f"v_cvt_pk_bf16_f32 v{200+i}, v{192+2*i}, v{193+2*i}")
        if self.o.get("loc", 1): a("buffer_store_dwordx4 v[200:203], v18, s[40:43], s53 offen")
        a("buffer_store_dwordx4 v[200:203], v18, s[40:43], s8 offen sc1")
        a("s_mov_b64 exec, -1")
        self.stamp(5)
        if self.o.get("nored"): self.end()
        a("s_cmp_lt_u32 s5, 4")
        a("s_cbranch_scc0 LTWe")
        a("s_cmp_eq_u32 s3, 1")
        a("s_cbranch_scc0 LTWe")
        a("s_lshl_b32 s6, s4, 2")
        a("s_add_u32 s6, s6, s5")
        self.srd(44, 16, 2048)
        self.srd(48, 38, 2048)
        a("v_bfe_u32 v2, v0, 2, 1")
        a("v_and_b32 v3, 3, v0")
        a("v_lshlrev_b32 v4, 3, v3")
        a("v_lshl_add_u32 v5, v2, 10, v4")
        a("v_lshlrev_b32 v6, 1, v5")
        a("v_lshrrev_b32 v8, 3, v0")
        a("v_lshl_add_u32 v7, v8, 12, v6")
        a("v_lshlrev_b32 v9, 4, v0")
        a("s_lshl_b32 s7, s6, 5")
        a("s_lshl_b32 s8, s6, 6")
        a(f"s_add_u32 s9, s8, {HD}")
        a(f"s_add_u32 s52, s8, {HM}")
        a(f"s_add_u32 s53, s8, {HM+3*4096}")
        a(f"s_mul_i32 s54, s6, {HFS}")
        a(f"s_add_u32 s54, s54, {HF}")
        a("s_add_u32 s55, s54, 4096")
        a("buffer_load_dwordx2 v[10:11], v5, s[44:47], s7 offen")
        a(f"s_mov_b32 s27, {RDY}")
        self.poll([f"buffer_load_dword v{40+i}, v9, s[40:43], s27 offen offset:{1024*i} sc1" for i in range(4)]
                  + ["buffer_load_dwordx4 v[12:15], v6, s[40:43], s52 offen sc1", "buffer_load_dwordx4 v[16:19], v6, s[40:43], s53 offen sc1"],
                  [(*self.TAGBAD, 40 + i) for i in range(4)] + [(*self.TAGBAD, 14), (*self.TAGBAD, 18)], sleep=2)
        self.poll(["buffer_load_dwordx4 v[24:27], v7, s[40:43], s9 offen sc1"], [(*self.POISON, 24)], sleep=2)
        self.stamp(6)
        a("s_cmp_eq_u32 s6, 0")
        a("s_cbranch_scc0 LTWn")
        a("s_mov_b64 exec, 1")
        a("v_mov_b32 v20, s14")
        a("v_mov_b32 v21, 0")
        a(f"buffer_store_dword v20, v21, s[40:43], 0 offen offset:{EPOCH} sc1")
        a("s_mov_b64 exec, -1")
        a.label("LTWn")
        red8 = self.red8
        red8(24)
        self.unpack(10, 28, 2)
        self.unpack(12, 32, 2)
        self.unpack(16, 36, 2)
        for i in range(4): a(f"v_fmac_f32 v{28+i}, v{24+i}, v{32+i}")
        self.sum_poll([f"buffer_load_dwordx4 v[{64+4*i}:{67+4*i}], v9, s[40:43], s{54+(i>>2)} offen offset:{1024*(i&3)} sc1" for i in range(7)], 64, 56)
        self.stamp(7)
        red8(56)
        for i in range(4): a(f"v_fmac_f32 v{28+i}, v{56+i}, v{36+i}")
        a("v_cvt_pk_bf16_f32 v10, v28, v29")
        a("v_cvt_pk_bf16_f32 v11, v30, v31")
        a("s_mov_b64 exec, 0xff")
        a("buffer_store_dwordx2 v[10:11], v5, s[48:51], s7 offen " + ["", "sc1", "nt", "sc0 sc1"][self.o.get("oflag", 0)])
        self.stamp(8)
        if self.o.get("padto"):
            a("s_cmp_eq_u32 s6, 0")
            a("s_cbranch_scc0 LTWe")
        if self.o.get("padto"):
            a(f"s_mov_b32 s100, {self.o['padto']}")
            if self.o.get("amp"):
                a("s_waitcnt lgkmcnt(0)")
                a(f"s_sub_u32 s98, s{64+2*self.o['amp']}, s96")
                a("s_mul_i32 s98, s98, 10")
                a("s_add_u32 s100, s100, s98")
            a.label("Lpad")
            a("s_memrealtime s[98:99]")
            a("s_waitcnt lgkmcnt(0)")
            a("s_sub_u32 s98, s98, s96")
            a("s_cmp_lt_u32 s98, s100")
            a("s_cbranch_scc1 Lpad")
        a.label("LTWe")
        self.end()

    def ww_main(self):
        a, wf = self.a, self.wf
        a.label("LWHp")
        a("s_branch LWH2")
        a.label("LW2")
        self.stamp(1)
        self.traddr256(8, 8, "s7", 3, 5)
        a("s_lshr_b32 s58, s7, 2")
        a(f"s_add_u32 s58, s58, {GA}")
        a("v_and_b32 v3, 7, v0")
        a("v_lshlrev_b32 v3, 7, v3")
        a("v_lshl_add_u32 v3, v1, 5, v3")
        a("v_bfe_u32 v4, v0, 3, 1")
        a("v_lshl_add_u32 v16, v4, 4, v3")
        a("v_add_u32 v16, s58, v16")
        a("v_add_u32 v20, 2048, v16")
        a("v_add_u32 v22, 8, v16")
        a("v_lshlrev_b32 v21, 4, v0")
        a("s_lshl_b32 s8, s4, 12")
        a(f"s_add_u32 s8, s8, {HA}")
        a(f"s_add_u32 s6, s8, {ALOC if self.o.get('aloc', 1) else 0}")
        a("s_mov_b32 s9, s6")
        a("v_lshrrev_b32 v3, 5, v0")
        a("v_and_b32 v4, 31, v0")
        a(f"v_add_u32 v18, {RED}, v21")
        a("v_lshlrev_b32 v19, 4, v4")
        a("v_lshl_add_u32 v19, v3, 14, v19")
        a("s_lshl_b32 s55, s52, 15")
        a("s_lshl_b32 s15, s3, 12")
        a("s_add_u32 s55, s55, s15")
        a("s_lshl_b32 s15, s4, 9")
        a("s_add_u32 s55, s55, s15")
        a(f"s_add_u32 s55, s55, {HB}")
        a("s_lshl_b32 s52, s52, 9")
        self.voff128(2, 1024, 3, 4)
        a("s_lshl_b32 s53, s4, 19")
        a("s_lshl_b32 s15, s3, 17")
        a("s_add_u32 s53, s53, s15")
        a("s_lshr_b32 s15, s52, 2")
        a("s_add_u32 s53, s53, s15")
        a(f"s_add_u32 s59, s7, {WO+16384}")
        a("s_mov_b64 s[48:49], s[24:25]")
        a(f"s_mov_b32 s50, {4096*1024}")
        a("s_mov_b32 m0, s58")
        def agather():
            for t in range(4): a(f"buffer_load_dwordx4 v21, s[40:43], s9 offen offset:{1024*t} sc1 lds")
        a(f"s_waitcnt vmcnt({self.o.get('apre', 2)})")
        agather()
        a("s_waitcnt vmcnt(4) lgkmcnt(0)")
        self.tag()
        self.stamp(2)
        for ks in range(2):
            for t in range(8): self.tr(64 + 32 * ks + 4 * t, 8 + t, 8192 * ks, 4096)
        a("v_mov_b32 v58, s14")
        a("v_mov_b32 v59, s14")
        a(f"s_mov_b32 s12, {SPIN*4 | 15}")
        a("s_branch LWa1")
        a.label("LWa0")
        a("s_and_b32 s13, s12, 15")
        a("s_cselect_b32 s9, s6, s8")
        agather()
        a.label("LWa1")
        a("s_waitcnt vmcnt(0)")
        a("ds_read2st64_b32 v[32:33], v22 offset0:0 offset1:4")
        a("ds_read2st64_b32 v[34:35], v22 offset0:8 offset1:12")
        a("ds_read2_b64 v[24:27], v16 offset0:0 offset1:128")
        a("ds_read2_b64 v[28:31], v20 offset0:0 offset1:128")
        a("s_waitcnt lgkmcnt(2)")
        for i in range(4): a(f"v_xor_b32 v{32+i}, s14, v{32+i}")
        a("v_or3_b32 v32, v32, v33, v34")
        a("v_or_b32 v32, v32, v35")
        a("v_cmp_ne_u32 vcc, 0, v32")
        a("s_waitcnt lgkmcnt(0)")
        a("s_cbranch_vccz LWa2")
        a("s_sub_u32 s12, s12, 1")
        a("s_cbranch_scc0 LWa0")
        a.label("LWa2")
        self.stamp(3)
        if self.diag:
            a(f"s_sub_u32 s84, {SPIN*4 | 15}, s12")
            a("s_mul_i32 s84, s84, 100")
            a("s_add_u32 s84, s84, s64")
        for ks in range(2):
            for t in range(8): self.mfma(128 + 4 * t, 24 + 4 * ks, 64 + 32 * ks + 4 * t, ks == 0)
        for t in range(8): a(f"v_pk_add_f32 v[{128+4*t}:{129+4*t}], v[{128+4*t}:{129+4*t}], v[{130+4*t}:{131+4*t}]")
        for t in range(8): a(f"v_add_f32 v{128+4*t}, v{128+4*t}, v{129+4*t}")
        for k in range(4): a(f"v_permlane16_swap_b32 v{128+8*k}, v{132+8*k}")
        for k in range(4): a(f"v_add_f32 v{128+8*k}, v{128+8*k}, v{132+8*k}")
        def red4(stride):
            for w in range(4): a(f"ds_read_b128 v[{24+4*w}:{27+4*w}], v18 offset:{stride*w}")
            a("s_waitcnt lgkmcnt(2)")
            for k in range(2): a(f"v_pk_add_f32 v[{24+2*k}:{25+2*k}], v[{24+2*k}:{25+2*k}], v[{28+2*k}:{29+2*k}]")
            a("s_waitcnt lgkmcnt(0)")
            for k in range(2): a(f"v_pk_add_f32 v[{32+2*k}:{33+2*k}], v[{32+2*k}:{33+2*k}], v[{36+2*k}:{37+2*k}]")
            for k in range(2): a(f"v_pk_add_f32 v[{24+2*k}:{25+2*k}], v[{24+2*k}:{25+2*k}], v[{32+2*k}:{33+2*k}]")
        a("v_cvt_pk_bf16_f32 v56, v128, v136")
        a("v_cvt_pk_bf16_f32 v57, v144, v152")
        a("buffer_store_dwordx4 v[56:59], v19, s[40:43], s55 offen sc1")
        self.stamp(4)
        a(f"s_add_u32 m0, s7, {WO}")
        a("s_barrier")
        if self.o.get("nowo"): self.end()
        self.delay("odel")
        a("v_and_b32 v3, 15, v0")
        a("v_lshlrev_b32 v13, 7, v3")
        a("s_lshl_b32 s9, s4, 14")
        a(f"s_add_u32 s9, s9, {HC}")
        a("s_lshl_b32 s8, s4, 11")
        a(f"s_add_u32 s8, s8, {HL}")
        a.label("LWd")
        a(f"buffer_load_dwordx4 v2, s[48:51], s53 offen {wf} lds")
        a("s_add_u32 m0, m0, 1024")
        a("s_add_u32 s53, s53, 8192")
        if self.o.get("wothr", 0): a(f"s_waitcnt vmcnt({self.o['wothr']})")
        a("s_cmp_lt_u32 m0, s59")
        a("s_cbranch_scc1 LWd")
        self.stamp(5)
        a("v_lshlrev_b32 v229, 4, v3")
        a("s_lshl_b32 s27, s4, 9")
        a(f"s_add_u32 s27, s27, {RDY}")
        self.rdy_load()
        a("s_lshl_b32 s15, s3, 8")
        a("s_add_u32 s9, s9, s15")
        a("s_lshl_b32 s15, s3, 2")
        a("s_add_u32 s8, s8, s15")
        a(f"s_add_u32 s15, s7, {WO}")
        self.traddr128(8, "s15", 3, 4)
        a("v_and_b32 v3, 15, v0")
        a("v_xor_b32 v12, v3, v1")
        a("v_lshlrev_b32 v12, 4, v12")
        a("v_lshl_add_u32 v4, v1, 10, v12")
        for i in range(1, 4):
            a(f"v_xor_b32 v{4+i}, {64*i}, v4")
            a(f"v_add_u32 v{4+i}, {3072*i}, v{4+i}")
        a("v_lshl_add_u32 v20, v3, 8, v12")
        a("v_add_u32 v20, s58, v20")
        for i in range(1, 4): a(f"v_xor_b32 v{20+i}, {64*i}, v20")
        a("v_lshlrev_b32 v14, 4, v1")
        a("v_lshrrev_b32 v12, 5, v0")
        a("v_lshlrev_b32 v15, 8, v12")
        a("v_and_b32 v12, 31, v0")
        a("v_lshl_add_u32 v15, v12, 2, v15")
        a("s_lshl_b32 s15, s3, 9")
        a(f"s_add_u32 s15, s15, {RED}")
        a("v_add_u32 v15, s15, v15")
        a("v_lshlrev_b32 v17, 4, v3")
        a("v_lshl_add_u32 v17, v1, 11, v17")
        a("s_lshl_b32 s55, s4, 12")
        a("s_lshr_b32 s15, s52, 1")
        a("s_add_u32 s55, s55, s15")
        a(f"s_add_u32 s55, s55, {HD}")
        a("s_mov_b32 m0, s58")
        a("v_mov_b32 v128, 0")
        a("s_waitcnt vmcnt(0)")
        self.stamp(6)
        for ks in range(4):
            for t in range(4): self.tr(64 + 16 * ks + 4 * t, 8 + t, 4096 * ks, 2048)
        self.rdy_check()
        def cbody():
            a("s_mov_b64 exec, 0xffff")
            a("buffer_load_dword v128, v13, s[40:43], s8 offen sc1")
            a("s_mov_b64 exec, -1")
            for i in range(4): a(f"buffer_load_dwordx4 v{4+i}, s[40:43], s9 offen offset:{1024*i} sc1 lds")
            a("s_waitcnt vmcnt(0)")
            for ks in range(4): a(f"ds_read_b128 v[{24+4*ks}:{27+4*ks}], v{20+ks}")
            a("s_waitcnt lgkmcnt(0)")
            a("v_max3_u32 v129, v24, v28, v128")
            a("v_max3_u32 v129, v129, v32, v36")
            a("v_cmp_eq_u32 s[10:11], -1, v129")
        self.stamp(9)
        self.spin(cbody, alt=([8, 9], LOC, self.o.get("every", 16)) if self.o.get("loc", 1) else None)
        self.stamp(7)
        D8 = ("quad_perm:[1,0,3,2]", "quad_perm:[2,3,0,1]", "row_half_mirror")
        def mf(ks):
            for t in range(4): self.mfma(40 + 4 * t, 24 + 4 * ks, 64 + 16 * ks + 4 * t, ks == 0)
        mf(0)
        a("v_mov_b32 v129, v128")
        for m in D8: a(f"v_max_f32_dpp v129, v129, v129 {m} row_mask:0xf bank_mask:0xf")
        a("v_sub_f32 v128, v128, v129")
        a("v_exp_f32 v128, v128")
        mf(1)
        a("v_mov_b32 v129, v128")
        for m in D8: a(f"v_add_f32_dpp v129, v129, v129 {m} row_mask:0xf bank_mask:0xf")
        a("v_rcp_f32 v129, v129")
        a("v_mul_f32 v128, v128, v129")
        for r in range(4): a(f"ds_bpermute_b32 v{130+r}, v14, v128 offset:{4*r}")
        mf(2)
        mf(3)
        a("s_waitcnt lgkmcnt(0)")
        for t in range(4): a(f"v_pk_mul_f32 v[{40+4*t}:{41+4*t}], v[{40+4*t}:{41+4*t}], v[130:131]")
        for t in range(4): a(f"v_pk_fma_f32 v[{40+4*t}:{41+4*t}], v[{42+4*t}:{43+4*t}], v[132:133], v[{40+4*t}:{41+4*t}]")
        for t in range(4): a(f"v_add_f32 v{40+4*t}, v{40+4*t}, v{41+4*t}")
        for k in range(2): a(f"v_permlane16_swap_b32 v{40+8*k}, v{44+8*k}")
        for k in range(2): a(f"v_add_f32 v{40+8*k}, v{40+8*k}, v{44+8*k}")
        for k in range(2): a(f"ds_write_b32 v15, v{40+8*k} offset:{128*k}")
        a("s_waitcnt lgkmcnt(0)")
        a("s_barrier")
        a("s_cmp_eq_u32 s3, 0")
        a("s_cbranch_scc0 LWe")
        a("s_mov_b32 exec_hi, 0")
        red4(512)
        a("buffer_store_dwordx4 v[24:27], v17, s[40:43], s55 offen sc1")
        self.stamp(8)
        a.label("LWe")
        self.end()

    def g_role(self):
        a, wf = self.a, self.wf
        mr0 = self.o.get("mr0", 0)
        if not mr0: self.mr_issue()
        a(f"s_add_u32 s7, s7, {GU}")
        self.g_index()
        a("s_cselect_b32 s62, 1, 0")
        a("s_cbranch_scc1 LGm0")
        a("s_and_b32 s52, s53, 1")
        a("s_cmp_eq_u32 s52, 0")
        a("s_cselect_b64 s[44:45], s[28:29], s[30:31]")
        a("s_cselect_b64 s[48:49], s[30:31], s[28:29]")
        a(f"s_mov_b32 s46, {512*3584}")
        a(f"s_mov_b32 s50, {512*3584}")
        a("s_lshl_b32 s52, s52, 13")
        a("v_lshrrev_b32 v1, 2, v0")
        a("v_bfe_u32 v2, v0, 4, 1")
        a("v_lshlrev_b32 v2, 1, v2")
        a("v_and_b32 v3, 3, v0")
        a("v_xor_b32 v2, v2, v3")
        a("v_mul_u32_u24 v4, 3584, v1")
        a("v_lshl_add_u32 v2, v2, 4, v4")
        a(f"s_mul_i32 s8, s3, {128*3584}")
        a("s_lshl_b32 s15, s53, 6")
        a("s_add_u32 s8, s8, s15")
        def mat(m):
            a("s_add_u32 m0, s7, s52")
            a("s_add_u32 s13, m0, 8192")
            a("s_mov_b32 s9, s8")
            a.label(f"LGd{m}")
            a(f"buffer_load_dwordx4 v2, s[{44+4*m}:{47+4*m}], s9 offen {wf} lds")
            a("s_add_u32 m0, m0, 1024")
            a(f"s_add_u32 s9, s9, {16*3584}")
            if self.o.get("gcap", 0): a(f"s_waitcnt vmcnt({self.o['gcap']})")
            a("s_cmp_lt_u32 m0, s13")
            a(f"s_cbranch_scc1 LGd{m}")
            a("s_xor_b32 s52, s52, 8192")
        early = self.o.get("fearly", 0)
        if early:
            self.delay("fdel")
            self.stamp(5)
            mat(0)
            a("s_waitcnt vmcnt(8)")
            a("s_branch LGm1")
        a.label("LGm0")
        a("s_waitcnt vmcnt(0)")
        a.label("LGm1")
        self.stamp(2)
        self.traddr128(8, "s63", 5, 6)
        for ks in range(2):
            for t in range(4): self.tr(64 + 16 * ks + 4 * t, 8 + t, 4096 * ks, 2048)
        a("s_lshl_b32 s9, s60, 14")
        a("s_lshl_b32 s15, s3, 12")
        a("s_add_u32 s9, s9, s15")
        a("s_lshl_b32 s15, s61, 7")
        a("s_add_u32 s9, s9, s15")
        a(f"s_add_u32 s9, s9, {HP}")
        a("s_waitcnt lgkmcnt(0)")
        for ks in range(2):
            for t in range(4): self.mfma(40 + 4 * t, 64 + 16 * ks + 4 * t, 32 + 4 * ks, ks == 0)
        self.exec16(3)
        for t in range(4):
            a(f"v_cvt_pk_bf16_f32 v{40+4*t}, v{40+4*t}, v{41+4*t}")
            a(f"v_cvt_pk_bf16_f32 v{41+4*t}, v{42+4*t}, v{43+4*t}")
            a(f"v_mov_b32 v{42+4*t}, s14")
        for t in range(4): a(f"buffer_store_dwordx4 v[{40+4*t}:{43+4*t}], v13, s[40:43], s9 offen offset:{1024*t} sc1")
        a("s_mov_b64 exec, -1")
        self.stamp(11)
        a("s_cmp_eq_u32 s62, 1")
        a("s_cbranch_scc1 LM")
        if self.o.get("noffn"): self.end()
        if not early:
            self.delay("fdel")
            self.stamp(5)
            mat(0)
        mat(1)
        a("s_mov_b64 s[48:49], s[16:17]")
        a("s_mov_b32 s50, 2048")
        a("v_lshrrev_b32 v4, 5, v0")
        a("v_and_b32 v5, 31, v0")
        a("v_lshlrev_b32 v19, 3, v5")
        a("v_lshl_add_u32 v19, v4, 10, v19")
        a("s_lshl_b32 s15, s3, 8")
        a("buffer_load_dwordx2 v[24:25], v19, s[48:51], s15 offen")
        a("s_lshl_b32 s9, s53, 15")
        a("s_add_u32 s9, s9, s15")
        a("v_lshrrev_b32 v229, 3, v0")
        a("v_lshlrev_b32 v229, 9, v229")
        a("v_and_b32 v6, 7, v0")
        a("v_lshl_add_u32 v229, v6, 4, v229")
        a(f"s_mov_b32 s27, {RDY+256}")
        self.rdy_load()
        a("v_lshlrev_b32 v18, 1, v19")
        a("s_lshl_b32 s15, s3, 9")
        for k in range(3): a(f"s_add_u32 s{28+k}, s15, {HM+4096*k}")
        mloads = [f"buffer_load_dwordx4 v[{160+4*k}:{163+4*k}], v18, s[40:43], s{28+k} offen sc1" for k in range(3)]
        for l in mloads: a(l)
        for k in range(8): a(f"s_add_u32 s{16+k}, s15, {HD+4096*k}")
        self.voff256(6, 10, 8, 9)
        a("s_mov_b64 s[44:45], s[32:33]")
        a(f"s_mov_b32 s46, {1792*1024}")
        a("s_lshl_b32 s6, s3, 13")
        a(f"s_add_u32 s6, s6, {DWN}")
        a("s_mov_b32 m0, s6")
        a("s_add_u32 s13, s6, 8192")
        a.label("LGd2")
        for i in range(2):
            a(f"buffer_load_dwordx4 v{6+i}, s[44:47], s9 offen {wf} lds")
            a("s_add_u32 m0, m0, 1024")
            a("s_add_u32 s9, s9, 4096")
        a("s_cmp_lt_u32 m0, s13")
        a("s_cbranch_scc1 LGd2")
        a("v_bfe_u32 v8, v0, 4, 1")
        a("v_lshlrev_b32 v8, 5, v8")
        a("v_lshl_add_u32 v8, v1, 6, v8")
        a("v_lshl_add_u32 v8, v3, 3, v8")
        a("v_add_u32 v8, s7, v8")
        a("v_xor_b32 v9, 32, v8")
        self.traddr256(10, 8, "s6", 6, 7)
        a("v_mul_u32_u24 v20, 816, v4")
        a("v_lshrrev_b32 v6, 3, v5")
        a("v_lshl_add_u32 v20, v6, 6, v20")
        a("v_lshl_add_u32 v20, v3, 4, v20")
        a("v_bfe_u32 v6, v0, 2, 1")
        a("v_lshl_add_u32 v20, v6, 3, v20")
        a(f"s_add_u32 s15, s7, {AROW_O}")
        a("v_add_u32 v20, s15, v20")
        a("v_mul_u32_u24 v22, 816, v6")
        a("v_and_b32 v7, 48, v0")
        a("v_add3_u32 v22, v22, v7, s15")
        a("s_mov_b32 s59, 272")
        a("v_and_b32 v21, 1, v0")
        a("v_mul_u32_u24 v21, 272, v21")
        a("v_add3_u32 v21, v21, v22, s59")
        a("v_lshl_add_u32 v227, v6, 6, v7")
        a(f"v_mul_u32_u24 v228, {HFS}, v4")
        a("v_lshl_add_u32 v228, v5, 2, v228")
        a("v_lshlrev_b32 v2, 4, v0")
        a("s_lshl_b32 s15, s3, 10")
        a("v_add_u32 v23, s15, v2")
        a("v_lshlrev_b32 v224, 3, v0")
        a("s_lshl_b32 s15, s3, 9")
        a("v_add_u32 v225, s15, v224")
        a("s_lshl_b32 s15, s3, 2")
        a("v_add_u32 v226, s15, v7")
        a("v_and_b32 v231, 16, v0")
        a("v_lshlrev_b32 v231, 1, v231")
        a(f"s_mul_i32 s26, s3, {8*HFS}")
        a("s_lshl_b32 s15, s53, 7")
        a("s_add_u32 s26, s26, s15")
        a(f"s_add_u32 s26, s26, {HF}")
        a(f"v_mov_b32 v232, {f32(1e-5)}")
        a("s_waitcnt vmcnt(8)")
        self.stamp(6)
        for m in range(2):
            for ks in range(4):
                for t in range(2): self.tr(64 + 32 * m + 8 * ks + 4 * t, 8 + t, 8192 * m + 2048 * ks, 1024)
        self.unpack(24, 28, 2)
        self.rdy_check()
        for k in range(3): a(f"v_xor_b32 v{163+4*k}, s14, v{162+4*k}")
        a("v_or3_b32 v163, v163, v167, v171")
        a("v_cmp_ne_u32 vcc, 0, v163")
        a("s_cbranch_vccz LGmo")
        self.poll(mloads, [(*self.TAGBAD, 162 + 4 * k) for k in range(3)], sleep=1)
        a.label("LGmo")
        self.stamp(4)
        a("s_waitcnt lgkmcnt(0)")
        a("ds_write_b64 v20, v[164:165] offset:544")
        self.unpack(168, 196, 2)
        for i in range(4): a(f"v_add_f32 v{196+i}, 1.0, v{196+i}")
        a("v_cvt_pk_bf16_f32 v36, v196, v197")
        a("v_cvt_pk_bf16_f32 v37, v198, v199")
        a("ds_write_b64 v20, v[36:37] offset:272")
        for ks in range(4): a(f"ds_read_b128 v[{172+4*ks}:{175+4*ks}], v21 offset:{64*ks}")
        self.unpack(160, 192, 2)
        self.unpack(36, 196, 2)
        for i in range(4): a(f"v_mul_f32 v{200+i}, v{28+i}, v{196+i}")
        for i in range(4): a(f"v_mul_f32 v{196+i}, v{192+i}, v{196+i}")
        def mf(ks):
            for m in range(2):
                for t in range(2): self.mfma(40 + 8 * m + 4 * t, 172 + 4 * ks, 64 + 32 * m + 8 * ks + 4 * t, ks == 0)
        a("s_waitcnt lgkmcnt(0)")
        for ks in range(4): mf(ks)
        for m in range(2):
            for r in range(2): a(f"v_permlane32_swap_b32 v{40+8*m+r}, v{44+8*m+r}")
        a("v_mov_b32 v42, v48")
        a("v_mov_b32 v43, v49")
        a(f"ds_write_b128 v23, v[40:43] offset:{CSR}")
        a("s_waitcnt vmcnt(0)")
        for dt in range(8): self.tr(128 + 4 * dt, 10 + dt, 0, 4096)
        self.stamp(10)
        self.guard(1100)
        self.sum_poll([f"buffer_load_dwordx4 v[{160+4*k}:{163+4*k}], v18, s[40:43], s{16+k} offen sc1" for k in range(8)], 160, 56)
        self.stamp(7)
        for k in range(2): a(f"v_pk_fma_f32 v[{200+2*k}:{201+2*k}], v[{56+2*k}:{57+2*k}], v[{196+2*k}:{197+2*k}], v[{200+2*k}:{201+2*k}]")
        a("v_cvt_pk_bf16_f32 v32, v200, v201")
        a("v_cvt_pk_bf16_f32 v33, v202, v203")
        a("ds_write_b64 v20, v[32:33]")
        for ks in range(4): a(f"ds_read_b128 v[{172+4*ks}:{175+4*ks}], v22 offset:{64*ks}")
        for k in range(2): a(f"v_pk_fma_f32 v[{28+2*k}:{29+2*k}], v[{56+2*k}:{57+2*k}], v[{192+2*k}:{193+2*k}], v[{28+2*k}:{29+2*k}]")
        a("v_pk_add_f32 v[190:191], v[28:29], v[30:31]")
        a("v_pk_mul_f32 v[28:29], v[28:29], v[28:29]")
        a("v_pk_fma_f32 v[28:29], v[30:31], v[30:31], v[28:29]")
        a("v_add_f32 v190, v190, v191")
        a("v_add_f32 v191, v28, v29")
        a("v_permlane16_swap_b32 v190, v191")
        a("s_waitcnt lgkmcnt(3)")
        mf(0)
        a("v_add_f32 v190, v190, v191")
        a("s_waitcnt lgkmcnt(2)")
        mf(1)
        self.row_sum(190)
        a("s_waitcnt lgkmcnt(0)")
        mf(2)
        a(f"ds_write_b32 v226, v190 offset:{STAT}")
        mf(3)
        a("v_permlane32_swap_b32 v40, v44")
        a("v_permlane32_swap_b32 v48, v52")
        a("v_mov_b32 v41, v48")
        a(f"ds_write_b64 v225, v[40:41] offset:{REC}")
        a("s_waitcnt lgkmcnt(0)")
        a("s_barrier")
        self.stamp(8)
        a(f"ds_read_b128 v[24:27], v231 offset:{STAT}")
        a(f"ds_read_b128 v[28:31], v231 offset:{STAT+16}")
        for w in range(4): a(f"ds_read_b128 v[{208+4*w}:{211+4*w}], v2 offset:{CSR+1024*w}")
        for w in range(4): a(f"ds_read_b64 v[{64+2*w}:{65+2*w}], v224 offset:{REC+512*w}")
        a("s_waitcnt lgkmcnt(8)")
        a("v_pk_add_f32 v[24:25], v[24:25], v[26:27]")
        a("v_pk_add_f32 v[28:29], v[28:29], v[30:31]")
        a("v_add_f32 v24, v24, v25")
        a("v_add_f32 v28, v28, v29")
        a(f"v_mul_f32 v24, {f32(1/512)}, v24")
        a(f"v_fmamk_f32 v28, v28, {f32(1/512)}, v232")
        a("v_fma_f32 v28, -v24, v24, v28")
        a("v_rsq_f32 v28, v28")
        a("s_waitcnt lgkmcnt(4)")
        for k in range(2):
            a(f"v_pk_add_f32 v[{208+2*k}:{209+2*k}], v[{208+2*k}:{209+2*k}], v[{212+2*k}:{213+2*k}]")
            a(f"v_pk_add_f32 v[{216+2*k}:{217+2*k}], v[{216+2*k}:{217+2*k}], v[{220+2*k}:{221+2*k}]")
        for k in range(2): a(f"v_pk_add_f32 v[{208+2*k}:{209+2*k}], v[{208+2*k}:{209+2*k}], v[{216+2*k}:{217+2*k}]")
        a("s_waitcnt lgkmcnt(0)")
        a("v_pk_add_f32 v[64:65], v[64:65], v[66:67]")
        a("v_pk_add_f32 v[68:69], v[68:69], v[70:71]")
        a("v_pk_add_f32 v[64:65], v[64:65], v[68:69]")
        a("v_fma_f32 v64, -v24, v208, v64")
        a("v_fma_f32 v65, -v24, v210, v65")
        a("v_fma_f32 v64, v64, v28, v209")
        a("v_fma_f32 v65, v65, v28, v211")
        a("v_max_f32 v64, 0, v64")
        a("v_mul_f32 v64, v64, v65")
        a("v_mov_b32_dpp v65, v64 quad_perm:[1,0,3,2] row_mask:0xf bank_mask:0xf")
        a("v_cvt_pk_bf16_f32 v64, v64, v65")
        for i, off in enumerate((0, 8, 128, 136)): a(f"ds_bpermute_b32 v{24+i}, v227, v64 offset:{off}")
        a("s_waitcnt lgkmcnt(0)")
        for dt in range(8): self.mfma(160 + 4 * dt, 24, 128 + 4 * dt, True)
        for k in range(4):
            a(f"v_permlane32_swap_b32 v{160+8*k}, v{164+8*k}")
            a(f"buffer_store_dword v{160+8*k}, v228, s[40:43], s26 offen sc1")
            if k < 3: a(f"s_add_u32 s26, s26, {2*HFS}")
        self.stamp(9)
        self.end()

    def small_helpers(self):
        a = self.a
        a.label("LGH2")
        a("s_setprio 3")
        self.tag()
        for i in range(4): a(f"v_mov_b32 v{32+i}, -1")
        self.g_index()
        a("s_cbranch_scc1 LGH3")
        a("v_lshrrev_b32 v3, 3, v0")
        a(f"v_mul_u32_u24 v3, {HFS}, v3")
        a("v_and_b32 v4, 7, v0")
        a("v_lshl_add_u32 v3, v4, 4, v3")
        a("s_lshl_b32 s15, s53, 7")
        a(f"s_add_u32 s15, s15, {HF}")
        for i in range(4):
            a("buffer_store_dwordx4 v[32:35], v3, s[40:43], s15 offen sc1")
            if i < 3: a(f"s_add_u32 s15, s15, {8*HFS}")
        a("s_waitcnt vmcnt(0)")
        a.label("LGH3")
        a("s_add_u32 s5, s5, 24")
        self.rdy_publish(8, "s5")
        a("s_endpgm")
        a.label("LWH2")
        a("s_setprio 3")
        for i in range(4): a(f"v_mov_b32 v{32+i}, -1")
        a("v_bfe_u32 v3, v0, 4, 1")
        a("v_lshlrev_b32 v3, 11, v3")
        a("v_and_b32 v4, 15, v0")
        a("v_lshl_add_u32 v3, v4, 4, v3")
        a("s_lshl_b32 s15, s4, 12")
        a("s_and_b32 s6, s5, 7")
        a("s_lshl_b32 s6, s6, 8")
        a("s_add_u32 s15, s15, s6")
        a(f"s_add_u32 s15, s15, {HD}")
        a("s_waitcnt lgkmcnt(0)")
        a("s_load_dword s14, s[40:41], 0")
        a("s_mov_b32 exec_hi, 0")
        a("buffer_store_dwordx4 v[32:35], v3, s[40:43], s15 offen sc1")
        a("s_waitcnt vmcnt(0) lgkmcnt(0)")
        self.tag()
        self.rdy_publish(8, "s5")
        a("s_endpgm")
        a.label("LTH")
        a("s_setprio 3")
        for i in range(4): a(f"v_mov_b32 v{40+i}, -1")
        a("v_lshlrev_b32 v2, 4, v0")
        a("s_lshl_b32 s6, s4, 4")
        a("s_add_u32 s6, s6, s5")
        a("s_lshl_b32 s54, s6, 10")
        a(f"s_add_u32 s54, s54, {HC}")
        a("s_lshl_b32 s55, s6, 7")
        a(f"s_add_u32 s55, s55, {HL}")
        a("s_waitcnt lgkmcnt(0)")
        a("s_load_dword s14, s[40:41], 0")
        a("buffer_store_dwordx4 v[40:43], v2, s[40:43], s54 offen sc1")
        a(f"s_add_u32 s54, s54, {LOC}")
        a("buffer_store_dwordx4 v[40:43], v2, s[40:43], s54 offen sc1")
        a("s_mov_b64 exec, 0xff")
        a("buffer_store_dwordx4 v[40:43], v2, s[40:43], s55 offen sc1")
        a(f"s_add_u32 s55, s55, {LOC}")
        a("buffer_store_dwordx4 v[40:43], v2, s[40:43], s55 offen sc1")
        a("s_mov_b64 exec, -1")
        a("s_waitcnt vmcnt(0) lgkmcnt(0)")
        self.tag()
        self.rdy_publish(44, "s5")
        a("buffer_load_dwordx4 v[232:235], v2, s[40:43], s54 offen sc1")
        a("s_mov_b64 exec, 1")
        a("buffer_load_dword v236, v2, s[40:43], s55 offen sc1")
        if self.o.get("probe", 0):
            a("s_lshl_b32 s55, s4, 15")
            a("s_and_b32 s13, s5, 8")
            a("s_lshl_b32 s13, s13, 11")
            a("s_add_u32 s55, s55, s13")
            a(f"s_add_u32 s55, s55, {HB}")
            self.ssent(55, [512 * k + 8 for k in range(8, 16)])
            self.ssent(55, [512 * k + 8 for k in range(24, 32)])
            a(f"v_mov_b32 v3, {LS}")
            a("v_mov_b32 v4, s14")
            a("ds_write_b32 v3, v4")
        a("s_endpgm")

    def m_role(self):
        a = self.a
        a.label("LM")
        if self.o.get("nom"): self.end()
        a("s_and_b32 s6, s4, 6")
        a("s_add_u32 s6, s6, s5")
        a("s_sub_u32 s6, s6, 6")
        a("s_lshl_b32 s6, s6, 2")
        a("s_add_u32 s6, s6, s3")
        a("s_lshl_b32 s8, s6, 12")
        a(f"s_add_u32 s8, s8, {HP}")
        a("s_lshr_b32 s9, s6, 3")
        a("s_lshl_b32 s9, s9, 12")
        a("s_and_b32 s6, s6, 7")
        a("s_lshl_b32 s6, s6, 8")
        a("s_add_u32 s9, s9, s6")
        a(f"s_add_u32 s9, s9, {HM}")
        a("v_lshlrev_b32 v2, 4, v0")
        a("v_and_b32 v3, 1, v0")
        a("v_lshlrev_b32 v3, 11, v3")
        a("v_bfe_u32 v4, v0, 1, 2")
        a("v_lshl_add_u32 v3, v4, 4, v3")
        self.poll([f"buffer_load_dwordx4 v[{40+4*t}:{43+4*t}], v2, s[40:43], s8 offen offset:{1024*t} sc1" for t in range(4)],
                  [(*self.TAGBAD, 42 + 4 * t) for t in range(4)], sleep=2)
        self.stamp(6)
        for t in range(4): self.unpack(40 + 4 * t, 64 + 4 * t, 2)
        for t in range(4): self.red8(64 + 4 * t)
        for t in range(4):
            a(f"v_cvt_pk_bf16_f32 v{40+4*t}, v{64+4*t}, v{65+4*t}")
            a(f"v_cvt_pk_bf16_f32 v{41+4*t}, v{66+4*t}, v{67+4*t}")
            a(f"v_mov_b32 v{42+4*t}, s14")
        a("s_mov_b64 exec, 0xff")
        for t in range(4): a(f"buffer_store_dwordx4 v[{40+4*t}:{43+4*t}], v3, s[40:43], s9 offen offset:{64*t} sc1")
        self.stamp(7)
        self.end()

    def red8(self, r):
        a = self.a
        for i in range(4): a(f"v_add_f32_dpp v{r+i}, v{r+i}, v{r+i} row_ror:8 row_mask:0xf bank_mask:0xf")
        for sw in ("16", "32"):
            for i in range(4): a(f"v_mov_b32 v{60+i}, v{r+i}")
            for i in range(4): a(f"v_permlane{sw}_swap_b32 v{r+i}, v{60+i}")
            for i in range(4): a(f"v_add_f32 v{r+i}, v{r+i}, v{60+i}")

    def build(self):
        self.prologue()
        self.ww_early()
        if self.o.get("tnear"): self.tw_early()
        self.g_early()
        self.g_role()
        self.guard(2800, fall=False)
        self.ww_main()
        self.guard(3300, fall=False)
        if not self.o.get("tnear"): self.tw_early()
        self.tw_issue()
        self.tw_main()
        self.m_role()
        self.small_helpers()
        if self.diag:
            self.a.label("Ldump")
            self.dump_stamps()
        self.a.label("Lexit")
        self.a("s_endpgm")
        self.a.label("Lcode_end")
        body = self.a.finish()
        head = open("cdna_kernels/" + NAME + ".s.ref").read().split("; Override launch geometry")[0]
        return head + f"""; Generated by gen/gen_kernel.py (hand-written generator): one persistent launch, 256 workgroups x 5 waves.
; @launch grid=(256,1,1) block=(320,1,1) lds={LDS_BYTES}
.amdgcn_target "amdgcn-amd-amdhsa--gfx950"
.text
.globl {KNAME}
.p2align 12
.type {KNAME},@function
{KNAME}:
{body}
.section .rodata,"a"
.p2align 6
.amdhsa_kernel {KNAME}
  .amdhsa_next_free_vgpr 240
  .amdhsa_next_free_sgpr 102
  .amdhsa_accum_offset 240
  .amdhsa_group_segment_fixed_size 0
  .amdhsa_kernarg_size 112
  .amdhsa_user_sgpr_count 2
  .amdhsa_user_sgpr_kernarg_segment_ptr 1
  .amdhsa_system_sgpr_workgroup_id_x 1
.end_amdhsa_kernel
"""

if __name__ == "__main__":
    import argparse
    ap = argparse.ArgumentParser()
    ap.add_argument("-o", default="cdna_kernels/" + NAME + ".s")
    ap.add_argument("--diag", action="store_true")
    ap.add_argument("--wflag", default="nt")
    ap.add_argument("--opt", action="append", default=[])
    args = ap.parse_args()
    opts = {}
    for o in args.opt:
        k, _, v = o.partition("=")
        opts[k] = int(v) if v else 1
    open(args.o, "w").write(Gen(args.diag, args.wflag, opts).build())
    print("wrote", args.o)
```

```python
import sys, struct
from asmlib import Asm

NAME = "adaLN_cond__sliding_block_cached__glu_gated_reglu__decode"
KNAME = NAME + "_kernel"

def f32(x): return "0x%08x" % struct.unpack("<I", struct.pack("<f", x))[0]

EPOCH = 0x0
RDY = 0x1000
HM = 0x4000
HA = 0x8000
ALOC = 0x8000
HB = 0x140000
HD = 0x20000
HL = HD + 0x8000
HC = HL + 0x4000
LOC = 0x24000
HF = HC + 0x20000 + LOC
HFS = 7168
HP = 0xD0000
STAMP = 0x100000
WS_SIZE = 0x200000
LDS_BYTES = 151552
KB, VB, MRW, PB, MX, LS, QB, SCT = 0, 65536, 131072, 147456, 149504, 149568, 149760, 150848
WQ, WO, GA, RED = 0, 65536, 131072, 147456
W1, GU, DWN, MRG, SC = 0, 16384, 81920, 114688, 147456
REC, CSR, STAT = W1, W1 + 4096, W1 + 8192
AROW_O = 4096

LOG2E = 1.4426950408889634
CSC = (128 ** -0.5) * LOG2E
SPIN = 20000
import os
if os.environ.get('SPIN'): SPIN = int(os.environ['SPIN'])
MFMA = "v_mfma_f32_16x16x32_bf16"

class Gen:
    POISON = ("v_cmp_eq_u32", "-1")
    TAGBAD = ("v_cmp_ne_u32", "s14")

    def __init__(self, diag=False, wflag="nt", opts=None):
        self.a = Asm()
        self.diag = diag
        self.wf = wflag
        self.o = opts or {}
        self.nlab = 0
    def lab(self, p="L"):
        self.nlab += 1
        return f"{p}{self.nlab}"
    def stamp(self, k):
        if self.diag or self.o.get("amp") == k: self.a(f"s_memrealtime s[{64+2*k}:{65+2*k}]")
    def dump_max(self):
        a = self.a
        a("s_load_dwordx2 s[44:45], s[0:1], 96")
        a("s_mov_b32 s46, 256")
        a("s_mov_b32 s47, 0x20000")
        a("s_mov_b64 exec, 1")
        a("v_mov_b32 v1, 0")
        a("s_waitcnt lgkmcnt(0)")
        def put(slot, reg):
            a(f"v_mov_b32 v4, {reg}")
            a(f"buffer_atomic_umax v4, v1, s[44:47], 0 offen offset:{4*slot} sc1")
        a("s_not_b32 s60, s64")
        put(0, "s60"); put(1, "s64")
        a("s_lshr_b32 s5, s2, 3")
        a("s_cmp_ge_u32 s5, 24")
        a("s_cbranch_scc1 LdG")
        a("s_cmp_ge_u32 s5, 16")
        a("s_cbranch_scc1 LdW")
        for slot, k in ((6, 3), (7, 9), (8, 5), (15, 8)): put(slot, f"s{64+2*k}")
        a("s_endpgm")
        a.label("LdW")
        for slot, k in ((3, 2), (4, 3), (5, 4), (9, 6), (10, 7), (11, 8)): put(slot, f"s{64+2*k}")
        a("s_endpgm")
        a.label("LdG")
        for slot, k in ((2, 3), (12, 6), (13, 7), (14, 9)): put(slot, f"s{64+2*k}")
    def dump_gamp(self):
        a = self.a
        k, lo, hi = self.o["gamp"] // 10000, self.o["gamp"] // 100 % 100, self.o["gamp"] % 100
        a("s_waitcnt lgkmcnt(0)")
        a("s_lshr_b32 s5, s2, 3")
        a(f"s_sub_u32 s60, s5, {lo}")
        a(f"s_cmp_lt_u32 s60, {hi-lo}")
        a(f"s_cselect_b32 s61, s{64+2*k}, 0")
        a("s_cmp_eq_u32 s61, 0")
        a("s_cselect_b32 s61, s64, s61")
        a("s_lshl_b32 s60, s2, 2")
        a("s_add_u32 s60, s60, s3")
        a("s_lshl_b32 s60, s60, 2")
        a(f"s_add_u32 s60, s60, {STAMP}")
        a("s_mov_b64 exec, 1")
        a("v_mov_b32 v1, 0")
        a("v_mov_b32 v4, s64")
        a("v_mov_b32 v5, s61")
        a("buffer_store_dword v4, v1, s[40:43], s60 offen sc1")
        a("s_add_u32 s60, s60, 4096")
        a("buffer_store_dword v5, v1, s[40:43], s60 offen sc1")
        a("s_mov_b64 exec, -1")
        a("s_cmp_eq_u32 s2, 0")
        a("s_cbranch_scc0 Lexit")
        a("s_cmp_eq_u32 s3, 1")
        a("s_cbranch_scc0 Lexit")
        def until(reg):
            L = self.lab("Lu")
            a.label(L)
            a("s_memrealtime s[98:99]")
            a("s_waitcnt lgkmcnt(0)")
            a("s_sub_u32 s98, s98, s64")
            a(f"s_cmp_lt_u32 s98, {reg}")
            a(f"s_cbranch_scc1 {L}")
        until(3000)
        a("v_lshlrev_b32 v2, 4, v0")
        a(f"s_mov_b32 s60, {STAMP}")
        a(f"s_mov_b32 s61, {STAMP+4096}")
        for i in range(4):
            a(f"buffer_load_dwordx4 v[{8+4*i}:{11+4*i}], v2, s[40:43], s60 offen offset:{1024*i} sc1")
            a(f"buffer_load_dwordx4 v[{24+4*i}:{27+4*i}], v2, s[40:43], s61 offen offset:{1024*i} sc1")
        a("s_waitcnt vmcnt(0)")
        for i in range(32): a(f"v_subrev_u32 v{8+i}, s64, v{8+i}")
        for i in range(1, 16):
            a(f"v_min_i32 v8, v8, v{8+i}")
            a(f"v_max_i32 v24, v24, v{24+i}")
        a("s_mov_b32 s60, 0")
        a("s_mov_b32 s61, 0")
        for l in range(64):
            a(f"v_readlane_b32 s62, v8, {l}")
            a(f"v_readlane_b32 s63, v24, {l}")
            a("s_min_i32 s60, s60, s62")
            a("s_max_i32 s61, s61, s63")
        a("s_sub_u32 s61, s61, s60")
        a("s_mul_i32 s61, s61, 40")
        a("s_add_u32 s100, s61, 4000")
        until("s100")
    def dump_stamps(self):
        if not self.diag: return
        if self.o.get("gamp") is not None: return self.dump_gamp()
        if self.o.get("dmax"): return self.dump_max()
        a = self.a
        a("s_waitcnt lgkmcnt(0)")
        a("s_mov_b64 exec, 1")
        a("s_mul_i32 s60, s2, 5")
        a("s_add_u32 s60, s60, s3")
        a("s_lshl_b32 s60, s60, 6")
        a(f"s_add_u32 s60, s60, {STAMP}")
        a("v_mov_b32 v1, 0")
        for q in range(3):
            for i in range(4):
                a(f"v_mov_b32 v{4+i}, s{64+2*(4*q+i)}")
            a(f"buffer_store_dwordx4 v[4:7], v1, s[40:43], s60 offen offset:{16*q}")
            a("s_nop 1")
    def end(self, helper=False):
        self.a("s_branch Ldump" if self.diag and (not helper or self.o.get("hdump")) else "s_endpgm")
    def delay(self, key):
        n = self.o.get(key, 0)
        if not n: return
        a = self.a
        L = self.lab("Ld")
        a.label(L)
        a("s_memrealtime s[98:99]")
        a("s_waitcnt lgkmcnt(0)")
        a("s_sub_u32 s98, s98, s64")
        a(f"s_cmp_lt_u32 s98, {n}")
        a(f"s_cbranch_scc1 {L}")
    def guard(self, n, fall=True):
        L = self.lab("Lg")
        if fall: self.a(f"s_branch {L}")
        self.a(f".p2align 12, , {n}")
        self.a.label(L)
    def srd(self, d, p, size):
        a = self.a
        a(f"s_mov_b64 s[{d}:{d+1}], s[{p}:{p+1}]")
        a(f"s_mov_b32 s{d+2}, {size}")
        a(f"s_mov_b32 s{d+3}, 0x20000")
    def tag(self):
        self.a("s_mul_i32 s14, s14, 0x9E3779B1")
        self.a("s_add_u32 s14, s14, 0x7F4A7C15")
    def exec16(self, m):
        self.a(f"s_mov_b32 exec_lo, {(m << 16 | m):#x}")
        self.a(f"s_mov_b32 exec_hi, {(m << 16 | m):#x}")
    def poll(self, loads, checks, sleep=0, after=None):
        a = self.a
        L = self.lab("Lp"); D = self.lab("Lpd")
        n = len(loads)
        a(f"s_mov_b32 s12, {SPIN}")
        a.label(L)
        for l in loads: a(l)
        for i, (op, opd, r) in enumerate(checks):
            a(f"s_waitcnt vmcnt({n-1-i})")
            if i == 0:
                a(f"{op} s[10:11], {opd}, v{r}")
            else:
                a(f"{op} vcc, {opd}, v{r}")
                a("s_or_b64 s[10:11], s[10:11], vcc")
            if after: after(i)
        a("s_cmp_eq_u64 s[10:11], 0")
        a(f"s_cbranch_scc1 {D}")
        if sleep: a(f"s_sleep {sleep}")
        a("s_sub_u32 s12, s12, 1")
        a(f"s_cbranch_scc0 {L}")
        a.label(D)
    def spin(self, body, sleep=0, alt=None):
        a = self.a
        L = self.lab("Lp"); D = self.lab("Lpd")
        n = SPIN
        if alt:
            sregs, delta, every = alt
            for i, r in enumerate(sregs):
                a(f"s_mov_b32 s{96+2*i}, s{r}")
                a(f"s_add_u32 s{97+2*i}, s{r}, {delta}")
                a(f"s_mov_b32 s{r}, s{97+2*i}")
            n = SPIN * 4 | (every - 1)
        a(f"s_mov_b32 s12, {n}")
        a.label(L)
        body()
        a("s_cmp_eq_u64 s[10:11], 0")
        a(f"s_cbranch_scc1 {D}")
        if sleep: a(f"s_sleep {sleep}")
        if alt:
            a(f"s_and_b32 s13, s12, {every-1}")
            for i, r in enumerate(sregs): a(f"s_cselect_b32 s{r}, s{97+2*i}, s{96+2*i}")
        a("s_sub_u32 s12, s12, 1")
        a(f"s_cbranch_scc0 {L}")
        a.label(D)
    def ssent(self, soff, offs, cnt=13):
        a = self.a
        L = self.lab("Ls"); D = self.lab("Lsd")
        a(f"s_mov_b32 s{cnt}, {SPIN}")
        a.label(L)
        for k, o in enumerate(offs): a(f"s_load_dword s{88+k}, s[40:41], s{soff} offset:{o} glc")
        a("s_waitcnt lgkmcnt(0)")
        for k in range(len(offs)): a(f"s_xor_b32 s{88+k}, s{88+k}, s14")
        for k in range(1, len(offs)): a(f"s_or_b32 s88, s88, s{88+k}")
        a(f"s_cbranch_scc0 {D}")
        a(f"s_sub_u32 s{cnt}, s{cnt}, 1")
        a(f"s_cbranch_scc0 {L}")
        a.label(D)
    def sum_poll(self, loads, base, acc):
        a = self.a
        n = len(loads)
        def body():
            for l in loads: a(l)
            for i in range(1, n):
                a(f"s_waitcnt vmcnt({n-1-i})")
                src = base if i == 1 else acc
                for k in range(2): a(f"v_pk_add_f32 v[{acc+2*k}:{acc+1+2*k}], v[{src+2*k}:{src+1+2*k}], v[{base+4*i+2*k}:{base+1+4*i+2*k}]")
            a(f"v_cmp_u_f32 s[10:11], v{acc}, v{acc+1}")
            a(f"v_cmp_u_f32 vcc, v{acc+2}, v{acc+3}")
            a("s_or_b64 s[10:11], s[10:11], vcc")
        self.spin(body)
    def silu(self, regs, tmp):
        a = self.a
        for i, r in enumerate(regs): a(f"v_mul_f32 v{tmp+i}, {f32(-LOG2E)}, v{r}")
        for i, r in enumerate(regs): a(f"v_exp_f32 v{tmp+i}, v{tmp+i}")
        for i, r in enumerate(regs): a(f"v_add_f32 v{tmp+i}, 1.0, v{tmp+i}")
        for i, r in enumerate(regs): a(f"v_rcp_f32 v{tmp+i}, v{tmp+i}")
        for i, r in enumerate(regs): a(f"v_mul_f32 v{r}, v{r}, v{tmp+i}")
    def unpack(self, src, dst, n):
        for i in range(n):
            self.a(f"v_lshlrev_b32 v{dst+2*i}, 16, v{src+i}")
            self.a(f"v_and_b32 v{dst+2*i+1}, 0xffff0000, v{src+i}")
    def row_sum(self, r):
        for m in ("quad_perm:[1,0,3,2]", "quad_perm:[2,3,0,1]", "row_half_mirror", "row_mirror"):
            self.a(f"v_add_f32_dpp v{r}, v{r}, v{r} {m} row_mask:0xf bank_mask:0xf")
    def silu_frag(self, base):
        a = self.a
        a("v_bfe_u32 v10, v0, 4, 1")
        a("v_mul_u32_u24 v5, 144, v10")
        a("v_bfe_u32 v4, v0, 3, 1")
        a("v_lshl_add_u32 v5, v4, 6, v5")
        a("v_and_b32 v4, 3, v0")
        a("v_lshl_add_u32 v5, v4, 4, v5")
        a("v_bfe_u32 v4, v0, 2, 1")
        a("v_lshl_add_u32 v5, v4, 3, v5")
        a(f"v_add_u32 v5, {base}, v5")
    def silu_run(self):
        a = self.a
        self.unpack(28, 16, 2)
        self.silu([16, 17, 18, 19], 24)
        a("v_cvt_pk_bf16_f32 v28, v16, v17")
        a("v_cvt_pk_bf16_f32 v29, v18, v19")
        a("ds_write_b64 v5, v[28:29]")
    def c_voff(self, d):
        a = self.a
        a(f"v_bfe_u32 v{d}, v0, 4, 1")
        a(f"v_lshlrev_b32 v{d}, 10, v{d}")
        a("v_and_b32 v11, 15, v0")
        a(f"v_lshl_add_u32 v{d}, v11, 3, v{d}")
    def mfma(self, d, A, B, first):
        c = "0" if first else f"v[{d}:{d+3}]"
        self.a(f"{MFMA} v[{d}:{d+3}], v[{A}:{A+3}], v[{B}:{B+3}], {c}")
    def tr(self, r, va, off, second):
        self.a(f"ds_read_b64_tr_b16 v[{r}:{r+1}], v{va} offset:{off}")
        self.a(f"ds_read_b64_tr_b16 v[{r+2}:{r+3}], v{va} offset:{off+second}")
    def voff256(self, d, stride_sh, t0, t1):
        a = self.a
        a(f"v_lshrrev_b32 v{t0}, 4, v0")
        a(f"v_and_b32 v{t1}, 15, v0")
        a(f"v_lshlrev_b32 v{d}, 1, v{t0}")
        a(f"v_xor_b32 v{d}, v{t1}, v{d}")
        a(f"v_lshlrev_b32 v{d}, 4, v{d}")
        a(f"v_lshl_add_u32 v{d}, v{t0}, {stride_sh}, v{d}")
        a(f"v_xor_b32 v{d+1}, 0x80, v{d}")
    def voff128(self, d, stride, t0, t1):
        a = self.a
        a(f"v_lshrrev_b32 v{t0}, 3, v0")
        a(f"v_and_b32 v{d}, 6, v{t0}")
        a(f"v_and_b32 v{t1}, 7, v0")
        a(f"v_xor_b32 v{d}, v{d}, v{t1}")
        a(f"v_mul_u32_u24 v{t0}, {stride}, v{t0}")
        a(f"v_lshl_add_u32 v{d}, v{d}, 4, v{t0}")
    def traddr256(self, d, n, base, t0, t1, first=None):
        a = self.a
        a(f"v_lshrrev_b32 v{t0}, 2, v0")
        a(f"v_and_b32 v{d}, 7, v{t0}")
        a(f"v_lshlrev_b32 v{d}, 5, v{d}")
        a(f"v_lshl_add_u32 v{d}, v{t0}, 8, v{d}")
        a(f"v_and_b32 v{t1}, 3, v0")
        a(f"v_lshl_add_u32 v{d}, v{t1}, 3, v{d}")
        if first: a(f"v_xor_b32 v{d}, {first}, v{d}")
        a(f"v_add_u32 v{d}, {base}, v{d}")
        for i in range(1, n): a(f"v_xor_b32 v{d+i}, {32*i}, v{d}")
    def traddr128(self, d, base, t0, t1, grp_sh=10, n=4):
        a = self.a
        a(f"v_bfe_u32 v{t0}, v0, 2, 3")
        a(f"v_bfe_u32 v{d}, v0, 3, 2")
        a(f"v_lshlrev_b32 v{d}, 5, v{d}")
        a(f"v_lshl_add_u32 v{d}, v{t0}, 7, v{d}")
        a(f"v_lshrrev_b32 v{t0}, 5, v0")
        a(f"v_lshl_add_u32 v{d}, v{t0}, {grp_sh}, v{d}")
        a(f"v_and_b32 v{t1}, 3, v0")
        a(f"v_lshl_add_u32 v{d}, v{t1}, 3, v{d}")
        if base is not None: a(f"v_add_u32 v{d}, {base}, v{d}")
        for i in range(1, n): a(f"v_xor_b32 v{d+i}, {32*i}, v{d}")

    def prologue(self):
        a = self.a
        a("s_cmp_ge_u32 s2, 256")
        a("s_cbranch_scc1 Lexit")
        a("s_load_dwordx16 s[16:31], s[0:1], 0")
        a("s_load_dwordx8 s[32:39], s[0:1], 64")
        a("s_load_dwordx2 s[40:41], s[0:1], 104")
        if self.diag:
            for k in range(1, 12): a(f"s_mov_b32 s{64+2*k}, 0")
        self.stamp(0)
        if self.o.get("padto"): a("s_memrealtime s[96:97]")
        a("s_getpc_b64 s[56:57]")
        a.label("Lpc0")
        a("s_lshr_b32 s5, s2, 3")
        a("v_lshrrev_b32 v1, 6, v0")
        a("s_mul_i32 s6, s5, 640")
        a("v_lshl_add_u32 v2, v1, 7, s6")
        a("v_min_u32 v2, Lcode_end-Lpc0-4, v2")
        a("global_load_dword v239, v2, s[56:57]")
        a("v_and_b32 v0, 63, v0")
        a("s_and_b32 s4, s2, 7")
        a("v_readfirstlane_b32 s3, v1")
        a(f"s_mov_b32 s42, {WS_SIZE}")
        a("s_mov_b32 s43, 0x20000")
        a("s_mov_b32 s47, 0x20000")
        a("s_mov_b32 s51, 0x20000")
        a("s_lshl_b32 s7, s3, 14")
        a("s_cmp_ge_u32 s5, 24")
        a("s_cbranch_scc1 LG0")
        a("s_cmp_eq_u32 s3, 4")
        a("s_cbranch_scc1 LH0")
        self.voff256(6, 8, 1, 8)
        a("s_mov_b32 m0, s7")
        a("s_cmp_ge_u32 s5, 16")
        a("s_cbranch_scc0 LT0")

    def tw_early(self):
        a, wf = self.a, self.wf
        a.label("LT0")
        a("s_and_b32 s6, s5, 8")
        a("s_add_u32 s6, s6, s4")
        a("s_lshl_b32 s6, s6, 21")
        a("s_and_b32 s8, s5, 7")
        a("s_lshl_b32 s8, s8, 16")
        a("s_add_u32 s6, s6, s8")
        a("s_add_u32 s6, s6, s7")
        a(f"s_add_u32 s6, s6, {6144*256}")
        a("v_xor_b32 v2, v8, v1")
        a("v_lshlrev_b32 v2, 4, v2")
        a("v_lshl_add_u32 v2, v1, 8, v2")
        a("v_xor_b32 v3, 64, v2")
        a("v_xor_b32 v4, 0x80, v2")
        a("v_xor_b32 v5, 0xc0, v2")
        a("s_mov_b32 s8, s6")
        a("s_add_u32 s9, s6, 16384")
        a("s_mov_b32 s46, 0x2000000")
        a("s_mov_b32 s50, 0x2000000")
        thr = self.o.get("thr", 0)
        thk = self.o.get("thk", 2)
        if thr: a(f"s_add_u32 s10, s6, {4096*thr}")
        a("s_waitcnt lgkmcnt(0)")
        a("s_mov_b64 s[44:45], s[18:19]")
        a("s_mov_b64 s[48:49], s[20:21]")
        a("s_load_dword s14, s[40:41], 0")
        if thr:
            a.label("LTWt")
            for i in range(4):
                a(f"buffer_load_dwordx4 v{2+i}, s[44:47], s8 offen offset:{1024*i} {wf} lds")
                a(f"s_waitcnt vmcnt({thk})")
            a("s_add_u32 m0, m0, 4096")
            a("s_add_u32 s8, s8, 4096")
            a("s_cmp_lt_u32 s8, s10")
            a("s_cbranch_scc1 LTWt")
        cap = self.o.get("cap", 7)
        if thr < 4:
            a.label("LTWk")
            for i in range(4):
                a(f"buffer_load_dwordx4 v{2+i}, s[44:47], s8 offen offset:{1024*i} {wf} lds")
                if cap: a(f"s_waitcnt vmcnt({cap})")
            a("s_add_u32 m0, m0, 4096")
            a("s_add_u32 s8, s8, 4096")
            a("s_cmp_lt_u32 s8, s9")
            a("s_cbranch_scc1 LTWk")
        self.stamp(10)
        if self.o.get("tnear"): a("s_branch LTW1")

    def tw_issue(self):
        a, wf = self.a, self.wf
        cap = self.o.get("vcap", 8)
        if self.o.get("tnear"):
            a.label("LTHp")
            a("s_branch LTH")
            a.label("LTW1")
        a("s_lshl_b32 s55, s4, 15")
        a("s_and_b32 s13, s5, 8")
        a("s_lshl_b32 s13, s13, 11")
        a("s_add_u32 s55, s55, s13")
        a("s_lshl_b32 s13, s3, 12")
        a("s_add_u32 s55, s55, s13")
        a(f"s_add_u32 s55, s55, {HB}")
        a("v_lshlrev_b32 v21, 4, v0")
        a(f"s_add_u32 m0, s7, {VB}")
        a("s_mov_b32 s8, s6")
        probe = self.o.get("probe", 0)
        a(f"v_mov_b32 v23, {LS}")
        a("s_mov_b32 s62, 0")
        a("s_waitcnt lgkmcnt(0)")
        self.tag()
        for g in range(4):
            if probe and g:
                L = self.lab("LTp")
                a("s_waitcnt lgkmcnt(0)")
                a("v_readfirstlane_b32 s13, v22")
                a("s_cmp_lg_u32 s62, 0")
                a(f"s_cbranch_scc1 {L}")
                a("s_cmp_lg_u32 s13, s14")
                a(f"s_cbranch_scc1 {L}")
                self.qfetch()
                a(f"s_mov_b32 s62, {5-g}")
                a.label(L)
            for i in range(4):
                if probe and g < 3 and i == 3: a("ds_read_b32 v22, v23")
                a(f"buffer_load_dwordx4 v{6+(i&1)}, s[48:51], s8 offen offset:{1024*i} {wf} lds")
                if cap: a(f"s_waitcnt vmcnt({cap})")
            if g < 3:
                a("s_add_u32 m0, m0, 4096")
                a("s_add_u32 s8, s8, 4096")
        a("s_cmp_lg_u32 s62, 0")
        a("s_cbranch_scc1 LTf")
        self.qfetch()
        a("s_mov_b32 s62, 1")
        a.label("LTf")

    def qfetch(self):
        for i in range(4): self.a(f"buffer_load_dwordx4 v[{192+4*i}:{195+4*i}], v21, s[40:43], s55 offen offset:{1024*i} sc1")

    def ww_early(self):
        a, wf = self.a, self.wf
        a.label("LW0")
        if self.o.get("now"): a("s_endpgm")
        a("s_lshl_b32 s9, s4, 19")
        a("s_and_b32 s52, s5, 7")
        a("s_lshl_b32 s15, s52, 10")
        a("s_add_u32 s9, s9, s15")
        a("s_lshl_b32 s15, s3, 8")
        a("s_add_u32 s9, s9, s15")
        a("v_mul_u32_u24 v2, 0x1f00, v1")
        a("v_add_u32 v6, v6, v2")
        a("v_add_u32 v7, v7, v2")
        a("s_add_u32 s13, s7, 16384")
        a(f"s_mov_b32 s46, {512*8192}")
        a("s_waitcnt lgkmcnt(0)")
        a("s_mov_b64 s[44:45], s[22:23]")
        self.delay("wdel")
        a("s_load_dword s14, s[40:41], 0")
        a.label("LWq")
        for i in range(2):
            a(f"buffer_load_dwordx4 v{6+i}, s[44:47], s9 offen {wf} lds")
            a("s_add_u32 m0, m0, 1024")
            a("s_add_u32 s9, s9, 32768")
        if self.o.get("qcap", 8): a(f"s_waitcnt vmcnt({self.o.get('qcap', 8)})")
        a("s_cmp_lt_u32 m0, s13")
        a("s_cbranch_scc1 LWq")
        a("s_branch LW2")
        a.label("LH0")
        a("s_cmp_ge_u32 s5, 16")
        a("s_cbranch_scc0 " + ("LTHp" if self.o.get("tnear") else "LTH"))
        a("s_branch LWHp")

    def g_early(self):
        a, wf = self.a, self.wf
        a.label("LG0")
        if self.o.get("nog"): a("s_endpgm")
        a("s_sub_u32 s5, s5, 24")
        if self.o.get("chs", 0):
            a("s_mov_b32 s60, s5")
            a("s_mov_b32 s61, s4")
        else:
            a("s_mov_b32 s60, s4")
            a("s_mov_b32 s61, s5")
        a("s_mov_b32 s50, 2048")
        a("s_cmp_eq_u32 s3, 4")
        a("s_cbranch_scc0 LGW")
        self.c_voff(4)
        a("s_lshl_b32 s9, s61, 7")
        a("s_waitcnt lgkmcnt(0)")
        a("s_mov_b64 s[48:49], s[34:35]")
        a("buffer_load_dwordx2 v[28:29], v4, s[48:51], s9 offen")
        a("s_load_dword s14, s[40:41], 0")
        if self.o.get("mr0", 0): a("s_barrier")
        self.silu_frag(SC)
        a("s_waitcnt vmcnt(0)")
        self.silu_run()
        a("s_waitcnt lgkmcnt(0)")
        a("s_barrier")
        a("s_barrier")
        a("s_branch LGH2")
        a.label("LGW")
        a("v_lshlrev_b32 v6, 4, v0")
        self.voff128(2, 6144, 1, 3)
        a("s_lshl_b32 s9, s61, 2")
        a("s_add_u32 s9, s9, s3")
        a(f"s_mul_i32 s9, s9, {16*6144}")
        a("s_lshl_b32 s6, s60, 7")
        a("s_add_u32 s9, s9, s6")
        a("s_lshl_b32 s13, s3, 5")
        a("s_add_u32 s6, s6, s13")
        a("v_and_b32 v12, 1, v0")
        a("v_and_b32 v13, 48, v0")
        a("v_lshrrev_b32 v4, 1, v13")
        a("v_lshl_add_u32 v4, v12, 10, v4")
        a("s_lshr_b32 m0, s7, 2")
        a(f"s_mov_b32 s54, {512*6144}")
        a("s_mov_b32 s55, 0x20000")
        a("s_lshl_b32 s8, s60, 12")
        a("s_lshl_b32 s15, s3, 10")
        a("s_add_u32 s8, s8, s15")
        a("s_lshl_b32 s15, s61, 7")
        a("s_add_u32 s8, s8, s15")
        a(f"s_add_u32 s8, s8, {HA}")
        a(f"s_add_u32 s62, s8, {ALOC}")
        a("s_waitcnt lgkmcnt(0)")
        a("s_mov_b64 s[48:49], s[16:17]")
        a("s_mov_b64 s[52:53], s[36:37]")
        a("buffer_load_dwordx4 v[24:27], v6, s[48:51], 0 offen")
        a("buffer_load_dwordx4 v[28:31], v6, s[48:51], 0 offen offset:1024")
        self.exec16(3)
        a("buffer_load_dwordx2 v[20:21], v4, s[48:51], s6 offen")
        a("s_mov_b64 exec, -1")
        for i in range(2):
            a(f"buffer_load_dwordx4 v2, s[52:55], s9 offen {wf} lds")
            a(f"buffer_load_dwordx4 v2, s[52:55], s9 offen offset:1024 {wf} lds")
            if i == 0:
                a("s_add_u32 m0, m0, 2048")
                a(f"s_add_u32 s9, s9, {8*6144}")
        a("s_mov_b64 exec, 1")
        a("buffer_load_dword v238, v6, s[40:43], s62 offen sc1")
        a("s_mov_b64 exec, -1")
        a("s_load_dword s14, s[40:41], 0")
        mr0 = 8 if self.o.get("mr0", 0) else 0
        if mr0:
            a("s_barrier")
            self.mr_issue()
        self.traddr128(8, None, 1, 3, grp_sh=11, n=1)
        a("v_xor_b32 v8, s13, v8")
        a("v_mul_u32_u24 v6, 144, v12")
        a("v_add_u32 v6, v6, v13")
        a(f"v_add_u32 v6, {SC}, v6")
        a("v_lshlrev_b32 v7, 4, v12")
        a("v_lshl_add_u32 v13, v13, 1, v7")
        a("s_cmp_eq_u32 s61, 0")
        a("s_cselect_b32 s9, 1.0, 0")
        for i in range(4): a(f"v_mov_b32 v{44+i}, s9")
        a("s_mov_b32 s9, 0x3f803f80")
        a("v_lshlrev_b32 v7, 7, v12")
        a(f"s_waitcnt vmcnt({5+mr0})")
        for b in range(2):
            a(f"v_dot2_f32_bf16 v{48+b}, v{24+4*b}, s9, 0")
            a(f"v_dot2_f32_bf16 v{50+b}, v{24+4*b}, v{24+4*b}, 0")
        for i in range(1, 4):
            for b in range(2):
                a(f"v_dot2_f32_bf16 v{48+b}, v{24+4*b+i}, s9, v{48+b}")
                a(f"v_dot2_f32_bf16 v{50+b}, v{24+4*b+i}, v{24+4*b+i}, v{50+b}")
        a("v_permlane32_swap_b32 v48, v49")
        a("v_permlane32_swap_b32 v50, v51")
        a("v_add_f32 v48, v48, v49")
        a("v_add_f32 v50, v50, v51")
        a("v_permlane16_swap_b32 v48, v50")
        a("v_add_f32 v48, v48, v50")
        self.row_sum(48)
        a("ds_bpermute_b32 v50, v7, v48")
        a("ds_bpermute_b32 v51, v7, v48 offset:64")
        a(f"v_mov_b32 v52, {f32(1e-5)}")
        a("s_waitcnt lgkmcnt(0)")
        self.tag()
        a(f"v_mul_f32 v50, {f32(1/512)}, v50")
        a(f"v_fmamk_f32 v51, v51, {f32(1/512)}, v52")
        a("v_fma_f32 v51, -v50, v50, v51")
        a("v_rsq_f32 v51, v51")
        self.unpack(20, 16, 2)
        for i in range(4): a(f"v_sub_f32 v{16+i}, v{16+i}, v50")
        for i in range(4): a(f"v_mul_f32 v{16+i}, v{16+i}, v51")
        a("v_mov_b32 v58, s14")
        a("v_mov_b32 v59, s14")
        a(f"s_waitcnt vmcnt({1+mr0})")
        a("s_barrier")
        self.stamp(1)
        for ks in range(2):
            a(f"ds_read_b128 v[{32+4*ks}:{35+4*ks}], v6 offset:{64*ks}")
            for seg in range(2): self.tr(64 + 8 * ks + 4 * seg, 8, W1 + 8192 * ks + 1024 * seg, 4096)
        a("s_waitcnt lgkmcnt(5)")
        self.mfma(40, 64, 32, True)
        self.mfma(44, 68, 32, False)
        a("s_waitcnt lgkmcnt(0)")
        self.mfma(40, 72, 36, False)
        self.mfma(44, 76, 36, False)
        self.exec16(3)
        for k in range(2): a(f"v_pk_fma_f32 v[{40+2*k}:{41+2*k}], v[{16+2*k}:{17+2*k}], v[{44+2*k}:{45+2*k}], v[{40+2*k}:{41+2*k}]")
        a("v_cvt_pk_bf16_f32 v56, v40, v41")
        a("v_cvt_pk_bf16_f32 v57, v42, v43")
        a("buffer_store_dwordx4 v[56:59], v13, s[40:43], s62 offen")
        a("buffer_store_dwordx4 v[56:59], v13, s[40:43], s8 offen sc1")
        a("s_mov_b64 exec, -1")
        self.stamp(3)
        a("s_barrier")

    def mr_issue(self):
        a, wf = self.a, self.wf
        a(f"s_mul_i32 s9, s61, {64*6144}")
        a("s_lshl_b32 s15, s60, 9")
        a("s_add_u32 s9, s9, s15")
        a("s_lshl_b32 s15, s3, 7")
        a("s_add_u32 s9, s9, s15")
        a("s_add_u32 s9, s9, 2048")
        a("s_lshr_b32 s63, s7, 1")
        a(f"s_add_u32 s63, s63, {MRG}")
        a("s_mov_b32 m0, s63")
        a("s_add_u32 s15, s63, 8192")
        a.label("LGm")
        a(f"buffer_load_dwordx4 v2, s[52:55], s9 offen {wf} lds")
        a("s_add_u32 m0, m0, 1024")
        a(f"s_add_u32 s9, s9, {8*6144}")
        a("s_cmp_lt_u32 m0, s15")
        a("s_cbranch_scc1 LGm")
    def rdy_publish(self, vb, jreg):
        a = self.a
        for i in range(4): a(f"v_mov_b32 v{vb+i}, s14")
        a(f"v_mov_b32 v{vb+4}, 0")
        a("s_lshl_b32 s15, s4, 5")
        a(f"s_add_u32 s15, s15, {jreg}")
        a("s_lshl_b32 s15, s15, 4")
        a(f"s_add_u32 s15, s15, {RDY}")
        a("s_mov_b64 exec, 1")
        a(f"buffer_store_dwordx4 v[{vb}:{vb+3}], v{vb+4}, s[40:43], s15 offen sc1")
        a("s_mov_b64 exec, -1")
    def rdy_load(self):
        self.a("buffer_load_dword v237, v229, s[40:43], s27 offen sc1")
    def rdy_check(self):
        a = self.a
        L = self.lab("Lok")
        a("v_cmp_ne_u32 vcc, s14, v237")
        a(f"s_cbranch_vccz {L}")
        self.poll(["buffer_load_dword v237, v229, s[40:43], s27 offen sc1"], [(*self.TAGBAD, 237)], sleep=2)
        a.label(L)

    def g_index(self):
        a = self.a
        a("s_lshr_b32 s53, s4, 1")
        a("s_mul_i32 s53, s53, 14")
        a("s_and_b32 s52, s4, 1")
        a("s_lshl_b32 s54, s52, 3")
        a("s_add_u32 s53, s53, s54")
        a("s_add_u32 s53, s53, s5")
        a("s_lshl_b32 s52, s52, 1")
        a("s_sub_u32 s52, 8, s52")
        a("s_cmp_ge_u32 s5, s52")

    def tw_main(self):
        a = self.a
        self.stamp(1)
        a("v_lshrrev_b32 v22, 5, v0")
        a("v_and_b32 v23, 31, v0")
        a("v_lshlrev_b32 v23, 1, v23")
        a("v_lshl_add_u32 v22, v22, 7, v23")
        a("s_mul_i32 s13, s3, 272")
        a(f"s_add_u32 s13, s13, {QB}")
        a("v_add_u32 v22, s13, v22")
        a("v_xor_b32 v3, v8, v1")
        a("v_lshlrev_b32 v3, 4, v3")
        a("v_lshl_add_u32 v3, v8, 8, v3")
        a("v_add_u32 v8, s7, v3")
        a("v_xor_b32 v9, 64, v8")
        a("v_xor_b32 v10, 0x80, v8")
        a("v_xor_b32 v11, 0xc0, v8")
        a("s_waitcnt vmcnt(20)")
        for t in range(4):
            for ks in range(4):
                r = 64 + 16 * t + 4 * ks
                a(f"ds_read_b128 v[{r}:{r+3}], v{8+ks} offset:{4096*t}")
        a("s_lshl_b32 s8, s3, 6")
        self.traddr256(12, 2, VB, 3, 5, first="s8")
        a("v_mul_u32_u24 v20, 272, v5")
        a("v_lshl_add_u32 v20, v1, 4, v20")
        a(f"v_add_u32 v20, {QB}, v20")
        a("v_lshlrev_b32 v14, 6, v5")
        a("v_lshl_add_u32 v14, v1, 4, v14")
        a(f"v_add_u32 v14, {PB}, v14")
        a("s_lshl_b32 s9, s3, 9")
        a("v_add_u32 v15, s9, v14")
        a("v_lshlrev_b32 v16, 4, v5")
        a(f"v_add_u32 v16, {MX}, v16")
        a("s_lshl_b32 s9, s3, 2")
        a("v_add_u32 v17, s9, v16")
        a("v_lshlrev_b32 v18, 8, v5")
        a("v_lshl_add_u32 v18, v1, 4, v18")
        a("v_lshlrev_b32 v19, 2, v5")
        a("s_lshl_b32 s6, s4, 4")
        a("s_add_u32 s6, s6, s5")
        a("s_lshl_b32 s9, s6, 10")
        a("s_add_u32 s8, s8, s9")
        a(f"s_add_u32 s8, s8, {HC}")
        a("s_lshl_b32 s52, s6, 7")
        a(f"s_add_u32 s52, s52, {HL}")
        a(f"s_add_u32 s53, s8, {LOC}")
        a(f"s_add_u32 s54, s52, {LOC}")
        a(f"s_mov_b32 s10, {f32(CSC)}")
        a("s_lshl_b64 s[58:59], 1, s3")
        for i in range(4): a(f"v_mov_b32 v{232+i}, 0x3f803f80")
        def vr(k):
            for t in range(2): self.tr(128 + 8 * k + 4 * t, 12 + t, 8192 * k, 4096)
        def xrow(op, r):
            a(f"v_mov_b32 v225, v{r}")
            a(f"v_permlane16_swap_b32 v{r}, v225")
            a(f"{op} v{r}, v{r}, v225")
            a(f"v_mov_b32 v225, v{r}")
            a(f"v_permlane32_swap_b32 v{r}, v225")
            a(f"{op} v{r}, v{r}, v225")
        a(f"s_mov_b32 s12, {SPIN}")
        for n in (3, 2, 1):
            a(f"s_waitcnt vmcnt({4*n})")
            a(f"s_cmp_gt_u32 s62, {n}")
            a("s_cbranch_scc1 LTq1")
        a("s_branch LTq3")
        a.label("LTq0")
        self.qfetch()
        a.label("LTq3")
        a("s_waitcnt vmcnt(0)")
        a.label("LTq1")
        self.stamp(2)
        for i in range(4): a(f"v_xor_b32 v{195+4*i}, s14, v{194+4*i}")
        a("v_or3_b32 v195, v195, v199, v203")
        a("v_or_b32 v195, v195, v207")
        a("v_cmp_ne_u32 vcc, 0, v195")
        a("s_cbranch_vccz LTq2")
        a("s_sub_u32 s12, s12, 1")
        a("s_cbranch_scc0 LTq0")
        a.label("LTq2")
        for i in range(4): self.unpack(192 + 4 * i, 24 + 4 * i, 2)
        for k in range(2):
            a(f"v_pk_add_f32 v[{24+2*k}:{25+2*k}], v[{24+2*k}:{25+2*k}], v[{28+2*k}:{29+2*k}]")
            a(f"v_pk_add_f32 v[{32+2*k}:{33+2*k}], v[{32+2*k}:{33+2*k}], v[{36+2*k}:{37+2*k}]")
        for k in range(2): a(f"v_pk_add_f32 v[{24+2*k}:{25+2*k}], v[{24+2*k}:{25+2*k}], v[{32+2*k}:{33+2*k}]")
        a("v_permlane32_swap_b32 v24, v26")
        a("v_permlane32_swap_b32 v25, v27")
        a("v_pk_add_f32 v[24:25], v[24:25], v[26:27]")
        a("v_cvt_pk_bf16_f32 v24, v24, v25")
        a("ds_write_b16 v22, v24")
        a("ds_write_b16_d16_hi v22, v24 offset:64")
        a("s_waitcnt lgkmcnt(0)")
        a("s_barrier")
        for ks in range(4): a(f"ds_read_b128 v[{208+4*ks}:{211+4*ks}], v20 offset:{64*ks}")
        self.stamp(3)
        a("s_waitcnt lgkmcnt(0)")
        for ks in range(4):
            for t in range(4): self.mfma(40 + 4 * t, 64 + 16 * t + 4 * ks, 208 + 4 * ks, ks == 0)
        a("v_max3_f32 v224, v40, v41, v42")
        a("v_max3_f32 v225, v43, v44, v45")
        a("v_max3_f32 v226, v46, v47, v48")
        a("v_max3_f32 v227, v49, v50, v51")
        a("v_max3_f32 v228, v52, v53, v54")
        a("v_max3_f32 v224, v224, v225, v226")
        a("v_max3_f32 v227, v227, v228, v55")
        a("v_max_f32 v224, v224, v227")
        xrow("v_max_f32", 224)
        a("ds_write_b32 v17, v224")
        a("s_waitcnt lgkmcnt(0)")
        a("s_barrier")
        a("ds_read_b128 v[224:227], v16")
        a("s_waitcnt lgkmcnt(0)")
        a("v_max3_f32 v224, v224, v225, v226")
        a("v_max_f32 v224, v224, v227")
        a(f"v_mul_f32 v230, {f32(-CSC)}, v224")
        for i in range(8): a(f"v_pk_fma_f32 v[{40+2*i}:{41+2*i}], v[{40+2*i}:{41+2*i}], s[10:11], v[230:231] op_sel_hi:[1,0,0]")
        for i in range(16): a(f"v_exp_f32 v{40+i}, v{40+i}")
        for i in range(8): a(f"v_cvt_pk_bf16_f32 v{56+i}, v{40+2*i}, v{41+2*i}")
        self.exec16(15)
        a("ds_write_b128 v15, v[56:59]")
        a("ds_write_b128 v15, v[60:63] offset:256")
        a("s_mov_b64 exec, -1")
        a("s_waitcnt vmcnt(8) lgkmcnt(0)")
        a("s_barrier")
        self.stamp(4)
        for k in range(8): a(f"ds_read_b128 v[{64+4*k}:{67+4*k}], v14 offset:{256*k}")
        def pv(k, first=False):
            for t in range(2): self.mfma(192 + 4 * t, 128 + 8 * k + 4 * t, 64 + 4 * k, first)
        for k in (0, 2, 4, 6): vr(k)
        a("s_waitcnt lgkmcnt(15)")
        for k in range(8): self.mfma(96, 232, 64 + 4 * k, k == 0)
        for i, k in enumerate((0, 2, 4, 6)):
            a(f"s_waitcnt lgkmcnt({12-4*i})")
            pv(k, i == 0)
        a("v_rcp_f32 v36, v96")
        a("v_log_f32 v37, v96")
        a("s_waitcnt vmcnt(0)")
        a("s_barrier")
        self.stamp(9)
        for k in (1, 3, 5, 7): vr(k)
        a("v_sub_f32 v37, v37, v230")
        a("s_mov_b64 exec, s[58:59]")
        if self.o.get("loc", 1): a("buffer_store_dword v37, v19, s[40:43], s54 offen")
        a("buffer_store_dword v37, v19, s[40:43], s52 offen sc1")
        a("s_mov_b64 exec, -1")
        for i, k in enumerate((1, 3, 5, 7)):
            a(f"s_waitcnt lgkmcnt({12-4*i})")
            pv(k)
        self.exec16(15)
        for i in range(4): a(f"v_pk_mul_f32 v[{192+2*i}:{193+2*i}], v[{192+2*i}:{193+2*i}], v[36:37] op_sel_hi:[1,0]")
        for i in range(4): a(f"v_cvt_pk_bf16_f32 v{200+i}, v{192+2*i}, v{193+2*i}")
        if self.o.get("loc", 1): a("buffer_store_dwordx4 v[200:203], v18, s[40:43], s53 offen")
        a("buffer_store_dwordx4 v[200:203], v18, s[40:43], s8 offen sc1")
        a("s_mov_b64 exec, -1")
        self.stamp(5)
        if self.o.get("nored"): self.end()
        a("s_cmp_lt_u32 s5, 4")
        a("s_cbranch_scc0 LTWe")
        a("s_cmp_eq_u32 s3, 1")
        a("s_cbranch_scc0 LTWe")
        a("s_lshl_b32 s6, s4, 2")
        a("s_add_u32 s6, s6, s5")
        self.srd(44, 16, 2048)
        self.srd(48, 38, 2048)
        a("v_bfe_u32 v2, v0, 2, 1")
        a("v_and_b32 v3, 3, v0")
        a("v_lshlrev_b32 v4, 3, v3")
        a("v_lshl_add_u32 v5, v2, 10, v4")
        a("v_lshlrev_b32 v6, 1, v5")
        a("v_lshrrev_b32 v8, 3, v0")
        a("v_lshl_add_u32 v7, v8, 12, v6")
        a("v_lshlrev_b32 v9, 4, v0")
        a("s_lshl_b32 s7, s6, 5")
        a("s_lshl_b32 s8, s6, 6")
        a(f"s_add_u32 s9, s8, {HD}")
        a(f"s_add_u32 s52, s8, {HM}")
        a(f"s_add_u32 s53, s8, {HM+3*4096}")
        a(f"s_mul_i32 s54, s6, {HFS}")
        a(f"s_add_u32 s54, s54, {HF}")
        a("s_add_u32 s55, s54, 4096")
        a("buffer_load_dwordx2 v[10:11], v5, s[44:47], s7 offen")
        a(f"s_mov_b32 s27, {RDY}")
        self.poll([f"buffer_load_dword v{40+i}, v9, s[40:43], s27 offen offset:{1024*i} sc1" for i in range(4)]
                  + ["buffer_load_dwordx4 v[12:15], v6, s[40:43], s52 offen sc1", "buffer_load_dwordx4 v[16:19], v6, s[40:43], s53 offen sc1"],
                  [(*self.TAGBAD, 40 + i) for i in range(4)] + [(*self.TAGBAD, 14), (*self.TAGBAD, 18)], sleep=2)
        self.poll(["buffer_load_dwordx4 v[24:27], v7, s[40:43], s9 offen sc1"], [(*self.POISON, 24)], sleep=2)
        self.stamp(6)
        a("s_cmp_eq_u32 s6, 0")
        a("s_cbranch_scc0 LTWn")
        a("s_mov_b64 exec, 1")
        a("v_mov_b32 v20, s14")
        a("v_mov_b32 v21, 0")
        a(f"buffer_store_dword v20, v21, s[40:43], 0 offen offset:{EPOCH} sc1")
        a("s_mov_b64 exec, -1")
        a.label("LTWn")
        red8 = self.red8
        red8(24)
        self.unpack(10, 28, 2)
        self.unpack(12, 32, 2)
        self.unpack(16, 36, 2)
        for i in range(4): a(f"v_fmac_f32 v{28+i}, v{24+i}, v{32+i}")
        self.sum_poll([f"buffer_load_dwordx4 v[{64+4*i}:{67+4*i}], v9, s[40:43], s{54+(i>>2)} offen offset:{1024*(i&3)} sc1" for i in range(7)], 64, 56)
        self.stamp(7)
        red8(56)
        for i in range(4): a(f"v_fmac_f32 v{28+i}, v{56+i}, v{36+i}")
        a("v_cvt_pk_bf16_f32 v10, v28, v29")
        a("v_cvt_pk_bf16_f32 v11, v30, v31")
        a("s_mov_b64 exec, 0xff")
        a("buffer_store_dwordx2 v[10:11], v5, s[48:51], s7 offen " + ["", "sc1", "nt", "sc0 sc1"][self.o.get("oflag", 0)])
        self.stamp(8)
        if self.o.get("padto"):
            a("s_cmp_eq_u32 s6, 0")
            a("s_cbranch_scc0 LTWe")
        if self.o.get("padto"):
            a(f"s_mov_b32 s100, {self.o['padto']}")
            if self.o.get("amp"):
                a("s_waitcnt lgkmcnt(0)")
                a(f"s_sub_u32 s98, s{64+2*self.o['amp']}, s96")
                a("s_mul_i32 s98, s98, 10")
                a("s_add_u32 s100, s100, s98")
            a.label("Lpad")
            a("s_memrealtime s[98:99]")
            a("s_waitcnt lgkmcnt(0)")
            a("s_sub_u32 s98, s98, s96")
            a("s_cmp_lt_u32 s98, s100")
            a("s_cbranch_scc1 Lpad")
        a.label("LTWe")
        self.end()

    def ww_main(self):
        a, wf = self.a, self.wf
        a.label("LWHp")
        a("s_branch LWH2")
        a.label("LW2")
        self.stamp(1)
        self.traddr256(8, 8, "s7", 3, 5)
        a("s_lshr_b32 s58, s7, 2")
        a(f"s_add_u32 s58, s58, {GA}")
        a("v_and_b32 v3, 7, v0")
        a("v_lshlrev_b32 v3, 7, v3")
        a("v_lshl_add_u32 v3, v1, 5, v3")
        a("v_bfe_u32 v4, v0, 3, 1")
        a("v_lshl_add_u32 v16, v4, 4, v3")
        a("v_add_u32 v16, s58, v16")
        a("v_add_u32 v20, 2048, v16")
        a("v_add_u32 v22, 8, v16")
        a("v_lshlrev_b32 v21, 4, v0")
        a("s_lshl_b32 s8, s4, 12")
        a(f"s_add_u32 s8, s8, {HA}")
        a(f"s_add_u32 s6, s8, {ALOC if self.o.get('aloc', 1) else 0}")
        a("s_mov_b32 s9, s6")
        a("v_lshrrev_b32 v3, 5, v0")
        a("v_and_b32 v4, 31, v0")
        a(f"v_add_u32 v18, {RED}, v21")
        a("v_lshlrev_b32 v19, 4, v4")
        a("v_lshl_add_u32 v19, v3, 14, v19")
        a("s_lshl_b32 s55, s52, 15")
        a("s_lshl_b32 s15, s3, 12")
        a("s_add_u32 s55, s55, s15")
        a("s_lshl_b32 s15, s4, 9")
        a("s_add_u32 s55, s55, s15")
        a(f"s_add_u32 s55, s55, {HB}")
        a("s_lshl_b32 s52, s52, 9")
        self.voff128(2, 1024, 3, 4)
        a("s_lshl_b32 s53, s4, 19")
        a("s_lshl_b32 s15, s3, 17")
        a("s_add_u32 s53, s53, s15")
        a("s_lshr_b32 s15, s52, 2")
        a("s_add_u32 s53, s53, s15")
        a(f"s_add_u32 s59, s7, {WO+16384}")
        a("s_mov_b64 s[48:49], s[24:25]")
        a(f"s_mov_b32 s50, {4096*1024}")
        a("s_mov_b32 m0, s58")
        def agather():
            for t in range(4): a(f"buffer_load_dwordx4 v21, s[40:43], s9 offen offset:{1024*t} sc1 lds")
        a(f"s_waitcnt vmcnt({self.o.get('apre', 2)})")
        agather()
        a("s_waitcnt vmcnt(4) lgkmcnt(0)")
        self.tag()
        self.stamp(2)
        for ks in range(2):
            for t in range(8): self.tr(64 + 32 * ks + 4 * t, 8 + t, 8192 * ks, 4096)
        a("v_mov_b32 v58, s14")
        a("v_mov_b32 v59, s14")
        a(f"s_mov_b32 s12, {SPIN*4 | 15}")
        a("s_branch LWa1")
        a.label("LWa0")
        a("s_and_b32 s13, s12, 15")
        a("s_cselect_b32 s9, s6, s8")
        agather()
        a.label("LWa1")
        a("s_waitcnt vmcnt(0)")
        a("ds_read2st64_b32 v[32:33], v22 offset0:0 offset1:4")
        a("ds_read2st64_b32 v[34:35], v22 offset0:8 offset1:12")
        a("ds_read2_b64 v[24:27], v16 offset0:0 offset1:128")
        a("ds_read2_b64 v[28:31], v20 offset0:0 offset1:128")
        a("s_waitcnt lgkmcnt(2)")
        for i in range(4): a(f"v_xor_b32 v{32+i}, s14, v{32+i}")
        a("v_or3_b32 v32, v32, v33, v34")
        a("v_or_b32 v32, v32, v35")
        a("v_cmp_ne_u32 vcc, 0, v32")
        a("s_waitcnt lgkmcnt(0)")
        a("s_cbranch_vccz LWa2")
        a("s_sub_u32 s12, s12, 1")
        a("s_cbranch_scc0 LWa0")
        a.label("LWa2")
        self.stamp(3)
        if self.diag:
            a(f"s_sub_u32 s84, {SPIN*4 | 15}, s12")
            a("s_mul_i32 s84, s84, 100")
            a("s_add_u32 s84, s84, s64")
        for ks in range(2):
            for t in range(8): self.mfma(128 + 4 * t, 24 + 4 * ks, 64 + 32 * ks + 4 * t, ks == 0)
        for t in range(8): a(f"v_pk_add_f32 v[{128+4*t}:{129+4*t}], v[{128+4*t}:{129+4*t}], v[{130+4*t}:{131+4*t}]")
        for t in range(8): a(f"v_add_f32 v{128+4*t}, v{128+4*t}, v{129+4*t}")
        for k in range(4): a(f"v_permlane16_swap_b32 v{128+8*k}, v{132+8*k}")
        for k in range(4): a(f"v_add_f32 v{128+8*k}, v{128+8*k}, v{132+8*k}")
        def red4(stride):
            for w in range(4): a(f"ds_read_b128 v[{24+4*w}:{27+4*w}], v18 offset:{stride*w}")
            a("s_waitcnt lgkmcnt(2)")
            for k in range(2): a(f"v_pk_add_f32 v[{24+2*k}:{25+2*k}], v[{24+2*k}:{25+2*k}], v[{28+2*k}:{29+2*k}]")
            a("s_waitcnt lgkmcnt(0)")
            for k in range(2): a(f"v_pk_add_f32 v[{32+2*k}:{33+2*k}], v[{32+2*k}:{33+2*k}], v[{36+2*k}:{37+2*k}]")
            for k in range(2): a(f"v_pk_add_f32 v[{24+2*k}:{25+2*k}], v[{24+2*k}:{25+2*k}], v[{32+2*k}:{33+2*k}]")
        a("v_cvt_pk_bf16_f32 v56, v128, v136")
        a("v_cvt_pk_bf16_f32 v57, v144, v152")
        a("buffer_store_dwordx4 v[56:59], v19, s[40:43], s55 offen sc1")
        self.stamp(4)
        a(f"s_add_u32 m0, s7, {WO}")
        a("s_barrier")
        if self.o.get("nowo"): self.end()
        self.delay("odel")
        a("v_and_b32 v3, 15, v0")
        a("v_lshlrev_b32 v13, 7, v3")
        a("s_lshl_b32 s9, s4, 14")
        a(f"s_add_u32 s9, s9, {HC}")
        a("s_lshl_b32 s8, s4, 11")
        a(f"s_add_u32 s8, s8, {HL}")
        a.label("LWd")
        a(f"buffer_load_dwordx4 v2, s[48:51], s53 offen {wf} lds")
        a("s_add_u32 m0, m0, 1024")
        a("s_add_u32 s53, s53, 8192")
        if self.o.get("wothr", 0): a(f"s_waitcnt vmcnt({self.o['wothr']})")
        a("s_cmp_lt_u32 m0, s59")
        a("s_cbranch_scc1 LWd")
        self.stamp(5)
        a("v_lshlrev_b32 v229, 4, v3")
        a("s_lshl_b32 s27, s4, 9")
        a(f"s_add_u32 s27, s27, {RDY}")
        self.rdy_load()
        a("s_lshl_b32 s15, s3, 8")
        a("s_add_u32 s9, s9, s15")
        a("s_lshl_b32 s15, s3, 2")
        a("s_add_u32 s8, s8, s15")
        a(f"s_add_u32 s15, s7, {WO}")
        self.traddr128(8, "s15", 3, 4)
        a("v_and_b32 v3, 15, v0")
        a("v_xor_b32 v12, v3, v1")
        a("v_lshlrev_b32 v12, 4, v12")
        a("v_lshl_add_u32 v4, v1, 10, v12")
        for i in range(1, 4):
            a(f"v_xor_b32 v{4+i}, {64*i}, v4")
            a(f"v_add_u32 v{4+i}, {3072*i}, v{4+i}")
        a("v_lshl_add_u32 v20, v3, 8, v12")
        a("v_add_u32 v20, s58, v20")
        for i in range(1, 4): a(f"v_xor_b32 v{20+i}, {64*i}, v20")
        a("v_lshlrev_b32 v14, 4, v1")
        a("v_lshrrev_b32 v12, 5, v0")
        a("v_lshlrev_b32 v15, 8, v12")
        a("v_and_b32 v12, 31, v0")
        a("v_lshl_add_u32 v15, v12, 2, v15")
        a("s_lshl_b32 s15, s3, 9")
        a(f"s_add_u32 s15, s15, {RED}")
        a("v_add_u32 v15, s15, v15")
        a("v_lshlrev_b32 v17, 4, v3")
        a("v_lshl_add_u32 v17, v1, 11, v17")
        a("s_lshl_b32 s55, s4, 12")
        a("s_lshr_b32 s15, s52, 1")
        a("s_add_u32 s55, s55, s15")
        a(f"s_add_u32 s55, s55, {HD}")
        a("s_mov_b32 m0, s58")
        a("v_mov_b32 v128, 0")
        a("s_waitcnt vmcnt(0)")
        self.stamp(6)
        for ks in range(4):
            for t in range(4): self.tr(64 + 16 * ks + 4 * t, 8 + t, 4096 * ks, 2048)
        self.rdy_check()
        def cbody():
            a("s_mov_b64 exec, 0xffff")
            a("buffer_load_dword v128, v13, s[40:43], s8 offen sc1")
            a("s_mov_b64 exec, -1")
            for i in range(4): a(f"buffer_load_dwordx4 v{4+i}, s[40:43], s9 offen offset:{1024*i} sc1 lds")
            a("s_waitcnt vmcnt(0)")
            for ks in range(4): a(f"ds_read_b128 v[{24+4*ks}:{27+4*ks}], v{20+ks}")
            a("s_waitcnt lgkmcnt(0)")
            a("v_max3_u32 v129, v24, v28, v128")
            a("v_max3_u32 v129, v129, v32, v36")
            a("v_cmp_eq_u32 s[10:11], -1, v129")
        self.stamp(9)
        self.spin(cbody, alt=([8, 9], LOC, self.o.get("every", 16)) if self.o.get("loc", 1) else None)
        self.stamp(7)
        D8 = ("quad_perm:[1,0,3,2]", "quad_perm:[2,3,0,1]", "row_half_mirror")
        def mf(ks):
            for t in range(4): self.mfma(40 + 4 * t, 24 + 4 * ks, 64 + 16 * ks + 4 * t, ks == 0)
        mf(0)
        a("v_mov_b32 v129, v128")
        for m in D8: a(f"v_max_f32_dpp v129, v129, v129 {m} row_mask:0xf bank_mask:0xf")
        a("v_sub_f32 v128, v128, v129")
        a("v_exp_f32 v128, v128")
        mf(1)
        a("v_mov_b32 v129, v128")
        for m in D8: a(f"v_add_f32_dpp v129, v129, v129 {m} row_mask:0xf bank_mask:0xf")
        a("v_rcp_f32 v129, v129")
        a("v_mul_f32 v128, v128, v129")
        for r in range(4): a(f"ds_bpermute_b32 v{130+r}, v14, v128 offset:{4*r}")
        mf(2)
        mf(3)
        a("s_waitcnt lgkmcnt(0)")
        for t in range(4): a(f"v_pk_mul_f32 v[{40+4*t}:{41+4*t}], v[{40+4*t}:{41+4*t}], v[130:131]")
        for t in range(4): a(f"v_pk_fma_f32 v[{40+4*t}:{41+4*t}], v[{42+4*t}:{43+4*t}], v[132:133], v[{40+4*t}:{41+4*t}]")
        for t in range(4): a(f"v_add_f32 v{40+4*t}, v{40+4*t}, v{41+4*t}")
        for k in range(2): a(f"v_permlane16_swap_b32 v{40+8*k}, v{44+8*k}")
        for k in range(2): a(f"v_add_f32 v{40+8*k}, v{40+8*k}, v{44+8*k}")
        for k in range(2): a(f"ds_write_b32 v15, v{40+8*k} offset:{128*k}")
        a("s_waitcnt lgkmcnt(0)")
        a("s_barrier")
        a("s_cmp_eq_u32 s3, 0")
        a("s_cbranch_scc0 LWe")
        a("s_mov_b32 exec_hi, 0")
        red4(512)
        a("buffer_store_dwordx4 v[24:27], v17, s[40:43], s55 offen sc1")
        self.stamp(8)
        a.label("LWe")
        self.end()

    def g_role(self):
        a, wf = self.a, self.wf
        mr0 = self.o.get("mr0", 0)
        if not mr0: self.mr_issue()
        a(f"s_add_u32 s7, s7, {GU}")
        self.g_index()
        a("s_cselect_b32 s62, 1, 0")
        a("s_cbranch_scc1 LGm0")
        a("s_and_b32 s52, s53, 1")
        a("s_cmp_eq_u32 s52, 0")
        a("s_cselect_b64 s[44:45], s[28:29], s[30:31]")
        a("s_cselect_b64 s[48:49], s[30:31], s[28:29]")
        a(f"s_mov_b32 s46, {512*3584}")
        a(f"s_mov_b32 s50, {512*3584}")
        a("s_lshl_b32 s52, s52, 13")
        a("v_lshrrev_b32 v1, 2, v0")
        a("v_bfe_u32 v2, v0, 4, 1")
        a("v_lshlrev_b32 v2, 1, v2")
        a("v_and_b32 v3, 3, v0")
        a("v_xor_b32 v2, v2, v3")
        a("v_mul_u32_u24 v4, 3584, v1")
        a("v_lshl_add_u32 v2, v2, 4, v4")
        a(f"s_mul_i32 s8, s3, {128*3584}")
        a("s_lshl_b32 s15, s53, 6")
        a("s_add_u32 s8, s8, s15")
        def mat(m):
            a("s_add_u32 m0, s7, s52")
            a("s_add_u32 s13, m0, 8192")
            a("s_mov_b32 s9, s8")
            a.label(f"LGd{m}")
            a(f"buffer_load_dwordx4 v2, s[{44+4*m}:{47+4*m}], s9 offen {wf} lds")
            a("s_add_u32 m0, m0, 1024")
            a(f"s_add_u32 s9, s9, {16*3584}")
            if self.o.get("gcap", 0): a(f"s_waitcnt vmcnt({self.o['gcap']})")
            a("s_cmp_lt_u32 m0, s13")
            a(f"s_cbranch_scc1 LGd{m}")
            a("s_xor_b32 s52, s52, 8192")
        early = self.o.get("fearly", 0)
        if early:
            self.delay("fdel")
            self.stamp(5)
            mat(0)
            a("s_waitcnt vmcnt(8)")
            a("s_branch LGm1")
        a.label("LGm0")
        a("s_waitcnt vmcnt(0)")
        a.label("LGm1")
        self.stamp(2)
        self.traddr128(8, "s63", 5, 6)
        for ks in range(2):
            for t in range(4): self.tr(64 + 16 * ks + 4 * t, 8 + t, 4096 * ks, 2048)
        a("s_lshl_b32 s9, s60, 14")
        a("s_lshl_b32 s15, s3, 12")
        a("s_add_u32 s9, s9, s15")
        a("s_lshl_b32 s15, s61, 7")
        a("s_add_u32 s9, s9, s15")
        a(f"s_add_u32 s9, s9, {HP}")
        a("s_waitcnt lgkmcnt(0)")
        for ks in range(2):
            for t in range(4): self.mfma(40 + 4 * t, 64 + 16 * ks + 4 * t, 32 + 4 * ks, ks == 0)
        self.exec16(3)
        for t in range(4):
            a(f"v_cvt_pk_bf16_f32 v{40+4*t}, v{40+4*t}, v{41+4*t}")
            a(f"v_cvt_pk_bf16_f32 v{41+4*t}, v{42+4*t}, v{43+4*t}")
            a(f"v_mov_b32 v{42+4*t}, s14")
        for t in range(4): a(f"buffer_store_dwordx4 v[{40+4*t}:{43+4*t}], v13, s[40:43], s9 offen offset:{1024*t} sc1")
        a("s_mov_b64 exec, -1")
        self.stamp(11)
        a("s_cmp_eq_u32 s62, 1")
        a("s_cbranch_scc1 LM")
        if self.o.get("noffn"): self.end()
        if not early:
            self.delay("fdel")
            self.stamp(5)
            mat(0)
        mat(1)
        a("s_mov_b64 s[48:49], s[16:17]")
        a("s_mov_b32 s50, 2048")
        a("v_lshrrev_b32 v4, 5, v0")
        a("v_and_b32 v5, 31, v0")
        a("v_lshlrev_b32 v19, 3, v5")
        a("v_lshl_add_u32 v19, v4, 10, v19")
        a("s_lshl_b32 s15, s3, 8")
        a("buffer_load_dwordx2 v[24:25], v19, s[48:51], s15 offen")
        a("s_lshl_b32 s9, s53, 15")
        a("s_add_u32 s9, s9, s15")
        a("v_lshrrev_b32 v229, 3, v0")
        a("v_lshlrev_b32 v229, 9, v229")
        a("v_and_b32 v6, 7, v0")
        a("v_lshl_add_u32 v229, v6, 4, v229")
        a(f"s_mov_b32 s27, {RDY+256}")
        self.rdy_load()
        a("v_lshlrev_b32 v18, 1, v19")
        a("s_lshl_b32 s15, s3, 9")
        for k in range(3): a(f"s_add_u32 s{28+k}, s15, {HM+4096*k}")
        mloads = [f"buffer_load_dwordx4 v[{160+4*k}:{163+4*k}], v18, s[40:43], s{28+k} offen sc1" for k in range(3)]
        for l in mloads: a(l)
        for k in range(8): a(f"s_add_u32 s{16+k}, s15, {HD+4096*k}")
        self.voff256(6, 10, 8, 9)
        a("s_mov_b64 s[44:45], s[32:33]")
        a(f"s_mov_b32 s46, {1792*1024}")
        a("s_lshl_b32 s6, s3, 13")
        a(f"s_add_u32 s6, s6, {DWN}")
        a("s_mov_b32 m0, s6")
        a("s_add_u32 s13, s6, 8192")
        a.label("LGd2")
        for i in range(2):
            a(f"buffer_load_dwordx4 v{6+i}, s[44:47], s9 offen {wf} lds")
            a("s_add_u32 m0, m0, 1024")
            a("s_add_u32 s9, s9, 4096")
        a("s_cmp_lt_u32 m0, s13")
        a("s_cbranch_scc1 LGd2")
        a("v_bfe_u32 v8, v0, 4, 1")
        a("v_lshlrev_b32 v8, 5, v8")
        a("v_lshl_add_u32 v8, v1, 6, v8")
        a("v_lshl_add_u32 v8, v3, 3, v8")
        a("v_add_u32 v8, s7, v8")
        a("v_xor_b32 v9, 32, v8")
        self.traddr256(10, 8, "s6", 6, 7)
        a("v_mul_u32_u24 v20, 816, v4")
        a("v_lshrrev_b32 v6, 3, v5")
        a("v_lshl_add_u32 v20, v6, 6, v20")
        a("v_lshl_add_u32 v20, v3, 4, v20")
        a("v_bfe_u32 v6, v0, 2, 1")
        a("v_lshl_add_u32 v20, v6, 3, v20")
        a(f"s_add_u32 s15, s7, {AROW_O}")
        a("v_add_u32 v20, s15, v20")
        a("v_mul_u32_u24 v22, 816, v6")
        a("v_and_b32 v7, 48, v0")
        a("v_add3_u32 v22, v22, v7, s15")
        a("s_mov_b32 s59, 272")
        a("v_and_b32 v21, 1, v0")
        a("v_mul_u32_u24 v21, 272, v21")
        a("v_add3_u32 v21, v21, v22, s59")
        a("v_lshl_add_u32 v227, v6, 6, v7")
        a(f"v_mul_u32_u24 v228, {HFS}, v4")
        a("v_lshl_add_u32 v228, v5, 2, v228")
        a("v_lshlrev_b32 v2, 4, v0")
        a("s_lshl_b32 s15, s3, 10")
        a("v_add_u32 v23, s15, v2")
        a("v_lshlrev_b32 v224, 3, v0")
        a("s_lshl_b32 s15, s3, 9")
        a("v_add_u32 v225, s15, v224")
        a("s_lshl_b32 s15, s3, 2")
        a("v_add_u32 v226, s15, v7")
        a("v_and_b32 v231, 16, v0")
        a("v_lshlrev_b32 v231, 1, v231")
        a(f"s_mul_i32 s26, s3, {8*HFS}")
        a("s_lshl_b32 s15, s53, 7")
        a("s_add_u32 s26, s26, s15")
        a(f"s_add_u32 s26, s26, {HF}")
        a(f"v_mov_b32 v232, {f32(1e-5)}")
        a("s_waitcnt vmcnt(8)")
        self.stamp(6)
        for m in range(2):
            for ks in range(4):
                for t in range(2): self.tr(64 + 32 * m + 8 * ks + 4 * t, 8 + t, 8192 * m + 2048 * ks, 1024)
        self.unpack(24, 28, 2)
        self.rdy_check()
        for k in range(3): a(f"v_xor_b32 v{163+4*k}, s14, v{162+4*k}")
        a("v_or3_b32 v163, v163, v167, v171")
        a("v_cmp_ne_u32 vcc, 0, v163")
        a("s_cbranch_vccz LGmo")
        self.poll(mloads, [(*self.TAGBAD, 162 + 4 * k) for k in range(3)], sleep=1)
        a.label("LGmo")
        self.stamp(4)
        a("s_waitcnt lgkmcnt(0)")
        a("ds_write_b64 v20, v[164:165] offset:544")
        self.unpack(168, 196, 2)
        for i in range(4): a(f"v_add_f32 v{196+i}, 1.0, v{196+i}")
        a("v_cvt_pk_bf16_f32 v36, v196, v197")
        a("v_cvt_pk_bf16_f32 v37, v198, v199")
        a("ds_write_b64 v20, v[36:37] offset:272")
        for ks in range(4): a(f"ds_read_b128 v[{172+4*ks}:{175+4*ks}], v21 offset:{64*ks}")
        self.unpack(160, 192, 2)
        self.unpack(36, 196, 2)
        for i in range(4): a(f"v_mul_f32 v{200+i}, v{28+i}, v{196+i}")
        for i in range(4): a(f"v_mul_f32 v{196+i}, v{192+i}, v{196+i}")
        def mf(ks):
            for m in range(2):
                for t in range(2): self.mfma(40 + 8 * m + 4 * t, 172 + 4 * ks, 64 + 32 * m + 8 * ks + 4 * t, ks == 0)
        a("s_waitcnt lgkmcnt(0)")
        for ks in range(4): mf(ks)
        for m in range(2):
            for r in range(2): a(f"v_permlane32_swap_b32 v{40+8*m+r}, v{44+8*m+r}")
        a("v_mov_b32 v42, v48")
        a("v_mov_b32 v43, v49")
        a(f"ds_write_b128 v23, v[40:43] offset:{CSR}")
        a("s_waitcnt vmcnt(0)")
        for dt in range(8): self.tr(128 + 4 * dt, 10 + dt, 0, 4096)
        self.stamp(10)
        self.guard(1100)
        self.sum_poll([f"buffer_load_dwordx4 v[{160+4*k}:{163+4*k}], v18, s[40:43], s{16+k} offen sc1" for k in range(8)], 160, 56)
        self.stamp(7)
        for k in range(2): a(f"v_pk_fma_f32 v[{200+2*k}:{201+2*k}], v[{56+2*k}:{57+2*k}], v[{196+2*k}:{197+2*k}], v[{200+2*k}:{201+2*k}]")
        a("v_cvt_pk_bf16_f32 v32, v200, v201")
        a("v_cvt_pk_bf16_f32 v33, v202, v203")
        a("ds_write_b64 v20, v[32:33]")
        for ks in range(4): a(f"ds_read_b128 v[{172+4*ks}:{175+4*ks}], v22 offset:{64*ks}")
        for k in range(2): a(f"v_pk_fma_f32 v[{28+2*k}:{29+2*k}], v[{56+2*k}:{57+2*k}], v[{192+2*k}:{193+2*k}], v[{28+2*k}:{29+2*k}]")
        a("v_pk_add_f32 v[190:191], v[28:29], v[30:31]")
        a("v_pk_mul_f32 v[28:29], v[28:29], v[28:29]")
        a("v_pk_fma_f32 v[28:29], v[30:31], v[30:31], v[28:29]")
        a("v_add_f32 v190, v190, v191")
        a("v_add_f32 v191, v28, v29")
        a("v_permlane16_swap_b32 v190, v191")
        a("s_waitcnt lgkmcnt(3)")
        mf(0)
        a("v_add_f32 v190, v190, v191")
        a("s_waitcnt lgkmcnt(2)")
        mf(1)
        self.row_sum(190)
        a("s_waitcnt lgkmcnt(0)")
        mf(2)
        a(f"ds_write_b32 v226, v190 offset:{STAT}")
        mf(3)
        a("v_permlane32_swap_b32 v40, v44")
        a("v_permlane32_swap_b32 v48, v52")
        a("v_mov_b32 v41, v48")
        a(f"ds_write_b64 v225, v[40:41] offset:{REC}")
        a("s_waitcnt lgkmcnt(0)")
        a("s_barrier")
        self.stamp(8)
        a(f"ds_read_b128 v[24:27], v231 offset:{STAT}")
        a(f"ds_read_b128 v[28:31], v231 offset:{STAT+16}")
        for w in range(4): a(f"ds_read_b128 v[{208+4*w}:{211+4*w}], v2 offset:{CSR+1024*w}")
        for w in range(4): a(f"ds_read_b64 v[{64+2*w}:{65+2*w}], v224 offset:{REC+512*w}")
        a("s_waitcnt lgkmcnt(8)")
        a("v_pk_add_f32 v[24:25], v[24:25], v[26:27]")
        a("v_pk_add_f32 v[28:29], v[28:29], v[30:31]")
        a("v_add_f32 v24, v24, v25")
        a("v_add_f32 v28, v28, v29")
        a(f"v_mul_f32 v24, {f32(1/512)}, v24")
        a(f"v_fmamk_f32 v28, v28, {f32(1/512)}, v232")
        a("v_fma_f32 v28, -v24, v24, v28")
        a("v_rsq_f32 v28, v28")
        a("s_waitcnt lgkmcnt(4)")
        for k in range(2):
            a(f"v_pk_add_f32 v[{208+2*k}:{209+2*k}], v[{208+2*k}:{209+2*k}], v[{212+2*k}:{213+2*k}]")
            a(f"v_pk_add_f32 v[{216+2*k}:{217+2*k}], v[{216+2*k}:{217+2*k}], v[{220+2*k}:{221+2*k}]")
        for k in range(2): a(f"v_pk_add_f32 v[{208+2*k}:{209+2*k}], v[{208+2*k}:{209+2*k}], v[{216+2*k}:{217+2*k}]")
        a("s_waitcnt lgkmcnt(0)")
        a("v_pk_add_f32 v[64:65], v[64:65], v[66:67]")
        a("v_pk_add_f32 v[68:69], v[68:69], v[70:71]")
        a("v_pk_add_f32 v[64:65], v[64:65], v[68:69]")
        a("v_fma_f32 v64, -v24, v208, v64")
        a("v_fma_f32 v65, -v24, v210, v65")
        a("v_fma_f32 v64, v64, v28, v209")
        a("v_fma_f32 v65, v65, v28, v211")
        a("v_max_f32 v64, 0, v64")
        a("v_mul_f32 v64, v64, v65")
        a("v_mov_b32_dpp v65, v64 quad_perm:[1,0,3,2] row_mask:0xf bank_mask:0xf")
        a("v_cvt_pk_bf16_f32 v64, v64, v65")
        for i, off in enumerate((0, 8, 128, 136)): a(f"ds_bpermute_b32 v{24+i}, v227, v64 offset:{off}")
        a("s_waitcnt lgkmcnt(0)")
        for dt in range(8): self.mfma(160 + 4 * dt, 24, 128 + 4 * dt, True)
        for k in range(4):
            a(f"v_permlane32_swap_b32 v{160+8*k}, v{164+8*k}")
            a(f"buffer_store_dword v{160+8*k}, v228, s[40:43], s26 offen sc1")
            if k < 3: a(f"s_add_u32 s26, s26, {2*HFS}")
        self.stamp(9)
        self.end()

    def small_helpers(self):
        a = self.a
        a.label("LGH2")
        a("s_setprio 3")
        self.tag()
        for i in range(4): a(f"v_mov_b32 v{32+i}, -1")
        self.g_index()
        a("s_cbranch_scc1 LGH3")
        a("v_lshrrev_b32 v3, 3, v0")
        a(f"v_mul_u32_u24 v3, {HFS}, v3")
        a("v_and_b32 v4, 7, v0")
        a("v_lshl_add_u32 v3, v4, 4, v3")
        a("s_lshl_b32 s15, s53, 7")
        a(f"s_add_u32 s15, s15, {HF}")
        for i in range(4):
            a("buffer_store_dwordx4 v[32:35], v3, s[40:43], s15 offen sc1")
            if i < 3: a(f"s_add_u32 s15, s15, {8*HFS}")
        a("s_waitcnt vmcnt(0)")
        a.label("LGH3")
        a("s_add_u32 s5, s5, 24")
        self.rdy_publish(8, "s5")
        a("s_endpgm")
        a.label("LWH2")
        a("s_setprio 3")
        for i in range(4): a(f"v_mov_b32 v{32+i}, -1")
        a("v_bfe_u32 v3, v0, 4, 1")
        a("v_lshlrev_b32 v3, 11, v3")
        a("v_and_b32 v4, 15, v0")
        a("v_lshl_add_u32 v3, v4, 4, v3")
        a("s_lshl_b32 s15, s4, 12")
        a("s_and_b32 s6, s5, 7")
        a("s_lshl_b32 s6, s6, 8")
        a("s_add_u32 s15, s15, s6")
        a(f"s_add_u32 s15, s15, {HD}")
        a("s_waitcnt lgkmcnt(0)")
        a("s_load_dword s14, s[40:41], 0")
        a("s_mov_b32 exec_hi, 0")
        a("buffer_store_dwordx4 v[32:35], v3, s[40:43], s15 offen sc1")
        a("s_waitcnt vmcnt(0) lgkmcnt(0)")
        self.tag()
        self.rdy_publish(8, "s5")
        a("s_endpgm")
        a.label("LTH")
        a("s_setprio 3")
        for i in range(4): a(f"v_mov_b32 v{40+i}, -1")
        a("v_lshlrev_b32 v2, 4, v0")
        a("s_lshl_b32 s6, s4, 4")
        a("s_add_u32 s6, s6, s5")
        a("s_lshl_b32 s54, s6, 10")
        a(f"s_add_u32 s54, s54, {HC}")
        a("s_lshl_b32 s55, s6, 7")
        a(f"s_add_u32 s55, s55, {HL}")
        a("s_waitcnt lgkmcnt(0)")
        a("s_load_dword s14, s[40:41], 0")
        a("buffer_store_dwordx4 v[40:43], v2, s[40:43], s54 offen sc1")
        a(f"s_add_u32 s54, s54, {LOC}")
        a("buffer_store_dwordx4 v[40:43], v2, s[40:43], s54 offen sc1")
        a("s_mov_b64 exec, 0xff")
        a("buffer_store_dwordx4 v[40:43], v2, s[40:43], s55 offen sc1")
        a(f"s_add_u32 s55, s55, {LOC}")
        a("buffer_store_dwordx4 v[40:43], v2, s[40:43], s55 offen sc1")
        a("s_mov_b64 exec, -1")
        a("s_waitcnt vmcnt(0) lgkmcnt(0)")
        self.tag()
        self.rdy_publish(44, "s5")
        a("buffer_load_dwordx4 v[232:235], v2, s[40:43], s54 offen sc1")
        a("s_mov_b64 exec, 1")
        a("buffer_load_dword v236, v2, s[40:43], s55 offen sc1")
        if self.o.get("probe", 0):
            a("s_lshl_b32 s55, s4, 15")
            a("s_and_b32 s13, s5, 8")
            a("s_lshl_b32 s13, s13, 11")
            a("s_add_u32 s55, s55, s13")
            a(f"s_add_u32 s55, s55, {HB}")
            self.ssent(55, [512 * k + 8 for k in range(8, 16)])
            self.ssent(55, [512 * k + 8 for k in range(24, 32)])
            a(f"v_mov_b32 v3, {LS}")
            a("v_mov_b32 v4, s14")
            a("ds_write_b32 v3, v4")
        a("s_endpgm")

    def m_role(self):
        a = self.a
        a.label("LM")
        if self.o.get("nom"): self.end()
        a("s_and_b32 s6, s4, 6")
        a("s_add_u32 s6, s6, s5")
        a("s_sub_u32 s6, s6, 6")
        a("s_lshl_b32 s6, s6, 2")
        a("s_add_u32 s6, s6, s3")
        a("s_lshl_b32 s8, s6, 12")
        a(f"s_add_u32 s8, s8, {HP}")
        a("s_lshr_b32 s9, s6, 3")
        a("s_lshl_b32 s9, s9, 12")
        a("s_and_b32 s6, s6, 7")
        a("s_lshl_b32 s6, s6, 8")
        a("s_add_u32 s9, s9, s6")
        a(f"s_add_u32 s9, s9, {HM}")
        a("v_lshlrev_b32 v2, 4, v0")
        a("v_and_b32 v3, 1, v0")
        a("v_lshlrev_b32 v3, 11, v3")
        a("v_bfe_u32 v4, v0, 1, 2")
        a("v_lshl_add_u32 v3, v4, 4, v3")
        self.poll([f"buffer_load_dwordx4 v[{40+4*t}:{43+4*t}], v2, s[40:43], s8 offen offset:{1024*t} sc1" for t in range(4)],
                  [(*self.TAGBAD, 42 + 4 * t) for t in range(4)], sleep=2)
        self.stamp(6)
        for t in range(4): self.unpack(40 + 4 * t, 64 + 4 * t, 2)
        for t in range(4): self.red8(64 + 4 * t)
        for t in range(4):
            a(f"v_cvt_pk_bf16_f32 v{40+4*t}, v{64+4*t}, v{65+4*t}")
            a(f"v_cvt_pk_bf16_f32 v{41+4*t}, v{66+4*t}, v{67+4*t}")
            a(f"v_mov_b32 v{42+4*t}, s14")
        a("s_mov_b64 exec, 0xff")
        for t in range(4): a(f"buffer_store_dwordx4 v[{40+4*t}:{43+4*t}], v3, s[40:43], s9 offen offset:{64*t} sc1")
        self.stamp(7)
        self.end()

    def red8(self, r):
        a = self.a
        for i in range(4): a(f"v_add_f32_dpp v{r+i}, v{r+i}, v{r+i} row_ror:8 row_mask:0xf bank_mask:0xf")
        for sw in ("16", "32"):
            for i in range(4): a(f"v_mov_b32 v{60+i}, v{r+i}")
            for i in range(4): a(f"v_permlane{sw}_swap_b32 v{r+i}, v{60+i}")
            for i in range(4): a(f"v_add_f32 v{r+i}, v{r+i}, v{60+i}")

    def build(self):
        self.prologue()
        self.ww_early()
        if self.o.get("tnear"): self.tw_early()
        self.g_early()
        self.g_role()
        self.guard(2800, fall=False)
        self.ww_main()
        self.guard(3300, fall=False)
        if not self.o.get("tnear"): self.tw_early()
        self.tw_issue()
        self.tw_main()
        self.m_role()
        self.small_helpers()
        if self.diag:
            self.a.label("Ldump")
            self.dump_stamps()
        self.a.label("Lexit")
        self.a("s_endpgm")
        self.a.label("Lcode_end")
        body = self.a.finish()
        head = open("cdna_kernels/" + NAME + ".s.ref").read().split("; Override launch geometry")[0]
        return head + f"""; Generated by gen/gen_kernel.py (hand-written generator): one persistent launch, 256 workgroups x 5 waves.
; @launch grid=(256,1,1) block=(320,1,1) lds={LDS_BYTES}
.amdgcn_target "amdgcn-amd-amdhsa--gfx950"
.text
.globl {KNAME}
.p2align 12
.type {KNAME},@function
{KNAME}:
{body}
.section .rodata,"a"
.p2align 6
.amdhsa_kernel {KNAME}
  .amdhsa_next_free_vgpr 240
  .amdhsa_next_free_sgpr 102
  .amdhsa_accum_offset 240
  .amdhsa_group_segment_fixed_size 0
  .amdhsa_kernarg_size 112
  .amdhsa_user_sgpr_count 2
  .amdhsa_user_sgpr_kernarg_segment_ptr 1
  .amdhsa_system_sgpr_workgroup_id_x 1
.end_amdhsa_kernel
"""

if __name__ == "__main__":
    import argparse
    ap = argparse.ArgumentParser()
    ap.add_argument("-o", default="cdna_kernels/" + NAME + ".s")
    ap.add_argument("--diag", action="store_true")
    ap.add_argument("--wflag", default="nt")
    ap.add_argument("--opt", action="append", default=[])
    args = ap.parse_args()
    opts = {}
    for o in args.opt:
        k, _, v = o.partition("=")
        opts[k] = int(v) if v else 1
    open(args.o, "w").write(Gen(args.diag, args.wflag, opts).build())
    print("wrote", args.o)
```

```python
import sys, struct
from asmlib import Asm

NAME = "adaLN_cond__sliding_block_cached__glu_gated_reglu__decode"
KNAME = NAME + "_kernel"

def f32(x): return "0x%08x" % struct.unpack("<I", struct.pack("<f", x))[0]

EPOCH = 0x0
RDY = 0x1000
HM = 0x4000
HA = 0x8000
ALOC = 0x8000
HB = 0x140000
HD = 0x20000
HL = HD + 0x8000
HC = HL + 0x4000
LOC = 0x24000
HF = HC + 0x20000 + LOC
HFS = 7168
HP = 0xD0000
STAMP = 0x100000
WS_SIZE = 0x200000
LDS_BYTES = 151552
KB, VB, MRW, PB, MX, LS, QB, SCT = 0, 65536, 131072, 147456, 149504, 149568, 149760, 150848
WQ, WO, GA, RED = 0, 65536, 131072, 147456
W1, GU, DWN, MRG, SC = 0, 16384, 81920, 114688, 147456
REC, CSR, STAT = W1, W1 + 4096, W1 + 8192
AROW_O = 4096

LOG2E = 1.4426950408889634
CSC = (128 ** -0.5) * LOG2E
SPIN = 20000
import os
if os.environ.get('SPIN'): SPIN = int(os.environ['SPIN'])
MFMA = "v_mfma_f32_16x16x32_bf16"

class Gen:
    POISON = ("v_cmp_eq_u32", "-1")
    TAGBAD = ("v_cmp_ne_u32", "s14")

    def __init__(self, diag=False, wflag="nt", opts=None):
        self.a = Asm()
        self.diag = diag
        self.wf = wflag
        self.o = opts or {}
        self.nlab = 0
    def lab(self, p="L"):
        self.nlab += 1
        return f"{p}{self.nlab}"
    def stamp(self, k):
        if self.diag or self.o.get("amp") == k: self.a(f"s_memrealtime s[{64+2*k}:{65+2*k}]")
    def dump_max(self):
        a = self.a
        a("s_load_dwordx2 s[44:45], s[0:1], 96")
        a("s_mov_b32 s46, 256")
        a("s_mov_b32 s47, 0x20000")
        a("s_mov_b64 exec, 1")
        a("v_mov_b32 v1, 0")
        a("s_waitcnt lgkmcnt(0)")
        def put(slot, reg):
            a(f"v_mov_b32 v4, {reg}")
            a(f"buffer_atomic_umax v4, v1, s[44:47], 0 offen offset:{4*slot} sc1")
        a("s_not_b32 s60, s64")
        put(0, "s60"); put(1, "s64")
        a("s_lshr_b32 s5, s2, 3")
        a("s_cmp_ge_u32 s5, 24")
        a("s_cbranch_scc1 LdG")
        a("s_cmp_ge_u32 s5, 16")
        a("s_cbranch_scc1 LdW")
        for slot, k in ((6, 3), (7, 9), (8, 5), (15, 8)): put(slot, f"s{64+2*k}")
        a("s_endpgm")
        a.label("LdW")
        for slot, k in ((3, 2), (4, 3), (5, 4), (9, 6), (10, 7), (11, 8)): put(slot, f"s{64+2*k}")
        a("s_endpgm")
        a.label("LdG")
        for slot, k in ((2, 3), (12, 6), (13, 7), (14, 9)): put(slot, f"s{64+2*k}")
    def dump_gamp(self):
        a = self.a
        k, lo, hi = self.o["gamp"] // 10000, self.o["gamp"] // 100 % 100, self.o["gamp"] % 100
        a("s_waitcnt lgkmcnt(0)")
        a("s_lshr_b32 s5, s2, 3")
        a(f"s_sub_u32 s60, s5, {lo}")
        a(f"s_cmp_lt_u32 s60, {hi-lo}")
        a(f"s_cselect_b32 s61, s{64+2*k}, 0")
        a("s_cmp_eq_u32 s61, 0")
        a("s_cselect_b32 s61, s64, s61")
        a("s_lshl_b32 s60, s2, 2")
        a("s_add_u32 s60, s60, s3")
        a("s_lshl_b32 s60, s60, 2")
        a(f"s_add_u32 s60, s60, {STAMP}")
        a("s_mov_b64 exec, 1")
        a("v_mov_b32 v1, 0")
        a("v_mov_b32 v4, s64")
        a("v_mov_b32 v5, s61")
        a("buffer_store_dword v4, v1, s[40:43], s60 offen sc1")
        a("s_add_u32 s60, s60, 4096")
        a("buffer_store_dword v5, v1, s[40:43], s60 offen sc1")
        a("s_mov_b64 exec, -1")
        a("s_cmp_eq_u32 s2, 0")
        a("s_cbranch_scc0 Lexit")
        a("s_cmp_eq_u32 s3, 1")
        a("s_cbranch_scc0 Lexit")
        def until(reg):
            L = self.lab("Lu")
            a.label(L)
            a("s_memrealtime s[98:99]")
            a("s_waitcnt lgkmcnt(0)")
            a("s_sub_u32 s98, s98, s64")
            a(f"s_cmp_lt_u32 s98, {reg}")
            a(f"s_cbranch_scc1 {L}")
        until(3000)
        a("v_lshlrev_b32 v2, 4, v0")
        a(f"s_mov_b32 s60, {STAMP}")
        a(f"s_mov_b32 s61, {STAMP+4096}")
        for i in range(4):
            a(f"buffer_load_dwordx4 v[{8+4*i}:{11+4*i}], v2, s[40:43], s60 offen offset:{1024*i} sc1")
            a(f"buffer_load_dwordx4 v[{24+4*i}:{27+4*i}], v2, s[40:43], s61 offen offset:{1024*i} sc1")
        a("s_waitcnt vmcnt(0)")
        for i in range(32): a(f"v_subrev_u32 v{8+i}, s64, v{8+i}")
        for i in range(1, 16):
            a(f"v_min_i32 v8, v8, v{8+i}")
            a(f"v_max_i32 v24, v24, v{24+i}")
        a("s_mov_b32 s60, 0")
        a("s_mov_b32 s61, 0")
        for l in range(64):
            a(f"v_readlane_b32 s62, v8, {l}")
            a(f"v_readlane_b32 s63, v24, {l}")
            a("s_min_i32 s60, s60, s62")
            a("s_max_i32 s61, s61, s63")
        a("s_sub_u32 s61, s61, s60")
        a("s_mul_i32 s61, s61, 40")
        a("s_add_u32 s100, s61, 4000")
        until("s100")
    def dump_stamps(self):
        if not self.diag: return
        if self.o.get("gamp") is not None: return self.dump_gamp()
        if self.o.get("dmax"): return self.dump_max()
        a = self.a
        a("s_waitcnt lgkmcnt(0)")
        a("s_mov_b64 exec, 1")
        a("s_mul_i32 s60, s2, 5")
        a("s_add_u32 s60, s60, s3")
        a("s_lshl_b32 s60, s60, 6")
        a(f"s_add_u32 s60, s60, {STAMP}")
        a("v_mov_b32 v1, 0")
        for q in range(3):
            for i in range(4):
                a(f"v_mov_b32 v{4+i}, s{64+2*(4*q+i)}")
            a(f"buffer_store_dwordx4 v[4:7], v1, s[40:43], s60 offen offset:{16*q}")
            a("s_nop 1")
    def end(self, helper=False):
        self.a("s_branch Ldump" if self.diag and (not helper or self.o.get("hdump")) else "s_endpgm")
    def delay(self, key):
        n = self.o.get(key, 0)
        if not n: return
        a = self.a
        L = self.lab("Ld")
        a.label(L)
        a("s_memrealtime s[98:99]")
        a("s_waitcnt lgkmcnt(0)")
        a("s_sub_u32 s98, s98, s64")
        a(f"s_cmp_lt_u32 s98, {n}")
        a(f"s_cbranch_scc1 {L}")
    def guard(self, n, fall=True):
        L = self.lab("Lg")
        if fall: self.a(f"s_branch {L}")
        self.a(f".p2align 12, , {n}")
        self.a.label(L)
    def srd(self, d, p, size):
        a = self.a
        a(f"s_mov_b64 s[{d}:{d+1}], s[{p}:{p+1}]")
        a(f"s_mov_b32 s{d+2}, {size}")
        a(f"s_mov_b32 s{d+3}, 0x20000")
    def tag(self):
        self.a("s_mul_i32 s14, s14, 0x9E3779B1")
        self.a("s_add_u32 s14, s14, 0x7F4A7C15")
    def exec16(self, m):
        self.a(f"s_mov_b32 exec_lo, {(m << 16 | m):#x}")
        self.a(f"s_mov_b32 exec_hi, {(m << 16 | m):#x}")
    def poll(self, loads, checks, sleep=0, after=None):
        a = self.a
        L = self.lab("Lp"); D = self.lab("Lpd")
        n = len(loads)
        a(f"s_mov_b32 s12, {SPIN}")
        a.label(L)
        for l in loads: a(l)
        for i, (op, opd, r) in enumerate(checks):
            a(f"s_waitcnt vmcnt({n-1-i})")
            if i == 0:
                a(f"{op} s[10:11], {opd}, v{r}")
            else:
                a(f"{op} vcc, {opd}, v{r}")
                a("s_or_b64 s[10:11], s[10:11], vcc")
            if after: after(i)
        a("s_cmp_eq_u64 s[10:11], 0")
        a(f"s_cbranch_scc1 {D}")
        if sleep: a(f"s_sleep {sleep}")
        a("s_sub_u32 s12, s12, 1")
        a(f"s_cbranch_scc0 {L}")
        a.label(D)
    def spin(self, body, sleep=0, alt=None):
        a = self.a
        L = self.lab("Lp"); D = self.lab("Lpd")
        n = SPIN
        if alt:
            sregs, delta, every = alt
            for i, r in enumerate(sregs):
                a(f"s_mov_b32 s{96+2*i}, s{r}")
                a(f"s_add_u32 s{97+2*i}, s{r}, {delta}")
                a(f"s_mov_b32 s{r}, s{97+2*i}")
            n = SPIN * 4 | (every - 1)
        a(f"s_mov_b32 s12, {n}")
        a.label(L)
        body()
        a("s_cmp_eq_u64 s[10:11], 0")
        a(f"s_cbranch_scc1 {D}")
        if sleep: a(f"s_sleep {sleep}")
        if alt:
            a(f"s_and_b32 s13, s12, {every-1}")
            for i, r in enumerate(sregs): a(f"s_cselect_b32 s{r}, s{97+2*i}, s{96+2*i}")
        a("s_sub_u32 s12, s12, 1")
        a(f"s_cbranch_scc0 {L}")
        a.label(D)
    def ssent(self, soff, offs, cnt=13):
        a = self.a
        L = self.lab("Ls"); D = self.lab("Lsd")
        a(f"s_mov_b32 s{cnt}, {SPIN}")
        a.label(L)
        for k, o in enumerate(offs): a(f"s_load_dword s{88+k}, s[40:41], s{soff} offset:{o} glc")
        a("s_waitcnt lgkmcnt(0)")
        for k in range(len(offs)): a(f"s_xor_b32 s{88+k}, s{88+k}, s14")
        for k in range(1, len(offs)): a(f"s_or_b32 s88, s88, s{88+k}")
        a(f"s_cbranch_scc0 {D}")
        a(f"s_sub_u32 s{cnt}, s{cnt}, 1")
        a(f"s_cbranch_scc0 {L}")
        a.label(D)
    def sum_poll(self, loads, base, acc):
        a = self.a
        n = len(loads)
        def body():
            for l in loads: a(l)
            for i in range(1, n):
                a(f"s_waitcnt vmcnt({n-1-i})")
                src = base if i == 1 else acc
                for k in range(2): a(f"v_pk_add_f32 v[{acc+2*k}:{acc+1+2*k}], v[{src+2*k}:{src+1+2*k}], v[{base+4*i+2*k}:{base+1+4*i+2*k}]")
            a(f"v_cmp_u_f32 s[10:11], v{acc}, v{acc+1}")
            a(f"v_cmp_u_f32 vcc, v{acc+2}, v{acc+3}")
            a("s_or_b64 s[10:11], s[10:11], vcc")
        self.spin(body)
    def silu(self, regs, tmp):
        a = self.a
        for i, r in enumerate(regs): a(f"v_mul_f32 v{tmp+i}, {f32(-LOG2E)}, v{r}")
        for i, r in enumerate(regs): a(f"v_exp_f32 v{tmp+i}, v{tmp+i}")
        for i, r in enumerate(regs): a(f"v_add_f32 v{tmp+i}, 1.0, v{tmp+i}")
        for i, r in enumerate(regs): a(f"v_rcp_f32 v{tmp+i}, v{tmp+i}")
        for i, r in enumerate(regs): a(f"v_mul_f32 v{r}, v{r}, v{tmp+i}")
    def unpack(self, src, dst, n):
        for i in range(n):
            self.a(f"v_lshlrev_b32 v{dst+2*i}, 16, v{src+i}")
            self.a(f"v_and_b32 v{dst+2*i+1}, 0xffff0000, v{src+i}")
    def row_sum(self, r):
        for m in ("quad_perm:[1,0,3,2]", "quad_perm:[2,3,0,1]", "row_half_mirror", "row_mirror"):
            self.a(f"v_add_f32_dpp v{r}, v{r}, v{r} {m} row_mask:0xf bank_mask:0xf")
    def silu_frag(self, base):
        a = self.a
        a("v_bfe_u32 v10, v0, 4, 1")
        a("v_mul_u32_u24 v5, 144, v10")
        a("v_bfe_u32 v4, v0, 3, 1")
        a("v_lshl_add_u32 v5, v4, 6, v5")
        a("v_and_b32 v4, 3, v0")
        a("v_lshl_add_u32 v5, v4, 4, v5")
        a("v_bfe_u32 v4, v0, 2, 1")
        a("v_lshl_add_u32 v5, v4, 3, v5")
        a(f"v_add_u32 v5, {base}, v5")
    def silu_run(self):
        a = self.a
        self.unpack(28, 16, 2)
        self.silu([16, 17, 18, 19], 24)
        a("v_cvt_pk_bf16_f32 v28, v16, v17")
        a("v_cvt_pk_bf16_f32 v29, v18, v19")
        a("ds_write_b64 v5, v[28:29]")
    def c_voff(self, d):
        a = self.a
        a(f"v_bfe_u32 v{d}, v0, 4, 1")
        a(f"v_lshlrev_b32 v{d}, 10, v{d}")
        a("v_and_b32 v11, 15, v0")
        a(f"v_lshl_add_u32 v{d}, v11, 3, v{d}")
    def mfma(self, d, A, B, first):
        c = "0" if first else f"v[{d}:{d+3}]"
        self.a(f"{MFMA} v[{d}:{d+3}], v[{A}:{A+3}], v[{B}:{B+3}], {c}")
    def tr(self, r, va, off, second):
        self.a(f"ds_read_b64_tr_b16 v[{r}:{r+1}], v{va} offset:{off}")
        self.a(f"ds_read_b64_tr_b16 v[{r+2}:{r+3}], v{va} offset:{off+second}")
    def voff256(self, d, stride_sh, t0, t1):
        a = self.a
        a(f"v_lshrrev_b32 v{t0}, 4, v0")
        a(f"v_and_b32 v{t1}, 15, v0")
        a(f"v_lshlrev_b32 v{d}, 1, v{t0}")
        a(f"v_xor_b32 v{d}, v{t1}, v{d}")
        a(f"v_lshlrev_b32 v{d}, 4, v{d}")
        a(f"v_lshl_add_u32 v{d}, v{t0}, {stride_sh}, v{d}")
        a(f"v_xor_b32 v{d+1}, 0x80, v{d}")
    def voff128(self, d, stride, t0, t1):
        a = self.a
        a(f"v_lshrrev_b32 v{t0}, 3, v0")
        a(f"v_and_b32 v{d}, 6, v{t0}")
        a(f"v_and_b32 v{t1}, 7, v0")
        a(f"v_xor_b32 v{d}, v{d}, v{t1}")
        a(f"v_mul_u32_u24 v{t0}, {stride}, v{t0}")
        a(f"v_lshl_add_u32 v{d}, v{d}, 4, v{t0}")
    def traddr256(self, d, n, base, t0, t1, first=None):
        a = self.a
        a(f"v_lshrrev_b32 v{t0}, 2, v0")
        a(f"v_and_b32 v{d}, 7, v{t0}")
        a(f"v_lshlrev_b32 v{d}, 5, v{d}")
        a(f"v_lshl_add_u32 v{d}, v{t0}, 8, v{d}")
        a(f"v_and_b32 v{t1}, 3, v0")
        a(f"v_lshl_add_u32 v{d}, v{t1}, 3, v{d}")
        if first: a(f"v_xor_b32 v{d}, {first}, v{d}")
        a(f"v_add_u32 v{d}, {base}, v{d}")
        for i in range(1, n): a(f"v_xor_b32 v{d+i}, {32*i}, v{d}")
    def traddr128(self, d, base, t0, t1, grp_sh=10, n=4):
        a = self.a
        a(f"v_bfe_u32 v{t0}, v0, 2, 3")
        a(f"v_bfe_u32 v{d}, v0, 3, 2")
        a(f"v_lshlrev_b32 v{d}, 5, v{d}")
        a(f"v_lshl_add_u32 v{d}, v{t0}, 7, v{d}")
        a(f"v_lshrrev_b32 v{t0}, 5, v0")
        a(f"v_lshl_add_u32 v{d}, v{t0}, {grp_sh}, v{d}")
        a(f"v_and_b32 v{t1}, 3, v0")
        a(f"v_lshl_add_u32 v{d}, v{t1}, 3, v{d}")
        if base is not None: a(f"v_add_u32 v{d}, {base}, v{d}")
        for i in range(1, n): a(f"v_xor_b32 v{d+i}, {32*i}, v{d}")

    def prologue(self):
        a = self.a
        a("s_cmp_ge_u32 s2, 256")
        a("s_cbranch_scc1 Lexit")
        a("s_load_dwordx16 s[16:31], s[0:1], 0")
        a("s_load_dwordx8 s[32:39], s[0:1], 64")
        a("s_load_dwordx2 s[40:41], s[0:1], 104")
        if self.diag:
            for k in range(1, 12): a(f"s_mov_b32 s{64+2*k}, 0")
        self.stamp(0)
        if self.o.get("padto"): a("s_memrealtime s[96:97]")
        a("s_getpc_b64 s[56:57]")
        a.label("Lpc0")
        a("s_lshr_b32 s5, s2, 3")
        a("v_lshrrev_b32 v1, 6, v0")
        a("s_mul_i32 s6, s5, 640")
        a("v_lshl_add_u32 v2, v1, 7, s6")
        a("v_min_u32 v2, Lcode_end-Lpc0-4, v2")
        a("global_load_dword v239, v2, s[56:57]")
        a("v_and_b32 v0, 63, v0")
        a("s_and_b32 s4, s2, 7")
        a("v_readfirstlane_b32 s3, v1")
        a(f"s_mov_b32 s42, {WS_SIZE}")
        a("s_mov_b32 s43, 0x20000")
        a("s_mov_b32 s47, 0x20000")
        a("s_mov_b32 s51, 0x20000")
        a("s_lshl_b32 s7, s3, 14")
        a("s_cmp_ge_u32 s5, 24")
        a("s_cbranch_scc1 LG0")
        a("s_cmp_eq_u32 s3, 4")
        a("s_cbranch_scc1 LH0")
        self.voff256(6, 8, 1, 8)
        a("s_mov_b32 m0, s7")
        a("s_cmp_ge_u32 s5, 16")
        a("s_cbranch_scc0 LT0")

    def tw_early(self):
        a, wf = self.a, self.wf
        a.label("LT0")
        a("s_and_b32 s6, s5, 8")
        a("s_add_u32 s6, s6, s4")
        a("s_lshl_b32 s6, s6, 21")
        a("s_and_b32 s8, s5, 7")
        a("s_lshl_b32 s8, s8, 16")
        a("s_add_u32 s6, s6, s8")
        a("s_add_u32 s6, s6, s7")
        a(f"s_add_u32 s6, s6, {6144*256}")
        a("v_xor_b32 v2, v8, v1")
        a("v_lshlrev_b32 v2, 4, v2")
        a("v_lshl_add_u32 v2, v1, 8, v2")
        a("v_xor_b32 v3, 64, v2")
        a("v_xor_b32 v4, 0x80, v2")
        a("v_xor_b32 v5, 0xc0, v2")
        a("s_mov_b32 s8, s6")
        a("s_add_u32 s9, s6, 16384")
        a("s_mov_b32 s46, 0x2000000")
        a("s_mov_b32 s50, 0x2000000")
        thr = self.o.get("thr", 0)
        thk = self.o.get("thk", 2)
        if thr: a(f"s_add_u32 s10, s6, {4096*thr}")
        a("s_waitcnt lgkmcnt(0)")
        a("s_mov_b64 s[44:45], s[18:19]")
        a("s_mov_b64 s[48:49], s[20:21]")
        a("s_load_dword s14, s[40:41], 0")
        if thr:
            a.label("LTWt")
            for i in range(4):
                a(f"buffer_load_dwordx4 v{2+i}, s[44:47], s8 offen offset:{1024*i} {wf} lds")
                a(f"s_waitcnt vmcnt({thk})")
            a("s_add_u32 m0, m0, 4096")
            a("s_add_u32 s8, s8, 4096")
            a("s_cmp_lt_u32 s8, s10")
            a("s_cbranch_scc1 LTWt")
        cap = self.o.get("cap", 7)
        if thr < 4:
            a.label("LTWk")
            for i in range(4):
                a(f"buffer_load_dwordx4 v{2+i}, s[44:47], s8 offen offset:{1024*i} {wf} lds")
                if cap: a(f"s_waitcnt vmcnt({cap})")
            a("s_add_u32 m0, m0, 4096")
            a("s_add_u32 s8, s8, 4096")
            a("s_cmp_lt_u32 s8, s9")
            a("s_cbranch_scc1 LTWk")
        self.stamp(10)
        if self.o.get("tnear"): a("s_branch LTW1")

    def tw_issue(self):
        a, wf = self.a, self.wf
        cap = self.o.get("vcap", 8)
        if self.o.get("tnear"):
            a.label("LTHp")
            a("s_branch LTH")
            a.label("LTW1")
        a("s_lshl_b32 s55, s4, 15")
        a("s_and_b32 s13, s5, 8")
        a("s_lshl_b32 s13, s13, 11")
        a("s_add_u32 s55, s55, s13")
        a("s_lshl_b32 s13, s3, 12")
        a("s_add_u32 s55, s55, s13")
        a(f"s_add_u32 s55, s55, {HB}")
        a("v_lshlrev_b32 v21, 4, v0")
        a(f"s_add_u32 m0, s7, {VB}")
        a("s_mov_b32 s8, s6")
        probe = self.o.get("probe", 0)
        a(f"v_mov_b32 v23, {LS}")
        a("s_mov_b32 s62, 0")
        a("s_waitcnt lgkmcnt(0)")
        self.tag()
        for g in range(4):
            if probe and g:
                L = self.lab("LTp")
                a("s_waitcnt lgkmcnt(0)")
                a("v_readfirstlane_b32 s13, v22")
                a("s_cmp_lg_u32 s62, 0")
                a(f"s_cbranch_scc1 {L}")
                a("s_cmp_lg_u32 s13, s14")
                a(f"s_cbranch_scc1 {L}")
                self.qfetch()
                a(f"s_mov_b32 s62, {5-g}")
                a.label(L)
            for i in range(4):
                if probe and g < 3 and i == 3: a("ds_read_b32 v22, v23")
                a(f"buffer_load_dwordx4 v{6+(i&1)}, s[48:51], s8 offen offset:{1024*i} {wf} lds")
                if cap: a(f"s_waitcnt vmcnt({cap})")
            if g < 3:
                a("s_add_u32 m0, m0, 4096")
                a("s_add_u32 s8, s8, 4096")
        a("s_cmp_lg_u32 s62, 0")
        a("s_cbranch_scc1 LTf")
        self.qfetch()
        a("s_mov_b32 s62, 1")
        a.label("LTf")

    def qfetch(self):
        for i in range(4): self.a(f"buffer_load_dwordx4 v[{192+4*i}:{195+4*i}], v21, s[40:43], s55 offen offset:{1024*i} sc1")

    def ww_early(self):
        a, wf = self.a, self.wf
        a.label("LW0")
        if self.o.get("now"): a("s_endpgm")
        a("s_lshl_b32 s9, s4, 19")
        a("s_and_b32 s52, s5, 7")
        a("s_lshl_b32 s15, s52, 10")
        a("s_add_u32 s9, s9, s15")
        a("s_lshl_b32 s15, s3, 8")
        a("s_add_u32 s9, s9, s15")
        a("v_mul_u32_u24 v2, 0x1f00, v1")
        a("v_add_u32 v6, v6, v2")
        a("v_add_u32 v7, v7, v2")
        a("s_add_u32 s13, s7, 16384")
        a(f"s_mov_b32 s46, {512*8192}")
        a("s_waitcnt lgkmcnt(0)")
        a("s_mov_b64 s[44:45], s[22:23]")
        self.delay("wdel")
        a("s_load_dword s14, s[40:41], 0")
        a.label("LWq")
        for i in range(2):
            a(f"buffer_load_dwordx4 v{6+i}, s[44:47], s9 offen {wf} lds")
            a("s_add_u32 m0, m0, 1024")
            a("s_add_u32 s9, s9, 32768")
        if self.o.get("qcap", 8): a(f"s_waitcnt vmcnt({self.o.get('qcap', 8)})")
        a("s_cmp_lt_u32 m0, s13")
        a("s_cbranch_scc1 LWq")
        a("s_branch LW2")
        a.label("LH0")
        a("s_cmp_ge_u32 s5, 16")
        a("s_cbranch_scc0 " + ("LTHp" if self.o.get("tnear") else "LTH"))
        a("s_branch LWHp")

    def g_early(self):
        a, wf = self.a, self.wf
        a.label("LG0")
        if self.o.get("nog"): a("s_endpgm")
        a("s_sub_u32 s5, s5, 24")
        if self.o.get("chs", 0):
            a("s_mov_b32 s60, s5")
            a("s_mov_b32 s61, s4")
        else:
            a("s_mov_b32 s60, s4")
            a("s_mov_b32 s61, s5")
        a("s_mov_b32 s50, 2048")
        a("s_cmp_eq_u32 s3, 4")
        a("s_cbranch_scc0 LGW")
        self.c_voff(4)
        a("s_lshl_b32 s9, s61, 7")
        a("s_waitcnt lgkmcnt(0)")
        a("s_mov_b64 s[48:49], s[34:35]")
        a("buffer_load_dwordx2 v[28:29], v4, s[48:51], s9 offen")
        a("s_load_dword s14, s[40:41], 0")
        if self.o.get("mr0", 0): a("s_barrier")
        self.silu_frag(SC)
        a("s_waitcnt vmcnt(0)")
        self.silu_run()
        a("s_waitcnt lgkmcnt(0)")
        a("s_barrier")
        a("s_barrier")
        a("s_branch LGH2")
        a.label("LGW")
        a("v_lshlrev_b32 v6, 4, v0")
        self.voff128(2, 6144, 1, 3)
        a("s_lshl_b32 s9, s61, 2")
        a("s_add_u32 s9, s9, s3")
        a(f"s_mul_i32 s9, s9, {16*6144}")
        a("s_lshl_b32 s6, s60, 7")
        a("s_add_u32 s9, s9, s6")
        a("s_lshl_b32 s13, s3, 5")
        a("s_add_u32 s6, s6, s13")
        a("v_and_b32 v12, 1, v0")
        a("v_and_b32 v13, 48, v0")
        a("v_lshrrev_b32 v4, 1, v13")
        a("v_lshl_add_u32 v4, v12, 10, v4")
        a("s_lshr_b32 m0, s7, 2")
        a(f"s_mov_b32 s54, {512*6144}")
        a("s_mov_b32 s55, 0x20000")
        a("s_lshl_b32 s8, s60, 12")
        a("s_lshl_b32 s15, s3, 10")
        a("s_add_u32 s8, s8, s15")
        a("s_lshl_b32 s15, s61, 7")
        a("s_add_u32 s8, s8, s15")
        a(f"s_add_u32 s8, s8, {HA}")
        a(f"s_add_u32 s62, s8, {ALOC}")
        a("s_waitcnt lgkmcnt(0)")
        a("s_mov_b64 s[48:49], s[16:17]")
        a("s_mov_b64 s[52:53], s[36:37]")
        a("buffer_load_dwordx4 v[24:27], v6, s[48:51], 0 offen")
        a("buffer_load_dwordx4 v[28:31], v6, s[48:51], 0 offen offset:1024")
        self.exec16(3)
        a("buffer_load_dwordx2 v[20:21], v4, s[48:51], s6 offen")
        a("s_mov_b64 exec, -1")
        for i in range(2):
            a(f"buffer_load_dwordx4 v2, s[52:55], s9 offen {wf} lds")
            a(f"buffer_load_dwordx4 v2, s[52:55], s9 offen offset:1024 {wf} lds")
            if i == 0:
                a("s_add_u32 m0, m0, 2048")
                a(f"s_add_u32 s9, s9, {8*6144}")
        a("s_mov_b64 exec, 1")
        a("buffer_load_dword v238, v6, s[40:43], s62 offen sc1")
        a("s_mov_b64 exec, -1")
        a("s_load_dword s14, s[40:41], 0")
        mr0 = 8 if self.o.get("mr0", 0) else 0
        if mr0:
            a("s_barrier")
            self.mr_issue()
        self.traddr128(8, None, 1, 3, grp_sh=11, n=1)
        a("v_xor_b32 v8, s13, v8")
        a("v_mul_u32_u24 v6, 144, v12")
        a("v_add_u32 v6, v6, v13")
        a(f"v_add_u32 v6, {SC}, v6")
        a("v_lshlrev_b32 v7, 4, v12")
        a("v_lshl_add_u32 v13, v13, 1, v7")
        a("s_cmp_eq_u32 s61, 0")
        a("s_cselect_b32 s9, 1.0, 0")
        for i in range(4): a(f"v_mov_b32 v{44+i}, s9")
        a("s_mov_b32 s9, 0x3f803f80")
        a("v_lshlrev_b32 v7, 7, v12")
        a(f"s_waitcnt vmcnt({5+mr0})")
        for b in range(2):
            a(f"v_dot2_f32_bf16 v{48+b}, v{24+4*b}, s9, 0")
            a(f"v_dot2_f32_bf16 v{50+b}, v{24+4*b}, v{24+4*b}, 0")
        for i in range(1, 4):
            for b in range(2):
                a(f"v_dot2_f32_bf16 v{48+b}, v{24+4*b+i}, s9, v{48+b}")
                a(f"v_dot2_f32_bf16 v{50+b}, v{24+4*b+i}, v{24+4*b+i}, v{50+b}")
        a("v_permlane32_swap_b32 v48, v49")
        a("v_permlane32_swap_b32 v50, v51")
        a("v_add_f32 v48, v48, v49")
        a("v_add_f32 v50, v50, v51")
        a("v_permlane16_swap_b32 v48, v50")
        a("v_add_f32 v48, v48, v50")
        self.row_sum(48)
        a("ds_bpermute_b32 v50, v7, v48")
        a("ds_bpermute_b32 v51, v7, v48 offset:64")
        a(f"v_mov_b32 v52, {f32(1e-5)}")
        a("s_waitcnt lgkmcnt(0)")
        self.tag()
        a(f"v_mul_f32 v50, {f32(1/512)}, v50")
        a(f"v_fmamk_f32 v51, v51, {f32(1/512)}, v52")
        a("v_fma_f32 v51, -v50, v50, v51")
        a("v_rsq_f32 v51, v51")
        self.unpack(20, 16, 2)
        for i in range(4): a(f"v_sub_f32 v{16+i}, v{16+i}, v50")
        for i in range(4): a(f"v_mul_f32 v{16+i}, v{16+i}, v51")
        a("v_mov_b32 v58, s14")
        a("v_mov_b32 v59, s14")
        a(f"s_waitcnt vmcnt({1+mr0})")
        a("s_barrier")
        self.stamp(1)
        for ks in range(2):
            a(f"ds_read_b128 v[{32+4*ks}:{35+4*ks}], v6 offset:{64*ks}")
            for seg in range(2): self.tr(64 + 8 * ks + 4 * seg, 8, W1 + 8192 * ks + 1024 * seg, 4096)
        a("s_waitcnt lgkmcnt(5)")
        self.mfma(40, 64, 32, True)
        self.mfma(44, 68, 32, False)
        a("s_waitcnt lgkmcnt(0)")
        self.mfma(40, 72, 36, False)
        self.mfma(44, 76, 36, False)
        self.exec16(3)
        for k in range(2): a(f"v_pk_fma_f32 v[{40+2*k}:{41+2*k}], v[{16+2*k}:{17+2*k}], v[{44+2*k}:{45+2*k}], v[{40+2*k}:{41+2*k}]")
        a("v_cvt_pk_bf16_f32 v56, v40, v41")
        a("v_cvt_pk_bf16_f32 v57, v42, v43")
        a("buffer_store_dwordx4 v[56:59], v13, s[40:43], s62 offen")
        a("buffer_store_dwordx4 v[56:59], v13, s[40:43], s8 offen sc1")
        a("s_mov_b64 exec, -1")
        self.stamp(3)
        a("s_barrier")

    def mr_issue(self):
        a, wf = self.a, self.wf
        a(f"s_mul_i32 s9, s61, {64*6144}")
        a("s_lshl_b32 s15, s60, 9")
        a("s_add_u32 s9, s9, s15")
        a("s_lshl_b32 s15, s3, 7")
        a("s_add_u32 s9, s9, s15")
        a("s_add_u32 s9, s9, 2048")
        a("s_lshr_b32 s63, s7, 1")
        a(f"s_add_u32 s63, s63, {MRG}")
        a("s_mov_b32 m0, s63")
        a("s_add_u32 s15, s63, 8192")
        a.label("LGm")
        a(f"buffer_load_dwordx4 v2, s[52:55], s9 offen {wf} lds")
        a("s_add_u32 m0, m0, 1024")
        a(f"s_add_u32 s9, s9, {8*6144}")
        a("s_cmp_lt_u32 m0, s15")
        a("s_cbranch_scc1 LGm")
    def rdy_publish(self, vb, jreg):
        a = self.a
        for i in range(4): a(f"v_mov_b32 v{vb+i}, s14")
        a(f"v_mov_b32 v{vb+4}, 0")
        a("s_lshl_b32 s15, s4, 5")
        a(f"s_add_u32 s15, s15, {jreg}")
        a("s_lshl_b32 s15, s15, 4")
        a(f"s_add_u32 s15, s15, {RDY}")
        a("s_mov_b64 exec, 1")
        a(f"buffer_store_dwordx4 v[{vb}:{vb+3}], v{vb+4}, s[40:43], s15 offen sc1")
        a("s_mov_b64 exec, -1")
    def rdy_load(self):
        self.a("buffer_load_dword v237, v229, s[40:43], s27 offen sc1")
    def rdy_check(self):
        a = self.a
        L = self.lab("Lok")
        a("v_cmp_ne_u32 vcc, s14, v237")
        a(f"s_cbranch_vccz {L}")
        self.poll(["buffer_load_dword v237, v229, s[40:43], s27 offen sc1"], [(*self.TAGBAD, 237)], sleep=2)
        a.label(L)

    def g_index(self):
        a = self.a
        a("s_lshr_b32 s26, s4, 1")
        a("s_mul_i32 s26, s26, 14")
        a("s_and_b32 s15, s4, 1")
        a("s_lshl_b32 s13, s15, 3")
        a("s_add_u32 s26, s26, s13")
        a("s_add_u32 s26, s26, s5")
        a("s_lshl_b32 s15, s15, 1")
        a("s_sub_u32 s15, 8, s15")
        a("s_cmp_ge_u32 s5, s15")

    def tw_main(self):
        a = self.a
        self.stamp(1)
        a("v_lshrrev_b32 v22, 5, v0")
        a("v_and_b32 v23, 31, v0")
        a("v_lshlrev_b32 v23, 1, v23")
        a("v_lshl_add_u32 v22, v22, 7, v23")
        a("s_mul_i32 s13, s3, 272")
        a(f"s_add_u32 s13, s13, {QB}")
        a("v_add_u32 v22, s13, v22")
        a("v_xor_b32 v3, v8, v1")
        a("v_lshlrev_b32 v3, 4, v3")
        a("v_lshl_add_u32 v3, v8, 8, v3")
        a("v_add_u32 v8, s7, v3")
        a("v_xor_b32 v9, 64, v8")
        a("v_xor_b32 v10, 0x80, v8")
        a("v_xor_b32 v11, 0xc0, v8")
        a("s_waitcnt vmcnt(20)")
        for t in range(4):
            for ks in range(4):
                r = 64 + 16 * t + 4 * ks
                a(f"ds_read_b128 v[{r}:{r+3}], v{8+ks} offset:{4096*t}")
        a("s_lshl_b32 s8, s3, 6")
        self.traddr256(12, 2, VB, 3, 5, first="s8")
        a("v_mul_u32_u24 v20, 272, v5")
        a("v_lshl_add_u32 v20, v1, 4, v20")
        a(f"v_add_u32 v20, {QB}, v20")
        a("v_lshlrev_b32 v14, 6, v5")
        a("v_lshl_add_u32 v14, v1, 4, v14")
        a(f"v_add_u32 v14, {PB}, v14")
        a("s_lshl_b32 s9, s3, 9")
        a("v_add_u32 v15, s9, v14")
        a("v_lshlrev_b32 v16, 4, v5")
        a(f"v_add_u32 v16, {MX}, v16")
        a("s_lshl_b32 s9, s3, 2")
        a("v_add_u32 v17, s9, v16")
        a("v_lshlrev_b32 v18, 8, v5")
        a("v_lshl_add_u32 v18, v1, 4, v18")
        a("v_lshlrev_b32 v19, 2, v5")
        a("s_lshl_b32 s6, s4, 4")
        a("s_add_u32 s6, s6, s5")
        a("s_lshl_b32 s9, s6, 10")
        a("s_add_u32 s8, s8, s9")
        a(f"s_add_u32 s8, s8, {HC}")
        a("s_lshl_b32 s52, s6, 7")
        a(f"s_add_u32 s52, s52, {HL}")
        a(f"s_add_u32 s53, s8, {LOC}")
        a(f"s_add_u32 s54, s52, {LOC}")
        a(f"s_mov_b32 s10, {f32(CSC)}")
        a("s_lshl_b64 s[58:59], 1, s3")
        for i in range(4): a(f"v_mov_b32 v{232+i}, 0x3f803f80")
        def vr(k):
            for t in range(2): self.tr(128 + 8 * k + 4 * t, 12 + t, 8192 * k, 4096)
        def xrow(op, r):
            a(f"v_mov_b32 v225, v{r}")
            a(f"v_permlane16_swap_b32 v{r}, v225")
            a(f"{op} v{r}, v{r}, v225")
            a(f"v_mov_b32 v225, v{r}")
            a(f"v_permlane32_swap_b32 v{r}, v225")
            a(f"{op} v{r}, v{r}, v225")
        a(f"s_mov_b32 s12, {SPIN}")
        for n in (3, 2, 1):
            a(f"s_waitcnt vmcnt({4*n})")
            a(f"s_cmp_gt_u32 s62, {n}")
            a("s_cbranch_scc1 LTq1")
        a("s_branch LTq3")
        a.label("LTq0")
        self.qfetch()
        a.label("LTq3")
        a("s_waitcnt vmcnt(0)")
        a.label("LTq1")
        self.stamp(2)
        for i in range(4): a(f"v_xor_b32 v{195+4*i}, s14, v{194+4*i}")
        a("v_or3_b32 v195, v195, v199, v203")
        a("v_or_b32 v195, v195, v207")
        a("v_cmp_ne_u32 vcc, 0, v195")
        a("s_cbranch_vccz LTq2")
        a("s_sub_u32 s12, s12, 1")
        a("s_cbranch_scc0 LTq0")
        a.label("LTq2")
        for i in range(4): self.unpack(192 + 4 * i, 24 + 4 * i, 2)
        for k in range(2):
            a(f"v_pk_add_f32 v[{24+2*k}:{25+2*k}], v[{24+2*k}:{25+2*k}], v[{28+2*k}:{29+2*k}]")
            a(f"v_pk_add_f32 v[{32+2*k}:{33+2*k}], v[{32+2*k}:{33+2*k}], v[{36+2*k}:{37+2*k}]")
        for k in range(2): a(f"v_pk_add_f32 v[{24+2*k}:{25+2*k}], v[{24+2*k}:{25+2*k}], v[{32+2*k}:{33+2*k}]")
        a("v_permlane32_swap_b32 v24, v26")
        a("v_permlane32_swap_b32 v25, v27")
        a("v_pk_add_f32 v[24:25], v[24:25], v[26:27]")
        a("v_cvt_pk_bf16_f32 v24, v24, v25")
        a("ds_write_b16 v22, v24")
        a("ds_write_b16_d16_hi v22, v24 offset:64")
        a("s_waitcnt lgkmcnt(0)")
        a("s_barrier")
        for ks in range(4): a(f"ds_read_b128 v[{208+4*ks}:{211+4*ks}], v20 offset:{64*ks}")
        self.stamp(3)
        a("s_waitcnt lgkmcnt(0)")
        for ks in range(4):
            for t in range(4): self.mfma(40 + 4 * t, 64 + 16 * t + 4 * ks, 208 + 4 * ks, ks == 0)
        a("v_max3_f32 v224, v40, v41, v42")
        a("v_max3_f32 v225, v43, v44, v45")
        a("v_max3_f32 v226, v46, v47, v48")
        a("v_max3_f32 v227, v49, v50, v51")
        a("v_max3_f32 v228, v52, v53, v54")
        a("v_max3_f32 v224, v224, v225, v226")
        a("v_max3_f32 v227, v227, v228, v55")
        a("v_max_f32 v224, v224, v227")
        xrow("v_max_f32", 224)
        a("ds_write_b32 v17, v224")
        a("s_waitcnt lgkmcnt(0)")
        a("s_barrier")
        a("ds_read_b128 v[224:227], v16")
        a("s_waitcnt lgkmcnt(0)")
        a("v_max3_f32 v224, v224, v225, v226")
        a("v_max_f32 v224, v224, v227")
        a(f"v_mul_f32 v230, {f32(-CSC)}, v224")
        for i in range(8): a(f"v_pk_fma_f32 v[{40+2*i}:{41+2*i}], v[{40+2*i}:{41+2*i}], s[10:11], v[230:231] op_sel_hi:[1,0,0]")
        for i in range(16): a(f"v_exp_f32 v{40+i}, v{40+i}")
        for i in range(8): a(f"v_cvt_pk_bf16_f32 v{56+i}, v{40+2*i}, v{41+2*i}")
        self.exec16(15)
        a("ds_write_b128 v15, v[56:59]")
        a("ds_write_b128 v15, v[60:63] offset:256")
        a("s_mov_b64 exec, -1")
        a("s_waitcnt vmcnt(8) lgkmcnt(0)")
        a("s_barrier")
        self.stamp(4)
        for k in range(8): a(f"ds_read_b128 v[{64+4*k}:{67+4*k}], v14 offset:{256*k}")
        def pv(k, first=False):
            for t in range(2): self.mfma(192 + 4 * t, 128 + 8 * k + 4 * t, 64 + 4 * k, first)
        for k in (0, 2, 4, 6): vr(k)
        a("s_waitcnt lgkmcnt(15)")
        for k in range(8): self.mfma(96, 232, 64 + 4 * k, k == 0)
        for i, k in enumerate((0, 2, 4, 6)):
            a(f"s_waitcnt lgkmcnt({12-4*i})")
            pv(k, i == 0)
        a("v_rcp_f32 v36, v96")
        a("v_log_f32 v37, v96")
        a("s_waitcnt vmcnt(0)")
        a("s_barrier")
        self.stamp(9)
        for k in (1, 3, 5, 7): vr(k)
        a("v_sub_f32 v37, v37, v230")
        a("s_mov_b64 exec, s[58:59]")
        if self.o.get("loc", 1): a("buffer_store_dword v37, v19, s[40:43], s54 offen")
        a("buffer_store_dword v37, v19, s[40:43], s52 offen sc1")
        a("s_mov_b64 exec, -1")
        for i, k in enumerate((1, 3, 5, 7)):
            a(f"s_waitcnt lgkmcnt({12-4*i})")
            pv(k)
        self.exec16(15)
        for i in range(4): a(f"v_pk_mul_f32 v[{192+2*i}:{193+2*i}], v[{192+2*i}:{193+2*i}], v[36:37] op_sel_hi:[1,0]")
        for i in range(4): a(f"v_cvt_pk_bf16_f32 v{200+i}, v{192+2*i}, v{193+2*i}")
        if self.o.get("loc", 1): a("buffer_store_dwordx4 v[200:203], v18, s[40:43], s53 offen")
        a("buffer_store_dwordx4 v[200:203], v18, s[40:43], s8 offen sc1")
        a("s_mov_b64 exec, -1")
        self.stamp(5)
        if self.o.get("nored"): self.end()
        a("s_cmp_lt_u32 s5, 4")
        a("s_cbranch_scc0 LTWe")
        a("s_cmp_eq_u32 s3, 1")
        a("s_cbranch_scc0 LTWe")
        a("s_lshl_b32 s6, s4, 2")
        a("s_add_u32 s6, s6, s5")
        self.srd(44, 16, 2048)
        self.srd(48, 38, 2048)
        a("v_bfe_u32 v2, v0, 2, 1")
        a("v_and_b32 v3, 3, v0")
        a("v_lshlrev_b32 v4, 3, v3")
        a("v_lshl_add_u32 v5, v2, 10, v4")
        a("v_lshlrev_b32 v6, 1, v5")
        a("v_lshrrev_b32 v8, 3, v0")
        a("v_lshl_add_u32 v7, v8, 12, v6")
        a("v_lshlrev_b32 v9, 4, v0")
        a("s_lshl_b32 s7, s6, 5")
        a("s_lshl_b32 s8, s6, 6")
        a(f"s_add_u32 s9, s8, {HD}")
        a(f"s_add_u32 s52, s8, {HM}")
        a(f"s_add_u32 s53, s8, {HM+3*4096}")
        a(f"s_mul_i32 s54, s6, {HFS}")
        a(f"s_add_u32 s54, s54, {HF}")
        a("s_add_u32 s55, s54, 4096")
        a("buffer_load_dwordx2 v[10:11], v5, s[44:47], s7 offen")
        a(f"s_mov_b32 s27, {RDY}")
        self.poll([f"buffer_load_dword v{40+i}, v9, s[40:43], s27 offen offset:{1024*i} sc1" for i in range(4)]
                  + ["buffer_load_dwordx4 v[12:15], v6, s[40:43], s52 offen sc1", "buffer_load_dwordx4 v[16:19], v6, s[40:43], s53 offen sc1"],
                  [(*self.TAGBAD, 40 + i) for i in range(4)] + [(*self.TAGBAD, 14), (*self.TAGBAD, 18)], sleep=2)
        self.poll(["buffer_load_dwordx4 v[24:27], v7, s[40:43], s9 offen sc1"], [(*self.POISON, 24)], sleep=2)
        self.stamp(6)
        a("s_cmp_eq_u32 s6, 0")
        a("s_cbranch_scc0 LTWn")
        a("s_mov_b64 exec, 1")
        a("v_mov_b32 v20, s14")
        a("v_mov_b32 v21, 0")
        a(f"buffer_store_dword v20, v21, s[40:43], 0 offen offset:{EPOCH} sc1")
        a("s_mov_b64 exec, -1")
        a.label("LTWn")
        red8 = self.red8
        red8(24)
        self.unpack(10, 28, 2)
        self.unpack(12, 32, 2)
        self.unpack(16, 36, 2)
        for i in range(4): a(f"v_fmac_f32 v{28+i}, v{24+i}, v{32+i}")
        self.sum_poll([f"buffer_load_dwordx4 v[{64+4*i}:{67+4*i}], v9, s[40:43], s{54+(i>>2)} offen offset:{1024*(i&3)} sc1" for i in range(7)], 64, 56)
        self.stamp(7)
        red8(56)
        for i in range(4): a(f"v_fmac_f32 v{28+i}, v{56+i}, v{36+i}")
        a("v_cvt_pk_bf16_f32 v10, v28, v29")
        a("v_cvt_pk_bf16_f32 v11, v30, v31")
        a("s_mov_b64 exec, 0xff")
        a("buffer_store_dwordx2 v[10:11], v5, s[48:51], s7 offen " + ["", "sc1", "nt", "sc0 sc1"][self.o.get("oflag", 0)])
        self.stamp(8)
        if self.o.get("padto"):
            a("s_cmp_eq_u32 s6, 0")
            a("s_cbranch_scc0 LTWe")
        if self.o.get("padto"):
            a(f"s_mov_b32 s100, {self.o['padto']}")
            if self.o.get("amp"):
                a("s_waitcnt lgkmcnt(0)")
                a(f"s_sub_u32 s98, s{64+2*self.o['amp']}, s96")
                a("s_mul_i32 s98, s98, 10")
                a("s_add_u32 s100, s100, s98")
            a.label("Lpad")
            a("s_memrealtime s[98:99]")
            a("s_waitcnt lgkmcnt(0)")
            a("s_sub_u32 s98, s98, s96")
            a("s_cmp_lt_u32 s98, s100")
            a("s_cbranch_scc1 Lpad")
        a.label("LTWe")
        self.end()

    def ww_main(self):
        a, wf = self.a, self.wf
        a.label("LWHp")
        a("s_branch LWH2")
        a.label("LW2")
        self.stamp(1)
        self.traddr256(8, 8, "s7", 3, 5)
        a("s_lshr_b32 s58, s7, 2")
        a(f"s_add_u32 s58, s58, {GA}")
        a("v_and_b32 v3, 7, v0")
        a("v_lshlrev_b32 v3, 7, v3")
        a("v_lshl_add_u32 v3, v1, 5, v3")
        a("v_bfe_u32 v4, v0, 3, 1")
        a("v_lshl_add_u32 v16, v4, 4, v3")
        a("v_add_u32 v16, s58, v16")
        a("v_add_u32 v20, 2048, v16")
        a("v_add_u32 v22, 8, v16")
        a("v_lshlrev_b32 v21, 4, v0")
        a("s_lshl_b32 s8, s4, 12")
        a(f"s_add_u32 s8, s8, {HA}")
        a(f"s_add_u32 s6, s8, {ALOC if self.o.get('aloc', 1) else 0}")
        a("s_mov_b32 s9, s6")
        a("v_lshrrev_b32 v3, 5, v0")
        a("v_and_b32 v4, 31, v0")
        a(f"v_add_u32 v18, {RED}, v21")
        a("v_lshlrev_b32 v19, 4, v4")
        a("v_lshl_add_u32 v19, v3, 14, v19")
        a("s_lshl_b32 s55, s52, 15")
        a("s_lshl_b32 s15, s3, 12")
        a("s_add_u32 s55, s55, s15")
        a("s_lshl_b32 s15, s4, 9")
        a("s_add_u32 s55, s55, s15")
        a(f"s_add_u32 s55, s55, {HB}")
        a("s_lshl_b32 s52, s52, 9")
        self.voff128(2, 1024, 3, 4)
        a("s_lshl_b32 s53, s4, 19")
        a("s_lshl_b32 s15, s3, 17")
        a("s_add_u32 s53, s53, s15")
        a("s_lshr_b32 s15, s52, 2")
        a("s_add_u32 s53, s53, s15")
        a(f"s_add_u32 s59, s7, {WO+16384}")
        a("s_mov_b64 s[48:49], s[24:25]")
        a(f"s_mov_b32 s50, {4096*1024}")
        a("s_mov_b32 m0, s58")
        def agather():
            for t in range(4): a(f"buffer_load_dwordx4 v21, s[40:43], s9 offen offset:{1024*t} sc1 lds")
        a(f"s_waitcnt vmcnt({self.o.get('apre', 2)})")
        agather()
        a("s_waitcnt vmcnt(4) lgkmcnt(0)")
        self.tag()
        self.stamp(2)
        for ks in range(2):
            for t in range(8): self.tr(64 + 32 * ks + 4 * t, 8 + t, 8192 * ks, 4096)
        a("v_mov_b32 v58, s14")
        a("v_mov_b32 v59, s14")
        a(f"s_mov_b32 s12, {SPIN*4 | 15}")
        a("s_branch LWa1")
        a.label("LWa0")
        a("s_and_b32 s13, s12, 15")
        a("s_cselect_b32 s9, s6, s8")
        agather()
        a.label("LWa1")
        a("s_waitcnt vmcnt(0)")
        a("ds_read2st64_b32 v[32:33], v22 offset0:0 offset1:4")
        a("ds_read2st64_b32 v[34:35], v22 offset0:8 offset1:12")
        a("ds_read2_b64 v[24:27], v16 offset0:0 offset1:128")
        a("ds_read2_b64 v[28:31], v20 offset0:0 offset1:128")
        a("s_waitcnt lgkmcnt(2)")
        for i in range(4): a(f"v_xor_b32 v{32+i}, s14, v{32+i}")
        a("v_or3_b32 v32, v32, v33, v34")
        a("v_or_b32 v32, v32, v35")
        a("v_cmp_ne_u32 vcc, 0, v32")
        a("s_waitcnt lgkmcnt(0)")
        a("s_cbranch_vccz LWa2")
        a("s_sub_u32 s12, s12, 1")
        a("s_cbranch_scc0 LWa0")
        a.label("LWa2")
        self.stamp(3)
        if self.diag:
            a(f"s_sub_u32 s84, {SPIN*4 | 15}, s12")
            a("s_mul_i32 s84, s84, 100")
            a("s_add_u32 s84, s84, s64")
        for ks in range(2):
            for t in range(8): self.mfma(128 + 4 * t, 24 + 4 * ks, 64 + 32 * ks + 4 * t, ks == 0)
        for t in range(8): a(f"v_pk_add_f32 v[{128+4*t}:{129+4*t}], v[{128+4*t}:{129+4*t}], v[{130+4*t}:{131+4*t}]")
        for t in range(8): a(f"v_add_f32 v{128+4*t}, v{128+4*t}, v{129+4*t}")
        for k in range(4): a(f"v_permlane16_swap_b32 v{128+8*k}, v{132+8*k}")
        for k in range(4): a(f"v_add_f32 v{128+8*k}, v{128+8*k}, v{132+8*k}")
        def red4(stride):
            for w in range(4): a(f"ds_read_b128 v[{24+4*w}:{27+4*w}], v18 offset:{stride*w}")
            a("s_waitcnt lgkmcnt(2)")
            for k in range(2): a(f"v_pk_add_f32 v[{24+2*k}:{25+2*k}], v[{24+2*k}:{25+2*k}], v[{28+2*k}:{29+2*k}]")
            a("s_waitcnt lgkmcnt(0)")
            for k in range(2): a(f"v_pk_add_f32 v[{32+2*k}:{33+2*k}], v[{32+2*k}:{33+2*k}], v[{36+2*k}:{37+2*k}]")
            for k in range(2): a(f"v_pk_add_f32 v[{24+2*k}:{25+2*k}], v[{24+2*k}:{25+2*k}], v[{32+2*k}:{33+2*k}]")
        a("v_cvt_pk_bf16_f32 v56, v128, v136")
        a("v_cvt_pk_bf16_f32 v57, v144, v152")
        a("buffer_store_dwordx4 v[56:59], v19, s[40:43], s55 offen sc1")
        self.stamp(4)
        a(f"s_add_u32 m0, s7, {WO}")
        a("s_barrier")
        if self.o.get("nowo"): self.end()
        self.delay("odel")
        a("v_and_b32 v3, 15, v0")
        a("v_lshlrev_b32 v13, 7, v3")
        a("s_lshl_b32 s9, s4, 14")
        a(f"s_add_u32 s9, s9, {HC}")
        a("s_lshl_b32 s8, s4, 11")
        a(f"s_add_u32 s8, s8, {HL}")
        a.label("LWd")
        a(f"buffer_load_dwordx4 v2, s[48:51], s53 offen {wf} lds")
        a("s_add_u32 m0, m0, 1024")
        a("s_add_u32 s53, s53, 8192")
        if self.o.get("wothr", 0): a(f"s_waitcnt vmcnt({self.o['wothr']})")
        a("s_cmp_lt_u32 m0, s59")
        a("s_cbranch_scc1 LWd")
        self.stamp(5)
        a("v_lshlrev_b32 v229, 4, v3")
        a("s_lshl_b32 s27, s4, 9")
        a(f"s_add_u32 s27, s27, {RDY}")
        self.rdy_load()
        a("s_lshl_b32 s15, s3, 8")
        a("s_add_u32 s9, s9, s15")
        a("s_lshl_b32 s15, s3, 2")
        a("s_add_u32 s8, s8, s15")
        a(f"s_add_u32 s15, s7, {WO}")
        self.traddr128(8, "s15", 3, 4)
        a("v_and_b32 v3, 15, v0")
        a("v_xor_b32 v12, v3, v1")
        a("v_lshlrev_b32 v12, 4, v12")
        a("v_lshl_add_u32 v4, v1, 10, v12")
        for i in range(1, 4):
            a(f"v_xor_b32 v{4+i}, {64*i}, v4")
            a(f"v_add_u32 v{4+i}, {3072*i}, v{4+i}")
        a("v_lshl_add_u32 v20, v3, 8, v12")
        a("v_add_u32 v20, s58, v20")
        for i in range(1, 4): a(f"v_xor_b32 v{20+i}, {64*i}, v20")
        a("v_lshlrev_b32 v14, 4, v1")
        a("v_lshrrev_b32 v12, 5, v0")
        a("v_lshlrev_b32 v15, 8, v12")
        a("v_and_b32 v12, 31, v0")
        a("v_lshl_add_u32 v15, v12, 2, v15")
        a("s_lshl_b32 s15, s3, 9")
        a(f"s_add_u32 s15, s15, {RED}")
        a("v_add_u32 v15, s15, v15")
        a("v_lshlrev_b32 v17, 4, v3")
        a("v_lshl_add_u32 v17, v1, 11, v17")
        a("s_lshl_b32 s55, s4, 12")
        a("s_lshr_b32 s15, s52, 1")
        a("s_add_u32 s55, s55, s15")
        a(f"s_add_u32 s55, s55, {HD}")
        a("s_mov_b32 m0, s58")
        a("v_mov_b32 v128, 0")
        a("s_waitcnt vmcnt(0)")
        self.stamp(6)
        for ks in range(4):
            for t in range(4): self.tr(64 + 16 * ks + 4 * t, 8 + t, 4096 * ks, 2048)
        self.rdy_check()
        def cbody():
            a("s_mov_b64 exec, 0xffff")
            a("buffer_load_dword v128, v13, s[40:43], s8 offen sc1")
            a("s_mov_b64 exec, -1")
            for i in range(4): a(f"buffer_load_dwordx4 v{4+i}, s[40:43], s9 offen offset:{1024*i} sc1 lds")
            a("s_waitcnt vmcnt(0)")
            for ks in range(4): a(f"ds_read_b128 v[{24+4*ks}:{27+4*ks}], v{20+ks}")
            a("s_waitcnt lgkmcnt(0)")
            a("v_max3_u32 v129, v24, v28, v128")
            a("v_max3_u32 v129, v129, v32, v36")
            a("v_cmp_eq_u32 s[10:11], -1, v129")
        self.stamp(9)
        self.spin(cbody, alt=([8, 9], LOC, self.o.get("every", 16)) if self.o.get("loc", 1) else None)
        self.stamp(7)
        D8 = ("quad_perm:[1,0,3,2]", "quad_perm:[2,3,0,1]", "row_half_mirror")
        def mf(ks):
            for t in range(4): self.mfma(40 + 4 * t, 24 + 4 * ks, 64 + 16 * ks + 4 * t, ks == 0)
        mf(0)
        a("v_mov_b32 v129, v128")
        for m in D8: a(f"v_max_f32_dpp v129, v129, v129 {m} row_mask:0xf bank_mask:0xf")
        a("v_sub_f32 v128, v128, v129")
        a("v_exp_f32 v128, v128")
        mf(1)
        a("v_mov_b32 v129, v128")
        for m in D8: a(f"v_add_f32_dpp v129, v129, v129 {m} row_mask:0xf bank_mask:0xf")
        a("v_rcp_f32 v129, v129")
        a("v_mul_f32 v128, v128, v129")
        for r in range(4): a(f"ds_bpermute_b32 v{130+r}, v14, v128 offset:{4*r}")
        mf(2)
        mf(3)
        a("s_waitcnt lgkmcnt(0)")
        for t in range(4): a(f"v_pk_mul_f32 v[{40+4*t}:{41+4*t}], v[{40+4*t}:{41+4*t}], v[130:131]")
        for t in range(4): a(f"v_pk_fma_f32 v[{40+4*t}:{41+4*t}], v[{42+4*t}:{43+4*t}], v[132:133], v[{40+4*t}:{41+4*t}]")
        for t in range(4): a(f"v_add_f32 v{40+4*t}, v{40+4*t}, v{41+4*t}")
        for k in range(2): a(f"v_permlane16_swap_b32 v{40+8*k}, v{44+8*k}")
        for k in range(2): a(f"v_add_f32 v{40+8*k}, v{40+8*k}, v{44+8*k}")
        for k in range(2): a(f"ds_write_b32 v15, v{40+8*k} offset:{128*k}")
        a("s_waitcnt lgkmcnt(0)")
        a("s_barrier")
        a("s_cmp_eq_u32 s3, 0")
        a("s_cbranch_scc0 LWe")
        a("s_mov_b32 exec_hi, 0")
        red4(512)
        a("buffer_store_dwordx4 v[24:27], v17, s[40:43], s55 offen sc1")
        self.stamp(8)
        a.label("LWe")
        self.end()

    def g_role(self):
        a, wf = self.a, self.wf
        shed = self.o.get("shed", 0)
        self.g_index()
        a("s_cselect_b32 s62, 1, 0")
        if shed:
            a("s_cbranch_scc1 LGi")
            a("s_and_b32 s15, s26, 6")
            a("s_cmp_eq_u32 s15, 6")
            a("s_cselect_b32 s62, 2, 0")
            a("s_cbranch_scc1 LGj")
            a.label("LGi")
        self.mr_issue()
        a.label("LGj")
        a(f"s_add_u32 s7, s7, {GU}")
        a("s_cmp_eq_u32 s62, 1")
        a("s_cbranch_scc1 " + ("LMi" if shed else "LGm0"))
        a("s_mov_b32 s53, s26")
        a(f"s_and_b32 s52, s53, {self.o.get('rot', 1)}")
        a("s_cmp_eq_u32 s52, 0")
        a("s_cselect_b64 s[44:45], s[28:29], s[30:31]")
        a("s_cselect_b64 s[48:49], s[30:31], s[28:29]")
        a(f"s_mov_b32 s46, {512*3584}")
        a(f"s_mov_b32 s50, {512*3584}")
        a("s_lshl_b32 s52, s52, 13")
        a("v_lshrrev_b32 v1, 2, v0")
        a("v_bfe_u32 v2, v0, 4, 1")
        a("v_lshlrev_b32 v2, 1, v2")
        a("v_and_b32 v3, 3, v0")
        a("v_xor_b32 v2, v2, v3")
        a("v_mul_u32_u24 v4, 3584, v1")
        a("v_lshl_add_u32 v2, v2, 4, v4")
        a(f"s_mul_i32 s8, s3, {128*3584}")
        a("s_lshl_b32 s15, s53, 6")
        a("s_add_u32 s8, s8, s15")
        def mat(m, lo=0, hi=8):
            L = self.lab("LGx")
            if lo == 0:
                a("s_add_u32 s58, s7, s52")
                a("s_mov_b32 s59, s8")
            a("s_mov_b32 m0, s58")
            a(f"s_add_u32 s58, s58, {1024*(hi-lo)}")
            a.label(L)
            gf = ["nt", "", "sc1", "sc0"][self.o.get("gflag%d" % m, 0)]
            a(f"buffer_load_dwordx4 v2, s[{44+4*m}:{47+4*m}], s59 offen {gf} lds")
            a("s_add_u32 m0, m0, 1024")
            a(f"s_add_u32 s59, s59, {16*3584}")
            if self.o.get("gcap", 0) and (lo or m): a(f"s_waitcnt vmcnt({self.o['gcap']})")
            a("s_cmp_lt_u32 m0, s58")
            a(f"s_cbranch_scc1 {L}")
            if hi == 8: a("s_xor_b32 s52, s52, 8192")
        early = self.o.get("fearly", 0)
        if early:
            self.delay("fdel")
            self.stamp(5)
            mat(0, 0, early)
            a("s_cmp_eq_u32 s62, 2")
            a("s_cbranch_scc1 LGm2")
            a(f"s_waitcnt vmcnt({early})")
            a("s_branch LGm1")
        else:
            a("s_cmp_eq_u32 s62, 2")
            a("s_cbranch_scc1 LGm2")
        a.label("LGm0")
        a("s_waitcnt vmcnt(0)")
        a.label("LGm1")
        a("s_setprio 3")
        self.stamp(2)
        self.traddr128(8, "s63", 5, 6)
        for ks in range(2):
            for t in range(4): self.tr(64 + 16 * ks + 4 * t, 8 + t, 4096 * ks, 2048)
        a("s_lshl_b32 s9, s60, 14")
        a("s_lshl_b32 s15, s3, 12")
        a("s_add_u32 s9, s9, s15")
        a("s_lshl_b32 s15, s61, 7")
        a("s_add_u32 s9, s9, s15")
        a(f"s_add_u32 s9, s9, {HP}")
        a("s_waitcnt lgkmcnt(0)")
        for ks in range(2):
            for t in range(4): self.mfma(40 + 4 * t, 64 + 16 * ks + 4 * t, 32 + 4 * ks, ks == 0)
        self.exec16(3)
        for t in range(4):
            a(f"v_cvt_pk_bf16_f32 v{40+4*t}, v{40+4*t}, v{41+4*t}")
            a(f"v_cvt_pk_bf16_f32 v{41+4*t}, v{42+4*t}, v{43+4*t}")
            a(f"v_mov_b32 v{42+4*t}, s14")
        for t in range(4): a(f"buffer_store_dwordx4 v[{40+4*t}:{43+4*t}], v13, s[40:43], s9 offen offset:{1024*t} sc1")
        a("s_mov_b64 exec, -1")
        a("s_setprio 0")
        self.stamp(11)
        a("s_cmp_eq_u32 s62, 1")
        a("s_cbranch_scc1 LM")
        a.label("LGm2")
        if self.o.get("noffn"): self.end()
        if not early:
            self.delay("fdel")
            self.stamp(5)
            mat(0)
        elif early < 8: mat(0, early, 8)
        mat(1)
        a("s_mov_b64 s[48:49], s[16:17]")
        a("s_mov_b32 s50, 2048")
        a("v_lshrrev_b32 v4, 5, v0")
        a("v_and_b32 v5, 31, v0")
        a("v_lshlrev_b32 v19, 3, v5")
        a("v_lshl_add_u32 v19, v4, 10, v19")
        a("s_lshl_b32 s15, s3, 8")
        a("buffer_load_dwordx2 v[24:25], v19, s[48:51], s15 offen")
        a("s_lshl_b32 s9, s53, 15")
        a("s_add_u32 s9, s9, s15")
        a("v_lshrrev_b32 v229, 3, v0")
        a("v_lshlrev_b32 v229, 9, v229")
        a("v_and_b32 v6, 7, v0")
        a("v_lshl_add_u32 v229, v6, 4, v229")
        a(f"s_mov_b32 s27, {RDY+256}")
        self.rdy_load()
        a("v_lshlrev_b32 v18, 1, v19")
        a("s_lshl_b32 s15, s3, 9")
        for k in range(3): a(f"s_add_u32 s{28+k}, s15, {HM+4096*k}")
        mloads = [f"buffer_load_dwordx4 v[{160+4*k}:{163+4*k}], v18, s[40:43], s{28+k} offen sc1" for k in range(3)]
        for l in mloads: a(l)
        for k in range(8): a(f"s_add_u32 s{16+k}, s15, {HD+4096*k}")
        self.voff256(6, 10, 8, 9)
        a("s_mov_b64 s[44:45], s[32:33]")
        a(f"s_mov_b32 s46, {1792*1024}")
        a("s_lshl_b32 s6, s3, 13")
        a(f"s_add_u32 s6, s6, {DWN}")
        a("s_mov_b32 m0, s6")
        a("s_add_u32 s13, s6, 8192")
        a.label("LGd2")
        for i in range(2):
            a(f"buffer_load_dwordx4 v{6+i}, s[44:47], s9 offen {wf} lds")
            a("s_add_u32 m0, m0, 1024")
            a("s_add_u32 s9, s9, 4096")
        a("s_cmp_lt_u32 m0, s13")
        a("s_cbranch_scc1 LGd2")
        a("v_bfe_u32 v8, v0, 4, 1")
        a("v_lshlrev_b32 v8, 5, v8")
        a("v_lshl_add_u32 v8, v1, 6, v8")
        a("v_lshl_add_u32 v8, v3, 3, v8")
        a("v_add_u32 v8, s7, v8")
        a("v_xor_b32 v9, 32, v8")
        self.traddr256(10, 8, "s6", 6, 7)
        a("v_mul_u32_u24 v20, 816, v4")
        a("v_lshrrev_b32 v6, 3, v5")
        a("v_lshl_add_u32 v20, v6, 6, v20")
        a("v_lshl_add_u32 v20, v3, 4, v20")
        a("v_bfe_u32 v6, v0, 2, 1")
        a("v_lshl_add_u32 v20, v6, 3, v20")
        a(f"s_add_u32 s15, s7, {AROW_O}")
        a("v_add_u32 v20, s15, v20")
        a("v_mul_u32_u24 v22, 816, v6")
        a("v_and_b32 v7, 48, v0")
        a("v_add3_u32 v22, v22, v7, s15")
        a("s_mov_b32 s59, 272")
        a("v_and_b32 v21, 1, v0")
        a("v_mul_u32_u24 v21, 272, v21")
        a("v_add3_u32 v21, v21, v22, s59")
        a("v_lshl_add_u32 v227, v6, 6, v7")
        a(f"v_mul_u32_u24 v228, {HFS}, v4")
        a("v_lshl_add_u32 v228, v5, 2, v228")
        a("v_lshlrev_b32 v2, 4, v0")
        a("s_lshl_b32 s15, s3, 10")
        a("v_add_u32 v23, s15, v2")
        a("v_lshlrev_b32 v224, 3, v0")
        a("s_lshl_b32 s15, s3, 9")
        a("v_add_u32 v225, s15, v224")
        a("s_lshl_b32 s15, s3, 2")
        a("v_add_u32 v226, s15, v7")
        a("v_and_b32 v231, 16, v0")
        a("v_lshlrev_b32 v231, 1, v231")
        a(f"s_mul_i32 s26, s3, {8*HFS}")
        a("s_lshl_b32 s15, s53, 7")
        a("s_add_u32 s26, s26, s15")
        a(f"s_add_u32 s26, s26, {HF}")
        a(f"v_mov_b32 v232, {f32(1e-5)}")
        a("s_waitcnt vmcnt(8)")
        self.stamp(6)
        for m in range(2):
            for ks in range(4):
                for t in range(2): self.tr(64 + 32 * m + 8 * ks + 4 * t, 8 + t, 8192 * m + 2048 * ks, 1024)
        self.unpack(24, 28, 2)
        self.rdy_check()
        for k in range(3): a(f"v_xor_b32 v{163+4*k}, s14, v{162+4*k}")
        a("v_or3_b32 v163, v163, v167, v171")
        a("v_cmp_ne_u32 vcc, 0, v163")
        a("s_cbranch_vccz LGmo")
        self.poll(mloads, [(*self.TAGBAD, 162 + 4 * k) for k in range(3)], sleep=1)
        a.label("LGmo")
        self.stamp(4)
        a("s_waitcnt lgkmcnt(0)")
        a("ds_write_b64 v20, v[164:165] offset:544")
        self.unpack(168, 196, 2)
        for i in range(4): a(f"v_add_f32 v{196+i}, 1.0, v{196+i}")
        a("v_cvt_pk_bf16_f32 v36, v196, v197")
        a("v_cvt_pk_bf16_f32 v37, v198, v199")
        a("ds_write_b64 v20, v[36:37] offset:272")
        for ks in range(4): a(f"ds_read_b128 v[{172+4*ks}:{175+4*ks}], v21 offset:{64*ks}")
        self.unpack(160, 192, 2)
        self.unpack(36, 196, 2)
        for i in range(4): a(f"v_mul_f32 v{200+i}, v{28+i}, v{196+i}")
        for i in range(4): a(f"v_mul_f32 v{196+i}, v{192+i}, v{196+i}")
        def mf(ks):
            for m in range(2):
                for t in range(2): self.mfma(40 + 8 * m + 4 * t, 172 + 4 * ks, 64 + 32 * m + 8 * ks + 4 * t, ks == 0)
        a("s_waitcnt lgkmcnt(0)")
        for ks in range(4): mf(ks)
        for m in range(2):
            for r in range(2): a(f"v_permlane32_swap_b32 v{40+8*m+r}, v{44+8*m+r}")
        a("v_mov_b32 v42, v48")
        a("v_mov_b32 v43, v49")
        a(f"ds_write_b128 v23, v[40:43] offset:{CSR}")
        a("s_waitcnt vmcnt(0)")
        for dt in range(8): self.tr(128 + 4 * dt, 10 + dt, 0, 4096)
        self.stamp(10)
        self.guard(1100)
        self.sum_poll([f"buffer_load_dwordx4 v[{160+4*k}:{163+4*k}], v18, s[40:43], s{16+k} offen sc1" for k in range(8)], 160, 56)
        self.stamp(7)
        for k in range(2): a(f"v_pk_fma_f32 v[{200+2*k}:{201+2*k}], v[{56+2*k}:{57+2*k}], v[{196+2*k}:{197+2*k}], v[{200+2*k}:{201+2*k}]")
        a("v_cvt_pk_bf16_f32 v32, v200, v201")
        a("v_cvt_pk_bf16_f32 v33, v202, v203")
        a("ds_write_b64 v20, v[32:33]")
        for ks in range(4): a(f"ds_read_b128 v[{172+4*ks}:{175+4*ks}], v22 offset:{64*ks}")
        for k in range(2): a(f"v_pk_fma_f32 v[{28+2*k}:{29+2*k}], v[{56+2*k}:{57+2*k}], v[{192+2*k}:{193+2*k}], v[{28+2*k}:{29+2*k}]")
        a("v_pk_add_f32 v[190:191], v[28:29], v[30:31]")
        a("v_pk_mul_f32 v[28:29], v[28:29], v[28:29]")
        a("v_pk_fma_f32 v[28:29], v[30:31], v[30:31], v[28:29]")
        a("v_add_f32 v190, v190, v191")
        a("v_add_f32 v191, v28, v29")
        a("v_permlane16_swap_b32 v190, v191")
        a("s_waitcnt lgkmcnt(3)")
        mf(0)
        a("v_add_f32 v190, v190, v191")
        a("s_waitcnt lgkmcnt(2)")
        mf(1)
        self.row_sum(190)
        a("s_waitcnt lgkmcnt(0)")
        mf(2)
        a(f"ds_write_b32 v226, v190 offset:{STAT}")
        mf(3)
        a("v_permlane32_swap_b32 v40, v44")
        a("v_permlane32_swap_b32 v48, v52")
        a("v_mov_b32 v41, v48")
        a(f"ds_write_b64 v225, v[40:41] offset:{REC}")
        a("s_waitcnt lgkmcnt(0)")
        a("s_barrier")
        self.stamp(8)
        a(f"ds_read_b128 v[24:27], v231 offset:{STAT}")
        a(f"ds_read_b128 v[28:31], v231 offset:{STAT+16}")
        for w in range(4): a(f"ds_read_b128 v[{208+4*w}:{211+4*w}], v2 offset:{CSR+1024*w}")
        for w in range(4): a(f"ds_read_b64 v[{64+2*w}:{65+2*w}], v224 offset:{REC+512*w}")
        a("s_waitcnt lgkmcnt(8)")
        a("v_pk_add_f32 v[24:25], v[24:25], v[26:27]")
        a("v_pk_add_f32 v[28:29], v[28:29], v[30:31]")
        a("v_add_f32 v24, v24, v25")
        a("v_add_f32 v28, v28, v29")
        a(f"v_mul_f32 v24, {f32(1/512)}, v24")
        a(f"v_fmamk_f32 v28, v28, {f32(1/512)}, v232")
        a("v_fma_f32 v28, -v24, v24, v28")
        a("v_rsq_f32 v28, v28")
        a("s_waitcnt lgkmcnt(4)")
        for k in range(2):
            a(f"v_pk_add_f32 v[{208+2*k}:{209+2*k}], v[{208+2*k}:{209+2*k}], v[{212+2*k}:{213+2*k}]")
            a(f"v_pk_add_f32 v[{216+2*k}:{217+2*k}], v[{216+2*k}:{217+2*k}], v[{220+2*k}:{221+2*k}]")
        for k in range(2): a(f"v_pk_add_f32 v[{208+2*k}:{209+2*k}], v[{208+2*k}:{209+2*k}], v[{216+2*k}:{217+2*k}]")
        a("s_waitcnt lgkmcnt(0)")
        a("v_pk_add_f32 v[64:65], v[64:65], v[66:67]")
        a("v_pk_add_f32 v[68:69], v[68:69], v[70:71]")
        a("v_pk_add_f32 v[64:65], v[64:65], v[68:69]")
        a("v_fma_f32 v64, -v24, v208, v64")
        a("v_fma_f32 v65, -v24, v210, v65")
        a("v_fma_f32 v64, v64, v28, v209")
        a("v_fma_f32 v65, v65, v28, v211")
        a("v_max_f32 v64, 0, v64")
        a("v_mul_f32 v64, v64, v65")
        a("v_mov_b32_dpp v65, v64 quad_perm:[1,0,3,2] row_mask:0xf bank_mask:0xf")
        a("v_cvt_pk_bf16_f32 v64, v64, v65")
        for i, off in enumerate((0, 8, 128, 136)): a(f"ds_bpermute_b32 v{24+i}, v227, v64 offset:{off}")
        a("s_waitcnt lgkmcnt(0)")
        for dt in range(8): self.mfma(160 + 4 * dt, 24, 128 + 4 * dt, True)
        for k in range(4):
            a(f"v_permlane32_swap_b32 v{160+8*k}, v{164+8*k}")
            a(f"buffer_store_dword v{160+8*k}, v228, s[40:43], s26 offen sc1")
            if k < 3: a(f"s_add_u32 s26, s26, {2*HFS}")
        self.stamp(9)
        self.end()

    def small_helpers(self):
        a = self.a
        a.label("LGH2")
        a("s_setprio 3")
        self.tag()
        for i in range(4): a(f"v_mov_b32 v{32+i}, -1")
        self.g_index()
        a("s_cbranch_scc1 LGH3")
        a("v_lshrrev_b32 v3, 3, v0")
        a(f"v_mul_u32_u24 v3, {HFS}, v3")
        a("v_and_b32 v4, 7, v0")
        a("v_lshl_add_u32 v3, v4, 4, v3")
        a("s_lshl_b32 s15, s26, 7")
        a(f"s_add_u32 s15, s15, {HF}")
        for i in range(4):
            a("buffer_store_dwordx4 v[32:35], v3, s[40:43], s15 offen sc1")
            if i < 3: a(f"s_add_u32 s15, s15, {8*HFS}")
        a("s_waitcnt vmcnt(0)")
        a.label("LGH3")
        a("s_add_u32 s5, s5, 24")
        self.rdy_publish(8, "s5")
        a("s_endpgm")
        a.label("LWH2")
        a("s_setprio 3")
        for i in range(4): a(f"v_mov_b32 v{32+i}, -1")
        a("v_bfe_u32 v3, v0, 4, 1")
        a("v_lshlrev_b32 v3, 11, v3")
        a("v_and_b32 v4, 15, v0")
        a("v_lshl_add_u32 v3, v4, 4, v3")
        a("s_lshl_b32 s15, s4, 12")
        a("s_and_b32 s6, s5, 7")
        a("s_lshl_b32 s6, s6, 8")
        a("s_add_u32 s15, s15, s6")
        a(f"s_add_u32 s15, s15, {HD}")
        a("s_waitcnt lgkmcnt(0)")
        a("s_load_dword s14, s[40:41], 0")
        a("s_mov_b32 exec_hi, 0")
        a("buffer_store_dwordx4 v[32:35], v3, s[40:43], s15 offen sc1")
        a("s_waitcnt vmcnt(0) lgkmcnt(0)")
        self.tag()
        self.rdy_publish(8, "s5")
        a("s_endpgm")
        a.label("LTH")
        a("s_setprio 3")
        for i in range(4): a(f"v_mov_b32 v{40+i}, -1")
        a("v_lshlrev_b32 v2, 4, v0")
        a("s_lshl_b32 s6, s4, 4")
        a("s_add_u32 s6, s6, s5")
        a("s_lshl_b32 s54, s6, 10")
        a(f"s_add_u32 s54, s54, {HC}")
        a("s_lshl_b32 s55, s6, 7")
        a(f"s_add_u32 s55, s55, {HL}")
        a("s_waitcnt lgkmcnt(0)")
        a("s_load_dword s14, s[40:41], 0")
        a("buffer_store_dwordx4 v[40:43], v2, s[40:43], s54 offen sc1")
        a(f"s_add_u32 s54, s54, {LOC}")
        a("buffer_store_dwordx4 v[40:43], v2, s[40:43], s54 offen sc1")
        a("s_mov_b64 exec, 0xff")
        a("buffer_store_dwordx4 v[40:43], v2, s[40:43], s55 offen sc1")
        a(f"s_add_u32 s55, s55, {LOC}")
        a("buffer_store_dwordx4 v[40:43], v2, s[40:43], s55 offen sc1")
        a("s_mov_b64 exec, -1")
        a("s_waitcnt vmcnt(0) lgkmcnt(0)")
        self.tag()
        self.rdy_publish(44, "s5")
        a("buffer_load_dwordx4 v[232:235], v2, s[40:43], s54 offen sc1")
        a("s_mov_b64 exec, 1")
        a("buffer_load_dword v236, v2, s[40:43], s55 offen sc1")
        if self.o.get("probe", 0):
            a("s_lshl_b32 s55, s4, 15")
            a("s_and_b32 s13, s5, 8")
            a("s_lshl_b32 s13, s13, 11")
            a("s_add_u32 s55, s55, s13")
            a(f"s_add_u32 s55, s55, {HB}")
            self.ssent(55, [512 * k + 8 for k in range(8, 16)])
            self.ssent(55, [512 * k + 8 for k in range(24, 32)])
            a(f"v_mov_b32 v3, {LS}")
            a("v_mov_b32 v4, s14")
            a("ds_write_b32 v3, v4")
        a("s_endpgm")

    def m_role(self):
        a = self.a
        a.label("LM")
        if self.o.get("nom"): self.end()
        a("s_and_b32 s6, s4, 6")
        a("s_add_u32 s6, s6, s5")
        a("s_sub_u32 s6, s6, 6")
        if self.o.get("shed", 0): self.m_extra()
        a("s_lshl_b32 s6, s6, 2")
        a("s_add_u32 s6, s6, s3")
        a("s_lshl_b32 s8, s6, 12")
        a(f"s_add_u32 s8, s8, {HP}")
        a("s_lshr_b32 s9, s6, 3")
        a("s_lshl_b32 s9, s9, 12")
        a("s_and_b32 s6, s6, 7")
        a("s_lshl_b32 s6, s6, 8")
        a("s_add_u32 s9, s9, s6")
        a(f"s_add_u32 s9, s9, {HM}")
        a("v_lshlrev_b32 v2, 4, v0")
        a("v_and_b32 v3, 1, v0")
        a("v_lshlrev_b32 v3, 11, v3")
        a("v_bfe_u32 v4, v0, 1, 2")
        a("v_lshl_add_u32 v3, v4, 4, v3")
        self.poll([f"buffer_load_dwordx4 v[{40+4*t}:{43+4*t}], v2, s[40:43], s8 offen offset:{1024*t} sc1" for t in range(4)],
                  [(*self.TAGBAD, 42 + 4 * t) for t in range(4)], sleep=2)
        self.stamp(6)
        for t in range(4): self.unpack(40 + 4 * t, 64 + 4 * t, 2)
        for t in range(4): self.red8(64 + 4 * t)
        for t in range(4):
            a(f"v_cvt_pk_bf16_f32 v{40+4*t}, v{64+4*t}, v{65+4*t}")
            a(f"v_cvt_pk_bf16_f32 v{41+4*t}, v{66+4*t}, v{67+4*t}")
            a(f"v_mov_b32 v{42+4*t}, s14")
        a("s_mov_b64 exec, 0xff")
        for t in range(4): a(f"buffer_store_dwordx4 v[{40+4*t}:{43+4*t}], v3, s[40:43], s9 offen offset:{64*t} sc1")
        self.stamp(7)
        self.end()

    def m_extra_issue(self):
        a, wf = self.a, self.wf
        tab = 0
        for m in range(7):
            g = 8 * m + 6; k, r = divmod(g, 14); x = 2 * k + (r >= 8); p = r - 8 * (r >= 8)
            tab |= (x | (p >> 1) << 3) << (5 * m)
        a.label("LMi")
        a("s_and_b32 s6, s4, 6")
        a("s_add_u32 s6, s6, s5")
        a("s_sub_u32 s6, s6, 6")
        a("s_cmp_eq_u32 s6, 7")
        a("s_cbranch_scc1 LGm0")
        a(f"s_mov_b32 s8, {tab & 0xffffffff:#x}")
        a(f"s_mov_b32 s9, {tab >> 32:#x}")
        a("s_mul_i32 s13, s6, 5")
        a("s_lshr_b64 s[8:9], s[8:9], s13")
        a("s_and_b32 s24, s8, 7")
        a("s_bfe_u32 s25, s8, 0x20003")
        a("s_mov_b64 s[48:49], s[34:35]")
        a("v_lshrrev_b32 v4, 5, v0")
        a("v_and_b32 v5, 31, v0")
        a("v_lshlrev_b32 v6, 3, v5")
        a("v_lshl_add_u32 v6, v4, 10, v6")
        a("s_lshl_b32 s15, s25, 8")
        a("buffer_load_dwordx2 v[28:29], v6, s[48:51], s15 offen")
        a(f"s_mul_i32 s9, s25, {128*6144}")
        a("s_lshl_b32 s15, s24, 9")
        a("s_add_u32 s9, s9, s15")
        a("s_lshl_b32 s15, s3, 7")
        a("s_add_u32 s9, s9, s15")
        a("s_add_u32 s9, s9, 2048")
        a("s_mov_b32 m0, s7")
        a("s_add_u32 s15, s7, 16384")
        a.label("LMd")
        a(f"buffer_load_dwordx4 v2, s[52:55], s9 offen {wf} lds")
        a("s_add_u32 m0, m0, 1024")
        a(f"s_add_u32 s9, s9, {8*6144}")
        a("s_cmp_lt_u32 m0, s15")
        a("s_cbranch_scc1 LMd")
        a("s_waitcnt vmcnt(17)")
        a("s_branch LGm1")

    def m_extra(self):
        a = self.a
        a("s_cmp_eq_u32 s6, 7")
        a("s_cbranch_scc1 LMx")
        a("v_lshrrev_b32 v4, 5, v0")
        a("v_and_b32 v5, 31, v0")
        a("s_lshl_b32 s15, s3, 10")
        a(f"s_add_u32 s15, s15, {DWN}")
        a("v_mul_u32_u24 v6, 272, v4")
        a("v_lshrrev_b32 v7, 3, v5")
        a("v_lshl_add_u32 v6, v7, 6, v6")
        a("v_and_b32 v7, 3, v0")
        a("v_lshl_add_u32 v6, v7, 4, v6")
        a("v_bfe_u32 v7, v0, 2, 1")
        a("v_lshl_add_u32 v6, v7, 3, v6")
        a("v_add_u32 v5, s15, v6")
        a("v_and_b32 v6, 1, v0")
        a("v_and_b32 v7, 48, v0")
        a("v_mul_u32_u24 v6, 272, v6")
        a("v_add3_u32 v7, v6, v7, s15")
        self.traddr128(8, "s7", 4, 6)
        a("s_lshl_b32 s9, s24, 14")
        a("s_lshl_b32 s15, s3, 12")
        a("s_add_u32 s9, s9, s15")
        a("s_lshl_b32 s15, s25, 8")
        a("s_add_u32 s9, s9, s15")
        a(f"s_add_u32 s9, s9, {HP}")
        a("s_waitcnt vmcnt(20)")
        self.silu_run()
        for ks in range(4): a(f"ds_read_b128 v[{128+4*ks}:{131+4*ks}], v7 offset:{64*ks}")
        a("s_waitcnt vmcnt(4)")
        for ks in range(4):
            for t in range(4): self.tr(64 + 16 * ks + 4 * t, 8 + t, 4096 * ks, 2048)
        a("s_waitcnt lgkmcnt(0)")
        for ks in range(4):
            for t in range(4): self.mfma(160 + 16 * (ks >> 1) + 4 * t, 64 + 16 * ks + 4 * t, 128 + 4 * ks, (ks & 1) == 0)
        self.exec16(3)
        for t in range(8):
            a(f"v_cvt_pk_bf16_f32 v{160+4*t}, v{160+4*t}, v{161+4*t}")
            a(f"v_cvt_pk_bf16_f32 v{161+4*t}, v{162+4*t}, v{163+4*t}")
            a(f"v_mov_b32 v{162+4*t}, s14")
        for t in range(8): a(f"buffer_store_dwordx4 v[{160+4*t}:{163+4*t}], v13, s[40:43], s9 offen offset:{1024*(t&3)+128*(t>>2)} sc1")
        a("s_mov_b64 exec, -1")
        a.label("LMx")
        self.stamp(5)

    def red8(self, r):
        a = self.a
        for i in range(4): a(f"v_add_f32_dpp v{r+i}, v{r+i}, v{r+i} row_ror:8 row_mask:0xf bank_mask:0xf")
        for sw in ("16", "32"):
            for i in range(4): a(f"v_mov_b32 v{60+i}, v{r+i}")
            for i in range(4): a(f"v_permlane{sw}_swap_b32 v{r+i}, v{60+i}")
            for i in range(4): a(f"v_add_f32 v{r+i}, v{r+i}, v{60+i}")

    def build(self):
        self.prologue()
        self.ww_early()
        if self.o.get("tnear"): self.tw_early()
        self.g_early()
        self.g_role()
        self.guard(2800, fall=False)
        self.ww_main()
        self.guard(3300, fall=False)
        if not self.o.get("tnear"): self.tw_early()
        self.tw_issue()
        self.tw_main()
        if self.o.get("shed", 0): self.m_extra_issue()
        self.m_role()
        self.small_helpers()
        if self.diag:
            self.a.label("Ldump")
            self.dump_stamps()
        self.a.label("Lexit")
        self.a("s_endpgm")
        self.a.label("Lcode_end")
        body = self.a.finish()
        head = open("cdna_kernels/" + NAME + ".s.ref").read().split("; Override launch geometry")[0]
        return head + f"""; Generated by gen/gen_kernel.py (hand-written generator): one persistent launch, 256 workgroups x 5 waves.
; @launch grid=(256,1,1) block=(320,1,1) lds={LDS_BYTES}
.amdgcn_target "amdgcn-amd-amdhsa--gfx950"
.text
.globl {KNAME}
.p2align 12
.type {KNAME},@function
{KNAME}:
{body}
.section .rodata,"a"
.p2align 6
.amdhsa_kernel {KNAME}
  .amdhsa_next_free_vgpr 240
  .amdhsa_next_free_sgpr 102
  .amdhsa_accum_offset 240
  .amdhsa_group_segment_fixed_size 0
  .amdhsa_kernarg_size 112
  .amdhsa_user_sgpr_count 2
  .amdhsa_user_sgpr_kernarg_segment_ptr 1
  .amdhsa_system_sgpr_workgroup_id_x 1
.end_amdhsa_kernel
"""

if __name__ == "__main__":
    import argparse
    ap = argparse.ArgumentParser()
    ap.add_argument("-o", default="cdna_kernels/" + NAME + ".s")
    ap.add_argument("--diag", action="store_true")
    ap.add_argument("--wflag", default="nt")
    ap.add_argument("--opt", action="append", default=[])
    args = ap.parse_args()
    opts = {}
    for o in args.opt:
        k, _, v = o.partition("=")
        opts[k] = int(v) if v else 1
    open(args.o, "w").write(Gen(args.diag, args.wflag, opts).build())
    print("wrote", args.o)
```

```python
import sys, struct
from asmlib import Asm

NAME = "adaLN_cond__sliding_block_cached__glu_gated_reglu__decode"
KNAME = NAME + "_kernel"

def f32(x): return "0x%08x" % struct.unpack("<I", struct.pack("<f", x))[0]

EPOCH = 0x0
RDY = 0x1000
HM = 0x4000
HA = 0x8000
ALOC = 0x8000
HB = 0x140000
HD = 0x20000
HL = HD + 0x8000
HC = HL + 0x4000
LOC = 0x24000
HF = HC + 0x20000 + LOC
HFS = 7168
HP = 0xD0000
STAMP = 0x100000
WS_SIZE = 0x200000
LDS_BYTES = 151552
KB, VB, PB, MX, LS, QB = 0, 65536, 131072, 133120, 133248, 133632
WQ, WO, GA, RED, SCW = 0, 65536, 131072, 147456, 149504
W1, GU, DWN, MRG, SC = 0, 16384, 81920, 114688, 147456
REC, CSR, STAT = W1, W1 + 4096, W1 + 8192
AROW_O = 4096

LOG2E = 1.4426950408889634
CSC = (128 ** -0.5) * LOG2E
SPIN = 20000
import os
if os.environ.get('SPIN'): SPIN = int(os.environ['SPIN'])
MFMA = "v_mfma_f32_16x16x32_bf16"

class Gen:
    POISON = ("v_cmp_eq_u32", "-1")
    TAGBAD = ("v_cmp_ne_u32", "s14")

    def __init__(self, diag=False, wflag="nt", opts=None):
        self.a = Asm()
        self.diag = diag
        self.wf = wflag
        self.o = opts or {}
        self.nlab = 0
    def lab(self, p="L"):
        self.nlab += 1
        return f"{p}{self.nlab}"
    def stamp(self, k):
        if self.diag or self.o.get("amp") == k: self.a(f"s_memrealtime s[{64+2*k}:{65+2*k}]")
    def dump_max(self):
        a = self.a
        a("s_load_dwordx2 s[44:45], s[0:1], 96")
        a("s_mov_b32 s46, 256")
        a("s_mov_b32 s47, 0x20000")
        a("s_mov_b64 exec, 1")
        a("v_mov_b32 v1, 0")
        a("s_waitcnt lgkmcnt(0)")
        def put(slot, reg):
            a(f"v_mov_b32 v4, {reg}")
            a(f"buffer_atomic_umax v4, v1, s[44:47], 0 offen offset:{4*slot} sc1")
        a("s_not_b32 s60, s64")
        put(0, "s60"); put(1, "s64")
        a("s_lshr_b32 s5, s2, 3")
        a("s_cmp_ge_u32 s5, 24")
        a("s_cbranch_scc1 LdG")
        a("s_cmp_ge_u32 s5, 16")
        a("s_cbranch_scc1 LdW")
        for slot, k in ((6, 3), (7, 9), (8, 5), (15, 8)): put(slot, f"s{64+2*k}")
        a("s_endpgm")
        a.label("LdW")
        for slot, k in ((3, 2), (4, 3), (5, 4), (9, 6), (10, 7), (11, 8)): put(slot, f"s{64+2*k}")
        a("s_endpgm")
        a.label("LdG")
        for slot, k in ((2, 3), (12, 6), (13, 7), (14, 9)): put(slot, f"s{64+2*k}")
    def dump_gamp(self):
        a = self.a
        k, lo, hi = self.o["gamp"] // 10000, self.o["gamp"] // 100 % 100, self.o["gamp"] % 100
        a("s_waitcnt lgkmcnt(0)")
        a("s_lshr_b32 s5, s2, 3")
        a(f"s_sub_u32 s60, s5, {lo}")
        a(f"s_cmp_lt_u32 s60, {hi-lo}")
        a(f"s_cselect_b32 s61, s{64+2*k}, 0")
        a("s_cmp_eq_u32 s61, 0")
        a("s_cselect_b32 s61, s64, s61")
        a("s_lshl_b32 s60, s2, 2")
        a("s_add_u32 s60, s60, s3")
        a("s_lshl_b32 s60, s60, 2")
        a(f"s_add_u32 s60, s60, {STAMP}")
        a("s_mov_b64 exec, 1")
        a("v_mov_b32 v1, 0")
        a("v_mov_b32 v4, s64")
        a("v_mov_b32 v5, s61")
        a("buffer_store_dword v4, v1, s[40:43], s60 offen sc1")
        a("s_add_u32 s60, s60, 4096")
        a("buffer_store_dword v5, v1, s[40:43], s60 offen sc1")
        a("s_mov_b64 exec, -1")
        a("s_cmp_eq_u32 s2, 0")
        a("s_cbranch_scc0 Lexit")
        a("s_cmp_eq_u32 s3, 1")
        a("s_cbranch_scc0 Lexit")
        def until(reg):
            L = self.lab("Lu")
            a.label(L)
            a("s_memrealtime s[98:99]")
            a("s_waitcnt lgkmcnt(0)")
            a("s_sub_u32 s98, s98, s64")
            a(f"s_cmp_lt_u32 s98, {reg}")
            a(f"s_cbranch_scc1 {L}")
        until(3000)
        a("v_lshlrev_b32 v2, 4, v0")
        a(f"s_mov_b32 s60, {STAMP}")
        a(f"s_mov_b32 s61, {STAMP+4096}")
        for i in range(4):
            a(f"buffer_load_dwordx4 v[{8+4*i}:{11+4*i}], v2, s[40:43], s60 offen offset:{1024*i} sc1")
            a(f"buffer_load_dwordx4 v[{24+4*i}:{27+4*i}], v2, s[40:43], s61 offen offset:{1024*i} sc1")
        a("s_waitcnt vmcnt(0)")
        for i in range(32): a(f"v_subrev_u32 v{8+i}, s64, v{8+i}")
        for i in range(1, 16):
            a(f"v_min_i32 v8, v8, v{8+i}")
            a(f"v_max_i32 v24, v24, v{24+i}")
        a("s_mov_b32 s60, 0")
        a("s_mov_b32 s61, 0")
        for l in range(64):
            a(f"v_readlane_b32 s62, v8, {l}")
            a(f"v_readlane_b32 s63, v24, {l}")
            a("s_min_i32 s60, s60, s62")
            a("s_max_i32 s61, s61, s63")
        a("s_sub_u32 s61, s61, s60")
        a("s_mul_i32 s61, s61, 40")
        a("s_add_u32 s100, s61, 4000")
        until("s100")
    def dump_stamps(self):
        if not self.diag: return
        if self.o.get("gamp") is not None: return self.dump_gamp()
        if self.o.get("dmax"): return self.dump_max()
        a = self.a
        a("s_waitcnt lgkmcnt(0)")
        a("s_mov_b64 exec, 1")
        a("s_mul_i32 s60, s2, 5")
        a("s_add_u32 s60, s60, s3")
        a("s_lshl_b32 s60, s60, 6")
        a(f"s_add_u32 s60, s60, {STAMP}")
        a("v_mov_b32 v1, 0")
        for q in range(3):
            for i in range(4):
                a(f"v_mov_b32 v{4+i}, s{64+2*(4*q+i)}")
            a(f"buffer_store_dwordx4 v[4:7], v1, s[40:43], s60 offen offset:{16*q}")
            a("s_nop 1")
    def end(self, helper=False):
        self.a("s_branch Ldump" if self.diag and (not helper or self.o.get("hdump")) else "s_endpgm")
    def delay(self, key):
        n = self.o.get(key, 0)
        if not n: return
        a = self.a
        L = self.lab("Ld")
        a.label(L)
        a("s_memrealtime s[98:99]")
        a("s_waitcnt lgkmcnt(0)")
        a("s_sub_u32 s98, s98, s64")
        a(f"s_cmp_lt_u32 s98, {n}")
        a(f"s_cbranch_scc1 {L}")
    def guard(self, n, fall=True):
        L = self.lab("Lg")
        if fall: self.a(f"s_branch {L}")
        self.a(f".p2align 12, , {n}")
        self.a.label(L)
    def srd(self, d, p, size):
        a = self.a
        a(f"s_mov_b64 s[{d}:{d+1}], s[{p}:{p+1}]")
        a(f"s_mov_b32 s{d+2}, {size}")
        a(f"s_mov_b32 s{d+3}, 0x20000")
    def tag(self):
        self.a("s_mul_i32 s14, s14, 0x9E3779B1")
        self.a("s_add_u32 s14, s14, 0x7F4A7C15")
    def exec16(self, m):
        self.a(f"s_mov_b32 exec_lo, {(m << 16 | m):#x}")
        self.a(f"s_mov_b32 exec_hi, {(m << 16 | m):#x}")
    def poll(self, loads, checks, sleep=0, after=None):
        a = self.a
        L = self.lab("Lp"); D = self.lab("Lpd")
        n = len(loads)
        a(f"s_mov_b32 s12, {SPIN}")
        a.label(L)
        for l in loads: a(l)
        for i, (op, opd, r) in enumerate(checks):
            a(f"s_waitcnt vmcnt({n-1-i})")
            if i == 0:
                a(f"{op} s[10:11], {opd}, v{r}")
            else:
                a(f"{op} vcc, {opd}, v{r}")
                a("s_or_b64 s[10:11], s[10:11], vcc")
            if after: after(i)
        a("s_cmp_eq_u64 s[10:11], 0")
        a(f"s_cbranch_scc1 {D}")
        if sleep: a(f"s_sleep {sleep}")
        a("s_sub_u32 s12, s12, 1")
        a(f"s_cbranch_scc0 {L}")
        a.label(D)
    def spin(self, body, sleep=0, alt=None):
        a = self.a
        L = self.lab("Lp"); D = self.lab("Lpd")
        n = SPIN
        if alt:
            sregs, delta, every = alt
            for i, r in enumerate(sregs):
                a(f"s_mov_b32 s{96+2*i}, s{r}")
                a(f"s_add_u32 s{97+2*i}, s{r}, {delta}")
                a(f"s_mov_b32 s{r}, s{97+2*i}")
            n = SPIN * 4 | (every - 1)
        a(f"s_mov_b32 s12, {n}")
        a.label(L)
        body()
        a("s_cmp_eq_u64 s[10:11], 0")
        a(f"s_cbranch_scc1 {D}")
        if sleep: a(f"s_sleep {sleep}")
        if alt:
            a(f"s_and_b32 s13, s12, {every-1}")
            for i, r in enumerate(sregs): a(f"s_cselect_b32 s{r}, s{97+2*i}, s{96+2*i}")
        a("s_sub_u32 s12, s12, 1")
        a(f"s_cbranch_scc0 {L}")
        a.label(D)
    def ssent(self, soff, offs, cnt=13):
        a = self.a
        L = self.lab("Ls"); D = self.lab("Lsd")
        a(f"s_mov_b32 s{cnt}, {SPIN}")
        a.label(L)
        for k, o in enumerate(offs): a(f"s_load_dword s{88+k}, s[40:41], s{soff} offset:{o} glc")
        a("s_waitcnt lgkmcnt(0)")
        for k in range(len(offs)): a(f"s_xor_b32 s{88+k}, s{88+k}, s14")
        for k in range(1, len(offs)): a(f"s_or_b32 s88, s88, s{88+k}")
        a(f"s_cbranch_scc0 {D}")
        a(f"s_sub_u32 s{cnt}, s{cnt}, 1")
        a(f"s_cbranch_scc0 {L}")
        a.label(D)
    def sum_poll(self, loads, base, acc):
        a = self.a
        n = len(loads)
        def body():
            for l in loads: a(l)
            for i in range(1, n):
                a(f"s_waitcnt vmcnt({n-1-i})")
                src = base if i == 1 else acc
                for k in range(2): a(f"v_pk_add_f32 v[{acc+2*k}:{acc+1+2*k}], v[{src+2*k}:{src+1+2*k}], v[{base+4*i+2*k}:{base+1+4*i+2*k}]")
            a(f"v_cmp_u_f32 s[10:11], v{acc}, v{acc+1}")
            a(f"v_cmp_u_f32 vcc, v{acc+2}, v{acc+3}")
            a("s_or_b64 s[10:11], s[10:11], vcc")
        self.spin(body)
    def silu(self, regs, tmp):
        a = self.a
        for i, r in enumerate(regs): a(f"v_mul_f32 v{tmp+i}, {f32(-LOG2E)}, v{r}")
        for i, r in enumerate(regs): a(f"v_exp_f32 v{tmp+i}, v{tmp+i}")
        for i, r in enumerate(regs): a(f"v_add_f32 v{tmp+i}, 1.0, v{tmp+i}")
        for i, r in enumerate(regs): a(f"v_rcp_f32 v{tmp+i}, v{tmp+i}")
        for i, r in enumerate(regs): a(f"v_mul_f32 v{r}, v{r}, v{tmp+i}")
    def unpack(self, src, dst, n):
        for i in range(n):
            self.a(f"v_lshlrev_b32 v{dst+2*i}, 16, v{src+i}")
            self.a(f"v_and_b32 v{dst+2*i+1}, 0xffff0000, v{src+i}")
    def row_sum(self, r):
        for m in ("quad_perm:[1,0,3,2]", "quad_perm:[2,3,0,1]", "row_half_mirror", "row_mirror"):
            self.a(f"v_add_f32_dpp v{r}, v{r}, v{r} {m} row_mask:0xf bank_mask:0xf")
    def silu_frag(self, base):
        a = self.a
        a("v_bfe_u32 v10, v0, 4, 1")
        a("v_mul_u32_u24 v5, 144, v10")
        a("v_bfe_u32 v4, v0, 3, 1")
        a("v_lshl_add_u32 v5, v4, 6, v5")
        a("v_and_b32 v4, 3, v0")
        a("v_lshl_add_u32 v5, v4, 4, v5")
        a("v_bfe_u32 v4, v0, 2, 1")
        a("v_lshl_add_u32 v5, v4, 3, v5")
        a(f"v_add_u32 v5, {base}, v5")
    def silu_run(self):
        a = self.a
        self.unpack(28, 16, 2)
        self.silu([16, 17, 18, 19], 24)
        a("v_cvt_pk_bf16_f32 v28, v16, v17")
        a("v_cvt_pk_bf16_f32 v29, v18, v19")
        a("ds_write_b64 v5, v[28:29]")
    def c_voff(self, d):
        a = self.a
        a(f"v_bfe_u32 v{d}, v0, 4, 1")
        a(f"v_lshlrev_b32 v{d}, 10, v{d}")
        a("v_and_b32 v11, 15, v0")
        a(f"v_lshl_add_u32 v{d}, v11, 3, v{d}")
    def mfma(self, d, A, B, first):
        c = "0" if first else f"v[{d}:{d+3}]"
        self.a(f"{MFMA} v[{d}:{d+3}], v[{A}:{A+3}], v[{B}:{B+3}], {c}")
    def tr(self, r, va, off, second):
        self.a(f"ds_read_b64_tr_b16 v[{r}:{r+1}], v{va} offset:{off}")
        self.a(f"ds_read_b64_tr_b16 v[{r+2}:{r+3}], v{va} offset:{off+second}")
    def voff256(self, d, stride_sh, t0, t1):
        a = self.a
        a(f"v_lshrrev_b32 v{t0}, 4, v0")
        a(f"v_and_b32 v{t1}, 15, v0")
        a(f"v_lshlrev_b32 v{d}, 1, v{t0}")
        a(f"v_xor_b32 v{d}, v{t1}, v{d}")
        a(f"v_lshlrev_b32 v{d}, 4, v{d}")
        a(f"v_lshl_add_u32 v{d}, v{t0}, {stride_sh}, v{d}")
        a(f"v_xor_b32 v{d+1}, 0x80, v{d}")
    def voff128(self, d, stride, t0, t1):
        a = self.a
        a(f"v_lshrrev_b32 v{t0}, 3, v0")
        a(f"v_and_b32 v{d}, 6, v{t0}")
        a(f"v_and_b32 v{t1}, 7, v0")
        a(f"v_xor_b32 v{d}, v{d}, v{t1}")
        a(f"v_mul_u32_u24 v{t0}, {stride}, v{t0}")
        a(f"v_lshl_add_u32 v{d}, v{d}, 4, v{t0}")
    def traddr256(self, d, n, base, t0, t1, first=None):
        a = self.a
        a(f"v_lshrrev_b32 v{t0}, 2, v0")
        a(f"v_and_b32 v{d}, 7, v{t0}")
        a(f"v_lshlrev_b32 v{d}, 5, v{d}")
        a(f"v_lshl_add_u32 v{d}, v{t0}, 8, v{d}")
        a(f"v_and_b32 v{t1}, 3, v0")
        a(f"v_lshl_add_u32 v{d}, v{t1}, 3, v{d}")
        if first: a(f"v_xor_b32 v{d}, {first}, v{d}")
        a(f"v_add_u32 v{d}, {base}, v{d}")
        for i in range(1, n): a(f"v_xor_b32 v{d+i}, {32*i}, v{d}")
    def traddr128(self, d, base, t0, t1, grp_sh=10, n=4):
        a = self.a
        a(f"v_bfe_u32 v{t0}, v0, 2, 3")
        a(f"v_bfe_u32 v{d}, v0, 3, 2")
        a(f"v_lshlrev_b32 v{d}, 5, v{d}")
        a(f"v_lshl_add_u32 v{d}, v{t0}, 7, v{d}")
        a(f"v_lshrrev_b32 v{t0}, 5, v0")
        a(f"v_lshl_add_u32 v{d}, v{t0}, {grp_sh}, v{d}")
        a(f"v_and_b32 v{t1}, 3, v0")
        a(f"v_lshl_add_u32 v{d}, v{t1}, 3, v{d}")
        if base is not None: a(f"v_add_u32 v{d}, {base}, v{d}")
        for i in range(1, n): a(f"v_xor_b32 v{d+i}, {32*i}, v{d}")

    def prologue(self):
        a = self.a
        a("s_cmp_ge_u32 s2, 256")
        a("s_cbranch_scc1 Lexit")
        a("s_load_dwordx16 s[16:31], s[0:1], 0")
        a("s_load_dwordx8 s[32:39], s[0:1], 64")
        a("s_load_dwordx2 s[40:41], s[0:1], 104")
        if self.diag:
            for k in range(1, 12): a(f"s_mov_b32 s{64+2*k}, 0")
        self.stamp(0)
        if self.o.get("padto"): a("s_memrealtime s[96:97]")
        a("s_getpc_b64 s[56:57]")
        a.label("Lpc0")
        a("s_lshr_b32 s5, s2, 3")
        a("v_lshrrev_b32 v1, 6, v0")
        a("s_mul_i32 s6, s5, 640")
        a("v_lshl_add_u32 v2, v1, 7, s6")
        a("v_min_u32 v2, Lcode_end-Lpc0-4, v2")
        a("global_load_dword v239, v2, s[56:57]")
        a("v_and_b32 v0, 63, v0")
        a("s_and_b32 s4, s2, 7")
        a("v_readfirstlane_b32 s3, v1")
        a(f"s_mov_b32 s42, {WS_SIZE}")
        a("s_mov_b32 s43, 0x20000")
        a("s_mov_b32 s47, 0x20000")
        a("s_mov_b32 s51, 0x20000")
        a("s_lshl_b32 s7, s3, 14")
        a("s_cmp_ge_u32 s5, 24")
        a("s_cbranch_scc1 LG0")
        a("s_cmp_eq_u32 s3, 4")
        a("s_cbranch_scc1 LH0")
        self.voff256(6, 8, 1, 8)
        a("s_mov_b32 m0, s7")
        a("s_cmp_ge_u32 s5, 16")
        a("s_cbranch_scc0 LT0")

    def tw_early(self):
        a, wf = self.a, self.wf
        a.label("LT0")
        a("s_and_b32 s6, s5, 8")
        a("s_add_u32 s6, s6, s4")
        a("s_lshl_b32 s6, s6, 21")
        a("s_and_b32 s8, s5, 7")
        a("s_lshl_b32 s8, s8, 16")
        a("s_add_u32 s6, s6, s8")
        a("s_add_u32 s6, s6, s7")
        a(f"s_add_u32 s6, s6, {6144*256}")
        a("v_xor_b32 v2, v8, v1")
        a("v_lshlrev_b32 v2, 4, v2")
        a("v_lshl_add_u32 v2, v1, 8, v2")
        a("v_xor_b32 v3, 64, v2")
        a("v_xor_b32 v4, 0x80, v2")
        a("v_xor_b32 v5, 0xc0, v2")
        a("s_mov_b32 s8, s6")
        a("s_add_u32 s9, s6, 16384")
        a("s_mov_b32 s46, 0x2000000")
        a("s_mov_b32 s50, 0x2000000")
        thr = self.o.get("thr", 0)
        thk = self.o.get("thk", 2)
        if thr: a(f"s_add_u32 s10, s6, {4096*thr}")
        a("s_waitcnt lgkmcnt(0)")
        a("s_mov_b64 s[44:45], s[18:19]")
        a("s_mov_b64 s[48:49], s[20:21]")
        a("s_load_dword s14, s[40:41], 0")
        if thr:
            a.label("LTWt")
            for i in range(4):
                a(f"buffer_load_dwordx4 v{2+i}, s[44:47], s8 offen offset:{1024*i} {wf} lds")
                a(f"s_waitcnt vmcnt({thk})")
            a("s_add_u32 m0, m0, 4096")
            a("s_add_u32 s8, s8, 4096")
            a("s_cmp_lt_u32 s8, s10")
            a("s_cbranch_scc1 LTWt")
        cap = self.o.get("cap", 7)
        if thr < 4:
            a.label("LTWk")
            for i in range(4):
                a(f"buffer_load_dwordx4 v{2+i}, s[44:47], s8 offen offset:{1024*i} {wf} lds")
                if cap: a(f"s_waitcnt vmcnt({cap})")
            a("s_add_u32 m0, m0, 4096")
            a("s_add_u32 s8, s8, 4096")
            a("s_cmp_lt_u32 s8, s9")
            a("s_cbranch_scc1 LTWk")
        self.stamp(10)
        if self.o.get("tnear"): a("s_branch LTW1")

    def tw_issue(self):
        a, wf = self.a, self.wf
        cap = self.o.get("vcap", 8)
        if self.o.get("tnear"):
            a.label("LTHp")
            a("s_branch LTH")
            a.label("LTW1")
        a("s_lshl_b32 s55, s4, 14")
        a("s_and_b32 s13, s5, 8")
        a("s_lshl_b32 s13, s13, 10")
        a("s_add_u32 s55, s55, s13")
        a("s_lshl_b32 s13, s3, 11")
        a("s_add_u32 s55, s55, s13")
        a(f"s_add_u32 s55, s55, {HB}")
        a("v_lshlrev_b32 v21, 4, v0")
        a("v_mov_b32 v229, v21")
        a("s_lshl_b32 s27, s4, 7")
        a(f"s_add_u32 s27, s27, {RDY+2048}")
        a(f"s_add_u32 m0, s7, {VB}")
        a("s_mov_b32 s8, s6")
        a("s_waitcnt lgkmcnt(0)")
        self.tag()
        for g in range(4):
            if g == 2:
                a("s_mov_b64 exec, 0xff")
                self.rdy_load()
                a("s_mov_b64 exec, -1")
            for i in range(4):
                a(f"buffer_load_dwordx4 v{6+(i&1)}, s[48:51], s8 offen offset:{1024*i} {wf} lds")
                if cap: a(f"s_waitcnt vmcnt({cap})")
            if g < 3:
                a("s_add_u32 m0, m0, 4096")
                a("s_add_u32 s8, s8, 4096")
        a("s_waitcnt vmcnt(8)")
        a("s_mov_b64 exec, 0xff")
        self.rdy_check()
        a("s_mov_b64 exec, -1")
        self.qfetch()

    def qfetch(self):
        for i in range(2): self.a(f"buffer_load_dwordx4 v[{192+4*i}:{195+4*i}], v21, s[40:43], s55 offen offset:{1024*i} sc1")

    def ww_early(self):
        a, wf = self.a, self.wf
        a.label("LW0")
        if self.o.get("now"): a("s_endpgm")
        a("s_lshl_b32 s9, s4, 19")
        a("s_and_b32 s52, s5, 7")
        a("s_lshl_b32 s15, s52, 10")
        a("s_add_u32 s9, s9, s15")
        a("s_lshl_b32 s15, s3, 8")
        a("s_add_u32 s9, s9, s15")
        a("v_mul_u32_u24 v2, 0x1f00, v1")
        a("v_add_u32 v6, v6, v2")
        a("v_add_u32 v7, v7, v2")
        a("s_add_u32 s13, s7, 16384")
        a(f"s_mov_b32 s46, {512*8192}")
        a("s_waitcnt lgkmcnt(0)")
        a("s_mov_b64 s[44:45], s[22:23]")
        self.delay("wdel")
        a("s_load_dword s14, s[40:41], 0")
        a.label("LWq")
        for i in range(2):
            a(f"buffer_load_dwordx4 v{6+i}, s[44:47], s9 offen {wf} lds")
            a("s_add_u32 m0, m0, 1024")
            a("s_add_u32 s9, s9, 32768")
        if self.o.get("qcap", 8): a(f"s_waitcnt vmcnt({self.o.get('qcap', 8)})")
        a("s_cmp_lt_u32 m0, s13")
        a("s_cbranch_scc1 LWq")
        a("s_branch LW2")
        a.label("LH0")
        a("s_cmp_ge_u32 s5, 16")
        a("s_cbranch_scc0 " + ("LTHp" if self.o.get("tnear") else "LTH"))
        a("s_branch LWHp")

    def g_early(self):
        a, wf = self.a, self.wf
        a.label("LG0")
        if self.o.get("nog"): a("s_endpgm")
        a("s_sub_u32 s5, s5, 24")
        if self.o.get("chs", 0):
            a("s_mov_b32 s60, s5")
            a("s_mov_b32 s61, s4")
        else:
            a("s_mov_b32 s60, s4")
            a("s_mov_b32 s61, s5")
        a("s_mov_b32 s50, 2048")
        a("s_cmp_eq_u32 s3, 4")
        a("s_cbranch_scc0 LGW")
        self.c_voff(4)
        a("s_lshl_b32 s9, s61, 7")
        a("s_waitcnt lgkmcnt(0)")
        a("s_mov_b64 s[48:49], s[34:35]")
        a("buffer_load_dwordx2 v[28:29], v4, s[48:51], s9 offen")
        a("buffer_load_dwordx2 v[30:31], v4, s[48:51], 0 offen offset:384")
        a("s_load_dword s14, s[40:41], 0")
        self.silu_frag(SC)
        a("s_waitcnt vmcnt(1)")
        self.silu_run()
        a("s_waitcnt lgkmcnt(0)")
        a("s_barrier")
        a("s_barrier")
        a("s_branch LGH2")
        a.label("LGW")
        a("v_lshlrev_b32 v6, 4, v0")
        self.voff128(2, 6144, 1, 3)
        a("s_lshl_b32 s9, s61, 2")
        a("s_add_u32 s9, s9, s3")
        a(f"s_mul_i32 s9, s9, {16*6144}")
        a("s_lshl_b32 s6, s60, 7")
        a("s_add_u32 s9, s9, s6")
        a("s_lshl_b32 s13, s3, 5")
        a("s_add_u32 s6, s6, s13")
        a("v_and_b32 v12, 1, v0")
        a("v_and_b32 v13, 48, v0")
        a("v_lshrrev_b32 v4, 1, v13")
        a("v_lshl_add_u32 v4, v12, 10, v4")
        a("s_lshr_b32 m0, s7, 2")
        a(f"s_mov_b32 s54, {512*6144}")
        a("s_mov_b32 s55, 0x20000")
        a("s_lshl_b32 s8, s60, 12")
        a("s_lshl_b32 s15, s3, 10")
        a("s_add_u32 s8, s8, s15")
        a("s_lshl_b32 s15, s61, 7")
        a("s_add_u32 s8, s8, s15")
        a(f"s_add_u32 s8, s8, {HA}")
        a(f"s_add_u32 s62, s8, {ALOC}")
        a("s_waitcnt lgkmcnt(0)")
        a("s_mov_b64 s[48:49], s[16:17]")
        a("s_mov_b64 s[52:53], s[36:37]")
        a("buffer_load_dwordx4 v[24:27], v6, s[48:51], 0 offen")
        a("buffer_load_dwordx4 v[28:31], v6, s[48:51], 0 offen offset:1024")
        self.exec16(3)
        a("buffer_load_dwordx2 v[20:21], v4, s[48:51], s6 offen")
        a("s_mov_b64 exec, -1")
        for i in range(2):
            a(f"buffer_load_dwordx4 v2, s[52:55], s9 offen {wf} lds")
            a(f"buffer_load_dwordx4 v2, s[52:55], s9 offen offset:1024 {wf} lds")
            if i == 0:
                a("s_add_u32 m0, m0, 2048")
                a(f"s_add_u32 s9, s9, {8*6144}")
        a("s_mov_b64 exec, 1")
        a("buffer_load_dword v238, v6, s[40:43], s62 offen sc1")
        a("s_mov_b64 exec, -1")
        a("s_load_dword s14, s[40:41], 0")
        mr0 = 0
        self.traddr128(8, None, 1, 3, grp_sh=11, n=1)
        a("v_xor_b32 v8, s13, v8")
        a("v_mul_u32_u24 v6, 144, v12")
        a("v_add_u32 v6, v6, v13")
        a(f"v_add_u32 v6, {SC}, v6")
        a("v_lshlrev_b32 v7, 4, v12")
        a("v_lshl_add_u32 v13, v13, 1, v7")
        a("s_cmp_eq_u32 s61, 0")
        a("s_cselect_b32 s9, 1.0, 0")
        for i in range(4): a(f"v_mov_b32 v{44+i}, s9")
        a("s_mov_b32 s9, 0x3f803f80")
        a("v_lshlrev_b32 v7, 7, v12")
        a(f"s_waitcnt vmcnt({5+mr0})")
        for b in range(2):
            a(f"v_dot2_f32_bf16 v{48+b}, v{24+4*b}, s9, 0")
            a(f"v_dot2_f32_bf16 v{50+b}, v{24+4*b}, v{24+4*b}, 0")
        for i in range(1, 4):
            for b in range(2):
                a(f"v_dot2_f32_bf16 v{48+b}, v{24+4*b+i}, s9, v{48+b}")
                a(f"v_dot2_f32_bf16 v{50+b}, v{24+4*b+i}, v{24+4*b+i}, v{50+b}")
        a("v_permlane32_swap_b32 v48, v49")
        a("v_permlane32_swap_b32 v50, v51")
        a("v_add_f32 v48, v48, v49")
        a("v_add_f32 v50, v50, v51")
        a("v_permlane16_swap_b32 v48, v50")
        a("v_add_f32 v48, v48, v50")
        self.row_sum(48)
        a("ds_bpermute_b32 v50, v7, v48")
        a("ds_bpermute_b32 v51, v7, v48 offset:64")
        a(f"v_mov_b32 v52, {f32(1e-5)}")
        a("s_waitcnt lgkmcnt(0)")
        self.tag()
        a(f"v_mul_f32 v50, {f32(1/512)}, v50")
        a(f"v_fmamk_f32 v51, v51, {f32(1/512)}, v52")
        a("v_fma_f32 v51, -v50, v50, v51")
        a("v_rsq_f32 v51, v51")
        self.unpack(20, 16, 2)
        for i in range(4): a(f"v_sub_f32 v{16+i}, v{16+i}, v50")
        for i in range(4): a(f"v_mul_f32 v{16+i}, v{16+i}, v51")
        a("v_mov_b32 v58, s14")
        a("v_mov_b32 v59, s14")
        a(f"s_waitcnt vmcnt({1+mr0})")
        a("s_barrier")
        self.stamp(1)
        for ks in range(2):
            a(f"ds_read_b128 v[{32+4*ks}:{35+4*ks}], v6 offset:{64*ks}")
            for seg in range(2): self.tr(64 + 8 * ks + 4 * seg, 8, W1 + 8192 * ks + 1024 * seg, 4096)
        a("s_waitcnt lgkmcnt(5)")
        self.mfma(40, 64, 32, True)
        self.mfma(44, 68, 32, False)
        a("s_waitcnt lgkmcnt(0)")
        self.mfma(40, 72, 36, False)
        self.mfma(44, 76, 36, False)
        self.exec16(3)
        for k in range(2): a(f"v_pk_fma_f32 v[{40+2*k}:{41+2*k}], v[{16+2*k}:{17+2*k}], v[{44+2*k}:{45+2*k}], v[{40+2*k}:{41+2*k}]")
        a("v_cvt_pk_bf16_f32 v56, v40, v41")
        a("v_cvt_pk_bf16_f32 v57, v42, v43")
        a("buffer_store_dwordx4 v[56:59], v13, s[40:43], s62 offen")
        a("buffer_store_dwordx4 v[56:59], v13, s[40:43], s8 offen sc1")
        a("s_mov_b64 exec, -1")
        self.stamp(3)
        a("s_barrier")

    def mr_issue(self, v, srd):
        a, wf = self.a, self.wf
        L = self.lab("Lmr")
        a(f"s_mul_i32 s9, s61, {64*6144}")
        a("s_lshl_b32 s15, s60, 9")
        a("s_add_u32 s9, s9, s15")
        a("s_lshl_b32 s15, s3, 7")
        a("s_add_u32 s9, s9, s15")
        a("s_add_u32 s9, s9, 2048")
        a("s_mov_b32 m0, s63")
        a("s_add_u32 s15, s63, 8192")
        a.label(L)
        a(f"buffer_load_dwordx4 v{v}, s[{srd}:{srd+3}], s9 offen {wf} lds")
        a("s_add_u32 m0, m0, 1024")
        a(f"s_add_u32 s9, s9, {8*6144}")
        a("s_cmp_lt_u32 m0, s15")
        a(f"s_cbranch_scc1 {L}")
    def mr_compute(self, sc, younger):
        a = self.a
        self.traddr128(8, "s63", 5, 6)
        a("v_and_b32 v5, 1, v0")
        a("v_and_b32 v6, 48, v0")
        a("v_mul_u32_u24 v7, 144, v5")
        a("v_add_u32 v7, v7, v6")
        a(f"v_add_u32 v7, {sc}, v7")
        a("v_lshlrev_b32 v5, 4, v5")
        a("v_lshl_add_u32 v5, v6, 1, v5")
        for ks in range(2): a(f"ds_read_b128 v[{32+4*ks}:{35+4*ks}], v7 offset:{64*ks}")
        a("s_lshl_b32 s9, s60, 14")
        a("s_lshl_b32 s15, s3, 12")
        a("s_add_u32 s9, s9, s15")
        a("s_lshl_b32 s15, s61, 7")
        a("s_add_u32 s9, s9, s15")
        a(f"s_add_u32 s9, s9, {HP}")
        a(f"s_waitcnt vmcnt({younger})")
        a("s_setprio 3")
        for ks in range(2):
            for t in range(4): self.tr(64 + 16 * ks + 4 * t, 8 + t, 4096 * ks, 2048)
        a("s_waitcnt lgkmcnt(0)")
        for ks in range(2):
            for t in range(4): self.mfma(40 + 4 * t, 64 + 16 * ks + 4 * t, 32 + 4 * ks, ks == 0)
        self.exec16(3)
        for t in range(4):
            a(f"v_cvt_pk_bf16_f32 v{40+4*t}, v{40+4*t}, v{41+4*t}")
            a(f"v_cvt_pk_bf16_f32 v{41+4*t}, v{42+4*t}, v{43+4*t}")
            a(f"v_mov_b32 v{42+4*t}, s14")
        for t in range(4): a(f"buffer_store_dwordx4 v[{40+4*t}:{43+4*t}], v5, s[40:43], s9 offen offset:{1024*t} sc1")
        a("s_mov_b64 exec, -1")
        a("s_setprio 0")
        self.stamp(11)
    def rdy_publish(self, vb, jreg):
        a = self.a
        for i in range(4): a(f"v_mov_b32 v{vb+i}, s14")
        a(f"v_mov_b32 v{vb+4}, 0")
        a(f"s_lshl_b32 s15, {jreg}, 4")
        a(f"s_add_u32 s15, s15, {RDY}")
        a("s_mov_b64 exec, 1")
        a(f"buffer_store_dwordx4 v[{vb}:{vb+3}], v{vb+4}, s[40:43], s15 offen sc1")
        a("s_mov_b64 exec, -1")
    def rdy_load(self):
        self.a("buffer_load_dword v237, v229, s[40:43], s27 offen sc1")
    def rdy_check(self):
        a = self.a
        L = self.lab("Lok")
        a("v_cmp_ne_u32 vcc, s14, v237")
        a(f"s_cbranch_vccz {L}")
        self.poll(["buffer_load_dword v237, v229, s[40:43], s27 offen sc1"], [(*self.TAGBAD, 237)], sleep=2)
        a.label(L)

    def g_index(self):
        a = self.a
        a("s_lshr_b32 s26, s4, 1")
        a("s_mul_i32 s26, s26, 14")
        a("s_and_b32 s15, s4, 1")
        a("s_lshl_b32 s13, s15, 3")
        a("s_add_u32 s26, s26, s13")
        a("s_add_u32 s26, s26, s5")
        a("s_lshl_b32 s15, s15, 1")
        a("s_sub_u32 s15, 8, s15")
        a("s_cmp_ge_u32 s5, s15")

    def tw_main(self):
        a = self.a
        self.stamp(1)
        a("v_lshlrev_b32 v22, 2, v8")
        a("v_lshrrev_b32 v23, 5, v0")
        a("v_lshl_add_u32 v22, v23, 1, v22")
        a("v_and_b32 v23, 16, v0")
        a("v_lshl_add_u32 v22, v23, 3, v22")
        a("s_mul_i32 s13, s3, 272")
        a(f"s_add_u32 s13, s13, {QB}")
        a("v_add_u32 v22, s13, v22")
        a("v_xor_b32 v3, v8, v1")
        a("v_lshlrev_b32 v3, 4, v3")
        a("v_lshl_add_u32 v3, v8, 8, v3")
        a("v_add_u32 v8, s7, v3")
        a("v_xor_b32 v9, 64, v8")
        a("v_xor_b32 v10, 0x80, v8")
        a("v_xor_b32 v11, 0xc0, v8")
        for t in range(4):
            for ks in range(4):
                r = 64 + 16 * t + 4 * ks
                a(f"ds_read_b128 v[{r}:{r+3}], v{8+ks} offset:{4096*t}")
        a("s_lshl_b32 s8, s3, 6")
        self.traddr256(12, 2, VB, 3, 5, first="s8")
        a("v_mul_u32_u24 v20, 272, v5")
        a("v_lshl_add_u32 v20, v1, 4, v20")
        a(f"v_add_u32 v20, {QB}, v20")
        a("v_lshlrev_b32 v14, 6, v5")
        a("v_lshl_add_u32 v14, v1, 4, v14")
        a(f"v_add_u32 v14, {PB}, v14")
        a("s_lshl_b32 s9, s3, 9")
        a("v_add_u32 v15, s9, v14")
        a("v_lshlrev_b32 v16, 4, v5")
        a(f"v_add_u32 v16, {MX}, v16")
        a("s_lshl_b32 s9, s3, 2")
        a("v_add_u32 v17, s9, v16")
        a("v_lshlrev_b32 v18, 8, v5")
        a("v_lshl_add_u32 v18, v1, 4, v18")
        a("v_lshlrev_b32 v19, 2, v5")
        a("s_lshl_b32 s6, s4, 4")
        a("s_add_u32 s6, s6, s5")
        a("s_lshl_b32 s9, s6, 10")
        a("s_add_u32 s8, s8, s9")
        a(f"s_add_u32 s8, s8, {HC}")
        a("s_lshl_b32 s52, s6, 7")
        a(f"s_add_u32 s52, s52, {HL}")
        a(f"s_add_u32 s53, s8, {LOC}")
        a(f"s_add_u32 s54, s52, {LOC}")
        a(f"s_mov_b32 s10, {f32(CSC)}")
        a("s_lshl_b64 s[58:59], 1, s3")
        a("v_lshlrev_b32 v232, 6, v5")
        a(f"v_add_u32 v232, {LS}, v232")
        a("s_lshl_b32 s9, s3, 4")
        a("v_lshl_add_u32 v233, v1, 2, s9")
        a("v_add_u32 v233, v233, v232")
        def vr(k):
            for t in range(2): self.tr(128 + 8 * k + 4 * t, 12 + t, 8192 * k, 4096)
        def xrow(op, r):
            a(f"v_mov_b32 v225, v{r}")
            a(f"v_permlane16_swap_b32 v{r}, v225")
            a(f"{op} v{r}, v{r}, v225")
            a(f"v_mov_b32 v225, v{r}")
            a(f"v_permlane32_swap_b32 v{r}, v225")
            a(f"{op} v{r}, v{r}, v225")
        a(f"s_mov_b32 s12, {SPIN}")
        a("s_barrier")
        for k in (0, 2, 4, 6): vr(k)
        a("s_branch LTq1")
        a.label("LTq0")
        if self.o.get("qsleep", 0): a(f"s_sleep {self.o['qsleep']}")
        self.qfetch()
        a.label("LTq1")
        a("s_waitcnt vmcnt(1)")
        self.unpack(192, 24, 4)
        a("s_waitcnt vmcnt(0)")
        self.unpack(196, 32, 4)
        for k in range(4): a(f"v_pk_add_f32 v[{24+2*k}:{25+2*k}], v[{24+2*k}:{25+2*k}], v[{32+2*k}:{33+2*k}]")
        for i in range(4): a(f"v_permlane32_swap_b32 v{24+i}, v{28+i}")
        for k in range(2): a(f"v_pk_add_f32 v[{24+2*k}:{25+2*k}], v[{24+2*k}:{25+2*k}], v[{28+2*k}:{29+2*k}]")
        for i in range(2): a(f"v_permlane16_swap_b32 v{24+i}, v{26+i}")
        a("v_pk_add_f32 v[24:25], v[24:25], v[26:27]")
        a("v_cmp_u_f32 vcc, v24, v25")
        a("v_cvt_pk_bf16_f32 v24, v24, v25")
        a("s_cbranch_vccz LTq2")
        a("s_sub_u32 s12, s12, 1")
        a("s_cbranch_scc0 LTq0")
        a.label("LTq2")
        self.stamp(2)
        a("ds_write_b16 v22, v24")
        a("ds_write_b16_d16_hi v22, v24 offset:64")
        a("s_waitcnt lgkmcnt(0)")
        a("s_barrier")
        for ks in range(4): a(f"ds_read_b128 v[{208+4*ks}:{211+4*ks}], v20 offset:{64*ks}")
        self.stamp(3)
        for ks in range(4):
            a(f"s_waitcnt lgkmcnt({3+3*ks})")
            for t in range(4): self.mfma(40 + 4 * t, 64 + 16 * t + 4 * ks, 208 + 4 * ks, ks == 0)
            vr(1 + 2 * ks)
        a("v_max3_f32 v224, v40, v41, v42")
        a("v_max3_f32 v225, v43, v44, v45")
        a("v_max3_f32 v226, v46, v47, v48")
        a("v_max3_f32 v227, v49, v50, v51")
        a("v_max3_f32 v228, v52, v53, v54")
        a("v_max3_f32 v224, v224, v225, v226")
        a("v_max3_f32 v227, v227, v228, v55")
        a("v_max_f32 v224, v224, v227")
        xrow("v_max_f32", 224)
        a(f"v_mul_f32 v230, {f32(-CSC)}, v224")
        for i in range(8): a(f"v_pk_fma_f32 v[{40+2*i}:{41+2*i}], v[{40+2*i}:{41+2*i}], s[10:11], v[230:231] op_sel_hi:[1,0,0]")
        a("ds_write_b32 v17, v230")
        self.exec16(15)
        for blk in range(2):
            for i in range(8): a(f"v_exp_f32 v{40+8*blk+i}, v{40+8*blk+i}")
            for i in range(4): a(f"v_cvt_pk_bf16_f32 v{56+4*blk+i}, v{40+8*blk+2*i}, v{41+8*blk+2*i}")
            a(f"ds_write_b128 v15, v[{56+4*blk}:{59+4*blk}] offset:{256*blk}")
        for i in range(4): a(f"v_pk_add_f32 v[{40+2*i}:{41+2*i}], v[{40+2*i}:{41+2*i}], v[{48+2*i}:{49+2*i}]")
        for i in range(2): a(f"v_pk_add_f32 v[{40+2*i}:{41+2*i}], v[{40+2*i}:{41+2*i}], v[{44+2*i}:{45+2*i}]")
        a("v_pk_add_f32 v[40:41], v[40:41], v[42:43]")
        a("v_add_f32 v231, v40, v41")
        a("ds_write_b32 v233, v231")
        a("s_mov_b64 exec, -1")
        a("s_waitcnt lgkmcnt(0)")
        a("s_barrier")
        self.stamp(4)
        for k in range(2): a(f"ds_read_b128 v[{64+4*k}:{67+4*k}], v14 offset:{256*k}")
        a("ds_read_b128 v[24:27], v16")
        for w in range(4): a(f"ds_read_b128 v[{96+4*w}:{99+4*w}], v232 offset:{16*w}")
        for k in range(2, 8): a(f"ds_read_b128 v[{64+4*k}:{67+4*k}], v14 offset:{256*k}")
        def pv(k):
            for t in range(2): self.mfma(192 + 8 * (k >> 1) + 4 * t, 128 + 8 * k + 4 * t, 64 + 4 * k, (k & 1) == 0)
        a("s_waitcnt lgkmcnt(12)")
        pv(0)
        a("s_waitcnt lgkmcnt(10)")
        pv(1)
        a("v_min3_f32 v32, v24, v25, v26")
        a("v_min_f32 v32, v32, v27")
        a("s_waitcnt lgkmcnt(5)")
        pv(2)
        for k in range(2): a(f"v_pk_add_f32 v[{24+2*k}:{25+2*k}], v[32:33], v[{24+2*k}:{25+2*k}] op_sel_hi:[0,1] neg_lo:[0,1] neg_hi:[0,1]")
        for w in range(4): a(f"v_pk_add_f32 v[{96+4*w}:{97+4*w}], v[{96+4*w}:{97+4*w}], v[{98+4*w}:{99+4*w}]")
        a("s_waitcnt lgkmcnt(4)")
        pv(3)
        for w in range(4): a(f"v_exp_f32 v{24+w}, v{24+w}")
        a("s_waitcnt lgkmcnt(3)")
        pv(4)
        a("v_pk_mul_f32 v[96:97], v[96:97], v[24:25] op_sel_hi:[1,0]")
        a("v_pk_fma_f32 v[96:97], v[100:101], v[24:25], v[96:97] op_sel:[0,1,0] op_sel_hi:[1,1,1]")
        a("v_pk_fma_f32 v[96:97], v[104:105], v[26:27], v[96:97] op_sel_hi:[1,0,1]")
        a("v_pk_fma_f32 v[96:97], v[108:109], v[26:27], v[96:97] op_sel:[0,1,0] op_sel_hi:[1,1,1]")
        a("v_add_f32 v33, v96, v97")
        a("s_waitcnt lgkmcnt(2)")
        pv(5)
        a("v_rcp_f32 v36, v33")
        a("v_log_f32 v37, v33")
        for k in range(2): a(f"v_pk_mul_f32 v[{24+2*k}:{25+2*k}], v[{24+2*k}:{25+2*k}], v[36:37] op_sel_hi:[1,0]")
        a("s_waitcnt lgkmcnt(1)")
        pv(6)
        for i in range(4): a(f"v_pk_mul_f32 v[{192+2*i}:{193+2*i}], v[{192+2*i}:{193+2*i}], v[24:25] op_sel_hi:[1,0]")
        a("s_waitcnt lgkmcnt(0)")
        pv(7)
        for i in range(4): a(f"v_pk_fma_f32 v[{192+2*i}:{193+2*i}], v[{200+2*i}:{201+2*i}], v[24:25], v[{192+2*i}:{193+2*i}] op_sel:[0,1,0] op_sel_hi:[1,1,1]")
        for i in range(4): a(f"v_pk_fma_f32 v[{192+2*i}:{193+2*i}], v[{208+2*i}:{209+2*i}], v[26:27], v[{192+2*i}:{193+2*i}] op_sel_hi:[1,0,1]")
        a("v_sub_f32 v37, v37, v32")
        self.exec16(15)
        for i in range(4): a(f"v_pk_fma_f32 v[{192+2*i}:{193+2*i}], v[{216+2*i}:{217+2*i}], v[26:27], v[{192+2*i}:{193+2*i}] op_sel:[0,1,0] op_sel_hi:[1,1,1]")
        for i in range(4): a(f"v_cvt_pk_bf16_f32 v{200+i}, v{192+2*i}, v{193+2*i}")
        if self.o.get("loc", 1): a("buffer_store_dwordx4 v[200:203], v18, s[40:43], s53 offen")
        a("s_mov_b64 exec, s[58:59]")
        if self.o.get("loc", 1): a("buffer_store_dword v37, v19, s[40:43], s54 offen")
        a("buffer_store_dword v37, v19, s[40:43], s52 offen sc1")
        self.exec16(15)
        a("buffer_store_dwordx4 v[200:203], v18, s[40:43], s8 offen sc1")
        a("s_mov_b64 exec, -1")
        self.stamp(5)
        if self.o.get("nored"): self.end()
        a("s_cmp_lt_u32 s5, 4")
        a("s_cbranch_scc0 LTWe")
        a("s_cmp_eq_u32 s3, 1")
        a("s_cbranch_scc0 LTWe")
        a("s_lshl_b32 s6, s4, 2")
        a("s_add_u32 s6, s6, s5")
        self.srd(44, 16, 2048)
        self.srd(48, 38, 2048)
        a("v_bfe_u32 v2, v0, 2, 1")
        a("v_and_b32 v3, 3, v0")
        a("v_lshlrev_b32 v4, 3, v3")
        a("v_lshl_add_u32 v5, v2, 10, v4")
        a("v_lshlrev_b32 v6, 1, v5")
        a("v_lshrrev_b32 v8, 3, v0")
        a("v_lshl_add_u32 v7, v8, 12, v6")
        a("v_lshlrev_b32 v9, 4, v0")
        a("s_lshl_b32 s7, s6, 5")
        a("s_lshl_b32 s8, s6, 6")
        a(f"s_add_u32 s9, s8, {HD}")
        a(f"s_add_u32 s52, s8, {HM}")
        a(f"s_add_u32 s53, s8, {HM+3*4096}")
        a(f"s_mul_i32 s54, s6, {HFS}")
        a(f"s_add_u32 s54, s54, {HF}")
        a("s_add_u32 s55, s54, 4096")
        a("buffer_load_dwordx2 v[10:11], v5, s[44:47], s7 offen")
        a(f"s_mov_b32 s27, {RDY}")
        self.poll([f"buffer_load_dword v{40+i}, v9, s[40:43], s27 offen offset:{1024*i} sc1" for i in range(4)]
                  + ["buffer_load_dwordx4 v[12:15], v6, s[40:43], s52 offen sc1", "buffer_load_dwordx4 v[16:19], v6, s[40:43], s53 offen sc1"],
                  [(*self.TAGBAD, 40 + i) for i in range(4)] + [(*self.TAGBAD, 14), (*self.TAGBAD, 18)], sleep=2)
        self.poll(["buffer_load_dwordx4 v[24:27], v7, s[40:43], s9 offen sc1"], [(*self.POISON, 24)], sleep=2)
        self.stamp(6)
        a("s_cmp_eq_u32 s6, 0")
        a("s_cbranch_scc0 LTWn")
        a("s_mov_b64 exec, 1")
        a("v_mov_b32 v20, s14")
        a("v_mov_b32 v21, 0")
        a(f"buffer_store_dword v20, v21, s[40:43], 0 offen offset:{EPOCH} sc1")
        a("s_mov_b64 exec, -1")
        a.label("LTWn")
        red8 = self.red8
        red8(24)
        self.unpack(10, 28, 2)
        self.unpack(12, 32, 2)
        self.unpack(16, 36, 2)
        for i in range(4): a(f"v_fmac_f32 v{28+i}, v{24+i}, v{32+i}")
        self.sum_poll([f"buffer_load_dwordx4 v[{64+4*i}:{67+4*i}], v9, s[40:43], s{54+(i>>2)} offen offset:{1024*(i&3)} sc1" for i in range(7)], 64, 56)
        self.stamp(7)
        red8(56)
        for i in range(4): a(f"v_fmac_f32 v{28+i}, v{56+i}, v{36+i}")
        a("v_cvt_pk_bf16_f32 v10, v28, v29")
        a("v_cvt_pk_bf16_f32 v11, v30, v31")
        a("s_mov_b64 exec, 0xff")
        a("buffer_store_dwordx2 v[10:11], v5, s[48:51], s7 offen " + ["", "sc1", "nt", "sc0 sc1"][self.o.get("oflag", 0)])
        self.stamp(8)
        if self.o.get("padto"):
            a("s_cmp_eq_u32 s6, 0")
            a("s_cbranch_scc0 LTWe")
        if self.o.get("padto"):
            a(f"s_mov_b32 s100, {self.o['padto']}")
            if self.o.get("amp"):
                a("s_waitcnt lgkmcnt(0)")
                a(f"s_sub_u32 s98, s{64+2*self.o['amp']}, s96")
                a("s_mul_i32 s98, s98, 10")
                a("s_add_u32 s100, s100, s98")
            a.label("Lpad")
            a("s_memrealtime s[98:99]")
            a("s_waitcnt lgkmcnt(0)")
            a("s_sub_u32 s98, s98, s96")
            a("s_cmp_lt_u32 s98, s100")
            a("s_cbranch_scc1 Lpad")
        a.label("LTWe")
        self.end()

    def ww_main(self):
        a, wf = self.a, self.wf
        a.label("LWHp")
        a("s_branch LWH2")
        a.label("LW2")
        self.stamp(1)
        self.traddr256(8, 8, "s7", 3, 5)
        a("s_lshr_b32 s58, s7, 2")
        a(f"s_add_u32 s58, s58, {GA}")
        a("v_and_b32 v3, 7, v0")
        a("v_lshlrev_b32 v3, 7, v3")
        a("v_lshl_add_u32 v3, v1, 5, v3")
        a("v_bfe_u32 v4, v0, 3, 1")
        a("v_lshl_add_u32 v16, v4, 4, v3")
        a("v_add_u32 v16, s58, v16")
        a("v_add_u32 v20, 2048, v16")
        a("v_add_u32 v22, 8, v16")
        a("v_lshlrev_b32 v21, 4, v0")
        a("s_lshl_b32 s8, s4, 12")
        a(f"s_add_u32 s8, s8, {HA}")
        a(f"s_add_u32 s6, s8, {ALOC if self.o.get('aloc', 1) else 0}")
        a("s_mov_b32 s9, s6")
        a("v_lshrrev_b32 v3, 5, v0")
        a("v_and_b32 v4, 31, v0")
        a(f"v_add_u32 v18, {RED}, v21")
        a("v_lshlrev_b32 v19, 3, v4")
        a("v_lshl_add_u32 v19, v3, 13, v19")
        a("s_lshl_b32 s55, s52, 14")
        a("s_lshl_b32 s15, s3, 11")
        a("s_add_u32 s55, s55, s15")
        a("s_lshl_b32 s15, s4, 8")
        a("s_add_u32 s55, s55, s15")
        a(f"s_add_u32 s55, s55, {HB}")
        a("s_lshl_b32 s52, s52, 9")
        self.voff128(2, 1024, 3, 4)
        a("s_lshl_b32 s53, s4, 19")
        a("s_lshl_b32 s15, s3, 17")
        a("s_add_u32 s53, s53, s15")
        a("s_lshr_b32 s15, s52, 2")
        a("s_add_u32 s53, s53, s15")
        a(f"s_add_u32 s59, s7, {WO+16384}")
        a("s_mov_b64 s[48:49], s[24:25]")
        a(f"s_mov_b32 s50, {4096*1024}")
        a("s_mov_b32 m0, s58")
        def agather():
            for t in range(4): a(f"buffer_load_dwordx4 v21, s[40:43], s9 offen offset:{1024*t} sc1 lds")
        a("s_barrier")
        a(f"s_waitcnt vmcnt({self.o.get('apre', 2)})")
        agather()
        a("s_waitcnt vmcnt(4) lgkmcnt(0)")
        self.tag()
        self.stamp(2)
        for ks in range(2):
            for t in range(8): self.tr(64 + 32 * ks + 4 * t, 8 + t, 8192 * ks, 4096)
        a(f"s_mov_b32 s12, {SPIN*4 | 15}")
        a("s_branch LWa1")
        a.label("LWa0")
        a("s_and_b32 s13, s12, 15")
        a("s_cselect_b32 s9, s6, s8")
        agather()
        a.label("LWa1")
        a("s_waitcnt vmcnt(0)")
        a("ds_read2st64_b32 v[32:33], v22 offset0:0 offset1:4")
        a("ds_read2st64_b32 v[34:35], v22 offset0:8 offset1:12")
        a("ds_read2_b64 v[24:27], v16 offset0:0 offset1:128")
        a("ds_read2_b64 v[28:31], v20 offset0:0 offset1:128")
        a("s_waitcnt lgkmcnt(2)")
        for i in range(4): a(f"v_xor_b32 v{32+i}, s14, v{32+i}")
        a("v_or3_b32 v32, v32, v33, v34")
        a("v_or_b32 v32, v32, v35")
        a("v_cmp_ne_u32 vcc, 0, v32")
        a("s_waitcnt lgkmcnt(0)")
        a("s_cbranch_vccz LWa2")
        a("s_sub_u32 s12, s12, 1")
        a("s_cbranch_scc0 LWa0")
        a.label("LWa2")
        self.stamp(3)
        if self.diag:
            a(f"s_sub_u32 s84, {SPIN*4 | 15}, s12")
            a("s_mul_i32 s84, s84, 100")
            a("s_add_u32 s84, s84, s64")
        for ks in range(2):
            for t in range(8): self.mfma(128 + 4 * t, 24 + 4 * ks, 64 + 32 * ks + 4 * t, ks == 0)
        for t in range(8): a(f"v_pk_add_f32 v[{128+4*t}:{129+4*t}], v[{128+4*t}:{129+4*t}], v[{130+4*t}:{131+4*t}]")
        for t in range(8): a(f"v_add_f32 v{128+4*t}, v{128+4*t}, v{129+4*t}")
        for k in range(4): a(f"v_permlane16_swap_b32 v{128+8*k}, v{132+8*k}")
        for k in range(4): a(f"v_add_f32 v{128+8*k}, v{128+8*k}, v{132+8*k}")
        def red4(stride):
            for w in range(4): a(f"ds_read_b128 v[{24+4*w}:{27+4*w}], v18 offset:{stride*w}")
            a("s_waitcnt lgkmcnt(2)")
            for k in range(2): a(f"v_pk_add_f32 v[{24+2*k}:{25+2*k}], v[{24+2*k}:{25+2*k}], v[{28+2*k}:{29+2*k}]")
            a("s_waitcnt lgkmcnt(0)")
            for k in range(2): a(f"v_pk_add_f32 v[{32+2*k}:{33+2*k}], v[{32+2*k}:{33+2*k}], v[{36+2*k}:{37+2*k}]")
            for k in range(2): a(f"v_pk_add_f32 v[{24+2*k}:{25+2*k}], v[{24+2*k}:{25+2*k}], v[{32+2*k}:{33+2*k}]")
        a("v_cvt_pk_bf16_f32 v56, v128, v136")
        a("v_cvt_pk_bf16_f32 v57, v144, v152")
        a("buffer_store_dwordx2 v[56:57], v19, s[40:43], s55 offen sc1")
        self.stamp(4)
        self.voff128(12, 6144, 3, 4)
        a("s_mov_b64 s[44:45], s[36:37]")
        a(f"s_mov_b32 s46, {512*6144}")
        a("s_mov_b32 s60, s4")
        a("s_and_b32 s61, s5, 7")
        a("s_mov_b32 s63, s7")
        a(f"s_add_u32 s62, s7, {WO}")
        a("s_barrier")
        def wo(n):
            L = self.lab("LWd")
            a("s_mov_b32 m0, s62")
            a(f"s_add_u32 s62, s62, {1024*n}" if n else "s_mov_b32 s62, s59")
            a.label(L)
            a(f"buffer_load_dwordx4 v2, s[48:51], s53 offen {wf} lds")
            a("s_add_u32 m0, m0, 1024")
            a("s_add_u32 s53, s53, 8192")
            a("s_cmp_lt_u32 m0, s62")
            a(f"s_cbranch_scc1 {L}")
        a("s_cmp_eq_u32 s61, 3")
        a("s_cbranch_scc1 LWm")
        self.mr_issue(12, 44)
        oe = self.o.get("oearly", 8)
        if oe: wo(oe)
        self.mr_compute(SCW, oe)
        a.label("LWm")
        wo(0)
        a("v_and_b32 v3, 15, v0")
        a("v_lshlrev_b32 v13, 7, v3")
        a("s_lshl_b32 s9, s4, 14")
        a(f"s_add_u32 s9, s9, {HC}")
        a("s_lshl_b32 s8, s4, 11")
        a(f"s_add_u32 s8, s8, {HL}")
        self.stamp(5)
        a("v_lshlrev_b32 v229, 4, v3")
        a("s_lshl_b32 s27, s4, 8")
        a(f"s_add_u32 s27, s27, {RDY}")
        self.rdy_load()
        a("s_lshl_b32 s15, s3, 8")
        a("s_add_u32 s9, s9, s15")
        a("s_lshl_b32 s15, s3, 2")
        a("s_add_u32 s8, s8, s15")
        a(f"s_add_u32 s15, s7, {WO}")
        self.traddr128(8, "s15", 3, 4)
        a("v_and_b32 v3, 15, v0")
        a("v_xor_b32 v12, v3, v1")
        a("v_lshlrev_b32 v12, 4, v12")
        a("v_lshl_add_u32 v4, v1, 10, v12")
        for i in range(1, 4):
            a(f"v_xor_b32 v{4+i}, {64*i}, v4")
            a(f"v_add_u32 v{4+i}, {3072*i}, v{4+i}")
        a("v_lshl_add_u32 v20, v3, 8, v12")
        a("v_add_u32 v20, s58, v20")
        for i in range(1, 4): a(f"v_xor_b32 v{20+i}, {64*i}, v20")
        a("v_lshlrev_b32 v14, 4, v1")
        a("v_lshrrev_b32 v12, 5, v0")
        a("v_lshlrev_b32 v15, 8, v12")
        a("v_and_b32 v12, 31, v0")
        a("v_lshl_add_u32 v15, v12, 2, v15")
        a("s_lshl_b32 s15, s3, 9")
        a(f"s_add_u32 s15, s15, {RED}")
        a("v_add_u32 v15, s15, v15")
        a("v_lshlrev_b32 v17, 4, v3")
        a("v_lshl_add_u32 v17, v1, 11, v17")
        a("s_lshl_b32 s55, s4, 12")
        a("s_lshr_b32 s15, s52, 1")
        a("s_add_u32 s55, s55, s15")
        a(f"s_add_u32 s55, s55, {HD}")
        a("s_mov_b32 m0, s58")
        a("v_mov_b32 v128, 0")
        a("s_waitcnt vmcnt(0)")
        self.stamp(6)
        for ks in range(4):
            for t in range(4): self.tr(64 + 16 * ks + 4 * t, 8 + t, 4096 * ks, 2048)
        self.rdy_check()
        def cbody():
            a("s_mov_b64 exec, 0xffff")
            a("buffer_load_dword v128, v13, s[40:43], s8 offen sc1")
            a("s_mov_b64 exec, -1")
            for i in range(4): a(f"buffer_load_dwordx4 v{4+i}, s[40:43], s9 offen offset:{1024*i} sc1 lds")
            a("s_waitcnt vmcnt(0)")
            for ks in range(4): a(f"ds_read_b128 v[{24+4*ks}:{27+4*ks}], v{20+ks}")
            a("s_waitcnt lgkmcnt(0)")
            a("v_max3_u32 v129, v24, v28, v128")
            a("v_max3_u32 v129, v129, v32, v36")
            a("v_cmp_eq_u32 s[10:11], -1, v129")
        self.stamp(9)
        self.spin(cbody, alt=([8, 9], LOC, self.o.get("every", 16)) if self.o.get("loc", 1) else None)
        self.stamp(7)
        D8 = ("quad_perm:[1,0,3,2]", "quad_perm:[2,3,0,1]", "row_half_mirror")
        def mf(ks):
            for t in range(4): self.mfma(40 + 4 * t, 24 + 4 * ks, 64 + 16 * ks + 4 * t, ks == 0)
        mf(0)
        a("v_mov_b32 v129, v128")
        for m in D8: a(f"v_max_f32_dpp v129, v129, v129 {m} row_mask:0xf bank_mask:0xf")
        a("v_sub_f32 v128, v128, v129")
        a("v_exp_f32 v128, v128")
        mf(1)
        a("v_mov_b32 v129, v128")
        for m in D8: a(f"v_add_f32_dpp v129, v129, v129 {m} row_mask:0xf bank_mask:0xf")
        a("v_rcp_f32 v129, v129")
        a("v_mul_f32 v128, v128, v129")
        for r in range(4): a(f"ds_bpermute_b32 v{130+r}, v14, v128 offset:{4*r}")
        mf(2)
        mf(3)
        a("s_waitcnt lgkmcnt(0)")
        for t in range(4): a(f"v_pk_mul_f32 v[{40+4*t}:{41+4*t}], v[{40+4*t}:{41+4*t}], v[130:131]")
        for t in range(4): a(f"v_pk_fma_f32 v[{40+4*t}:{41+4*t}], v[{42+4*t}:{43+4*t}], v[132:133], v[{40+4*t}:{41+4*t}]")
        for t in range(4): a(f"v_add_f32 v{40+4*t}, v{40+4*t}, v{41+4*t}")
        for k in range(2): a(f"v_permlane16_swap_b32 v{40+8*k}, v{44+8*k}")
        for k in range(2): a(f"v_add_f32 v{40+8*k}, v{40+8*k}, v{44+8*k}")
        for k in range(2): a(f"ds_write_b32 v15, v{40+8*k} offset:{128*k}")
        a("s_waitcnt lgkmcnt(0)")
        a("s_barrier")
        a("s_cmp_eq_u32 s3, 0")
        a("s_cbranch_scc0 LWe")
        a("s_mov_b32 exec_hi, 0")
        red4(512)
        a("buffer_store_dwordx4 v[24:27], v17, s[40:43], s55 offen sc1")
        self.stamp(8)
        a.label("LWe")
        self.end()

    def g_role(self):
        a, wf = self.a, self.wf
        self.g_index()
        a("s_cbranch_scc1 LM")
        a(f"s_add_u32 s7, s7, {GU}")
        a("s_mov_b32 s53, s26")
        for i in range(4): a(f"v_mov_b32 v{32+i}, -1")
        a("v_lshrrev_b32 v3, 3, v0")
        a(f"v_mul_u32_u24 v3, {HFS}, v3")
        a("v_and_b32 v4, 7, v0")
        a("v_lshl_add_u32 v3, v4, 4, v3")
        a(f"s_mul_i32 s26, s3, {8*HFS}")
        a("s_lshl_b32 s15, s53, 7")
        a("s_add_u32 s26, s26, s15")
        a(f"s_add_u32 s26, s26, {HF}")
        a("buffer_store_dwordx4 v[32:35], v3, s[40:43], s26 offen sc1")
        a(f"s_and_b32 s52, s53, {self.o.get('rot', 0)}")
        a("s_cmp_eq_u32 s52, 0")
        a("s_cselect_b64 s[44:45], s[28:29], s[30:31]")
        a("s_cselect_b64 s[48:49], s[30:31], s[28:29]")
        a(f"s_mov_b32 s46, {512*3584}")
        a(f"s_mov_b32 s50, {512*3584}")
        a("s_lshl_b32 s52, s52, 13")
        a("v_lshrrev_b32 v1, 2, v0")
        a("v_bfe_u32 v2, v0, 4, 1")
        a("v_lshlrev_b32 v2, 1, v2")
        a("v_and_b32 v3, 3, v0")
        a("v_xor_b32 v2, v2, v3")
        a("v_mul_u32_u24 v4, 3584, v1")
        a("v_lshl_add_u32 v2, v2, 4, v4")
        a(f"s_mul_i32 s8, s3, {128*3584}")
        a("s_lshl_b32 s15, s53, 6")
        a("s_add_u32 s8, s8, s15")
        def mat(m, lo=0, hi=8):
            L = self.lab("LGx")
            if lo == 0:
                a("s_add_u32 s58, s7, s52")
                a("s_mov_b32 s59, s8")
            a("s_mov_b32 m0, s58")
            a(f"s_add_u32 s58, s58, {1024*(hi-lo)}")
            a.label(L)
            gf = ["nt", "", "sc1", "sc0"][self.o.get("gflag%d" % m, 0)]
            a(f"buffer_load_dwordx4 v2, s[{44+4*m}:{47+4*m}], s59 offen {gf} lds")
            a("s_add_u32 m0, m0, 1024")
            a(f"s_add_u32 s59, s59, {16*3584}")
            if self.o.get("gcap", 0) and (lo or m): a(f"s_waitcnt vmcnt({self.o['gcap']})")
            a("s_cmp_lt_u32 m0, s58")
            a(f"s_cbranch_scc1 {L}")
            if hi == 8: a("s_xor_b32 s52, s52, 8192")
        a("s_waitcnt vmcnt(0)")
        a("s_barrier")
        a("s_cmp_eq_u32 s3, 0")
        a("s_cbranch_scc0 LGr")
        self.rdy_publish(8, "s2")
        if self.o.get("rwait", 1): a("s_waitcnt vmcnt(0)")
        a.label("LGr")
        if self.o.get("rwait", 1): a("s_barrier")
        self.delay("fdel")
        self.stamp(5)
        mat(0)
        mat(1)
        a("s_mov_b64 s[48:49], s[16:17]")
        a("s_mov_b32 s50, 2048")
        a("v_lshrrev_b32 v4, 5, v0")
        a("v_and_b32 v5, 31, v0")
        a("v_lshlrev_b32 v19, 3, v5")
        a("v_lshl_add_u32 v19, v4, 10, v19")
        a("s_lshl_b32 s15, s3, 8")
        a("buffer_load_dwordx2 v[24:25], v19, s[48:51], s15 offen")
        a("s_lshl_b32 s9, s53, 15")
        a("s_add_u32 s9, s9, s15")
        a("v_lshlrev_b32 v229, 4, v0")
        a(f"s_mov_b32 s27, {RDY+2048}")
        self.rdy_load()
        a("v_lshlrev_b32 v18, 1, v19")
        a("s_lshl_b32 s15, s3, 9")
        for k in range(3): a(f"s_add_u32 s{28+k}, s15, {HM+4096*k}")
        mloads = [f"buffer_load_dwordx4 v[{160+4*k}:{163+4*k}], v18, s[40:43], s{28+k} offen sc1" for k in range(3)]
        for l in mloads: a(l)
        for k in range(8): a(f"s_add_u32 s{16+k}, s15, {HD+4096*k}")
        self.voff256(6, 10, 8, 9)
        a("s_mov_b64 s[44:45], s[32:33]")
        a(f"s_mov_b32 s46, {1792*1024}")
        a("s_lshl_b32 s6, s3, 13")
        a(f"s_add_u32 s6, s6, {DWN}")
        a("s_mov_b32 m0, s6")
        a("s_add_u32 s13, s6, 8192")
        a.label("LGd2")
        for i in range(2):
            a(f"buffer_load_dwordx4 v{6+i}, s[44:47], s9 offen {wf} lds")
            a("s_add_u32 m0, m0, 1024")
            a("s_add_u32 s9, s9, 4096")
        a("s_cmp_lt_u32 m0, s13")
        a("s_cbranch_scc1 LGd2")
        a("v_bfe_u32 v8, v0, 4, 1")
        a("v_lshlrev_b32 v8, 5, v8")
        a("v_lshl_add_u32 v8, v1, 6, v8")
        a("v_lshl_add_u32 v8, v3, 3, v8")
        a("v_add_u32 v8, s7, v8")
        a("v_xor_b32 v9, 32, v8")
        self.traddr256(10, 8, "s6", 6, 7)
        a("v_mul_u32_u24 v20, 816, v4")
        a("v_lshrrev_b32 v6, 3, v5")
        a("v_lshl_add_u32 v20, v6, 6, v20")
        a("v_lshl_add_u32 v20, v3, 4, v20")
        a("v_bfe_u32 v6, v0, 2, 1")
        a("v_lshl_add_u32 v20, v6, 3, v20")
        a(f"s_add_u32 s15, s7, {AROW_O}")
        a("v_add_u32 v20, s15, v20")
        a("v_mul_u32_u24 v22, 816, v6")
        a("v_and_b32 v7, 48, v0")
        a("v_add3_u32 v22, v22, v7, s15")
        a("s_mov_b32 s59, 272")
        a("v_and_b32 v21, 1, v0")
        a("v_mul_u32_u24 v21, 272, v21")
        a("v_add3_u32 v21, v21, v22, s59")
        a("v_lshl_add_u32 v227, v6, 6, v7")
        a(f"v_mul_u32_u24 v228, {HFS}, v4")
        a("v_lshl_add_u32 v228, v5, 2, v228")
        a("v_lshlrev_b32 v2, 4, v0")
        a("s_lshl_b32 s15, s3, 10")
        a("v_add_u32 v23, s15, v2")
        a("v_lshlrev_b32 v224, 3, v0")
        a("s_lshl_b32 s15, s3, 9")
        a("v_add_u32 v225, s15, v224")
        a("s_lshl_b32 s15, s3, 2")
        a("v_add_u32 v226, s15, v7")
        a("v_and_b32 v231, 16, v0")
        a("v_lshlrev_b32 v231, 1, v231")
        a(f"v_mov_b32 v232, {f32(1e-5)}")
        a("s_waitcnt vmcnt(8)")
        self.stamp(6)
        for m in range(2):
            for ks in range(4):
                for t in range(2): self.tr(64 + 32 * m + 8 * ks + 4 * t, 8 + t, 8192 * m + 2048 * ks, 1024)
        self.unpack(24, 28, 2)
        self.rdy_check()
        for k in range(3): a(f"v_xor_b32 v{163+4*k}, s14, v{162+4*k}")
        a("v_or3_b32 v163, v163, v167, v171")
        a("v_cmp_ne_u32 vcc, 0, v163")
        a("s_cbranch_vccz LGmo")
        self.poll(mloads, [(*self.TAGBAD, 162 + 4 * k) for k in range(3)], sleep=1)
        a.label("LGmo")
        self.stamp(4)
        a("s_waitcnt lgkmcnt(0)")
        a("ds_write_b64 v20, v[164:165] offset:544")
        self.unpack(168, 196, 2)
        for i in range(4): a(f"v_add_f32 v{196+i}, 1.0, v{196+i}")
        a("v_cvt_pk_bf16_f32 v36, v196, v197")
        a("v_cvt_pk_bf16_f32 v37, v198, v199")
        a("ds_write_b64 v20, v[36:37] offset:272")
        for ks in range(4): a(f"ds_read_b128 v[{172+4*ks}:{175+4*ks}], v21 offset:{64*ks}")
        self.unpack(160, 192, 2)
        self.unpack(36, 196, 2)
        for i in range(4): a(f"v_mul_f32 v{200+i}, v{28+i}, v{196+i}")
        for i in range(4): a(f"v_mul_f32 v{196+i}, v{192+i}, v{196+i}")
        def mf(ks):
            for m in range(2):
                for t in range(2): self.mfma(40 + 8 * m + 4 * t, 172 + 4 * ks, 64 + 32 * m + 8 * ks + 4 * t, ks == 0)
        a("s_waitcnt lgkmcnt(0)")
        for ks in range(4): mf(ks)
        for m in range(2):
            for r in range(2): a(f"v_permlane32_swap_b32 v{40+8*m+r}, v{44+8*m+r}")
        a("v_mov_b32 v42, v48")
        a("v_mov_b32 v43, v49")
        a(f"ds_write_b128 v23, v[40:43] offset:{CSR}")
        a("s_waitcnt vmcnt(0)")
        for dt in range(8): self.tr(128 + 4 * dt, 10 + dt, 0, 4096)
        self.stamp(10)
        self.guard(1100)
        self.sum_poll([f"buffer_load_dwordx4 v[{160+4*k}:{163+4*k}], v18, s[40:43], s{16+k} offen sc1" for k in range(8)], 160, 56)
        self.stamp(7)
        for k in range(2): a(f"v_pk_fma_f32 v[{200+2*k}:{201+2*k}], v[{56+2*k}:{57+2*k}], v[{196+2*k}:{197+2*k}], v[{200+2*k}:{201+2*k}]")
        a("v_cvt_pk_bf16_f32 v32, v200, v201")
        a("v_cvt_pk_bf16_f32 v33, v202, v203")
        a("ds_write_b64 v20, v[32:33]")
        for ks in range(4): a(f"ds_read_b128 v[{172+4*ks}:{175+4*ks}], v22 offset:{64*ks}")
        for k in range(2): a(f"v_pk_fma_f32 v[{28+2*k}:{29+2*k}], v[{56+2*k}:{57+2*k}], v[{192+2*k}:{193+2*k}], v[{28+2*k}:{29+2*k}]")
        a("v_pk_add_f32 v[190:191], v[28:29], v[30:31]")
        a("v_pk_mul_f32 v[28:29], v[28:29], v[28:29]")
        a("v_pk_fma_f32 v[28:29], v[30:31], v[30:31], v[28:29]")
        a("v_add_f32 v190, v190, v191")
        a("v_add_f32 v191, v28, v29")
        a("v_permlane16_swap_b32 v190, v191")
        a("s_waitcnt lgkmcnt(3)")
        mf(0)
        a("v_add_f32 v190, v190, v191")
        a("s_waitcnt lgkmcnt(2)")
        mf(1)
        self.row_sum(190)
        a("s_waitcnt lgkmcnt(0)")
        mf(2)
        a(f"ds_write_b32 v226, v190 offset:{STAT}")
        mf(3)
        a("v_permlane32_swap_b32 v40, v44")
        a("v_permlane32_swap_b32 v48, v52")
        a("v_mov_b32 v41, v48")
        a(f"ds_write_b64 v225, v[40:41] offset:{REC}")
        a("s_waitcnt lgkmcnt(0)")
        a("s_barrier")
        self.stamp(8)
        a(f"ds_read_b128 v[24:27], v231 offset:{STAT}")
        a(f"ds_read_b128 v[28:31], v231 offset:{STAT+16}")
        for w in range(4): a(f"ds_read_b128 v[{208+4*w}:{211+4*w}], v2 offset:{CSR+1024*w}")
        for w in range(4): a(f"ds_read_b64 v[{64+2*w}:{65+2*w}], v224 offset:{REC+512*w}")
        a("s_waitcnt lgkmcnt(8)")
        a("v_pk_add_f32 v[24:25], v[24:25], v[26:27]")
        a("v_pk_add_f32 v[28:29], v[28:29], v[30:31]")
        a("v_add_f32 v24, v24, v25")
        a("v_add_f32 v28, v28, v29")
        a(f"v_mul_f32 v24, {f32(1/512)}, v24")
        a(f"v_fmamk_f32 v28, v28, {f32(1/512)}, v232")
        a("v_fma_f32 v28, -v24, v24, v28")
        a("v_rsq_f32 v28, v28")
        a("s_waitcnt lgkmcnt(4)")
        for k in range(2):
            a(f"v_pk_add_f32 v[{208+2*k}:{209+2*k}], v[{208+2*k}:{209+2*k}], v[{212+2*k}:{213+2*k}]")
            a(f"v_pk_add_f32 v[{216+2*k}:{217+2*k}], v[{216+2*k}:{217+2*k}], v[{220+2*k}:{221+2*k}]")
        for k in range(2): a(f"v_pk_add_f32 v[{208+2*k}:{209+2*k}], v[{208+2*k}:{209+2*k}], v[{216+2*k}:{217+2*k}]")
        a("s_waitcnt lgkmcnt(0)")
        a("v_pk_add_f32 v[64:65], v[64:65], v[66:67]")
        a("v_pk_add_f32 v[68:69], v[68:69], v[70:71]")
        a("v_pk_add_f32 v[64:65], v[64:65], v[68:69]")
        a("v_fma_f32 v64, -v24, v208, v64")
        a("v_fma_f32 v65, -v24, v210, v65")
        a("v_fma_f32 v64, v64, v28, v209")
        a("v_fma_f32 v65, v65, v28, v211")
        a("v_max_f32 v64, 0, v64")
        a("v_mul_f32 v64, v64, v65")
        a("v_mov_b32_dpp v65, v64 quad_perm:[1,0,3,2] row_mask:0xf bank_mask:0xf")
        a("v_cvt_pk_bf16_f32 v64, v64, v65")
        for i, off in enumerate((0, 8, 128, 136)): a(f"ds_bpermute_b32 v{24+i}, v227, v64 offset:{off}")
        a("s_waitcnt lgkmcnt(0)")
        for dt in range(8): self.mfma(160 + 4 * dt, 24, 128 + 4 * dt, True)
        for k in range(4):
            a(f"v_permlane32_swap_b32 v{160+8*k}, v{164+8*k}")
            a(f"buffer_store_dword v{160+8*k}, v228, s[40:43], s26 offen sc1")
            if k < 3: a(f"s_add_u32 s26, s26, {2*HFS}")
        self.stamp(9)
        self.end()

    def small_helpers(self):
        a = self.a
        a.label("LGH2")
        a("s_setprio 3")
        self.tag()
        self.g_index()
        a("s_cbranch_scc1 LGH3")
        a("s_endpgm")
        a.label("LGH3")
        a("s_waitcnt vmcnt(0)")
        a("v_mov_b32 v28, v30")
        a("v_mov_b32 v29, v31")
        self.silu_run()
        a("s_waitcnt lgkmcnt(0)")
        self.rdy_publish(8, "s2")
        a("s_endpgm")
        a.label("LWH2")
        a("s_setprio 3")
        for i in range(4): a(f"v_mov_b32 v{32+i}, -1")
        a("v_bfe_u32 v3, v0, 4, 1")
        a("v_lshlrev_b32 v3, 11, v3")
        a("v_and_b32 v4, 15, v0")
        a("v_lshl_add_u32 v3, v4, 4, v3")
        a("s_lshl_b32 s15, s4, 12")
        a("s_and_b32 s6, s5, 7")
        a("s_lshl_b32 s6, s6, 8")
        a("s_add_u32 s15, s15, s6")
        a(f"s_add_u32 s15, s15, {HD}")
        a("v_lshrrev_b32 v6, 4, v0")
        a("v_lshlrev_b32 v6, 11, v6")
        a("v_lshl_add_u32 v6, v4, 4, v6")
        a("s_lshl_b32 s8, s6, 6")
        a("s_lshl_b32 s9, s4, 8")
        a("s_add_u32 s8, s8, s9")
        a(f"s_add_u32 s8, s8, {HB}")
        a("s_add_u32 s9, s8, 8192")
        self.c_voff(4)
        a("s_lshr_b32 s6, s6, 1")
        a("s_mov_b32 s50, 2048")
        a("s_waitcnt lgkmcnt(0)")
        a("s_load_dword s14, s[40:41], 0")
        a("s_mov_b64 s[48:49], s[34:35]")
        a("buffer_load_dwordx2 v[28:29], v4, s[48:51], s6 offen")
        a("buffer_store_dwordx4 v[32:35], v6, s[40:43], s8 offen sc1")
        a("buffer_store_dwordx4 v[32:35], v6, s[40:43], s9 offen sc1")
        a("s_mov_b32 exec_hi, 0")
        a("buffer_store_dwordx4 v[32:35], v3, s[40:43], s15 offen sc1")
        a("s_mov_b64 exec, -1")
        self.silu_frag(SCW)
        a("s_waitcnt vmcnt(0) lgkmcnt(0)")
        self.tag()
        self.rdy_publish(8, "s2")
        a("s_barrier")
        self.silu_run()
        a("s_waitcnt lgkmcnt(0)")
        a("s_endpgm")
        a.label("LTH")
        a("s_setprio 3")
        for i in range(4): a(f"v_mov_b32 v{40+i}, -1")
        a("v_lshlrev_b32 v2, 4, v0")
        a("s_lshl_b32 s6, s4, 4")
        a("s_add_u32 s6, s6, s5")
        a("s_lshl_b32 s54, s6, 10")
        a(f"s_add_u32 s54, s54, {HC}")
        a("s_lshl_b32 s55, s6, 7")
        a(f"s_add_u32 s55, s55, {HL}")
        a("s_waitcnt lgkmcnt(0)")
        a("s_load_dword s14, s[40:41], 0")
        a("buffer_store_dwordx4 v[40:43], v2, s[40:43], s54 offen sc1")
        a(f"s_add_u32 s54, s54, {LOC}")
        a("buffer_store_dwordx4 v[40:43], v2, s[40:43], s54 offen sc1")
        a("s_mov_b64 exec, 0xff")
        a("buffer_store_dwordx4 v[40:43], v2, s[40:43], s55 offen sc1")
        a(f"s_add_u32 s55, s55, {LOC}")
        a("buffer_store_dwordx4 v[40:43], v2, s[40:43], s55 offen sc1")
        a("s_mov_b64 exec, -1")
        a("s_waitcnt vmcnt(0) lgkmcnt(0)")
        self.tag()
        self.rdy_publish(44, "s6")
        a("buffer_load_dwordx4 v[232:235], v2, s[40:43], s54 offen sc1")
        a("s_mov_b64 exec, 1")
        a("buffer_load_dword v236, v2, s[40:43], s55 offen sc1")
        a("s_endpgm")

    def m_role(self):
        a = self.a
        a.label("LM")
        if self.o.get("nom"): self.end()
        a("s_and_b32 s6, s4, 6")
        a("s_add_u32 s6, s6, s5")
        a("s_sub_u32 s6, s6, 6")
        a("s_mov_b32 s60, s6")
        a("s_mov_b32 s61, 3")
        a(f"s_add_u32 s63, s7, {GU}")
        self.mr_issue(2, 52)
        a("s_barrier")
        self.mr_compute(SC, 0)
        a("s_lshl_b32 s6, s6, 2")
        a("s_add_u32 s6, s6, s3")
        a("s_lshl_b32 s8, s6, 12")
        a(f"s_add_u32 s8, s8, {HP}")
        a("s_lshr_b32 s9, s6, 3")
        a("s_lshl_b32 s9, s9, 12")
        a("s_and_b32 s6, s6, 7")
        a("s_lshl_b32 s6, s6, 8")
        a("s_add_u32 s9, s9, s6")
        a(f"s_add_u32 s9, s9, {HM}")
        a("v_lshlrev_b32 v2, 4, v0")
        a("v_and_b32 v3, 1, v0")
        a("v_lshlrev_b32 v3, 11, v3")
        a("v_bfe_u32 v4, v0, 1, 2")
        a("v_lshl_add_u32 v3, v4, 4, v3")
        a("v_and_b32 v4, 48, v0")
        a("v_lshl_add_u32 v3, v4, 2, v3")
        self.poll([f"buffer_load_dwordx4 v[{40+4*t}:{43+4*t}], v2, s[40:43], s8 offen offset:{1024*t} sc1" for t in range(4)],
                  [(*self.TAGBAD, 42 + 4 * t) for t in range(4)], sleep=1,
                  after=lambda t: self.unpack(40 + 4 * t, 64 + 4 * t, 2))
        self.stamp(6)
        for i in range(8): a(f"v_permlane32_swap_b32 v{64+i}, v{72+i}")
        for k in range(4): a(f"v_pk_add_f32 v[{64+2*k}:{65+2*k}], v[{64+2*k}:{65+2*k}], v[{72+2*k}:{73+2*k}]")
        for i in range(4): a(f"v_permlane16_swap_b32 v{64+i}, v{68+i}")
        for k in range(2): a(f"v_pk_add_f32 v[{64+2*k}:{65+2*k}], v[{64+2*k}:{65+2*k}], v[{68+2*k}:{69+2*k}]")
        for i in range(4): a(f"v_add_f32_dpp v{64+i}, v{64+i}, v{64+i} row_ror:8 row_mask:0xf bank_mask:0xf")
        a("v_cvt_pk_bf16_f32 v40, v64, v65")
        a("v_cvt_pk_bf16_f32 v41, v66, v67")
        self.exec16(0xff)
        a("buffer_store_dwordx4 v[40:43], v3, s[40:43], s9 offen sc1")
        self.stamp(7)
        self.end()

    def red8(self, r):
        a = self.a
        for i in range(4): a(f"v_add_f32_dpp v{r+i}, v{r+i}, v{r+i} row_ror:8 row_mask:0xf bank_mask:0xf")
        for sw in ("16", "32"):
            for i in range(4): a(f"v_mov_b32 v{60+i}, v{r+i}")
            for i in range(4): a(f"v_permlane{sw}_swap_b32 v{r+i}, v{60+i}")
            for i in range(4): a(f"v_add_f32 v{r+i}, v{r+i}, v{60+i}")

    def build(self):
        self.prologue()
        self.ww_early()
        if self.o.get("tnear"): self.tw_early()
        self.g_early()
        self.g_role()
        self.guard(3300, fall=False)
        self.ww_main()
        self.guard(3300, fall=False)
        if not self.o.get("tnear"): self.tw_early()
        self.tw_issue()
        self.tw_main()
        self.m_role()
        self.small_helpers()
        if self.diag:
            self.a.label("Ldump")
            self.dump_stamps()
        self.a.label("Lexit")
        self.a("s_endpgm")
        self.a.label("Lcode_end")
        body = self.a.finish()
        head = open("cdna_kernels/" + NAME + ".s.ref").read().split("; Override launch geometry")[0]
        return head + f"""; Generated by gen/gen_kernel.py (hand-written generator): one persistent launch, 256 workgroups x 5 waves.
; @launch grid=(256,1,1) block=(320,1,1) lds={LDS_BYTES}
.amdgcn_target "amdgcn-amd-amdhsa--gfx950"
.text
.globl {KNAME}
.p2align 12
.type {KNAME},@function
{KNAME}:
{body}
.section .rodata,"a"
.p2align 6
.amdhsa_kernel {KNAME}
  .amdhsa_next_free_vgpr 240
  .amdhsa_next_free_sgpr 102
  .amdhsa_accum_offset 240
  .amdhsa_group_segment_fixed_size 0
  .amdhsa_kernarg_size 112
  .amdhsa_user_sgpr_count 2
  .amdhsa_user_sgpr_kernarg_segment_ptr 1
  .amdhsa_system_sgpr_workgroup_id_x 1
.end_amdhsa_kernel
"""

if __name__ == "__main__":
    import argparse
    ap = argparse.ArgumentParser()
    ap.add_argument("-o", default="cdna_kernels/" + NAME + ".s")
    ap.add_argument("--diag", action="store_true")
    ap.add_argument("--wflag", default="nt")
    ap.add_argument("--opt", action="append", default=[])
    args = ap.parse_args()
    opts = {}
    for o in args.opt:
        k, _, v = o.partition("=")
        opts[k] = int(v) if v else 1
    open(args.o, "w").write(Gen(args.diag, args.wflag, opts).build())
    print("wrote", args.o)
```

```python
import sys, struct
from asmlib import Asm

NAME = "adaLN_cond__sliding_block_cached__glu_gated_reglu__decode"
KNAME = NAME + "_kernel"

def f32(x): return "0x%08x" % struct.unpack("<I", struct.pack("<f", x))[0]

EPOCH = 0x0
RDY = 0x1000
HM = 0x4000
HA = 0x8000
ALOC = 0x8000
HB = 0x140000
HD = 0x20000
HL = HD + 0x8000
HC = HL + 0x4000
LOC = 0x24000
HF = HC + 0x20000 + LOC
HFS = 7168
HP = 0xD0000
STAMP = 0x100000
WS_SIZE = 0x200000
LDS_BYTES = 151552
KB, VB, PB, MX, LS, QB = 0, 65536, 131072, 133120, 133248, 133632
WQ, WO, GA, RED, SCW = 0, 65536, 131072, 147456, 149504
W1, GU, DWN, MRG, SC = 0, 16384, 81920, 114688, 147456
REC, CSR, STAT = W1, W1 + 4096, W1 + 8192
AROW_O = 4096

LOG2E = 1.4426950408889634
CSC = (128 ** -0.5) * LOG2E
SPIN = 20000
import os
if os.environ.get('SPIN'): SPIN = int(os.environ['SPIN'])
MFMA = "v_mfma_f32_16x16x32_bf16"

class Gen:
    POISON = ("v_cmp_eq_u32", "-1")
    TAGBAD = ("v_cmp_ne_u32", "s14")

    def __init__(self, diag=False, wflag="nt", opts=None):
        self.a = Asm()
        self.diag = diag
        self.wf = wflag
        self.o = opts or {}
        self.nlab = 0
    def lab(self, p="L"):
        self.nlab += 1
        return f"{p}{self.nlab}"
    def stamp(self, k):
        if self.diag or self.o.get("amp") == k: self.a(f"s_memrealtime s[{64+2*k}:{65+2*k}]")
    def dump_max(self):
        a = self.a
        a("s_load_dwordx2 s[44:45], s[0:1], 96")
        a("s_mov_b32 s46, 256")
        a("s_mov_b32 s47, 0x20000")
        a("s_mov_b64 exec, 1")
        a("v_mov_b32 v1, 0")
        a("s_waitcnt lgkmcnt(0)")
        def put(slot, reg):
            a(f"v_mov_b32 v4, {reg}")
            a(f"buffer_atomic_umax v4, v1, s[44:47], 0 offen offset:{4*slot} sc1")
        a("s_not_b32 s60, s64")
        put(0, "s60"); put(1, "s64")
        a("s_lshr_b32 s5, s2, 3")
        a("s_cmp_ge_u32 s5, 24")
        a("s_cbranch_scc1 LdG")
        a("s_cmp_ge_u32 s5, 16")
        a("s_cbranch_scc1 LdW")
        for slot, k in ((6, 3), (7, 9), (8, 5), (15, 8)): put(slot, f"s{64+2*k}")
        a("s_endpgm")
        a.label("LdW")
        for slot, k in ((3, 2), (4, 3), (5, 4), (9, 6), (10, 7), (11, 8)): put(slot, f"s{64+2*k}")
        a("s_endpgm")
        a.label("LdG")
        for slot, k in ((2, 3), (12, 6), (13, 7), (14, 9)): put(slot, f"s{64+2*k}")
    def dump_gamp(self):
        a = self.a
        k, lo, hi = self.o["gamp"] // 10000, self.o["gamp"] // 100 % 100, self.o["gamp"] % 100
        a("s_waitcnt lgkmcnt(0)")
        a("s_lshr_b32 s5, s2, 3")
        a(f"s_sub_u32 s60, s5, {lo}")
        a(f"s_cmp_lt_u32 s60, {hi-lo}")
        a(f"s_cselect_b32 s61, s{64+2*k}, 0")
        a("s_cmp_eq_u32 s61, 0")
        a("s_cselect_b32 s61, s64, s61")
        a("s_lshl_b32 s60, s2, 2")
        a("s_add_u32 s60, s60, s3")
        a("s_lshl_b32 s60, s60, 2")
        a(f"s_add_u32 s60, s60, {STAMP}")
        a("s_mov_b64 exec, 1")
        a("v_mov_b32 v1, 0")
        a("v_mov_b32 v4, s64")
        a("v_mov_b32 v5, s61")
        a("buffer_store_dword v4, v1, s[40:43], s60 offen sc1")
        a("s_add_u32 s60, s60, 4096")
        a("buffer_store_dword v5, v1, s[40:43], s60 offen sc1")
        a("s_mov_b64 exec, -1")
        a("s_cmp_eq_u32 s2, 0")
        a("s_cbranch_scc0 Lexit")
        a("s_cmp_eq_u32 s3, 1")
        a("s_cbranch_scc0 Lexit")
        def until(reg):
            L = self.lab("Lu")
            a.label(L)
            a("s_memrealtime s[98:99]")
            a("s_waitcnt lgkmcnt(0)")
            a("s_sub_u32 s98, s98, s64")
            a(f"s_cmp_lt_u32 s98, {reg}")
            a(f"s_cbranch_scc1 {L}")
        until(3000)
        a("v_lshlrev_b32 v2, 4, v0")
        a(f"s_mov_b32 s60, {STAMP}")
        a(f"s_mov_b32 s61, {STAMP+4096}")
        for i in range(4):
            a(f"buffer_load_dwordx4 v[{8+4*i}:{11+4*i}], v2, s[40:43], s60 offen offset:{1024*i} sc1")
            a(f"buffer_load_dwordx4 v[{24+4*i}:{27+4*i}], v2, s[40:43], s61 offen offset:{1024*i} sc1")
        a("s_waitcnt vmcnt(0)")
        for i in range(32): a(f"v_subrev_u32 v{8+i}, s64, v{8+i}")
        for i in range(1, 16):
            a(f"v_min_i32 v8, v8, v{8+i}")
            a(f"v_max_i32 v24, v24, v{24+i}")
        a("s_mov_b32 s60, 0")
        a("s_mov_b32 s61, 0")
        for l in range(64):
            a(f"v_readlane_b32 s62, v8, {l}")
            a(f"v_readlane_b32 s63, v24, {l}")
            a("s_min_i32 s60, s60, s62")
            a("s_max_i32 s61, s61, s63")
        a("s_sub_u32 s61, s61, s60")
        a("s_mul_i32 s61, s61, 40")
        a("s_add_u32 s100, s61, 4000")
        until("s100")
    def dump_stamps(self):
        if not self.diag: return
        if self.o.get("gamp") is not None: return self.dump_gamp()
        if self.o.get("dmax"): return self.dump_max()
        a = self.a
        a("s_waitcnt lgkmcnt(0)")
        a("s_mov_b64 exec, 1")
        a("s_mul_i32 s60, s2, 5")
        a("s_add_u32 s60, s60, s3")
        a("s_lshl_b32 s60, s60, 6")
        a(f"s_add_u32 s60, s60, {STAMP}")
        a("v_mov_b32 v1, 0")
        for q in range(3):
            for i in range(4):
                a(f"v_mov_b32 v{4+i}, s{64+2*(4*q+i)}")
            a(f"buffer_store_dwordx4 v[4:7], v1, s[40:43], s60 offen offset:{16*q}")
            a("s_nop 1")
    def end(self, helper=False):
        self.a("s_branch Ldump" if self.diag and (not helper or self.o.get("hdump")) else "s_endpgm")
    def delay(self, key):
        n = self.o.get(key, 0)
        if not n: return
        a = self.a
        L = self.lab("Ld")
        a.label(L)
        a("s_memrealtime s[98:99]")
        a("s_waitcnt lgkmcnt(0)")
        a("s_sub_u32 s98, s98, s64")
        a(f"s_cmp_lt_u32 s98, {n}")
        a(f"s_cbranch_scc1 {L}")
    def guard(self, n, fall=True):
        L = self.lab("Lg")
        if fall: self.a(f"s_branch {L}")
        self.a(f".p2align 12, , {n}")
        self.a.label(L)
    def srd(self, d, p, size):
        a = self.a
        a(f"s_mov_b64 s[{d}:{d+1}], s[{p}:{p+1}]")
        a(f"s_mov_b32 s{d+2}, {size}")
        a(f"s_mov_b32 s{d+3}, 0x20000")
    def tag(self):
        self.a("s_mul_i32 s14, s14, 0x9E3779B1")
        self.a("s_add_u32 s14, s14, 0x7F4A7C15")
    def exec16(self, m):
        self.a(f"s_mov_b32 exec_lo, {(m << 16 | m):#x}")
        self.a(f"s_mov_b32 exec_hi, {(m << 16 | m):#x}")
    def poll(self, loads, checks, sleep=0, after=None):
        a = self.a
        L = self.lab("Lp"); D = self.lab("Lpd")
        n = len(loads)
        a(f"s_mov_b32 s12, {SPIN}")
        a.label(L)
        for l in loads: a(l)
        for i, (op, opd, r) in enumerate(checks):
            a(f"s_waitcnt vmcnt({n-1-i})")
            if i == 0:
                a(f"{op} s[10:11], {opd}, v{r}")
            else:
                a(f"{op} vcc, {opd}, v{r}")
                a("s_or_b64 s[10:11], s[10:11], vcc")
            if after: after(i)
        a("s_cmp_eq_u64 s[10:11], 0")
        a(f"s_cbranch_scc1 {D}")
        if sleep: a(f"s_sleep {sleep}")
        a("s_sub_u32 s12, s12, 1")
        a(f"s_cbranch_scc0 {L}")
        a.label(D)
    def spin(self, body, sleep=0, alt=None):
        a = self.a
        L = self.lab("Lp"); D = self.lab("Lpd")
        n = SPIN
        if alt:
            sregs, delta, every = alt
            for i, r in enumerate(sregs):
                a(f"s_mov_b32 s{96+2*i}, s{r}")
                a(f"s_add_u32 s{97+2*i}, s{r}, {delta}")
                a(f"s_mov_b32 s{r}, s{97+2*i}")
            n = SPIN * 4 | (every - 1)
        a(f"s_mov_b32 s12, {n}")
        a.label(L)
        body()
        a("s_cmp_eq_u64 s[10:11], 0")
        a(f"s_cbranch_scc1 {D}")
        if sleep: a(f"s_sleep {sleep}")
        if alt:
            a(f"s_and_b32 s13, s12, {every-1}")
            for i, r in enumerate(sregs): a(f"s_cselect_b32 s{r}, s{97+2*i}, s{96+2*i}")
        a("s_sub_u32 s12, s12, 1")
        a(f"s_cbranch_scc0 {L}")
        a.label(D)
    def ssent(self, soff, offs, cnt=13):
        a = self.a
        L = self.lab("Ls"); D = self.lab("Lsd")
        a(f"s_mov_b32 s{cnt}, {SPIN}")
        a.label(L)
        for k, o in enumerate(offs): a(f"s_load_dword s{88+k}, s[40:41], s{soff} offset:{o} glc")
        a("s_waitcnt lgkmcnt(0)")
        for k in range(len(offs)): a(f"s_xor_b32 s{88+k}, s{88+k}, s14")
        for k in range(1, len(offs)): a(f"s_or_b32 s88, s88, s{88+k}")
        a(f"s_cbranch_scc0 {D}")
        a(f"s_sub_u32 s{cnt}, s{cnt}, 1")
        a(f"s_cbranch_scc0 {L}")
        a.label(D)
    def sum_poll(self, loads, base, acc):
        a = self.a
        n = len(loads)
        def body():
            for l in loads: a(l)
            for i in range(1, n):
                a(f"s_waitcnt vmcnt({n-1-i})")
                src = base if i == 1 else acc
                for k in range(2): a(f"v_pk_add_f32 v[{acc+2*k}:{acc+1+2*k}], v[{src+2*k}:{src+1+2*k}], v[{base+4*i+2*k}:{base+1+4*i+2*k}]")
            a(f"v_cmp_u_f32 s[10:11], v{acc}, v{acc+1}")
            a(f"v_cmp_u_f32 vcc, v{acc+2}, v{acc+3}")
            a("s_or_b64 s[10:11], s[10:11], vcc")
        self.spin(body)
    def silu(self, regs, tmp):
        a = self.a
        for i, r in enumerate(regs): a(f"v_mul_f32 v{tmp+i}, {f32(-LOG2E)}, v{r}")
        for i, r in enumerate(regs): a(f"v_exp_f32 v{tmp+i}, v{tmp+i}")
        for i, r in enumerate(regs): a(f"v_add_f32 v{tmp+i}, 1.0, v{tmp+i}")
        for i, r in enumerate(regs): a(f"v_rcp_f32 v{tmp+i}, v{tmp+i}")
        for i, r in enumerate(regs): a(f"v_mul_f32 v{r}, v{r}, v{tmp+i}")
    def unpack(self, src, dst, n):
        for i in range(n):
            self.a(f"v_lshlrev_b32 v{dst+2*i}, 16, v{src+i}")
            self.a(f"v_and_b32 v{dst+2*i+1}, 0xffff0000, v{src+i}")
    def row_sum(self, r):
        for m in ("quad_perm:[1,0,3,2]", "quad_perm:[2,3,0,1]", "row_half_mirror", "row_mirror"):
            self.a(f"v_add_f32_dpp v{r}, v{r}, v{r} {m} row_mask:0xf bank_mask:0xf")
    def silu_frag(self, base):
        a = self.a
        a("v_bfe_u32 v10, v0, 4, 1")
        a("v_mul_u32_u24 v5, 144, v10")
        a("v_bfe_u32 v4, v0, 3, 1")
        a("v_lshl_add_u32 v5, v4, 6, v5")
        a("v_and_b32 v4, 3, v0")
        a("v_lshl_add_u32 v5, v4, 4, v5")
        a("v_bfe_u32 v4, v0, 2, 1")
        a("v_lshl_add_u32 v5, v4, 3, v5")
        a(f"v_add_u32 v5, {base}, v5")
    def silu_run(self):
        a = self.a
        self.unpack(28, 16, 2)
        self.silu([16, 17, 18, 19], 24)
        a("v_cvt_pk_bf16_f32 v28, v16, v17")
        a("v_cvt_pk_bf16_f32 v29, v18, v19")
        a("ds_write_b64 v5, v[28:29]")
    def c_voff(self, d):
        a = self.a
        a(f"v_bfe_u32 v{d}, v0, 4, 1")
        a(f"v_lshlrev_b32 v{d}, 10, v{d}")
        a("v_and_b32 v11, 15, v0")
        a(f"v_lshl_add_u32 v{d}, v11, 3, v{d}")
    def mfma(self, d, A, B, first):
        c = "0" if first else f"v[{d}:{d+3}]"
        self.a(f"{MFMA} v[{d}:{d+3}], v[{A}:{A+3}], v[{B}:{B+3}], {c}")
    def tr(self, r, va, off, second):
        self.a(f"ds_read_b64_tr_b16 v[{r}:{r+1}], v{va} offset:{off}")
        self.a(f"ds_read_b64_tr_b16 v[{r+2}:{r+3}], v{va} offset:{off+second}")
    def voff256(self, d, stride_sh, t0, t1):
        a = self.a
        a(f"v_lshrrev_b32 v{t0}, 4, v0")
        a(f"v_and_b32 v{t1}, 15, v0")
        a(f"v_lshlrev_b32 v{d}, 1, v{t0}")
        a(f"v_xor_b32 v{d}, v{t1}, v{d}")
        a(f"v_lshlrev_b32 v{d}, 4, v{d}")
        a(f"v_lshl_add_u32 v{d}, v{t0}, {stride_sh}, v{d}")
        a(f"v_xor_b32 v{d+1}, 0x80, v{d}")
    def voff128(self, d, stride, t0, t1):
        a = self.a
        a(f"v_lshrrev_b32 v{t0}, 3, v0")
        a(f"v_and_b32 v{d}, 6, v{t0}")
        a(f"v_and_b32 v{t1}, 7, v0")
        a(f"v_xor_b32 v{d}, v{d}, v{t1}")
        a(f"v_mul_u32_u24 v{t0}, {stride}, v{t0}")
        a(f"v_lshl_add_u32 v{d}, v{d}, 4, v{t0}")
    def traddr256(self, d, n, base, t0, t1, first=None):
        a = self.a
        a(f"v_lshrrev_b32 v{t0}, 2, v0")
        a(f"v_and_b32 v{d}, 7, v{t0}")
        a(f"v_lshlrev_b32 v{d}, 5, v{d}")
        a(f"v_lshl_add_u32 v{d}, v{t0}, 8, v{d}")
        a(f"v_and_b32 v{t1}, 3, v0")
        a(f"v_lshl_add_u32 v{d}, v{t1}, 3, v{d}")
        if first: a(f"v_xor_b32 v{d}, {first}, v{d}")
        a(f"v_add_u32 v{d}, {base}, v{d}")
        for i in range(1, n): a(f"v_xor_b32 v{d+i}, {32*i}, v{d}")
    def traddr128(self, d, base, t0, t1, grp_sh=10, n=4):
        a = self.a
        a(f"v_bfe_u32 v{t0}, v0, 2, 3")
        a(f"v_bfe_u32 v{d}, v0, 3, 2")
        a(f"v_lshlrev_b32 v{d}, 5, v{d}")
        a(f"v_lshl_add_u32 v{d}, v{t0}, 7, v{d}")
        a(f"v_lshrrev_b32 v{t0}, 5, v0")
        a(f"v_lshl_add_u32 v{d}, v{t0}, {grp_sh}, v{d}")
        a(f"v_and_b32 v{t1}, 3, v0")
        a(f"v_lshl_add_u32 v{d}, v{t1}, 3, v{d}")
        if base is not None: a(f"v_add_u32 v{d}, {base}, v{d}")
        for i in range(1, n): a(f"v_xor_b32 v{d+i}, {32*i}, v{d}")

    def prologue(self):
        a = self.a
        a("s_cmp_ge_u32 s2, 256")
        a("s_cbranch_scc1 Lexit")
        a("s_load_dwordx16 s[16:31], s[0:1], 0")
        a("s_load_dwordx8 s[32:39], s[0:1], 64")
        a("s_load_dwordx2 s[40:41], s[0:1], 104")
        if self.diag:
            for k in range(1, 12): a(f"s_mov_b32 s{64+2*k}, 0")
        self.stamp(0)
        if self.o.get("padto"): a("s_memrealtime s[96:97]")
        a("s_getpc_b64 s[56:57]")
        a.label("Lpc0")
        a("s_lshr_b32 s5, s2, 3")
        a("v_lshrrev_b32 v1, 6, v0")
        a("s_mul_i32 s6, s5, 640")
        a("v_lshl_add_u32 v2, v1, 7, s6")
        a("v_min_u32 v2, Lcode_end-Lpc0-4, v2")
        a("global_load_dword v239, v2, s[56:57]")
        a("v_and_b32 v0, 63, v0")
        a("s_and_b32 s4, s2, 7")
        a("v_readfirstlane_b32 s3, v1")
        a(f"s_mov_b32 s42, {WS_SIZE}")
        a("s_mov_b32 s43, 0x20000")
        a("s_mov_b32 s47, 0x20000")
        a("s_mov_b32 s51, 0x20000")
        a("s_lshl_b32 s7, s3, 14")
        a("s_cmp_ge_u32 s5, 24")
        a("s_cbranch_scc1 LG0")
        a("s_cmp_eq_u32 s3, 4")
        a("s_cbranch_scc1 LH0")
        self.voff256(6, 8, 1, 8)
        a("s_mov_b32 m0, s7")
        a("s_cmp_ge_u32 s5, 16")
        a("s_cbranch_scc0 LT0")

    def tw_early(self):
        a, wf = self.a, self.wf
        a.label("LT0")
        a("s_and_b32 s6, s5, 8")
        a("s_add_u32 s6, s6, s4")
        a("s_lshl_b32 s6, s6, 21")
        a("s_and_b32 s8, s5, 7")
        a("s_lshl_b32 s8, s8, 16")
        a("s_add_u32 s6, s6, s8")
        a("s_add_u32 s6, s6, s7")
        a(f"s_add_u32 s6, s6, {6144*256}")
        a("v_xor_b32 v2, v8, v1")
        a("v_lshlrev_b32 v2, 4, v2")
        a("v_lshl_add_u32 v2, v1, 8, v2")
        a("v_xor_b32 v3, 64, v2")
        a("v_xor_b32 v4, 0x80, v2")
        a("v_xor_b32 v5, 0xc0, v2")
        a("s_mov_b32 s8, s6")
        a("s_add_u32 s9, s6, 16384")
        a("s_mov_b32 s46, 0x2000000")
        a("s_mov_b32 s50, 0x2000000")
        thr = self.o.get("thr", 0)
        thk = self.o.get("thk", 2)
        if thr: a(f"s_add_u32 s10, s6, {4096*thr}")
        a("s_waitcnt lgkmcnt(0)")
        a("s_mov_b64 s[44:45], s[18:19]")
        a("s_mov_b64 s[48:49], s[20:21]")
        a("s_load_dword s14, s[40:41], 0")
        if thr:
            a.label("LTWt")
            for i in range(4):
                a(f"buffer_load_dwordx4 v{2+i}, s[44:47], s8 offen offset:{1024*i} {wf} lds")
                a(f"s_waitcnt vmcnt({thk})")
            a("s_add_u32 m0, m0, 4096")
            a("s_add_u32 s8, s8, 4096")
            a("s_cmp_lt_u32 s8, s10")
            a("s_cbranch_scc1 LTWt")
        cap = self.o.get("cap", 7)
        if thr < 4:
            a.label("LTWk")
            for i in range(4):
                a(f"buffer_load_dwordx4 v{2+i}, s[44:47], s8 offen offset:{1024*i} {wf} lds")
                if cap: a(f"s_waitcnt vmcnt({cap})")
            a("s_add_u32 m0, m0, 4096")
            a("s_add_u32 s8, s8, 4096")
            a("s_cmp_lt_u32 s8, s9")
            a("s_cbranch_scc1 LTWk")
        self.stamp(10)
        if self.o.get("tnear"): a("s_branch LTW1")

    def tw_issue(self):
        a, wf = self.a, self.wf
        cap = self.o.get("vcap", 8)
        if self.o.get("tnear"):
            a.label("LTHp")
            a("s_branch LTH")
            a.label("LTW1")
        a("s_lshl_b32 s55, s4, 14")
        a("s_and_b32 s13, s5, 8")
        a("s_lshl_b32 s13, s13, 10")
        a("s_add_u32 s55, s55, s13")
        a("s_lshl_b32 s13, s3, 11")
        a("s_add_u32 s55, s55, s13")
        a(f"s_add_u32 s55, s55, {HB}")
        a("v_lshlrev_b32 v21, 4, v0")
        a("v_mov_b32 v229, v21")
        a("s_lshl_b32 s27, s4, 7")
        a(f"s_add_u32 s27, s27, {RDY+2048}")
        a(f"s_add_u32 m0, s7, {VB}")
        a("s_mov_b32 s8, s6")
        a("s_waitcnt lgkmcnt(0)")
        self.tag()
        for g in range(4):
            if g == 2:
                a("s_mov_b64 exec, 0xff")
                self.rdy_load()
                a("s_mov_b64 exec, -1")
            for i in range(4):
                a(f"buffer_load_dwordx4 v{6+(i&1)}, s[48:51], s8 offen offset:{1024*i} {wf} lds")
                if cap: a(f"s_waitcnt vmcnt({cap})")
            if g < 3:
                a("s_add_u32 m0, m0, 4096")
                a("s_add_u32 s8, s8, 4096")
        a("s_waitcnt vmcnt(8)")
        a("s_mov_b64 exec, 0xff")
        self.rdy_check()
        a("s_mov_b64 exec, -1")
        self.qfetch()

    def qfetch(self):
        for i in range(2): self.a(f"buffer_load_dwordx4 v[{192+4*i}:{195+4*i}], v21, s[40:43], s55 offen offset:{1024*i} sc1")

    def ww_early(self):
        a, wf = self.a, self.wf
        a.label("LW0")
        if self.o.get("now"): a("s_endpgm")
        a("s_lshl_b32 s9, s4, 19")
        a("s_and_b32 s52, s5, 7")
        a("s_lshl_b32 s15, s52, 10")
        a("s_add_u32 s9, s9, s15")
        a("s_lshl_b32 s15, s3, 8")
        a("s_add_u32 s9, s9, s15")
        a("v_mul_u32_u24 v2, 0x1f00, v1")
        a("v_add_u32 v6, v6, v2")
        a("v_add_u32 v7, v7, v2")
        a("s_add_u32 s13, s7, 16384")
        a(f"s_mov_b32 s46, {512*8192}")
        a("s_waitcnt lgkmcnt(0)")
        a("s_mov_b64 s[44:45], s[22:23]")
        self.delay("wdel")
        a("s_load_dword s14, s[40:41], 0")
        a.label("LWq")
        for i in range(2):
            a(f"buffer_load_dwordx4 v{6+i}, s[44:47], s9 offen {wf} lds")
            a("s_add_u32 m0, m0, 1024")
            a("s_add_u32 s9, s9, 32768")
        if self.o.get("qcap", 8): a(f"s_waitcnt vmcnt({self.o.get('qcap', 8)})")
        a("s_cmp_lt_u32 m0, s13")
        a("s_cbranch_scc1 LWq")
        a("s_branch LW2")
        a.label("LH0")
        a("s_cmp_ge_u32 s5, 16")
        a("s_cbranch_scc0 " + ("LTHp" if self.o.get("tnear") else "LTH"))
        a("s_branch LWHp")

    def g_early(self):
        a, wf = self.a, self.wf
        a.label("LG0")
        if self.o.get("nog"): a("s_endpgm")
        a("s_sub_u32 s5, s5, 24")
        if self.o.get("chs", 0):
            a("s_mov_b32 s60, s5")
            a("s_mov_b32 s61, s4")
        else:
            a("s_mov_b32 s60, s4")
            a("s_mov_b32 s61, s5")
        a("s_mov_b32 s50, 2048")
        a("s_cmp_eq_u32 s3, 4")
        a("s_cbranch_scc0 LGW")
        self.c_voff(4)
        a("s_lshl_b32 s9, s61, 7")
        a("s_waitcnt lgkmcnt(0)")
        a("s_mov_b64 s[48:49], s[34:35]")
        a("buffer_load_dwordx2 v[28:29], v4, s[48:51], s9 offen")
        a("s_load_dword s14, s[40:41], 0")
        self.silu_frag(SC)
        a("s_waitcnt vmcnt(0)")
        self.silu_run()
        a("s_waitcnt lgkmcnt(0)")
        a("s_barrier")
        a("s_barrier")
        a("s_branch LGH2")
        a.label("LGW")
        a("v_lshlrev_b32 v6, 4, v0")
        self.voff128(2, 6144, 1, 3)
        a("s_lshl_b32 s9, s61, 2")
        a("s_add_u32 s9, s9, s3")
        a(f"s_mul_i32 s9, s9, {16*6144}")
        a("s_lshl_b32 s6, s60, 7")
        a("s_add_u32 s9, s9, s6")
        a("s_lshl_b32 s13, s3, 5")
        a("s_add_u32 s6, s6, s13")
        a("v_and_b32 v12, 1, v0")
        a("v_and_b32 v13, 48, v0")
        a("v_lshrrev_b32 v4, 1, v13")
        a("v_lshl_add_u32 v4, v12, 10, v4")
        a("s_lshr_b32 m0, s7, 2")
        a(f"s_mov_b32 s54, {512*6144}")
        a("s_mov_b32 s55, 0x20000")
        a("s_lshl_b32 s8, s60, 12")
        a("s_lshl_b32 s15, s3, 10")
        a("s_add_u32 s8, s8, s15")
        a("s_lshl_b32 s15, s61, 7")
        a("s_add_u32 s8, s8, s15")
        a(f"s_add_u32 s8, s8, {HA}")
        a(f"s_add_u32 s62, s8, {ALOC}")
        a("s_waitcnt lgkmcnt(0)")
        a("s_mov_b64 s[48:49], s[16:17]")
        a("s_mov_b64 s[52:53], s[36:37]")
        a("buffer_load_dwordx4 v[24:27], v6, s[48:51], 0 offen")
        a("buffer_load_dwordx4 v[28:31], v6, s[48:51], 0 offen offset:1024")
        self.exec16(3)
        a("buffer_load_dwordx2 v[20:21], v4, s[48:51], s6 offen")
        a("s_mov_b64 exec, -1")
        for i in range(2):
            a(f"buffer_load_dwordx4 v2, s[52:55], s9 offen {wf} lds")
            a(f"buffer_load_dwordx4 v2, s[52:55], s9 offen offset:1024 {wf} lds")
            if i == 0:
                a("s_add_u32 m0, m0, 2048")
                a(f"s_add_u32 s9, s9, {8*6144}")
        a("s_mov_b64 exec, 1")
        a("buffer_load_dword v238, v6, s[40:43], s62 offen sc1")
        a("s_mov_b64 exec, -1")
        a("s_load_dword s14, s[40:41], 0")
        mr0 = 0
        self.traddr128(8, None, 1, 3, grp_sh=11, n=1)
        a("v_xor_b32 v8, s13, v8")
        a("v_mul_u32_u24 v6, 144, v12")
        a("v_add_u32 v6, v6, v13")
        a(f"v_add_u32 v6, {SC}, v6")
        a("v_lshlrev_b32 v7, 4, v12")
        a("v_lshl_add_u32 v13, v13, 1, v7")
        a("s_cmp_eq_u32 s61, 0")
        a("s_cselect_b32 s9, 1.0, 0")
        for i in range(4): a(f"v_mov_b32 v{44+i}, s9")
        a("s_mov_b32 s9, 0x3f803f80")
        a("v_lshlrev_b32 v7, 7, v12")
        a(f"s_waitcnt vmcnt({5+mr0})")
        for b in range(2):
            a(f"v_dot2_f32_bf16 v{48+b}, v{24+4*b}, s9, 0")
            a(f"v_dot2_f32_bf16 v{50+b}, v{24+4*b}, v{24+4*b}, 0")
        for i in range(1, 4):
            for b in range(2):
                a(f"v_dot2_f32_bf16 v{48+b}, v{24+4*b+i}, s9, v{48+b}")
                a(f"v_dot2_f32_bf16 v{50+b}, v{24+4*b+i}, v{24+4*b+i}, v{50+b}")
        a("v_permlane32_swap_b32 v48, v49")
        a("v_permlane32_swap_b32 v50, v51")
        a("v_add_f32 v48, v48, v49")
        a("v_add_f32 v50, v50, v51")
        a("v_permlane16_swap_b32 v48, v50")
        a("v_add_f32 v48, v48, v50")
        self.row_sum(48)
        a("ds_bpermute_b32 v50, v7, v48")
        a("ds_bpermute_b32 v51, v7, v48 offset:64")
        a(f"v_mov_b32 v52, {f32(1e-5)}")
        a("s_waitcnt lgkmcnt(0)")
        self.tag()
        a(f"v_mul_f32 v50, {f32(1/512)}, v50")
        a(f"v_fmamk_f32 v51, v51, {f32(1/512)}, v52")
        a("v_fma_f32 v51, -v50, v50, v51")
        a("v_rsq_f32 v51, v51")
        self.unpack(20, 16, 2)
        for i in range(4): a(f"v_sub_f32 v{16+i}, v{16+i}, v50")
        for i in range(4): a(f"v_mul_f32 v{16+i}, v{16+i}, v51")
        a("v_mov_b32 v58, s14")
        a("v_mov_b32 v59, s14")
        a(f"s_waitcnt vmcnt({1+mr0})")
        a("s_barrier")
        self.stamp(1)
        for ks in range(2):
            a(f"ds_read_b128 v[{32+4*ks}:{35+4*ks}], v6 offset:{64*ks}")
            for seg in range(2): self.tr(64 + 8 * ks + 4 * seg, 8, W1 + 8192 * ks + 1024 * seg, 4096)
        a("s_waitcnt lgkmcnt(5)")
        self.mfma(40, 64, 32, True)
        self.mfma(44, 68, 32, False)
        a("s_waitcnt lgkmcnt(0)")
        self.mfma(40, 72, 36, False)
        self.mfma(44, 76, 36, False)
        self.exec16(3)
        for k in range(2): a(f"v_pk_fma_f32 v[{40+2*k}:{41+2*k}], v[{16+2*k}:{17+2*k}], v[{44+2*k}:{45+2*k}], v[{40+2*k}:{41+2*k}]")
        a("v_cvt_pk_bf16_f32 v56, v40, v41")
        a("v_cvt_pk_bf16_f32 v57, v42, v43")
        a("buffer_store_dwordx4 v[56:59], v13, s[40:43], s62 offen")
        a("buffer_store_dwordx4 v[56:59], v13, s[40:43], s8 offen sc1")
        a("s_mov_b64 exec, -1")
        self.stamp(3)
        a("s_barrier")

    def wo_setup(self):
        a = self.a
        self.voff128(2, 1024, 3, 4)
        a("s_lshl_b32 s53, s4, 19")
        a("s_lshl_b32 s15, s3, 17")
        a("s_add_u32 s53, s53, s15")
        a("s_lshr_b32 s15, s52, 2")
        a("s_add_u32 s53, s53, s15")
        a(f"s_add_u32 s59, s7, {WO+16384}")
        a(f"s_add_u32 s62, s7, {WO}")
        a("s_mov_b64 s[48:49], s[24:25]")
        a(f"s_mov_b32 s50, {4096*1024}")
    def mr_issue(self, v, srd):
        a, wf = self.a, self.wf
        L = self.lab("Lmr")
        a(f"s_mul_i32 s9, s61, {64*6144}")
        a("s_lshl_b32 s15, s60, 9")
        a("s_add_u32 s9, s9, s15")
        a("s_lshl_b32 s15, s3, 7")
        a("s_add_u32 s9, s9, s15")
        a("s_add_u32 s9, s9, 2048")
        a("s_mov_b32 m0, s63")
        a("s_add_u32 s15, s63, 8192")
        a.label(L)
        a(f"buffer_load_dwordx4 v{v}, s[{srd}:{srd+3}], s9 offen {wf} lds")
        a("s_add_u32 m0, m0, 1024")
        a(f"s_add_u32 s9, s9, {8*6144}")
        a("s_cmp_lt_u32 m0, s15")
        a(f"s_cbranch_scc1 {L}")
    def mr_compute(self, sc, younger):
        a = self.a
        self.traddr128(8, "s63", 5, 6)
        a("v_and_b32 v5, 1, v0")
        a("v_and_b32 v6, 48, v0")
        a("v_mul_u32_u24 v7, 144, v5")
        a("v_add_u32 v7, v7, v6")
        a(f"v_add_u32 v7, {sc}, v7")
        a("v_lshlrev_b32 v5, 4, v5")
        a("v_lshl_add_u32 v5, v6, 1, v5")
        for ks in range(2): a(f"ds_read_b128 v[{32+4*ks}:{35+4*ks}], v7 offset:{64*ks}")
        a("s_lshl_b32 s9, s60, 14")
        a("s_lshl_b32 s15, s3, 12")
        a("s_add_u32 s9, s9, s15")
        a("s_lshl_b32 s15, s61, 7")
        a("s_add_u32 s9, s9, s15")
        a(f"s_add_u32 s9, s9, {HP}")
        a(f"s_waitcnt vmcnt({younger})")
        a("s_setprio 3")
        for ks in range(2):
            for t in range(4): self.tr(64 + 16 * ks + 4 * t, 8 + t, 4096 * ks, 2048)
        a("s_waitcnt lgkmcnt(0)")
        for ks in range(2):
            for t in range(4): self.mfma(40 + 4 * t, 64 + 16 * ks + 4 * t, 32 + 4 * ks, ks == 0)
        self.exec16(3)
        for t in range(4):
            a(f"v_cvt_pk_bf16_f32 v{40+4*t}, v{40+4*t}, v{41+4*t}")
            a(f"v_cvt_pk_bf16_f32 v{41+4*t}, v{42+4*t}, v{43+4*t}")
            a(f"v_mov_b32 v{42+4*t}, s14")
        for t in range(4): a(f"buffer_store_dwordx4 v[{40+4*t}:{43+4*t}], v5, s[40:43], s9 offen offset:{1024*t} sc1")
        a("s_mov_b64 exec, -1")
        a("s_setprio 0")
        self.stamp(11)
    def rdy_publish(self, vb, jreg):
        a = self.a
        for i in range(4): a(f"v_mov_b32 v{vb+i}, s14")
        a(f"v_mov_b32 v{vb+4}, 0")
        a(f"s_lshl_b32 s15, {jreg}, 4")
        a(f"s_add_u32 s15, s15, {RDY}")
        a("s_mov_b64 exec, 1")
        a(f"buffer_store_dwordx4 v[{vb}:{vb+3}], v{vb+4}, s[40:43], s15 offen sc1")
        a("s_mov_b64 exec, -1")
    def rdy_load(self):
        self.a("buffer_load_dword v237, v229, s[40:43], s27 offen sc1")
    def rdy_check(self):
        a = self.a
        L = self.lab("Lok")
        a("v_cmp_ne_u32 vcc, s14, v237")
        a(f"s_cbranch_vccz {L}")
        self.poll(["buffer_load_dword v237, v229, s[40:43], s27 offen sc1"], [(*self.TAGBAD, 237)], sleep=2)
        a.label(L)

    def g_index(self):
        a = self.a
        a("s_mul_i32 s26, s4, 7")
        a("s_add_u32 s26, s26, s5")
        a("s_cmp_eq_u32 s5, 7")

    def tw_main(self):
        a = self.a
        self.stamp(1)
        a("v_lshlrev_b32 v22, 2, v8")
        a("v_lshrrev_b32 v23, 5, v0")
        a("v_lshl_add_u32 v22, v23, 1, v22")
        a("v_and_b32 v23, 16, v0")
        a("v_lshl_add_u32 v22, v23, 3, v22")
        a("s_mul_i32 s13, s3, 272")
        a(f"s_add_u32 s13, s13, {QB}")
        a("v_add_u32 v22, s13, v22")
        a("v_xor_b32 v3, v8, v1")
        a("v_lshlrev_b32 v3, 4, v3")
        a("v_lshl_add_u32 v3, v8, 8, v3")
        a("v_add_u32 v8, s7, v3")
        a("v_xor_b32 v9, 64, v8")
        a("v_xor_b32 v10, 0x80, v8")
        a("v_xor_b32 v11, 0xc0, v8")
        for t in range(4):
            for ks in range(4):
                r = 64 + 16 * t + 4 * ks
                a(f"ds_read_b128 v[{r}:{r+3}], v{8+ks} offset:{4096*t}")
        a("s_lshl_b32 s8, s3, 6")
        self.traddr256(12, 2, VB, 3, 5, first="s8")
        a("v_mul_u32_u24 v20, 272, v5")
        a("v_lshl_add_u32 v20, v1, 4, v20")
        a(f"v_add_u32 v20, {QB}, v20")
        a("v_lshlrev_b32 v14, 6, v5")
        a("v_lshl_add_u32 v14, v1, 4, v14")
        a(f"v_add_u32 v14, {PB}, v14")
        a("s_lshl_b32 s9, s3, 9")
        a("v_add_u32 v15, s9, v14")
        a("v_lshlrev_b32 v16, 4, v5")
        a(f"v_add_u32 v16, {MX}, v16")
        a("s_lshl_b32 s9, s3, 2")
        a("v_add_u32 v17, s9, v16")
        a("v_lshlrev_b32 v18, 8, v5")
        a("v_lshl_add_u32 v18, v1, 4, v18")
        a("v_lshlrev_b32 v19, 2, v5")
        a("s_lshl_b32 s6, s4, 4")
        a("s_add_u32 s6, s6, s5")
        a("s_lshl_b32 s9, s6, 10")
        a("s_add_u32 s8, s8, s9")
        a(f"s_add_u32 s8, s8, {HC}")
        a("s_lshl_b32 s52, s6, 7")
        a(f"s_add_u32 s52, s52, {HL}")
        a(f"s_add_u32 s53, s8, {LOC}")
        a(f"s_add_u32 s54, s52, {LOC}")
        a(f"s_mov_b32 s10, {f32(CSC)}")
        a("s_lshl_b64 s[58:59], 1, s3")
        a("v_lshlrev_b32 v232, 6, v5")
        a(f"v_add_u32 v232, {LS}, v232")
        a("s_lshl_b32 s9, s3, 4")
        a("v_lshl_add_u32 v233, v1, 2, s9")
        a("v_add_u32 v233, v233, v232")
        def vr(k):
            for t in range(2): self.tr(128 + 8 * k + 4 * t, 12 + t, 8192 * k, 4096)
        def xrow(op, r):
            a(f"v_mov_b32 v225, v{r}")
            a(f"v_permlane16_swap_b32 v{r}, v225")
            a(f"{op} v{r}, v{r}, v225")
            a(f"v_mov_b32 v225, v{r}")
            a(f"v_permlane32_swap_b32 v{r}, v225")
            a(f"{op} v{r}, v{r}, v225")
        a(f"s_mov_b32 s12, {SPIN}")
        a("s_barrier")
        for k in (0, 2, 4, 6): vr(k)
        a("s_branch LTq1")
        a.label("LTq0")
        if self.o.get("qsleep", 0): a(f"s_sleep {self.o['qsleep']}")
        self.qfetch()
        a.label("LTq1")
        a("s_waitcnt vmcnt(1)")
        self.unpack(192, 24, 4)
        a("s_waitcnt vmcnt(0)")
        self.unpack(196, 32, 4)
        for k in range(4): a(f"v_pk_add_f32 v[{24+2*k}:{25+2*k}], v[{24+2*k}:{25+2*k}], v[{32+2*k}:{33+2*k}]")
        for i in range(4): a(f"v_permlane32_swap_b32 v{24+i}, v{28+i}")
        for k in range(2): a(f"v_pk_add_f32 v[{24+2*k}:{25+2*k}], v[{24+2*k}:{25+2*k}], v[{28+2*k}:{29+2*k}]")
        for i in range(2): a(f"v_permlane16_swap_b32 v{24+i}, v{26+i}")
        a("v_pk_add_f32 v[24:25], v[24:25], v[26:27]")
        a("v_cmp_u_f32 vcc, v24, v25")
        a("v_cvt_pk_bf16_f32 v24, v24, v25")
        a("s_cbranch_vccz LTq2")
        a("s_sub_u32 s12, s12, 1")
        a("s_cbranch_scc0 LTq0")
        a.label("LTq2")
        self.stamp(2)
        a("ds_write_b16 v22, v24")
        a("ds_write_b16_d16_hi v22, v24 offset:64")
        a("s_waitcnt lgkmcnt(0)")
        a("s_barrier")
        for ks in range(4): a(f"ds_read_b128 v[{208+4*ks}:{211+4*ks}], v20 offset:{64*ks}")
        self.stamp(3)
        for ks in range(4):
            a(f"s_waitcnt lgkmcnt({3+3*ks})")
            for t in range(4): self.mfma(40 + 4 * t, 64 + 16 * t + 4 * ks, 208 + 4 * ks, ks == 0)
            vr(1 + 2 * ks)
        a("v_max3_f32 v224, v40, v41, v42")
        a("v_max3_f32 v225, v43, v44, v45")
        a("v_max3_f32 v226, v46, v47, v48")
        a("v_max3_f32 v227, v49, v50, v51")
        a("v_max3_f32 v228, v52, v53, v54")
        a("v_max3_f32 v224, v224, v225, v226")
        a("v_max3_f32 v227, v227, v228, v55")
        a("v_max_f32 v224, v224, v227")
        xrow("v_max_f32", 224)
        a(f"v_mul_f32 v230, {f32(-CSC)}, v224")
        for i in range(8): a(f"v_pk_fma_f32 v[{40+2*i}:{41+2*i}], v[{40+2*i}:{41+2*i}], s[10:11], v[230:231] op_sel_hi:[1,0,0]")
        a("ds_write_b32 v17, v230")
        self.exec16(15)
        for blk in range(2):
            for i in range(8): a(f"v_exp_f32 v{40+8*blk+i}, v{40+8*blk+i}")
            for i in range(4): a(f"v_cvt_pk_bf16_f32 v{56+4*blk+i}, v{40+8*blk+2*i}, v{41+8*blk+2*i}")
            a(f"ds_write_b128 v15, v[{56+4*blk}:{59+4*blk}] offset:{256*blk}")
        for i in range(4): a(f"v_pk_add_f32 v[{40+2*i}:{41+2*i}], v[{40+2*i}:{41+2*i}], v[{48+2*i}:{49+2*i}]")
        for i in range(2): a(f"v_pk_add_f32 v[{40+2*i}:{41+2*i}], v[{40+2*i}:{41+2*i}], v[{44+2*i}:{45+2*i}]")
        a("v_pk_add_f32 v[40:41], v[40:41], v[42:43]")
        a("v_add_f32 v231, v40, v41")
        a("ds_write_b32 v233, v231")
        a("s_mov_b64 exec, -1")
        a("s_waitcnt lgkmcnt(0)")
        a("s_barrier")
        self.stamp(4)
        for k in range(2): a(f"ds_read_b128 v[{64+4*k}:{67+4*k}], v14 offset:{256*k}")
        a("ds_read_b128 v[24:27], v16")
        for w in range(4): a(f"ds_read_b128 v[{96+4*w}:{99+4*w}], v232 offset:{16*w}")
        for k in range(2, 8): a(f"ds_read_b128 v[{64+4*k}:{67+4*k}], v14 offset:{256*k}")
        def pv(k):
            for t in range(2): self.mfma(192 + 8 * (k >> 1) + 4 * t, 128 + 8 * k + 4 * t, 64 + 4 * k, (k & 1) == 0)
        a("s_waitcnt lgkmcnt(12)")
        pv(0)
        a("s_waitcnt lgkmcnt(10)")
        pv(1)
        a("v_min3_f32 v32, v24, v25, v26")
        a("v_min_f32 v32, v32, v27")
        a("s_waitcnt lgkmcnt(5)")
        pv(2)
        for k in range(2): a(f"v_pk_add_f32 v[{24+2*k}:{25+2*k}], v[32:33], v[{24+2*k}:{25+2*k}] op_sel_hi:[0,1] neg_lo:[0,1] neg_hi:[0,1]")
        for w in range(4): a(f"v_pk_add_f32 v[{96+4*w}:{97+4*w}], v[{96+4*w}:{97+4*w}], v[{98+4*w}:{99+4*w}]")
        a("s_waitcnt lgkmcnt(4)")
        pv(3)
        for w in range(4): a(f"v_exp_f32 v{24+w}, v{24+w}")
        a("s_waitcnt lgkmcnt(3)")
        pv(4)
        a("v_pk_mul_f32 v[96:97], v[96:97], v[24:25] op_sel_hi:[1,0]")
        a("v_pk_fma_f32 v[96:97], v[100:101], v[24:25], v[96:97] op_sel:[0,1,0] op_sel_hi:[1,1,1]")
        a("v_pk_fma_f32 v[96:97], v[104:105], v[26:27], v[96:97] op_sel_hi:[1,0,1]")
        a("v_pk_fma_f32 v[96:97], v[108:109], v[26:27], v[96:97] op_sel:[0,1,0] op_sel_hi:[1,1,1]")
        a("v_add_f32 v33, v96, v97")
        a("s_waitcnt lgkmcnt(2)")
        pv(5)
        a("v_rcp_f32 v36, v33")
        a("v_log_f32 v37, v33")
        for k in range(2): a(f"v_pk_mul_f32 v[{24+2*k}:{25+2*k}], v[{24+2*k}:{25+2*k}], v[36:37] op_sel_hi:[1,0]")
        a("s_waitcnt lgkmcnt(1)")
        pv(6)
        for i in range(4): a(f"v_pk_mul_f32 v[{192+2*i}:{193+2*i}], v[{192+2*i}:{193+2*i}], v[24:25] op_sel_hi:[1,0]")
        a("s_waitcnt lgkmcnt(0)")
        pv(7)
        for i in range(4): a(f"v_pk_fma_f32 v[{192+2*i}:{193+2*i}], v[{200+2*i}:{201+2*i}], v[24:25], v[{192+2*i}:{193+2*i}] op_sel:[0,1,0] op_sel_hi:[1,1,1]")
        for i in range(4): a(f"v_pk_fma_f32 v[{192+2*i}:{193+2*i}], v[{208+2*i}:{209+2*i}], v[26:27], v[{192+2*i}:{193+2*i}] op_sel_hi:[1,0,1]")
        a("v_sub_f32 v37, v37, v32")
        self.exec16(15)
        for i in range(4): a(f"v_pk_fma_f32 v[{192+2*i}:{193+2*i}], v[{216+2*i}:{217+2*i}], v[26:27], v[{192+2*i}:{193+2*i}] op_sel:[0,1,0] op_sel_hi:[1,1,1]")
        for i in range(4): a(f"v_cvt_pk_bf16_f32 v{200+i}, v{192+2*i}, v{193+2*i}")
        if self.o.get("loc", 1): a("buffer_store_dwordx4 v[200:203], v18, s[40:43], s53 offen")
        a("s_mov_b64 exec, s[58:59]")
        if self.o.get("loc", 1): a("buffer_store_dword v37, v19, s[40:43], s54 offen")
        a("buffer_store_dword v37, v19, s[40:43], s52 offen sc1")
        self.exec16(15)
        a("buffer_store_dwordx4 v[200:203], v18, s[40:43], s8 offen sc1")
        a("s_mov_b64 exec, -1")
        self.stamp(5)
        if self.o.get("nored"): self.end()
        a("s_cmp_lt_u32 s5, 4")
        a("s_cbranch_scc0 LTWe")
        a("s_cmp_eq_u32 s3, 1")
        a("s_cbranch_scc0 LTWe")
        a("s_lshl_b32 s6, s4, 2")
        a("s_add_u32 s6, s6, s5")
        self.srd(44, 16, 2048)
        self.srd(48, 38, 2048)
        a("v_bfe_u32 v2, v0, 2, 1")
        a("v_and_b32 v3, 3, v0")
        a("v_lshlrev_b32 v4, 3, v3")
        a("v_lshl_add_u32 v5, v2, 10, v4")
        a("v_lshlrev_b32 v6, 1, v5")
        a("v_lshrrev_b32 v8, 3, v0")
        a("v_lshl_add_u32 v7, v8, 12, v6")
        a("v_lshlrev_b32 v9, 4, v0")
        a("s_lshl_b32 s7, s6, 5")
        a("s_lshl_b32 s8, s6, 6")
        a(f"s_add_u32 s9, s8, {HD}")
        a(f"s_add_u32 s52, s8, {HM}")
        a(f"s_add_u32 s53, s8, {HM+3*4096}")
        a(f"s_mul_i32 s54, s6, {HFS}")
        a(f"s_add_u32 s54, s54, {HF}")
        a("s_add_u32 s55, s54, 4096")
        a("buffer_load_dwordx2 v[10:11], v5, s[44:47], s7 offen")
        a(f"s_mov_b32 s27, {RDY}")
        self.poll([f"buffer_load_dword v{40+i}, v9, s[40:43], s27 offen offset:{1024*i} sc1" for i in range(4)]
                  + ["buffer_load_dwordx4 v[12:15], v6, s[40:43], s52 offen sc1", "buffer_load_dwordx4 v[16:19], v6, s[40:43], s53 offen sc1"],
                  [(*self.TAGBAD, 40 + i) for i in range(4)] + [(*self.TAGBAD, 14), (*self.TAGBAD, 18)], sleep=2)
        self.poll(["buffer_load_dwordx4 v[24:27], v7, s[40:43], s9 offen sc1"], [(*self.POISON, 24)], sleep=2)
        self.stamp(6)
        a("s_cmp_eq_u32 s6, 0")
        a("s_cbranch_scc0 LTWn")
        a("s_mov_b64 exec, 1")
        a("v_mov_b32 v20, s14")
        a("v_mov_b32 v21, 0")
        a(f"buffer_store_dword v20, v21, s[40:43], 0 offen offset:{EPOCH} sc1")
        a("s_mov_b64 exec, -1")
        a.label("LTWn")
        red8 = self.red8
        red8(24)
        self.unpack(10, 28, 2)
        self.unpack(12, 32, 2)
        self.unpack(16, 36, 2)
        for i in range(4): a(f"v_fmac_f32 v{28+i}, v{24+i}, v{32+i}")
        self.sum_poll([f"buffer_load_dwordx4 v[{64+4*i}:{67+4*i}], v9, s[40:43], s{54+(i>>2)} offen offset:{1024*(i&3)} sc1" for i in range(7)], 64, 56)
        self.stamp(7)
        red8(56)
        for i in range(4): a(f"v_fmac_f32 v{28+i}, v{56+i}, v{36+i}")
        a("v_cvt_pk_bf16_f32 v10, v28, v29")
        a("v_cvt_pk_bf16_f32 v11, v30, v31")
        a("s_mov_b64 exec, 0xff")
        a("buffer_store_dwordx2 v[10:11], v5, s[48:51], s7 offen " + ["", "sc1", "nt", "sc0 sc1"][self.o.get("oflag", 0)])
        self.stamp(8)
        if self.o.get("padto"):
            a("s_cmp_eq_u32 s6, 0")
            a("s_cbranch_scc0 LTWe")
        if self.o.get("padto"):
            a(f"s_mov_b32 s100, {self.o['padto']}")
            if self.o.get("amp"):
                a("s_waitcnt lgkmcnt(0)")
                a(f"s_sub_u32 s98, s{64+2*self.o['amp']}, s96")
                a("s_mul_i32 s98, s98, 10")
                a("s_add_u32 s100, s100, s98")
            a.label("Lpad")
            a("s_memrealtime s[98:99]")
            a("s_waitcnt lgkmcnt(0)")
            a("s_sub_u32 s98, s98, s96")
            a("s_cmp_lt_u32 s98, s100")
            a("s_cbranch_scc1 Lpad")
        a.label("LTWe")
        self.end()

    def ww_main(self):
        a, wf = self.a, self.wf
        a.label("LWHp")
        a("s_branch LWH2")
        a.label("LW2")
        self.stamp(1)
        self.traddr256(8, 8, "s7", 3, 5)
        a("s_lshr_b32 s58, s7, 2")
        a(f"s_add_u32 s58, s58, {GA}")
        a("v_and_b32 v3, 7, v0")
        a("v_lshlrev_b32 v3, 7, v3")
        a("v_lshl_add_u32 v3, v1, 5, v3")
        a("v_bfe_u32 v4, v0, 3, 1")
        a("v_lshl_add_u32 v16, v4, 4, v3")
        a("v_add_u32 v16, s58, v16")
        a("v_add_u32 v20, 2048, v16")
        a("v_add_u32 v22, 8, v16")
        a("v_lshlrev_b32 v21, 4, v0")
        a("s_lshl_b32 s8, s4, 12")
        a(f"s_add_u32 s8, s8, {HA}")
        a(f"s_add_u32 s6, s8, {ALOC if self.o.get('aloc', 1) else 0}")
        a("s_mov_b32 s9, s6")
        a("v_lshrrev_b32 v3, 5, v0")
        a("v_and_b32 v4, 31, v0")
        a(f"v_add_u32 v18, {RED}, v21")
        a("v_lshlrev_b32 v19, 3, v4")
        a("v_lshl_add_u32 v19, v3, 13, v19")
        a("s_lshl_b32 s55, s52, 14")
        a("s_lshl_b32 s15, s3, 11")
        a("s_add_u32 s55, s55, s15")
        a("s_lshl_b32 s15, s4, 8")
        a("s_add_u32 s55, s55, s15")
        a(f"s_add_u32 s55, s55, {HB}")
        a("s_lshl_b32 s52, s52, 9")
        self.wo_setup()
        a("s_mov_b32 m0, s58")
        def agather():
            for t in range(4): a(f"buffer_load_dwordx4 v21, s[40:43], s9 offen offset:{1024*t} sc1 lds")
        a("s_barrier")
        a(f"s_waitcnt vmcnt({self.o.get('apre', 2)})")
        agather()
        a("s_waitcnt vmcnt(4) lgkmcnt(0)")
        self.tag()
        self.stamp(2)
        for ks in range(2):
            for t in range(8): self.tr(64 + 32 * ks + 4 * t, 8 + t, 8192 * ks, 4096)
        a(f"s_mov_b32 s12, {SPIN*4 | 15}")
        a("s_branch LWa1")
        a.label("LWa0")
        a("s_and_b32 s13, s12, 15")
        a("s_cselect_b32 s9, s6, s8")
        agather()
        a.label("LWa1")
        a("s_waitcnt vmcnt(0)")
        a("ds_read2st64_b32 v[32:33], v22 offset0:0 offset1:4")
        a("ds_read2st64_b32 v[34:35], v22 offset0:8 offset1:12")
        a("ds_read2_b64 v[24:27], v16 offset0:0 offset1:128")
        a("ds_read2_b64 v[28:31], v20 offset0:0 offset1:128")
        a("s_waitcnt lgkmcnt(2)")
        for i in range(4): a(f"v_xor_b32 v{32+i}, s14, v{32+i}")
        a("v_or3_b32 v32, v32, v33, v34")
        a("v_or_b32 v32, v32, v35")
        a("v_cmp_ne_u32 vcc, 0, v32")
        a("s_waitcnt lgkmcnt(0)")
        a("s_cbranch_vccz LWa2")
        a("s_sub_u32 s12, s12, 1")
        a("s_cbranch_scc0 LWa0")
        a.label("LWa2")
        self.stamp(3)
        if self.diag:
            a(f"s_sub_u32 s84, {SPIN*4 | 15}, s12")
            a("s_mul_i32 s84, s84, 100")
            a("s_add_u32 s84, s84, s64")
        for ks in range(2):
            for t in range(8): self.mfma(128 + 4 * t, 24 + 4 * ks, 64 + 32 * ks + 4 * t, ks == 0)
        for t in range(8): a(f"v_pk_add_f32 v[{128+4*t}:{129+4*t}], v[{128+4*t}:{129+4*t}], v[{130+4*t}:{131+4*t}]")
        for t in range(8): a(f"v_add_f32 v{128+4*t}, v{128+4*t}, v{129+4*t}")
        for k in range(4): a(f"v_permlane16_swap_b32 v{128+8*k}, v{132+8*k}")
        for k in range(4): a(f"v_add_f32 v{128+8*k}, v{128+8*k}, v{132+8*k}")
        def red4(stride):
            for w in range(4): a(f"ds_read_b128 v[{24+4*w}:{27+4*w}], v18 offset:{stride*w}")
            a("s_waitcnt lgkmcnt(2)")
            for k in range(2): a(f"v_pk_add_f32 v[{24+2*k}:{25+2*k}], v[{24+2*k}:{25+2*k}], v[{28+2*k}:{29+2*k}]")
            a("s_waitcnt lgkmcnt(0)")
            for k in range(2): a(f"v_pk_add_f32 v[{32+2*k}:{33+2*k}], v[{32+2*k}:{33+2*k}], v[{36+2*k}:{37+2*k}]")
            for k in range(2): a(f"v_pk_add_f32 v[{24+2*k}:{25+2*k}], v[{24+2*k}:{25+2*k}], v[{32+2*k}:{33+2*k}]")
        a("v_cvt_pk_bf16_f32 v56, v128, v136")
        a("v_cvt_pk_bf16_f32 v57, v144, v152")
        a("buffer_store_dwordx2 v[56:57], v19, s[40:43], s55 offen sc1")
        self.stamp(4)
        self.voff128(12, 6144, 3, 4)
        a("s_mov_b64 s[44:45], s[36:37]")
        a(f"s_mov_b32 s46, {512*6144}")
        a("s_mov_b32 s60, s4")
        a("s_and_b32 s61, s5, 7")
        a("s_mov_b32 s63, s7")
        a("s_barrier")
        def wo(n):
            L = self.lab("LWd")
            a("s_mov_b32 m0, s62")
            a(f"s_add_u32 s62, s62, {1024*n}" if n else "s_mov_b32 s62, s59")
            a.label(L)
            a(f"buffer_load_dwordx4 v2, s[48:51], s53 offen {wf} lds")
            a("s_add_u32 m0, m0, 1024")
            a("s_add_u32 s53, s53, 8192")
            a("s_cmp_lt_u32 m0, s62")
            a(f"s_cbranch_scc1 {L}")
        a("s_cmp_eq_u32 s61, 3")
        a("s_cbranch_scc1 LM")
        a(f"s_cmp_ge_u32 s3, {self.o.get('msplit', 2)}")
        a("s_cbranch_scc1 LWm")
        self.mr_issue(12, 44)
        oe = self.o.get("oearly", 8)
        if oe: wo(oe)
        self.mr_compute(SCW, oe)
        a.label("LWm")
        wo(0)
        a("v_and_b32 v3, 15, v0")
        a("v_lshlrev_b32 v13, 7, v3")
        a("s_lshl_b32 s9, s4, 14")
        a(f"s_add_u32 s9, s9, {HC}")
        a("s_lshl_b32 s8, s4, 11")
        a(f"s_add_u32 s8, s8, {HL}")
        self.stamp(5)
        a("v_lshlrev_b32 v229, 4, v0")
        a("s_mul_i32 s13, s4, 240")
        a("s_sub_u32 s13, 2432, s13")
        a("v_mov_b32 v4, s13")
        a("v_cmp_gt_u32 vcc, 16, v0")
        a("v_cndmask_b32 v229, v4, v229, vcc")
        a("s_lshl_b32 s27, s4, 8")
        a(f"s_add_u32 s27, s27, {RDY}")
        self.rdy_load()
        a("s_lshl_b32 s15, s3, 8")
        a("s_add_u32 s9, s9, s15")
        a("s_lshl_b32 s15, s3, 2")
        a("s_add_u32 s8, s8, s15")
        a(f"s_add_u32 s15, s7, {WO}")
        self.traddr128(8, "s15", 3, 4)
        a("v_and_b32 v3, 15, v0")
        a("v_xor_b32 v12, v3, v1")
        a("v_lshlrev_b32 v12, 4, v12")
        a("v_lshl_add_u32 v4, v1, 10, v12")
        for i in range(1, 4):
            a(f"v_xor_b32 v{4+i}, {64*i}, v4")
            a(f"v_add_u32 v{4+i}, {3072*i}, v{4+i}")
        a("v_lshl_add_u32 v20, v3, 8, v12")
        a("v_add_u32 v20, s58, v20")
        for i in range(1, 4): a(f"v_xor_b32 v{20+i}, {64*i}, v20")
        a("v_lshlrev_b32 v14, 4, v1")
        a("v_lshrrev_b32 v12, 5, v0")
        a("v_lshlrev_b32 v15, 8, v12")
        a("v_and_b32 v12, 31, v0")
        a("v_lshl_add_u32 v15, v12, 2, v15")
        a("s_lshl_b32 s15, s3, 9")
        a(f"s_add_u32 s15, s15, {RED}")
        a("v_add_u32 v15, s15, v15")
        a("v_lshlrev_b32 v17, 4, v3")
        a("v_lshl_add_u32 v17, v1, 11, v17")
        a("s_lshl_b32 s55, s4, 12")
        a("s_lshr_b32 s15, s52, 1")
        a("s_add_u32 s55, s55, s15")
        a(f"s_add_u32 s55, s55, {HD}")
        a("s_mov_b32 m0, s58")
        a("v_mov_b32 v128, 0")
        a("s_waitcnt vmcnt(0)")
        self.stamp(6)
        for ks in range(4):
            for t in range(4): self.tr(64 + 16 * ks + 4 * t, 8 + t, 4096 * ks, 2048)
        self.rdy_check()
        def cbody():
            a("s_mov_b64 exec, 0xffff")
            a("buffer_load_dword v128, v13, s[40:43], s8 offen sc1")
            a("s_mov_b64 exec, -1")
            for i in range(4): a(f"buffer_load_dwordx4 v{4+i}, s[40:43], s9 offen offset:{1024*i} sc1 lds")
            a("s_waitcnt vmcnt(0)")
            for ks in range(4): a(f"ds_read_b128 v[{24+4*ks}:{27+4*ks}], v{20+ks}")
            a("s_waitcnt lgkmcnt(0)")
            a("v_max3_u32 v129, v24, v28, v128")
            a("v_max3_u32 v129, v129, v32, v36")
            a("v_cmp_eq_u32 s[10:11], -1, v129")
        self.stamp(9)
        self.spin(cbody, alt=([8, 9], LOC, self.o.get("every", 16)) if self.o.get("loc", 1) else None)
        self.stamp(7)
        D8 = ("quad_perm:[1,0,3,2]", "quad_perm:[2,3,0,1]", "row_half_mirror")
        def mf(ks):
            for t in range(4): self.mfma(40 + 4 * t, 24 + 4 * ks, 64 + 16 * ks + 4 * t, ks == 0)
        mf(0)
        a("v_mov_b32 v129, v128")
        for m in D8: a(f"v_max_f32_dpp v129, v129, v129 {m} row_mask:0xf bank_mask:0xf")
        a("v_sub_f32 v128, v128, v129")
        a("v_exp_f32 v128, v128")
        mf(1)
        a("v_mov_b32 v129, v128")
        for m in D8: a(f"v_add_f32_dpp v129, v129, v129 {m} row_mask:0xf bank_mask:0xf")
        a("v_rcp_f32 v129, v129")
        a("v_mul_f32 v128, v128, v129")
        for r in range(4): a(f"ds_bpermute_b32 v{130+r}, v14, v128 offset:{4*r}")
        mf(2)
        mf(3)
        a("s_waitcnt lgkmcnt(0)")
        for t in range(4): a(f"v_pk_mul_f32 v[{40+4*t}:{41+4*t}], v[{40+4*t}:{41+4*t}], v[130:131]")
        for t in range(4): a(f"v_pk_fma_f32 v[{40+4*t}:{41+4*t}], v[{42+4*t}:{43+4*t}], v[132:133], v[{40+4*t}:{41+4*t}]")
        for t in range(4): a(f"v_add_f32 v{40+4*t}, v{40+4*t}, v{41+4*t}")
        for k in range(2): a(f"v_permlane16_swap_b32 v{40+8*k}, v{44+8*k}")
        for k in range(2): a(f"v_add_f32 v{40+8*k}, v{40+8*k}, v{44+8*k}")
        for k in range(2): a(f"ds_write_b32 v15, v{40+8*k} offset:{128*k}")
        a("s_waitcnt lgkmcnt(0)")
        a("s_barrier")
        a("s_cmp_eq_u32 s3, 0")
        a("s_cbranch_scc0 LWe")
        a("s_mov_b32 exec_hi, 0")
        red4(512)
        a("buffer_store_dwordx4 v[24:27], v17, s[40:43], s55 offen sc1")
        self.stamp(8)
        a.label("LWe")
        self.end()

    def g_role(self):
        a, wf = self.a, self.wf
        ms = self.o.get("msplit", 2)
        a("s_lshr_b32 s63, s7, 1")
        a(f"s_add_u32 s63, s63, {MRG}")
        self.g_index()
        a("s_cbranch_scc1 LO3")
        a(f"s_cmp_lt_u32 s3, {ms}")
        a("s_cbranch_scc1 LGn")
        self.mr_issue(2, 52)
        a.label("LGn")
        a(f"s_add_u32 s7, s7, {GU}")
        a("s_mov_b32 s53, s26")
        for i in range(4): a(f"v_mov_b32 v{32+i}, -1")
        a("v_lshrrev_b32 v3, 3, v0")
        a(f"v_mul_u32_u24 v3, {HFS}, v3")
        a("v_and_b32 v4, 7, v0")
        a("v_lshl_add_u32 v3, v4, 4, v3")
        a(f"s_mul_i32 s26, s3, {8*HFS}")
        a("s_lshl_b32 s15, s53, 7")
        a("s_add_u32 s26, s26, s15")
        a(f"s_add_u32 s26, s26, {HF}")
        a("buffer_store_dwordx4 v[32:35], v3, s[40:43], s26 offen sc1")
        a(f"s_and_b32 s52, s53, {self.o.get('rot', 0)}")
        a("s_cmp_eq_u32 s52, 0")
        a("s_cselect_b64 s[44:45], s[28:29], s[30:31]")
        a("s_cselect_b64 s[48:49], s[30:31], s[28:29]")
        a(f"s_mov_b32 s46, {512*3584}")
        a(f"s_mov_b32 s50, {512*3584}")
        a("s_lshl_b32 s52, s52, 13")
        a("v_lshrrev_b32 v1, 2, v0")
        a("v_bfe_u32 v2, v0, 4, 1")
        a("v_lshlrev_b32 v2, 1, v2")
        a("v_and_b32 v3, 3, v0")
        a("v_xor_b32 v2, v2, v3")
        a("v_mul_u32_u24 v4, 3584, v1")
        a("v_lshl_add_u32 v2, v2, 4, v4")
        a(f"s_mul_i32 s8, s3, {128*3584}")
        a("s_lshl_b32 s15, s53, 6")
        a("s_add_u32 s8, s8, s15")
        def mat(m, lo=0, hi=8):
            L = self.lab("LGx")
            if lo == 0:
                a("s_add_u32 s58, s7, s52")
                a("s_mov_b32 s59, s8")
            a("s_mov_b32 m0, s58")
            a(f"s_add_u32 s58, s58, {1024*(hi-lo)}")
            a.label(L)
            gf = ["nt", "", "sc1", "sc0"][self.o.get("gflag%d" % m, 0)]
            a(f"buffer_load_dwordx4 v2, s[{44+4*m}:{47+4*m}], s59 offen {gf} lds")
            a("s_add_u32 m0, m0, 1024")
            a(f"s_add_u32 s59, s59, {16*3584}")
            if self.o.get("gcap", 0) and (lo or m): a(f"s_waitcnt vmcnt({self.o['gcap']})")
            a("s_cmp_lt_u32 m0, s58")
            a(f"s_cbranch_scc1 {L}")
            if hi == 8: a("s_xor_b32 s52, s52, 8192")
        a("s_waitcnt vmcnt(0)")
        a("s_barrier")
        a(f"s_cmp_lt_u32 s3, {ms}")
        a("s_cbranch_scc1 LGo")
        self.mr_compute(SC, 0)
        a.label("LGo")
        a("s_cmp_eq_u32 s3, 0")
        a("s_cbranch_scc0 LGr")
        self.rdy_publish(8, "s2")
        if self.o.get("rwait", 1): a("s_waitcnt vmcnt(0)")
        a.label("LGr")
        if self.o.get("rwait", 1): a("s_barrier")
        self.delay("fdel")
        self.stamp(5)
        mat(0)
        mat(1)
        a("s_mov_b64 s[48:49], s[16:17]")
        a("s_mov_b32 s50, 2048")
        a("v_lshrrev_b32 v4, 5, v0")
        a("v_and_b32 v5, 31, v0")
        a("v_lshlrev_b32 v19, 3, v5")
        a("v_lshl_add_u32 v19, v4, 10, v19")
        a("s_lshl_b32 s15, s3, 8")
        a("buffer_load_dwordx2 v[24:25], v19, s[48:51], s15 offen")
        a("s_lshl_b32 s9, s53, 15")
        a("s_add_u32 s9, s9, s15")
        a("v_lshlrev_b32 v229, 4, v0")
        a(f"s_mov_b32 s27, {RDY+2048}")
        self.rdy_load()
        a("v_lshlrev_b32 v18, 1, v19")
        a("s_lshl_b32 s15, s3, 9")
        for k in range(3): a(f"s_add_u32 s{28+k}, s15, {HM+4096*k}")
        mloads = [f"buffer_load_dwordx4 v[{160+4*k}:{163+4*k}], v18, s[40:43], s{28+k} offen sc1" for k in range(3)]
        for l in mloads: a(l)
        for k in range(8): a(f"s_add_u32 s{16+k}, s15, {HD+4096*k}")
        self.voff256(6, 10, 8, 9)
        a("s_mov_b64 s[44:45], s[32:33]")
        a(f"s_mov_b32 s46, {1792*1024}")
        a("s_lshl_b32 s6, s3, 13")
        a(f"s_add_u32 s6, s6, {DWN}")
        a("s_mov_b32 m0, s6")
        a("s_add_u32 s13, s6, 8192")
        a.label("LGd2")
        for i in range(2):
            a(f"buffer_load_dwordx4 v{6+i}, s[44:47], s9 offen {wf} lds")
            a("s_add_u32 m0, m0, 1024")
            a("s_add_u32 s9, s9, 4096")
        a("s_cmp_lt_u32 m0, s13")
        a("s_cbranch_scc1 LGd2")
        a("v_bfe_u32 v8, v0, 4, 1")
        a("v_lshlrev_b32 v8, 5, v8")
        a("v_lshl_add_u32 v8, v1, 6, v8")
        a("v_lshl_add_u32 v8, v3, 3, v8")
        a("v_add_u32 v8, s7, v8")
        a("v_xor_b32 v9, 32, v8")
        self.traddr256(10, 8, "s6", 6, 7)
        a("v_mul_u32_u24 v20, 816, v4")
        a("v_lshrrev_b32 v6, 3, v5")
        a("v_lshl_add_u32 v20, v6, 6, v20")
        a("v_lshl_add_u32 v20, v3, 4, v20")
        a("v_bfe_u32 v6, v0, 2, 1")
        a("v_lshl_add_u32 v20, v6, 3, v20")
        a(f"s_add_u32 s15, s7, {AROW_O}")
        a("v_add_u32 v20, s15, v20")
        a("v_mul_u32_u24 v22, 816, v6")
        a("v_and_b32 v7, 48, v0")
        a("v_add3_u32 v22, v22, v7, s15")
        a("s_mov_b32 s59, 272")
        a("v_and_b32 v21, 1, v0")
        a("v_mul_u32_u24 v21, 272, v21")
        a("v_add3_u32 v21, v21, v22, s59")
        a("v_lshl_add_u32 v227, v6, 6, v7")
        a(f"v_mul_u32_u24 v228, {HFS}, v4")
        a("v_lshl_add_u32 v228, v5, 2, v228")
        a("v_lshlrev_b32 v2, 4, v0")
        a("s_lshl_b32 s15, s3, 10")
        a("v_add_u32 v23, s15, v2")
        a("v_lshlrev_b32 v224, 3, v0")
        a("s_lshl_b32 s15, s3, 9")
        a("v_add_u32 v225, s15, v224")
        a("s_lshl_b32 s15, s3, 2")
        a("v_add_u32 v226, s15, v7")
        a("v_and_b32 v231, 16, v0")
        a("v_lshlrev_b32 v231, 1, v231")
        a(f"v_mov_b32 v232, {f32(1e-5)}")
        a("s_waitcnt vmcnt(8)")
        self.stamp(6)
        for m in range(2):
            for ks in range(4):
                for t in range(2): self.tr(64 + 32 * m + 8 * ks + 4 * t, 8 + t, 8192 * m + 2048 * ks, 1024)
        self.unpack(24, 28, 2)
        self.rdy_check()
        for k in range(3): a(f"v_xor_b32 v{163+4*k}, s14, v{162+4*k}")
        a("v_or3_b32 v163, v163, v167, v171")
        a("v_cmp_ne_u32 vcc, 0, v163")
        a("s_cbranch_vccz LGmo")
        self.poll(mloads, [(*self.TAGBAD, 162 + 4 * k) for k in range(3)], sleep=1)
        a.label("LGmo")
        self.stamp(4)
        a("s_waitcnt lgkmcnt(0)")
        a("ds_write_b64 v20, v[164:165] offset:544")
        self.unpack(168, 196, 2)
        for i in range(4): a(f"v_add_f32 v{196+i}, 1.0, v{196+i}")
        a("v_cvt_pk_bf16_f32 v36, v196, v197")
        a("v_cvt_pk_bf16_f32 v37, v198, v199")
        a("ds_write_b64 v20, v[36:37] offset:272")
        for ks in range(4): a(f"ds_read_b128 v[{172+4*ks}:{175+4*ks}], v21 offset:{64*ks}")
        self.unpack(160, 192, 2)
        self.unpack(36, 196, 2)
        for i in range(4): a(f"v_mul_f32 v{200+i}, v{28+i}, v{196+i}")
        for i in range(4): a(f"v_mul_f32 v{196+i}, v{192+i}, v{196+i}")
        def mf(ks):
            for m in range(2):
                for t in range(2): self.mfma(40 + 8 * m + 4 * t, 172 + 4 * ks, 64 + 32 * m + 8 * ks + 4 * t, ks == 0)
        a("s_waitcnt lgkmcnt(0)")
        for ks in range(4): mf(ks)
        for m in range(2):
            for r in range(2): a(f"v_permlane32_swap_b32 v{40+8*m+r}, v{44+8*m+r}")
        a("v_mov_b32 v42, v48")
        a("v_mov_b32 v43, v49")
        a(f"ds_write_b128 v23, v[40:43] offset:{CSR}")
        a("s_waitcnt vmcnt(0)")
        for dt in range(8): self.tr(128 + 4 * dt, 10 + dt, 0, 4096)
        self.stamp(10)
        self.guard(1100)
        self.sum_poll([f"buffer_load_dwordx4 v[{160+4*k}:{163+4*k}], v18, s[40:43], s{16+k} offen sc1" for k in range(8)], 160, 56)
        self.stamp(7)
        for k in range(2): a(f"v_pk_fma_f32 v[{200+2*k}:{201+2*k}], v[{56+2*k}:{57+2*k}], v[{196+2*k}:{197+2*k}], v[{200+2*k}:{201+2*k}]")
        a("v_cvt_pk_bf16_f32 v32, v200, v201")
        a("v_cvt_pk_bf16_f32 v33, v202, v203")
        a("ds_write_b64 v20, v[32:33]")
        for ks in range(4): a(f"ds_read_b128 v[{172+4*ks}:{175+4*ks}], v22 offset:{64*ks}")
        for k in range(2): a(f"v_pk_fma_f32 v[{28+2*k}:{29+2*k}], v[{56+2*k}:{57+2*k}], v[{192+2*k}:{193+2*k}], v[{28+2*k}:{29+2*k}]")
        a("v_pk_add_f32 v[190:191], v[28:29], v[30:31]")
        a("v_pk_mul_f32 v[28:29], v[28:29], v[28:29]")
        a("v_pk_fma_f32 v[28:29], v[30:31], v[30:31], v[28:29]")
        a("v_add_f32 v190, v190, v191")
        a("v_add_f32 v191, v28, v29")
        a("v_permlane16_swap_b32 v190, v191")
        a("s_waitcnt lgkmcnt(3)")
        mf(0)
        a("v_add_f32 v190, v190, v191")
        a("s_waitcnt lgkmcnt(2)")
        mf(1)
        self.row_sum(190)
        a("s_waitcnt lgkmcnt(0)")
        mf(2)
        a(f"ds_write_b32 v226, v190 offset:{STAT}")
        mf(3)
        a("v_permlane32_swap_b32 v40, v44")
        a("v_permlane32_swap_b32 v48, v52")
        a("v_mov_b32 v41, v48")
        a(f"ds_write_b64 v225, v[40:41] offset:{REC}")
        a("s_waitcnt lgkmcnt(0)")
        a("s_barrier")
        self.stamp(8)
        a(f"ds_read_b128 v[24:27], v231 offset:{STAT}")
        a(f"ds_read_b128 v[28:31], v231 offset:{STAT+16}")
        for w in range(4): a(f"ds_read_b128 v[{208+4*w}:{211+4*w}], v2 offset:{CSR+1024*w}")
        for w in range(4): a(f"ds_read_b64 v[{64+2*w}:{65+2*w}], v224 offset:{REC+512*w}")
        a("s_waitcnt lgkmcnt(8)")
        a("v_pk_add_f32 v[24:25], v[24:25], v[26:27]")
        a("v_pk_add_f32 v[28:29], v[28:29], v[30:31]")
        a("v_add_f32 v24, v24, v25")
        a("v_add_f32 v28, v28, v29")
        a(f"v_mul_f32 v24, {f32(1/512)}, v24")
        a(f"v_fmamk_f32 v28, v28, {f32(1/512)}, v232")
        a("v_fma_f32 v28, -v24, v24, v28")
        a("v_rsq_f32 v28, v28")
        a("s_waitcnt lgkmcnt(4)")
        for k in range(2):
            a(f"v_pk_add_f32 v[{208+2*k}:{209+2*k}], v[{208+2*k}:{209+2*k}], v[{212+2*k}:{213+2*k}]")
            a(f"v_pk_add_f32 v[{216+2*k}:{217+2*k}], v[{216+2*k}:{217+2*k}], v[{220+2*k}:{221+2*k}]")
        for k in range(2): a(f"v_pk_add_f32 v[{208+2*k}:{209+2*k}], v[{208+2*k}:{209+2*k}], v[{216+2*k}:{217+2*k}]")
        a("s_waitcnt lgkmcnt(0)")
        a("v_pk_add_f32 v[64:65], v[64:65], v[66:67]")
        a("v_pk_add_f32 v[68:69], v[68:69], v[70:71]")
        a("v_pk_add_f32 v[64:65], v[64:65], v[68:69]")
        a("v_fma_f32 v64, -v24, v208, v64")
        a("v_fma_f32 v65, -v24, v210, v65")
        a("v_fma_f32 v64, v64, v28, v209")
        a("v_fma_f32 v65, v65, v28, v211")
        a("v_max_f32 v64, 0, v64")
        a("v_mul_f32 v64, v64, v65")
        a("v_mov_b32_dpp v65, v64 quad_perm:[1,0,3,2] row_mask:0xf bank_mask:0xf")
        a("v_cvt_pk_bf16_f32 v64, v64, v65")
        for i, off in enumerate((0, 8, 128, 136)): a(f"ds_bpermute_b32 v{24+i}, v227, v64 offset:{off}")
        a("s_waitcnt lgkmcnt(0)")
        for dt in range(8): self.mfma(160 + 4 * dt, 24, 128 + 4 * dt, True)
        for k in range(4):
            a(f"v_permlane32_swap_b32 v{160+8*k}, v{164+8*k}")
            a(f"buffer_store_dword v{160+8*k}, v228, s[40:43], s26 offen sc1")
            if k < 3: a(f"s_add_u32 s26, s26, {2*HFS}")
        self.stamp(9)
        self.end()

    def small_helpers(self):
        a = self.a
        a.label("LO3")
        a(f"s_cmp_lt_u32 s3, {self.o.get('msplit', 2)}")
        a("s_cbranch_scc1 LO4")
        self.mr_issue(2, 52)
        self.mr_compute(SC, 0)
        a.label("LO4")
        a("s_barrier")
        a("s_movk_i32 s52, 1536")
        a("s_lshr_b32 s58, s7, 2")
        a(f"s_add_u32 s58, s58, {GA}")
        a("v_lshrrev_b32 v1, 4, v0")
        a("v_lshlrev_b32 v18, 4, v0")
        a(f"v_add_u32 v18, {RED}, v18")
        self.wo_setup()
        a("s_branch LWm")
        a.label("LGH2")
        a("s_setprio 3")
        self.tag()
        self.g_index()
        a("s_cbranch_scc1 LGH3")
        a("s_endpgm")
        a.label("LGH3")
        self.rdy_publish(8, "s2")
        a("s_endpgm")
        a.label("LWH2")
        a("s_setprio 3")
        for i in range(4): a(f"v_mov_b32 v{32+i}, -1")
        a("v_bfe_u32 v3, v0, 4, 1")
        a("v_lshlrev_b32 v3, 11, v3")
        a("v_and_b32 v4, 15, v0")
        a("v_lshl_add_u32 v3, v4, 4, v3")
        a("s_lshl_b32 s15, s4, 12")
        a("s_and_b32 s6, s5, 7")
        a("s_lshl_b32 s6, s6, 8")
        a("s_add_u32 s15, s15, s6")
        a(f"s_add_u32 s15, s15, {HD}")
        a("v_lshrrev_b32 v6, 4, v0")
        a("v_lshlrev_b32 v6, 11, v6")
        a("v_lshl_add_u32 v6, v4, 4, v6")
        a("s_lshl_b32 s8, s6, 6")
        a("s_lshl_b32 s9, s4, 8")
        a("s_add_u32 s8, s8, s9")
        a(f"s_add_u32 s8, s8, {HB}")
        a("s_add_u32 s9, s8, 8192")
        self.c_voff(4)
        a("s_lshr_b32 s6, s6, 1")
        a("s_mov_b32 s50, 2048")
        a("s_waitcnt lgkmcnt(0)")
        a("s_load_dword s14, s[40:41], 0")
        a("s_mov_b64 s[48:49], s[34:35]")
        a("buffer_load_dwordx2 v[28:29], v4, s[48:51], s6 offen")
        a("buffer_store_dwordx4 v[32:35], v6, s[40:43], s8 offen sc1")
        a("buffer_store_dwordx4 v[32:35], v6, s[40:43], s9 offen sc1")
        a("s_mov_b32 exec_hi, 0")
        a("buffer_store_dwordx4 v[32:35], v3, s[40:43], s15 offen sc1")
        a("s_mov_b64 exec, -1")
        self.silu_frag(SCW)
        a("s_waitcnt vmcnt(0) lgkmcnt(0)")
        self.tag()
        self.rdy_publish(8, "s2")
        a("s_barrier")
        self.silu_run()
        a("s_waitcnt lgkmcnt(0)")
        a("s_endpgm")
        a.label("LTH")
        a("s_setprio 3")
        for i in range(4): a(f"v_mov_b32 v{40+i}, -1")
        a("v_lshlrev_b32 v2, 4, v0")
        a("s_lshl_b32 s6, s4, 4")
        a("s_add_u32 s6, s6, s5")
        a("s_lshl_b32 s54, s6, 10")
        a(f"s_add_u32 s54, s54, {HC}")
        a("s_lshl_b32 s55, s6, 7")
        a(f"s_add_u32 s55, s55, {HL}")
        a("s_waitcnt lgkmcnt(0)")
        a("s_load_dword s14, s[40:41], 0")
        a("buffer_store_dwordx4 v[40:43], v2, s[40:43], s54 offen sc1")
        a(f"s_add_u32 s54, s54, {LOC}")
        a("buffer_store_dwordx4 v[40:43], v2, s[40:43], s54 offen sc1")
        a("s_mov_b64 exec, 0xff")
        a("buffer_store_dwordx4 v[40:43], v2, s[40:43], s55 offen sc1")
        a(f"s_add_u32 s55, s55, {LOC}")
        a("buffer_store_dwordx4 v[40:43], v2, s[40:43], s55 offen sc1")
        a("s_mov_b64 exec, -1")
        a("s_waitcnt vmcnt(0) lgkmcnt(0)")
        self.tag()
        self.rdy_publish(44, "s6")
        a("buffer_load_dwordx4 v[232:235], v2, s[40:43], s54 offen sc1")
        a("s_mov_b64 exec, 1")
        a("buffer_load_dword v236, v2, s[40:43], s55 offen sc1")
        a("s_endpgm")

    def m_role(self):
        a = self.a
        a.label("LM")
        if self.o.get("nom"): self.end()
        a(f"s_cmp_ge_u32 s3, {self.o.get('msplit', 2)}")
        a("s_cbranch_scc1 LMr")
        self.mr_issue(12, 44)
        self.mr_compute(SCW, 0)
        a.label("LMr")
        a("s_lshl_b32 s6, s4, 2")
        a("s_add_u32 s6, s6, s3")
        a("s_lshl_b32 s8, s6, 12")
        a(f"s_add_u32 s8, s8, {HP}")
        a("s_lshr_b32 s9, s6, 3")
        a("s_lshl_b32 s9, s9, 12")
        a("s_and_b32 s6, s6, 7")
        a("s_lshl_b32 s6, s6, 8")
        a("s_add_u32 s9, s9, s6")
        a(f"s_add_u32 s9, s9, {HM}")
        a("v_lshlrev_b32 v2, 4, v0")
        a("v_and_b32 v3, 1, v0")
        a("v_lshlrev_b32 v3, 11, v3")
        a("v_bfe_u32 v4, v0, 1, 2")
        a("v_lshl_add_u32 v3, v4, 4, v3")
        a("v_and_b32 v4, 48, v0")
        a("v_lshl_add_u32 v3, v4, 2, v3")
        self.poll([f"buffer_load_dwordx4 v[{40+4*t}:{43+4*t}], v2, s[40:43], s8 offen offset:{1024*t} sc1" for t in range(4)],
                  [(*self.TAGBAD, 42 + 4 * t) for t in range(4)], sleep=1,
                  after=lambda t: self.unpack(40 + 4 * t, 64 + 4 * t, 2))
        self.stamp(6)
        for i in range(8): a(f"v_permlane32_swap_b32 v{64+i}, v{72+i}")
        for k in range(4): a(f"v_pk_add_f32 v[{64+2*k}:{65+2*k}], v[{64+2*k}:{65+2*k}], v[{72+2*k}:{73+2*k}]")
        for i in range(4): a(f"v_permlane16_swap_b32 v{64+i}, v{68+i}")
        for k in range(2): a(f"v_pk_add_f32 v[{64+2*k}:{65+2*k}], v[{64+2*k}:{65+2*k}], v[{68+2*k}:{69+2*k}]")
        for i in range(4): a(f"v_add_f32_dpp v{64+i}, v{64+i}, v{64+i} row_ror:8 row_mask:0xf bank_mask:0xf")
        a("v_cvt_pk_bf16_f32 v40, v64, v65")
        a("v_cvt_pk_bf16_f32 v41, v66, v67")
        self.exec16(0xff)
        a("buffer_store_dwordx4 v[40:43], v3, s[40:43], s9 offen sc1")
        self.stamp(7)
        self.end()

    def red8(self, r):
        a = self.a
        for i in range(4): a(f"v_add_f32_dpp v{r+i}, v{r+i}, v{r+i} row_ror:8 row_mask:0xf bank_mask:0xf")
        for sw in ("16", "32"):
            for i in range(4): a(f"v_mov_b32 v{60+i}, v{r+i}")
            for i in range(4): a(f"v_permlane{sw}_swap_b32 v{r+i}, v{60+i}")
            for i in range(4): a(f"v_add_f32 v{r+i}, v{r+i}, v{60+i}")

    def build(self):
        self.prologue()
        self.ww_early()
        if self.o.get("tnear"): self.tw_early()
        self.g_early()
        self.g_role()
        self.small_helpers()
        self.m_role()
        self.guard(3300, fall=False)
        self.ww_main()
        self.guard(3300, fall=False)
        if not self.o.get("tnear"): self.tw_early()
        self.tw_issue()
        self.tw_main()
        if self.diag:
            self.a.label("Ldump")
            self.dump_stamps()
        self.a.label("Lexit")
        self.a("s_endpgm")
        self.a.label("Lcode_end")
        body = self.a.finish()
        head = open("cdna_kernels/" + NAME + ".s.ref").read().split("; Override launch geometry")[0]
        return head + f"""; Generated by gen/gen_kernel.py (hand-written generator): one persistent launch, 256 workgroups x 5 waves.
; @launch grid=(256,1,1) block=(320,1,1) lds={LDS_BYTES}
.amdgcn_target "amdgcn-amd-amdhsa--gfx950"
.text
.globl {KNAME}
.p2align 12
.type {KNAME},@function
{KNAME}:
{body}
.section .rodata,"a"
.p2align 6
.amdhsa_kernel {KNAME}
  .amdhsa_next_free_vgpr 240
  .amdhsa_next_free_sgpr 102
  .amdhsa_accum_offset 240
  .amdhsa_group_segment_fixed_size 0
  .amdhsa_kernarg_size 112
  .amdhsa_user_sgpr_count 2
  .amdhsa_user_sgpr_kernarg_segment_ptr 1
  .amdhsa_system_sgpr_workgroup_id_x 1
.end_amdhsa_kernel
"""

if __name__ == "__main__":
    import argparse
    ap = argparse.ArgumentParser()
    ap.add_argument("-o", default="cdna_kernels/" + NAME + ".s")
    ap.add_argument("--diag", action="store_true")
    ap.add_argument("--wflag", default="nt")
    ap.add_argument("--opt", action="append", default=[])
    args = ap.parse_args()
    opts = {}
    for o in args.opt:
        k, _, v = o.partition("=")
        opts[k] = int(v) if v else 1
    open(args.o, "w").write(Gen(args.diag, args.wflag, opts).build())
    print("wrote", args.o)
```

```python
import sys, struct
from asmlib import Asm

NAME = "adaLN_cond__sliding_block_cached__glu_gated_reglu__decode"
KNAME = NAME + "_kernel"

def f32(x): return "0x%08x" % struct.unpack("<I", struct.pack("<f", x))[0]

EPOCH = 0x0
RDY = 0x1000
HM = 0x4000
HA = 0x8000
ALOC = 0x8000
HB = 0x140000
HD = 0x20000
HL = HD + 0x8000
HC = HL + 0x4000
LOC = 0x24000
HF = HC + 0x20000 + LOC
HFS = 7168
HP = 0xD0000
STAMP = 0x100000
WS_SIZE = 0x200000
LDS_BYTES = 151552
KB, VB, PB, MX, LS, QB = 0, 65536, 131072, 133120, 133248, 133632
WQ, WO, GA, RED, SCW = 0, 65536, 131072, 147456, 149504
W1, GU, DWN, MRG, SC = 0, 16384, 81920, 114688, 147456
REC, CSR, STAT = W1, W1 + 4096, W1 + 8192
AROW_O = 4096

LOG2E = 1.4426950408889634
CSC = (128 ** -0.5) * LOG2E
SPIN = 20000
import os
if os.environ.get('SPIN'): SPIN = int(os.environ['SPIN'])
MFMA = "v_mfma_f32_16x16x32_bf16"

class Gen:
    POISON = ("v_cmp_eq_u32", "-1")
    TAGBAD = ("v_cmp_ne_u32", "s14")

    def __init__(self, diag=False, wflag="nt", opts=None):
        self.a = Asm()
        self.diag = diag
        self.wf = wflag
        self.o = opts or {}
        self.nlab = 0
    def lab(self, p="L"):
        self.nlab += 1
        return f"{p}{self.nlab}"
    def stamp(self, k):
        if self.diag or self.o.get("amp") == k: self.a(f"s_memrealtime s[{64+2*k}:{65+2*k}]")
    def dump_max(self):
        a = self.a
        a("s_load_dwordx2 s[44:45], s[0:1], 96")
        a("s_mov_b32 s46, 256")
        a("s_mov_b32 s47, 0x20000")
        a("s_mov_b64 exec, 1")
        a("v_mov_b32 v1, 0")
        a("s_waitcnt lgkmcnt(0)")
        def put(slot, reg):
            a(f"v_mov_b32 v4, {reg}")
            a(f"buffer_atomic_umax v4, v1, s[44:47], 0 offen offset:{4*slot} sc1")
        a("s_not_b32 s60, s64")
        put(0, "s60"); put(1, "s64")
        a("s_lshr_b32 s5, s2, 3")
        a("s_cmp_ge_u32 s5, 24")
        a("s_cbranch_scc1 LdG")
        a("s_cmp_ge_u32 s5, 16")
        a("s_cbranch_scc1 LdW")
        for slot, k in ((6, 3), (7, 9), (8, 5), (15, 8)): put(slot, f"s{64+2*k}")
        a("s_endpgm")
        a.label("LdW")
        for slot, k in ((3, 2), (4, 3), (5, 4), (9, 6), (10, 7), (11, 8)): put(slot, f"s{64+2*k}")
        a("s_endpgm")
        a.label("LdG")
        for slot, k in ((2, 3), (12, 6), (13, 7), (14, 9)): put(slot, f"s{64+2*k}")
    def dump_gamp(self):
        a = self.a
        k, lo, hi = self.o["gamp"] // 10000, self.o["gamp"] // 100 % 100, self.o["gamp"] % 100
        a("s_waitcnt lgkmcnt(0)")
        a("s_lshr_b32 s5, s2, 3")
        a(f"s_sub_u32 s60, s5, {lo}")
        a(f"s_cmp_lt_u32 s60, {hi-lo}")
        a(f"s_cselect_b32 s61, s{64+2*k}, 0")
        a("s_cmp_eq_u32 s61, 0")
        a("s_cselect_b32 s61, s64, s61")
        a("s_lshl_b32 s60, s2, 2")
        a("s_add_u32 s60, s60, s3")
        a("s_lshl_b32 s60, s60, 2")
        a(f"s_add_u32 s60, s60, {STAMP}")
        a("s_mov_b64 exec, 1")
        a("v_mov_b32 v1, 0")
        a("v_mov_b32 v4, s64")
        a("v_mov_b32 v5, s61")
        a("buffer_store_dword v4, v1, s[40:43], s60 offen sc1")
        a("s_add_u32 s60, s60, 4096")
        a("buffer_store_dword v5, v1, s[40:43], s60 offen sc1")
        a("s_mov_b64 exec, -1")
        a("s_cmp_eq_u32 s2, 0")
        a("s_cbranch_scc0 Lexit")
        a("s_cmp_eq_u32 s3, 1")
        a("s_cbranch_scc0 Lexit")
        def until(reg):
            L = self.lab("Lu")
            a.label(L)
            a("s_memrealtime s[98:99]")
            a("s_waitcnt lgkmcnt(0)")
            a("s_sub_u32 s98, s98, s64")
            a(f"s_cmp_lt_u32 s98, {reg}")
            a(f"s_cbranch_scc1 {L}")
        until(3000)
        a("v_lshlrev_b32 v2, 4, v0")
        a(f"s_mov_b32 s60, {STAMP}")
        a(f"s_mov_b32 s61, {STAMP+4096}")
        for i in range(4):
            a(f"buffer_load_dwordx4 v[{8+4*i}:{11+4*i}], v2, s[40:43], s60 offen offset:{1024*i} sc1")
            a(f"buffer_load_dwordx4 v[{24+4*i}:{27+4*i}], v2, s[40:43], s61 offen offset:{1024*i} sc1")
        a("s_waitcnt vmcnt(0)")
        for i in range(32): a(f"v_subrev_u32 v{8+i}, s64, v{8+i}")
        for i in range(1, 16):
            a(f"v_min_i32 v8, v8, v{8+i}")
            a(f"v_max_i32 v24, v24, v{24+i}")
        a("s_mov_b32 s60, 0")
        a("s_mov_b32 s61, 0")
        for l in range(64):
            a(f"v_readlane_b32 s62, v8, {l}")
            a(f"v_readlane_b32 s63, v24, {l}")
            a("s_min_i32 s60, s60, s62")
            a("s_max_i32 s61, s61, s63")
        a("s_sub_u32 s61, s61, s60")
        a("s_mul_i32 s61, s61, 40")
        a("s_add_u32 s100, s61, 4000")
        until("s100")
    def dump_stamps(self):
        if not self.diag: return
        if self.o.get("gamp") is not None: return self.dump_gamp()
        if self.o.get("dmax"): return self.dump_max()
        a = self.a
        a("s_waitcnt lgkmcnt(0)")
        a("s_mov_b64 exec, 1")
        a("s_mul_i32 s60, s2, 5")
        a("s_add_u32 s60, s60, s3")
        a("s_lshl_b32 s60, s60, 6")
        a(f"s_add_u32 s60, s60, {STAMP}")
        a("v_mov_b32 v1, 0")
        for q in range(3):
            for i in range(4):
                a(f"v_mov_b32 v{4+i}, s{64+2*(4*q+i)}")
            a(f"buffer_store_dwordx4 v[4:7], v1, s[40:43], s60 offen offset:{16*q}")
            a("s_nop 1")
    def end(self, helper=False):
        self.a("s_branch Ldump" if self.diag and (not helper or self.o.get("hdump")) else "s_endpgm")
    def delay(self, key):
        n = self.o.get(key, 0)
        if not n: return
        a = self.a
        L = self.lab("Ld")
        a.label(L)
        a("s_memrealtime s[98:99]")
        a("s_waitcnt lgkmcnt(0)")
        a("s_sub_u32 s98, s98, s64")
        a(f"s_cmp_lt_u32 s98, {n}")
        a(f"s_cbranch_scc1 {L}")
    def guard(self, n, fall=True):
        L = self.lab("Lg")
        if fall: self.a(f"s_branch {L}")
        self.a(f".p2align 12, , {n}")
        self.a.label(L)
    def srd(self, d, p, size):
        a = self.a
        a(f"s_mov_b64 s[{d}:{d+1}], s[{p}:{p+1}]")
        a(f"s_mov_b32 s{d+2}, {size}")
        a(f"s_mov_b32 s{d+3}, 0x20000")
    def tag(self):
        self.a("s_mul_i32 s14, s14, 0x9E3779B1")
        self.a("s_add_u32 s14, s14, 0x7F4A7C15")
    def exec16(self, m):
        self.a(f"s_mov_b32 exec_lo, {(m << 16 | m):#x}")
        self.a(f"s_mov_b32 exec_hi, {(m << 16 | m):#x}")
    def poll(self, loads, checks, sleep=0, after=None):
        a = self.a
        L = self.lab("Lp"); D = self.lab("Lpd")
        n = len(loads)
        a(f"s_mov_b32 s12, {SPIN}")
        a.label(L)
        for l in loads: a(l)
        for i, (op, opd, r) in enumerate(checks):
            a(f"s_waitcnt vmcnt({n-1-i})")
            if i == 0:
                a(f"{op} s[10:11], {opd}, v{r}")
            else:
                a(f"{op} vcc, {opd}, v{r}")
                a("s_or_b64 s[10:11], s[10:11], vcc")
            if after: after(i)
        a("s_cmp_eq_u64 s[10:11], 0")
        a(f"s_cbranch_scc1 {D}")
        if sleep: a(f"s_sleep {sleep}")
        a("s_sub_u32 s12, s12, 1")
        a(f"s_cbranch_scc0 {L}")
        a.label(D)
    def spin(self, body, sleep=0, alt=None):
        a = self.a
        L = self.lab("Lp"); D = self.lab("Lpd")
        n = SPIN
        if alt:
            sregs, delta, every = alt
            for i, r in enumerate(sregs):
                a(f"s_mov_b32 s{96+2*i}, s{r}")
                a(f"s_add_u32 s{97+2*i}, s{r}, {delta}")
                a(f"s_mov_b32 s{r}, s{97+2*i}")
            n = SPIN * 4 | (every - 1)
        a(f"s_mov_b32 s12, {n}")
        a.label(L)
        body()
        a("s_cmp_eq_u64 s[10:11], 0")
        a(f"s_cbranch_scc1 {D}")
        if sleep: a(f"s_sleep {sleep}")
        if alt:
            a(f"s_and_b32 s13, s12, {every-1}")
            for i, r in enumerate(sregs): a(f"s_cselect_b32 s{r}, s{97+2*i}, s{96+2*i}")
        a("s_sub_u32 s12, s12, 1")
        a(f"s_cbranch_scc0 {L}")
        a.label(D)
    def ssent(self, soff, offs, cnt=13):
        a = self.a
        L = self.lab("Ls"); D = self.lab("Lsd")
        a(f"s_mov_b32 s{cnt}, {SPIN}")
        a.label(L)
        for k, o in enumerate(offs): a(f"s_load_dword s{88+k}, s[40:41], s{soff} offset:{o} glc")
        a("s_waitcnt lgkmcnt(0)")
        for k in range(len(offs)): a(f"s_xor_b32 s{88+k}, s{88+k}, s14")
        for k in range(1, len(offs)): a(f"s_or_b32 s88, s88, s{88+k}")
        a(f"s_cbranch_scc0 {D}")
        a(f"s_sub_u32 s{cnt}, s{cnt}, 1")
        a(f"s_cbranch_scc0 {L}")
        a.label(D)
    def sum_poll(self, loads, base, acc):
        a = self.a
        n = len(loads)
        def body():
            for l in loads: a(l)
            for i in range(1, n):
                a(f"s_waitcnt vmcnt({n-1-i})")
                src = base if i == 1 else acc
                for k in range(2): a(f"v_pk_add_f32 v[{acc+2*k}:{acc+1+2*k}], v[{src+2*k}:{src+1+2*k}], v[{base+4*i+2*k}:{base+1+4*i+2*k}]")
            a(f"v_cmp_u_f32 s[10:11], v{acc}, v{acc+1}")
            a(f"v_cmp_u_f32 vcc, v{acc+2}, v{acc+3}")
            a("s_or_b64 s[10:11], s[10:11], vcc")
        self.spin(body)
    def silu(self, regs, tmp):
        a = self.a
        for i, r in enumerate(regs): a(f"v_mul_f32 v{tmp+i}, {f32(-LOG2E)}, v{r}")
        for i, r in enumerate(regs): a(f"v_exp_f32 v{tmp+i}, v{tmp+i}")
        for i, r in enumerate(regs): a(f"v_add_f32 v{tmp+i}, 1.0, v{tmp+i}")
        for i, r in enumerate(regs): a(f"v_rcp_f32 v{tmp+i}, v{tmp+i}")
        for i, r in enumerate(regs): a(f"v_mul_f32 v{r}, v{r}, v{tmp+i}")
    def unpack(self, src, dst, n):
        for i in range(n):
            self.a(f"v_lshlrev_b32 v{dst+2*i}, 16, v{src+i}")
            self.a(f"v_and_b32 v{dst+2*i+1}, 0xffff0000, v{src+i}")
    def row_sum(self, r):
        for m in ("quad_perm:[1,0,3,2]", "quad_perm:[2,3,0,1]", "row_half_mirror", "row_mirror"):
            self.a(f"v_add_f32_dpp v{r}, v{r}, v{r} {m} row_mask:0xf bank_mask:0xf")
    def silu_frag(self, base):
        a = self.a
        a("v_bfe_u32 v10, v0, 4, 1")
        a("v_mul_u32_u24 v5, 144, v10")
        a("v_bfe_u32 v4, v0, 3, 1")
        a("v_lshl_add_u32 v5, v4, 6, v5")
        a("v_and_b32 v4, 3, v0")
        a("v_lshl_add_u32 v5, v4, 4, v5")
        a("v_bfe_u32 v4, v0, 2, 1")
        a("v_lshl_add_u32 v5, v4, 3, v5")
        a(f"v_add_u32 v5, {base}, v5")
    def silu_run(self):
        a = self.a
        self.unpack(28, 16, 2)
        self.silu([16, 17, 18, 19], 24)
        a("v_cvt_pk_bf16_f32 v28, v16, v17")
        a("v_cvt_pk_bf16_f32 v29, v18, v19")
        a("ds_write_b64 v5, v[28:29]")
    def c_voff(self, d):
        a = self.a
        a(f"v_bfe_u32 v{d}, v0, 4, 1")
        a(f"v_lshlrev_b32 v{d}, 10, v{d}")
        a("v_and_b32 v11, 15, v0")
        a(f"v_lshl_add_u32 v{d}, v11, 3, v{d}")
    def mfma(self, d, A, B, first):
        c = "0" if first else f"v[{d}:{d+3}]"
        self.a(f"{MFMA} v[{d}:{d+3}], v[{A}:{A+3}], v[{B}:{B+3}], {c}")
    def tr(self, r, va, off, second):
        self.a(f"ds_read_b64_tr_b16 v[{r}:{r+1}], v{va} offset:{off}")
        self.a(f"ds_read_b64_tr_b16 v[{r+2}:{r+3}], v{va} offset:{off+second}")
    def voff256(self, d, stride_sh, t0, t1):
        a = self.a
        a(f"v_lshrrev_b32 v{t0}, 4, v0")
        a(f"v_and_b32 v{t1}, 15, v0")
        a(f"v_lshlrev_b32 v{d}, 1, v{t0}")
        a(f"v_xor_b32 v{d}, v{t1}, v{d}")
        a(f"v_lshlrev_b32 v{d}, 4, v{d}")
        a(f"v_lshl_add_u32 v{d}, v{t0}, {stride_sh}, v{d}")
        a(f"v_xor_b32 v{d+1}, 0x80, v{d}")
    def voff128(self, d, stride, t0, t1):
        a = self.a
        a(f"v_lshrrev_b32 v{t0}, 3, v0")
        a(f"v_and_b32 v{d}, 6, v{t0}")
        a(f"v_and_b32 v{t1}, 7, v0")
        a(f"v_xor_b32 v{d}, v{d}, v{t1}")
        a(f"v_mul_u32_u24 v{t0}, {stride}, v{t0}")
        a(f"v_lshl_add_u32 v{d}, v{d}, 4, v{t0}")
    def traddr256(self, d, n, base, t0, t1, first=None):
        a = self.a
        a(f"v_lshrrev_b32 v{t0}, 2, v0")
        a(f"v_and_b32 v{d}, 7, v{t0}")
        a(f"v_lshlrev_b32 v{d}, 5, v{d}")
        a(f"v_lshl_add_u32 v{d}, v{t0}, 8, v{d}")
        a(f"v_and_b32 v{t1}, 3, v0")
        a(f"v_lshl_add_u32 v{d}, v{t1}, 3, v{d}")
        if first: a(f"v_xor_b32 v{d}, {first}, v{d}")
        a(f"v_add_u32 v{d}, {base}, v{d}")
        for i in range(1, n): a(f"v_xor_b32 v{d+i}, {32*i}, v{d}")
    def traddr128(self, d, base, t0, t1, grp_sh=10, n=4):
        a = self.a
        a(f"v_bfe_u32 v{t0}, v0, 2, 3")
        a(f"v_bfe_u32 v{d}, v0, 3, 2")
        a(f"v_lshlrev_b32 v{d}, 5, v{d}")
        a(f"v_lshl_add_u32 v{d}, v{t0}, 7, v{d}")
        a(f"v_lshrrev_b32 v{t0}, 5, v0")
        a(f"v_lshl_add_u32 v{d}, v{t0}, {grp_sh}, v{d}")
        a(f"v_and_b32 v{t1}, 3, v0")
        a(f"v_lshl_add_u32 v{d}, v{t1}, 3, v{d}")
        if base is not None: a(f"v_add_u32 v{d}, {base}, v{d}")
        for i in range(1, n): a(f"v_xor_b32 v{d+i}, {32*i}, v{d}")

    def prologue(self):
        a = self.a
        a("s_cmp_ge_u32 s2, 256")
        a("s_cbranch_scc1 Lexit")
        a("s_load_dwordx16 s[16:31], s[0:1], 0")
        a("s_load_dwordx8 s[32:39], s[0:1], 64")
        a("s_load_dwordx2 s[40:41], s[0:1], 104")
        if self.diag:
            for k in range(1, 12): a(f"s_mov_b32 s{64+2*k}, 0")
        self.stamp(0)
        if self.o.get("padto"): a("s_memrealtime s[96:97]")
        a("s_getpc_b64 s[56:57]")
        a.label("Lpc0")
        a("s_lshr_b32 s5, s2, 3")
        a("v_lshrrev_b32 v1, 6, v0")
        a("s_mul_i32 s6, s5, 640")
        a("v_lshl_add_u32 v2, v1, 7, s6")
        a("v_min_u32 v2, Lcode_end-Lpc0-4, v2")
        a("global_load_dword v239, v2, s[56:57]")
        a("v_and_b32 v0, 63, v0")
        a("s_and_b32 s4, s2, 7")
        a("v_readfirstlane_b32 s3, v1")
        a(f"s_mov_b32 s42, {WS_SIZE}")
        a("s_mov_b32 s43, 0x20000")
        a("s_mov_b32 s47, 0x20000")
        a("s_mov_b32 s51, 0x20000")
        a("s_lshl_b32 s7, s3, 14")
        a("s_cmp_ge_u32 s5, 24")
        a("s_cbranch_scc1 LG0")
        a("s_cmp_eq_u32 s3, 4")
        a("s_cbranch_scc1 LH0")
        self.voff256(6, 8, 1, 8)
        a("s_mov_b32 m0, s7")
        a("s_cmp_ge_u32 s5, 16")
        a("s_cbranch_scc0 LT0")

    def tw_early(self):
        a, wf = self.a, self.wf
        a.label("LT0")
        a("s_and_b32 s6, s5, 8")
        a("s_add_u32 s6, s6, s4")
        a("s_lshl_b32 s6, s6, 21")
        a("s_and_b32 s8, s5, 7")
        a("s_lshl_b32 s8, s8, 16")
        a("s_add_u32 s6, s6, s8")
        a("s_add_u32 s6, s6, s7")
        a(f"s_add_u32 s6, s6, {6144*256}")
        a("v_xor_b32 v2, v8, v1")
        a("v_lshlrev_b32 v2, 4, v2")
        a("v_lshl_add_u32 v2, v1, 8, v2")
        a("v_xor_b32 v3, 64, v2")
        a("v_xor_b32 v4, 0x80, v2")
        a("v_xor_b32 v5, 0xc0, v2")
        a("s_mov_b32 s8, s6")
        a("s_add_u32 s9, s6, 16384")
        a("s_mov_b32 s46, 0x2000000")
        a("s_mov_b32 s50, 0x2000000")
        thr = self.o.get("thr", 0)
        thk = self.o.get("thk", 2)
        if thr: a(f"s_add_u32 s10, s6, {4096*thr}")
        a("s_waitcnt lgkmcnt(0)")
        a("s_mov_b64 s[44:45], s[18:19]")
        a("s_mov_b64 s[48:49], s[20:21]")
        a("s_load_dword s14, s[40:41], 0")
        if thr:
            a.label("LTWt")
            for i in range(4):
                a(f"buffer_load_dwordx4 v{2+i}, s[44:47], s8 offen offset:{1024*i} {wf} lds")
                a(f"s_waitcnt vmcnt({thk})")
            a("s_add_u32 m0, m0, 4096")
            a("s_add_u32 s8, s8, 4096")
            a("s_cmp_lt_u32 s8, s10")
            a("s_cbranch_scc1 LTWt")
        cap = self.o.get("cap", 7)
        if thr < 4:
            a.label("LTWk")
            for i in range(4):
                a(f"buffer_load_dwordx4 v{2+i}, s[44:47], s8 offen offset:{1024*i} {wf} lds")
                if cap: a(f"s_waitcnt vmcnt({cap})")
            a("s_add_u32 m0, m0, 4096")
            a("s_add_u32 s8, s8, 4096")
            a("s_cmp_lt_u32 s8, s9")
            a("s_cbranch_scc1 LTWk")
        self.stamp(10)
        if self.o.get("tnear"): a("s_branch LTW1")

    def tw_issue(self):
        a, wf = self.a, self.wf
        cap = self.o.get("vcap", 8)
        if self.o.get("tnear"):
            a.label("LTHp")
            a("s_branch LTH")
            a.label("LTW1")
        a("s_lshl_b32 s55, s4, 14")
        a("s_and_b32 s13, s5, 8")
        a("s_lshl_b32 s13, s13, 10")
        a("s_add_u32 s55, s55, s13")
        a("s_lshl_b32 s13, s3, 11")
        a("s_add_u32 s55, s55, s13")
        a(f"s_add_u32 s55, s55, {HB}")
        a("v_lshlrev_b32 v21, 4, v0")
        a("v_mov_b32 v229, v21")
        a("s_lshl_b32 s27, s4, 7")
        a(f"s_add_u32 s27, s27, {RDY+2048}")
        a(f"s_add_u32 m0, s7, {VB}")
        a("s_mov_b32 s8, s6")
        a("s_waitcnt lgkmcnt(0)")
        self.tag()
        for g in range(4):
            if g == 2:
                a("s_mov_b64 exec, 0xff")
                self.rdy_load()
                a("s_mov_b64 exec, -1")
            for i in range(4):
                a(f"buffer_load_dwordx4 v{6+(i&1)}, s[48:51], s8 offen offset:{1024*i} {wf} lds")
                if cap: a(f"s_waitcnt vmcnt({cap})")
            if g < 3:
                a("s_add_u32 m0, m0, 4096")
                a("s_add_u32 s8, s8, 4096")
        a("s_waitcnt vmcnt(8)")
        a("s_mov_b64 exec, 0xff")
        self.rdy_check()
        a("s_mov_b64 exec, -1")
        self.qfetch()

    def qfetch(self):
        for i in range(2): self.a(f"buffer_load_dwordx4 v[{192+4*i}:{195+4*i}], v21, s[40:43], s55 offen offset:{1024*i} sc1")

    def ww_early(self):
        a, wf = self.a, self.wf
        a.label("LW0")
        if self.o.get("now"): a("s_endpgm")
        a("s_lshl_b32 s9, s4, 19")
        a("s_and_b32 s52, s5, 7")
        a("s_lshl_b32 s15, s52, 10")
        a("s_add_u32 s9, s9, s15")
        a("s_lshl_b32 s15, s3, 8")
        a("s_add_u32 s9, s9, s15")
        a("v_mul_u32_u24 v2, 0x1f00, v1")
        a("v_add_u32 v6, v6, v2")
        a("v_add_u32 v7, v7, v2")
        a("s_add_u32 s13, s7, 16384")
        a(f"s_mov_b32 s46, {512*8192}")
        a("s_waitcnt lgkmcnt(0)")
        a("s_mov_b64 s[44:45], s[22:23]")
        self.delay("wdel")
        a("s_load_dword s14, s[40:41], 0")
        a.label("LWq")
        for i in range(2):
            a(f"buffer_load_dwordx4 v{6+i}, s[44:47], s9 offen {wf} lds")
            a("s_add_u32 m0, m0, 1024")
            a("s_add_u32 s9, s9, 32768")
        if self.o.get("qcap", 8): a(f"s_waitcnt vmcnt({self.o.get('qcap', 8)})")
        a("s_cmp_lt_u32 m0, s13")
        a("s_cbranch_scc1 LWq")
        a("s_branch LW2")
        a.label("LH0")
        a("s_cmp_ge_u32 s5, 16")
        a("s_cbranch_scc0 " + ("LTHp" if self.o.get("tnear") else "LTH"))
        a("s_branch LWHp")

    def g_early(self):
        a, wf = self.a, self.wf
        a.label("LG0")
        if self.o.get("nog"): a("s_endpgm")
        a("s_sub_u32 s5, s5, 24")
        if self.o.get("chs", 0):
            a("s_mov_b32 s60, s5")
            a("s_mov_b32 s61, s4")
        else:
            a("s_mov_b32 s60, s4")
            a("s_mov_b32 s61, s5")
        a("s_mov_b32 s50, 2048")
        a("s_cmp_eq_u32 s3, 4")
        a("s_cbranch_scc0 LGW")
        self.c_voff(4)
        a("s_lshl_b32 s9, s61, 7")
        a("s_waitcnt lgkmcnt(0)")
        a("s_mov_b64 s[48:49], s[34:35]")
        a("buffer_load_dwordx2 v[28:29], v4, s[48:51], s9 offen")
        a("s_load_dword s14, s[40:41], 0")
        self.silu_frag(SC)
        a("s_waitcnt vmcnt(0)")
        self.silu_run()
        a("s_waitcnt lgkmcnt(0)")
        a("s_barrier")
        a("s_barrier")
        a("s_branch LGH2")
        a.label("LGW")
        a("v_lshlrev_b32 v6, 4, v0")
        self.voff128(2, 6144, 1, 3)
        a("s_lshl_b32 s9, s61, 2")
        a("s_add_u32 s9, s9, s3")
        a(f"s_mul_i32 s9, s9, {16*6144}")
        a("s_lshl_b32 s6, s60, 7")
        a("s_add_u32 s9, s9, s6")
        a("s_lshl_b32 s13, s3, 5")
        a("s_add_u32 s6, s6, s13")
        a("v_and_b32 v12, 1, v0")
        a("v_and_b32 v13, 48, v0")
        a("v_lshrrev_b32 v4, 1, v13")
        a("v_lshl_add_u32 v4, v12, 10, v4")
        a("s_lshr_b32 m0, s7, 2")
        a(f"s_mov_b32 s54, {512*6144}")
        a("s_mov_b32 s55, 0x20000")
        a("s_lshl_b32 s8, s60, 12")
        a("s_lshl_b32 s15, s3, 10")
        a("s_add_u32 s8, s8, s15")
        a("s_lshl_b32 s15, s61, 7")
        a("s_add_u32 s8, s8, s15")
        a(f"s_add_u32 s8, s8, {HA}")
        a(f"s_add_u32 s62, s8, {ALOC}")
        a("s_waitcnt lgkmcnt(0)")
        a("s_mov_b64 s[48:49], s[16:17]")
        a("s_mov_b64 s[52:53], s[36:37]")
        a("buffer_load_dwordx4 v[24:27], v6, s[48:51], 0 offen")
        a("buffer_load_dwordx4 v[28:31], v6, s[48:51], 0 offen offset:1024")
        self.exec16(3)
        a("buffer_load_dwordx2 v[20:21], v4, s[48:51], s6 offen")
        a("s_mov_b64 exec, -1")
        for i in range(2):
            a(f"buffer_load_dwordx4 v2, s[52:55], s9 offen {wf} lds")
            a(f"buffer_load_dwordx4 v2, s[52:55], s9 offen offset:1024 {wf} lds")
            if i == 0:
                a("s_add_u32 m0, m0, 2048")
                a(f"s_add_u32 s9, s9, {8*6144}")
        a("s_mov_b64 exec, 1")
        a("buffer_load_dword v238, v6, s[40:43], s62 offen sc1")
        a("s_mov_b64 exec, -1")
        a("s_load_dword s14, s[40:41], 0")
        mr0 = 0
        self.traddr128(8, None, 1, 3, grp_sh=11, n=1)
        a("v_xor_b32 v8, s13, v8")
        a("v_mul_u32_u24 v6, 144, v12")
        a("v_add_u32 v6, v6, v13")
        a(f"v_add_u32 v6, {SC}, v6")
        a("v_lshlrev_b32 v7, 4, v12")
        a("v_lshl_add_u32 v13, v13, 1, v7")
        a("s_cmp_eq_u32 s61, 0")
        a("s_cselect_b32 s9, 1.0, 0")
        for i in range(4): a(f"v_mov_b32 v{44+i}, s9")
        a("s_mov_b32 s9, 0x3f803f80")
        a("v_lshlrev_b32 v7, 7, v12")
        a(f"s_waitcnt vmcnt({5+mr0})")
        for b in range(2):
            a(f"v_dot2_f32_bf16 v{48+b}, v{24+4*b}, s9, 0")
            a(f"v_dot2_f32_bf16 v{50+b}, v{24+4*b}, v{24+4*b}, 0")
        for i in range(1, 4):
            for b in range(2):
                a(f"v_dot2_f32_bf16 v{48+b}, v{24+4*b+i}, s9, v{48+b}")
                a(f"v_dot2_f32_bf16 v{50+b}, v{24+4*b+i}, v{24+4*b+i}, v{50+b}")
        a("v_permlane32_swap_b32 v48, v49")
        a("v_permlane32_swap_b32 v50, v51")
        a("v_add_f32 v48, v48, v49")
        a("v_add_f32 v50, v50, v51")
        a("v_permlane16_swap_b32 v48, v50")
        a("v_add_f32 v48, v48, v50")
        self.row_sum(48)
        a("ds_bpermute_b32 v50, v7, v48")
        a("ds_bpermute_b32 v51, v7, v48 offset:64")
        a(f"v_mov_b32 v52, {f32(1e-5)}")
        a("s_waitcnt lgkmcnt(0)")
        self.tag()
        a(f"v_mul_f32 v50, {f32(1/512)}, v50")
        a(f"v_fmamk_f32 v51, v51, {f32(1/512)}, v52")
        a("v_fma_f32 v51, -v50, v50, v51")
        a("v_rsq_f32 v51, v51")
        self.unpack(20, 16, 2)
        for i in range(4): a(f"v_sub_f32 v{16+i}, v{16+i}, v50")
        for i in range(4): a(f"v_mul_f32 v{16+i}, v{16+i}, v51")
        a("v_mov_b32 v58, s14")
        a("v_mov_b32 v59, s14")
        a(f"s_waitcnt vmcnt({1+mr0})")
        a("s_barrier")
        self.stamp(1)
        for ks in range(2):
            a(f"ds_read_b128 v[{32+4*ks}:{35+4*ks}], v6 offset:{64*ks}")
            for seg in range(2): self.tr(64 + 8 * ks + 4 * seg, 8, W1 + 8192 * ks + 1024 * seg, 4096)
        a("s_waitcnt lgkmcnt(5)")
        self.mfma(40, 64, 32, True)
        self.mfma(44, 68, 32, False)
        a("s_waitcnt lgkmcnt(0)")
        self.mfma(40, 72, 36, False)
        self.mfma(44, 76, 36, False)
        self.exec16(3)
        for k in range(2): a(f"v_pk_fma_f32 v[{40+2*k}:{41+2*k}], v[{16+2*k}:{17+2*k}], v[{44+2*k}:{45+2*k}], v[{40+2*k}:{41+2*k}]")
        a("v_cvt_pk_bf16_f32 v56, v40, v41")
        a("v_cvt_pk_bf16_f32 v57, v42, v43")
        a("buffer_store_dwordx4 v[56:59], v13, s[40:43], s62 offen")
        a("buffer_store_dwordx4 v[56:59], v13, s[40:43], s8 offen sc1")
        a("s_mov_b64 exec, -1")
        self.stamp(3)
        a("s_barrier")

    def wo_setup(self):
        a = self.a
        self.voff128(2, 1024, 3, 4)
        a("s_lshl_b32 s53, s4, 19")
        a("s_lshl_b32 s15, s3, 17")
        a("s_add_u32 s53, s53, s15")
        a("s_lshr_b32 s15, s52, 2")
        a("s_add_u32 s53, s53, s15")
        a(f"s_add_u32 s59, s7, {WO+16384}")
        a(f"s_add_u32 s62, s7, {WO}")
        a("s_mov_b64 s[48:49], s[24:25]")
        a(f"s_mov_b32 s50, {4096*1024}")
    def mr_issue(self, v, srd):
        a, wf = self.a, self.wf
        L = self.lab("Lmr")
        a(f"s_mul_i32 s9, s61, {64*6144}")
        a("s_lshl_b32 s15, s60, 9")
        a("s_add_u32 s9, s9, s15")
        a("s_lshl_b32 s15, s3, 7")
        a("s_add_u32 s9, s9, s15")
        a("s_add_u32 s9, s9, 2048")
        a("s_mov_b32 m0, s63")
        a("s_add_u32 s15, s63, 8192")
        a.label(L)
        a(f"buffer_load_dwordx4 v{v}, s[{srd}:{srd+3}], s9 offen {wf} lds")
        a("s_add_u32 m0, m0, 1024")
        a(f"s_add_u32 s9, s9, {8*6144}")
        a("s_cmp_lt_u32 m0, s15")
        a(f"s_cbranch_scc1 {L}")
    def mr_compute(self, sc, younger):
        a = self.a
        self.traddr128(8, "s63", 5, 6)
        a("v_and_b32 v5, 1, v0")
        a("v_and_b32 v6, 48, v0")
        a("v_mul_u32_u24 v7, 144, v5")
        a("v_add_u32 v7, v7, v6")
        a(f"v_add_u32 v7, {sc}, v7")
        a("v_lshlrev_b32 v5, 4, v5")
        a("v_lshl_add_u32 v5, v6, 1, v5")
        for ks in range(2): a(f"ds_read_b128 v[{32+4*ks}:{35+4*ks}], v7 offset:{64*ks}")
        a("s_lshl_b32 s9, s60, 14")
        a("s_lshl_b32 s15, s3, 12")
        a("s_add_u32 s9, s9, s15")
        a("s_lshl_b32 s15, s61, 7")
        a("s_add_u32 s9, s9, s15")
        a(f"s_add_u32 s9, s9, {HP}")
        a(f"s_waitcnt vmcnt({younger})")
        a("s_setprio 3")
        for ks in range(2):
            for t in range(4): self.tr(64 + 16 * ks + 4 * t, 8 + t, 4096 * ks, 2048)
        a("s_waitcnt lgkmcnt(0)")
        for ks in range(2):
            for t in range(4): self.mfma(40 + 4 * t, 64 + 16 * ks + 4 * t, 32 + 4 * ks, ks == 0)
        self.exec16(3)
        for t in range(4):
            a(f"v_cvt_pk_bf16_f32 v{40+4*t}, v{40+4*t}, v{41+4*t}")
            a(f"v_cvt_pk_bf16_f32 v{41+4*t}, v{42+4*t}, v{43+4*t}")
            a(f"v_mov_b32 v{42+4*t}, s14")
        for t in range(4): a(f"buffer_store_dwordx4 v[{40+4*t}:{43+4*t}], v5, s[40:43], s9 offen offset:{1024*t} sc1")
        a("s_mov_b64 exec, -1")
        a("s_setprio 0")
        self.stamp(11)
    def rdy_publish(self, vb, jreg):
        a = self.a
        for i in range(4): a(f"v_mov_b32 v{vb+i}, s14")
        a(f"v_mov_b32 v{vb+4}, 0")
        a(f"s_lshl_b32 s15, {jreg}, 4")
        a(f"s_add_u32 s15, s15, {RDY}")
        a("s_mov_b64 exec, 1")
        a(f"buffer_store_dwordx4 v[{vb}:{vb+3}], v{vb+4}, s[40:43], s15 offen sc1")
        a("s_mov_b64 exec, -1")
    def rdy_load(self):
        self.a("buffer_load_dword v237, v229, s[40:43], s27 offen sc1")
    def rdy_check(self):
        a = self.a
        L = self.lab("Lok")
        a("v_cmp_ne_u32 vcc, s14, v237")
        a(f"s_cbranch_vccz {L}")
        self.poll(["buffer_load_dword v237, v229, s[40:43], s27 offen sc1"], [(*self.TAGBAD, 237)], sleep=2)
        a.label(L)

    def g_index(self):
        a = self.a
        a("s_mul_i32 s26, s4, 7")
        a("s_add_u32 s26, s26, s5")
        a("s_cmp_eq_u32 s5, 7")

    def tw_main(self):
        a = self.a
        self.stamp(1)
        a("v_lshlrev_b32 v22, 2, v8")
        a("v_lshrrev_b32 v23, 5, v0")
        a("v_lshl_add_u32 v22, v23, 1, v22")
        a("v_and_b32 v23, 16, v0")
        a("v_lshl_add_u32 v22, v23, 3, v22")
        a("s_mul_i32 s13, s3, 272")
        a(f"s_add_u32 s13, s13, {QB}")
        a("v_add_u32 v22, s13, v22")
        a("v_xor_b32 v3, v8, v1")
        a("v_lshlrev_b32 v3, 4, v3")
        a("v_lshl_add_u32 v3, v8, 8, v3")
        a("v_add_u32 v8, s7, v3")
        a("v_xor_b32 v9, 64, v8")
        a("v_xor_b32 v10, 0x80, v8")
        a("v_xor_b32 v11, 0xc0, v8")
        for t in range(4):
            for ks in range(4):
                r = 64 + 16 * t + 4 * ks
                a(f"ds_read_b128 v[{r}:{r+3}], v{8+ks} offset:{4096*t}")
        a("s_lshl_b32 s8, s3, 6")
        self.traddr256(12, 2, VB, 3, 5, first="s8")
        a("v_mul_u32_u24 v20, 272, v5")
        a("v_lshl_add_u32 v20, v1, 4, v20")
        a(f"v_add_u32 v20, {QB}, v20")
        a("v_lshlrev_b32 v14, 6, v5")
        a("v_lshl_add_u32 v14, v1, 4, v14")
        a(f"v_add_u32 v14, {PB}, v14")
        a("s_lshl_b32 s9, s3, 9")
        a("v_add_u32 v15, s9, v14")
        a("v_lshlrev_b32 v16, 4, v5")
        a(f"v_add_u32 v16, {MX}, v16")
        a("s_lshl_b32 s9, s3, 2")
        a("v_add_u32 v17, s9, v16")
        a("v_lshlrev_b32 v18, 8, v5")
        a("v_lshl_add_u32 v18, v1, 4, v18")
        a("v_lshlrev_b32 v19, 2, v5")
        a("s_lshl_b32 s6, s4, 4")
        a("s_add_u32 s6, s6, s5")
        a("s_lshl_b32 s9, s6, 10")
        a("s_add_u32 s8, s8, s9")
        a(f"s_add_u32 s8, s8, {HC}")
        a("s_lshl_b32 s52, s6, 7")
        a(f"s_add_u32 s52, s52, {HL}")
        a(f"s_add_u32 s53, s8, {LOC}")
        a(f"s_add_u32 s54, s52, {LOC}")
        a(f"s_mov_b32 s10, {f32(CSC)}")
        a("s_lshl_b64 s[58:59], 1, s3")
        a("v_lshlrev_b32 v232, 6, v5")
        a(f"v_add_u32 v232, {LS}, v232")
        a("s_lshl_b32 s9, s3, 4")
        a("v_lshl_add_u32 v233, v1, 2, s9")
        a("v_add_u32 v233, v233, v232")
        def vr(k):
            for t in range(2): self.tr(128 + 8 * k + 4 * t, 12 + t, 8192 * k, 4096)
        def xrow(op, r):
            a(f"v_mov_b32 v225, v{r}")
            a(f"v_permlane16_swap_b32 v{r}, v225")
            a(f"{op} v{r}, v{r}, v225")
            a(f"v_mov_b32 v225, v{r}")
            a(f"v_permlane32_swap_b32 v{r}, v225")
            a(f"{op} v{r}, v{r}, v225")
        a(f"s_mov_b32 s12, {SPIN}")
        a("s_barrier")
        for k in (0, 2, 4, 6): vr(k)
        a("s_branch LTq1")
        a.label("LTq0")
        if self.o.get("qsleep", 0): a(f"s_sleep {self.o['qsleep']}")
        self.qfetch()
        a.label("LTq1")
        a("s_waitcnt vmcnt(1)")
        self.unpack(192, 24, 4)
        a("s_waitcnt vmcnt(0)")
        self.unpack(196, 32, 4)
        for k in range(4): a(f"v_pk_add_f32 v[{24+2*k}:{25+2*k}], v[{24+2*k}:{25+2*k}], v[{32+2*k}:{33+2*k}]")
        for i in range(4): a(f"v_permlane32_swap_b32 v{24+i}, v{28+i}")
        for k in range(2): a(f"v_pk_add_f32 v[{24+2*k}:{25+2*k}], v[{24+2*k}:{25+2*k}], v[{28+2*k}:{29+2*k}]")
        for i in range(2): a(f"v_permlane16_swap_b32 v{24+i}, v{26+i}")
        a("v_pk_add_f32 v[24:25], v[24:25], v[26:27]")
        a("v_cmp_u_f32 vcc, v24, v25")
        a("v_cvt_pk_bf16_f32 v24, v24, v25")
        a("s_cbranch_vccz LTq2")
        a("s_sub_u32 s12, s12, 1")
        a("s_cbranch_scc0 LTq0")
        a.label("LTq2")
        self.stamp(2)
        a("ds_write_b16 v22, v24")
        a("ds_write_b16_d16_hi v22, v24 offset:64")
        a("s_waitcnt lgkmcnt(0)")
        a("s_barrier")
        for ks in range(4): a(f"ds_read_b128 v[{208+4*ks}:{211+4*ks}], v20 offset:{64*ks}")
        self.stamp(3)
        for ks in range(4):
            a(f"s_waitcnt lgkmcnt({3+3*ks})")
            for t in range(4): self.mfma(40 + 4 * t, 64 + 16 * t + 4 * ks, 208 + 4 * ks, ks == 0)
            vr(1 + 2 * ks)
        a("v_max3_f32 v224, v40, v41, v42")
        a("v_max3_f32 v225, v43, v44, v45")
        a("v_max3_f32 v226, v46, v47, v48")
        a("v_max3_f32 v227, v49, v50, v51")
        a("v_max3_f32 v228, v52, v53, v54")
        a("v_max3_f32 v224, v224, v225, v226")
        a("v_max3_f32 v227, v227, v228, v55")
        a("v_max_f32 v224, v224, v227")
        xrow("v_max_f32", 224)
        a(f"v_mul_f32 v230, {f32(-CSC)}, v224")
        for i in range(8): a(f"v_pk_fma_f32 v[{40+2*i}:{41+2*i}], v[{40+2*i}:{41+2*i}], s[10:11], v[230:231] op_sel_hi:[1,0,0]")
        a("ds_write_b32 v17, v230")
        self.exec16(15)
        for blk in range(2):
            for i in range(8): a(f"v_exp_f32 v{40+8*blk+i}, v{40+8*blk+i}")
            for i in range(4): a(f"v_cvt_pk_bf16_f32 v{56+4*blk+i}, v{40+8*blk+2*i}, v{41+8*blk+2*i}")
            a(f"ds_write_b128 v15, v[{56+4*blk}:{59+4*blk}] offset:{256*blk}")
        for i in range(4): a(f"v_pk_add_f32 v[{40+2*i}:{41+2*i}], v[{40+2*i}:{41+2*i}], v[{48+2*i}:{49+2*i}]")
        for i in range(2): a(f"v_pk_add_f32 v[{40+2*i}:{41+2*i}], v[{40+2*i}:{41+2*i}], v[{44+2*i}:{45+2*i}]")
        a("v_pk_add_f32 v[40:41], v[40:41], v[42:43]")
        a("v_add_f32 v231, v40, v41")
        a("ds_write_b32 v233, v231")
        a("s_mov_b64 exec, -1")
        a("s_waitcnt lgkmcnt(0)")
        a("s_barrier")
        self.stamp(4)
        for k in range(2): a(f"ds_read_b128 v[{64+4*k}:{67+4*k}], v14 offset:{256*k}")
        a("ds_read_b128 v[24:27], v16")
        for w in range(4): a(f"ds_read_b128 v[{96+4*w}:{99+4*w}], v232 offset:{16*w}")
        for k in range(2, 8): a(f"ds_read_b128 v[{64+4*k}:{67+4*k}], v14 offset:{256*k}")
        def pv(k):
            for t in range(2): self.mfma(192 + 8 * (k >> 1) + 4 * t, 128 + 8 * k + 4 * t, 64 + 4 * k, (k & 1) == 0)
        a("s_waitcnt lgkmcnt(12)")
        pv(0)
        a("s_waitcnt lgkmcnt(10)")
        pv(1)
        a("v_min3_f32 v32, v24, v25, v26")
        a("v_min_f32 v32, v32, v27")
        a("s_waitcnt lgkmcnt(5)")
        pv(2)
        for k in range(2): a(f"v_pk_add_f32 v[{24+2*k}:{25+2*k}], v[32:33], v[{24+2*k}:{25+2*k}] op_sel_hi:[0,1] neg_lo:[0,1] neg_hi:[0,1]")
        for w in range(4): a(f"v_pk_add_f32 v[{96+4*w}:{97+4*w}], v[{96+4*w}:{97+4*w}], v[{98+4*w}:{99+4*w}]")
        a("s_waitcnt lgkmcnt(4)")
        pv(3)
        for w in range(4): a(f"v_exp_f32 v{24+w}, v{24+w}")
        a("s_waitcnt lgkmcnt(3)")
        pv(4)
        a("v_pk_mul_f32 v[96:97], v[96:97], v[24:25] op_sel_hi:[1,0]")
        a("v_pk_fma_f32 v[96:97], v[100:101], v[24:25], v[96:97] op_sel:[0,1,0] op_sel_hi:[1,1,1]")
        a("v_pk_fma_f32 v[96:97], v[104:105], v[26:27], v[96:97] op_sel_hi:[1,0,1]")
        a("v_pk_fma_f32 v[96:97], v[108:109], v[26:27], v[96:97] op_sel:[0,1,0] op_sel_hi:[1,1,1]")
        a("v_add_f32 v33, v96, v97")
        a("s_waitcnt lgkmcnt(2)")
        pv(5)
        a("v_rcp_f32 v36, v33")
        a("v_log_f32 v37, v33")
        for k in range(2): a(f"v_pk_mul_f32 v[{24+2*k}:{25+2*k}], v[{24+2*k}:{25+2*k}], v[36:37] op_sel_hi:[1,0]")
        a("s_waitcnt lgkmcnt(1)")
        pv(6)
        for i in range(4): a(f"v_pk_mul_f32 v[{192+2*i}:{193+2*i}], v[{192+2*i}:{193+2*i}], v[24:25] op_sel_hi:[1,0]")
        a("s_waitcnt lgkmcnt(0)")
        pv(7)
        for i in range(4): a(f"v_pk_fma_f32 v[{192+2*i}:{193+2*i}], v[{200+2*i}:{201+2*i}], v[24:25], v[{192+2*i}:{193+2*i}] op_sel:[0,1,0] op_sel_hi:[1,1,1]")
        for i in range(4): a(f"v_pk_fma_f32 v[{192+2*i}:{193+2*i}], v[{208+2*i}:{209+2*i}], v[26:27], v[{192+2*i}:{193+2*i}] op_sel_hi:[1,0,1]")
        a("v_sub_f32 v37, v37, v32")
        self.exec16(15)
        for i in range(4): a(f"v_pk_fma_f32 v[{192+2*i}:{193+2*i}], v[{216+2*i}:{217+2*i}], v[26:27], v[{192+2*i}:{193+2*i}] op_sel:[0,1,0] op_sel_hi:[1,1,1]")
        for i in range(4): a(f"v_cvt_pk_bf16_f32 v{200+i}, v{192+2*i}, v{193+2*i}")
        if self.o.get("loc", 1): a("buffer_store_dwordx4 v[200:203], v18, s[40:43], s53 offen")
        a("s_mov_b64 exec, s[58:59]")
        if self.o.get("loc", 1): a("buffer_store_dword v37, v19, s[40:43], s54 offen")
        a("buffer_store_dword v37, v19, s[40:43], s52 offen sc1")
        self.exec16(15)
        a("buffer_store_dwordx4 v[200:203], v18, s[40:43], s8 offen sc1")
        a("s_mov_b64 exec, -1")
        self.stamp(5)
        if self.o.get("nored"): self.end()
        a("s_cmp_lt_u32 s5, 4")
        a("s_cbranch_scc0 LTWe")
        a("s_cmp_eq_u32 s3, 1")
        a("s_cbranch_scc0 LTWe")
        a("s_lshl_b32 s6, s4, 2")
        a("s_add_u32 s6, s6, s5")
        self.srd(44, 16, 2048)
        self.srd(48, 38, 2048)
        a("v_bfe_u32 v2, v0, 2, 1")
        a("v_and_b32 v3, 3, v0")
        a("v_lshlrev_b32 v4, 3, v3")
        a("v_lshl_add_u32 v5, v2, 10, v4")
        a("v_lshlrev_b32 v6, 1, v5")
        a("v_lshrrev_b32 v8, 3, v0")
        a("v_lshl_add_u32 v7, v8, 12, v6")
        a("v_lshlrev_b32 v9, 4, v0")
        a("s_lshl_b32 s7, s6, 5")
        a("s_lshl_b32 s8, s6, 6")
        a(f"s_add_u32 s9, s8, {HD}")
        a(f"s_add_u32 s52, s8, {HM}")
        a(f"s_add_u32 s53, s8, {HM+3*4096}")
        a(f"s_mul_i32 s54, s6, {HFS}")
        a(f"s_add_u32 s54, s54, {HF}")
        a("s_add_u32 s55, s54, 4096")
        a("buffer_load_dwordx2 v[10:11], v5, s[44:47], s7 offen")
        a(f"s_mov_b32 s27, {RDY}")
        self.poll([f"buffer_load_dword v{40+i}, v9, s[40:43], s27 offen offset:{1024*i} sc1" for i in range(4)]
                  + ["buffer_load_dwordx4 v[12:15], v6, s[40:43], s52 offen sc1", "buffer_load_dwordx4 v[16:19], v6, s[40:43], s53 offen sc1"],
                  [(*self.TAGBAD, 40 + i) for i in range(4)] + [(*self.TAGBAD, 14), (*self.TAGBAD, 18)], sleep=2)
        self.poll(["buffer_load_dwordx4 v[24:27], v7, s[40:43], s9 offen sc1"], [(*self.POISON, 24)], sleep=2)
        self.stamp(6)
        a("s_cmp_eq_u32 s6, 0")
        a("s_cbranch_scc0 LTWn")
        a("s_mov_b64 exec, 1")
        a("v_mov_b32 v20, s14")
        a("v_mov_b32 v21, 0")
        a(f"buffer_store_dword v20, v21, s[40:43], 0 offen offset:{EPOCH} sc1")
        a("s_mov_b64 exec, -1")
        a.label("LTWn")
        red8 = self.red8
        red8(24)
        self.unpack(10, 28, 2)
        self.unpack(12, 32, 2)
        self.unpack(16, 36, 2)
        for i in range(4): a(f"v_fmac_f32 v{28+i}, v{24+i}, v{32+i}")
        self.sum_poll([f"buffer_load_dwordx4 v[{64+4*i}:{67+4*i}], v9, s[40:43], s{54+(i>>2)} offen offset:{1024*(i&3)} sc1" for i in range(7)], 64, 56)
        self.stamp(7)
        red8(56)
        for i in range(4): a(f"v_fmac_f32 v{28+i}, v{56+i}, v{36+i}")
        a("v_cvt_pk_bf16_f32 v10, v28, v29")
        a("v_cvt_pk_bf16_f32 v11, v30, v31")
        a("s_mov_b64 exec, 0xff")
        a("buffer_store_dwordx2 v[10:11], v5, s[48:51], s7 offen " + ["", "sc1", "nt", "sc0 sc1"][self.o.get("oflag", 0)])
        self.stamp(8)
        if self.o.get("padto"):
            a("s_cmp_eq_u32 s6, 0")
            a("s_cbranch_scc0 LTWe")
        if self.o.get("padto"):
            a(f"s_mov_b32 s100, {self.o['padto']}")
            if self.o.get("amp"):
                a("s_waitcnt lgkmcnt(0)")
                a(f"s_sub_u32 s98, s{64+2*self.o['amp']}, s96")
                a("s_mul_i32 s98, s98, 10")
                a("s_add_u32 s100, s100, s98")
            a.label("Lpad")
            a("s_memrealtime s[98:99]")
            a("s_waitcnt lgkmcnt(0)")
            a("s_sub_u32 s98, s98, s96")
            a("s_cmp_lt_u32 s98, s100")
            a("s_cbranch_scc1 Lpad")
        a.label("LTWe")
        self.end()

    def ww_main(self):
        a, wf = self.a, self.wf
        a.label("LWHp")
        a("s_branch LWH2")
        a.label("LW2")
        self.stamp(1)
        self.traddr256(8, 8, "s7", 3, 5)
        a("s_lshr_b32 s58, s7, 2")
        a(f"s_add_u32 s58, s58, {GA}")
        a("v_and_b32 v3, 7, v0")
        a("v_lshlrev_b32 v3, 7, v3")
        a("v_lshl_add_u32 v3, v1, 5, v3")
        a("v_bfe_u32 v4, v0, 3, 1")
        a("v_lshl_add_u32 v16, v4, 4, v3")
        a("v_add_u32 v16, s58, v16")
        a("v_add_u32 v20, 2048, v16")
        a("v_add_u32 v22, 8, v16")
        a("v_lshlrev_b32 v21, 4, v0")
        a("s_lshl_b32 s8, s4, 12")
        a(f"s_add_u32 s8, s8, {HA}")
        a(f"s_add_u32 s6, s8, {ALOC if self.o.get('aloc', 1) else 0}")
        a("s_mov_b32 s9, s6")
        a("v_lshrrev_b32 v3, 5, v0")
        a("v_and_b32 v4, 31, v0")
        a(f"v_add_u32 v18, {RED}, v21")
        a("v_lshlrev_b32 v19, 3, v4")
        a("v_lshl_add_u32 v19, v3, 13, v19")
        a("s_lshl_b32 s55, s52, 14")
        a("s_lshl_b32 s15, s3, 11")
        a("s_add_u32 s55, s55, s15")
        a("s_lshl_b32 s15, s4, 8")
        a("s_add_u32 s55, s55, s15")
        a(f"s_add_u32 s55, s55, {HB}")
        a("s_lshl_b32 s52, s52, 9")
        self.wo_setup()
        a("s_mov_b32 m0, s58")
        def agather():
            for t in range(4): a(f"buffer_load_dwordx4 v21, s[40:43], s9 offen offset:{1024*t} sc1 lds")
        a("s_barrier")
        a(f"s_waitcnt vmcnt({self.o.get('apre', 2)})")
        agather()
        a("s_waitcnt vmcnt(4) lgkmcnt(0)")
        self.tag()
        self.stamp(2)
        for ks in range(2):
            for t in range(8): self.tr(64 + 32 * ks + 4 * t, 8 + t, 8192 * ks, 4096)
        a(f"s_mov_b32 s12, {SPIN*4 | 15}")
        a("s_branch LWa1")
        a.label("LWa0")
        a("s_and_b32 s13, s12, 15")
        a("s_cselect_b32 s9, s6, s8")
        agather()
        a.label("LWa1")
        a("s_waitcnt vmcnt(0)")
        a("ds_read2st64_b32 v[32:33], v22 offset0:0 offset1:4")
        a("ds_read2st64_b32 v[34:35], v22 offset0:8 offset1:12")
        a("ds_read2_b64 v[24:27], v16 offset0:0 offset1:128")
        a("ds_read2_b64 v[28:31], v20 offset0:0 offset1:128")
        a("s_waitcnt lgkmcnt(2)")
        for i in range(4): a(f"v_xor_b32 v{32+i}, s14, v{32+i}")
        a("v_or3_b32 v32, v32, v33, v34")
        a("v_or_b32 v32, v32, v35")
        a("v_cmp_ne_u32 vcc, 0, v32")
        a("s_waitcnt lgkmcnt(0)")
        a("s_cbranch_vccz LWa2")
        a("s_sub_u32 s12, s12, 1")
        a("s_cbranch_scc0 LWa0")
        a.label("LWa2")
        self.stamp(3)
        if self.diag:
            a(f"s_sub_u32 s84, {SPIN*4 | 15}, s12")
            a("s_mul_i32 s84, s84, 100")
            a("s_add_u32 s84, s84, s64")
        for ks in range(2):
            for t in range(8): self.mfma(128 + 4 * t, 24 + 4 * ks, 64 + 32 * ks + 4 * t, ks == 0)
        for t in range(8): a(f"v_pk_add_f32 v[{128+4*t}:{129+4*t}], v[{128+4*t}:{129+4*t}], v[{130+4*t}:{131+4*t}]")
        for t in range(8): a(f"v_add_f32 v{128+4*t}, v{128+4*t}, v{129+4*t}")
        for k in range(4): a(f"v_permlane16_swap_b32 v{128+8*k}, v{132+8*k}")
        for k in range(4): a(f"v_add_f32 v{128+8*k}, v{128+8*k}, v{132+8*k}")
        def red4(stride):
            for w in range(4): a(f"ds_read_b128 v[{24+4*w}:{27+4*w}], v18 offset:{stride*w}")
            a("s_waitcnt lgkmcnt(2)")
            for k in range(2): a(f"v_pk_add_f32 v[{24+2*k}:{25+2*k}], v[{24+2*k}:{25+2*k}], v[{28+2*k}:{29+2*k}]")
            a("s_waitcnt lgkmcnt(0)")
            for k in range(2): a(f"v_pk_add_f32 v[{32+2*k}:{33+2*k}], v[{32+2*k}:{33+2*k}], v[{36+2*k}:{37+2*k}]")
            for k in range(2): a(f"v_pk_add_f32 v[{24+2*k}:{25+2*k}], v[{24+2*k}:{25+2*k}], v[{32+2*k}:{33+2*k}]")
        a("v_cvt_pk_bf16_f32 v56, v128, v136")
        a("v_cvt_pk_bf16_f32 v57, v144, v152")
        a("buffer_store_dwordx2 v[56:57], v19, s[40:43], s55 offen sc1")
        self.stamp(4)
        self.voff128(12, 6144, 3, 4)
        a("s_mov_b64 s[44:45], s[36:37]")
        a(f"s_mov_b32 s46, {512*6144}")
        a("s_mov_b32 s60, s4")
        a("s_and_b32 s61, s5, 7")
        a("s_mov_b32 s63, s7")
        a("s_barrier")
        def wo(n):
            L = self.lab("LWd")
            a("s_mov_b32 m0, s62")
            a(f"s_add_u32 s62, s62, {1024*n}" if n else "s_mov_b32 s62, s59")
            a.label(L)
            a(f"buffer_load_dwordx4 v2, s[48:51], s53 offen {wf} lds")
            a("s_add_u32 m0, m0, 1024")
            a("s_add_u32 s53, s53, 8192")
            a("s_cmp_lt_u32 m0, s62")
            a(f"s_cbranch_scc1 {L}")
        a("s_cmp_eq_u32 s61, 3")
        a("s_cbranch_scc1 LM")
        a(f"s_cmp_ge_u32 s3, {self.o.get('msplit', 4)}")
        a("s_cbranch_scc1 LWm")
        self.mr_issue(12, 44)
        oe = self.o.get("oearly", 8)
        if oe: wo(oe)
        self.mr_compute(SCW, oe)
        a.label("LWm")
        wo(0)
        a("v_and_b32 v3, 15, v0")
        a("v_lshlrev_b32 v13, 7, v3")
        a("s_lshl_b32 s9, s4, 14")
        a(f"s_add_u32 s9, s9, {HC}")
        a("s_lshl_b32 s8, s4, 11")
        a(f"s_add_u32 s8, s8, {HL}")
        self.stamp(5)
        a("v_lshlrev_b32 v229, 4, v0")
        a("s_mul_i32 s13, s4, 240")
        a("s_sub_u32 s13, 2432, s13")
        a("v_mov_b32 v4, s13")
        a("v_cmp_gt_u32 vcc, 16, v0")
        a("v_cndmask_b32 v229, v4, v229, vcc")
        a("s_lshl_b32 s27, s4, 8")
        a(f"s_add_u32 s27, s27, {RDY}")
        self.rdy_load()
        a("s_lshl_b32 s15, s3, 8")
        a("s_add_u32 s9, s9, s15")
        a("s_lshl_b32 s15, s3, 2")
        a("s_add_u32 s8, s8, s15")
        a(f"s_add_u32 s15, s7, {WO}")
        self.traddr128(8, "s15", 3, 4)
        a("v_and_b32 v3, 15, v0")
        a("v_xor_b32 v12, v3, v1")
        a("v_lshlrev_b32 v12, 4, v12")
        a("v_lshl_add_u32 v4, v1, 10, v12")
        for i in range(1, 4):
            a(f"v_xor_b32 v{4+i}, {64*i}, v4")
            a(f"v_add_u32 v{4+i}, {3072*i}, v{4+i}")
        a("v_lshl_add_u32 v20, v3, 8, v12")
        a("v_add_u32 v20, s58, v20")
        for i in range(1, 4): a(f"v_xor_b32 v{20+i}, {64*i}, v20")
        a("v_lshlrev_b32 v14, 4, v1")
        a("v_lshrrev_b32 v12, 5, v0")
        a("v_lshlrev_b32 v15, 8, v12")
        a("v_and_b32 v12, 31, v0")
        a("v_lshl_add_u32 v15, v12, 2, v15")
        a("s_lshl_b32 s15, s3, 9")
        a(f"s_add_u32 s15, s15, {RED}")
        a("v_add_u32 v15, s15, v15")
        a("v_lshlrev_b32 v17, 4, v3")
        a("v_lshl_add_u32 v17, v1, 11, v17")
        a("s_lshl_b32 s55, s4, 12")
        a("s_lshr_b32 s15, s52, 1")
        a("s_add_u32 s55, s55, s15")
        a(f"s_add_u32 s55, s55, {HD}")
        a("s_mov_b32 m0, s58")
        a("v_mov_b32 v128, 0")
        a("s_waitcnt vmcnt(0)")
        self.stamp(6)
        for ks in range(4):
            for t in range(4): self.tr(64 + 16 * ks + 4 * t, 8 + t, 4096 * ks, 2048)
        self.rdy_check()
        def cbody():
            a("s_mov_b64 exec, 0xffff")
            a("buffer_load_dword v128, v13, s[40:43], s8 offen sc1")
            a("s_mov_b64 exec, -1")
            for i in range(4): a(f"buffer_load_dwordx4 v{4+i}, s[40:43], s9 offen offset:{1024*i} sc1 lds")
            a("s_waitcnt vmcnt(0)")
            for ks in range(4): a(f"ds_read_b128 v[{24+4*ks}:{27+4*ks}], v{20+ks}")
            a("s_waitcnt lgkmcnt(0)")
            a("v_max3_u32 v129, v24, v28, v128")
            a("v_max3_u32 v129, v129, v32, v36")
            a("v_cmp_eq_u32 s[10:11], -1, v129")
        self.stamp(9)
        self.spin(cbody, alt=([8, 9], LOC, self.o.get("every", 16)) if self.o.get("loc", 1) else None)
        self.stamp(7)
        D8 = ("quad_perm:[1,0,3,2]", "quad_perm:[2,3,0,1]", "row_half_mirror")
        def mf(ks):
            for t in range(4): self.mfma(40 + 4 * t, 24 + 4 * ks, 64 + 16 * ks + 4 * t, ks == 0)
        mf(0)
        a("v_mov_b32 v129, v128")
        for m in D8: a(f"v_max_f32_dpp v129, v129, v129 {m} row_mask:0xf bank_mask:0xf")
        a("v_sub_f32 v128, v128, v129")
        a("v_exp_f32 v128, v128")
        mf(1)
        a("v_mov_b32 v129, v128")
        for m in D8: a(f"v_add_f32_dpp v129, v129, v129 {m} row_mask:0xf bank_mask:0xf")
        a("v_rcp_f32 v129, v129")
        a("v_mul_f32 v128, v128, v129")
        for r in range(4): a(f"ds_bpermute_b32 v{130+r}, v14, v128 offset:{4*r}")
        mf(2)
        mf(3)
        a("s_waitcnt lgkmcnt(0)")
        for t in range(4): a(f"v_pk_mul_f32 v[{40+4*t}:{41+4*t}], v[{40+4*t}:{41+4*t}], v[130:131]")
        for t in range(4): a(f"v_pk_fma_f32 v[{40+4*t}:{41+4*t}], v[{42+4*t}:{43+4*t}], v[132:133], v[{40+4*t}:{41+4*t}]")
        for t in range(4): a(f"v_add_f32 v{40+4*t}, v{40+4*t}, v{41+4*t}")
        for k in range(2): a(f"v_permlane16_swap_b32 v{40+8*k}, v{44+8*k}")
        for k in range(2): a(f"v_add_f32 v{40+8*k}, v{40+8*k}, v{44+8*k}")
        for k in range(2): a(f"ds_write_b32 v15, v{40+8*k} offset:{128*k}")
        a("s_waitcnt lgkmcnt(0)")
        a("s_barrier")
        a("s_cmp_eq_u32 s3, 0")
        a("s_cbranch_scc0 LWe")
        a("s_mov_b32 exec_hi, 0")
        red4(512)
        a("buffer_store_dwordx4 v[24:27], v17, s[40:43], s55 offen sc1")
        self.stamp(8)
        a.label("LWe")
        self.end()

    def g_role(self):
        a, wf = self.a, self.wf
        ms = self.o.get("msplit", 4)
        a("s_lshr_b32 s63, s7, 1")
        a(f"s_add_u32 s63, s63, {MRG}")
        self.g_index()
        a("s_cbranch_scc1 LO3")
        a(f"s_cmp_lt_u32 s3, {ms}")
        a("s_cbranch_scc1 LGn")
        self.mr_issue(2, 52)
        a.label("LGn")
        a(f"s_add_u32 s7, s7, {GU}")
        a("s_mov_b32 s53, s26")
        for i in range(4): a(f"v_mov_b32 v{32+i}, -1")
        a("v_lshrrev_b32 v3, 3, v0")
        a(f"v_mul_u32_u24 v3, {HFS}, v3")
        a("v_and_b32 v4, 7, v0")
        a("v_lshl_add_u32 v3, v4, 4, v3")
        a(f"s_mul_i32 s26, s3, {8*HFS}")
        a("s_lshl_b32 s15, s53, 7")
        a("s_add_u32 s26, s26, s15")
        a(f"s_add_u32 s26, s26, {HF}")
        a("buffer_store_dwordx4 v[32:35], v3, s[40:43], s26 offen sc1")
        a(f"s_and_b32 s52, s53, {self.o.get('rot', 0)}")
        a("s_cmp_eq_u32 s52, 0")
        a("s_cselect_b64 s[44:45], s[28:29], s[30:31]")
        a("s_cselect_b64 s[48:49], s[30:31], s[28:29]")
        a(f"s_mov_b32 s46, {512*3584}")
        a(f"s_mov_b32 s50, {512*3584}")
        a("s_lshl_b32 s52, s52, 13")
        a("v_lshrrev_b32 v1, 2, v0")
        a("v_bfe_u32 v2, v0, 4, 1")
        a("v_lshlrev_b32 v2, 1, v2")
        a("v_and_b32 v3, 3, v0")
        a("v_xor_b32 v2, v2, v3")
        a("v_mul_u32_u24 v4, 3584, v1")
        a("v_lshl_add_u32 v2, v2, 4, v4")
        a(f"s_mul_i32 s8, s3, {128*3584}")
        a("s_lshl_b32 s15, s53, 6")
        a("s_add_u32 s8, s8, s15")
        def mat(m, lo=0, hi=8):
            L = self.lab("LGx")
            if lo == 0:
                a("s_add_u32 s58, s7, s52")
                a("s_mov_b32 s59, s8")
            a("s_mov_b32 m0, s58")
            a(f"s_add_u32 s58, s58, {1024*(hi-lo)}")
            a.label(L)
            gf = ["nt", "", "sc1", "sc0"][self.o.get("gflag%d" % m, 0)]
            a(f"buffer_load_dwordx4 v2, s[{44+4*m}:{47+4*m}], s59 offen {gf} lds")
            a("s_add_u32 m0, m0, 1024")
            a(f"s_add_u32 s59, s59, {16*3584}")
            if self.o.get("gcap", 0) and (lo or m): a(f"s_waitcnt vmcnt({self.o['gcap']})")
            a("s_cmp_lt_u32 m0, s58")
            a(f"s_cbranch_scc1 {L}")
            if hi == 8: a("s_xor_b32 s52, s52, 8192")
        a("s_waitcnt vmcnt(0)")
        a("s_barrier")
        a(f"s_cmp_lt_u32 s3, {ms}")
        a("s_cbranch_scc1 LGo")
        self.mr_compute(SC, 0)
        a.label("LGo")
        a("s_cmp_eq_u32 s3, 0")
        a("s_cbranch_scc0 LGr")
        self.rdy_publish(8, "s2")
        if self.o.get("rwait", 1): a("s_waitcnt vmcnt(0)")
        a.label("LGr")
        if self.o.get("rwait", 1): a("s_barrier")
        self.delay("fdel")
        self.stamp(5)
        mat(0)
        mat(1)
        a("s_mov_b64 s[48:49], s[16:17]")
        a("s_mov_b32 s50, 2048")
        a("v_lshrrev_b32 v4, 5, v0")
        a("v_and_b32 v5, 31, v0")
        a("v_lshlrev_b32 v19, 3, v5")
        a("v_lshl_add_u32 v19, v4, 10, v19")
        a("s_lshl_b32 s15, s3, 8")
        a("buffer_load_dwordx2 v[24:25], v19, s[48:51], s15 offen")
        a("s_lshl_b32 s9, s53, 15")
        a("s_add_u32 s9, s9, s15")
        a("v_lshlrev_b32 v229, 4, v0")
        a(f"s_mov_b32 s27, {RDY+2048}")
        self.rdy_load()
        a("v_lshlrev_b32 v18, 1, v19")
        a("s_lshl_b32 s15, s3, 9")
        for k in range(3): a(f"s_add_u32 s{28+k}, s15, {HM+4096*k}")
        mloads = [f"buffer_load_dwordx4 v[{160+4*k}:{163+4*k}], v18, s[40:43], s{28+k} offen sc1" for k in range(3)]
        for l in mloads: a(l)
        for k in range(8): a(f"s_add_u32 s{16+k}, s15, {HD+4096*k}")
        self.voff256(6, 10, 8, 9)
        a("s_mov_b64 s[44:45], s[32:33]")
        a(f"s_mov_b32 s46, {1792*1024}")
        a("s_lshl_b32 s6, s3, 13")
        a(f"s_add_u32 s6, s6, {DWN}")
        a("s_mov_b32 m0, s6")
        a("s_add_u32 s13, s6, 8192")
        a.label("LGd2")
        for i in range(2):
            a(f"buffer_load_dwordx4 v{6+i}, s[44:47], s9 offen {wf} lds")
            a("s_add_u32 m0, m0, 1024")
            a("s_add_u32 s9, s9, 4096")
        a("s_cmp_lt_u32 m0, s13")
        a("s_cbranch_scc1 LGd2")
        a("v_bfe_u32 v8, v0, 4, 1")
        a("v_lshlrev_b32 v8, 5, v8")
        a("v_lshl_add_u32 v8, v1, 6, v8")
        a("v_lshl_add_u32 v8, v3, 3, v8")
        a("v_add_u32 v8, s7, v8")
        a("v_xor_b32 v9, 32, v8")
        self.traddr256(10, 8, "s6", 6, 7)
        a("v_mul_u32_u24 v20, 816, v4")
        a("v_lshrrev_b32 v6, 3, v5")
        a("v_lshl_add_u32 v20, v6, 6, v20")
        a("v_lshl_add_u32 v20, v3, 4, v20")
        a("v_bfe_u32 v6, v0, 2, 1")
        a("v_lshl_add_u32 v20, v6, 3, v20")
        a(f"s_add_u32 s15, s7, {AROW_O}")
        a("v_add_u32 v20, s15, v20")
        a("v_mul_u32_u24 v22, 816, v6")
        a("v_and_b32 v7, 48, v0")
        a("v_add3_u32 v22, v22, v7, s15")
        a("s_mov_b32 s59, 272")
        a("v_and_b32 v21, 1, v0")
        a("v_mul_u32_u24 v21, 272, v21")
        a("v_add3_u32 v21, v21, v22, s59")
        a("v_lshl_add_u32 v227, v6, 6, v7")
        a(f"v_mul_u32_u24 v228, {HFS}, v4")
        a("v_lshl_add_u32 v228, v5, 2, v228")
        a("v_lshlrev_b32 v2, 4, v0")
        a("s_lshl_b32 s15, s3, 10")
        a("v_add_u32 v23, s15, v2")
        a("v_lshlrev_b32 v224, 3, v0")
        a("s_lshl_b32 s15, s3, 9")
        a("v_add_u32 v225, s15, v224")
        a("s_lshl_b32 s15, s3, 2")
        a("v_add_u32 v226, s15, v7")
        a("v_and_b32 v231, 16, v0")
        a("v_lshlrev_b32 v231, 1, v231")
        a(f"v_mov_b32 v232, {f32(1e-5)}")
        a("s_waitcnt vmcnt(8)")
        self.stamp(6)
        for m in range(2):
            for ks in range(4):
                for t in range(2): self.tr(64 + 32 * m + 8 * ks + 4 * t, 8 + t, 8192 * m + 2048 * ks, 1024)
        self.unpack(24, 28, 2)
        self.rdy_check()
        for k in range(3): a(f"v_xor_b32 v{163+4*k}, s14, v{162+4*k}")
        a("v_or3_b32 v163, v163, v167, v171")
        a("v_cmp_ne_u32 vcc, 0, v163")
        a("s_cbranch_vccz LGmo")
        self.poll(mloads, [(*self.TAGBAD, 162 + 4 * k) for k in range(3)], sleep=1)
        a.label("LGmo")
        self.stamp(4)
        a("s_waitcnt lgkmcnt(0)")
        a("ds_write_b64 v20, v[164:165] offset:544")
        self.unpack(168, 196, 2)
        for i in range(4): a(f"v_add_f32 v{196+i}, 1.0, v{196+i}")
        a("v_cvt_pk_bf16_f32 v36, v196, v197")
        a("v_cvt_pk_bf16_f32 v37, v198, v199")
        a("ds_write_b64 v20, v[36:37] offset:272")
        for ks in range(4): a(f"ds_read_b128 v[{172+4*ks}:{175+4*ks}], v21 offset:{64*ks}")
        self.unpack(160, 192, 2)
        self.unpack(36, 196, 2)
        for i in range(4): a(f"v_mul_f32 v{200+i}, v{28+i}, v{196+i}")
        for i in range(4): a(f"v_mul_f32 v{196+i}, v{192+i}, v{196+i}")
        def mf(ks):
            for m in range(2):
                for t in range(2): self.mfma(40 + 8 * m + 4 * t, 172 + 4 * ks, 64 + 32 * m + 8 * ks + 4 * t, ks == 0)
        a("s_waitcnt lgkmcnt(0)")
        for ks in range(4): mf(ks)
        for m in range(2):
            for r in range(2): a(f"v_permlane32_swap_b32 v{40+8*m+r}, v{44+8*m+r}")
        a("v_mov_b32 v42, v48")
        a("v_mov_b32 v43, v49")
        a(f"ds_write_b128 v23, v[40:43] offset:{CSR}")
        a("s_waitcnt vmcnt(0)")
        for dt in range(8): self.tr(128 + 4 * dt, 10 + dt, 0, 4096)
        self.stamp(10)
        self.guard(1100)
        self.sum_poll([f"buffer_load_dwordx4 v[{160+4*k}:{163+4*k}], v18, s[40:43], s{16+k} offen sc1" for k in range(8)], 160, 56)
        self.stamp(7)
        for k in range(2): a(f"v_pk_fma_f32 v[{200+2*k}:{201+2*k}], v[{56+2*k}:{57+2*k}], v[{196+2*k}:{197+2*k}], v[{200+2*k}:{201+2*k}]")
        a("v_cvt_pk_bf16_f32 v32, v200, v201")
        a("v_cvt_pk_bf16_f32 v33, v202, v203")
        a("ds_write_b64 v20, v[32:33]")
        for ks in range(4): a(f"ds_read_b128 v[{172+4*ks}:{175+4*ks}], v22 offset:{64*ks}")
        for k in range(2): a(f"v_pk_fma_f32 v[{28+2*k}:{29+2*k}], v[{56+2*k}:{57+2*k}], v[{192+2*k}:{193+2*k}], v[{28+2*k}:{29+2*k}]")
        a("v_pk_add_f32 v[190:191], v[28:29], v[30:31]")
        a("v_pk_mul_f32 v[28:29], v[28:29], v[28:29]")
        a("v_pk_fma_f32 v[28:29], v[30:31], v[30:31], v[28:29]")
        a("v_add_f32 v190, v190, v191")
        a("v_add_f32 v191, v28, v29")
        a("v_permlane16_swap_b32 v190, v191")
        a("s_waitcnt lgkmcnt(3)")
        mf(0)
        a("v_add_f32 v190, v190, v191")
        a("s_waitcnt lgkmcnt(2)")
        mf(1)
        self.row_sum(190)
        a("s_waitcnt lgkmcnt(0)")
        mf(2)
        a(f"ds_write_b32 v226, v190 offset:{STAT}")
        mf(3)
        a("v_permlane32_swap_b32 v40, v44")
        a("v_permlane32_swap_b32 v48, v52")
        a("v_mov_b32 v41, v48")
        a(f"ds_write_b64 v225, v[40:41] offset:{REC}")
        a("s_waitcnt lgkmcnt(0)")
        a("s_barrier")
        self.stamp(8)
        a(f"ds_read_b128 v[24:27], v231 offset:{STAT}")
        a(f"ds_read_b128 v[28:31], v231 offset:{STAT+16}")
        for w in range(4): a(f"ds_read_b128 v[{208+4*w}:{211+4*w}], v2 offset:{CSR+1024*w}")
        for w in range(4): a(f"ds_read_b64 v[{64+2*w}:{65+2*w}], v224 offset:{REC+512*w}")
        a("s_waitcnt lgkmcnt(8)")
        a("v_pk_add_f32 v[24:25], v[24:25], v[26:27]")
        a("v_pk_add_f32 v[28:29], v[28:29], v[30:31]")
        a("v_add_f32 v24, v24, v25")
        a("v_add_f32 v28, v28, v29")
        a(f"v_mul_f32 v24, {f32(1/512)}, v24")
        a(f"v_fmamk_f32 v28, v28, {f32(1/512)}, v232")
        a("v_fma_f32 v28, -v24, v24, v28")
        a("v_rsq_f32 v28, v28")
        a("s_waitcnt lgkmcnt(4)")
        for k in range(2):
            a(f"v_pk_add_f32 v[{208+2*k}:{209+2*k}], v[{208+2*k}:{209+2*k}], v[{212+2*k}:{213+2*k}]")
            a(f"v_pk_add_f32 v[{216+2*k}:{217+2*k}], v[{216+2*k}:{217+2*k}], v[{220+2*k}:{221+2*k}]")
        for k in range(2): a(f"v_pk_add_f32 v[{208+2*k}:{209+2*k}], v[{208+2*k}:{209+2*k}], v[{216+2*k}:{217+2*k}]")
        a("s_waitcnt lgkmcnt(0)")
        a("v_pk_add_f32 v[64:65], v[64:65], v[66:67]")
        a("v_pk_add_f32 v[68:69], v[68:69], v[70:71]")
        a("v_pk_add_f32 v[64:65], v[64:65], v[68:69]")
        a("v_fma_f32 v64, -v24, v208, v64")
        a("v_fma_f32 v65, -v24, v210, v65")
        a("v_fma_f32 v64, v64, v28, v209")
        a("v_fma_f32 v65, v65, v28, v211")
        a("v_max_f32 v64, 0, v64")
        a("v_mul_f32 v64, v64, v65")
        a("v_mov_b32_dpp v65, v64 quad_perm:[1,0,3,2] row_mask:0xf bank_mask:0xf")
        a("v_cvt_pk_bf16_f32 v64, v64, v65")
        for i, off in enumerate((0, 8, 128, 136)): a(f"ds_bpermute_b32 v{24+i}, v227, v64 offset:{off}")
        a("s_waitcnt lgkmcnt(0)")
        for dt in range(8): self.mfma(160 + 4 * dt, 24, 128 + 4 * dt, True)
        for k in range(4):
            a(f"v_permlane32_swap_b32 v{160+8*k}, v{164+8*k}")
            a(f"buffer_store_dword v{160+8*k}, v228, s[40:43], s26 offen sc1")
            if k < 3: a(f"s_add_u32 s26, s26, {2*HFS}")
        self.stamp(9)
        self.end()

    def small_helpers(self):
        a = self.a
        a.label("LO3")
        a(f"s_cmp_lt_u32 s3, {self.o.get('msplit', 4)}")
        a("s_cbranch_scc1 LO4")
        self.mr_issue(2, 52)
        self.mr_compute(SC, 0)
        a.label("LO4")
        a("s_barrier")
        a("s_movk_i32 s52, 1536")
        a("s_lshr_b32 s58, s7, 2")
        a(f"s_add_u32 s58, s58, {GA}")
        a("v_lshrrev_b32 v1, 4, v0")
        a("v_lshlrev_b32 v18, 4, v0")
        a(f"v_add_u32 v18, {RED}, v18")
        self.wo_setup()
        a("s_branch LWm")
        a.label("LGH2")
        a("s_setprio 3")
        self.tag()
        self.g_index()
        a("s_cbranch_scc1 LGH3")
        a("s_endpgm")
        a.label("LGH3")
        self.rdy_publish(8, "s2")
        a("s_endpgm")
        a.label("LWH2")
        a("s_setprio 3")
        for i in range(4): a(f"v_mov_b32 v{32+i}, -1")
        a("v_bfe_u32 v3, v0, 4, 1")
        a("v_lshlrev_b32 v3, 11, v3")
        a("v_and_b32 v4, 15, v0")
        a("v_lshl_add_u32 v3, v4, 4, v3")
        a("s_lshl_b32 s15, s4, 12")
        a("s_and_b32 s6, s5, 7")
        a("s_lshl_b32 s6, s6, 8")
        a("s_add_u32 s15, s15, s6")
        a(f"s_add_u32 s15, s15, {HD}")
        a("v_lshrrev_b32 v6, 4, v0")
        a("v_lshlrev_b32 v6, 11, v6")
        a("v_lshl_add_u32 v6, v4, 4, v6")
        a("s_lshl_b32 s8, s6, 6")
        a("s_lshl_b32 s9, s4, 8")
        a("s_add_u32 s8, s8, s9")
        a(f"s_add_u32 s8, s8, {HB}")
        a("s_add_u32 s9, s8, 8192")
        self.c_voff(4)
        a("s_lshr_b32 s6, s6, 1")
        a("s_mov_b32 s50, 2048")
        a("s_waitcnt lgkmcnt(0)")
        a("s_load_dword s14, s[40:41], 0")
        a("s_mov_b64 s[48:49], s[34:35]")
        a("buffer_load_dwordx2 v[28:29], v4, s[48:51], s6 offen")
        a("buffer_store_dwordx4 v[32:35], v6, s[40:43], s8 offen sc1")
        a("buffer_store_dwordx4 v[32:35], v6, s[40:43], s9 offen sc1")
        a("s_mov_b32 exec_hi, 0")
        a("buffer_store_dwordx4 v[32:35], v3, s[40:43], s15 offen sc1")
        a("s_mov_b64 exec, -1")
        self.silu_frag(SCW)
        a("s_waitcnt vmcnt(0) lgkmcnt(0)")
        self.tag()
        self.rdy_publish(8, "s2")
        a("s_barrier")
        self.silu_run()
        a("s_waitcnt lgkmcnt(0)")
        a("s_endpgm")
        a.label("LTH")
        a("s_setprio 3")
        for i in range(4): a(f"v_mov_b32 v{40+i}, -1")
        a("v_lshlrev_b32 v2, 4, v0")
        a("s_lshl_b32 s6, s4, 4")
        a("s_add_u32 s6, s6, s5")
        a("s_lshl_b32 s54, s6, 10")
        a(f"s_add_u32 s54, s54, {HC}")
        a("s_lshl_b32 s55, s6, 7")
        a(f"s_add_u32 s55, s55, {HL}")
        a("s_waitcnt lgkmcnt(0)")
        a("s_load_dword s14, s[40:41], 0")
        a("buffer_store_dwordx4 v[40:43], v2, s[40:43], s54 offen sc1")
        a(f"s_add_u32 s54, s54, {LOC}")
        a("buffer_store_dwordx4 v[40:43], v2, s[40:43], s54 offen sc1")
        a("s_mov_b64 exec, 0xff")
        a("buffer_store_dwordx4 v[40:43], v2, s[40:43], s55 offen sc1")
        a(f"s_add_u32 s55, s55, {LOC}")
        a("buffer_store_dwordx4 v[40:43], v2, s[40:43], s55 offen sc1")
        a("s_mov_b64 exec, -1")
        a("s_waitcnt vmcnt(0) lgkmcnt(0)")
        self.tag()
        self.rdy_publish(44, "s6")
        a("buffer_load_dwordx4 v[232:235], v2, s[40:43], s54 offen sc1")
        a("s_mov_b64 exec, 1")
        a("buffer_load_dword v236, v2, s[40:43], s55 offen sc1")
        a("s_endpgm")

    def m_role(self):
        a = self.a
        a.label("LM")
        if self.o.get("nom"): self.end()
        a(f"s_cmp_ge_u32 s3, {self.o.get('msplit', 4)}")
        a("s_cbranch_scc1 LMr")
        self.mr_issue(12, 44)
        self.mr_compute(SCW, 0)
        a.label("LMr")
        a("s_lshl_b32 s6, s4, 2")
        a("s_add_u32 s6, s6, s3")
        a("s_lshl_b32 s8, s6, 12")
        a(f"s_add_u32 s8, s8, {HP}")
        a("s_lshr_b32 s9, s6, 3")
        a("s_lshl_b32 s9, s9, 12")
        a("s_and_b32 s6, s6, 7")
        a("s_lshl_b32 s6, s6, 8")
        a("s_add_u32 s9, s9, s6")
        a(f"s_add_u32 s9, s9, {HM}")
        a("v_lshlrev_b32 v2, 4, v0")
        a("v_and_b32 v3, 1, v0")
        a("v_lshlrev_b32 v3, 11, v3")
        a("v_bfe_u32 v4, v0, 1, 2")
        a("v_lshl_add_u32 v3, v4, 4, v3")
        a("v_and_b32 v4, 48, v0")
        a("v_lshl_add_u32 v3, v4, 2, v3")
        self.poll([f"buffer_load_dwordx4 v[{40+4*t}:{43+4*t}], v2, s[40:43], s8 offen offset:{1024*t} sc1" for t in range(4)],
                  [(*self.TAGBAD, 42 + 4 * t) for t in range(4)], sleep=1,
                  after=lambda t: self.unpack(40 + 4 * t, 64 + 4 * t, 2))
        self.stamp(6)
        for i in range(8): a(f"v_permlane32_swap_b32 v{64+i}, v{72+i}")
        for k in range(4): a(f"v_pk_add_f32 v[{64+2*k}:{65+2*k}], v[{64+2*k}:{65+2*k}], v[{72+2*k}:{73+2*k}]")
        for i in range(4): a(f"v_permlane16_swap_b32 v{64+i}, v{68+i}")
        for k in range(2): a(f"v_pk_add_f32 v[{64+2*k}:{65+2*k}], v[{64+2*k}:{65+2*k}], v[{68+2*k}:{69+2*k}]")
        for i in range(4): a(f"v_add_f32_dpp v{64+i}, v{64+i}, v{64+i} row_ror:8 row_mask:0xf bank_mask:0xf")
        a("v_cvt_pk_bf16_f32 v40, v64, v65")
        a("v_cvt_pk_bf16_f32 v41, v66, v67")
        self.exec16(0xff)
        a("buffer_store_dwordx4 v[40:43], v3, s[40:43], s9 offen sc1")
        self.stamp(7)
        self.end()

    def red8(self, r):
        a = self.a
        for i in range(4): a(f"v_add_f32_dpp v{r+i}, v{r+i}, v{r+i} row_ror:8 row_mask:0xf bank_mask:0xf")
        for sw in ("16", "32"):
            for i in range(4): a(f"v_mov_b32 v{60+i}, v{r+i}")
            for i in range(4): a(f"v_permlane{sw}_swap_b32 v{r+i}, v{60+i}")
            for i in range(4): a(f"v_add_f32 v{r+i}, v{r+i}, v{60+i}")

    def build(self):
        self.prologue()
        self.ww_early()
        if self.o.get("tnear"): self.tw_early()
        self.g_early()
        self.g_role()
        self.small_helpers()
        self.m_role()
        self.guard(3300, fall=False)
        self.ww_main()
        self.guard(3300, fall=False)
        if not self.o.get("tnear"): self.tw_early()
        self.tw_issue()
        self.tw_main()
        if self.diag:
            self.a.label("Ldump")
            self.dump_stamps()
        self.a.label("Lexit")
        self.a("s_endpgm")
        self.a.label("Lcode_end")
        body = self.a.finish()
        head = open("cdna_kernels/" + NAME + ".s.ref").read().split("; Override launch geometry")[0]
        return head + f"""; Generated by gen/gen_kernel.py (hand-written generator): one persistent launch, 256 workgroups x 5 waves.
; @launch grid=(256,1,1) block=(320,1,1) lds={LDS_BYTES}
.amdgcn_target "amdgcn-amd-amdhsa--gfx950"
.text
.globl {KNAME}
.p2align 12
.type {KNAME},@function
{KNAME}:
{body}
.section .rodata,"a"
.p2align 6
.amdhsa_kernel {KNAME}
  .amdhsa_next_free_vgpr 240
  .amdhsa_next_free_sgpr 102
  .amdhsa_accum_offset 240
  .amdhsa_group_segment_fixed_size 0
  .amdhsa_kernarg_size 112
  .amdhsa_user_sgpr_count 2
  .amdhsa_user_sgpr_kernarg_segment_ptr 1
  .amdhsa_system_sgpr_workgroup_id_x 1
.end_amdhsa_kernel
"""

if __name__ == "__main__":
    import argparse
    ap = argparse.ArgumentParser()
    ap.add_argument("-o", default="cdna_kernels/" + NAME + ".s")
    ap.add_argument("--diag", action="store_true")
    ap.add_argument("--wflag", default="nt")
    ap.add_argument("--opt", action="append", default=[])
    args = ap.parse_args()
    opts = {}
    for o in args.opt:
        k, _, v = o.partition("=")
        opts[k] = int(v) if v else 1
    open(args.o, "w").write(Gen(args.diag, args.wflag, opts).build())
    print("wrote", args.o)
```

```python
import sys, struct
from asmlib import Asm

NAME = "adaLN_cond__sliding_block_cached__glu_gated_reglu__decode"
KNAME = NAME + "_kernel"

def f32(x): return "0x%08x" % struct.unpack("<I", struct.pack("<f", x))[0]

EPOCH = 0x0
RDY = 0x1000
HM = 0x4000
HA = 0x8000
ALOC = 0x8000
HB = 0x140000
HD = 0x20000
HL = HD + 0x8000
HC = HL + 0x4000
LOC = 0x24000
HF = HC + 0x20000 + LOC
HFS = 7168
HP = 0xD0000
STAMP = 0x100000
WS_SIZE = 0x200000
LDS_BYTES = 151552
KB, VB, PB, MX, LS, QB = 0, 65536, 131072, 133120, 133248, 133632
WQ, WO, GA, RED, SCW = 0, 65536, 131072, 147456, 149504
W1, GU, DWN, MRG, SC = 0, 16384, 81920, 114688, 147456
REC, CSR, STAT = W1, W1 + 4096, W1 + 8192
AROW_O = 4096

LOG2E = 1.4426950408889634
CSC = (128 ** -0.5) * LOG2E
SPIN = 20000
import os
if os.environ.get('SPIN'): SPIN = int(os.environ['SPIN'])
MFMA = "v_mfma_f32_16x16x32_bf16"

class Gen:
    POISON = ("v_cmp_eq_u32", "-1")
    TAGBAD = ("v_cmp_ne_u32", "s14")

    def __init__(self, diag=False, wflag="nt", opts=None):
        self.a = Asm()
        self.diag = diag
        self.wf = wflag
        self.o = opts or {}
        self.nlab = 0
    def lab(self, p="L"):
        self.nlab += 1
        return f"{p}{self.nlab}"
    def stamp(self, k):
        if self.diag or self.o.get("amp") == k: self.a(f"s_memrealtime s[{64+2*k}:{65+2*k}]")
    def dump_max(self):
        a = self.a
        a("s_load_dwordx2 s[44:45], s[0:1], 96")
        a("s_mov_b32 s46, 256")
        a("s_mov_b32 s47, 0x20000")
        a("s_mov_b64 exec, 1")
        a("v_mov_b32 v1, 0")
        a("s_waitcnt lgkmcnt(0)")
        def put(slot, reg):
            a(f"v_mov_b32 v4, {reg}")
            a(f"buffer_atomic_umax v4, v1, s[44:47], 0 offen offset:{4*slot} sc1")
        a("s_not_b32 s60, s64")
        put(0, "s60"); put(1, "s64")
        a("s_lshr_b32 s5, s2, 3")
        a("s_cmp_ge_u32 s5, 24")
        a("s_cbranch_scc1 LdG")
        a("s_cmp_ge_u32 s5, 16")
        a("s_cbranch_scc1 LdW")
        for slot, k in ((6, 3), (7, 9), (8, 5), (15, 8)): put(slot, f"s{64+2*k}")
        a("s_endpgm")
        a.label("LdW")
        for slot, k in ((3, 2), (4, 3), (5, 4), (9, 6), (10, 7), (11, 8)): put(slot, f"s{64+2*k}")
        a("s_endpgm")
        a.label("LdG")
        for slot, k in ((2, 3), (12, 6), (13, 7), (14, 9)): put(slot, f"s{64+2*k}")
    def dump_gamp(self):
        a = self.a
        k, lo, hi = self.o["gamp"] // 10000, self.o["gamp"] // 100 % 100, self.o["gamp"] % 100
        a("s_waitcnt lgkmcnt(0)")
        a("s_lshr_b32 s5, s2, 3")
        a(f"s_sub_u32 s60, s5, {lo}")
        a(f"s_cmp_lt_u32 s60, {hi-lo}")
        a(f"s_cselect_b32 s61, s{64+2*k}, 0")
        a("s_cmp_eq_u32 s61, 0")
        a("s_cselect_b32 s61, s64, s61")
        a("s_lshl_b32 s60, s2, 2")
        a("s_add_u32 s60, s60, s3")
        a("s_lshl_b32 s60, s60, 2")
        a(f"s_add_u32 s60, s60, {STAMP}")
        a("s_mov_b64 exec, 1")
        a("v_mov_b32 v1, 0")
        a("v_mov_b32 v4, s64")
        a("v_mov_b32 v5, s61")
        a("buffer_store_dword v4, v1, s[40:43], s60 offen sc1")
        a("s_add_u32 s60, s60, 4096")
        a("buffer_store_dword v5, v1, s[40:43], s60 offen sc1")
        a("s_mov_b64 exec, -1")
        a("s_cmp_eq_u32 s2, 0")
        a("s_cbranch_scc0 Lexit")
        a("s_cmp_eq_u32 s3, 1")
        a("s_cbranch_scc0 Lexit")
        def until(reg):
            L = self.lab("Lu")
            a.label(L)
            a("s_memrealtime s[98:99]")
            a("s_waitcnt lgkmcnt(0)")
            a("s_sub_u32 s98, s98, s64")
            a(f"s_cmp_lt_u32 s98, {reg}")
            a(f"s_cbranch_scc1 {L}")
        until(3000)
        a("v_lshlrev_b32 v2, 4, v0")
        a(f"s_mov_b32 s60, {STAMP}")
        a(f"s_mov_b32 s61, {STAMP+4096}")
        for i in range(4):
            a(f"buffer_load_dwordx4 v[{8+4*i}:{11+4*i}], v2, s[40:43], s60 offen offset:{1024*i} sc1")
            a(f"buffer_load_dwordx4 v[{24+4*i}:{27+4*i}], v2, s[40:43], s61 offen offset:{1024*i} sc1")
        a("s_waitcnt vmcnt(0)")
        for i in range(32): a(f"v_subrev_u32 v{8+i}, s64, v{8+i}")
        for i in range(1, 16):
            a(f"v_min_i32 v8, v8, v{8+i}")
            a(f"v_max_i32 v24, v24, v{24+i}")
        a("s_mov_b32 s60, 0")
        a("s_mov_b32 s61, 0")
        for l in range(64):
            a(f"v_readlane_b32 s62, v8, {l}")
            a(f"v_readlane_b32 s63, v24, {l}")
            a("s_min_i32 s60, s60, s62")
            a("s_max_i32 s61, s61, s63")
        a("s_sub_u32 s61, s61, s60")
        a("s_mul_i32 s61, s61, 40")
        a("s_add_u32 s100, s61, 4000")
        until("s100")
    def dump_stamps(self):
        if not self.diag: return
        if self.o.get("gamp") is not None: return self.dump_gamp()
        if self.o.get("dmax"): return self.dump_max()
        a = self.a
        a("s_waitcnt lgkmcnt(0)")
        a("s_mov_b64 exec, 1")
        a("s_mul_i32 s60, s2, 5")
        a("s_add_u32 s60, s60, s3")
        a("s_lshl_b32 s60, s60, 6")
        a(f"s_add_u32 s60, s60, {STAMP}")
        a("v_mov_b32 v1, 0")
        for q in range(3):
            for i in range(4):
                a(f"v_mov_b32 v{4+i}, s{64+2*(4*q+i)}")
            a(f"buffer_store_dwordx4 v[4:7], v1, s[40:43], s60 offen offset:{16*q}")
            a("s_nop 1")
    def end(self, helper=False):
        self.a("s_branch Ldump" if self.diag and (not helper or self.o.get("hdump")) else "s_endpgm")
    def delay(self, key):
        n = self.o.get(key, 0)
        if not n: return
        a = self.a
        L = self.lab("Ld")
        a.label(L)
        a("s_memrealtime s[98:99]")
        a("s_waitcnt lgkmcnt(0)")
        a("s_sub_u32 s98, s98, s64")
        a(f"s_cmp_lt_u32 s98, {n}")
        a(f"s_cbranch_scc1 {L}")
    def guard(self, n, fall=True):
        L = self.lab("Lg")
        if fall: self.a(f"s_branch {L}")
        self.a(f".p2align 12, , {n}")
        self.a.label(L)
    def srd(self, d, p, size):
        a = self.a
        a(f"s_mov_b64 s[{d}:{d+1}], s[{p}:{p+1}]")
        a(f"s_mov_b32 s{d+2}, {size}")
        a(f"s_mov_b32 s{d+3}, 0x20000")
    def tag(self):
        self.a("s_mul_i32 s14, s14, 0x9E3779B1")
        self.a("s_add_u32 s14, s14, 0x7F4A7C15")
    def exec16(self, m):
        self.a(f"s_mov_b32 exec_lo, {(m << 16 | m):#x}")
        self.a(f"s_mov_b32 exec_hi, {(m << 16 | m):#x}")
    def poll(self, loads, checks, sleep=0, after=None):
        a = self.a
        L = self.lab("Lp"); D = self.lab("Lpd")
        n = len(loads)
        a(f"s_mov_b32 s12, {SPIN}")
        a.label(L)
        for l in loads: a(l)
        for i, (op, opd, r) in enumerate(checks):
            a(f"s_waitcnt vmcnt({n-1-i})")
            if i == 0:
                a(f"{op} s[10:11], {opd}, v{r}")
            else:
                a(f"{op} vcc, {opd}, v{r}")
                a("s_or_b64 s[10:11], s[10:11], vcc")
            if after: after(i)
        a("s_cmp_eq_u64 s[10:11], 0")
        a(f"s_cbranch_scc1 {D}")
        if sleep: a(f"s_sleep {sleep}")
        a("s_sub_u32 s12, s12, 1")
        a(f"s_cbranch_scc0 {L}")
        a.label(D)
    def spin(self, body, sleep=0, alt=None):
        a = self.a
        L = self.lab("Lp"); D = self.lab("Lpd")
        n = SPIN
        if alt:
            sregs, delta, every = alt
            for i, r in enumerate(sregs):
                a(f"s_mov_b32 s{96+2*i}, s{r}")
                a(f"s_add_u32 s{97+2*i}, s{r}, {delta}")
                a(f"s_mov_b32 s{r}, s{97+2*i}")
            n = SPIN * 4 | (every - 1)
        a(f"s_mov_b32 s12, {n}")
        a.label(L)
        body()
        a("s_cmp_eq_u64 s[10:11], 0")
        a(f"s_cbranch_scc1 {D}")
        if sleep: a(f"s_sleep {sleep}")
        if alt:
            a(f"s_and_b32 s13, s12, {every-1}")
            for i, r in enumerate(sregs): a(f"s_cselect_b32 s{r}, s{97+2*i}, s{96+2*i}")
        a("s_sub_u32 s12, s12, 1")
        a(f"s_cbranch_scc0 {L}")
        a.label(D)
    def ssent(self, soff, offs, cnt=13):
        a = self.a
        L = self.lab("Ls"); D = self.lab("Lsd")
        a(f"s_mov_b32 s{cnt}, {SPIN}")
        a.label(L)
        for k, o in enumerate(offs): a(f"s_load_dword s{88+k}, s[40:41], s{soff} offset:{o} glc")
        a("s_waitcnt lgkmcnt(0)")
        for k in range(len(offs)): a(f"s_xor_b32 s{88+k}, s{88+k}, s14")
        for k in range(1, len(offs)): a(f"s_or_b32 s88, s88, s{88+k}")
        a(f"s_cbranch_scc0 {D}")
        a(f"s_sub_u32 s{cnt}, s{cnt}, 1")
        a(f"s_cbranch_scc0 {L}")
        a.label(D)
    def sum_poll(self, loads, base, acc):
        a = self.a
        n = len(loads)
        def body():
            for l in loads: a(l)
            for i in range(1, n):
                a(f"s_waitcnt vmcnt({n-1-i})")
                src = base if i == 1 else acc
                for k in range(2): a(f"v_pk_add_f32 v[{acc+2*k}:{acc+1+2*k}], v[{src+2*k}:{src+1+2*k}], v[{base+4*i+2*k}:{base+1+4*i+2*k}]")
            a(f"v_cmp_u_f32 s[10:11], v{acc}, v{acc+1}")
            a(f"v_cmp_u_f32 vcc, v{acc+2}, v{acc+3}")
            a("s_or_b64 s[10:11], s[10:11], vcc")
        self.spin(body)
    def silu(self, regs, tmp):
        a = self.a
        for i, r in enumerate(regs): a(f"v_mul_f32 v{tmp+i}, {f32(-LOG2E)}, v{r}")
        for i, r in enumerate(regs): a(f"v_exp_f32 v{tmp+i}, v{tmp+i}")
        for i, r in enumerate(regs): a(f"v_add_f32 v{tmp+i}, 1.0, v{tmp+i}")
        for i, r in enumerate(regs): a(f"v_rcp_f32 v{tmp+i}, v{tmp+i}")
        for i, r in enumerate(regs): a(f"v_mul_f32 v{r}, v{r}, v{tmp+i}")
    def unpack(self, src, dst, n):
        for i in range(n):
            self.a(f"v_lshlrev_b32 v{dst+2*i}, 16, v{src+i}")
            self.a(f"v_and_b32 v{dst+2*i+1}, 0xffff0000, v{src+i}")
    def row_sum(self, r):
        for m in ("quad_perm:[1,0,3,2]", "quad_perm:[2,3,0,1]", "row_half_mirror", "row_mirror"):
            self.a(f"v_add_f32_dpp v{r}, v{r}, v{r} {m} row_mask:0xf bank_mask:0xf")
    def silu_frag(self, base):
        a = self.a
        a("v_bfe_u32 v10, v0, 4, 1")
        a("v_mul_u32_u24 v5, 144, v10")
        a("v_bfe_u32 v4, v0, 3, 1")
        a("v_lshl_add_u32 v5, v4, 6, v5")
        a("v_and_b32 v4, 3, v0")
        a("v_lshl_add_u32 v5, v4, 4, v5")
        a("v_bfe_u32 v4, v0, 2, 1")
        a("v_lshl_add_u32 v5, v4, 3, v5")
        a(f"v_add_u32 v5, {base}, v5")
    def silu_run(self):
        a = self.a
        self.unpack(28, 16, 2)
        self.silu([16, 17, 18, 19], 24)
        a("v_cvt_pk_bf16_f32 v28, v16, v17")
        a("v_cvt_pk_bf16_f32 v29, v18, v19")
        a("ds_write_b64 v5, v[28:29]")
    def c_voff(self, d):
        a = self.a
        a(f"v_bfe_u32 v{d}, v0, 4, 1")
        a(f"v_lshlrev_b32 v{d}, 10, v{d}")
        a("v_and_b32 v11, 15, v0")
        a(f"v_lshl_add_u32 v{d}, v11, 3, v{d}")
    def mfma(self, d, A, B, first):
        c = "0" if first else f"v[{d}:{d+3}]"
        self.a(f"{MFMA} v[{d}:{d+3}], v[{A}:{A+3}], v[{B}:{B+3}], {c}")
    def tr(self, r, va, off, second):
        self.a(f"ds_read_b64_tr_b16 v[{r}:{r+1}], v{va} offset:{off}")
        self.a(f"ds_read_b64_tr_b16 v[{r+2}:{r+3}], v{va} offset:{off+second}")
    def voff256(self, d, stride_sh, t0, t1):
        a = self.a
        a(f"v_lshrrev_b32 v{t0}, 4, v0")
        a(f"v_and_b32 v{t1}, 15, v0")
        a(f"v_lshlrev_b32 v{d}, 1, v{t0}")
        a(f"v_xor_b32 v{d}, v{t1}, v{d}")
        a(f"v_lshlrev_b32 v{d}, 4, v{d}")
        a(f"v_lshl_add_u32 v{d}, v{t0}, {stride_sh}, v{d}")
        a(f"v_xor_b32 v{d+1}, 0x80, v{d}")
    def voff128(self, d, stride, t0, t1):
        a = self.a
        a(f"v_lshrrev_b32 v{t0}, 3, v0")
        a(f"v_and_b32 v{d}, 6, v{t0}")
        a(f"v_and_b32 v{t1}, 7, v0")
        a(f"v_xor_b32 v{d}, v{d}, v{t1}")
        a(f"v_mul_u32_u24 v{t0}, {stride}, v{t0}")
        a(f"v_lshl_add_u32 v{d}, v{d}, 4, v{t0}")
    def traddr256(self, d, n, base, t0, t1, first=None):
        a = self.a
        a(f"v_lshrrev_b32 v{t0}, 2, v0")
        a(f"v_and_b32 v{d}, 7, v{t0}")
        a(f"v_lshlrev_b32 v{d}, 5, v{d}")
        a(f"v_lshl_add_u32 v{d}, v{t0}, 8, v{d}")
        a(f"v_and_b32 v{t1}, 3, v0")
        a(f"v_lshl_add_u32 v{d}, v{t1}, 3, v{d}")
        if first: a(f"v_xor_b32 v{d}, {first}, v{d}")
        a(f"v_add_u32 v{d}, {base}, v{d}")
        for i in range(1, n): a(f"v_xor_b32 v{d+i}, {32*i}, v{d}")
    def traddr128(self, d, base, t0, t1, grp_sh=10, n=4):
        a = self.a
        a(f"v_bfe_u32 v{t0}, v0, 2, 3")
        a(f"v_bfe_u32 v{d}, v0, 3, 2")
        a(f"v_lshlrev_b32 v{d}, 5, v{d}")
        a(f"v_lshl_add_u32 v{d}, v{t0}, 7, v{d}")
        a(f"v_lshrrev_b32 v{t0}, 5, v0")
        a(f"v_lshl_add_u32 v{d}, v{t0}, {grp_sh}, v{d}")
        a(f"v_and_b32 v{t1}, 3, v0")
        a(f"v_lshl_add_u32 v{d}, v{t1}, 3, v{d}")
        if base is not None: a(f"v_add_u32 v{d}, {base}, v{d}")
        for i in range(1, n): a(f"v_xor_b32 v{d+i}, {32*i}, v{d}")

    def prologue(self):
        a = self.a
        a("s_cmp_ge_u32 s2, 256")
        a("s_cbranch_scc1 Lexit")
        a("s_load_dwordx16 s[16:31], s[0:1], 0")
        a("s_load_dwordx8 s[32:39], s[0:1], 64")
        a("s_load_dwordx2 s[40:41], s[0:1], 104")
        if self.diag:
            for k in range(1, 12): a(f"s_mov_b32 s{64+2*k}, 0")
        self.stamp(0)
        if self.o.get("padto"): a("s_memrealtime s[96:97]")
        a("s_getpc_b64 s[56:57]")
        a.label("Lpc0")
        a("s_lshr_b32 s5, s2, 3")
        a("v_lshrrev_b32 v1, 6, v0")
        a("s_mul_i32 s6, s5, 640")
        a("v_lshl_add_u32 v2, v1, 7, s6")
        a("v_min_u32 v2, Lcode_end-Lpc0-4, v2")
        a("global_load_dword v239, v2, s[56:57]")
        a("v_and_b32 v0, 63, v0")
        a("s_and_b32 s4, s2, 7")
        a("v_readfirstlane_b32 s3, v1")
        a(f"s_mov_b32 s42, {WS_SIZE}")
        a("s_mov_b32 s43, 0x20000")
        a("s_mov_b32 s47, 0x20000")
        a("s_mov_b32 s51, 0x20000")
        a("s_lshl_b32 s7, s3, 14")
        a("s_cmp_ge_u32 s5, 24")
        a("s_cbranch_scc1 LG0")
        a("s_cmp_eq_u32 s3, 4")
        a("s_cbranch_scc1 LH0")
        self.voff256(6, 8, 1, 8)
        a("s_mov_b32 m0, s7")
        a("s_cmp_ge_u32 s5, 16")
        a("s_cbranch_scc0 LT0")

    def tw_early(self):
        a, wf = self.a, self.wf
        a.label("LT0")
        a("s_and_b32 s6, s5, 8")
        a("s_add_u32 s6, s6, s4")
        a("s_lshl_b32 s6, s6, 21")
        a("s_and_b32 s8, s5, 7")
        a("s_lshl_b32 s8, s8, 16")
        a("s_add_u32 s6, s6, s8")
        a("s_add_u32 s6, s6, s7")
        a(f"s_add_u32 s6, s6, {6144*256}")
        a("v_xor_b32 v2, v8, v1")
        a("v_lshlrev_b32 v2, 4, v2")
        a("v_lshl_add_u32 v2, v1, 8, v2")
        a("v_xor_b32 v3, 64, v2")
        a("v_xor_b32 v4, 0x80, v2")
        a("v_xor_b32 v5, 0xc0, v2")
        a("s_mov_b32 s8, s6")
        a("s_add_u32 s9, s6, 16384")
        a("s_mov_b32 s46, 0x2000000")
        a("s_mov_b32 s50, 0x2000000")
        thr = self.o.get("thr", 0)
        thk = self.o.get("thk", 2)
        if thr: a(f"s_add_u32 s10, s6, {4096*thr}")
        a("s_waitcnt lgkmcnt(0)")
        a("s_mov_b64 s[44:45], s[18:19]")
        a("s_mov_b64 s[48:49], s[20:21]")
        a("s_load_dword s14, s[40:41], 0")
        if thr:
            a.label("LTWt")
            for i in range(4):
                a(f"buffer_load_dwordx4 v{2+i}, s[44:47], s8 offen offset:{1024*i} {wf} lds")
                a(f"s_waitcnt vmcnt({thk})")
            a("s_add_u32 m0, m0, 4096")
            a("s_add_u32 s8, s8, 4096")
            a("s_cmp_lt_u32 s8, s10")
            a("s_cbranch_scc1 LTWt")
        cap = self.o.get("cap", 7)
        if thr < 4:
            a.label("LTWk")
            for i in range(4):
                a(f"buffer_load_dwordx4 v{2+i}, s[44:47], s8 offen offset:{1024*i} {wf} lds")
                if cap: a(f"s_waitcnt vmcnt({cap})")
            a("s_add_u32 m0, m0, 4096")
            a("s_add_u32 s8, s8, 4096")
            a("s_cmp_lt_u32 s8, s9")
            a("s_cbranch_scc1 LTWk")
        self.stamp(10)
        if self.o.get("tnear"): a("s_branch LTW1")

    def tw_issue(self):
        a, wf = self.a, self.wf
        cap = self.o.get("vcap", 8)
        if self.o.get("tnear"):
            a.label("LTHp")
            a("s_branch LTH")
            a.label("LTW1")
        a("s_lshl_b32 s55, s4, 14")
        a("s_and_b32 s13, s5, 8")
        a("s_lshl_b32 s13, s13, 10")
        a("s_add_u32 s55, s55, s13")
        a("s_lshl_b32 s13, s3, 11")
        a("s_add_u32 s55, s55, s13")
        a(f"s_add_u32 s55, s55, {HB}")
        a("v_lshlrev_b32 v21, 4, v0")
        a("v_mov_b32 v229, v21")
        a("s_lshl_b32 s27, s4, 7")
        a(f"s_add_u32 s27, s27, {RDY+2048}")
        a(f"s_add_u32 m0, s7, {VB}")
        a("s_mov_b32 s8, s6")
        a("s_waitcnt lgkmcnt(0)")
        self.tag()
        for g in range(4):
            if g == 2:
                a("s_mov_b64 exec, 0xff")
                self.rdy_load()
                a("s_mov_b64 exec, -1")
            for i in range(4):
                a(f"buffer_load_dwordx4 v{6+(i&1)}, s[48:51], s8 offen offset:{1024*i} {wf} lds")
                if cap: a(f"s_waitcnt vmcnt({cap})")
            if g < 3:
                a("s_add_u32 m0, m0, 4096")
                a("s_add_u32 s8, s8, 4096")
        a("s_waitcnt vmcnt(8)")
        a("s_mov_b64 exec, 0xff")
        self.rdy_check()
        a("s_mov_b64 exec, -1")
        self.qfetch()

    def qfetch(self):
        for i in range(2): self.a(f"buffer_load_dwordx4 v[{192+4*i}:{195+4*i}], v21, s[40:43], s55 offen offset:{1024*i} sc1")

    def ww_early(self):
        a, wf = self.a, self.wf
        a.label("LW0")
        if self.o.get("now"): a("s_endpgm")
        a("s_lshl_b32 s9, s4, 19")
        a("s_and_b32 s52, s5, 7")
        a("s_lshl_b32 s15, s52, 10")
        a("s_add_u32 s9, s9, s15")
        a("s_lshl_b32 s15, s3, 8")
        a("s_add_u32 s9, s9, s15")
        a("v_mul_u32_u24 v2, 0x1f00, v1")
        a("v_add_u32 v6, v6, v2")
        a("v_add_u32 v7, v7, v2")
        a("s_add_u32 s13, s7, 16384")
        a(f"s_mov_b32 s46, {512*8192}")
        a("s_waitcnt lgkmcnt(0)")
        a("s_mov_b64 s[44:45], s[22:23]")
        self.delay("wdel")
        a("s_load_dword s14, s[40:41], 0")
        a.label("LWq")
        for i in range(2):
            a(f"buffer_load_dwordx4 v{6+i}, s[44:47], s9 offen {wf} lds")
            a("s_add_u32 m0, m0, 1024")
            a("s_add_u32 s9, s9, 32768")
        if self.o.get("qcap", 8): a(f"s_waitcnt vmcnt({self.o.get('qcap', 8)})")
        a("s_cmp_lt_u32 m0, s13")
        a("s_cbranch_scc1 LWq")
        a("s_branch LW2")
        a.label("LH0")
        a("s_cmp_ge_u32 s5, 16")
        a("s_cbranch_scc0 " + ("LTHp" if self.o.get("tnear") else "LTH"))
        a("s_branch LWHp")

    def g_early(self):
        a, wf = self.a, self.wf
        a.label("LG0")
        if self.o.get("nog"): a("s_endpgm")
        a("s_sub_u32 s5, s5, 24")
        if self.o.get("chs", 0):
            a("s_mov_b32 s60, s5")
            a("s_mov_b32 s61, s4")
        else:
            a("s_mov_b32 s60, s4")
            a("s_mov_b32 s61, s5")
        a("s_mov_b32 s50, 2048")
        a("s_cmp_eq_u32 s3, 4")
        a("s_cbranch_scc0 LGW")
        self.c_voff(4)
        a("s_lshl_b32 s9, s61, 7")
        a("s_waitcnt lgkmcnt(0)")
        a("s_mov_b64 s[48:49], s[34:35]")
        a("buffer_load_dwordx2 v[28:29], v4, s[48:51], s9 offen")
        a("s_load_dword s14, s[40:41], 0")
        self.silu_frag(SC)
        a("s_waitcnt vmcnt(0)")
        self.silu_run()
        a("s_waitcnt lgkmcnt(0)")
        a("s_barrier")
        a("s_barrier")
        a("s_branch LGH2")
        a.label("LGW")
        a("v_lshlrev_b32 v6, 4, v0")
        self.voff128(2, 6144, 1, 3)
        a("s_lshl_b32 s9, s61, 2")
        a("s_add_u32 s9, s9, s3")
        a(f"s_mul_i32 s9, s9, {16*6144}")
        a("s_lshl_b32 s6, s60, 7")
        a("s_add_u32 s9, s9, s6")
        a("s_lshl_b32 s13, s3, 5")
        a("s_add_u32 s6, s6, s13")
        a("v_and_b32 v12, 1, v0")
        a("v_and_b32 v13, 48, v0")
        a("v_lshrrev_b32 v4, 1, v13")
        a("v_lshl_add_u32 v4, v12, 10, v4")
        a("s_lshr_b32 m0, s7, 2")
        a(f"s_mov_b32 s54, {512*6144}")
        a("s_mov_b32 s55, 0x20000")
        a("s_lshl_b32 s8, s60, 12")
        a("s_lshl_b32 s15, s3, 10")
        a("s_add_u32 s8, s8, s15")
        a("s_lshl_b32 s15, s61, 7")
        a("s_add_u32 s8, s8, s15")
        a(f"s_add_u32 s8, s8, {HA}")
        a(f"s_add_u32 s62, s8, {ALOC}")
        a("s_waitcnt lgkmcnt(0)")
        a("s_mov_b64 s[48:49], s[16:17]")
        a("s_mov_b64 s[52:53], s[36:37]")
        a("buffer_load_dwordx4 v[24:27], v6, s[48:51], 0 offen")
        a("buffer_load_dwordx4 v[28:31], v6, s[48:51], 0 offen offset:1024")
        self.exec16(3)
        a("buffer_load_dwordx2 v[20:21], v4, s[48:51], s6 offen")
        a("s_mov_b64 exec, -1")
        for i in range(2):
            a(f"buffer_load_dwordx4 v2, s[52:55], s9 offen {wf} lds")
            a(f"buffer_load_dwordx4 v2, s[52:55], s9 offen offset:1024 {wf} lds")
            if i == 0:
                a("s_add_u32 m0, m0, 2048")
                a(f"s_add_u32 s9, s9, {8*6144}")
        a("s_mov_b64 exec, 1")
        a("buffer_load_dword v238, v6, s[40:43], s62 offen sc1")
        a("s_mov_b64 exec, -1")
        a("s_load_dword s14, s[40:41], 0")
        mr0 = 0
        self.traddr128(8, None, 1, 3, grp_sh=11, n=1)
        a("v_xor_b32 v8, s13, v8")
        a("v_mul_u32_u24 v6, 144, v12")
        a("v_add_u32 v6, v6, v13")
        a(f"v_add_u32 v6, {SC}, v6")
        a("v_lshlrev_b32 v7, 4, v12")
        a("v_lshl_add_u32 v13, v13, 1, v7")
        a("s_cmp_eq_u32 s61, 0")
        a("s_cselect_b32 s9, 1.0, 0")
        for i in range(4): a(f"v_mov_b32 v{44+i}, s9")
        a("s_mov_b32 s9, 0x3f803f80")
        a("v_lshlrev_b32 v7, 7, v12")
        a(f"s_waitcnt vmcnt({5+mr0})")
        for b in range(2):
            a(f"v_dot2_f32_bf16 v{48+b}, v{24+4*b}, s9, 0")
            a(f"v_dot2_f32_bf16 v{50+b}, v{24+4*b}, v{24+4*b}, 0")
        for i in range(1, 4):
            for b in range(2):
                a(f"v_dot2_f32_bf16 v{48+b}, v{24+4*b+i}, s9, v{48+b}")
                a(f"v_dot2_f32_bf16 v{50+b}, v{24+4*b+i}, v{24+4*b+i}, v{50+b}")
        a("v_permlane32_swap_b32 v48, v49")
        a("v_permlane32_swap_b32 v50, v51")
        a("v_add_f32 v48, v48, v49")
        a("v_add_f32 v50, v50, v51")
        a("v_permlane16_swap_b32 v48, v50")
        a("v_add_f32 v48, v48, v50")
        self.row_sum(48)
        a("ds_bpermute_b32 v50, v7, v48")
        a("ds_bpermute_b32 v51, v7, v48 offset:64")
        a(f"v_mov_b32 v52, {f32(1e-5)}")
        a("s_waitcnt lgkmcnt(0)")
        self.tag()
        a(f"v_mul_f32 v50, {f32(1/512)}, v50")
        a(f"v_fmamk_f32 v51, v51, {f32(1/512)}, v52")
        a("v_fma_f32 v51, -v50, v50, v51")
        a("v_rsq_f32 v51, v51")
        self.unpack(20, 16, 2)
        for i in range(4): a(f"v_sub_f32 v{16+i}, v{16+i}, v50")
        for i in range(4): a(f"v_mul_f32 v{16+i}, v{16+i}, v51")
        a("v_mov_b32 v58, s14")
        a("v_mov_b32 v59, s14")
        a(f"s_waitcnt vmcnt({1+mr0})")
        a("s_barrier")
        self.stamp(1)
        for ks in range(2):
            a(f"ds_read_b128 v[{32+4*ks}:{35+4*ks}], v6 offset:{64*ks}")
            for seg in range(2): self.tr(64 + 8 * ks + 4 * seg, 8, W1 + 8192 * ks + 1024 * seg, 4096)
        a("s_waitcnt lgkmcnt(5)")
        self.mfma(40, 64, 32, True)
        self.mfma(44, 68, 32, False)
        a("s_waitcnt lgkmcnt(0)")
        self.mfma(40, 72, 36, False)
        self.mfma(44, 76, 36, False)
        self.exec16(3)
        for k in range(2): a(f"v_pk_fma_f32 v[{40+2*k}:{41+2*k}], v[{16+2*k}:{17+2*k}], v[{44+2*k}:{45+2*k}], v[{40+2*k}:{41+2*k}]")
        a("v_cvt_pk_bf16_f32 v56, v40, v41")
        a("v_cvt_pk_bf16_f32 v57, v42, v43")
        a("buffer_store_dwordx4 v[56:59], v13, s[40:43], s62 offen")
        a("buffer_store_dwordx4 v[56:59], v13, s[40:43], s8 offen sc1")
        a("s_mov_b64 exec, -1")
        self.stamp(3)
        a("s_barrier")

    def wo_setup(self):
        a = self.a
        self.voff128(2, 1024, 3, 4)
        a("s_lshl_b32 s53, s4, 19")
        a("s_lshl_b32 s15, s3, 17")
        a("s_add_u32 s53, s53, s15")
        a("s_lshr_b32 s15, s52, 2")
        a("s_add_u32 s53, s53, s15")
        a(f"s_add_u32 s59, s7, {WO+16384}")
        a(f"s_add_u32 s62, s7, {WO}")
        a("s_mov_b64 s[48:49], s[24:25]")
        a(f"s_mov_b32 s50, {4096*1024}")
    def mr_issue(self, v, srd):
        a, wf = self.a, self.wf
        L = self.lab("Lmr")
        a(f"s_mul_i32 s9, s61, {64*6144}")
        a("s_lshl_b32 s15, s60, 9")
        a("s_add_u32 s9, s9, s15")
        a("s_lshl_b32 s15, s3, 7")
        a("s_add_u32 s9, s9, s15")
        a("s_add_u32 s9, s9, 2048")
        a("s_mov_b32 m0, s63")
        a("s_add_u32 s15, s63, 8192")
        a.label(L)
        a(f"buffer_load_dwordx4 v{v}, s[{srd}:{srd+3}], s9 offen {wf} lds")
        a("s_add_u32 m0, m0, 1024")
        a(f"s_add_u32 s9, s9, {8*6144}")
        a("s_cmp_lt_u32 m0, s15")
        a(f"s_cbranch_scc1 {L}")
    def mr_compute(self, sc, younger):
        a = self.a
        self.traddr128(8, "s63", 5, 6)
        a("v_and_b32 v5, 1, v0")
        a("v_and_b32 v6, 48, v0")
        a("v_mul_u32_u24 v7, 144, v5")
        a("v_add_u32 v7, v7, v6")
        a(f"v_add_u32 v7, {sc}, v7")
        a("v_lshlrev_b32 v5, 4, v5")
        a("v_lshl_add_u32 v5, v6, 1, v5")
        for ks in range(2): a(f"ds_read_b128 v[{32+4*ks}:{35+4*ks}], v7 offset:{64*ks}")
        a("s_lshl_b32 s9, s60, 14")
        a("s_lshl_b32 s15, s3, 12")
        a("s_add_u32 s9, s9, s15")
        a("s_lshl_b32 s15, s61, 7")
        a("s_add_u32 s9, s9, s15")
        a(f"s_add_u32 s9, s9, {HP}")
        a(f"s_waitcnt vmcnt({younger})")
        a("s_setprio 3")
        for ks in range(2):
            for t in range(4): self.tr(64 + 16 * ks + 4 * t, 8 + t, 4096 * ks, 2048)
        a("s_waitcnt lgkmcnt(0)")
        for ks in range(2):
            for t in range(4): self.mfma(40 + 4 * t, 64 + 16 * ks + 4 * t, 32 + 4 * ks, ks == 0)
        self.exec16(3)
        for t in range(4):
            a(f"v_cvt_pk_bf16_f32 v{40+4*t}, v{40+4*t}, v{41+4*t}")
            a(f"v_cvt_pk_bf16_f32 v{41+4*t}, v{42+4*t}, v{43+4*t}")
            a(f"v_mov_b32 v{42+4*t}, s14")
        for t in range(4): a(f"buffer_store_dwordx4 v[{40+4*t}:{43+4*t}], v5, s[40:43], s9 offen offset:{1024*t} sc1")
        a("s_mov_b64 exec, -1")
        a("s_setprio 0")
        self.stamp(11)
    def rdy_publish(self, vb, jreg):
        a = self.a
        for i in range(4): a(f"v_mov_b32 v{vb+i}, s14")
        a(f"v_mov_b32 v{vb+4}, 0")
        a(f"s_lshl_b32 s15, {jreg}, 4")
        a(f"s_add_u32 s15, s15, {RDY}")
        a("s_mov_b64 exec, 1")
        a(f"buffer_store_dwordx4 v[{vb}:{vb+3}], v{vb+4}, s[40:43], s15 offen sc1")
        a("s_mov_b64 exec, -1")
    def rdy_load(self):
        self.a("buffer_load_dword v237, v229, s[40:43], s27 offen sc1")
    def rdy_check(self):
        a = self.a
        L = self.lab("Lok")
        a("v_cmp_ne_u32 vcc, s14, v237")
        a(f"s_cbranch_vccz {L}")
        self.poll(["buffer_load_dword v237, v229, s[40:43], s27 offen sc1"], [(*self.TAGBAD, 237)], sleep=2)
        a.label(L)

    def g_index(self):
        a = self.a
        a("s_mul_i32 s26, s4, 7")
        a("s_add_u32 s26, s26, s5")
        a("s_cmp_eq_u32 s5, 7")

    def tw_main(self):
        a = self.a
        self.stamp(1)
        a("v_lshlrev_b32 v22, 2, v8")
        a("v_lshrrev_b32 v23, 5, v0")
        a("v_lshl_add_u32 v22, v23, 1, v22")
        a("v_and_b32 v23, 16, v0")
        a("v_lshl_add_u32 v22, v23, 3, v22")
        a("s_mul_i32 s13, s3, 272")
        a(f"s_add_u32 s13, s13, {QB}")
        a("v_add_u32 v22, s13, v22")
        a("v_xor_b32 v3, v8, v1")
        a("v_lshlrev_b32 v3, 4, v3")
        a("v_lshl_add_u32 v3, v8, 8, v3")
        a("v_add_u32 v8, s7, v3")
        a("v_xor_b32 v9, 64, v8")
        a("v_xor_b32 v10, 0x80, v8")
        a("v_xor_b32 v11, 0xc0, v8")
        for t in range(4):
            for ks in range(4):
                r = 64 + 16 * t + 4 * ks
                a(f"ds_read_b128 v[{r}:{r+3}], v{8+ks} offset:{4096*t}")
        a("s_lshl_b32 s8, s3, 6")
        self.traddr256(12, 2, VB, 3, 5, first="s8")
        a("v_mul_u32_u24 v20, 272, v5")
        a("v_lshl_add_u32 v20, v1, 4, v20")
        a(f"v_add_u32 v20, {QB}, v20")
        a("v_lshlrev_b32 v14, 6, v5")
        a("v_lshl_add_u32 v14, v1, 4, v14")
        a(f"v_add_u32 v14, {PB}, v14")
        a("s_lshl_b32 s9, s3, 9")
        a("v_add_u32 v15, s9, v14")
        a("v_lshlrev_b32 v16, 4, v5")
        a(f"v_add_u32 v16, {MX}, v16")
        a("s_lshl_b32 s9, s3, 2")
        a("v_add_u32 v17, s9, v16")
        a("v_lshlrev_b32 v18, 8, v5")
        a("v_lshl_add_u32 v18, v1, 4, v18")
        a("v_lshlrev_b32 v19, 2, v5")
        a("s_lshl_b32 s6, s4, 4")
        a("s_add_u32 s6, s6, s5")
        a("s_lshl_b32 s9, s6, 10")
        a("s_add_u32 s8, s8, s9")
        a(f"s_add_u32 s8, s8, {HC}")
        a("s_lshl_b32 s52, s6, 7")
        a(f"s_add_u32 s52, s52, {HL}")
        a(f"s_add_u32 s53, s8, {LOC}")
        a(f"s_add_u32 s54, s52, {LOC}")
        a(f"s_mov_b32 s10, {f32(CSC)}")
        a("s_lshl_b64 s[58:59], 1, s3")
        a("v_lshlrev_b32 v232, 6, v5")
        a(f"v_add_u32 v232, {LS}, v232")
        a("s_lshl_b32 s9, s3, 4")
        a("v_lshl_add_u32 v233, v1, 2, s9")
        a("v_add_u32 v233, v233, v232")
        def vr(k):
            for t in range(2): self.tr(128 + 8 * k + 4 * t, 12 + t, 8192 * k, 4096)
        def xrow(op, r):
            a(f"v_mov_b32 v225, v{r}")
            a(f"v_permlane16_swap_b32 v{r}, v225")
            a(f"{op} v{r}, v{r}, v225")
            a(f"v_mov_b32 v225, v{r}")
            a(f"v_permlane32_swap_b32 v{r}, v225")
            a(f"{op} v{r}, v{r}, v225")
        a(f"s_mov_b32 s12, {SPIN}")
        a("s_barrier")
        for k in (0, 2, 4, 6): vr(k)
        a("s_branch LTq1")
        a.label("LTq0")
        if self.o.get("qsleep", 0): a(f"s_sleep {self.o['qsleep']}")
        self.qfetch()
        a.label("LTq1")
        a("s_waitcnt vmcnt(1)")
        self.unpack(192, 24, 4)
        a("s_waitcnt vmcnt(0)")
        self.unpack(196, 32, 4)
        for k in range(4): a(f"v_pk_add_f32 v[{24+2*k}:{25+2*k}], v[{24+2*k}:{25+2*k}], v[{32+2*k}:{33+2*k}]")
        for i in range(4): a(f"v_permlane32_swap_b32 v{24+i}, v{28+i}")
        for k in range(2): a(f"v_pk_add_f32 v[{24+2*k}:{25+2*k}], v[{24+2*k}:{25+2*k}], v[{28+2*k}:{29+2*k}]")
        for i in range(2): a(f"v_permlane16_swap_b32 v{24+i}, v{26+i}")
        a("v_pk_add_f32 v[24:25], v[24:25], v[26:27]")
        a("v_cmp_u_f32 vcc, v24, v25")
        a("v_cvt_pk_bf16_f32 v24, v24, v25")
        a("s_cbranch_vccz LTq2")
        a("s_sub_u32 s12, s12, 1")
        a("s_cbranch_scc0 LTq0")
        a.label("LTq2")
        self.stamp(2)
        a("ds_write_b16 v22, v24")
        a("ds_write_b16_d16_hi v22, v24 offset:64")
        a("s_waitcnt lgkmcnt(0)")
        a("s_barrier")
        for ks in range(4): a(f"ds_read_b128 v[{208+4*ks}:{211+4*ks}], v20 offset:{64*ks}")
        self.stamp(3)
        for ks in range(4):
            a(f"s_waitcnt lgkmcnt({3+3*ks})")
            for t in range(4): self.mfma(40 + 4 * t, 64 + 16 * t + 4 * ks, 208 + 4 * ks, ks == 0)
            vr(1 + 2 * ks)
        a("v_max3_f32 v224, v40, v41, v42")
        a("v_max3_f32 v225, v43, v44, v45")
        a("v_max3_f32 v226, v46, v47, v48")
        a("v_max3_f32 v227, v49, v50, v51")
        a("v_max3_f32 v228, v52, v53, v54")
        a("v_max3_f32 v224, v224, v225, v226")
        a("v_max3_f32 v227, v227, v228, v55")
        a("v_max_f32 v224, v224, v227")
        xrow("v_max_f32", 224)
        a(f"v_mul_f32 v230, {f32(-CSC)}, v224")
        for i in range(8): a(f"v_pk_fma_f32 v[{40+2*i}:{41+2*i}], v[{40+2*i}:{41+2*i}], s[10:11], v[230:231] op_sel_hi:[1,0,0]")
        a("ds_write_b32 v17, v230")
        self.exec16(15)
        for blk in range(2):
            for i in range(8): a(f"v_exp_f32 v{40+8*blk+i}, v{40+8*blk+i}")
            for i in range(4): a(f"v_cvt_pk_bf16_f32 v{56+4*blk+i}, v{40+8*blk+2*i}, v{41+8*blk+2*i}")
            a(f"ds_write_b128 v15, v[{56+4*blk}:{59+4*blk}] offset:{256*blk}")
        for i in range(4): a(f"v_pk_add_f32 v[{40+2*i}:{41+2*i}], v[{40+2*i}:{41+2*i}], v[{48+2*i}:{49+2*i}]")
        for i in range(2): a(f"v_pk_add_f32 v[{40+2*i}:{41+2*i}], v[{40+2*i}:{41+2*i}], v[{44+2*i}:{45+2*i}]")
        a("v_pk_add_f32 v[40:41], v[40:41], v[42:43]")
        a("v_add_f32 v231, v40, v41")
        a("ds_write_b32 v233, v231")
        a("s_mov_b64 exec, -1")
        a("s_waitcnt lgkmcnt(0)")
        a("s_barrier")
        self.stamp(4)
        for k in range(2): a(f"ds_read_b128 v[{64+4*k}:{67+4*k}], v14 offset:{256*k}")
        a("ds_read_b128 v[24:27], v16")
        for w in range(4): a(f"ds_read_b128 v[{96+4*w}:{99+4*w}], v232 offset:{16*w}")
        for k in range(2, 8): a(f"ds_read_b128 v[{64+4*k}:{67+4*k}], v14 offset:{256*k}")
        def pv(k):
            for t in range(2): self.mfma(192 + 8 * (k >> 1) + 4 * t, 128 + 8 * k + 4 * t, 64 + 4 * k, (k & 1) == 0)
        a("s_waitcnt lgkmcnt(12)")
        pv(0)
        a("s_waitcnt lgkmcnt(10)")
        pv(1)
        a("v_min3_f32 v32, v24, v25, v26")
        a("v_min_f32 v32, v32, v27")
        a("s_waitcnt lgkmcnt(5)")
        pv(2)
        for k in range(2): a(f"v_pk_add_f32 v[{24+2*k}:{25+2*k}], v[32:33], v[{24+2*k}:{25+2*k}] op_sel_hi:[0,1] neg_lo:[0,1] neg_hi:[0,1]")
        for w in range(4): a(f"v_pk_add_f32 v[{96+4*w}:{97+4*w}], v[{96+4*w}:{97+4*w}], v[{98+4*w}:{99+4*w}]")
        a("s_waitcnt lgkmcnt(4)")
        pv(3)
        for w in range(4): a(f"v_exp_f32 v{24+w}, v{24+w}")
        a("s_waitcnt lgkmcnt(3)")
        pv(4)
        a("v_pk_mul_f32 v[96:97], v[96:97], v[24:25] op_sel_hi:[1,0]")
        a("v_pk_fma_f32 v[96:97], v[100:101], v[24:25], v[96:97] op_sel:[0,1,0] op_sel_hi:[1,1,1]")
        a("v_pk_fma_f32 v[96:97], v[104:105], v[26:27], v[96:97] op_sel_hi:[1,0,1]")
        a("v_pk_fma_f32 v[96:97], v[108:109], v[26:27], v[96:97] op_sel:[0,1,0] op_sel_hi:[1,1,1]")
        a("v_add_f32 v33, v96, v97")
        a("s_waitcnt lgkmcnt(2)")
        pv(5)
        a("v_rcp_f32 v36, v33")
        a("v_log_f32 v37, v33")
        for k in range(2): a(f"v_pk_mul_f32 v[{24+2*k}:{25+2*k}], v[{24+2*k}:{25+2*k}], v[36:37] op_sel_hi:[1,0]")
        a("s_waitcnt lgkmcnt(1)")
        pv(6)
        for i in range(4): a(f"v_pk_mul_f32 v[{192+2*i}:{193+2*i}], v[{192+2*i}:{193+2*i}], v[24:25] op_sel_hi:[1,0]")
        a("s_waitcnt lgkmcnt(0)")
        pv(7)
        for i in range(4): a(f"v_pk_fma_f32 v[{192+2*i}:{193+2*i}], v[{200+2*i}:{201+2*i}], v[24:25], v[{192+2*i}:{193+2*i}] op_sel:[0,1,0] op_sel_hi:[1,1,1]")
        for i in range(4): a(f"v_pk_fma_f32 v[{192+2*i}:{193+2*i}], v[{208+2*i}:{209+2*i}], v[26:27], v[{192+2*i}:{193+2*i}] op_sel_hi:[1,0,1]")
        a("v_sub_f32 v37, v37, v32")
        self.exec16(15)
        for i in range(4): a(f"v_pk_fma_f32 v[{192+2*i}:{193+2*i}], v[{216+2*i}:{217+2*i}], v[26:27], v[{192+2*i}:{193+2*i}] op_sel:[0,1,0] op_sel_hi:[1,1,1]")
        for i in range(4): a(f"v_cvt_pk_bf16_f32 v{200+i}, v{192+2*i}, v{193+2*i}")
        if self.o.get("loc", 1): a("buffer_store_dwordx4 v[200:203], v18, s[40:43], s53 offen")
        a("s_mov_b64 exec, s[58:59]")
        if self.o.get("loc", 1): a("buffer_store_dword v37, v19, s[40:43], s54 offen")
        a("buffer_store_dword v37, v19, s[40:43], s52 offen sc1")
        self.exec16(15)
        a("buffer_store_dwordx4 v[200:203], v18, s[40:43], s8 offen sc1")
        a("s_mov_b64 exec, -1")
        self.stamp(5)
        if self.o.get("nored"): self.end()
        a("s_cmp_lt_u32 s5, 4")
        a("s_cbranch_scc0 LTWe")
        a("s_cmp_eq_u32 s3, 1")
        a("s_cbranch_scc0 LTWe")
        a("s_lshl_b32 s6, s4, 2")
        a("s_add_u32 s6, s6, s5")
        self.srd(44, 16, 2048)
        self.srd(48, 38, 2048)
        a("v_bfe_u32 v2, v0, 2, 1")
        a("v_and_b32 v3, 3, v0")
        a("v_lshlrev_b32 v4, 3, v3")
        a("v_lshl_add_u32 v5, v2, 10, v4")
        a("v_lshlrev_b32 v6, 1, v5")
        a("v_lshrrev_b32 v8, 3, v0")
        a("v_lshl_add_u32 v7, v8, 12, v6")
        a("v_lshlrev_b32 v9, 4, v0")
        a("s_lshl_b32 s7, s6, 5")
        a("s_lshl_b32 s8, s6, 6")
        a(f"s_add_u32 s9, s8, {HD}")
        a(f"s_add_u32 s52, s8, {HM}")
        a(f"s_add_u32 s53, s8, {HM+3*4096}")
        a(f"s_mul_i32 s54, s6, {HFS}")
        a(f"s_add_u32 s54, s54, {HF}")
        a("s_add_u32 s55, s54, 4096")
        a("buffer_load_dwordx2 v[10:11], v5, s[44:47], s7 offen")
        a(f"s_mov_b32 s27, {RDY}")
        self.poll([f"buffer_load_dword v{40+i}, v9, s[40:43], s27 offen offset:{1024*i} sc1" for i in range(4)]
                  + ["buffer_load_dwordx4 v[12:15], v6, s[40:43], s52 offen sc1", "buffer_load_dwordx4 v[16:19], v6, s[40:43], s53 offen sc1"],
                  [(*self.TAGBAD, 40 + i) for i in range(4)] + [(*self.TAGBAD, 14), (*self.TAGBAD, 18)], sleep=2)
        self.poll(["buffer_load_dwordx4 v[24:27], v7, s[40:43], s9 offen sc1"], [(*self.POISON, 24)], sleep=2)
        self.stamp(6)
        a("s_cmp_eq_u32 s6, 0")
        a("s_cbranch_scc0 LTWn")
        a("s_mov_b64 exec, 1")
        a("v_mov_b32 v20, s14")
        a("v_mov_b32 v21, 0")
        a(f"buffer_store_dword v20, v21, s[40:43], 0 offen offset:{EPOCH} sc1")
        a("s_mov_b64 exec, -1")
        a.label("LTWn")
        red8 = self.red8
        red8(24)
        self.unpack(10, 28, 2)
        self.unpack(12, 32, 2)
        self.unpack(16, 36, 2)
        for i in range(4): a(f"v_fmac_f32 v{28+i}, v{24+i}, v{32+i}")
        self.sum_poll([f"buffer_load_dwordx4 v[{64+4*i}:{67+4*i}], v9, s[40:43], s{54+(i>>2)} offen offset:{1024*(i&3)} sc1" for i in range(7)], 64, 56)
        self.stamp(7)
        red8(56)
        for i in range(4): a(f"v_fmac_f32 v{28+i}, v{56+i}, v{36+i}")
        a("v_cvt_pk_bf16_f32 v10, v28, v29")
        a("v_cvt_pk_bf16_f32 v11, v30, v31")
        a("s_mov_b64 exec, 0xff")
        a("buffer_store_dwordx2 v[10:11], v5, s[48:51], s7 offen " + ["", "sc1", "nt", "sc0 sc1"][self.o.get("oflag", 0)])
        self.stamp(8)
        if self.o.get("padto"):
            a("s_cmp_eq_u32 s6, 0")
            a("s_cbranch_scc0 LTWe")
        if self.o.get("padto"):
            a(f"s_mov_b32 s100, {self.o['padto']}")
            if self.o.get("amp"):
                a("s_waitcnt lgkmcnt(0)")
                a(f"s_sub_u32 s98, s{64+2*self.o['amp']}, s96")
                a("s_mul_i32 s98, s98, 10")
                a("s_add_u32 s100, s100, s98")
            a.label("Lpad")
            a("s_memrealtime s[98:99]")
            a("s_waitcnt lgkmcnt(0)")
            a("s_sub_u32 s98, s98, s96")
            a("s_cmp_lt_u32 s98, s100")
            a("s_cbranch_scc1 Lpad")
        a.label("LTWe")
        self.end()

    def ww_main(self):
        a, wf = self.a, self.wf
        a.label("LWHp")
        a("s_branch LWH2")
        a.label("LW2")
        self.stamp(1)
        self.traddr256(8, 8, "s7", 3, 5)
        a("s_lshr_b32 s58, s7, 2")
        a(f"s_add_u32 s58, s58, {GA}")
        a("v_and_b32 v3, 7, v0")
        a("v_lshlrev_b32 v3, 7, v3")
        a("v_lshl_add_u32 v3, v1, 5, v3")
        a("v_bfe_u32 v4, v0, 3, 1")
        a("v_lshl_add_u32 v16, v4, 4, v3")
        a("v_add_u32 v16, s58, v16")
        a("v_add_u32 v20, 2048, v16")
        a("v_add_u32 v22, 8, v16")
        a("v_lshlrev_b32 v21, 4, v0")
        a("s_lshl_b32 s8, s4, 12")
        a(f"s_add_u32 s8, s8, {HA}")
        a(f"s_add_u32 s6, s8, {ALOC if self.o.get('aloc', 1) else 0}")
        a("s_mov_b32 s9, s6")
        a("v_lshrrev_b32 v3, 5, v0")
        a("v_and_b32 v4, 31, v0")
        a(f"v_add_u32 v18, {RED}, v21")
        a("v_lshlrev_b32 v19, 3, v4")
        a("v_lshl_add_u32 v19, v3, 13, v19")
        a("s_lshl_b32 s55, s52, 14")
        a("s_lshl_b32 s15, s3, 11")
        a("s_add_u32 s55, s55, s15")
        a("s_lshl_b32 s15, s4, 8")
        a("s_add_u32 s55, s55, s15")
        a(f"s_add_u32 s55, s55, {HB}")
        a("s_lshl_b32 s52, s52, 9")
        self.wo_setup()
        a("s_mov_b32 m0, s58")
        def agather():
            for t in range(4): a(f"buffer_load_dwordx4 v21, s[40:43], s9 offen offset:{1024*t} sc1 lds")
        a("s_barrier")
        a(f"s_waitcnt vmcnt({self.o.get('apre', 2)})")
        agather()
        a("s_waitcnt vmcnt(4) lgkmcnt(0)")
        self.tag()
        self.stamp(2)
        for ks in range(2):
            for t in range(8): self.tr(64 + 32 * ks + 4 * t, 8 + t, 8192 * ks, 4096)
        a(f"s_mov_b32 s12, {SPIN*4 | 15}")
        a("s_branch LWa1")
        a.label("LWa0")
        a("s_and_b32 s13, s12, 15")
        a("s_cselect_b32 s9, s6, s8")
        agather()
        a.label("LWa1")
        a("s_waitcnt vmcnt(0)")
        a("ds_read2st64_b32 v[32:33], v22 offset0:0 offset1:4")
        a("ds_read2st64_b32 v[34:35], v22 offset0:8 offset1:12")
        a("ds_read2_b64 v[24:27], v16 offset0:0 offset1:128")
        a("ds_read2_b64 v[28:31], v20 offset0:0 offset1:128")
        a("s_waitcnt lgkmcnt(2)")
        for i in range(4): a(f"v_xor_b32 v{32+i}, s14, v{32+i}")
        a("v_or3_b32 v32, v32, v33, v34")
        a("v_or_b32 v32, v32, v35")
        a("v_cmp_ne_u32 vcc, 0, v32")
        a("s_waitcnt lgkmcnt(0)")
        a("s_cbranch_vccz LWa2")
        a("s_sub_u32 s12, s12, 1")
        a("s_cbranch_scc0 LWa0")
        a.label("LWa2")
        self.stamp(3)
        if self.diag:
            a(f"s_sub_u32 s84, {SPIN*4 | 15}, s12")
            a("s_mul_i32 s84, s84, 100")
            a("s_add_u32 s84, s84, s64")
        for ks in range(2):
            for t in range(8): self.mfma(128 + 4 * t, 24 + 4 * ks, 64 + 32 * ks + 4 * t, ks == 0)
        for t in range(8): a(f"v_pk_add_f32 v[{128+4*t}:{129+4*t}], v[{128+4*t}:{129+4*t}], v[{130+4*t}:{131+4*t}]")
        for t in range(8): a(f"v_add_f32 v{128+4*t}, v{128+4*t}, v{129+4*t}")
        for k in range(4): a(f"v_permlane16_swap_b32 v{128+8*k}, v{132+8*k}")
        for k in range(4): a(f"v_add_f32 v{128+8*k}, v{128+8*k}, v{132+8*k}")
        def red4(stride):
            for w in range(4): a(f"ds_read_b128 v[{24+4*w}:{27+4*w}], v18 offset:{stride*w}")
            a("s_waitcnt lgkmcnt(2)")
            for k in range(2): a(f"v_pk_add_f32 v[{24+2*k}:{25+2*k}], v[{24+2*k}:{25+2*k}], v[{28+2*k}:{29+2*k}]")
            a("s_waitcnt lgkmcnt(0)")
            for k in range(2): a(f"v_pk_add_f32 v[{32+2*k}:{33+2*k}], v[{32+2*k}:{33+2*k}], v[{36+2*k}:{37+2*k}]")
            for k in range(2): a(f"v_pk_add_f32 v[{24+2*k}:{25+2*k}], v[{24+2*k}:{25+2*k}], v[{32+2*k}:{33+2*k}]")
        a("v_cvt_pk_bf16_f32 v56, v128, v136")
        a("v_cvt_pk_bf16_f32 v57, v144, v152")
        a("buffer_store_dwordx2 v[56:57], v19, s[40:43], s55 offen sc1")
        self.stamp(4)
        self.voff128(12, 6144, 3, 4)
        a("s_mov_b64 s[44:45], s[36:37]")
        a(f"s_mov_b32 s46, {512*6144}")
        a("s_mov_b32 s60, s4")
        a("s_and_b32 s61, s5, 7")
        a("s_mov_b32 s63, s7")
        a("s_barrier")
        def wo(n):
            L = self.lab("LWd")
            a("s_mov_b32 m0, s62")
            a(f"s_add_u32 s62, s62, {1024*n}" if n else "s_mov_b32 s62, s59")
            a.label(L)
            a(f"buffer_load_dwordx4 v2, s[48:51], s53 offen {wf} lds")
            a("s_add_u32 m0, m0, 1024")
            a("s_add_u32 s53, s53, 8192")
            a("s_cmp_lt_u32 m0, s62")
            a(f"s_cbranch_scc1 {L}")
        a("s_cmp_eq_u32 s61, 3")
        a("s_cbranch_scc1 LM")
        a(f"s_cmp_ge_u32 s3, {self.o.get('msplit', 4)}")
        a("s_cbranch_scc1 LWm")
        self.mr_issue(12, 44)
        oe = self.o.get("oearly", 8)
        if oe: wo(oe)
        self.mr_compute(SCW, oe)
        a.label("LWm")
        wo(0)
        a("v_and_b32 v3, 15, v0")
        a("v_lshlrev_b32 v13, 7, v3")
        a("s_lshl_b32 s9, s4, 14")
        a(f"s_add_u32 s9, s9, {HC}")
        a("s_lshl_b32 s8, s4, 11")
        a(f"s_add_u32 s8, s8, {HL}")
        self.stamp(5)
        a("v_lshlrev_b32 v229, 4, v0")
        a("s_mul_i32 s13, s4, 240")
        a("s_sub_u32 s13, 2432, s13")
        a("v_mov_b32 v4, s13")
        a("v_cmp_gt_u32 vcc, 16, v0")
        a("v_cndmask_b32 v229, v4, v229, vcc")
        a("s_lshl_b32 s27, s4, 8")
        a(f"s_add_u32 s27, s27, {RDY}")
        self.rdy_load()
        a("s_lshl_b32 s15, s3, 8")
        a("s_add_u32 s9, s9, s15")
        a("s_lshl_b32 s15, s3, 2")
        a("s_add_u32 s8, s8, s15")
        a(f"s_add_u32 s15, s7, {WO}")
        self.traddr128(8, "s15", 3, 4)
        a("v_and_b32 v3, 15, v0")
        a("v_xor_b32 v12, v3, v1")
        a("v_lshlrev_b32 v12, 4, v12")
        a("v_lshl_add_u32 v4, v1, 10, v12")
        for i in range(1, 4):
            a(f"v_xor_b32 v{4+i}, {64*i}, v4")
            a(f"v_add_u32 v{4+i}, {3072*i}, v{4+i}")
        a("v_lshl_add_u32 v20, v3, 8, v12")
        a("v_add_u32 v20, s58, v20")
        for i in range(1, 4): a(f"v_xor_b32 v{20+i}, {64*i}, v20")
        a("v_lshlrev_b32 v14, 4, v1")
        a("v_lshrrev_b32 v12, 5, v0")
        a("v_lshlrev_b32 v15, 8, v12")
        a("v_and_b32 v12, 31, v0")
        a("v_lshl_add_u32 v15, v12, 2, v15")
        a("s_lshl_b32 s15, s3, 9")
        a(f"s_add_u32 s15, s15, {RED}")
        a("v_add_u32 v15, s15, v15")
        a("v_lshlrev_b32 v17, 4, v3")
        a("v_lshl_add_u32 v17, v1, 11, v17")
        a("s_lshl_b32 s55, s4, 12")
        a("s_lshr_b32 s15, s52, 1")
        a("s_add_u32 s55, s55, s15")
        a(f"s_add_u32 s55, s55, {HD}")
        a("s_mov_b32 m0, s58")
        a("v_mov_b32 v128, 0")
        a("s_waitcnt vmcnt(0)")
        self.stamp(6)
        for ks in range(4):
            for t in range(4): self.tr(64 + 16 * ks + 4 * t, 8 + t, 4096 * ks, 2048)
        self.rdy_check()
        def cbody():
            a("s_mov_b64 exec, 0xffff")
            a("buffer_load_dword v128, v13, s[40:43], s8 offen sc1")
            a("s_mov_b64 exec, -1")
            for i in range(4): a(f"buffer_load_dwordx4 v{4+i}, s[40:43], s9 offen offset:{1024*i} sc1 lds")
            a("s_waitcnt vmcnt(0)")
            for ks in range(4): a(f"ds_read_b128 v[{24+4*ks}:{27+4*ks}], v{20+ks}")
            a("s_waitcnt lgkmcnt(0)")
            a("v_max3_u32 v129, v24, v28, v128")
            a("v_max3_u32 v129, v129, v32, v36")
            a("v_cmp_eq_u32 s[10:11], -1, v129")
        self.stamp(9)
        self.spin(cbody, alt=([8, 9], LOC, self.o.get("every", 16)) if self.o.get("loc", 1) else None)
        self.stamp(7)
        D8 = ("quad_perm:[1,0,3,2]", "quad_perm:[2,3,0,1]", "row_half_mirror")
        def mf(ks):
            for t in range(4): self.mfma(40 + 4 * t, 24 + 4 * ks, 64 + 16 * ks + 4 * t, ks == 0)
        mf(0)
        a("v_mov_b32 v129, v128")
        for m in D8: a(f"v_max_f32_dpp v129, v129, v129 {m} row_mask:0xf bank_mask:0xf")
        a("v_sub_f32 v128, v128, v129")
        a("v_exp_f32 v128, v128")
        mf(1)
        a("v_mov_b32 v129, v128")
        for m in D8: a(f"v_add_f32_dpp v129, v129, v129 {m} row_mask:0xf bank_mask:0xf")
        a("v_rcp_f32 v129, v129")
        a("v_mul_f32 v128, v128, v129")
        for r in range(4): a(f"ds_bpermute_b32 v{130+r}, v14, v128 offset:{4*r}")
        mf(2)
        mf(3)
        a("s_waitcnt lgkmcnt(0)")
        for t in range(4): a(f"v_pk_mul_f32 v[{40+4*t}:{41+4*t}], v[{40+4*t}:{41+4*t}], v[130:131]")
        for t in range(4): a(f"v_pk_fma_f32 v[{40+4*t}:{41+4*t}], v[{42+4*t}:{43+4*t}], v[132:133], v[{40+4*t}:{41+4*t}]")
        for t in range(4): a(f"v_add_f32 v{40+4*t}, v{40+4*t}, v{41+4*t}")
        for k in range(2): a(f"v_permlane16_swap_b32 v{40+8*k}, v{44+8*k}")
        for k in range(2): a(f"v_add_f32 v{40+8*k}, v{40+8*k}, v{44+8*k}")
        for k in range(2): a(f"ds_write_b32 v15, v{40+8*k} offset:{128*k}")
        a("s_waitcnt lgkmcnt(0)")
        a("s_barrier")
        a("s_cmp_eq_u32 s3, 0")
        a("s_cbranch_scc0 LWe")
        a("s_mov_b32 exec_hi, 0")
        red4(512)
        a("buffer_store_dwordx4 v[24:27], v17, s[40:43], s55 offen sc1")
        self.stamp(8)
        a.label("LWe")
        self.end()

    def g_role(self):
        a, wf = self.a, self.wf
        ms = self.o.get("msplit", 4)
        a("s_lshr_b32 s63, s7, 1")
        a(f"s_add_u32 s63, s63, {MRG}")
        self.g_index()
        a("s_cbranch_scc1 LO3")
        if ms < 4:
            a(f"s_cmp_lt_u32 s3, {ms}")
            a("s_cbranch_scc1 LGn")
            self.mr_issue(2, 52)
            a.label("LGn")
        a(f"s_add_u32 s7, s7, {GU}")
        a("s_mov_b32 s53, s26")
        for i in range(4): a(f"v_mov_b32 v{32+i}, -1")
        a("v_lshrrev_b32 v3, 3, v0")
        a(f"v_mul_u32_u24 v3, {HFS}, v3")
        a("v_and_b32 v4, 7, v0")
        a("v_lshl_add_u32 v3, v4, 4, v3")
        a(f"s_mul_i32 s26, s3, {8*HFS}")
        a("s_lshl_b32 s15, s53, 7")
        a("s_add_u32 s26, s26, s15")
        a(f"s_add_u32 s26, s26, {HF}")
        a("buffer_store_dwordx4 v[32:35], v3, s[40:43], s26 offen sc1")
        a(f"s_and_b32 s52, s53, {self.o.get('rot', 0)}")
        a("s_cmp_eq_u32 s52, 0")
        a("s_cselect_b64 s[44:45], s[28:29], s[30:31]")
        a("s_cselect_b64 s[48:49], s[30:31], s[28:29]")
        a(f"s_mov_b32 s46, {512*3584}")
        a(f"s_mov_b32 s50, {512*3584}")
        a("s_lshl_b32 s52, s52, 13")
        a("v_lshrrev_b32 v1, 2, v0")
        a("v_bfe_u32 v2, v0, 4, 1")
        a("v_lshlrev_b32 v2, 1, v2")
        a("v_and_b32 v3, 3, v0")
        a("v_xor_b32 v2, v2, v3")
        a("v_mul_u32_u24 v4, 3584, v1")
        a("v_lshl_add_u32 v2, v2, 4, v4")
        a(f"s_mul_i32 s8, s3, {128*3584}")
        a("s_lshl_b32 s15, s53, 6")
        a("s_add_u32 s8, s8, s15")
        def mat(m, lo=0, hi=8):
            L = self.lab("LGx")
            if lo == 0:
                a("s_add_u32 s58, s7, s52")
                a("s_mov_b32 s59, s8")
            a("s_mov_b32 m0, s58")
            a(f"s_add_u32 s58, s58, {1024*(hi-lo)}")
            a.label(L)
            gf = ["nt", "", "sc1", "sc0"][self.o.get("gflag%d" % m, 0)]
            a(f"buffer_load_dwordx4 v2, s[{44+4*m}:{47+4*m}], s59 offen {gf} lds")
            a("s_add_u32 m0, m0, 1024")
            a(f"s_add_u32 s59, s59, {16*3584}")
            if self.o.get("gcap", 0) and (lo or m): a(f"s_waitcnt vmcnt({self.o['gcap']})")
            a("s_cmp_lt_u32 m0, s58")
            a(f"s_cbranch_scc1 {L}")
            if hi == 8: a("s_xor_b32 s52, s52, 8192")
        pw = self.o.get("pwait", 1)
        if not pw:
            self.stamp(5)
            mat(0)
        a(f"s_waitcnt vmcnt({0 if pw else 8})")
        a("s_barrier")
        if ms < 4:
            a(f"s_cmp_lt_u32 s3, {ms}")
            a("s_cbranch_scc1 LGo")
            self.mr_compute(SC, 0 if pw else 8)
            a.label("LGo")
        a("s_cmp_eq_u32 s3, 0")
        a("s_cbranch_scc0 LGr")
        self.rdy_publish(8, "s2")
        if self.o.get("rwait", 0): a("s_waitcnt vmcnt(0)")
        a.label("LGr")
        if self.o.get("rwait", 0): a("s_barrier")
        if pw:
            self.delay("fdel")
            self.stamp(5)
            mat(0)
        mat(1)
        a("s_mov_b64 s[48:49], s[16:17]")
        a("s_mov_b32 s50, 2048")
        a("v_lshrrev_b32 v4, 5, v0")
        a("v_and_b32 v5, 31, v0")
        a("v_lshlrev_b32 v19, 3, v5")
        a("v_lshl_add_u32 v19, v4, 10, v19")
        a("s_lshl_b32 s15, s3, 8")
        a("buffer_load_dwordx2 v[24:25], v19, s[48:51], s15 offen")
        a("s_lshl_b32 s9, s53, 15")
        a("s_add_u32 s9, s9, s15")
        a("v_lshlrev_b32 v229, 4, v0")
        a(f"s_mov_b32 s27, {RDY+2048}")
        self.rdy_load()
        a("v_lshlrev_b32 v18, 1, v19")
        a("s_lshl_b32 s15, s3, 9")
        for k in range(3): a(f"s_add_u32 s{28+k}, s15, {HM+4096*k}")
        mloads = [f"buffer_load_dwordx4 v[{160+4*k}:{163+4*k}], v18, s[40:43], s{28+k} offen sc1" for k in range(3)]
        for l in mloads: a(l)
        for k in range(8): a(f"s_add_u32 s{16+k}, s15, {HD+4096*k}")
        self.voff256(6, 10, 8, 9)
        a("s_mov_b64 s[44:45], s[32:33]")
        a(f"s_mov_b32 s46, {1792*1024}")
        a("s_lshl_b32 s6, s3, 13")
        a(f"s_add_u32 s6, s6, {DWN}")
        a("s_mov_b32 m0, s6")
        a("s_add_u32 s13, s6, 8192")
        a.label("LGd2")
        for i in range(2):
            a(f"buffer_load_dwordx4 v{6+i}, s[44:47], s9 offen {wf} lds")
            a("s_add_u32 m0, m0, 1024")
            a("s_add_u32 s9, s9, 4096")
        a("s_cmp_lt_u32 m0, s13")
        a("s_cbranch_scc1 LGd2")
        a("v_bfe_u32 v8, v0, 4, 1")
        a("v_lshlrev_b32 v8, 5, v8")
        a("v_lshl_add_u32 v8, v1, 6, v8")
        a("v_lshl_add_u32 v8, v3, 3, v8")
        a("v_add_u32 v8, s7, v8")
        a("v_xor_b32 v9, 32, v8")
        self.traddr256(10, 8, "s6", 6, 7)
        a("v_mul_u32_u24 v20, 816, v4")
        a("v_lshrrev_b32 v6, 3, v5")
        a("v_lshl_add_u32 v20, v6, 6, v20")
        a("v_lshl_add_u32 v20, v3, 4, v20")
        a("v_bfe_u32 v6, v0, 2, 1")
        a("v_lshl_add_u32 v20, v6, 3, v20")
        a(f"s_add_u32 s15, s7, {AROW_O}")
        a("v_add_u32 v20, s15, v20")
        a("v_mul_u32_u24 v22, 816, v6")
        a("v_and_b32 v7, 48, v0")
        a("v_add3_u32 v22, v22, v7, s15")
        a("s_mov_b32 s59, 272")
        a("v_and_b32 v21, 1, v0")
        a("v_mul_u32_u24 v21, 272, v21")
        a("v_add3_u32 v21, v21, v22, s59")
        a("v_lshl_add_u32 v227, v6, 6, v7")
        a(f"v_mul_u32_u24 v228, {HFS}, v4")
        a("v_lshl_add_u32 v228, v5, 2, v228")
        a("v_lshlrev_b32 v2, 4, v0")
        a("s_lshl_b32 s15, s3, 10")
        a("v_add_u32 v23, s15, v2")
        a("v_lshlrev_b32 v224, 3, v0")
        a("s_lshl_b32 s15, s3, 9")
        a("v_add_u32 v225, s15, v224")
        a("s_lshl_b32 s15, s3, 2")
        a("v_add_u32 v226, s15, v7")
        a("v_and_b32 v231, 16, v0")
        a("v_lshlrev_b32 v231, 1, v231")
        a(f"v_mov_b32 v232, {f32(1e-5)}")
        a("s_waitcnt vmcnt(8)")
        self.stamp(6)
        for m in range(2):
            for ks in range(4):
                for t in range(2): self.tr(64 + 32 * m + 8 * ks + 4 * t, 8 + t, 8192 * m + 2048 * ks, 1024)
        self.unpack(24, 28, 2)
        self.rdy_check()
        for k in range(3): a(f"v_xor_b32 v{163+4*k}, s14, v{162+4*k}")
        a("v_or3_b32 v163, v163, v167, v171")
        a("v_cmp_ne_u32 vcc, 0, v163")
        a("s_cbranch_vccz LGmo")
        self.poll(mloads, [(*self.TAGBAD, 162 + 4 * k) for k in range(3)], sleep=1)
        a.label("LGmo")
        self.stamp(4)
        a("s_waitcnt lgkmcnt(0)")
        a("ds_write_b64 v20, v[164:165] offset:544")
        self.unpack(168, 196, 2)
        for i in range(4): a(f"v_add_f32 v{196+i}, 1.0, v{196+i}")
        a("v_cvt_pk_bf16_f32 v36, v196, v197")
        a("v_cvt_pk_bf16_f32 v37, v198, v199")
        a("ds_write_b64 v20, v[36:37] offset:272")
        for ks in range(4): a(f"ds_read_b128 v[{172+4*ks}:{175+4*ks}], v21 offset:{64*ks}")
        self.unpack(160, 192, 2)
        self.unpack(36, 196, 2)
        for i in range(4): a(f"v_mul_f32 v{200+i}, v{28+i}, v{196+i}")
        for i in range(4): a(f"v_mul_f32 v{196+i}, v{192+i}, v{196+i}")
        def mf(ks):
            for m in range(2):
                for t in range(2): self.mfma(40 + 8 * m + 4 * t, 172 + 4 * ks, 64 + 32 * m + 8 * ks + 4 * t, ks == 0)
        a("s_waitcnt lgkmcnt(0)")
        for ks in range(4): mf(ks)
        for m in range(2):
            for r in range(2): a(f"v_permlane32_swap_b32 v{40+8*m+r}, v{44+8*m+r}")
        a("v_mov_b32 v42, v48")
        a("v_mov_b32 v43, v49")
        a(f"ds_write_b128 v23, v[40:43] offset:{CSR}")
        a("s_waitcnt vmcnt(0)")
        for dt in range(8): self.tr(128 + 4 * dt, 10 + dt, 0, 4096)
        self.stamp(10)
        self.guard(1100)
        self.sum_poll([f"buffer_load_dwordx4 v[{160+4*k}:{163+4*k}], v18, s[40:43], s{16+k} offen sc1" for k in range(8)], 160, 56)
        self.stamp(7)
        for k in range(2): a(f"v_pk_fma_f32 v[{200+2*k}:{201+2*k}], v[{56+2*k}:{57+2*k}], v[{196+2*k}:{197+2*k}], v[{200+2*k}:{201+2*k}]")
        a("v_cvt_pk_bf16_f32 v32, v200, v201")
        a("v_cvt_pk_bf16_f32 v33, v202, v203")
        a("ds_write_b64 v20, v[32:33]")
        for ks in range(4): a(f"ds_read_b128 v[{172+4*ks}:{175+4*ks}], v22 offset:{64*ks}")
        for k in range(2): a(f"v_pk_fma_f32 v[{28+2*k}:{29+2*k}], v[{56+2*k}:{57+2*k}], v[{192+2*k}:{193+2*k}], v[{28+2*k}:{29+2*k}]")
        a("v_pk_add_f32 v[190:191], v[28:29], v[30:31]")
        a("v_pk_mul_f32 v[28:29], v[28:29], v[28:29]")
        a("v_pk_fma_f32 v[28:29], v[30:31], v[30:31], v[28:29]")
        a("v_add_f32 v190, v190, v191")
        a("v_add_f32 v191, v28, v29")
        a("v_permlane16_swap_b32 v190, v191")
        a("s_waitcnt lgkmcnt(3)")
        mf(0)
        a("v_add_f32 v190, v190, v191")
        a("s_waitcnt lgkmcnt(2)")
        mf(1)
        self.row_sum(190)
        a("s_waitcnt lgkmcnt(0)")
        mf(2)
        a(f"ds_write_b32 v226, v190 offset:{STAT}")
        mf(3)
        a("v_permlane32_swap_b32 v40, v44")
        a("v_permlane32_swap_b32 v48, v52")
        a("v_mov_b32 v41, v48")
        a(f"ds_write_b64 v225, v[40:41] offset:{REC}")
        a("s_waitcnt lgkmcnt(0)")
        a("s_barrier")
        self.stamp(8)
        a(f"ds_read_b128 v[24:27], v231 offset:{STAT}")
        a(f"ds_read_b128 v[28:31], v231 offset:{STAT+16}")
        for w in range(4): a(f"ds_read_b128 v[{208+4*w}:{211+4*w}], v2 offset:{CSR+1024*w}")
        for w in range(4): a(f"ds_read_b64 v[{64+2*w}:{65+2*w}], v224 offset:{REC+512*w}")
        a("s_waitcnt lgkmcnt(8)")
        a("v_pk_add_f32 v[24:25], v[24:25], v[26:27]")
        a("v_pk_add_f32 v[28:29], v[28:29], v[30:31]")
        a("v_add_f32 v24, v24, v25")
        a("v_add_f32 v28, v28, v29")
        a(f"v_mul_f32 v24, {f32(1/512)}, v24")
        a(f"v_fmamk_f32 v28, v28, {f32(1/512)}, v232")
        a("v_fma_f32 v28, -v24, v24, v28")
        a("v_rsq_f32 v28, v28")
        a("s_waitcnt lgkmcnt(4)")
        for k in range(2):
            a(f"v_pk_add_f32 v[{208+2*k}:{209+2*k}], v[{208+2*k}:{209+2*k}], v[{212+2*k}:{213+2*k}]")
            a(f"v_pk_add_f32 v[{216+2*k}:{217+2*k}], v[{216+2*k}:{217+2*k}], v[{220+2*k}:{221+2*k}]")
        for k in range(2): a(f"v_pk_add_f32 v[{208+2*k}:{209+2*k}], v[{208+2*k}:{209+2*k}], v[{216+2*k}:{217+2*k}]")
        a("s_waitcnt lgkmcnt(0)")
        a("v_pk_add_f32 v[64:65], v[64:65], v[66:67]")
        a("v_pk_add_f32 v[68:69], v[68:69], v[70:71]")
        a("v_pk_add_f32 v[64:65], v[64:65], v[68:69]")
        a("v_fma_f32 v64, -v24, v208, v64")
        a("v_fma_f32 v65, -v24, v210, v65")
        a("v_fma_f32 v64, v64, v28, v209")
        a("v_fma_f32 v65, v65, v28, v211")
        a("v_max_f32 v64, 0, v64")
        a("v_mul_f32 v64, v64, v65")
        a("v_mov_b32_dpp v65, v64 quad_perm:[1,0,3,2] row_mask:0xf bank_mask:0xf")
        a("v_cvt_pk_bf16_f32 v64, v64, v65")
        for i, off in enumerate((0, 8, 128, 136)): a(f"ds_bpermute_b32 v{24+i}, v227, v64 offset:{off}")
        a("s_waitcnt lgkmcnt(0)")
        for dt in range(8): self.mfma(160 + 4 * dt, 24, 128 + 4 * dt, True)
        for k in range(4):
            a(f"v_permlane32_swap_b32 v{160+8*k}, v{164+8*k}")
            a(f"buffer_store_dword v{160+8*k}, v228, s[40:43], s26 offen sc1")
            if k < 3: a(f"s_add_u32 s26, s26, {2*HFS}")
        self.stamp(9)
        self.end()

    def small_helpers(self):
        a = self.a
        a.label("LO3")
        if self.o.get('msplit', 4) < 4:
            a(f"s_cmp_lt_u32 s3, {self.o.get('msplit', 4)}")
            a("s_cbranch_scc1 LO4")
            self.mr_issue(2, 52)
            self.mr_compute(SC, 0)
            a.label("LO4")
            a("s_barrier")
        a("s_movk_i32 s52, 1536")
        a("s_lshr_b32 s58, s7, 2")
        a(f"s_add_u32 s58, s58, {GA}")
        a("v_lshrrev_b32 v1, 4, v0")
        a("v_lshlrev_b32 v18, 4, v0")
        a(f"v_add_u32 v18, {RED}, v18")
        self.wo_setup()
        a("s_branch LWm")
        a.label("LGH2")
        a("s_setprio 3")
        self.tag()
        self.g_index()
        a("s_cbranch_scc1 LGH3")
        a("s_endpgm")
        a.label("LGH3")
        self.rdy_publish(8, "s2")
        a("s_endpgm")
        a.label("LWH2")
        a("s_setprio 3")
        for i in range(4): a(f"v_mov_b32 v{32+i}, -1")
        a("v_bfe_u32 v3, v0, 4, 1")
        a("v_lshlrev_b32 v3, 11, v3")
        a("v_and_b32 v4, 15, v0")
        a("v_lshl_add_u32 v3, v4, 4, v3")
        a("s_lshl_b32 s15, s4, 12")
        a("s_and_b32 s6, s5, 7")
        a("s_lshl_b32 s6, s6, 8")
        a("s_add_u32 s15, s15, s6")
        a(f"s_add_u32 s15, s15, {HD}")
        a("v_lshrrev_b32 v6, 4, v0")
        a("v_lshlrev_b32 v6, 11, v6")
        a("v_lshl_add_u32 v6, v4, 4, v6")
        a("s_lshl_b32 s8, s6, 6")
        a("s_lshl_b32 s9, s4, 8")
        a("s_add_u32 s8, s8, s9")
        a(f"s_add_u32 s8, s8, {HB}")
        a("s_add_u32 s9, s8, 8192")
        self.c_voff(4)
        a("s_lshr_b32 s6, s6, 1")
        a("s_mov_b32 s50, 2048")
        a("s_waitcnt lgkmcnt(0)")
        a("s_load_dword s14, s[40:41], 0")
        a("s_mov_b64 s[48:49], s[34:35]")
        a("buffer_load_dwordx2 v[28:29], v4, s[48:51], s6 offen")
        a("buffer_store_dwordx4 v[32:35], v6, s[40:43], s8 offen sc1")
        a("buffer_store_dwordx4 v[32:35], v6, s[40:43], s9 offen sc1")
        a("s_mov_b32 exec_hi, 0")
        a("buffer_store_dwordx4 v[32:35], v3, s[40:43], s15 offen sc1")
        a("s_mov_b64 exec, -1")
        self.silu_frag(SCW)
        a("s_waitcnt vmcnt(0) lgkmcnt(0)")
        self.tag()
        self.rdy_publish(8, "s2")
        a("s_barrier")
        self.silu_run()
        a("s_waitcnt lgkmcnt(0)")
        a("s_endpgm")
        a.label("LTH")
        a("s_setprio 3")
        for i in range(4): a(f"v_mov_b32 v{40+i}, -1")
        a("v_lshlrev_b32 v2, 4, v0")
        a("s_lshl_b32 s6, s4, 4")
        a("s_add_u32 s6, s6, s5")
        a("s_lshl_b32 s54, s6, 10")
        a(f"s_add_u32 s54, s54, {HC}")
        a("s_lshl_b32 s55, s6, 7")
        a(f"s_add_u32 s55, s55, {HL}")
        a("s_waitcnt lgkmcnt(0)")
        a("s_load_dword s14, s[40:41], 0")
        a("buffer_store_dwordx4 v[40:43], v2, s[40:43], s54 offen sc1")
        a(f"s_add_u32 s54, s54, {LOC}")
        a("buffer_store_dwordx4 v[40:43], v2, s[40:43], s54 offen sc1")
        a("s_mov_b64 exec, 0xff")
        a("buffer_store_dwordx4 v[40:43], v2, s[40:43], s55 offen sc1")
        a(f"s_add_u32 s55, s55, {LOC}")
        a("buffer_store_dwordx4 v[40:43], v2, s[40:43], s55 offen sc1")
        a("s_mov_b64 exec, -1")
        a("s_waitcnt vmcnt(0) lgkmcnt(0)")
        self.tag()
        self.rdy_publish(44, "s6")
        a("buffer_load_dwordx4 v[232:235], v2, s[40:43], s54 offen sc1")
        a("s_mov_b64 exec, 1")
        a("buffer_load_dword v236, v2, s[40:43], s55 offen sc1")
        a("s_endpgm")

    def m_role(self):
        a = self.a
        a.label("LM")
        if self.o.get("nom"): self.end()
        a(f"s_cmp_ge_u32 s3, {self.o.get('msplit', 4)}")
        a("s_cbranch_scc1 LMr")
        self.mr_issue(12, 44)
        self.mr_compute(SCW, 0)
        a.label("LMr")
        a("s_lshl_b32 s6, s4, 2")
        a("s_add_u32 s6, s6, s3")
        a("s_lshl_b32 s8, s6, 12")
        a(f"s_add_u32 s8, s8, {HP}")
        a("s_lshr_b32 s9, s6, 3")
        a("s_lshl_b32 s9, s9, 12")
        a("s_and_b32 s6, s6, 7")
        a("s_lshl_b32 s6, s6, 8")
        a("s_add_u32 s9, s9, s6")
        a(f"s_add_u32 s9, s9, {HM}")
        a("v_lshlrev_b32 v2, 4, v0")
        a("v_and_b32 v3, 1, v0")
        a("v_lshlrev_b32 v3, 11, v3")
        a("v_bfe_u32 v4, v0, 1, 2")
        a("v_lshl_add_u32 v3, v4, 4, v3")
        a("v_and_b32 v4, 48, v0")
        a("v_lshl_add_u32 v3, v4, 2, v3")
        self.poll([f"buffer_load_dwordx4 v[{40+4*t}:{43+4*t}], v2, s[40:43], s8 offen offset:{1024*t} sc1" for t in range(4)],
                  [(*self.TAGBAD, 42 + 4 * t) for t in range(4)], sleep=1,
                  after=lambda t: self.unpack(40 + 4 * t, 64 + 4 * t, 2))
        self.stamp(6)
        for i in range(8): a(f"v_permlane32_swap_b32 v{64+i}, v{72+i}")
        for k in range(4): a(f"v_pk_add_f32 v[{64+2*k}:{65+2*k}], v[{64+2*k}:{65+2*k}], v[{72+2*k}:{73+2*k}]")
        for i in range(4): a(f"v_permlane16_swap_b32 v{64+i}, v{68+i}")
        for k in range(2): a(f"v_pk_add_f32 v[{64+2*k}:{65+2*k}], v[{64+2*k}:{65+2*k}], v[{68+2*k}:{69+2*k}]")
        for i in range(4): a(f"v_add_f32_dpp v{64+i}, v{64+i}, v{64+i} row_ror:8 row_mask:0xf bank_mask:0xf")
        a("v_cvt_pk_bf16_f32 v40, v64, v65")
        a("v_cvt_pk_bf16_f32 v41, v66, v67")
        self.exec16(0xff)
        a("buffer_store_dwordx4 v[40:43], v3, s[40:43], s9 offen sc1")
        self.stamp(7)
        self.end()

    def red8(self, r):
        a = self.a
        for i in range(4): a(f"v_add_f32_dpp v{r+i}, v{r+i}, v{r+i} row_ror:8 row_mask:0xf bank_mask:0xf")
        for sw in ("16", "32"):
            for i in range(4): a(f"v_mov_b32 v{60+i}, v{r+i}")
            for i in range(4): a(f"v_permlane{sw}_swap_b32 v{r+i}, v{60+i}")
            for i in range(4): a(f"v_add_f32 v{r+i}, v{r+i}, v{60+i}")

    def build(self):
        self.prologue()
        self.ww_early()
        if self.o.get("tnear"): self.tw_early()
        self.g_early()
        self.g_role()
        self.small_helpers()
        self.m_role()
        self.guard(3300, fall=False)
        self.ww_main()
        self.guard(3300, fall=False)
        if not self.o.get("tnear"): self.tw_early()
        self.tw_issue()
        self.tw_main()
        if self.diag:
            self.a.label("Ldump")
            self.dump_stamps()
        self.a.label("Lexit")
        self.a("s_endpgm")
        self.a.label("Lcode_end")
        body = self.a.finish()
        head = open("cdna_kernels/" + NAME + ".s.ref").read().split("; Override launch geometry")[0]
        return head + f"""; Generated by gen/gen_kernel.py (hand-written generator): one persistent launch, 256 workgroups x 5 waves.
; @launch grid=(256,1,1) block=(320,1,1) lds={LDS_BYTES}
.amdgcn_target "amdgcn-amd-amdhsa--gfx950"
.text
.globl {KNAME}
.p2align 12
.type {KNAME},@function
{KNAME}:
{body}
.section .rodata,"a"
.p2align 6
.amdhsa_kernel {KNAME}
  .amdhsa_next_free_vgpr 240
  .amdhsa_next_free_sgpr 102
  .amdhsa_accum_offset 240
  .amdhsa_group_segment_fixed_size 0
  .amdhsa_kernarg_size 112
  .amdhsa_user_sgpr_count 2
  .amdhsa_user_sgpr_kernarg_segment_ptr 1
  .amdhsa_system_sgpr_workgroup_id_x 1
.end_amdhsa_kernel
"""

if __name__ == "__main__":
    import argparse
    ap = argparse.ArgumentParser()
    ap.add_argument("-o", default="cdna_kernels/" + NAME + ".s")
    ap.add_argument("--diag", action="store_true")
    ap.add_argument("--wflag", default="nt")
    ap.add_argument("--opt", action="append", default=[])
    args = ap.parse_args()
    opts = {}
    for o in args.opt:
        k, _, v = o.partition("=")
        opts[k] = int(v) if v else 1
    open(args.o, "w").write(Gen(args.diag, args.wflag, opts).build())
    print("wrote", args.o)
```

```python
import sys, struct
from asmlib import Asm

NAME = "adaLN_cond__sliding_block_cached__glu_gated_reglu__decode"
KNAME = NAME + "_kernel"

def f32(x): return "0x%08x" % struct.unpack("<I", struct.pack("<f", x))[0]

EPOCH = 0x0
RDY = 0x1000
HM = 0x4000
HA = 0x8000
ALOC = 0x8000
HB = 0x140000
HD = 0x20000
HL = HD + 0x8000
HC = HL + 0x4000
LOC = 0x24000
HF = HC + 0x20000 + LOC
HFS = 7168
HP = 0xD0000
STAMP = 0x100000
WS_SIZE = 0x200000
LDS_BYTES = 151552
KB, VB, PB, MX, LS, QB = 0, 65536, 131072, 133120, 133248, 133632
WQ, WO, GA, RED, SCW, HW = 0, 65536, 131072, 147456, 149504, 150016
W1, GU, DWN, MRG, SC, LNS = 0, 16384, 81920, 114688, 147456, 148480
REC, CSR, STAT = W1, W1 + 4096, W1 + 8192
AROW_O = 4096

LOG2E = 1.4426950408889634
CSC = (128 ** -0.5) * LOG2E
SPIN = 20000
import os
if os.environ.get('SPIN'): SPIN = int(os.environ['SPIN'])
MFMA = "v_mfma_f32_16x16x32_bf16"

class Gen:
    POISON = ("v_cmp_eq_u32", "-1")
    TAGBAD = ("v_cmp_ne_u32", "s14")

    def __init__(self, diag=False, wflag="nt", opts=None):
        self.a = Asm()
        self.diag = diag
        self.wf = wflag
        self.o = opts or {}
        self.nlab = 0
    def lab(self, p="L"):
        self.nlab += 1
        return f"{p}{self.nlab}"
    def stamp(self, k):
        if self.diag or self.o.get("amp") == k: self.a(f"s_memrealtime s[{64+2*k}:{65+2*k}]")
    def dump_max(self):
        a = self.a
        a("s_load_dwordx2 s[44:45], s[0:1], 96")
        a("s_mov_b32 s46, 256")
        a("s_mov_b32 s47, 0x20000")
        a("s_mov_b64 exec, 1")
        a("v_mov_b32 v1, 0")
        a("s_waitcnt lgkmcnt(0)")
        def put(slot, reg):
            a(f"v_mov_b32 v4, {reg}")
            a(f"buffer_atomic_umax v4, v1, s[44:47], 0 offen offset:{4*slot} sc1")
        a("s_not_b32 s60, s64")
        put(0, "s60"); put(1, "s64")
        a("s_lshr_b32 s5, s2, 3")
        a("s_cmp_ge_u32 s5, 24")
        a("s_cbranch_scc1 LdG")
        a("s_cmp_ge_u32 s5, 16")
        a("s_cbranch_scc1 LdW")
        for slot, k in ((6, 3), (7, 9), (8, 5), (15, 8)): put(slot, f"s{64+2*k}")
        a("s_endpgm")
        a.label("LdW")
        for slot, k in ((3, 2), (4, 3), (5, 4), (9, 6), (10, 7), (11, 8)): put(slot, f"s{64+2*k}")
        a("s_endpgm")
        a.label("LdG")
        for slot, k in ((2, 3), (12, 6), (13, 7), (14, 9)): put(slot, f"s{64+2*k}")
    def dump_gamp(self):
        a = self.a
        k, lo, hi = self.o["gamp"] // 10000, self.o["gamp"] // 100 % 100, self.o["gamp"] % 100
        a("s_waitcnt lgkmcnt(0)")
        a("s_lshr_b32 s5, s2, 3")
        a(f"s_sub_u32 s60, s5, {lo}")
        a(f"s_cmp_lt_u32 s60, {hi-lo}")
        a(f"s_cselect_b32 s61, s{64+2*k}, 0")
        a("s_cmp_eq_u32 s61, 0")
        a("s_cselect_b32 s61, s64, s61")
        a("s_lshl_b32 s60, s2, 2")
        a("s_add_u32 s60, s60, s3")
        a("s_lshl_b32 s60, s60, 2")
        a(f"s_add_u32 s60, s60, {STAMP}")
        a("s_mov_b64 exec, 1")
        a("v_mov_b32 v1, 0")
        a("v_mov_b32 v4, s64")
        a("v_mov_b32 v5, s61")
        a("buffer_store_dword v4, v1, s[40:43], s60 offen sc1")
        a("s_add_u32 s60, s60, 4096")
        a("buffer_store_dword v5, v1, s[40:43], s60 offen sc1")
        a("s_mov_b64 exec, -1")
        a("s_cmp_eq_u32 s2, 0")
        a("s_cbranch_scc0 Lexit")
        a("s_cmp_eq_u32 s3, 1")
        a("s_cbranch_scc0 Lexit")
        def until(reg):
            L = self.lab("Lu")
            a.label(L)
            a("s_memrealtime s[98:99]")
            a("s_waitcnt lgkmcnt(0)")
            a("s_sub_u32 s98, s98, s64")
            a(f"s_cmp_lt_u32 s98, {reg}")
            a(f"s_cbranch_scc1 {L}")
        until(3000)
        a("v_lshlrev_b32 v2, 4, v0")
        a(f"s_mov_b32 s60, {STAMP}")
        a(f"s_mov_b32 s61, {STAMP+4096}")
        for i in range(4):
            a(f"buffer_load_dwordx4 v[{8+4*i}:{11+4*i}], v2, s[40:43], s60 offen offset:{1024*i} sc1")
            a(f"buffer_load_dwordx4 v[{24+4*i}:{27+4*i}], v2, s[40:43], s61 offen offset:{1024*i} sc1")
        a("s_waitcnt vmcnt(0)")
        for i in range(32): a(f"v_subrev_u32 v{8+i}, s64, v{8+i}")
        for i in range(1, 16):
            a(f"v_min_i32 v8, v8, v{8+i}")
            a(f"v_max_i32 v24, v24, v{24+i}")
        a("s_mov_b32 s60, 0")
        a("s_mov_b32 s61, 0")
        for l in range(64):
            a(f"v_readlane_b32 s62, v8, {l}")
            a(f"v_readlane_b32 s63, v24, {l}")
            a("s_min_i32 s60, s60, s62")
            a("s_max_i32 s61, s61, s63")
        a("s_sub_u32 s61, s61, s60")
        a("s_mul_i32 s61, s61, 40")
        a("s_add_u32 s100, s61, 4000")
        until("s100")
    def dump_stamps(self):
        if not self.diag: return
        if self.o.get("gamp") is not None: return self.dump_gamp()
        if self.o.get("dmax"): return self.dump_max()
        a = self.a
        a("s_waitcnt lgkmcnt(0)")
        a("s_mov_b64 exec, 1")
        a("s_mul_i32 s60, s2, 5")
        a("s_add_u32 s60, s60, s3")
        a("s_lshl_b32 s60, s60, 6")
        a(f"s_add_u32 s60, s60, {STAMP}")
        a("v_mov_b32 v1, 0")
        for q in range(3):
            for i in range(4):
                a(f"v_mov_b32 v{4+i}, s{64+2*(4*q+i)}")
            a(f"buffer_store_dwordx4 v[4:7], v1, s[40:43], s60 offen offset:{16*q}")
            a("s_nop 1")
    def end(self, helper=False):
        self.a("s_branch Ldump" if self.diag and (not helper or self.o.get("hdump")) else "s_endpgm")
    def delay(self, key):
        n = self.o.get(key, 0)
        if not n: return
        a = self.a
        L = self.lab("Ld")
        a.label(L)
        a("s_memrealtime s[98:99]")
        a("s_waitcnt lgkmcnt(0)")
        a("s_sub_u32 s98, s98, s64")
        a(f"s_cmp_lt_u32 s98, {n}")
        a(f"s_cbranch_scc1 {L}")
    def guard(self, n, fall=True, fill=None):
        L = self.lab("Lg")
        if fall: self.a(f"s_branch {L}")
        if fill: fill()
        self.a(f".p2align 12, , {n}")
        self.a.label(L)
    def srd(self, d, p, size):
        a = self.a
        a(f"s_mov_b64 s[{d}:{d+1}], s[{p}:{p+1}]")
        a(f"s_mov_b32 s{d+2}, {size}")
        a(f"s_mov_b32 s{d+3}, 0x20000")
    def tag(self):
        self.a("s_mul_i32 s14, s14, 0x9E3779B1")
        self.a("s_add_u32 s14, s14, 0x7F4A7C15")
    def exec16(self, m):
        self.a(f"s_mov_b32 exec_lo, {(m << 16 | m):#x}")
        self.a(f"s_mov_b32 exec_hi, {(m << 16 | m):#x}")
    def poll(self, loads, checks, sleep=0, after=None):
        a = self.a
        L = self.lab("Lp"); D = self.lab("Lpd")
        n = len(loads)
        a(f"s_mov_b32 s12, {SPIN}")
        a.label(L)
        for l in loads: a(l)
        for i, (op, opd, r) in enumerate(checks):
            a(f"s_waitcnt vmcnt({n-1-i})")
            if i == 0:
                a(f"{op} s[10:11], {opd}, v{r}")
            else:
                a(f"{op} vcc, {opd}, v{r}")
                a("s_or_b64 s[10:11], s[10:11], vcc")
            if after: after(i)
        a("s_cmp_eq_u64 s[10:11], 0")
        a(f"s_cbranch_scc1 {D}")
        if sleep: a(f"s_sleep {sleep}")
        a("s_sub_u32 s12, s12, 1")
        a(f"s_cbranch_scc0 {L}")
        a.label(D)
    def spin(self, body, sleep=0, alt=None, issue=None, mid=None):
        a = self.a
        L = self.lab("Lp"); D = self.lab("Lpd")
        n = SPIN
        if alt:
            sregs, delta, every = alt
            for i, r in enumerate(sregs):
                a(f"s_mov_b32 s{96+2*i}, s{r}")
                a(f"s_add_u32 s{97+2*i}, s{r}, {delta}")
                a(f"s_mov_b32 s{r}, s{97+2*i}")
            n = SPIN * 4 | (every - 1)
        a(f"s_mov_b32 s12, {n}")
        if issue:
            E = self.lab("Lpe")
            issue(); mid()
            a(f"s_branch {E}")
        a.label(L)
        if issue:
            issue()
            a.label(E)
        body()
        a("s_cmp_eq_u64 s[10:11], 0")
        a(f"s_cbranch_scc1 {D}")
        if sleep: a(f"s_sleep {sleep}")
        if alt:
            a(f"s_and_b32 s13, s12, {every-1}")
            for i, r in enumerate(sregs): a(f"s_cselect_b32 s{r}, s{97+2*i}, s{96+2*i}")
        a("s_sub_u32 s12, s12, 1")
        a(f"s_cbranch_scc0 {L}")
        a.label(D)
    def ssent(self, soff, offs, cnt=13):
        a = self.a
        L = self.lab("Ls"); D = self.lab("Lsd")
        a(f"s_mov_b32 s{cnt}, {SPIN}")
        a.label(L)
        for k, o in enumerate(offs): a(f"s_load_dword s{88+k}, s[40:41], s{soff} offset:{o} glc")
        a("s_waitcnt lgkmcnt(0)")
        for k in range(len(offs)): a(f"s_xor_b32 s{88+k}, s{88+k}, s14")
        for k in range(1, len(offs)): a(f"s_or_b32 s88, s88, s{88+k}")
        a(f"s_cbranch_scc0 {D}")
        a(f"s_sub_u32 s{cnt}, s{cnt}, 1")
        a(f"s_cbranch_scc0 {L}")
        a.label(D)
    def sum_poll(self, loads, base, acc, mid=None):
        a = self.a
        n = len(loads)
        def issue():
            for l in loads: a(l)
        def body():
            if not mid: issue()
            for i in range(1, n):
                a(f"s_waitcnt vmcnt({n-1-i})")
                src = base if i == 1 else acc
                for k in range(2): a(f"v_pk_add_f32 v[{acc+2*k}:{acc+1+2*k}], v[{src+2*k}:{src+1+2*k}], v[{base+4*i+2*k}:{base+1+4*i+2*k}]")
            a(f"v_cmp_u_f32 s[10:11], v{acc}, v{acc+1}")
            a(f"v_cmp_u_f32 vcc, v{acc+2}, v{acc+3}")
            a("s_or_b64 s[10:11], s[10:11], vcc")
        self.spin(body, issue=issue if mid else None, mid=mid)
    def silu(self, regs, tmp):
        a = self.a
        for i, r in enumerate(regs): a(f"v_mul_f32 v{tmp+i}, {f32(-LOG2E)}, v{r}")
        for i, r in enumerate(regs): a(f"v_exp_f32 v{tmp+i}, v{tmp+i}")
        for i, r in enumerate(regs): a(f"v_add_f32 v{tmp+i}, 1.0, v{tmp+i}")
        for i, r in enumerate(regs): a(f"v_rcp_f32 v{tmp+i}, v{tmp+i}")
        for i, r in enumerate(regs): a(f"v_mul_f32 v{r}, v{r}, v{tmp+i}")
    def unpack(self, src, dst, n):
        for i in range(n):
            self.a(f"v_lshlrev_b32 v{dst+2*i}, 16, v{src+i}")
            self.a(f"v_and_b32 v{dst+2*i+1}, 0xffff0000, v{src+i}")
    def row_sum(self, r):
        for m in ("quad_perm:[1,0,3,2]", "quad_perm:[2,3,0,1]", "row_half_mirror", "row_mirror"):
            self.a(f"v_add_f32_dpp v{r}, v{r}, v{r} {m} row_mask:0xf bank_mask:0xf")
    def silu_frag(self, base):
        a = self.a
        a("v_bfe_u32 v10, v0, 4, 1")
        a("v_mul_u32_u24 v5, 144, v10")
        a("v_bfe_u32 v4, v0, 3, 1")
        a("v_lshl_add_u32 v5, v4, 6, v5")
        a("v_and_b32 v4, 3, v0")
        a("v_lshl_add_u32 v5, v4, 4, v5")
        a("v_bfe_u32 v4, v0, 2, 1")
        a("v_lshl_add_u32 v5, v4, 3, v5")
        a(f"v_add_u32 v5, {base}, v5")
    def silu_run(self):
        a = self.a
        self.unpack(28, 16, 2)
        self.silu([16, 17, 18, 19], 24)
        a("v_cvt_pk_bf16_f32 v28, v16, v17")
        a("v_cvt_pk_bf16_f32 v29, v18, v19")
        a("ds_write_b64 v5, v[28:29]")
    def c_voff(self, d):
        a = self.a
        a(f"v_bfe_u32 v{d}, v0, 4, 1")
        a(f"v_lshlrev_b32 v{d}, 10, v{d}")
        a("v_and_b32 v11, 15, v0")
        a(f"v_lshl_add_u32 v{d}, v11, 3, v{d}")
    def mfma(self, d, A, B, first):
        c = "0" if first else f"v[{d}:{d+3}]"
        self.a(f"{MFMA} v[{d}:{d+3}], v[{A}:{A+3}], v[{B}:{B+3}], {c}")
    def tr(self, r, va, off, second):
        self.a(f"ds_read_b64_tr_b16 v[{r}:{r+1}], v{va} offset:{off}")
        self.a(f"ds_read_b64_tr_b16 v[{r+2}:{r+3}], v{va} offset:{off+second}")
    def voff256(self, d, stride_sh, t0, t1):
        a = self.a
        a(f"v_lshrrev_b32 v{t0}, 4, v0")
        a(f"v_and_b32 v{t1}, 15, v0")
        a(f"v_lshlrev_b32 v{d}, 1, v{t0}")
        a(f"v_xor_b32 v{d}, v{t1}, v{d}")
        a(f"v_lshlrev_b32 v{d}, 4, v{d}")
        a(f"v_lshl_add_u32 v{d}, v{t0}, {stride_sh}, v{d}")
        a(f"v_xor_b32 v{d+1}, 0x80, v{d}")
    def voff128(self, d, stride, t0, t1):
        a = self.a
        a(f"v_lshrrev_b32 v{t0}, 3, v0")
        a(f"v_and_b32 v{d}, 6, v{t0}")
        a(f"v_and_b32 v{t1}, 7, v0")
        a(f"v_xor_b32 v{d}, v{d}, v{t1}")
        a(f"v_mul_u32_u24 v{t0}, {stride}, v{t0}")
        a(f"v_lshl_add_u32 v{d}, v{d}, 4, v{t0}")
    def traddr256(self, d, n, base, t0, t1, first=None):
        a = self.a
        a(f"v_lshrrev_b32 v{t0}, 2, v0")
        a(f"v_and_b32 v{d}, 7, v{t0}")
        a(f"v_lshlrev_b32 v{d}, 5, v{d}")
        a(f"v_lshl_add_u32 v{d}, v{t0}, 8, v{d}")
        a(f"v_and_b32 v{t1}, 3, v0")
        a(f"v_lshl_add_u32 v{d}, v{t1}, 3, v{d}")
        if first: a(f"v_xor_b32 v{d}, {first}, v{d}")
        a(f"v_add_u32 v{d}, {base}, v{d}")
        for i in range(1, n): a(f"v_xor_b32 v{d+i}, {32*i}, v{d}")
    def traddr128(self, d, base, t0, t1, grp_sh=10, n=4):
        a = self.a
        a(f"v_bfe_u32 v{t0}, v0, 2, 3")
        a(f"v_bfe_u32 v{d}, v0, 3, 2")
        a(f"v_lshlrev_b32 v{d}, 5, v{d}")
        a(f"v_lshl_add_u32 v{d}, v{t0}, 7, v{d}")
        a(f"v_lshrrev_b32 v{t0}, 5, v0")
        a(f"v_lshl_add_u32 v{d}, v{t0}, {grp_sh}, v{d}")
        a(f"v_and_b32 v{t1}, 3, v0")
        a(f"v_lshl_add_u32 v{d}, v{t1}, 3, v{d}")
        if base is not None: a(f"v_add_u32 v{d}, {base}, v{d}")
        for i in range(1, n): a(f"v_xor_b32 v{d+i}, {32*i}, v{d}")

    def prologue(self):
        a = self.a
        a("s_cmp_ge_u32 s2, 256")
        a("s_cbranch_scc1 Lexit")
        a("s_load_dwordx16 s[16:31], s[0:1], 0")
        a("s_load_dwordx8 s[32:39], s[0:1], 64")
        a("s_load_dwordx2 s[40:41], s[0:1], 104")
        if self.diag:
            for k in range(1, 12): a(f"s_mov_b32 s{64+2*k}, 0")
        self.stamp(0)
        if self.o.get("padto"): a("s_memrealtime s[96:97]")
        a("s_getpc_b64 s[56:57]")
        a.label("Lpc0")
        a("s_lshr_b32 s5, s2, 3")
        a("v_lshrrev_b32 v1, 6, v0")
        a("s_mul_i32 s6, s5, 640")
        a("v_lshl_add_u32 v2, v1, 7, s6")
        a("v_min_u32 v2, Lcode_end-Lpc0-4, v2")
        a("global_load_dword v239, v2, s[56:57]")
        a("v_and_b32 v0, 63, v0")
        a("s_and_b32 s4, s2, 7")
        a("v_readfirstlane_b32 s3, v1")
        a(f"s_mov_b32 s42, {WS_SIZE}")
        a("s_mov_b32 s43, 0x20000")
        a("s_mov_b32 s47, 0x20000")
        a("s_mov_b32 s51, 0x20000")
        a("s_lshl_b32 s7, s3, 14")
        a("s_cmp_ge_u32 s5, 24")
        a("s_cbranch_scc1 LG0")
        a("s_cmp_eq_u32 s3, 4")
        a("s_cbranch_scc1 LH0")
        self.voff256(6, 8, 1, 8)
        a("s_mov_b32 m0, s7")
        a("s_cmp_ge_u32 s5, 16")
        a("s_cbranch_scc0 LT0")

    def tw_early(self):
        a, wf = self.a, self.wf
        a.label("LT0")
        a("s_and_b32 s6, s5, 8")
        a("s_add_u32 s6, s6, s4")
        a("s_lshl_b32 s6, s6, 21")
        a("s_and_b32 s8, s5, 7")
        a("s_lshl_b32 s8, s8, 16")
        a("s_add_u32 s6, s6, s8")
        a("s_add_u32 s6, s6, s7")
        a(f"s_add_u32 s6, s6, {6144*256}")
        a("v_xor_b32 v2, v8, v1")
        a("v_lshlrev_b32 v2, 4, v2")
        a("v_lshl_add_u32 v2, v1, 8, v2")
        a("v_xor_b32 v3, 64, v2")
        a("v_xor_b32 v4, 0x80, v2")
        a("v_xor_b32 v5, 0xc0, v2")
        a("s_mov_b32 s8, s6")
        a("s_add_u32 s9, s6, 16384")
        a("s_mov_b32 s46, 0x2000000")
        a("s_mov_b32 s50, 0x2000000")
        thr = self.o.get("thr", 0)
        thk = self.o.get("thk", 2)
        if thr: a(f"s_add_u32 s10, s6, {4096*thr}")
        a("s_waitcnt lgkmcnt(0)")
        a("s_mov_b64 s[44:45], s[18:19]")
        a("s_mov_b64 s[48:49], s[20:21]")
        a("s_load_dword s14, s[40:41], 0")
        if thr:
            a.label("LTWt")
            for i in range(4):
                a(f"buffer_load_dwordx4 v{2+i}, s[44:47], s8 offen offset:{1024*i} {wf} lds")
                a(f"s_waitcnt vmcnt({thk})")
            a("s_add_u32 m0, m0, 4096")
            a("s_add_u32 s8, s8, 4096")
            a("s_cmp_lt_u32 s8, s10")
            a("s_cbranch_scc1 LTWt")
        cap = self.o.get("cap", 7)
        if thr < 4:
            a.label("LTWk")
            for i in range(4):
                a(f"buffer_load_dwordx4 v{2+i}, s[44:47], s8 offen offset:{1024*i} {wf} lds")
                if cap: a(f"s_waitcnt vmcnt({cap})")
            a("s_add_u32 m0, m0, 4096")
            a("s_add_u32 s8, s8, 4096")
            a("s_cmp_lt_u32 s8, s9")
            a("s_cbranch_scc1 LTWk")
        self.stamp(10)
        if self.o.get("tnear"): a("s_branch LTW1")

    def tw_issue(self):
        a, wf = self.a, self.wf
        cap = self.o.get("vcap", 8)
        if self.o.get("tnear"):
            a.label("LTHp")
            a("s_branch LTH")
            a.label("LTW1")
        a("s_lshl_b32 s55, s4, 14")
        a("s_and_b32 s13, s5, 8")
        a("s_lshl_b32 s13, s13, 10")
        a("s_add_u32 s55, s55, s13")
        a("s_lshl_b32 s13, s3, 11")
        a("s_add_u32 s55, s55, s13")
        a(f"s_add_u32 s55, s55, {HB}")
        a("v_lshlrev_b32 v21, 4, v0")
        a("v_mov_b32 v229, v21")
        a("s_lshl_b32 s27, s4, 7")
        a(f"s_add_u32 s27, s27, {RDY+2048}")
        a(f"s_add_u32 m0, s7, {VB}")
        a("s_mov_b32 s8, s6")
        a("s_waitcnt lgkmcnt(0)")
        self.tag()
        for g in range(4):
            if g == 2:
                a("s_mov_b64 exec, 0xff")
                self.rdy_load()
                a("s_mov_b64 exec, -1")
            for i in range(4):
                a(f"buffer_load_dwordx4 v{6+(i&1)}, s[48:51], s8 offen offset:{1024*i} {wf} lds")
                if cap: a(f"s_waitcnt vmcnt({cap})")
            if g < 3:
                a("s_add_u32 m0, m0, 4096")
                a("s_add_u32 s8, s8, 4096")
        a("s_waitcnt vmcnt(8)")
        a("s_mov_b64 exec, 0xff")
        self.rdy_check()
        a("s_mov_b64 exec, -1")
        self.qfetch()

    def qfetch(self):
        for i in range(2): self.a(f"buffer_load_dwordx4 v[{192+4*i}:{195+4*i}], v21, s[40:43], s55 offen offset:{1024*i} sc1")

    def ww_early(self):
        a, wf = self.a, self.wf
        a.label("LW0")
        if self.o.get("now"): a("s_endpgm")
        a("s_lshl_b32 s9, s4, 19")
        a("s_and_b32 s52, s5, 7")
        a("s_lshl_b32 s15, s52, 10")
        a("s_add_u32 s9, s9, s15")
        a("s_lshl_b32 s15, s3, 8")
        a("s_add_u32 s9, s9, s15")
        a("v_mul_u32_u24 v2, 0x1f00, v1")
        a("v_add_u32 v6, v6, v2")
        a("v_add_u32 v7, v7, v2")
        a("s_add_u32 s13, s7, 16384")
        a(f"s_mov_b32 s46, {512*8192}")
        a("s_waitcnt lgkmcnt(0)")
        a("s_mov_b64 s[44:45], s[22:23]")
        self.delay("wdel")
        a("s_load_dword s14, s[40:41], 0")
        a.label("LWq")
        for i in range(2):
            a(f"buffer_load_dwordx4 v{6+i}, s[44:47], s9 offen {wf} lds")
            a("s_add_u32 m0, m0, 1024")
            a("s_add_u32 s9, s9, 32768")
        if self.o.get("qcap", 8): a(f"s_waitcnt vmcnt({self.o.get('qcap', 8)})")
        a("s_cmp_lt_u32 m0, s13")
        a("s_cbranch_scc1 LWq")
        a("s_branch LW2")
        a.label("LH0")
        a("s_cmp_ge_u32 s5, 16")
        a("s_cbranch_scc0 " + ("LTHp" if self.o.get("tnear") else "LTH"))
        a("s_branch LWHp")

    def g_early(self):
        a, wf = self.a, self.wf
        a.label("LG0")
        if self.o.get("nog"): a("s_endpgm")
        a("s_sub_u32 s5, s5, 24")
        if self.o.get("chs", 0):
            a("s_mov_b32 s60, s5")
            a("s_mov_b32 s61, s4")
        else:
            a("s_mov_b32 s60, s4")
            a("s_mov_b32 s61, s5")
        a("s_mov_b32 s50, 2048")
        a("s_cmp_eq_u32 s3, 4")
        a("s_cbranch_scc0 LGW")
        self.c_voff(4)
        a("s_lshl_b32 s9, s61, 7")
        a("s_waitcnt lgkmcnt(0)")
        a("s_mov_b64 s[48:49], s[34:35]")
        a("buffer_load_dwordx2 v[28:29], v4, s[48:51], s9 offen")
        a("s_load_dword s14, s[40:41], 0")
        self.silu_frag(SC)
        a("s_waitcnt vmcnt(0)")
        self.silu_run()
        a("s_waitcnt lgkmcnt(0)")
        a("s_barrier")
        a("s_barrier")
        a("s_branch LGH2")
        a.label("LGW")
        a("v_lshlrev_b32 v6, 4, v0")
        self.voff128(2, 6144, 1, 3)
        a("s_lshl_b32 s9, s61, 2")
        a("s_add_u32 s9, s9, s3")
        a(f"s_mul_i32 s9, s9, {16*6144}")
        a("s_lshl_b32 s6, s60, 7")
        a("s_add_u32 s9, s9, s6")
        a("s_lshl_b32 s13, s3, 5")
        a("s_add_u32 s6, s6, s13")
        a("v_and_b32 v12, 1, v0")
        a("v_and_b32 v13, 48, v0")
        a("v_lshrrev_b32 v4, 1, v13")
        a("v_lshl_add_u32 v4, v12, 10, v4")
        a("v_lshrrev_b32 v14, 5, v0")
        a("v_lshlrev_b32 v14, 10, v14")
        a("v_and_b32 v15, 31, v0")
        a("v_lshl_add_u32 v14, v15, 3, v14")
        a("s_lshl_b32 s63, s3, 8")
        a("s_lshr_b32 m0, s7, 2")
        a(f"s_mov_b32 s54, {512*6144}")
        a("s_mov_b32 s55, 0x20000")
        a("s_lshl_b32 s8, s60, 12")
        a("s_lshl_b32 s15, s3, 10")
        a("s_add_u32 s8, s8, s15")
        a("s_lshl_b32 s15, s61, 7")
        a("s_add_u32 s8, s8, s15")
        a(f"s_add_u32 s8, s8, {HA}")
        a(f"s_add_u32 s62, s8, {ALOC}")
        a("s_waitcnt lgkmcnt(0)")
        a("s_mov_b64 s[48:49], s[16:17]")
        a("s_mov_b64 s[52:53], s[36:37]")
        lnh = self.o.get("lnh", 1)
        if lnh:
            a("buffer_load_dwordx2 v[24:25], v14, s[48:51], s63 offen")
        else:
            a("buffer_load_dwordx4 v[24:27], v6, s[48:51], 0 offen")
            a("buffer_load_dwordx4 v[28:31], v6, s[48:51], 0 offen offset:1024")
        self.exec16(3)
        a("buffer_load_dwordx2 v[20:21], v4, s[48:51], s6 offen")
        a("s_mov_b64 exec, -1")
        for i in range(2):
            a(f"buffer_load_dwordx4 v2, s[52:55], s9 offen {wf} lds")
            a(f"buffer_load_dwordx4 v2, s[52:55], s9 offen offset:1024 {wf} lds")
            if i == 0:
                a("s_add_u32 m0, m0, 2048")
                a(f"s_add_u32 s9, s9, {8*6144}")
        a("s_mov_b64 exec, 1")
        a("buffer_load_dword v238, v6, s[40:43], s62 offen sc1")
        a("s_mov_b64 exec, -1")
        a("s_load_dword s14, s[40:41], 0")
        mr0 = 0
        self.traddr128(8, None, 1, 3, grp_sh=11, n=1)
        a("v_xor_b32 v8, s13, v8")
        a("v_mul_u32_u24 v6, 144, v12")
        a("v_add_u32 v6, v6, v13")
        a(f"v_add_u32 v6, {SC}, v6")
        a("v_lshlrev_b32 v7, 4, v12")
        a("v_lshl_add_u32 v13, v13, 1, v7")
        a("s_cmp_eq_u32 s61, 0")
        a("s_cselect_b32 s9, 1.0, 0")
        for i in range(4): a(f"v_mov_b32 v{44+i}, s9")
        a("s_mov_b32 s9, 0x3f803f80")
        if lnh:
            a("v_and_b32 v15, 48, v0")
            a("s_lshl_b32 s15, s3, 2")
            a(f"s_add_u32 s15, s15, {LNS}")
            a("v_add_u32 v15, s15, v15")
            a("v_lshlrev_b32 v7, 5, v12")
            a(f"v_add_u32 v7, {LNS}, v7")
            a(f"v_mov_b32 v52, {f32(1e-5)}")
            a("s_waitcnt vmcnt(5) lgkmcnt(0)")
            self.tag()
            a("v_dot2_f32_bf16 v48, v24, s9, 0")
            a("v_dot2_f32_bf16 v50, v24, v24, 0")
            a("v_dot2_f32_bf16 v48, v25, s9, v48")
            a("v_dot2_f32_bf16 v50, v25, v25, v50")
            self.unpack(20, 16, 2)
            a("v_permlane16_swap_b32 v48, v50")
            a("v_add_f32 v48, v48, v50")
            self.row_sum(48)
            a("ds_write_b32 v15, v48")
            a("s_waitcnt lgkmcnt(0)")
        else:
            a("v_lshlrev_b32 v7, 7, v12")
            a(f"s_waitcnt vmcnt({5+mr0})")
            for b in range(2):
                a(f"v_dot2_f32_bf16 v{48+b}, v{24+4*b}, s9, 0")
                a(f"v_dot2_f32_bf16 v{50+b}, v{24+4*b}, v{24+4*b}, 0")
            for i in range(1, 4):
                for b in range(2):
                    a(f"v_dot2_f32_bf16 v{48+b}, v{24+4*b+i}, s9, v{48+b}")
                    a(f"v_dot2_f32_bf16 v{50+b}, v{24+4*b+i}, v{24+4*b+i}, v{50+b}")
            a("v_permlane32_swap_b32 v48, v49")
            a("v_permlane32_swap_b32 v50, v51")
            a("v_add_f32 v48, v48, v49")
            a("v_add_f32 v50, v50, v51")
            a("v_permlane16_swap_b32 v48, v50")
            a("v_add_f32 v48, v48, v50")
            self.row_sum(48)
            a("ds_bpermute_b32 v50, v7, v48")
            a("ds_bpermute_b32 v51, v7, v48 offset:64")
            a(f"v_mov_b32 v52, {f32(1e-5)}")
            a("s_waitcnt lgkmcnt(0)")
            self.tag()
            a(f"v_mul_f32 v50, {f32(1/512)}, v50")
            a(f"v_fmamk_f32 v51, v51, {f32(1/512)}, v52")
            a("v_fma_f32 v51, -v50, v50, v51")
            a("v_rsq_f32 v51, v51")
            self.unpack(20, 16, 2)
            for i in range(4): a(f"v_sub_f32 v{16+i}, v{16+i}, v50")
            for i in range(4): a(f"v_mul_f32 v{16+i}, v{16+i}, v51")
        a("v_mov_b32 v58, s14")
        a("v_mov_b32 v59, s14")
        a(f"s_waitcnt vmcnt({1+mr0})")
        a("s_barrier")
        self.stamp(1)
        if lnh:
            a("ds_read_b128 v[24:27], v7")
            a("ds_read_b128 v[28:31], v7 offset:16")
        for ks in range(2):
            a(f"ds_read_b128 v[{32+4*ks}:{35+4*ks}], v6 offset:{64*ks}")
            for seg in range(2): self.tr(64 + 8 * ks + 4 * seg, 8, W1 + 8192 * ks + 1024 * seg, 4096)
        if lnh:
            a("s_waitcnt lgkmcnt(10)")
            a("v_pk_add_f32 v[24:25], v[24:25], v[26:27]")
            a("v_pk_add_f32 v[28:29], v[28:29], v[30:31]")
            a("v_add_f32 v50, v24, v25")
            a("v_add_f32 v51, v28, v29")
            a(f"v_mul_f32 v50, {f32(-1/512)}, v50")
            a(f"v_fmamk_f32 v51, v51, {f32(1/512)}, v52")
            a("v_fma_f32 v51, -v50, v50, v51")
            a("v_max_f32 v51, v51, v52")
            a("v_rsq_f32 v51, v51")
            for k in range(2): a(f"v_pk_add_f32 v[{16+2*k}:{17+2*k}], v[{16+2*k}:{17+2*k}], v[50:51] op_sel_hi:[1,0]")
            for k in range(2): a(f"v_pk_mul_f32 v[{16+2*k}:{17+2*k}], v[{16+2*k}:{17+2*k}], v[50:51] op_sel:[0,1] op_sel_hi:[1,1]")
        a("s_waitcnt lgkmcnt(5)")
        self.mfma(40, 64, 32, True)
        self.mfma(44, 68, 32, False)
        a("s_waitcnt lgkmcnt(0)")
        self.mfma(40, 72, 36, False)
        self.mfma(44, 76, 36, False)
        self.exec16(3)
        for k in range(2): a(f"v_pk_fma_f32 v[{40+2*k}:{41+2*k}], v[{16+2*k}:{17+2*k}], v[{44+2*k}:{45+2*k}], v[{40+2*k}:{41+2*k}]")
        a("v_cvt_pk_bf16_f32 v56, v40, v41")
        a("v_cvt_pk_bf16_f32 v57, v42, v43")
        a("buffer_store_dwordx4 v[56:59], v13, s[40:43], s62 offen")
        self.stamp(3)
        a("s_barrier")
        a("buffer_store_dwordx4 v[56:59], v13, s[40:43], s8 offen sc1")
        a("s_mov_b64 exec, -1")

    def wo_setup(self):
        a = self.a
        self.voff128(2, 1024, 3, 4)
        a("s_lshl_b32 s53, s4, 19")
        a("s_lshl_b32 s15, s3, 17")
        a("s_add_u32 s53, s53, s15")
        a("s_lshr_b32 s15, s52, 2")
        a("s_add_u32 s53, s53, s15")
        a(f"s_add_u32 s59, s7, {WO+16384}")
        a(f"s_add_u32 s62, s7, {WO}")
        a("s_mov_b64 s[48:49], s[24:25]")
        a(f"s_mov_b32 s50, {4096*1024}")
    def mr_issue(self, v, srd):
        a, wf = self.a, self.wf
        L = self.lab("Lmr")
        a(f"s_mul_i32 s9, s61, {64*6144}")
        a("s_lshl_b32 s15, s60, 9")
        a("s_add_u32 s9, s9, s15")
        a("s_lshl_b32 s15, s3, 7")
        a("s_add_u32 s9, s9, s15")
        a("s_add_u32 s9, s9, 2048")
        a("s_mov_b32 m0, s63")
        a("s_add_u32 s15, s63, 8192")
        a.label(L)
        a(f"buffer_load_dwordx4 v{v}, s[{srd}:{srd+3}], s9 offen {wf} lds")
        a("s_add_u32 m0, m0, 1024")
        a(f"s_add_u32 s9, s9, {8*6144}")
        a("s_cmp_lt_u32 m0, s15")
        a(f"s_cbranch_scc1 {L}")
    def mr_compute(self, sc, younger):
        a = self.a
        self.traddr128(8, "s63", 5, 6)
        a("v_and_b32 v5, 1, v0")
        a("v_and_b32 v6, 48, v0")
        a("v_mul_u32_u24 v7, 144, v5")
        a("v_add_u32 v7, v7, v6")
        a(f"v_add_u32 v7, {sc}, v7")
        a("v_lshlrev_b32 v5, 4, v5")
        a("v_lshl_add_u32 v5, v6, 1, v5")
        for ks in range(2): a(f"ds_read_b128 v[{32+4*ks}:{35+4*ks}], v7 offset:{64*ks}")
        a("s_lshl_b32 s9, s60, 14")
        a("s_lshl_b32 s15, s3, 12")
        a("s_add_u32 s9, s9, s15")
        a("s_lshl_b32 s15, s61, 7")
        a("s_add_u32 s9, s9, s15")
        a(f"s_add_u32 s9, s9, {HP}")
        a(f"s_waitcnt vmcnt({younger})")
        a("s_setprio 3")
        for ks in range(2):
            for t in range(4): self.tr(64 + 16 * ks + 4 * t, 8 + t, 4096 * ks, 2048)
        a("s_waitcnt lgkmcnt(0)")
        for ks in range(2):
            for t in range(4): self.mfma(40 + 4 * t, 64 + 16 * ks + 4 * t, 32 + 4 * ks, ks == 0)
        self.exec16(3)
        for t in range(4):
            a(f"v_cvt_pk_bf16_f32 v{40+4*t}, v{40+4*t}, v{41+4*t}")
            a(f"v_cvt_pk_bf16_f32 v{41+4*t}, v{42+4*t}, v{43+4*t}")
            a(f"v_mov_b32 v{42+4*t}, s14")
        for t in range(4): a(f"buffer_store_dwordx4 v[{40+4*t}:{43+4*t}], v5, s[40:43], s9 offen offset:{1024*t} sc1")
        a("s_mov_b64 exec, -1")
        a("s_setprio 0")
        self.stamp(11)
    def rdy_publish(self, vb, jreg):
        a = self.a
        for i in range(4): a(f"v_mov_b32 v{vb+i}, s14")
        a(f"v_mov_b32 v{vb+4}, 0")
        a(f"s_lshl_b32 s15, {jreg}, 4")
        a(f"s_add_u32 s15, s15, {RDY}")
        a("s_mov_b64 exec, 1")
        a(f"buffer_store_dwordx4 v[{vb}:{vb+3}], v{vb+4}, s[40:43], s15 offen sc1")
        a("s_mov_b64 exec, -1")
    def rdy_load(self):
        self.a("buffer_load_dword v237, v229, s[40:43], s27 offen sc1")
    def rdy_check(self):
        a = self.a
        L = self.lab("Lok")
        a("v_cmp_ne_u32 vcc, s14, v237")
        a(f"s_cbranch_vccz {L}")
        self.poll(["buffer_load_dword v237, v229, s[40:43], s27 offen sc1"], [(*self.TAGBAD, 237)], sleep=2)
        a.label(L)

    def g_index(self):
        a = self.a
        a("s_mul_i32 s26, s4, 7")
        a("s_add_u32 s26, s26, s5")
        a("s_cmp_eq_u32 s5, 7")

    def tw_main(self):
        a = self.a
        self.stamp(1)
        a("v_lshlrev_b32 v22, 2, v8")
        a("v_lshrrev_b32 v23, 5, v0")
        a("v_lshl_add_u32 v22, v23, 1, v22")
        a("v_and_b32 v23, 16, v0")
        a("v_lshl_add_u32 v22, v23, 3, v22")
        a("s_mul_i32 s13, s3, 272")
        a(f"s_add_u32 s13, s13, {QB}")
        a("v_add_u32 v22, s13, v22")
        a("v_xor_b32 v3, v8, v1")
        a("v_lshlrev_b32 v3, 4, v3")
        a("v_lshl_add_u32 v3, v8, 8, v3")
        a("v_add_u32 v8, s7, v3")
        a("v_xor_b32 v9, 64, v8")
        a("v_xor_b32 v10, 0x80, v8")
        a("v_xor_b32 v11, 0xc0, v8")
        for t in range(4):
            for ks in range(4):
                r = 64 + 16 * t + 4 * ks
                a(f"ds_read_b128 v[{r}:{r+3}], v{8+ks} offset:{4096*t}")
        a("s_lshl_b32 s8, s3, 6")
        self.traddr256(12, 2, VB, 3, 5, first="s8")
        a("v_mul_u32_u24 v20, 272, v5")
        a("v_lshl_add_u32 v20, v1, 4, v20")
        a(f"v_add_u32 v20, {QB}, v20")
        a("v_lshlrev_b32 v14, 6, v5")
        a("v_lshl_add_u32 v14, v1, 4, v14")
        a(f"v_add_u32 v14, {PB}, v14")
        a("s_lshl_b32 s9, s3, 9")
        a("v_add_u32 v15, s9, v14")
        a("v_lshlrev_b32 v16, 4, v5")
        a(f"v_add_u32 v16, {MX}, v16")
        a("s_lshl_b32 s9, s3, 2")
        a("v_add_u32 v17, s9, v16")
        a("v_lshlrev_b32 v18, 8, v5")
        a("v_lshl_add_u32 v18, v1, 4, v18")
        a("v_lshlrev_b32 v19, 2, v5")
        a("s_lshl_b32 s6, s4, 4")
        a("s_add_u32 s6, s6, s5")
        a("s_lshl_b32 s9, s6, 10")
        a("s_add_u32 s8, s8, s9")
        a(f"s_add_u32 s8, s8, {HC}")
        a("s_lshl_b32 s52, s6, 7")
        a(f"s_add_u32 s52, s52, {HL}")
        a(f"s_add_u32 s53, s8, {LOC}")
        a(f"s_add_u32 s54, s52, {LOC}")
        a(f"s_mov_b32 s10, {f32(CSC)}")
        a("s_lshl_b64 s[58:59], 1, s3")
        a("v_lshlrev_b32 v232, 6, v5")
        a(f"v_add_u32 v232, {LS}, v232")
        a("s_lshl_b32 s9, s3, 4")
        a("v_lshl_add_u32 v233, v1, 2, s9")
        a("v_add_u32 v233, v233, v232")
        def vr(k):
            for t in range(2): self.tr(128 + 8 * k + 4 * t, 12 + t, 8192 * k, 4096)
        def xrow(op, r):
            a(f"v_mov_b32 v225, v{r}")
            a(f"v_permlane16_swap_b32 v{r}, v225")
            a(f"{op} v{r}, v{r}, v225")
            a(f"v_mov_b32 v225, v{r}")
            a(f"v_permlane32_swap_b32 v{r}, v225")
            a(f"{op} v{r}, v{r}, v225")
        a(f"s_mov_b32 s12, {SPIN}")
        a("s_barrier")
        for k in (0, 2, 4, 6): vr(k)
        a("s_branch LTq1")
        a.label("LTq0")
        if self.o.get("qsleep", 0): a(f"s_sleep {self.o['qsleep']}")
        self.qfetch()
        a.label("LTq1")
        a("s_waitcnt vmcnt(1)")
        self.unpack(192, 24, 4)
        a("s_waitcnt vmcnt(0)")
        self.unpack(196, 32, 4)
        for k in range(4): a(f"v_pk_add_f32 v[{24+2*k}:{25+2*k}], v[{24+2*k}:{25+2*k}], v[{32+2*k}:{33+2*k}]")
        for i in range(4): a(f"v_permlane32_swap_b32 v{24+i}, v{28+i}")
        for k in range(2): a(f"v_pk_add_f32 v[{24+2*k}:{25+2*k}], v[{24+2*k}:{25+2*k}], v[{28+2*k}:{29+2*k}]")
        for i in range(2): a(f"v_permlane16_swap_b32 v{24+i}, v{26+i}")
        a("v_pk_add_f32 v[24:25], v[24:25], v[26:27]")
        a("v_cmp_u_f32 vcc, v24, v25")
        a("v_cvt_pk_bf16_f32 v24, v24, v25")
        a("s_cbranch_vccz LTq2")
        a("s_sub_u32 s12, s12, 1")
        a("s_cbranch_scc0 LTq0")
        a.label("LTq2")
        self.stamp(2)
        a("ds_write_b16 v22, v24")
        a("ds_write_b16_d16_hi v22, v24 offset:64")
        a("s_waitcnt lgkmcnt(0)")
        a("s_barrier")
        for ks in range(4): a(f"ds_read_b128 v[{208+4*ks}:{211+4*ks}], v20 offset:{64*ks}")
        self.stamp(3)
        for ks in range(4):
            a(f"s_waitcnt lgkmcnt({3+3*ks})")
            for t in range(4): self.mfma(40 + 4 * t, 64 + 16 * t + 4 * ks, 208 + 4 * ks, ks == 0)
            vr(1 + 2 * ks)
        a("v_max3_f32 v224, v40, v41, v42")
        a("v_max3_f32 v225, v43, v44, v45")
        a("v_max3_f32 v226, v46, v47, v48")
        a("v_max3_f32 v227, v49, v50, v51")
        a("v_max3_f32 v228, v52, v53, v54")
        a("v_max3_f32 v224, v224, v225, v226")
        a("v_max3_f32 v227, v227, v228, v55")
        a("v_max_f32 v224, v224, v227")
        xrow("v_max_f32", 224)
        a(f"v_mul_f32 v230, {f32(-CSC)}, v224")
        for i in range(8): a(f"v_pk_fma_f32 v[{40+2*i}:{41+2*i}], v[{40+2*i}:{41+2*i}], s[10:11], v[230:231] op_sel_hi:[1,0,0]")
        a("ds_write_b32 v17, v230")
        self.exec16(15)
        for blk in range(2):
            for i in range(8): a(f"v_exp_f32 v{40+8*blk+i}, v{40+8*blk+i}")
            for i in range(4): a(f"v_cvt_pk_bf16_f32 v{56+4*blk+i}, v{40+8*blk+2*i}, v{41+8*blk+2*i}")
            a(f"ds_write_b128 v15, v[{56+4*blk}:{59+4*blk}] offset:{256*blk}")
        for i in range(4): a(f"v_pk_add_f32 v[{40+2*i}:{41+2*i}], v[{40+2*i}:{41+2*i}], v[{48+2*i}:{49+2*i}]")
        for i in range(2): a(f"v_pk_add_f32 v[{40+2*i}:{41+2*i}], v[{40+2*i}:{41+2*i}], v[{44+2*i}:{45+2*i}]")
        a("v_pk_add_f32 v[40:41], v[40:41], v[42:43]")
        a("v_add_f32 v231, v40, v41")
        a("ds_write_b32 v233, v231")
        a("s_mov_b64 exec, -1")
        a("s_waitcnt lgkmcnt(0)")
        a("s_barrier")
        self.stamp(4)
        for k in range(2): a(f"ds_read_b128 v[{64+4*k}:{67+4*k}], v14 offset:{256*k}")
        a("ds_read_b128 v[24:27], v16")
        for w in range(4): a(f"ds_read_b128 v[{96+4*w}:{99+4*w}], v232 offset:{16*w}")
        for k in range(2, 8): a(f"ds_read_b128 v[{64+4*k}:{67+4*k}], v14 offset:{256*k}")
        def pv(k):
            for t in range(2): self.mfma(192 + 8 * (k >> 1) + 4 * t, 128 + 8 * k + 4 * t, 64 + 4 * k, (k & 1) == 0)
        a("s_waitcnt lgkmcnt(12)")
        pv(0)
        a("s_waitcnt lgkmcnt(10)")
        pv(1)
        a("v_min3_f32 v32, v24, v25, v26")
        a("v_min_f32 v32, v32, v27")
        a("s_waitcnt lgkmcnt(5)")
        pv(2)
        for k in range(2): a(f"v_pk_add_f32 v[{24+2*k}:{25+2*k}], v[32:33], v[{24+2*k}:{25+2*k}] op_sel_hi:[0,1] neg_lo:[0,1] neg_hi:[0,1]")
        for w in range(4): a(f"v_pk_add_f32 v[{96+4*w}:{97+4*w}], v[{96+4*w}:{97+4*w}], v[{98+4*w}:{99+4*w}]")
        a("s_waitcnt lgkmcnt(4)")
        pv(3)
        for w in range(4): a(f"v_exp_f32 v{24+w}, v{24+w}")
        a("s_waitcnt lgkmcnt(3)")
        pv(4)
        a("v_pk_mul_f32 v[96:97], v[96:97], v[24:25] op_sel_hi:[1,0]")
        a("v_pk_fma_f32 v[96:97], v[100:101], v[24:25], v[96:97] op_sel:[0,1,0] op_sel_hi:[1,1,1]")
        a("v_pk_fma_f32 v[96:97], v[104:105], v[26:27], v[96:97] op_sel_hi:[1,0,1]")
        a("v_pk_fma_f32 v[96:97], v[108:109], v[26:27], v[96:97] op_sel:[0,1,0] op_sel_hi:[1,1,1]")
        a("v_add_f32 v33, v96, v97")
        a("s_waitcnt lgkmcnt(2)")
        pv(5)
        a("v_rcp_f32 v36, v33")
        a("v_log_f32 v37, v33")
        for k in range(2): a(f"v_pk_mul_f32 v[{24+2*k}:{25+2*k}], v[{24+2*k}:{25+2*k}], v[36:37] op_sel_hi:[1,0]")
        a("s_waitcnt lgkmcnt(1)")
        pv(6)
        for i in range(4): a(f"v_pk_mul_f32 v[{192+2*i}:{193+2*i}], v[{192+2*i}:{193+2*i}], v[24:25] op_sel_hi:[1,0]")
        a("v_sub_f32 v37, v37, v32")
        a("s_waitcnt lgkmcnt(0)")
        pv(7)
        a("s_mov_b64 exec, s[58:59]")
        a("buffer_store_dword v37, v19, s[40:43], s54 offen")
        a("s_mov_b64 exec, -1")
        for i in range(4): a(f"v_pk_fma_f32 v[{192+2*i}:{193+2*i}], v[{200+2*i}:{201+2*i}], v[24:25], v[{192+2*i}:{193+2*i}] op_sel:[0,1,0] op_sel_hi:[1,1,1]")
        for i in range(4): a(f"v_pk_fma_f32 v[{192+2*i}:{193+2*i}], v[{208+2*i}:{209+2*i}], v[26:27], v[{192+2*i}:{193+2*i}] op_sel_hi:[1,0,1]")
        self.exec16(15)
        for i in range(4): a(f"v_pk_fma_f32 v[{192+2*i}:{193+2*i}], v[{216+2*i}:{217+2*i}], v[26:27], v[{192+2*i}:{193+2*i}] op_sel:[0,1,0] op_sel_hi:[1,1,1]")
        for i in range(4): a(f"v_cvt_pk_bf16_f32 v{200+i}, v{192+2*i}, v{193+2*i}")
        a("buffer_store_dwordx4 v[200:203], v18, s[40:43], s53 offen")
        self.stamp(5)
        a("s_barrier")
        a("buffer_store_dwordx4 v[200:203], v18, s[40:43], s8 offen sc1")
        a("s_mov_b64 exec, s[58:59]")
        a("buffer_store_dword v37, v19, s[40:43], s52 offen sc1")
        a("s_mov_b64 exec, -1")
        if self.o.get("nored"): self.end()
        a("s_cmp_lt_u32 s5, 4")
        a("s_cbranch_scc0 LTWe")
        a("s_cmp_eq_u32 s3, 1")
        a("s_cbranch_scc0 LTWe")
        a("s_lshl_b32 s6, s4, 2")
        a("s_add_u32 s6, s6, s5")
        self.srd(44, 16, 2048)
        self.srd(48, 38, 2048)
        a("v_bfe_u32 v2, v0, 2, 1")
        a("v_and_b32 v3, 3, v0")
        a("v_lshlrev_b32 v4, 3, v3")
        a("v_lshl_add_u32 v5, v2, 10, v4")
        a("v_lshlrev_b32 v6, 1, v5")
        a("v_lshrrev_b32 v8, 3, v0")
        a("v_lshl_add_u32 v7, v8, 12, v6")
        a("v_lshlrev_b32 v9, 4, v0")
        a("s_lshl_b32 s7, s6, 5")
        a("s_lshl_b32 s8, s6, 6")
        a(f"s_add_u32 s9, s8, {HD}")
        a(f"s_add_u32 s52, s8, {HM}")
        a(f"s_add_u32 s53, s8, {HM+3*4096}")
        a(f"s_mul_i32 s54, s6, {HFS}")
        a(f"s_add_u32 s54, s54, {HF}")
        a("s_add_u32 s55, s54, 4096")
        a("buffer_load_dwordx2 v[10:11], v5, s[44:47], s7 offen")
        a(f"s_mov_b32 s27, {RDY}")
        self.poll([f"buffer_load_dword v{40+i}, v9, s[40:43], s27 offen offset:{1024*i} sc1" for i in range(4)]
                  + ["buffer_load_dwordx4 v[12:15], v6, s[40:43], s52 offen sc1", "buffer_load_dwordx4 v[16:19], v6, s[40:43], s53 offen sc1"],
                  [(*self.TAGBAD, 40 + i) for i in range(4)] + [(*self.TAGBAD, 14), (*self.TAGBAD, 18)], sleep=2)
        self.poll(["buffer_load_dwordx4 v[24:27], v7, s[40:43], s9 offen sc1"], [(*self.POISON, 24)], sleep=2)
        self.stamp(6)
        a("s_cmp_eq_u32 s6, 0")
        a("s_cbranch_scc0 LTWn")
        a("s_mov_b64 exec, 1")
        a("v_mov_b32 v20, s14")
        a("v_mov_b32 v21, 0")
        a(f"buffer_store_dword v20, v21, s[40:43], 0 offen offset:{EPOCH} sc1")
        a("s_mov_b64 exec, -1")
        a.label("LTWn")
        red8 = self.red8
        red8(24)
        self.unpack(10, 28, 2)
        self.unpack(12, 32, 2)
        self.unpack(16, 36, 2)
        for i in range(4): a(f"v_fmac_f32 v{28+i}, v{24+i}, v{32+i}")
        if self.o.get("fsleep"): a(f"s_sleep {self.o['fsleep']}")
        self.sum_poll([f"buffer_load_dwordx4 v[{64+4*i}:{67+4*i}], v9, s[40:43], s{54+(i>>2)} offen offset:{1024*(i&3)} sc1" for i in range(7)], 64, 56)
        self.stamp(7)
        red8(56)
        for i in range(4): a(f"v_fmac_f32 v{28+i}, v{56+i}, v{36+i}")
        a("v_cvt_pk_bf16_f32 v10, v28, v29")
        a("v_cvt_pk_bf16_f32 v11, v30, v31")
        a("s_mov_b64 exec, 0xff")
        a("buffer_store_dwordx2 v[10:11], v5, s[48:51], s7 offen " + ["", "sc1", "nt", "sc0 sc1"][self.o.get("oflag", 0)])
        self.stamp(8)
        if self.o.get("padto"):
            a("s_cmp_eq_u32 s6, 0")
            a("s_cbranch_scc0 LTWe")
        if self.o.get("padto"):
            a(f"s_mov_b32 s100, {self.o['padto']}")
            if self.o.get("amp"):
                a("s_waitcnt lgkmcnt(0)")
                a(f"s_sub_u32 s98, s{64+2*self.o['amp']}, s96")
                a("s_mul_i32 s98, s98, 10")
                a("s_add_u32 s100, s100, s98")
            a.label("Lpad")
            a("s_memrealtime s[98:99]")
            a("s_waitcnt lgkmcnt(0)")
            a("s_sub_u32 s98, s98, s96")
            a("s_cmp_lt_u32 s98, s100")
            a("s_cbranch_scc1 Lpad")
        a.label("LTWe")
        self.end()

    def ww_main(self):
        a, wf = self.a, self.wf
        a.label("LWHp")
        a("s_branch LWH2")
        a.label("LW2")
        mre = self.o.get("mre", 0)
        self.voff128(12, 6144, 3, 4)
        a("s_mov_b64 s[44:45], s[36:37]")
        a(f"s_mov_b32 s46, {512*6144}")
        a("s_mov_b32 s60, s4")
        a("s_mov_b32 s61, s52")
        a(f"s_add_u32 s63, s7, {WO+8192}")
        if mre: self.mr_issue(12, 44)
        self.stamp(1)
        a("v_mov_b32 v17, v12")
        self.traddr256(8, 8, "s7", 3, 5)
        a("s_lshr_b32 s58, s7, 2")
        a(f"s_add_u32 s58, s58, {GA}")
        a("v_bfe_u32 v3, v0, 2, 1")
        a("v_mul_u32_u24 v16, 144, v3")
        a("v_lshl_add_u32 v16, v1, 4, v16")
        a(f"v_add_u32 v16, {HW}, v16")
        a("v_lshlrev_b32 v18, 4, v0")
        a(f"v_add_u32 v18, {RED}, v18")
        a("v_and_b32 v19, 15, v0")
        a("v_lshlrev_b32 v19, 3, v19")
        a("v_lshrrev_b32 v3, 5, v0")
        a("v_lshl_add_u32 v19, v3, 7, v19")
        a("v_and_b32 v3, 16, v0")
        a("v_lshl_add_u32 v19, v3, 9, v19")
        a("s_lshl_b32 s55, s52, 14")
        a("s_lshl_b32 s15, s3, 11")
        a("s_add_u32 s55, s55, s15")
        a("s_lshl_b32 s15, s4, 8")
        a("s_add_u32 s55, s55, s15")
        a(f"s_add_u32 s55, s55, {HB}")
        a("s_lshl_b32 s52, s52, 9")
        self.wo_setup()
        a(f"s_waitcnt vmcnt({8+8*mre}) lgkmcnt(0)")
        self.tag()
        for t in range(8): self.tr(64 + 4 * t, 8 + t, 0, 4096)
        a(f"s_waitcnt vmcnt({8*mre})")
        self.stamp(2)
        for t in range(8): self.tr(96 + 4 * t, 8 + t, 8192, 4096)
        a("s_barrier")
        for ks in range(2): a(f"ds_read_b128 v[{24+4*ks}:{27+4*ks}], v16 offset:{64*ks}")
        self.stamp(3)
        a("s_waitcnt lgkmcnt(0)")
        for ks in range(2):
            for t in range(8): self.mfma(128 + 4 * t, 24 + 4 * ks, 64 + 32 * ks + 4 * t, ks == 0)
        for k in range(4): a(f"v_permlane32_swap_b32 v{128+8*k}, v{132+8*k}")
        def red4(stride):
            for w in range(4): a(f"ds_read_b128 v[{24+4*w}:{27+4*w}], v18 offset:{stride*w}")
            a("s_waitcnt lgkmcnt(2)")
            for k in range(2): a(f"v_pk_add_f32 v[{24+2*k}:{25+2*k}], v[{24+2*k}:{25+2*k}], v[{28+2*k}:{29+2*k}]")
            a("s_waitcnt lgkmcnt(0)")
            for k in range(2): a(f"v_pk_add_f32 v[{32+2*k}:{33+2*k}], v[{32+2*k}:{33+2*k}], v[{36+2*k}:{37+2*k}]")
            for k in range(2): a(f"v_pk_add_f32 v[{24+2*k}:{25+2*k}], v[{24+2*k}:{25+2*k}], v[{32+2*k}:{33+2*k}]")
        a("v_cvt_pk_bf16_f32 v56, v128, v136")
        a("v_cvt_pk_bf16_f32 v57, v144, v152")
        a("buffer_store_dwordx2 v[56:57], v19, s[40:43], s55 offen sc1")
        self.stamp(4)
        a("s_barrier")
        def wo(n):
            L = self.lab("LWd")
            a("s_mov_b32 m0, s62")
            a(f"s_add_u32 s62, s62, {1024*n}" if n else "s_mov_b32 s62, s59")
            a.label(L)
            a(f"buffer_load_dwordx4 v2, s[48:51], s53 offen {wf} lds")
            a("s_add_u32 m0, m0, 1024")
            a("s_add_u32 s53, s53, 8192")
            a("s_cmp_lt_u32 m0, s62")
            a(f"s_cbranch_scc1 {L}")
        a("s_cmp_eq_u32 s61, 3")
        a("s_cbranch_scc1 LM")
        if not mre: self.mr_issue(17, 44)
        oe = self.o.get("oearly", 8)
        if oe: wo(oe)
        self.mr_compute(SCW, oe)
        a.label("LWm")
        wo(0)
        a("v_and_b32 v3, 15, v0")
        a("v_lshlrev_b32 v13, 7, v3")
        a("s_lshl_b32 s9, s4, 14")
        a(f"s_add_u32 s9, s9, {HC}")
        a("s_lshl_b32 s8, s4, 11")
        a(f"s_add_u32 s8, s8, {HL}")
        self.stamp(5)
        a("v_lshlrev_b32 v229, 4, v0")
        a("s_mul_i32 s13, s4, 240")
        a("s_sub_u32 s13, 2432, s13")
        a("v_mov_b32 v4, s13")
        a("v_cmp_gt_u32 vcc, 16, v0")
        a("v_cndmask_b32 v229, v4, v229, vcc")
        a("s_lshl_b32 s27, s4, 8")
        a(f"s_add_u32 s27, s27, {RDY}")
        self.rdy_load()
        a("s_lshl_b32 s15, s3, 8")
        a("s_add_u32 s9, s9, s15")
        a("s_lshl_b32 s15, s3, 2")
        a("s_add_u32 s8, s8, s15")
        a(f"s_add_u32 s15, s7, {WO}")
        self.traddr128(8, "s15", 3, 4)
        a("v_and_b32 v3, 15, v0")
        a("v_xor_b32 v12, v3, v1")
        a("v_lshlrev_b32 v12, 4, v12")
        a("v_lshl_add_u32 v4, v1, 10, v12")
        for i in range(1, 4):
            a(f"v_xor_b32 v{4+i}, {64*i}, v4")
            a(f"v_add_u32 v{4+i}, {3072*i}, v{4+i}")
        a("v_lshl_add_u32 v20, v3, 8, v12")
        a("v_add_u32 v20, s58, v20")
        for i in range(1, 4): a(f"v_xor_b32 v{20+i}, {64*i}, v20")
        a("v_lshlrev_b32 v14, 4, v1")
        a("v_lshrrev_b32 v12, 5, v0")
        a("v_lshlrev_b32 v15, 8, v12")
        a("v_and_b32 v12, 31, v0")
        a("v_lshl_add_u32 v15, v12, 2, v15")
        a("s_lshl_b32 s15, s3, 9")
        a(f"s_add_u32 s15, s15, {RED}")
        a("v_add_u32 v15, s15, v15")
        a("v_lshlrev_b32 v17, 4, v3")
        a("v_lshl_add_u32 v17, v1, 11, v17")
        a("s_lshl_b32 s55, s4, 12")
        a("s_lshr_b32 s15, s52, 1")
        a("s_add_u32 s55, s55, s15")
        a(f"s_add_u32 s55, s55, {HD}")
        a("s_mov_b32 m0, s58")
        a("v_mov_b32 v128, 0")
        a("s_waitcnt vmcnt(0)")
        self.stamp(6)
        self.rdy_check()
        def cissue():
            a("s_mov_b64 exec, 0xffff")
            a("buffer_load_dword v128, v13, s[40:43], s8 offen sc1")
            a("s_mov_b64 exec, -1")
            for i in range(4): a(f"buffer_load_dwordx4 v{4+i}, s[40:43], s9 offen offset:{1024*i} sc1 lds")
        def cmid():
            for ks in range(4):
                for t in range(4): self.tr(64 + 16 * ks + 4 * t, 8 + t, 4096 * ks, 2048)
            self.stamp(9)
        def cbody():
            a("s_waitcnt vmcnt(0)")
            for ks in range(4): a(f"ds_read_b128 v[{24+4*ks}:{27+4*ks}], v{20+ks}")
            a("s_waitcnt lgkmcnt(0)")
            a("v_max3_u32 v129, v24, v28, v128")
            a("v_max3_u32 v129, v129, v32, v36")
            a("v_cmp_eq_u32 s[10:11], -1, v129")
        self.spin(cbody, alt=([8, 9], LOC, self.o.get("every", 16)), issue=cissue, mid=cmid)
        self.stamp(7)
        D8 = ("quad_perm:[1,0,3,2]", "quad_perm:[2,3,0,1]", "row_half_mirror")
        def mf(ks):
            for t in range(4): self.mfma(40 + 4 * t, 24 + 4 * ks, 64 + 16 * ks + 4 * t, ks == 0)
        mf(0)
        a("v_mov_b32 v129, v128")
        for m in D8: a(f"v_max_f32_dpp v129, v129, v129 {m} row_mask:0xf bank_mask:0xf")
        a("v_sub_f32 v128, v128, v129")
        a("v_exp_f32 v128, v128")
        mf(1)
        a("v_mov_b32 v129, v128")
        for m in D8: a(f"v_add_f32_dpp v129, v129, v129 {m} row_mask:0xf bank_mask:0xf")
        a("v_rcp_f32 v129, v129")
        a("v_mul_f32 v128, v128, v129")
        for r in range(4): a(f"ds_bpermute_b32 v{130+r}, v14, v128 offset:{4*r}")
        mf(2)
        mf(3)
        a("s_waitcnt lgkmcnt(0)")
        for t in range(4): a(f"v_pk_mul_f32 v[{40+4*t}:{41+4*t}], v[{40+4*t}:{41+4*t}], v[130:131]")
        for t in range(4): a(f"v_pk_fma_f32 v[{40+4*t}:{41+4*t}], v[{42+4*t}:{43+4*t}], v[132:133], v[{40+4*t}:{41+4*t}]")
        for t in range(4): a(f"v_add_f32 v{40+4*t}, v{40+4*t}, v{41+4*t}")
        for k in range(2): a(f"v_permlane16_swap_b32 v{40+8*k}, v{44+8*k}")
        for k in range(2): a(f"v_add_f32 v{40+8*k}, v{40+8*k}, v{44+8*k}")
        for k in range(2): a(f"ds_write_b32 v15, v{40+8*k} offset:{128*k}")
        a("s_waitcnt lgkmcnt(0)")
        a("s_barrier")
        a("s_cmp_eq_u32 s3, 0")
        a("s_cbranch_scc0 LWe")
        a("s_mov_b32 exec_hi, 0")
        red4(512)
        a("buffer_store_dwordx4 v[24:27], v17, s[40:43], s55 offen sc1")
        self.stamp(8)
        a.label("LWe")
        self.end()

    def g_role(self):
        a, wf = self.a, self.wf
        ms = self.o.get("msplit", 4)
        a("s_lshr_b32 s63, s7, 1")
        a(f"s_add_u32 s63, s63, {MRG}")
        self.g_index()
        a("s_cbranch_scc1 LO3")
        if ms < 4:
            a(f"s_cmp_lt_u32 s3, {ms}")
            a("s_cbranch_scc1 LGn")
            self.mr_issue(2, 52)
            a.label("LGn")
        a(f"s_add_u32 s7, s7, {GU}")
        a("s_mov_b32 s53, s26")
        for i in range(4): a(f"v_mov_b32 v{32+i}, -1")
        a("v_lshrrev_b32 v3, 3, v0")
        a(f"v_mul_u32_u24 v3, {HFS}, v3")
        a("v_and_b32 v4, 7, v0")
        a("v_lshl_add_u32 v3, v4, 4, v3")
        a(f"s_mul_i32 s26, s3, {8*HFS}")
        a("s_lshl_b32 s15, s53, 7")
        a("s_add_u32 s26, s26, s15")
        a(f"s_add_u32 s26, s26, {HF}")
        a("buffer_store_dwordx4 v[32:35], v3, s[40:43], s26 offen sc1")
        a(f"s_and_b32 s52, s53, {self.o.get('rot', 0)}")
        a("s_cmp_eq_u32 s52, 0")
        a("s_cselect_b64 s[44:45], s[28:29], s[30:31]")
        a("s_cselect_b64 s[48:49], s[30:31], s[28:29]")
        a(f"s_mov_b32 s46, {512*3584}")
        a(f"s_mov_b32 s50, {512*3584}")
        a("s_lshl_b32 s52, s52, 13")
        a("v_lshrrev_b32 v1, 2, v0")
        a("v_bfe_u32 v2, v0, 4, 1")
        a("v_lshlrev_b32 v2, 1, v2")
        a("v_and_b32 v3, 3, v0")
        a("v_xor_b32 v2, v2, v3")
        a("v_mul_u32_u24 v4, 3584, v1")
        a("v_lshl_add_u32 v2, v2, 4, v4")
        a(f"s_mul_i32 s8, s3, {128*3584}")
        a("s_lshl_b32 s15, s53, 6")
        a("s_add_u32 s8, s8, s15")
        def mat(m, lo=0, hi=8):
            L = self.lab("LGx")
            if lo == 0:
                a("s_add_u32 s58, s7, s52")
                a("s_mov_b32 s59, s8")
            a("s_mov_b32 m0, s58")
            a(f"s_add_u32 s58, s58, {1024*(hi-lo)}")
            a.label(L)
            gf = ["nt", "", "sc1", "sc0"][self.o.get("gflag%d" % m, 0)]
            a(f"buffer_load_dwordx4 v2, s[{44+4*m}:{47+4*m}], s59 offen {gf} lds")
            a("s_add_u32 m0, m0, 1024")
            a(f"s_add_u32 s59, s59, {16*3584}")
            if self.o.get("gcap", 0) and (lo or m): a(f"s_waitcnt vmcnt({self.o['gcap']})")
            a("s_cmp_lt_u32 m0, s58")
            a(f"s_cbranch_scc1 {L}")
            if hi == 8: a("s_xor_b32 s52, s52, 8192")
        pw = self.o.get("pwait", 1)
        if not pw:
            self.stamp(5)
            mat(0)
        a(f"s_waitcnt vmcnt({0 if pw else 8})")
        a("s_barrier")
        if ms < 4:
            a(f"s_cmp_lt_u32 s3, {ms}")
            a("s_cbranch_scc1 LGo")
            self.mr_compute(SC, 0 if pw else 8)
            a.label("LGo")
        a("s_cmp_eq_u32 s3, 0")
        a("s_cbranch_scc0 LGr")
        self.rdy_publish(8, "s2")
        if self.o.get("rwait", 1): a("s_waitcnt vmcnt(0)")
        a.label("LGr")
        if self.o.get("rwait", 1): a("s_barrier")
        if pw:
            self.delay("fdel")
            self.stamp(5)
            mat(0)
        mat(1)
        a("s_mov_b64 s[48:49], s[16:17]")
        a("s_mov_b32 s50, 2048")
        a("v_lshrrev_b32 v4, 5, v0")
        a("v_and_b32 v5, 31, v0")
        a("v_lshlrev_b32 v19, 3, v5")
        a("v_lshl_add_u32 v19, v4, 10, v19")
        a("s_lshl_b32 s15, s3, 8")
        a("buffer_load_dwordx2 v[24:25], v19, s[48:51], s15 offen")
        a("s_lshl_b32 s9, s53, 15")
        a("s_add_u32 s9, s9, s15")
        a("v_lshlrev_b32 v229, 4, v0")
        a(f"s_mov_b32 s27, {RDY+2048}")
        self.rdy_load()
        a("v_lshlrev_b32 v18, 1, v19")
        a("s_lshl_b32 s15, s3, 9")
        for k in range(3): a(f"s_add_u32 s{28+k}, s15, {HM+4096*k}")
        mloads = [f"buffer_load_dwordx4 v[{208+4*k}:{211+4*k}], v18, s[40:43], s{28+k} offen sc1" for k in range(3)]
        for l in mloads: a(l)
        for k in range(8): a(f"s_add_u32 s{16+k}, s15, {HD+4096*k}")
        self.voff256(6, 10, 8, 9)
        a("s_mov_b64 s[44:45], s[32:33]")
        a(f"s_mov_b32 s46, {1792*1024}")
        a("s_lshl_b32 s6, s3, 13")
        a(f"s_add_u32 s6, s6, {DWN}")
        a("s_mov_b32 m0, s6")
        a("s_add_u32 s13, s6, 8192")
        a.label("LGd2")
        for i in range(2):
            a(f"buffer_load_dwordx4 v{6+i}, s[44:47], s9 offen {wf} lds")
            a("s_add_u32 m0, m0, 1024")
            a("s_add_u32 s9, s9, 4096")
        a("s_cmp_lt_u32 m0, s13")
        a("s_cbranch_scc1 LGd2")
        a("v_bfe_u32 v8, v0, 4, 1")
        a("v_lshlrev_b32 v8, 5, v8")
        a("v_lshl_add_u32 v8, v1, 6, v8")
        a("v_lshl_add_u32 v8, v3, 3, v8")
        a("v_add_u32 v8, s7, v8")
        a("v_xor_b32 v9, 32, v8")
        self.traddr256(10, 8, "s6", 6, 7)
        a("v_mul_u32_u24 v20, 816, v4")
        a("v_lshrrev_b32 v6, 3, v5")
        a("v_lshl_add_u32 v20, v6, 6, v20")
        a("v_lshl_add_u32 v20, v3, 4, v20")
        a("v_bfe_u32 v6, v0, 2, 1")
        a("v_lshl_add_u32 v20, v6, 3, v20")
        a(f"s_add_u32 s15, s7, {AROW_O}")
        a("v_add_u32 v20, s15, v20")
        a("v_mul_u32_u24 v22, 816, v6")
        a("v_and_b32 v7, 48, v0")
        a("v_add3_u32 v22, v22, v7, s15")
        a("v_min_u32 v21, 2, v3")
        a("v_mul_u32_u24 v21, 272, v21")
        a("v_add_u32 v22, v22, v21")
        a("v_lshl_add_u32 v227, v6, 6, v7")
        a(f"v_mul_u32_u24 v228, {HFS}, v4")
        a("v_lshl_add_u32 v228, v5, 2, v228")
        a("v_lshlrev_b32 v2, 4, v0")
        a("s_lshl_b32 s15, s3, 10")
        a("v_add_u32 v23, s15, v2")
        a("s_lshl_b32 s15, s3, 2")
        a("v_add_u32 v226, s15, v7")
        a("v_and_b32 v231, 16, v0")
        a("v_lshlrev_b32 v231, 1, v231")
        a(f"v_mov_b32 v232, {f32(1e-5)}")
        self.guard(2100, fill=self.small_helpers)
        a("s_waitcnt vmcnt(8)")
        self.stamp(6)
        for m in range(2):
            for ks in range(4):
                for t in range(2): self.tr(64 + 32 * m + 8 * ks + 4 * t, 8 + t, 8192 * m + 2048 * ks, 1024)
        self.unpack(24, 28, 2)
        self.rdy_check()
        for k in range(3): a(f"v_xor_b32 v{211+4*k}, s14, v{210+4*k}")
        a("v_or3_b32 v211, v211, v215, v219")
        a("v_cmp_ne_u32 vcc, 0, v211")
        a("s_cbranch_vccz LGmo")
        self.poll(mloads, [(*self.TAGBAD, 210 + 4 * k) for k in range(3)], sleep=1)
        a.label("LGmo")
        self.stamp(4)
        def prepass():
            a("s_waitcnt lgkmcnt(0)")
            a("ds_write_b64 v20, v[212:213] offset:544")
            self.unpack(216, 196, 2)
            for i in range(4): a(f"v_add_f32 v{196+i}, 1.0, v{196+i}")
            a("v_cvt_pk_bf16_f32 v36, v196, v197")
            a("v_cvt_pk_bf16_f32 v37, v198, v199")
            a("ds_write_b64 v20, v[36:37] offset:272")
            self.unpack(208, 192, 2)
            self.unpack(36, 196, 2)
            for i in range(4): a(f"v_mul_f32 v{200+i}, v{28+i}, v{196+i}")
            for i in range(4): a(f"v_mul_f32 v{196+i}, v{192+i}, v{196+i}")
            a("s_waitcnt vmcnt(8)")
            for dt in range(8): self.tr(128 + 4 * dt, 10 + dt, 0, 4096)
            self.stamp(10)
        self.sum_poll([f"buffer_load_dwordx4 v[{160+4*k}:{163+4*k}], v18, s[40:43], s{16+k} offen sc1" for k in range(8)], 160, 56, mid=prepass)
        self.stamp(7)
        for k in range(2): a(f"v_pk_fma_f32 v[{200+2*k}:{201+2*k}], v[{56+2*k}:{57+2*k}], v[{196+2*k}:{197+2*k}], v[{200+2*k}:{201+2*k}]")
        a("v_cvt_pk_bf16_f32 v32, v200, v201")
        a("v_cvt_pk_bf16_f32 v33, v202, v203")
        a("ds_write_b64 v20, v[32:33]")
        for ks in range(4): a(f"ds_read_b128 v[{172+4*ks}:{175+4*ks}], v22 offset:{64*ks}")
        for k in range(2): a(f"v_pk_fma_f32 v[{28+2*k}:{29+2*k}], v[{56+2*k}:{57+2*k}], v[{192+2*k}:{193+2*k}], v[{28+2*k}:{29+2*k}]")
        a("v_pk_add_f32 v[190:191], v[28:29], v[30:31]")
        a("v_pk_mul_f32 v[28:29], v[28:29], v[28:29]")
        a("v_pk_fma_f32 v[28:29], v[30:31], v[30:31], v[28:29]")
        a("v_add_f32 v190, v190, v191")
        a("v_add_f32 v191, v28, v29")
        a("v_permlane16_swap_b32 v190, v191")
        def mg(m, ks):
            for t in range(2): self.mfma(40 + 8 * m + 4 * t, 172 + 4 * ks, 64 + 32 * m + 8 * ks + 4 * t, ks == 0)
        for ks in range(4):
            a(f"s_waitcnt lgkmcnt({3-ks})")
            mg(0, ks)
            if ks == 0: a("v_add_f32 v190, v190, v191")
        mg(1, 0)
        self.row_sum(190)
        mg(1, 1)
        a(f"ds_write_b32 v226, v190 offset:{STAT}")
        mg(1, 2)
        for r in range(3): a(f"v_permlane32_swap_b32 v{40+r}, v{44+r}")
        mg(1, 3)
        a(f"ds_write_b128 v23, v[40:43] offset:{REC}")
        for r in range(3): a(f"v_permlane32_swap_b32 v{48+r}, v{52+r}")
        a(f"ds_write_b128 v23, v[48:51] offset:{CSR}")
        a("s_waitcnt lgkmcnt(0)")
        a("s_barrier")
        self.stamp(8)
        a(f"ds_read_b128 v[24:27], v231 offset:{STAT}")
        a(f"ds_read_b128 v[28:31], v231 offset:{STAT+16}")
        for w in range(4): a(f"ds_read_b128 v[{64+4*w}:{67+4*w}], v2 offset:{REC+1024*w}")
        for w in range(4): a(f"ds_read_b128 v[{80+4*w}:{83+4*w}], v2 offset:{CSR+1024*w}")
        a("s_waitcnt lgkmcnt(8)")
        a("v_pk_add_f32 v[24:25], v[24:25], v[26:27]")
        a("v_pk_add_f32 v[28:29], v[28:29], v[30:31]")
        a("v_add_f32 v24, v24, v25")
        a("v_add_f32 v28, v28, v29")
        a(f"v_mul_f32 v24, {f32(1/512)}, v24")
        a(f"v_fmamk_f32 v28, v28, {f32(1/512)}, v232")
        a("v_fma_f32 v28, -v24, v24, v28")
        a("v_max_f32 v28, v28, v232")
        a("v_rsq_f32 v28, v28")
        for m in range(2):
            r = 64 + 16 * m
            a(f"s_waitcnt lgkmcnt({4-4*m})")
            a(f"v_pk_add_f32 v[{r}:{r+1}], v[{r}:{r+1}], v[{r+4}:{r+5}]")
            a(f"v_pk_add_f32 v[{r+8}:{r+9}], v[{r+8}:{r+9}], v[{r+12}:{r+13}]")
            a(f"v_add_f32 v{r+2}, v{r+2}, v{r+6}")
            a(f"v_add_f32 v{r+10}, v{r+10}, v{r+14}")
            a(f"v_pk_add_f32 v[{r}:{r+1}], v[{r}:{r+1}], v[{r+8}:{r+9}]")
            a(f"v_add_f32 v{r+2}, v{r+2}, v{r+10}")
            a(f"v_fma_f32 v{r}, -v24, v{r+1}, v{r}")
            a(f"v_fma_f32 v{r}, v{r}, v28, v{r+2}")
        a("v_max_f32 v64, 0, v64")
        a("v_mul_f32 v64, v64, v80")
        a("v_mov_b32_dpp v65, v64 quad_perm:[1,0,3,2] row_mask:0xf bank_mask:0xf")
        a("v_cvt_pk_bf16_f32 v64, v64, v65")
        for i, off in enumerate((0, 8, 128, 136)): a(f"ds_bpermute_b32 v{24+i}, v227, v64 offset:{off}")
        a("s_waitcnt lgkmcnt(0)")
        for dt in range(8): self.mfma(160 + 4 * dt, 24, 128 + 4 * dt, True)
        for k in range(4):
            a(f"v_permlane32_swap_b32 v{160+8*k}, v{164+8*k}")
            a(f"buffer_store_dword v{160+8*k}, v228, s[40:43], s26 offen sc1")
            if k < 3: a(f"s_add_u32 s26, s26, {2*HFS}")
        self.stamp(9)
        self.end()

    def small_helpers(self):
        a = self.a
        a.label("LO3")
        if self.o.get('msplit', 4) < 4:
            a(f"s_cmp_lt_u32 s3, {self.o.get('msplit', 4)}")
            a("s_cbranch_scc1 LO4")
            self.mr_issue(2, 52)
            self.mr_compute(SC, 0)
            a.label("LO4")
            a("s_barrier")
        a("s_movk_i32 s52, 1536")
        a("s_lshr_b32 s58, s7, 2")
        a(f"s_add_u32 s58, s58, {GA}")
        a("v_lshrrev_b32 v1, 4, v0")
        a("v_lshlrev_b32 v18, 4, v0")
        a(f"v_add_u32 v18, {RED}, v18")
        self.wo_setup()
        a("s_branch LWm")
        a.label("LGH2")
        a("s_setprio 3")
        self.tag()
        self.g_index()
        a("s_cbranch_scc1 LGH3")
        a("s_endpgm")
        a.label("LGH3")
        self.rdy_publish(8, "s2")
        a("s_endpgm")
        a.label("LWH2")
        a("s_setprio 3")
        for i in range(4): a(f"v_mov_b32 v{32+i}, -1")
        a("v_bfe_u32 v3, v0, 4, 1")
        a("v_lshlrev_b32 v3, 11, v3")
        a("v_and_b32 v4, 15, v0")
        a("v_lshl_add_u32 v3, v4, 4, v3")
        a("s_lshl_b32 s15, s4, 12")
        a("s_and_b32 s6, s5, 7")
        a("s_lshl_b32 s6, s6, 8")
        a("s_add_u32 s15, s15, s6")
        a(f"s_add_u32 s15, s15, {HD}")
        a("v_lshrrev_b32 v6, 4, v0")
        a("v_lshlrev_b32 v6, 11, v6")
        a("v_lshl_add_u32 v6, v4, 4, v6")
        a("s_lshl_b32 s8, s6, 6")
        a("s_lshl_b32 s9, s4, 8")
        a("s_add_u32 s8, s8, s9")
        a(f"s_add_u32 s8, s8, {HB}")
        a("s_add_u32 s9, s8, 8192")
        self.c_voff(4)
        a("s_lshr_b32 s6, s6, 1")
        a("s_mov_b32 s50, 2048")
        a("s_waitcnt lgkmcnt(0)")
        a("s_load_dword s14, s[40:41], 0")
        a("s_mov_b64 s[48:49], s[34:35]")
        a("buffer_load_dwordx2 v[28:29], v4, s[48:51], s6 offen")
        a("buffer_store_dwordx4 v[32:35], v6, s[40:43], s8 offen sc1")
        a("buffer_store_dwordx4 v[32:35], v6, s[40:43], s9 offen sc1")
        a("s_mov_b32 exec_hi, 0")
        a("buffer_store_dwordx4 v[32:35], v3, s[40:43], s15 offen sc1")
        a("s_mov_b64 exec, -1")
        self.silu_frag(SCW)
        a("s_waitcnt vmcnt(0) lgkmcnt(0)")
        self.tag()
        self.rdy_publish(8, "s2")
        a("v_lshlrev_b32 v2, 4, v0")
        a("s_lshl_b32 s8, s4, 12")
        a(f"s_add_u32 s8, s8, {HA}")
        a("v_and_b32 v3, 1, v0")
        a("v_mul_u32_u24 v3, 144, v3")
        a("v_bfe_u32 v4, v0, 1, 2")
        a("v_lshl_add_u32 v3, v4, 4, v3")
        a("v_lshrrev_b32 v4, 5, v0")
        a("v_lshl_add_u32 v3, v4, 6, v3")
        a("v_bfe_u32 v4, v0, 4, 1")
        a("v_lshl_add_u32 v3, v4, 3, v3")
        a(f"v_add_u32 v3, {HW}, v3")
        def aissue():
            for t in range(4): a(f"buffer_load_dwordx4 v[{40+4*t}:{43+4*t}], v2, s[40:43], s8 offen offset:{1024*t} sc1")
        def abody():
            for t in range(4):
                a(f"s_waitcnt vmcnt({3-t})")
                a(f"v_xor_b32 v{43+4*t}, s14, v{42+4*t}")
                self.unpack(40 + 4 * t, 64 + 4 * t, 2)
            a("v_or3_b32 v43, v43, v47, v51")
            a("v_or_b32 v43, v43, v55")
            a("v_cmp_ne_u32 s[10:11], 0, v43")
        self.spin(abody, alt=([8], ALOC, 8), issue=aissue, mid=self.silu_run)
        self.fold8()
        a("ds_write_b64 v3, v[40:41]")
        a("s_waitcnt lgkmcnt(0)")
        a("s_barrier")
        a("s_endpgm")
        a.label("LTH")
        a("s_setprio 3")
        for i in range(4): a(f"v_mov_b32 v{40+i}, -1")
        a("v_lshlrev_b32 v2, 4, v0")
        a("s_lshl_b32 s6, s4, 4")
        a("s_add_u32 s6, s6, s5")
        a("s_lshl_b32 s54, s6, 10")
        a(f"s_add_u32 s54, s54, {HC}")
        a("s_lshl_b32 s55, s6, 7")
        a(f"s_add_u32 s55, s55, {HL}")
        a("s_waitcnt lgkmcnt(0)")
        a("s_load_dword s14, s[40:41], 0")
        a("buffer_store_dwordx4 v[40:43], v2, s[40:43], s54 offen sc1")
        a(f"s_add_u32 s54, s54, {LOC}")
        a("buffer_store_dwordx4 v[40:43], v2, s[40:43], s54 offen sc1")
        a("s_mov_b64 exec, 0xff")
        a("buffer_store_dwordx4 v[40:43], v2, s[40:43], s55 offen sc1")
        a(f"s_add_u32 s55, s55, {LOC}")
        a("buffer_store_dwordx4 v[40:43], v2, s[40:43], s55 offen sc1")
        a("s_mov_b64 exec, -1")
        a("s_waitcnt vmcnt(0) lgkmcnt(0)")
        self.tag()
        self.rdy_publish(44, "s6")
        a("buffer_load_dwordx4 v[232:235], v2, s[40:43], s54 offen sc1")
        a("s_mov_b64 exec, 1")
        a("buffer_load_dword v236, v2, s[40:43], s55 offen sc1")
        a("s_endpgm")

    def m_role(self):
        a = self.a
        a.label("LM")
        if self.o.get("nom"): self.end()
        if not self.o.get("mre", 0): self.mr_issue(17, 44)
        self.mr_compute(SCW, 0)
        a("s_lshl_b32 s6, s4, 2")
        a("s_add_u32 s6, s6, s3")
        a("s_lshl_b32 s8, s6, 12")
        a(f"s_add_u32 s8, s8, {HP}")
        a("s_lshr_b32 s9, s6, 3")
        a("s_lshl_b32 s9, s9, 12")
        a("s_and_b32 s6, s6, 7")
        a("s_lshl_b32 s6, s6, 8")
        a("s_add_u32 s9, s9, s6")
        a(f"s_add_u32 s9, s9, {HM}")
        a("v_lshlrev_b32 v2, 4, v0")
        a("v_and_b32 v3, 1, v0")
        a("v_lshlrev_b32 v3, 11, v3")
        a("v_bfe_u32 v4, v0, 1, 2")
        a("v_lshl_add_u32 v3, v4, 4, v3")
        a("v_and_b32 v4, 48, v0")
        a("v_lshl_add_u32 v3, v4, 2, v3")
        self.poll([f"buffer_load_dwordx4 v[{40+4*t}:{43+4*t}], v2, s[40:43], s8 offen offset:{1024*t} sc1" for t in range(4)],
                  [(*self.TAGBAD, 42 + 4 * t) for t in range(4)], sleep=1,
                  after=lambda t: self.unpack(40 + 4 * t, 64 + 4 * t, 2))
        self.stamp(6)
        self.fold8()
        self.exec16(0xff)
        a("buffer_store_dwordx4 v[40:43], v3, s[40:43], s9 offen sc1")
        self.stamp(7)
        self.end()

    def fold8(self):
        a = self.a
        for i in range(8): a(f"v_permlane32_swap_b32 v{64+i}, v{72+i}")
        for k in range(4): a(f"v_pk_add_f32 v[{64+2*k}:{65+2*k}], v[{64+2*k}:{65+2*k}], v[{72+2*k}:{73+2*k}]")
        for i in range(4): a(f"v_permlane16_swap_b32 v{64+i}, v{68+i}")
        for k in range(2): a(f"v_pk_add_f32 v[{64+2*k}:{65+2*k}], v[{64+2*k}:{65+2*k}], v[{68+2*k}:{69+2*k}]")
        for i in range(4): a(f"v_add_f32_dpp v{64+i}, v{64+i}, v{64+i} row_ror:8 row_mask:0xf bank_mask:0xf")
        a("v_cvt_pk_bf16_f32 v40, v64, v65")
        a("v_cvt_pk_bf16_f32 v41, v66, v67")

    def red8(self, r):
        a = self.a
        for i in range(4): a(f"v_add_f32_dpp v{r+i}, v{r+i}, v{r+i} row_ror:8 row_mask:0xf bank_mask:0xf")
        for sw in ("16", "32"):
            for i in range(4): a(f"v_mov_b32 v{60+i}, v{r+i}")
            for i in range(4): a(f"v_permlane{sw}_swap_b32 v{r+i}, v{60+i}")
            for i in range(4): a(f"v_add_f32 v{r+i}, v{r+i}, v{60+i}")

    def build(self):
        self.prologue()
        self.ww_early()
        if self.o.get("tnear"): self.tw_early()
        self.g_early()
        self.g_role()
        self.m_role()
        self.guard(3300, fall=False)
        self.ww_main()
        self.guard(3300, fall=False)
        if not self.o.get("tnear"): self.tw_early()
        self.tw_issue()
        self.tw_main()
        if self.diag:
            self.a.label("Ldump")
            self.dump_stamps()
        self.a.label("Lexit")
        self.a("s_endpgm")
        self.a.label("Lcode_end")
        body = self.a.finish()
        head = open("cdna_kernels/" + NAME + ".s.ref").read().split("; Override launch geometry")[0]
        return head + f"""; Generated by gen/gen_kernel.py (hand-written generator): one persistent launch, 256 workgroups x 5 waves.
; @launch grid=(256,1,1) block=(320,1,1) lds={LDS_BYTES}
.amdgcn_target "amdgcn-amd-amdhsa--gfx950"
.text
.globl {KNAME}
.p2align 12
.type {KNAME},@function
{KNAME}:
{body}
.section .rodata,"a"
.p2align 6
.amdhsa_kernel {KNAME}
  .amdhsa_next_free_vgpr 240
  .amdhsa_next_free_sgpr 102
  .amdhsa_accum_offset 240
  .amdhsa_group_segment_fixed_size 0
  .amdhsa_kernarg_size 112
  .amdhsa_user_sgpr_count 2
  .amdhsa_user_sgpr_kernarg_segment_ptr 1
  .amdhsa_system_sgpr_workgroup_id_x 1
.end_amdhsa_kernel
"""

if __name__ == "__main__":
    import argparse
    ap = argparse.ArgumentParser()
    ap.add_argument("-o", default="cdna_kernels/" + NAME + ".s")
    ap.add_argument("--diag", action="store_true")
    ap.add_argument("--wflag", default="nt")
    ap.add_argument("--opt", action="append", default=[])
    args = ap.parse_args()
    opts = {}
    for o in args.opt:
        k, _, v = o.partition("=")
        opts[k] = int(v) if v else 1
    open(args.o, "w").write(Gen(args.diag, args.wflag, opts).build())
    print("wrote", args.o)
```

```python
import sys, struct
from asmlib import Asm

NAME = "adaLN_cond__sliding_block_cached__glu_gated_reglu__decode"
KNAME = NAME + "_kernel"

def f32(x): return "0x%08x" % struct.unpack("<I", struct.pack("<f", x))[0]

EPOCH = 0x0
RDY = 0x1000
HM = 0x4000
HA = 0x8000
ALOC = 0x8000
HB = 0x140000
HD = 0x20000
HL = HD + 0x8000
HC = HL + 0x4000
LOC = 0x24000
HF = HC + 0x20000 + LOC
HFS = 7168
HP = 0xD0000
STAMP = 0x100000
WS_SIZE = 0x200000
LDS_BYTES = 151552
KB, VB, PB, MX, LS, QB = 0, 65536, 131072, 133120, 133248, 133632
WQ, WO, GA, RED, SCW, HW = 0, 65536, 131072, 147456, 149504, 150016
W1, GU, DWN, MRG, SC, LNS = 0, 16384, 81920, 114688, 147456, 148480
REC, CSR, STAT = W1, W1 + 4096, W1 + 8192
AROW_O = 4096

LOG2E = 1.4426950408889634
CSC = (128 ** -0.5) * LOG2E
SPIN = 20000
import os
if os.environ.get('SPIN'): SPIN = int(os.environ['SPIN'])
MFMA = "v_mfma_f32_16x16x32_bf16"

class Gen:
    POISON = ("v_cmp_eq_u32", "-1")
    TAGBAD = ("v_cmp_ne_u32", "s14")

    def __init__(self, diag=False, wflag="nt", opts=None):
        self.a = Asm()
        self.diag = diag
        self.wf = wflag
        self.o = opts or {}
        self.nlab = 0
    def lab(self, p="L"):
        self.nlab += 1
        return f"{p}{self.nlab}"
    def stamp(self, k):
        if self.diag or self.o.get("amp") == k: self.a(f"s_memrealtime s[{64+2*k}:{65+2*k}]")
    def dump_max(self):
        a = self.a
        a("s_load_dwordx2 s[44:45], s[0:1], 96")
        a("s_mov_b32 s46, 256")
        a("s_mov_b32 s47, 0x20000")
        a("s_mov_b64 exec, 1")
        a("v_mov_b32 v1, 0")
        a("s_waitcnt lgkmcnt(0)")
        def put(slot, reg):
            a(f"v_mov_b32 v4, {reg}")
            a(f"buffer_atomic_umax v4, v1, s[44:47], 0 offen offset:{4*slot} sc1")
        a("s_not_b32 s60, s64")
        put(0, "s60"); put(1, "s64")
        a("s_lshr_b32 s5, s2, 3")
        a("s_cmp_ge_u32 s5, 24")
        a("s_cbranch_scc1 LdG")
        a("s_cmp_ge_u32 s5, 16")
        a("s_cbranch_scc1 LdW")
        for slot, k in ((6, 3), (7, 9), (8, 5), (15, 8)): put(slot, f"s{64+2*k}")
        a("s_endpgm")
        a.label("LdW")
        for slot, k in ((3, 2), (4, 3), (5, 4), (9, 6), (10, 7), (11, 8)): put(slot, f"s{64+2*k}")
        a("s_endpgm")
        a.label("LdG")
        for slot, k in ((2, 3), (12, 6), (13, 7), (14, 9)): put(slot, f"s{64+2*k}")
    def dump_gamp(self):
        a = self.a
        k, lo, hi = self.o["gamp"] // 10000, self.o["gamp"] // 100 % 100, self.o["gamp"] % 100
        a("s_waitcnt lgkmcnt(0)")
        a("s_lshr_b32 s5, s2, 3")
        a(f"s_sub_u32 s60, s5, {lo}")
        a(f"s_cmp_lt_u32 s60, {hi-lo}")
        a(f"s_cselect_b32 s61, s{64+2*k}, 0")
        a("s_cmp_eq_u32 s61, 0")
        a("s_cselect_b32 s61, s64, s61")
        a("s_lshl_b32 s60, s2, 2")
        a("s_add_u32 s60, s60, s3")
        a("s_lshl_b32 s60, s60, 2")
        a(f"s_add_u32 s60, s60, {STAMP}")
        a("s_mov_b64 exec, 1")
        a("v_mov_b32 v1, 0")
        a("v_mov_b32 v4, s64")
        a("v_mov_b32 v5, s61")
        a("buffer_store_dword v4, v1, s[40:43], s60 offen sc1")
        a("s_add_u32 s60, s60, 4096")
        a("buffer_store_dword v5, v1, s[40:43], s60 offen sc1")
        a("s_mov_b64 exec, -1")
        a("s_cmp_eq_u32 s2, 0")
        a("s_cbranch_scc0 Lexit")
        a("s_cmp_eq_u32 s3, 1")
        a("s_cbranch_scc0 Lexit")
        def until(reg):
            L = self.lab("Lu")
            a.label(L)
            a("s_memrealtime s[98:99]")
            a("s_waitcnt lgkmcnt(0)")
            a("s_sub_u32 s98, s98, s64")
            a(f"s_cmp_lt_u32 s98, {reg}")
            a(f"s_cbranch_scc1 {L}")
        until(3000)
        a("v_lshlrev_b32 v2, 4, v0")
        a(f"s_mov_b32 s60, {STAMP}")
        a(f"s_mov_b32 s61, {STAMP+4096}")
        for i in range(4):
            a(f"buffer_load_dwordx4 v[{8+4*i}:{11+4*i}], v2, s[40:43], s60 offen offset:{1024*i} sc1")
            a(f"buffer_load_dwordx4 v[{24+4*i}:{27+4*i}], v2, s[40:43], s61 offen offset:{1024*i} sc1")
        a("s_waitcnt vmcnt(0)")
        for i in range(32): a(f"v_subrev_u32 v{8+i}, s64, v{8+i}")
        for i in range(1, 16):
            a(f"v_min_i32 v8, v8, v{8+i}")
            a(f"v_max_i32 v24, v24, v{24+i}")
        a("s_mov_b32 s60, 0")
        a("s_mov_b32 s61, 0")
        for l in range(64):
            a(f"v_readlane_b32 s62, v8, {l}")
            a(f"v_readlane_b32 s63, v24, {l}")
            a("s_min_i32 s60, s60, s62")
            a("s_max_i32 s61, s61, s63")
        a("s_sub_u32 s61, s61, s60")
        a("s_mul_i32 s61, s61, 40")
        a("s_add_u32 s100, s61, 4000")
        until("s100")
    def dump_stamps(self):
        if not self.diag: return
        if self.o.get("gamp") is not None: return self.dump_gamp()
        if self.o.get("dmax"): return self.dump_max()
        a = self.a
        a("s_waitcnt lgkmcnt(0)")
        a("s_mov_b64 exec, 1")
        a("s_mul_i32 s60, s2, 5")
        a("s_add_u32 s60, s60, s3")
        a("s_lshl_b32 s60, s60, 6")
        a(f"s_add_u32 s60, s60, {STAMP}")
        a("v_mov_b32 v1, 0")
        for q in range(3):
            for i in range(4):
                a(f"v_mov_b32 v{4+i}, s{64+2*(4*q+i)}")
            a(f"buffer_store_dwordx4 v[4:7], v1, s[40:43], s60 offen offset:{16*q}")
            a("s_nop 1")
    def end(self, helper=False):
        self.a("s_branch Ldump" if self.diag and (not helper or self.o.get("hdump")) else "s_endpgm")
    def delay(self, key):
        n = self.o.get(key, 0)
        if not n: return
        a = self.a
        L = self.lab("Ld")
        a.label(L)
        a("s_memrealtime s[98:99]")
        a("s_waitcnt lgkmcnt(0)")
        a("s_sub_u32 s98, s98, s64")
        a(f"s_cmp_lt_u32 s98, {n}")
        a(f"s_cbranch_scc1 {L}")
    def guard(self, n, fall=True, fill=None):
        L = self.lab("Lg")
        if fall: self.a(f"s_branch {L}")
        if fill: fill()
        self.a(f".p2align 12, , {n}")
        self.a.label(L)
    def srd(self, d, p, size):
        a = self.a
        a(f"s_mov_b64 s[{d}:{d+1}], s[{p}:{p+1}]")
        a(f"s_mov_b32 s{d+2}, {size}")
        a(f"s_mov_b32 s{d+3}, 0x20000")
    def tag(self):
        self.a("s_mul_i32 s14, s14, 0x9E3779B1")
        self.a("s_add_u32 s14, s14, 0x7F4A7C15")
    def exec16(self, m):
        self.a(f"s_mov_b32 exec_lo, {(m << 16 | m):#x}")
        self.a(f"s_mov_b32 exec_hi, {(m << 16 | m):#x}")
    def poll(self, loads, checks, sleep=0, after=None):
        a = self.a
        L = self.lab("Lp"); D = self.lab("Lpd")
        n = len(loads)
        a(f"s_mov_b32 s12, {SPIN}")
        a.label(L)
        for l in loads: a(l)
        for i, (op, opd, r) in enumerate(checks):
            a(f"s_waitcnt vmcnt({n-1-i})")
            if i == 0:
                a(f"{op} s[10:11], {opd}, v{r}")
            else:
                a(f"{op} vcc, {opd}, v{r}")
                a("s_or_b64 s[10:11], s[10:11], vcc")
            if after: after(i)
        a("s_cmp_eq_u64 s[10:11], 0")
        a(f"s_cbranch_scc1 {D}")
        if sleep: a(f"s_sleep {sleep}")
        a("s_sub_u32 s12, s12, 1")
        a(f"s_cbranch_scc0 {L}")
        a.label(D)
    def spin(self, body, sleep=0, alt=None, issue=None, mid=None):
        a = self.a
        L = self.lab("Lp"); D = self.lab("Lpd")
        n = SPIN
        if alt:
            sregs, delta, every = alt
            for i, r in enumerate(sregs):
                a(f"s_mov_b32 s{96+2*i}, s{r}")
                a(f"s_add_u32 s{97+2*i}, s{r}, {delta}")
                a(f"s_mov_b32 s{r}, s{97+2*i}")
            n = SPIN * 4 | (every - 1)
        a(f"s_mov_b32 s12, {n}")
        if issue:
            E = self.lab("Lpe")
            issue(); mid()
            a(f"s_branch {E}")
        a.label(L)
        if issue:
            issue()
            a.label(E)
        body()
        a("s_cmp_eq_u64 s[10:11], 0")
        a(f"s_cbranch_scc1 {D}")
        if sleep: a(f"s_sleep {sleep}")
        if alt:
            a(f"s_and_b32 s13, s12, {every-1}")
            for i, r in enumerate(sregs): a(f"s_cselect_b32 s{r}, s{97+2*i}, s{96+2*i}")
        a("s_sub_u32 s12, s12, 1")
        a(f"s_cbranch_scc0 {L}")
        a.label(D)
    def ssent(self, soff, offs, cnt=13):
        a = self.a
        L = self.lab("Ls"); D = self.lab("Lsd")
        a(f"s_mov_b32 s{cnt}, {SPIN}")
        a.label(L)
        for k, o in enumerate(offs): a(f"s_load_dword s{88+k}, s[40:41], s{soff} offset:{o} glc")
        a("s_waitcnt lgkmcnt(0)")
        for k in range(len(offs)): a(f"s_xor_b32 s{88+k}, s{88+k}, s14")
        for k in range(1, len(offs)): a(f"s_or_b32 s88, s88, s{88+k}")
        a(f"s_cbranch_scc0 {D}")
        a(f"s_sub_u32 s{cnt}, s{cnt}, 1")
        a(f"s_cbranch_scc0 {L}")
        a.label(D)
    def sum_poll(self, loads, base, acc, mid=None):
        a = self.a
        n = len(loads)
        def issue():
            for l in loads: a(l)
        def body():
            if not mid: issue()
            for i in range(1, n):
                a(f"s_waitcnt vmcnt({n-1-i})")
                src = base if i == 1 else acc
                for k in range(2): a(f"v_pk_add_f32 v[{acc+2*k}:{acc+1+2*k}], v[{src+2*k}:{src+1+2*k}], v[{base+4*i+2*k}:{base+1+4*i+2*k}]")
            a(f"v_cmp_u_f32 s[10:11], v{acc}, v{acc+1}")
            a(f"v_cmp_u_f32 vcc, v{acc+2}, v{acc+3}")
            a("s_or_b64 s[10:11], s[10:11], vcc")
        self.spin(body, issue=issue if mid else None, mid=mid)
    def silu(self, regs, tmp):
        a = self.a
        for i, r in enumerate(regs): a(f"v_mul_f32 v{tmp+i}, {f32(-LOG2E)}, v{r}")
        for i, r in enumerate(regs): a(f"v_exp_f32 v{tmp+i}, v{tmp+i}")
        for i, r in enumerate(regs): a(f"v_add_f32 v{tmp+i}, 1.0, v{tmp+i}")
        for i, r in enumerate(regs): a(f"v_rcp_f32 v{tmp+i}, v{tmp+i}")
        for i, r in enumerate(regs): a(f"v_mul_f32 v{r}, v{r}, v{tmp+i}")
    def unpack(self, src, dst, n):
        for i in range(n):
            self.a(f"v_lshlrev_b32 v{dst+2*i}, 16, v{src+i}")
            self.a(f"v_and_b32 v{dst+2*i+1}, 0xffff0000, v{src+i}")
    def row_sum(self, r):
        for m in ("quad_perm:[1,0,3,2]", "quad_perm:[2,3,0,1]", "row_half_mirror", "row_mirror"):
            self.a(f"v_add_f32_dpp v{r}, v{r}, v{r} {m} row_mask:0xf bank_mask:0xf")
    def silu_frag(self, base):
        a = self.a
        a("v_bfe_u32 v10, v0, 4, 1")
        a("v_mul_u32_u24 v5, 144, v10")
        a("v_bfe_u32 v4, v0, 3, 1")
        a("v_lshl_add_u32 v5, v4, 6, v5")
        a("v_and_b32 v4, 3, v0")
        a("v_lshl_add_u32 v5, v4, 4, v5")
        a("v_bfe_u32 v4, v0, 2, 1")
        a("v_lshl_add_u32 v5, v4, 3, v5")
        a(f"v_add_u32 v5, {base}, v5")
    def silu_run(self):
        a = self.a
        self.unpack(28, 16, 2)
        self.silu([16, 17, 18, 19], 24)
        a("v_cvt_pk_bf16_f32 v28, v16, v17")
        a("v_cvt_pk_bf16_f32 v29, v18, v19")
        a("ds_write_b64 v5, v[28:29]")
    def c_voff(self, d):
        a = self.a
        a(f"v_bfe_u32 v{d}, v0, 4, 1")
        a(f"v_lshlrev_b32 v{d}, 10, v{d}")
        a("v_and_b32 v11, 15, v0")
        a(f"v_lshl_add_u32 v{d}, v11, 3, v{d}")
    def mfma(self, d, A, B, first):
        c = "0" if first else f"v[{d}:{d+3}]"
        self.a(f"{MFMA} v[{d}:{d+3}], v[{A}:{A+3}], v[{B}:{B+3}], {c}")
    def tr(self, r, va, off, second):
        self.a(f"ds_read_b64_tr_b16 v[{r}:{r+1}], v{va} offset:{off}")
        self.a(f"ds_read_b64_tr_b16 v[{r+2}:{r+3}], v{va} offset:{off+second}")
    def voff256(self, d, stride_sh, t0, t1):
        a = self.a
        a(f"v_lshrrev_b32 v{t0}, 4, v0")
        a(f"v_and_b32 v{t1}, 15, v0")
        a(f"v_lshlrev_b32 v{d}, 1, v{t0}")
        a(f"v_xor_b32 v{d}, v{t1}, v{d}")
        a(f"v_lshlrev_b32 v{d}, 4, v{d}")
        a(f"v_lshl_add_u32 v{d}, v{t0}, {stride_sh}, v{d}")
        a(f"v_xor_b32 v{d+1}, 0x80, v{d}")
    def voff128(self, d, stride, t0, t1):
        a = self.a
        a(f"v_lshrrev_b32 v{t0}, 3, v0")
        a(f"v_and_b32 v{d}, 6, v{t0}")
        a(f"v_and_b32 v{t1}, 7, v0")
        a(f"v_xor_b32 v{d}, v{d}, v{t1}")
        a(f"v_mul_u32_u24 v{t0}, {stride}, v{t0}")
        a(f"v_lshl_add_u32 v{d}, v{d}, 4, v{t0}")
    def traddr256(self, d, n, base, t0, t1, first=None):
        a = self.a
        a(f"v_lshrrev_b32 v{t0}, 2, v0")
        a(f"v_and_b32 v{d}, 7, v{t0}")
        a(f"v_lshlrev_b32 v{d}, 5, v{d}")
        a(f"v_lshl_add_u32 v{d}, v{t0}, 8, v{d}")
        a(f"v_and_b32 v{t1}, 3, v0")
        a(f"v_lshl_add_u32 v{d}, v{t1}, 3, v{d}")
        if first: a(f"v_xor_b32 v{d}, {first}, v{d}")
        a(f"v_add_u32 v{d}, {base}, v{d}")
        for i in range(1, n): a(f"v_xor_b32 v{d+i}, {32*i}, v{d}")
    def traddr128(self, d, base, t0, t1, grp_sh=10, n=4):
        a = self.a
        a(f"v_bfe_u32 v{t0}, v0, 2, 3")
        a(f"v_bfe_u32 v{d}, v0, 3, 2")
        a(f"v_lshlrev_b32 v{d}, 5, v{d}")
        a(f"v_lshl_add_u32 v{d}, v{t0}, 7, v{d}")
        a(f"v_lshrrev_b32 v{t0}, 5, v0")
        a(f"v_lshl_add_u32 v{d}, v{t0}, {grp_sh}, v{d}")
        a(f"v_and_b32 v{t1}, 3, v0")
        a(f"v_lshl_add_u32 v{d}, v{t1}, 3, v{d}")
        if base is not None: a(f"v_add_u32 v{d}, {base}, v{d}")
        for i in range(1, n): a(f"v_xor_b32 v{d+i}, {32*i}, v{d}")

    def prologue(self):
        a = self.a
        a("s_cmp_ge_u32 s2, 256")
        a("s_cbranch_scc1 Lexit")
        a("s_load_dwordx16 s[16:31], s[0:1], 0")
        a("s_load_dwordx8 s[32:39], s[0:1], 64")
        a("s_load_dwordx2 s[40:41], s[0:1], 104")
        if self.diag:
            for k in range(1, 12): a(f"s_mov_b32 s{64+2*k}, 0")
        self.stamp(0)
        if self.o.get("padto"): a("s_memrealtime s[96:97]")
        a("s_getpc_b64 s[56:57]")
        a.label("Lpc0")
        a("s_lshr_b32 s5, s2, 3")
        a("v_lshrrev_b32 v1, 6, v0")
        a("s_mul_i32 s6, s5, 640")
        a("v_lshl_add_u32 v2, v1, 7, s6")
        a("v_min_u32 v2, Lcode_end-Lpc0-4, v2")
        a("global_load_dword v239, v2, s[56:57]")
        a("v_and_b32 v0, 63, v0")
        a("s_and_b32 s4, s2, 7")
        a("v_readfirstlane_b32 s3, v1")
        a(f"s_mov_b32 s42, {WS_SIZE}")
        a("s_mov_b32 s43, 0x20000")
        a("s_mov_b32 s47, 0x20000")
        a("s_mov_b32 s51, 0x20000")
        a("s_lshl_b32 s7, s3, 14")
        a("s_cmp_ge_u32 s5, 24")
        a("s_cbranch_scc1 LG0")
        a("s_cmp_eq_u32 s3, 4")
        a("s_cbranch_scc1 LH0")
        self.voff256(6, 8, 1, 8)
        a("s_mov_b32 m0, s7")
        a("s_cmp_ge_u32 s5, 16")
        a("s_cbranch_scc0 LT0")

    def tw_early(self):
        a, wf = self.a, self.wf
        a.label("LT0")
        a("s_and_b32 s6, s5, 8")
        a("s_add_u32 s6, s6, s4")
        a("s_lshl_b32 s6, s6, 21")
        a("s_and_b32 s8, s5, 7")
        a("s_lshl_b32 s8, s8, 16")
        a("s_add_u32 s6, s6, s8")
        a("s_add_u32 s6, s6, s7")
        a(f"s_add_u32 s6, s6, {6144*256}")
        a("v_xor_b32 v2, v8, v1")
        a("v_lshlrev_b32 v2, 4, v2")
        a("v_lshl_add_u32 v2, v1, 8, v2")
        a("v_xor_b32 v3, 64, v2")
        a("v_xor_b32 v4, 0x80, v2")
        a("v_xor_b32 v5, 0xc0, v2")
        a("s_mov_b32 s8, s6")
        a("s_add_u32 s9, s6, 16384")
        a("s_mov_b32 s46, 0x2000000")
        a("s_mov_b32 s50, 0x2000000")
        a("s_add_u32 s10, s6, 8192")
        a("s_waitcnt lgkmcnt(0)")
        a("s_mov_b64 s[44:45], s[18:19]")
        a("s_mov_b64 s[48:49], s[20:21]")
        a("s_load_dword s14, s[40:41], 0")
        cap = self.o.get("cap", 8)
        for half in range(2):
            L = self.lab("LTWk")
            a.label(L)
            for i in range(4):
                a(f"buffer_load_dwordx4 v{2+i}, s[44:47], s8 offen offset:{1024*i} {wf} lds")
                if cap and half: a(f"s_waitcnt vmcnt({cap})")
            a("s_add_u32 m0, m0, 4096")
            a("s_add_u32 s8, s8, 4096")
            a(f"s_cmp_lt_u32 s8, s{10-half}")
            a(f"s_cbranch_scc1 {L}")
            if half == 0:
                a("s_branch LTpx")
                a.label("LTpr")
        self.stamp(10)
        if self.o.get("tnear"): a("s_branch LTW1")

    def tw_issue(self):
        a, wf = self.a, self.wf
        cap = self.o.get("vcap", 8)
        if self.o.get("tnear"):
            a.label("LTHp")
            a("s_branch LTH")
            a.label("LTW1")
        a("s_lshl_b32 s55, s4, 14")
        a("s_and_b32 s13, s5, 8")
        a("s_lshl_b32 s13, s13, 10")
        a("s_add_u32 s55, s55, s13")
        a("s_lshl_b32 s13, s3, 11")
        a("s_add_u32 s55, s55, s13")
        a(f"s_add_u32 s55, s55, {HB}")
        a("v_lshlrev_b32 v21, 4, v0")
        a("v_mov_b32 v229, v21")
        a("s_lshl_b32 s27, s4, 7")
        a(f"s_add_u32 s27, s27, {RDY+2048}")
        a(f"s_add_u32 m0, s7, {VB}")
        a("s_mov_b32 s8, s6")
        a("s_waitcnt lgkmcnt(0)")
        self.tag()
        for g in range(4):
            if g == 2:
                a("s_mov_b64 exec, 0xff")
                self.rdy_load()
                a("s_mov_b64 exec, -1")
            for i in range(4):
                a(f"buffer_load_dwordx4 v{6+(i&1)}, s[48:51], s8 offen offset:{1024*i} {wf} lds")
                if cap: a(f"s_waitcnt vmcnt({cap})")
            if g < 3:
                a("s_add_u32 m0, m0, 4096")
                a("s_add_u32 s8, s8, 4096")
        a("s_waitcnt vmcnt(8)")
        a("s_mov_b64 exec, 0xff")
        self.rdy_check()
        a("s_mov_b64 exec, -1")
        self.qfetch()

    def qfetch(self):
        for i in range(2): self.a(f"buffer_load_dwordx4 v[{192+4*i}:{195+4*i}], v21, s[40:43], s55 offen offset:{1024*i} sc1")

    def ww_early(self):
        a, wf = self.a, self.wf
        a.label("LW0")
        if self.o.get("now"): a("s_endpgm")
        a("s_lshl_b32 s9, s4, 19")
        a("s_and_b32 s52, s5, 7")
        a("s_lshl_b32 s15, s52, 10")
        a("s_add_u32 s9, s9, s15")
        a("s_lshl_b32 s15, s3, 8")
        a("s_add_u32 s9, s9, s15")
        a("v_mul_u32_u24 v2, 0x1f00, v1")
        a("v_add_u32 v6, v6, v2")
        a("v_add_u32 v7, v7, v2")
        a("s_add_u32 s13, s7, 16384")
        a(f"s_mov_b32 s46, {512*8192}")
        a("s_waitcnt lgkmcnt(0)")
        a("s_mov_b64 s[44:45], s[22:23]")
        if self.o.get("pf3", 0):
            a("s_cmp_eq_u32 s4, 3")
            a("s_cbranch_scc0 LWp")
            a("s_mov_b64 s[48:49], s[36:37]")
            a(f"s_mov_b32 s50, {512*6144}")
            a("s_lshl_b32 s15, s52, 2")
            a("s_add_u32 s15, s15, s3")
            a(f"s_mul_i32 s15, s15, {16*6144}")
            a("v_mul_u32_u24 v3, 6144, v8")
            a("s_mov_b64 exec, 0xffff")
            a(f"buffer_load_dword v238, v3, s[48:51], s15 offen offset:{1024+384}")
            a("s_mov_b64 exec, -1")
            a.label("LWp")
        a("s_load_dword s14, s[40:41], 0")
        a.label("LWq")
        for i in range(2):
            a(f"buffer_load_dwordx4 v{6+i}, s[44:47], s9 offen {wf} lds")
            a("s_add_u32 m0, m0, 1024")
            a("s_add_u32 s9, s9, 32768")
        if self.o.get("qcap", 8): a(f"s_waitcnt vmcnt({self.o.get('qcap', 8)})")
        a("s_cmp_lt_u32 m0, s13")
        a("s_cbranch_scc1 LWq")
        a("s_branch LW2")
        a.label("LH0")
        a("s_cmp_ge_u32 s5, 16")
        a("s_cbranch_scc0 " + ("LTHp" if self.o.get("tnear") else "LTH"))
        a("s_branch LWHp")

    def g_early(self):
        a, wf = self.a, self.wf
        a.label("LG0")
        if self.o.get("nog"): a("s_endpgm")
        a("s_sub_u32 s5, s5, 24")
        if self.o.get("chs", 0):
            a("s_mov_b32 s60, s5")
            a("s_mov_b32 s61, s4")
        else:
            a("s_mov_b32 s60, s4")
            a("s_mov_b32 s61, s5")
        a("s_mov_b32 s50, 2048")
        a("s_cmp_eq_u32 s3, 4")
        a("s_cbranch_scc0 LGW")
        self.c_voff(4)
        a("s_lshl_b32 s9, s61, 7")
        a("s_waitcnt lgkmcnt(0)")
        a("s_mov_b64 s[48:49], s[34:35]")
        a("buffer_load_dwordx2 v[28:29], v4, s[48:51], s9 offen")
        a("s_load_dword s14, s[40:41], 0")
        self.silu_frag(SC)
        a("s_waitcnt vmcnt(0)")
        self.silu_run()
        a("s_waitcnt lgkmcnt(0)")
        a("s_barrier")
        a("s_barrier")
        a("s_branch LGH2")
        a.label("LGW")
        a("v_lshlrev_b32 v6, 4, v0")
        self.voff128(2, 6144, 1, 3)
        a("s_lshl_b32 s9, s61, 2")
        a("s_add_u32 s9, s9, s3")
        a(f"s_mul_i32 s9, s9, {16*6144}")
        a("s_lshl_b32 s6, s60, 7")
        a("s_add_u32 s9, s9, s6")
        a("s_lshl_b32 s13, s3, 5")
        a("s_add_u32 s6, s6, s13")
        a("v_and_b32 v12, 1, v0")
        a("v_and_b32 v13, 48, v0")
        a("v_lshrrev_b32 v4, 1, v13")
        a("v_lshl_add_u32 v4, v12, 10, v4")
        a("v_lshrrev_b32 v14, 5, v0")
        a("v_lshlrev_b32 v14, 10, v14")
        a("v_and_b32 v15, 31, v0")
        a("v_lshl_add_u32 v14, v15, 3, v14")
        a("s_lshl_b32 s63, s3, 8")
        a("s_lshr_b32 m0, s7, 2")
        a(f"s_mov_b32 s54, {512*6144}")
        a("s_mov_b32 s55, 0x20000")
        a("s_lshl_b32 s8, s60, 12")
        a("s_lshl_b32 s15, s3, 10")
        a("s_add_u32 s8, s8, s15")
        a("s_lshl_b32 s15, s61, 7")
        a("s_add_u32 s8, s8, s15")
        a(f"s_add_u32 s8, s8, {HA}")
        a(f"s_add_u32 s62, s8, {ALOC}")
        a("s_waitcnt lgkmcnt(0)")
        a("s_mov_b64 s[48:49], s[16:17]")
        a("s_mov_b64 s[52:53], s[36:37]")
        lnh = self.o.get("lnh", 1)
        if lnh:
            a("buffer_load_dwordx2 v[24:25], v14, s[48:51], s63 offen")
        else:
            a("buffer_load_dwordx4 v[24:27], v6, s[48:51], 0 offen")
            a("buffer_load_dwordx4 v[28:31], v6, s[48:51], 0 offen offset:1024")
        self.exec16(3)
        a("buffer_load_dwordx2 v[20:21], v4, s[48:51], s6 offen")
        a("s_mov_b64 exec, -1")
        for i in range(2):
            a(f"buffer_load_dwordx4 v2, s[52:55], s9 offen {wf} lds")
            a(f"buffer_load_dwordx4 v2, s[52:55], s9 offen offset:1024 {wf} lds")
            if i == 0:
                a("s_add_u32 m0, m0, 2048")
                a(f"s_add_u32 s9, s9, {8*6144}")
        a("s_mov_b64 exec, 1")
        a("buffer_load_dword v238, v6, s[40:43], s62 offen sc1")
        a("s_mov_b64 exec, -1")
        a("s_load_dword s14, s[40:41], 0")
        mr0 = 0
        self.traddr128(8, None, 1, 3, grp_sh=11, n=1)
        a("v_xor_b32 v8, s13, v8")
        a("v_mul_u32_u24 v6, 144, v12")
        a("v_add_u32 v6, v6, v13")
        a(f"v_add_u32 v6, {SC}, v6")
        a("v_lshlrev_b32 v7, 4, v12")
        a("v_lshl_add_u32 v13, v13, 1, v7")
        a("s_cmp_eq_u32 s61, 0")
        a("s_cselect_b32 s9, 1.0, 0")
        for i in range(4): a(f"v_mov_b32 v{44+i}, s9")
        a("s_mov_b32 s9, 0x3f803f80")
        if lnh:
            a("v_and_b32 v15, 48, v0")
            a("s_lshl_b32 s15, s3, 2")
            a(f"s_add_u32 s15, s15, {LNS}")
            a("v_add_u32 v15, s15, v15")
            a("v_lshlrev_b32 v7, 5, v12")
            a(f"v_add_u32 v7, {LNS}, v7")
            a(f"v_mov_b32 v52, {f32(1e-5)}")
            a("s_waitcnt vmcnt(5) lgkmcnt(0)")
            self.tag()
            a("v_dot2_f32_bf16 v48, v24, s9, 0")
            a("v_dot2_f32_bf16 v50, v24, v24, 0")
            a("v_dot2_f32_bf16 v48, v25, s9, v48")
            a("v_dot2_f32_bf16 v50, v25, v25, v50")
            self.unpack(20, 16, 2)
            a("v_permlane16_swap_b32 v48, v50")
            a("v_add_f32 v48, v48, v50")
            self.row_sum(48)
            a("ds_write_b32 v15, v48")
            a("s_waitcnt lgkmcnt(0)")
        else:
            a("v_lshlrev_b32 v7, 7, v12")
            a(f"s_waitcnt vmcnt({5+mr0})")
            for b in range(2):
                a(f"v_dot2_f32_bf16 v{48+b}, v{24+4*b}, s9, 0")
                a(f"v_dot2_f32_bf16 v{50+b}, v{24+4*b}, v{24+4*b}, 0")
            for i in range(1, 4):
                for b in range(2):
                    a(f"v_dot2_f32_bf16 v{48+b}, v{24+4*b+i}, s9, v{48+b}")
                    a(f"v_dot2_f32_bf16 v{50+b}, v{24+4*b+i}, v{24+4*b+i}, v{50+b}")
            a("v_permlane32_swap_b32 v48, v49")
            a("v_permlane32_swap_b32 v50, v51")
            a("v_add_f32 v48, v48, v49")
            a("v_add_f32 v50, v50, v51")
            a("v_permlane16_swap_b32 v48, v50")
            a("v_add_f32 v48, v48, v50")
            self.row_sum(48)
            a("ds_bpermute_b32 v50, v7, v48")
            a("ds_bpermute_b32 v51, v7, v48 offset:64")
            a(f"v_mov_b32 v52, {f32(1e-5)}")
            a("s_waitcnt lgkmcnt(0)")
            self.tag()
            a(f"v_mul_f32 v50, {f32(1/512)}, v50")
            a(f"v_fmamk_f32 v51, v51, {f32(1/512)}, v52")
            a("v_fma_f32 v51, -v50, v50, v51")
            a("v_rsq_f32 v51, v51")
            self.unpack(20, 16, 2)
            for i in range(4): a(f"v_sub_f32 v{16+i}, v{16+i}, v50")
            for i in range(4): a(f"v_mul_f32 v{16+i}, v{16+i}, v51")
        a("v_mov_b32 v58, s14")
        a("v_mov_b32 v59, s14")
        a(f"s_waitcnt vmcnt({1+mr0})")
        a("s_barrier")
        self.stamp(1)
        if lnh:
            a("ds_read_b128 v[24:27], v7")
            a("ds_read_b128 v[28:31], v7 offset:16")
        for ks in range(2):
            a(f"ds_read_b128 v[{32+4*ks}:{35+4*ks}], v6 offset:{64*ks}")
            for seg in range(2): self.tr(64 + 8 * ks + 4 * seg, 8, W1 + 8192 * ks + 1024 * seg, 4096)
        if lnh:
            a("s_waitcnt lgkmcnt(10)")
            a("v_pk_add_f32 v[24:25], v[24:25], v[26:27]")
            a("v_pk_add_f32 v[28:29], v[28:29], v[30:31]")
            a("v_add_f32 v50, v24, v25")
            a("v_add_f32 v51, v28, v29")
            a(f"v_mul_f32 v50, {f32(-1/512)}, v50")
            a(f"v_fmamk_f32 v51, v51, {f32(1/512)}, v52")
            a("v_fma_f32 v51, -v50, v50, v51")
            a("v_max_f32 v51, v51, v52")
            a("v_rsq_f32 v51, v51")
            for k in range(2): a(f"v_pk_add_f32 v[{16+2*k}:{17+2*k}], v[{16+2*k}:{17+2*k}], v[50:51] op_sel_hi:[1,0]")
            for k in range(2): a(f"v_pk_mul_f32 v[{16+2*k}:{17+2*k}], v[{16+2*k}:{17+2*k}], v[50:51] op_sel:[0,1] op_sel_hi:[1,1]")
        a("s_waitcnt lgkmcnt(5)")
        self.mfma(40, 64, 32, True)
        self.mfma(44, 68, 32, False)
        a("s_waitcnt lgkmcnt(0)")
        self.mfma(40, 72, 36, False)
        self.mfma(44, 76, 36, False)
        self.exec16(3)
        for k in range(2): a(f"v_pk_fma_f32 v[{40+2*k}:{41+2*k}], v[{16+2*k}:{17+2*k}], v[{44+2*k}:{45+2*k}], v[{40+2*k}:{41+2*k}]")
        a("v_cvt_pk_bf16_f32 v56, v40, v41")
        a("v_cvt_pk_bf16_f32 v57, v42, v43")
        a("buffer_store_dwordx4 v[56:59], v13, s[40:43], s62 offen")
        self.stamp(3)
        a("s_barrier")
        a("buffer_store_dwordx4 v[56:59], v13, s[40:43], s8 offen sc1")
        a("s_mov_b64 exec, -1")

    def wo_setup(self):
        a = self.a
        self.voff128(2, 1024, 3, 4)
        a("s_lshl_b32 s53, s4, 19")
        a("s_lshl_b32 s15, s3, 17")
        a("s_add_u32 s53, s53, s15")
        a("s_lshr_b32 s15, s52, 2")
        a("s_add_u32 s53, s53, s15")
        a(f"s_add_u32 s59, s7, {WO+16384}")
        a(f"s_add_u32 s62, s7, {WO}")
        a("s_mov_b64 s[48:49], s[24:25]")
        a(f"s_mov_b32 s50, {4096*1024}")
    def mr_issue(self, v, srd):
        a, wf = self.a, self.wf
        L = self.lab("Lmr")
        a(f"s_mul_i32 s9, s61, {64*6144}")
        a("s_lshl_b32 s15, s60, 9")
        a("s_add_u32 s9, s9, s15")
        a("s_lshl_b32 s15, s3, 7")
        a("s_add_u32 s9, s9, s15")
        a("s_add_u32 s9, s9, 2048")
        a("s_mov_b32 m0, s63")
        a("s_add_u32 s15, s63, 8192")
        a.label(L)
        a(f"buffer_load_dwordx4 v{v}, s[{srd}:{srd+3}], s9 offen {wf} lds")
        a("s_add_u32 m0, m0, 1024")
        a(f"s_add_u32 s9, s9, {8*6144}")
        a("s_cmp_lt_u32 m0, s15")
        a(f"s_cbranch_scc1 {L}")
    def mr_compute(self, sc, younger):
        a = self.a
        self.traddr128(8, "s63", 5, 6)
        a("v_and_b32 v5, 1, v0")
        a("v_and_b32 v6, 48, v0")
        a("v_mul_u32_u24 v7, 144, v5")
        a("v_add_u32 v7, v7, v6")
        a(f"v_add_u32 v7, {sc}, v7")
        a("v_lshlrev_b32 v5, 4, v5")
        a("v_lshl_add_u32 v5, v6, 1, v5")
        for ks in range(2): a(f"ds_read_b128 v[{32+4*ks}:{35+4*ks}], v7 offset:{64*ks}")
        a("s_lshl_b32 s9, s60, 14")
        a("s_lshl_b32 s15, s3, 12")
        a("s_add_u32 s9, s9, s15")
        a("s_lshl_b32 s15, s61, 7")
        a("s_add_u32 s9, s9, s15")
        a(f"s_add_u32 s9, s9, {HP}")
        a(f"s_waitcnt vmcnt({younger})")
        a("s_setprio 3")
        for ks in range(2):
            for t in range(4): self.tr(64 + 16 * ks + 4 * t, 8 + t, 4096 * ks, 2048)
        a("s_waitcnt lgkmcnt(0)")
        for ks in range(2):
            for t in range(4): self.mfma(40 + 4 * t, 64 + 16 * ks + 4 * t, 32 + 4 * ks, ks == 0)
        self.exec16(3)
        for t in range(4):
            a(f"v_cvt_pk_bf16_f32 v{40+4*t}, v{40+4*t}, v{41+4*t}")
            a(f"v_cvt_pk_bf16_f32 v{41+4*t}, v{42+4*t}, v{43+4*t}")
            a(f"v_mov_b32 v{42+4*t}, s14")
        for t in range(4): a(f"buffer_store_dwordx4 v[{40+4*t}:{43+4*t}], v5, s[40:43], s9 offen offset:{1024*t} sc1")
        a("s_mov_b64 exec, -1")
        a("s_setprio 0")
        self.stamp(11)
    def rdy_publish(self, vb, jreg):
        a = self.a
        for i in range(4): a(f"v_mov_b32 v{vb+i}, s14")
        a(f"v_mov_b32 v{vb+4}, 0")
        a(f"s_lshl_b32 s15, {jreg}, 4")
        a(f"s_add_u32 s15, s15, {RDY}")
        a("s_mov_b64 exec, 1")
        a(f"buffer_store_dwordx4 v[{vb}:{vb+3}], v{vb+4}, s[40:43], s15 offen sc1")
        a("s_mov_b64 exec, -1")
    def rdy_load(self):
        self.a("buffer_load_dword v237, v229, s[40:43], s27 offen sc1")
    def rdy_check(self):
        a = self.a
        L = self.lab("Lok")
        a("v_cmp_ne_u32 vcc, s14, v237")
        a(f"s_cbranch_vccz {L}")
        self.poll(["buffer_load_dword v237, v229, s[40:43], s27 offen sc1"], [(*self.TAGBAD, 237)], sleep=2)
        a.label(L)

    def g_index(self):
        a = self.a
        a("s_mul_i32 s26, s4, 7")
        a("s_add_u32 s26, s26, s5")
        a("s_cmp_eq_u32 s5, 7")

    def tw_main(self):
        a = self.a
        self.stamp(1)
        a("v_lshlrev_b32 v22, 2, v8")
        a("v_lshrrev_b32 v23, 5, v0")
        a("v_lshl_add_u32 v22, v23, 1, v22")
        a("v_and_b32 v23, 16, v0")
        a("v_lshl_add_u32 v22, v23, 3, v22")
        a("s_mul_i32 s13, s3, 272")
        a(f"s_add_u32 s13, s13, {QB}")
        a("v_add_u32 v22, s13, v22")
        a("v_xor_b32 v3, v8, v1")
        a("v_lshlrev_b32 v3, 4, v3")
        a("v_lshl_add_u32 v3, v8, 8, v3")
        a("v_add_u32 v8, s7, v3")
        a("v_xor_b32 v9, 64, v8")
        a("v_xor_b32 v10, 0x80, v8")
        a("v_xor_b32 v11, 0xc0, v8")
        for t in range(4):
            for ks in range(4):
                r = 64 + 16 * t + 4 * ks
                a(f"ds_read_b128 v[{r}:{r+3}], v{8+ks} offset:{4096*t}")
        a("s_lshl_b32 s8, s3, 6")
        self.traddr256(12, 2, VB, 3, 5, first="s8")
        a("v_mul_u32_u24 v20, 272, v5")
        a("v_lshl_add_u32 v20, v1, 4, v20")
        a(f"v_add_u32 v20, {QB}, v20")
        a("v_lshlrev_b32 v14, 6, v5")
        a("v_lshl_add_u32 v14, v1, 4, v14")
        a(f"v_add_u32 v14, {PB}, v14")
        a("s_lshl_b32 s9, s3, 9")
        a("v_add_u32 v15, s9, v14")
        a("v_lshlrev_b32 v16, 4, v5")
        a(f"v_add_u32 v16, {MX}, v16")
        a("s_lshl_b32 s9, s3, 2")
        a("v_add_u32 v17, s9, v16")
        a("v_lshlrev_b32 v18, 8, v5")
        a("v_lshl_add_u32 v18, v1, 4, v18")
        a("v_lshlrev_b32 v19, 2, v5")
        a("s_lshl_b32 s6, s4, 4")
        a("s_add_u32 s6, s6, s5")
        a("s_lshl_b32 s9, s6, 10")
        a("s_add_u32 s8, s8, s9")
        a(f"s_add_u32 s8, s8, {HC}")
        a("s_lshl_b32 s52, s6, 7")
        a(f"s_add_u32 s52, s52, {HL}")
        a(f"s_add_u32 s53, s8, {LOC}")
        a(f"s_add_u32 s54, s52, {LOC}")
        a(f"s_mov_b32 s10, {f32(CSC)}")
        a("s_lshl_b64 s[58:59], 1, s3")
        a("v_lshlrev_b32 v232, 6, v5")
        a(f"v_add_u32 v232, {LS}, v232")
        a("s_lshl_b32 s9, s3, 4")
        a("v_lshl_add_u32 v233, v1, 2, s9")
        a("v_add_u32 v233, v233, v232")
        def vr(k):
            for t in range(2): self.tr(128 + 8 * k + 4 * t, 12 + t, 8192 * k, 4096)
        def xrow(op, r):
            a(f"v_mov_b32 v225, v{r}")
            a(f"v_permlane16_swap_b32 v{r}, v225")
            a(f"{op} v{r}, v{r}, v225")
            a(f"v_mov_b32 v225, v{r}")
            a(f"v_permlane32_swap_b32 v{r}, v225")
            a(f"{op} v{r}, v{r}, v225")
        a(f"s_mov_b32 s12, {SPIN}")
        a("s_barrier")
        for k in (0, 2, 4, 6): vr(k)
        a("s_branch LTq1")
        a.label("LTq0")
        if self.o.get("qsleep", 0): a(f"s_sleep {self.o['qsleep']}")
        self.qfetch()
        a.label("LTq1")
        a("s_waitcnt vmcnt(1)")
        self.unpack(192, 24, 4)
        a("s_waitcnt vmcnt(0)")
        self.unpack(196, 32, 4)
        for k in range(4): a(f"v_pk_add_f32 v[{24+2*k}:{25+2*k}], v[{24+2*k}:{25+2*k}], v[{32+2*k}:{33+2*k}]")
        for i in range(4): a(f"v_permlane32_swap_b32 v{24+i}, v{28+i}")
        for k in range(2): a(f"v_pk_add_f32 v[{24+2*k}:{25+2*k}], v[{24+2*k}:{25+2*k}], v[{28+2*k}:{29+2*k}]")
        for i in range(2): a(f"v_permlane16_swap_b32 v{24+i}, v{26+i}")
        a("v_pk_add_f32 v[24:25], v[24:25], v[26:27]")
        a("v_cmp_u_f32 vcc, v24, v25")
        a("v_cvt_pk_bf16_f32 v24, v24, v25")
        a("s_cbranch_vccz LTq2")
        a("s_sub_u32 s12, s12, 1")
        a("s_cbranch_scc0 LTq0")
        a.label("LTq2")
        self.stamp(2)
        a("ds_write_b16 v22, v24")
        a("ds_write_b16_d16_hi v22, v24 offset:64")
        a("s_waitcnt lgkmcnt(0)")
        a("s_barrier")
        for ks in range(4): a(f"ds_read_b128 v[{208+4*ks}:{211+4*ks}], v20 offset:{64*ks}")
        self.stamp(3)
        for ks in range(4):
            a(f"s_waitcnt lgkmcnt({3+3*ks})")
            for t in range(4): self.mfma(40 + 4 * t, 64 + 16 * t + 4 * ks, 208 + 4 * ks, ks == 0)
            vr(1 + 2 * ks)
        a("v_max3_f32 v224, v40, v41, v42")
        a("v_max3_f32 v225, v43, v44, v45")
        a("v_max3_f32 v226, v46, v47, v48")
        a("v_max3_f32 v227, v49, v50, v51")
        a("v_max3_f32 v228, v52, v53, v54")
        a("v_max3_f32 v224, v224, v225, v226")
        a("v_max3_f32 v227, v227, v228, v55")
        a("v_max_f32 v224, v224, v227")
        xrow("v_max_f32", 224)
        a(f"v_mul_f32 v230, {f32(-CSC)}, v224")
        for i in range(8): a(f"v_pk_fma_f32 v[{40+2*i}:{41+2*i}], v[{40+2*i}:{41+2*i}], s[10:11], v[230:231] op_sel_hi:[1,0,0]")
        a("ds_write_b32 v17, v230")
        self.exec16(15)
        for blk in range(2):
            for i in range(8): a(f"v_exp_f32 v{40+8*blk+i}, v{40+8*blk+i}")
            for i in range(4): a(f"v_cvt_pk_bf16_f32 v{56+4*blk+i}, v{40+8*blk+2*i}, v{41+8*blk+2*i}")
            a(f"ds_write_b128 v15, v[{56+4*blk}:{59+4*blk}] offset:{256*blk}")
        for i in range(4): a(f"v_pk_add_f32 v[{40+2*i}:{41+2*i}], v[{40+2*i}:{41+2*i}], v[{48+2*i}:{49+2*i}]")
        for i in range(2): a(f"v_pk_add_f32 v[{40+2*i}:{41+2*i}], v[{40+2*i}:{41+2*i}], v[{44+2*i}:{45+2*i}]")
        a("v_pk_add_f32 v[40:41], v[40:41], v[42:43]")
        a("v_add_f32 v231, v40, v41")
        a("ds_write_b32 v233, v231")
        a("s_mov_b64 exec, -1")
        a("s_waitcnt lgkmcnt(0)")
        a("s_barrier")
        self.stamp(4)
        for k in range(2): a(f"ds_read_b128 v[{64+4*k}:{67+4*k}], v14 offset:{256*k}")
        a("ds_read_b128 v[24:27], v16")
        for w in range(4): a(f"ds_read_b128 v[{96+4*w}:{99+4*w}], v232 offset:{16*w}")
        for k in range(2, 8): a(f"ds_read_b128 v[{64+4*k}:{67+4*k}], v14 offset:{256*k}")
        def pv(k):
            for t in range(2): self.mfma(192 + 8 * (k >> 1) + 4 * t, 128 + 8 * k + 4 * t, 64 + 4 * k, (k & 1) == 0)
        a("s_waitcnt lgkmcnt(12)")
        pv(0)
        a("s_waitcnt lgkmcnt(10)")
        pv(1)
        a("v_min3_f32 v32, v24, v25, v26")
        a("v_min_f32 v32, v32, v27")
        a("s_waitcnt lgkmcnt(5)")
        pv(2)
        for k in range(2): a(f"v_pk_add_f32 v[{24+2*k}:{25+2*k}], v[32:33], v[{24+2*k}:{25+2*k}] op_sel_hi:[0,1] neg_lo:[0,1] neg_hi:[0,1]")
        for w in range(4): a(f"v_pk_add_f32 v[{96+4*w}:{97+4*w}], v[{96+4*w}:{97+4*w}], v[{98+4*w}:{99+4*w}]")
        a("s_waitcnt lgkmcnt(4)")
        pv(3)
        for w in range(4): a(f"v_exp_f32 v{24+w}, v{24+w}")
        a("s_waitcnt lgkmcnt(3)")
        pv(4)
        a("v_pk_mul_f32 v[96:97], v[96:97], v[24:25] op_sel_hi:[1,0]")
        a("v_pk_fma_f32 v[96:97], v[100:101], v[24:25], v[96:97] op_sel:[0,1,0] op_sel_hi:[1,1,1]")
        a("v_pk_fma_f32 v[96:97], v[104:105], v[26:27], v[96:97] op_sel_hi:[1,0,1]")
        a("v_pk_fma_f32 v[96:97], v[108:109], v[26:27], v[96:97] op_sel:[0,1,0] op_sel_hi:[1,1,1]")
        a("v_add_f32 v33, v96, v97")
        a("s_waitcnt lgkmcnt(2)")
        pv(5)
        a("v_rcp_f32 v36, v33")
        a("v_log_f32 v37, v33")
        for k in range(2): a(f"v_pk_mul_f32 v[{24+2*k}:{25+2*k}], v[{24+2*k}:{25+2*k}], v[36:37] op_sel_hi:[1,0]")
        a("s_waitcnt lgkmcnt(1)")
        pv(6)
        for i in range(4): a(f"v_pk_mul_f32 v[{192+2*i}:{193+2*i}], v[{192+2*i}:{193+2*i}], v[24:25] op_sel_hi:[1,0]")
        a("v_sub_f32 v37, v37, v32")
        a("s_waitcnt lgkmcnt(0)")
        pv(7)
        a("s_mov_b64 exec, s[58:59]")
        a("buffer_store_dword v37, v19, s[40:43], s54 offen")
        a("s_mov_b64 exec, -1")
        for i in range(4): a(f"v_pk_fma_f32 v[{192+2*i}:{193+2*i}], v[{200+2*i}:{201+2*i}], v[24:25], v[{192+2*i}:{193+2*i}] op_sel:[0,1,0] op_sel_hi:[1,1,1]")
        for i in range(4): a(f"v_pk_fma_f32 v[{192+2*i}:{193+2*i}], v[{208+2*i}:{209+2*i}], v[26:27], v[{192+2*i}:{193+2*i}] op_sel_hi:[1,0,1]")
        self.exec16(15)
        for i in range(4): a(f"v_pk_fma_f32 v[{192+2*i}:{193+2*i}], v[{216+2*i}:{217+2*i}], v[26:27], v[{192+2*i}:{193+2*i}] op_sel:[0,1,0] op_sel_hi:[1,1,1]")
        for i in range(4): a(f"v_cvt_pk_bf16_f32 v{200+i}, v{192+2*i}, v{193+2*i}")
        a("buffer_store_dwordx4 v[200:203], v18, s[40:43], s53 offen")
        self.stamp(5)
        a("s_mov_b64 exec, -1")
        a("s_barrier")
        a("buffer_load_dword v237, v236, s[92:95], s60 offen")
        a("buffer_load_dword v238, v236, s[92:95], s61 offen")
        self.exec16(15)
        a("buffer_store_dwordx4 v[200:203], v18, s[40:43], s8 offen sc1")
        a("s_mov_b64 exec, s[58:59]")
        a("buffer_store_dword v37, v19, s[40:43], s52 offen sc1")
        a("s_mov_b64 exec, -1")
        a("s_cmp_eq_u32 s3, 1")
        a("s_cbranch_scc0 LTWe")
        if self.o.get("nored"): self.end()
        a("s_cmp_lt_u32 s5, 4")
        a("s_cbranch_scc0 LTWe")
        a("s_lshl_b32 s6, s4, 2")
        a("s_add_u32 s6, s6, s5")
        self.srd(44, 16, 2048)
        self.srd(48, 38, 2048)
        a("v_bfe_u32 v2, v0, 2, 1")
        a("v_and_b32 v3, 3, v0")
        a("v_lshlrev_b32 v4, 3, v3")
        a("v_lshl_add_u32 v5, v2, 10, v4")
        a("v_lshlrev_b32 v6, 1, v5")
        a("v_lshrrev_b32 v8, 3, v0")
        a("v_lshl_add_u32 v7, v8, 12, v6")
        a("v_lshlrev_b32 v9, 4, v0")
        a("s_lshl_b32 s7, s6, 5")
        a("s_lshl_b32 s8, s6, 6")
        a(f"s_add_u32 s9, s8, {HD}")
        a(f"s_add_u32 s52, s8, {HM}")
        a(f"s_add_u32 s53, s8, {HM+3*4096}")
        a(f"s_mul_i32 s54, s6, {HFS}")
        a(f"s_add_u32 s54, s54, {HF}")
        a("s_add_u32 s55, s54, 4096")
        a("buffer_load_dwordx2 v[10:11], v5, s[44:47], s7 offen")
        a(f"s_mov_b32 s27, {RDY}")
        self.poll([f"buffer_load_dword v{40+i}, v9, s[40:43], s27 offen offset:{1024*i} sc1" for i in range(4)]
                  + ["buffer_load_dwordx4 v[12:15], v6, s[40:43], s52 offen sc1", "buffer_load_dwordx4 v[16:19], v6, s[40:43], s53 offen sc1"],
                  [(*self.TAGBAD, 40 + i) for i in range(4)] + [(*self.TAGBAD, 14), (*self.TAGBAD, 18)], sleep=2)
        self.poll(["buffer_load_dwordx4 v[24:27], v7, s[40:43], s9 offen sc1"], [(*self.POISON, 24)], sleep=2)
        self.stamp(6)
        a("s_cmp_eq_u32 s6, 0")
        a("s_cbranch_scc0 LTWn")
        a("s_mov_b64 exec, 1")
        a("v_mov_b32 v20, s14")
        a("v_mov_b32 v21, 0")
        a(f"buffer_store_dword v20, v21, s[40:43], 0 offen offset:{EPOCH} sc1")
        a("s_mov_b64 exec, -1")
        a.label("LTWn")
        red8 = self.red8
        red8(24)
        self.unpack(10, 28, 2)
        self.unpack(12, 32, 2)
        self.unpack(16, 36, 2)
        for i in range(4): a(f"v_fmac_f32 v{28+i}, v{24+i}, v{32+i}")
        if self.o.get("fsleep"): a(f"s_sleep {self.o['fsleep']}")
        self.sum_poll([f"buffer_load_dwordx4 v[{64+4*i}:{67+4*i}], v9, s[40:43], s{54+(i>>2)} offen offset:{1024*(i&3)} sc1" for i in range(7)], 64, 56)
        self.stamp(7)
        red8(56)
        for i in range(4): a(f"v_fmac_f32 v{28+i}, v{56+i}, v{36+i}")
        a("v_cvt_pk_bf16_f32 v10, v28, v29")
        a("v_cvt_pk_bf16_f32 v11, v30, v31")
        a("s_mov_b64 exec, 0xff")
        a("buffer_store_dwordx2 v[10:11], v5, s[48:51], s7 offen " + ["", "sc1", "nt", "sc0 sc1"][self.o.get("oflag", 0)])
        self.stamp(8)
        if self.o.get("padto"):
            a("s_cmp_eq_u32 s6, 0")
            a("s_cbranch_scc0 LTWe")
        if self.o.get("padto"):
            a(f"s_mov_b32 s100, {self.o['padto']}")
            if self.o.get("amp"):
                a("s_waitcnt lgkmcnt(0)")
                a(f"s_sub_u32 s98, s{64+2*self.o['amp']}, s96")
                a("s_mul_i32 s98, s98, 10")
                a("s_add_u32 s100, s100, s98")
            a.label("Lpad")
            a("s_memrealtime s[98:99]")
            a("s_waitcnt lgkmcnt(0)")
            a("s_sub_u32 s98, s98, s96")
            a("s_cmp_lt_u32 s98, s100")
            a("s_cbranch_scc1 Lpad")
        a.label("LTWe")
        self.end()

    def ww_main(self):
        a, wf = self.a, self.wf
        a.label("LWHp")
        a("s_branch LWH2")
        a.label("LW2")
        mre = self.o.get("mre", 0)
        self.voff128(12, 6144, 3, 4)
        a("s_mov_b64 s[44:45], s[36:37]")
        a(f"s_mov_b32 s46, {512*6144}")
        a("s_mov_b32 s60, s4")
        a("s_mov_b32 s61, s52")
        a(f"s_add_u32 s63, s7, {WO+8192}")
        if mre: self.mr_issue(12, 44)
        self.stamp(1)
        a("v_mov_b32 v17, v12")
        self.traddr256(8, 8, "s7", 3, 5)
        a("s_lshr_b32 s58, s7, 2")
        a(f"s_add_u32 s58, s58, {GA}")
        a("v_bfe_u32 v3, v0, 2, 1")
        a("v_mul_u32_u24 v16, 144, v3")
        a("v_lshl_add_u32 v16, v1, 4, v16")
        a(f"v_add_u32 v16, {HW}, v16")
        a("v_lshlrev_b32 v18, 4, v0")
        a(f"v_add_u32 v18, {RED}, v18")
        a("v_and_b32 v19, 15, v0")
        a("v_lshlrev_b32 v19, 3, v19")
        a("v_lshrrev_b32 v3, 5, v0")
        a("v_lshl_add_u32 v19, v3, 7, v19")
        a("v_and_b32 v3, 16, v0")
        a("v_lshl_add_u32 v19, v3, 9, v19")
        a("s_lshl_b32 s55, s52, 14")
        a("s_lshl_b32 s15, s3, 11")
        a("s_add_u32 s55, s55, s15")
        a("s_lshl_b32 s15, s4, 8")
        a("s_add_u32 s55, s55, s15")
        a(f"s_add_u32 s55, s55, {HB}")
        a("s_lshl_b32 s52, s52, 9")
        self.wo_setup()
        a(f"s_waitcnt vmcnt({8+8*mre}) lgkmcnt(0)")
        self.tag()
        for t in range(8): self.tr(64 + 4 * t, 8 + t, 0, 4096)
        a(f"s_waitcnt vmcnt({8*mre})")
        self.stamp(2)
        for t in range(8): self.tr(96 + 4 * t, 8 + t, 8192, 4096)
        a("s_barrier")
        for ks in range(2): a(f"ds_read_b128 v[{24+4*ks}:{27+4*ks}], v16 offset:{64*ks}")
        self.stamp(3)
        a("s_waitcnt lgkmcnt(0)")
        for ks in range(2):
            for t in range(8): self.mfma(128 + 4 * t, 24 + 4 * ks, 64 + 32 * ks + 4 * t, ks == 0)
        for k in range(4): a(f"v_permlane32_swap_b32 v{128+8*k}, v{132+8*k}")
        def red4(stride):
            for w in range(4): a(f"ds_read_b128 v[{24+4*w}:{27+4*w}], v18 offset:{stride*w}")
            a("s_waitcnt lgkmcnt(2)")
            for k in range(2): a(f"v_pk_add_f32 v[{24+2*k}:{25+2*k}], v[{24+2*k}:{25+2*k}], v[{28+2*k}:{29+2*k}]")
            a("s_waitcnt lgkmcnt(0)")
            for k in range(2): a(f"v_pk_add_f32 v[{32+2*k}:{33+2*k}], v[{32+2*k}:{33+2*k}], v[{36+2*k}:{37+2*k}]")
            for k in range(2): a(f"v_pk_add_f32 v[{24+2*k}:{25+2*k}], v[{24+2*k}:{25+2*k}], v[{32+2*k}:{33+2*k}]")
        a("v_cvt_pk_bf16_f32 v56, v128, v136")
        a("v_cvt_pk_bf16_f32 v57, v144, v152")
        a("buffer_store_dwordx2 v[56:57], v19, s[40:43], s55 offen sc1")
        self.stamp(4)
        if self.o.get("owait", 0): a("s_waitcnt vmcnt(0)")
        a("s_barrier")
        self.delay("odel")
        def wo(n):
            L = self.lab("LWd")
            a("s_mov_b32 m0, s62")
            a(f"s_add_u32 s62, s62, {1024*n}" if n else "s_mov_b32 s62, s59")
            a.label(L)
            a(f"buffer_load_dwordx4 v2, s[48:51], s53 offen {wf} lds")
            a("s_add_u32 m0, m0, 1024")
            a("s_add_u32 s53, s53, 8192")
            a("s_cmp_lt_u32 m0, s62")
            a(f"s_cbranch_scc1 {L}")
        a("s_cmp_eq_u32 s61, 3")
        a("s_cbranch_scc1 LM")
        ms = self.o.get("msplit", 0)
        if ms:
            if ms < 4:
                a(f"s_cmp_ge_u32 s3, {ms}")
                a("s_cbranch_scc1 LWm")
            if not mre: self.mr_issue(17, 44)
            oe = self.o.get("oearly", 8)
            if oe: wo(oe)
            self.mr_compute(SCW, oe)
        a.label("LWm")
        wo(0)
        a("v_and_b32 v3, 15, v0")
        a("v_lshlrev_b32 v13, 7, v3")
        a("s_lshl_b32 s9, s4, 14")
        a(f"s_add_u32 s9, s9, {HC}")
        a("s_lshl_b32 s8, s4, 11")
        a(f"s_add_u32 s8, s8, {HL}")
        self.stamp(5)
        a("v_lshlrev_b32 v229, 4, v0")
        a("s_mul_i32 s13, s4, 240")
        a("s_sub_u32 s13, 2432, s13")
        a("v_mov_b32 v4, s13")
        a("v_cmp_gt_u32 vcc, 16, v0")
        a("v_cndmask_b32 v229, v4, v229, vcc")
        a("s_lshl_b32 s27, s4, 8")
        a(f"s_add_u32 s27, s27, {RDY}")
        self.rdy_load()
        wpf = self.o.get("wpf", 0)
        if wpf:
            a("s_mov_b64 s[44:45], s[30:31]")
            a(f"s_mov_b32 s46, {512*3584}")
            a("s_lshr_b32 s13, s52, 7")
            a("s_add_u32 s13, s13, s3")
            a(f"s_mul_i32 s13, s13, {16*3584}")
            a("s_mul_i32 s15, s4, 448")
            a("s_add_u32 s13, s13, s15")
            a("v_lshrrev_b32 v4, 2, v0")
            a("v_mul_u32_u24 v4, 3584, v4")
            a("v_and_b32 v5, 3, v0")
            a("v_lshl_add_u32 v4, v5, 7, v4")
            a("buffer_load_dword v238, v4, s[44:47], s13 offen")
        a("s_lshl_b32 s15, s3, 8")
        a("s_add_u32 s9, s9, s15")
        a("s_lshl_b32 s15, s3, 2")
        a("s_add_u32 s8, s8, s15")
        a(f"s_add_u32 s15, s7, {WO}")
        self.traddr128(8, "s15", 3, 4)
        a("v_and_b32 v3, 15, v0")
        a("v_xor_b32 v12, v3, v1")
        a("v_lshlrev_b32 v12, 4, v12")
        a("v_lshl_add_u32 v4, v1, 10, v12")
        for i in range(1, 4):
            a(f"v_xor_b32 v{4+i}, {64*i}, v4")
            a(f"v_add_u32 v{4+i}, {3072*i}, v{4+i}")
        a("v_lshl_add_u32 v20, v3, 8, v12")
        a("v_add_u32 v20, s58, v20")
        for i in range(1, 4): a(f"v_xor_b32 v{20+i}, {64*i}, v20")
        a("v_lshlrev_b32 v14, 4, v1")
        a("v_lshrrev_b32 v12, 5, v0")
        a("v_lshlrev_b32 v15, 8, v12")
        a("v_and_b32 v12, 31, v0")
        a("v_lshl_add_u32 v15, v12, 2, v15")
        a("s_lshl_b32 s15, s3, 9")
        a(f"s_add_u32 s15, s15, {RED}")
        a("v_add_u32 v15, s15, v15")
        a("v_lshlrev_b32 v17, 4, v3")
        a("v_lshl_add_u32 v17, v1, 11, v17")
        a("s_lshl_b32 s55, s4, 12")
        a("s_lshr_b32 s15, s52, 1")
        a("s_add_u32 s55, s55, s15")
        a(f"s_add_u32 s55, s55, {HD}")
        a("s_mov_b32 m0, s58")
        a("v_mov_b32 v128, 0")
        a(f"s_waitcnt vmcnt({wpf})")
        self.stamp(6)
        self.rdy_check()
        def cissue():
            a("s_mov_b64 exec, 0xffff")
            a("buffer_load_dword v128, v13, s[40:43], s8 offen sc1")
            a("s_mov_b64 exec, -1")
            for i in range(4): a(f"buffer_load_dwordx4 v{4+i}, s[40:43], s9 offen offset:{1024*i} sc1 lds")
        def cmid():
            for ks in range(4):
                for t in range(4): self.tr(64 + 16 * ks + 4 * t, 8 + t, 4096 * ks, 2048)
            self.stamp(9)
        def cbody():
            a("s_waitcnt vmcnt(0)")
            for ks in range(4): a(f"ds_read_b128 v[{24+4*ks}:{27+4*ks}], v{20+ks}")
            a("s_waitcnt lgkmcnt(0)")
            a("v_max3_u32 v129, v24, v28, v128")
            a("v_max3_u32 v129, v129, v32, v36")
            a("v_cmp_eq_u32 s[10:11], -1, v129")
        self.spin(cbody, alt=([8, 9], LOC, self.o.get("every", 16)), issue=cissue, mid=cmid)
        self.stamp(7)
        D8 = ("quad_perm:[1,0,3,2]", "quad_perm:[2,3,0,1]", "row_half_mirror")
        def mf(ks):
            for t in range(4): self.mfma(40 + 4 * t, 24 + 4 * ks, 64 + 16 * ks + 4 * t, ks == 0)
        mf(0)
        a("v_mov_b32 v129, v128")
        for m in D8: a(f"v_max_f32_dpp v129, v129, v129 {m} row_mask:0xf bank_mask:0xf")
        a("v_sub_f32 v128, v128, v129")
        a("v_exp_f32 v128, v128")
        mf(1)
        a("v_mov_b32 v129, v128")
        for m in D8: a(f"v_add_f32_dpp v129, v129, v129 {m} row_mask:0xf bank_mask:0xf")
        a("v_rcp_f32 v129, v129")
        a("v_mul_f32 v128, v128, v129")
        for r in range(4): a(f"ds_bpermute_b32 v{130+r}, v14, v128 offset:{4*r}")
        mf(2)
        mf(3)
        a("s_waitcnt lgkmcnt(0)")
        for t in range(4): a(f"v_pk_mul_f32 v[{40+4*t}:{41+4*t}], v[{40+4*t}:{41+4*t}], v[130:131]")
        for t in range(4): a(f"v_pk_fma_f32 v[{40+4*t}:{41+4*t}], v[{42+4*t}:{43+4*t}], v[132:133], v[{40+4*t}:{41+4*t}]")
        for t in range(4): a(f"v_add_f32 v{40+4*t}, v{40+4*t}, v{41+4*t}")
        for k in range(2): a(f"v_permlane16_swap_b32 v{40+8*k}, v{44+8*k}")
        for k in range(2): a(f"v_add_f32 v{40+8*k}, v{40+8*k}, v{44+8*k}")
        for k in range(2): a(f"ds_write_b32 v15, v{40+8*k} offset:{128*k}")
        a("s_waitcnt lgkmcnt(0)")
        a("s_barrier")
        a("s_cmp_eq_u32 s3, 0")
        a("s_cbranch_scc0 LWe")
        a("s_mov_b32 exec_hi, 0")
        red4(512)
        a("buffer_store_dwordx4 v[24:27], v17, s[40:43], s55 offen sc1")
        self.stamp(8)
        a.label("LWe")
        self.end()

    def g_role(self):
        a, wf = self.a, self.wf
        ms = self.o.get("msplit", 0)
        a("s_lshr_b32 s63, s7, 1")
        a(f"s_add_u32 s63, s63, {MRG}")
        self.g_index()
        a("s_cbranch_scc1 LO3")
        if ms < 4:
            a(f"s_cmp_lt_u32 s3, {ms}")
            a("s_cbranch_scc1 LGn")
            self.mr_issue(2, 52)
            a.label("LGn")
        a(f"s_add_u32 s7, s7, {GU}")
        a("s_mov_b32 s53, s26")
        for i in range(4): a(f"v_mov_b32 v{32+i}, -1")
        a("v_lshrrev_b32 v3, 3, v0")
        a(f"v_mul_u32_u24 v3, {HFS}, v3")
        a("v_and_b32 v4, 7, v0")
        a("v_lshl_add_u32 v3, v4, 4, v3")
        a(f"s_mul_i32 s26, s3, {8*HFS}")
        a("s_lshl_b32 s15, s53, 7")
        a("s_add_u32 s26, s26, s15")
        a(f"s_add_u32 s26, s26, {HF}")
        a("buffer_store_dwordx4 v[32:35], v3, s[40:43], s26 offen sc1")
        a(f"s_and_b32 s52, s53, {self.o.get('rot', 0)}")
        a("s_cmp_eq_u32 s52, 0")
        a("s_cselect_b64 s[44:45], s[28:29], s[30:31]")
        a("s_cselect_b64 s[48:49], s[30:31], s[28:29]")
        a(f"s_mov_b32 s46, {512*3584}")
        a(f"s_mov_b32 s50, {512*3584}")
        a("s_lshl_b32 s52, s52, 13")
        a("v_lshrrev_b32 v1, 2, v0")
        a("v_bfe_u32 v2, v0, 4, 1")
        a("v_lshlrev_b32 v2, 1, v2")
        a("v_and_b32 v3, 3, v0")
        a("v_xor_b32 v2, v2, v3")
        a("v_mul_u32_u24 v4, 3584, v1")
        a("v_lshl_add_u32 v2, v2, 4, v4")
        a(f"s_mul_i32 s8, s3, {128*3584}")
        a("s_lshl_b32 s15, s53, 6")
        a("s_add_u32 s8, s8, s15")
        def mat(m, lo=0, hi=8):
            L = self.lab("LGx")
            if lo == 0:
                a("s_add_u32 s58, s7, s52")
                a("s_mov_b32 s59, s8")
            a("s_mov_b32 m0, s58")
            a(f"s_add_u32 s58, s58, {1024*(hi-lo)}")
            a.label(L)
            gf = ["nt", "", "sc1", "sc0"][self.o.get("gflag%d" % m, 0)]
            a(f"buffer_load_dwordx4 v2, s[{44+4*m}:{47+4*m}], s59 offen {gf} lds")
            a("s_add_u32 m0, m0, 1024")
            a(f"s_add_u32 s59, s59, {16*3584}")
            if self.o.get("gcap", 0) and (lo or m): a(f"s_waitcnt vmcnt({self.o['gcap']})")
            a("s_cmp_lt_u32 m0, s58")
            a(f"s_cbranch_scc1 {L}")
            if hi == 8: a("s_xor_b32 s52, s52, 8192")
        pw = self.o.get("pwait", 1)
        if not pw:
            self.stamp(5)
            mat(0)
        a(f"s_waitcnt vmcnt({0 if pw else 8})")
        a("s_barrier")
        if ms < 4:
            a(f"s_cmp_lt_u32 s3, {ms}")
            a("s_cbranch_scc1 LGo")
            self.mr_compute(SC, 0 if pw else 8)
            a.label("LGo")
        a("s_cmp_eq_u32 s3, 0")
        a("s_cbranch_scc0 LGr")
        self.rdy_publish(8, "s2")
        if self.o.get("rwait", 1): a("s_waitcnt vmcnt(0)")
        a.label("LGr")
        if self.o.get("rwait", 1): a("s_barrier")
        if pw:
            self.delay("fdel")
            self.stamp(5)
            mat(0)
        mat(1)
        a("s_mov_b64 s[48:49], s[16:17]")
        a("s_mov_b32 s50, 2048")
        a("v_lshrrev_b32 v4, 5, v0")
        a("v_and_b32 v5, 31, v0")
        a("v_lshlrev_b32 v19, 3, v5")
        a("v_lshl_add_u32 v19, v4, 10, v19")
        a("s_lshl_b32 s15, s3, 8")
        a("buffer_load_dwordx2 v[24:25], v19, s[48:51], s15 offen")
        a("s_lshl_b32 s9, s53, 15")
        a("s_add_u32 s9, s9, s15")
        a("v_lshlrev_b32 v229, 4, v0")
        a(f"s_mov_b32 s27, {RDY+2048}")
        self.rdy_load()
        a("v_lshlrev_b32 v18, 1, v19")
        a("s_lshl_b32 s15, s3, 9")
        for k in range(3): a(f"s_add_u32 s{28+k}, s15, {HM+4096*k}")
        mloads = [f"buffer_load_dwordx4 v[{208+4*k}:{211+4*k}], v18, s[40:43], s{28+k} offen sc1" for k in range(3)]
        for l in mloads: a(l)
        for k in range(8): a(f"s_add_u32 s{16+k}, s15, {HD+4096*k}")
        self.voff256(6, 10, 8, 9)
        a("s_mov_b64 s[44:45], s[32:33]")
        a(f"s_mov_b32 s46, {1792*1024}")
        a("s_lshl_b32 s6, s3, 13")
        a(f"s_add_u32 s6, s6, {DWN}")
        a("s_mov_b32 m0, s6")
        a("s_add_u32 s13, s6, 8192")
        a.label("LGd2")
        for i in range(2):
            a(f"buffer_load_dwordx4 v{6+i}, s[44:47], s9 offen {wf} lds")
            a("s_add_u32 m0, m0, 1024")
            a("s_add_u32 s9, s9, 4096")
        a("s_cmp_lt_u32 m0, s13")
        a("s_cbranch_scc1 LGd2")
        a("v_bfe_u32 v8, v0, 4, 1")
        a("v_lshlrev_b32 v8, 5, v8")
        a("v_lshl_add_u32 v8, v1, 6, v8")
        a("v_lshl_add_u32 v8, v3, 3, v8")
        a("v_add_u32 v8, s7, v8")
        a("v_xor_b32 v9, 32, v8")
        self.traddr256(10, 8, "s6", 6, 7)
        a("v_mul_u32_u24 v20, 816, v4")
        a("v_lshrrev_b32 v6, 3, v5")
        a("v_lshl_add_u32 v20, v6, 6, v20")
        a("v_lshl_add_u32 v20, v3, 4, v20")
        a("v_bfe_u32 v6, v0, 2, 1")
        a("v_lshl_add_u32 v20, v6, 3, v20")
        a(f"s_add_u32 s15, s7, {AROW_O}")
        a("v_add_u32 v20, s15, v20")
        a("v_mul_u32_u24 v22, 816, v6")
        a("v_and_b32 v7, 48, v0")
        a("v_add3_u32 v22, v22, v7, s15")
        a("v_min_u32 v21, 2, v3")
        a("v_mul_u32_u24 v21, 272, v21")
        a("v_add_u32 v22, v22, v21")
        a("v_lshl_add_u32 v227, v6, 6, v7")
        a(f"v_mul_u32_u24 v228, {HFS}, v4")
        a("v_lshl_add_u32 v228, v5, 2, v228")
        a("v_lshlrev_b32 v2, 4, v0")
        a("s_lshl_b32 s15, s3, 10")
        a("v_add_u32 v23, s15, v2")
        a("s_lshl_b32 s15, s3, 2")
        a("v_add_u32 v226, s15, v7")
        a("v_and_b32 v231, 16, v0")
        a("v_lshlrev_b32 v231, 1, v231")
        a(f"v_mov_b32 v232, {f32(1e-5)}")
        self.guard(2100, fill=self.small_helpers)
        a("s_waitcnt vmcnt(8)")
        self.stamp(6)
        for m in range(2):
            for ks in range(4):
                for t in range(2): self.tr(64 + 32 * m + 8 * ks + 4 * t, 8 + t, 8192 * m + 2048 * ks, 1024)
        self.unpack(24, 28, 2)
        self.rdy_check()
        for k in range(3): a(f"v_xor_b32 v{211+4*k}, s14, v{210+4*k}")
        a("v_or3_b32 v211, v211, v215, v219")
        a("v_cmp_ne_u32 vcc, 0, v211")
        a("s_cbranch_vccz LGmo")
        self.poll(mloads, [(*self.TAGBAD, 210 + 4 * k) for k in range(3)], sleep=1)
        a.label("LGmo")
        self.stamp(4)
        def prepass():
            a("s_waitcnt lgkmcnt(0)")
            a("ds_write_b64 v20, v[212:213] offset:544")
            self.unpack(216, 196, 2)
            for i in range(4): a(f"v_add_f32 v{196+i}, 1.0, v{196+i}")
            a("v_cvt_pk_bf16_f32 v36, v196, v197")
            a("v_cvt_pk_bf16_f32 v37, v198, v199")
            a("ds_write_b64 v20, v[36:37] offset:272")
            self.unpack(208, 192, 2)
            self.unpack(36, 196, 2)
            for i in range(4): a(f"v_mul_f32 v{200+i}, v{28+i}, v{196+i}")
            for i in range(4): a(f"v_mul_f32 v{196+i}, v{192+i}, v{196+i}")
            a("s_waitcnt vmcnt(8)")
            for dt in range(8): self.tr(128 + 4 * dt, 10 + dt, 0, 4096)
            self.stamp(10)
        self.sum_poll([f"buffer_load_dwordx4 v[{160+4*k}:{163+4*k}], v18, s[40:43], s{16+k} offen sc1" for k in range(8)], 160, 56, mid=prepass)
        self.stamp(7)
        for k in range(2): a(f"v_pk_fma_f32 v[{200+2*k}:{201+2*k}], v[{56+2*k}:{57+2*k}], v[{196+2*k}:{197+2*k}], v[{200+2*k}:{201+2*k}]")
        a("v_cvt_pk_bf16_f32 v32, v200, v201")
        a("v_cvt_pk_bf16_f32 v33, v202, v203")
        a("ds_write_b64 v20, v[32:33]")
        for ks in range(4): a(f"ds_read_b128 v[{172+4*ks}:{175+4*ks}], v22 offset:{64*ks}")
        for k in range(2): a(f"v_pk_fma_f32 v[{28+2*k}:{29+2*k}], v[{56+2*k}:{57+2*k}], v[{192+2*k}:{193+2*k}], v[{28+2*k}:{29+2*k}]")
        a("v_pk_add_f32 v[190:191], v[28:29], v[30:31]")
        a("v_pk_mul_f32 v[28:29], v[28:29], v[28:29]")
        a("v_pk_fma_f32 v[28:29], v[30:31], v[30:31], v[28:29]")
        a("v_add_f32 v190, v190, v191")
        a("v_add_f32 v191, v28, v29")
        a("v_permlane16_swap_b32 v190, v191")
        def mg(m, ks):
            for t in range(2): self.mfma(40 + 8 * m + 4 * t, 172 + 4 * ks, 64 + 32 * m + 8 * ks + 4 * t, ks == 0)
        for ks in range(4):
            a(f"s_waitcnt lgkmcnt({3-ks})")
            mg(0, ks)
            if ks == 0: a("v_add_f32 v190, v190, v191")
        mg(1, 0)
        self.row_sum(190)
        mg(1, 1)
        a(f"ds_write_b32 v226, v190 offset:{STAT}")
        mg(1, 2)
        for r in range(3): a(f"v_permlane32_swap_b32 v{40+r}, v{44+r}")
        mg(1, 3)
        a(f"ds_write_b128 v23, v[40:43] offset:{REC}")
        for r in range(3): a(f"v_permlane32_swap_b32 v{48+r}, v{52+r}")
        a(f"ds_write_b128 v23, v[48:51] offset:{CSR}")
        a("s_waitcnt lgkmcnt(0)")
        a("s_barrier")
        self.stamp(8)
        a(f"ds_read_b128 v[24:27], v231 offset:{STAT}")
        a(f"ds_read_b128 v[28:31], v231 offset:{STAT+16}")
        for w in range(4): a(f"ds_read_b128 v[{64+4*w}:{67+4*w}], v2 offset:{REC+1024*w}")
        for w in range(4): a(f"ds_read_b128 v[{80+4*w}:{83+4*w}], v2 offset:{CSR+1024*w}")
        a("s_waitcnt lgkmcnt(8)")
        a("v_pk_add_f32 v[24:25], v[24:25], v[26:27]")
        a("v_pk_add_f32 v[28:29], v[28:29], v[30:31]")
        a("v_add_f32 v24, v24, v25")
        a("v_add_f32 v28, v28, v29")
        a(f"v_mul_f32 v24, {f32(1/512)}, v24")
        a(f"v_fmamk_f32 v28, v28, {f32(1/512)}, v232")
        a("v_fma_f32 v28, -v24, v24, v28")
        a("v_max_f32 v28, v28, v232")
        a("v_rsq_f32 v28, v28")
        for m in range(2):
            r = 64 + 16 * m
            a(f"s_waitcnt lgkmcnt({4-4*m})")
            a(f"v_pk_add_f32 v[{r}:{r+1}], v[{r}:{r+1}], v[{r+4}:{r+5}]")
            a(f"v_pk_add_f32 v[{r+8}:{r+9}], v[{r+8}:{r+9}], v[{r+12}:{r+13}]")
            a(f"v_add_f32 v{r+2}, v{r+2}, v{r+6}")
            a(f"v_add_f32 v{r+10}, v{r+10}, v{r+14}")
            a(f"v_pk_add_f32 v[{r}:{r+1}], v[{r}:{r+1}], v[{r+8}:{r+9}]")
            a(f"v_add_f32 v{r+2}, v{r+2}, v{r+10}")
            a(f"v_fma_f32 v{r}, -v24, v{r+1}, v{r}")
            a(f"v_fma_f32 v{r}, v{r}, v28, v{r+2}")
        a("v_max_f32 v64, 0, v64")
        a("v_mul_f32 v64, v64, v80")
        a("v_mov_b32_dpp v65, v64 quad_perm:[1,0,3,2] row_mask:0xf bank_mask:0xf")
        a("v_cvt_pk_bf16_f32 v64, v64, v65")
        for i, off in enumerate((0, 8, 128, 136)): a(f"ds_bpermute_b32 v{24+i}, v227, v64 offset:{off}")
        a("s_waitcnt lgkmcnt(0)")
        for dt in range(8): self.mfma(160 + 4 * dt, 24, 128 + 4 * dt, True)
        for k in range(4):
            a(f"v_permlane32_swap_b32 v{160+8*k}, v{164+8*k}")
            a(f"buffer_store_dword v{160+8*k}, v228, s[40:43], s26 offen sc1")
            if k < 3: a(f"s_add_u32 s26, s26, {2*HFS}")
        self.stamp(9)
        self.end()

    def small_helpers(self):
        a = self.a
        a.label("LO3")
        if 0 < self.o.get('msplit', 0) < 4:
            a(f"s_cmp_lt_u32 s3, {self.o.get('msplit', 0)}")
            a("s_cbranch_scc1 LO4")
            self.mr_issue(2, 52)
            self.mr_compute(SC, 0)
            a.label("LO4")
            a("s_barrier")
        a("s_movk_i32 s52, 1536")
        a("s_lshr_b32 s58, s7, 2")
        a(f"s_add_u32 s58, s58, {GA}")
        a("v_lshrrev_b32 v1, 4, v0")
        a("v_lshlrev_b32 v18, 4, v0")
        a(f"v_add_u32 v18, {RED}, v18")
        self.wo_setup()
        a("s_branch LWm")
        a.label("LGH2")
        a("s_setprio 3")
        self.tag()
        self.g_index()
        a("s_cbranch_scc1 LGH3")
        a("s_endpgm")
        a.label("LGH3")
        self.rdy_publish(8, "s2")
        a("s_endpgm")
        a.label("LWH2")
        a("s_setprio 3")
        for i in range(4): a(f"v_mov_b32 v{32+i}, -1")
        a("v_bfe_u32 v3, v0, 4, 1")
        a("v_lshlrev_b32 v3, 11, v3")
        a("v_and_b32 v4, 15, v0")
        a("v_lshl_add_u32 v3, v4, 4, v3")
        a("s_lshl_b32 s15, s4, 12")
        a("s_and_b32 s6, s5, 7")
        a("s_lshl_b32 s6, s6, 8")
        a("s_add_u32 s15, s15, s6")
        a(f"s_add_u32 s15, s15, {HD}")
        a("v_lshrrev_b32 v6, 4, v0")
        a("v_lshlrev_b32 v6, 11, v6")
        a("v_lshl_add_u32 v6, v4, 4, v6")
        a("s_lshl_b32 s8, s6, 6")
        a("s_lshl_b32 s9, s4, 8")
        a("s_add_u32 s8, s8, s9")
        a(f"s_add_u32 s8, s8, {HB}")
        a("s_add_u32 s9, s8, 8192")
        self.c_voff(4)
        a("s_lshr_b32 s6, s6, 1" if self.o.get("msplit", 0) else "s_movk_i32 s6, 896")
        a("s_mov_b32 s50, 2048")
        a("s_waitcnt lgkmcnt(0)")
        a("s_load_dword s14, s[40:41], 0")
        a("s_mov_b64 s[48:49], s[34:35]")
        a("buffer_load_dwordx2 v[28:29], v4, s[48:51], s6 offen")
        a("buffer_store_dwordx4 v[32:35], v6, s[40:43], s8 offen sc1")
        a("buffer_store_dwordx4 v[32:35], v6, s[40:43], s9 offen sc1")
        a("s_mov_b32 exec_hi, 0")
        a("buffer_store_dwordx4 v[32:35], v3, s[40:43], s15 offen sc1")
        a("s_mov_b64 exec, -1")
        self.silu_frag(SCW)
        a("s_waitcnt vmcnt(0) lgkmcnt(0)")
        self.tag()
        self.rdy_publish(8, "s2")
        a("v_lshlrev_b32 v2, 4, v0")
        a("s_lshl_b32 s8, s4, 12")
        a(f"s_add_u32 s8, s8, {HA}")
        a("v_and_b32 v3, 1, v0")
        a("v_mul_u32_u24 v3, 144, v3")
        a("v_bfe_u32 v4, v0, 1, 2")
        a("v_lshl_add_u32 v3, v4, 4, v3")
        a("v_lshrrev_b32 v4, 5, v0")
        a("v_lshl_add_u32 v3, v4, 6, v3")
        a("v_bfe_u32 v4, v0, 4, 1")
        a("v_lshl_add_u32 v3, v4, 3, v3")
        a(f"v_add_u32 v3, {HW}, v3")
        def aissue():
            for t in range(4): a(f"buffer_load_dwordx4 v[{40+4*t}:{43+4*t}], v2, s[40:43], s8 offen offset:{1024*t} sc1")
        def abody():
            for t in range(4):
                a(f"s_waitcnt vmcnt({3-t})")
                a(f"v_xor_b32 v{43+4*t}, s14, v{42+4*t}")
                self.unpack(40 + 4 * t, 64 + 4 * t, 2)
            a("v_or3_b32 v43, v43, v47, v51")
            a("v_or_b32 v43, v43, v55")
            a("v_cmp_ne_u32 s[10:11], 0, v43")
        self.spin(abody, alt=([8], ALOC, 8), issue=aissue, mid=self.silu_run)
        self.fold8()
        a("ds_write_b64 v3, v[40:41]")
        a("s_waitcnt lgkmcnt(0)")
        a("s_barrier")
        a("s_endpgm")
        a.label("LTH")
        a("s_setprio 3")
        for i in range(4): a(f"v_mov_b32 v{40+i}, -1")
        a("v_lshlrev_b32 v2, 4, v0")
        a("s_lshl_b32 s6, s4, 4")
        a("s_add_u32 s6, s6, s5")
        a("s_lshl_b32 s54, s6, 10")
        a(f"s_add_u32 s54, s54, {HC}")
        a("s_lshl_b32 s55, s6, 7")
        a(f"s_add_u32 s55, s55, {HL}")
        a("s_waitcnt lgkmcnt(0)")
        a("s_load_dword s14, s[40:41], 0")
        a("buffer_store_dwordx4 v[40:43], v2, s[40:43], s54 offen sc1")
        a(f"s_add_u32 s54, s54, {LOC}")
        a("buffer_store_dwordx4 v[40:43], v2, s[40:43], s54 offen sc1")
        a("s_mov_b64 exec, 0xff")
        a("buffer_store_dwordx4 v[40:43], v2, s[40:43], s55 offen sc1")
        a(f"s_add_u32 s55, s55, {LOC}")
        a("buffer_store_dwordx4 v[40:43], v2, s[40:43], s55 offen sc1")
        a("s_mov_b64 exec, -1")
        a("s_waitcnt vmcnt(0) lgkmcnt(0)")
        self.tag()
        self.rdy_publish(44, "s6")
        a("buffer_load_dwordx4 v[232:235], v2, s[40:43], s54 offen sc1")
        a("s_mov_b64 exec, 1")
        a("buffer_load_dword v236, v2, s[40:43], s55 offen sc1")
        a("s_endpgm")

    def m_role(self):
        a = self.a
        a.label("LM")
        if self.o.get("nom"): self.end()
        ms = self.o.get("msplit", 0)
        if ms == 0: a("s_mov_b32 s61, 7")
        if 0 < ms < 4:
            a(f"s_cmp_ge_u32 s3, {ms}")
            a("s_cbranch_scc1 LMr")
        if not self.o.get("mre", 0): self.mr_issue(17, 44)
        self.mr_compute(SCW, 0)
        a.label("LMr")
        a("s_lshl_b32 s6, s4, 2")
        a("s_add_u32 s6, s6, s3")
        a("s_lshl_b32 s8, s6, 12")
        a(f"s_add_u32 s8, s8, {HP}")
        a("s_lshr_b32 s9, s6, 3")
        a("s_lshl_b32 s9, s9, 12")
        a("s_and_b32 s6, s6, 7")
        a("s_lshl_b32 s6, s6, 8")
        a("s_add_u32 s9, s9, s6")
        a(f"s_add_u32 s9, s9, {HM}")
        a("v_lshlrev_b32 v2, 4, v0")
        a("v_and_b32 v3, 1, v0")
        a("v_lshlrev_b32 v3, 11, v3")
        a("v_bfe_u32 v4, v0, 1, 2")
        a("v_lshl_add_u32 v3, v4, 4, v3")
        a("v_and_b32 v4, 48, v0")
        a("v_lshl_add_u32 v3, v4, 2, v3")
        self.poll([f"buffer_load_dwordx4 v[{40+4*t}:{43+4*t}], v2, s[40:43], s8 offen offset:{1024*t} sc1" for t in range(4)],
                  [(*self.TAGBAD, 42 + 4 * t) for t in range(4)], sleep=1,
                  after=lambda t: self.unpack(40 + 4 * t, 64 + 4 * t, 2))
        self.stamp(6)
        self.fold8()
        self.exec16(0xff)
        a("buffer_store_dwordx4 v[40:43], v3, s[40:43], s9 offen sc1")
        self.stamp(7)
        self.end()

    def t_prefetch(self):
        a = self.a
        a.label("LTpx")
        a("s_mov_b32 s95, 0x20000")
        a("s_bitcmp1_b32 s3, 0")
        a("s_cbranch_scc1 LTpd")
        a("s_cmp_eq_u32 s3, 0")
        a("s_cselect_b64 s[92:93], s[28:29], s[30:31]")
        a(f"s_mov_b32 s94, {512*3584}")
        a(f"s_mul_i32 s60, s5, {32*3584}")
        a("s_mul_i32 s61, s4, 448")
        a("s_add_u32 s60, s60, s61")
        a("s_add_u32 s61, s60, 256")
        a("v_lshrrev_b32 v236, 1, v0")
        a("v_mul_u32_u24 v236, 3584, v236")
        a("v_and_b32 v235, 1, v0")
        a("v_lshl_add_u32 v236, v235, 7, v236")
        a("s_branch LTpr")
        a.label("LTpd")
        a("s_mov_b64 s[92:93], s[32:33]")
        a(f"s_mov_b32 s94, {1792*1024}")
        a(f"s_mul_i32 s60, s4, {7*32768}")
        a("s_lshl_b32 s61, s5, 1")
        a("s_lshr_b32 s13, s3, 1")
        a("s_add_u32 s61, s61, s13")
        a("s_mul_i32 s61, s61, 7168")
        a("s_add_u32 s60, s60, s61")
        a("s_mov_b32 s61, 0x7fffffff")
        a("v_min_u32 v236, 55, v0")
        a("v_lshlrev_b32 v236, 7, v236")
        a("s_branch LTpr")

    def fold8(self):
        a = self.a
        for i in range(8): a(f"v_permlane32_swap_b32 v{64+i}, v{72+i}")
        for k in range(4): a(f"v_pk_add_f32 v[{64+2*k}:{65+2*k}], v[{64+2*k}:{65+2*k}], v[{72+2*k}:{73+2*k}]")
        for i in range(4): a(f"v_permlane16_swap_b32 v{64+i}, v{68+i}")
        for k in range(2): a(f"v_pk_add_f32 v[{64+2*k}:{65+2*k}], v[{64+2*k}:{65+2*k}], v[{68+2*k}:{69+2*k}]")
        for i in range(4): a(f"v_add_f32_dpp v{64+i}, v{64+i}, v{64+i} row_ror:8 row_mask:0xf bank_mask:0xf")
        a("v_cvt_pk_bf16_f32 v40, v64, v65")
        a("v_cvt_pk_bf16_f32 v41, v66, v67")

    def red8(self, r):
        a = self.a
        for i in range(4): a(f"v_add_f32_dpp v{r+i}, v{r+i}, v{r+i} row_ror:8 row_mask:0xf bank_mask:0xf")
        for sw in ("16", "32"):
            for i in range(4): a(f"v_mov_b32 v{60+i}, v{r+i}")
            for i in range(4): a(f"v_permlane{sw}_swap_b32 v{r+i}, v{60+i}")
            for i in range(4): a(f"v_add_f32 v{r+i}, v{r+i}, v{60+i}")

    def build(self):
        self.prologue()
        self.ww_early()
        if self.o.get("tnear"): self.tw_early()
        self.g_early()
        self.g_role()
        self.m_role()
        self.guard(3300, fall=False)
        self.ww_main()
        self.t_prefetch()
        self.guard(3300, fall=False)
        if not self.o.get("tnear"): self.tw_early()
        self.tw_issue()
        self.tw_main()
        if self.diag:
            self.a.label("Ldump")
            self.dump_stamps()
        self.a.label("Lexit")
        self.a("s_endpgm")
        self.a.label("Lcode_end")
        body = self.a.finish()
        head = open("cdna_kernels/" + NAME + ".s.ref").read().split("; Override launch geometry")[0]
        return head + f"""; Generated by gen/gen_kernel.py (hand-written generator): one persistent launch, 256 workgroups x 5 waves.
; @launch grid=(256,1,1) block=(320,1,1) lds={LDS_BYTES}
.amdgcn_target "amdgcn-amd-amdhsa--gfx950"
.text
.globl {KNAME}
.p2align 12
.type {KNAME},@function
{KNAME}:
{body}
.section .rodata,"a"
.p2align 6
.amdhsa_kernel {KNAME}
  .amdhsa_next_free_vgpr 240
  .amdhsa_next_free_sgpr 102
  .amdhsa_accum_offset 240
  .amdhsa_group_segment_fixed_size 0
  .amdhsa_kernarg_size 112
  .amdhsa_user_sgpr_count 2
  .amdhsa_user_sgpr_kernarg_segment_ptr 1
  .amdhsa_system_sgpr_workgroup_id_x 1
.end_amdhsa_kernel
"""

if __name__ == "__main__":
    import argparse
    ap = argparse.ArgumentParser()
    ap.add_argument("-o", default="cdna_kernels/" + NAME + ".s")
    ap.add_argument("--diag", action="store_true")
    ap.add_argument("--wflag", default="nt")
    ap.add_argument("--opt", action="append", default=[])
    args = ap.parse_args()
    opts = {}
    for o in args.opt:
        k, _, v = o.partition("=")
        opts[k] = int(v) if v else 1
    open(args.o, "w").write(Gen(args.diag, args.wflag, opts).build())
    print("wrote", args.o)
```

```python
import sys, struct
from asmlib import Asm

NAME = "adaLN_cond__sliding_block_cached__glu_gated_reglu__decode"
KNAME = NAME + "_kernel"

def f32(x): return "0x%08x" % struct.unpack("<I", struct.pack("<f", x))[0]

EPOCH = 0x0
RDY = 0x1000
HM = 0x4000
HA = 0x8000
ALOC = 0x8000
HB = 0x140000
HD = 0x20000
HL = HD + 0x8000
HC = HL + 0x4000
LOC = 0x24000
HF = HC + 0x20000 + LOC
HFS = 7168
HP = 0xD0000
STAMP = 0x100000
WS_SIZE = 0x200000
LDS_BYTES = 151552
KB, VB, PB, MX, LS, QB = 0, 65536, 131072, 133120, 133248, 133632
WQ, WO, GA, RED, SCW, HW = 0, 65536, 131072, 147456, 149504, 150016
W1, GU, DWN, MRG, SC, LNS = 0, 16384, 81920, 114688, 147456, 148480
REC, CSR, STAT = W1, W1 + 4096, W1 + 8192
AROW_O = 4096

LOG2E = 1.4426950408889634
CSC = (128 ** -0.5) * LOG2E
SPIN = 100000
import os
if os.environ.get('SPIN'): SPIN = int(os.environ['SPIN'])
MFMA = "v_mfma_f32_16x16x32_bf16"

class Gen:
    POISON = ("v_cmp_eq_u32", "-1")
    TAGBAD = ("v_cmp_ne_u32", "s14")

    def __init__(self, diag=False, wflag="nt", opts=None):
        self.a = Asm()
        self.diag = diag
        self.wf = wflag
        self.o = opts or {}
        self.nlab = 0
    def lab(self, p="L"):
        self.nlab += 1
        return f"{p}{self.nlab}"
    def dstamp(self, k):
        if self.o.get("gdbg"): self.a(f"s_memrealtime s[{64+2*k}:{65+2*k}]")
    def stamp(self, k):
        if self.o.get("gdbg") and getattr(self, "mute", False) and k in (4, 6, 7, 8): return
        if self.diag or self.o.get("amp") == k: self.a(f"s_memrealtime s[{64+2*k}:{65+2*k}]")
    def dump_max(self):
        a = self.a
        a("s_load_dwordx2 s[44:45], s[0:1], 96")
        a("s_mov_b32 s46, 256")
        a("s_mov_b32 s47, 0x20000")
        a("s_mov_b64 exec, 1")
        a("v_mov_b32 v1, 0")
        a("s_waitcnt lgkmcnt(0)")
        def put(slot, reg):
            a(f"v_mov_b32 v4, {reg}")
            a(f"buffer_atomic_umax v4, v1, s[44:47], 0 offen offset:{4*slot} sc1")
        a("s_not_b32 s60, s64")
        put(0, "s60"); put(1, "s64")
        a("s_lshr_b32 s5, s2, 3")
        a("s_cmp_ge_u32 s5, 24")
        a("s_cbranch_scc1 LdG")
        a("s_cmp_ge_u32 s5, 16")
        a("s_cbranch_scc1 LdW")
        for slot, k in ((6, 3), (7, 9), (8, 5), (15, 8)): put(slot, f"s{64+2*k}")
        a("s_endpgm")
        a.label("LdW")
        for slot, k in ((3, 2), (4, 3), (5, 4), (9, 6), (10, 7), (11, 8)): put(slot, f"s{64+2*k}")
        a("s_endpgm")
        a.label("LdG")
        for slot, k in ((2, 3), (12, 6), (13, 7), (14, 9)): put(slot, f"s{64+2*k}")
    def dump_gamp(self):
        a = self.a
        k, lo, hi = self.o["gamp"] // 10000, self.o["gamp"] // 100 % 100, self.o["gamp"] % 100
        a("s_waitcnt lgkmcnt(0)")
        a("s_lshr_b32 s5, s2, 3")
        a(f"s_sub_u32 s60, s5, {lo}")
        a(f"s_cmp_lt_u32 s60, {hi-lo}")
        a(f"s_cselect_b32 s61, s{64+2*k}, 0")
        a("s_cmp_eq_u32 s61, 0")
        a("s_cselect_b32 s61, s64, s61")
        a("s_lshl_b32 s60, s2, 2")
        a("s_add_u32 s60, s60, s3")
        a("s_lshl_b32 s60, s60, 2")
        a(f"s_add_u32 s60, s60, {STAMP}")
        a("s_mov_b64 exec, 1")
        a("v_mov_b32 v1, 0")
        a("v_mov_b32 v4, s64")
        a("v_mov_b32 v5, s61")
        a("buffer_store_dword v4, v1, s[40:43], s60 offen sc1")
        a("s_add_u32 s60, s60, 4096")
        a("buffer_store_dword v5, v1, s[40:43], s60 offen sc1")
        a("s_mov_b64 exec, -1")
        a("s_cmp_eq_u32 s2, 0")
        a("s_cbranch_scc0 Lexit")
        a("s_cmp_eq_u32 s3, 1")
        a("s_cbranch_scc0 Lexit")
        def until(reg):
            L = self.lab("Lu")
            a.label(L)
            a("s_memrealtime s[98:99]")
            a("s_waitcnt lgkmcnt(0)")
            a("s_sub_u32 s98, s98, s64")
            a(f"s_cmp_lt_u32 s98, {reg}")
            a(f"s_cbranch_scc1 {L}")
        until(3000)
        a("v_lshlrev_b32 v2, 4, v0")
        a(f"s_mov_b32 s60, {STAMP}")
        a(f"s_mov_b32 s61, {STAMP+4096}")
        for i in range(4):
            a(f"buffer_load_dwordx4 v[{8+4*i}:{11+4*i}], v2, s[40:43], s60 offen offset:{1024*i} sc1")
            a(f"buffer_load_dwordx4 v[{24+4*i}:{27+4*i}], v2, s[40:43], s61 offen offset:{1024*i} sc1")
        a("s_waitcnt vmcnt(0)")
        for i in range(32): a(f"v_subrev_u32 v{8+i}, s64, v{8+i}")
        for i in range(1, 16):
            a(f"v_min_i32 v8, v8, v{8+i}")
            a(f"v_max_i32 v24, v24, v{24+i}")
        a("s_mov_b32 s60, 0")
        a("s_mov_b32 s61, 0")
        for l in range(64):
            a(f"v_readlane_b32 s62, v8, {l}")
            a(f"v_readlane_b32 s63, v24, {l}")
            a("s_min_i32 s60, s60, s62")
            a("s_max_i32 s61, s61, s63")
        a("s_sub_u32 s61, s61, s60")
        a("s_mul_i32 s61, s61, 40")
        a("s_add_u32 s100, s61, 4000")
        until("s100")
    def dump_stamps(self):
        if not self.diag: return
        if self.o.get("gamp") is not None: return self.dump_gamp()
        if self.o.get("dmax"): return self.dump_max()
        a = self.a
        a("s_waitcnt lgkmcnt(0)")
        a("s_mov_b64 exec, 1")
        a("s_mul_i32 s60, s2, 5")
        a("s_add_u32 s60, s60, s3")
        a("s_lshl_b32 s60, s60, 6")
        a(f"s_add_u32 s60, s60, {STAMP}")
        a("v_mov_b32 v1, 0")
        for q in range(3):
            for i in range(4):
                a(f"v_mov_b32 v{4+i}, s{64+2*(4*q+i)}")
            a(f"buffer_store_dwordx4 v[4:7], v1, s[40:43], s60 offen offset:{16*q}")
            a("s_nop 1")
    def end(self, helper=False):
        self.a("s_branch Ldump" if self.diag and (not helper or self.o.get("hdump")) else "s_endpgm")
    def delay(self, key):
        n = self.o.get(key, 0)
        if not n: return
        a = self.a
        L = self.lab("Ld")
        a.label(L)
        a("s_memrealtime s[98:99]")
        a("s_waitcnt lgkmcnt(0)")
        a("s_sub_u32 s98, s98, s64")
        a(f"s_cmp_lt_u32 s98, {n}")
        a(f"s_cbranch_scc1 {L}")
    def guard(self, n, fall=True, fill=None):
        L = self.lab("Lg")
        if fall: self.a(f"s_branch {L}")
        if fill: fill()
        self.a(f".p2align 12, , {n}")
        self.a.label(L)
    def srd(self, d, p, size):
        a = self.a
        a(f"s_mov_b64 s[{d}:{d+1}], s[{p}:{p+1}]")
        a(f"s_mov_b32 s{d+2}, {size}")
        a(f"s_mov_b32 s{d+3}, 0x20000")
    def tag(self):
        self.a("s_mul_i32 s14, s14, 0x9E3779B1")
        self.a("s_add_u32 s14, s14, 0x7F4A7C15")
    def exec16(self, m):
        self.a(f"s_mov_b32 exec_lo, {(m << 16 | m):#x}")
        self.a(f"s_mov_b32 exec_hi, {(m << 16 | m):#x}")
    def poll(self, loads, checks, sleep=0, after=None):
        a = self.a
        L = self.lab("Lp"); D = self.lab("Lpd")
        n = len(loads)
        a(f"s_mov_b32 s12, {SPIN}")
        a.label(L)
        for l in loads: a(l)
        for i, (op, opd, r) in enumerate(checks):
            a(f"s_waitcnt vmcnt({n-1-i})")
            if i == 0:
                a(f"{op} s[10:11], {opd}, v{r}")
            else:
                a(f"{op} vcc, {opd}, v{r}")
                a("s_or_b64 s[10:11], s[10:11], vcc")
            if after: after(i)
        a("s_cmp_eq_u64 s[10:11], 0")
        a(f"s_cbranch_scc1 {D}")
        if sleep: a(f"s_sleep {sleep}")
        a("s_sub_u32 s12, s12, 1")
        a(f"s_cbranch_scc0 {L}")
        a.label(D)
    def spin(self, body, sleep=0, alt=None, issue=None, mid=None):
        a = self.a
        L = self.lab("Lp"); D = self.lab("Lpd")
        n = SPIN
        if alt:
            sregs, delta, every = alt
            for i, r in enumerate(sregs):
                a(f"s_mov_b32 s{96+2*i}, s{r}")
                a(f"s_add_u32 s{97+2*i}, s{r}, {delta}")
                a(f"s_mov_b32 s{r}, s{97+2*i}")
            n = SPIN * 4 | (every - 1)
        a(f"s_mov_b32 s12, {n}")
        if issue:
            E = self.lab("Lpe")
            issue(); mid()
            a(f"s_branch {E}")
        a.label(L)
        if issue:
            issue()
            a.label(E)
        body()
        a("s_cmp_eq_u64 s[10:11], 0")
        a(f"s_cbranch_scc1 {D}")
        if sleep: a(f"s_sleep {sleep}")
        if alt:
            a(f"s_and_b32 s13, s12, {every-1}")
            for i, r in enumerate(sregs): a(f"s_cselect_b32 s{r}, s{97+2*i}, s{96+2*i}")
        a("s_sub_u32 s12, s12, 1")
        a(f"s_cbranch_scc0 {L}")
        a.label(D)
    def ssent(self, soff, offs, cnt=13):
        a = self.a
        L = self.lab("Ls"); D = self.lab("Lsd")
        a(f"s_mov_b32 s{cnt}, {SPIN}")
        a.label(L)
        for k, o in enumerate(offs): a(f"s_load_dword s{88+k}, s[40:41], s{soff} offset:{o} glc")
        a("s_waitcnt lgkmcnt(0)")
        for k in range(len(offs)): a(f"s_xor_b32 s{88+k}, s{88+k}, s14")
        for k in range(1, len(offs)): a(f"s_or_b32 s88, s88, s{88+k}")
        a(f"s_cbranch_scc0 {D}")
        a(f"s_sub_u32 s{cnt}, s{cnt}, 1")
        a(f"s_cbranch_scc0 {L}")
        a.label(D)
    def sum_poll(self, loads, base, acc, mid=None):
        a = self.a
        n = len(loads)
        def issue():
            for l in loads: a(l)
        def body():
            if not mid: issue()
            for i in range(1, n):
                a(f"s_waitcnt vmcnt({n-1-i})")
                src = base if i == 1 else acc
                for k in range(2): a(f"v_pk_add_f32 v[{acc+2*k}:{acc+1+2*k}], v[{src+2*k}:{src+1+2*k}], v[{base+4*i+2*k}:{base+1+4*i+2*k}]")
            a(f"v_cmp_u_f32 s[10:11], v{acc}, v{acc+1}")
            a(f"v_cmp_u_f32 vcc, v{acc+2}, v{acc+3}")
            a("s_or_b64 s[10:11], s[10:11], vcc")
        self.spin(body, issue=issue if mid else None, mid=mid)
    def silu(self, regs, tmp):
        a = self.a
        for i, r in enumerate(regs): a(f"v_mul_f32 v{tmp+i}, {f32(-LOG2E)}, v{r}")
        for i, r in enumerate(regs): a(f"v_exp_f32 v{tmp+i}, v{tmp+i}")
        for i, r in enumerate(regs): a(f"v_add_f32 v{tmp+i}, 1.0, v{tmp+i}")
        for i, r in enumerate(regs): a(f"v_rcp_f32 v{tmp+i}, v{tmp+i}")
        for i, r in enumerate(regs): a(f"v_mul_f32 v{r}, v{r}, v{tmp+i}")
    def unpack(self, src, dst, n):
        for i in range(n):
            self.a(f"v_lshlrev_b32 v{dst+2*i}, 16, v{src+i}")
            self.a(f"v_and_b32 v{dst+2*i+1}, 0xffff0000, v{src+i}")
    def row_sum(self, r):
        for m in ("quad_perm:[1,0,3,2]", "quad_perm:[2,3,0,1]", "row_half_mirror", "row_mirror"):
            self.a(f"v_add_f32_dpp v{r}, v{r}, v{r} {m} row_mask:0xf bank_mask:0xf")
    def silu_frag(self, base):
        a = self.a
        a("v_bfe_u32 v10, v0, 4, 1")
        a("v_mul_u32_u24 v5, 144, v10")
        a("v_bfe_u32 v4, v0, 3, 1")
        a("v_lshl_add_u32 v5, v4, 6, v5")
        a("v_and_b32 v4, 3, v0")
        a("v_lshl_add_u32 v5, v4, 4, v5")
        a("v_bfe_u32 v4, v0, 2, 1")
        a("v_lshl_add_u32 v5, v4, 3, v5")
        a(f"v_add_u32 v5, {base}, v5")
    def silu_run(self):
        a = self.a
        self.unpack(28, 16, 2)
        self.silu([16, 17, 18, 19], 24)
        a("v_cvt_pk_bf16_f32 v28, v16, v17")
        a("v_cvt_pk_bf16_f32 v29, v18, v19")
        a("ds_write_b64 v5, v[28:29]")
    def c_voff(self, d):
        a = self.a
        a(f"v_bfe_u32 v{d}, v0, 4, 1")
        a(f"v_lshlrev_b32 v{d}, 10, v{d}")
        a("v_and_b32 v11, 15, v0")
        a(f"v_lshl_add_u32 v{d}, v11, 3, v{d}")
    def mfma(self, d, A, B, first):
        c = "0" if first else f"v[{d}:{d+3}]"
        self.a(f"{MFMA} v[{d}:{d+3}], v[{A}:{A+3}], v[{B}:{B+3}], {c}")
    def tr(self, r, va, off, second):
        self.a(f"ds_read_b64_tr_b16 v[{r}:{r+1}], v{va} offset:{off}")
        self.a(f"ds_read_b64_tr_b16 v[{r+2}:{r+3}], v{va} offset:{off+second}")
    def voff256(self, d, stride_sh, t0, t1):
        a = self.a
        a(f"v_lshrrev_b32 v{t0}, 4, v0")
        a(f"v_and_b32 v{t1}, 15, v0")
        a(f"v_lshlrev_b32 v{d}, 1, v{t0}")
        a(f"v_xor_b32 v{d}, v{t1}, v{d}")
        a(f"v_lshlrev_b32 v{d}, 4, v{d}")
        a(f"v_lshl_add_u32 v{d}, v{t0}, {stride_sh}, v{d}")
        a(f"v_xor_b32 v{d+1}, 0x80, v{d}")
    def voff128(self, d, stride, t0, t1):
        a = self.a
        a(f"v_lshrrev_b32 v{t0}, 3, v0")
        a(f"v_and_b32 v{d}, 6, v{t0}")
        a(f"v_and_b32 v{t1}, 7, v0")
        a(f"v_xor_b32 v{d}, v{d}, v{t1}")
        a(f"v_mul_u32_u24 v{t0}, {stride}, v{t0}")
        a(f"v_lshl_add_u32 v{d}, v{d}, 4, v{t0}")
    def traddr256(self, d, n, base, t0, t1, first=None):
        a = self.a
        a(f"v_lshrrev_b32 v{t0}, 2, v0")
        a(f"v_and_b32 v{d}, 7, v{t0}")
        a(f"v_lshlrev_b32 v{d}, 5, v{d}")
        a(f"v_lshl_add_u32 v{d}, v{t0}, 8, v{d}")
        a(f"v_and_b32 v{t1}, 3, v0")
        a(f"v_lshl_add_u32 v{d}, v{t1}, 3, v{d}")
        if first: a(f"v_xor_b32 v{d}, {first}, v{d}")
        a(f"v_add_u32 v{d}, {base}, v{d}")
        for i in range(1, n): a(f"v_xor_b32 v{d+i}, {32*i}, v{d}")
    def traddr128(self, d, base, t0, t1, grp_sh=10, n=4):
        a = self.a
        a(f"v_bfe_u32 v{t0}, v0, 2, 3")
        a(f"v_bfe_u32 v{d}, v0, 3, 2")
        a(f"v_lshlrev_b32 v{d}, 5, v{d}")
        a(f"v_lshl_add_u32 v{d}, v{t0}, 7, v{d}")
        a(f"v_lshrrev_b32 v{t0}, 5, v0")
        a(f"v_lshl_add_u32 v{d}, v{t0}, {grp_sh}, v{d}")
        a(f"v_and_b32 v{t1}, 3, v0")
        a(f"v_lshl_add_u32 v{d}, v{t1}, 3, v{d}")
        if base is not None: a(f"v_add_u32 v{d}, {base}, v{d}")
        for i in range(1, n): a(f"v_xor_b32 v{d+i}, {32*i}, v{d}")

    def prologue(self):
        a = self.a
        a("s_cmp_ge_u32 s2, 256")
        a("s_cbranch_scc1 Lexit")
        a("s_load_dwordx16 s[16:31], s[0:1], 0")
        a("s_load_dwordx8 s[32:39], s[0:1], 64")
        a("s_load_dwordx2 s[40:41], s[0:1], 104")
        if self.diag:
            for k in range(1, 12): a(f"s_mov_b32 s{64+2*k}, 0")
        self.stamp(0)
        if self.o.get("padto"): a("s_memrealtime s[96:97]")
        a("s_getpc_b64 s[56:57]")
        a.label("Lpc0")
        a("s_lshr_b32 s5, s2, 3")
        a("v_lshrrev_b32 v1, 6, v0")
        a("s_mul_i32 s6, s5, 640")
        a("v_lshl_add_u32 v2, v1, 7, s6")
        a("v_min_u32 v2, Lcode_end-Lpc0-4, v2")
        a("global_load_dword v239, v2, s[56:57]")
        a("v_and_b32 v0, 63, v0")
        a("s_and_b32 s4, s2, 7")
        a("v_readfirstlane_b32 s3, v1")
        a(f"s_mov_b32 s42, {WS_SIZE}")
        a("s_mov_b32 s43, 0x20000")
        a("s_mov_b32 s47, 0x20000")
        a("s_mov_b32 s51, 0x20000")
        a("s_lshl_b32 s7, s3, 14")
        a("s_cmp_ge_u32 s5, 24")
        a("s_cbranch_scc1 LG0")
        a("s_cmp_eq_u32 s3, 4")
        a("s_cbranch_scc1 LH0")
        self.voff256(6, 8, 1, 8)
        a("s_mov_b32 m0, s7")
        a("s_cmp_ge_u32 s5, 16")
        a("s_cbranch_scc0 LT0")

    def tw_early(self):
        a, wf = self.a, self.wf
        a.label("LT0")
        a("s_and_b32 s6, s5, 8")
        a("s_add_u32 s6, s6, s4")
        a("s_lshl_b32 s6, s6, 21")
        a("s_and_b32 s8, s5, 7")
        a("s_lshl_b32 s8, s8, 16")
        a("s_add_u32 s6, s6, s8")
        a("s_add_u32 s6, s6, s7")
        a(f"s_add_u32 s6, s6, {6144*256}")
        a("v_xor_b32 v2, v8, v1")
        a("v_lshlrev_b32 v2, 4, v2")
        a("v_lshl_add_u32 v2, v1, 8, v2")
        a("v_xor_b32 v3, 64, v2")
        a("v_xor_b32 v4, 0x80, v2")
        a("v_xor_b32 v5, 0xc0, v2")
        a("s_mov_b32 s8, s6")
        a("s_add_u32 s9, s6, 16384")
        a("s_mov_b32 s46, 0x2000000")
        a("s_mov_b32 s50, 0x2000000")
        a("s_add_u32 s10, s6, 8192")
        a("s_waitcnt lgkmcnt(0)")
        a("s_mov_b64 s[44:45], s[18:19]")
        a("s_mov_b64 s[48:49], s[20:21]")
        a("s_load_dword s14, s[40:41], 0")
        cap = self.o.get("cap", 8)
        for half in range(2):
            L = self.lab("LTWk")
            a.label(L)
            for i in range(4):
                a(f"buffer_load_dwordx4 v{2+i}, s[44:47], s8 offen offset:{1024*i} {wf} lds")
                if cap and half: a(f"s_waitcnt vmcnt({cap})")
            a("s_add_u32 m0, m0, 4096")
            a("s_add_u32 s8, s8, 4096")
            a(f"s_cmp_lt_u32 s8, s{10-half}")
            a(f"s_cbranch_scc1 {L}")
            if half == 0:
                a("s_branch LTpx")
                a.label("LTpr")
        self.stamp(10)
        if self.o.get("tnear"): a("s_branch LTW1")

    def tw_issue(self):
        a, wf = self.a, self.wf
        cap = self.o.get("vcap", 8)
        if self.o.get("tnear"):
            a.label("LTHp")
            a("s_branch LTH")
            a.label("LTW1")
        a("s_lshl_b32 s55, s4, 14")
        a("s_and_b32 s13, s5, 8")
        a("s_lshl_b32 s13, s13, 10")
        a("s_add_u32 s55, s55, s13")
        a("s_lshl_b32 s13, s3, 11")
        a("s_add_u32 s55, s55, s13")
        a(f"s_add_u32 s55, s55, {HB}")
        a("v_lshlrev_b32 v21, 4, v0")
        a("v_mov_b32 v229, v21")
        a("s_lshl_b32 s27, s4, 7")
        a(f"s_add_u32 s27, s27, {RDY+2048}")
        a(f"s_add_u32 m0, s7, {VB}")
        a("s_mov_b32 s8, s6")
        a("s_waitcnt lgkmcnt(0)")
        self.tag()
        for g in range(4):
            if g == 2:
                a("s_mov_b64 exec, 0xff")
                self.rdy_load()
                a("s_mov_b64 exec, -1")
            for i in range(4):
                a(f"buffer_load_dwordx4 v{6+(i&1)}, s[48:51], s8 offen offset:{1024*i} {wf} lds")
                if cap: a(f"s_waitcnt vmcnt({cap})")
            if g < 3:
                a("s_add_u32 m0, m0, 4096")
                a("s_add_u32 s8, s8, 4096")
        a("s_waitcnt vmcnt(8)")
        a("s_mov_b64 exec, 0xff")
        self.rdy_check()
        a("s_mov_b64 exec, -1")
        self.qfetch()

    def qfetch(self):
        for i in range(2): self.a(f"buffer_load_dwordx4 v[{192+4*i}:{195+4*i}], v21, s[40:43], s55 offen offset:{1024*i} sc1")

    def ww_early(self):
        a, wf = self.a, self.wf
        a.label("LW0")
        if self.o.get("now"): a("s_endpgm")
        a("s_lshl_b32 s9, s4, 19")
        a("s_and_b32 s52, s5, 7")
        a("s_lshl_b32 s15, s52, 10")
        a("s_add_u32 s9, s9, s15")
        a("s_lshl_b32 s15, s3, 8")
        a("s_add_u32 s9, s9, s15")
        a("v_mul_u32_u24 v2, 0x1f00, v1")
        a("v_add_u32 v6, v6, v2")
        a("v_add_u32 v7, v7, v2")
        a("s_add_u32 s13, s7, 16384")
        a(f"s_mov_b32 s46, {512*8192}")
        a("s_waitcnt lgkmcnt(0)")
        a("s_mov_b64 s[44:45], s[22:23]")
        if self.o.get("pf3", 0):
            a("s_cmp_eq_u32 s4, 3")
            a("s_cbranch_scc0 LWp")
            a("s_mov_b64 s[48:49], s[36:37]")
            a(f"s_mov_b32 s50, {512*6144}")
            a("s_lshl_b32 s15, s52, 2")
            a("s_add_u32 s15, s15, s3")
            a(f"s_mul_i32 s15, s15, {16*6144}")
            a("v_mul_u32_u24 v3, 6144, v8")
            a("s_mov_b64 exec, 0xffff")
            a(f"buffer_load_dword v238, v3, s[48:51], s15 offen offset:{1024+384}")
            a("s_mov_b64 exec, -1")
            a.label("LWp")
        a("s_load_dword s14, s[40:41], 0")
        a.label("LWq")
        for i in range(2):
            a(f"buffer_load_dwordx4 v{6+i}, s[44:47], s9 offen {wf} lds")
            a("s_add_u32 m0, m0, 1024")
            a("s_add_u32 s9, s9, 32768")
        if self.o.get("qcap", 8): a(f"s_waitcnt vmcnt({self.o.get('qcap', 8)})")
        a("s_cmp_lt_u32 m0, s13")
        a("s_cbranch_scc1 LWq")
        a("s_branch LW2")
        a.label("LH0")
        a("s_cmp_ge_u32 s5, 16")
        a("s_cbranch_scc0 " + ("LTHp" if self.o.get("tnear") else "LTH"))
        a("s_branch LWHp")

    def g_early(self):
        a, wf = self.a, self.wf
        a.label("LG0")
        if self.o.get("nog"): a("s_endpgm")
        a("s_sub_u32 s5, s5, 24")
        if self.o.get("chs", 0):
            a("s_mov_b32 s60, s5")
            a("s_mov_b32 s61, s4")
        else:
            a("s_mov_b32 s60, s4")
            a("s_mov_b32 s61, s5")
        a("s_mov_b32 s50, 2048")
        a("s_cmp_eq_u32 s3, 4")
        a("s_cbranch_scc0 LGW")
        self.c_voff(4)
        a("s_lshl_b32 s9, s61, 7")
        a("s_waitcnt lgkmcnt(0)")
        a("s_mov_b64 s[48:49], s[34:35]")
        a("buffer_load_dwordx2 v[28:29], v4, s[48:51], s9 offen")
        a("s_load_dword s14, s[40:41], 0")
        self.silu_frag(SC)
        a("s_waitcnt vmcnt(0)")
        self.silu_run()
        a("s_waitcnt lgkmcnt(0)")
        a("s_barrier")
        a("s_barrier")
        a("s_branch LGH2")
        a.label("LGW")
        a("v_lshlrev_b32 v6, 4, v0")
        self.voff128(2, 6144, 1, 3)
        a("s_lshl_b32 s9, s61, 2")
        a("s_add_u32 s9, s9, s3")
        a(f"s_mul_i32 s9, s9, {16*6144}")
        a("s_lshl_b32 s6, s60, 7")
        a("s_add_u32 s9, s9, s6")
        a("s_lshl_b32 s13, s3, 5")
        a("s_add_u32 s6, s6, s13")
        a("v_and_b32 v12, 1, v0")
        a("v_and_b32 v13, 48, v0")
        a("v_lshrrev_b32 v4, 1, v13")
        a("v_lshl_add_u32 v4, v12, 10, v4")
        a("v_lshrrev_b32 v14, 5, v0")
        a("v_lshlrev_b32 v14, 10, v14")
        a("v_and_b32 v15, 31, v0")
        a("v_lshl_add_u32 v14, v15, 3, v14")
        a("s_lshl_b32 s63, s3, 8")
        a("s_lshr_b32 m0, s7, 2")
        a(f"s_mov_b32 s54, {512*6144}")
        a("s_mov_b32 s55, 0x20000")
        a("s_lshl_b32 s8, s60, 12")
        a("s_lshl_b32 s15, s3, 10")
        a("s_add_u32 s8, s8, s15")
        a("s_lshl_b32 s15, s61, 7")
        a("s_add_u32 s8, s8, s15")
        a(f"s_add_u32 s8, s8, {HA}")
        a(f"s_add_u32 s62, s8, {ALOC}")
        a("s_waitcnt lgkmcnt(0)")
        self.dstamp(4)
        a("s_mov_b64 s[48:49], s[16:17]")
        a("s_mov_b64 s[52:53], s[36:37]")
        lnh = self.o.get("lnh", 1)
        if lnh:
            a("buffer_load_dwordx2 v[24:25], v14, s[48:51], s63 offen")
        else:
            a("buffer_load_dwordx4 v[24:27], v6, s[48:51], 0 offen")
            a("buffer_load_dwordx4 v[28:31], v6, s[48:51], 0 offen offset:1024")
        self.exec16(3)
        a("buffer_load_dwordx2 v[20:21], v4, s[48:51], s6 offen")
        a("s_mov_b64 exec, -1")
        for i in range(2):
            a(f"buffer_load_dwordx4 v2, s[52:55], s9 offen {wf} lds")
            a(f"buffer_load_dwordx4 v2, s[52:55], s9 offen offset:1024 {wf} lds")
            if i == 0:
                a("s_add_u32 m0, m0, 2048")
                a(f"s_add_u32 s9, s9, {8*6144}")
        a("s_mov_b64 exec, 1")
        a("buffer_load_dword v238, v6, s[40:43], s62 offen sc1")
        a("s_mov_b64 exec, -1")
        a("s_load_dword s14, s[40:41], 0")
        mr0 = 0
        self.traddr128(8, None, 1, 3, grp_sh=11, n=1)
        a("v_xor_b32 v8, s13, v8")
        a("v_mul_u32_u24 v6, 144, v12")
        a("v_add_u32 v6, v6, v13")
        a(f"v_add_u32 v6, {SC}, v6")
        a("v_lshlrev_b32 v7, 4, v12")
        a("v_lshl_add_u32 v13, v13, 1, v7")
        a("s_cmp_eq_u32 s61, 0")
        a("s_cselect_b32 s9, 1.0, 0")
        for i in range(4): a(f"v_mov_b32 v{44+i}, s9")
        a("s_mov_b32 s9, 0x3f803f80")
        if lnh:
            a("v_and_b32 v15, 48, v0")
            a("s_lshl_b32 s15, s3, 2")
            a(f"s_add_u32 s15, s15, {LNS}")
            a("v_add_u32 v15, s15, v15")
            a("v_lshlrev_b32 v7, 5, v12")
            a(f"v_add_u32 v7, {LNS}, v7")
            a(f"v_mov_b32 v52, {f32(1e-5)}")
            self.dstamp(6)
            a("s_waitcnt vmcnt(5) lgkmcnt(0)")
            self.dstamp(7)
            self.tag()
            a("v_dot2_f32_bf16 v48, v24, s9, 0")
            a("v_dot2_f32_bf16 v50, v24, v24, 0")
            a("v_dot2_f32_bf16 v48, v25, s9, v48")
            a("v_dot2_f32_bf16 v50, v25, v25, v50")
            self.unpack(20, 16, 2)
            a("v_permlane16_swap_b32 v48, v50")
            a("v_add_f32 v48, v48, v50")
            self.row_sum(48)
            a("ds_write_b32 v15, v48")
            a("s_waitcnt lgkmcnt(0)")
        else:
            a("v_lshlrev_b32 v7, 7, v12")
            a(f"s_waitcnt vmcnt({5+mr0})")
            for b in range(2):
                a(f"v_dot2_f32_bf16 v{48+b}, v{24+4*b}, s9, 0")
                a(f"v_dot2_f32_bf16 v{50+b}, v{24+4*b}, v{24+4*b}, 0")
            for i in range(1, 4):
                for b in range(2):
                    a(f"v_dot2_f32_bf16 v{48+b}, v{24+4*b+i}, s9, v{48+b}")
                    a(f"v_dot2_f32_bf16 v{50+b}, v{24+4*b+i}, v{24+4*b+i}, v{50+b}")
            a("v_permlane32_swap_b32 v48, v49")
            a("v_permlane32_swap_b32 v50, v51")
            a("v_add_f32 v48, v48, v49")
            a("v_add_f32 v50, v50, v51")
            a("v_permlane16_swap_b32 v48, v50")
            a("v_add_f32 v48, v48, v50")
            self.row_sum(48)
            a("ds_bpermute_b32 v50, v7, v48")
            a("ds_bpermute_b32 v51, v7, v48 offset:64")
            a(f"v_mov_b32 v52, {f32(1e-5)}")
            a("s_waitcnt lgkmcnt(0)")
            self.tag()
            a(f"v_mul_f32 v50, {f32(1/512)}, v50")
            a(f"v_fmamk_f32 v51, v51, {f32(1/512)}, v52")
            a("v_fma_f32 v51, -v50, v50, v51")
            a("v_rsq_f32 v51, v51")
            self.unpack(20, 16, 2)
            for i in range(4): a(f"v_sub_f32 v{16+i}, v{16+i}, v50")
            for i in range(4): a(f"v_mul_f32 v{16+i}, v{16+i}, v51")
        a("v_mov_b32 v58, s14")
        a("v_mov_b32 v59, s14")
        a(f"s_waitcnt vmcnt({1+mr0})")
        self.dstamp(8)
        a("s_barrier")
        self.stamp(1)
        if lnh:
            a("ds_read_b128 v[24:27], v7")
            a("ds_read_b128 v[28:31], v7 offset:16")
        for ks in range(2):
            a(f"ds_read_b128 v[{32+4*ks}:{35+4*ks}], v6 offset:{64*ks}")
            for seg in range(2): self.tr(64 + 8 * ks + 4 * seg, 8, W1 + 8192 * ks + 1024 * seg, 4096)
        if lnh:
            a("s_waitcnt lgkmcnt(10)")
            a("v_pk_add_f32 v[24:25], v[24:25], v[26:27]")
            a("v_pk_add_f32 v[28:29], v[28:29], v[30:31]")
            a("v_add_f32 v50, v24, v25")
            a("v_add_f32 v51, v28, v29")
            a(f"v_mul_f32 v50, {f32(-1/512)}, v50")
            a(f"v_fmamk_f32 v51, v51, {f32(1/512)}, v52")
            a("v_fma_f32 v51, -v50, v50, v51")
            a("v_max_f32 v51, v51, v52")
            a("v_rsq_f32 v51, v51")
            for k in range(2): a(f"v_pk_add_f32 v[{16+2*k}:{17+2*k}], v[{16+2*k}:{17+2*k}], v[50:51] op_sel_hi:[1,0]")
            for k in range(2): a(f"v_pk_mul_f32 v[{16+2*k}:{17+2*k}], v[{16+2*k}:{17+2*k}], v[50:51] op_sel:[0,1] op_sel_hi:[1,1]")
        a("s_waitcnt lgkmcnt(5)")
        self.mfma(40, 64, 32, True)
        self.mfma(44, 68, 32, False)
        a("s_waitcnt lgkmcnt(0)")
        self.mfma(40, 72, 36, False)
        self.mfma(44, 76, 36, False)
        self.exec16(3)
        for k in range(2): a(f"v_pk_fma_f32 v[{40+2*k}:{41+2*k}], v[{16+2*k}:{17+2*k}], v[{44+2*k}:{45+2*k}], v[{40+2*k}:{41+2*k}]")
        a("v_cvt_pk_bf16_f32 v56, v40, v41")
        a("v_cvt_pk_bf16_f32 v57, v42, v43")
        a("buffer_store_dwordx4 v[56:59], v13, s[40:43], s62 offen")
        self.stamp(3)
        a("s_barrier")
        a("buffer_store_dwordx4 v[56:59], v13, s[40:43], s8 offen sc1")
        a("s_mov_b64 exec, -1")

    def wo_setup(self):
        a = self.a
        self.voff128(2, 1024, 3, 4)
        a("s_lshl_b32 s53, s4, 19")
        a("s_lshl_b32 s15, s3, 17")
        a("s_add_u32 s53, s53, s15")
        a("s_lshr_b32 s15, s52, 2")
        a("s_add_u32 s53, s53, s15")
        a(f"s_add_u32 s59, s7, {WO+16384}")
        a(f"s_add_u32 s62, s7, {WO}")
        a("s_mov_b64 s[48:49], s[24:25]")
        a(f"s_mov_b32 s50, {4096*1024}")
    def mr_issue(self, v, srd):
        a, wf = self.a, self.wf
        L = self.lab("Lmr")
        a(f"s_mul_i32 s9, s61, {64*6144}")
        a("s_lshl_b32 s15, s60, 9")
        a("s_add_u32 s9, s9, s15")
        a("s_lshl_b32 s15, s3, 7")
        a("s_add_u32 s9, s9, s15")
        a("s_add_u32 s9, s9, 2048")
        a("s_mov_b32 m0, s63")
        a("s_add_u32 s15, s63, 8192")
        a.label(L)
        a(f"buffer_load_dwordx4 v{v}, s[{srd}:{srd+3}], s9 offen {wf} lds")
        a("s_add_u32 m0, m0, 1024")
        a(f"s_add_u32 s9, s9, {8*6144}")
        a("s_cmp_lt_u32 m0, s15")
        a(f"s_cbranch_scc1 {L}")
    def mr_compute(self, sc, younger):
        a = self.a
        self.traddr128(8, "s63", 5, 6)
        a("v_and_b32 v5, 1, v0")
        a("v_and_b32 v6, 48, v0")
        a("v_mul_u32_u24 v7, 144, v5")
        a("v_add_u32 v7, v7, v6")
        a(f"v_add_u32 v7, {sc}, v7")
        a("v_lshlrev_b32 v5, 4, v5")
        a("v_lshl_add_u32 v5, v6, 1, v5")
        for ks in range(2): a(f"ds_read_b128 v[{32+4*ks}:{35+4*ks}], v7 offset:{64*ks}")
        a("s_lshl_b32 s9, s60, 14")
        a("s_lshl_b32 s15, s3, 12")
        a("s_add_u32 s9, s9, s15")
        a("s_lshl_b32 s15, s61, 7")
        a("s_add_u32 s9, s9, s15")
        a(f"s_add_u32 s9, s9, {HP}")
        a(f"s_waitcnt vmcnt({younger})")
        a("s_setprio 3")
        for ks in range(2):
            for t in range(4): self.tr(64 + 16 * ks + 4 * t, 8 + t, 4096 * ks, 2048)
        a("s_waitcnt lgkmcnt(0)")
        for ks in range(2):
            for t in range(4): self.mfma(40 + 4 * t, 64 + 16 * ks + 4 * t, 32 + 4 * ks, ks == 0)
        self.exec16(3)
        for t in range(4):
            a(f"v_cvt_pk_bf16_f32 v{40+4*t}, v{40+4*t}, v{41+4*t}")
            a(f"v_cvt_pk_bf16_f32 v{41+4*t}, v{42+4*t}, v{43+4*t}")
            a(f"v_mov_b32 v{42+4*t}, s14")
        for t in range(4): a(f"buffer_store_dwordx4 v[{40+4*t}:{43+4*t}], v5, s[40:43], s9 offen offset:{1024*t} sc1")
        a("s_mov_b64 exec, -1")
        a("s_setprio 0")
        self.stamp(11)
    def rdy_publish(self, vb, jreg):
        a = self.a
        for i in range(4): a(f"v_mov_b32 v{vb+i}, s14")
        a(f"v_mov_b32 v{vb+4}, 0")
        a(f"s_lshl_b32 s15, {jreg}, 4")
        a(f"s_add_u32 s15, s15, {RDY}")
        a("s_mov_b64 exec, 1")
        a(f"buffer_store_dwordx4 v[{vb}:{vb+3}], v{vb+4}, s[40:43], s15 offen sc1")
        a("s_mov_b64 exec, -1")
    def rdy_load(self):
        self.a("buffer_load_dword v237, v229, s[40:43], s27 offen sc1")
    def rdy_check(self):
        a = self.a
        L = self.lab("Lok")
        a("v_cmp_ne_u32 vcc, s14, v237")
        a(f"s_cbranch_vccz {L}")
        self.poll(["buffer_load_dword v237, v229, s[40:43], s27 offen sc1"], [(*self.TAGBAD, 237)], sleep=2)
        a.label(L)

    def g_index(self):
        a = self.a
        a("s_mul_i32 s26, s4, 7")
        a("s_add_u32 s26, s26, s5")
        a("s_cmp_eq_u32 s5, 7")

    def tw_main(self):
        a = self.a
        self.stamp(1)
        a("v_lshlrev_b32 v22, 2, v8")
        a("v_lshrrev_b32 v23, 5, v0")
        a("v_lshl_add_u32 v22, v23, 1, v22")
        a("v_and_b32 v23, 16, v0")
        a("v_lshl_add_u32 v22, v23, 3, v22")
        a("s_mul_i32 s13, s3, 272")
        a(f"s_add_u32 s13, s13, {QB}")
        a("v_add_u32 v22, s13, v22")
        a("v_xor_b32 v3, v8, v1")
        a("v_lshlrev_b32 v3, 4, v3")
        a("v_lshl_add_u32 v3, v8, 8, v3")
        a("v_add_u32 v8, s7, v3")
        a("v_xor_b32 v9, 64, v8")
        a("v_xor_b32 v10, 0x80, v8")
        a("v_xor_b32 v11, 0xc0, v8")
        for t in range(4):
            for ks in range(4):
                r = 64 + 16 * t + 4 * ks
                a(f"ds_read_b128 v[{r}:{r+3}], v{8+ks} offset:{4096*t}")
        a("s_lshl_b32 s8, s3, 6")
        self.traddr256(12, 2, VB, 3, 5, first="s8")
        a("v_mul_u32_u24 v20, 272, v5")
        a("v_lshl_add_u32 v20, v1, 4, v20")
        a(f"v_add_u32 v20, {QB}, v20")
        a("v_lshlrev_b32 v14, 6, v5")
        a("v_lshl_add_u32 v14, v1, 4, v14")
        a(f"v_add_u32 v14, {PB}, v14")
        a("s_lshl_b32 s9, s3, 9")
        a("v_add_u32 v15, s9, v14")
        a("v_lshlrev_b32 v16, 4, v5")
        a(f"v_add_u32 v16, {MX}, v16")
        a("s_lshl_b32 s9, s3, 2")
        a("v_add_u32 v17, s9, v16")
        a("v_lshlrev_b32 v18, 8, v5")
        a("v_lshl_add_u32 v18, v1, 4, v18")
        a("v_lshlrev_b32 v19, 2, v5")
        a("s_lshl_b32 s6, s4, 4")
        a("s_add_u32 s6, s6, s5")
        a("s_lshl_b32 s9, s6, 10")
        a("s_add_u32 s8, s8, s9")
        a(f"s_add_u32 s8, s8, {HC}")
        a("s_lshl_b32 s52, s6, 7")
        a(f"s_add_u32 s52, s52, {HL}")
        a(f"s_add_u32 s53, s8, {LOC}")
        a(f"s_add_u32 s54, s52, {LOC}")
        a(f"s_mov_b32 s10, {f32(CSC)}")
        a("s_lshl_b64 s[58:59], 1, s3")
        a("v_lshlrev_b32 v232, 6, v5")
        a(f"v_add_u32 v232, {LS}, v232")
        a("s_lshl_b32 s9, s3, 4")
        a("v_lshl_add_u32 v233, v1, 2, s9")
        a("v_add_u32 v233, v233, v232")
        def vr(k):
            for t in range(2): self.tr(128 + 8 * k + 4 * t, 12 + t, 8192 * k, 4096)
        def xrow(op, r):
            a(f"v_mov_b32 v225, v{r}")
            a(f"v_permlane16_swap_b32 v{r}, v225")
            a(f"{op} v{r}, v{r}, v225")
            a(f"v_mov_b32 v225, v{r}")
            a(f"v_permlane32_swap_b32 v{r}, v225")
            a(f"{op} v{r}, v{r}, v225")
        a(f"s_mov_b32 s12, {SPIN}")
        a("s_barrier")
        for k in (0, 2, 4, 6): vr(k)
        a("s_branch LTq1")
        a.label("LTq0")
        if self.o.get("qsleep", 0): a(f"s_sleep {self.o['qsleep']}")
        self.qfetch()
        a.label("LTq1")
        a("s_waitcnt vmcnt(1)")
        self.unpack(192, 24, 4)
        a("s_waitcnt vmcnt(0)")
        self.unpack(196, 32, 4)
        for k in range(4): a(f"v_pk_add_f32 v[{24+2*k}:{25+2*k}], v[{24+2*k}:{25+2*k}], v[{32+2*k}:{33+2*k}]")
        for i in range(4): a(f"v_permlane32_swap_b32 v{24+i}, v{28+i}")
        for k in range(2): a(f"v_pk_add_f32 v[{24+2*k}:{25+2*k}], v[{24+2*k}:{25+2*k}], v[{28+2*k}:{29+2*k}]")
        for i in range(2): a(f"v_permlane16_swap_b32 v{24+i}, v{26+i}")
        a("v_pk_add_f32 v[24:25], v[24:25], v[26:27]")
        a("v_cmp_u_f32 vcc, v24, v25")
        a("v_cvt_pk_bf16_f32 v24, v24, v25")
        a("s_cbranch_vccz LTq2")
        a("s_sub_u32 s12, s12, 1")
        a("s_cbranch_scc0 LTq0")
        a.label("LTq2")
        self.stamp(2)
        a("ds_write_b16 v22, v24")
        a("ds_write_b16_d16_hi v22, v24 offset:64")
        a("s_waitcnt lgkmcnt(0)")
        a("s_barrier")
        for ks in range(4): a(f"ds_read_b128 v[{208+4*ks}:{211+4*ks}], v20 offset:{64*ks}")
        self.stamp(3)
        for ks in range(4):
            a(f"s_waitcnt lgkmcnt({3+3*ks})")
            for t in range(4): self.mfma(40 + 4 * t, 64 + 16 * t + 4 * ks, 208 + 4 * ks, ks == 0)
            vr(1 + 2 * ks)
        a("v_max3_f32 v224, v40, v41, v42")
        a("v_max3_f32 v225, v43, v44, v45")
        a("v_max3_f32 v226, v46, v47, v48")
        a("v_max3_f32 v227, v49, v50, v51")
        a("v_max3_f32 v228, v52, v53, v54")
        a("v_max3_f32 v224, v224, v225, v226")
        a("v_max3_f32 v227, v227, v228, v55")
        a("v_max_f32 v224, v224, v227")
        xrow("v_max_f32", 224)
        a(f"v_mul_f32 v230, {f32(-CSC)}, v224")
        for i in range(8): a(f"v_pk_fma_f32 v[{40+2*i}:{41+2*i}], v[{40+2*i}:{41+2*i}], s[10:11], v[230:231] op_sel_hi:[1,0,0]")
        a("ds_write_b32 v17, v230")
        self.exec16(15)
        for blk in range(2):
            for i in range(8): a(f"v_exp_f32 v{40+8*blk+i}, v{40+8*blk+i}")
            for i in range(4): a(f"v_cvt_pk_bf16_f32 v{56+4*blk+i}, v{40+8*blk+2*i}, v{41+8*blk+2*i}")
            a(f"ds_write_b128 v15, v[{56+4*blk}:{59+4*blk}] offset:{256*blk}")
        for i in range(4): a(f"v_pk_add_f32 v[{40+2*i}:{41+2*i}], v[{40+2*i}:{41+2*i}], v[{48+2*i}:{49+2*i}]")
        for i in range(2): a(f"v_pk_add_f32 v[{40+2*i}:{41+2*i}], v[{40+2*i}:{41+2*i}], v[{44+2*i}:{45+2*i}]")
        a("v_pk_add_f32 v[40:41], v[40:41], v[42:43]")
        a("v_add_f32 v231, v40, v41")
        a("ds_write_b32 v233, v231")
        a("s_mov_b64 exec, -1")
        a("s_waitcnt lgkmcnt(0)")
        a("s_barrier")
        self.stamp(4)
        for k in range(2): a(f"ds_read_b128 v[{64+4*k}:{67+4*k}], v14 offset:{256*k}")
        a("ds_read_b128 v[24:27], v16")
        for w in range(4): a(f"ds_read_b128 v[{96+4*w}:{99+4*w}], v232 offset:{16*w}")
        for k in range(2, 8): a(f"ds_read_b128 v[{64+4*k}:{67+4*k}], v14 offset:{256*k}")
        def pv(k):
            for t in range(2): self.mfma(192 + 8 * (k >> 1) + 4 * t, 128 + 8 * k + 4 * t, 64 + 4 * k, (k & 1) == 0)
        a("s_waitcnt lgkmcnt(12)")
        pv(0)
        a("s_waitcnt lgkmcnt(10)")
        pv(1)
        a("v_min3_f32 v32, v24, v25, v26")
        a("v_min_f32 v32, v32, v27")
        a("s_waitcnt lgkmcnt(5)")
        pv(2)
        for k in range(2): a(f"v_pk_add_f32 v[{24+2*k}:{25+2*k}], v[32:33], v[{24+2*k}:{25+2*k}] op_sel_hi:[0,1] neg_lo:[0,1] neg_hi:[0,1]")
        for w in range(4): a(f"v_pk_add_f32 v[{96+4*w}:{97+4*w}], v[{96+4*w}:{97+4*w}], v[{98+4*w}:{99+4*w}]")
        a("s_waitcnt lgkmcnt(4)")
        pv(3)
        for w in range(4): a(f"v_exp_f32 v{24+w}, v{24+w}")
        a("s_waitcnt lgkmcnt(3)")
        pv(4)
        a("v_pk_mul_f32 v[96:97], v[96:97], v[24:25] op_sel_hi:[1,0]")
        a("v_pk_fma_f32 v[96:97], v[100:101], v[24:25], v[96:97] op_sel:[0,1,0] op_sel_hi:[1,1,1]")
        a("v_pk_fma_f32 v[96:97], v[104:105], v[26:27], v[96:97] op_sel_hi:[1,0,1]")
        a("v_pk_fma_f32 v[96:97], v[108:109], v[26:27], v[96:97] op_sel:[0,1,0] op_sel_hi:[1,1,1]")
        a("v_add_f32 v33, v96, v97")
        a("s_waitcnt lgkmcnt(2)")
        pv(5)
        a("v_rcp_f32 v36, v33")
        a("v_log_f32 v37, v33")
        for k in range(2): a(f"v_pk_mul_f32 v[{24+2*k}:{25+2*k}], v[{24+2*k}:{25+2*k}], v[36:37] op_sel_hi:[1,0]")
        a("s_waitcnt lgkmcnt(1)")
        pv(6)
        for i in range(4): a(f"v_pk_mul_f32 v[{192+2*i}:{193+2*i}], v[{192+2*i}:{193+2*i}], v[24:25] op_sel_hi:[1,0]")
        a("v_sub_f32 v37, v37, v32")
        a("s_waitcnt lgkmcnt(0)")
        pv(7)
        a("s_mov_b64 exec, s[58:59]")
        a("buffer_store_dword v37, v19, s[40:43], s54 offen")
        a("s_mov_b64 exec, -1")
        for i in range(4): a(f"v_pk_fma_f32 v[{192+2*i}:{193+2*i}], v[{200+2*i}:{201+2*i}], v[24:25], v[{192+2*i}:{193+2*i}] op_sel:[0,1,0] op_sel_hi:[1,1,1]")
        for i in range(4): a(f"v_pk_fma_f32 v[{192+2*i}:{193+2*i}], v[{208+2*i}:{209+2*i}], v[26:27], v[{192+2*i}:{193+2*i}] op_sel_hi:[1,0,1]")
        self.exec16(15)
        for i in range(4): a(f"v_pk_fma_f32 v[{192+2*i}:{193+2*i}], v[{216+2*i}:{217+2*i}], v[26:27], v[{192+2*i}:{193+2*i}] op_sel:[0,1,0] op_sel_hi:[1,1,1]")
        for i in range(4): a(f"v_cvt_pk_bf16_f32 v{200+i}, v{192+2*i}, v{193+2*i}")
        a("buffer_store_dwordx4 v[200:203], v18, s[40:43], s53 offen")
        self.stamp(5)
        a("s_mov_b64 exec, -1")
        a("s_barrier")
        a("buffer_load_dword v237, v236, s[92:95], s60 offen")
        a("buffer_load_dword v238, v236, s[92:95], s61 offen")
        self.exec16(15)
        a("buffer_store_dwordx4 v[200:203], v18, s[40:43], s8 offen sc1")
        a("s_mov_b64 exec, s[58:59]")
        a("buffer_store_dword v37, v19, s[40:43], s52 offen sc1")
        a("s_mov_b64 exec, -1")
        a("s_cmp_eq_u32 s3, 1")
        a("s_cbranch_scc0 LTWe")
        if self.o.get("nored"): self.end()
        a("s_cmp_lt_u32 s5, 4")
        a("s_cbranch_scc0 LTWe")
        a("s_lshl_b32 s6, s4, 2")
        a("s_add_u32 s6, s6, s5")
        self.srd(44, 16, 2048)
        self.srd(48, 38, 2048)
        a("v_bfe_u32 v2, v0, 2, 1")
        a("v_and_b32 v3, 3, v0")
        a("v_lshlrev_b32 v4, 3, v3")
        a("v_lshl_add_u32 v5, v2, 10, v4")
        a("v_lshlrev_b32 v6, 1, v5")
        a("v_lshrrev_b32 v8, 3, v0")
        a("v_lshl_add_u32 v7, v8, 12, v6")
        a("v_lshlrev_b32 v9, 4, v0")
        a("s_lshl_b32 s7, s6, 5")
        a("s_lshl_b32 s8, s6, 6")
        a(f"s_add_u32 s9, s8, {HD}")
        a(f"s_add_u32 s52, s8, {HM}")
        a(f"s_add_u32 s53, s8, {HM+3*4096}")
        a(f"s_mul_i32 s54, s6, {HFS}")
        a(f"s_add_u32 s54, s54, {HF}")
        a("s_add_u32 s55, s54, 4096")
        a("buffer_load_dwordx2 v[10:11], v5, s[44:47], s7 offen")
        a(f"s_mov_b32 s27, {RDY}")
        self.poll([f"buffer_load_dword v{40+i}, v9, s[40:43], s27 offen offset:{1024*i} sc1" for i in range(4)]
                  + ["buffer_load_dwordx4 v[12:15], v6, s[40:43], s52 offen sc1", "buffer_load_dwordx4 v[16:19], v6, s[40:43], s53 offen sc1"],
                  [(*self.TAGBAD, 40 + i) for i in range(4)] + [(*self.TAGBAD, 14), (*self.TAGBAD, 18)], sleep=2)
        self.poll(["buffer_load_dwordx4 v[24:27], v7, s[40:43], s9 offen sc1"], [(*self.POISON, 24)], sleep=2)
        self.stamp(6)
        a("s_cmp_eq_u32 s6, 0")
        a("s_cbranch_scc0 LTWn")
        a("s_mov_b64 exec, 1")
        a("v_mov_b32 v20, s14")
        a("v_mov_b32 v21, 0")
        a(f"buffer_store_dword v20, v21, s[40:43], 0 offen offset:{EPOCH} sc1")
        a("s_mov_b64 exec, -1")
        a.label("LTWn")
        red8 = self.red8
        red8(24)
        self.unpack(10, 28, 2)
        self.unpack(12, 32, 2)
        self.unpack(16, 36, 2)
        for i in range(4): a(f"v_fmac_f32 v{28+i}, v{24+i}, v{32+i}")
        if self.o.get("fsleep"): a(f"s_sleep {self.o['fsleep']}")
        self.sum_poll([f"buffer_load_dwordx4 v[{64+4*i}:{67+4*i}], v9, s[40:43], s{54+(i>>2)} offen offset:{1024*(i&3)} sc1" for i in range(7)], 64, 56)
        self.stamp(7)
        red8(56)
        for i in range(4): a(f"v_fmac_f32 v{28+i}, v{56+i}, v{36+i}")
        a("v_cvt_pk_bf16_f32 v10, v28, v29")
        a("v_cvt_pk_bf16_f32 v11, v30, v31")
        a("s_mov_b64 exec, 0xff")
        a("buffer_store_dwordx2 v[10:11], v5, s[48:51], s7 offen " + ["", "sc1", "nt", "sc0 sc1"][self.o.get("oflag", 0)])
        self.stamp(8)
        if self.o.get("padto"):
            a("s_cmp_eq_u32 s6, 0")
            a("s_cbranch_scc0 LTWe")
        if self.o.get("padto"):
            a(f"s_mov_b32 s100, {self.o['padto']}")
            if self.o.get("amp"):
                a("s_waitcnt lgkmcnt(0)")
                a(f"s_sub_u32 s98, s{64+2*self.o['amp']}, s96")
                a("s_mul_i32 s98, s98, 10")
                a("s_add_u32 s100, s100, s98")
            a.label("Lpad")
            a("s_memrealtime s[98:99]")
            a("s_waitcnt lgkmcnt(0)")
            a("s_sub_u32 s98, s98, s96")
            a("s_cmp_lt_u32 s98, s100")
            a("s_cbranch_scc1 Lpad")
        a.label("LTWe")
        self.end()

    def ww_main(self):
        a, wf = self.a, self.wf
        a.label("LWHp")
        a("s_branch LWH2")
        a.label("LW2")
        mre = self.o.get("mre", 0)
        self.voff128(12, 6144, 3, 4)
        a("s_mov_b64 s[44:45], s[36:37]")
        a(f"s_mov_b32 s46, {512*6144}")
        a("s_mov_b32 s60, s4")
        a("s_mov_b32 s61, s52")
        a(f"s_add_u32 s63, s7, {WO+8192}")
        if mre: self.mr_issue(12, 44)
        self.stamp(1)
        a("v_mov_b32 v17, v12")
        self.traddr256(8, 8, "s7", 3, 5)
        a("s_lshr_b32 s58, s7, 2")
        a(f"s_add_u32 s58, s58, {GA}")
        a("v_bfe_u32 v3, v0, 2, 1")
        a("v_mul_u32_u24 v16, 144, v3")
        a("v_lshl_add_u32 v16, v1, 4, v16")
        a(f"v_add_u32 v16, {HW}, v16")
        a("v_lshlrev_b32 v18, 4, v0")
        a(f"v_add_u32 v18, {RED}, v18")
        a("v_and_b32 v19, 15, v0")
        a("v_lshlrev_b32 v19, 3, v19")
        a("v_lshrrev_b32 v3, 5, v0")
        a("v_lshl_add_u32 v19, v3, 7, v19")
        a("v_and_b32 v3, 16, v0")
        a("v_lshl_add_u32 v19, v3, 9, v19")
        a("s_lshl_b32 s55, s52, 14")
        a("s_lshl_b32 s15, s3, 11")
        a("s_add_u32 s55, s55, s15")
        a("s_lshl_b32 s15, s4, 8")
        a("s_add_u32 s55, s55, s15")
        a(f"s_add_u32 s55, s55, {HB}")
        a("s_lshl_b32 s52, s52, 9")
        self.wo_setup()
        a(f"s_waitcnt vmcnt({8+8*mre}) lgkmcnt(0)")
        self.tag()
        for t in range(8): self.tr(64 + 4 * t, 8 + t, 0, 4096)
        a(f"s_waitcnt vmcnt({8*mre})")
        self.stamp(2)
        for t in range(8): self.tr(96 + 4 * t, 8 + t, 8192, 4096)
        a("s_barrier")
        for ks in range(2): a(f"ds_read_b128 v[{24+4*ks}:{27+4*ks}], v16 offset:{64*ks}")
        self.stamp(3)
        a("s_waitcnt lgkmcnt(0)")
        for ks in range(2):
            for t in range(8): self.mfma(128 + 4 * t, 24 + 4 * ks, 64 + 32 * ks + 4 * t, ks == 0)
        for k in range(4): a(f"v_permlane32_swap_b32 v{128+8*k}, v{132+8*k}")
        def red4(stride):
            for w in range(4): a(f"ds_read_b128 v[{24+4*w}:{27+4*w}], v18 offset:{stride*w}")
            a("s_waitcnt lgkmcnt(2)")
            for k in range(2): a(f"v_pk_add_f32 v[{24+2*k}:{25+2*k}], v[{24+2*k}:{25+2*k}], v[{28+2*k}:{29+2*k}]")
            a("s_waitcnt lgkmcnt(0)")
            for k in range(2): a(f"v_pk_add_f32 v[{32+2*k}:{33+2*k}], v[{32+2*k}:{33+2*k}], v[{36+2*k}:{37+2*k}]")
            for k in range(2): a(f"v_pk_add_f32 v[{24+2*k}:{25+2*k}], v[{24+2*k}:{25+2*k}], v[{32+2*k}:{33+2*k}]")
        a("v_cvt_pk_bf16_f32 v56, v128, v136")
        a("v_cvt_pk_bf16_f32 v57, v144, v152")
        a("buffer_store_dwordx2 v[56:57], v19, s[40:43], s55 offen sc1")
        self.stamp(4)
        if self.o.get("owait", 0): a("s_waitcnt vmcnt(0)")
        a("s_barrier")
        def wo(n):
            L = self.lab("LWd")
            a("s_mov_b32 m0, s62")
            a(f"s_add_u32 s62, s62, {1024*n}" if n else "s_mov_b32 s62, s59")
            a.label(L)
            a(f"buffer_load_dwordx4 v2, s[48:51], s53 offen {wf} lds")
            a("s_add_u32 m0, m0, 1024")
            a("s_add_u32 s53, s53, 8192")
            a("s_cmp_lt_u32 m0, s62")
            a(f"s_cbranch_scc1 {L}")
        a("s_cmp_eq_u32 s61, 3")
        a("s_cbranch_scc1 LM")
        ms = self.o.get("msplit", 0)
        if ms:
            if ms < 4:
                a(f"s_cmp_ge_u32 s3, {ms}")
                a("s_cbranch_scc1 LWm")
            if not mre: self.mr_issue(17, 44)
            oe = self.o.get("oearly", 8)
            if oe: wo(oe)
            self.mr_compute(SCW, oe)
        self.delay("odel")
        a.label("LWm")
        wo(0)
        a("v_and_b32 v3, 15, v0")
        a("v_lshlrev_b32 v13, 7, v3")
        a("s_lshl_b32 s9, s4, 14")
        a(f"s_add_u32 s9, s9, {HC}")
        a("s_lshl_b32 s8, s4, 11")
        a(f"s_add_u32 s8, s8, {HL}")
        self.stamp(5)
        a("v_lshlrev_b32 v229, 4, v0")
        a("s_mul_i32 s13, s4, 240")
        a("s_sub_u32 s13, 2432, s13")
        a("v_mov_b32 v4, s13")
        a("v_cmp_gt_u32 vcc, 16, v0")
        a("v_cndmask_b32 v229, v4, v229, vcc")
        a("s_lshl_b32 s27, s4, 8")
        a(f"s_add_u32 s27, s27, {RDY}")
        self.rdy_load()
        wpf = self.o.get("wpf", 0)
        if wpf:
            a("s_mov_b64 s[44:45], s[30:31]")
            a(f"s_mov_b32 s46, {512*3584}")
            a("s_lshr_b32 s13, s52, 7")
            a("s_add_u32 s13, s13, s3")
            a(f"s_mul_i32 s13, s13, {16*3584}")
            a("s_mul_i32 s15, s4, 448")
            a("s_add_u32 s13, s13, s15")
            a("v_lshrrev_b32 v4, 2, v0")
            a("v_mul_u32_u24 v4, 3584, v4")
            a("v_and_b32 v5, 3, v0")
            a("v_lshl_add_u32 v4, v5, 7, v4")
            a("buffer_load_dword v238, v4, s[44:47], s13 offen")
        a("s_lshl_b32 s15, s3, 8")
        a("s_add_u32 s9, s9, s15")
        a("s_lshl_b32 s15, s3, 2")
        a("s_add_u32 s8, s8, s15")
        a(f"s_add_u32 s15, s7, {WO}")
        self.traddr128(8, "s15", 3, 4)
        a("v_and_b32 v3, 15, v0")
        a("v_xor_b32 v12, v3, v1")
        a("v_lshlrev_b32 v12, 4, v12")
        a("v_lshl_add_u32 v4, v1, 10, v12")
        for i in range(1, 4):
            a(f"v_xor_b32 v{4+i}, {64*i}, v4")
            a(f"v_add_u32 v{4+i}, {3072*i}, v{4+i}")
        a("v_lshl_add_u32 v20, v3, 8, v12")
        a("v_add_u32 v20, s58, v20")
        for i in range(1, 4): a(f"v_xor_b32 v{20+i}, {64*i}, v20")
        a("v_lshlrev_b32 v14, 4, v1")
        a("v_lshrrev_b32 v12, 5, v0")
        a("v_lshlrev_b32 v15, 8, v12")
        a("v_and_b32 v12, 31, v0")
        a("v_lshl_add_u32 v15, v12, 2, v15")
        a("s_lshl_b32 s15, s3, 9")
        a(f"s_add_u32 s15, s15, {RED}")
        a("v_add_u32 v15, s15, v15")
        a("v_lshlrev_b32 v17, 4, v3")
        a("v_lshl_add_u32 v17, v1, 11, v17")
        a("s_lshl_b32 s55, s4, 12")
        a("s_lshr_b32 s15, s52, 1")
        a("s_add_u32 s55, s55, s15")
        a(f"s_add_u32 s55, s55, {HD}")
        a("s_mov_b32 m0, s58")
        a("v_mov_b32 v128, 0")
        a(f"s_waitcnt vmcnt({wpf})")
        self.stamp(6)
        self.rdy_check()
        def cissue():
            a("s_mov_b64 exec, 0xffff")
            a("buffer_load_dword v128, v13, s[40:43], s8 offen sc1")
            a("s_mov_b64 exec, -1")
            for i in range(4): a(f"buffer_load_dwordx4 v{4+i}, s[40:43], s9 offen offset:{1024*i} sc1 lds")
        def cmid():
            for ks in range(4):
                for t in range(4): self.tr(64 + 16 * ks + 4 * t, 8 + t, 4096 * ks, 2048)
            self.stamp(9)
        def cbody():
            a("s_waitcnt vmcnt(0)")
            for ks in range(4): a(f"ds_read_b128 v[{24+4*ks}:{27+4*ks}], v{20+ks}")
            a("s_waitcnt lgkmcnt(0)")
            a("v_max3_u32 v129, v24, v28, v128")
            a("v_max3_u32 v129, v129, v32, v36")
            a("v_cmp_eq_u32 s[10:11], -1, v129")
        self.spin(cbody, alt=([8, 9], LOC, self.o.get("every", 16)), issue=cissue, mid=cmid)
        self.stamp(7)
        D8 = ("quad_perm:[1,0,3,2]", "quad_perm:[2,3,0,1]", "row_half_mirror")
        def mf(ks):
            for t in range(4): self.mfma(40 + 4 * t, 24 + 4 * ks, 64 + 16 * ks + 4 * t, ks == 0)
        mf(0)
        a("v_mov_b32 v129, v128")
        for m in D8: a(f"v_max_f32_dpp v129, v129, v129 {m} row_mask:0xf bank_mask:0xf")
        a("v_sub_f32 v128, v128, v129")
        a("v_exp_f32 v128, v128")
        mf(1)
        a("v_mov_b32 v129, v128")
        for m in D8: a(f"v_add_f32_dpp v129, v129, v129 {m} row_mask:0xf bank_mask:0xf")
        a("v_rcp_f32 v129, v129")
        a("v_mul_f32 v128, v128, v129")
        for r in range(4): a(f"ds_bpermute_b32 v{130+r}, v14, v128 offset:{4*r}")
        mf(2)
        mf(3)
        a("s_waitcnt lgkmcnt(0)")
        for t in range(4): a(f"v_pk_mul_f32 v[{40+4*t}:{41+4*t}], v[{40+4*t}:{41+4*t}], v[130:131]")
        for t in range(4): a(f"v_pk_fma_f32 v[{40+4*t}:{41+4*t}], v[{42+4*t}:{43+4*t}], v[132:133], v[{40+4*t}:{41+4*t}]")
        for t in range(4): a(f"v_add_f32 v{40+4*t}, v{40+4*t}, v{41+4*t}")
        for k in range(2): a(f"v_permlane16_swap_b32 v{40+8*k}, v{44+8*k}")
        for k in range(2): a(f"v_add_f32 v{40+8*k}, v{40+8*k}, v{44+8*k}")
        for k in range(2): a(f"ds_write_b32 v15, v{40+8*k} offset:{128*k}")
        a("s_waitcnt lgkmcnt(0)")
        a("s_barrier")
        a("s_cmp_eq_u32 s3, 0")
        a("s_cbranch_scc0 LWe")
        a("s_mov_b32 exec_hi, 0")
        red4(512)
        a("buffer_store_dwordx4 v[24:27], v17, s[40:43], s55 offen sc1")
        self.stamp(8)
        a.label("LWe")
        self.end()

    def g_role(self):
        a, wf = self.a, self.wf
        self.mute = True
        ms = self.o.get("msplit", 0)
        a("s_lshr_b32 s63, s7, 1")
        a(f"s_add_u32 s63, s63, {MRG}")
        self.g_index()
        a("s_cbranch_scc1 LO3")
        if ms < 4:
            a(f"s_cmp_lt_u32 s3, {ms}")
            a("s_cbranch_scc1 LGn")
            self.mr_issue(2, 52)
            a.label("LGn")
        a(f"s_add_u32 s7, s7, {GU}")
        a("s_mov_b32 s53, s26")
        for i in range(4): a(f"v_mov_b32 v{32+i}, -1")
        a("v_lshrrev_b32 v3, 3, v0")
        a(f"v_mul_u32_u24 v3, {HFS}, v3")
        a("v_and_b32 v4, 7, v0")
        a("v_lshl_add_u32 v3, v4, 4, v3")
        a(f"s_mul_i32 s26, s3, {8*HFS}")
        a("s_lshl_b32 s15, s53, 7")
        a("s_add_u32 s26, s26, s15")
        a(f"s_add_u32 s26, s26, {HF}")
        a("buffer_store_dwordx4 v[32:35], v3, s[40:43], s26 offen sc1")
        a(f"s_and_b32 s52, s53, {0}")
        a("s_cmp_eq_u32 s52, 0")
        a("s_cselect_b64 s[44:45], s[28:29], s[30:31]")
        a("s_cselect_b64 s[48:49], s[30:31], s[28:29]")
        a(f"s_mov_b32 s46, {512*3584}")
        a(f"s_mov_b32 s50, {512*3584}")
        a("s_lshl_b32 s52, s52, 13")
        a("v_lshrrev_b32 v1, 2, v0")
        a("v_bfe_u32 v2, v0, 4, 1")
        a("v_lshlrev_b32 v2, 1, v2")
        a("v_and_b32 v3, 3, v0")
        a("v_xor_b32 v2, v2, v3")
        a("v_mul_u32_u24 v4, 3584, v1")
        a("v_lshl_add_u32 v2, v2, 4, v4")
        a(f"s_mul_i32 s8, s3, {128*3584}")
        a("s_lshl_b32 s15, s53, 6")
        a("s_add_u32 s8, s8, s15")
        def mat(m, lo=0, hi=8):
            L = self.lab("LGx")
            if lo == 0:
                a("s_add_u32 s58, s7, s52")
                a("s_mov_b32 s59, s8")
            a("s_mov_b32 m0, s58")
            a(f"s_add_u32 s58, s58, {1024*(hi-lo)}")
            a.label(L)
            gf = ["nt", "", "sc1", "sc0"][self.o.get("gflag%d" % m, 0)]
            a(f"buffer_load_dwordx4 v2, s[{44+4*m}:{47+4*m}], s59 offen {gf} lds")
            a("s_add_u32 m0, m0, 1024")
            a(f"s_add_u32 s59, s59, {16*3584}")
            if self.o.get("gcap", 0) and (lo or m): a(f"s_waitcnt vmcnt({self.o['gcap']})")
            a("s_cmp_lt_u32 m0, s58")
            a(f"s_cbranch_scc1 {L}")
            if hi == 8: a("s_xor_b32 s52, s52, 8192")
        pw = self.o.get("pwait", 1)
        if not pw:
            self.stamp(5)
            mat(0)
        a(f"s_waitcnt vmcnt({0 if pw else 8})")
        a("s_barrier")
        if ms < 4:
            a(f"s_cmp_lt_u32 s3, {ms}")
            a("s_cbranch_scc1 LGo")
            self.mr_compute(SC, 0 if pw else 8)
            a.label("LGo")
        a("s_cmp_eq_u32 s3, 0")
        a("s_cbranch_scc0 LGr")
        self.rdy_publish(8, "s2")
        if self.o.get("rwait", 1): a("s_waitcnt vmcnt(0)")
        a.label("LGr")
        if self.o.get("rwait", 1): a("s_barrier")
        if pw:
            self.delay("fdel")
            self.stamp(5)
            mat(0)
        mat(1)
        a("s_mov_b64 s[48:49], s[16:17]")
        a("s_mov_b32 s50, 2048")
        a("v_lshrrev_b32 v4, 5, v0")
        a("v_and_b32 v5, 31, v0")
        a("v_lshlrev_b32 v19, 3, v5")
        a("v_lshl_add_u32 v19, v4, 10, v19")
        a("s_lshl_b32 s15, s3, 8")
        a("buffer_load_dwordx2 v[24:25], v19, s[48:51], s15 offen")
        a("s_lshl_b32 s9, s53, 15")
        a("s_add_u32 s9, s9, s15")
        a("v_lshlrev_b32 v229, 4, v0")
        a(f"s_mov_b32 s27, {RDY+2048}")
        self.rdy_load()
        a("v_lshlrev_b32 v18, 1, v19")
        a("s_lshl_b32 s15, s3, 9")
        for k in range(3): a(f"s_add_u32 s{28+k}, s15, {HM+4096*k}")
        mloads = [f"buffer_load_dwordx4 v[{208+4*k}:{211+4*k}], v18, s[40:43], s{28+k} offen sc1" for k in range(3)]
        for l in mloads: a(l)
        for k in range(8): a(f"s_add_u32 s{16+k}, s15, {HD+4096*k}")
        self.voff256(6, 10, 8, 9)
        a("s_mov_b64 s[44:45], s[32:33]")
        a(f"s_mov_b32 s46, {1792*1024}")
        a("s_lshl_b32 s6, s3, 13")
        a(f"s_add_u32 s6, s6, {DWN}")
        a("s_mov_b32 m0, s6")
        a("s_add_u32 s13, s6, 8192")
        a.label("LGd2")
        for i in range(2):
            a(f"buffer_load_dwordx4 v{6+i}, s[44:47], s9 offen {wf} lds")
            a("s_add_u32 m0, m0, 1024")
            a("s_add_u32 s9, s9, 4096")
        a("s_cmp_lt_u32 m0, s13")
        a("s_cbranch_scc1 LGd2")
        a("v_bfe_u32 v8, v0, 4, 1")
        a("v_lshlrev_b32 v8, 5, v8")
        a("v_lshl_add_u32 v8, v1, 6, v8")
        a("v_lshl_add_u32 v8, v3, 3, v8")
        a("v_add_u32 v8, s7, v8")
        a("v_xor_b32 v9, 32, v8")
        self.traddr256(10, 8, "s6", 6, 7)
        a("v_mul_u32_u24 v20, 816, v4")
        a("v_lshrrev_b32 v6, 3, v5")
        a("v_lshl_add_u32 v20, v6, 6, v20")
        a("v_lshl_add_u32 v20, v3, 4, v20")
        a("v_bfe_u32 v6, v0, 2, 1")
        a("v_lshl_add_u32 v20, v6, 3, v20")
        a(f"s_add_u32 s15, s7, {AROW_O}")
        a("v_add_u32 v20, s15, v20")
        a("v_mul_u32_u24 v22, 816, v6")
        a("v_and_b32 v7, 48, v0")
        a("v_add3_u32 v22, v22, v7, s15")
        a("v_min_u32 v21, 2, v3")
        a("v_mul_u32_u24 v21, 272, v21")
        a("v_add_u32 v22, v22, v21")
        a("v_lshl_add_u32 v227, v6, 6, v7")
        a(f"v_mul_u32_u24 v228, {HFS}, v4")
        a("v_lshl_add_u32 v228, v5, 2, v228")
        a("v_lshlrev_b32 v2, 4, v0")
        a("s_lshl_b32 s15, s3, 10")
        a("v_add_u32 v23, s15, v2")
        a("s_lshl_b32 s15, s3, 2")
        a("v_add_u32 v226, s15, v7")
        a("v_and_b32 v231, 16, v0")
        a("v_lshlrev_b32 v231, 1, v231")
        a(f"v_mov_b32 v232, {f32(1e-5)}")
        self.guard(2100, fill=self.small_helpers)
        a("s_waitcnt vmcnt(8)")
        self.stamp(6)
        for m in range(2):
            for ks in range(4):
                for t in range(2): self.tr(64 + 32 * m + 8 * ks + 4 * t, 8 + t, 8192 * m + 2048 * ks, 1024)
        self.unpack(24, 28, 2)
        a("v_and_b32 v24, 32, v0")
        a(f"v_add_u32 v24, {LNS}, v24")
        a("ds_read_b128 v[32:35], v24")
        self.rdy_check()
        for k in range(3): a(f"v_xor_b32 v{211+4*k}, s14, v{210+4*k}")
        a("v_or3_b32 v211, v211, v215, v219")
        a("v_cmp_ne_u32 vcc, 0, v211")
        a("s_cbranch_vccz LGmo")
        self.poll(mloads, [(*self.TAGBAD, 210 + 4 * k) for k in range(3)], sleep=1)
        a.label("LGmo")
        self.stamp(4)
        def prepass():
            a("s_waitcnt lgkmcnt(0)")
            a("ds_write_b64 v20, v[212:213] offset:544")
            a("v_pk_add_f32 v[32:33], v[32:33], v[34:35]")
            a("v_add_f32 v32, v32, v33")
            for i in range(4): a(f"v_fmac_f32 v{28+i}, {f32(-1/512)}, v32")
            self.unpack(216, 196, 2)
            for i in range(4): a(f"v_add_f32 v{196+i}, 1.0, v{196+i}")
            a("v_cvt_pk_bf16_f32 v36, v196, v197")
            a("v_cvt_pk_bf16_f32 v37, v198, v199")
            a("ds_write_b64 v20, v[36:37] offset:272")
            self.unpack(208, 192, 2)
            self.unpack(36, 196, 2)
            for i in range(4): a(f"v_mul_f32 v{200+i}, v{28+i}, v{196+i}")
            for i in range(4): a(f"v_mul_f32 v{196+i}, v{192+i}, v{196+i}")
            a("s_waitcnt vmcnt(8)")
            for dt in range(8): self.tr(128 + 4 * dt, 10 + dt, 0, 4096)
            self.stamp(10)
        self.sum_poll([f"buffer_load_dwordx4 v[{160+4*k}:{163+4*k}], v18, s[40:43], s{16+k} offen sc1" for k in range(8)], 160, 56, mid=prepass)
        self.stamp(7)
        for k in range(2): a(f"v_pk_fma_f32 v[{200+2*k}:{201+2*k}], v[{56+2*k}:{57+2*k}], v[{196+2*k}:{197+2*k}], v[{200+2*k}:{201+2*k}]")
        a("v_cvt_pk_bf16_f32 v32, v200, v201")
        a("v_cvt_pk_bf16_f32 v33, v202, v203")
        a("ds_write_b64 v20, v[32:33]")
        for ks in range(4): a(f"ds_read_b128 v[{172+4*ks}:{175+4*ks}], v22 offset:{64*ks}")
        for k in range(2): a(f"v_pk_fma_f32 v[{28+2*k}:{29+2*k}], v[{56+2*k}:{57+2*k}], v[{192+2*k}:{193+2*k}], v[{28+2*k}:{29+2*k}]")
        a("v_pk_add_f32 v[190:191], v[28:29], v[30:31]")
        a("v_pk_mul_f32 v[28:29], v[28:29], v[28:29]")
        a("v_pk_fma_f32 v[28:29], v[30:31], v[30:31], v[28:29]")
        a("v_add_f32 v190, v190, v191")
        a("v_add_f32 v191, v28, v29")
        a("v_permlane16_swap_b32 v190, v191")
        def mg(m, ks):
            for t in range(2): self.mfma(40 + 8 * m + 4 * t, 172 + 4 * ks, 64 + 32 * m + 8 * ks + 4 * t, ks == 0)
        for ks in range(4):
            a(f"s_waitcnt lgkmcnt({3-ks})")
            mg(0, ks)
            if ks == 0: a("v_add_f32 v190, v190, v191")
        mg(1, 0)
        self.row_sum(190)
        mg(1, 1)
        a(f"ds_write_b32 v226, v190 offset:{STAT}")
        mg(1, 2)
        for r in range(3): a(f"v_permlane32_swap_b32 v{40+r}, v{44+r}")
        mg(1, 3)
        a(f"ds_write_b128 v23, v[40:43] offset:{REC}")
        for r in range(3): a(f"v_permlane32_swap_b32 v{48+r}, v{52+r}")
        a(f"ds_write_b128 v23, v[48:51] offset:{CSR}")
        a("s_waitcnt lgkmcnt(0)")
        a("s_barrier")
        self.stamp(8)
        a(f"ds_read_b128 v[24:27], v231 offset:{STAT}")
        a(f"ds_read_b128 v[28:31], v231 offset:{STAT+16}")
        for w in range(4): a(f"ds_read_b128 v[{64+4*w}:{67+4*w}], v2 offset:{REC+1024*w}")
        for w in range(4): a(f"ds_read_b128 v[{80+4*w}:{83+4*w}], v2 offset:{CSR+1024*w}")
        a("s_waitcnt lgkmcnt(8)")
        a("v_pk_add_f32 v[24:25], v[24:25], v[26:27]")
        a("v_pk_add_f32 v[28:29], v[28:29], v[30:31]")
        a("v_add_f32 v24, v24, v25")
        a("v_add_f32 v28, v28, v29")
        a(f"v_mul_f32 v24, {f32(1/512)}, v24")
        a(f"v_fmamk_f32 v28, v28, {f32(1/512)}, v232")
        a("v_fma_f32 v28, -v24, v24, v28")
        a("v_max_f32 v28, v28, v232")
        a("v_rsq_f32 v28, v28")
        for m in range(2):
            r = 64 + 16 * m
            a(f"s_waitcnt lgkmcnt({4-4*m})")
            a(f"v_pk_add_f32 v[{r}:{r+1}], v[{r}:{r+1}], v[{r+4}:{r+5}]")
            a(f"v_pk_add_f32 v[{r+8}:{r+9}], v[{r+8}:{r+9}], v[{r+12}:{r+13}]")
            a(f"v_add_f32 v{r+2}, v{r+2}, v{r+6}")
            a(f"v_add_f32 v{r+10}, v{r+10}, v{r+14}")
            a(f"v_pk_add_f32 v[{r}:{r+1}], v[{r}:{r+1}], v[{r+8}:{r+9}]")
            a(f"v_add_f32 v{r+2}, v{r+2}, v{r+10}")
            a(f"v_fma_f32 v{r}, -v24, v{r+1}, v{r}")
            a(f"v_fma_f32 v{r}, v{r}, v28, v{r+2}")
        a("v_max_f32 v64, 0, v64")
        a("v_mul_f32 v64, v64, v80")
        a("v_mov_b32_dpp v65, v64 quad_perm:[1,0,3,2] row_mask:0xf bank_mask:0xf")
        a("v_cvt_pk_bf16_f32 v64, v64, v65")
        for i, off in enumerate((0, 8, 128, 136)): a(f"ds_bpermute_b32 v{24+i}, v227, v64 offset:{off}")
        a("s_waitcnt lgkmcnt(0)")
        for dt in range(8): self.mfma(160 + 4 * dt, 24, 128 + 4 * dt, True)
        for k in range(4):
            a(f"v_permlane32_swap_b32 v{160+8*k}, v{164+8*k}")
            a(f"buffer_store_dword v{160+8*k}, v228, s[40:43], s26 offen sc1")
            if k < 3: a(f"s_add_u32 s26, s26, {2*HFS}")
        self.stamp(9)
        self.end()

    def small_helpers(self):
        a = self.a
        a.label("LO3")
        if 0 < self.o.get('msplit', 0) < 4:
            a(f"s_cmp_lt_u32 s3, {self.o.get('msplit', 0)}")
            a("s_cbranch_scc1 LO4")
            self.mr_issue(2, 52)
            self.mr_compute(SC, 0)
            a.label("LO4")
            a("s_barrier")
        a("s_movk_i32 s52, 1536")
        a("s_lshr_b32 s58, s7, 2")
        a(f"s_add_u32 s58, s58, {GA}")
        a("v_lshrrev_b32 v1, 4, v0")
        a("v_lshlrev_b32 v18, 4, v0")
        a(f"v_add_u32 v18, {RED}, v18")
        self.wo_setup()
        self.delay("o3del")
        a("s_branch LWm")
        a.label("LGH2")
        a("s_setprio 3")
        self.tag()
        self.g_index()
        a("s_cbranch_scc1 LGH3")
        a("s_endpgm")
        a.label("LGH3")
        self.rdy_publish(8, "s2")
        a("s_endpgm")
        a.label("LWH2")
        a("s_setprio 3")
        for i in range(4): a(f"v_mov_b32 v{32+i}, -1")
        a("v_bfe_u32 v3, v0, 4, 1")
        a("v_lshlrev_b32 v3, 11, v3")
        a("v_and_b32 v4, 15, v0")
        a("v_lshl_add_u32 v3, v4, 4, v3")
        a("s_lshl_b32 s15, s4, 12")
        a("s_and_b32 s6, s5, 7")
        a("s_lshl_b32 s6, s6, 8")
        a("s_add_u32 s15, s15, s6")
        a(f"s_add_u32 s15, s15, {HD}")
        a("v_lshrrev_b32 v6, 4, v0")
        a("v_lshlrev_b32 v6, 11, v6")
        a("v_lshl_add_u32 v6, v4, 4, v6")
        a("s_lshl_b32 s8, s6, 6")
        a("s_lshl_b32 s9, s4, 8")
        a("s_add_u32 s8, s8, s9")
        a(f"s_add_u32 s8, s8, {HB}")
        a("s_add_u32 s9, s8, 8192")
        self.c_voff(4)
        a("s_lshr_b32 s6, s6, 1" if self.o.get("msplit", 0) else "s_movk_i32 s6, 896")
        a("s_mov_b32 s50, 2048")
        a("s_waitcnt lgkmcnt(0)")
        a("s_load_dword s14, s[40:41], 0")
        a("s_mov_b64 s[48:49], s[34:35]")
        a("buffer_load_dwordx2 v[28:29], v4, s[48:51], s6 offen")
        a("buffer_store_dwordx4 v[32:35], v6, s[40:43], s8 offen sc1")
        a("buffer_store_dwordx4 v[32:35], v6, s[40:43], s9 offen sc1")
        a("s_mov_b32 exec_hi, 0")
        a("buffer_store_dwordx4 v[32:35], v3, s[40:43], s15 offen sc1")
        a("s_mov_b64 exec, -1")
        self.silu_frag(SCW)
        a("s_waitcnt vmcnt(0) lgkmcnt(0)")
        self.tag()
        self.rdy_publish(8, "s2")
        a("v_lshlrev_b32 v2, 4, v0")
        a("s_lshl_b32 s8, s4, 12")
        a(f"s_add_u32 s8, s8, {HA}")
        a("v_and_b32 v3, 1, v0")
        a("v_mul_u32_u24 v3, 144, v3")
        a("v_bfe_u32 v4, v0, 1, 2")
        a("v_lshl_add_u32 v3, v4, 4, v3")
        a("v_lshrrev_b32 v4, 5, v0")
        a("v_lshl_add_u32 v3, v4, 6, v3")
        a("v_bfe_u32 v4, v0, 4, 1")
        a("v_lshl_add_u32 v3, v4, 3, v3")
        a(f"v_add_u32 v3, {HW}, v3")
        def aissue():
            for t in range(4): a(f"buffer_load_dwordx4 v[{40+4*t}:{43+4*t}], v2, s[40:43], s8 offen offset:{1024*t} sc1")
        def abody():
            for t in range(4):
                a(f"s_waitcnt vmcnt({3-t})")
                a(f"v_xor_b32 v{43+4*t}, s14, v{42+4*t}")
                self.unpack(40 + 4 * t, 64 + 4 * t, 2)
            a("v_or3_b32 v43, v43, v47, v51")
            a("v_or_b32 v43, v43, v55")
            a("v_cmp_ne_u32 s[10:11], 0, v43")
        self.spin(abody, alt=([8], ALOC, 8), issue=aissue, mid=self.silu_run)
        self.fold8()
        a("ds_write_b64 v3, v[40:41]")
        a("s_waitcnt lgkmcnt(0)")
        a("s_barrier")
        a("s_endpgm")
        a.label("LTH")
        if self.o.get("nohelp"): a("s_endpgm")
        a("s_setprio 3")
        for i in range(4): a(f"v_mov_b32 v{40+i}, -1")
        a("v_lshlrev_b32 v2, 4, v0")
        a("s_lshl_b32 s6, s4, 4")
        a("s_add_u32 s6, s6, s5")
        a("s_lshl_b32 s54, s6, 10")
        a(f"s_add_u32 s54, s54, {HC}")
        a("s_lshl_b32 s55, s6, 7")
        a(f"s_add_u32 s55, s55, {HL}")
        a("s_waitcnt lgkmcnt(0)")
        a("s_load_dword s14, s[40:41], 0")
        a("buffer_store_dwordx4 v[40:43], v2, s[40:43], s54 offen sc1")
        a(f"s_add_u32 s54, s54, {LOC}")
        a("buffer_store_dwordx4 v[40:43], v2, s[40:43], s54 offen sc1")
        a("s_mov_b64 exec, 0xff")
        a("buffer_store_dwordx4 v[40:43], v2, s[40:43], s55 offen sc1")
        a(f"s_add_u32 s55, s55, {LOC}")
        a("buffer_store_dwordx4 v[40:43], v2, s[40:43], s55 offen sc1")
        a("s_mov_b64 exec, -1")
        a("s_waitcnt vmcnt(0) lgkmcnt(0)")
        self.tag()
        self.rdy_publish(44, "s6")
        a("buffer_load_dwordx4 v[232:235], v2, s[40:43], s54 offen sc1")
        a("s_mov_b64 exec, 1")
        a("buffer_load_dword v236, v2, s[40:43], s55 offen sc1")
        a("s_endpgm")

    def m_role(self):
        a = self.a
        self.mute = False
        a.label("LM")
        if self.o.get("nom"): self.end()
        ms = self.o.get("msplit", 0)
        if ms == 0: a("s_mov_b32 s61, 7")
        if 0 < ms < 4:
            a(f"s_cmp_ge_u32 s3, {ms}")
            a("s_cbranch_scc1 LMr")
        if not self.o.get("mre", 0): self.mr_issue(17, 44)
        self.mr_compute(SCW, 0)
        a.label("LMr")
        a("s_lshl_b32 s6, s4, 2")
        a("s_add_u32 s6, s6, s3")
        a("s_lshl_b32 s8, s6, 12")
        a(f"s_add_u32 s8, s8, {HP}")
        a("s_lshr_b32 s9, s6, 3")
        a("s_lshl_b32 s9, s9, 12")
        a("s_and_b32 s6, s6, 7")
        a("s_lshl_b32 s6, s6, 8")
        a("s_add_u32 s9, s9, s6")
        a(f"s_add_u32 s9, s9, {HM}")
        a("v_lshlrev_b32 v2, 4, v0")
        a("v_and_b32 v3, 1, v0")
        a("v_lshlrev_b32 v3, 11, v3")
        a("v_bfe_u32 v4, v0, 1, 2")
        a("v_lshl_add_u32 v3, v4, 4, v3")
        a("v_and_b32 v4, 48, v0")
        a("v_lshl_add_u32 v3, v4, 2, v3")
        self.poll([f"buffer_load_dwordx4 v[{40+4*t}:{43+4*t}], v2, s[40:43], s8 offen offset:{1024*t} sc1" for t in range(4)],
                  [(*self.TAGBAD, 42 + 4 * t) for t in range(4)], sleep=1,
                  after=lambda t: self.unpack(40 + 4 * t, 64 + 4 * t, 2))
        self.stamp(6)
        self.fold8()
        self.exec16(0xff)
        a("buffer_store_dwordx4 v[40:43], v3, s[40:43], s9 offen sc1")
        self.stamp(7)
        self.end()

    def t_prefetch(self):
        a = self.a
        a.label("LTpx")
        a("s_mov_b32 s95, 0x20000")
        a("s_bitcmp1_b32 s3, 0")
        a("s_cbranch_scc1 LTpd")
        a("s_cmp_eq_u32 s3, 0")
        a("s_cselect_b64 s[92:93], s[28:29], s[30:31]")
        a(f"s_mov_b32 s94, {512*3584}")
        a(f"s_mul_i32 s60, s5, {32*3584}")
        a("s_mul_i32 s61, s4, 448")
        a("s_add_u32 s60, s60, s61")
        a("s_add_u32 s61, s60, 256")
        a("v_lshrrev_b32 v236, 1, v0")
        a("v_mul_u32_u24 v236, 3584, v236")
        a("v_and_b32 v235, 1, v0")
        a("v_lshl_add_u32 v236, v235, 7, v236")
        a("s_branch LTpr")
        a.label("LTpd")
        a("s_mov_b64 s[92:93], s[32:33]")
        a(f"s_mov_b32 s94, {1792*1024}")
        a(f"s_mul_i32 s60, s4, {7*32768}")
        a("s_lshl_b32 s61, s5, 1")
        a("s_lshr_b32 s13, s3, 1")
        a("s_add_u32 s61, s61, s13")
        a("s_mul_i32 s61, s61, 7168")
        a("s_add_u32 s60, s60, s61")
        a("s_mov_b32 s61, 0x7fffffff")
        a("v_min_u32 v236, 55, v0")
        a("v_lshlrev_b32 v236, 7, v236")
        a("s_branch LTpr")

    def fold8(self):
        a = self.a
        for i in range(8): a(f"v_permlane32_swap_b32 v{64+i}, v{72+i}")
        for k in range(4): a(f"v_pk_add_f32 v[{64+2*k}:{65+2*k}], v[{64+2*k}:{65+2*k}], v[{72+2*k}:{73+2*k}]")
        for i in range(4): a(f"v_permlane16_swap_b32 v{64+i}, v{68+i}")
        for k in range(2): a(f"v_pk_add_f32 v[{64+2*k}:{65+2*k}], v[{64+2*k}:{65+2*k}], v[{68+2*k}:{69+2*k}]")
        for i in range(4): a(f"v_add_f32_dpp v{64+i}, v{64+i}, v{64+i} row_ror:8 row_mask:0xf bank_mask:0xf")
        a("v_cvt_pk_bf16_f32 v40, v64, v65")
        a("v_cvt_pk_bf16_f32 v41, v66, v67")

    def red8(self, r):
        a = self.a
        for i in range(4): a(f"v_add_f32_dpp v{r+i}, v{r+i}, v{r+i} row_ror:8 row_mask:0xf bank_mask:0xf")
        for sw in ("16", "32"):
            for i in range(4): a(f"v_mov_b32 v{60+i}, v{r+i}")
            for i in range(4): a(f"v_permlane{sw}_swap_b32 v{r+i}, v{60+i}")
            for i in range(4): a(f"v_add_f32 v{r+i}, v{r+i}, v{60+i}")

    def build(self):
        self.prologue()
        self.ww_early()
        if self.o.get("tnear"): self.tw_early()
        self.g_early()
        self.g_role()
        self.m_role()
        self.guard(3300, fall=False)
        self.ww_main()
        self.t_prefetch()
        self.guard(3300, fall=False)
        if not self.o.get("tnear"): self.tw_early()
        self.tw_issue()
        self.tw_main()
        if self.diag:
            self.a.label("Ldump")
            self.dump_stamps()
        self.a.label("Lexit")
        self.a("s_endpgm")
        self.a.label("Lcode_end")
        body = self.a.finish()
        head = open("cdna_kernels/" + NAME + ".s.ref").read().split("; Override launch geometry")[0]
        return head + f"""; Generated by gen/gen_kernel.py (own generator script).  One persistent launch: 256 workgroups (one per CU) x 5 waves.
; wg -> x = wg&7, j = wg>>3.  All weights / K / V stream through LDS-DMA, all GEMVs run on 16x16x32 bf16 MFMA.
;   T (j<16)     : attention over 256 keys of (batch j>>3, kv head x); 32 of their waves also sum the FFN partials -> out
;   W (16..23)   : q partial (64 rows of wq x one kv head), then 64 columns of the output projection (j=19: sums ga/sb/cb/gb)
;   G (24..31)   : K slice of silu(c)@w_mod -> h partial and ga/sb/cb/gb partials, then 32 FFN columns (j=31: projection block 3)
; Hand-offs go through d_ws and are validated by content, never by timing or placement:
;   tagged 16-byte granules (tag = next(epoch word found in d_ws); the word is advanced once per launch), or
;   NaN-poisoned slots (the owner poisons them first and says so with a tagged flag that readers check).
;   h and the attention partials are written twice: plain (fast when both ends share an L2) and write-through (fallback).
; Every wait is bounded.
; @launch grid=(256,1,1) block=(320,1,1) lds={LDS_BYTES}
.amdgcn_target "amdgcn-amd-amdhsa--gfx950"
.text
.globl {KNAME}
.p2align 12
.type {KNAME},@function
{KNAME}:
{body}
.section .rodata,"a"
.p2align 6
.amdhsa_kernel {KNAME}
  .amdhsa_next_free_vgpr 240
  .amdhsa_next_free_sgpr 102
  .amdhsa_accum_offset 240
  .amdhsa_group_segment_fixed_size 0
  .amdhsa_kernarg_size 112
  .amdhsa_user_sgpr_count 2
  .amdhsa_user_sgpr_kernarg_segment_ptr 1
  .amdhsa_system_sgpr_workgroup_id_x 1
.end_amdhsa_kernel
"""

if __name__ == "__main__":
    import argparse
    ap = argparse.ArgumentParser()
    ap.add_argument("-o", default="cdna_kernels/" + NAME + ".s")
    ap.add_argument("--diag", action="store_true")
    ap.add_argument("--wflag", default="nt")
    ap.add_argument("--opt", action="append", default=[])
    args = ap.parse_args()
    opts = {}
    for o in args.opt:
        k, _, v = o.partition("=")
        opts[k] = int(v) if v else 1
    open(args.o, "w").write(Gen(args.diag, args.wflag, opts).build())
    print("wrote", args.o)
```

```python
import sys, struct
from asmlib import Asm

NAME = "adaLN_cond__sliding_block_cached__glu_gated_reglu__decode"
KNAME = NAME + "_kernel"

def f32(x): return "0x%08x" % struct.unpack("<I", struct.pack("<f", x))[0]

EPOCH = 0x0
RDY = 0x1000
HM = 0x4000
HA = 0x8000
ALOC = 0x8000
HB = 0x140000
HD = 0x20000
HL = HD + 0x8000
HC = HL + 0x4000
LOC = 0x24000
HF = HC + 0x20000 + LOC
HFS = 7168
HP = 0xD0000
STAMP = 0x100000
WS_SIZE = 0x200000
LDS_BYTES = 151552
KB, VB, PB, MX, LS, QB = 0, 65536, 131072, 133120, 133248, 133632
WQ, WO, GA, RED, SCW, HW = 0, 65536, 131072, 147456, 149504, 150016
W1, GU, DWN, MRG, SC, LNS = 0, 16384, 81920, 114688, 147456, 148480
REC, CSR, STAT = W1, W1 + 4096, W1 + 8192
AROW_O = 4096

LOG2E = 1.4426950408889634
CSC = (128 ** -0.5) * LOG2E
SPIN = 100000
import os
if os.environ.get('SPIN'): SPIN = int(os.environ['SPIN'])
MFMA = "v_mfma_f32_16x16x32_bf16"

class Gen:
    POISON = ("v_cmp_eq_u32", "-1")
    TAGBAD = ("v_cmp_ne_u32", "s14")

    def __init__(self, diag=False, wflag="nt", opts=None):
        self.a = Asm()
        self.diag = diag
        self.wf = wflag
        self.o = opts or {}
        self.nlab = 0
    def lab(self, p="L"):
        self.nlab += 1
        return f"{p}{self.nlab}"
    def dstamp(self, k):
        if self.o.get("gdbg"): self.a(f"s_memrealtime s[{64+2*k}:{65+2*k}]")
    def stamp(self, k):
        if self.o.get("gdbg") and getattr(self, "mute", False) and k in (4, 6, 7, 8): return
        if self.diag or self.o.get("amp") == k: self.a(f"s_memrealtime s[{64+2*k}:{65+2*k}]")
    def dump_max(self):
        a = self.a
        a("s_load_dwordx2 s[44:45], s[0:1], 96")
        a("s_mov_b32 s46, 256")
        a("s_mov_b32 s47, 0x20000")
        a("s_mov_b64 exec, 1")
        a("v_mov_b32 v1, 0")
        a("s_waitcnt lgkmcnt(0)")
        def put(slot, reg):
            a(f"v_mov_b32 v4, {reg}")
            a(f"buffer_atomic_umax v4, v1, s[44:47], 0 offen offset:{4*slot} sc1")
        a("s_not_b32 s60, s64")
        put(0, "s60"); put(1, "s64")
        a("s_lshr_b32 s5, s2, 3")
        a("s_cmp_ge_u32 s5, 24")
        a("s_cbranch_scc1 LdG")
        a("s_cmp_ge_u32 s5, 16")
        a("s_cbranch_scc1 LdW")
        for slot, k in ((6, 3), (7, 9), (8, 5), (15, 8)): put(slot, f"s{64+2*k}")
        a("s_endpgm")
        a.label("LdW")
        for slot, k in ((3, 2), (4, 3), (5, 4), (9, 6), (10, 7), (11, 8)): put(slot, f"s{64+2*k}")
        a("s_endpgm")
        a.label("LdG")
        for slot, k in ((2, 3), (12, 6), (13, 7), (14, 9)): put(slot, f"s{64+2*k}")
    def dump_gamp(self):
        a = self.a
        k, lo, hi = self.o["gamp"] // 10000, self.o["gamp"] // 100 % 100, self.o["gamp"] % 100
        a("s_waitcnt lgkmcnt(0)")
        a("s_lshr_b32 s5, s2, 3")
        a(f"s_sub_u32 s60, s5, {lo}")
        a(f"s_cmp_lt_u32 s60, {hi-lo}")
        a(f"s_cselect_b32 s61, s{64+2*k}, 0")
        a("s_cmp_eq_u32 s61, 0")
        a("s_cselect_b32 s61, s64, s61")
        a("s_lshl_b32 s60, s2, 2")
        a("s_add_u32 s60, s60, s3")
        a("s_lshl_b32 s60, s60, 2")
        a(f"s_add_u32 s60, s60, {STAMP}")
        a("s_mov_b64 exec, 1")
        a("v_mov_b32 v1, 0")
        a("v_mov_b32 v4, s64")
        a("v_mov_b32 v5, s61")
        a("buffer_store_dword v4, v1, s[40:43], s60 offen sc1")
        a("s_add_u32 s60, s60, 4096")
        a("buffer_store_dword v5, v1, s[40:43], s60 offen sc1")
        a("s_mov_b64 exec, -1")
        a("s_cmp_eq_u32 s2, 0")
        a("s_cbranch_scc0 Lexit")
        a("s_cmp_eq_u32 s3, 1")
        a("s_cbranch_scc0 Lexit")
        def until(reg):
            L = self.lab("Lu")
            a.label(L)
            a("s_memrealtime s[98:99]")
            a("s_waitcnt lgkmcnt(0)")
            a("s_sub_u32 s98, s98, s64")
            a(f"s_cmp_lt_u32 s98, {reg}")
            a(f"s_cbranch_scc1 {L}")
        until(3000)
        a("v_lshlrev_b32 v2, 4, v0")
        a(f"s_mov_b32 s60, {STAMP}")
        a(f"s_mov_b32 s61, {STAMP+4096}")
        for i in range(4):
            a(f"buffer_load_dwordx4 v[{8+4*i}:{11+4*i}], v2, s[40:43], s60 offen offset:{1024*i} sc1")
            a(f"buffer_load_dwordx4 v[{24+4*i}:{27+4*i}], v2, s[40:43], s61 offen offset:{1024*i} sc1")
        a("s_waitcnt vmcnt(0)")
        for i in range(32): a(f"v_subrev_u32 v{8+i}, s64, v{8+i}")
        for i in range(1, 16):
            a(f"v_min_i32 v8, v8, v{8+i}")
            a(f"v_max_i32 v24, v24, v{24+i}")
        a("s_mov_b32 s60, 0")
        a("s_mov_b32 s61, 0")
        for l in range(64):
            a(f"v_readlane_b32 s62, v8, {l}")
            a(f"v_readlane_b32 s63, v24, {l}")
            a("s_min_i32 s60, s60, s62")
            a("s_max_i32 s61, s61, s63")
        a("s_sub_u32 s61, s61, s60")
        a("s_mul_i32 s61, s61, 40")
        a("s_add_u32 s100, s61, 4000")
        until("s100")
    def dump_stamps(self):
        if not self.diag: return
        if self.o.get("gamp") is not None: return self.dump_gamp()
        if self.o.get("dmax"): return self.dump_max()
        a = self.a
        a("s_waitcnt lgkmcnt(0)")
        a("s_mov_b64 exec, 1")
        a("s_mul_i32 s60, s2, 5")
        a("s_add_u32 s60, s60, s3")
        a("s_lshl_b32 s60, s60, 6")
        a(f"s_add_u32 s60, s60, {STAMP}")
        a("v_mov_b32 v1, 0")
        for q in range(3):
            for i in range(4):
                a(f"v_mov_b32 v{4+i}, s{64+2*(4*q+i)}")
            a(f"buffer_store_dwordx4 v[4:7], v1, s[40:43], s60 offen offset:{16*q}")
            a("s_nop 1")
    def end(self, helper=False):
        self.a("s_branch Ldump" if self.diag and (not helper or self.o.get("hdump")) else "s_endpgm")
    def delay(self, key):
        n = self.o.get(key, 0)
        if not n: return
        a = self.a
        L = self.lab("Ld")
        a.label(L)
        a("s_memrealtime s[98:99]")
        a("s_waitcnt lgkmcnt(0)")
        a("s_sub_u32 s98, s98, s64")
        a(f"s_cmp_lt_u32 s98, {n}")
        a(f"s_cbranch_scc1 {L}")
    def guard(self, n, fall=True, fill=None):
        L = self.lab("Lg")
        if fall: self.a(f"s_branch {L}")
        if fill: fill()
        self.a(f".p2align 12, , {n}")
        self.a.label(L)
    def srd(self, d, p, size):
        a = self.a
        a(f"s_mov_b64 s[{d}:{d+1}], s[{p}:{p+1}]")
        a(f"s_mov_b32 s{d+2}, {size}")
        a(f"s_mov_b32 s{d+3}, 0x20000")
    def tag(self):
        self.a("s_mul_i32 s14, s14, 0x9E3779B1")
        self.a("s_add_u32 s14, s14, 0x7F4A7C15")
    def exec16(self, m):
        self.a(f"s_mov_b32 exec_lo, {(m << 16 | m):#x}")
        self.a(f"s_mov_b32 exec_hi, {(m << 16 | m):#x}")
    def poll(self, loads, checks, sleep=0, after=None):
        a = self.a
        L = self.lab("Lp"); D = self.lab("Lpd")
        n = len(loads)
        a(f"s_mov_b32 s12, {SPIN}")
        a.label(L)
        for l in loads: a(l)
        for i, (op, opd, r) in enumerate(checks):
            a(f"s_waitcnt vmcnt({n-1-i})")
            if i == 0:
                a(f"{op} s[10:11], {opd}, v{r}")
            else:
                a(f"{op} vcc, {opd}, v{r}")
                a("s_or_b64 s[10:11], s[10:11], vcc")
            if after: after(i)
        a("s_cmp_eq_u64 s[10:11], 0")
        a(f"s_cbranch_scc1 {D}")
        if sleep: a(f"s_sleep {sleep}")
        a("s_sub_u32 s12, s12, 1")
        a(f"s_cbranch_scc0 {L}")
        a.label(D)
    def spin(self, body, sleep=0, alt=None, issue=None, mid=None):
        a = self.a
        L = self.lab("Lp"); D = self.lab("Lpd")
        n = SPIN
        if alt:
            sregs, delta, every = alt
            for i, r in enumerate(sregs):
                a(f"s_mov_b32 s{96+2*i}, s{r}")
                a(f"s_add_u32 s{97+2*i}, s{r}, {delta}")
                a(f"s_mov_b32 s{r}, s{97+2*i}")
            n = SPIN * 4 | (every - 1)
        a(f"s_mov_b32 s12, {n}")
        if issue:
            E = self.lab("Lpe")
            issue(); mid()
            a(f"s_branch {E}")
        a.label(L)
        if issue:
            issue()
            a.label(E)
        body()
        a("s_cmp_eq_u64 s[10:11], 0")
        a(f"s_cbranch_scc1 {D}")
        if sleep: a(f"s_sleep {sleep}")
        if alt:
            a(f"s_and_b32 s13, s12, {every-1}")
            for i, r in enumerate(sregs): a(f"s_cselect_b32 s{r}, s{97+2*i}, s{96+2*i}")
        a("s_sub_u32 s12, s12, 1")
        a(f"s_cbranch_scc0 {L}")
        a.label(D)
    def ssent(self, soff, offs, cnt=13):
        a = self.a
        L = self.lab("Ls"); D = self.lab("Lsd")
        a(f"s_mov_b32 s{cnt}, {SPIN}")
        a.label(L)
        for k, o in enumerate(offs): a(f"s_load_dword s{88+k}, s[40:41], s{soff} offset:{o} glc")
        a("s_waitcnt lgkmcnt(0)")
        for k in range(len(offs)): a(f"s_xor_b32 s{88+k}, s{88+k}, s14")
        for k in range(1, len(offs)): a(f"s_or_b32 s88, s88, s{88+k}")
        a(f"s_cbranch_scc0 {D}")
        a(f"s_sub_u32 s{cnt}, s{cnt}, 1")
        a(f"s_cbranch_scc0 {L}")
        a.label(D)
    def sum_poll(self, loads, base, acc, mid=None):
        a = self.a
        n = len(loads)
        def issue():
            for l in loads: a(l)
        def body():
            if not mid: issue()
            for i in range(1, n):
                a(f"s_waitcnt vmcnt({n-1-i})")
                src = base if i == 1 else acc
                for k in range(2): a(f"v_pk_add_f32 v[{acc+2*k}:{acc+1+2*k}], v[{src+2*k}:{src+1+2*k}], v[{base+4*i+2*k}:{base+1+4*i+2*k}]")
            a(f"v_cmp_u_f32 s[10:11], v{acc}, v{acc+1}")
            a(f"v_cmp_u_f32 vcc, v{acc+2}, v{acc+3}")
            a("s_or_b64 s[10:11], s[10:11], vcc")
        self.spin(body, issue=issue if mid else None, mid=mid)
    def silu(self, regs, tmp):
        a = self.a
        for i, r in enumerate(regs): a(f"v_mul_f32 v{tmp+i}, {f32(-LOG2E)}, v{r}")
        for i, r in enumerate(regs): a(f"v_exp_f32 v{tmp+i}, v{tmp+i}")
        for i, r in enumerate(regs): a(f"v_add_f32 v{tmp+i}, 1.0, v{tmp+i}")
        for i, r in enumerate(regs): a(f"v_rcp_f32 v{tmp+i}, v{tmp+i}")
        for i, r in enumerate(regs): a(f"v_mul_f32 v{r}, v{r}, v{tmp+i}")
    def unpack(self, src, dst, n):
        for i in range(n):
            self.a(f"v_lshlrev_b32 v{dst+2*i}, 16, v{src+i}")
            self.a(f"v_and_b32 v{dst+2*i+1}, 0xffff0000, v{src+i}")
    def row_sum(self, r):
        for m in ("quad_perm:[1,0,3,2]", "quad_perm:[2,3,0,1]", "row_half_mirror", "row_mirror"):
            self.a(f"v_add_f32_dpp v{r}, v{r}, v{r} {m} row_mask:0xf bank_mask:0xf")
    def silu_frag(self, base):
        a = self.a
        a("v_bfe_u32 v10, v0, 4, 1")
        a("v_mul_u32_u24 v5, 144, v10")
        a("v_bfe_u32 v4, v0, 3, 1")
        a("v_lshl_add_u32 v5, v4, 6, v5")
        a("v_and_b32 v4, 3, v0")
        a("v_lshl_add_u32 v5, v4, 4, v5")
        a("v_bfe_u32 v4, v0, 2, 1")
        a("v_lshl_add_u32 v5, v4, 3, v5")
        a(f"v_add_u32 v5, {base}, v5")
    def silu_run(self):
        a = self.a
        self.unpack(28, 16, 2)
        self.silu([16, 17, 18, 19], 24)
        a("v_cvt_pk_bf16_f32 v28, v16, v17")
        a("v_cvt_pk_bf16_f32 v29, v18, v19")
        a("ds_write_b64 v5, v[28:29]")
    def c_voff(self, d):
        a = self.a
        a(f"v_bfe_u32 v{d}, v0, 4, 1")
        a(f"v_lshlrev_b32 v{d}, 10, v{d}")
        a("v_and_b32 v11, 15, v0")
        a(f"v_lshl_add_u32 v{d}, v11, 3, v{d}")
    def mfma(self, d, A, B, first):
        c = "0" if first else f"v[{d}:{d+3}]"
        self.a(f"{MFMA} v[{d}:{d+3}], v[{A}:{A+3}], v[{B}:{B+3}], {c}")
    def tr(self, r, va, off, second):
        self.a(f"ds_read_b64_tr_b16 v[{r}:{r+1}], v{va} offset:{off}")
        self.a(f"ds_read_b64_tr_b16 v[{r+2}:{r+3}], v{va} offset:{off+second}")
    def voff256(self, d, stride_sh, t0, t1):
        a = self.a
        a(f"v_lshrrev_b32 v{t0}, 4, v0")
        a(f"v_and_b32 v{t1}, 15, v0")
        a(f"v_lshlrev_b32 v{d}, 1, v{t0}")
        a(f"v_xor_b32 v{d}, v{t1}, v{d}")
        a(f"v_lshlrev_b32 v{d}, 4, v{d}")
        a(f"v_lshl_add_u32 v{d}, v{t0}, {stride_sh}, v{d}")
        a(f"v_xor_b32 v{d+1}, 0x80, v{d}")
    def voff128(self, d, stride, t0, t1):
        a = self.a
        a(f"v_lshrrev_b32 v{t0}, 3, v0")
        a(f"v_and_b32 v{d}, 6, v{t0}")
        a(f"v_and_b32 v{t1}, 7, v0")
        a(f"v_xor_b32 v{d}, v{d}, v{t1}")
        a(f"v_mul_u32_u24 v{t0}, {stride}, v{t0}")
        a(f"v_lshl_add_u32 v{d}, v{d}, 4, v{t0}")
    def traddr256(self, d, n, base, t0, t1, first=None):
        a = self.a
        a(f"v_lshrrev_b32 v{t0}, 2, v0")
        a(f"v_and_b32 v{d}, 7, v{t0}")
        a(f"v_lshlrev_b32 v{d}, 5, v{d}")
        a(f"v_lshl_add_u32 v{d}, v{t0}, 8, v{d}")
        a(f"v_and_b32 v{t1}, 3, v0")
        a(f"v_lshl_add_u32 v{d}, v{t1}, 3, v{d}")
        if first: a(f"v_xor_b32 v{d}, {first}, v{d}")
        a(f"v_add_u32 v{d}, {base}, v{d}")
        for i in range(1, n): a(f"v_xor_b32 v{d+i}, {32*i}, v{d}")
    def traddr128(self, d, base, t0, t1, grp_sh=10, n=4):
        a = self.a
        a(f"v_bfe_u32 v{t0}, v0, 2, 3")
        a(f"v_bfe_u32 v{d}, v0, 3, 2")
        a(f"v_lshlrev_b32 v{d}, 5, v{d}")
        a(f"v_lshl_add_u32 v{d}, v{t0}, 7, v{d}")
        a(f"v_lshrrev_b32 v{t0}, 5, v0")
        a(f"v_lshl_add_u32 v{d}, v{t0}, {grp_sh}, v{d}")
        a(f"v_and_b32 v{t1}, 3, v0")
        a(f"v_lshl_add_u32 v{d}, v{t1}, 3, v{d}")
        if base is not None: a(f"v_add_u32 v{d}, {base}, v{d}")
        for i in range(1, n): a(f"v_xor_b32 v{d+i}, {32*i}, v{d}")

    def prologue(self):
        a = self.a
        a("s_cmp_ge_u32 s2, 256")
        a("s_cbranch_scc1 Lexit")
        a("s_load_dwordx16 s[16:31], s[0:1], 0")
        a("s_load_dwordx8 s[32:39], s[0:1], 64")
        a("s_load_dwordx2 s[40:41], s[0:1], 104")
        if self.diag:
            for k in range(1, 12): a(f"s_mov_b32 s{64+2*k}, 0")
        self.stamp(0)
        if self.o.get("padto"): a("s_memrealtime s[96:97]")
        a("s_getpc_b64 s[56:57]")
        a.label("Lpc0")
        a("s_lshr_b32 s5, s2, 3")
        a("v_lshrrev_b32 v1, 6, v0")
        a("s_mul_i32 s6, s5, 640")
        a("v_lshl_add_u32 v2, v1, 7, s6")
        a("v_min_u32 v2, Lcode_end-Lpc0-4, v2")
        a("global_load_dword v239, v2, s[56:57]")
        a("v_and_b32 v0, 63, v0")
        a("s_and_b32 s4, s2, 7")
        a("v_readfirstlane_b32 s3, v1")
        a(f"s_mov_b32 s42, {WS_SIZE}")
        a("s_mov_b32 s43, 0x20000")
        a("s_mov_b32 s47, 0x20000")
        a("s_mov_b32 s51, 0x20000")
        a("s_lshl_b32 s7, s3, 14")
        a("s_cmp_ge_u32 s5, 24")
        a("s_cbranch_scc1 LG0")
        a("s_cmp_eq_u32 s3, 4")
        a("s_cbranch_scc1 LH0")
        self.voff256(6, 8, 1, 8)
        a("s_mov_b32 m0, s7")
        a("s_cmp_ge_u32 s5, 16")
        a("s_cbranch_scc0 LT0")

    def tw_early(self):
        a, wf = self.a, self.wf
        a.label("LT0")
        a("s_and_b32 s6, s5, 8")
        a("s_add_u32 s6, s6, s4")
        a("s_lshl_b32 s6, s6, 21")
        a("s_and_b32 s8, s5, 7")
        a("s_lshl_b32 s8, s8, 16")
        a("s_add_u32 s6, s6, s8")
        a("s_add_u32 s6, s6, s7")
        a(f"s_add_u32 s6, s6, {6144*256}")
        a("v_xor_b32 v2, v8, v1")
        a("v_lshlrev_b32 v2, 4, v2")
        a("v_lshl_add_u32 v2, v1, 8, v2")
        a("v_xor_b32 v3, 64, v2")
        a("v_xor_b32 v4, 0x80, v2")
        a("v_xor_b32 v5, 0xc0, v2")
        a("s_mov_b32 s8, s6")
        a("s_add_u32 s9, s6, 16384")
        a("s_mov_b32 s46, 0x2000000")
        a("s_mov_b32 s50, 0x2000000")
        a("s_add_u32 s10, s6, 8192")
        a("s_waitcnt lgkmcnt(0)")
        a("s_mov_b64 s[44:45], s[18:19]")
        a("s_mov_b64 s[48:49], s[20:21]")
        a("s_load_dword s14, s[40:41], 0")
        cap = self.o.get("cap", 8)
        for half in range(2):
            L = self.lab("LTWk")
            a.label(L)
            for i in range(4):
                a(f"buffer_load_dwordx4 v{2+i}, s[44:47], s8 offen offset:{1024*i} {wf} lds")
                if cap and half: a(f"s_waitcnt vmcnt({cap})")
            a("s_add_u32 m0, m0, 4096")
            a("s_add_u32 s8, s8, 4096")
            a(f"s_cmp_lt_u32 s8, s{10-half}")
            a(f"s_cbranch_scc1 {L}")
            if half == 0:
                a("s_branch LTpx")
                a.label("LTpr")
        self.stamp(10)
        if self.o.get("tnear"): a("s_branch LTW1")

    def tw_issue(self):
        a, wf = self.a, self.wf
        cap = self.o.get("vcap", 8)
        if self.o.get("tnear"):
            a.label("LTHp")
            a("s_branch LTH")
            a.label("LTW1")
        a("s_lshl_b32 s55, s4, 14")
        a("s_and_b32 s13, s5, 8")
        a("s_lshl_b32 s13, s13, 10")
        a("s_add_u32 s55, s55, s13")
        a("s_lshl_b32 s13, s3, 11")
        a("s_add_u32 s55, s55, s13")
        a(f"s_add_u32 s55, s55, {HB}")
        a("v_lshlrev_b32 v21, 4, v0")
        a("v_mov_b32 v229, v21")
        a("s_lshl_b32 s27, s4, 7")
        a(f"s_add_u32 s27, s27, {RDY+2048}")
        a(f"s_add_u32 m0, s7, {VB}")
        a("s_mov_b32 s8, s6")
        a("s_waitcnt lgkmcnt(0)")
        self.tag()
        for g in range(4):
            if g == 2:
                a("s_mov_b64 exec, 0xff")
                self.rdy_load()
                a("s_mov_b64 exec, -1")
            for i in range(4):
                a(f"buffer_load_dwordx4 v{6+(i&1)}, s[48:51], s8 offen offset:{1024*i} {wf} lds")
                if cap: a(f"s_waitcnt vmcnt({cap})")
            if g < 3:
                a("s_add_u32 m0, m0, 4096")
                a("s_add_u32 s8, s8, 4096")
        a("s_waitcnt vmcnt(8)")
        a("s_mov_b64 exec, 0xff")
        self.rdy_check()
        a("s_mov_b64 exec, -1")
        self.qfetch()

    def qfetch(self):
        for i in range(2): self.a(f"buffer_load_dwordx4 v[{192+4*i}:{195+4*i}], v21, s[40:43], s55 offen offset:{1024*i} sc1")

    def ww_early(self):
        a, wf = self.a, self.wf
        a.label("LW0")
        if self.o.get("now"): a("s_endpgm")
        a("s_lshl_b32 s9, s4, 19")
        a("s_and_b32 s52, s5, 7")
        a("s_lshl_b32 s15, s52, 10")
        a("s_add_u32 s9, s9, s15")
        a("s_lshl_b32 s15, s3, 8")
        a("s_add_u32 s9, s9, s15")
        a("v_mul_u32_u24 v2, 0x1f00, v1")
        a("v_add_u32 v6, v6, v2")
        a("v_add_u32 v7, v7, v2")
        a("s_add_u32 s13, s7, 16384")
        a(f"s_mov_b32 s46, {512*8192}")
        a("s_waitcnt lgkmcnt(0)")
        a("s_mov_b64 s[44:45], s[22:23]")
        if self.o.get("pf3", 0):
            a("s_cmp_eq_u32 s4, 3")
            a("s_cbranch_scc0 LWp")
            a("s_mov_b64 s[48:49], s[36:37]")
            a(f"s_mov_b32 s50, {512*6144}")
            a("s_lshl_b32 s15, s52, 2")
            a("s_add_u32 s15, s15, s3")
            a(f"s_mul_i32 s15, s15, {16*6144}")
            a("v_mul_u32_u24 v3, 6144, v8")
            a("s_mov_b64 exec, 0xffff")
            a(f"buffer_load_dword v238, v3, s[48:51], s15 offen offset:{1024+384}")
            a("s_mov_b64 exec, -1")
            a.label("LWp")
        a("s_load_dword s14, s[40:41], 0")
        a.label("LWq")
        for i in range(2):
            a(f"buffer_load_dwordx4 v{6+i}, s[44:47], s9 offen {wf} lds")
            a("s_add_u32 m0, m0, 1024")
            a("s_add_u32 s9, s9, 32768")
        if self.o.get("qcap", 8): a(f"s_waitcnt vmcnt({self.o.get('qcap', 8)})")
        a("s_cmp_lt_u32 m0, s13")
        a("s_cbranch_scc1 LWq")
        a("s_branch LW2")
        a.label("LH0")
        a("s_cmp_ge_u32 s5, 16")
        a("s_cbranch_scc0 " + ("LTHp" if self.o.get("tnear") else "LTH"))
        a("s_branch LWHp")

    def g_early(self):
        a, wf = self.a, self.wf
        a.label("LG0")
        if self.o.get("nog"): a("s_endpgm")
        a("s_sub_u32 s5, s5, 24")
        if self.o.get("chs", 0):
            a("s_mov_b32 s60, s5")
            a("s_mov_b32 s61, s4")
        else:
            a("s_mov_b32 s60, s4")
            a("s_mov_b32 s61, s5")
        a("s_mov_b32 s50, 2048")
        a("s_cmp_eq_u32 s3, 4")
        a("s_cbranch_scc0 LGW")
        self.c_voff(4)
        a("s_lshl_b32 s9, s61, 7")
        a("s_waitcnt lgkmcnt(0)")
        a("s_mov_b64 s[48:49], s[34:35]")
        a("buffer_load_dwordx2 v[28:29], v4, s[48:51], s9 offen")
        a("s_load_dword s14, s[40:41], 0")
        self.silu_frag(SC)
        a("s_waitcnt vmcnt(0)")
        self.silu_run()
        a("s_waitcnt lgkmcnt(0)")
        a("s_barrier")
        a("s_barrier")
        a("s_branch LGH2")
        a.label("LGW")
        a("v_lshlrev_b32 v6, 4, v0")
        self.voff128(2, 6144, 1, 3)
        a("s_lshl_b32 s9, s61, 2")
        a("s_add_u32 s9, s9, s3")
        a(f"s_mul_i32 s9, s9, {16*6144}")
        a("s_lshl_b32 s6, s60, 7")
        a("s_add_u32 s9, s9, s6")
        a("s_lshl_b32 s13, s3, 5")
        a("s_add_u32 s6, s6, s13")
        a("v_and_b32 v12, 1, v0")
        a("v_and_b32 v13, 48, v0")
        a("v_lshrrev_b32 v4, 1, v13")
        a("v_lshl_add_u32 v4, v12, 10, v4")
        a("v_lshrrev_b32 v14, 5, v0")
        a("v_lshlrev_b32 v14, 10, v14")
        a("v_and_b32 v15, 31, v0")
        a("v_lshl_add_u32 v14, v15, 3, v14")
        a("s_lshl_b32 s63, s3, 8")
        a("s_lshr_b32 m0, s7, 2")
        a(f"s_mov_b32 s54, {512*6144}")
        a("s_mov_b32 s55, 0x20000")
        a("s_lshl_b32 s8, s60, 12")
        a("s_lshl_b32 s15, s3, 10")
        a("s_add_u32 s8, s8, s15")
        a("s_lshl_b32 s15, s61, 7")
        a("s_add_u32 s8, s8, s15")
        a(f"s_add_u32 s8, s8, {HA}")
        a(f"s_add_u32 s62, s8, {ALOC}")
        a("s_waitcnt lgkmcnt(0)")
        self.dstamp(4)
        a("s_mov_b64 s[48:49], s[16:17]")
        a("s_mov_b64 s[52:53], s[36:37]")
        lnh = self.o.get("lnh", 1)
        if lnh:
            a("buffer_load_dwordx2 v[24:25], v14, s[48:51], s63 offen")
        else:
            a("buffer_load_dwordx4 v[24:27], v6, s[48:51], 0 offen")
            a("buffer_load_dwordx4 v[28:31], v6, s[48:51], 0 offen offset:1024")
        self.exec16(3)
        a("buffer_load_dwordx2 v[20:21], v4, s[48:51], s6 offen")
        a("s_mov_b64 exec, -1")
        for i in range(2):
            a(f"buffer_load_dwordx4 v2, s[52:55], s9 offen {wf} lds")
            a(f"buffer_load_dwordx4 v2, s[52:55], s9 offen offset:1024 {wf} lds")
            if i == 0:
                a("s_add_u32 m0, m0, 2048")
                a(f"s_add_u32 s9, s9, {8*6144}")
        a("s_mov_b64 exec, 1")
        a("buffer_load_dword v238, v6, s[40:43], s62 offen sc1")
        a("s_mov_b64 exec, -1")
        a("s_load_dword s14, s[40:41], 0")
        mr0 = 0
        self.traddr128(8, None, 1, 3, grp_sh=11, n=1)
        a("v_xor_b32 v8, s13, v8")
        a("v_mul_u32_u24 v6, 144, v12")
        a("v_add_u32 v6, v6, v13")
        a(f"v_add_u32 v6, {SC}, v6")
        a("v_lshlrev_b32 v7, 4, v12")
        a("v_lshl_add_u32 v13, v13, 1, v7")
        a("s_cmp_eq_u32 s61, 0")
        a("s_cselect_b32 s9, 1.0, 0")
        for i in range(4): a(f"v_mov_b32 v{44+i}, s9")
        a("s_mov_b32 s9, 0x3f803f80")
        if lnh:
            a("v_and_b32 v15, 48, v0")
            a("s_lshl_b32 s15, s3, 2")
            a(f"s_add_u32 s15, s15, {LNS}")
            a("v_add_u32 v15, s15, v15")
            a("v_lshlrev_b32 v7, 5, v12")
            a(f"v_add_u32 v7, {LNS}, v7")
            a(f"v_mov_b32 v52, {f32(1e-5)}")
            self.dstamp(6)
            a("s_waitcnt vmcnt(5) lgkmcnt(0)")
            self.dstamp(7)
            self.tag()
            a("v_dot2_f32_bf16 v48, v24, s9, 0")
            a("v_dot2_f32_bf16 v50, v24, v24, 0")
            a("v_dot2_f32_bf16 v48, v25, s9, v48")
            a("v_dot2_f32_bf16 v50, v25, v25, v50")
            self.unpack(20, 16, 2)
            a("v_permlane16_swap_b32 v48, v50")
            a("v_add_f32 v48, v48, v50")
            self.row_sum(48)
            a("ds_write_b32 v15, v48")
            a("s_waitcnt lgkmcnt(0)")
        else:
            a("v_lshlrev_b32 v7, 7, v12")
            a(f"s_waitcnt vmcnt({5+mr0})")
            for b in range(2):
                a(f"v_dot2_f32_bf16 v{48+b}, v{24+4*b}, s9, 0")
                a(f"v_dot2_f32_bf16 v{50+b}, v{24+4*b}, v{24+4*b}, 0")
            for i in range(1, 4):
                for b in range(2):
                    a(f"v_dot2_f32_bf16 v{48+b}, v{24+4*b+i}, s9, v{48+b}")
                    a(f"v_dot2_f32_bf16 v{50+b}, v{24+4*b+i}, v{24+4*b+i}, v{50+b}")
            a("v_permlane32_swap_b32 v48, v49")
            a("v_permlane32_swap_b32 v50, v51")
            a("v_add_f32 v48, v48, v49")
            a("v_add_f32 v50, v50, v51")
            a("v_permlane16_swap_b32 v48, v50")
            a("v_add_f32 v48, v48, v50")
            self.row_sum(48)
            a("ds_bpermute_b32 v50, v7, v48")
            a("ds_bpermute_b32 v51, v7, v48 offset:64")
            a(f"v_mov_b32 v52, {f32(1e-5)}")
            a("s_waitcnt lgkmcnt(0)")
            self.tag()
            a(f"v_mul_f32 v50, {f32(1/512)}, v50")
            a(f"v_fmamk_f32 v51, v51, {f32(1/512)}, v52")
            a("v_fma_f32 v51, -v50, v50, v51")
            a("v_rsq_f32 v51, v51")
            self.unpack(20, 16, 2)
            for i in range(4): a(f"v_sub_f32 v{16+i}, v{16+i}, v50")
            for i in range(4): a(f"v_mul_f32 v{16+i}, v{16+i}, v51")
        a("v_mov_b32 v58, s14")
        a("v_mov_b32 v59, s14")
        a(f"s_waitcnt vmcnt({1+mr0})")
        self.dstamp(8)
        a("s_barrier")
        self.stamp(1)
        if lnh:
            a("ds_read_b128 v[24:27], v7")
            a("ds_read_b128 v[28:31], v7 offset:16")
        for ks in range(2):
            a(f"ds_read_b128 v[{32+4*ks}:{35+4*ks}], v6 offset:{64*ks}")
            for seg in range(2): self.tr(64 + 8 * ks + 4 * seg, 8, W1 + 8192 * ks + 1024 * seg, 4096)
        if lnh:
            a("s_waitcnt lgkmcnt(10)")
            a("v_pk_add_f32 v[24:25], v[24:25], v[26:27]")
            a("v_pk_add_f32 v[28:29], v[28:29], v[30:31]")
            a("v_add_f32 v50, v24, v25")
            a("v_add_f32 v51, v28, v29")
            a(f"v_mul_f32 v50, {f32(-1/512)}, v50")
            a(f"v_fmamk_f32 v51, v51, {f32(1/512)}, v52")
            a("v_fma_f32 v51, -v50, v50, v51")
            a("v_max_f32 v51, v51, v52")
            a("v_rsq_f32 v51, v51")
            for k in range(2): a(f"v_pk_add_f32 v[{16+2*k}:{17+2*k}], v[{16+2*k}:{17+2*k}], v[50:51] op_sel_hi:[1,0]")
            for k in range(2): a(f"v_pk_mul_f32 v[{16+2*k}:{17+2*k}], v[{16+2*k}:{17+2*k}], v[50:51] op_sel:[0,1] op_sel_hi:[1,1]")
        a("s_waitcnt lgkmcnt(5)")
        self.mfma(40, 64, 32, True)
        self.mfma(44, 68, 32, False)
        a("s_waitcnt lgkmcnt(0)")
        self.mfma(40, 72, 36, False)
        self.mfma(44, 76, 36, False)
        self.exec16(3)
        for k in range(2): a(f"v_pk_fma_f32 v[{40+2*k}:{41+2*k}], v[{16+2*k}:{17+2*k}], v[{44+2*k}:{45+2*k}], v[{40+2*k}:{41+2*k}]")
        a("v_cvt_pk_bf16_f32 v56, v40, v41")
        a("v_cvt_pk_bf16_f32 v57, v42, v43")
        a("buffer_store_dwordx4 v[56:59], v13, s[40:43], s62 offen")
        self.stamp(3)
        a("s_barrier")
        a("buffer_store_dwordx4 v[56:59], v13, s[40:43], s8 offen sc1")
        a("s_mov_b64 exec, -1")

    def wo_setup(self):
        a = self.a
        self.voff128(2, 1024, 3, 4)
        a("s_lshl_b32 s53, s4, 19")
        a("s_lshl_b32 s15, s3, 17")
        a("s_add_u32 s53, s53, s15")
        a("s_lshr_b32 s15, s52, 2")
        a("s_add_u32 s53, s53, s15")
        a(f"s_add_u32 s59, s7, {WO+16384}")
        a(f"s_add_u32 s62, s7, {WO}")
        a("s_mov_b64 s[48:49], s[24:25]")
        a(f"s_mov_b32 s50, {4096*1024}")
    def mr_issue(self, v, srd):
        a, wf = self.a, self.wf
        L = self.lab("Lmr")
        a(f"s_mul_i32 s9, s61, {64*6144}")
        a("s_lshl_b32 s15, s60, 9")
        a("s_add_u32 s9, s9, s15")
        a("s_lshl_b32 s15, s3, 7")
        a("s_add_u32 s9, s9, s15")
        a("s_add_u32 s9, s9, 2048")
        a("s_mov_b32 m0, s63")
        a("s_add_u32 s15, s63, 8192")
        a.label(L)
        a(f"buffer_load_dwordx4 v{v}, s[{srd}:{srd+3}], s9 offen {wf} lds")
        a("s_add_u32 m0, m0, 1024")
        a(f"s_add_u32 s9, s9, {8*6144}")
        a("s_cmp_lt_u32 m0, s15")
        a(f"s_cbranch_scc1 {L}")
    def mr_compute(self, sc, younger):
        a = self.a
        self.traddr128(8, "s63", 5, 6)
        a("v_and_b32 v5, 1, v0")
        a("v_and_b32 v6, 48, v0")
        a("v_mul_u32_u24 v7, 144, v5")
        a("v_add_u32 v7, v7, v6")
        a(f"v_add_u32 v7, {sc}, v7")
        a("v_lshlrev_b32 v5, 4, v5")
        a("v_lshl_add_u32 v5, v6, 1, v5")
        for ks in range(2): a(f"ds_read_b128 v[{32+4*ks}:{35+4*ks}], v7 offset:{64*ks}")
        a("s_lshl_b32 s9, s60, 14")
        a("s_lshl_b32 s15, s3, 12")
        a("s_add_u32 s9, s9, s15")
        a("s_lshl_b32 s15, s61, 7")
        a("s_add_u32 s9, s9, s15")
        a(f"s_add_u32 s9, s9, {HP}")
        a(f"s_waitcnt vmcnt({younger})")
        a("s_setprio 3")
        for ks in range(2):
            for t in range(4): self.tr(64 + 16 * ks + 4 * t, 8 + t, 4096 * ks, 2048)
        a("s_waitcnt lgkmcnt(0)")
        for ks in range(2):
            for t in range(4): self.mfma(40 + 4 * t, 64 + 16 * ks + 4 * t, 32 + 4 * ks, ks == 0)
        self.exec16(3)
        for t in range(4):
            a(f"v_cvt_pk_bf16_f32 v{40+4*t}, v{40+4*t}, v{41+4*t}")
            a(f"v_cvt_pk_bf16_f32 v{41+4*t}, v{42+4*t}, v{43+4*t}")
            a(f"v_mov_b32 v{42+4*t}, s14")
        for t in range(4): a(f"buffer_store_dwordx4 v[{40+4*t}:{43+4*t}], v5, s[40:43], s9 offen offset:{1024*t} sc1")
        a("s_mov_b64 exec, -1")
        a("s_setprio 0")
        self.stamp(11)
    def rdy_publish(self, vb, jreg):
        a = self.a
        for i in range(4): a(f"v_mov_b32 v{vb+i}, s14")
        a(f"v_mov_b32 v{vb+4}, 0")
        a(f"s_lshl_b32 s15, {jreg}, 4")
        a(f"s_add_u32 s15, s15, {RDY}")
        a("s_mov_b64 exec, 1")
        a(f"buffer_store_dwordx4 v[{vb}:{vb+3}], v{vb+4}, s[40:43], s15 offen sc1")
        a("s_mov_b64 exec, -1")
    def rdy_load(self):
        self.a("buffer_load_dword v237, v229, s[40:43], s27 offen sc1")
    def rdy_check(self):
        a = self.a
        L = self.lab("Lok")
        a("v_cmp_ne_u32 vcc, s14, v237")
        a(f"s_cbranch_vccz {L}")
        self.poll(["buffer_load_dword v237, v229, s[40:43], s27 offen sc1"], [(*self.TAGBAD, 237)], sleep=2)
        a.label(L)

    def g_index(self):
        a = self.a
        a("s_mul_i32 s26, s4, 7")
        a("s_add_u32 s26, s26, s5")
        a("s_cmp_eq_u32 s5, 7")

    def tw_main(self):
        a = self.a
        self.stamp(1)
        a("v_lshlrev_b32 v22, 2, v8")
        a("v_lshrrev_b32 v23, 5, v0")
        a("v_lshl_add_u32 v22, v23, 1, v22")
        a("v_and_b32 v23, 16, v0")
        a("v_lshl_add_u32 v22, v23, 3, v22")
        a("s_mul_i32 s13, s3, 272")
        a(f"s_add_u32 s13, s13, {QB}")
        a("v_add_u32 v22, s13, v22")
        a("v_xor_b32 v3, v8, v1")
        a("v_lshlrev_b32 v3, 4, v3")
        a("v_lshl_add_u32 v3, v8, 8, v3")
        a("v_add_u32 v8, s7, v3")
        a("v_xor_b32 v9, 64, v8")
        a("v_xor_b32 v10, 0x80, v8")
        a("v_xor_b32 v11, 0xc0, v8")
        for t in range(4):
            for ks in range(4):
                r = 64 + 16 * t + 4 * ks
                a(f"ds_read_b128 v[{r}:{r+3}], v{8+ks} offset:{4096*t}")
        a("s_lshl_b32 s8, s3, 6")
        self.traddr256(12, 2, VB, 3, 5, first="s8")
        a("v_mul_u32_u24 v20, 272, v5")
        a("v_lshl_add_u32 v20, v1, 4, v20")
        a(f"v_add_u32 v20, {QB}, v20")
        a("v_lshlrev_b32 v14, 6, v5")
        a("v_lshl_add_u32 v14, v1, 4, v14")
        a(f"v_add_u32 v14, {PB}, v14")
        a("s_lshl_b32 s9, s3, 9")
        a("v_add_u32 v15, s9, v14")
        a("v_lshlrev_b32 v16, 4, v5")
        a(f"v_add_u32 v16, {MX}, v16")
        a("s_lshl_b32 s9, s3, 2")
        a("v_add_u32 v17, s9, v16")
        a("v_lshlrev_b32 v18, 8, v5")
        a("v_lshl_add_u32 v18, v1, 4, v18")
        a("v_lshlrev_b32 v19, 2, v5")
        a("s_lshl_b32 s6, s4, 4")
        a("s_add_u32 s6, s6, s5")
        a("s_lshl_b32 s9, s6, 10")
        a("s_add_u32 s8, s8, s9")
        a(f"s_add_u32 s8, s8, {HC}")
        a("s_lshl_b32 s52, s6, 7")
        a(f"s_add_u32 s52, s52, {HL}")
        a(f"s_add_u32 s53, s8, {LOC}")
        a(f"s_add_u32 s54, s52, {LOC}")
        a(f"s_mov_b32 s10, {f32(CSC)}")
        a("s_lshl_b64 s[58:59], 1, s3")
        a("v_lshlrev_b32 v232, 6, v5")
        a(f"v_add_u32 v232, {LS}, v232")
        a("s_lshl_b32 s9, s3, 4")
        a("v_lshl_add_u32 v233, v1, 2, s9")
        a("v_add_u32 v233, v233, v232")
        def vr(k):
            for t in range(2): self.tr(128 + 8 * k + 4 * t, 12 + t, 8192 * k, 4096)
        def xrow(op, r):
            a(f"v_mov_b32 v225, v{r}")
            a(f"v_permlane16_swap_b32 v{r}, v225")
            a(f"{op} v{r}, v{r}, v225")
            a(f"v_mov_b32 v225, v{r}")
            a(f"v_permlane32_swap_b32 v{r}, v225")
            a(f"{op} v{r}, v{r}, v225")
        a(f"s_mov_b32 s12, {SPIN}")
        a("s_barrier")
        for k in (0, 2, 4, 6): vr(k)
        a("s_branch LTq1")
        a.label("LTq0")
        if self.o.get("qsleep", 0): a(f"s_sleep {self.o['qsleep']}")
        self.qfetch()
        a.label("LTq1")
        a("s_waitcnt vmcnt(1)")
        self.unpack(192, 24, 4)
        a("s_waitcnt vmcnt(0)")
        self.unpack(196, 32, 4)
        for k in range(4): a(f"v_pk_add_f32 v[{24+2*k}:{25+2*k}], v[{24+2*k}:{25+2*k}], v[{32+2*k}:{33+2*k}]")
        for i in range(4): a(f"v_permlane32_swap_b32 v{24+i}, v{28+i}")
        for k in range(2): a(f"v_pk_add_f32 v[{24+2*k}:{25+2*k}], v[{24+2*k}:{25+2*k}], v[{28+2*k}:{29+2*k}]")
        for i in range(2): a(f"v_permlane16_swap_b32 v{24+i}, v{26+i}")
        a("v_pk_add_f32 v[24:25], v[24:25], v[26:27]")
        a("v_cmp_u_f32 vcc, v24, v25")
        a("v_cvt_pk_bf16_f32 v24, v24, v25")
        a("s_cbranch_vccz LTq2")
        a("s_sub_u32 s12, s12, 1")
        a("s_cbranch_scc0 LTq0")
        a.label("LTq2")
        self.stamp(2)
        a("ds_write_b16 v22, v24")
        a("ds_write_b16_d16_hi v22, v24 offset:64")
        a("s_waitcnt lgkmcnt(0)")
        a("s_barrier")
        for ks in range(4): a(f"ds_read_b128 v[{208+4*ks}:{211+4*ks}], v20 offset:{64*ks}")
        self.stamp(3)
        for ks in range(4):
            a(f"s_waitcnt lgkmcnt({3+3*ks})")
            for t in range(4): self.mfma(40 + 4 * t, 64 + 16 * t + 4 * ks, 208 + 4 * ks, ks == 0)
            vr(1 + 2 * ks)
        a("v_max3_f32 v224, v40, v41, v42")
        a("v_max3_f32 v225, v43, v44, v45")
        a("v_max3_f32 v226, v46, v47, v48")
        a("v_max3_f32 v227, v49, v50, v51")
        a("v_max3_f32 v228, v52, v53, v54")
        a("v_max3_f32 v224, v224, v225, v226")
        a("v_max3_f32 v227, v227, v228, v55")
        a("v_max_f32 v224, v224, v227")
        xrow("v_max_f32", 224)
        a(f"v_mul_f32 v230, {f32(-CSC)}, v224")
        for i in range(8): a(f"v_pk_fma_f32 v[{40+2*i}:{41+2*i}], v[{40+2*i}:{41+2*i}], s[10:11], v[230:231] op_sel_hi:[1,0,0]")
        a("ds_write_b32 v17, v230")
        self.exec16(15)
        for blk in range(2):
            for i in range(8): a(f"v_exp_f32 v{40+8*blk+i}, v{40+8*blk+i}")
            for i in range(4): a(f"v_cvt_pk_bf16_f32 v{56+4*blk+i}, v{40+8*blk+2*i}, v{41+8*blk+2*i}")
            a(f"ds_write_b128 v15, v[{56+4*blk}:{59+4*blk}] offset:{256*blk}")
        for i in range(4): a(f"v_pk_add_f32 v[{40+2*i}:{41+2*i}], v[{40+2*i}:{41+2*i}], v[{48+2*i}:{49+2*i}]")
        for i in range(2): a(f"v_pk_add_f32 v[{40+2*i}:{41+2*i}], v[{40+2*i}:{41+2*i}], v[{44+2*i}:{45+2*i}]")
        a("v_pk_add_f32 v[40:41], v[40:41], v[42:43]")
        a("v_add_f32 v231, v40, v41")
        a("ds_write_b32 v233, v231")
        a("s_mov_b64 exec, -1")
        a("s_waitcnt lgkmcnt(0)")
        a("s_barrier")
        self.stamp(4)
        for k in range(2): a(f"ds_read_b128 v[{64+4*k}:{67+4*k}], v14 offset:{256*k}")
        a("ds_read_b128 v[24:27], v16")
        for w in range(4): a(f"ds_read_b128 v[{96+4*w}:{99+4*w}], v232 offset:{16*w}")
        for k in range(2, 8): a(f"ds_read_b128 v[{64+4*k}:{67+4*k}], v14 offset:{256*k}")
        def pv(k):
            for t in range(2): self.mfma(192 + 8 * (k >> 1) + 4 * t, 128 + 8 * k + 4 * t, 64 + 4 * k, (k & 1) == 0)
        a("s_waitcnt lgkmcnt(12)")
        pv(0)
        a("s_waitcnt lgkmcnt(10)")
        pv(1)
        a("v_min3_f32 v32, v24, v25, v26")
        a("v_min_f32 v32, v32, v27")
        a("s_waitcnt lgkmcnt(5)")
        pv(2)
        for k in range(2): a(f"v_pk_add_f32 v[{24+2*k}:{25+2*k}], v[32:33], v[{24+2*k}:{25+2*k}] op_sel_hi:[0,1] neg_lo:[0,1] neg_hi:[0,1]")
        for w in range(4): a(f"v_pk_add_f32 v[{96+4*w}:{97+4*w}], v[{96+4*w}:{97+4*w}], v[{98+4*w}:{99+4*w}]")
        a("s_waitcnt lgkmcnt(4)")
        pv(3)
        for w in range(4): a(f"v_exp_f32 v{24+w}, v{24+w}")
        a("s_waitcnt lgkmcnt(3)")
        pv(4)
        a("v_pk_mul_f32 v[96:97], v[96:97], v[24:25] op_sel_hi:[1,0]")
        a("v_pk_fma_f32 v[96:97], v[100:101], v[24:25], v[96:97] op_sel:[0,1,0] op_sel_hi:[1,1,1]")
        a("v_pk_fma_f32 v[96:97], v[104:105], v[26:27], v[96:97] op_sel_hi:[1,0,1]")
        a("v_pk_fma_f32 v[96:97], v[108:109], v[26:27], v[96:97] op_sel:[0,1,0] op_sel_hi:[1,1,1]")
        a("v_add_f32 v33, v96, v97")
        a("s_waitcnt lgkmcnt(2)")
        pv(5)
        a("v_rcp_f32 v36, v33")
        a("v_log_f32 v37, v33")
        for k in range(2): a(f"v_pk_mul_f32 v[{24+2*k}:{25+2*k}], v[{24+2*k}:{25+2*k}], v[36:37] op_sel_hi:[1,0]")
        a("s_waitcnt lgkmcnt(1)")
        pv(6)
        for i in range(4): a(f"v_pk_mul_f32 v[{192+2*i}:{193+2*i}], v[{192+2*i}:{193+2*i}], v[24:25] op_sel_hi:[1,0]")
        a("v_sub_f32 v37, v37, v32")
        a("s_waitcnt lgkmcnt(0)")
        pv(7)
        a("s_mov_b64 exec, s[58:59]")
        a("buffer_store_dword v37, v19, s[40:43], s54 offen")
        a("s_mov_b64 exec, -1")
        for i in range(4): a(f"v_pk_fma_f32 v[{192+2*i}:{193+2*i}], v[{200+2*i}:{201+2*i}], v[24:25], v[{192+2*i}:{193+2*i}] op_sel:[0,1,0] op_sel_hi:[1,1,1]")
        for i in range(4): a(f"v_pk_fma_f32 v[{192+2*i}:{193+2*i}], v[{208+2*i}:{209+2*i}], v[26:27], v[{192+2*i}:{193+2*i}] op_sel_hi:[1,0,1]")
        self.exec16(15)
        for i in range(4): a(f"v_pk_fma_f32 v[{192+2*i}:{193+2*i}], v[{216+2*i}:{217+2*i}], v[26:27], v[{192+2*i}:{193+2*i}] op_sel:[0,1,0] op_sel_hi:[1,1,1]")
        for i in range(4): a(f"v_cvt_pk_bf16_f32 v{200+i}, v{192+2*i}, v{193+2*i}")
        a("buffer_store_dwordx4 v[200:203], v18, s[40:43], s53 offen")
        self.stamp(5)
        a("s_mov_b64 exec, -1")
        a("s_barrier")
        a("buffer_load_dword v237, v236, s[92:95], s60 offen")
        a("buffer_load_dword v238, v236, s[92:95], s61 offen")
        self.exec16(15)
        a("buffer_store_dwordx4 v[200:203], v18, s[40:43], s8 offen sc1")
        a("s_mov_b64 exec, s[58:59]")
        a("buffer_store_dword v37, v19, s[40:43], s52 offen sc1")
        a("s_mov_b64 exec, -1")
        a("s_cmp_eq_u32 s3, 1")
        a("s_cbranch_scc0 LTWe")
        if self.o.get("nored"): self.end()
        a("s_cmp_lt_u32 s5, 4")
        a("s_cbranch_scc0 LTWe")
        a("s_lshl_b32 s6, s4, 2")
        a("s_add_u32 s6, s6, s5")
        self.srd(44, 16, 2048)
        self.srd(48, 38, 2048)
        a("v_bfe_u32 v2, v0, 2, 1")
        a("v_and_b32 v3, 3, v0")
        a("v_lshlrev_b32 v4, 3, v3")
        a("v_lshl_add_u32 v5, v2, 10, v4")
        a("v_lshlrev_b32 v6, 1, v5")
        a("v_lshrrev_b32 v8, 3, v0")
        a("v_lshl_add_u32 v7, v8, 12, v6")
        a("v_lshlrev_b32 v9, 4, v0")
        a("s_lshl_b32 s7, s6, 5")
        a("s_lshl_b32 s8, s6, 6")
        a(f"s_add_u32 s9, s8, {HD}")
        a(f"s_add_u32 s52, s8, {HM}")
        a(f"s_add_u32 s53, s8, {HM+3*4096}")
        a(f"s_mul_i32 s54, s6, {HFS}")
        a(f"s_add_u32 s54, s54, {HF}")
        a("s_add_u32 s55, s54, 4096")
        a("buffer_load_dwordx2 v[10:11], v5, s[44:47], s7 offen")
        a(f"s_mov_b32 s27, {RDY}")
        self.poll([f"buffer_load_dword v{40+i}, v9, s[40:43], s27 offen offset:{1024*i} sc1" for i in range(4)]
                  + ["buffer_load_dwordx4 v[12:15], v6, s[40:43], s52 offen sc1", "buffer_load_dwordx4 v[16:19], v6, s[40:43], s53 offen sc1"],
                  [(*self.TAGBAD, 40 + i) for i in range(4)] + [(*self.TAGBAD, 14), (*self.TAGBAD, 18)], sleep=2)
        self.poll(["buffer_load_dwordx4 v[24:27], v7, s[40:43], s9 offen sc1"], [(*self.POISON, 24)], sleep=2)
        self.stamp(6)
        a("s_cmp_eq_u32 s6, 0")
        a("s_cbranch_scc0 LTWn")
        a("s_mov_b64 exec, 1")
        a("v_mov_b32 v20, s14")
        a("v_mov_b32 v21, 0")
        a(f"buffer_store_dword v20, v21, s[40:43], 0 offen offset:{EPOCH} sc1")
        a("s_mov_b64 exec, -1")
        a.label("LTWn")
        red8 = self.red8
        red8(24)
        self.unpack(10, 28, 2)
        self.unpack(12, 32, 2)
        self.unpack(16, 36, 2)
        for i in range(4): a(f"v_fmac_f32 v{28+i}, v{24+i}, v{32+i}")
        if self.o.get("fsleep"): a(f"s_sleep {self.o['fsleep']}")
        self.sum_poll([f"buffer_load_dwordx4 v[{64+4*i}:{67+4*i}], v9, s[40:43], s{54+(i>>2)} offen offset:{1024*(i&3)} sc1" for i in range(7)], 64, 56)
        self.stamp(7)
        red8(56)
        for i in range(4): a(f"v_fmac_f32 v{28+i}, v{56+i}, v{36+i}")
        a("v_cvt_pk_bf16_f32 v10, v28, v29")
        a("v_cvt_pk_bf16_f32 v11, v30, v31")
        a("s_mov_b64 exec, 0xff")
        a("buffer_store_dwordx2 v[10:11], v5, s[48:51], s7 offen " + ["", "sc1", "nt", "sc0 sc1"][self.o.get("oflag", 0)])
        self.stamp(8)
        if self.o.get("padto"):
            a("s_cmp_eq_u32 s6, 0")
            a("s_cbranch_scc0 LTWe")
        if self.o.get("padto"):
            a(f"s_mov_b32 s100, {self.o['padto']}")
            if self.o.get("amp"):
                a("s_waitcnt lgkmcnt(0)")
                a(f"s_sub_u32 s98, s{64+2*self.o['amp']}, s96")
                a("s_mul_i32 s98, s98, 10")
                a("s_add_u32 s100, s100, s98")
            a.label("Lpad")
            a("s_memrealtime s[98:99]")
            a("s_waitcnt lgkmcnt(0)")
            a("s_sub_u32 s98, s98, s96")
            a("s_cmp_lt_u32 s98, s100")
            a("s_cbranch_scc1 Lpad")
        a.label("LTWe")
        self.end()

    def ww_main(self):
        a, wf = self.a, self.wf
        a.label("LWHp")
        a("s_branch LWH2")
        a.label("LW2")
        mre = self.o.get("mre", 0)
        self.voff128(12, 6144, 3, 4)
        a("s_mov_b64 s[44:45], s[36:37]")
        a(f"s_mov_b32 s46, {512*6144}")
        a("s_mov_b32 s60, s4")
        a("s_mov_b32 s61, s52")
        a(f"s_add_u32 s63, s7, {WO+8192}")
        if mre: self.mr_issue(12, 44)
        self.stamp(1)
        a("v_mov_b32 v17, v12")
        self.traddr256(8, 8, "s7", 3, 5)
        a("s_lshr_b32 s58, s7, 2")
        a(f"s_add_u32 s58, s58, {GA}")
        a("v_bfe_u32 v3, v0, 2, 1")
        a("v_mul_u32_u24 v16, 144, v3")
        a("v_lshl_add_u32 v16, v1, 4, v16")
        a(f"v_add_u32 v16, {HW}, v16")
        a("v_lshlrev_b32 v18, 4, v0")
        a(f"v_add_u32 v18, {RED}, v18")
        a("v_and_b32 v19, 15, v0")
        a("v_lshlrev_b32 v19, 3, v19")
        a("v_lshrrev_b32 v3, 5, v0")
        a("v_lshl_add_u32 v19, v3, 7, v19")
        a("v_and_b32 v3, 16, v0")
        a("v_lshl_add_u32 v19, v3, 9, v19")
        a("s_lshl_b32 s55, s52, 14")
        a("s_lshl_b32 s15, s3, 11")
        a("s_add_u32 s55, s55, s15")
        a("s_lshl_b32 s15, s4, 8")
        a("s_add_u32 s55, s55, s15")
        a(f"s_add_u32 s55, s55, {HB}")
        a("s_lshl_b32 s52, s52, 9")
        self.wo_setup()
        vpf = self.o.get("vpf", 1)
        if vpf:
            self.srd(92, 20, 0x2000000)
            a("s_lshl_b32 s8, s61, 2")
            a("s_add_u32 s8, s8, s3")
            a("s_lshr_b32 s9, s8, 4")
            a("s_lshl_b32 s9, s9, 3")
            a("s_add_u32 s9, s9, s4")
            a("s_lshl_b32 s9, s9, 21")
            a("s_and_b32 s8, s8, 15")
            a("s_lshl_b32 s8, s8, 15")
            a("s_add_u32 s8, s8, s9")
            a(f"s_add_u32 s8, s8, {6144*256 + 12288}")
            a("v_lshrrev_b32 v20, 5, v0")
            a("v_and_b32 v4, 31, v0")
            a("v_lshlrev_b32 v4, 7, v4")
            a("v_lshl_add_u32 v20, v20, 14, v4")
        a(f"s_waitcnt vmcnt({8+8*mre}) lgkmcnt(0)")
        self.tag()
        for t in range(8): self.tr(64 + 4 * t, 8 + t, 0, 4096)
        a(f"s_waitcnt vmcnt({8*mre})")
        self.stamp(2)
        for t in range(8): self.tr(96 + 4 * t, 8 + t, 8192, 4096)
        a("s_barrier")
        for ks in range(2): a(f"ds_read_b128 v[{24+4*ks}:{27+4*ks}], v16 offset:{64*ks}")
        self.stamp(3)
        a("s_waitcnt lgkmcnt(0)")
        for ks in range(2):
            for t in range(8): self.mfma(128 + 4 * t, 24 + 4 * ks, 64 + 32 * ks + 4 * t, ks == 0)
        for k in range(4): a(f"v_permlane32_swap_b32 v{128+8*k}, v{132+8*k}")
        def red4(stride):
            for w in range(4): a(f"ds_read_b128 v[{24+4*w}:{27+4*w}], v18 offset:{stride*w}")
            a("s_waitcnt lgkmcnt(2)")
            for k in range(2): a(f"v_pk_add_f32 v[{24+2*k}:{25+2*k}], v[{24+2*k}:{25+2*k}], v[{28+2*k}:{29+2*k}]")
            a("s_waitcnt lgkmcnt(0)")
            for k in range(2): a(f"v_pk_add_f32 v[{32+2*k}:{33+2*k}], v[{32+2*k}:{33+2*k}], v[{36+2*k}:{37+2*k}]")
            for k in range(2): a(f"v_pk_add_f32 v[{24+2*k}:{25+2*k}], v[{24+2*k}:{25+2*k}], v[{32+2*k}:{33+2*k}]")
        a("v_cvt_pk_bf16_f32 v56, v128, v136")
        a("v_cvt_pk_bf16_f32 v57, v144, v152")
        a("buffer_store_dwordx2 v[56:57], v19, s[40:43], s55 offen sc1")
        self.stamp(4)
        if self.o.get("owait", 0): a("s_waitcnt vmcnt(0)")
        a("s_barrier")
        if vpf:
            vm = self.o.get("vmask", 16)
            if vm:
                a(f"s_mov_b32 exec_lo, {(0xffffffff << vm) & 0xffffffff:#x}")
                a(f"s_mov_b32 exec_hi, {(0xffffffff << vm) & 0xffffffff:#x}")
            a("buffer_load_dword v236, v20, s[92:95], s8 offen")
            a("s_mov_b64 exec, -1")
        def wo(n):
            L = self.lab("LWd")
            a("s_mov_b32 m0, s62")
            a(f"s_add_u32 s62, s62, {1024*n}" if n else "s_mov_b32 s62, s59")
            a.label(L)
            a(f"buffer_load_dwordx4 v2, s[48:51], s53 offen {wf} lds")
            a("s_add_u32 m0, m0, 1024")
            a("s_add_u32 s53, s53, 8192")
            a("s_cmp_lt_u32 m0, s62")
            a(f"s_cbranch_scc1 {L}")
        a("s_cmp_eq_u32 s61, 3")
        a("s_cbranch_scc1 LM")
        ms = self.o.get("msplit", 0)
        if ms:
            if ms < 4:
                a(f"s_cmp_ge_u32 s3, {ms}")
                a("s_cbranch_scc1 LWm")
            if not mre: self.mr_issue(17, 44)
            oe = self.o.get("oearly", 8)
            if oe: wo(oe)
            self.mr_compute(SCW, oe)
        self.delay("odel")
        a.label("LWm")
        wo(0)
        a("v_and_b32 v3, 15, v0")
        a("v_lshlrev_b32 v13, 7, v3")
        a("s_lshl_b32 s9, s4, 14")
        a(f"s_add_u32 s9, s9, {HC}")
        a("s_lshl_b32 s8, s4, 11")
        a(f"s_add_u32 s8, s8, {HL}")
        self.stamp(5)
        a("v_lshlrev_b32 v229, 4, v0")
        a("s_mul_i32 s13, s4, 240")
        a("s_sub_u32 s13, 2432, s13")
        a("v_mov_b32 v4, s13")
        a("v_cmp_gt_u32 vcc, 16, v0")
        a("v_cndmask_b32 v229, v4, v229, vcc")
        a("s_lshl_b32 s27, s4, 8")
        a(f"s_add_u32 s27, s27, {RDY}")
        self.rdy_load()
        wpf = self.o.get("wpf", 0)
        if wpf:
            a("s_mov_b64 s[44:45], s[30:31]")
            a(f"s_mov_b32 s46, {512*3584}")
            a("s_lshr_b32 s13, s52, 7")
            a("s_add_u32 s13, s13, s3")
            a(f"s_mul_i32 s13, s13, {16*3584}")
            a("s_mul_i32 s15, s4, 448")
            a("s_add_u32 s13, s13, s15")
            a("v_lshrrev_b32 v4, 2, v0")
            a("v_mul_u32_u24 v4, 3584, v4")
            a("v_and_b32 v5, 3, v0")
            a("v_lshl_add_u32 v4, v5, 7, v4")
            a("buffer_load_dword v238, v4, s[44:47], s13 offen")
        a("s_lshl_b32 s15, s3, 8")
        a("s_add_u32 s9, s9, s15")
        a("s_lshl_b32 s15, s3, 2")
        a("s_add_u32 s8, s8, s15")
        a(f"s_add_u32 s15, s7, {WO}")
        self.traddr128(8, "s15", 3, 4)
        a("v_and_b32 v3, 15, v0")
        a("v_xor_b32 v12, v3, v1")
        a("v_lshlrev_b32 v12, 4, v12")
        a("v_lshl_add_u32 v4, v1, 10, v12")
        for i in range(1, 4):
            a(f"v_xor_b32 v{4+i}, {64*i}, v4")
            a(f"v_add_u32 v{4+i}, {3072*i}, v{4+i}")
        a("v_lshl_add_u32 v20, v3, 8, v12")
        a("v_add_u32 v20, s58, v20")
        for i in range(1, 4): a(f"v_xor_b32 v{20+i}, {64*i}, v20")
        a("v_lshlrev_b32 v14, 4, v1")
        a("v_lshrrev_b32 v12, 5, v0")
        a("v_lshlrev_b32 v15, 8, v12")
        a("v_and_b32 v12, 31, v0")
        a("v_lshl_add_u32 v15, v12, 2, v15")
        a("s_lshl_b32 s15, s3, 9")
        a(f"s_add_u32 s15, s15, {RED}")
        a("v_add_u32 v15, s15, v15")
        a("v_lshlrev_b32 v17, 4, v3")
        a("v_lshl_add_u32 v17, v1, 11, v17")
        a("s_lshl_b32 s55, s4, 12")
        a("s_lshr_b32 s15, s52, 1")
        a("s_add_u32 s55, s55, s15")
        a(f"s_add_u32 s55, s55, {HD}")
        a("s_mov_b32 m0, s58")
        a("v_mov_b32 v128, 0")
        a(f"s_waitcnt vmcnt({wpf})")
        self.stamp(6)
        self.rdy_check()
        def cissue():
            a("s_mov_b64 exec, 0xffff")
            a("buffer_load_dword v128, v13, s[40:43], s8 offen sc1")
            a("s_mov_b64 exec, -1")
            for i in range(4): a(f"buffer_load_dwordx4 v{4+i}, s[40:43], s9 offen offset:{1024*i} sc1 lds")
        def cmid():
            for ks in range(4):
                for t in range(4): self.tr(64 + 16 * ks + 4 * t, 8 + t, 4096 * ks, 2048)
            self.stamp(9)
        def cbody():
            a("s_waitcnt vmcnt(0)")
            for ks in range(4): a(f"ds_read_b128 v[{24+4*ks}:{27+4*ks}], v{20+ks}")
            a("s_waitcnt lgkmcnt(0)")
            a("v_max3_u32 v129, v24, v28, v128")
            a("v_max3_u32 v129, v129, v32, v36")
            a("v_cmp_eq_u32 s[10:11], -1, v129")
        self.spin(cbody, alt=([8, 9], LOC, self.o.get("every", 16)), issue=cissue, mid=cmid)
        self.stamp(7)
        D8 = ("quad_perm:[1,0,3,2]", "quad_perm:[2,3,0,1]", "row_half_mirror")
        def mf(ks):
            for t in range(4): self.mfma(40 + 4 * t, 24 + 4 * ks, 64 + 16 * ks + 4 * t, ks == 0)
        mf(0)
        a("v_mov_b32 v129, v128")
        for m in D8: a(f"v_max_f32_dpp v129, v129, v129 {m} row_mask:0xf bank_mask:0xf")
        a("v_sub_f32 v128, v128, v129")
        a("v_exp_f32 v128, v128")
        mf(1)
        a("v_mov_b32 v129, v128")
        for m in D8: a(f"v_add_f32_dpp v129, v129, v129 {m} row_mask:0xf bank_mask:0xf")
        a("v_rcp_f32 v129, v129")
        a("v_mul_f32 v128, v128, v129")
        for r in range(4): a(f"ds_bpermute_b32 v{130+r}, v14, v128 offset:{4*r}")
        mf(2)
        mf(3)
        a("s_waitcnt lgkmcnt(0)")
        for t in range(4): a(f"v_pk_mul_f32 v[{40+4*t}:{41+4*t}], v[{40+4*t}:{41+4*t}], v[130:131]")
        for t in range(4): a(f"v_pk_fma_f32 v[{40+4*t}:{41+4*t}], v[{42+4*t}:{43+4*t}], v[132:133], v[{40+4*t}:{41+4*t}]")
        for t in range(4): a(f"v_add_f32 v{40+4*t}, v{40+4*t}, v{41+4*t}")
        for k in range(2): a(f"v_permlane16_swap_b32 v{40+8*k}, v{44+8*k}")
        for k in range(2): a(f"v_add_f32 v{40+8*k}, v{40+8*k}, v{44+8*k}")
        for k in range(2): a(f"ds_write_b32 v15, v{40+8*k} offset:{128*k}")
        a("s_waitcnt lgkmcnt(0)")
        a("s_barrier")
        a("s_cmp_eq_u32 s3, 0")
        a("s_cbranch_scc0 LWe")
        a("s_mov_b32 exec_hi, 0")
        red4(512)
        a("buffer_store_dwordx4 v[24:27], v17, s[40:43], s55 offen sc1")
        self.stamp(8)
        a.label("LWe")
        self.end()

    def g_role(self):
        a, wf = self.a, self.wf
        self.mute = True
        ms = self.o.get("msplit", 0)
        a("s_lshr_b32 s63, s7, 1")
        a(f"s_add_u32 s63, s63, {MRG}")
        def gvp():
            self.srd(92, 20, 0x2000000)
            a("s_lshl_b32 s8, s5, 2")
            a("s_add_u32 s8, s8, s3")
            a("s_lshr_b32 s9, s8, 4")
            a("s_lshl_b32 s9, s9, 3")
            a("s_add_u32 s9, s9, s4")
            a("s_lshl_b32 s9, s9, 21")
            a("s_and_b32 s8, s8, 15")
            a("s_lshl_b32 s8, s8, 15")
            a("s_add_u32 s8, s8, s9")
            a(f"s_add_u32 s8, s8, {6144*256 + 12288}")
            a("v_lshrrev_b32 v3, 5, v0")
            a("v_and_b32 v4, 31, v0")
            a("v_lshlrev_b32 v4, 7, v4")
            a("v_lshl_add_u32 v3, v3, 14, v4")
            m = (1 << self.o.get("gvp", 16)) - 1
            a(f"s_mov_b32 exec_lo, {m:#x}")
            a(f"s_mov_b32 exec_hi, {m:#x}")
            a("buffer_load_dword v236, v3, s[92:95], s8 offen")
            a("s_mov_b64 exec, -1")
        if self.o.get("gall", 0): gvp()
        self.g_index()
        a("s_cbranch_scc1 LO3")
        if ms < 4:
            a(f"s_cmp_lt_u32 s3, {ms}")
            a("s_cbranch_scc1 LGn")
            self.mr_issue(2, 52)
            a.label("LGn")
        if not self.o.get("gall", 0): gvp()
        a(f"s_add_u32 s7, s7, {GU}")
        a("s_mov_b32 s53, s26")
        for i in range(4): a(f"v_mov_b32 v{32+i}, -1")
        a("v_lshrrev_b32 v3, 3, v0")
        a(f"v_mul_u32_u24 v3, {HFS}, v3")
        a("v_and_b32 v4, 7, v0")
        a("v_lshl_add_u32 v3, v4, 4, v3")
        a(f"s_mul_i32 s26, s3, {8*HFS}")
        a("s_lshl_b32 s15, s53, 7")
        a("s_add_u32 s26, s26, s15")
        a(f"s_add_u32 s26, s26, {HF}")
        a("buffer_store_dwordx4 v[32:35], v3, s[40:43], s26 offen sc1")
        a(f"s_and_b32 s52, s53, {0}")
        a("s_cmp_eq_u32 s52, 0")
        a("s_cselect_b64 s[44:45], s[28:29], s[30:31]")
        a("s_cselect_b64 s[48:49], s[30:31], s[28:29]")
        a(f"s_mov_b32 s46, {512*3584}")
        a(f"s_mov_b32 s50, {512*3584}")
        a("s_lshl_b32 s52, s52, 13")
        a("v_lshrrev_b32 v1, 2, v0")
        a("v_bfe_u32 v2, v0, 4, 1")
        a("v_lshlrev_b32 v2, 1, v2")
        a("v_and_b32 v3, 3, v0")
        a("v_xor_b32 v2, v2, v3")
        a("v_mul_u32_u24 v4, 3584, v1")
        a("v_lshl_add_u32 v2, v2, 4, v4")
        a(f"s_mul_i32 s8, s3, {128*3584}")
        a("s_lshl_b32 s15, s53, 6")
        a("s_add_u32 s8, s8, s15")
        def mat(m, lo=0, hi=8):
            L = self.lab("LGx")
            if lo == 0:
                a("s_add_u32 s58, s7, s52")
                a("s_mov_b32 s59, s8")
            a("s_mov_b32 m0, s58")
            a(f"s_add_u32 s58, s58, {1024*(hi-lo)}")
            a.label(L)
            gf = ["nt", "", "sc1", "sc0"][self.o.get("gflag%d" % m, 0)]
            a(f"buffer_load_dwordx4 v2, s[{44+4*m}:{47+4*m}], s59 offen {gf} lds")
            a("s_add_u32 m0, m0, 1024")
            a(f"s_add_u32 s59, s59, {16*3584}")
            if self.o.get("gcap", 0) and (lo or m): a(f"s_waitcnt vmcnt({self.o['gcap']})")
            a("s_cmp_lt_u32 m0, s58")
            a(f"s_cbranch_scc1 {L}")
            if hi == 8: a("s_xor_b32 s52, s52, 8192")
        pw = self.o.get("pwait", 1)
        if not pw:
            self.stamp(5)
            mat(0)
        a(f"s_waitcnt vmcnt({0 if pw else 8})")
        a("s_barrier")
        if ms < 4:
            a(f"s_cmp_lt_u32 s3, {ms}")
            a("s_cbranch_scc1 LGo")
            self.mr_compute(SC, 0 if pw else 8)
            a.label("LGo")
        a("s_cmp_eq_u32 s3, 0")
        a("s_cbranch_scc0 LGr")
        self.rdy_publish(8, "s2")
        if self.o.get("rwait", 1): a("s_waitcnt vmcnt(0)")
        a.label("LGr")
        if self.o.get("rwait", 1): a("s_barrier")
        if pw:
            self.delay("fdel")
            self.stamp(5)
            mat(0)
        mat(1)
        a("s_mov_b64 s[48:49], s[16:17]")
        a("s_mov_b32 s50, 2048")
        a("v_lshrrev_b32 v4, 5, v0")
        a("v_and_b32 v5, 31, v0")
        a("v_lshlrev_b32 v19, 3, v5")
        a("v_lshl_add_u32 v19, v4, 10, v19")
        a("s_lshl_b32 s15, s3, 8")
        a("buffer_load_dwordx2 v[24:25], v19, s[48:51], s15 offen")
        a("s_lshl_b32 s9, s53, 15")
        a("s_add_u32 s9, s9, s15")
        a("v_lshlrev_b32 v229, 4, v0")
        a(f"s_mov_b32 s27, {RDY+2048}")
        self.rdy_load()
        a("v_lshlrev_b32 v18, 1, v19")
        a("s_lshl_b32 s15, s3, 9")
        for k in range(3): a(f"s_add_u32 s{28+k}, s15, {HM+4096*k}")
        mloads = [f"buffer_load_dwordx4 v[{208+4*k}:{211+4*k}], v18, s[40:43], s{28+k} offen sc1" for k in range(3)]
        for l in mloads: a(l)
        for k in range(8): a(f"s_add_u32 s{16+k}, s15, {HD+4096*k}")
        self.voff256(6, 10, 8, 9)
        a("s_mov_b64 s[44:45], s[32:33]")
        a(f"s_mov_b32 s46, {1792*1024}")
        a("s_lshl_b32 s6, s3, 13")
        a(f"s_add_u32 s6, s6, {DWN}")
        a("s_mov_b32 m0, s6")
        a("s_add_u32 s13, s6, 8192")
        a.label("LGd2")
        for i in range(2):
            a(f"buffer_load_dwordx4 v{6+i}, s[44:47], s9 offen {wf} lds")
            a("s_add_u32 m0, m0, 1024")
            a("s_add_u32 s9, s9, 4096")
        a("s_cmp_lt_u32 m0, s13")
        a("s_cbranch_scc1 LGd2")
        a("v_bfe_u32 v8, v0, 4, 1")
        a("v_lshlrev_b32 v8, 5, v8")
        a("v_lshl_add_u32 v8, v1, 6, v8")
        a("v_lshl_add_u32 v8, v3, 3, v8")
        a("v_add_u32 v8, s7, v8")
        a("v_xor_b32 v9, 32, v8")
        self.traddr256(10, 8, "s6", 6, 7)
        a("v_mul_u32_u24 v20, 816, v4")
        a("v_lshrrev_b32 v6, 3, v5")
        a("v_lshl_add_u32 v20, v6, 6, v20")
        a("v_lshl_add_u32 v20, v3, 4, v20")
        a("v_bfe_u32 v6, v0, 2, 1")
        a("v_lshl_add_u32 v20, v6, 3, v20")
        a(f"s_add_u32 s15, s7, {AROW_O}")
        a("v_add_u32 v20, s15, v20")
        a("v_mul_u32_u24 v22, 816, v6")
        a("v_and_b32 v7, 48, v0")
        a("v_add3_u32 v22, v22, v7, s15")
        a("v_min_u32 v21, 2, v3")
        a("v_mul_u32_u24 v21, 272, v21")
        a("v_add_u32 v22, v22, v21")
        a("v_lshl_add_u32 v227, v6, 6, v7")
        a(f"v_mul_u32_u24 v228, {HFS}, v4")
        a("v_lshl_add_u32 v228, v5, 2, v228")
        a("v_lshlrev_b32 v2, 4, v0")
        a("s_lshl_b32 s15, s3, 10")
        a("v_add_u32 v23, s15, v2")
        a("s_lshl_b32 s15, s3, 2")
        a("v_add_u32 v226, s15, v7")
        a("v_and_b32 v231, 16, v0")
        a("v_lshlrev_b32 v231, 1, v231")
        a(f"v_mov_b32 v232, {f32(1e-5)}")
        self.guard(2100, fill=self.small_helpers)
        a("s_waitcnt vmcnt(8)")
        self.stamp(6)
        for m in range(2):
            for ks in range(4):
                for t in range(2): self.tr(64 + 32 * m + 8 * ks + 4 * t, 8 + t, 8192 * m + 2048 * ks, 1024)
        self.unpack(24, 28, 2)
        a("v_and_b32 v24, 32, v0")
        a(f"v_add_u32 v24, {LNS}, v24")
        a("ds_read_b128 v[32:35], v24")
        self.rdy_check()
        for k in range(3): a(f"v_xor_b32 v{211+4*k}, s14, v{210+4*k}")
        a("v_or3_b32 v211, v211, v215, v219")
        a("v_cmp_ne_u32 vcc, 0, v211")
        a("s_cbranch_vccz LGmo")
        self.poll(mloads, [(*self.TAGBAD, 210 + 4 * k) for k in range(3)], sleep=1)
        a.label("LGmo")
        self.stamp(4)
        def prepass():
            a("s_waitcnt lgkmcnt(0)")
            a("ds_write_b64 v20, v[212:213] offset:544")
            a("v_pk_add_f32 v[32:33], v[32:33], v[34:35]")
            a("v_add_f32 v32, v32, v33")
            for i in range(4): a(f"v_fmac_f32 v{28+i}, {f32(-1/512)}, v32")
            self.unpack(216, 196, 2)
            for i in range(4): a(f"v_add_f32 v{196+i}, 1.0, v{196+i}")
            a("v_cvt_pk_bf16_f32 v36, v196, v197")
            a("v_cvt_pk_bf16_f32 v37, v198, v199")
            a("ds_write_b64 v20, v[36:37] offset:272")
            self.unpack(208, 192, 2)
            self.unpack(36, 196, 2)
            for i in range(4): a(f"v_mul_f32 v{200+i}, v{28+i}, v{196+i}")
            for i in range(4): a(f"v_mul_f32 v{196+i}, v{192+i}, v{196+i}")
            a("s_waitcnt vmcnt(8)")
            for dt in range(8): self.tr(128 + 4 * dt, 10 + dt, 0, 4096)
            self.stamp(10)
        self.sum_poll([f"buffer_load_dwordx4 v[{160+4*k}:{163+4*k}], v18, s[40:43], s{16+k} offen sc1" for k in range(8)], 160, 56, mid=prepass)
        self.stamp(7)
        for k in range(2): a(f"v_pk_fma_f32 v[{200+2*k}:{201+2*k}], v[{56+2*k}:{57+2*k}], v[{196+2*k}:{197+2*k}], v[{200+2*k}:{201+2*k}]")
        a("v_cvt_pk_bf16_f32 v32, v200, v201")
        a("v_cvt_pk_bf16_f32 v33, v202, v203")
        a("ds_write_b64 v20, v[32:33]")
        for ks in range(4): a(f"ds_read_b128 v[{172+4*ks}:{175+4*ks}], v22 offset:{64*ks}")
        for k in range(2): a(f"v_pk_fma_f32 v[{28+2*k}:{29+2*k}], v[{56+2*k}:{57+2*k}], v[{192+2*k}:{193+2*k}], v[{28+2*k}:{29+2*k}]")
        a("v_pk_add_f32 v[190:191], v[28:29], v[30:31]")
        a("v_pk_mul_f32 v[28:29], v[28:29], v[28:29]")
        a("v_pk_fma_f32 v[28:29], v[30:31], v[30:31], v[28:29]")
        a("v_add_f32 v190, v190, v191")
        a("v_add_f32 v191, v28, v29")
        a("v_permlane16_swap_b32 v190, v191")
        def mg(m, ks):
            for t in range(2): self.mfma(40 + 8 * m + 4 * t, 172 + 4 * ks, 64 + 32 * m + 8 * ks + 4 * t, ks == 0)
        for ks in range(4):
            a(f"s_waitcnt lgkmcnt({3-ks})")
            mg(0, ks)
            if ks == 0: a("v_add_f32 v190, v190, v191")
        mg(1, 0)
        self.row_sum(190)
        mg(1, 1)
        a(f"ds_write_b32 v226, v190 offset:{STAT}")
        mg(1, 2)
        for r in range(3): a(f"v_permlane32_swap_b32 v{40+r}, v{44+r}")
        mg(1, 3)
        a(f"ds_write_b128 v23, v[40:43] offset:{REC}")
        for r in range(3): a(f"v_permlane32_swap_b32 v{48+r}, v{52+r}")
        a(f"ds_write_b128 v23, v[48:51] offset:{CSR}")
        a("s_waitcnt lgkmcnt(0)")
        a("s_barrier")
        self.stamp(8)
        a(f"ds_read_b128 v[24:27], v231 offset:{STAT}")
        a(f"ds_read_b128 v[28:31], v231 offset:{STAT+16}")
        for w in range(4): a(f"ds_read_b128 v[{64+4*w}:{67+4*w}], v2 offset:{REC+1024*w}")
        for w in range(4): a(f"ds_read_b128 v[{80+4*w}:{83+4*w}], v2 offset:{CSR+1024*w}")
        a("s_waitcnt lgkmcnt(8)")
        a("v_pk_add_f32 v[24:25], v[24:25], v[26:27]")
        a("v_pk_add_f32 v[28:29], v[28:29], v[30:31]")
        a("v_add_f32 v24, v24, v25")
        a("v_add_f32 v28, v28, v29")
        a(f"v_mul_f32 v24, {f32(1/512)}, v24")
        a(f"v_fmamk_f32 v28, v28, {f32(1/512)}, v232")
        a("v_fma_f32 v28, -v24, v24, v28")
        a("v_max_f32 v28, v28, v232")
        a("v_rsq_f32 v28, v28")
        for m in range(2):
            r = 64 + 16 * m
            a(f"s_waitcnt lgkmcnt({4-4*m})")
            a(f"v_pk_add_f32 v[{r}:{r+1}], v[{r}:{r+1}], v[{r+4}:{r+5}]")
            a(f"v_pk_add_f32 v[{r+8}:{r+9}], v[{r+8}:{r+9}], v[{r+12}:{r+13}]")
            a(f"v_add_f32 v{r+2}, v{r+2}, v{r+6}")
            a(f"v_add_f32 v{r+10}, v{r+10}, v{r+14}")
            a(f"v_pk_add_f32 v[{r}:{r+1}], v[{r}:{r+1}], v[{r+8}:{r+9}]")
            a(f"v_add_f32 v{r+2}, v{r+2}, v{r+10}")
            a(f"v_fma_f32 v{r}, -v24, v{r+1}, v{r}")
            a(f"v_fma_f32 v{r}, v{r}, v28, v{r+2}")
        a("v_max_f32 v64, 0, v64")
        a("v_mul_f32 v64, v64, v80")
        a("v_mov_b32_dpp v65, v64 quad_perm:[1,0,3,2] row_mask:0xf bank_mask:0xf")
        a("v_cvt_pk_bf16_f32 v64, v64, v65")
        for i, off in enumerate((0, 8, 128, 136)): a(f"ds_bpermute_b32 v{24+i}, v227, v64 offset:{off}")
        a("s_waitcnt lgkmcnt(0)")
        for dt in range(8): self.mfma(160 + 4 * dt, 24, 128 + 4 * dt, True)
        for k in range(4):
            a(f"v_permlane32_swap_b32 v{160+8*k}, v{164+8*k}")
            a(f"buffer_store_dword v{160+8*k}, v228, s[40:43], s26 offen sc1")
            if k < 3: a(f"s_add_u32 s26, s26, {2*HFS}")
        self.stamp(9)
        self.end()

    def small_helpers(self):
        a = self.a
        a.label("LO3")
        if 0 < self.o.get('msplit', 0) < 4:
            a(f"s_cmp_lt_u32 s3, {self.o.get('msplit', 0)}")
            a("s_cbranch_scc1 LO4")
            self.mr_issue(2, 52)
            self.mr_compute(SC, 0)
            a.label("LO4")
            a("s_barrier")
        a("s_movk_i32 s52, 1536")
        a("s_lshr_b32 s58, s7, 2")
        a(f"s_add_u32 s58, s58, {GA}")
        a("v_lshrrev_b32 v1, 4, v0")
        a("v_lshlrev_b32 v18, 4, v0")
        a(f"v_add_u32 v18, {RED}, v18")
        self.wo_setup()
        self.delay("o3del")
        a("s_branch LWm")
        a.label("LGH2")
        a("s_setprio 3")
        self.tag()
        self.g_index()
        a("s_cbranch_scc1 LGH3")
        a("s_endpgm")
        a.label("LGH3")
        self.rdy_publish(8, "s2")
        a("s_endpgm")
        a.label("LWH2")
        a("s_setprio 3")
        for i in range(4): a(f"v_mov_b32 v{32+i}, -1")
        a("v_bfe_u32 v3, v0, 4, 1")
        a("v_lshlrev_b32 v3, 11, v3")
        a("v_and_b32 v4, 15, v0")
        a("v_lshl_add_u32 v3, v4, 4, v3")
        a("s_lshl_b32 s15, s4, 12")
        a("s_and_b32 s6, s5, 7")
        a("s_lshl_b32 s6, s6, 8")
        a("s_add_u32 s15, s15, s6")
        a(f"s_add_u32 s15, s15, {HD}")
        a("v_lshrrev_b32 v6, 4, v0")
        a("v_lshlrev_b32 v6, 11, v6")
        a("v_lshl_add_u32 v6, v4, 4, v6")
        a("s_lshl_b32 s8, s6, 6")
        a("s_lshl_b32 s9, s4, 8")
        a("s_add_u32 s8, s8, s9")
        a(f"s_add_u32 s8, s8, {HB}")
        a("s_add_u32 s9, s8, 8192")
        self.c_voff(4)
        a("s_lshr_b32 s6, s6, 1" if self.o.get("msplit", 0) else "s_movk_i32 s6, 896")
        a("s_mov_b32 s50, 2048")
        a("s_waitcnt lgkmcnt(0)")
        a("s_load_dword s14, s[40:41], 0")
        a("s_mov_b64 s[48:49], s[34:35]")
        a("buffer_load_dwordx2 v[28:29], v4, s[48:51], s6 offen")
        a("buffer_store_dwordx4 v[32:35], v6, s[40:43], s8 offen sc1")
        a("buffer_store_dwordx4 v[32:35], v6, s[40:43], s9 offen sc1")
        a("s_mov_b32 exec_hi, 0")
        a("buffer_store_dwordx4 v[32:35], v3, s[40:43], s15 offen sc1")
        a("s_mov_b64 exec, -1")
        self.silu_frag(SCW)
        a("s_waitcnt vmcnt(0) lgkmcnt(0)")
        self.tag()
        self.rdy_publish(8, "s2")
        a("v_lshlrev_b32 v2, 4, v0")
        a("s_lshl_b32 s8, s4, 12")
        a(f"s_add_u32 s8, s8, {HA}")
        a("v_and_b32 v3, 1, v0")
        a("v_mul_u32_u24 v3, 144, v3")
        a("v_bfe_u32 v4, v0, 1, 2")
        a("v_lshl_add_u32 v3, v4, 4, v3")
        a("v_lshrrev_b32 v4, 5, v0")
        a("v_lshl_add_u32 v3, v4, 6, v3")
        a("v_bfe_u32 v4, v0, 4, 1")
        a("v_lshl_add_u32 v3, v4, 3, v3")
        a(f"v_add_u32 v3, {HW}, v3")
        def aissue():
            for t in range(4): a(f"buffer_load_dwordx4 v[{40+4*t}:{43+4*t}], v2, s[40:43], s8 offen offset:{1024*t} sc1")
        def abody():
            for t in range(4):
                a(f"s_waitcnt vmcnt({3-t})")
                a(f"v_xor_b32 v{43+4*t}, s14, v{42+4*t}")
                self.unpack(40 + 4 * t, 64 + 4 * t, 2)
            a("v_or3_b32 v43, v43, v47, v51")
            a("v_or_b32 v43, v43, v55")
            a("v_cmp_ne_u32 s[10:11], 0, v43")
        self.spin(abody, alt=([8], ALOC, 8), issue=aissue, mid=self.silu_run)
        self.fold8()
        a("ds_write_b64 v3, v[40:41]")
        a("s_waitcnt lgkmcnt(0)")
        a("s_barrier")
        a("s_endpgm")
        a.label("LTH")
        if self.o.get("nohelp"): a("s_endpgm")
        a("s_setprio 3")
        for i in range(4): a(f"v_mov_b32 v{40+i}, -1")
        a("v_lshlrev_b32 v2, 4, v0")
        a("s_lshl_b32 s6, s4, 4")
        a("s_add_u32 s6, s6, s5")
        a("s_lshl_b32 s54, s6, 10")
        a(f"s_add_u32 s54, s54, {HC}")
        a("s_lshl_b32 s55, s6, 7")
        a(f"s_add_u32 s55, s55, {HL}")
        a("s_waitcnt lgkmcnt(0)")
        a("s_load_dword s14, s[40:41], 0")
        a("buffer_store_dwordx4 v[40:43], v2, s[40:43], s54 offen sc1")
        a(f"s_add_u32 s54, s54, {LOC}")
        a("buffer_store_dwordx4 v[40:43], v2, s[40:43], s54 offen sc1")
        a("s_mov_b64 exec, 0xff")
        a("buffer_store_dwordx4 v[40:43], v2, s[40:43], s55 offen sc1")
        a(f"s_add_u32 s55, s55, {LOC}")
        a("buffer_store_dwordx4 v[40:43], v2, s[40:43], s55 offen sc1")
        a("s_mov_b64 exec, -1")
        a("s_waitcnt vmcnt(0) lgkmcnt(0)")
        self.tag()
        self.rdy_publish(44, "s6")
        a("buffer_load_dwordx4 v[232:235], v2, s[40:43], s54 offen sc1")
        a("s_mov_b64 exec, 1")
        a("buffer_load_dword v236, v2, s[40:43], s55 offen sc1")
        a("s_endpgm")

    def m_role(self):
        a = self.a
        self.mute = False
        a.label("LM")
        if self.o.get("nom"): self.end()
        ms = self.o.get("msplit", 0)
        if ms == 0: a("s_mov_b32 s61, 7")
        if 0 < ms < 4:
            a(f"s_cmp_ge_u32 s3, {ms}")
            a("s_cbranch_scc1 LMr")
        if not self.o.get("mre", 0): self.mr_issue(17, 44)
        self.mr_compute(SCW, 0)
        a.label("LMr")
        a("s_lshl_b32 s6, s4, 2")
        a("s_add_u32 s6, s6, s3")
        a("s_lshl_b32 s8, s6, 12")
        a(f"s_add_u32 s8, s8, {HP}")
        a("s_lshr_b32 s9, s6, 3")
        a("s_lshl_b32 s9, s9, 12")
        a("s_and_b32 s6, s6, 7")
        a("s_lshl_b32 s6, s6, 8")
        a("s_add_u32 s9, s9, s6")
        a(f"s_add_u32 s9, s9, {HM}")
        a("v_lshlrev_b32 v2, 4, v0")
        a("v_and_b32 v3, 1, v0")
        a("v_lshlrev_b32 v3, 11, v3")
        a("v_bfe_u32 v4, v0, 1, 2")
        a("v_lshl_add_u32 v3, v4, 4, v3")
        a("v_and_b32 v4, 48, v0")
        a("v_lshl_add_u32 v3, v4, 2, v3")
        self.poll([f"buffer_load_dwordx4 v[{40+4*t}:{43+4*t}], v2, s[40:43], s8 offen offset:{1024*t} sc1" for t in range(4)],
                  [(*self.TAGBAD, 42 + 4 * t) for t in range(4)], sleep=1,
                  after=lambda t: self.unpack(40 + 4 * t, 64 + 4 * t, 2))
        self.stamp(6)
        self.fold8()
        self.exec16(0xff)
        a("buffer_store_dwordx4 v[40:43], v3, s[40:43], s9 offen sc1")
        self.stamp(7)
        self.end()

    def t_prefetch(self):
        a = self.a
        a.label("LTpx")
        a("s_mov_b32 s95, 0x20000")
        a("s_bitcmp1_b32 s3, 0")
        a("s_cbranch_scc1 LTpd")
        a("s_cmp_eq_u32 s3, 0")
        a("s_cselect_b64 s[92:93], s[28:29], s[30:31]")
        a(f"s_mov_b32 s94, {512*3584}")
        a(f"s_mul_i32 s60, s5, {32*3584}")
        a("s_mul_i32 s61, s4, 448")
        a("s_add_u32 s60, s60, s61")
        a("s_add_u32 s61, s60, 256")
        a("v_lshrrev_b32 v236, 1, v0")
        a("v_mul_u32_u24 v236, 3584, v236")
        a("v_and_b32 v235, 1, v0")
        a("v_lshl_add_u32 v236, v235, 7, v236")
        a("s_branch LTpr")
        a.label("LTpd")
        a("s_mov_b64 s[92:93], s[32:33]")
        a(f"s_mov_b32 s94, {1792*1024}")
        a(f"s_mul_i32 s60, s4, {7*32768}")
        a("s_lshl_b32 s61, s5, 1")
        a("s_lshr_b32 s13, s3, 1")
        a("s_add_u32 s61, s61, s13")
        a("s_mul_i32 s61, s61, 7168")
        a("s_add_u32 s60, s60, s61")
        a("s_mov_b32 s61, 0x7fffffff")
        a("v_min_u32 v236, 55, v0")
        a("v_lshlrev_b32 v236, 7, v236")
        a("s_branch LTpr")

    def fold8(self):
        a = self.a
        for i in range(8): a(f"v_permlane32_swap_b32 v{64+i}, v{72+i}")
        for k in range(4): a(f"v_pk_add_f32 v[{64+2*k}:{65+2*k}], v[{64+2*k}:{65+2*k}], v[{72+2*k}:{73+2*k}]")
        for i in range(4): a(f"v_permlane16_swap_b32 v{64+i}, v{68+i}")
        for k in range(2): a(f"v_pk_add_f32 v[{64+2*k}:{65+2*k}], v[{64+2*k}:{65+2*k}], v[{68+2*k}:{69+2*k}]")
        for i in range(4): a(f"v_add_f32_dpp v{64+i}, v{64+i}, v{64+i} row_ror:8 row_mask:0xf bank_mask:0xf")
        a("v_cvt_pk_bf16_f32 v40, v64, v65")
        a("v_cvt_pk_bf16_f32 v41, v66, v67")

    def red8(self, r):
        a = self.a
        for i in range(4): a(f"v_add_f32_dpp v{r+i}, v{r+i}, v{r+i} row_ror:8 row_mask:0xf bank_mask:0xf")
        for sw in ("16", "32"):
            for i in range(4): a(f"v_mov_b32 v{60+i}, v{r+i}")
            for i in range(4): a(f"v_permlane{sw}_swap_b32 v{r+i}, v{60+i}")
            for i in range(4): a(f"v_add_f32 v{r+i}, v{r+i}, v{60+i}")

    def build(self):
        self.prologue()
        self.ww_early()
        if self.o.get("tnear"): self.tw_early()
        self.g_early()
        self.g_role()
        self.m_role()
        self.guard(3300, fall=False)
        self.ww_main()
        self.t_prefetch()
        self.guard(3300, fall=False)
        if not self.o.get("tnear"): self.tw_early()
        self.tw_issue()
        self.tw_main()
        if self.diag:
            self.a.label("Ldump")
            self.dump_stamps()
        self.a.label("Lexit")
        self.a("s_endpgm")
        self.a.label("Lcode_end")
        body = self.a.finish()
        head = open("cdna_kernels/" + NAME + ".s.ref").read().split("; Override launch geometry")[0]
        return head + f"""; Generated by gen/gen_kernel.py (own generator script).  One persistent launch: 256 workgroups (one per CU) x 5 waves.
; wg -> x = wg&7, j = wg>>3.  All weights / K / V stream through LDS-DMA, all GEMVs run on 16x16x32 bf16 MFMA.
;   T (j<16)     : attention over 256 keys of (batch j>>3, kv head x); 32 of their waves also sum the FFN partials -> out
;   W (16..23)   : q partial (64 rows of wq x one kv head), then 64 columns of the output projection (j=19: sums ga/sb/cb/gb)
;   G (24..31)   : K slice of silu(c)@w_mod -> h partial and ga/sb/cb/gb partials, then 32 FFN columns (j=31: projection block 3)
; Hand-offs go through d_ws and are validated by content, never by timing or placement:
;   tagged 16-byte granules (tag = next(epoch word found in d_ws); the word is advanced once per launch), or
;   NaN-poisoned slots (the owner poisons them first and says so with a tagged flag that readers check).
;   h and the attention partials are written twice: plain (fast when both ends share an L2) and write-through (fallback).
; Every wait is bounded.
; @launch grid=(256,1,1) block=(320,1,1) lds={LDS_BYTES}
.amdgcn_target "amdgcn-amd-amdhsa--gfx950"
.text
.globl {KNAME}
.p2align 12
.type {KNAME},@function
{KNAME}:
{body}
.section .rodata,"a"
.p2align 6
.amdhsa_kernel {KNAME}
  .amdhsa_next_free_vgpr 240
  .amdhsa_next_free_sgpr 102
  .amdhsa_accum_offset 240
  .amdhsa_group_segment_fixed_size 0
  .amdhsa_kernarg_size 112
  .amdhsa_user_sgpr_count 2
  .amdhsa_user_sgpr_kernarg_segment_ptr 1
  .amdhsa_system_sgpr_workgroup_id_x 1
.end_amdhsa_kernel
"""

if __name__ == "__main__":
    import argparse
    ap = argparse.ArgumentParser()
    ap.add_argument("-o", default="cdna_kernels/" + NAME + ".s")
    ap.add_argument("--diag", action="store_true")
    ap.add_argument("--wflag", default="nt")
    ap.add_argument("--opt", action="append", default=[])
    args = ap.parse_args()
    opts = {}
    for o in args.opt:
        k, _, v = o.partition("=")
        opts[k] = int(v) if v else 1
    open(args.o, "w").write(Gen(args.diag, args.wflag, opts).build())
    print("wrote", args.o)
```

```python
import sys, struct
from asmlib import Asm

NAME = "adaLN_cond__sliding_block_cached__glu_gated_reglu__decode"
KNAME = NAME + "_kernel"

def f32(x): return "0x%08x" % struct.unpack("<I", struct.pack("<f", x))[0]

EPOCH = 0x0
RDY = 0x1000
HM = 0x4000
HA = 0x8000
ALOC = 0x8000
HB = 0x140000
HD = 0x20000
HL = HD + 0x8000
HC = HL + 0x4000
LOC = 0x24000
HF = HC + 0x20000 + LOC
HFS = 7168
HP = 0xD0000
STAMP = 0x100000
WS_SIZE = 0x200000
LDS_BYTES = 151552
KB, VB, PB, MX, LS, QB = 0, 65536, 131072, 133120, 133248, 133632
WQ, WO, GA, RED, SCW, HW = 0, 65536, 131072, 147456, 149504, 150016
W1, GU, DWN, MRG, SC, LNS = 0, 16384, 81920, 114688, 147456, 148480
REC, CSR, STAT = W1, W1 + 4096, W1 + 8192
AROW_O = 4096

LOG2E = 1.4426950408889634
CSC = (128 ** -0.5) * LOG2E
SPIN = 100000
import os
if os.environ.get('SPIN'): SPIN = int(os.environ['SPIN'])
MFMA = "v_mfma_f32_16x16x32_bf16"

class Gen:
    POISON = ("v_cmp_eq_u32", "-1")
    TAGBAD = ("v_cmp_ne_u32", "s14")

    def __init__(self, diag=False, wflag="nt", opts=None):
        self.a = Asm()
        self.diag = diag
        self.wf = wflag
        self.o = opts or {}
        self.nlab = 0
    def lab(self, p="L"):
        self.nlab += 1
        return f"{p}{self.nlab}"
    def dstamp(self, k):
        if self.o.get("gdbg"): self.a(f"s_memrealtime s[{64+2*k}:{65+2*k}]")
    def stamp(self, k):
        if self.o.get("gdbg") and getattr(self, "mute", False) and k in (4, 6, 7, 8): return
        if self.diag or self.o.get("amp") == k: self.a(f"s_memrealtime s[{64+2*k}:{65+2*k}]")
    def dump_max(self):
        a = self.a
        a("s_load_dwordx2 s[44:45], s[0:1], 96")
        a("s_mov_b32 s46, 256")
        a("s_mov_b32 s47, 0x20000")
        a("s_mov_b64 exec, 1")
        a("v_mov_b32 v1, 0")
        a("s_waitcnt lgkmcnt(0)")
        def put(slot, reg):
            a(f"v_mov_b32 v4, {reg}")
            a(f"buffer_atomic_umax v4, v1, s[44:47], 0 offen offset:{4*slot} sc1")
        a("s_not_b32 s60, s64")
        put(0, "s60"); put(1, "s64")
        a("s_lshr_b32 s5, s2, 3")
        a("s_cmp_ge_u32 s5, 24")
        a("s_cbranch_scc1 LdG")
        a("s_cmp_ge_u32 s5, 16")
        a("s_cbranch_scc1 LdW")
        for slot, k in ((6, 3), (7, 9), (8, 5), (15, 8)): put(slot, f"s{64+2*k}")
        a("s_endpgm")
        a.label("LdW")
        for slot, k in ((3, 2), (4, 3), (5, 4), (9, 6), (10, 7), (11, 8)): put(slot, f"s{64+2*k}")
        a("s_endpgm")
        a.label("LdG")
        for slot, k in ((2, 3), (12, 6), (13, 7), (14, 9)): put(slot, f"s{64+2*k}")
    def dump_gamp(self):
        a = self.a
        k, lo, hi = self.o["gamp"] // 10000, self.o["gamp"] // 100 % 100, self.o["gamp"] % 100
        a("s_waitcnt lgkmcnt(0)")
        a("s_lshr_b32 s5, s2, 3")
        a(f"s_sub_u32 s60, s5, {lo}")
        a(f"s_cmp_lt_u32 s60, {hi-lo}")
        a(f"s_cselect_b32 s61, s{64+2*k}, 0")
        a("s_cmp_eq_u32 s61, 0")
        a("s_cselect_b32 s61, s64, s61")
        a("s_lshl_b32 s60, s2, 2")
        a("s_add_u32 s60, s60, s3")
        a("s_lshl_b32 s60, s60, 2")
        a(f"s_add_u32 s60, s60, {STAMP}")
        a("s_mov_b64 exec, 1")
        a("v_mov_b32 v1, 0")
        a("v_mov_b32 v4, s64")
        a("v_mov_b32 v5, s61")
        a("buffer_store_dword v4, v1, s[40:43], s60 offen sc1")
        a("s_add_u32 s60, s60, 4096")
        a("buffer_store_dword v5, v1, s[40:43], s60 offen sc1")
        a("s_mov_b64 exec, -1")
        a("s_cmp_eq_u32 s2, 0")
        a("s_cbranch_scc0 Lexit")
        a("s_cmp_eq_u32 s3, 1")
        a("s_cbranch_scc0 Lexit")
        def until(reg):
            L = self.lab("Lu")
            a.label(L)
            a("s_memrealtime s[98:99]")
            a("s_waitcnt lgkmcnt(0)")
            a("s_sub_u32 s98, s98, s64")
            a(f"s_cmp_lt_u32 s98, {reg}")
            a(f"s_cbranch_scc1 {L}")
        until(3000)
        a("v_lshlrev_b32 v2, 4, v0")
        a(f"s_mov_b32 s60, {STAMP}")
        a(f"s_mov_b32 s61, {STAMP+4096}")
        for i in range(4):
            a(f"buffer_load_dwordx4 v[{8+4*i}:{11+4*i}], v2, s[40:43], s60 offen offset:{1024*i} sc1")
            a(f"buffer_load_dwordx4 v[{24+4*i}:{27+4*i}], v2, s[40:43], s61 offen offset:{1024*i} sc1")
        a("s_waitcnt vmcnt(0)")
        for i in range(32): a(f"v_subrev_u32 v{8+i}, s64, v{8+i}")
        for i in range(1, 16):
            a(f"v_min_i32 v8, v8, v{8+i}")
            a(f"v_max_i32 v24, v24, v{24+i}")
        a("s_mov_b32 s60, 0")
        a("s_mov_b32 s61, 0")
        for l in range(64):
            a(f"v_readlane_b32 s62, v8, {l}")
            a(f"v_readlane_b32 s63, v24, {l}")
            a("s_min_i32 s60, s60, s62")
            a("s_max_i32 s61, s61, s63")
        a("s_sub_u32 s61, s61, s60")
        a("s_mul_i32 s61, s61, 40")
        a("s_add_u32 s100, s61, 4000")
        until("s100")
    def dump_stamps(self):
        if not self.diag: return
        if self.o.get("gamp") is not None: return self.dump_gamp()
        if self.o.get("dmax"): return self.dump_max()
        a = self.a
        a("s_waitcnt lgkmcnt(0)")
        a("s_mov_b64 exec, 1")
        a("s_mul_i32 s60, s2, 5")
        a("s_add_u32 s60, s60, s3")
        a("s_lshl_b32 s60, s60, 6")
        a(f"s_add_u32 s60, s60, {STAMP}")
        a("v_mov_b32 v1, 0")
        for q in range(3):
            for i in range(4):
                a(f"v_mov_b32 v{4+i}, s{64+2*(4*q+i)}")
            a(f"buffer_store_dwordx4 v[4:7], v1, s[40:43], s60 offen offset:{16*q}")
            a("s_nop 1")
    def end(self, helper=False):
        self.a("s_branch Ldump" if self.diag and (not helper or self.o.get("hdump")) else "s_endpgm")
    def delay(self, key):
        n = self.o.get(key, 0)
        if not n: return
        a = self.a
        L = self.lab("Ld")
        a.label(L)
        a("s_memrealtime s[98:99]")
        a("s_waitcnt lgkmcnt(0)")
        a("s_sub_u32 s98, s98, s64")
        a(f"s_cmp_lt_u32 s98, {n}")
        a(f"s_cbranch_scc1 {L}")
    def guard(self, n, fall=True, fill=None):
        L = self.lab("Lg")
        if fall: self.a(f"s_branch {L}")
        if fill: fill()
        self.a(f".p2align 12, , {n}")
        self.a.label(L)
    def srd(self, d, p, size):
        a = self.a
        a(f"s_mov_b64 s[{d}:{d+1}], s[{p}:{p+1}]")
        a(f"s_mov_b32 s{d+2}, {size}")
        a(f"s_mov_b32 s{d+3}, 0x20000")
    def tag(self):
        self.a("s_mul_i32 s14, s14, 0x9E3779B1")
        self.a("s_add_u32 s14, s14, 0x7F4A7C15")
    def exec16(self, m):
        self.a(f"s_mov_b32 exec_lo, {(m << 16 | m):#x}")
        self.a(f"s_mov_b32 exec_hi, {(m << 16 | m):#x}")
    def poll(self, loads, checks, sleep=0, after=None):
        a = self.a
        L = self.lab("Lp"); D = self.lab("Lpd")
        n = len(loads)
        a(f"s_mov_b32 s12, {SPIN}")
        a.label(L)
        for l in loads: a(l)
        for i, (op, opd, r) in enumerate(checks):
            a(f"s_waitcnt vmcnt({n-1-i})")
            if i == 0:
                a(f"{op} s[10:11], {opd}, v{r}")
            else:
                a(f"{op} vcc, {opd}, v{r}")
                a("s_or_b64 s[10:11], s[10:11], vcc")
            if after: after(i)
        a("s_cmp_eq_u64 s[10:11], 0")
        a(f"s_cbranch_scc1 {D}")
        if sleep: a(f"s_sleep {sleep}")
        a("s_sub_u32 s12, s12, 1")
        a(f"s_cbranch_scc0 {L}")
        a.label(D)
    def spin(self, body, sleep=0, alt=None, issue=None, mid=None):
        a = self.a
        L = self.lab("Lp"); D = self.lab("Lpd")
        n = SPIN
        if alt:
            sregs, delta, every = alt
            for i, r in enumerate(sregs):
                a(f"s_mov_b32 s{96+2*i}, s{r}")
                a(f"s_add_u32 s{97+2*i}, s{r}, {delta}")
                a(f"s_mov_b32 s{r}, s{97+2*i}")
            n = SPIN * 4 | (every - 1)
        a(f"s_mov_b32 s12, {n}")
        if issue:
            E = self.lab("Lpe")
            issue(); mid()
            a(f"s_branch {E}")
        a.label(L)
        if issue:
            issue()
            a.label(E)
        body()
        a("s_cmp_eq_u64 s[10:11], 0")
        a(f"s_cbranch_scc1 {D}")
        if sleep: a(f"s_sleep {sleep}")
        if alt:
            a(f"s_and_b32 s13, s12, {every-1}")
            for i, r in enumerate(sregs): a(f"s_cselect_b32 s{r}, s{97+2*i}, s{96+2*i}")
        a("s_sub_u32 s12, s12, 1")
        a(f"s_cbranch_scc0 {L}")
        a.label(D)
    def ssent(self, soff, offs, cnt=13):
        a = self.a
        L = self.lab("Ls"); D = self.lab("Lsd")
        a(f"s_mov_b32 s{cnt}, {SPIN}")
        a.label(L)
        for k, o in enumerate(offs): a(f"s_load_dword s{88+k}, s[40:41], s{soff} offset:{o} glc")
        a("s_waitcnt lgkmcnt(0)")
        for k in range(len(offs)): a(f"s_xor_b32 s{88+k}, s{88+k}, s14")
        for k in range(1, len(offs)): a(f"s_or_b32 s88, s88, s{88+k}")
        a(f"s_cbranch_scc0 {D}")
        a(f"s_sub_u32 s{cnt}, s{cnt}, 1")
        a(f"s_cbranch_scc0 {L}")
        a.label(D)
    def sum_poll(self, loads, base, acc, mid=None):
        a = self.a
        n = len(loads)
        def issue():
            for l in loads: a(l)
        def body():
            if not mid: issue()
            for i in range(1, n):
                a(f"s_waitcnt vmcnt({n-1-i})")
                src = base if i == 1 else acc
                for k in range(2): a(f"v_pk_add_f32 v[{acc+2*k}:{acc+1+2*k}], v[{src+2*k}:{src+1+2*k}], v[{base+4*i+2*k}:{base+1+4*i+2*k}]")
            a(f"v_cmp_u_f32 s[10:11], v{acc}, v{acc+1}")
            a(f"v_cmp_u_f32 vcc, v{acc+2}, v{acc+3}")
            a("s_or_b64 s[10:11], s[10:11], vcc")
        self.spin(body, issue=issue if mid else None, mid=mid)
    def silu(self, regs, tmp):
        a = self.a
        for i, r in enumerate(regs): a(f"v_mul_f32 v{tmp+i}, {f32(-LOG2E)}, v{r}")
        for i, r in enumerate(regs): a(f"v_exp_f32 v{tmp+i}, v{tmp+i}")
        for i, r in enumerate(regs): a(f"v_add_f32 v{tmp+i}, 1.0, v{tmp+i}")
        for i, r in enumerate(regs): a(f"v_rcp_f32 v{tmp+i}, v{tmp+i}")
        for i, r in enumerate(regs): a(f"v_mul_f32 v{r}, v{r}, v{tmp+i}")
    def unpack(self, src, dst, n):
        for i in range(n):
            self.a(f"v_lshlrev_b32 v{dst+2*i}, 16, v{src+i}")
            self.a(f"v_and_b32 v{dst+2*i+1}, 0xffff0000, v{src+i}")
    def row_sum(self, r):
        for m in ("quad_perm:[1,0,3,2]", "quad_perm:[2,3,0,1]", "row_half_mirror", "row_mirror"):
            self.a(f"v_add_f32_dpp v{r}, v{r}, v{r} {m} row_mask:0xf bank_mask:0xf")
    def silu_frag(self, base):
        a = self.a
        a("v_bfe_u32 v10, v0, 4, 1")
        a("v_mul_u32_u24 v5, 144, v10")
        a("v_bfe_u32 v4, v0, 3, 1")
        a("v_lshl_add_u32 v5, v4, 6, v5")
        a("v_and_b32 v4, 3, v0")
        a("v_lshl_add_u32 v5, v4, 4, v5")
        a("v_bfe_u32 v4, v0, 2, 1")
        a("v_lshl_add_u32 v5, v4, 3, v5")
        a(f"v_add_u32 v5, {base}, v5")
    def silu_run(self):
        a = self.a
        self.unpack(28, 16, 2)
        self.silu([16, 17, 18, 19], 24)
        a("v_cvt_pk_bf16_f32 v28, v16, v17")
        a("v_cvt_pk_bf16_f32 v29, v18, v19")
        a("ds_write_b64 v5, v[28:29]")
    def c_voff(self, d):
        a = self.a
        a(f"v_bfe_u32 v{d}, v0, 4, 1")
        a(f"v_lshlrev_b32 v{d}, 10, v{d}")
        a("v_and_b32 v11, 15, v0")
        a(f"v_lshl_add_u32 v{d}, v11, 3, v{d}")
    def mfma(self, d, A, B, first):
        c = "0" if first else f"v[{d}:{d+3}]"
        self.a(f"{MFMA} v[{d}:{d+3}], v[{A}:{A+3}], v[{B}:{B+3}], {c}")
    def tr(self, r, va, off, second):
        self.a(f"ds_read_b64_tr_b16 v[{r}:{r+1}], v{va} offset:{off}")
        self.a(f"ds_read_b64_tr_b16 v[{r+2}:{r+3}], v{va} offset:{off+second}")
    def voff256(self, d, stride_sh, t0, t1):
        a = self.a
        a(f"v_lshrrev_b32 v{t0}, 4, v0")
        a(f"v_and_b32 v{t1}, 15, v0")
        a(f"v_lshlrev_b32 v{d}, 1, v{t0}")
        a(f"v_xor_b32 v{d}, v{t1}, v{d}")
        a(f"v_lshlrev_b32 v{d}, 4, v{d}")
        a(f"v_lshl_add_u32 v{d}, v{t0}, {stride_sh}, v{d}")
        a(f"v_xor_b32 v{d+1}, 0x80, v{d}")
    def voff128(self, d, stride, t0, t1):
        a = self.a
        a(f"v_lshrrev_b32 v{t0}, 3, v0")
        a(f"v_and_b32 v{d}, 6, v{t0}")
        a(f"v_and_b32 v{t1}, 7, v0")
        a(f"v_xor_b32 v{d}, v{d}, v{t1}")
        a(f"v_mul_u32_u24 v{t0}, {stride}, v{t0}")
        a(f"v_lshl_add_u32 v{d}, v{d}, 4, v{t0}")
    def traddr256(self, d, n, base, t0, t1, first=None):
        a = self.a
        a(f"v_lshrrev_b32 v{t0}, 2, v0")
        a(f"v_and_b32 v{d}, 7, v{t0}")
        a(f"v_lshlrev_b32 v{d}, 5, v{d}")
        a(f"v_lshl_add_u32 v{d}, v{t0}, 8, v{d}")
        a(f"v_and_b32 v{t1}, 3, v0")
        a(f"v_lshl_add_u32 v{d}, v{t1}, 3, v{d}")
        if first: a(f"v_xor_b32 v{d}, {first}, v{d}")
        a(f"v_add_u32 v{d}, {base}, v{d}")
        for i in range(1, n): a(f"v_xor_b32 v{d+i}, {32*i}, v{d}")
    def traddr128(self, d, base, t0, t1, grp_sh=10, n=4):
        a = self.a
        a(f"v_bfe_u32 v{t0}, v0, 2, 3")
        a(f"v_bfe_u32 v{d}, v0, 3, 2")
        a(f"v_lshlrev_b32 v{d}, 5, v{d}")
        a(f"v_lshl_add_u32 v{d}, v{t0}, 7, v{d}")
        a(f"v_lshrrev_b32 v{t0}, 5, v0")
        a(f"v_lshl_add_u32 v{d}, v{t0}, {grp_sh}, v{d}")
        a(f"v_and_b32 v{t1}, 3, v0")
        a(f"v_lshl_add_u32 v{d}, v{t1}, 3, v{d}")
        if base is not None: a(f"v_add_u32 v{d}, {base}, v{d}")
        for i in range(1, n): a(f"v_xor_b32 v{d+i}, {32*i}, v{d}")

    def prologue(self):
        a = self.a
        a("s_cmp_ge_u32 s2, 256")
        a("s_cbranch_scc1 Lexit")
        a("s_load_dwordx16 s[16:31], s[0:1], 0")
        a("s_load_dwordx8 s[32:39], s[0:1], 64")
        a("s_load_dwordx2 s[40:41], s[0:1], 104")
        if self.diag:
            for k in range(1, 12): a(f"s_mov_b32 s{64+2*k}, 0")
        self.stamp(0)
        if self.o.get("padto"): a("s_memrealtime s[96:97]")
        a("s_getpc_b64 s[56:57]")
        a.label("Lpc0")
        a("s_lshr_b32 s5, s2, 3")
        a("v_lshrrev_b32 v1, 6, v0")
        a("s_mul_i32 s6, s5, 640")
        a("v_lshl_add_u32 v2, v1, 7, s6")
        a("v_min_u32 v2, Lcode_end-Lpc0-4, v2")
        a("global_load_dword v239, v2, s[56:57]")
        a("v_and_b32 v0, 63, v0")
        a("s_and_b32 s4, s2, 7")
        a("v_readfirstlane_b32 s3, v1")
        a(f"s_mov_b32 s42, {WS_SIZE}")
        a("s_mov_b32 s43, 0x20000")
        a("s_mov_b32 s47, 0x20000")
        a("s_mov_b32 s51, 0x20000")
        a("s_lshl_b32 s7, s3, 14")
        a("s_cmp_ge_u32 s5, 24")
        a("s_cbranch_scc1 LG0")
        a("s_cmp_eq_u32 s3, 4")
        a("s_cbranch_scc1 LH0")
        self.voff256(6, 8, 1, 8)
        a("s_mov_b32 m0, s7")
        a("s_cmp_ge_u32 s5, 16")
        a("s_cbranch_scc0 LT0")

    def tw_early(self):
        a, wf = self.a, self.wf
        a.label("LT0")
        a("s_and_b32 s6, s5, 8")
        a("s_add_u32 s6, s6, s4")
        a("s_lshl_b32 s6, s6, 21")
        a("s_and_b32 s8, s5, 7")
        a("s_lshl_b32 s8, s8, 16")
        a("s_add_u32 s6, s6, s8")
        a("s_add_u32 s6, s6, s7")
        a(f"s_add_u32 s6, s6, {6144*256}")
        a("v_xor_b32 v2, v8, v1")
        a("v_lshlrev_b32 v2, 4, v2")
        a("v_lshl_add_u32 v2, v1, 8, v2")
        a("v_xor_b32 v3, 64, v2")
        a("v_xor_b32 v4, 0x80, v2")
        a("v_xor_b32 v5, 0xc0, v2")
        a("s_mov_b32 s8, s6")
        a("s_add_u32 s9, s6, 16384")
        a("s_mov_b32 s46, 0x2000000")
        a("s_mov_b32 s50, 0x2000000")
        a("s_add_u32 s10, s6, 8192")
        a("s_waitcnt lgkmcnt(0)")
        a("s_mov_b64 s[44:45], s[18:19]")
        a("s_mov_b64 s[48:49], s[20:21]")
        a("s_load_dword s14, s[40:41], 0")
        cap = self.o.get("cap", 8)
        for half in range(2):
            L = self.lab("LTWk")
            a.label(L)
            for i in range(4):
                a(f"buffer_load_dwordx4 v{2+i}, s[44:47], s8 offen offset:{1024*i} {wf} lds")
                if cap and half: a(f"s_waitcnt vmcnt({cap})")
            a("s_add_u32 m0, m0, 4096")
            a("s_add_u32 s8, s8, 4096")
            a(f"s_cmp_lt_u32 s8, s{10-half}")
            a(f"s_cbranch_scc1 {L}")
            if half == 0:
                a("s_branch LTpx")
                a.label("LTpr")
        self.stamp(10)
        if self.o.get("tnear"): a("s_branch LTW1")

    def tw_issue(self):
        a, wf = self.a, self.wf
        cap = self.o.get("vcap", 8)
        if self.o.get("tnear"):
            a.label("LTHp")
            a("s_branch LTH")
            a.label("LTW1")
        a("s_lshl_b32 s55, s4, 14")
        a("s_and_b32 s13, s5, 8")
        a("s_lshl_b32 s13, s13, 10")
        a("s_add_u32 s55, s55, s13")
        a("s_lshl_b32 s13, s3, 11")
        a("s_add_u32 s55, s55, s13")
        a(f"s_add_u32 s55, s55, {HB}")
        a("v_lshlrev_b32 v21, 4, v0")
        a("v_mov_b32 v229, v21")
        a("s_lshl_b32 s27, s4, 7")
        a(f"s_add_u32 s27, s27, {RDY+2048}")
        a(f"s_add_u32 m0, s7, {VB}")
        a("s_mov_b32 s8, s6")
        a("s_waitcnt lgkmcnt(0)")
        self.tag()
        for g in range(4):
            if g == 2:
                a("s_mov_b64 exec, 0xff")
                self.rdy_load()
                a("s_mov_b64 exec, -1")
            for i in range(4):
                a(f"buffer_load_dwordx4 v{6+(i&1)}, s[48:51], s8 offen offset:{1024*i} {wf} lds")
                if cap: a(f"s_waitcnt vmcnt({cap})")
            if g < 3:
                a("s_add_u32 m0, m0, 4096")
                a("s_add_u32 s8, s8, 4096")
        a("s_waitcnt vmcnt(8)")
        a("s_mov_b64 exec, 0xff")
        self.rdy_check()
        a("s_mov_b64 exec, -1")
        self.qfetch()

    def qfetch(self):
        for i in range(2): self.a(f"buffer_load_dwordx4 v[{192+4*i}:{195+4*i}], v21, s[40:43], s55 offen offset:{1024*i} sc1")

    def ww_early(self):
        a, wf = self.a, self.wf
        a.label("LW0")
        if self.o.get("now"): a("s_endpgm")
        a("s_lshl_b32 s9, s4, 19")
        a("s_and_b32 s52, s5, 7")
        a("s_lshl_b32 s15, s52, 10")
        a("s_add_u32 s9, s9, s15")
        a("s_lshl_b32 s15, s3, 8")
        a("s_add_u32 s9, s9, s15")
        a("v_mul_u32_u24 v2, 0x1f00, v1")
        a("v_add_u32 v6, v6, v2")
        a("v_add_u32 v7, v7, v2")
        a("s_add_u32 s13, s7, 16384")
        a(f"s_mov_b32 s46, {512*8192}")
        a("s_waitcnt lgkmcnt(0)")
        a("s_mov_b64 s[44:45], s[22:23]")
        if self.o.get("pf3", 0):
            a("s_cmp_eq_u32 s4, 3")
            a("s_cbranch_scc0 LWp")
            a("s_mov_b64 s[48:49], s[36:37]")
            a(f"s_mov_b32 s50, {512*6144}")
            a("s_lshl_b32 s15, s52, 2")
            a("s_add_u32 s15, s15, s3")
            a(f"s_mul_i32 s15, s15, {16*6144}")
            a("v_mul_u32_u24 v3, 6144, v8")
            a("s_mov_b64 exec, 0xffff")
            a(f"buffer_load_dword v238, v3, s[48:51], s15 offen offset:{1024+384}")
            a("s_mov_b64 exec, -1")
            a.label("LWp")
        a("s_load_dword s14, s[40:41], 0")
        a.label("LWq")
        for i in range(2):
            a(f"buffer_load_dwordx4 v{6+i}, s[44:47], s9 offen {wf} lds")
            a("s_add_u32 m0, m0, 1024")
            a("s_add_u32 s9, s9, 32768")
        if self.o.get("qcap", 8): a(f"s_waitcnt vmcnt({self.o.get('qcap', 8)})")
        a("s_cmp_lt_u32 m0, s13")
        a("s_cbranch_scc1 LWq")
        a("s_branch LW2")
        a.label("LH0")
        a("s_cmp_ge_u32 s5, 16")
        a("s_cbranch_scc0 " + ("LTHp" if self.o.get("tnear") else "LTH"))
        a("s_branch LWHp")

    def g_early(self):
        a, wf = self.a, self.wf
        a.label("LG0")
        if self.o.get("nog"): a("s_endpgm")
        a("s_sub_u32 s5, s5, 24")
        if self.o.get("chs", 0):
            a("s_mov_b32 s60, s5")
            a("s_mov_b32 s61, s4")
        else:
            a("s_mov_b32 s60, s4")
            a("s_mov_b32 s61, s5")
        a("s_mov_b32 s50, 2048")
        a("s_cmp_eq_u32 s3, 4")
        a("s_cbranch_scc0 LGW")
        self.c_voff(4)
        a("s_lshl_b32 s9, s61, 7")
        a("s_waitcnt lgkmcnt(0)")
        a("s_mov_b64 s[48:49], s[34:35]")
        a("buffer_load_dwordx2 v[28:29], v4, s[48:51], s9 offen")
        a("s_load_dword s14, s[40:41], 0")
        self.silu_frag(SC)
        a("s_waitcnt vmcnt(0)")
        self.silu_run()
        a("s_waitcnt lgkmcnt(0)")
        a("s_barrier")
        a("s_barrier")
        a("s_branch LGH2")
        a.label("LGW")
        a("v_lshlrev_b32 v6, 4, v0")
        self.voff128(2, 6144, 1, 3)
        a("s_lshl_b32 s9, s61, 2")
        a("s_add_u32 s9, s9, s3")
        a(f"s_mul_i32 s9, s9, {16*6144}")
        a("s_lshl_b32 s6, s60, 7")
        a("s_add_u32 s9, s9, s6")
        a("s_lshl_b32 s13, s3, 5")
        a("s_add_u32 s6, s6, s13")
        a("v_and_b32 v12, 1, v0")
        a("v_and_b32 v13, 48, v0")
        a("v_lshrrev_b32 v4, 1, v13")
        a("v_lshl_add_u32 v4, v12, 10, v4")
        a("v_lshrrev_b32 v14, 5, v0")
        a("v_lshlrev_b32 v14, 10, v14")
        a("v_and_b32 v15, 31, v0")
        a("v_lshl_add_u32 v14, v15, 3, v14")
        a("s_lshl_b32 s63, s3, 8")
        a("s_lshr_b32 m0, s7, 2")
        a(f"s_mov_b32 s54, {512*6144}")
        a("s_mov_b32 s55, 0x20000")
        a("s_lshl_b32 s8, s60, 12")
        a("s_lshl_b32 s15, s3, 10")
        a("s_add_u32 s8, s8, s15")
        a("s_lshl_b32 s15, s61, 7")
        a("s_add_u32 s8, s8, s15")
        a(f"s_add_u32 s8, s8, {HA}")
        a(f"s_add_u32 s62, s8, {ALOC}")
        a("s_waitcnt lgkmcnt(0)")
        self.dstamp(4)
        a("s_mov_b64 s[48:49], s[16:17]")
        a("s_mov_b64 s[52:53], s[36:37]")
        lnh = self.o.get("lnh", 1)
        if lnh:
            a("buffer_load_dwordx2 v[24:25], v14, s[48:51], s63 offen")
        else:
            a("buffer_load_dwordx4 v[24:27], v6, s[48:51], 0 offen")
            a("buffer_load_dwordx4 v[28:31], v6, s[48:51], 0 offen offset:1024")
        self.exec16(3)
        a("buffer_load_dwordx2 v[20:21], v4, s[48:51], s6 offen")
        a("s_mov_b64 exec, -1")
        for i in range(2):
            a(f"buffer_load_dwordx4 v2, s[52:55], s9 offen {wf} lds")
            a(f"buffer_load_dwordx4 v2, s[52:55], s9 offen offset:1024 {wf} lds")
            if i == 0:
                a("s_add_u32 m0, m0, 2048")
                a(f"s_add_u32 s9, s9, {8*6144}")
        a("s_mov_b64 exec, 1")
        a("buffer_load_dword v238, v6, s[40:43], s62 offen sc1")
        a("s_mov_b64 exec, -1")
        a("s_load_dword s14, s[40:41], 0")
        mr0 = 0
        self.traddr128(8, None, 1, 3, grp_sh=11, n=1)
        a("v_xor_b32 v8, s13, v8")
        a("v_mul_u32_u24 v6, 144, v12")
        a("v_add_u32 v6, v6, v13")
        a(f"v_add_u32 v6, {SC}, v6")
        a("v_lshlrev_b32 v7, 4, v12")
        a("v_lshl_add_u32 v13, v13, 1, v7")
        a("s_cmp_eq_u32 s61, 0")
        a("s_cselect_b32 s9, 1.0, 0")
        for i in range(4): a(f"v_mov_b32 v{44+i}, s9")
        a("s_mov_b32 s9, 0x3f803f80")
        if lnh:
            a("v_and_b32 v15, 48, v0")
            a("s_lshl_b32 s15, s3, 2")
            a(f"s_add_u32 s15, s15, {LNS}")
            a("v_add_u32 v15, s15, v15")
            a("v_lshlrev_b32 v7, 5, v12")
            a(f"v_add_u32 v7, {LNS}, v7")
            a(f"v_mov_b32 v52, {f32(1e-5)}")
            self.dstamp(6)
            a("s_waitcnt vmcnt(5) lgkmcnt(0)")
            self.dstamp(7)
            self.tag()
            a("v_dot2_f32_bf16 v48, v24, s9, 0")
            a("v_dot2_f32_bf16 v50, v24, v24, 0")
            a("v_dot2_f32_bf16 v48, v25, s9, v48")
            a("v_dot2_f32_bf16 v50, v25, v25, v50")
            self.unpack(20, 16, 2)
            a("v_permlane16_swap_b32 v48, v50")
            a("v_add_f32 v48, v48, v50")
            self.row_sum(48)
            a("ds_write_b32 v15, v48")
            a("s_waitcnt lgkmcnt(0)")
        else:
            a("v_lshlrev_b32 v7, 7, v12")
            a(f"s_waitcnt vmcnt({5+mr0})")
            for b in range(2):
                a(f"v_dot2_f32_bf16 v{48+b}, v{24+4*b}, s9, 0")
                a(f"v_dot2_f32_bf16 v{50+b}, v{24+4*b}, v{24+4*b}, 0")
            for i in range(1, 4):
                for b in range(2):
                    a(f"v_dot2_f32_bf16 v{48+b}, v{24+4*b+i}, s9, v{48+b}")
                    a(f"v_dot2_f32_bf16 v{50+b}, v{24+4*b+i}, v{24+4*b+i}, v{50+b}")
            a("v_permlane32_swap_b32 v48, v49")
            a("v_permlane32_swap_b32 v50, v51")
            a("v_add_f32 v48, v48, v49")
            a("v_add_f32 v50, v50, v51")
            a("v_permlane16_swap_b32 v48, v50")
            a("v_add_f32 v48, v48, v50")
            self.row_sum(48)
            a("ds_bpermute_b32 v50, v7, v48")
            a("ds_bpermute_b32 v51, v7, v48 offset:64")
            a(f"v_mov_b32 v52, {f32(1e-5)}")
            a("s_waitcnt lgkmcnt(0)")
            self.tag()
            a(f"v_mul_f32 v50, {f32(1/512)}, v50")
            a(f"v_fmamk_f32 v51, v51, {f32(1/512)}, v52")
            a("v_fma_f32 v51, -v50, v50, v51")
            a("v_rsq_f32 v51, v51")
            self.unpack(20, 16, 2)
            for i in range(4): a(f"v_sub_f32 v{16+i}, v{16+i}, v50")
            for i in range(4): a(f"v_mul_f32 v{16+i}, v{16+i}, v51")
        a("v_mov_b32 v58, s14")
        a("v_mov_b32 v59, s14")
        a(f"s_waitcnt vmcnt({1+mr0})")
        self.dstamp(8)
        a("s_barrier")
        self.stamp(1)
        if lnh:
            a("ds_read_b128 v[24:27], v7")
            a("ds_read_b128 v[28:31], v7 offset:16")
        for ks in range(2):
            a(f"ds_read_b128 v[{32+4*ks}:{35+4*ks}], v6 offset:{64*ks}")
            for seg in range(2): self.tr(64 + 8 * ks + 4 * seg, 8, W1 + 8192 * ks + 1024 * seg, 4096)
        if lnh:
            a("s_waitcnt lgkmcnt(10)")
            a("v_pk_add_f32 v[24:25], v[24:25], v[26:27]")
            a("v_pk_add_f32 v[28:29], v[28:29], v[30:31]")
            a("v_add_f32 v50, v24, v25")
            a("v_add_f32 v51, v28, v29")
            a(f"v_mul_f32 v50, {f32(-1/512)}, v50")
            a(f"v_fmamk_f32 v51, v51, {f32(1/512)}, v52")
            a("v_fma_f32 v51, -v50, v50, v51")
            a("v_max_f32 v51, v51, v52")
            a("v_rsq_f32 v51, v51")
            for k in range(2): a(f"v_pk_add_f32 v[{16+2*k}:{17+2*k}], v[{16+2*k}:{17+2*k}], v[50:51] op_sel_hi:[1,0]")
            for k in range(2): a(f"v_pk_mul_f32 v[{16+2*k}:{17+2*k}], v[{16+2*k}:{17+2*k}], v[50:51] op_sel:[0,1] op_sel_hi:[1,1]")
        a("s_waitcnt lgkmcnt(5)")
        self.mfma(40, 64, 32, True)
        self.mfma(44, 68, 32, False)
        a("s_waitcnt lgkmcnt(0)")
        self.mfma(40, 72, 36, False)
        self.mfma(44, 76, 36, False)
        self.exec16(3)
        for k in range(2): a(f"v_pk_fma_f32 v[{40+2*k}:{41+2*k}], v[{16+2*k}:{17+2*k}], v[{44+2*k}:{45+2*k}], v[{40+2*k}:{41+2*k}]")
        a("v_cvt_pk_bf16_f32 v56, v40, v41")
        a("v_cvt_pk_bf16_f32 v57, v42, v43")
        a("buffer_store_dwordx4 v[56:59], v13, s[40:43], s62 offen")
        self.stamp(3)
        a("s_barrier")
        a("buffer_store_dwordx4 v[56:59], v13, s[40:43], s8 offen sc1")
        a("s_mov_b64 exec, -1")

    def wo_setup(self):
        a = self.a
        self.voff128(2, 1024, 3, 4)
        a("s_lshl_b32 s53, s4, 19")
        a("s_lshl_b32 s15, s3, 17")
        a("s_add_u32 s53, s53, s15")
        a("s_lshr_b32 s15, s52, 2")
        a("s_add_u32 s53, s53, s15")
        a(f"s_add_u32 s59, s7, {WO+16384}")
        a(f"s_add_u32 s62, s7, {WO}")
        a("s_mov_b64 s[48:49], s[24:25]")
        a(f"s_mov_b32 s50, {4096*1024}")
    def mr_issue(self, v, srd):
        a, wf = self.a, self.wf
        L = self.lab("Lmr")
        a(f"s_mul_i32 s9, s61, {64*6144}")
        a("s_lshl_b32 s15, s60, 9")
        a("s_add_u32 s9, s9, s15")
        a("s_lshl_b32 s15, s3, 7")
        a("s_add_u32 s9, s9, s15")
        a("s_add_u32 s9, s9, 2048")
        a("s_mov_b32 m0, s63")
        a("s_add_u32 s15, s63, 8192")
        a.label(L)
        a(f"buffer_load_dwordx4 v{v}, s[{srd}:{srd+3}], s9 offen {wf} lds")
        a("s_add_u32 m0, m0, 1024")
        a(f"s_add_u32 s9, s9, {8*6144}")
        a("s_cmp_lt_u32 m0, s15")
        a(f"s_cbranch_scc1 {L}")
    def mr_compute(self, sc, younger):
        a = self.a
        self.traddr128(8, "s63", 5, 6)
        a("v_and_b32 v5, 1, v0")
        a("v_and_b32 v6, 48, v0")
        a("v_mul_u32_u24 v7, 144, v5")
        a("v_add_u32 v7, v7, v6")
        a(f"v_add_u32 v7, {sc}, v7")
        a("v_lshlrev_b32 v5, 4, v5")
        a("v_lshl_add_u32 v5, v6, 1, v5")
        for ks in range(2): a(f"ds_read_b128 v[{32+4*ks}:{35+4*ks}], v7 offset:{64*ks}")
        a("s_lshl_b32 s9, s60, 14")
        a("s_lshl_b32 s15, s3, 12")
        a("s_add_u32 s9, s9, s15")
        a("s_lshl_b32 s15, s61, 7")
        a("s_add_u32 s9, s9, s15")
        a(f"s_add_u32 s9, s9, {HP}")
        a(f"s_waitcnt vmcnt({younger})")
        a("s_setprio 3")
        for ks in range(2):
            for t in range(4): self.tr(64 + 16 * ks + 4 * t, 8 + t, 4096 * ks, 2048)
        a("s_waitcnt lgkmcnt(0)")
        for ks in range(2):
            for t in range(4): self.mfma(40 + 4 * t, 64 + 16 * ks + 4 * t, 32 + 4 * ks, ks == 0)
        self.exec16(3)
        for t in range(4):
            a(f"v_cvt_pk_bf16_f32 v{40+4*t}, v{40+4*t}, v{41+4*t}")
            a(f"v_cvt_pk_bf16_f32 v{41+4*t}, v{42+4*t}, v{43+4*t}")
            a(f"v_mov_b32 v{42+4*t}, s14")
        for t in range(4): a(f"buffer_store_dwordx4 v[{40+4*t}:{43+4*t}], v5, s[40:43], s9 offen offset:{1024*t} sc1")
        a("s_mov_b64 exec, -1")
        a("s_setprio 0")
        self.stamp(11)
    def rdy_publish(self, vb, jreg):
        a = self.a
        for i in range(4): a(f"v_mov_b32 v{vb+i}, s14")
        a(f"v_mov_b32 v{vb+4}, 0")
        a(f"s_lshl_b32 s15, {jreg}, 4")
        a(f"s_add_u32 s15, s15, {RDY}")
        a("s_mov_b64 exec, 1")
        a(f"buffer_store_dwordx4 v[{vb}:{vb+3}], v{vb+4}, s[40:43], s15 offen sc1")
        a("s_mov_b64 exec, -1")
    def rdy_load(self):
        self.a("buffer_load_dword v237, v229, s[40:43], s27 offen sc1")
    def rdy_check(self):
        a = self.a
        L = self.lab("Lok")
        a("v_cmp_ne_u32 vcc, s14, v237")
        a(f"s_cbranch_vccz {L}")
        self.poll(["buffer_load_dword v237, v229, s[40:43], s27 offen sc1"], [(*self.TAGBAD, 237)], sleep=2)
        a.label(L)

    def g_index(self):
        a = self.a
        a("s_mul_i32 s26, s4, 7")
        a("s_add_u32 s26, s26, s5")
        a("s_cmp_eq_u32 s5, 7")

    def tw_main(self):
        a = self.a
        self.stamp(1)
        a("v_lshlrev_b32 v22, 2, v8")
        a("v_lshrrev_b32 v23, 5, v0")
        a("v_lshl_add_u32 v22, v23, 1, v22")
        a("v_and_b32 v23, 16, v0")
        a("v_lshl_add_u32 v22, v23, 3, v22")
        a("s_mul_i32 s13, s3, 272")
        a(f"s_add_u32 s13, s13, {QB}")
        a("v_add_u32 v22, s13, v22")
        a("v_xor_b32 v3, v8, v1")
        a("v_lshlrev_b32 v3, 4, v3")
        a("v_lshl_add_u32 v3, v8, 8, v3")
        a("v_add_u32 v8, s7, v3")
        a("v_xor_b32 v9, 64, v8")
        a("v_xor_b32 v10, 0x80, v8")
        a("v_xor_b32 v11, 0xc0, v8")
        for t in range(4):
            for ks in range(4):
                r = 64 + 16 * t + 4 * ks
                a(f"ds_read_b128 v[{r}:{r+3}], v{8+ks} offset:{4096*t}")
        a("s_lshl_b32 s8, s3, 6")
        self.traddr256(12, 2, VB, 3, 5, first="s8")
        a("v_mul_u32_u24 v20, 272, v5")
        a("v_lshl_add_u32 v20, v1, 4, v20")
        a(f"v_add_u32 v20, {QB}, v20")
        a("v_lshlrev_b32 v14, 6, v5")
        a("v_lshl_add_u32 v14, v1, 4, v14")
        a(f"v_add_u32 v14, {PB}, v14")
        a("s_lshl_b32 s9, s3, 9")
        a("v_add_u32 v15, s9, v14")
        a("v_lshlrev_b32 v16, 4, v5")
        a(f"v_add_u32 v16, {MX}, v16")
        a("s_lshl_b32 s9, s3, 2")
        a("v_add_u32 v17, s9, v16")
        a("v_lshlrev_b32 v18, 8, v5")
        a("v_lshl_add_u32 v18, v1, 4, v18")
        a("v_lshlrev_b32 v19, 2, v5")
        a("s_lshl_b32 s6, s4, 4")
        a("s_add_u32 s6, s6, s5")
        a("s_lshl_b32 s9, s6, 10")
        a("s_add_u32 s8, s8, s9")
        a(f"s_add_u32 s8, s8, {HC}")
        a("s_lshl_b32 s52, s6, 7")
        a(f"s_add_u32 s52, s52, {HL}")
        a(f"s_add_u32 s53, s8, {LOC}")
        a(f"s_add_u32 s54, s52, {LOC}")
        a(f"s_mov_b32 s10, {f32(CSC)}")
        a("s_lshl_b64 s[58:59], 1, s3")
        a("v_lshlrev_b32 v232, 6, v5")
        a(f"v_add_u32 v232, {LS}, v232")
        a("s_lshl_b32 s9, s3, 4")
        a("v_lshl_add_u32 v233, v1, 2, s9")
        a("v_add_u32 v233, v233, v232")
        def vr(k):
            for t in range(2): self.tr(128 + 8 * k + 4 * t, 12 + t, 8192 * k, 4096)
        def xrow(op, r):
            a(f"v_mov_b32 v225, v{r}")
            a(f"v_permlane16_swap_b32 v{r}, v225")
            a(f"{op} v{r}, v{r}, v225")
            a(f"v_mov_b32 v225, v{r}")
            a(f"v_permlane32_swap_b32 v{r}, v225")
            a(f"{op} v{r}, v{r}, v225")
        a(f"s_mov_b32 s12, {SPIN}")
        a("s_barrier")
        for k in (0, 2, 4, 6): vr(k)
        a("s_branch LTq1")
        a.label("LTq0")
        if self.o.get("qsleep", 0): a(f"s_sleep {self.o['qsleep']}")
        self.qfetch()
        a.label("LTq1")
        a("s_waitcnt vmcnt(1)")
        self.unpack(192, 24, 4)
        a("s_waitcnt vmcnt(0)")
        self.unpack(196, 32, 4)
        for k in range(4): a(f"v_pk_add_f32 v[{24+2*k}:{25+2*k}], v[{24+2*k}:{25+2*k}], v[{32+2*k}:{33+2*k}]")
        for i in range(4): a(f"v_permlane32_swap_b32 v{24+i}, v{28+i}")
        for k in range(2): a(f"v_pk_add_f32 v[{24+2*k}:{25+2*k}], v[{24+2*k}:{25+2*k}], v[{28+2*k}:{29+2*k}]")
        for i in range(2): a(f"v_permlane16_swap_b32 v{24+i}, v{26+i}")
        a("v_pk_add_f32 v[24:25], v[24:25], v[26:27]")
        a("v_cmp_u_f32 vcc, v24, v25")
        a("v_cvt_pk_bf16_f32 v24, v24, v25")
        a("s_cbranch_vccz LTq2")
        a("s_sub_u32 s12, s12, 1")
        a("s_cbranch_scc0 LTq0")
        a.label("LTq2")
        self.stamp(2)
        a("ds_write_b16 v22, v24")
        a("ds_write_b16_d16_hi v22, v24 offset:64")
        a("s_waitcnt lgkmcnt(0)")
        a("s_barrier")
        pe = self.o.get("pe", 1)
        if pe: a("buffer_load_dword v238, v236, s[92:95], s61 offen")
        if pe == 2: a("buffer_load_dword v237, v236, s[92:95], s60 offen")
        for ks in range(4): a(f"ds_read_b128 v[{208+4*ks}:{211+4*ks}], v20 offset:{64*ks}")
        self.stamp(3)
        for ks in range(4):
            a(f"s_waitcnt lgkmcnt({3+3*ks})")
            for t in range(4): self.mfma(40 + 4 * t, 64 + 16 * t + 4 * ks, 208 + 4 * ks, ks == 0)
            vr(1 + 2 * ks)
        a("v_max3_f32 v224, v40, v41, v42")
        a("v_max3_f32 v225, v43, v44, v45")
        a("v_max3_f32 v226, v46, v47, v48")
        a("v_max3_f32 v227, v49, v50, v51")
        a("v_max3_f32 v228, v52, v53, v54")
        a("v_max3_f32 v224, v224, v225, v226")
        a("v_max3_f32 v227, v227, v228, v55")
        a("v_max_f32 v224, v224, v227")
        xrow("v_max_f32", 224)
        a(f"v_mul_f32 v230, {f32(-CSC)}, v224")
        for i in range(8): a(f"v_pk_fma_f32 v[{40+2*i}:{41+2*i}], v[{40+2*i}:{41+2*i}], s[10:11], v[230:231] op_sel_hi:[1,0,0]")
        a("ds_write_b32 v17, v230")
        self.exec16(15)
        for blk in range(2):
            for i in range(8): a(f"v_exp_f32 v{40+8*blk+i}, v{40+8*blk+i}")
            for i in range(4): a(f"v_cvt_pk_bf16_f32 v{56+4*blk+i}, v{40+8*blk+2*i}, v{41+8*blk+2*i}")
            a(f"ds_write_b128 v15, v[{56+4*blk}:{59+4*blk}] offset:{256*blk}")
        for i in range(4): a(f"v_pk_add_f32 v[{40+2*i}:{41+2*i}], v[{40+2*i}:{41+2*i}], v[{48+2*i}:{49+2*i}]")
        for i in range(2): a(f"v_pk_add_f32 v[{40+2*i}:{41+2*i}], v[{40+2*i}:{41+2*i}], v[{44+2*i}:{45+2*i}]")
        a("v_pk_add_f32 v[40:41], v[40:41], v[42:43]")
        a("v_add_f32 v231, v40, v41")
        a("ds_write_b32 v233, v231")
        a("s_mov_b64 exec, -1")
        a("s_waitcnt lgkmcnt(0)")
        a("s_barrier")
        self.stamp(4)
        for k in range(2): a(f"ds_read_b128 v[{64+4*k}:{67+4*k}], v14 offset:{256*k}")
        a("ds_read_b128 v[24:27], v16")
        for w in range(4): a(f"ds_read_b128 v[{96+4*w}:{99+4*w}], v232 offset:{16*w}")
        for k in range(2, 8): a(f"ds_read_b128 v[{64+4*k}:{67+4*k}], v14 offset:{256*k}")
        def pv(k):
            for t in range(2): self.mfma(192 + 8 * (k >> 1) + 4 * t, 128 + 8 * k + 4 * t, 64 + 4 * k, (k & 1) == 0)
        a("s_waitcnt lgkmcnt(12)")
        pv(0)
        a("s_waitcnt lgkmcnt(10)")
        pv(1)
        a("v_min3_f32 v32, v24, v25, v26")
        a("v_min_f32 v32, v32, v27")
        a("s_waitcnt lgkmcnt(5)")
        pv(2)
        for k in range(2): a(f"v_pk_add_f32 v[{24+2*k}:{25+2*k}], v[32:33], v[{24+2*k}:{25+2*k}] op_sel_hi:[0,1] neg_lo:[0,1] neg_hi:[0,1]")
        for w in range(4): a(f"v_pk_add_f32 v[{96+4*w}:{97+4*w}], v[{96+4*w}:{97+4*w}], v[{98+4*w}:{99+4*w}]")
        a("s_waitcnt lgkmcnt(4)")
        pv(3)
        for w in range(4): a(f"v_exp_f32 v{24+w}, v{24+w}")
        a("s_waitcnt lgkmcnt(3)")
        pv(4)
        a("v_pk_mul_f32 v[96:97], v[96:97], v[24:25] op_sel_hi:[1,0]")
        a("v_pk_fma_f32 v[96:97], v[100:101], v[24:25], v[96:97] op_sel:[0,1,0] op_sel_hi:[1,1,1]")
        a("v_pk_fma_f32 v[96:97], v[104:105], v[26:27], v[96:97] op_sel_hi:[1,0,1]")
        a("v_pk_fma_f32 v[96:97], v[108:109], v[26:27], v[96:97] op_sel:[0,1,0] op_sel_hi:[1,1,1]")
        a("v_add_f32 v33, v96, v97")
        a("s_waitcnt lgkmcnt(2)")
        pv(5)
        a("v_rcp_f32 v36, v33")
        a("v_log_f32 v37, v33")
        for k in range(2): a(f"v_pk_mul_f32 v[{24+2*k}:{25+2*k}], v[{24+2*k}:{25+2*k}], v[36:37] op_sel_hi:[1,0]")
        a("s_waitcnt lgkmcnt(1)")
        pv(6)
        for i in range(4): a(f"v_pk_mul_f32 v[{192+2*i}:{193+2*i}], v[{192+2*i}:{193+2*i}], v[24:25] op_sel_hi:[1,0]")
        a("v_sub_f32 v37, v37, v32")
        a("s_waitcnt lgkmcnt(0)")
        pv(7)
        a("s_mov_b64 exec, s[58:59]")
        a("buffer_store_dword v37, v19, s[40:43], s54 offen")
        a("s_mov_b64 exec, -1")
        for i in range(4): a(f"v_pk_fma_f32 v[{192+2*i}:{193+2*i}], v[{200+2*i}:{201+2*i}], v[24:25], v[{192+2*i}:{193+2*i}] op_sel:[0,1,0] op_sel_hi:[1,1,1]")
        for i in range(4): a(f"v_pk_fma_f32 v[{192+2*i}:{193+2*i}], v[{208+2*i}:{209+2*i}], v[26:27], v[{192+2*i}:{193+2*i}] op_sel_hi:[1,0,1]")
        self.exec16(15)
        for i in range(4): a(f"v_pk_fma_f32 v[{192+2*i}:{193+2*i}], v[{216+2*i}:{217+2*i}], v[26:27], v[{192+2*i}:{193+2*i}] op_sel:[0,1,0] op_sel_hi:[1,1,1]")
        for i in range(4): a(f"v_cvt_pk_bf16_f32 v{200+i}, v{192+2*i}, v{193+2*i}")
        a("buffer_store_dwordx4 v[200:203], v18, s[40:43], s53 offen")
        self.stamp(5)
        a("s_mov_b64 exec, -1")
        a("s_barrier")
        if pe != 2: a("buffer_load_dword v237, v236, s[92:95], s60 offen")
        if not pe: a("buffer_load_dword v238, v236, s[92:95], s61 offen")
        self.exec16(15)
        a("buffer_store_dwordx4 v[200:203], v18, s[40:43], s8 offen sc1")
        a("s_mov_b64 exec, s[58:59]")
        a("buffer_store_dword v37, v19, s[40:43], s52 offen sc1")
        a("s_mov_b64 exec, -1")
        a("s_cmp_eq_u32 s3, 1")
        a("s_cbranch_scc0 LTWe")
        if self.o.get("nored"): self.end()
        a("s_cmp_lt_u32 s5, 4")
        a("s_cbranch_scc0 LTWe")
        a("s_lshl_b32 s6, s4, 2")
        a("s_add_u32 s6, s6, s5")
        self.srd(44, 16, 2048)
        self.srd(48, 38, 2048)
        a("v_bfe_u32 v2, v0, 2, 1")
        a("v_and_b32 v3, 3, v0")
        a("v_lshlrev_b32 v4, 3, v3")
        a("v_lshl_add_u32 v5, v2, 10, v4")
        a("v_lshlrev_b32 v6, 1, v5")
        a("v_lshrrev_b32 v8, 3, v0")
        a("v_lshl_add_u32 v7, v8, 12, v6")
        a("v_lshlrev_b32 v9, 4, v0")
        a("s_lshl_b32 s7, s6, 5")
        a("s_lshl_b32 s8, s6, 6")
        a(f"s_add_u32 s9, s8, {HD}")
        a(f"s_add_u32 s52, s8, {HM}")
        a(f"s_add_u32 s53, s8, {HM+3*4096}")
        a(f"s_mul_i32 s54, s6, {HFS}")
        a(f"s_add_u32 s54, s54, {HF}")
        a("s_add_u32 s55, s54, 4096")
        a("buffer_load_dwordx2 v[10:11], v5, s[44:47], s7 offen")
        a(f"s_mov_b32 s27, {RDY}")
        self.poll([f"buffer_load_dword v{40+i}, v9, s[40:43], s27 offen offset:{1024*i} sc1" for i in range(4)]
                  + ["buffer_load_dwordx4 v[12:15], v6, s[40:43], s52 offen sc1", "buffer_load_dwordx4 v[16:19], v6, s[40:43], s53 offen sc1"],
                  [(*self.TAGBAD, 40 + i) for i in range(4)] + [(*self.TAGBAD, 14), (*self.TAGBAD, 18)], sleep=2)
        self.poll(["buffer_load_dwordx4 v[24:27], v7, s[40:43], s9 offen sc1"], [(*self.POISON, 24)], sleep=2)
        self.stamp(6)
        a("s_cmp_eq_u32 s6, 0")
        a("s_cbranch_scc0 LTWn")
        a("s_mov_b64 exec, 1")
        a("v_mov_b32 v20, s14")
        a("v_mov_b32 v21, 0")
        a(f"buffer_store_dword v20, v21, s[40:43], 0 offen offset:{EPOCH} sc1")
        a("s_mov_b64 exec, -1")
        a.label("LTWn")
        red8 = self.red8
        red8(24)
        self.unpack(10, 28, 2)
        self.unpack(12, 32, 2)
        self.unpack(16, 36, 2)
        for i in range(4): a(f"v_fmac_f32 v{28+i}, v{24+i}, v{32+i}")
        if self.o.get("fsleep"): a(f"s_sleep {self.o['fsleep']}")
        self.sum_poll([f"buffer_load_dwordx4 v[{64+4*i}:{67+4*i}], v9, s[40:43], s{54+(i>>2)} offen offset:{1024*(i&3)} sc1" for i in range(7)], 64, 56)
        self.stamp(7)
        red8(56)
        for i in range(4): a(f"v_fmac_f32 v{28+i}, v{56+i}, v{36+i}")
        a("v_cvt_pk_bf16_f32 v10, v28, v29")
        a("v_cvt_pk_bf16_f32 v11, v30, v31")
        a("s_mov_b64 exec, 0xff")
        a("buffer_store_dwordx2 v[10:11], v5, s[48:51], s7 offen " + ["", "sc1", "nt", "sc0 sc1"][self.o.get("oflag", 0)])
        self.stamp(8)
        if self.o.get("padto"):
            a("s_cmp_eq_u32 s6, 0")
            a("s_cbranch_scc0 LTWe")
        if self.o.get("padto"):
            a(f"s_mov_b32 s100, {self.o['padto']}")
            if self.o.get("amp"):
                a("s_waitcnt lgkmcnt(0)")
                a(f"s_sub_u32 s98, s{64+2*self.o['amp']}, s96")
                a("s_mul_i32 s98, s98, 10")
                a("s_add_u32 s100, s100, s98")
            a.label("Lpad")
            a("s_memrealtime s[98:99]")
            a("s_waitcnt lgkmcnt(0)")
            a("s_sub_u32 s98, s98, s96")
            a("s_cmp_lt_u32 s98, s100")
            a("s_cbranch_scc1 Lpad")
        a.label("LTWe")
        self.end()

    def ww_main(self):
        a, wf = self.a, self.wf
        a.label("LWHp")
        a("s_branch LWH2")
        a.label("LW2")
        mre = self.o.get("mre", 0)
        self.voff128(12, 6144, 3, 4)
        a("s_mov_b64 s[44:45], s[36:37]")
        a(f"s_mov_b32 s46, {512*6144}")
        a("s_mov_b32 s60, s4")
        a("s_mov_b32 s61, s52")
        a(f"s_add_u32 s63, s7, {WO+8192}")
        if mre: self.mr_issue(12, 44)
        self.stamp(1)
        a("v_mov_b32 v17, v12")
        self.traddr256(8, 8, "s7", 3, 5)
        a("s_lshr_b32 s58, s7, 2")
        a(f"s_add_u32 s58, s58, {GA}")
        a("v_bfe_u32 v3, v0, 2, 1")
        a("v_mul_u32_u24 v16, 144, v3")
        a("v_lshl_add_u32 v16, v1, 4, v16")
        a(f"v_add_u32 v16, {HW}, v16")
        a("v_lshlrev_b32 v18, 4, v0")
        a(f"v_add_u32 v18, {RED}, v18")
        a("v_and_b32 v19, 15, v0")
        a("v_lshlrev_b32 v19, 3, v19")
        a("v_lshrrev_b32 v3, 5, v0")
        a("v_lshl_add_u32 v19, v3, 7, v19")
        a("v_and_b32 v3, 16, v0")
        a("v_lshl_add_u32 v19, v3, 9, v19")
        a("s_lshl_b32 s55, s52, 14")
        a("s_lshl_b32 s15, s3, 11")
        a("s_add_u32 s55, s55, s15")
        a("s_lshl_b32 s15, s4, 8")
        a("s_add_u32 s55, s55, s15")
        a(f"s_add_u32 s55, s55, {HB}")
        a("s_lshl_b32 s52, s52, 9")
        self.wo_setup()
        vpf = self.o.get("vpf", 1)
        if vpf:
            self.srd(92, 20, 0x2000000)
            a("s_lshl_b32 s8, s61, 2")
            a("s_add_u32 s8, s8, s3")
            a("s_lshr_b32 s9, s8, 4")
            a("s_lshl_b32 s9, s9, 3")
            a("s_add_u32 s9, s9, s4")
            a("s_lshl_b32 s9, s9, 21")
            a("s_and_b32 s8, s8, 15")
            a("s_lshl_b32 s8, s8, 15")
            a("s_add_u32 s8, s8, s9")
            a(f"s_add_u32 s8, s8, {6144*256 + 12288}")
            a("v_lshrrev_b32 v20, 5, v0")
            a("v_and_b32 v4, 31, v0")
            a("v_lshlrev_b32 v4, 7, v4")
            a("v_lshl_add_u32 v20, v20, 14, v4")
        a(f"s_waitcnt vmcnt({8+8*mre}) lgkmcnt(0)")
        self.tag()
        for t in range(8): self.tr(64 + 4 * t, 8 + t, 0, 4096)
        a(f"s_waitcnt vmcnt({8*mre})")
        self.stamp(2)
        for t in range(8): self.tr(96 + 4 * t, 8 + t, 8192, 4096)
        a("s_barrier")
        for ks in range(2): a(f"ds_read_b128 v[{24+4*ks}:{27+4*ks}], v16 offset:{64*ks}")
        self.stamp(3)
        a("s_waitcnt lgkmcnt(0)")
        for ks in range(2):
            for t in range(8): self.mfma(128 + 4 * t, 24 + 4 * ks, 64 + 32 * ks + 4 * t, ks == 0)
        for k in range(4): a(f"v_permlane32_swap_b32 v{128+8*k}, v{132+8*k}")
        def red4(stride):
            for w in range(4): a(f"ds_read_b128 v[{24+4*w}:{27+4*w}], v18 offset:{stride*w}")
            a("s_waitcnt lgkmcnt(2)")
            for k in range(2): a(f"v_pk_add_f32 v[{24+2*k}:{25+2*k}], v[{24+2*k}:{25+2*k}], v[{28+2*k}:{29+2*k}]")
            a("s_waitcnt lgkmcnt(0)")
            for k in range(2): a(f"v_pk_add_f32 v[{32+2*k}:{33+2*k}], v[{32+2*k}:{33+2*k}], v[{36+2*k}:{37+2*k}]")
            for k in range(2): a(f"v_pk_add_f32 v[{24+2*k}:{25+2*k}], v[{24+2*k}:{25+2*k}], v[{32+2*k}:{33+2*k}]")
        a("v_cvt_pk_bf16_f32 v56, v128, v136")
        a("v_cvt_pk_bf16_f32 v57, v144, v152")
        a("buffer_store_dwordx2 v[56:57], v19, s[40:43], s55 offen sc1")
        self.stamp(4)
        if self.o.get("owait", 0): a("s_waitcnt vmcnt(0)")
        a("s_barrier")
        if vpf:
            vm = self.o.get("vmask", 16)
            if vm:
                a(f"s_mov_b32 exec_lo, {(0xffffffff << vm) & 0xffffffff:#x}")
                a(f"s_mov_b32 exec_hi, {(0xffffffff << vm) & 0xffffffff:#x}")
            a("buffer_load_dword v236, v20, s[92:95], s8 offen")
            a("s_mov_b64 exec, -1")
        def wo(n):
            L = self.lab("LWd")
            a("s_mov_b32 m0, s62")
            a(f"s_add_u32 s62, s62, {1024*n}" if n else "s_mov_b32 s62, s59")
            a.label(L)
            a(f"buffer_load_dwordx4 v2, s[48:51], s53 offen {wf} lds")
            a("s_add_u32 m0, m0, 1024")
            a("s_add_u32 s53, s53, 8192")
            a("s_cmp_lt_u32 m0, s62")
            a(f"s_cbranch_scc1 {L}")
        a("s_cmp_eq_u32 s61, 3")
        a("s_cbranch_scc1 LM")
        ms = self.o.get("msplit", 0)
        if ms:
            if ms < 4:
                a(f"s_cmp_ge_u32 s3, {ms}")
                a("s_cbranch_scc1 LWm")
            if not mre: self.mr_issue(17, 44)
            oe = self.o.get("oearly", 8)
            if oe: wo(oe)
            self.mr_compute(SCW, oe)
        self.delay("odel")
        a.label("LWm")
        wo(0)
        a("v_and_b32 v3, 15, v0")
        a("v_lshlrev_b32 v13, 7, v3")
        a("s_lshl_b32 s9, s4, 14")
        a(f"s_add_u32 s9, s9, {HC}")
        a("s_lshl_b32 s8, s4, 11")
        a(f"s_add_u32 s8, s8, {HL}")
        self.stamp(5)
        a("v_lshlrev_b32 v229, 4, v0")
        a("s_mul_i32 s13, s4, 240")
        a("s_sub_u32 s13, 2432, s13")
        a("v_mov_b32 v4, s13")
        a("v_cmp_gt_u32 vcc, 16, v0")
        a("v_cndmask_b32 v229, v4, v229, vcc")
        a("s_lshl_b32 s27, s4, 8")
        a(f"s_add_u32 s27, s27, {RDY}")
        self.rdy_load()
        wpf = self.o.get("wpf", 0)
        if wpf:
            a("s_mov_b64 s[44:45], s[30:31]")
            a(f"s_mov_b32 s46, {512*3584}")
            a("s_lshr_b32 s13, s52, 7")
            a("s_add_u32 s13, s13, s3")
            a(f"s_mul_i32 s13, s13, {16*3584}")
            a("s_mul_i32 s15, s4, 448")
            a("s_add_u32 s13, s13, s15")
            a("v_lshrrev_b32 v4, 2, v0")
            a("v_mul_u32_u24 v4, 3584, v4")
            a("v_and_b32 v5, 3, v0")
            a("v_lshl_add_u32 v4, v5, 7, v4")
            a("buffer_load_dword v238, v4, s[44:47], s13 offen")
        a("s_lshl_b32 s15, s3, 8")
        a("s_add_u32 s9, s9, s15")
        a("s_lshl_b32 s15, s3, 2")
        a("s_add_u32 s8, s8, s15")
        a(f"s_add_u32 s15, s7, {WO}")
        self.traddr128(8, "s15", 3, 4)
        a("v_and_b32 v3, 15, v0")
        a("v_xor_b32 v12, v3, v1")
        a("v_lshlrev_b32 v12, 4, v12")
        a("v_lshl_add_u32 v4, v1, 10, v12")
        for i in range(1, 4):
            a(f"v_xor_b32 v{4+i}, {64*i}, v4")
            a(f"v_add_u32 v{4+i}, {3072*i}, v{4+i}")
        a("v_lshl_add_u32 v20, v3, 8, v12")
        a("v_add_u32 v20, s58, v20")
        for i in range(1, 4): a(f"v_xor_b32 v{20+i}, {64*i}, v20")
        a("v_lshlrev_b32 v14, 4, v1")
        a("v_lshrrev_b32 v12, 5, v0")
        a("v_lshlrev_b32 v15, 8, v12")
        a("v_and_b32 v12, 31, v0")
        a("v_lshl_add_u32 v15, v12, 2, v15")
        a("s_lshl_b32 s15, s3, 9")
        a(f"s_add_u32 s15, s15, {RED}")
        a("v_add_u32 v15, s15, v15")
        a("v_lshlrev_b32 v17, 4, v3")
        a("v_lshl_add_u32 v17, v1, 11, v17")
        a("s_lshl_b32 s55, s4, 12")
        a("s_lshr_b32 s15, s52, 1")
        a("s_add_u32 s55, s55, s15")
        a(f"s_add_u32 s55, s55, {HD}")
        a("s_mov_b32 m0, s58")
        a("v_mov_b32 v128, 0")
        a(f"s_waitcnt vmcnt({wpf})")
        self.stamp(6)
        self.rdy_check()
        def cissue():
            a("s_mov_b64 exec, 0xffff")
            a("buffer_load_dword v128, v13, s[40:43], s8 offen sc1")
            a("s_mov_b64 exec, -1")
            for i in range(4): a(f"buffer_load_dwordx4 v{4+i}, s[40:43], s9 offen offset:{1024*i} sc1 lds")
        def cmid():
            for ks in range(4):
                for t in range(4): self.tr(64 + 16 * ks + 4 * t, 8 + t, 4096 * ks, 2048)
            self.stamp(9)
        def cbody():
            a("s_waitcnt vmcnt(0)")
            for ks in range(4): a(f"ds_read_b128 v[{24+4*ks}:{27+4*ks}], v{20+ks}")
            a("s_waitcnt lgkmcnt(0)")
            a("v_max3_u32 v129, v24, v28, v128")
            a("v_max3_u32 v129, v129, v32, v36")
            a("v_cmp_eq_u32 s[10:11], -1, v129")
        self.spin(cbody, alt=([8, 9], LOC, self.o.get("every", 16)), issue=cissue, mid=cmid)
        self.stamp(7)
        D8 = ("quad_perm:[1,0,3,2]", "quad_perm:[2,3,0,1]", "row_half_mirror")
        def mf(ks):
            for t in range(4): self.mfma(40 + 4 * t, 24 + 4 * ks, 64 + 16 * ks + 4 * t, ks == 0)
        mf(0)
        a("v_mov_b32 v129, v128")
        for m in D8: a(f"v_max_f32_dpp v129, v129, v129 {m} row_mask:0xf bank_mask:0xf")
        a("v_sub_f32 v128, v128, v129")
        a("v_exp_f32 v128, v128")
        mf(1)
        a("v_mov_b32 v129, v128")
        for m in D8: a(f"v_add_f32_dpp v129, v129, v129 {m} row_mask:0xf bank_mask:0xf")
        a("v_rcp_f32 v129, v129")
        a("v_mul_f32 v128, v128, v129")
        for r in range(4): a(f"ds_bpermute_b32 v{130+r}, v14, v128 offset:{4*r}")
        mf(2)
        mf(3)
        a("s_waitcnt lgkmcnt(0)")
        for t in range(4): a(f"v_pk_mul_f32 v[{40+4*t}:{41+4*t}], v[{40+4*t}:{41+4*t}], v[130:131]")
        for t in range(4): a(f"v_pk_fma_f32 v[{40+4*t}:{41+4*t}], v[{42+4*t}:{43+4*t}], v[132:133], v[{40+4*t}:{41+4*t}]")
        for t in range(4): a(f"v_add_f32 v{40+4*t}, v{40+4*t}, v{41+4*t}")
        for k in range(2): a(f"v_permlane16_swap_b32 v{40+8*k}, v{44+8*k}")
        for k in range(2): a(f"v_add_f32 v{40+8*k}, v{40+8*k}, v{44+8*k}")
        for k in range(2): a(f"ds_write_b32 v15, v{40+8*k} offset:{128*k}")
        a("s_waitcnt lgkmcnt(0)")
        a("s_barrier")
        a("s_cmp_eq_u32 s3, 0")
        a("s_cbranch_scc0 LWe")
        a("s_mov_b32 exec_hi, 0")
        red4(512)
        a("buffer_store_dwordx4 v[24:27], v17, s[40:43], s55 offen sc1")
        self.stamp(8)
        a.label("LWe")
        self.end()

    def g_role(self):
        a, wf = self.a, self.wf
        self.mute = True
        ms = self.o.get("msplit", 0)
        a("s_lshr_b32 s63, s7, 1")
        a(f"s_add_u32 s63, s63, {MRG}")
        def gvp():
            self.srd(92, 20, 0x2000000)
            a("s_lshl_b32 s8, s5, 2")
            a("s_add_u32 s8, s8, s3")
            a("s_lshr_b32 s9, s8, 4")
            a("s_lshl_b32 s9, s9, 3")
            a("s_add_u32 s9, s9, s4")
            a("s_lshl_b32 s9, s9, 21")
            a("s_and_b32 s8, s8, 15")
            a("s_lshl_b32 s8, s8, 15")
            a("s_add_u32 s8, s8, s9")
            a(f"s_add_u32 s8, s8, {6144*256 + 12288}")
            a("v_lshrrev_b32 v3, 5, v0")
            a("v_and_b32 v4, 31, v0")
            a("v_lshlrev_b32 v4, 7, v4")
            a("v_lshl_add_u32 v3, v3, 14, v4")
            m = (1 << self.o.get("gvp", 16)) - 1
            a(f"s_mov_b32 exec_lo, {m:#x}")
            a(f"s_mov_b32 exec_hi, {m:#x}")
            a("buffer_load_dword v236, v3, s[92:95], s8 offen")
            a("s_mov_b64 exec, -1")
            if self.o.get("gv2", 16):
                m = (0xffffffff << (32 - self.o.get("gv2", 16))) & 0xffffffff
                a("s_sub_u32 s8, s8, 4096")
                a(f"s_mov_b32 exec_lo, {m:#x}")
                a(f"s_mov_b32 exec_hi, {m:#x}")
                a("buffer_load_dword v237, v3, s[92:95], s8 offen")
                a("s_mov_b64 exec, -1")
        if self.o.get("gall", 0): gvp()
        self.g_index()
        a("s_cbranch_scc1 LO3")
        if ms < 4:
            a(f"s_cmp_lt_u32 s3, {ms}")
            a("s_cbranch_scc1 LGn")
            self.mr_issue(2, 52)
            a.label("LGn")
        if not self.o.get("gall", 0): gvp()
        a(f"s_add_u32 s7, s7, {GU}")
        a("s_mov_b32 s53, s26")
        for i in range(4): a(f"v_mov_b32 v{32+i}, -1")
        a("v_lshrrev_b32 v3, 3, v0")
        a(f"v_mul_u32_u24 v3, {HFS}, v3")
        a("v_and_b32 v4, 7, v0")
        a("v_lshl_add_u32 v3, v4, 4, v3")
        a(f"s_mul_i32 s26, s3, {8*HFS}")
        a("s_lshl_b32 s15, s53, 7")
        a("s_add_u32 s26, s26, s15")
        a(f"s_add_u32 s26, s26, {HF}")
        a("buffer_store_dwordx4 v[32:35], v3, s[40:43], s26 offen sc1")
        a(f"s_and_b32 s52, s53, {self.o.get(chr(114)+chr(111)+chr(116), 0)}")
        a("s_cmp_eq_u32 s52, 0")
        a("s_cselect_b64 s[44:45], s[28:29], s[30:31]")
        a("s_cselect_b64 s[48:49], s[30:31], s[28:29]")
        a(f"s_mov_b32 s46, {512*3584}")
        a(f"s_mov_b32 s50, {512*3584}")
        a("s_lshl_b32 s52, s52, 13")
        a("v_lshrrev_b32 v1, 2, v0")
        a("v_bfe_u32 v2, v0, 4, 1")
        a("v_lshlrev_b32 v2, 1, v2")
        a("v_and_b32 v3, 3, v0")
        a("v_xor_b32 v2, v2, v3")
        a("v_mul_u32_u24 v4, 3584, v1")
        a("v_lshl_add_u32 v2, v2, 4, v4")
        a(f"s_mul_i32 s8, s3, {128*3584}")
        a("s_lshl_b32 s15, s53, 6")
        a("s_add_u32 s8, s8, s15")
        def mat(m, lo=0, hi=8):
            L = self.lab("LGx")
            if lo == 0:
                a("s_add_u32 s58, s7, s52")
                a("s_mov_b32 s59, s8")
            a("s_mov_b32 m0, s58")
            a(f"s_add_u32 s58, s58, {1024*(hi-lo)}")
            a.label(L)
            gf = ["nt", "", "sc1", "sc0"][self.o.get("gflag%d" % m, 1)]
            a(f"buffer_load_dwordx4 v2, s[{44+4*m}:{47+4*m}], s59 offen {gf} lds")
            a("s_add_u32 m0, m0, 1024")
            a(f"s_add_u32 s59, s59, {16*3584}")
            if self.o.get("gcap", 0) and (lo or m): a(f"s_waitcnt vmcnt({self.o['gcap']})")
            a("s_cmp_lt_u32 m0, s58")
            a(f"s_cbranch_scc1 {L}")
            if hi == 8: a("s_xor_b32 s52, s52, 8192")
        pw = self.o.get("pwait", 1)
        if not pw:
            self.stamp(5)
            mat(0)
        a(f"s_waitcnt vmcnt({0 if pw else 8})")
        a("s_barrier")
        if ms < 4:
            a(f"s_cmp_lt_u32 s3, {ms}")
            a("s_cbranch_scc1 LGo")
            self.mr_compute(SC, 0 if pw else 8)
            a.label("LGo")
        a("s_cmp_eq_u32 s3, 0")
        a("s_cbranch_scc0 LGr")
        self.rdy_publish(8, "s2")
        if self.o.get("rwait", 1): a("s_waitcnt vmcnt(0)")
        a.label("LGr")
        if self.o.get("rwait", 1): a("s_barrier")
        if pw:
            self.delay("fdel")
            self.stamp(5)
            mat(0)
        mat(1)
        a("s_mov_b64 s[48:49], s[16:17]")
        a("s_mov_b32 s50, 2048")
        a("v_lshrrev_b32 v4, 5, v0")
        a("v_and_b32 v5, 31, v0")
        a("v_lshlrev_b32 v19, 3, v5")
        a("v_lshl_add_u32 v19, v4, 10, v19")
        a("s_lshl_b32 s15, s3, 8")
        a("buffer_load_dwordx2 v[24:25], v19, s[48:51], s15 offen")
        a("s_lshl_b32 s9, s53, 15")
        a("s_add_u32 s9, s9, s15")
        a("v_lshlrev_b32 v229, 4, v0")
        a(f"s_mov_b32 s27, {RDY+2048}")
        self.rdy_load()
        a("v_lshlrev_b32 v18, 1, v19")
        a("s_lshl_b32 s15, s3, 9")
        for k in range(3): a(f"s_add_u32 s{28+k}, s15, {HM+4096*k}")
        mloads = [f"buffer_load_dwordx4 v[{208+4*k}:{211+4*k}], v18, s[40:43], s{28+k} offen sc1" for k in range(3)]
        for l in mloads: a(l)
        for k in range(8): a(f"s_add_u32 s{16+k}, s15, {HD+4096*k}")
        self.voff256(6, 10, 8, 9)
        a("s_mov_b64 s[44:45], s[32:33]")
        a(f"s_mov_b32 s46, {1792*1024}")
        a("s_lshl_b32 s6, s3, 13")
        a(f"s_add_u32 s6, s6, {DWN}")
        a("s_mov_b32 m0, s6")
        a("s_add_u32 s13, s6, 8192")
        a.label("LGd2")
        for i in range(2):
            a(f"buffer_load_dwordx4 v{6+i}, s[44:47], s9 offen {wf} lds")
            a("s_add_u32 m0, m0, 1024")
            a("s_add_u32 s9, s9, 4096")
        a("s_cmp_lt_u32 m0, s13")
        a("s_cbranch_scc1 LGd2")
        a("v_bfe_u32 v8, v0, 4, 1")
        a("v_lshlrev_b32 v8, 5, v8")
        a("v_lshl_add_u32 v8, v1, 6, v8")
        a("v_lshl_add_u32 v8, v3, 3, v8")
        a("v_add_u32 v8, s7, v8")
        a("v_xor_b32 v9, 32, v8")
        self.traddr256(10, 8, "s6", 6, 7)
        a("v_mul_u32_u24 v20, 816, v4")
        a("v_lshrrev_b32 v6, 3, v5")
        a("v_lshl_add_u32 v20, v6, 6, v20")
        a("v_lshl_add_u32 v20, v3, 4, v20")
        a("v_bfe_u32 v6, v0, 2, 1")
        a("v_lshl_add_u32 v20, v6, 3, v20")
        a(f"s_add_u32 s15, s7, {AROW_O}")
        a("v_add_u32 v20, s15, v20")
        a("v_mul_u32_u24 v22, 816, v6")
        a("v_and_b32 v7, 48, v0")
        a("v_add3_u32 v22, v22, v7, s15")
        a("v_min_u32 v21, 2, v3")
        a("v_mul_u32_u24 v21, 272, v21")
        a("v_add_u32 v22, v22, v21")
        a("v_lshl_add_u32 v227, v6, 6, v7")
        a(f"v_mul_u32_u24 v228, {HFS}, v4")
        a("v_lshl_add_u32 v228, v5, 2, v228")
        a("v_lshlrev_b32 v2, 4, v0")
        a("s_lshl_b32 s15, s3, 10")
        a("v_add_u32 v23, s15, v2")
        a("s_lshl_b32 s15, s3, 2")
        a("v_add_u32 v226, s15, v7")
        a("v_and_b32 v231, 16, v0")
        a("v_lshlrev_b32 v231, 1, v231")
        a(f"v_mov_b32 v232, {f32(1e-5)}")
        self.guard(2100, fill=self.small_helpers)
        a("s_waitcnt vmcnt(8)")
        self.stamp(6)
        for m in range(2):
            for ks in range(4):
                for t in range(2): self.tr(64 + 32 * m + 8 * ks + 4 * t, 8 + t, 8192 * m + 2048 * ks, 1024)
        self.unpack(24, 28, 2)
        a("v_and_b32 v24, 32, v0")
        a(f"v_add_u32 v24, {LNS}, v24")
        a("ds_read_b128 v[32:35], v24")
        self.rdy_check()
        for k in range(3): a(f"v_xor_b32 v{211+4*k}, s14, v{210+4*k}")
        a("v_or3_b32 v211, v211, v215, v219")
        a("v_cmp_ne_u32 vcc, 0, v211")
        a("s_cbranch_vccz LGmo")
        self.poll(mloads, [(*self.TAGBAD, 210 + 4 * k) for k in range(3)], sleep=1)
        a.label("LGmo")
        self.stamp(4)
        def prepass():
            a("s_waitcnt lgkmcnt(0)")
            a("ds_write_b64 v20, v[212:213] offset:544")
            a("v_pk_add_f32 v[32:33], v[32:33], v[34:35]")
            a("v_add_f32 v32, v32, v33")
            for i in range(4): a(f"v_fmac_f32 v{28+i}, {f32(-1/512)}, v32")
            self.unpack(216, 196, 2)
            for i in range(4): a(f"v_add_f32 v{196+i}, 1.0, v{196+i}")
            a("v_cvt_pk_bf16_f32 v36, v196, v197")
            a("v_cvt_pk_bf16_f32 v37, v198, v199")
            a("ds_write_b64 v20, v[36:37] offset:272")
            self.unpack(208, 192, 2)
            self.unpack(36, 196, 2)
            for i in range(4): a(f"v_mul_f32 v{200+i}, v{28+i}, v{196+i}")
            for i in range(4): a(f"v_mul_f32 v{196+i}, v{192+i}, v{196+i}")
            a("s_waitcnt vmcnt(8)")
            for dt in range(8): self.tr(128 + 4 * dt, 10 + dt, 0, 4096)
            self.stamp(10)
        self.sum_poll([f"buffer_load_dwordx4 v[{160+4*k}:{163+4*k}], v18, s[40:43], s{16+k} offen sc1" for k in range(8)], 160, 56, mid=prepass)
        self.stamp(7)
        for k in range(2): a(f"v_pk_fma_f32 v[{200+2*k}:{201+2*k}], v[{56+2*k}:{57+2*k}], v[{196+2*k}:{197+2*k}], v[{200+2*k}:{201+2*k}]")
        a("v_cvt_pk_bf16_f32 v32, v200, v201")
        a("v_cvt_pk_bf16_f32 v33, v202, v203")
        a("ds_write_b64 v20, v[32:33]")
        for ks in range(4): a(f"ds_read_b128 v[{172+4*ks}:{175+4*ks}], v22 offset:{64*ks}")
        for k in range(2): a(f"v_pk_fma_f32 v[{28+2*k}:{29+2*k}], v[{56+2*k}:{57+2*k}], v[{192+2*k}:{193+2*k}], v[{28+2*k}:{29+2*k}]")
        a("v_pk_add_f32 v[190:191], v[28:29], v[30:31]")
        a("v_pk_mul_f32 v[28:29], v[28:29], v[28:29]")
        a("v_pk_fma_f32 v[28:29], v[30:31], v[30:31], v[28:29]")
        a("v_add_f32 v190, v190, v191")
        a("v_add_f32 v191, v28, v29")
        a("v_permlane16_swap_b32 v190, v191")
        def mg(m, ks):
            for t in range(2): self.mfma(40 + 8 * m + 4 * t, 172 + 4 * ks, 64 + 32 * m + 8 * ks + 4 * t, ks == 0)
        for ks in range(4):
            a(f"s_waitcnt lgkmcnt({3-ks})")
            mg(0, ks)
            if ks == 0: a("v_add_f32 v190, v190, v191")
        mg(1, 0)
        self.row_sum(190)
        mg(1, 1)
        a(f"ds_write_b32 v226, v190 offset:{STAT}")
        mg(1, 2)
        for r in range(3): a(f"v_permlane32_swap_b32 v{40+r}, v{44+r}")
        mg(1, 3)
        a(f"ds_write_b128 v23, v[40:43] offset:{REC}")
        for r in range(3): a(f"v_permlane32_swap_b32 v{48+r}, v{52+r}")
        a(f"ds_write_b128 v23, v[48:51] offset:{CSR}")
        a("s_waitcnt lgkmcnt(0)")
        a("s_barrier")
        self.stamp(8)
        a(f"ds_read_b128 v[24:27], v231 offset:{STAT}")
        a(f"ds_read_b128 v[28:31], v231 offset:{STAT+16}")
        for w in range(4): a(f"ds_read_b128 v[{64+4*w}:{67+4*w}], v2 offset:{REC+1024*w}")
        for w in range(4): a(f"ds_read_b128 v[{80+4*w}:{83+4*w}], v2 offset:{CSR+1024*w}")
        a("s_waitcnt lgkmcnt(8)")
        a("v_pk_add_f32 v[24:25], v[24:25], v[26:27]")
        a("v_pk_add_f32 v[28:29], v[28:29], v[30:31]")
        a("v_add_f32 v24, v24, v25")
        a("v_add_f32 v28, v28, v29")
        a(f"v_mul_f32 v24, {f32(1/512)}, v24")
        a(f"v_fmamk_f32 v28, v28, {f32(1/512)}, v232")
        a("v_fma_f32 v28, -v24, v24, v28")
        a("v_max_f32 v28, v28, v232")
        a("v_rsq_f32 v28, v28")
        for m in range(2):
            r = 64 + 16 * m
            a(f"s_waitcnt lgkmcnt({4-4*m})")
            a(f"v_pk_add_f32 v[{r}:{r+1}], v[{r}:{r+1}], v[{r+4}:{r+5}]")
            a(f"v_pk_add_f32 v[{r+8}:{r+9}], v[{r+8}:{r+9}], v[{r+12}:{r+13}]")
            a(f"v_add_f32 v{r+2}, v{r+2}, v{r+6}")
            a(f"v_add_f32 v{r+10}, v{r+10}, v{r+14}")
            a(f"v_pk_add_f32 v[{r}:{r+1}], v[{r}:{r+1}], v[{r+8}:{r+9}]")
            a(f"v_add_f32 v{r+2}, v{r+2}, v{r+10}")
            a(f"v_fma_f32 v{r}, -v24, v{r+1}, v{r}")
            a(f"v_fma_f32 v{r}, v{r}, v28, v{r+2}")
        a("v_max_f32 v64, 0, v64")
        a("v_mul_f32 v64, v64, v80")
        a("v_mov_b32_dpp v65, v64 quad_perm:[1,0,3,2] row_mask:0xf bank_mask:0xf")
        a("v_cvt_pk_bf16_f32 v64, v64, v65")
        for i, off in enumerate((0, 8, 128, 136)): a(f"ds_bpermute_b32 v{24+i}, v227, v64 offset:{off}")
        a("s_waitcnt lgkmcnt(0)")
        for dt in range(8): self.mfma(160 + 4 * dt, 24, 128 + 4 * dt, True)
        for k in range(4):
            a(f"v_permlane32_swap_b32 v{160+8*k}, v{164+8*k}")
            a(f"buffer_store_dword v{160+8*k}, v228, s[40:43], s26 offen sc1")
            if k < 3: a(f"s_add_u32 s26, s26, {2*HFS}")
        self.stamp(9)
        self.end()

    def small_helpers(self):
        a = self.a
        a.label("LO3")
        if 0 < self.o.get('msplit', 0) < 4:
            a(f"s_cmp_lt_u32 s3, {self.o.get('msplit', 0)}")
            a("s_cbranch_scc1 LO4")
            self.mr_issue(2, 52)
            self.mr_compute(SC, 0)
            a.label("LO4")
            a("s_barrier")
        a("s_movk_i32 s52, 1536")
        a("s_lshr_b32 s58, s7, 2")
        a(f"s_add_u32 s58, s58, {GA}")
        a("v_lshrrev_b32 v1, 4, v0")
        a("v_lshlrev_b32 v18, 4, v0")
        a(f"v_add_u32 v18, {RED}, v18")
        self.wo_setup()
        self.delay("o3del")
        a("s_branch LWm")
        a.label("LGH2")
        a("s_setprio 3")
        self.tag()
        self.g_index()
        a("s_cbranch_scc1 LGH3")
        a("s_endpgm")
        a.label("LGH3")
        self.rdy_publish(8, "s2")
        a("s_endpgm")
        a.label("LWH2")
        a("s_setprio 3")
        for i in range(4): a(f"v_mov_b32 v{32+i}, -1")
        a("v_bfe_u32 v3, v0, 4, 1")
        a("v_lshlrev_b32 v3, 11, v3")
        a("v_and_b32 v4, 15, v0")
        a("v_lshl_add_u32 v3, v4, 4, v3")
        a("s_lshl_b32 s15, s4, 12")
        a("s_and_b32 s6, s5, 7")
        a("s_lshl_b32 s6, s6, 8")
        a("s_add_u32 s15, s15, s6")
        a(f"s_add_u32 s15, s15, {HD}")
        a("v_lshrrev_b32 v6, 4, v0")
        a("v_lshlrev_b32 v6, 11, v6")
        a("v_lshl_add_u32 v6, v4, 4, v6")
        a("s_lshl_b32 s8, s6, 6")
        a("s_lshl_b32 s9, s4, 8")
        a("s_add_u32 s8, s8, s9")
        a(f"s_add_u32 s8, s8, {HB}")
        a("s_add_u32 s9, s8, 8192")
        self.c_voff(4)
        a("s_lshr_b32 s6, s6, 1" if self.o.get("msplit", 0) else "s_movk_i32 s6, 896")
        a("s_mov_b32 s50, 2048")
        a("s_waitcnt lgkmcnt(0)")
        a("s_load_dword s14, s[40:41], 0")
        a("s_mov_b64 s[48:49], s[34:35]")
        a("buffer_load_dwordx2 v[28:29], v4, s[48:51], s6 offen")
        a("buffer_store_dwordx4 v[32:35], v6, s[40:43], s8 offen sc1")
        a("buffer_store_dwordx4 v[32:35], v6, s[40:43], s9 offen sc1")
        a("s_mov_b32 exec_hi, 0")
        a("buffer_store_dwordx4 v[32:35], v3, s[40:43], s15 offen sc1")
        a("s_mov_b64 exec, -1")
        self.silu_frag(SCW)
        a("s_waitcnt vmcnt(0) lgkmcnt(0)")
        self.tag()
        self.rdy_publish(8, "s2")
        a("v_lshlrev_b32 v2, 4, v0")
        a("s_lshl_b32 s8, s4, 12")
        a(f"s_add_u32 s8, s8, {HA}")
        a("v_and_b32 v3, 1, v0")
        a("v_mul_u32_u24 v3, 144, v3")
        a("v_bfe_u32 v4, v0, 1, 2")
        a("v_lshl_add_u32 v3, v4, 4, v3")
        a("v_lshrrev_b32 v4, 5, v0")
        a("v_lshl_add_u32 v3, v4, 6, v3")
        a("v_bfe_u32 v4, v0, 4, 1")
        a("v_lshl_add_u32 v3, v4, 3, v3")
        a(f"v_add_u32 v3, {HW}, v3")
        def aissue():
            for t in range(4): a(f"buffer_load_dwordx4 v[{40+4*t}:{43+4*t}], v2, s[40:43], s8 offen offset:{1024*t} sc1")
        def abody():
            for t in range(4):
                a(f"s_waitcnt vmcnt({3-t})")
                a(f"v_xor_b32 v{43+4*t}, s14, v{42+4*t}")
                self.unpack(40 + 4 * t, 64 + 4 * t, 2)
            a("v_or3_b32 v43, v43, v47, v51")
            a("v_or_b32 v43, v43, v55")
            a("v_cmp_ne_u32 s[10:11], 0, v43")
        self.spin(abody, alt=([8], ALOC, 8), issue=aissue, mid=self.silu_run)
        self.fold8()
        a("ds_write_b64 v3, v[40:41]")
        a("s_waitcnt lgkmcnt(0)")
        a("s_barrier")
        a("s_endpgm")
        a.label("LTH")
        if self.o.get("nohelp"): a("s_endpgm")
        a("s_setprio 3")
        for i in range(4): a(f"v_mov_b32 v{40+i}, -1")
        a("v_lshlrev_b32 v2, 4, v0")
        a("s_lshl_b32 s6, s4, 4")
        a("s_add_u32 s6, s6, s5")
        a("s_lshl_b32 s54, s6, 10")
        a(f"s_add_u32 s54, s54, {HC}")
        a("s_lshl_b32 s55, s6, 7")
        a(f"s_add_u32 s55, s55, {HL}")
        a("s_waitcnt lgkmcnt(0)")
        a("s_load_dword s14, s[40:41], 0")
        a("buffer_store_dwordx4 v[40:43], v2, s[40:43], s54 offen sc1")
        a(f"s_add_u32 s54, s54, {LOC}")
        a("buffer_store_dwordx4 v[40:43], v2, s[40:43], s54 offen sc1")
        a("s_mov_b64 exec, 0xff")
        a("buffer_store_dwordx4 v[40:43], v2, s[40:43], s55 offen sc1")
        a(f"s_add_u32 s55, s55, {LOC}")
        a("buffer_store_dwordx4 v[40:43], v2, s[40:43], s55 offen sc1")
        a("s_mov_b64 exec, -1")
        a("s_waitcnt vmcnt(0) lgkmcnt(0)")
        self.tag()
        self.rdy_publish(44, "s6")
        a("buffer_load_dwordx4 v[232:235], v2, s[40:43], s54 offen sc1")
        a("s_mov_b64 exec, 1")
        a("buffer_load_dword v236, v2, s[40:43], s55 offen sc1")
        a("s_endpgm")

    def m_role(self):
        a = self.a
        self.mute = False
        a.label("LM")
        if self.o.get("nom"): self.end()
        ms = self.o.get("msplit", 0)
        if ms == 0: a("s_mov_b32 s61, 7")
        if 0 < ms < 4:
            a(f"s_cmp_ge_u32 s3, {ms}")
            a("s_cbranch_scc1 LMr")
        if not self.o.get("mre", 0): self.mr_issue(17, 44)
        self.mr_compute(SCW, 0)
        a.label("LMr")
        a("s_lshl_b32 s6, s4, 2")
        a("s_add_u32 s6, s6, s3")
        a("s_lshl_b32 s8, s6, 12")
        a(f"s_add_u32 s8, s8, {HP}")
        a("s_lshr_b32 s9, s6, 3")
        a("s_lshl_b32 s9, s9, 12")
        a("s_and_b32 s6, s6, 7")
        a("s_lshl_b32 s6, s6, 8")
        a("s_add_u32 s9, s9, s6")
        a(f"s_add_u32 s9, s9, {HM}")
        a("v_lshlrev_b32 v2, 4, v0")
        a("v_and_b32 v3, 1, v0")
        a("v_lshlrev_b32 v3, 11, v3")
        a("v_bfe_u32 v4, v0, 1, 2")
        a("v_lshl_add_u32 v3, v4, 4, v3")
        a("v_and_b32 v4, 48, v0")
        a("v_lshl_add_u32 v3, v4, 2, v3")
        self.poll([f"buffer_load_dwordx4 v[{40+4*t}:{43+4*t}], v2, s[40:43], s8 offen offset:{1024*t} sc1" for t in range(4)],
                  [(*self.TAGBAD, 42 + 4 * t) for t in range(4)], sleep=1,
                  after=lambda t: self.unpack(40 + 4 * t, 64 + 4 * t, 2))
        self.stamp(6)
        self.fold8()
        self.exec16(0xff)
        a("buffer_store_dwordx4 v[40:43], v3, s[40:43], s9 offen sc1")
        self.stamp(7)
        self.end()

    def t_prefetch(self):
        a = self.a
        a.label("LTpx")
        a("s_mov_b32 s95, 0x20000")
        a("s_bitcmp1_b32 s3, 0")
        a("s_cbranch_scc1 LTpd")
        a("s_cmp_eq_u32 s3, 0")
        a("s_cselect_b64 s[92:93], s[28:29], s[30:31]")
        a(f"s_mov_b32 s94, {512*3584}")
        a(f"s_mul_i32 s60, s5, {32*3584}")
        a("s_mul_i32 s61, s4, 448")
        a("s_add_u32 s60, s60, s61")
        a(f"s_add_u32 s61, s60, {16*3584}")
        a("v_lshrrev_b32 v236, 2, v0")
        a("v_mul_u32_u24 v236, 3584, v236")
        a("v_and_b32 v235, 3, v0")
        a("v_lshl_add_u32 v236, v235, 7, v236")
        a("s_branch LTpr")
        a.label("LTpd")
        a("s_mov_b64 s[92:93], s[32:33]")
        a(f"s_mov_b32 s94, {1792*1024}")
        a(f"s_mul_i32 s60, s4, {7*32768}")
        a("s_lshl_b32 s61, s5, 1")
        a("s_lshr_b32 s13, s3, 1")
        a("s_add_u32 s61, s61, s13")
        a("s_mul_i32 s61, s61, 7168")
        a("s_add_u32 s60, s60, s61")
        a("s_mov_b32 s61, 0x7fffffff")
        a("v_min_u32 v236, 55, v0")
        a("v_lshlrev_b32 v236, 7, v236")
        a("s_branch LTpr")

    def fold8(self):
        a = self.a
        for i in range(8): a(f"v_permlane32_swap_b32 v{64+i}, v{72+i}")
        for k in range(4): a(f"v_pk_add_f32 v[{64+2*k}:{65+2*k}], v[{64+2*k}:{65+2*k}], v[{72+2*k}:{73+2*k}]")
        for i in range(4): a(f"v_permlane16_swap_b32 v{64+i}, v{68+i}")
        for k in range(2): a(f"v_pk_add_f32 v[{64+2*k}:{65+2*k}], v[{64+2*k}:{65+2*k}], v[{68+2*k}:{69+2*k}]")
        for i in range(4): a(f"v_add_f32_dpp v{64+i}, v{64+i}, v{64+i} row_ror:8 row_mask:0xf bank_mask:0xf")
        a("v_cvt_pk_bf16_f32 v40, v64, v65")
        a("v_cvt_pk_bf16_f32 v41, v66, v67")

    def red8(self, r):
        a = self.a
        for i in range(4): a(f"v_add_f32_dpp v{r+i}, v{r+i}, v{r+i} row_ror:8 row_mask:0xf bank_mask:0xf")
        for sw in ("16", "32"):
            for i in range(4): a(f"v_mov_b32 v{60+i}, v{r+i}")
            for i in range(4): a(f"v_permlane{sw}_swap_b32 v{r+i}, v{60+i}")
            for i in range(4): a(f"v_add_f32 v{r+i}, v{r+i}, v{60+i}")

    def build(self):
        self.prologue()
        self.ww_early()
        if self.o.get("tnear"): self.tw_early()
        self.g_early()
        self.g_role()
        self.m_role()
        self.guard(3300, fall=False)
        self.ww_main()
        self.t_prefetch()
        self.guard(3300, fall=False)
        if not self.o.get("tnear"): self.tw_early()
        self.tw_issue()
        self.tw_main()
        if self.diag:
            self.a.label("Ldump")
            self.dump_stamps()
        self.a.label("Lexit")
        self.a("s_endpgm")
        self.a.label("Lcode_end")
        body = self.a.finish()
        head = open("cdna_kernels/" + NAME + ".s.ref").read().split("; Override launch geometry")[0]
        return head + f"""; Generated by gen/gen_kernel.py (own generator script).  One persistent launch: 256 workgroups (one per CU) x 5 waves.
; wg -> x = wg&7, j = wg>>3.  All weights / K / V stream through LDS-DMA, all GEMVs run on 16x16x32 bf16 MFMA.
;   T (j<16)     : attention over 256 keys of (batch j>>3, kv head x); 32 of their waves also sum the FFN partials -> out
;   W (16..23)   : q partial (64 rows of wq x one kv head), then 64 columns of the output projection (j=19: sums ga/sb/cb/gb)
;   G (24..31)   : K slice of silu(c)@w_mod -> h partial and ga/sb/cb/gb partials, then 32 FFN columns (j=31: projection block 3)
; Hand-offs go through d_ws and are validated by content, never by timing or placement:
;   tagged 16-byte granules (tag = next(epoch word found in d_ws); the word is advanced once per launch), or
;   NaN-poisoned slots (the owner poisons them first and says so with a tagged flag that readers check).
;   h and the attention partials are written twice: plain (fast when both ends share an L2) and write-through (fallback).
; Every wait is bounded.
; @launch grid=(256,1,1) block=(320,1,1) lds={LDS_BYTES}
.amdgcn_target "amdgcn-amd-amdhsa--gfx950"
.text
.globl {KNAME}
.p2align 12
.type {KNAME},@function
{KNAME}:
{body}
.section .rodata,"a"
.p2align 6
.amdhsa_kernel {KNAME}
  .amdhsa_next_free_vgpr 240
  .amdhsa_next_free_sgpr 102
  .amdhsa_accum_offset 240
  .amdhsa_group_segment_fixed_size 0
  .amdhsa_kernarg_size 112
  .amdhsa_user_sgpr_count 2
  .amdhsa_user_sgpr_kernarg_segment_ptr 1
  .amdhsa_system_sgpr_workgroup_id_x 1
.end_amdhsa_kernel
"""

if __name__ == "__main__":
    import argparse
    ap = argparse.ArgumentParser()
    ap.add_argument("-o", default="cdna_kernels/" + NAME + ".s")
    ap.add_argument("--diag", action="store_true")
    ap.add_argument("--wflag", default="nt")
    ap.add_argument("--opt", action="append", default=[])
    args = ap.parse_args()
    opts = {}
    for o in args.opt:
        k, _, v = o.partition("=")
        opts[k] = int(v) if v else 1
    open(args.o, "w").write(Gen(args.diag, args.wflag, opts).build())
    print("wrote", args.o)
```

```python
import sys, struct, re
from asmlib import Asm

NAME = "adaLN_cond__sliding_block_cached__glu_gated_reglu__decode"
KNAME = NAME + "_kernel"

def f32(x): return "0x%08x" % struct.unpack("<I", struct.pack("<f", x))[0]

EPOCH = 0x0
RDY = 0x1000
HM = 0x4000
HA = 0x8000
ALOC = 0x8000
HB = 0x140000
HD = 0x20000
HL = HD + 0x8000
HC = HL + 0x4000
LOC = 0x24000
HF = HC + 0x20000 + LOC
HFS = 7168
HP = 0xD0000
STAMP = 0x100000
WS_SIZE = 0x200000
LDS_BYTES = 151552
KB, VB, PB, MX, LS, QB = 0, 65536, 131072, 133120, 133248, 133632
WQ, WO, GA, RED, SCW, HW = 0, 65536, 131072, 147456, 149504, 150016
W1, GU, DWN, MRG, SC, LNS = 0, 16384, 81920, 114688, 147456, 148480
REC, CSR, STAT = W1, W1 + 4096, W1 + 8192
AROW_O = 4096

LOG2E = 1.4426950408889634
CSC = (128 ** -0.5) * LOG2E
SPIN = 100000
import os
if os.environ.get('SPIN'): SPIN = int(os.environ['SPIN'])
MFMA = "v_mfma_f32_16x16x32_bf16"

class Gen:
    POISON = ("v_cmp_eq_u32", "-1")
    TAGBAD = ("v_cmp_ne_u32", "s14")

    def __init__(self, diag=False, wflag="nt", opts=None):
        self.a = Asm()
        self.diag = diag
        self.wf = wflag
        self.o = opts or {}
        self.nlab = 0
    def lab(self, p="L"):
        self.nlab += 1
        return f"{p}{self.nlab}"
    def dstamp(self, k):
        if self.o.get("gdbg"): self.a(f"s_memrealtime s[{64+2*k}:{65+2*k}]")
    def stamp(self, k):
        if self.o.get("lite") and not (k == 0 or (k == 8 and getattr(self, "final", False))): return
        if self.o.get("gdbg") and getattr(self, "mute", False) and k in (4, 6, 7, 8): return
        if self.diag or self.o.get("amp") == k: self.a(f"s_memrealtime s[{64+2*k}:{65+2*k}]")
    def dump_max(self):
        a = self.a
        a("s_load_dwordx2 s[44:45], s[0:1], 96")
        a("s_mov_b32 s46, 256")
        a("s_mov_b32 s47, 0x20000")
        a("s_mov_b64 exec, 1")
        a("v_mov_b32 v1, 0")
        a("s_waitcnt lgkmcnt(0)")
        def put(slot, reg):
            a(f"v_mov_b32 v4, {reg}")
            a(f"buffer_atomic_umax v4, v1, s[44:47], 0 offen offset:{4*slot} sc1")
        a("s_not_b32 s60, s64")
        put(0, "s60"); put(1, "s64")
        a("s_lshr_b32 s5, s2, 3")
        a("s_cmp_ge_u32 s5, 24")
        a("s_cbranch_scc1 LdG")
        a("s_cmp_ge_u32 s5, 16")
        a("s_cbranch_scc1 LdW")
        for slot, k in ((6, 3), (7, 9), (8, 5), (15, 8)): put(slot, f"s{64+2*k}")
        a("s_endpgm")
        a.label("LdW")
        for slot, k in ((3, 2), (4, 3), (5, 4), (9, 6), (10, 7), (11, 8)): put(slot, f"s{64+2*k}")
        a("s_endpgm")
        a.label("LdG")
        for slot, k in ((2, 3), (12, 6), (13, 7), (14, 9)): put(slot, f"s{64+2*k}")
    def dump_gamp(self):
        a = self.a
        k, lo, hi = self.o["gamp"] // 10000, self.o["gamp"] // 100 % 100, self.o["gamp"] % 100
        a("s_waitcnt lgkmcnt(0)")
        a("s_lshr_b32 s5, s2, 3")
        a(f"s_sub_u32 s60, s5, {lo}")
        a(f"s_cmp_lt_u32 s60, {hi-lo}")
        a(f"s_cselect_b32 s61, s{64+2*k}, 0")
        a("s_cmp_eq_u32 s61, 0")
        a("s_cselect_b32 s61, s64, s61")
        a("s_lshl_b32 s60, s2, 2")
        a("s_add_u32 s60, s60, s3")
        a("s_lshl_b32 s60, s60, 2")
        a(f"s_add_u32 s60, s60, {STAMP}")
        a("s_mov_b64 exec, 1")
        a("v_mov_b32 v1, 0")
        a("v_mov_b32 v4, s64")
        a("v_mov_b32 v5, s61")
        a("buffer_store_dword v4, v1, s[40:43], s60 offen sc1")
        a("s_add_u32 s60, s60, 4096")
        a("buffer_store_dword v5, v1, s[40:43], s60 offen sc1")
        a("s_mov_b64 exec, -1")
        a("s_cmp_eq_u32 s2, 0")
        a("s_cbranch_scc0 Lexit")
        a("s_cmp_eq_u32 s3, 1")
        a("s_cbranch_scc0 Lexit")
        def until(reg):
            L = self.lab("Lu")
            a.label(L)
            a("s_memrealtime s[98:99]")
            a("s_waitcnt lgkmcnt(0)")
            a("s_sub_u32 s98, s98, s64")
            a(f"s_cmp_lt_u32 s98, {reg}")
            a(f"s_cbranch_scc1 {L}")
        until(3000)
        a("v_lshlrev_b32 v2, 4, v0")
        a(f"s_mov_b32 s60, {STAMP}")
        a(f"s_mov_b32 s61, {STAMP+4096}")
        for i in range(4):
            a(f"buffer_load_dwordx4 v[{8+4*i}:{11+4*i}], v2, s[40:43], s60 offen offset:{1024*i} sc1")
            a(f"buffer_load_dwordx4 v[{24+4*i}:{27+4*i}], v2, s[40:43], s61 offen offset:{1024*i} sc1")
        a("s_waitcnt vmcnt(0)")
        for i in range(32): a(f"v_subrev_u32 v{8+i}, s64, v{8+i}")
        for i in range(1, 16):
            a(f"v_min_i32 v8, v8, v{8+i}")
            a(f"v_max_i32 v24, v24, v{24+i}")
        a("s_mov_b32 s60, 0")
        a("s_mov_b32 s61, 0")
        for l in range(64):
            a(f"v_readlane_b32 s62, v8, {l}")
            a(f"v_readlane_b32 s63, v24, {l}")
            a("s_min_i32 s60, s60, s62")
            a("s_max_i32 s61, s61, s63")
        a("s_sub_u32 s61, s61, s60")
        a("s_mul_i32 s61, s61, 40")
        a("s_add_u32 s100, s61, 4000")
        until("s100")
    def dump_stamps(self):
        if not self.diag: return
        if self.o.get("gamp") is not None: return self.dump_gamp()
        if self.o.get("dmax"): return self.dump_max()
        a = self.a
        a("s_waitcnt lgkmcnt(0)")
        a("s_mov_b64 exec, 1")
        a("s_mul_i32 s60, s2, 5")
        a("s_add_u32 s60, s60, s3")
        a("s_lshl_b32 s60, s60, 6")
        a(f"s_add_u32 s60, s60, {STAMP}")
        a("v_mov_b32 v1, 0")
        for q in range(3):
            for i in range(4):
                a(f"v_mov_b32 v{4+i}, s{64+2*(4*q+i)}")
            a(f"buffer_store_dwordx4 v[4:7], v1, s[40:43], s60 offen offset:{16*q}")
            a("s_nop 1")
    def end(self, helper=False):
        self.a("s_branch Ldump" if self.diag and (not helper or self.o.get("hdump")) else "s_endpgm")
    def delay(self, key):
        n = self.o.get(key, 0)
        if not n: return
        a = self.a
        L = self.lab("Ld")
        a.label(L)
        a("s_memrealtime s[98:99]")
        a("s_waitcnt lgkmcnt(0)")
        a("s_sub_u32 s98, s98, s64")
        a(f"s_cmp_lt_u32 s98, {n}")
        a(f"s_cbranch_scc1 {L}")
    def guard(self, n, fall=True, fill=None):
        L = self.lab("Lg")
        if fall: self.a(f"s_branch {L}")
        if fill: fill()
        self.a(f".p2align 12, , {n}")
        self.a.label(L)
    def srd(self, d, p, size):
        a = self.a
        a(f"s_mov_b64 s[{d}:{d+1}], s[{p}:{p+1}]")
        a(f"s_mov_b32 s{d+2}, {size}")
        a(f"s_mov_b32 s{d+3}, 0x20000")
    def tag(self):
        self.a("s_mul_i32 s14, s14, 0x9E3779B1")
        self.a("s_add_u32 s14, s14, 0x7F4A7C15")
    def exec16(self, m):
        self.a(f"s_mov_b32 exec_lo, {(m << 16 | m):#x}")
        self.a(f"s_mov_b32 exec_hi, {(m << 16 | m):#x}")
    def poll(self, loads, checks, sleep=0, after=None):
        a = self.a
        L = self.lab("Lp"); D = self.lab("Lpd")
        n = len(loads)
        a(f"s_mov_b32 s12, {SPIN}")
        a.label(L)
        for l in loads: a(l)
        for i, (op, opd, r) in enumerate(checks):
            a(f"s_waitcnt vmcnt({n-1-i})")
            if i == 0:
                a(f"{op} s[10:11], {opd}, v{r}")
            else:
                a(f"{op} vcc, {opd}, v{r}")
                a("s_or_b64 s[10:11], s[10:11], vcc")
            if after: after(i)
        a("s_cmp_eq_u64 s[10:11], 0")
        a(f"s_cbranch_scc1 {D}")
        if sleep: a(f"s_sleep {sleep}")
        a("s_sub_u32 s12, s12, 1")
        a(f"s_cbranch_scc0 {L}")
        a.label(D)
    def spin(self, body, sleep=0, alt=None, issue=None, mid=None):
        a = self.a
        L = self.lab("Lp"); D = self.lab("Lpd")
        n = SPIN
        if alt:
            sregs, delta, every = alt
            for i, r in enumerate(sregs):
                a(f"s_mov_b32 s{96+2*i}, s{r}")
                a(f"s_add_u32 s{97+2*i}, s{r}, {delta}")
                a(f"s_mov_b32 s{r}, s{97+2*i}")
            n = SPIN * 4 | (every - 1)
        a(f"s_mov_b32 s12, {n}")
        if issue:
            E = self.lab("Lpe")
            issue(); mid()
            a(f"s_branch {E}")
        a.label(L)
        if issue:
            issue()
            a.label(E)
        body()
        a("s_cmp_eq_u64 s[10:11], 0")
        a(f"s_cbranch_scc1 {D}")
        if sleep: a(f"s_sleep {sleep}")
        if alt:
            a(f"s_and_b32 s13, s12, {every-1}")
            for i, r in enumerate(sregs): a(f"s_cselect_b32 s{r}, s{97+2*i}, s{96+2*i}")
        a("s_sub_u32 s12, s12, 1")
        a(f"s_cbranch_scc0 {L}")
        a.label(D)
    def ssent(self, soff, offs, cnt=13):
        a = self.a
        L = self.lab("Ls"); D = self.lab("Lsd")
        a(f"s_mov_b32 s{cnt}, {SPIN}")
        a.label(L)
        for k, o in enumerate(offs): a(f"s_load_dword s{88+k}, s[40:41], s{soff} offset:{o} glc")
        a("s_waitcnt lgkmcnt(0)")
        for k in range(len(offs)): a(f"s_xor_b32 s{88+k}, s{88+k}, s14")
        for k in range(1, len(offs)): a(f"s_or_b32 s88, s88, s{88+k}")
        a(f"s_cbranch_scc0 {D}")
        a(f"s_sub_u32 s{cnt}, s{cnt}, 1")
        a(f"s_cbranch_scc0 {L}")
        a.label(D)
    def sum_poll(self, loads, base, acc, mid=None):
        a = self.a
        n = len(loads)
        def issue():
            for l in loads: a(l)
        def body():
            if not mid: issue()
            for i in range(1, n):
                a(f"s_waitcnt vmcnt({n-1-i})")
                src = base if i == 1 else acc
                for k in range(2): a(f"v_pk_add_f32 v[{acc+2*k}:{acc+1+2*k}], v[{src+2*k}:{src+1+2*k}], v[{base+4*i+2*k}:{base+1+4*i+2*k}]")
            a(f"v_cmp_u_f32 s[10:11], v{acc}, v{acc+1}")
            a(f"v_cmp_u_f32 vcc, v{acc+2}, v{acc+3}")
            a("s_or_b64 s[10:11], s[10:11], vcc")
        self.spin(body, issue=issue if mid else None, mid=mid)
    def silu(self, regs, tmp):
        a = self.a
        for i, r in enumerate(regs): a(f"v_mul_f32 v{tmp+i}, {f32(-LOG2E)}, v{r}")
        for i, r in enumerate(regs): a(f"v_exp_f32 v{tmp+i}, v{tmp+i}")
        for i, r in enumerate(regs): a(f"v_add_f32 v{tmp+i}, 1.0, v{tmp+i}")
        for i, r in enumerate(regs): a(f"v_rcp_f32 v{tmp+i}, v{tmp+i}")
        for i, r in enumerate(regs): a(f"v_mul_f32 v{r}, v{r}, v{tmp+i}")
    def unpack(self, src, dst, n):
        for i in range(n):
            self.a(f"v_lshlrev_b32 v{dst+2*i}, 16, v{src+i}")
            self.a(f"v_and_b32 v{dst+2*i+1}, 0xffff0000, v{src+i}")
    def row_sum(self, r):
        for m in ("quad_perm:[1,0,3,2]", "quad_perm:[2,3,0,1]", "row_half_mirror", "row_mirror"):
            self.a(f"v_add_f32_dpp v{r}, v{r}, v{r} {m} row_mask:0xf bank_mask:0xf")
    def silu_frag(self, base):
        a = self.a
        a("v_bfe_u32 v10, v0, 4, 1")
        a("v_mul_u32_u24 v5, 144, v10")
        a("v_bfe_u32 v4, v0, 3, 1")
        a("v_lshl_add_u32 v5, v4, 6, v5")
        a("v_and_b32 v4, 3, v0")
        a("v_lshl_add_u32 v5, v4, 4, v5")
        a("v_bfe_u32 v4, v0, 2, 1")
        a("v_lshl_add_u32 v5, v4, 3, v5")
        a(f"v_add_u32 v5, {base}, v5")
    def silu_run(self):
        a = self.a
        self.unpack(28, 16, 2)
        self.silu([16, 17, 18, 19], 24)
        a("v_cvt_pk_bf16_f32 v28, v16, v17")
        a("v_cvt_pk_bf16_f32 v29, v18, v19")
        a("ds_write_b64 v5, v[28:29]")
    def c_voff(self, d):
        a = self.a
        a(f"v_bfe_u32 v{d}, v0, 4, 1")
        a(f"v_lshlrev_b32 v{d}, 10, v{d}")
        a("v_and_b32 v11, 15, v0")
        a(f"v_lshl_add_u32 v{d}, v11, 3, v{d}")
    def mfma(self, d, A, B, first):
        c = "0" if first else f"v[{d}:{d+3}]"
        self.a(f"{MFMA} v[{d}:{d+3}], v[{A}:{A+3}], v[{B}:{B+3}], {c}")
    def tr(self, r, va, off, second):
        self.a(f"ds_read_b64_tr_b16 v[{r}:{r+1}], v{va} offset:{off}")
        self.a(f"ds_read_b64_tr_b16 v[{r+2}:{r+3}], v{va} offset:{off+second}")
    def voff256(self, d, stride_sh, t0, t1):
        a = self.a
        a(f"v_lshrrev_b32 v{t0}, 4, v0")
        a(f"v_and_b32 v{t1}, 15, v0")
        a(f"v_lshlrev_b32 v{d}, 1, v{t0}")
        a(f"v_xor_b32 v{d}, v{t1}, v{d}")
        a(f"v_lshlrev_b32 v{d}, 4, v{d}")
        a(f"v_lshl_add_u32 v{d}, v{t0}, {stride_sh}, v{d}")
        a(f"v_xor_b32 v{d+1}, 0x80, v{d}")
    def voff128(self, d, stride, t0, t1):
        a = self.a
        a(f"v_lshrrev_b32 v{t0}, 3, v0")
        a(f"v_and_b32 v{d}, 6, v{t0}")
        a(f"v_and_b32 v{t1}, 7, v0")
        a(f"v_xor_b32 v{d}, v{d}, v{t1}")
        a(f"v_mul_u32_u24 v{t0}, {stride}, v{t0}")
        a(f"v_lshl_add_u32 v{d}, v{d}, 4, v{t0}")
    def traddr256(self, d, n, base, t0, t1, first=None):
        a = self.a
        a(f"v_lshrrev_b32 v{t0}, 2, v0")
        a(f"v_and_b32 v{d}, 7, v{t0}")
        a(f"v_lshlrev_b32 v{d}, 5, v{d}")
        a(f"v_lshl_add_u32 v{d}, v{t0}, 8, v{d}")
        a(f"v_and_b32 v{t1}, 3, v0")
        a(f"v_lshl_add_u32 v{d}, v{t1}, 3, v{d}")
        if first: a(f"v_xor_b32 v{d}, {first}, v{d}")
        a(f"v_add_u32 v{d}, {base}, v{d}")
        for i in range(1, n): a(f"v_xor_b32 v{d+i}, {32*i}, v{d}")
    def traddr128(self, d, base, t0, t1, grp_sh=10, n=4):
        a = self.a
        a(f"v_bfe_u32 v{t0}, v0, 2, 3")
        a(f"v_bfe_u32 v{d}, v0, 3, 2")
        a(f"v_lshlrev_b32 v{d}, 5, v{d}")
        a(f"v_lshl_add_u32 v{d}, v{t0}, 7, v{d}")
        a(f"v_lshrrev_b32 v{t0}, 5, v0")
        a(f"v_lshl_add_u32 v{d}, v{t0}, {grp_sh}, v{d}")
        a(f"v_and_b32 v{t1}, 3, v0")
        a(f"v_lshl_add_u32 v{d}, v{t1}, 3, v{d}")
        if base is not None: a(f"v_add_u32 v{d}, {base}, v{d}")
        for i in range(1, n): a(f"v_xor_b32 v{d+i}, {32*i}, v{d}")

    def prologue(self):
        a = self.a
        a("s_cmp_ge_u32 s2, 256")
        a("s_cbranch_scc1 Lexit")
        a("s_load_dwordx16 s[16:31], s[0:1], 0")
        a("s_load_dwordx8 s[32:39], s[0:1], 64")
        a("s_load_dwordx2 s[40:41], s[0:1], 104")
        if self.diag:
            for k in range(1, 12): a(f"s_mov_b32 s{64+2*k}, 0")
        self.stamp(0)
        if self.o.get("padto"): a("s_memrealtime s[96:97]")
        a("s_getpc_b64 s[56:57]")
        a.label("Lpc0")
        a("s_lshr_b32 s5, s2, 3")
        a("v_lshrrev_b32 v1, 6, v0")
        a("s_mul_i32 s6, s5, 640")
        a("v_lshl_add_u32 v2, v1, 7, s6")
        a("v_min_u32 v2, Lcode_end-Lpc0-4, v2")
        a("global_load_dword v239, v2, s[56:57]")
        a("v_and_b32 v0, 63, v0")
        a("s_and_b32 s4, s2, 7")
        a("v_readfirstlane_b32 s3, v1")
        a(f"s_mov_b32 s42, {WS_SIZE}")
        a("s_mov_b32 s43, 0x20000")
        a("s_mov_b32 s47, 0x20000")
        a("s_mov_b32 s51, 0x20000")
        a("s_lshl_b32 s7, s3, 14")
        a("s_cmp_ge_u32 s5, 24")
        a("s_cbranch_scc1 LG0")
        a("s_cmp_eq_u32 s3, 4")
        a("s_cbranch_scc1 LH0")
        self.voff256(6, 8, 1, 8)
        a("s_mov_b32 m0, s7")
        a("s_cmp_ge_u32 s5, 16")
        a("s_cbranch_scc0 LT0")

    def tw_early(self):
        a, wf = self.a, self.wf
        a.label("LT0")
        a("s_and_b32 s6, s5, 8")
        a("s_add_u32 s6, s6, s4")
        a("s_lshl_b32 s6, s6, 21")
        a("s_and_b32 s8, s5, 7")
        a("s_lshl_b32 s8, s8, 16")
        a("s_add_u32 s6, s6, s8")
        a("s_add_u32 s6, s6, s7")
        a(f"s_add_u32 s6, s6, {6144*256}")
        a("v_xor_b32 v2, v8, v1")
        a("v_lshlrev_b32 v2, 4, v2")
        a("v_lshl_add_u32 v2, v1, 8, v2")
        a("v_xor_b32 v3, 64, v2")
        a("v_xor_b32 v4, 0x80, v2")
        a("v_xor_b32 v5, 0xc0, v2")
        a("s_mov_b32 s8, s6")
        a("s_add_u32 s9, s6, 16384")
        a("s_mov_b32 s46, 0x2000000")
        a("s_mov_b32 s50, 0x2000000")
        a("s_add_u32 s10, s6, 8192")
        a("s_waitcnt lgkmcnt(0)")
        a("s_mov_b64 s[44:45], s[18:19]")
        a("s_mov_b64 s[48:49], s[20:21]")
        a("s_load_dword s14, s[40:41], 0")
        cap = self.o.get("cap", 8)
        for half in range(2):
            L = self.lab("LTWk")
            a.label(L)
            for i in range(4):
                a(f"buffer_load_dwordx4 v{2+i}, s[44:47], s8 offen offset:{1024*i} {wf} lds")
                if cap and half: a(f"s_waitcnt vmcnt({cap})")
            a("s_add_u32 m0, m0, 4096")
            a("s_add_u32 s8, s8, 4096")
            a(f"s_cmp_lt_u32 s8, s{10-half}")
            a(f"s_cbranch_scc1 {L}")
            if half == 0:
                a("s_branch LTpx")
                a.label("LTpr")
        self.stamp(10)
        if self.o.get("tnear"): a("s_branch LTW1")

    def tw_issue(self):
        a, wf = self.a, self.wf
        cap = self.o.get("vcap", 8)
        if self.o.get("tnear"):
            a.label("LTHp")
            a("s_branch LTH")
            a.label("LTW1")
        a("s_lshl_b32 s55, s4, 14")
        a("s_and_b32 s13, s5, 8")
        a("s_lshl_b32 s13, s13, 10")
        a("s_add_u32 s55, s55, s13")
        a("s_lshl_b32 s13, s3, 11")
        a("s_add_u32 s55, s55, s13")
        a(f"s_add_u32 s55, s55, {HB}")
        a("v_lshlrev_b32 v21, 4, v0")
        a("v_mov_b32 v229, v21")
        a("s_lshl_b32 s27, s4, 7")
        a(f"s_add_u32 s27, s27, {RDY+2048}")
        a(f"s_add_u32 m0, s7, {VB}")
        a("s_mov_b32 s8, s6")
        a("s_waitcnt lgkmcnt(0)")
        self.tag()
        for g in range(4):
            if g == 2:
                a("s_mov_b64 exec, 0xff")
                self.rdy_load()
                a("s_mov_b64 exec, -1")
            for i in range(4):
                a(f"buffer_load_dwordx4 v{6+(i&1)}, s[48:51], s8 offen offset:{1024*i} {wf} lds")
                if cap: a(f"s_waitcnt vmcnt({cap})")
            if g < 3:
                a("s_add_u32 m0, m0, 4096")
                a("s_add_u32 s8, s8, 4096")
        a("s_waitcnt vmcnt(8)")
        a("s_mov_b64 exec, 0xff")
        self.rdy_check()
        a("s_mov_b64 exec, -1")
        self.qfetch()

    def qfetch(self):
        for i in range(2): self.a(f"buffer_load_dwordx4 v[{192+4*i}:{195+4*i}], v21, s[40:43], s55 offen offset:{1024*i} sc1")

    def ww_early(self):
        a, wf = self.a, self.wf
        a.label("LW0")
        if self.o.get("now"): a("s_endpgm")
        a("s_lshl_b32 s9, s4, 19")
        a("s_and_b32 s52, s5, 7")
        a("s_lshl_b32 s15, s52, 10")
        a("s_add_u32 s9, s9, s15")
        a("s_lshl_b32 s15, s3, 8")
        a("s_add_u32 s9, s9, s15")
        a("v_mul_u32_u24 v2, 0x1f00, v1")
        a("v_add_u32 v6, v6, v2")
        a("v_add_u32 v7, v7, v2")
        a("s_add_u32 s13, s7, 16384")
        a(f"s_mov_b32 s46, {512*8192}")
        a("s_waitcnt lgkmcnt(0)")
        a("s_mov_b64 s[44:45], s[22:23]")
        if self.o.get("pf3", 0):
            a("s_cmp_eq_u32 s4, 3")
            a("s_cbranch_scc0 LWp")
            a("s_mov_b64 s[48:49], s[36:37]")
            a(f"s_mov_b32 s50, {512*6144}")
            a("s_lshl_b32 s15, s52, 2")
            a("s_add_u32 s15, s15, s3")
            a(f"s_mul_i32 s15, s15, {16*6144}")
            a("v_mul_u32_u24 v3, 6144, v8")
            a("s_mov_b64 exec, 0xffff")
            a(f"buffer_load_dword v238, v3, s[48:51], s15 offen offset:{1024+384}")
            a("s_mov_b64 exec, -1")
            a.label("LWp")
        a("s_load_dword s14, s[40:41], 0")
        a.label("LWq")
        for i in range(2):
            a(f"buffer_load_dwordx4 v{6+i}, s[44:47], s9 offen {wf} lds")
            a("s_add_u32 m0, m0, 1024")
            a("s_add_u32 s9, s9, 32768")
        if self.o.get("qcap", 8): a(f"s_waitcnt vmcnt({self.o.get('qcap', 8)})")
        a("s_cmp_lt_u32 m0, s13")
        a("s_cbranch_scc1 LWq")
        a("s_branch LW2")
        a.label("LH0")
        a("s_cmp_ge_u32 s5, 16")
        a("s_cbranch_scc0 " + ("LTHp" if self.o.get("tnear") else "LTHq" if self.o.get("tpad", 0) else "LTH"))
        a("s_branch LWHp")

    def g_early(self):
        a, wf = self.a, self.wf
        a.label("LG0")
        if self.o.get("nog"): a("s_endpgm")
        a("s_sub_u32 s5, s5, 24")
        if self.o.get("chs", 0):
            a("s_mov_b32 s60, s5")
            a("s_mov_b32 s61, s4")
        else:
            a("s_mov_b32 s60, s4")
            a("s_mov_b32 s61, s5")
        a("s_mov_b32 s50, 2048")
        a("s_cmp_eq_u32 s3, 4")
        a("s_cbranch_scc0 LGW")
        self.c_voff(4)
        a("s_lshl_b32 s9, s61, 7")
        a("s_waitcnt lgkmcnt(0)")
        a("s_mov_b64 s[48:49], s[34:35]")
        a("buffer_load_dwordx2 v[28:29], v4, s[48:51], s9 offen")
        a("s_load_dword s14, s[40:41], 0")
        self.silu_frag(SC)
        a("s_waitcnt vmcnt(0)")
        self.silu_run()
        a("s_waitcnt lgkmcnt(0)")
        a("s_barrier")
        a("s_barrier")
        a("s_branch LGH2")
        a.label("LGW")
        a("v_lshlrev_b32 v6, 4, v0")
        self.voff128(2, 6144, 1, 3)
        a("s_lshl_b32 s9, s61, 2")
        a("s_add_u32 s9, s9, s3")
        a(f"s_mul_i32 s9, s9, {16*6144}")
        a("s_lshl_b32 s6, s60, 7")
        a("s_add_u32 s9, s9, s6")
        a("s_lshl_b32 s13, s3, 5")
        a("s_add_u32 s6, s6, s13")
        a("v_and_b32 v12, 1, v0")
        a("v_and_b32 v13, 48, v0")
        a("v_lshrrev_b32 v4, 1, v13")
        a("v_lshl_add_u32 v4, v12, 10, v4")
        a("v_lshrrev_b32 v14, 5, v0")
        a("v_lshlrev_b32 v14, 10, v14")
        a("v_and_b32 v15, 31, v0")
        a("v_lshl_add_u32 v14, v15, 3, v14")
        a("s_lshl_b32 s63, s3, 8")
        a("s_lshr_b32 m0, s7, 2")
        a(f"s_mov_b32 s54, {512*6144}")
        a("s_mov_b32 s55, 0x20000")
        a("s_lshl_b32 s8, s60, 12")
        a("s_lshl_b32 s15, s3, 10")
        a("s_add_u32 s8, s8, s15")
        a("s_lshl_b32 s15, s61, 7")
        a("s_add_u32 s8, s8, s15")
        a(f"s_add_u32 s8, s8, {HA}")
        a(f"s_add_u32 s62, s8, {ALOC}")
        a("s_waitcnt lgkmcnt(0)")
        self.dstamp(4)
        a("s_mov_b64 s[48:49], s[16:17]")
        a("s_mov_b64 s[52:53], s[36:37]")
        lnh = self.o.get("lnh", 1)
        if lnh:
            a("buffer_load_dwordx2 v[24:25], v14, s[48:51], s63 offen")
        else:
            a("buffer_load_dwordx4 v[24:27], v6, s[48:51], 0 offen")
            a("buffer_load_dwordx4 v[28:31], v6, s[48:51], 0 offen offset:1024")
        self.exec16(3)
        a("buffer_load_dwordx2 v[20:21], v4, s[48:51], s6 offen")
        a("s_mov_b64 exec, -1")
        for i in range(2):
            a(f"buffer_load_dwordx4 v2, s[52:55], s9 offen {wf} lds")
            a(f"buffer_load_dwordx4 v2, s[52:55], s9 offen offset:1024 {wf} lds")
            if i == 0:
                a("s_add_u32 m0, m0, 2048")
                a(f"s_add_u32 s9, s9, {8*6144}")
        a("s_mov_b64 exec, 1")
        a("buffer_load_dword v238, v6, s[40:43], s62 offen sc1")
        a("s_mov_b64 exec, -1")
        a("s_load_dword s14, s[40:41], 0")
        mr0 = 0
        self.traddr128(8, None, 1, 3, grp_sh=11, n=1)
        a("v_xor_b32 v8, s13, v8")
        a("v_mul_u32_u24 v6, 144, v12")
        a("v_add_u32 v6, v6, v13")
        a(f"v_add_u32 v6, {SC}, v6")
        a("v_lshlrev_b32 v7, 4, v12")
        a("v_lshl_add_u32 v13, v13, 1, v7")
        a("s_cmp_eq_u32 s61, 0")
        a("s_cselect_b32 s9, 1.0, 0")
        for i in range(4): a(f"v_mov_b32 v{44+i}, s9")
        a("s_mov_b32 s9, 0x3f803f80")
        if lnh:
            a("v_and_b32 v15, 48, v0")
            a("s_lshl_b32 s15, s3, 2")
            a(f"s_add_u32 s15, s15, {LNS}")
            a("v_add_u32 v15, s15, v15")
            a("v_lshlrev_b32 v7, 5, v12")
            a(f"v_add_u32 v7, {LNS}, v7")
            a(f"v_mov_b32 v52, {f32(1e-5)}")
            self.dstamp(6)
            a("s_waitcnt vmcnt(5) lgkmcnt(0)")
            self.dstamp(7)
            self.tag()
            a("v_dot2_f32_bf16 v48, v24, s9, 0")
            a("v_dot2_f32_bf16 v50, v24, v24, 0")
            a("v_dot2_f32_bf16 v48, v25, s9, v48")
            a("v_dot2_f32_bf16 v50, v25, v25, v50")
            self.unpack(20, 16, 2)
            a("v_permlane16_swap_b32 v48, v50")
            a("v_add_f32 v48, v48, v50")
            self.row_sum(48)
            a("ds_write_b32 v15, v48")
            a("s_waitcnt lgkmcnt(0)")
        else:
            a("v_lshlrev_b32 v7, 7, v12")
            a(f"s_waitcnt vmcnt({5+mr0})")
            for b in range(2):
                a(f"v_dot2_f32_bf16 v{48+b}, v{24+4*b}, s9, 0")
                a(f"v_dot2_f32_bf16 v{50+b}, v{24+4*b}, v{24+4*b}, 0")
            for i in range(1, 4):
                for b in range(2):
                    a(f"v_dot2_f32_bf16 v{48+b}, v{24+4*b+i}, s9, v{48+b}")
                    a(f"v_dot2_f32_bf16 v{50+b}, v{24+4*b+i}, v{24+4*b+i}, v{50+b}")
            a("v_permlane32_swap_b32 v48, v49")
            a("v_permlane32_swap_b32 v50, v51")
            a("v_add_f32 v48, v48, v49")
            a("v_add_f32 v50, v50, v51")
            a("v_permlane16_swap_b32 v48, v50")
            a("v_add_f32 v48, v48, v50")
            self.row_sum(48)
            a("ds_bpermute_b32 v50, v7, v48")
            a("ds_bpermute_b32 v51, v7, v48 offset:64")
            a(f"v_mov_b32 v52, {f32(1e-5)}")
            a("s_waitcnt lgkmcnt(0)")
            self.tag()
            a(f"v_mul_f32 v50, {f32(1/512)}, v50")
            a(f"v_fmamk_f32 v51, v51, {f32(1/512)}, v52")
            a("v_fma_f32 v51, -v50, v50, v51")
            a("v_rsq_f32 v51, v51")
            self.unpack(20, 16, 2)
            for i in range(4): a(f"v_sub_f32 v{16+i}, v{16+i}, v50")
            for i in range(4): a(f"v_mul_f32 v{16+i}, v{16+i}, v51")
        a("v_mov_b32 v58, s14")
        a("v_mov_b32 v59, s14")
        a(f"s_waitcnt vmcnt({1+mr0})")
        self.dstamp(8)
        a("s_barrier")
        self.stamp(1)
        if lnh:
            a("ds_read_b128 v[24:27], v7")
            a("ds_read_b128 v[28:31], v7 offset:16")
        for ks in range(2):
            a(f"ds_read_b128 v[{32+4*ks}:{35+4*ks}], v6 offset:{64*ks}")
            for seg in range(2): self.tr(64 + 8 * ks + 4 * seg, 8, W1 + 8192 * ks + 1024 * seg, 4096)
        if lnh:
            a("s_waitcnt lgkmcnt(10)")
            a("v_pk_add_f32 v[24:25], v[24:25], v[26:27]")
            a("v_pk_add_f32 v[28:29], v[28:29], v[30:31]")
            a("v_add_f32 v50, v24, v25")
            a("v_add_f32 v51, v28, v29")
            a(f"v_mul_f32 v50, {f32(-1/512)}, v50")
            a(f"v_fmamk_f32 v51, v51, {f32(1/512)}, v52")
            a("v_fma_f32 v51, -v50, v50, v51")
            a("v_max_f32 v51, v51, v52")
            a("v_rsq_f32 v51, v51")
            for k in range(2): a(f"v_pk_add_f32 v[{16+2*k}:{17+2*k}], v[{16+2*k}:{17+2*k}], v[50:51] op_sel_hi:[1,0]")
            for k in range(2): a(f"v_pk_mul_f32 v[{16+2*k}:{17+2*k}], v[{16+2*k}:{17+2*k}], v[50:51] op_sel:[0,1] op_sel_hi:[1,1]")
        a("s_waitcnt lgkmcnt(5)")
        self.mfma(40, 64, 32, True)
        self.mfma(44, 68, 32, False)
        a("s_waitcnt lgkmcnt(0)")
        self.mfma(40, 72, 36, False)
        self.mfma(44, 76, 36, False)
        self.exec16(3)
        for k in range(2): a(f"v_pk_fma_f32 v[{40+2*k}:{41+2*k}], v[{16+2*k}:{17+2*k}], v[{44+2*k}:{45+2*k}], v[{40+2*k}:{41+2*k}]")
        a("v_cvt_pk_bf16_f32 v56, v40, v41")
        a("v_cvt_pk_bf16_f32 v57, v42, v43")
        a("buffer_store_dwordx4 v[56:59], v13, s[40:43], s62 offen")
        self.stamp(3)
        a("s_barrier")
        a("buffer_store_dwordx4 v[56:59], v13, s[40:43], s8 offen sc1")
        a("s_mov_b64 exec, -1")

    def wo_setup(self):
        a = self.a
        self.voff128(2, 1024, 3, 4)
        a("s_lshl_b32 s53, s4, 19")
        a("s_lshl_b32 s15, s3, 17")
        a("s_add_u32 s53, s53, s15")
        a("s_lshr_b32 s15, s52, 2")
        a("s_add_u32 s53, s53, s15")
        a(f"s_add_u32 s59, s7, {WO+16384}")
        a(f"s_add_u32 s62, s7, {WO}")
        a("s_mov_b64 s[48:49], s[24:25]")
        a(f"s_mov_b32 s50, {4096*1024}")
    def mr_issue(self, v, srd):
        a, wf = self.a, self.wf
        L = self.lab("Lmr")
        a(f"s_mul_i32 s9, s61, {64*6144}")
        a("s_lshl_b32 s15, s60, 9")
        a("s_add_u32 s9, s9, s15")
        a("s_lshl_b32 s15, s3, 7")
        a("s_add_u32 s9, s9, s15")
        a("s_add_u32 s9, s9, 2048")
        a("s_mov_b32 m0, s63")
        a("s_add_u32 s15, s63, 8192")
        a.label(L)
        a(f"buffer_load_dwordx4 v{v}, s[{srd}:{srd+3}], s9 offen {wf} lds")
        a("s_add_u32 m0, m0, 1024")
        a(f"s_add_u32 s9, s9, {8*6144}")
        a("s_cmp_lt_u32 m0, s15")
        a(f"s_cbranch_scc1 {L}")
    def mr_compute(self, sc, younger):
        a = self.a
        self.traddr128(8, "s63", 5, 6)
        a("v_and_b32 v5, 1, v0")
        a("v_and_b32 v6, 48, v0")
        a("v_mul_u32_u24 v7, 144, v5")
        a("v_add_u32 v7, v7, v6")
        a(f"v_add_u32 v7, {sc}, v7")
        a("v_lshlrev_b32 v5, 4, v5")
        a("v_lshl_add_u32 v5, v6, 1, v5")
        for ks in range(2): a(f"ds_read_b128 v[{32+4*ks}:{35+4*ks}], v7 offset:{64*ks}")
        a("s_lshl_b32 s9, s60, 14")
        a("s_lshl_b32 s15, s3, 12")
        a("s_add_u32 s9, s9, s15")
        a("s_lshl_b32 s15, s61, 7")
        a("s_add_u32 s9, s9, s15")
        a(f"s_add_u32 s9, s9, {HP}")
        a(f"s_waitcnt vmcnt({younger})")
        a("s_setprio 3")
        for ks in range(2):
            for t in range(4): self.tr(64 + 16 * ks + 4 * t, 8 + t, 4096 * ks, 2048)
        a("s_waitcnt lgkmcnt(0)")
        for ks in range(2):
            for t in range(4): self.mfma(40 + 4 * t, 64 + 16 * ks + 4 * t, 32 + 4 * ks, ks == 0)
        self.exec16(3)
        for t in range(4):
            a(f"v_cvt_pk_bf16_f32 v{40+4*t}, v{40+4*t}, v{41+4*t}")
            a(f"v_cvt_pk_bf16_f32 v{41+4*t}, v{42+4*t}, v{43+4*t}")
            a(f"v_mov_b32 v{42+4*t}, s14")
        for t in range(4): a(f"buffer_store_dwordx4 v[{40+4*t}:{43+4*t}], v5, s[40:43], s9 offen offset:{1024*t} sc1")
        a("s_mov_b64 exec, -1")
        a("s_setprio 0")
        self.stamp(11)
    def rdy_publish(self, vb, jreg):
        a = self.a
        for i in range(4): a(f"v_mov_b32 v{vb+i}, s14")
        a(f"v_mov_b32 v{vb+4}, 0")
        a(f"s_lshl_b32 s15, {jreg}, 4")
        a(f"s_add_u32 s15, s15, {RDY}")
        a("s_mov_b64 exec, 1")
        a(f"buffer_store_dwordx4 v[{vb}:{vb+3}], v{vb+4}, s[40:43], s15 offen sc1")
        a("s_mov_b64 exec, -1")
    def rdy_load(self):
        self.a("buffer_load_dword v237, v229, s[40:43], s27 offen sc1")
    def rdy_check(self):
        a = self.a
        L = self.lab("Lok")
        a("v_cmp_ne_u32 vcc, s14, v237")
        a(f"s_cbranch_vccz {L}")
        self.poll(["buffer_load_dword v237, v229, s[40:43], s27 offen sc1"], [(*self.TAGBAD, 237)], sleep=2)
        a.label(L)

    def g_index(self):
        a = self.a
        a("s_mul_i32 s26, s4, 7")
        a("s_add_u32 s26, s26, s5")
        a("s_cmp_eq_u32 s5, 7")

    def tw_main(self):
        a = self.a
        self.stamp(1)
        a("v_lshlrev_b32 v22, 2, v8")
        a("v_lshrrev_b32 v23, 5, v0")
        a("v_lshl_add_u32 v22, v23, 1, v22")
        a("v_and_b32 v23, 16, v0")
        a("v_lshl_add_u32 v22, v23, 3, v22")
        a("s_mul_i32 s13, s3, 272")
        a(f"s_add_u32 s13, s13, {QB}")
        a("v_add_u32 v22, s13, v22")
        a("v_xor_b32 v3, v8, v1")
        a("v_lshlrev_b32 v3, 4, v3")
        a("v_lshl_add_u32 v3, v8, 8, v3")
        a("v_add_u32 v8, s7, v3")
        a("v_xor_b32 v9, 64, v8")
        a("v_xor_b32 v10, 0x80, v8")
        a("v_xor_b32 v11, 0xc0, v8")
        for t in range(4):
            for ks in range(4):
                r = 64 + 16 * t + 4 * ks
                a(f"ds_read_b128 v[{r}:{r+3}], v{8+ks} offset:{4096*t}")
        a("s_lshl_b32 s8, s3, 6")
        self.traddr256(12, 2, VB, 3, 5, first="s8")
        a("v_mul_u32_u24 v20, 272, v5")
        a("v_lshl_add_u32 v20, v1, 4, v20")
        a(f"v_add_u32 v20, {QB}, v20")
        a("v_lshlrev_b32 v14, 6, v5")
        a("v_lshl_add_u32 v14, v1, 4, v14")
        a(f"v_add_u32 v14, {PB}, v14")
        a("s_lshl_b32 s9, s3, 9")
        a("v_add_u32 v15, s9, v14")
        a("v_lshlrev_b32 v16, 4, v5")
        a(f"v_add_u32 v16, {MX}, v16")
        a("s_lshl_b32 s9, s3, 2")
        a("v_add_u32 v17, s9, v16")
        a("v_lshlrev_b32 v18, 8, v5")
        a("v_lshl_add_u32 v18, v1, 4, v18")
        a("v_lshlrev_b32 v19, 3, v5")
        a("s_lshl_b32 s6, s4, 4")
        a("s_add_u32 s6, s6, s5")
        a("s_lshl_b32 s9, s6, 10")
        a("s_add_u32 s8, s8, s9")
        a(f"s_add_u32 s8, s8, {HC}")
        a("s_lshl_b32 s52, s6, 7")
        a(f"s_add_u32 s52, s52, {HL}")
        a(f"s_add_u32 s53, s8, {LOC}")
        a(f"s_add_u32 s54, s52, {LOC}")
        a(f"s_mov_b32 s10, {f32(CSC)}")
        a("s_lshl_b64 s[58:59], 1, s3")
        for i in range(4): a(f"v_mov_b32 v{224+i}, 0x3f803f80")
        a("v_bfe_u32 v3, v0, 2, 2")
        a("v_lshl_add_u32 v14, v3, 9, v14")
        a("v_lshl_add_u32 v234, v3, 2, v16")
        a("v_lshrrev_b32 v4, 1, v3")
        a("v_lshl_add_u32 v15, v4, 8, v15")
        a("v_and_b32 v4, 1, v3")
        a("v_lshl_add_u32 v15, v4, 3, v15")
        def vr(k):
            for t in range(2): self.tr(128 + 8 * k + 4 * t, 12 + t, 8192 * k, 4096)
        def xrow(op, r):
            a(f"v_mov_b32 v233, v{r}")
            a(f"v_permlane16_swap_b32 v{r}, v233")
            a(f"{op} v{r}, v{r}, v233")
            a(f"v_mov_b32 v233, v{r}")
            a(f"v_permlane32_swap_b32 v{r}, v233")
            a(f"{op} v{r}, v{r}, v233")
        a(f"s_mov_b32 s12, {SPIN}")
        a("s_barrier")
        for k in (0, 2, 4, 6): vr(k)
        a("s_branch LTq1")
        a.label("LTq0")
        if self.o.get("qsleep", 0): a(f"s_sleep {self.o['qsleep']}")
        self.qfetch()
        a.label("LTq1")
        a("s_waitcnt vmcnt(1)")
        self.unpack(192, 24, 4)
        a("s_waitcnt vmcnt(0)")
        self.unpack(196, 32, 4)
        for k in range(4): a(f"v_pk_add_f32 v[{24+2*k}:{25+2*k}], v[{24+2*k}:{25+2*k}], v[{32+2*k}:{33+2*k}]")
        for i in range(4): a(f"v_permlane32_swap_b32 v{24+i}, v{28+i}")
        for k in range(2): a(f"v_pk_add_f32 v[{24+2*k}:{25+2*k}], v[{24+2*k}:{25+2*k}], v[{28+2*k}:{29+2*k}]")
        for i in range(2): a(f"v_permlane16_swap_b32 v{24+i}, v{26+i}")
        a("v_pk_add_f32 v[24:25], v[24:25], v[26:27]")
        a("v_cmp_u_f32 vcc, v24, v25")
        a("v_cvt_pk_bf16_f32 v24, v24, v25")
        a("s_cbranch_vccz LTq2")
        a("s_sub_u32 s12, s12, 1")
        a("s_cbranch_scc0 LTq0")
        a.label("LTq2")
        self.stamp(2)
        a("ds_write_b16 v22, v24")
        a("ds_write_b16_d16_hi v22, v24 offset:64")
        a("s_waitcnt lgkmcnt(0)")
        a("s_barrier")
        pe = self.o.get("pe", 1)
        if pe: a("buffer_load_dword v238, v236, s[92:95], s61 offen")
        if pe == 2: a("buffer_load_dword v237, v236, s[92:95], s60 offen")
        for ks in range(4): a(f"ds_read_b128 v[{208+4*ks}:{211+4*ks}], v20 offset:{64*ks}")
        self.stamp(3)
        def keep(t):
            for i in range(4): a(f"v_mov_b32_dpp v{40+i}, v{40+4*t+i} quad_perm:[0,1,2,3] row_mask:0xf bank_mask:{1<<t:#x}")
        for ks in range(4):
            a(f"s_waitcnt lgkmcnt({3-ks})")
            for t in range(2): self.mfma(40 + 4 * t, 64 + 16 * t + 4 * ks, 208 + 4 * ks, ks == 0)
        for ks in range(4):
            for t in range(2, 4): self.mfma(40 + 4 * t, 64 + 16 * t + 4 * ks, 208 + 4 * ks, ks == 0)
            if ks < 3: vr(1 + 2 * ks)
            if ks == 2: keep(1)
        vr(7)
        keep(2); keep(3)
        a("v_max3_f32 v232, v40, v41, v42")
        a("v_max_f32 v232, v232, v43")
        for m in ("row_ror:4", "row_ror:8"): a(f"v_max_f32_dpp v232, v232, v232 {m} row_mask:0xf bank_mask:0xf")
        xrow("v_max_f32", 232)
        a(f"v_mul_f32 v230, {f32(-CSC)}, v232")
        for i in range(4): a(f"v_fma_f32 v{40+i}, v{40+i}, s10, v230")
        a("ds_write_b32 v17, v230")
        for i in range(4): a(f"v_exp_f32 v{40+i}, v{40+i}")
        for i in range(2): a(f"v_cvt_pk_bf16_f32 v{44+i}, v{40+2*i}, v{41+2*i}")
        a("ds_write_b64 v15, v[44:45]")
        if self.o.get("tpad", 0):
            a("s_branch LTsk")
            a.label("LTHq")
            a("s_branch LTH")
            a.label("LTsk")
        a("s_waitcnt lgkmcnt(0)")
        a("s_barrier")
        self.stamp(4)
        a("; unpk on")
        for i in range(2): a(f"ds_read_b128 v[{64+4*i}:{67+4*i}], v14 offset:{256*i}")
        a("ds_read_b32 v24, v234")
        def pv(k):
            for t in range(2): self.mfma(192 + 8 * (k >> 1) + 4 * t, 128 + 8 * k + 4 * t, 64 + 4 * (k & 1), (k & 1) == 0)
        XG = ("row_ror:4", "row_ror:8")
        a("s_waitcnt lgkmcnt(1)")
        self.mfma(96, 224, 64, True)
        self.mfma(96, 224, 68, False)
        pv(0)
        a("s_waitcnt lgkmcnt(0)")
        a(f"v_min_f32_dpp v32, v24, v24 {XG[0]} row_mask:0xf bank_mask:0xf")
        pv(1)
        a(f"v_min_f32_dpp v32, v32, v32 {XG[1]} row_mask:0xf bank_mask:0xf")
        a("v_sub_f32 v24, v32, v24")
        a("v_exp_f32 v24, v24")
        pv(2)
        def pick(sw, lo=0, hi=8):
            for i in range(lo, hi): a(f"v_fmac_f32_dpp v{192+i}, v{192+8*sw+i}, v{24+sw} row_shl:{4*sw} row_mask:0xf bank_mask:0xf")
        a("v_mul_f32 v33, v24, v96")
        for sw in range(1, 4): a(f"v_mov_b32_dpp v{24+sw}, v24 row_shl:{4*sw} row_mask:0xf bank_mask:0xf")
        pv(3)
        a(f"v_add_f32_dpp v33, v33, v33 {XG[0]} row_mask:0xf bank_mask:0xf")
        for i in range(4): a(f"v_pk_mul_f32 v[{192+2*i}:{193+2*i}], v[{192+2*i}:{193+2*i}], v[24:25] op_sel_hi:[1,0]")
        pv(4)
        a(f"v_add_f32_dpp v33, v33, v33 {XG[1]} row_mask:0xf bank_mask:0xf")
        a("s_mov_b64 exec, s[58:59]")
        a("buffer_store_dwordx2 v[32:33], v19, s[40:43], s54 offen")
        a("s_mov_b64 exec, -1")
        pv(5)
        pick(1, 0, 4)
        pv(6)
        pick(1, 4, 8)
        pv(7)
        pick(2)
        pick(3)
        self.exec16(15)
        for i in range(4): a(f"v_cvt_pk_bf16_f32 v{200+i}, v{192+2*i}, v{193+2*i}")
        a("; unpk off")
        a("buffer_store_dwordx4 v[200:203], v18, s[40:43], s53 offen")
        self.stamp(5)
        a("s_mov_b64 exec, -1")
        a("s_barrier")
        if pe != 2: a("buffer_load_dword v237, v236, s[92:95], s60 offen")
        if not pe: a("buffer_load_dword v238, v236, s[92:95], s61 offen")
        self.exec16(15)
        a("buffer_store_dwordx4 v[200:203], v18, s[40:43], s8 offen sc1")
        a("s_mov_b64 exec, s[58:59]")
        a("buffer_store_dwordx2 v[32:33], v19, s[40:43], s52 offen sc1")
        a("s_mov_b64 exec, -1")
        a("s_cmp_eq_u32 s3, 1")
        a("s_cbranch_scc0 LTWe")
        self.final = True
        if self.o.get("nored"): self.end()
        a("s_cmp_lt_u32 s5, 4")
        a("s_cbranch_scc0 LTWe")
        a("s_lshl_b32 s6, s4, 2")
        a("s_add_u32 s6, s6, s5")
        self.srd(44, 16, 2048)
        self.srd(48, 38, 2048)
        a("v_bfe_u32 v2, v0, 2, 1")
        a("v_and_b32 v3, 3, v0")
        a("v_lshlrev_b32 v4, 3, v3")
        a("v_lshl_add_u32 v5, v2, 10, v4")
        a("v_lshlrev_b32 v6, 1, v5")
        a("v_lshrrev_b32 v8, 3, v0")
        a("v_lshl_add_u32 v7, v8, 12, v6")
        a("v_lshlrev_b32 v9, 4, v0")
        a("s_lshl_b32 s7, s6, 5")
        a("s_lshl_b32 s8, s6, 6")
        a(f"s_add_u32 s9, s8, {HD}")
        a(f"s_add_u32 s52, s8, {HM}")
        a(f"s_add_u32 s53, s8, {HM+3*4096}")
        a(f"s_mul_i32 s54, s6, {HFS}")
        a(f"s_add_u32 s54, s54, {HF}")
        a("s_add_u32 s55, s54, 4096")
        a("buffer_load_dwordx2 v[10:11], v5, s[44:47], s7 offen")
        a(f"s_mov_b32 s27, {RDY}")
        self.poll([f"buffer_load_dword v{40+i}, v9, s[40:43], s27 offen offset:{1024*i} sc1" for i in range(4)]
                  + ["buffer_load_dwordx4 v[12:15], v6, s[40:43], s52 offen sc1", "buffer_load_dwordx4 v[16:19], v6, s[40:43], s53 offen sc1"],
                  [(*self.TAGBAD, 40 + i) for i in range(4)] + [(*self.TAGBAD, 14), (*self.TAGBAD, 18)], sleep=2)
        self.poll(["buffer_load_dwordx4 v[24:27], v7, s[40:43], s9 offen sc1"], [(*self.POISON, 24)], sleep=2)
        self.stamp(6)
        a("s_cmp_eq_u32 s6, 0")
        a("s_cbranch_scc0 LTWn")
        a("s_mov_b64 exec, 1")
        a("v_mov_b32 v20, s14")
        a("v_mov_b32 v21, 0")
        a(f"buffer_store_dword v20, v21, s[40:43], 0 offen offset:{EPOCH} sc1")
        a("s_mov_b64 exec, -1")
        a.label("LTWn")
        red8 = self.red8
        red8(24)
        self.unpack(10, 28, 2)
        self.unpack(12, 32, 2)
        self.unpack(16, 36, 2)
        for i in range(4): a(f"v_fmac_f32 v{28+i}, v{24+i}, v{32+i}")
        if self.o.get("fsleep"): a(f"s_sleep {self.o['fsleep']}")
        self.sum_poll([f"buffer_load_dwordx4 v[{64+4*i}:{67+4*i}], v9, s[40:43], s{54+(i>>2)} offen offset:{1024*(i&3)} sc1" for i in range(7)], 64, 56)
        self.stamp(7)
        red8(56)
        for i in range(4): a(f"v_fmac_f32 v{28+i}, v{56+i}, v{36+i}")
        a("v_cvt_pk_bf16_f32 v10, v28, v29")
        a("v_cvt_pk_bf16_f32 v11, v30, v31")
        a("s_mov_b64 exec, 0xff")
        a("buffer_store_dwordx2 v[10:11], v5, s[48:51], s7 offen " + ["", "sc1", "nt", "sc0 sc1"][self.o.get("oflag", 0)])
        self.stamp(8)
        if self.o.get("padto"):
            a("s_cmp_eq_u32 s6, 0")
            a("s_cbranch_scc0 LTWe")
        if self.o.get("padto"):
            a(f"s_mov_b32 s100, {self.o['padto']}")
            if self.o.get("amp"):
                a("s_waitcnt lgkmcnt(0)")
                a(f"s_sub_u32 s98, s{64+2*self.o['amp']}, s96")
                a("s_mul_i32 s98, s98, 10")
                a("s_add_u32 s100, s100, s98")
            a.label("Lpad")
            a("s_memrealtime s[98:99]")
            a("s_waitcnt lgkmcnt(0)")
            a("s_sub_u32 s98, s98, s96")
            a("s_cmp_lt_u32 s98, s100")
            a("s_cbranch_scc1 Lpad")
        a.label("LTWe")
        self.end()

    def ww_main(self):
        a, wf = self.a, self.wf
        a.label("LWHp")
        a("s_branch LWH2")
        a.label("LW2")
        mre = self.o.get("mre", 0)
        self.voff128(12, 6144, 3, 4)
        a("s_mov_b64 s[44:45], s[36:37]")
        a(f"s_mov_b32 s46, {512*6144}")
        a("s_mov_b32 s60, s4")
        a("s_mov_b32 s61, s52")
        a(f"s_add_u32 s63, s7, {WO+8192}")
        if mre: self.mr_issue(12, 44)
        self.stamp(1)
        a("v_mov_b32 v17, v12")
        self.traddr256(8, 8, "s7", 3, 5)
        a("s_lshr_b32 s58, s7, 2")
        a(f"s_add_u32 s58, s58, {GA}")
        a("v_bfe_u32 v3, v0, 2, 1")
        a("v_mul_u32_u24 v16, 144, v3")
        a("v_lshl_add_u32 v16, v1, 4, v16")
        a(f"v_add_u32 v16, {HW}, v16")
        a("v_lshlrev_b32 v18, 4, v0")
        a(f"v_add_u32 v18, {RED}, v18")
        a("v_and_b32 v19, 15, v0")
        a("v_lshlrev_b32 v19, 3, v19")
        a("v_lshrrev_b32 v3, 5, v0")
        a("v_lshl_add_u32 v19, v3, 7, v19")
        a("v_and_b32 v3, 16, v0")
        a("v_lshl_add_u32 v19, v3, 9, v19")
        a("s_lshl_b32 s55, s52, 14")
        a("s_lshl_b32 s15, s3, 11")
        a("s_add_u32 s55, s55, s15")
        a("s_lshl_b32 s15, s4, 8")
        a("s_add_u32 s55, s55, s15")
        a(f"s_add_u32 s55, s55, {HB}")
        a("s_lshl_b32 s52, s52, 9")
        self.wo_setup()
        vpf = self.o.get("vpf", 1)
        if vpf:
            self.srd(92, 20, 0x2000000)
            a("s_lshl_b32 s8, s61, 2")
            a("s_add_u32 s8, s8, s3")
            a("s_lshr_b32 s9, s8, 4")
            a("s_lshl_b32 s9, s9, 3")
            a("s_add_u32 s9, s9, s4")
            a("s_lshl_b32 s9, s9, 21")
            a("s_and_b32 s8, s8, 15")
            a("s_lshl_b32 s8, s8, 15")
            a("s_add_u32 s8, s8, s9")
            a(f"s_add_u32 s8, s8, {6144*256 + 12288}")
            a("v_lshrrev_b32 v20, 5, v0")
            a("v_and_b32 v4, 31, v0")
            a("v_lshlrev_b32 v4, 7, v4")
            a("v_lshl_add_u32 v20, v20, 14, v4")
        a(f"s_waitcnt vmcnt({8+8*mre}) lgkmcnt(0)")
        self.tag()
        for t in range(8): self.tr(64 + 4 * t, 8 + t, 0, 4096)
        a(f"s_waitcnt vmcnt({8*mre})")
        self.stamp(2)
        for t in range(8): self.tr(96 + 4 * t, 8 + t, 8192, 4096)
        a("s_barrier")
        for ks in range(2): a(f"ds_read_b128 v[{24+4*ks}:{27+4*ks}], v16 offset:{64*ks}")
        self.stamp(3)
        a("s_waitcnt lgkmcnt(0)")
        for ks in range(2):
            for t in range(8): self.mfma(128 + 4 * t, 24 + 4 * ks, 64 + 32 * ks + 4 * t, ks == 0)
        for k in range(4): a(f"v_permlane32_swap_b32 v{128+8*k}, v{132+8*k}")
        def red4(stride):
            for w in range(4): a(f"ds_read_b128 v[{24+4*w}:{27+4*w}], v18 offset:{stride*w}")
            a("s_waitcnt lgkmcnt(2)")
            for k in range(2): a(f"v_pk_add_f32 v[{24+2*k}:{25+2*k}], v[{24+2*k}:{25+2*k}], v[{28+2*k}:{29+2*k}]")
            a("s_waitcnt lgkmcnt(0)")
            for k in range(2): a(f"v_pk_add_f32 v[{32+2*k}:{33+2*k}], v[{32+2*k}:{33+2*k}], v[{36+2*k}:{37+2*k}]")
            for k in range(2): a(f"v_pk_add_f32 v[{24+2*k}:{25+2*k}], v[{24+2*k}:{25+2*k}], v[{32+2*k}:{33+2*k}]")
        a("v_cvt_pk_bf16_f32 v56, v128, v136")
        a("v_cvt_pk_bf16_f32 v57, v144, v152")
        a("buffer_store_dwordx2 v[56:57], v19, s[40:43], s55 offen sc1")
        self.stamp(4)
        if self.o.get("owait", 0): a("s_waitcnt vmcnt(0)")
        a("s_barrier")
        if vpf:
            vm = self.o.get("vmask", 16)
            if vm:
                a(f"s_mov_b32 exec_lo, {(0xffffffff << vm) & 0xffffffff:#x}")
                a(f"s_mov_b32 exec_hi, {(0xffffffff << vm) & 0xffffffff:#x}")
            a("buffer_load_dword v236, v20, s[92:95], s8 offen")
            a("s_mov_b64 exec, -1")
        def wo(n):
            L = self.lab("LWd")
            a("s_mov_b32 m0, s62")
            a(f"s_add_u32 s62, s62, {1024*n}" if n else "s_mov_b32 s62, s59")
            a.label(L)
            a(f"buffer_load_dwordx4 v2, s[48:51], s53 offen {wf} lds")
            a("s_add_u32 m0, m0, 1024")
            a("s_add_u32 s53, s53, 8192")
            a("s_cmp_lt_u32 m0, s62")
            a(f"s_cbranch_scc1 {L}")
        a("s_cmp_eq_u32 s61, 3")
        a("s_cbranch_scc1 LM")
        ms = self.o.get("msplit", 0)
        if ms:
            if ms < 4:
                a(f"s_cmp_ge_u32 s3, {ms}")
                a("s_cbranch_scc1 LWm")
            if not mre: self.mr_issue(17, 44)
            oe = self.o.get("oearly", 8)
            if oe: wo(oe)
            self.mr_compute(SCW, oe)
        self.delay("odel")
        a.label("LWm")
        wo(0)
        a("v_and_b32 v3, 15, v0")
        a("v_lshlrev_b32 v13, 7, v3")
        a("s_lshl_b32 s9, s4, 14")
        a(f"s_add_u32 s9, s9, {HC}")
        a("s_lshl_b32 s8, s4, 11")
        a(f"s_add_u32 s8, s8, {HL}")
        self.stamp(5)
        a("v_lshlrev_b32 v229, 4, v0")
        a("s_mul_i32 s13, s4, 240")
        a("s_sub_u32 s13, 2432, s13")
        a("v_mov_b32 v4, s13")
        a("v_cmp_gt_u32 vcc, 16, v0")
        a("v_cndmask_b32 v229, v4, v229, vcc")
        a("s_lshl_b32 s27, s4, 8")
        a(f"s_add_u32 s27, s27, {RDY}")
        self.rdy_load()
        wpf = self.o.get("wpf", 0)
        if wpf:
            a("s_mov_b64 s[44:45], s[30:31]")
            a(f"s_mov_b32 s46, {512*3584}")
            a("s_lshr_b32 s13, s52, 7")
            a("s_add_u32 s13, s13, s3")
            a(f"s_mul_i32 s13, s13, {16*3584}")
            a("s_mul_i32 s15, s4, 448")
            a("s_add_u32 s13, s13, s15")
            a("v_lshrrev_b32 v4, 2, v0")
            a("v_mul_u32_u24 v4, 3584, v4")
            a("v_and_b32 v5, 3, v0")
            a("v_lshl_add_u32 v4, v5, 7, v4")
            a("buffer_load_dword v238, v4, s[44:47], s13 offen")
        a("s_lshl_b32 s15, s3, 8")
        a("s_add_u32 s9, s9, s15")
        a("s_lshl_b32 s15, s3, 3")
        a("s_add_u32 s8, s8, s15")
        a(f"s_add_u32 s15, s7, {WO}")
        self.traddr128(8, "s15", 3, 4)
        a("v_and_b32 v3, 15, v0")
        a("v_xor_b32 v12, v3, v1")
        a("v_lshlrev_b32 v12, 4, v12")
        a("v_lshl_add_u32 v4, v1, 10, v12")
        for i in range(1, 4):
            a(f"v_xor_b32 v{4+i}, {64*i}, v4")
            a(f"v_add_u32 v{4+i}, {3072*i}, v{4+i}")
        a("v_lshl_add_u32 v20, v3, 8, v12")
        a("v_add_u32 v20, s58, v20")
        for i in range(1, 4): a(f"v_xor_b32 v{20+i}, {64*i}, v20")
        a("v_lshlrev_b32 v14, 4, v1")
        a("v_lshrrev_b32 v12, 5, v0")
        a("v_lshlrev_b32 v15, 8, v12")
        a("v_and_b32 v12, 31, v0")
        a("v_lshl_add_u32 v15, v12, 2, v15")
        a("s_lshl_b32 s15, s3, 9")
        a(f"s_add_u32 s15, s15, {RED}")
        a("v_add_u32 v15, s15, v15")
        a("v_lshlrev_b32 v17, 4, v3")
        a("v_lshl_add_u32 v17, v1, 11, v17")
        a("s_lshl_b32 s55, s4, 12")
        a("s_lshr_b32 s15, s52, 1")
        a("s_add_u32 s55, s55, s15")
        a(f"s_add_u32 s55, s55, {HD}")
        a("s_mov_b32 m0, s58")
        a("v_mov_b32 v128, 0")
        a(f"s_waitcnt vmcnt({wpf})")
        self.stamp(6)
        self.rdy_check()
        def sissue():
            a("s_mov_b64 exec, 0xffff")
            a("buffer_load_dwordx2 v[128:129], v13, s[40:43], s8 offen sc1")
            a("s_mov_b64 exec, -1")
        def cissue():
            for i in range(4): a(f"buffer_load_dwordx4 v{4+i}, s[40:43], s9 offen offset:{1024*i} sc1 lds")
        def smid():
            cissue()
            for ks in range(4):
                for t in range(4): self.tr(64 + 16 * ks + 4 * t, 8 + t, 4096 * ks, 2048)
            self.stamp(9)
            a("s_waitcnt vmcnt(4)")
            a("v_cmp_eq_u32 vcc, -1, v128")
            a("s_cbranch_vccz LWc")
        def sbody():
            a("s_waitcnt vmcnt(0)")
            a("v_cmp_eq_u32 s[10:11], -1, v128")
        self.spin(sbody, alt=([8, 9], LOC, self.o.get("every", 32)), issue=sissue, mid=smid)
        D8 = ("quad_perm:[1,0,3,2]", "quad_perm:[2,3,0,1]", "row_half_mirror")
        def cmid():
            a.label("LWc")
            for i, m in enumerate(D8): a(f"v_min_f32_dpp v134, v{134 if i else 128}, v{134 if i else 128} {m} row_mask:0xf bank_mask:0xf")
            a("v_sub_f32 v134, v134, v128")
            a("v_exp_f32 v134, v134")
            a("v_mul_f32 v135, v134, v129")
            for m in D8: a(f"v_add_f32_dpp v135, v135, v135 {m} row_mask:0xf bank_mask:0xf")
            a("v_rcp_f32 v135, v135")
            a("v_mul_f32 v134, v134, v135")
            for r in range(4): a(f"ds_bpermute_b32 v{130+r}, v14, v134 offset:{4*r}")
        def cbody():
            a("s_waitcnt vmcnt(0)")
            for ks in range(4): a(f"ds_read_b128 v[{24+4*ks}:{27+4*ks}], v{20+ks}")
            a("s_waitcnt lgkmcnt(0)")
            a("v_max3_u32 v136, v24, v28, v32")
            a("v_max_u32 v136, v136, v36")
            a("v_cmp_eq_u32 s[10:11], -1, v136")
        self.spin(cbody, issue=cissue, mid=cmid)
        self.stamp(7)
        def fin(k, step):
            ts = (2 * k, 2 * k + 1)
            if step == 0:
                for t in ts: a(f"v_pk_mul_f32 v[{40+4*t}:{41+4*t}], v[{40+4*t}:{41+4*t}], v[130:131]")
                for t in ts: a(f"v_pk_fma_f32 v[{40+4*t}:{41+4*t}], v[{42+4*t}:{43+4*t}], v[132:133], v[{40+4*t}:{41+4*t}]")
                for t in ts: a(f"v_add_f32 v{40+4*t}, v{40+4*t}, v{41+4*t}")
            else:
                a(f"v_permlane16_swap_b32 v{40+8*k}, v{44+8*k}")
                a(f"v_add_f32 v{40+8*k}, v{40+8*k}, v{44+8*k}")
                a(f"ds_write_b32 v15, v{40+8*k} offset:{128*k}")
        for k in range(2):
            for ks in range(4):
                for t in (2 * k, 2 * k + 1): self.mfma(40 + 4 * t, 24 + 4 * ks, 64 + 16 * ks + 4 * t, ks == 0)
        fin(0, 0); fin(0, 1); fin(1, 0); fin(1, 1)
        a("s_waitcnt lgkmcnt(0)")
        a("s_barrier")
        a("s_cmp_eq_u32 s3, 0")
        a("s_cbranch_scc0 LWe")
        a("s_mov_b32 exec_hi, 0")
        red4(512)
        a("buffer_store_dwordx4 v[24:27], v17, s[40:43], s55 offen sc1")
        self.stamp(8)
        a.label("LWe")
        self.end()

    def g_role(self):
        a, wf = self.a, self.wf
        self.mute = True
        ms = self.o.get("msplit", 0)
        a("s_lshr_b32 s63, s7, 1")
        a(f"s_add_u32 s63, s63, {MRG}")
        def gvp():
            self.srd(92, 20, 0x2000000)
            a("s_lshl_b32 s8, s5, 2")
            a("s_add_u32 s8, s8, s3")
            a("s_lshr_b32 s9, s8, 4")
            a("s_lshl_b32 s9, s9, 3")
            a("s_add_u32 s9, s9, s4")
            a("s_lshl_b32 s9, s9, 21")
            a("s_and_b32 s8, s8, 15")
            a("s_lshl_b32 s8, s8, 15")
            a("s_add_u32 s8, s8, s9")
            a(f"s_add_u32 s8, s8, {6144*256 + 12288}")
            a("v_lshrrev_b32 v3, 5, v0")
            a("v_and_b32 v4, 31, v0")
            a("v_lshlrev_b32 v4, 7, v4")
            a("v_lshl_add_u32 v3, v3, 14, v4")
            m = (1 << self.o.get("gvp", 16)) - 1
            a(f"s_mov_b32 exec_lo, {m:#x}")
            a(f"s_mov_b32 exec_hi, {m:#x}")
            a("buffer_load_dword v236, v3, s[92:95], s8 offen")
            a("s_mov_b64 exec, -1")
            if self.o.get("gv2", 16):
                m = (0xffffffff << (32 - self.o.get("gv2", 16))) & 0xffffffff
                a("s_sub_u32 s8, s8, 4096")
                a(f"s_mov_b32 exec_lo, {m:#x}")
                a(f"s_mov_b32 exec_hi, {m:#x}")
                a("buffer_load_dword v237, v3, s[92:95], s8 offen")
                a("s_mov_b64 exec, -1")
        if self.o.get("gall", 0): gvp()
        self.g_index()
        a("s_cbranch_scc1 LO3")
        if ms < 4:
            a(f"s_cmp_lt_u32 s3, {ms}")
            a("s_cbranch_scc1 LGn")
            self.mr_issue(2, 52)
            a.label("LGn")
        if not self.o.get("gall", 0): gvp()
        a(f"s_add_u32 s7, s7, {GU}")
        a("s_mov_b32 s53, s26")
        for i in range(4): a(f"v_mov_b32 v{32+i}, -1")
        a("v_lshrrev_b32 v3, 3, v0")
        a(f"v_mul_u32_u24 v3, {HFS}, v3")
        a("v_and_b32 v4, 7, v0")
        a("v_lshl_add_u32 v3, v4, 4, v3")
        a(f"s_mul_i32 s26, s3, {8*HFS}")
        a("s_lshl_b32 s15, s53, 7")
        a("s_add_u32 s26, s26, s15")
        a(f"s_add_u32 s26, s26, {HF}")
        a("buffer_store_dwordx4 v[32:35], v3, s[40:43], s26 offen sc1")
        a(f"s_and_b32 s52, s53, {self.o.get(chr(114)+chr(111)+chr(116), 0)}")
        a("s_cmp_eq_u32 s52, 0")
        a("s_cselect_b64 s[44:45], s[28:29], s[30:31]")
        a("s_cselect_b64 s[48:49], s[30:31], s[28:29]")
        a(f"s_mov_b32 s46, {512*3584}")
        a(f"s_mov_b32 s50, {512*3584}")
        a("s_lshl_b32 s52, s52, 13")
        a("v_lshrrev_b32 v1, 2, v0")
        a("v_bfe_u32 v2, v0, 4, 1")
        a("v_lshlrev_b32 v2, 1, v2")
        a("v_and_b32 v3, 3, v0")
        a("v_xor_b32 v2, v2, v3")
        a("v_mul_u32_u24 v4, 3584, v1")
        a("v_lshl_add_u32 v2, v2, 4, v4")
        a(f"s_mul_i32 s8, s3, {128*3584}")
        a("s_lshl_b32 s15, s53, 6")
        a("s_add_u32 s8, s8, s15")
        def mat(m, lo=0, hi=8):
            L = self.lab("LGx")
            if lo == 0:
                a("s_add_u32 s58, s7, s52")
                a("s_mov_b32 s59, s8")
            a("s_mov_b32 m0, s58")
            a(f"s_add_u32 s58, s58, {1024*(hi-lo)}")
            a.label(L)
            gf = ["nt", "", "sc1", "sc0"][self.o.get("gflag%d" % m, 1)]
            a(f"buffer_load_dwordx4 v2, s[{44+4*m}:{47+4*m}], s59 offen {gf} lds")
            a("s_add_u32 m0, m0, 1024")
            a(f"s_add_u32 s59, s59, {16*3584}")
            if self.o.get("gcap", 0) and (lo or m): a(f"s_waitcnt vmcnt({self.o['gcap']})")
            a("s_cmp_lt_u32 m0, s58")
            a(f"s_cbranch_scc1 {L}")
            if hi == 8: a("s_xor_b32 s52, s52, 8192")
        pw = self.o.get("pwait", 1)
        if not pw:
            self.stamp(5)
            mat(0)
        a(f"s_waitcnt vmcnt({0 if pw else 8})")
        a("s_barrier")
        if ms < 4:
            a(f"s_cmp_lt_u32 s3, {ms}")
            a("s_cbranch_scc1 LGo")
            self.mr_compute(SC, 0 if pw else 8)
            a.label("LGo")
        a("s_cmp_eq_u32 s3, 0")
        a("s_cbranch_scc0 LGr")
        self.rdy_publish(8, "s2")
        if self.o.get("rwait", 1): a("s_waitcnt vmcnt(0)")
        a.label("LGr")
        if self.o.get("rwait", 1): a("s_barrier")
        if pw:
            self.delay("fdel")
            self.stamp(5)
            mat(0)
        mat(1)
        a("s_mov_b64 s[48:49], s[16:17]")
        a("s_mov_b32 s50, 2048")
        a("v_lshrrev_b32 v4, 5, v0")
        a("v_and_b32 v5, 31, v0")
        a("v_lshlrev_b32 v19, 3, v5")
        a("v_lshl_add_u32 v19, v4, 10, v19")
        a("s_lshl_b32 s15, s3, 8")
        a("buffer_load_dwordx2 v[24:25], v19, s[48:51], s15 offen")
        a("s_lshl_b32 s9, s53, 15")
        a("s_add_u32 s9, s9, s15")
        a("v_lshlrev_b32 v229, 4, v0")
        a(f"s_mov_b32 s27, {RDY+2048}")
        self.rdy_load()
        a("v_lshlrev_b32 v18, 1, v19")
        a("s_lshl_b32 s15, s3, 9")
        for k in range(3): a(f"s_add_u32 s{28+k}, s15, {HM+4096*k}")
        mloads = [f"buffer_load_dwordx4 v[{208+4*k}:{211+4*k}], v18, s[40:43], s{28+k} offen sc1" for k in range(3)]
        for l in mloads: a(l)
        for k in range(8): a(f"s_add_u32 s{16+k}, s15, {HD+4096*k}")
        self.voff256(6, 10, 8, 9)
        a("s_mov_b64 s[44:45], s[32:33]")
        a(f"s_mov_b32 s46, {1792*1024}")
        a("s_lshl_b32 s6, s3, 13")
        a(f"s_add_u32 s6, s6, {DWN}")
        a("s_mov_b32 m0, s6")
        a("s_add_u32 s13, s6, 8192")
        a.label("LGd2")
        for i in range(2):
            a(f"buffer_load_dwordx4 v{6+i}, s[44:47], s9 offen {wf} lds")
            a("s_add_u32 m0, m0, 1024")
            a("s_add_u32 s9, s9, 4096")
        a("s_cmp_lt_u32 m0, s13")
        a("s_cbranch_scc1 LGd2")
        a("v_bfe_u32 v8, v0, 4, 1")
        a("v_lshlrev_b32 v8, 5, v8")
        a("v_lshl_add_u32 v8, v1, 6, v8")
        a("v_lshl_add_u32 v8, v3, 3, v8")
        a("v_add_u32 v8, s7, v8")
        a("v_xor_b32 v9, 32, v8")
        self.traddr256(10, 8, "s6", 6, 7)
        a("v_mul_u32_u24 v20, 816, v4")
        a("v_lshrrev_b32 v6, 3, v5")
        a("v_lshl_add_u32 v20, v6, 6, v20")
        a("v_lshl_add_u32 v20, v3, 4, v20")
        a("v_bfe_u32 v6, v0, 2, 1")
        a("v_lshl_add_u32 v20, v6, 3, v20")
        a(f"s_add_u32 s15, s7, {AROW_O}")
        a("v_add_u32 v20, s15, v20")
        a("v_mul_u32_u24 v22, 816, v6")
        a("v_and_b32 v7, 48, v0")
        a("v_add3_u32 v22, v22, v7, s15")
        a("v_min_u32 v21, 2, v3")
        a("v_mul_u32_u24 v21, 272, v21")
        a("v_add_u32 v22, v22, v21")
        a("v_bfe_u32 v228, v0, 4, 1")
        a(f"v_mul_u32_u24 v228, {HFS}, v228")
        a("v_lshl_add_u32 v228, v4, 6, v228")
        a("v_and_b32 v227, 15, v0")
        a("v_lshl_add_u32 v228, v227, 2, v228")
        a("v_lshlrev_b32 v2, 3, v0")
        a("s_lshl_b32 s15, s3, 9")
        a("v_add_u32 v23, s15, v2")
        a("v_lshlrev_b32 v2, 8, v6")
        a("v_and_b32 v227, 8, v0")
        a("v_lshl_add_u32 v2, v227, 4, v2")
        a("v_lshl_add_u32 v2, v7, 1, v2")
        a("v_lshl_add_u32 v2, v3, 3, v2")
        a("s_lshl_b32 s15, s3, 2")
        a("v_add_u32 v226, s15, v7")
        a("v_and_b32 v231, 16, v0")
        a("v_lshlrev_b32 v231, 1, v231")
        a(f"v_mov_b32 v232, {f32(1e-5)}")
        self.guard(2100, fill=self.small_helpers)
        a("s_waitcnt vmcnt(8)")
        self.stamp(6)
        for m in range(2):
            for ks in range(4):
                for t in range(2): self.tr(64 + 32 * m + 8 * ks + 4 * t, 8 + t, 8192 * m + 2048 * ks, 1024)
        self.unpack(24, 28, 2)
        a("v_and_b32 v24, 32, v0")
        a(f"v_add_u32 v24, {LNS}, v24")
        a("ds_read_b128 v[32:35], v24")
        self.rdy_check()
        for k in range(3): a(f"v_xor_b32 v{211+4*k}, s14, v{210+4*k}")
        a("v_or3_b32 v211, v211, v215, v219")
        a("v_cmp_ne_u32 vcc, 0, v211")
        a("s_cbranch_vccz LGmo")
        self.poll(mloads, [(*self.TAGBAD, 210 + 4 * k) for k in range(3)], sleep=1)
        a.label("LGmo")
        self.stamp(4)
        def prepass():
            a("s_waitcnt lgkmcnt(0)")
            a("ds_write_b64 v20, v[212:213] offset:544")
            a("v_pk_add_f32 v[32:33], v[32:33], v[34:35]")
            a("v_add_f32 v32, v32, v33")
            for i in range(4): a(f"v_fmac_f32 v{28+i}, {f32(-1/512)}, v32")
            self.unpack(216, 196, 2)
            for i in range(4): a(f"v_add_f32 v{196+i}, 1.0, v{196+i}")
            a("v_cvt_pk_bf16_f32 v36, v196, v197")
            a("v_cvt_pk_bf16_f32 v37, v198, v199")
            a("ds_write_b64 v20, v[36:37] offset:272")
            self.unpack(208, 192, 2)
            self.unpack(36, 196, 2)
            for i in range(4): a(f"v_mul_f32 v{200+i}, v{28+i}, v{196+i}")
            for i in range(4): a(f"v_mul_f32 v{196+i}, v{192+i}, v{196+i}")
            a("s_waitcnt vmcnt(8)")
            for dt in range(8): self.tr(128 + 4 * dt, 10 + dt, 0, 4096)
            self.stamp(10)
        self.sum_poll([f"buffer_load_dwordx4 v[{160+4*k}:{163+4*k}], v18, s[40:43], s{16+k} offen sc1" for k in range(8)], 160, 56, mid=prepass)
        self.stamp(7)
        for k in range(2): a(f"v_pk_fma_f32 v[{200+2*k}:{201+2*k}], v[{56+2*k}:{57+2*k}], v[{196+2*k}:{197+2*k}], v[{200+2*k}:{201+2*k}]")
        a("v_cvt_pk_bf16_f32 v32, v200, v201")
        a("v_cvt_pk_bf16_f32 v33, v202, v203")
        a("ds_write_b64 v20, v[32:33]")
        for ks in range(4): a(f"ds_read_b128 v[{172+4*ks}:{175+4*ks}], v22 offset:{64*ks}")
        for k in range(2): a(f"v_pk_fma_f32 v[{28+2*k}:{29+2*k}], v[{56+2*k}:{57+2*k}], v[{192+2*k}:{193+2*k}], v[{28+2*k}:{29+2*k}]")
        a("v_pk_add_f32 v[190:191], v[28:29], v[30:31]")
        a("v_pk_mul_f32 v[28:29], v[28:29], v[28:29]")
        a("v_pk_fma_f32 v[28:29], v[30:31], v[30:31], v[28:29]")
        a("v_add_f32 v190, v190, v191")
        a("v_add_f32 v191, v28, v29")
        a("v_permlane16_swap_b32 v190, v191")
        def mg(m, ks):
            for t in range(2): self.mfma(40 + 8 * m + 4 * t, 172 + 4 * ks, 64 + 32 * m + 8 * ks + 4 * t, ks == 0)
        a("v_add_f32 v190, v190, v191")
        for ks, m in enumerate(("quad_perm:[1,0,3,2]", "quad_perm:[2,3,0,1]", "row_half_mirror", "row_mirror")):
            a(f"v_add_f32_dpp v190, v190, v190 {m} row_mask:0xf bank_mask:0xf")
            a(f"s_waitcnt lgkmcnt({3-ks})")
            if ks < 3: mg(0, ks)
        a(f"ds_write_b32 v226, v190 offset:{STAT}")
        mg(0, 3)
        mg(1, 0)
        a("s_waitcnt lgkmcnt(0)")
        a("s_barrier")
        a(f"ds_read_b128 v[24:27], v231 offset:{STAT}")
        a(f"ds_read_b128 v[28:31], v231 offset:{STAT+16}")
        mg(1, 1)
        for r in range(3): a(f"v_permlane32_swap_b32 v{40+r}, v{44+r}")
        mg(1, 2)
        mg(1, 3)
        a("s_waitcnt lgkmcnt(0)")
        a("v_pk_add_f32 v[24:25], v[24:25], v[26:27]")
        a("v_pk_add_f32 v[28:29], v[28:29], v[30:31]")
        a("v_add_f32 v24, v24, v25")
        a("v_add_f32 v28, v28, v29")
        a(f"v_mul_f32 v24, {f32(1/512)}, v24")
        a(f"v_fmamk_f32 v28, v28, {f32(1/512)}, v232")
        a("v_fma_f32 v28, -v24, v24, v28")
        a("v_max_f32 v28, v28, v232")
        a("v_rsq_f32 v28, v28")
        for r in range(3): a(f"v_permlane32_swap_b32 v{48+r}, v{52+r}")
        a("v_fma_f32 v40, -v24, v41, v40")
        a("v_fma_f32 v48, -v24, v49, v48")
        a("v_fma_f32 v40, v40, v28, v42")
        a("v_fma_f32 v41, v48, v28, v50")
        a(f"ds_write_b64 v23, v[40:41] offset:{REC}")
        a("s_waitcnt lgkmcnt(0)")
        a("s_barrier")
        self.stamp(8)
        for w in range(4): a(f"ds_read_b64 v[{64+2*w}:{65+2*w}], v2 offset:{REC+512*w}")
        a("s_waitcnt lgkmcnt(2)")
        a("v_pk_add_f32 v[64:65], v[64:65], v[66:67]")
        a("s_waitcnt lgkmcnt(0)")
        a("v_pk_add_f32 v[68:69], v[68:69], v[70:71]")
        a("v_pk_add_f32 v[64:65], v[64:65], v[68:69]")
        a("v_max_f32 v64, 0, v64")
        a("v_mul_f32 v64, v64, v65")
        a("v_mov_b32_dpp v65, v64 quad_perm:[1,0,3,2] row_mask:0xf bank_mask:0xf")
        a("v_cvt_pk_bf16_f32 v24, v64, v65")
        for i in range(1, 4): a(f"v_mov_b32_dpp v{24+i}, v24 row_shl:{2*i} row_mask:0xf bank_mask:0xf")
        for dt in range(8): self.mfma(160 + 4 * dt, 24, 128 + 4 * dt, True)
        for k in range(4):
            a(f"v_permlane16_swap_b32 v{160+8*k}, v{164+8*k}")
            a(f"buffer_store_dword v{160+8*k}, v228, s[40:43], s26 offen sc1")
            if k < 3: a(f"s_add_u32 s26, s26, {2*HFS}")
        self.stamp(9)
        self.end()

    def small_helpers(self):
        a = self.a
        a.label("LO3")
        if 0 < self.o.get('msplit', 0) < 4:
            a(f"s_cmp_lt_u32 s3, {self.o.get('msplit', 0)}")
            a("s_cbranch_scc1 LO4")
            self.mr_issue(2, 52)
            self.mr_compute(SC, 0)
            a.label("LO4")
            a("s_barrier")
        a("s_movk_i32 s52, 1536")
        a("s_lshr_b32 s58, s7, 2")
        a(f"s_add_u32 s58, s58, {GA}")
        a("v_lshrrev_b32 v1, 4, v0")
        a("v_lshlrev_b32 v18, 4, v0")
        a(f"v_add_u32 v18, {RED}, v18")
        self.wo_setup()
        self.delay("o3del")
        a("s_branch LWm")
        a.label("LGH2")
        a("s_setprio 3")
        self.tag()
        self.g_index()
        a("s_cbranch_scc1 LGH3")
        a("s_endpgm")
        a.label("LGH3")
        self.rdy_publish(8, "s2")
        a("s_endpgm")
        a.label("LWH2")
        a("s_setprio 3")
        for i in range(4): a(f"v_mov_b32 v{32+i}, -1")
        a("v_bfe_u32 v3, v0, 4, 1")
        a("v_lshlrev_b32 v3, 11, v3")
        a("v_and_b32 v4, 15, v0")
        a("v_lshl_add_u32 v3, v4, 4, v3")
        a("s_lshl_b32 s15, s4, 12")
        a("s_and_b32 s6, s5, 7")
        a("s_lshl_b32 s6, s6, 8")
        a("s_add_u32 s15, s15, s6")
        a(f"s_add_u32 s15, s15, {HD}")
        a("v_lshrrev_b32 v6, 4, v0")
        a("v_lshlrev_b32 v6, 11, v6")
        a("v_lshl_add_u32 v6, v4, 4, v6")
        a("s_lshl_b32 s8, s6, 6")
        a("s_lshl_b32 s9, s4, 8")
        a("s_add_u32 s8, s8, s9")
        a(f"s_add_u32 s8, s8, {HB}")
        a("s_add_u32 s9, s8, 8192")
        self.c_voff(4)
        a("s_lshr_b32 s6, s6, 1" if self.o.get("msplit", 0) else "s_movk_i32 s6, 896")
        a("s_mov_b32 s50, 2048")
        a("s_waitcnt lgkmcnt(0)")
        a("s_load_dword s14, s[40:41], 0")
        a("s_mov_b64 s[48:49], s[34:35]")
        a("buffer_load_dwordx2 v[28:29], v4, s[48:51], s6 offen")
        a("buffer_store_dwordx4 v[32:35], v6, s[40:43], s8 offen sc1")
        a("buffer_store_dwordx4 v[32:35], v6, s[40:43], s9 offen sc1")
        a("s_mov_b32 exec_hi, 0")
        a("buffer_store_dwordx4 v[32:35], v3, s[40:43], s15 offen sc1")
        a("s_mov_b64 exec, -1")
        self.silu_frag(SCW)
        a("s_waitcnt vmcnt(0) lgkmcnt(0)")
        self.tag()
        self.rdy_publish(8, "s2")
        a("v_lshlrev_b32 v2, 4, v0")
        a("s_lshl_b32 s8, s4, 12")
        a(f"s_add_u32 s8, s8, {HA}")
        a("v_and_b32 v3, 1, v0")
        a("v_mul_u32_u24 v3, 144, v3")
        a("v_bfe_u32 v4, v0, 1, 2")
        a("v_lshl_add_u32 v3, v4, 4, v3")
        a("v_lshrrev_b32 v4, 5, v0")
        a("v_lshl_add_u32 v3, v4, 6, v3")
        a("v_bfe_u32 v4, v0, 4, 1")
        a("v_lshl_add_u32 v3, v4, 3, v3")
        a(f"v_add_u32 v3, {HW}, v3")
        def aissue():
            for t in range(4): a(f"buffer_load_dwordx4 v[{40+4*t}:{43+4*t}], v2, s[40:43], s8 offen offset:{1024*t} sc1")
        def abody():
            for t in range(4):
                a(f"s_waitcnt vmcnt({3-t})")
                a(f"v_xor_b32 v{43+4*t}, s14, v{42+4*t}")
                self.unpack(40 + 4 * t, 64 + 4 * t, 2)
            a("v_or3_b32 v43, v43, v47, v51")
            a("v_or_b32 v43, v43, v55")
            a("v_cmp_ne_u32 s[10:11], 0, v43")
        self.spin(abody, alt=([8], ALOC, 8), issue=aissue, mid=self.silu_run)
        self.fold8()
        a("ds_write_b64 v3, v[40:41]")
        a("s_waitcnt lgkmcnt(0)")
        a("s_barrier")
        a("s_endpgm")
        a.label("LTH")
        if self.o.get("nohelp"): a("s_endpgm")
        a("s_setprio 3")
        for i in range(4): a(f"v_mov_b32 v{40+i}, -1")
        a("v_lshlrev_b32 v2, 4, v0")
        a("s_lshl_b32 s6, s4, 4")
        a("s_add_u32 s6, s6, s5")
        a("s_lshl_b32 s54, s6, 10")
        a(f"s_add_u32 s54, s54, {HC}")
        a("s_lshl_b32 s55, s6, 7")
        a(f"s_add_u32 s55, s55, {HL}")
        a("s_waitcnt lgkmcnt(0)")
        a("s_load_dword s14, s[40:41], 0")
        a("buffer_store_dwordx4 v[40:43], v2, s[40:43], s54 offen sc1")
        a(f"s_add_u32 s54, s54, {LOC}")
        a("buffer_store_dwordx4 v[40:43], v2, s[40:43], s54 offen sc1")
        a("s_mov_b64 exec, 0xff")
        a("buffer_store_dwordx4 v[40:43], v2, s[40:43], s55 offen sc1")
        a(f"s_add_u32 s55, s55, {LOC}")
        a("buffer_store_dwordx4 v[40:43], v2, s[40:43], s55 offen sc1")
        a("s_mov_b64 exec, -1")
        a("s_waitcnt vmcnt(0) lgkmcnt(0)")
        self.tag()
        self.rdy_publish(44, "s6")
        a("buffer_load_dwordx4 v[232:235], v2, s[40:43], s54 offen sc1")
        a("s_mov_b64 exec, 1")
        a("buffer_load_dword v236, v2, s[40:43], s55 offen sc1")
        a("s_endpgm")

    def m_role(self):
        a = self.a
        self.mute = False
        a.label("LM")
        if self.o.get("nom"): self.end()
        ms = self.o.get("msplit", 0)
        if ms == 0: a("s_mov_b32 s61, 7")
        if 0 < ms < 4:
            a(f"s_cmp_ge_u32 s3, {ms}")
            a("s_cbranch_scc1 LMr")
        if not self.o.get("mre", 0): self.mr_issue(17, 44)
        self.mr_compute(SCW, 0)
        a.label("LMr")
        a("s_lshl_b32 s6, s4, 2")
        a("s_add_u32 s6, s6, s3")
        a("s_lshl_b32 s8, s6, 12")
        a(f"s_add_u32 s8, s8, {HP}")
        a("s_lshr_b32 s9, s6, 3")
        a("s_lshl_b32 s9, s9, 12")
        a("s_and_b32 s6, s6, 7")
        a("s_lshl_b32 s6, s6, 8")
        a("s_add_u32 s9, s9, s6")
        a(f"s_add_u32 s9, s9, {HM}")
        a("v_lshlrev_b32 v2, 4, v0")
        a("v_and_b32 v3, 1, v0")
        a("v_lshlrev_b32 v3, 11, v3")
        a("v_bfe_u32 v4, v0, 1, 2")
        a("v_lshl_add_u32 v3, v4, 4, v3")
        a("v_and_b32 v4, 48, v0")
        a("v_lshl_add_u32 v3, v4, 2, v3")
        self.poll([f"buffer_load_dwordx4 v[{40+4*t}:{43+4*t}], v2, s[40:43], s8 offen offset:{1024*t} sc1" for t in range(4)],
                  [(*self.TAGBAD, 42 + 4 * t) for t in range(4)], sleep=1,
                  after=lambda t: self.unpack(40 + 4 * t, 64 + 4 * t, 2))
        self.stamp(6)
        self.fold8()
        self.exec16(0xff)
        a("buffer_store_dwordx4 v[40:43], v3, s[40:43], s9 offen sc1")
        self.stamp(7)
        self.end()

    def t_prefetch(self):
        a = self.a
        a.label("LTpx")
        a("s_mov_b32 s95, 0x20000")
        a("s_bitcmp1_b32 s3, 0")
        a("s_cbranch_scc1 LTpd")
        a("s_cmp_eq_u32 s3, 0")
        a("s_cselect_b64 s[92:93], s[28:29], s[30:31]")
        a(f"s_mov_b32 s94, {512*3584}")
        a(f"s_mul_i32 s60, s5, {32*3584}")
        a("s_mul_i32 s61, s4, 448")
        a("s_add_u32 s60, s60, s61")
        a(f"s_add_u32 s61, s60, {16*3584}")
        a("v_lshrrev_b32 v236, 2, v0")
        a("v_mul_u32_u24 v236, 3584, v236")
        a("v_and_b32 v235, 3, v0")
        a("v_lshl_add_u32 v236, v235, 7, v236")
        a("s_branch LTpr")
        a.label("LTpd")
        a("s_mov_b64 s[92:93], s[32:33]")
        a(f"s_mov_b32 s94, {1792*1024}")
        a(f"s_mul_i32 s60, s4, {7*32768}")
        a("s_lshl_b32 s61, s5, 1")
        a("s_lshr_b32 s13, s3, 1")
        a("s_add_u32 s61, s61, s13")
        a("s_mul_i32 s61, s61, 7168")
        a("s_add_u32 s60, s60, s61")
        a("s_mov_b32 s61, 0x7fffffff")
        a("v_min_u32 v236, 55, v0")
        a("v_lshlrev_b32 v236, 7, v236")
        a("s_branch LTpr")

    def fold8(self):
        a = self.a
        for i in range(8): a(f"v_permlane32_swap_b32 v{64+i}, v{72+i}")
        for k in range(4): a(f"v_pk_add_f32 v[{64+2*k}:{65+2*k}], v[{64+2*k}:{65+2*k}], v[{72+2*k}:{73+2*k}]")
        for i in range(4): a(f"v_permlane16_swap_b32 v{64+i}, v{68+i}")
        for k in range(2): a(f"v_pk_add_f32 v[{64+2*k}:{65+2*k}], v[{64+2*k}:{65+2*k}], v[{68+2*k}:{69+2*k}]")
        for i in range(4): a(f"v_add_f32_dpp v{64+i}, v{64+i}, v{64+i} row_ror:8 row_mask:0xf bank_mask:0xf")
        a("v_cvt_pk_bf16_f32 v40, v64, v65")
        a("v_cvt_pk_bf16_f32 v41, v66, v67")

    def red8(self, r):
        a = self.a
        for i in range(4): a(f"v_add_f32_dpp v{r+i}, v{r+i}, v{r+i} row_ror:8 row_mask:0xf bank_mask:0xf")
        for sw in ("16", "32"):
            for i in range(4): a(f"v_mov_b32 v{60+i}, v{r+i}")
            for i in range(4): a(f"v_permlane{sw}_swap_b32 v{r+i}, v{60+i}")
            for i in range(4): a(f"v_add_f32 v{r+i}, v{r+i}, v{60+i}")

    def unpk(self, lines):
        out = []
        on = False
        for l in lines:
            if l == "; unpk on": on = True; continue
            if l == "; unpk off": on = False; continue
            m = re.match(r"v_pk_(add|mul|fma)_f32 (.*)", l)
            if not (on and m and self.o.get("unpk", 0)):
                out.append(l); continue
            rest = m.group(2)
            mods = dict((k, [int(x) for x in v.split(",")]) for k, v in re.findall(r"(op_sel|op_sel_hi|neg_lo|neg_hi):\[([0-9,]+)\]", rest))
            regs = re.findall(r"([vs])\[(\d+):\d+\]", rest.split(" op_sel")[0].split(" neg_")[0])
            n = len(regs) - 1
            for half, sel, neg in ((0, mods.get("op_sel", [0] * n), mods.get("neg_lo", [0] * n)), (1, mods.get("op_sel_hi", [1] * n), mods.get("neg_hi", [0] * n))):
                ops = [("-" if neg[i] else "") + f"{regs[i+1][0]}{int(regs[i+1][1]) + sel[i]}" for i in range(n)]
                out.append(f"v_{m.group(1)}_f32 v{int(regs[0][1]) + half}, " + ", ".join(ops))
        return out

    def build(self):
        self.prologue()
        self.ww_early()
        if self.o.get("tnear"): self.tw_early()
        self.g_early()
        self.g_role()
        self.m_role()
        self.guard(3300, fall=False)
        self.ww_main()
        self.t_prefetch()
        self.guard(3300, fall=False)
        if not self.o.get("tnear"): self.tw_early()
        self.tw_issue()
        self.tw_main()
        if self.diag:
            self.a.label("Ldump")
            self.dump_stamps()
        self.a.label("Lexit")
        self.a("s_endpgm")
        self.a.label("Lcode_end")
        self.a.L = self.unpk(self.a.L)
        body = self.a.finish()
        head = open("cdna_kernels/" + NAME + ".s.ref").read().split("; Override launch geometry")[0]
        return head + f"""; Generated by gen/gen_kernel.py (own generator script).  One persistent launch: 256 workgroups (one per CU) x 5 waves.
; wg -> x = wg&7, j = wg>>3.  All weights / K / V stream through LDS-DMA, all GEMVs run on 16x16x32 bf16 MFMA.
;   T (j<16)     : attention over 256 keys of (batch j>>3, kv head x); 32 of their waves also sum the FFN partials -> out
;   W (16..23)   : q partial (64 rows of wq x one kv head), then 64 columns of the output projection (j=19: sums ga/sb/cb/gb)
;   G (24..31)   : K slice of silu(c)@w_mod -> h partial and ga/sb/cb/gb partials, then 32 FFN columns (j=31: projection block 3)
; Hand-offs go through d_ws and are validated by content, never by timing or placement:
;   tagged 16-byte granules (tag = next(epoch word found in d_ws); the word is advanced once per launch), or
;   NaN-poisoned slots (the owner poisons them first and says so with a tagged flag that readers check).
;   h and the attention partials are written twice: plain (fast when both ends share an L2) and write-through (fallback).
; Every wait is bounded.
; @launch grid=(256,1,1) block=(320,1,1) lds={LDS_BYTES}
.amdgcn_target "amdgcn-amd-amdhsa--gfx950"
.text
.globl {KNAME}
.p2align 12
.type {KNAME},@function
{KNAME}:
{body}
.section .rodata,"a"
.p2align 6
.amdhsa_kernel {KNAME}
  .amdhsa_next_free_vgpr 240
  .amdhsa_next_free_sgpr 102
  .amdhsa_accum_offset 240
  .amdhsa_group_segment_fixed_size 0
  .amdhsa_kernarg_size 112
  .amdhsa_user_sgpr_count 2
  .amdhsa_user_sgpr_kernarg_segment_ptr 1
  .amdhsa_system_sgpr_workgroup_id_x 1
.end_amdhsa_kernel
"""

if __name__ == "__main__":
    import argparse
    ap = argparse.ArgumentParser()
    ap.add_argument("-o", default="cdna_kernels/" + NAME + ".s")
    ap.add_argument("--diag", action="store_true")
    ap.add_argument("--wflag", default="nt")
    ap.add_argument("--opt", action="append", default=[])
    args = ap.parse_args()
    opts = {}
    for o in args.opt:
        k, _, v = o.partition("=")
        opts[k] = int(v) if v else 1
    open(args.o, "w").write(Gen(args.diag, args.wflag, opts).build())
    print("wrote", args.o)
```

```python
import sys, struct, re
from asmlib import Asm

NAME = "adaLN_cond__sliding_block_cached__glu_gated_reglu__decode"
KNAME = NAME + "_kernel"

def f32(x): return "0x%08x" % struct.unpack("<I", struct.pack("<f", x))[0]

EPOCH = 0x0
RDY = 0x1000
HM = 0x4000
HA = 0x8000
ALOC = 0x8000
HB = 0x140000
HD = 0x20000
HL = HD + 0x8000
HC = HL + 0x4000
LOC = 0x24000
HF = HC + 0x20000 + LOC
HFS = 7168
HP = 0xD0000
STAMP = 0x100000
WS_SIZE = 0x200000
LDS_BYTES = 151552
KB, VB, PB, MX, LS, QB = 0, 65536, 131072, 133120, 133248, 133632
WQ, WO, GA, RED, SCW, HW = 0, 65536, 131072, 147456, 149504, 150016
W1, GU, DWN, MRG, SC, LNS = 0, 16384, 81920, 114688, 147456, 148480
REC, CSR, STAT = W1, W1 + 4096, W1 + 8192
AROW_O = 4096

LOG2E = 1.4426950408889634
CSC = (128 ** -0.5) * LOG2E
SPIN = 100000
import os
if os.environ.get('SPIN'): SPIN = int(os.environ['SPIN'])
MFMA = "v_mfma_f32_16x16x32_bf16"

class Gen:
    POISON = ("v_cmp_eq_u32", "-1")
    TAGBAD = ("v_cmp_ne_u32", "s14")

    def __init__(self, diag=False, wflag="nt", opts=None):
        self.a = Asm()
        self.diag = diag
        self.wf = wflag
        self.o = opts or {}
        self.nlab = 0
    def lab(self, p="L"):
        self.nlab += 1
        return f"{p}{self.nlab}"
    def dstamp(self, k):
        if self.o.get("gdbg"): self.a(f"s_memrealtime s[{64+2*k}:{65+2*k}]")
    def stamp(self, k):
        if self.o.get("lite") and not (k == 0 or (k == 8 and getattr(self, "final", False))): return
        if self.o.get("gdbg") and getattr(self, "mute", False) and k in (4, 6, 7, 8): return
        if self.diag or self.o.get("amp") == k: self.a(f"s_memrealtime s[{64+2*k}:{65+2*k}]")
    def dump_max(self):
        a = self.a
        a("s_load_dwordx2 s[44:45], s[0:1], 96")
        a("s_mov_b32 s46, 256")
        a("s_mov_b32 s47, 0x20000")
        a("s_mov_b64 exec, 1")
        a("v_mov_b32 v1, 0")
        a("s_waitcnt lgkmcnt(0)")
        def put(slot, reg):
            a(f"v_mov_b32 v4, {reg}")
            a(f"buffer_atomic_umax v4, v1, s[44:47], 0 offen offset:{4*slot} sc1")
        a("s_not_b32 s60, s64")
        put(0, "s60"); put(1, "s64")
        a("s_lshr_b32 s5, s2, 3")
        a("s_cmp_ge_u32 s5, 24")
        a("s_cbranch_scc1 LdG")
        a("s_cmp_ge_u32 s5, 16")
        a("s_cbranch_scc1 LdW")
        for slot, k in ((6, 3), (7, 9), (8, 5), (15, 8)): put(slot, f"s{64+2*k}")
        a("s_endpgm")
        a.label("LdW")
        for slot, k in ((3, 2), (4, 3), (5, 4), (9, 6), (10, 7), (11, 8)): put(slot, f"s{64+2*k}")
        a("s_endpgm")
        a.label("LdG")
        for slot, k in ((2, 3), (12, 6), (13, 7), (14, 9)): put(slot, f"s{64+2*k}")
    def dump_gamp(self):
        a = self.a
        k, lo, hi = self.o["gamp"] // 10000, self.o["gamp"] // 100 % 100, self.o["gamp"] % 100
        a("s_waitcnt lgkmcnt(0)")
        a("s_lshr_b32 s5, s2, 3")
        a(f"s_sub_u32 s60, s5, {lo}")
        a(f"s_cmp_lt_u32 s60, {hi-lo}")
        a(f"s_cselect_b32 s61, s{64+2*k}, 0")
        a("s_cmp_eq_u32 s61, 0")
        a("s_cselect_b32 s61, s64, s61")
        a("s_lshl_b32 s60, s2, 2")
        a("s_add_u32 s60, s60, s3")
        a("s_lshl_b32 s60, s60, 2")
        a(f"s_add_u32 s60, s60, {STAMP}")
        a("s_mov_b64 exec, 1")
        a("v_mov_b32 v1, 0")
        a("v_mov_b32 v4, s64")
        a("v_mov_b32 v5, s61")
        a("buffer_store_dword v4, v1, s[40:43], s60 offen sc1")
        a("s_add_u32 s60, s60, 4096")
        a("buffer_store_dword v5, v1, s[40:43], s60 offen sc1")
        a("s_mov_b64 exec, -1")
        a("s_cmp_eq_u32 s2, 0")
        a("s_cbranch_scc0 Lexit")
        a("s_cmp_eq_u32 s3, 1")
        a("s_cbranch_scc0 Lexit")
        def until(reg):
            L = self.lab("Lu")
            a.label(L)
            a("s_memrealtime s[98:99]")
            a("s_waitcnt lgkmcnt(0)")
            a("s_sub_u32 s98, s98, s64")
            a(f"s_cmp_lt_u32 s98, {reg}")
            a(f"s_cbranch_scc1 {L}")
        until(3000)
        a("v_lshlrev_b32 v2, 4, v0")
        a(f"s_mov_b32 s60, {STAMP}")
        a(f"s_mov_b32 s61, {STAMP+4096}")
        for i in range(4):
            a(f"buffer_load_dwordx4 v[{8+4*i}:{11+4*i}], v2, s[40:43], s60 offen offset:{1024*i} sc1")
            a(f"buffer_load_dwordx4 v[{24+4*i}:{27+4*i}], v2, s[40:43], s61 offen offset:{1024*i} sc1")
        a("s_waitcnt vmcnt(0)")
        for i in range(32): a(f"v_subrev_u32 v{8+i}, s64, v{8+i}")
        for i in range(1, 16):
            a(f"v_min_i32 v8, v8, v{8+i}")
            a(f"v_max_i32 v24, v24, v{24+i}")
        a("s_mov_b32 s60, 0")
        a("s_mov_b32 s61, 0")
        for l in range(64):
            a(f"v_readlane_b32 s62, v8, {l}")
            a(f"v_readlane_b32 s63, v24, {l}")
            a("s_min_i32 s60, s60, s62")
            a("s_max_i32 s61, s61, s63")
        a("s_sub_u32 s61, s61, s60")
        a("s_mul_i32 s61, s61, 40")
        a("s_add_u32 s100, s61, 4000")
        until("s100")
    def dump_stamps(self):
        if not self.diag: return
        if self.o.get("gamp") is not None: return self.dump_gamp()
        if self.o.get("dmax"): return self.dump_max()
        a = self.a
        a("s_waitcnt lgkmcnt(0)")
        a("s_mov_b64 exec, 1")
        a("s_mul_i32 s60, s2, 5")
        a("s_add_u32 s60, s60, s3")
        a("s_lshl_b32 s60, s60, 6")
        a(f"s_add_u32 s60, s60, {STAMP}")
        a("v_mov_b32 v1, 0")
        for q in range(3):
            for i in range(4):
                a(f"v_mov_b32 v{4+i}, s{64+2*(4*q+i)}")
            a(f"buffer_store_dwordx4 v[4:7], v1, s[40:43], s60 offen offset:{16*q}")
            a("s_nop 1")
    def end(self, helper=False):
        self.a("s_branch Ldump" if self.diag and (not helper or self.o.get("hdump")) else "s_endpgm")
    def delay(self, key):
        n = self.o.get(key, 0)
        if not n: return
        a = self.a
        L = self.lab("Ld")
        a.label(L)
        a("s_memrealtime s[98:99]")
        a("s_waitcnt lgkmcnt(0)")
        a("s_sub_u32 s98, s98, s64")
        a(f"s_cmp_lt_u32 s98, {n}")
        a(f"s_cbranch_scc1 {L}")
    def guard(self, n, fall=True, fill=None):
        L = self.lab("Lg")
        if fall: self.a(f"s_branch {L}")
        if fill: fill()
        self.a(f".p2align 12, , {n}")
        self.a.label(L)
    def srd(self, d, p, size):
        a = self.a
        a(f"s_mov_b64 s[{d}:{d+1}], s[{p}:{p+1}]")
        a(f"s_mov_b32 s{d+2}, {size}")
        a(f"s_mov_b32 s{d+3}, 0x20000")
    def tag(self):
        self.a("s_mul_i32 s14, s14, 0x9E3779B1")
        self.a("s_add_u32 s14, s14, 0x7F4A7C15")
    def exec16(self, m):
        self.a(f"s_mov_b32 exec_lo, {(m << 16 | m):#x}")
        self.a(f"s_mov_b32 exec_hi, {(m << 16 | m):#x}")
    def poll(self, loads, checks, sleep=0, after=None):
        a = self.a
        L = self.lab("Lp"); D = self.lab("Lpd")
        n = len(loads)
        a(f"s_mov_b32 s12, {SPIN}")
        a.label(L)
        for l in loads: a(l)
        for i, (op, opd, r) in enumerate(checks):
            a(f"s_waitcnt vmcnt({n-1-i})")
            if i == 0:
                a(f"{op} s[10:11], {opd}, v{r}")
            else:
                a(f"{op} vcc, {opd}, v{r}")
                a("s_or_b64 s[10:11], s[10:11], vcc")
            if after: after(i)
        a("s_cmp_eq_u64 s[10:11], 0")
        a(f"s_cbranch_scc1 {D}")
        if sleep: a(f"s_sleep {sleep}")
        a("s_sub_u32 s12, s12, 1")
        a(f"s_cbranch_scc0 {L}")
        a.label(D)
    def spin(self, body, sleep=0, alt=None, issue=None, mid=None, keep=None):
        a = self.a
        L = self.lab("Lp"); D = self.lab("Lpd")
        n = SPIN
        if alt:
            sregs, delta, every = alt
            for i, r in enumerate(sregs):
                a(f"s_mov_b32 s{96+2*i}, s{r}")
                a(f"s_add_u32 s{97+2*i}, s{r}, {delta}")
                a(f"s_mov_b32 s{r}, s{97+2*i}")
            n = SPIN * 4 | (every - 1)
        if keep:
            a(f"s_mov_b32 s{keep[1]}, s{keep[0]}")
            n |= 7
        a(f"s_mov_b32 s12, {n}")
        if issue:
            E = self.lab("Lpe")
            issue(); mid()
            a(f"s_branch {E}")
        a.label(L)
        if issue:
            issue()
            a.label(E)
        body()
        a("s_cmp_eq_u64 s[10:11], 0")
        a(f"s_cbranch_scc1 {D}")
        if sleep: a(f"s_sleep {sleep}")
        if alt:
            a(f"s_and_b32 s13, s12, {every-1}")
            for i, r in enumerate(sregs): a(f"s_cselect_b32 s{r}, s{97+2*i}, s{96+2*i}")
        if keep:
            a("s_and_b32 s13, s12, 7")
            a(f"s_cselect_b32 s{keep[0]}, s{keep[1]}, s{keep[2]}")
        a("s_sub_u32 s12, s12, 1")
        a(f"s_cbranch_scc0 {L}")
        a.label(D)
    def ssent(self, soff, offs, cnt=13):
        a = self.a
        L = self.lab("Ls"); D = self.lab("Lsd")
        a(f"s_mov_b32 s{cnt}, {SPIN}")
        a.label(L)
        for k, o in enumerate(offs): a(f"s_load_dword s{88+k}, s[40:41], s{soff} offset:{o} glc")
        a("s_waitcnt lgkmcnt(0)")
        for k in range(len(offs)): a(f"s_xor_b32 s{88+k}, s{88+k}, s14")
        for k in range(1, len(offs)): a(f"s_or_b32 s88, s88, s{88+k}")
        a(f"s_cbranch_scc0 {D}")
        a(f"s_sub_u32 s{cnt}, s{cnt}, 1")
        a(f"s_cbranch_scc0 {L}")
        a.label(D)
    def sum_poll(self, loads, base, acc, mid=None):
        a = self.a
        n = len(loads)
        def issue():
            for l in loads: a(l)
        def body():
            if not mid: issue()
            for i in range(1, n):
                a(f"s_waitcnt vmcnt({n-1-i})")
                src = base if i == 1 else acc
                for k in range(2): a(f"v_pk_add_f32 v[{acc+2*k}:{acc+1+2*k}], v[{src+2*k}:{src+1+2*k}], v[{base+4*i+2*k}:{base+1+4*i+2*k}]")
            a(f"v_cmp_u_f32 s[10:11], v{acc}, v{acc+1}")
            a(f"v_cmp_u_f32 vcc, v{acc+2}, v{acc+3}")
            a("s_or_b64 s[10:11], s[10:11], vcc")
        self.spin(body, issue=issue if mid else None, mid=mid)
    def silu(self, regs, tmp):
        a = self.a
        for i, r in enumerate(regs): a(f"v_mul_f32 v{tmp+i}, {f32(-LOG2E)}, v{r}")
        for i, r in enumerate(regs): a(f"v_exp_f32 v{tmp+i}, v{tmp+i}")
        for i, r in enumerate(regs): a(f"v_add_f32 v{tmp+i}, 1.0, v{tmp+i}")
        for i, r in enumerate(regs): a(f"v_rcp_f32 v{tmp+i}, v{tmp+i}")
        for i, r in enumerate(regs): a(f"v_mul_f32 v{r}, v{r}, v{tmp+i}")
    def unpack(self, src, dst, n):
        for i in range(n):
            self.a(f"v_lshlrev_b32 v{dst+2*i}, 16, v{src+i}")
            self.a(f"v_and_b32 v{dst+2*i+1}, 0xffff0000, v{src+i}")
    def row_sum(self, r):
        for m in ("quad_perm:[1,0,3,2]", "quad_perm:[2,3,0,1]", "row_half_mirror", "row_mirror"):
            self.a(f"v_add_f32_dpp v{r}, v{r}, v{r} {m} row_mask:0xf bank_mask:0xf")
    def silu_frag(self, base):
        a = self.a
        a("v_bfe_u32 v10, v0, 4, 1")
        a("v_mul_u32_u24 v5, 144, v10")
        a("v_bfe_u32 v4, v0, 3, 1")
        a("v_lshl_add_u32 v5, v4, 6, v5")
        a("v_and_b32 v4, 3, v0")
        a("v_lshl_add_u32 v5, v4, 4, v5")
        a("v_bfe_u32 v4, v0, 2, 1")
        a("v_lshl_add_u32 v5, v4, 3, v5")
        a(f"v_add_u32 v5, {base}, v5")
    def silu_run(self):
        a = self.a
        self.unpack(28, 16, 2)
        self.silu([16, 17, 18, 19], 24)
        a("v_cvt_pk_bf16_f32 v28, v16, v17")
        a("v_cvt_pk_bf16_f32 v29, v18, v19")
        a("ds_write_b64 v5, v[28:29]")
    def c_voff(self, d):
        a = self.a
        a(f"v_bfe_u32 v{d}, v0, 4, 1")
        a(f"v_lshlrev_b32 v{d}, 10, v{d}")
        a("v_and_b32 v11, 15, v0")
        a(f"v_lshl_add_u32 v{d}, v11, 3, v{d}")
    def mfma(self, d, A, B, first):
        c = "0" if first else f"v[{d}:{d+3}]"
        self.a(f"{MFMA} v[{d}:{d+3}], v[{A}:{A+3}], v[{B}:{B+3}], {c}")
    def tr(self, r, va, off, second):
        self.a(f"ds_read_b64_tr_b16 v[{r}:{r+1}], v{va} offset:{off}")
        self.a(f"ds_read_b64_tr_b16 v[{r+2}:{r+3}], v{va} offset:{off+second}")
    def voff256(self, d, stride_sh, t0, t1):
        a = self.a
        a(f"v_lshrrev_b32 v{t0}, 4, v0")
        a(f"v_and_b32 v{t1}, 15, v0")
        a(f"v_lshlrev_b32 v{d}, 1, v{t0}")
        a(f"v_xor_b32 v{d}, v{t1}, v{d}")
        a(f"v_lshlrev_b32 v{d}, 4, v{d}")
        a(f"v_lshl_add_u32 v{d}, v{t0}, {stride_sh}, v{d}")
        a(f"v_xor_b32 v{d+1}, 0x80, v{d}")
    def voff128(self, d, stride, t0, t1):
        a = self.a
        a(f"v_lshrrev_b32 v{t0}, 3, v0")
        a(f"v_and_b32 v{d}, 6, v{t0}")
        a(f"v_and_b32 v{t1}, 7, v0")
        a(f"v_xor_b32 v{d}, v{d}, v{t1}")
        a(f"v_mul_u32_u24 v{t0}, {stride}, v{t0}")
        a(f"v_lshl_add_u32 v{d}, v{d}, 4, v{t0}")
    def traddr256(self, d, n, base, t0, t1, first=None):
        a = self.a
        a(f"v_lshrrev_b32 v{t0}, 2, v0")
        a(f"v_and_b32 v{d}, 7, v{t0}")
        a(f"v_lshlrev_b32 v{d}, 5, v{d}")
        a(f"v_lshl_add_u32 v{d}, v{t0}, 8, v{d}")
        a(f"v_and_b32 v{t1}, 3, v0")
        a(f"v_lshl_add_u32 v{d}, v{t1}, 3, v{d}")
        if first: a(f"v_xor_b32 v{d}, {first}, v{d}")
        a(f"v_add_u32 v{d}, {base}, v{d}")
        for i in range(1, n): a(f"v_xor_b32 v{d+i}, {32*i}, v{d}")
    def traddr128(self, d, base, t0, t1, grp_sh=10, n=4):
        a = self.a
        a(f"v_bfe_u32 v{t0}, v0, 2, 3")
        a(f"v_bfe_u32 v{d}, v0, 3, 2")
        a(f"v_lshlrev_b32 v{d}, 5, v{d}")
        a(f"v_lshl_add_u32 v{d}, v{t0}, 7, v{d}")
        a(f"v_lshrrev_b32 v{t0}, 5, v0")
        a(f"v_lshl_add_u32 v{d}, v{t0}, {grp_sh}, v{d}")
        a(f"v_and_b32 v{t1}, 3, v0")
        a(f"v_lshl_add_u32 v{d}, v{t1}, 3, v{d}")
        if base is not None: a(f"v_add_u32 v{d}, {base}, v{d}")
        for i in range(1, n): a(f"v_xor_b32 v{d+i}, {32*i}, v{d}")

    def prologue(self):
        a = self.a
        a("s_cmp_ge_u32 s2, 256")
        a("s_cbranch_scc1 Lexit")
        a("s_load_dwordx16 s[16:31], s[0:1], 0")
        a("s_load_dwordx8 s[32:39], s[0:1], 64")
        a("s_load_dwordx2 s[40:41], s[0:1], 104")
        if self.diag:
            for k in range(1, 12): a(f"s_mov_b32 s{64+2*k}, 0")
        self.stamp(0)
        if self.o.get("padto"): a("s_memrealtime s[96:97]")
        a("s_getpc_b64 s[56:57]")
        a.label("Lpc0")
        a("s_lshr_b32 s5, s2, 3")
        a("v_lshrrev_b32 v1, 6, v0")
        a("s_mul_i32 s6, s5, 640")
        a("v_lshl_add_u32 v2, v1, 7, s6")
        a("v_min_u32 v2, Lcode_end-Lpc0-4, v2")
        a("global_load_dword v239, v2, s[56:57]")
        a("v_and_b32 v0, 63, v0")
        a("s_and_b32 s4, s2, 7")
        a("v_readfirstlane_b32 s3, v1")
        a(f"s_mov_b32 s42, {WS_SIZE}")
        a("s_mov_b32 s43, 0x20000")
        a("s_mov_b32 s47, 0x20000")
        a("s_mov_b32 s51, 0x20000")
        a("s_lshl_b32 s7, s3, 14")
        a("s_cmp_ge_u32 s5, 24")
        a("s_cbranch_scc1 LG0")
        a("s_cmp_eq_u32 s3, 4")
        a("s_cbranch_scc1 LH0")
        self.voff256(6, 8, 1, 8)
        a("s_mov_b32 m0, s7")
        a("s_cmp_ge_u32 s5, 16")
        a("s_cbranch_scc0 LT0")

    def tw_early(self):
        a, wf = self.a, self.wf
        a.label("LT0")
        a("s_and_b32 s6, s5, 8")
        a("s_add_u32 s6, s6, s4")
        a("s_lshl_b32 s6, s6, 21")
        a("s_and_b32 s8, s5, 7")
        a("s_lshl_b32 s8, s8, 16")
        a("s_add_u32 s6, s6, s8")
        a("s_add_u32 s6, s6, s7")
        a(f"s_add_u32 s6, s6, {6144*256}")
        a("v_xor_b32 v2, v8, v1")
        a("v_lshlrev_b32 v2, 4, v2")
        a("v_lshl_add_u32 v2, v1, 8, v2")
        a("v_xor_b32 v3, 64, v2")
        a("v_xor_b32 v4, 0x80, v2")
        a("v_xor_b32 v5, 0xc0, v2")
        a("s_mov_b32 s8, s6")
        a("s_add_u32 s9, s6, 16384")
        a("s_mov_b32 s46, 0x2000000")
        a("s_mov_b32 s50, 0x2000000")
        a("s_add_u32 s10, s6, 8192")
        a("s_waitcnt lgkmcnt(0)")
        a("s_mov_b64 s[44:45], s[18:19]")
        a("s_mov_b64 s[48:49], s[20:21]")
        a("s_load_dword s14, s[40:41], 0")
        cap = self.o.get("cap", 8)
        for half in range(2):
            L = self.lab("LTWk")
            a.label(L)
            for i in range(4):
                a(f"buffer_load_dwordx4 v{2+i}, s[44:47], s8 offen offset:{1024*i} {wf} lds")
                if cap and half: a(f"s_waitcnt vmcnt({cap})")
            a("s_add_u32 m0, m0, 4096")
            a("s_add_u32 s8, s8, 4096")
            a(f"s_cmp_lt_u32 s8, s{10-half}")
            a(f"s_cbranch_scc1 {L}")
            if half == 0:
                a("s_branch LTpx")
                a.label("LTpr")
        self.stamp(10)
        if self.o.get("tnear"): a("s_branch LTW1")

    def tw_issue(self):
        a, wf = self.a, self.wf
        cap = self.o.get("vcap", 8)
        if self.o.get("tnear"):
            a.label("LTHp")
            a("s_branch LTH")
            a.label("LTW1")
        a("s_lshl_b32 s55, s4, 14")
        a("s_and_b32 s13, s5, 8")
        a("s_lshl_b32 s13, s13, 10")
        a("s_add_u32 s55, s55, s13")
        a("s_lshl_b32 s13, s3, 11")
        a("s_add_u32 s55, s55, s13")
        a(f"s_add_u32 s55, s55, {HB}")
        a("v_lshlrev_b32 v21, 4, v0")
        a("v_mov_b32 v229, v21")
        a("s_lshl_b32 s27, s4, 7")
        a(f"s_add_u32 s27, s27, {RDY+2048}")
        a(f"s_add_u32 m0, s7, {VB}")
        a("s_mov_b32 s8, s6")
        a("s_waitcnt lgkmcnt(0)")
        self.tag()
        for g in range(4):
            if g == 2:
                a("s_mov_b64 exec, 0xff")
                self.rdy_load()
                a("s_mov_b64 exec, -1")
            for i in range(4):
                a(f"buffer_load_dwordx4 v{6+(i&1)}, s[48:51], s8 offen offset:{1024*i} {wf} lds")
                if cap: a(f"s_waitcnt vmcnt({cap})")
            if g < 3:
                a("s_add_u32 m0, m0, 4096")
                a("s_add_u32 s8, s8, 4096")
        a("s_waitcnt vmcnt(8)")
        a("s_mov_b64 exec, 0xff")
        self.rdy_check()
        a("s_mov_b64 exec, -1")
        self.qfetch()

    def qfetch(self):
        for i in range(2): self.a(f"buffer_load_dwordx4 v[{192+4*i}:{195+4*i}], v21, s[40:43], s55 offen offset:{1024*i} sc1")

    def ww_early(self):
        a, wf = self.a, self.wf
        a.label("LW0")
        if self.o.get("now"): a("s_endpgm")
        a("s_lshl_b32 s9, s4, 19")
        a("s_and_b32 s52, s5, 7")
        a("s_lshl_b32 s15, s52, 10")
        a("s_add_u32 s9, s9, s15")
        a("s_lshl_b32 s15, s3, 8")
        a("s_add_u32 s9, s9, s15")
        a("v_mul_u32_u24 v2, 0x1f00, v1")
        a("v_add_u32 v6, v6, v2")
        a("v_add_u32 v7, v7, v2")
        a("s_add_u32 s13, s7, 16384")
        a(f"s_mov_b32 s46, {512*8192}")
        a("s_waitcnt lgkmcnt(0)")
        a("s_mov_b64 s[44:45], s[22:23]")
        if self.o.get("pf3", 0):
            a("s_cmp_eq_u32 s4, 3")
            a("s_cbranch_scc0 LWp")
            a("s_mov_b64 s[48:49], s[36:37]")
            a(f"s_mov_b32 s50, {512*6144}")
            a("s_lshl_b32 s15, s52, 2")
            a("s_add_u32 s15, s15, s3")
            a(f"s_mul_i32 s15, s15, {16*6144}")
            a("v_mul_u32_u24 v3, 6144, v8")
            a("s_mov_b64 exec, 0xffff")
            a(f"buffer_load_dword v238, v3, s[48:51], s15 offen offset:{1024+384}")
            a("s_mov_b64 exec, -1")
            a.label("LWp")
        a("s_load_dword s14, s[40:41], 0")
        a.label("LWq")
        for i in range(2):
            a(f"buffer_load_dwordx4 v{6+i}, s[44:47], s9 offen {wf} lds")
            a("s_add_u32 m0, m0, 1024")
            a("s_add_u32 s9, s9, 32768")
        if self.o.get("qcap", 8): a(f"s_waitcnt vmcnt({self.o.get('qcap', 8)})")
        a("s_cmp_lt_u32 m0, s13")
        a("s_cbranch_scc1 LWq")
        a("s_branch LW2")
        a.label("LH0")
        a("s_cmp_ge_u32 s5, 16")
        a("s_cbranch_scc0 " + ("LTHp" if self.o.get("tnear") else "LTHq" if self.o.get("tpad", 0) else "LTH"))
        a("s_branch LWHp")

    def g_early(self):
        a, wf = self.a, self.wf
        a.label("LG0")
        if self.o.get("nog"): a("s_endpgm")
        a("s_sub_u32 s5, s5, 24")
        if self.o.get("chs", 0):
            a("s_mov_b32 s60, s5")
            a("s_mov_b32 s61, s4")
        else:
            a("s_mov_b32 s60, s4")
            a("s_mov_b32 s61, s5")
        a("s_mov_b32 s50, 2048")
        a("s_cmp_eq_u32 s3, 4")
        a("s_cbranch_scc0 LGW")
        self.c_voff(4)
        a("s_lshl_b32 s9, s61, 7")
        a("s_waitcnt lgkmcnt(0)")
        a("s_mov_b64 s[48:49], s[34:35]")
        a("buffer_load_dwordx2 v[28:29], v4, s[48:51], s9 offen")
        a("s_load_dword s14, s[40:41], 0")
        self.silu_frag(SC)
        a("s_waitcnt vmcnt(0)")
        self.silu_run()
        a("s_waitcnt lgkmcnt(0)")
        a("s_barrier")
        a("s_barrier")
        a("s_branch LGH2")
        a.label("LGW")
        a("v_lshlrev_b32 v6, 4, v0")
        self.voff128(2, 6144, 1, 3)
        a("s_lshl_b32 s9, s61, 2")
        a("s_add_u32 s9, s9, s3")
        a(f"s_mul_i32 s9, s9, {16*6144}")
        a("s_lshl_b32 s6, s60, 7")
        a("s_add_u32 s9, s9, s6")
        a("s_lshl_b32 s13, s3, 5")
        a("s_add_u32 s6, s6, s13")
        a("v_and_b32 v12, 1, v0")
        a("v_and_b32 v13, 48, v0")
        a("v_lshrrev_b32 v4, 1, v13")
        a("v_lshl_add_u32 v4, v12, 10, v4")
        a("v_lshrrev_b32 v14, 5, v0")
        a("v_lshlrev_b32 v14, 10, v14")
        a("v_and_b32 v15, 31, v0")
        a("v_lshl_add_u32 v14, v15, 3, v14")
        a("s_lshl_b32 s63, s3, 8")
        a("s_lshr_b32 m0, s7, 2")
        a(f"s_mov_b32 s54, {512*6144}")
        a("s_mov_b32 s55, 0x20000")
        a("s_lshl_b32 s8, s60, 12")
        a("s_lshl_b32 s15, s3, 10")
        a("s_add_u32 s8, s8, s15")
        a("s_lshl_b32 s15, s61, 7")
        a("s_add_u32 s8, s8, s15")
        a(f"s_add_u32 s8, s8, {HA}")
        a(f"s_add_u32 s62, s8, {ALOC}")
        a("s_waitcnt lgkmcnt(0)")
        self.dstamp(4)
        a("s_mov_b64 s[48:49], s[16:17]")
        a("s_mov_b64 s[52:53], s[36:37]")
        lnh = self.o.get("lnh", 1)
        if lnh:
            a("buffer_load_dwordx2 v[24:25], v14, s[48:51], s63 offen")
        else:
            a("buffer_load_dwordx4 v[24:27], v6, s[48:51], 0 offen")
            a("buffer_load_dwordx4 v[28:31], v6, s[48:51], 0 offen offset:1024")
        self.exec16(3)
        a("buffer_load_dwordx2 v[20:21], v4, s[48:51], s6 offen")
        a("s_mov_b64 exec, -1")
        for i in range(2):
            a(f"buffer_load_dwordx4 v2, s[52:55], s9 offen {wf} lds")
            a(f"buffer_load_dwordx4 v2, s[52:55], s9 offen offset:1024 {wf} lds")
            if i == 0:
                a("s_add_u32 m0, m0, 2048")
                a(f"s_add_u32 s9, s9, {8*6144}")
        a("s_mov_b64 exec, 1")
        a("buffer_load_dword v238, v6, s[40:43], s62 offen sc1")
        a("s_mov_b64 exec, -1")
        a("s_load_dword s14, s[40:41], 0")
        mr0 = 0
        self.traddr128(8, None, 1, 3, grp_sh=11, n=1)
        a("v_xor_b32 v8, s13, v8")
        a("v_mul_u32_u24 v6, 144, v12")
        a("v_add_u32 v6, v6, v13")
        a(f"v_add_u32 v6, {SC}, v6")
        a("v_lshlrev_b32 v7, 4, v12")
        a("v_lshl_add_u32 v13, v13, 1, v7")
        a("s_cmp_eq_u32 s61, 0")
        a("s_cselect_b32 s9, 1.0, 0")
        for i in range(4): a(f"v_mov_b32 v{44+i}, s9")
        a("s_mov_b32 s9, 0x3f803f80")
        if lnh:
            a("v_and_b32 v15, 48, v0")
            a("s_lshl_b32 s15, s3, 2")
            a(f"s_add_u32 s15, s15, {LNS}")
            a("v_add_u32 v15, s15, v15")
            a("v_lshlrev_b32 v7, 5, v12")
            a(f"v_add_u32 v7, {LNS}, v7")
            a(f"v_mov_b32 v52, {f32(1e-5)}")
            self.dstamp(6)
            a("s_waitcnt vmcnt(5) lgkmcnt(0)")
            self.dstamp(7)
            self.tag()
            a("v_dot2_f32_bf16 v48, v24, s9, 0")
            a("v_dot2_f32_bf16 v50, v24, v24, 0")
            a("v_dot2_f32_bf16 v48, v25, s9, v48")
            a("v_dot2_f32_bf16 v50, v25, v25, v50")
            self.unpack(20, 16, 2)
            a("v_permlane16_swap_b32 v48, v50")
            a("v_add_f32 v48, v48, v50")
            self.row_sum(48)
            a("ds_write_b32 v15, v48")
            a("s_waitcnt lgkmcnt(0)")
        else:
            a("v_lshlrev_b32 v7, 7, v12")
            a(f"s_waitcnt vmcnt({5+mr0})")
            for b in range(2):
                a(f"v_dot2_f32_bf16 v{48+b}, v{24+4*b}, s9, 0")
                a(f"v_dot2_f32_bf16 v{50+b}, v{24+4*b}, v{24+4*b}, 0")
            for i in range(1, 4):
                for b in range(2):
                    a(f"v_dot2_f32_bf16 v{48+b}, v{24+4*b+i}, s9, v{48+b}")
                    a(f"v_dot2_f32_bf16 v{50+b}, v{24+4*b+i}, v{24+4*b+i}, v{50+b}")
            a("v_permlane32_swap_b32 v48, v49")
            a("v_permlane32_swap_b32 v50, v51")
            a("v_add_f32 v48, v48, v49")
            a("v_add_f32 v50, v50, v51")
            a("v_permlane16_swap_b32 v48, v50")
            a("v_add_f32 v48, v48, v50")
            self.row_sum(48)
            a("ds_bpermute_b32 v50, v7, v48")
            a("ds_bpermute_b32 v51, v7, v48 offset:64")
            a(f"v_mov_b32 v52, {f32(1e-5)}")
            a("s_waitcnt lgkmcnt(0)")
            self.tag()
            a(f"v_mul_f32 v50, {f32(1/512)}, v50")
            a(f"v_fmamk_f32 v51, v51, {f32(1/512)}, v52")
            a("v_fma_f32 v51, -v50, v50, v51")
            a("v_rsq_f32 v51, v51")
            self.unpack(20, 16, 2)
            for i in range(4): a(f"v_sub_f32 v{16+i}, v{16+i}, v50")
            for i in range(4): a(f"v_mul_f32 v{16+i}, v{16+i}, v51")
        a("v_mov_b32 v58, s14")
        a("v_mov_b32 v59, s14")
        a(f"s_waitcnt vmcnt({1+mr0})")
        self.dstamp(8)
        a("s_barrier")
        self.stamp(1)
        if lnh:
            a("ds_read_b128 v[24:27], v7")
            a("ds_read_b128 v[28:31], v7 offset:16")
        for ks in range(2):
            a(f"ds_read_b128 v[{32+4*ks}:{35+4*ks}], v6 offset:{64*ks}")
            for seg in range(2): self.tr(64 + 8 * ks + 4 * seg, 8, W1 + 8192 * ks + 1024 * seg, 4096)
        if lnh:
            a("s_waitcnt lgkmcnt(10)")
            a("v_pk_add_f32 v[24:25], v[24:25], v[26:27]")
            a("v_pk_add_f32 v[28:29], v[28:29], v[30:31]")
            a("v_add_f32 v50, v24, v25")
            a("v_add_f32 v51, v28, v29")
            a(f"v_mul_f32 v50, {f32(-1/512)}, v50")
            a(f"v_fmamk_f32 v51, v51, {f32(1/512)}, v52")
            a("v_fma_f32 v51, -v50, v50, v51")
            a("v_max_f32 v51, v51, v52")
            a("v_rsq_f32 v51, v51")
            for k in range(2): a(f"v_pk_add_f32 v[{16+2*k}:{17+2*k}], v[{16+2*k}:{17+2*k}], v[50:51] op_sel_hi:[1,0]")
            for k in range(2): a(f"v_pk_mul_f32 v[{16+2*k}:{17+2*k}], v[{16+2*k}:{17+2*k}], v[50:51] op_sel:[0,1] op_sel_hi:[1,1]")
        a("s_waitcnt lgkmcnt(5)")
        self.mfma(40, 64, 32, True)
        self.mfma(44, 68, 32, False)
        a("s_waitcnt lgkmcnt(0)")
        self.mfma(40, 72, 36, False)
        self.mfma(44, 76, 36, False)
        self.exec16(3)
        for k in range(2): a(f"v_pk_fma_f32 v[{40+2*k}:{41+2*k}], v[{16+2*k}:{17+2*k}], v[{44+2*k}:{45+2*k}], v[{40+2*k}:{41+2*k}]")
        a("v_cvt_pk_bf16_f32 v56, v40, v41")
        a("v_cvt_pk_bf16_f32 v57, v42, v43")
        a("buffer_store_dwordx4 v[56:59], v13, s[40:43], s62 offen")
        self.stamp(3)
        a("s_barrier")
        a("buffer_store_dwordx4 v[56:59], v13, s[40:43], s8 offen sc1")
        a("s_mov_b64 exec, -1")

    def wo_setup(self):
        a = self.a
        self.voff128(2, 1024, 3, 4)
        a("s_lshl_b32 s53, s4, 19")
        a("s_lshl_b32 s15, s3, 17")
        a("s_add_u32 s53, s53, s15")
        a("s_lshr_b32 s15, s52, 2")
        a("s_add_u32 s53, s53, s15")
        a(f"s_add_u32 s59, s7, {WO+16384}")
        a(f"s_add_u32 s62, s7, {WO}")
        a("s_mov_b64 s[48:49], s[24:25]")
        a(f"s_mov_b32 s50, {4096*1024}")
    def mr_issue(self, v, srd):
        a, wf = self.a, self.wf
        L = self.lab("Lmr")
        a(f"s_mul_i32 s9, s61, {64*6144}")
        a("s_lshl_b32 s15, s60, 9")
        a("s_add_u32 s9, s9, s15")
        a("s_lshl_b32 s15, s3, 7")
        a("s_add_u32 s9, s9, s15")
        a("s_add_u32 s9, s9, 2048")
        a("s_mov_b32 m0, s63")
        a("s_add_u32 s15, s63, 8192")
        a.label(L)
        a(f"buffer_load_dwordx4 v{v}, s[{srd}:{srd+3}], s9 offen {wf} lds")
        a("s_add_u32 m0, m0, 1024")
        a(f"s_add_u32 s9, s9, {8*6144}")
        a("s_cmp_lt_u32 m0, s15")
        a(f"s_cbranch_scc1 {L}")
    def mr_compute(self, sc, younger):
        a = self.a
        self.traddr128(8, "s63", 5, 6)
        a("v_and_b32 v5, 1, v0")
        a("v_and_b32 v6, 48, v0")
        a("v_mul_u32_u24 v7, 144, v5")
        a("v_add_u32 v7, v7, v6")
        a(f"v_add_u32 v7, {sc}, v7")
        a("v_lshlrev_b32 v5, 4, v5")
        a("v_lshl_add_u32 v5, v6, 1, v5")
        for ks in range(2): a(f"ds_read_b128 v[{32+4*ks}:{35+4*ks}], v7 offset:{64*ks}")
        a("s_lshl_b32 s9, s60, 14")
        a("s_lshl_b32 s15, s3, 12")
        a("s_add_u32 s9, s9, s15")
        a("s_lshl_b32 s15, s61, 7")
        a("s_add_u32 s9, s9, s15")
        a(f"s_add_u32 s9, s9, {HP}")
        a(f"s_waitcnt vmcnt({younger})")
        a("s_setprio 3")
        for ks in range(2):
            for t in range(4): self.tr(64 + 16 * ks + 4 * t, 8 + t, 4096 * ks, 2048)
        a("s_waitcnt lgkmcnt(0)")
        for ks in range(2):
            for t in range(4): self.mfma(40 + 4 * t, 64 + 16 * ks + 4 * t, 32 + 4 * ks, ks == 0)
        self.exec16(3)
        for t in range(4):
            a(f"v_cvt_pk_bf16_f32 v{40+4*t}, v{40+4*t}, v{41+4*t}")
            a(f"v_cvt_pk_bf16_f32 v{41+4*t}, v{42+4*t}, v{43+4*t}")
            a(f"v_mov_b32 v{42+4*t}, s14")
        for t in range(4): a(f"buffer_store_dwordx4 v[{40+4*t}:{43+4*t}], v5, s[40:43], s9 offen offset:{1024*t} sc1")
        a("s_mov_b64 exec, -1")
        a("s_setprio 0")
        self.stamp(11)
    def rdy_publish(self, vb, jreg):
        a = self.a
        for i in range(4): a(f"v_mov_b32 v{vb+i}, s14")
        a(f"v_mov_b32 v{vb+4}, 0")
        a(f"s_lshl_b32 s15, {jreg}, 4")
        a(f"s_add_u32 s15, s15, {RDY}")
        a("s_mov_b64 exec, 1")
        a(f"buffer_store_dwordx4 v[{vb}:{vb+3}], v{vb+4}, s[40:43], s15 offen sc1")
        a("s_mov_b64 exec, -1")
    def rdy_load(self):
        self.a("buffer_load_dword v237, v229, s[40:43], s27 offen sc1")
    def rdy_check(self):
        a = self.a
        L = self.lab("Lok")
        a("v_cmp_ne_u32 vcc, s14, v237")
        a(f"s_cbranch_vccz {L}")
        self.poll(["buffer_load_dword v237, v229, s[40:43], s27 offen sc1"], [(*self.TAGBAD, 237)], sleep=2)
        a.label(L)

    def g_index(self):
        a = self.a
        a("s_mul_i32 s26, s4, 7")
        a("s_add_u32 s26, s26, s5")
        a("s_cmp_eq_u32 s5, 7")

    def tw_main(self):
        a = self.a
        self.stamp(1)
        a("v_lshlrev_b32 v22, 2, v8")
        a("v_lshrrev_b32 v23, 5, v0")
        a("v_lshl_add_u32 v22, v23, 1, v22")
        a("v_and_b32 v23, 16, v0")
        a("v_lshl_add_u32 v22, v23, 3, v22")
        a("s_mul_i32 s13, s3, 272")
        a(f"s_add_u32 s13, s13, {QB}")
        a("v_add_u32 v22, s13, v22")
        a("v_xor_b32 v3, v8, v1")
        a("v_lshlrev_b32 v3, 4, v3")
        a("v_lshl_add_u32 v3, v8, 8, v3")
        a("v_add_u32 v8, s7, v3")
        a("v_xor_b32 v9, 64, v8")
        a("v_xor_b32 v10, 0x80, v8")
        a("v_xor_b32 v11, 0xc0, v8")
        for t in range(4):
            for ks in range(4):
                r = 64 + 16 * t + 4 * ks
                a(f"ds_read_b128 v[{r}:{r+3}], v{8+ks} offset:{4096*t}")
        a("s_lshl_b32 s8, s3, 6")
        self.traddr256(12, 2, VB, 3, 5, first="s8")
        a("v_mul_u32_u24 v20, 272, v5")
        a("v_lshl_add_u32 v20, v1, 4, v20")
        a(f"v_add_u32 v20, {QB}, v20")
        a("v_lshlrev_b32 v14, 6, v5")
        a("v_lshl_add_u32 v14, v1, 4, v14")
        a(f"v_add_u32 v14, {PB}, v14")
        a("s_lshl_b32 s9, s3, 9")
        a("v_add_u32 v15, s9, v14")
        a("v_lshlrev_b32 v16, 4, v5")
        a(f"v_add_u32 v16, {MX}, v16")
        a("s_lshl_b32 s9, s3, 2")
        a("v_add_u32 v17, s9, v16")
        a("v_lshlrev_b32 v18, 8, v5")
        a("v_lshl_add_u32 v18, v1, 4, v18")
        a("v_lshlrev_b32 v19, 3, v5")
        a("s_lshl_b32 s6, s4, 4")
        a("s_add_u32 s6, s6, s5")
        a("s_lshl_b32 s9, s6, 10")
        a("s_add_u32 s8, s8, s9")
        a(f"s_add_u32 s8, s8, {HC}")
        a("s_lshl_b32 s52, s6, 7")
        a(f"s_add_u32 s52, s52, {HL}")
        a(f"s_add_u32 s53, s8, {LOC}")
        a(f"s_add_u32 s54, s52, {LOC}")
        a(f"s_mov_b32 s10, {f32(CSC)}")
        a("s_lshl_b64 s[58:59], 1, s3")
        for i in range(4): a(f"v_mov_b32 v{224+i}, 0x3f803f80")
        a("v_bfe_u32 v3, v0, 2, 2")
        a("v_lshl_add_u32 v14, v3, 9, v14")
        a("v_lshl_add_u32 v234, v3, 2, v16")
        a("v_lshrrev_b32 v4, 1, v3")
        a("v_lshl_add_u32 v15, v4, 8, v15")
        a("v_and_b32 v4, 1, v3")
        a("v_lshl_add_u32 v15, v4, 3, v15")
        def vr(k):
            for t in range(2): self.tr(128 + 8 * k + 4 * t, 12 + t, 8192 * k, 4096)
        def xrow(op, r):
            a(f"v_mov_b32 v233, v{r}")
            a(f"v_permlane16_swap_b32 v{r}, v233")
            a(f"{op} v{r}, v{r}, v233")
            a(f"v_mov_b32 v233, v{r}")
            a(f"v_permlane32_swap_b32 v{r}, v233")
            a(f"{op} v{r}, v{r}, v233")
        a(f"s_mov_b32 s12, {SPIN}")
        a("s_barrier")
        for k in (0, 2, 4, 6): vr(k)
        a("s_branch LTq1")
        a.label("LTq0")
        if self.o.get("qsleep", 0): a(f"s_sleep {self.o['qsleep']}")
        self.qfetch()
        a.label("LTq1")
        a("s_waitcnt vmcnt(1)")
        self.unpack(192, 24, 4)
        a("s_waitcnt vmcnt(0)")
        self.unpack(196, 32, 4)
        for k in range(4): a(f"v_pk_add_f32 v[{24+2*k}:{25+2*k}], v[{24+2*k}:{25+2*k}], v[{32+2*k}:{33+2*k}]")
        for i in range(4): a(f"v_permlane32_swap_b32 v{24+i}, v{28+i}")
        for k in range(2): a(f"v_pk_add_f32 v[{24+2*k}:{25+2*k}], v[{24+2*k}:{25+2*k}], v[{28+2*k}:{29+2*k}]")
        for i in range(2): a(f"v_permlane16_swap_b32 v{24+i}, v{26+i}")
        a("v_pk_add_f32 v[24:25], v[24:25], v[26:27]")
        a("v_cmp_u_f32 vcc, v24, v25")
        a("v_cvt_pk_bf16_f32 v24, v24, v25")
        a("s_cbranch_vccz LTq2")
        a("s_sub_u32 s12, s12, 1")
        a("s_cbranch_scc0 LTq0")
        a.label("LTq2")
        self.stamp(2)
        a("ds_write_b16 v22, v24")
        a("ds_write_b16_d16_hi v22, v24 offset:64")
        a("s_waitcnt lgkmcnt(0)")
        a("s_barrier")
        pe = self.o.get("pe", 1)
        if pe: a("buffer_load_dword v238, v236, s[92:95], s61 offen")
        if pe == 2: a("buffer_load_dword v237, v236, s[92:95], s60 offen")
        for ks in range(4): a(f"ds_read_b128 v[{208+4*ks}:{211+4*ks}], v20 offset:{64*ks}")
        self.stamp(3)
        def keep(t):
            for i in range(4): a(f"v_mov_b32_dpp v{40+i}, v{40+4*t+i} quad_perm:[0,1,2,3] row_mask:0xf bank_mask:{1<<t:#x}")
        for ks in range(4):
            a(f"s_waitcnt lgkmcnt({3-ks})")
            for t in range(2): self.mfma(40 + 4 * t, 64 + 16 * t + 4 * ks, 208 + 4 * ks, ks == 0)
        for ks in range(4):
            for t in range(2, 4): self.mfma(40 + 4 * t, 64 + 16 * t + 4 * ks, 208 + 4 * ks, ks == 0)
            if ks < 3: vr(1 + 2 * ks)
            if ks == 2: keep(1)
        vr(7)
        keep(2); keep(3)
        a("v_max3_f32 v232, v40, v41, v42")
        a("v_max_f32 v232, v232, v43")
        for m in ("row_ror:4", "row_ror:8"): a(f"v_max_f32_dpp v232, v232, v232 {m} row_mask:0xf bank_mask:0xf")
        xrow("v_max_f32", 232)
        a(f"v_mul_f32 v230, {f32(-CSC)}, v232")
        for i in range(4): a(f"v_fma_f32 v{40+i}, v{40+i}, s10, v230")
        a("ds_write_b32 v17, v230")
        for i in range(4): a(f"v_exp_f32 v{40+i}, v{40+i}")
        for i in range(2): a(f"v_cvt_pk_bf16_f32 v{44+i}, v{40+2*i}, v{41+2*i}")
        a("ds_write_b64 v15, v[44:45]")
        if self.o.get("tpad", 0):
            a("s_branch LTsk")
            a.label("LTHq")
            a("s_branch LTH")
            a.label("LTsk")
        a("s_waitcnt lgkmcnt(0)")
        a("s_barrier")
        self.stamp(4)
        a("; unpk on")
        for i in range(2): a(f"ds_read_b128 v[{64+4*i}:{67+4*i}], v14 offset:{256*i}")
        a("ds_read_b32 v24, v234")
        def pv(k):
            for t in range(2): self.mfma(192 + 8 * (k >> 1) + 4 * t, 128 + 8 * k + 4 * t, 64 + 4 * (k & 1), (k & 1) == 0)
        XG = ("row_ror:4", "row_ror:8")
        a("s_waitcnt lgkmcnt(1)")
        self.mfma(96, 224, 64, True)
        self.mfma(96, 224, 68, False)
        pv(0)
        a("s_waitcnt lgkmcnt(0)")
        a(f"v_min_f32_dpp v32, v24, v24 {XG[0]} row_mask:0xf bank_mask:0xf")
        pv(1)
        a(f"v_min_f32_dpp v32, v32, v32 {XG[1]} row_mask:0xf bank_mask:0xf")
        a("v_sub_f32 v24, v32, v24")
        a("v_exp_f32 v24, v24")
        pv(2)
        def pick(sw, lo=0, hi=8):
            for i in range(lo, hi): a(f"v_fmac_f32_dpp v{192+i}, v{192+8*sw+i}, v{24+sw} row_shl:{4*sw} row_mask:0xf bank_mask:0xf")
        a("v_mul_f32 v33, v24, v96")
        for sw in range(1, 4): a(f"v_mov_b32_dpp v{24+sw}, v24 row_shl:{4*sw} row_mask:0xf bank_mask:0xf")
        pv(3)
        a(f"v_add_f32_dpp v33, v33, v33 {XG[0]} row_mask:0xf bank_mask:0xf")
        for i in range(4): a(f"v_pk_mul_f32 v[{192+2*i}:{193+2*i}], v[{192+2*i}:{193+2*i}], v[24:25] op_sel_hi:[1,0]")
        pv(4)
        a(f"v_add_f32_dpp v33, v33, v33 {XG[1]} row_mask:0xf bank_mask:0xf")
        a("s_mov_b64 exec, s[58:59]")
        a("buffer_store_dwordx2 v[32:33], v19, s[40:43], s54 offen")
        a("s_mov_b64 exec, -1")
        pv(5)
        pick(1, 0, 4)
        pv(6)
        pick(1, 4, 8)
        pv(7)
        pick(2)
        pick(3)
        self.exec16(15)
        for i in range(4): a(f"v_cvt_pk_bf16_f32 v{200+i}, v{192+2*i}, v{193+2*i}")
        a("; unpk off")
        a("buffer_store_dwordx4 v[200:203], v18, s[40:43], s53 offen")
        self.stamp(5)
        a("s_mov_b64 exec, -1")
        a("s_barrier")
        if pe != 2: a("buffer_load_dword v237, v236, s[92:95], s60 offen")
        if not pe: a("buffer_load_dword v238, v236, s[92:95], s61 offen")
        self.exec16(15)
        a("buffer_store_dwordx4 v[200:203], v18, s[40:43], s8 offen sc1")
        a("s_mov_b64 exec, s[58:59]")
        a("buffer_store_dwordx2 v[32:33], v19, s[40:43], s52 offen sc1")
        a("s_mov_b64 exec, -1")
        a("s_cmp_eq_u32 s3, 1")
        a("s_cbranch_scc0 LTWe")
        self.final = True
        if self.o.get("nored"): self.end()
        a("s_cmp_lt_u32 s5, 4")
        a("s_cbranch_scc0 LTWe")
        a("s_lshl_b32 s6, s4, 2")
        a("s_add_u32 s6, s6, s5")
        self.srd(44, 16, 2048)
        self.srd(48, 38, 2048)
        a("v_bfe_u32 v2, v0, 2, 1")
        a("v_and_b32 v3, 3, v0")
        a("v_lshlrev_b32 v4, 3, v3")
        a("v_lshl_add_u32 v5, v2, 10, v4")
        a("v_lshlrev_b32 v6, 1, v5")
        a("v_lshrrev_b32 v8, 3, v0")
        a("v_lshl_add_u32 v7, v8, 12, v6")
        a("v_lshlrev_b32 v9, 4, v0")
        a("s_lshl_b32 s7, s6, 5")
        a("s_lshl_b32 s8, s6, 6")
        a(f"s_add_u32 s9, s8, {HD}")
        a(f"s_add_u32 s52, s8, {HM}")
        a(f"s_add_u32 s53, s8, {HM+3*4096}")
        a(f"s_mul_i32 s54, s6, {HFS}")
        a(f"s_add_u32 s54, s54, {HF}")
        a("s_add_u32 s55, s54, 4096")
        a("buffer_load_dwordx2 v[10:11], v5, s[44:47], s7 offen")
        a(f"s_mov_b32 s27, {RDY}")
        self.poll([f"buffer_load_dword v{40+i}, v9, s[40:43], s27 offen offset:{1024*i} sc1" for i in range(4)]
                  + ["buffer_load_dwordx4 v[12:15], v6, s[40:43], s52 offen sc1", "buffer_load_dwordx4 v[16:19], v6, s[40:43], s53 offen sc1"],
                  [(*self.TAGBAD, 40 + i) for i in range(4)] + [(*self.TAGBAD, 14), (*self.TAGBAD, 18)], sleep=2)
        self.poll(["buffer_load_dwordx4 v[24:27], v7, s[40:43], s9 offen sc1"], [(*self.POISON, 24)], sleep=2)
        self.stamp(6)
        a("s_cmp_eq_u32 s6, 0")
        a("s_cbranch_scc0 LTWn")
        a("s_mov_b64 exec, 1")
        a("v_mov_b32 v20, s14")
        a("v_mov_b32 v21, 0")
        a(f"buffer_store_dword v20, v21, s[40:43], 0 offen offset:{EPOCH} sc1")
        a("s_mov_b64 exec, -1")
        a.label("LTWn")
        red8 = self.red8
        red8(24)
        self.unpack(10, 28, 2)
        self.unpack(12, 32, 2)
        self.unpack(16, 36, 2)
        for i in range(4): a(f"v_fmac_f32 v{28+i}, v{24+i}, v{32+i}")
        for r in range(1, 4):
            a(f"v_mov_b32_dpp v28, v{28+r} quad_perm:[0,1,2,3] row_mask:{1<<r:#x} bank_mask:0xf")
            a(f"v_mov_b32_dpp v36, v{36+r} quad_perm:[0,1,2,3] row_mask:{1<<r:#x} bank_mask:0xf")
        a("v_lshrrev_b32 v4, 4, v0")
        a("v_lshl_add_u32 v5, v4, 1, v5")
        if self.o.get("fsleep"): a(f"s_sleep {self.o['fsleep']}")
        self.sum_poll([f"buffer_load_dwordx4 v[{64+4*i}:{67+4*i}], v9, s[40:43], s{54+(i>>2)} offen offset:{1024*(i&3)} sc1" for i in range(7)], 64, 56)
        self.stamp(7)
        a("v_permlane32_swap_b32 v56, v58")
        a("v_permlane32_swap_b32 v57, v59")
        a("v_pk_add_f32 v[56:57], v[56:57], v[58:59]")
        a("v_permlane16_swap_b32 v56, v57")
        a("v_add_f32 v56, v56, v57")
        a("v_add_f32_dpp v56, v56, v56 row_ror:8 row_mask:0xf bank_mask:0xf")
        self.exec16(0xff)
        a("v_fmac_f32 v28, v56, v36")
        a("v_cvt_pk_bf16_f32 v10, v28, v28")
        a("buffer_store_short v10, v5, s[48:51], s7 offen")
        self.stamp(8)
        if self.o.get("padto"):
            a("s_cmp_eq_u32 s6, 0")
            a("s_cbranch_scc0 LTWe")
        if self.o.get("padto"):
            a(f"s_mov_b32 s100, {self.o['padto']}")
            if self.o.get("amp"):
                a("s_waitcnt lgkmcnt(0)")
                a(f"s_sub_u32 s98, s{64+2*self.o['amp']}, s96")
                a("s_mul_i32 s98, s98, 10")
                a("s_add_u32 s100, s100, s98")
            a.label("Lpad")
            a("s_memrealtime s[98:99]")
            a("s_waitcnt lgkmcnt(0)")
            a("s_sub_u32 s98, s98, s96")
            a("s_cmp_lt_u32 s98, s100")
            a("s_cbranch_scc1 Lpad")
        a.label("LTWe")
        self.end()

    def ww_main(self):
        a, wf = self.a, self.wf
        a.label("LWHp")
        a("s_branch LWH2")
        a.label("LW2")
        mre = self.o.get("mre", 0)
        self.voff128(12, 6144, 3, 4)
        a("s_mov_b64 s[44:45], s[36:37]")
        a(f"s_mov_b32 s46, {512*6144}")
        a("s_mov_b32 s60, s4")
        a("s_mov_b32 s61, s52")
        a(f"s_add_u32 s63, s7, {WO+8192}")
        if mre: self.mr_issue(12, 44)
        self.stamp(1)
        a("v_mov_b32 v17, v12")
        self.traddr256(8, 8, "s7", 3, 5)
        a("s_lshr_b32 s58, s7, 2")
        a(f"s_add_u32 s58, s58, {GA}")
        a("v_bfe_u32 v3, v0, 2, 1")
        a("v_mul_u32_u24 v16, 144, v3")
        a("v_lshl_add_u32 v16, v1, 4, v16")
        a(f"v_add_u32 v16, {HW}, v16")
        a("v_lshlrev_b32 v18, 4, v0")
        a(f"v_add_u32 v18, {RED}, v18")
        a("v_and_b32 v19, 15, v0")
        a("v_lshlrev_b32 v19, 3, v19")
        a("v_lshrrev_b32 v3, 5, v0")
        a("v_lshl_add_u32 v19, v3, 7, v19")
        a("v_and_b32 v3, 16, v0")
        a("v_lshl_add_u32 v19, v3, 9, v19")
        a("s_lshl_b32 s55, s52, 14")
        a("s_lshl_b32 s15, s3, 11")
        a("s_add_u32 s55, s55, s15")
        a("s_lshl_b32 s15, s4, 8")
        a("s_add_u32 s55, s55, s15")
        a(f"s_add_u32 s55, s55, {HB}")
        a("s_lshl_b32 s52, s52, 9")
        self.wo_setup()
        vpf = self.o.get("vpf", 1)
        if vpf:
            self.srd(92, 20, 0x2000000)
            a("s_lshl_b32 s8, s61, 2")
            a("s_add_u32 s8, s8, s3")
            a("s_lshr_b32 s9, s8, 4")
            a("s_lshl_b32 s9, s9, 3")
            a("s_add_u32 s9, s9, s4")
            a("s_lshl_b32 s9, s9, 21")
            a("s_and_b32 s8, s8, 15")
            a("s_lshl_b32 s8, s8, 15")
            a("s_add_u32 s8, s8, s9")
            a(f"s_add_u32 s8, s8, {6144*256 + 12288}")
            a("v_lshrrev_b32 v20, 5, v0")
            a("v_and_b32 v4, 31, v0")
            a("v_lshlrev_b32 v4, 7, v4")
            a("v_lshl_add_u32 v20, v20, 14, v4")
        a(f"s_waitcnt vmcnt({8+8*mre}) lgkmcnt(0)")
        self.tag()
        for t in range(8): self.tr(64 + 4 * t, 8 + t, 0, 4096)
        a(f"s_waitcnt vmcnt({8*mre})")
        self.stamp(2)
        for t in range(8): self.tr(96 + 4 * t, 8 + t, 8192, 4096)
        a("s_barrier")
        for ks in range(2): a(f"ds_read_b128 v[{24+4*ks}:{27+4*ks}], v16 offset:{64*ks}")
        self.stamp(3)
        a("s_waitcnt lgkmcnt(0)")
        for ks in range(2):
            for t in range(8): self.mfma(128 + 4 * t, 24 + 4 * ks, 64 + 32 * ks + 4 * t, ks == 0)
        for k in range(4): a(f"v_permlane32_swap_b32 v{128+8*k}, v{132+8*k}")
        def red4(stride):
            for w in range(4): a(f"ds_read_b128 v[{24+4*w}:{27+4*w}], v18 offset:{stride*w}")
            a("s_waitcnt lgkmcnt(2)")
            for k in range(2): a(f"v_pk_add_f32 v[{24+2*k}:{25+2*k}], v[{24+2*k}:{25+2*k}], v[{28+2*k}:{29+2*k}]")
            a("s_waitcnt lgkmcnt(0)")
            for k in range(2): a(f"v_pk_add_f32 v[{32+2*k}:{33+2*k}], v[{32+2*k}:{33+2*k}], v[{36+2*k}:{37+2*k}]")
            for k in range(2): a(f"v_pk_add_f32 v[{24+2*k}:{25+2*k}], v[{24+2*k}:{25+2*k}], v[{32+2*k}:{33+2*k}]")
        a("v_cvt_pk_bf16_f32 v56, v128, v136")
        a("v_cvt_pk_bf16_f32 v57, v144, v152")
        a("buffer_store_dwordx2 v[56:57], v19, s[40:43], s55 offen sc1")
        self.stamp(4)
        if self.o.get("owait", 0): a("s_waitcnt vmcnt(0)")
        a("s_barrier")
        if vpf:
            vm = self.o.get("vmask", 16)
            if vm:
                a(f"s_mov_b32 exec_lo, {(0xffffffff << vm) & 0xffffffff:#x}")
                a(f"s_mov_b32 exec_hi, {(0xffffffff << vm) & 0xffffffff:#x}")
            a("buffer_load_dword v236, v20, s[92:95], s8 offen")
            a("s_mov_b64 exec, -1")
        def wo(n):
            L = self.lab("LWd")
            a("s_mov_b32 m0, s62")
            a(f"s_add_u32 s62, s62, {1024*n}" if n else "s_mov_b32 s62, s59")
            a.label(L)
            a(f"buffer_load_dwordx4 v2, s[48:51], s53 offen {wf} lds")
            a("s_add_u32 m0, m0, 1024")
            a("s_add_u32 s53, s53, 8192")
            a("s_cmp_lt_u32 m0, s62")
            a(f"s_cbranch_scc1 {L}")
        a("s_cmp_eq_u32 s61, 3")
        a("s_cbranch_scc1 LM")
        ms = self.o.get("msplit", 0)
        if ms:
            if ms < 4:
                a(f"s_cmp_ge_u32 s3, {ms}")
                a("s_cbranch_scc1 LWm")
            if not mre: self.mr_issue(17, 44)
            oe = self.o.get("oearly", 8)
            if oe: wo(oe)
            self.mr_compute(SCW, oe)
        self.delay("odel")
        a.label("LWm")
        wo(0)
        a("v_and_b32 v3, 15, v0")
        a("v_lshlrev_b32 v13, 7, v3")
        a("s_lshl_b32 s9, s4, 14")
        a(f"s_add_u32 s9, s9, {HC}")
        a("s_lshl_b32 s8, s4, 11")
        a(f"s_add_u32 s8, s8, {HL}")
        self.stamp(5)
        a("v_lshlrev_b32 v229, 4, v0")
        a("s_mul_i32 s13, s4, 240")
        a("s_sub_u32 s13, 2432, s13")
        a("v_mov_b32 v4, s13")
        a("v_cmp_gt_u32 vcc, 16, v0")
        a("v_cndmask_b32 v229, v4, v229, vcc")
        a("s_lshl_b32 s27, s4, 8")
        a(f"s_add_u32 s27, s27, {RDY}")
        self.rdy_load()
        wpf = self.o.get("wpf", 0)
        if wpf:
            a("s_mov_b64 s[44:45], s[30:31]")
            a(f"s_mov_b32 s46, {512*3584}")
            a("s_lshr_b32 s13, s52, 7")
            a("s_add_u32 s13, s13, s3")
            a(f"s_mul_i32 s13, s13, {16*3584}")
            a("s_mul_i32 s15, s4, 448")
            a("s_add_u32 s13, s13, s15")
            a("v_lshrrev_b32 v4, 2, v0")
            a("v_mul_u32_u24 v4, 3584, v4")
            a("v_and_b32 v5, 3, v0")
            a("v_lshl_add_u32 v4, v5, 7, v4")
            a("buffer_load_dword v238, v4, s[44:47], s13 offen")
        a("s_lshl_b32 s15, s3, 8")
        a("s_add_u32 s9, s9, s15")
        a("s_lshl_b32 s15, s3, 3")
        a("s_add_u32 s8, s8, s15")
        a(f"s_add_u32 s15, s7, {WO}")
        self.traddr128(8, "s15", 3, 4)
        a("v_and_b32 v3, 15, v0")
        a("v_xor_b32 v12, v3, v1")
        a("v_lshlrev_b32 v12, 4, v12")
        a("v_lshl_add_u32 v4, v1, 10, v12")
        for i in range(1, 4):
            a(f"v_xor_b32 v{4+i}, {64*i}, v4")
            a(f"v_add_u32 v{4+i}, {3072*i}, v{4+i}")
        a("v_lshl_add_u32 v20, v3, 8, v12")
        a("v_add_u32 v20, s58, v20")
        for i in range(1, 4): a(f"v_xor_b32 v{20+i}, {64*i}, v20")
        a("v_lshlrev_b32 v14, 4, v1")
        a("v_lshrrev_b32 v12, 5, v0")
        a("v_lshlrev_b32 v15, 8, v12")
        a("v_and_b32 v12, 31, v0")
        a("v_lshl_add_u32 v15, v12, 2, v15")
        a("s_lshl_b32 s15, s3, 9")
        a(f"s_add_u32 s15, s15, {RED}")
        a("v_add_u32 v15, s15, v15")
        a("v_lshlrev_b32 v17, 4, v3")
        a("v_lshl_add_u32 v17, v1, 11, v17")
        a("s_lshl_b32 s55, s4, 12")
        a("s_lshr_b32 s15, s52, 1")
        a("s_add_u32 s55, s55, s15")
        a(f"s_add_u32 s55, s55, {HD}")
        a("s_mov_b32 m0, s58")
        a("v_mov_b32 v128, 0")
        a(f"s_waitcnt vmcnt({wpf})")
        self.stamp(6)
        self.rdy_check()
        def sissue():
            a("s_mov_b64 exec, 0xffff")
            a("buffer_load_dwordx2 v[128:129], v13, s[40:43], s8 offen sc1")
            a("s_mov_b64 exec, -1")
        def cissue():
            for i in range(4): a(f"buffer_load_dwordx4 v{4+i}, s[40:43], s9 offen offset:{1024*i} sc1 lds")
        def smid():
            cissue()
            for ks in range(4):
                for t in range(4): self.tr(64 + 16 * ks + 4 * t, 8 + t, 4096 * ks, 2048)
            self.stamp(9)
            a("s_waitcnt vmcnt(4)")
            a("v_cmp_eq_u32 vcc, -1, v128")
            a("s_cbranch_vccz LWc")
        def sbody():
            a("s_waitcnt vmcnt(0)")
            a("v_cmp_eq_u32 s[10:11], -1, v128")
        self.spin(sbody, alt=([8, 9], LOC, self.o.get("every", 32)), issue=sissue, mid=smid)
        D8 = ("quad_perm:[1,0,3,2]", "quad_perm:[2,3,0,1]", "row_half_mirror")
        def cmid():
            a.label("LWc")
            for i, m in enumerate(D8): a(f"v_min_f32_dpp v134, v{134 if i else 128}, v{134 if i else 128} {m} row_mask:0xf bank_mask:0xf")
            a("v_sub_f32 v134, v134, v128")
            a("v_exp_f32 v134, v134")
            a("v_mul_f32 v135, v134, v129")
            for m in D8: a(f"v_add_f32_dpp v135, v135, v135 {m} row_mask:0xf bank_mask:0xf")
            a("v_rcp_f32 v135, v135")
            a("v_mul_f32 v134, v134, v135")
            for r in range(4): a(f"ds_bpermute_b32 v{130+r}, v14, v134 offset:{4*r}")
        def cbody():
            a("s_waitcnt vmcnt(0)")
            for ks in range(4): a(f"ds_read_b128 v[{24+4*ks}:{27+4*ks}], v{20+ks}")
            a("s_waitcnt lgkmcnt(0)")
            a("v_max3_u32 v136, v24, v28, v32")
            a("v_max_u32 v136, v136, v36")
            a("v_cmp_eq_u32 s[10:11], -1, v136")
        self.spin(cbody, issue=cissue, mid=cmid, keep=(9, 99, 98))
        self.stamp(7)
        def fin(k, step):
            ts = (2 * k, 2 * k + 1)
            if step == 0:
                for t in ts: a(f"v_pk_mul_f32 v[{40+4*t}:{41+4*t}], v[{40+4*t}:{41+4*t}], v[130:131]")
                for t in ts: a(f"v_pk_fma_f32 v[{40+4*t}:{41+4*t}], v[{42+4*t}:{43+4*t}], v[132:133], v[{40+4*t}:{41+4*t}]")
                for t in ts: a(f"v_add_f32 v{40+4*t}, v{40+4*t}, v{41+4*t}")
            else:
                a(f"v_permlane16_swap_b32 v{40+8*k}, v{44+8*k}")
                a(f"v_add_f32 v{40+8*k}, v{40+8*k}, v{44+8*k}")
                a(f"ds_write_b32 v15, v{40+8*k} offset:{128*k}")
        for k in range(2):
            for ks in range(4):
                for t in (2 * k, 2 * k + 1): self.mfma(40 + 4 * t, 24 + 4 * ks, 64 + 16 * ks + 4 * t, ks == 0)
        fin(0, 0); fin(0, 1); fin(1, 0); fin(1, 1)
        a("s_waitcnt lgkmcnt(0)")
        a("s_barrier")
        a("s_cmp_eq_u32 s3, 0")
        a("s_cbranch_scc0 LWe")
        a("s_mov_b32 exec_hi, 0")
        red4(512)
        a("buffer_store_dwordx4 v[24:27], v17, s[40:43], s55 offen sc1")
        self.stamp(8)
        a.label("LWe")
        self.end()

    def g_role(self):
        a, wf = self.a, self.wf
        self.mute = True
        ms = self.o.get("msplit", 0)
        a("s_lshr_b32 s63, s7, 1")
        a(f"s_add_u32 s63, s63, {MRG}")
        def gvp():
            self.srd(92, 20, 0x2000000)
            a("s_lshl_b32 s8, s5, 2")
            a("s_add_u32 s8, s8, s3")
            a("s_lshr_b32 s9, s8, 4")
            a("s_lshl_b32 s9, s9, 3")
            a("s_add_u32 s9, s9, s4")
            a("s_lshl_b32 s9, s9, 21")
            a("s_and_b32 s8, s8, 15")
            a("s_lshl_b32 s8, s8, 15")
            a("s_add_u32 s8, s8, s9")
            a(f"s_add_u32 s8, s8, {6144*256 + 12288}")
            a("v_lshrrev_b32 v3, 5, v0")
            a("v_and_b32 v4, 31, v0")
            a("v_lshlrev_b32 v4, 7, v4")
            a("v_lshl_add_u32 v3, v3, 14, v4")
            m = (1 << self.o.get("gvp", 16)) - 1
            a(f"s_mov_b32 exec_lo, {m:#x}")
            a(f"s_mov_b32 exec_hi, {m:#x}")
            a("buffer_load_dword v236, v3, s[92:95], s8 offen")
            a("s_mov_b64 exec, -1")
            if self.o.get("gv2", 16):
                m = (0xffffffff << (32 - self.o.get("gv2", 16))) & 0xffffffff
                a("s_sub_u32 s8, s8, 4096")
                a(f"s_mov_b32 exec_lo, {m:#x}")
                a(f"s_mov_b32 exec_hi, {m:#x}")
                a("buffer_load_dword v237, v3, s[92:95], s8 offen")
                a("s_mov_b64 exec, -1")
        if self.o.get("gall", 0): gvp()
        self.g_index()
        a("s_cbranch_scc1 LO3")
        if ms < 4:
            a(f"s_cmp_lt_u32 s3, {ms}")
            a("s_cbranch_scc1 LGn")
            self.mr_issue(2, 52)
            a.label("LGn")
        if not self.o.get("gall", 0): gvp()
        a(f"s_add_u32 s7, s7, {GU}")
        a("s_mov_b32 s53, s26")
        for i in range(4): a(f"v_mov_b32 v{32+i}, -1")
        a("v_lshrrev_b32 v3, 3, v0")
        a(f"v_mul_u32_u24 v3, {HFS}, v3")
        a("v_and_b32 v4, 7, v0")
        a("v_lshl_add_u32 v3, v4, 4, v3")
        a(f"s_mul_i32 s26, s3, {8*HFS}")
        a("s_lshl_b32 s15, s53, 7")
        a("s_add_u32 s26, s26, s15")
        a(f"s_add_u32 s26, s26, {HF}")
        a("buffer_store_dwordx4 v[32:35], v3, s[40:43], s26 offen sc1")
        a(f"s_and_b32 s52, s53, {self.o.get(chr(114)+chr(111)+chr(116), 0)}")
        a("s_cmp_eq_u32 s52, 0")
        a("s_cselect_b64 s[44:45], s[28:29], s[30:31]")
        a("s_cselect_b64 s[48:49], s[30:31], s[28:29]")
        a(f"s_mov_b32 s46, {512*3584}")
        a(f"s_mov_b32 s50, {512*3584}")
        a("s_lshl_b32 s52, s52, 13")
        a("v_lshrrev_b32 v1, 2, v0")
        a("v_bfe_u32 v2, v0, 4, 1")
        a("v_lshlrev_b32 v2, 1, v2")
        a("v_and_b32 v3, 3, v0")
        a("v_xor_b32 v2, v2, v3")
        a("v_mul_u32_u24 v4, 3584, v1")
        a("v_lshl_add_u32 v2, v2, 4, v4")
        a(f"s_mul_i32 s8, s3, {128*3584}")
        a("s_lshl_b32 s15, s53, 6")
        a("s_add_u32 s8, s8, s15")
        def mat(m, lo=0, hi=8):
            L = self.lab("LGx")
            if lo == 0:
                a("s_add_u32 s58, s7, s52")
                a("s_mov_b32 s59, s8")
            a("s_mov_b32 m0, s58")
            a(f"s_add_u32 s58, s58, {1024*(hi-lo)}")
            a.label(L)
            gf = ["nt", "", "sc1", "sc0"][self.o.get("gflag%d" % m, 1)]
            a(f"buffer_load_dwordx4 v2, s[{44+4*m}:{47+4*m}], s59 offen {gf} lds")
            a("s_add_u32 m0, m0, 1024")
            a(f"s_add_u32 s59, s59, {16*3584}")
            if self.o.get("gcap", 0) and (lo or m): a(f"s_waitcnt vmcnt({self.o['gcap']})")
            a("s_cmp_lt_u32 m0, s58")
            a(f"s_cbranch_scc1 {L}")
            if hi == 8: a("s_xor_b32 s52, s52, 8192")
        pw = self.o.get("pwait", 1)
        if not pw:
            self.stamp(5)
            mat(0)
        a(f"s_waitcnt vmcnt({0 if pw else 8})")
        a("s_barrier")
        if ms < 4:
            a(f"s_cmp_lt_u32 s3, {ms}")
            a("s_cbranch_scc1 LGo")
            self.mr_compute(SC, 0 if pw else 8)
            a.label("LGo")
        a("s_cmp_eq_u32 s3, 0")
        a("s_cbranch_scc0 LGr")
        self.rdy_publish(8, "s2")
        if self.o.get("rwait", 1): a("s_waitcnt vmcnt(0)")
        a.label("LGr")
        if self.o.get("rwait", 1): a("s_barrier")
        if pw:
            self.delay("fdel")
            self.stamp(5)
            mat(0)
        mat(1)
        a("s_mov_b64 s[48:49], s[16:17]")
        a("s_mov_b32 s50, 2048")
        a("v_lshrrev_b32 v4, 5, v0")
        a("v_and_b32 v5, 31, v0")
        a("v_lshlrev_b32 v19, 3, v5")
        a("v_lshl_add_u32 v19, v4, 10, v19")
        a("s_lshl_b32 s15, s3, 8")
        a("buffer_load_dwordx2 v[24:25], v19, s[48:51], s15 offen")
        a("s_lshl_b32 s9, s53, 15")
        a("s_add_u32 s9, s9, s15")
        a("v_lshlrev_b32 v229, 4, v0")
        a(f"s_mov_b32 s27, {RDY+2048}")
        self.rdy_load()
        a("v_lshlrev_b32 v18, 1, v19")
        a("s_lshl_b32 s15, s3, 9")
        for k in range(3): a(f"s_add_u32 s{28+k}, s15, {HM+4096*k}")
        mloads = [f"buffer_load_dwordx4 v[{208+4*k}:{211+4*k}], v18, s[40:43], s{28+k} offen sc1" for k in range(3)]
        for l in mloads: a(l)
        for k in range(8): a(f"s_add_u32 s{16+k}, s15, {HD+4096*k}")
        self.voff256(6, 10, 8, 9)
        a("s_mov_b64 s[44:45], s[32:33]")
        a(f"s_mov_b32 s46, {1792*1024}")
        a("s_lshl_b32 s6, s3, 13")
        a(f"s_add_u32 s6, s6, {DWN}")
        a("s_mov_b32 m0, s6")
        a("s_add_u32 s13, s6, 8192")
        a.label("LGd2")
        for i in range(2):
            a(f"buffer_load_dwordx4 v{6+i}, s[44:47], s9 offen {wf} lds")
            a("s_add_u32 m0, m0, 1024")
            a("s_add_u32 s9, s9, 4096")
        a("s_cmp_lt_u32 m0, s13")
        a("s_cbranch_scc1 LGd2")
        a("v_bfe_u32 v8, v0, 4, 1")
        a("v_lshlrev_b32 v8, 5, v8")
        a("v_lshl_add_u32 v8, v1, 6, v8")
        a("v_lshl_add_u32 v8, v3, 3, v8")
        a("v_add_u32 v8, s7, v8")
        a("v_xor_b32 v9, 32, v8")
        self.traddr256(10, 8, "s6", 6, 7)
        a("v_mul_u32_u24 v20, 816, v4")
        a("v_lshrrev_b32 v6, 3, v5")
        a("v_lshl_add_u32 v20, v6, 6, v20")
        a("v_lshl_add_u32 v20, v3, 4, v20")
        a("v_bfe_u32 v6, v0, 2, 1")
        a("v_lshl_add_u32 v20, v6, 3, v20")
        a(f"s_add_u32 s15, s7, {AROW_O}")
        a("v_add_u32 v20, s15, v20")
        a("v_mul_u32_u24 v22, 816, v6")
        a("v_and_b32 v7, 48, v0")
        a("v_add3_u32 v22, v22, v7, s15")
        a("v_min_u32 v21, 2, v3")
        a("v_mul_u32_u24 v21, 272, v21")
        a("v_add_u32 v22, v22, v21")
        a("v_bfe_u32 v228, v0, 4, 1")
        a(f"v_mul_u32_u24 v228, {HFS}, v228")
        a("v_lshl_add_u32 v228, v4, 6, v228")
        a("v_and_b32 v227, 15, v0")
        a("v_lshl_add_u32 v228, v227, 2, v228")
        a("v_lshlrev_b32 v2, 3, v0")
        a("s_lshl_b32 s15, s3, 9")
        a("v_add_u32 v23, s15, v2")
        a("v_lshlrev_b32 v2, 8, v6")
        a("v_and_b32 v227, 8, v0")
        a("v_lshl_add_u32 v2, v227, 4, v2")
        a("v_lshl_add_u32 v2, v7, 1, v2")
        a("v_lshl_add_u32 v2, v3, 3, v2")
        a("s_lshl_b32 s15, s3, 2")
        a("v_add_u32 v226, s15, v7")
        a("v_and_b32 v231, 16, v0")
        a("v_lshlrev_b32 v231, 1, v231")
        a(f"v_mov_b32 v232, {f32(1e-5)}")
        self.guard(2100, fill=self.small_helpers)
        a("s_waitcnt vmcnt(8)")
        self.stamp(6)
        for m in range(2):
            for ks in range(4):
                for t in range(2): self.tr(64 + 32 * m + 8 * ks + 4 * t, 8 + t, 8192 * m + 2048 * ks, 1024)
        self.unpack(24, 28, 2)
        a("v_and_b32 v24, 32, v0")
        a(f"v_add_u32 v24, {LNS}, v24")
        a("ds_read_b128 v[32:35], v24")
        self.rdy_check()
        for k in range(3): a(f"v_xor_b32 v{211+4*k}, s14, v{210+4*k}")
        a("v_or3_b32 v211, v211, v215, v219")
        a("v_cmp_ne_u32 vcc, 0, v211")
        a("s_cbranch_vccz LGmo")
        self.poll(mloads, [(*self.TAGBAD, 210 + 4 * k) for k in range(3)], sleep=1)
        a.label("LGmo")
        self.stamp(4)
        def prepass():
            a("s_waitcnt lgkmcnt(0)")
            a("ds_write_b64 v20, v[212:213] offset:544")
            a("v_pk_add_f32 v[32:33], v[32:33], v[34:35]")
            a("v_add_f32 v32, v32, v33")
            for i in range(4): a(f"v_fmac_f32 v{28+i}, {f32(-1/512)}, v32")
            self.unpack(216, 196, 2)
            for i in range(4): a(f"v_add_f32 v{196+i}, 1.0, v{196+i}")
            a("v_cvt_pk_bf16_f32 v36, v196, v197")
            a("v_cvt_pk_bf16_f32 v37, v198, v199")
            a("ds_write_b64 v20, v[36:37] offset:272")
            self.unpack(208, 192, 2)
            self.unpack(36, 196, 2)
            for i in range(4): a(f"v_mul_f32 v{200+i}, v{28+i}, v{196+i}")
            for i in range(4): a(f"v_mul_f32 v{196+i}, v{192+i}, v{196+i}")
            a("s_waitcnt vmcnt(8)")
            for dt in range(8): self.tr(128 + 4 * dt, 10 + dt, 0, 4096)
            self.stamp(10)
        self.sum_poll([f"buffer_load_dwordx4 v[{160+4*k}:{163+4*k}], v18, s[40:43], s{16+k} offen sc1" for k in range(8)], 160, 56, mid=prepass)
        self.stamp(7)
        for k in range(2): a(f"v_pk_fma_f32 v[{200+2*k}:{201+2*k}], v[{56+2*k}:{57+2*k}], v[{196+2*k}:{197+2*k}], v[{200+2*k}:{201+2*k}]")
        a("v_cvt_pk_bf16_f32 v32, v200, v201")
        a("v_cvt_pk_bf16_f32 v33, v202, v203")
        a("ds_write_b64 v20, v[32:33]")
        for ks in range(4): a(f"ds_read_b128 v[{172+4*ks}:{175+4*ks}], v22 offset:{64*ks}")
        for k in range(2): a(f"v_pk_fma_f32 v[{28+2*k}:{29+2*k}], v[{56+2*k}:{57+2*k}], v[{192+2*k}:{193+2*k}], v[{28+2*k}:{29+2*k}]")
        a("v_pk_add_f32 v[190:191], v[28:29], v[30:31]")
        a("v_pk_mul_f32 v[28:29], v[28:29], v[28:29]")
        a("v_pk_fma_f32 v[28:29], v[30:31], v[30:31], v[28:29]")
        a("v_add_f32 v190, v190, v191")
        a("v_add_f32 v191, v28, v29")
        a("v_permlane16_swap_b32 v190, v191")
        def mg(m, ks):
            for t in range(2): self.mfma(40 + 8 * m + 4 * t, 172 + 4 * ks, 64 + 32 * m + 8 * ks + 4 * t, ks == 0)
        a("v_add_f32 v190, v190, v191")
        for ks, m in enumerate(("quad_perm:[1,0,3,2]", "quad_perm:[2,3,0,1]", "row_half_mirror", "row_mirror")):
            a(f"v_add_f32_dpp v190, v190, v190 {m} row_mask:0xf bank_mask:0xf")
            a(f"s_waitcnt lgkmcnt({3-ks})")
            if ks < 3: mg(0, ks)
        a(f"ds_write_b32 v226, v190 offset:{STAT}")
        mg(0, 3)
        mg(1, 0)
        a("s_waitcnt lgkmcnt(0)")
        a("s_barrier")
        a(f"ds_read_b128 v[24:27], v231 offset:{STAT}")
        a(f"ds_read_b128 v[28:31], v231 offset:{STAT+16}")
        mg(1, 1)
        for r in range(3): a(f"v_permlane32_swap_b32 v{40+r}, v{44+r}")
        mg(1, 2)
        mg(1, 3)
        a("s_waitcnt lgkmcnt(0)")
        a("v_pk_add_f32 v[24:25], v[24:25], v[26:27]")
        a("v_pk_add_f32 v[28:29], v[28:29], v[30:31]")
        a("v_add_f32 v24, v24, v25")
        a("v_add_f32 v28, v28, v29")
        a(f"v_mul_f32 v24, {f32(1/512)}, v24")
        a(f"v_fmamk_f32 v28, v28, {f32(1/512)}, v232")
        a("v_fma_f32 v28, -v24, v24, v28")
        a("v_max_f32 v28, v28, v232")
        a("v_rsq_f32 v28, v28")
        for r in range(3): a(f"v_permlane32_swap_b32 v{48+r}, v{52+r}")
        a("v_fma_f32 v40, -v24, v41, v40")
        a("v_fma_f32 v48, -v24, v49, v48")
        a("v_fma_f32 v40, v40, v28, v42")
        a("v_fma_f32 v41, v48, v28, v50")
        a(f"ds_write_b64 v23, v[40:41] offset:{REC}")
        a("s_waitcnt lgkmcnt(0)")
        a("s_barrier")
        self.stamp(8)
        for w in range(4): a(f"ds_read_b64 v[{64+2*w}:{65+2*w}], v2 offset:{REC+512*w}")
        a("s_waitcnt lgkmcnt(2)")
        a("v_pk_add_f32 v[64:65], v[64:65], v[66:67]")
        a("s_waitcnt lgkmcnt(0)")
        a("v_pk_add_f32 v[68:69], v[68:69], v[70:71]")
        a("v_pk_add_f32 v[64:65], v[64:65], v[68:69]")
        a("v_max_f32 v64, 0, v64")
        a("v_mul_f32 v64, v64, v65")
        a("v_mov_b32_dpp v65, v64 quad_perm:[1,0,3,2] row_mask:0xf bank_mask:0xf")
        a("v_cvt_pk_bf16_f32 v24, v64, v65")
        for i in range(1, 4): a(f"v_mov_b32_dpp v{24+i}, v24 row_shl:{2*i} row_mask:0xf bank_mask:0xf")
        for dt in range(8): self.mfma(160 + 4 * dt, 24, 128 + 4 * dt, True)
        for k in range(4):
            a(f"v_permlane16_swap_b32 v{160+8*k}, v{164+8*k}")
            a(f"buffer_store_dword v{160+8*k}, v228, s[40:43], s26 offen sc1")
            if k < 3: a(f"s_add_u32 s26, s26, {2*HFS}")
        self.stamp(9)
        self.end()

    def small_helpers(self):
        a = self.a
        a.label("LO3")
        if 0 < self.o.get('msplit', 0) < 4:
            a(f"s_cmp_lt_u32 s3, {self.o.get('msplit', 0)}")
            a("s_cbranch_scc1 LO4")
            self.mr_issue(2, 52)
            self.mr_compute(SC, 0)
            a.label("LO4")
            a("s_barrier")
        a("s_movk_i32 s52, 1536")
        a("s_lshr_b32 s58, s7, 2")
        a(f"s_add_u32 s58, s58, {GA}")
        a("v_lshrrev_b32 v1, 4, v0")
        a("v_lshlrev_b32 v18, 4, v0")
        a(f"v_add_u32 v18, {RED}, v18")
        self.wo_setup()
        self.delay("o3del")
        a("s_branch LWm")
        a.label("LGH2")
        a("s_setprio 3")
        self.tag()
        self.g_index()
        a("s_cbranch_scc1 LGH3")
        a("s_endpgm")
        a.label("LGH3")
        self.rdy_publish(8, "s2")
        a("s_endpgm")
        a.label("LWH2")
        a("s_setprio 3")
        for i in range(4): a(f"v_mov_b32 v{32+i}, -1")
        a("v_bfe_u32 v3, v0, 4, 1")
        a("v_lshlrev_b32 v3, 11, v3")
        a("v_and_b32 v4, 15, v0")
        a("v_lshl_add_u32 v3, v4, 4, v3")
        a("s_lshl_b32 s15, s4, 12")
        a("s_and_b32 s6, s5, 7")
        a("s_lshl_b32 s6, s6, 8")
        a("s_add_u32 s15, s15, s6")
        a(f"s_add_u32 s15, s15, {HD}")
        a("v_lshrrev_b32 v6, 4, v0")
        a("v_lshlrev_b32 v6, 11, v6")
        a("v_lshl_add_u32 v6, v4, 4, v6")
        a("s_lshl_b32 s8, s6, 6")
        a("s_lshl_b32 s9, s4, 8")
        a("s_add_u32 s8, s8, s9")
        a(f"s_add_u32 s8, s8, {HB}")
        a("s_add_u32 s9, s8, 8192")
        self.c_voff(4)
        a("s_lshr_b32 s6, s6, 1" if self.o.get("msplit", 0) else "s_movk_i32 s6, 896")
        a("s_mov_b32 s50, 2048")
        a("s_waitcnt lgkmcnt(0)")
        a("s_load_dword s14, s[40:41], 0")
        a("s_mov_b64 s[48:49], s[34:35]")
        a("buffer_load_dwordx2 v[28:29], v4, s[48:51], s6 offen")
        a("buffer_store_dwordx4 v[32:35], v6, s[40:43], s8 offen sc1")
        a("buffer_store_dwordx4 v[32:35], v6, s[40:43], s9 offen sc1")
        a("s_mov_b32 exec_hi, 0")
        a("buffer_store_dwordx4 v[32:35], v3, s[40:43], s15 offen sc1")
        a("s_mov_b64 exec, -1")
        self.silu_frag(SCW)
        a("s_waitcnt vmcnt(0) lgkmcnt(0)")
        self.tag()
        self.rdy_publish(8, "s2")
        a("v_lshlrev_b32 v2, 4, v0")
        a("s_lshl_b32 s8, s4, 12")
        a(f"s_add_u32 s8, s8, {HA}")
        a("v_and_b32 v3, 1, v0")
        a("v_mul_u32_u24 v3, 144, v3")
        a("v_bfe_u32 v4, v0, 1, 2")
        a("v_lshl_add_u32 v3, v4, 4, v3")
        a("v_lshrrev_b32 v4, 5, v0")
        a("v_lshl_add_u32 v3, v4, 6, v3")
        a("v_bfe_u32 v4, v0, 4, 1")
        a("v_lshl_add_u32 v3, v4, 3, v3")
        a(f"v_add_u32 v3, {HW}, v3")
        def aissue():
            for t in range(4): a(f"buffer_load_dwordx4 v[{40+4*t}:{43+4*t}], v2, s[40:43], s8 offen offset:{1024*t} sc1")
        def abody():
            for t in range(4):
                a(f"s_waitcnt vmcnt({3-t})")
                a(f"v_xor_b32 v{43+4*t}, s14, v{42+4*t}")
                self.unpack(40 + 4 * t, 64 + 4 * t, 2)
            a("v_or3_b32 v43, v43, v47, v51")
            a("v_or_b32 v43, v43, v55")
            a("v_cmp_ne_u32 s[10:11], 0, v43")
        self.spin(abody, alt=([8], ALOC, 8), issue=aissue, mid=self.silu_run)
        self.fold8()
        a("ds_write_b64 v3, v[40:41]")
        a("s_waitcnt lgkmcnt(0)")
        a("s_barrier")
        a("s_endpgm")
        a.label("LTH")
        if self.o.get("nohelp"): a("s_endpgm")
        a("s_setprio 3")
        for i in range(4): a(f"v_mov_b32 v{40+i}, -1")
        a("v_lshlrev_b32 v2, 4, v0")
        a("s_lshl_b32 s6, s4, 4")
        a("s_add_u32 s6, s6, s5")
        a("s_lshl_b32 s54, s6, 10")
        a(f"s_add_u32 s54, s54, {HC}")
        a("s_lshl_b32 s55, s6, 7")
        a(f"s_add_u32 s55, s55, {HL}")
        a("s_waitcnt lgkmcnt(0)")
        a("s_load_dword s14, s[40:41], 0")
        a("buffer_store_dwordx4 v[40:43], v2, s[40:43], s54 offen sc1")
        a(f"s_add_u32 s54, s54, {LOC}")
        a("buffer_store_dwordx4 v[40:43], v2, s[40:43], s54 offen sc1")
        a("s_mov_b64 exec, 0xff")
        a("buffer_store_dwordx4 v[40:43], v2, s[40:43], s55 offen sc1")
        a(f"s_add_u32 s55, s55, {LOC}")
        a("buffer_store_dwordx4 v[40:43], v2, s[40:43], s55 offen sc1")
        a("s_mov_b64 exec, -1")
        a("s_waitcnt vmcnt(0) lgkmcnt(0)")
        self.tag()
        self.rdy_publish(44, "s6")
        a("buffer_load_dwordx4 v[232:235], v2, s[40:43], s54 offen sc1")
        a("s_mov_b64 exec, 1")
        a("buffer_load_dword v236, v2, s[40:43], s55 offen sc1")
        a("s_endpgm")

    def m_role(self):
        a = self.a
        self.mute = False
        a.label("LM")
        if self.o.get("nom"): self.end()
        ms = self.o.get("msplit", 0)
        if ms == 0: a("s_mov_b32 s61, 7")
        if 0 < ms < 4:
            a(f"s_cmp_ge_u32 s3, {ms}")
            a("s_cbranch_scc1 LMr")
        if not self.o.get("mre", 0): self.mr_issue(17, 44)
        self.mr_compute(SCW, 0)
        a.label("LMr")
        a("s_lshl_b32 s6, s4, 2")
        a("s_add_u32 s6, s6, s3")
        a("s_lshl_b32 s8, s6, 12")
        a(f"s_add_u32 s8, s8, {HP}")
        a("s_lshr_b32 s9, s6, 3")
        a("s_lshl_b32 s9, s9, 12")
        a("s_and_b32 s6, s6, 7")
        a("s_lshl_b32 s6, s6, 8")
        a("s_add_u32 s9, s9, s6")
        a(f"s_add_u32 s9, s9, {HM}")
        a("v_lshlrev_b32 v2, 4, v0")
        a("v_and_b32 v3, 1, v0")
        a("v_lshlrev_b32 v3, 11, v3")
        a("v_bfe_u32 v4, v0, 1, 2")
        a("v_lshl_add_u32 v3, v4, 4, v3")
        a("v_and_b32 v4, 48, v0")
        a("v_lshl_add_u32 v3, v4, 2, v3")
        self.poll([f"buffer_load_dwordx4 v[{40+4*t}:{43+4*t}], v2, s[40:43], s8 offen offset:{1024*t} sc1" for t in range(4)],
                  [(*self.TAGBAD, 42 + 4 * t) for t in range(4)], sleep=1,
                  after=lambda t: self.unpack(40 + 4 * t, 64 + 4 * t, 2))
        self.stamp(6)
        self.fold8()
        self.exec16(0xff)
        a("buffer_store_dwordx4 v[40:43], v3, s[40:43], s9 offen sc1")
        self.stamp(7)
        self.end()

    def t_prefetch(self):
        a = self.a
        a.label("LTpx")
        a("s_mov_b32 s95, 0x20000")
        a("s_bitcmp1_b32 s3, 0")
        a("s_cbranch_scc1 LTpd")
        a("s_cmp_eq_u32 s3, 0")
        a("s_cselect_b64 s[92:93], s[28:29], s[30:31]")
        a(f"s_mov_b32 s94, {512*3584}")
        a(f"s_mul_i32 s60, s5, {32*3584}")
        a("s_mul_i32 s61, s4, 448")
        a("s_add_u32 s60, s60, s61")
        a(f"s_add_u32 s61, s60, {16*3584}")
        a("v_lshrrev_b32 v236, 2, v0")
        a("v_mul_u32_u24 v236, 3584, v236")
        a("v_and_b32 v235, 3, v0")
        a("v_lshl_add_u32 v236, v235, 7, v236")
        a("s_branch LTpr")
        a.label("LTpd")
        a("s_mov_b64 s[92:93], s[32:33]")
        a(f"s_mov_b32 s94, {1792*1024}")
        a(f"s_mul_i32 s60, s4, {7*32768}")
        a("s_lshl_b32 s61, s5, 1")
        a("s_lshr_b32 s13, s3, 1")
        a("s_add_u32 s61, s61, s13")
        a("s_mul_i32 s61, s61, 7168")
        a("s_add_u32 s60, s60, s61")
        a("s_mov_b32 s61, 0x7fffffff")
        a("v_min_u32 v236, 55, v0")
        a("v_lshlrev_b32 v236, 7, v236")
        a("s_branch LTpr")

    def fold8(self):
        a = self.a
        for i in range(8): a(f"v_permlane32_swap_b32 v{64+i}, v{72+i}")
        for k in range(4): a(f"v_pk_add_f32 v[{64+2*k}:{65+2*k}], v[{64+2*k}:{65+2*k}], v[{72+2*k}:{73+2*k}]")
        for i in range(4): a(f"v_permlane16_swap_b32 v{64+i}, v{68+i}")
        for k in range(2): a(f"v_pk_add_f32 v[{64+2*k}:{65+2*k}], v[{64+2*k}:{65+2*k}], v[{68+2*k}:{69+2*k}]")
        for i in range(4): a(f"v_add_f32_dpp v{64+i}, v{64+i}, v{64+i} row_ror:8 row_mask:0xf bank_mask:0xf")
        a("v_cvt_pk_bf16_f32 v40, v64, v65")
        a("v_cvt_pk_bf16_f32 v41, v66, v67")

    def red8(self, r):
        a = self.a
        for i in range(4): a(f"v_add_f32_dpp v{r+i}, v{r+i}, v{r+i} row_ror:8 row_mask:0xf bank_mask:0xf")
        for sw in ("16", "32"):
            for i in range(4): a(f"v_mov_b32 v{60+i}, v{r+i}")
            for i in range(4): a(f"v_permlane{sw}_swap_b32 v{r+i}, v{60+i}")
            for i in range(4): a(f"v_add_f32 v{r+i}, v{r+i}, v{60+i}")

    def unpk(self, lines):
        out = []
        on = False
        for l in lines:
            if l == "; unpk on": on = True; continue
            if l == "; unpk off": on = False; continue
            m = re.match(r"v_pk_(add|mul|fma)_f32 (.*)", l)
            if not (on and m and self.o.get("unpk", 0)):
                out.append(l); continue
            rest = m.group(2)
            mods = dict((k, [int(x) for x in v.split(",")]) for k, v in re.findall(r"(op_sel|op_sel_hi|neg_lo|neg_hi):\[([0-9,]+)\]", rest))
            regs = re.findall(r"([vs])\[(\d+):\d+\]", rest.split(" op_sel")[0].split(" neg_")[0])
            n = len(regs) - 1
            for half, sel, neg in ((0, mods.get("op_sel", [0] * n), mods.get("neg_lo", [0] * n)), (1, mods.get("op_sel_hi", [1] * n), mods.get("neg_hi", [0] * n))):
                ops = [("-" if neg[i] else "") + f"{regs[i+1][0]}{int(regs[i+1][1]) + sel[i]}" for i in range(n)]
                out.append(f"v_{m.group(1)}_f32 v{int(regs[0][1]) + half}, " + ", ".join(ops))
        return out

    def build(self):
        self.prologue()
        self.ww_early()
        if self.o.get("tnear"): self.tw_early()
        self.g_early()
        self.g_role()
        self.m_role()
        self.guard(3300, fall=False)
        self.ww_main()
        self.t_prefetch()
        self.guard(3300, fall=False)
        if not self.o.get("tnear"): self.tw_early()
        self.tw_issue()
        self.tw_main()
        if self.diag:
            self.a.label("Ldump")
            self.dump_stamps()
        self.a.label("Lexit")
        self.a("s_endpgm")
        self.a.label("Lcode_end")
        self.a.L = self.unpk(self.a.L)
        body = self.a.finish()
        head = open("cdna_kernels/" + NAME + ".s.ref").read().split("; Override launch geometry")[0]
        return head + f"""; Generated by gen/gen_kernel.py (own generator script).  One persistent launch: 256 workgroups (one per CU) x 5 waves.
; wg -> x = wg&7, j = wg>>3.  All weights / K / V stream through LDS-DMA, all GEMVs run on 16x16x32 bf16 MFMA.
;   T (j<16)     : attention over 256 keys of (batch j>>3, kv head x); 32 of their waves also sum the FFN partials -> out
;   W (16..23)   : q partial (64 rows of wq x one kv head), then 64 columns of the output projection (j=19: sums ga/sb/cb/gb)
;   G (24..31)   : K slice of silu(c)@w_mod -> h partial and ga/sb/cb/gb partials, then 32 FFN columns (j=31: projection block 3)
; Hand-offs go through d_ws and are validated by content, never by timing or placement:
;   tagged 16-byte granules (tag = next(epoch word found in d_ws); the word is advanced once per launch), or
;   NaN-poisoned slots (the owner poisons them first and says so with a tagged flag that readers check).
;   h and the attention partials are written twice: plain (fast when both ends share an L2) and write-through (fallback).
; Every wait is bounded.
; @launch grid=(256,1,1) block=(320,1,1) lds={LDS_BYTES}
.amdgcn_target "amdgcn-amd-amdhsa--gfx950"
.text
.globl {KNAME}
.p2align 12
.type {KNAME},@function
{KNAME}:
{body}
.section .rodata,"a"
.p2align 6
.amdhsa_kernel {KNAME}
  .amdhsa_next_free_vgpr 240
  .amdhsa_next_free_sgpr 102
  .amdhsa_accum_offset 240
  .amdhsa_group_segment_fixed_size 0
  .amdhsa_kernarg_size 112
  .amdhsa_user_sgpr_count 2
  .amdhsa_user_sgpr_kernarg_segment_ptr 1
  .amdhsa_system_sgpr_workgroup_id_x 1
.end_amdhsa_kernel
"""

if __name__ == "__main__":
    import argparse
    ap = argparse.ArgumentParser()
    ap.add_argument("-o", default="cdna_kernels/" + NAME + ".s")
    ap.add_argument("--diag", action="store_true")
    ap.add_argument("--wflag", default="nt")
    ap.add_argument("--opt", action="append", default=[])
    args = ap.parse_args()
    opts = {}
    for o in args.opt:
        k, _, v = o.partition("=")
        opts[k] = int(v) if v else 1
    open(args.o, "w").write(Gen(args.diag, args.wflag, opts).build())
    print("wrote", args.o)
```

```python
import sys, struct, re
from asmlib import Asm

NAME = "adaLN_cond__sliding_block_cached__glu_gated_reglu__decode"
KNAME = NAME + "_kernel"

def f32(x): return "0x%08x" % struct.unpack("<I", struct.pack("<f", x))[0]

EPOCH = 0x0
RDY = 0x1000
FD, FF = 0x2000, 0x2400
HM = 0x4000
HA = 0x8000
ALOC = 0x8000
HB = 0x140000
HD = 0x20000
HL = HD + 0x8000
HC = HL + 0x4000
LOC = 0x24000
HF = HC + 0x20000 + LOC
HFS = 7168
HP = 0xD0000
STAMP = 0x100000
WS_SIZE = 0x200000
LDS_BYTES = 151552
KB, VB, PB, MX, LS, QB = 0, 65536, 131072, 133120, 133248, 133632
WQ, WO, GA, RED, SCW, HW = 0, 65536, 131072, 147456, 149504, 150016
W1, GU, DWN, MRG, SC, LNS = 0, 16384, 81920, 114688, 147456, 148480
REC, CSR, STAT = W1, W1 + 4096, W1 + 8192
AROW_O = 4096

LOG2E = 1.4426950408889634
CSC = (128 ** -0.5) * LOG2E
SPIN = 100000
import os
if os.environ.get('SPIN'): SPIN = int(os.environ['SPIN'])
MFMA = "v_mfma_f32_16x16x32_bf16"

class Gen:
    POISON = ("v_cmp_eq_u32", "-1")
    TAGBAD = ("v_cmp_ne_u32", "s14")

    def __init__(self, diag=False, wflag="nt", opts=None):
        self.a = Asm()
        self.diag = diag
        self.wf = wflag
        self.o = opts or {}
        self.nlab = 0
    def lab(self, p="L"):
        self.nlab += 1
        return f"{p}{self.nlab}"
    def dstamp(self, k):
        if self.o.get("gdbg"): self.a(f"s_memrealtime s[{64+2*k}:{65+2*k}]")
    def stamp(self, k):
        if self.o.get("lite") and not (k == 0 or (k == 8 and getattr(self, "final", False))): return
        if self.o.get("gdbg") and getattr(self, "mute", False) and k in (4, 6, 7, 8): return
        if self.diag or self.o.get("amp") == k: self.a(f"s_memrealtime s[{64+2*k}:{65+2*k}]")
    def dump_max(self):
        a = self.a
        a("s_load_dwordx2 s[44:45], s[0:1], 96")
        a("s_mov_b32 s46, 256")
        a("s_mov_b32 s47, 0x20000")
        a("s_mov_b64 exec, 1")
        a("v_mov_b32 v1, 0")
        a("s_waitcnt lgkmcnt(0)")
        def put(slot, reg):
            a(f"v_mov_b32 v4, {reg}")
            a(f"buffer_atomic_umax v4, v1, s[44:47], 0 offen offset:{4*slot} sc1")
        a("s_not_b32 s60, s64")
        put(0, "s60"); put(1, "s64")
        a("s_lshr_b32 s5, s2, 3")
        a("s_cmp_ge_u32 s5, 24")
        a("s_cbranch_scc1 LdG")
        a("s_cmp_ge_u32 s5, 16")
        a("s_cbranch_scc1 LdW")
        for slot, k in ((6, 3), (7, 9), (8, 5), (15, 8)): put(slot, f"s{64+2*k}")
        a("s_endpgm")
        a.label("LdW")
        for slot, k in ((3, 2), (4, 3), (5, 4), (9, 6), (10, 7), (11, 8)): put(slot, f"s{64+2*k}")
        a("s_endpgm")
        a.label("LdG")
        for slot, k in ((2, 3), (12, 6), (13, 7), (14, 9)): put(slot, f"s{64+2*k}")
    def dump_gamp(self):
        a = self.a
        k, lo, hi = self.o["gamp"] // 10000, self.o["gamp"] // 100 % 100, self.o["gamp"] % 100
        a("s_waitcnt lgkmcnt(0)")
        a("s_lshr_b32 s5, s2, 3")
        a(f"s_sub_u32 s60, s5, {lo}")
        a(f"s_cmp_lt_u32 s60, {hi-lo}")
        a(f"s_cselect_b32 s61, s{64+2*k}, 0")
        a("s_cmp_eq_u32 s61, 0")
        a("s_cselect_b32 s61, s64, s61")
        a("s_lshl_b32 s60, s2, 2")
        a("s_add_u32 s60, s60, s3")
        a("s_lshl_b32 s60, s60, 2")
        a(f"s_add_u32 s60, s60, {STAMP}")
        a("s_mov_b64 exec, 1")
        a("v_mov_b32 v1, 0")
        a("v_mov_b32 v4, s64")
        a("v_mov_b32 v5, s61")
        a("buffer_store_dword v4, v1, s[40:43], s60 offen sc1")
        a("s_add_u32 s60, s60, 4096")
        a("buffer_store_dword v5, v1, s[40:43], s60 offen sc1")
        a("s_mov_b64 exec, -1")
        a("s_cmp_eq_u32 s2, 0")
        a("s_cbranch_scc0 Lexit")
        a("s_cmp_eq_u32 s3, 1")
        a("s_cbranch_scc0 Lexit")
        def until(reg):
            L = self.lab("Lu")
            a.label(L)
            a("s_memrealtime s[98:99]")
            a("s_waitcnt lgkmcnt(0)")
            a("s_sub_u32 s98, s98, s64")
            a(f"s_cmp_lt_u32 s98, {reg}")
            a(f"s_cbranch_scc1 {L}")
        until(3000)
        a("v_lshlrev_b32 v2, 4, v0")
        a(f"s_mov_b32 s60, {STAMP}")
        a(f"s_mov_b32 s61, {STAMP+4096}")
        for i in range(4):
            a(f"buffer_load_dwordx4 v[{8+4*i}:{11+4*i}], v2, s[40:43], s60 offen offset:{1024*i} sc1")
            a(f"buffer_load_dwordx4 v[{24+4*i}:{27+4*i}], v2, s[40:43], s61 offen offset:{1024*i} sc1")
        a("s_waitcnt vmcnt(0)")
        for i in range(32): a(f"v_subrev_u32 v{8+i}, s64, v{8+i}")
        for i in range(1, 16):
            a(f"v_min_i32 v8, v8, v{8+i}")
            a(f"v_max_i32 v24, v24, v{24+i}")
        a("s_mov_b32 s60, 0")
        a("s_mov_b32 s61, 0")
        for l in range(64):
            a(f"v_readlane_b32 s62, v8, {l}")
            a(f"v_readlane_b32 s63, v24, {l}")
            a("s_min_i32 s60, s60, s62")
            a("s_max_i32 s61, s61, s63")
        a("s_sub_u32 s61, s61, s60")
        a("s_mul_i32 s61, s61, 40")
        a("s_add_u32 s100, s61, 4000")
        until("s100")
    def dump_stamps(self):
        if not self.diag: return
        if self.o.get("gamp") is not None: return self.dump_gamp()
        if self.o.get("dmax"): return self.dump_max()
        a = self.a
        a("s_waitcnt lgkmcnt(0)")
        a("s_mov_b64 exec, 1")
        a("s_mul_i32 s60, s2, 5")
        a("s_add_u32 s60, s60, s3")
        a("s_lshl_b32 s60, s60, 6")
        a(f"s_add_u32 s60, s60, {STAMP}")
        a("v_mov_b32 v1, 0")
        for q in range(3):
            for i in range(4):
                a(f"v_mov_b32 v{4+i}, s{64+2*(4*q+i)}")
            a(f"buffer_store_dwordx4 v[4:7], v1, s[40:43], s60 offen offset:{16*q}")
            a("s_nop 1")
    def end(self, helper=False):
        self.a("s_branch Ldump" if self.diag and (not helper or self.o.get("hdump")) else "s_endpgm")
    def delay(self, key):
        n = self.o.get(key, 0)
        if not n: return
        a = self.a
        L = self.lab("Ld")
        a.label(L)
        a("s_memrealtime s[98:99]")
        a("s_waitcnt lgkmcnt(0)")
        a("s_sub_u32 s98, s98, s64")
        a(f"s_cmp_lt_u32 s98, {n}")
        a(f"s_cbranch_scc1 {L}")
    def guard(self, n, fall=True, fill=None):
        L = self.lab("Lg")
        if fall: self.a(f"s_branch {L}")
        if fill: fill()
        self.a(f".p2align 12, , {n}")
        self.a.label(L)
    def srd(self, d, p, size):
        a = self.a
        a(f"s_mov_b64 s[{d}:{d+1}], s[{p}:{p+1}]")
        a(f"s_mov_b32 s{d+2}, {size}")
        a(f"s_mov_b32 s{d+3}, 0x20000")
    def tag(self):
        self.a("s_mul_i32 s14, s14, 0x9E3779B1")
        self.a("s_add_u32 s14, s14, 0x7F4A7C15")
    def exec16(self, m):
        self.a(f"s_mov_b32 exec_lo, {(m << 16 | m):#x}")
        self.a(f"s_mov_b32 exec_hi, {(m << 16 | m):#x}")
    def poll(self, loads, checks, sleep=0, after=None):
        a = self.a
        L = self.lab("Lp"); D = self.lab("Lpd")
        n = len(loads)
        a(f"s_mov_b32 s12, {SPIN}")
        a.label(L)
        for l in loads: a(l)
        for i, (op, opd, r) in enumerate(checks):
            a(f"s_waitcnt vmcnt({n-1-i})")
            if i == 0:
                a(f"{op} s[10:11], {opd}, v{r}")
            else:
                a(f"{op} vcc, {opd}, v{r}")
                a("s_or_b64 s[10:11], s[10:11], vcc")
            if after: after(i)
        a("s_cmp_eq_u64 s[10:11], 0")
        a(f"s_cbranch_scc1 {D}")
        if sleep: a(f"s_sleep {sleep}")
        a("s_sub_u32 s12, s12, 1")
        a(f"s_cbranch_scc0 {L}")
        a.label(D)
    def spin(self, body, sleep=0, alt=None, issue=None, mid=None, keep=None):
        a = self.a
        L = self.lab("Lp"); D = self.lab("Lpd")
        n = SPIN
        if alt:
            sregs, delta, every = alt
            for i, r in enumerate(sregs):
                a(f"s_mov_b32 s{96+2*i}, s{r}")
                a(f"s_add_u32 s{97+2*i}, s{r}, {delta}")
                a(f"s_mov_b32 s{r}, s{97+2*i}")
            n = SPIN * 4 | (every - 1)
        if keep:
            a(f"s_mov_b32 s{keep[1]}, s{keep[0]}")
            n |= 7
        a(f"s_mov_b32 s12, {n}")
        if issue:
            E = self.lab("Lpe")
            issue(); mid()
            a(f"s_branch {E}")
        a.label(L)
        if issue:
            issue()
            a.label(E)
        body()
        a("s_cmp_eq_u64 s[10:11], 0")
        a(f"s_cbranch_scc1 {D}")
        if sleep: a(f"s_sleep {sleep}")
        if alt:
            a(f"s_and_b32 s13, s12, {every-1}")
            for i, r in enumerate(sregs): a(f"s_cselect_b32 s{r}, s{97+2*i}, s{96+2*i}")
        if keep:
            a("s_and_b32 s13, s12, 7")
            a(f"s_cselect_b32 s{keep[0]}, s{keep[1]}, s{keep[2]}")
        a("s_sub_u32 s12, s12, 1")
        a(f"s_cbranch_scc0 {L}")
        a.label(D)
    def ssent(self, soff, offs, cnt=13):
        a = self.a
        L = self.lab("Ls"); D = self.lab("Lsd")
        a(f"s_mov_b32 s{cnt}, {SPIN}")
        a.label(L)
        for k, o in enumerate(offs): a(f"s_load_dword s{88+k}, s[40:41], s{soff} offset:{o} glc")
        a("s_waitcnt lgkmcnt(0)")
        for k in range(len(offs)): a(f"s_xor_b32 s{88+k}, s{88+k}, s14")
        for k in range(1, len(offs)): a(f"s_or_b32 s88, s88, s{88+k}")
        a(f"s_cbranch_scc0 {D}")
        a(f"s_sub_u32 s{cnt}, s{cnt}, 1")
        a(f"s_cbranch_scc0 {L}")
        a.label(D)
    def sum_poll(self, loads, base, acc, mid=None):
        a = self.a
        n = len(loads)
        def issue():
            for l in loads: a(l)
        def body():
            if not mid: issue()
            for i in range(1, n):
                a(f"s_waitcnt vmcnt({n-1-i})")
                src = base if i == 1 else acc
                for k in range(2): a(f"v_pk_add_f32 v[{acc+2*k}:{acc+1+2*k}], v[{src+2*k}:{src+1+2*k}], v[{base+4*i+2*k}:{base+1+4*i+2*k}]")
            a(f"v_cmp_u_f32 s[10:11], v{acc}, v{acc+1}")
            a(f"v_cmp_u_f32 vcc, v{acc+2}, v{acc+3}")
            a("s_or_b64 s[10:11], s[10:11], vcc")
        self.spin(body, issue=issue if mid else None, mid=mid)
    def silu(self, regs, tmp):
        a = self.a
        for i, r in enumerate(regs): a(f"v_mul_f32 v{tmp+i}, {f32(-LOG2E)}, v{r}")
        for i, r in enumerate(regs): a(f"v_exp_f32 v{tmp+i}, v{tmp+i}")
        for i, r in enumerate(regs): a(f"v_add_f32 v{tmp+i}, 1.0, v{tmp+i}")
        for i, r in enumerate(regs): a(f"v_rcp_f32 v{tmp+i}, v{tmp+i}")
        for i, r in enumerate(regs): a(f"v_mul_f32 v{r}, v{r}, v{tmp+i}")
    def unpack(self, src, dst, n):
        for i in range(n):
            self.a(f"v_lshlrev_b32 v{dst+2*i}, 16, v{src+i}")
            self.a(f"v_and_b32 v{dst+2*i+1}, 0xffff0000, v{src+i}")
    def row_sum(self, r):
        for m in ("quad_perm:[1,0,3,2]", "quad_perm:[2,3,0,1]", "row_half_mirror", "row_mirror"):
            self.a(f"v_add_f32_dpp v{r}, v{r}, v{r} {m} row_mask:0xf bank_mask:0xf")
    def silu_frag(self, base):
        a = self.a
        a("v_bfe_u32 v10, v0, 4, 1")
        a("v_mul_u32_u24 v5, 144, v10")
        a("v_bfe_u32 v4, v0, 3, 1")
        a("v_lshl_add_u32 v5, v4, 6, v5")
        a("v_and_b32 v4, 3, v0")
        a("v_lshl_add_u32 v5, v4, 4, v5")
        a("v_bfe_u32 v4, v0, 2, 1")
        a("v_lshl_add_u32 v5, v4, 3, v5")
        a(f"v_add_u32 v5, {base}, v5")
    def silu_run(self):
        a = self.a
        self.unpack(28, 16, 2)
        self.silu([16, 17, 18, 19], 24)
        a("v_cvt_pk_bf16_f32 v28, v16, v17")
        a("v_cvt_pk_bf16_f32 v29, v18, v19")
        a("ds_write_b64 v5, v[28:29]")
    def c_voff(self, d):
        a = self.a
        a(f"v_bfe_u32 v{d}, v0, 4, 1")
        a(f"v_lshlrev_b32 v{d}, 10, v{d}")
        a("v_and_b32 v11, 15, v0")
        a(f"v_lshl_add_u32 v{d}, v11, 3, v{d}")
    def mfma(self, d, A, B, first):
        c = "0" if first else f"v[{d}:{d+3}]"
        self.a(f"{MFMA} v[{d}:{d+3}], v[{A}:{A+3}], v[{B}:{B+3}], {c}")
    def tr(self, r, va, off, second):
        self.a(f"ds_read_b64_tr_b16 v[{r}:{r+1}], v{va} offset:{off}")
        self.a(f"ds_read_b64_tr_b16 v[{r+2}:{r+3}], v{va} offset:{off+second}")
    def voff256(self, d, stride_sh, t0, t1):
        a = self.a
        a(f"v_lshrrev_b32 v{t0}, 4, v0")
        a(f"v_and_b32 v{t1}, 15, v0")
        a(f"v_lshlrev_b32 v{d}, 1, v{t0}")
        a(f"v_xor_b32 v{d}, v{t1}, v{d}")
        a(f"v_lshlrev_b32 v{d}, 4, v{d}")
        a(f"v_lshl_add_u32 v{d}, v{t0}, {stride_sh}, v{d}")
        a(f"v_xor_b32 v{d+1}, 0x80, v{d}")
    def voff128(self, d, stride, t0, t1):
        a = self.a
        a(f"v_lshrrev_b32 v{t0}, 3, v0")
        a(f"v_and_b32 v{d}, 6, v{t0}")
        a(f"v_and_b32 v{t1}, 7, v0")
        a(f"v_xor_b32 v{d}, v{d}, v{t1}")
        a(f"v_mul_u32_u24 v{t0}, {stride}, v{t0}")
        a(f"v_lshl_add_u32 v{d}, v{d}, 4, v{t0}")
    def traddr256(self, d, n, base, t0, t1, first=None):
        a = self.a
        a(f"v_lshrrev_b32 v{t0}, 2, v0")
        a(f"v_and_b32 v{d}, 7, v{t0}")
        a(f"v_lshlrev_b32 v{d}, 5, v{d}")
        a(f"v_lshl_add_u32 v{d}, v{t0}, 8, v{d}")
        a(f"v_and_b32 v{t1}, 3, v0")
        a(f"v_lshl_add_u32 v{d}, v{t1}, 3, v{d}")
        if first: a(f"v_xor_b32 v{d}, {first}, v{d}")
        a(f"v_add_u32 v{d}, {base}, v{d}")
        for i in range(1, n): a(f"v_xor_b32 v{d+i}, {32*i}, v{d}")
    def traddr128(self, d, base, t0, t1, grp_sh=10, n=4):
        a = self.a
        a(f"v_bfe_u32 v{t0}, v0, 2, 3")
        a(f"v_bfe_u32 v{d}, v0, 3, 2")
        a(f"v_lshlrev_b32 v{d}, 5, v{d}")
        a(f"v_lshl_add_u32 v{d}, v{t0}, 7, v{d}")
        a(f"v_lshrrev_b32 v{t0}, 5, v0")
        a(f"v_lshl_add_u32 v{d}, v{t0}, {grp_sh}, v{d}")
        a(f"v_and_b32 v{t1}, 3, v0")
        a(f"v_lshl_add_u32 v{d}, v{t1}, 3, v{d}")
        if base is not None: a(f"v_add_u32 v{d}, {base}, v{d}")
        for i in range(1, n): a(f"v_xor_b32 v{d+i}, {32*i}, v{d}")

    def prologue(self):
        a = self.a
        a("s_cmp_ge_u32 s2, 256")
        a("s_cbranch_scc1 Lexit")
        a("s_load_dwordx16 s[16:31], s[0:1], 0")
        a("s_load_dwordx8 s[32:39], s[0:1], 64")
        a("s_load_dwordx2 s[40:41], s[0:1], 104")
        if self.diag:
            for k in range(1, 12): a(f"s_mov_b32 s{64+2*k}, 0")
        self.stamp(0)
        if self.o.get("padto"): a("s_memrealtime s[96:97]")
        a("s_getpc_b64 s[56:57]")
        a.label("Lpc0")
        a("s_lshr_b32 s5, s2, 3")
        a("v_lshrrev_b32 v1, 6, v0")
        a("s_mul_i32 s6, s5, 640")
        a("v_lshl_add_u32 v2, v1, 7, s6")
        a("v_min_u32 v2, Lcode_end-Lpc0-4, v2")
        a("global_load_dword v239, v2, s[56:57]")
        a("v_and_b32 v0, 63, v0")
        a("s_and_b32 s4, s2, 7")
        a("v_readfirstlane_b32 s3, v1")
        a(f"s_mov_b32 s42, {WS_SIZE}")
        a("s_mov_b32 s43, 0x20000")
        a("s_mov_b32 s47, 0x20000")
        a("s_mov_b32 s51, 0x20000")
        a("s_lshl_b32 s7, s3, 14")
        a("s_cmp_ge_u32 s5, 24")
        a("s_cbranch_scc1 LG0")
        a("s_cmp_eq_u32 s3, 4")
        a("s_cbranch_scc1 LH0")
        self.voff256(6, 8, 1, 8)
        a("s_mov_b32 m0, s7")
        a("s_cmp_ge_u32 s5, 16")
        a("s_cbranch_scc0 LT0")

    def tw_early(self):
        a, wf = self.a, self.wf
        a.label("LT0")
        a("s_and_b32 s6, s5, 8")
        a("s_add_u32 s6, s6, s4")
        a("s_lshl_b32 s6, s6, 21")
        a("s_and_b32 s8, s5, 7")
        a("s_lshl_b32 s8, s8, 16")
        a("s_add_u32 s6, s6, s8")
        a("s_add_u32 s6, s6, s7")
        a(f"s_add_u32 s6, s6, {6144*256}")
        a("v_xor_b32 v2, v8, v1")
        a("v_lshlrev_b32 v2, 4, v2")
        a("v_lshl_add_u32 v2, v1, 8, v2")
        a("v_xor_b32 v3, 64, v2")
        a("v_xor_b32 v4, 0x80, v2")
        a("v_xor_b32 v5, 0xc0, v2")
        a("s_mov_b32 s8, s6")
        a("s_add_u32 s9, s6, 16384")
        a("s_mov_b32 s46, 0x2000000")
        a("s_mov_b32 s50, 0x2000000")
        a("s_add_u32 s10, s6, 8192")
        a("s_waitcnt lgkmcnt(0)")
        a("s_mov_b64 s[44:45], s[18:19]")
        a("s_mov_b64 s[48:49], s[20:21]")
        a("s_load_dword s14, s[40:41], 0")
        cap = self.o.get("cap", 8)
        for half in range(2):
            L = self.lab("LTWk")
            a.label(L)
            for i in range(4):
                a(f"buffer_load_dwordx4 v{2+i}, s[44:47], s8 offen offset:{1024*i} {wf} lds")
                if cap and half: a(f"s_waitcnt vmcnt({cap})")
            a("s_add_u32 m0, m0, 4096")
            a("s_add_u32 s8, s8, 4096")
            a(f"s_cmp_lt_u32 s8, s{10-half}")
            a(f"s_cbranch_scc1 {L}")
            if half == 0:
                a("s_branch LTpx")
                a.label("LTpr")
        self.stamp(10)
        if self.o.get("tnear"): a("s_branch LTW1")

    def tw_issue(self):
        a, wf = self.a, self.wf
        cap = self.o.get("vcap", 8)
        if self.o.get("tnear"):
            a.label("LTHp")
            a("s_branch LTH")
            a.label("LTW1")
        a("s_lshl_b32 s55, s4, 14")
        a("s_and_b32 s13, s5, 8")
        a("s_lshl_b32 s13, s13, 10")
        a("s_add_u32 s55, s55, s13")
        a("s_lshl_b32 s13, s3, 11")
        a("s_add_u32 s55, s55, s13")
        a(f"s_add_u32 s55, s55, {HB}")
        a("v_lshlrev_b32 v21, 4, v0")
        a("v_mov_b32 v229, v21")
        a("s_lshl_b32 s27, s4, 7")
        a(f"s_add_u32 s27, s27, {RDY+2048}")
        a(f"s_add_u32 m0, s7, {VB}")
        a("s_mov_b32 s8, s6")
        a("s_waitcnt lgkmcnt(0)")
        self.tag()
        for g in range(4):
            if g == 2:
                a("s_mov_b64 exec, 0xff")
                self.rdy_load()
                a("s_mov_b64 exec, -1")
            for i in range(4):
                a(f"buffer_load_dwordx4 v{6+(i&1)}, s[48:51], s8 offen offset:{1024*i} {wf} lds")
                if cap: a(f"s_waitcnt vmcnt({cap})")
            if g < 3:
                a("s_add_u32 m0, m0, 4096")
                a("s_add_u32 s8, s8, 4096")
        a("s_waitcnt vmcnt(8)")
        a("s_mov_b64 exec, 0xff")
        self.rdy_check()
        a("s_mov_b64 exec, -1")
        self.qfetch()

    def qfetch(self):
        for i in range(2): self.a(f"buffer_load_dwordx4 v[{192+4*i}:{195+4*i}], v21, s[40:43], s55 offen offset:{1024*i} sc1")

    def ww_early(self):
        a, wf = self.a, self.wf
        a.label("LW0")
        if self.o.get("now"): a("s_endpgm")
        a("s_lshl_b32 s9, s4, 19")
        a("s_and_b32 s52, s5, 7")
        a("s_lshl_b32 s15, s52, 10")
        a("s_add_u32 s9, s9, s15")
        a("s_lshl_b32 s15, s3, 8")
        a("s_add_u32 s9, s9, s15")
        a("v_mul_u32_u24 v2, 0x1f00, v1")
        a("v_add_u32 v6, v6, v2")
        a("v_add_u32 v7, v7, v2")
        a("s_add_u32 s13, s7, 16384")
        a(f"s_mov_b32 s46, {512*8192}")
        a("s_waitcnt lgkmcnt(0)")
        a("s_mov_b64 s[44:45], s[22:23]")
        if self.o.get("pf3", 0):
            a("s_cmp_eq_u32 s4, 3")
            a("s_cbranch_scc0 LWp")
            a("s_mov_b64 s[48:49], s[36:37]")
            a(f"s_mov_b32 s50, {512*6144}")
            a("s_lshl_b32 s15, s52, 2")
            a("s_add_u32 s15, s15, s3")
            a(f"s_mul_i32 s15, s15, {16*6144}")
            a("v_mul_u32_u24 v3, 6144, v8")
            a("s_mov_b64 exec, 0xffff")
            a(f"buffer_load_dword v238, v3, s[48:51], s15 offen offset:{1024+384}")
            a("s_mov_b64 exec, -1")
            a.label("LWp")
        a("s_load_dword s14, s[40:41], 0")
        a.label("LWq")
        for i in range(2):
            a(f"buffer_load_dwordx4 v{6+i}, s[44:47], s9 offen {wf} lds")
            a("s_add_u32 m0, m0, 1024")
            a("s_add_u32 s9, s9, 32768")
        if self.o.get("qcap", 8): a(f"s_waitcnt vmcnt({self.o.get('qcap', 8)})")
        a("s_cmp_lt_u32 m0, s13")
        a("s_cbranch_scc1 LWq")
        a("s_branch LW2")
        a.label("LH0")
        a("s_cmp_ge_u32 s5, 16")
        a("s_cbranch_scc0 " + ("LTHp" if self.o.get("tnear") else "LTHq" if self.o.get("tpad", 0) else "LTH"))
        a("s_branch LWHp")

    def g_early(self):
        a, wf = self.a, self.wf
        a.label("LG0")
        if self.o.get("nog"): a("s_endpgm")
        a("s_sub_u32 s5, s5, 24")
        if self.o.get("chs", 0):
            a("s_mov_b32 s60, s5")
            a("s_mov_b32 s61, s4")
        else:
            a("s_mov_b32 s60, s4")
            a("s_mov_b32 s61, s5")
        a("s_mov_b32 s50, 2048")
        a("s_cmp_eq_u32 s3, 4")
        a("s_cbranch_scc0 LGW")
        self.c_voff(4)
        a("s_lshl_b32 s9, s61, 7")
        a("s_waitcnt lgkmcnt(0)")
        a("s_mov_b64 s[48:49], s[34:35]")
        a("buffer_load_dwordx2 v[28:29], v4, s[48:51], s9 offen")
        a("s_load_dword s14, s[40:41], 0")
        self.silu_frag(SC)
        a("s_waitcnt vmcnt(0)")
        self.silu_run()
        a("s_waitcnt lgkmcnt(0)")
        a("s_barrier")
        a("s_barrier")
        a("s_branch LGH2")
        a.label("LGW")
        a("v_lshlrev_b32 v6, 4, v0")
        self.voff128(2, 6144, 1, 3)
        a("s_lshl_b32 s9, s61, 2")
        a("s_add_u32 s9, s9, s3")
        a(f"s_mul_i32 s9, s9, {16*6144}")
        a("s_lshl_b32 s6, s60, 7")
        a("s_add_u32 s9, s9, s6")
        a("s_lshl_b32 s13, s3, 5")
        a("s_add_u32 s6, s6, s13")
        a("v_and_b32 v12, 1, v0")
        a("v_and_b32 v13, 48, v0")
        a("v_lshrrev_b32 v4, 1, v13")
        a("v_lshl_add_u32 v4, v12, 10, v4")
        a("v_lshrrev_b32 v14, 5, v0")
        a("v_lshlrev_b32 v14, 10, v14")
        a("v_and_b32 v15, 31, v0")
        a("v_lshl_add_u32 v14, v15, 3, v14")
        a("s_lshl_b32 s63, s3, 8")
        a("s_lshr_b32 m0, s7, 2")
        a(f"s_mov_b32 s54, {512*6144}")
        a("s_mov_b32 s55, 0x20000")
        a("s_lshl_b32 s8, s60, 12")
        a("s_lshl_b32 s15, s3, 10")
        a("s_add_u32 s8, s8, s15")
        a("s_lshl_b32 s15, s61, 7")
        a("s_add_u32 s8, s8, s15")
        a(f"s_add_u32 s8, s8, {HA}")
        a(f"s_add_u32 s62, s8, {ALOC}")
        a("s_waitcnt lgkmcnt(0)")
        self.dstamp(4)
        a("s_mov_b64 s[48:49], s[16:17]")
        a("s_mov_b64 s[52:53], s[36:37]")
        lnh = self.o.get("lnh", 1)
        if lnh:
            a("buffer_load_dwordx2 v[24:25], v14, s[48:51], s63 offen")
        else:
            a("buffer_load_dwordx4 v[24:27], v6, s[48:51], 0 offen")
            a("buffer_load_dwordx4 v[28:31], v6, s[48:51], 0 offen offset:1024")
        self.exec16(3)
        a("buffer_load_dwordx2 v[20:21], v4, s[48:51], s6 offen")
        a("s_mov_b64 exec, -1")
        for i in range(2):
            a(f"buffer_load_dwordx4 v2, s[52:55], s9 offen {wf} lds")
            a(f"buffer_load_dwordx4 v2, s[52:55], s9 offen offset:1024 {wf} lds")
            if i == 0:
                a("s_add_u32 m0, m0, 2048")
                a(f"s_add_u32 s9, s9, {8*6144}")
        a("s_mov_b64 exec, 1")
        a("buffer_load_dword v238, v6, s[40:43], s62 offen sc1")
        a("s_mov_b64 exec, -1")
        a("s_load_dword s14, s[40:41], 0")
        mr0 = 0
        self.traddr128(8, None, 1, 3, grp_sh=11, n=1)
        a("v_xor_b32 v8, s13, v8")
        a("v_mul_u32_u24 v6, 144, v12")
        a("v_add_u32 v6, v6, v13")
        a(f"v_add_u32 v6, {SC}, v6")
        a("v_lshlrev_b32 v7, 4, v12")
        a("v_lshl_add_u32 v13, v13, 1, v7")
        a("s_cmp_eq_u32 s61, 0")
        a("s_cselect_b32 s9, 1.0, 0")
        for i in range(4): a(f"v_mov_b32 v{44+i}, s9")
        a("s_mov_b32 s9, 0x3f803f80")
        if lnh:
            a("v_and_b32 v15, 48, v0")
            a("s_lshl_b32 s15, s3, 2")
            a(f"s_add_u32 s15, s15, {LNS}")
            a("v_add_u32 v15, s15, v15")
            a("v_lshlrev_b32 v7, 5, v12")
            a(f"v_add_u32 v7, {LNS}, v7")
            a(f"v_mov_b32 v52, {f32(1e-5)}")
            self.dstamp(6)
            a("s_waitcnt vmcnt(5) lgkmcnt(0)")
            self.dstamp(7)
            self.tag()
            a("v_dot2_f32_bf16 v48, v24, s9, 0")
            a("v_dot2_f32_bf16 v50, v24, v24, 0")
            a("v_dot2_f32_bf16 v48, v25, s9, v48")
            a("v_dot2_f32_bf16 v50, v25, v25, v50")
            self.unpack(20, 16, 2)
            a("v_permlane16_swap_b32 v48, v50")
            a("v_add_f32 v48, v48, v50")
            self.row_sum(48)
            a("ds_write_b32 v15, v48")
            a("s_waitcnt lgkmcnt(0)")
        else:
            a("v_lshlrev_b32 v7, 7, v12")
            a(f"s_waitcnt vmcnt({5+mr0})")
            for b in range(2):
                a(f"v_dot2_f32_bf16 v{48+b}, v{24+4*b}, s9, 0")
                a(f"v_dot2_f32_bf16 v{50+b}, v{24+4*b}, v{24+4*b}, 0")
            for i in range(1, 4):
                for b in range(2):
                    a(f"v_dot2_f32_bf16 v{48+b}, v{24+4*b+i}, s9, v{48+b}")
                    a(f"v_dot2_f32_bf16 v{50+b}, v{24+4*b+i}, v{24+4*b+i}, v{50+b}")
            a("v_permlane32_swap_b32 v48, v49")
            a("v_permlane32_swap_b32 v50, v51")
            a("v_add_f32 v48, v48, v49")
            a("v_add_f32 v50, v50, v51")
            a("v_permlane16_swap_b32 v48, v50")
            a("v_add_f32 v48, v48, v50")
            self.row_sum(48)
            a("ds_bpermute_b32 v50, v7, v48")
            a("ds_bpermute_b32 v51, v7, v48 offset:64")
            a(f"v_mov_b32 v52, {f32(1e-5)}")
            a("s_waitcnt lgkmcnt(0)")
            self.tag()
            a(f"v_mul_f32 v50, {f32(1/512)}, v50")
            a(f"v_fmamk_f32 v51, v51, {f32(1/512)}, v52")
            a("v_fma_f32 v51, -v50, v50, v51")
            a("v_rsq_f32 v51, v51")
            self.unpack(20, 16, 2)
            for i in range(4): a(f"v_sub_f32 v{16+i}, v{16+i}, v50")
            for i in range(4): a(f"v_mul_f32 v{16+i}, v{16+i}, v51")
        a("v_mov_b32 v58, s14")
        a("v_mov_b32 v59, s14")
        a(f"s_waitcnt vmcnt({1+mr0})")
        self.dstamp(8)
        a("s_barrier")
        self.stamp(1)
        if lnh:
            a("ds_read_b128 v[24:27], v7")
            a("ds_read_b128 v[28:31], v7 offset:16")
        for ks in range(2):
            a(f"ds_read_b128 v[{32+4*ks}:{35+4*ks}], v6 offset:{64*ks}")
            for seg in range(2): self.tr(64 + 8 * ks + 4 * seg, 8, W1 + 8192 * ks + 1024 * seg, 4096)
        if lnh:
            a("s_waitcnt lgkmcnt(10)")
            a("v_pk_add_f32 v[24:25], v[24:25], v[26:27]")
            a("v_pk_add_f32 v[28:29], v[28:29], v[30:31]")
            a("v_add_f32 v50, v24, v25")
            a("v_add_f32 v51, v28, v29")
            a(f"v_mul_f32 v50, {f32(-1/512)}, v50")
            a(f"v_fmamk_f32 v51, v51, {f32(1/512)}, v52")
            a("v_fma_f32 v51, -v50, v50, v51")
            a("v_max_f32 v51, v51, v52")
            a("v_rsq_f32 v51, v51")
            for k in range(2): a(f"v_pk_add_f32 v[{16+2*k}:{17+2*k}], v[{16+2*k}:{17+2*k}], v[50:51] op_sel_hi:[1,0]")
            for k in range(2): a(f"v_pk_mul_f32 v[{16+2*k}:{17+2*k}], v[{16+2*k}:{17+2*k}], v[50:51] op_sel:[0,1] op_sel_hi:[1,1]")
        a("s_waitcnt lgkmcnt(5)")
        self.mfma(40, 64, 32, True)
        self.mfma(44, 68, 32, False)
        a("s_waitcnt lgkmcnt(0)")
        self.mfma(40, 72, 36, False)
        self.mfma(44, 76, 36, False)
        self.exec16(3)
        for k in range(2): a(f"v_pk_fma_f32 v[{40+2*k}:{41+2*k}], v[{16+2*k}:{17+2*k}], v[{44+2*k}:{45+2*k}], v[{40+2*k}:{41+2*k}]")
        a("v_cvt_pk_bf16_f32 v56, v40, v41")
        a("v_cvt_pk_bf16_f32 v57, v42, v43")
        a("buffer_store_dwordx4 v[56:59], v13, s[40:43], s62 offen")
        self.stamp(3)
        a("s_barrier")
        a("buffer_store_dwordx4 v[56:59], v13, s[40:43], s8 offen sc1")
        a("s_mov_b64 exec, -1")

    def wo_setup(self):
        a = self.a
        self.voff128(2, 1024, 3, 4)
        a("s_lshl_b32 s53, s4, 19")
        a("s_lshl_b32 s15, s3, 17")
        a("s_add_u32 s53, s53, s15")
        a("s_lshr_b32 s15, s52, 2")
        a("s_add_u32 s53, s53, s15")
        a(f"s_add_u32 s59, s7, {WO+16384}")
        a(f"s_add_u32 s62, s7, {WO}")
        a("s_mov_b64 s[48:49], s[24:25]")
        a(f"s_mov_b32 s50, {4096*1024}")
    def mr_issue(self, v, srd):
        a, wf = self.a, self.wf
        L = self.lab("Lmr")
        a(f"s_mul_i32 s9, s61, {64*6144}")
        a("s_lshl_b32 s15, s60, 9")
        a("s_add_u32 s9, s9, s15")
        a("s_lshl_b32 s15, s3, 7")
        a("s_add_u32 s9, s9, s15")
        a("s_add_u32 s9, s9, 2048")
        a("s_mov_b32 m0, s63")
        a("s_add_u32 s15, s63, 8192")
        a.label(L)
        a(f"buffer_load_dwordx4 v{v}, s[{srd}:{srd+3}], s9 offen {wf} lds")
        a("s_add_u32 m0, m0, 1024")
        a(f"s_add_u32 s9, s9, {8*6144}")
        a("s_cmp_lt_u32 m0, s15")
        a(f"s_cbranch_scc1 {L}")
    def mr_compute(self, sc, younger):
        a = self.a
        self.traddr128(8, "s63", 5, 6)
        a("v_and_b32 v5, 1, v0")
        a("v_and_b32 v6, 48, v0")
        a("v_mul_u32_u24 v7, 144, v5")
        a("v_add_u32 v7, v7, v6")
        a(f"v_add_u32 v7, {sc}, v7")
        a("v_lshlrev_b32 v5, 4, v5")
        a("v_lshl_add_u32 v5, v6, 1, v5")
        for ks in range(2): a(f"ds_read_b128 v[{32+4*ks}:{35+4*ks}], v7 offset:{64*ks}")
        a("s_lshl_b32 s9, s60, 14")
        a("s_lshl_b32 s15, s3, 12")
        a("s_add_u32 s9, s9, s15")
        a("s_lshl_b32 s15, s61, 7")
        a("s_add_u32 s9, s9, s15")
        a(f"s_add_u32 s9, s9, {HP}")
        a(f"s_waitcnt vmcnt({younger})")
        a("s_setprio 3")
        for ks in range(2):
            for t in range(4): self.tr(64 + 16 * ks + 4 * t, 8 + t, 4096 * ks, 2048)
        a("s_waitcnt lgkmcnt(0)")
        for ks in range(2):
            for t in range(4): self.mfma(40 + 4 * t, 64 + 16 * ks + 4 * t, 32 + 4 * ks, ks == 0)
        self.exec16(3)
        for t in range(4):
            a(f"v_cvt_pk_bf16_f32 v{40+4*t}, v{40+4*t}, v{41+4*t}")
            a(f"v_cvt_pk_bf16_f32 v{41+4*t}, v{42+4*t}, v{43+4*t}")
            a(f"v_mov_b32 v{42+4*t}, s14")
        for t in range(4): a(f"buffer_store_dwordx4 v[{40+4*t}:{43+4*t}], v5, s[40:43], s9 offen offset:{1024*t} sc1")
        a("s_mov_b64 exec, -1")
        a("s_setprio 0")
        self.stamp(11)
    def rdy_publish(self, vb, jreg):
        a = self.a
        for i in range(4): a(f"v_mov_b32 v{vb+i}, s14")
        a(f"v_mov_b32 v{vb+4}, 0")
        a(f"s_lshl_b32 s15, {jreg}, 4")
        a(f"s_add_u32 s15, s15, {RDY}")
        a("s_mov_b64 exec, 1")
        a(f"buffer_store_dwordx4 v[{vb}:{vb+3}], v{vb+4}, s[40:43], s15 offen sc1")
        a("s_mov_b64 exec, -1")
    def hint(self, base, cond):
        a = self.a
        L = self.lab("Lh")
        for c in cond:
            a(c)
            a(f"s_cbranch_scc0 {L}")
        a("s_lshl_b32 s13, s4, 7")
        a("v_mov_b32 v234, s14")
        a(f"v_mov_b32 v235, {base}")
        a("s_mov_b64 exec, 1")
        a("buffer_store_dword v234, v235, s[40:43], s13 offen sc1")
        a("s_mov_b64 exec, -1")
        a.label(L)
    def hint_load(self, va, vd, base):
        return f"buffer_load_dword v{vd}, v{va}, s[40:43], 0 offen offset:{base - FD} sc1"
    def hint_wait(self, va, vd, base):
        self.a("s_mov_b64 exec, 0xff")
        self.poll([self.hint_load(va, vd, base)], [(*self.TAGBAD, vd)])
        self.a("s_mov_b64 exec, -1")
    def rdy_load(self):
        self.a("buffer_load_dword v237, v229, s[40:43], s27 offen sc1")
    def rdy_check(self):
        a = self.a
        L = self.lab("Lok")
        a("v_cmp_ne_u32 vcc, s14, v237")
        a(f"s_cbranch_vccz {L}")
        self.poll(["buffer_load_dword v237, v229, s[40:43], s27 offen sc1"], [(*self.TAGBAD, 237)], sleep=2)
        a.label(L)

    def g_index(self):
        a = self.a
        a("s_mul_i32 s26, s4, 7")
        a("s_add_u32 s26, s26, s5")
        a("s_cmp_eq_u32 s5, 7")

    def tw_main(self):
        a = self.a
        self.stamp(1)
        a("v_lshlrev_b32 v22, 2, v8")
        a("v_lshrrev_b32 v23, 5, v0")
        a("v_lshl_add_u32 v22, v23, 1, v22")
        a("v_and_b32 v23, 16, v0")
        a("v_lshl_add_u32 v22, v23, 3, v22")
        a("s_mul_i32 s13, s3, 272")
        a(f"s_add_u32 s13, s13, {QB}")
        a("v_add_u32 v22, s13, v22")
        a("v_xor_b32 v3, v8, v1")
        a("v_lshlrev_b32 v3, 4, v3")
        a("v_lshl_add_u32 v3, v8, 8, v3")
        a("v_add_u32 v8, s7, v3")
        a("v_xor_b32 v9, 64, v8")
        a("v_xor_b32 v10, 0x80, v8")
        a("v_xor_b32 v11, 0xc0, v8")
        for t in range(4):
            for ks in range(4):
                r = 64 + 16 * t + 4 * ks
                a(f"ds_read_b128 v[{r}:{r+3}], v{8+ks} offset:{4096*t}")
        a("s_lshl_b32 s8, s3, 6")
        self.traddr256(12, 2, VB, 3, 5, first="s8")
        a("v_mul_u32_u24 v20, 272, v5")
        a("v_lshl_add_u32 v20, v1, 4, v20")
        a(f"v_add_u32 v20, {QB}, v20")
        a("v_lshlrev_b32 v14, 6, v5")
        a("v_lshl_add_u32 v14, v1, 4, v14")
        a(f"v_add_u32 v14, {PB}, v14")
        a("s_lshl_b32 s9, s3, 9")
        a("v_add_u32 v15, s9, v14")
        a("v_lshlrev_b32 v16, 4, v5")
        a(f"v_add_u32 v16, {MX}, v16")
        a("s_lshl_b32 s9, s3, 2")
        a("v_add_u32 v17, s9, v16")
        a("v_lshlrev_b32 v18, 8, v5")
        a("v_lshl_add_u32 v18, v1, 4, v18")
        a("v_lshlrev_b32 v19, 3, v5")
        a("s_lshl_b32 s6, s4, 4")
        a("s_add_u32 s6, s6, s5")
        a("s_lshl_b32 s9, s6, 10")
        a("s_add_u32 s8, s8, s9")
        a(f"s_add_u32 s8, s8, {HC}")
        a("s_lshl_b32 s52, s6, 7")
        a(f"s_add_u32 s52, s52, {HL}")
        a(f"s_add_u32 s53, s8, {LOC}")
        a(f"s_add_u32 s54, s52, {LOC}")
        a(f"s_mov_b32 s10, {f32(CSC)}")
        a("s_lshl_b64 s[58:59], 1, s3")
        for i in range(4): a(f"v_mov_b32 v{224+i}, 0x3f803f80")
        a("v_bfe_u32 v3, v0, 2, 2")
        a("v_lshl_add_u32 v14, v3, 9, v14")
        a("v_lshl_add_u32 v234, v3, 2, v16")
        a("v_lshrrev_b32 v4, 1, v3")
        a("v_lshl_add_u32 v15, v4, 8, v15")
        a("v_and_b32 v4, 1, v3")
        a("v_lshl_add_u32 v15, v4, 3, v15")
        def vr(k):
            for t in range(2): self.tr(128 + 8 * k + 4 * t, 12 + t, 8192 * k, 4096)
        def xrow(op, r):
            a(f"v_mov_b32 v233, v{r}")
            a(f"v_permlane16_swap_b32 v{r}, v233")
            a(f"{op} v{r}, v{r}, v233")
            a(f"v_mov_b32 v233, v{r}")
            a(f"v_permlane32_swap_b32 v{r}, v233")
            a(f"{op} v{r}, v{r}, v233")
        a(f"s_mov_b32 s12, {SPIN}")
        a("s_barrier")
        for k in (0, 2, 4, 6): vr(k)
        a("s_branch LTq1")
        a.label("LTq0")
        if self.o.get("qsleep", 0): a(f"s_sleep {self.o['qsleep']}")
        self.qfetch()
        a.label("LTq1")
        a("s_waitcnt vmcnt(1)")
        self.unpack(192, 24, 4)
        a("s_waitcnt vmcnt(0)")
        self.unpack(196, 32, 4)
        for k in range(4): a(f"v_pk_add_f32 v[{24+2*k}:{25+2*k}], v[{24+2*k}:{25+2*k}], v[{32+2*k}:{33+2*k}]")
        for i in range(4): a(f"v_permlane32_swap_b32 v{24+i}, v{28+i}")
        for k in range(2): a(f"v_pk_add_f32 v[{24+2*k}:{25+2*k}], v[{24+2*k}:{25+2*k}], v[{28+2*k}:{29+2*k}]")
        for i in range(2): a(f"v_permlane16_swap_b32 v{24+i}, v{26+i}")
        a("v_pk_add_f32 v[24:25], v[24:25], v[26:27]")
        a("v_cmp_u_f32 vcc, v24, v25")
        a("v_cvt_pk_bf16_f32 v24, v24, v25")
        a("s_cbranch_vccz LTq2")
        a("s_sub_u32 s12, s12, 1")
        a("s_cbranch_scc0 LTq0")
        a.label("LTq2")
        self.stamp(2)
        a("ds_write_b16 v22, v24")
        a("ds_write_b16_d16_hi v22, v24 offset:64")
        a("s_waitcnt lgkmcnt(0)")
        a("s_barrier")
        self.stamp(3)
        if self.o.get("ppos", 1) == 0:
            pe = self.o.get("pe", 1)
            if pe: a("buffer_load_dword v238, v236, s[92:95], s61 offen")
            if pe == 2: a("buffer_load_dword v237, v236, s[92:95], s60 offen")
        for ks in range(4): a(f"ds_read_b128 v[{208+4*ks}:{211+4*ks}], v20 offset:{64*ks}")
        def keep(t):
            for i in range(4): a(f"v_mov_b32_dpp v{40+i}, v{40+4*t+i} quad_perm:[0,1,2,3] row_mask:0xf bank_mask:{1<<t:#x}")
        vl = [(128 + 8 * k + 4 * t + 2 * h, 12 + t, 8192 * k + 4096 * h) for k in (1, 3, 5, 7) for t in range(2) for h in range(2)]
        def v1():
            r, va, off = vl.pop(0)
            a(f"ds_read_b64_tr_b16 v[{r}:{r+1}], v{va} offset:{off}")
        for i in range(3): v1()
        if self.o.get("ppos", 1) == 1:
            pe = self.o.get("pe", 1)
            if pe: a("buffer_load_dword v238, v236, s[92:95], s61 offen")
            if pe == 2: a("buffer_load_dword v237, v236, s[92:95], s60 offen")
        a("s_waitcnt lgkmcnt(3)")
        def mv(t, i): a(f"v_mov_b32_dpp v{40+i}, v{40+4*t+i} quad_perm:[0,1,2,3] row_mask:0xf bank_mask:{1<<t:#x}")
        for t in range(4):
            for ks in range(4):
                self.mfma(40 + 4 * t, 64 + 16 * t + 4 * ks, 208 + 4 * ks, ks == 0)
                if vl: v1()
                if t == 2 and ks == 1: a("v_max3_f32 v232, v40, v41, v42")
                if t == 3 and ks == 0:
                    a("v_max3_f32 v232, v232, v43, v44")
                    a("v_max3_f32 v232, v232, v45, v46")
                if t == 3 and ks in (1, 2):
                    mv(1, 2 * ks - 2); mv(1, 2 * ks - 1)
        a("v_max3_f32 v232, v232, v47, v48")
        a("v_max3_f32 v232, v232, v49, v50")
        for i in range(4): mv(2, i)
        a("v_max3_f32 v232, v232, v51, v52")
        a("v_max3_f32 v233, v53, v54, v55")
        a("v_max_f32 v232, v232, v233")
        a("v_mov_b32 v233, v232")
        mv(3, 0); mv(3, 1)
        a("v_permlane16_swap_b32 v232, v233")
        a("v_max_f32 v232, v232, v233")
        a("v_mov_b32 v233, v232")
        mv(3, 2); mv(3, 3)
        a("v_permlane32_swap_b32 v232, v233")
        a("v_max_f32 v232, v232, v233")
        a(f"v_mul_f32 v230, {f32(-CSC)}, v232")
        for i in range(4): a(f"v_fma_f32 v{40+i}, v{40+i}, s10, v230")
        a("ds_write_b32 v17, v230")
        for i in range(4): a(f"v_exp_f32 v{40+i}, v{40+i}")
        for i in range(2): a(f"v_cvt_pk_bf16_f32 v{44+i}, v{40+2*i}, v{41+2*i}")
        a("ds_write_b64 v15, v[44:45]")
        if self.o.get("tpad", 0):
            a("s_branch LTsk")
            a.label("LTHq")
            a("s_branch LTH")
            a.label("LTsk")
        a("s_waitcnt lgkmcnt(0)")
        a("s_barrier")
        self.stamp(4)
        a("; unpk on")
        for i in range(2): a(f"ds_read_b128 v[{64+4*i}:{67+4*i}], v14 offset:{256*i}")
        a("ds_read_b32 v24, v234")
        def pv(k):
            for t in range(2): self.mfma(192 + 8 * (k >> 1) + 4 * t, 128 + 8 * k + 4 * t, 64 + 4 * (k & 1), (k & 1) == 0)
        XG = ("row_ror:4", "row_ror:8")
        a("s_waitcnt lgkmcnt(1)")
        self.mfma(96, 224, 64, True)
        self.mfma(96, 224, 68, False)
        pv(0)
        a("s_waitcnt lgkmcnt(0)")
        a(f"v_min_f32_dpp v32, v24, v24 {XG[0]} row_mask:0xf bank_mask:0xf")
        pv(1)
        a(f"v_min_f32_dpp v32, v32, v32 {XG[1]} row_mask:0xf bank_mask:0xf")
        a("v_sub_f32 v24, v32, v24")
        a("v_exp_f32 v24, v24")
        pv(2)
        def pick(sw, lo=0, hi=8):
            for i in range(lo, hi): a(f"v_fmac_f32_dpp v{192+i}, v{192+8*sw+i}, v{24+sw} row_shl:{4*sw} row_mask:0xf bank_mask:0xf")
        a("v_mul_f32 v33, v24, v96")
        for sw in range(1, 4): a(f"v_mov_b32_dpp v{24+sw}, v24 row_shl:{4*sw} row_mask:0xf bank_mask:0xf")
        pv(3)
        a(f"v_add_f32_dpp v33, v33, v33 {XG[0]} row_mask:0xf bank_mask:0xf")
        for i in range(4): a(f"v_pk_mul_f32 v[{192+2*i}:{193+2*i}], v[{192+2*i}:{193+2*i}], v[24:25] op_sel_hi:[1,0]")
        pv(4)
        a(f"v_add_f32_dpp v33, v33, v33 {XG[1]} row_mask:0xf bank_mask:0xf")
        a("s_mov_b64 exec, s[58:59]")
        a("buffer_store_dwordx2 v[32:33], v19, s[40:43], s54 offen")
        a("s_mov_b64 exec, -1")
        pv(5)
        pick(1, 0, 4)
        pv(6)
        pick(1, 4, 8)
        pv(7)
        pick(2)
        pick(3)
        self.exec16(15)
        for i in range(4): a(f"v_cvt_pk_bf16_f32 v{200+i}, v{192+2*i}, v{193+2*i}")
        a("; unpk off")
        a("buffer_store_dwordx4 v[200:203], v18, s[40:43], s53 offen")
        self.stamp(5)
        a("s_mov_b64 exec, -1")
        a("s_barrier")
        if pe != 2: a("buffer_load_dword v237, v236, s[92:95], s60 offen")
        if not pe: a("buffer_load_dword v238, v236, s[92:95], s61 offen")
        self.exec16(15)
        a("buffer_store_dwordx4 v[200:203], v18, s[40:43], s8 offen sc1")
        a("s_mov_b64 exec, s[58:59]")
        a("buffer_store_dwordx2 v[32:33], v19, s[40:43], s52 offen sc1")
        a("s_mov_b64 exec, -1")
        a("s_cmp_eq_u32 s3, 1")
        a("s_cbranch_scc0 LTWe")
        self.final = True
        if self.o.get("nored"): self.end()
        a("s_cmp_lt_u32 s5, 4")
        a("s_cbranch_scc0 LTWe")
        a("s_lshl_b32 s6, s4, 2")
        a("s_add_u32 s6, s6, s5")
        self.srd(44, 16, 2048)
        self.srd(48, 38, 2048)
        a("v_bfe_u32 v2, v0, 2, 1")
        a("v_and_b32 v3, 3, v0")
        a("v_lshlrev_b32 v4, 3, v3")
        a("v_lshl_add_u32 v5, v2, 10, v4")
        a("v_lshlrev_b32 v6, 1, v5")
        a("v_lshrrev_b32 v8, 3, v0")
        a("v_lshl_add_u32 v7, v8, 12, v6")
        a("v_lshlrev_b32 v9, 4, v0")
        a("s_lshl_b32 s7, s6, 5")
        a("s_lshl_b32 s8, s6, 6")
        a(f"s_add_u32 s9, s8, {HD}")
        a(f"s_add_u32 s52, s8, {HM}")
        a(f"s_add_u32 s53, s8, {HM+3*4096}")
        a(f"s_mul_i32 s54, s6, {HFS}")
        a(f"s_add_u32 s54, s54, {HF}")
        a("s_add_u32 s55, s54, 4096")
        a("buffer_load_dwordx2 v[10:11], v5, s[44:47], s7 offen")
        a(f"s_mov_b32 s27, {RDY}")
        self.poll([f"buffer_load_dword v{40+i}, v9, s[40:43], s27 offen offset:{1024*i} sc1" for i in range(4)]
                  + ["buffer_load_dwordx4 v[12:15], v6, s[40:43], s52 offen sc1", "buffer_load_dwordx4 v[16:19], v6, s[40:43], s53 offen sc1"],
                  [(*self.TAGBAD, 40 + i) for i in range(4)] + [(*self.TAGBAD, 14), (*self.TAGBAD, 18)], sleep=2)
        a("v_lshlrev_b32 v22, 7, v0")
        a(f"v_add_u32 v22, {FD}, v22")
        if self.o.get("hd", 0): self.hint_wait(22, 23, FD)
        self.poll(["buffer_load_dwordx4 v[24:27], v7, s[40:43], s9 offen sc1"], [(*self.POISON, 24)], sleep=2)
        self.stamp(6)
        a("s_cmp_eq_u32 s6, 0")
        a("s_cbranch_scc0 LTWn")
        a("s_mov_b64 exec, 1")
        a("v_mov_b32 v20, s14")
        a("v_mov_b32 v21, 0")
        a(f"buffer_store_dword v20, v21, s[40:43], 0 offen offset:{EPOCH} sc1")
        a("s_mov_b64 exec, -1")
        a.label("LTWn")
        red8 = self.red8
        red8(24)
        self.unpack(10, 28, 2)
        self.unpack(12, 32, 2)
        self.unpack(16, 36, 2)
        for i in range(4): a(f"v_fmac_f32 v{28+i}, v{24+i}, v{32+i}")
        for r in range(1, 4):
            a(f"v_mov_b32_dpp v28, v{28+r} quad_perm:[0,1,2,3] row_mask:{1<<r:#x} bank_mask:0xf")
            a(f"v_mov_b32_dpp v36, v{36+r} quad_perm:[0,1,2,3] row_mask:{1<<r:#x} bank_mask:0xf")
        a("v_lshrrev_b32 v4, 4, v0")
        a("v_lshl_add_u32 v5, v4, 1, v5")
        if self.o.get("hf", 1): self.hint_wait(22, 23, FF)
        self.sum_poll([f"buffer_load_dwordx4 v[{64+4*i}:{67+4*i}], v9, s[40:43], s{54+(i>>2)} offen offset:{1024*(i&3)} sc1" for i in range(7)], 64, 56)
        self.stamp(7)
        a("v_permlane32_swap_b32 v56, v58")
        a("v_permlane32_swap_b32 v57, v59")
        a("v_pk_add_f32 v[56:57], v[56:57], v[58:59]")
        a("v_permlane16_swap_b32 v56, v57")
        a("v_add_f32 v56, v56, v57")
        a("v_add_f32_dpp v56, v56, v56 row_ror:8 row_mask:0xf bank_mask:0xf")
        self.exec16(0xff)
        a("v_fmac_f32 v28, v56, v36")
        a("v_cvt_pk_bf16_f32 v10, v28, v28")
        a("buffer_store_short v10, v5, s[48:51], s7 offen")
        self.stamp(8)
        if self.o.get("padto"):
            a("s_cmp_eq_u32 s6, 0")
            a("s_cbranch_scc0 LTWe")
        if self.o.get("padto"):
            a(f"s_mov_b32 s100, {self.o['padto']}")
            if self.o.get("amp"):
                a("s_waitcnt lgkmcnt(0)")
                a(f"s_sub_u32 s98, s{64+2*self.o['amp']}, s96")
                a("s_mul_i32 s98, s98, 10")
                a("s_add_u32 s100, s100, s98")
            a.label("Lpad")
            a("s_memrealtime s[98:99]")
            a("s_waitcnt lgkmcnt(0)")
            a("s_sub_u32 s98, s98, s96")
            a("s_cmp_lt_u32 s98, s100")
            a("s_cbranch_scc1 Lpad")
        a.label("LTWe")
        self.end()

    def ww_main(self):
        a, wf = self.a, self.wf
        a.label("LWHp")
        a("s_branch LWH2")
        a.label("LW2")
        mre = self.o.get("mre", 0)
        self.voff128(12, 6144, 3, 4)
        a("s_mov_b64 s[44:45], s[36:37]")
        a(f"s_mov_b32 s46, {512*6144}")
        a("s_mov_b32 s60, s4")
        a("s_mov_b32 s61, s52")
        a(f"s_add_u32 s63, s7, {WO+8192}")
        if mre: self.mr_issue(12, 44)
        self.stamp(1)
        a("v_mov_b32 v17, v12")
        self.traddr256(8, 8, "s7", 3, 5)
        a("s_lshr_b32 s58, s7, 2")
        a(f"s_add_u32 s58, s58, {GA}")
        a("v_bfe_u32 v3, v0, 2, 1")
        a("v_mul_u32_u24 v16, 144, v3")
        a("v_lshl_add_u32 v16, v1, 4, v16")
        a(f"v_add_u32 v16, {HW}, v16")
        a("v_lshlrev_b32 v18, 4, v0")
        a(f"v_add_u32 v18, {RED}, v18")
        a("v_and_b32 v19, 15, v0")
        a("v_lshlrev_b32 v19, 3, v19")
        a("v_lshrrev_b32 v3, 5, v0")
        a("v_lshl_add_u32 v19, v3, 7, v19")
        a("v_and_b32 v3, 16, v0")
        a("v_lshl_add_u32 v19, v3, 9, v19")
        a("s_lshl_b32 s55, s52, 14")
        a("s_lshl_b32 s15, s3, 11")
        a("s_add_u32 s55, s55, s15")
        a("s_lshl_b32 s15, s4, 8")
        a("s_add_u32 s55, s55, s15")
        a(f"s_add_u32 s55, s55, {HB}")
        a("s_lshl_b32 s52, s52, 9")
        self.wo_setup()
        vpf = self.o.get("vpf", 1)
        if vpf:
            self.srd(92, 20, 0x2000000)
            a("s_lshl_b32 s8, s61, 2")
            a("s_add_u32 s8, s8, s3")
            a("s_lshr_b32 s9, s8, 4")
            a("s_lshl_b32 s9, s9, 3")
            a("s_add_u32 s9, s9, s4")
            a("s_lshl_b32 s9, s9, 21")
            a("s_and_b32 s8, s8, 15")
            a("s_lshl_b32 s8, s8, 15")
            a("s_add_u32 s8, s8, s9")
            a(f"s_add_u32 s8, s8, {6144*256 + 12288}")
            a("v_lshrrev_b32 v20, 5, v0")
            a("v_and_b32 v4, 31, v0")
            a("v_lshlrev_b32 v4, 7, v4")
            a("v_lshl_add_u32 v20, v20, 14, v4")
        a(f"s_waitcnt vmcnt({8+8*mre}) lgkmcnt(0)")
        self.tag()
        for t in range(8): self.tr(64 + 4 * t, 8 + t, 0, 4096)
        a(f"s_waitcnt vmcnt({8*mre})")
        self.stamp(2)
        for t in range(8): self.tr(96 + 4 * t, 8 + t, 8192, 4096)
        a("s_barrier")
        for ks in range(2): a(f"ds_read_b128 v[{24+4*ks}:{27+4*ks}], v16 offset:{64*ks}")
        self.stamp(3)
        a("s_waitcnt lgkmcnt(0)")
        for ks in range(2):
            for t in range(8): self.mfma(128 + 4 * t, 24 + 4 * ks, 64 + 32 * ks + 4 * t, ks == 0)
        for k in range(4): a(f"v_permlane32_swap_b32 v{128+8*k}, v{132+8*k}")
        def red4(stride):
            for w in range(4): a(f"ds_read_b128 v[{24+4*w}:{27+4*w}], v18 offset:{stride*w}")
            a("s_waitcnt lgkmcnt(2)")
            for k in range(2): a(f"v_pk_add_f32 v[{24+2*k}:{25+2*k}], v[{24+2*k}:{25+2*k}], v[{28+2*k}:{29+2*k}]")
            a("s_waitcnt lgkmcnt(0)")
            for k in range(2): a(f"v_pk_add_f32 v[{32+2*k}:{33+2*k}], v[{32+2*k}:{33+2*k}], v[{36+2*k}:{37+2*k}]")
            for k in range(2): a(f"v_pk_add_f32 v[{24+2*k}:{25+2*k}], v[{24+2*k}:{25+2*k}], v[{32+2*k}:{33+2*k}]")
        a("v_cvt_pk_bf16_f32 v56, v128, v136")
        a("v_cvt_pk_bf16_f32 v57, v144, v152")
        a("buffer_store_dwordx2 v[56:57], v19, s[40:43], s55 offen sc1")
        self.stamp(4)
        if self.o.get("owait", 0): a("s_waitcnt vmcnt(0)")
        a("s_barrier")
        if vpf:
            vm = self.o.get("vmask", 16)
            if vm:
                a(f"s_mov_b32 exec_lo, {(0xffffffff << vm) & 0xffffffff:#x}")
                a(f"s_mov_b32 exec_hi, {(0xffffffff << vm) & 0xffffffff:#x}")
            a("buffer_load_dword v236, v20, s[92:95], s8 offen")
            a("s_mov_b64 exec, -1")
        def wo(n):
            L = self.lab("LWd")
            a("s_mov_b32 m0, s62")
            a(f"s_add_u32 s62, s62, {1024*n}" if n else "s_mov_b32 s62, s59")
            a.label(L)
            a(f"buffer_load_dwordx4 v2, s[48:51], s53 offen {wf} lds")
            a("s_add_u32 m0, m0, 1024")
            a("s_add_u32 s53, s53, 8192")
            a("s_cmp_lt_u32 m0, s62")
            a(f"s_cbranch_scc1 {L}")
        a("s_cmp_eq_u32 s61, 3")
        a("s_cbranch_scc1 LM")
        ms = self.o.get("msplit", 0)
        if ms:
            if ms < 4:
                a(f"s_cmp_ge_u32 s3, {ms}")
                a("s_cbranch_scc1 LWm")
            if not mre: self.mr_issue(17, 44)
            oe = self.o.get("oearly", 8)
            if oe: wo(oe)
            self.mr_compute(SCW, oe)
        self.delay("odel")
        a.label("LWm")
        wo(0)
        a("v_and_b32 v3, 15, v0")
        a("v_lshlrev_b32 v13, 7, v3")
        a("s_lshl_b32 s9, s4, 14")
        a(f"s_add_u32 s9, s9, {HC}")
        a("s_lshl_b32 s8, s4, 11")
        a(f"s_add_u32 s8, s8, {HL}")
        self.stamp(5)
        a("v_lshlrev_b32 v229, 4, v0")
        a("s_mul_i32 s13, s4, 240")
        a("s_sub_u32 s13, 2432, s13")
        a("v_mov_b32 v4, s13")
        a("v_cmp_gt_u32 vcc, 16, v0")
        a("v_cndmask_b32 v229, v4, v229, vcc")
        a("s_lshl_b32 s27, s4, 8")
        a(f"s_add_u32 s27, s27, {RDY}")
        self.rdy_load()
        wpf = self.o.get("wpf", 0)
        if wpf:
            a("s_mov_b64 s[44:45], s[30:31]")
            a(f"s_mov_b32 s46, {512*3584}")
            a("s_lshr_b32 s13, s52, 7")
            a("s_add_u32 s13, s13, s3")
            a(f"s_mul_i32 s13, s13, {16*3584}")
            a("s_mul_i32 s15, s4, 448")
            a("s_add_u32 s13, s13, s15")
            a("v_lshrrev_b32 v4, 2, v0")
            a("v_mul_u32_u24 v4, 3584, v4")
            a("v_and_b32 v5, 3, v0")
            a("v_lshl_add_u32 v4, v5, 7, v4")
            a("buffer_load_dword v238, v4, s[44:47], s13 offen")
        a("s_lshl_b32 s15, s3, 8")
        a("s_add_u32 s9, s9, s15")
        a("s_lshl_b32 s15, s3, 3")
        a("s_add_u32 s8, s8, s15")
        a(f"s_add_u32 s15, s7, {WO}")
        self.traddr128(8, "s15", 3, 4)
        a("v_and_b32 v3, 15, v0")
        a("v_xor_b32 v12, v3, v1")
        a("v_lshlrev_b32 v12, 4, v12")
        a("v_lshl_add_u32 v4, v1, 10, v12")
        for i in range(1, 4):
            a(f"v_xor_b32 v{4+i}, {64*i}, v4")
            a(f"v_add_u32 v{4+i}, {3072*i}, v{4+i}")
        a("v_lshl_add_u32 v20, v3, 8, v12")
        a("v_add_u32 v20, s58, v20")
        for i in range(1, 4): a(f"v_xor_b32 v{20+i}, {64*i}, v20")
        a("v_lshlrev_b32 v14, 4, v1")
        a("v_lshrrev_b32 v12, 5, v0")
        a("v_lshlrev_b32 v15, 8, v12")
        a("v_and_b32 v12, 31, v0")
        a("v_lshl_add_u32 v15, v12, 2, v15")
        a("s_lshl_b32 s15, s3, 9")
        a(f"s_add_u32 s15, s15, {RED}")
        a("v_add_u32 v15, s15, v15")
        a("v_lshlrev_b32 v17, 4, v3")
        a("v_lshl_add_u32 v17, v1, 11, v17")
        a("s_lshl_b32 s55, s4, 12")
        a("s_lshr_b32 s15, s52, 1")
        a("s_add_u32 s55, s55, s15")
        a(f"s_add_u32 s55, s55, {HD}")
        a("s_mov_b32 m0, s58")
        a("v_mov_b32 v128, 0")
        a(f"s_waitcnt vmcnt({wpf})")
        self.stamp(6)
        self.rdy_check()
        def sissue():
            a("s_mov_b64 exec, 0xffff")
            a("buffer_load_dwordx2 v[128:129], v13, s[40:43], s8 offen sc1")
            a("s_mov_b64 exec, -1")
        def cissue():
            for i in range(4): a(f"buffer_load_dwordx4 v{4+i}, s[40:43], s9 offen offset:{1024*i} sc1 lds")
        def smid():
            cissue()
            for ks in range(4):
                for t in range(4): self.tr(64 + 16 * ks + 4 * t, 8 + t, 4096 * ks, 2048)
            self.stamp(9)
            a("s_waitcnt vmcnt(4)")
            a("v_cmp_eq_u32 vcc, -1, v128")
            a("s_cbranch_vccz LWc")
        def sbody():
            a("s_waitcnt vmcnt(0)")
            a("v_cmp_eq_u32 s[10:11], -1, v128")
        self.spin(sbody, alt=([8, 9], LOC, self.o.get("every", 32)), issue=sissue, mid=smid)
        D8 = ("quad_perm:[1,0,3,2]", "quad_perm:[2,3,0,1]", "row_half_mirror")
        def cmid():
            a.label("LWc")
            if self.o.get("hd", 0): self.hint(FD, ["s_cmp_eq_u32 s52, 1536", "s_cmp_eq_u32 s3, 3"])
            for i, m in enumerate(D8): a(f"v_min_f32_dpp v134, v{134 if i else 128}, v{134 if i else 128} {m} row_mask:0xf bank_mask:0xf")
            a("v_sub_f32 v134, v134, v128")
            a("v_exp_f32 v134, v134")
            a("v_mul_f32 v135, v134, v129")
            for m in D8: a(f"v_add_f32_dpp v135, v135, v135 {m} row_mask:0xf bank_mask:0xf")
            a("v_rcp_f32 v135, v135")
            a("v_mul_f32 v134, v134, v135")
            for r in range(4): a(f"ds_bpermute_b32 v{130+r}, v14, v134 offset:{4*r}")
        def cbody():
            a("s_waitcnt vmcnt(0)")
            for ks in range(4): a(f"ds_read_b128 v[{24+4*ks}:{27+4*ks}], v{20+ks}")
            a("s_waitcnt lgkmcnt(0)")
            a("v_max3_u32 v136, v24, v28, v32")
            a("v_max_u32 v136, v136, v36")
            a("v_cmp_eq_u32 s[10:11], -1, v136")
        self.spin(cbody, issue=cissue, mid=cmid, keep=(9, 99, 98))
        self.stamp(7)
        def fin(k, step):
            ts = (2 * k, 2 * k + 1)
            if step == 0:
                for t in ts: a(f"v_pk_mul_f32 v[{40+4*t}:{41+4*t}], v[{40+4*t}:{41+4*t}], v[130:131]")
                for t in ts: a(f"v_pk_fma_f32 v[{40+4*t}:{41+4*t}], v[{42+4*t}:{43+4*t}], v[132:133], v[{40+4*t}:{41+4*t}]")
                for t in ts: a(f"v_add_f32 v{40+4*t}, v{40+4*t}, v{41+4*t}")
            else:
                a(f"v_permlane16_swap_b32 v{40+8*k}, v{44+8*k}")
                a(f"v_add_f32 v{40+8*k}, v{40+8*k}, v{44+8*k}")
                a(f"ds_write_b32 v15, v{40+8*k} offset:{128*k}")
        for k in range(2):
            for ks in range(4):
                for t in (2 * k, 2 * k + 1): self.mfma(40 + 4 * t, 24 + 4 * ks, 64 + 16 * ks + 4 * t, ks == 0)
        fin(0, 0); fin(0, 1); fin(1, 0); fin(1, 1)
        a("s_waitcnt lgkmcnt(0)")
        a("s_barrier")
        a("s_cmp_eq_u32 s3, 0")
        a("s_cbranch_scc0 LWe")
        a("s_mov_b32 exec_hi, 0")
        red4(512)
        a("buffer_store_dwordx4 v[24:27], v17, s[40:43], s55 offen sc1")
        self.stamp(8)
        a.label("LWe")
        self.end()

    def g_role(self):
        a, wf = self.a, self.wf
        self.mute = True
        ms = self.o.get("msplit", 0)
        a("s_lshr_b32 s63, s7, 1")
        a(f"s_add_u32 s63, s63, {MRG}")
        def gvp():
            self.srd(92, 20, 0x2000000)
            a("s_lshl_b32 s8, s5, 2")
            a("s_add_u32 s8, s8, s3")
            a("s_lshr_b32 s9, s8, 4")
            a("s_lshl_b32 s9, s9, 3")
            a("s_add_u32 s9, s9, s4")
            a("s_lshl_b32 s9, s9, 21")
            a("s_and_b32 s8, s8, 15")
            a("s_lshl_b32 s8, s8, 15")
            a("s_add_u32 s8, s8, s9")
            a(f"s_add_u32 s8, s8, {6144*256 + 12288}")
            a("v_lshrrev_b32 v3, 5, v0")
            a("v_and_b32 v4, 31, v0")
            a("v_lshlrev_b32 v4, 7, v4")
            a("v_lshl_add_u32 v3, v3, 14, v4")
            m = (1 << self.o.get("gvp", 16)) - 1
            a(f"s_mov_b32 exec_lo, {m:#x}")
            a(f"s_mov_b32 exec_hi, {m:#x}")
            a("buffer_load_dword v236, v3, s[92:95], s8 offen")
            a("s_mov_b64 exec, -1")
            if self.o.get("gv2", 16):
                m = (0xffffffff << (32 - self.o.get("gv2", 16))) & 0xffffffff
                a("s_sub_u32 s8, s8, 4096")
                a(f"s_mov_b32 exec_lo, {m:#x}")
                a(f"s_mov_b32 exec_hi, {m:#x}")
                a("buffer_load_dword v237, v3, s[92:95], s8 offen")
                a("s_mov_b64 exec, -1")
        if self.o.get("gall", 0): gvp()
        self.g_index()
        a("s_cbranch_scc1 LO3")
        if ms < 4:
            a(f"s_cmp_lt_u32 s3, {ms}")
            a("s_cbranch_scc1 LGn")
            self.mr_issue(2, 52)
            a.label("LGn")
        if not self.o.get("gall", 0): gvp()
        a(f"s_add_u32 s7, s7, {GU}")
        a("s_mov_b32 s53, s26")
        for i in range(4): a(f"v_mov_b32 v{32+i}, -1")
        a("v_lshrrev_b32 v3, 3, v0")
        a(f"v_mul_u32_u24 v3, {HFS}, v3")
        a("v_and_b32 v4, 7, v0")
        a("v_lshl_add_u32 v3, v4, 4, v3")
        a(f"s_mul_i32 s26, s3, {8*HFS}")
        a("s_lshl_b32 s15, s53, 7")
        a("s_add_u32 s26, s26, s15")
        a(f"s_add_u32 s26, s26, {HF}")
        a("buffer_store_dwordx4 v[32:35], v3, s[40:43], s26 offen sc1")
        a(f"s_and_b32 s52, s53, {self.o.get(chr(114)+chr(111)+chr(116), 0)}")
        a("s_cmp_eq_u32 s52, 0")
        a("s_cselect_b64 s[44:45], s[28:29], s[30:31]")
        a("s_cselect_b64 s[48:49], s[30:31], s[28:29]")
        a(f"s_mov_b32 s46, {512*3584}")
        a(f"s_mov_b32 s50, {512*3584}")
        a("s_lshl_b32 s52, s52, 13")
        a("v_lshrrev_b32 v1, 2, v0")
        a("v_bfe_u32 v2, v0, 4, 1")
        a("v_lshlrev_b32 v2, 1, v2")
        a("v_and_b32 v3, 3, v0")
        a("v_xor_b32 v2, v2, v3")
        a("v_mul_u32_u24 v4, 3584, v1")
        a("v_lshl_add_u32 v2, v2, 4, v4")
        a(f"s_mul_i32 s8, s3, {128*3584}")
        a("s_lshl_b32 s15, s53, 6")
        a("s_add_u32 s8, s8, s15")
        def mat(m, lo=0, hi=8):
            L = self.lab("LGx")
            if lo == 0:
                a("s_add_u32 s58, s7, s52")
                a("s_mov_b32 s59, s8")
            a("s_mov_b32 m0, s58")
            a(f"s_add_u32 s58, s58, {1024*(hi-lo)}")
            a.label(L)
            gf = ["nt", "", "sc1", "sc0"][self.o.get("gflag%d" % m, 1)]
            a(f"buffer_load_dwordx4 v2, s[{44+4*m}:{47+4*m}], s59 offen {gf} lds")
            a("s_add_u32 m0, m0, 1024")
            a(f"s_add_u32 s59, s59, {16*3584}")
            if self.o.get("gcap", 0) and (lo or m): a(f"s_waitcnt vmcnt({self.o['gcap']})")
            a("s_cmp_lt_u32 m0, s58")
            a(f"s_cbranch_scc1 {L}")
            if hi == 8: a("s_xor_b32 s52, s52, 8192")
        pw = self.o.get("pwait", 1)
        if not pw:
            self.stamp(5)
            mat(0)
        a(f"s_waitcnt vmcnt({0 if pw else 8})")
        a("s_barrier")
        if ms < 4:
            a(f"s_cmp_lt_u32 s3, {ms}")
            a("s_cbranch_scc1 LGo")
            self.mr_compute(SC, 0 if pw else 8)
            a.label("LGo")
        a("s_cmp_eq_u32 s3, 0")
        a("s_cbranch_scc0 LGr")
        self.rdy_publish(8, "s2")
        if self.o.get("rwait", 1): a("s_waitcnt vmcnt(0)")
        a.label("LGr")
        if self.o.get("rwait", 1): a("s_barrier")
        if pw:
            self.delay("fdel")
            self.stamp(5)
            mat(0)
        mat(1)
        a("s_mov_b64 s[48:49], s[16:17]")
        a("s_mov_b32 s50, 2048")
        a("v_lshrrev_b32 v4, 5, v0")
        a("v_and_b32 v5, 31, v0")
        a("v_lshlrev_b32 v19, 3, v5")
        a("v_lshl_add_u32 v19, v4, 10, v19")
        a("s_lshl_b32 s15, s3, 8")
        a("buffer_load_dwordx2 v[24:25], v19, s[48:51], s15 offen")
        a("s_lshl_b32 s9, s53, 15")
        a("s_add_u32 s9, s9, s15")
        a("v_lshlrev_b32 v229, 4, v0")
        a(f"s_mov_b32 s27, {RDY+2048}")
        self.rdy_load()
        a("v_lshlrev_b32 v18, 1, v19")
        a("s_lshl_b32 s15, s3, 9")
        for k in range(3): a(f"s_add_u32 s{28+k}, s15, {HM+4096*k}")
        mloads = [f"buffer_load_dwordx4 v[{208+4*k}:{211+4*k}], v18, s[40:43], s{28+k} offen sc1" for k in range(3)]
        for l in mloads: a(l)
        for k in range(8): a(f"s_add_u32 s{16+k}, s15, {HD+4096*k}")
        self.voff256(6, 10, 8, 9)
        a("s_mov_b64 s[44:45], s[32:33]")
        a(f"s_mov_b32 s46, {1792*1024}")
        a("s_lshl_b32 s6, s3, 13")
        a(f"s_add_u32 s6, s6, {DWN}")
        a("s_mov_b32 m0, s6")
        a("s_add_u32 s13, s6, 8192")
        a.label("LGd2")
        for i in range(2):
            a(f"buffer_load_dwordx4 v{6+i}, s[44:47], s9 offen {wf} lds")
            a("s_add_u32 m0, m0, 1024")
            a("s_add_u32 s9, s9, 4096")
        a("s_cmp_lt_u32 m0, s13")
        a("s_cbranch_scc1 LGd2")
        a("v_bfe_u32 v8, v0, 4, 1")
        a("v_lshlrev_b32 v8, 5, v8")
        a("v_lshl_add_u32 v8, v1, 6, v8")
        a("v_lshl_add_u32 v8, v3, 3, v8")
        a("v_add_u32 v8, s7, v8")
        a("v_xor_b32 v9, 32, v8")
        self.traddr256(10, 8, "s6", 6, 7)
        a("v_mul_u32_u24 v20, 816, v4")
        a("v_lshrrev_b32 v6, 3, v5")
        a("v_lshl_add_u32 v20, v6, 6, v20")
        a("v_lshl_add_u32 v20, v3, 4, v20")
        a("v_bfe_u32 v6, v0, 2, 1")
        a("v_lshl_add_u32 v20, v6, 3, v20")
        a(f"s_add_u32 s15, s7, {AROW_O}")
        a("v_add_u32 v20, s15, v20")
        a("v_mul_u32_u24 v22, 816, v6")
        a("v_and_b32 v7, 48, v0")
        a("v_add3_u32 v22, v22, v7, s15")
        a("v_min_u32 v21, 2, v3")
        a("v_mul_u32_u24 v21, 272, v21")
        a("v_add_u32 v22, v22, v21")
        a("v_bfe_u32 v228, v0, 4, 1")
        a(f"v_mul_u32_u24 v228, {HFS}, v228")
        a("v_lshl_add_u32 v228, v4, 6, v228")
        a("v_and_b32 v227, 15, v0")
        a("v_lshl_add_u32 v228, v227, 2, v228")
        a("v_lshlrev_b32 v2, 3, v0")
        a("s_lshl_b32 s15, s3, 9")
        a("v_add_u32 v23, s15, v2")
        a("v_lshlrev_b32 v2, 8, v6")
        a("v_and_b32 v227, 8, v0")
        a("v_lshl_add_u32 v2, v227, 4, v2")
        a("v_lshl_add_u32 v2, v7, 1, v2")
        a("v_lshl_add_u32 v2, v3, 3, v2")
        a("s_lshl_b32 s15, s3, 2")
        a("v_add_u32 v226, s15, v7")
        a("v_and_b32 v231, 16, v0")
        a("v_lshlrev_b32 v231, 1, v231")
        a(f"v_mov_b32 v232, {f32(1e-5)}")
        self.guard(2100, fill=self.small_helpers)
        hd = self.o.get("hd", 0)
        if self.o.get("hf", 1) == 1:
            a("s_lshl_b32 s13, s4, 7")
            a(f"s_add_u32 s13, s13, {FF}")
            a("s_lshl_b32 s15, s5, 2")
            a("s_add_u32 s15, s15, s3")
            a("s_cmp_eq_u32 s15, 3")
            a("s_cselect_b32 s13, s13, 0x7ffffff0")
            a("v_mov_b32 v235, s13")
            a("v_mov_b32 v234, s14")
            a("s_mov_b64 s[62:63], 1")
        a("v_lshlrev_b32 v224, 7, v0")
        a(f"v_add_u32 v224, {FD}, v224")
        a("s_waitcnt vmcnt(8)")
        self.stamp(6)
        for m in range(2):
            for ks in range(4):
                for t in range(2): self.tr(64 + 32 * m + 8 * ks + 4 * t, 8 + t, 8192 * m + 2048 * ks, 1024)
        self.unpack(24, 28, 2)
        a("v_and_b32 v24, 32, v0")
        a(f"v_add_u32 v24, {LNS}, v24")
        a("ds_read_b128 v[32:35], v24")
        self.rdy_check()
        for k in range(3): a(f"v_xor_b32 v{211+4*k}, s14, v{210+4*k}")
        a("v_or3_b32 v211, v211, v215, v219")
        a("v_cmp_ne_u32 vcc, 0, v211")
        a("s_cbranch_vccz LGmo")
        self.poll(mloads, [(*self.TAGBAD, 210 + 4 * k) for k in range(3)], sleep=1)
        a.label("LGmo")
        self.stamp(4)
        def prepass(younger=8):
            a("s_waitcnt lgkmcnt(0)")
            a("ds_write_b64 v20, v[212:213] offset:544")
            a("v_pk_add_f32 v[32:33], v[32:33], v[34:35]")
            a("v_add_f32 v32, v32, v33")
            for i in range(4): a(f"v_fmac_f32 v{28+i}, {f32(-1/512)}, v32")
            self.unpack(216, 196, 2)
            for i in range(4): a(f"v_add_f32 v{196+i}, 1.0, v{196+i}")
            a("v_cvt_pk_bf16_f32 v36, v196, v197")
            a("v_cvt_pk_bf16_f32 v37, v198, v199")
            a("ds_write_b64 v20, v[36:37] offset:272")
            self.unpack(208, 192, 2)
            self.unpack(36, 196, 2)
            for i in range(4): a(f"v_mul_f32 v{200+i}, v{28+i}, v{196+i}")
            for i in range(4): a(f"v_mul_f32 v{196+i}, v{192+i}, v{196+i}")
            a(f"s_waitcnt vmcnt({younger})")
            for dt in range(8): self.tr(128 + 4 * dt, 10 + dt, 0, 4096)
            self.stamp(10)
        dl = [f"buffer_load_dwordx4 v[{160+4*k}:{163+4*k}], v18, s[40:43], s{16+k} offen sc1" for k in range(8)]
        if hd:
            a("s_mov_b64 exec, 0xff")
            a(self.hint_load(224, 225, FD))
            a("s_mov_b64 exec, -1")
            prepass(1)
            a("s_waitcnt vmcnt(0)")
            a("s_mov_b64 exec, 0xff")
            a("v_cmp_ne_u32 vcc, s14, v225")
            a("s_mov_b64 exec, -1")
            a("s_cbranch_vccz LGh")
            self.hint_wait(224, 225, FD)
            a.label("LGh")
            self.sum_poll(dl, 160, 56)
        else:
            self.sum_poll(dl, 160, 56, mid=prepass)
        self.stamp(7)
        for k in range(2): a(f"v_pk_fma_f32 v[{200+2*k}:{201+2*k}], v[{56+2*k}:{57+2*k}], v[{196+2*k}:{197+2*k}], v[{200+2*k}:{201+2*k}]")
        a("v_cvt_pk_bf16_f32 v32, v200, v201")
        a("v_cvt_pk_bf16_f32 v33, v202, v203")
        a("ds_write_b64 v20, v[32:33]")
        for ks in range(4): a(f"ds_read_b128 v[{172+4*ks}:{175+4*ks}], v22 offset:{64*ks}")
        for k in range(2): a(f"v_pk_fma_f32 v[{28+2*k}:{29+2*k}], v[{56+2*k}:{57+2*k}], v[{192+2*k}:{193+2*k}], v[{28+2*k}:{29+2*k}]")
        if self.o.get("hf", 1) == 2: self.hint(FF, ["s_cmp_eq_u32 s5, 0", "s_cmp_eq_u32 s3, 3"])
        a("v_pk_add_f32 v[190:191], v[28:29], v[30:31]")
        a("v_pk_mul_f32 v[28:29], v[28:29], v[28:29]")
        a("v_pk_fma_f32 v[28:29], v[30:31], v[30:31], v[28:29]")
        a("v_add_f32 v190, v190, v191")
        a("v_add_f32 v191, v28, v29")
        a("v_permlane16_swap_b32 v190, v191")
        def mg(m, ks):
            for t in range(2): self.mfma(40 + 8 * m + 4 * t, 172 + 4 * ks, 64 + 32 * m + 8 * ks + 4 * t, ks == 0)
        a("v_add_f32 v190, v190, v191")
        for ks, m in enumerate(("quad_perm:[1,0,3,2]", "quad_perm:[2,3,0,1]", "row_half_mirror", "row_mirror")):
            a(f"v_add_f32_dpp v190, v190, v190 {m} row_mask:0xf bank_mask:0xf")
            a(f"s_waitcnt lgkmcnt({3-ks})")
            if ks < 3: mg(0, ks)
        a(f"ds_write_b32 v226, v190 offset:{STAT}")
        mg(0, 3)
        mg(1, 0)
        a("s_waitcnt lgkmcnt(0)")
        a("s_barrier")
        a(f"ds_read_b128 v[24:27], v231 offset:{STAT}")
        a(f"ds_read_b128 v[28:31], v231 offset:{STAT+16}")
        mg(1, 1)
        if self.o.get("hf", 1) == 1:
            a("s_mov_b64 exec, s[62:63]")
            a("buffer_store_dword v234, v235, s[40:43], 0 offen sc1")
            a("s_mov_b64 exec, -1")
        for r in range(3): a(f"v_permlane32_swap_b32 v{40+r}, v{44+r}")
        mg(1, 2)
        mg(1, 3)
        a("s_waitcnt lgkmcnt(0)")
        a("v_pk_add_f32 v[24:25], v[24:25], v[26:27]")
        a("v_pk_add_f32 v[28:29], v[28:29], v[30:31]")
        a("v_add_f32 v24, v24, v25")
        a("v_add_f32 v28, v28, v29")
        a(f"v_mul_f32 v24, {f32(1/512)}, v24")
        a(f"v_fmamk_f32 v28, v28, {f32(1/512)}, v232")
        a("v_fma_f32 v28, -v24, v24, v28")
        a("v_max_f32 v28, v28, v232")
        a("v_rsq_f32 v28, v28")
        for r in range(3): a(f"v_permlane32_swap_b32 v{48+r}, v{52+r}")
        a("v_fma_f32 v40, -v24, v41, v40")
        a("v_fma_f32 v48, -v24, v49, v48")
        a("v_fma_f32 v40, v40, v28, v42")
        a("v_fma_f32 v41, v48, v28, v50")
        a(f"ds_write_b64 v23, v[40:41] offset:{REC}")
        a("s_waitcnt lgkmcnt(0)")
        a("s_barrier")
        self.stamp(8)
        for w in range(4): a(f"ds_read_b64 v[{64+2*w}:{65+2*w}], v2 offset:{REC+512*w}")
        a("s_waitcnt lgkmcnt(2)")
        a("v_pk_add_f32 v[64:65], v[64:65], v[66:67]")
        a("s_waitcnt lgkmcnt(0)")
        a("v_pk_add_f32 v[68:69], v[68:69], v[70:71]")
        a("v_pk_add_f32 v[64:65], v[64:65], v[68:69]")
        a("v_max_f32 v64, 0, v64")
        a("v_mul_f32 v64, v64, v65")
        a("v_mov_b32_dpp v65, v64 quad_perm:[1,0,3,2] row_mask:0xf bank_mask:0xf")
        a("v_cvt_pk_bf16_f32 v24, v64, v65")
        for i in range(1, 4): a(f"v_mov_b32_dpp v{24+i}, v24 row_shl:{2*i} row_mask:0xf bank_mask:0xf")
        for dt in range(8): self.mfma(160 + 4 * dt, 24, 128 + 4 * dt, True)
        for k in range(4):
            a(f"v_permlane16_swap_b32 v{160+8*k}, v{164+8*k}")
            a(f"buffer_store_dword v{160+8*k}, v228, s[40:43], s26 offen sc1")
            if k < 3: a(f"s_add_u32 s26, s26, {2*HFS}")
        self.stamp(9)
        self.end()

    def small_helpers(self):
        a = self.a
        a.label("LO3")
        if 0 < self.o.get('msplit', 0) < 4:
            a(f"s_cmp_lt_u32 s3, {self.o.get('msplit', 0)}")
            a("s_cbranch_scc1 LO4")
            self.mr_issue(2, 52)
            self.mr_compute(SC, 0)
            a.label("LO4")
            a("s_barrier")
        a("s_movk_i32 s52, 1536")
        a("s_lshr_b32 s58, s7, 2")
        a(f"s_add_u32 s58, s58, {GA}")
        a("v_lshrrev_b32 v1, 4, v0")
        a("v_lshlrev_b32 v18, 4, v0")
        a(f"v_add_u32 v18, {RED}, v18")
        self.wo_setup()
        self.delay("o3del")
        a("s_branch LWm")
        a.label("LGH2")
        a("s_setprio 3")
        self.tag()
        self.g_index()
        a("s_cbranch_scc1 LGH3")
        a("s_endpgm")
        a.label("LGH3")
        self.rdy_publish(8, "s2")
        a("s_endpgm")
        a.label("LWH2")
        a("s_setprio 3")
        for i in range(4): a(f"v_mov_b32 v{32+i}, -1")
        a("v_bfe_u32 v3, v0, 4, 1")
        a("v_lshlrev_b32 v3, 11, v3")
        a("v_and_b32 v4, 15, v0")
        a("v_lshl_add_u32 v3, v4, 4, v3")
        a("s_lshl_b32 s15, s4, 12")
        a("s_and_b32 s6, s5, 7")
        a("s_lshl_b32 s6, s6, 8")
        a("s_add_u32 s15, s15, s6")
        a(f"s_add_u32 s15, s15, {HD}")
        a("v_lshrrev_b32 v6, 4, v0")
        a("v_lshlrev_b32 v6, 11, v6")
        a("v_lshl_add_u32 v6, v4, 4, v6")
        a("s_lshl_b32 s8, s6, 6")
        a("s_lshl_b32 s9, s4, 8")
        a("s_add_u32 s8, s8, s9")
        a(f"s_add_u32 s8, s8, {HB}")
        a("s_add_u32 s9, s8, 8192")
        self.c_voff(4)
        a("s_lshr_b32 s6, s6, 1" if self.o.get("msplit", 0) else "s_movk_i32 s6, 896")
        a("s_mov_b32 s50, 2048")
        a("s_waitcnt lgkmcnt(0)")
        a("s_load_dword s14, s[40:41], 0")
        a("s_mov_b64 s[48:49], s[34:35]")
        a("buffer_load_dwordx2 v[28:29], v4, s[48:51], s6 offen")
        a("buffer_store_dwordx4 v[32:35], v6, s[40:43], s8 offen sc1")
        a("buffer_store_dwordx4 v[32:35], v6, s[40:43], s9 offen sc1")
        a("s_mov_b32 exec_hi, 0")
        a("buffer_store_dwordx4 v[32:35], v3, s[40:43], s15 offen sc1")
        a("s_mov_b64 exec, -1")
        self.silu_frag(SCW)
        a("s_waitcnt vmcnt(0) lgkmcnt(0)")
        self.tag()
        self.rdy_publish(8, "s2")
        a("v_lshlrev_b32 v2, 4, v0")
        a("s_lshl_b32 s8, s4, 12")
        a(f"s_add_u32 s8, s8, {HA}")
        a("v_and_b32 v3, 1, v0")
        a("v_mul_u32_u24 v3, 144, v3")
        a("v_bfe_u32 v4, v0, 1, 2")
        a("v_lshl_add_u32 v3, v4, 4, v3")
        a("v_lshrrev_b32 v4, 5, v0")
        a("v_lshl_add_u32 v3, v4, 6, v3")
        a("v_bfe_u32 v4, v0, 4, 1")
        a("v_lshl_add_u32 v3, v4, 3, v3")
        a(f"v_add_u32 v3, {HW}, v3")
        def aissue():
            for t in range(4): a(f"buffer_load_dwordx4 v[{40+4*t}:{43+4*t}], v2, s[40:43], s8 offen offset:{1024*t} sc1")
        def abody():
            for t in range(4):
                a(f"s_waitcnt vmcnt({3-t})")
                a(f"v_xor_b32 v{43+4*t}, s14, v{42+4*t}")
                self.unpack(40 + 4 * t, 64 + 4 * t, 2)
            a("v_or3_b32 v43, v43, v47, v51")
            a("v_or_b32 v43, v43, v55")
            a("v_cmp_ne_u32 s[10:11], 0, v43")
        self.spin(abody, alt=([8], ALOC, 8), issue=aissue, mid=self.silu_run)
        self.fold8()
        a("ds_write_b64 v3, v[40:41]")
        a("s_waitcnt lgkmcnt(0)")
        a("s_barrier")
        a("s_endpgm")
        a.label("LTH")
        if self.o.get("nohelp"): a("s_endpgm")
        a("s_setprio 3")
        for i in range(4): a(f"v_mov_b32 v{40+i}, -1")
        a("v_lshlrev_b32 v2, 4, v0")
        a("s_lshl_b32 s6, s4, 4")
        a("s_add_u32 s6, s6, s5")
        a("s_lshl_b32 s54, s6, 10")
        a(f"s_add_u32 s54, s54, {HC}")
        a("s_lshl_b32 s55, s6, 7")
        a(f"s_add_u32 s55, s55, {HL}")
        a("s_waitcnt lgkmcnt(0)")
        a("s_load_dword s14, s[40:41], 0")
        a("buffer_store_dwordx4 v[40:43], v2, s[40:43], s54 offen sc1")
        a(f"s_add_u32 s54, s54, {LOC}")
        a("buffer_store_dwordx4 v[40:43], v2, s[40:43], s54 offen sc1")
        a("s_mov_b64 exec, 0xff")
        a("buffer_store_dwordx4 v[40:43], v2, s[40:43], s55 offen sc1")
        a(f"s_add_u32 s55, s55, {LOC}")
        a("buffer_store_dwordx4 v[40:43], v2, s[40:43], s55 offen sc1")
        a("s_mov_b64 exec, -1")
        a("s_waitcnt vmcnt(0) lgkmcnt(0)")
        self.tag()
        self.rdy_publish(44, "s6")
        a("buffer_load_dwordx4 v[232:235], v2, s[40:43], s54 offen sc1")
        a("s_mov_b64 exec, 1")
        a("buffer_load_dword v236, v2, s[40:43], s55 offen sc1")
        a("s_endpgm")

    def m_role(self):
        a = self.a
        self.mute = False
        a.label("LM")
        if self.o.get("nom"): self.end()
        ms = self.o.get("msplit", 0)
        if ms == 0: a("s_mov_b32 s61, 7")
        if 0 < ms < 4:
            a(f"s_cmp_ge_u32 s3, {ms}")
            a("s_cbranch_scc1 LMr")
        if not self.o.get("mre", 0): self.mr_issue(17, 44)
        self.mr_compute(SCW, 0)
        a.label("LMr")
        a("s_lshl_b32 s6, s4, 2")
        a("s_add_u32 s6, s6, s3")
        a("s_lshl_b32 s8, s6, 12")
        a(f"s_add_u32 s8, s8, {HP}")
        a("s_lshr_b32 s9, s6, 3")
        a("s_lshl_b32 s9, s9, 12")
        a("s_and_b32 s6, s6, 7")
        a("s_lshl_b32 s6, s6, 8")
        a("s_add_u32 s9, s9, s6")
        a(f"s_add_u32 s9, s9, {HM}")
        a("v_lshlrev_b32 v2, 4, v0")
        a("v_and_b32 v3, 1, v0")
        a("v_lshlrev_b32 v3, 11, v3")
        a("v_bfe_u32 v4, v0, 1, 2")
        a("v_lshl_add_u32 v3, v4, 4, v3")
        a("v_and_b32 v4, 48, v0")
        a("v_lshl_add_u32 v3, v4, 2, v3")
        self.poll([f"buffer_load_dwordx4 v[{40+4*t}:{43+4*t}], v2, s[40:43], s8 offen offset:{1024*t} sc1" for t in range(4)],
                  [(*self.TAGBAD, 42 + 4 * t) for t in range(4)], sleep=1,
                  after=lambda t: self.unpack(40 + 4 * t, 64 + 4 * t, 2))
        self.stamp(6)
        self.fold8()
        self.exec16(0xff)
        a("buffer_store_dwordx4 v[40:43], v3, s[40:43], s9 offen sc1")
        self.stamp(7)
        self.end()

    def t_prefetch(self):
        a = self.a
        a.label("LTpx")
        a("s_mov_b32 s95, 0x20000")
        a("s_bitcmp1_b32 s3, 0")
        a("s_cbranch_scc1 LTpd")
        a("s_cmp_eq_u32 s3, 0")
        a("s_cselect_b64 s[92:93], s[28:29], s[30:31]")
        a(f"s_mov_b32 s94, {512*3584}")
        a(f"s_mul_i32 s60, s5, {32*3584}")
        a("s_mul_i32 s61, s4, 448")
        a("s_add_u32 s60, s60, s61")
        a(f"s_add_u32 s61, s60, {16*3584}")
        a("v_lshrrev_b32 v236, 2, v0")
        a("v_mul_u32_u24 v236, 3584, v236")
        a("v_and_b32 v235, 3, v0")
        a("v_lshl_add_u32 v236, v235, 7, v236")
        a("s_branch LTpr")
        a.label("LTpd")
        a("s_mov_b64 s[92:93], s[32:33]")
        a(f"s_mov_b32 s94, {1792*1024}")
        a(f"s_mul_i32 s60, s4, {7*32768}")
        a("s_lshl_b32 s61, s5, 1")
        a("s_lshr_b32 s13, s3, 1")
        a("s_add_u32 s61, s61, s13")
        a("s_mul_i32 s61, s61, 7168")
        a("s_add_u32 s60, s60, s61")
        a("s_mov_b32 s61, 0x7fffffff")
        a("v_min_u32 v236, 55, v0")
        a("v_lshlrev_b32 v236, 7, v236")
        a("s_branch LTpr")

    def fold8(self):
        a = self.a
        for i in range(8): a(f"v_permlane32_swap_b32 v{64+i}, v{72+i}")
        for k in range(4): a(f"v_pk_add_f32 v[{64+2*k}:{65+2*k}], v[{64+2*k}:{65+2*k}], v[{72+2*k}:{73+2*k}]")
        for i in range(4): a(f"v_permlane16_swap_b32 v{64+i}, v{68+i}")
        for k in range(2): a(f"v_pk_add_f32 v[{64+2*k}:{65+2*k}], v[{64+2*k}:{65+2*k}], v[{68+2*k}:{69+2*k}]")
        for i in range(4): a(f"v_add_f32_dpp v{64+i}, v{64+i}, v{64+i} row_ror:8 row_mask:0xf bank_mask:0xf")
        a("v_cvt_pk_bf16_f32 v40, v64, v65")
        a("v_cvt_pk_bf16_f32 v41, v66, v67")

    def red8(self, r):
        a = self.a
        for i in range(4): a(f"v_add_f32_dpp v{r+i}, v{r+i}, v{r+i} row_ror:8 row_mask:0xf bank_mask:0xf")
        for sw in ("16", "32"):
            for i in range(4): a(f"v_mov_b32 v{60+i}, v{r+i}")
            for i in range(4): a(f"v_permlane{sw}_swap_b32 v{r+i}, v{60+i}")
            for i in range(4): a(f"v_add_f32 v{r+i}, v{r+i}, v{60+i}")

    def unpk(self, lines):
        out = []
        on = False
        for l in lines:
            if l == "; unpk on": on = True; continue
            if l == "; unpk off": on = False; continue
            m = re.match(r"v_pk_(add|mul|fma)_f32 (.*)", l)
            if not (on and m and self.o.get("unpk", 0)):
                out.append(l); continue
            rest = m.group(2)
            mods = dict((k, [int(x) for x in v.split(",")]) for k, v in re.findall(r"(op_sel|op_sel_hi|neg_lo|neg_hi):\[([0-9,]+)\]", rest))
            regs = re.findall(r"([vs])\[(\d+):\d+\]", rest.split(" op_sel")[0].split(" neg_")[0])
            n = len(regs) - 1
            for half, sel, neg in ((0, mods.get("op_sel", [0] * n), mods.get("neg_lo", [0] * n)), (1, mods.get("op_sel_hi", [1] * n), mods.get("neg_hi", [0] * n))):
                ops = [("-" if neg[i] else "") + f"{regs[i+1][0]}{int(regs[i+1][1]) + sel[i]}" for i in range(n)]
                out.append(f"v_{m.group(1)}_f32 v{int(regs[0][1]) + half}, " + ", ".join(ops))
        return out

    def build(self):
        self.prologue()
        self.ww_early()
        if self.o.get("tnear"): self.tw_early()
        self.g_early()
        self.g_role()
        self.m_role()
        self.guard(3300, fall=False)
        self.ww_main()
        self.t_prefetch()
        self.guard(3300, fall=False)
        if not self.o.get("tnear"): self.tw_early()
        self.tw_issue()
        self.tw_main()
        if self.diag:
            self.a.label("Ldump")
            self.dump_stamps()
        self.a.label("Lexit")
        self.a("s_endpgm")
        self.a.label("Lcode_end")
        self.a.L = self.unpk(self.a.L)
        body = self.a.finish()
        head = open("cdna_kernels/" + NAME + ".s.ref").read().split("; Override launch geometry")[0]
        return head + f"""; Generated by gen/gen_kernel.py (own generator script).  One persistent launch: 256 workgroups (one per CU) x 5 waves.
; wg -> x = wg&7, j = wg>>3.  All weights / K / V stream through LDS-DMA, all GEMVs run on 16x16x32 bf16 MFMA.
;   T (j<16)     : attention over 256 keys of (batch j>>3, kv head x); 32 of their waves also sum the FFN partials -> out
;   W (16..23)   : q partial (64 rows of wq x one kv head), then 64 columns of the output projection (j=19: sums ga/sb/cb/gb)
;   G (24..31)   : K slice of silu(c)@w_mod -> h partial and ga/sb/cb/gb partials, then 32 FFN columns (j=31: projection block 3)
; Hand-offs go through d_ws and are validated by content, never by timing or placement:
;   tagged 16-byte granules (tag = next(epoch word found in d_ws); the word is advanced once per launch), or
;   NaN-poisoned slots (the owner poisons them first and says so with a tagged flag that readers check).
;   h and the attention partials are written twice: plain (fast when both ends share an L2) and write-through (fallback).
; Every wait is bounded.
; @launch grid=(256,1,1) block=(320,1,1) lds={LDS_BYTES}
.amdgcn_target "amdgcn-amd-amdhsa--gfx950"
.text
.globl {KNAME}
.p2align 12
.type {KNAME},@function
{KNAME}:
{body}
.section .rodata,"a"
.p2align 6
.amdhsa_kernel {KNAME}
  .amdhsa_next_free_vgpr 240
  .amdhsa_next_free_sgpr 102
  .amdhsa_accum_offset 240
  .amdhsa_group_segment_fixed_size 0
  .amdhsa_kernarg_size 112
  .amdhsa_user_sgpr_count 2
  .amdhsa_user_sgpr_kernarg_segment_ptr 1
  .amdhsa_system_sgpr_workgroup_id_x 1
.end_amdhsa_kernel
"""

if __name__ == "__main__":
    import argparse
    ap = argparse.ArgumentParser()
    ap.add_argument("-o", default="cdna_kernels/" + NAME + ".s")
    ap.add_argument("--diag", action="store_true")
    ap.add_argument("--wflag", default="nt")
    ap.add_argument("--opt", action="append", default=[])
    args = ap.parse_args()
    opts = {}
    for o in args.opt:
        k, _, v = o.partition("=")
        opts[k] = int(v) if v else 1
    open(args.o, "w").write(Gen(args.diag, args.wflag, opts).build())
    print("wrote", args.o)
```
